```python
import torch

def _softmax(x, axis=-1):
    return torch.softmax(x, dim=axis)
def _gelu(x):
    return torch.nn.functional.gelu(x, approximate="tanh")
def _silu(x):
    return torch.nn.functional.silu(x)
def _sigmoid(x):
    return torch.sigmoid(x)
def _layernorm(x, axis=-1, eps=1e-5):
    m = x.mean(dim=axis, keepdim=True)
    v = x.var(dim=axis, keepdim=True, unbiased=False)
    return (x - m) / torch.sqrt(v + eps)
def _scatter_add(tgt, idx, src, axis=0):
    return tgt.clone().index_add_(axis, idx, src)
def _segment_sum(src, seg, n):
    out = torch.zeros((n,) + src.shape[1:], dtype=src.dtype)
    return out.index_add_(0, seg, src)
def _pad(x, pw):
    flat = tuple(v for pair in reversed(pw) for v in pair)
    return torch.nn.functional.pad(x, flat)

kernel_name = 'parallel_sum__ssm_conv_s5__dense_activation_mish__prompt'

def setup_inputs():

    _w = (lambda a: (lambda t: t.to(torch.bfloat16) if t.is_floating_point() else t)(torch.as_tensor(a)))
    def _A_setup():
        B, S, D = 1, 2048, 512
        P = D
        Lambda_re = -0.5 * (lambda _x: torch.exp(torch.as_tensor(_x)))((lambda *s: torch.randn(*s, dtype=torch.bfloat16) * 0.2)(P))
        Lambda_im = (lambda *s: torch.randn(*s, dtype=torch.bfloat16) * 0.8)(P) * 1.0
        B_re = (lambda *s: torch.randn(*s, dtype=torch.bfloat16) * 0.2)(P, D) * (D ** -0.5)
        B_im = (lambda *s: torch.randn(*s, dtype=torch.bfloat16) * 0.2)(P, D) * (D ** -0.5)
        C_re = (lambda *s: torch.randn(*s, dtype=torch.bfloat16) * 0.2)(D, P) * (P ** -0.5)
        C_im = (lambda *s: torch.randn(*s, dtype=torch.bfloat16) * 0.2)(D, P) * (P ** -0.5)
        log_dt = (lambda *s: torch.randn(*s, dtype=torch.bfloat16) * 0.2)(P) * 0.3 - 2.0
        Dskip = (lambda *s: torch.randn(*s, dtype=torch.bfloat16) * 0.05)(D)
        return {
            "x": _w((lambda *s: torch.randn(*s, dtype=torch.bfloat16) * 0.05)(B, S, D)),
            "Lambda_re": _w(Lambda_re),
            "Lambda_im": _w(Lambda_im),
            "B_re": _w(B_re),
            "B_im": _w(B_im),
            "C_re": _w(C_re),
            "C_im": _w(C_im),
            "log_dt": _w(log_dt),
            "Dskip": _w(Dskip),
        }
    _A_in = _A_setup()

    def _B_setup():
        B, S, D, F = 1, 2048, 512, 1792
        return {
            "x": _w((lambda *s: torch.randn(*s, dtype=torch.bfloat16) * 0.05)(B, S, D)),
            "w1": _w((lambda *s: torch.randn(*s, dtype=torch.bfloat16) * 0.8)(D, F) * (D ** -0.5)),
            "b1": _w((lambda *s: torch.randn(*s, dtype=torch.bfloat16) * 0.2)(F)),
            "w2": _w((lambda *s: torch.randn(*s, dtype=torch.bfloat16) * 0.2)(F, D) * (F ** -0.5)),
        }
    _B_in = _B_setup()

    return {
        "A_x": _A_in["x"],
        "A_Lambda_re": _A_in["Lambda_re"],
        "A_Lambda_im": _A_in["Lambda_im"],
        "A_B_re": _A_in["B_re"],
        "A_B_im": _A_in["B_im"],
        "A_C_re": _A_in["C_re"],
        "A_C_im": _A_in["C_im"],
        "A_log_dt": _A_in["log_dt"],
        "A_Dskip": _A_in["Dskip"],
        "B_x": _B_in["x"],
        "B_w1": _B_in["w1"],
        "B_b1": _B_in["b1"],
        "B_w2": _B_in["w2"],
    }

def reference(A_x, A_Lambda_re, A_Lambda_im, A_B_re, A_B_im, A_C_re, A_C_im, A_log_dt, A_Dskip, B_x, B_w1, B_b1, B_w2):
    def _A_ref(x, Lambda_re, Lambda_im, B_re, B_im, C_re, C_im, log_dt, Dskip):
        Bsz, L, H = x.shape
        Lam = Lambda_re + 1j * Lambda_im
        Bmat = B_re + 1j * B_im
        Cmat = C_re + 1j * C_im
        dt = torch.exp(log_dt)
        Lam_bar = torch.exp(dt * Lam)
        B_bar = ((Lam_bar - 1.0) / Lam)[:, None] * Bmat
        Bu = torch.einsum("bld,pd->blp", x + 0j, B_bar)
        h = torch.zeros_like(Bu[:, 0, :])
        hs = []
        for t in range(L):
            h = Lam_bar[None, :] * h + Bu[:, t, :]
            hs.append(h)
        hseq = torch.stack(hs, 1)
        y = 2.0 * torch.einsum("blp,dp->bld", hseq, Cmat).real + x * Dskip[None, None, :]
        return y

    def _B_ref(x, w1, b1, w2):
        h = torch.einsum("bsd,df->bsf", x, w1) + b1
        sp = torch.log1p(torch.exp(-torch.abs(h))) + torch.where(h > 0, h, torch.zeros_like(h))
        act = h * torch.tanh(sp)
        return torch.einsum("bsf,fd->bsd", act, w2)

    x = A_x
    xn = _layernorm(x, axis=-1)
    return x + _A_ref(xn, A_Lambda_re, A_Lambda_im, A_B_re, A_B_im, A_C_re, A_C_im, A_log_dt, A_Dskip) + _B_ref(xn, B_w1, B_b1, B_w2)
```

```python
import re

TRANS = ('v_exp_f32', 'v_log_f32', 'v_rcp_f32', 'v_rsq_f32', 'v_sqrt_f32', 'v_sin_f32', 'v_cos_f32')
RMW = ('v_fmac_f32', 'v_dot2c_f32_bf16', 'v_pk_fmac')
NO_DST_S = ('s_cmp', 's_waitcnt', 's_barrier', 's_cbranch', 's_branch', 's_nop', 's_sleep', 's_setprio',
            's_endpgm', 's_bitcmp')

_reg = re.compile(r'^(-|\|)?(abs\()?([vas])(\d+)\)?\|?$')
_rng = re.compile(r'^(-)?([vas])\[(\d+):(\d+)\]$')


def regs_of(op):
    op = op.strip()
    m = _rng.match(op)
    if m:
        return {(m.group(2), i) for i in range(int(m.group(3)), int(m.group(4)) + 1)}
    m = _reg.match(op)
    if m:
        return {(m.group(3), int(m.group(4)))}
    if op == 'vcc':
        return {('s', 'vcc')}
    if op == 'm0':
        return {('s', 'm0')}
    if op == 'exec':
        return {('s', 'exec')}
    return set()


class I:
    def __init__(self, text, tok=None, lds_r=None, lds_w=None, need=None, note=None, fills=None):
        self.text = text
        self.tok = tok
        self.lds_r = lds_r
        self.lds_w = lds_w
        self.need = need or []
        self.note = note
        self.fills = fills
        self.r = set()
        self.w = set()
        self.kind = 'other'
        self.srcC = set()
        self.srcAB = set()
        self.parse()

    def parse(self):
        t = self.text.strip()
        if t.endswith(':') or t.startswith('.') or t.startswith(';') or not t:
            self.kind = 'label'
            self.mn = ''
            return
        parts = t.split(None, 1)
        mn = parts[0]
        self.mn = mn
        rest = parts[1] if len(parts) > 1 else ''
        ops = [o.strip() for o in rest.split(',')] if rest else []
        if ops:
            last = ops[-1].split()
            ops[-1] = last[0] if last else ''
            mods = last[1:]
        else:
            mods = []
        R = [regs_of(o) for o in ops]
        allr = lambda lst: set().union(*lst) if lst else set()
        if mn.startswith('v_mfma'):
            self.kind = 'mfma'
            self.w = R[0]
            self.srcAB = R[1] | R[2]
            self.srcC = R[3]
            self.r = self.srcAB | self.srcC
            self.passes = 8 if '32x32x16' in mn else (4 if '16x16x32' in mn else 2)
        elif mn.startswith('v_'):
            base = re.sub(r'_(e32|e64|sdwa|dpp)$', '', mn)
            self.kind = 'trans' if base in TRANS else 'valu'
            self.w = R[0]
            self.r = allr(R[1:])
            if base in RMW or base.startswith('v_permlane'):
                self.r |= R[0]
            if base.startswith('v_permlane'):
                self.w |= R[1]
            if base.startswith('v_cndmask') and len(ops) == 3:
                self.r |= {('s', 'vcc')}
            if base.startswith(('v_add_co', 'v_sub_co', 'v_addc_co')):
                self.w |= R[1]
            self.dot = base.startswith('v_dot')
            self.base = base
        elif mn.startswith('ds_read'):
            self.kind = 'ds'
            self.w = R[0]
            self.r = allr(R[1:])
            if 'd16' in mn:
                self.r |= R[0]
        elif mn.startswith('ds_'):
            self.kind = 'ds'
            self.r = allr(R)
        elif mn.startswith('buffer_load') or mn.startswith('global_load'):
            self.kind = 'vm'
            if 'lds' in mods:
                self.r = allr(R) | {('s', 'm0')}
                self.dma = True
            else:
                self.w = R[0]
                self.r = allr(R[1:])
                if 'd16' in mn:
                    self.r |= R[0]
        elif mn.startswith('buffer_store') or mn.startswith('global_store'):
            self.kind = 'vm'
            self.r = allr(R)
            self.store = True
            data = R[0] if mn.startswith('buffer') else R[1]
            self.wide = data if ('x3' in mn or 'x4' in mn) else set()
        elif mn.startswith(('s_load', 's_memtime', 's_memrealtime')):
            self.kind = 'smem'
            self.w = R[0]
            self.r = allr(R[1:])
        elif mn == 's_barrier':
            self.kind = 'barrier'
        elif mn == 's_waitcnt':
            self.kind = 'wait'
        elif mn.startswith('s_'):
            self.kind = 'salu'
            if mn.startswith(NO_DST_S):
                self.r = allr(R)
            else:
                self.w = R[0]
                self.r = allr(R[1:])
            if mn.startswith(('s_addk', 's_mulk', 's_bitset')):
                self.r |= R[0]
        else:
            raise ValueError('cannot classify: ' + t)

    def slots(self):
        if self.kind == 'label':
            return 0
        if self.kind == 'trans':
            return 2
        if self.kind == 'mfma':
            return 2
        return 1


class Wait(I):
    def __init__(self, *toks):
        I.__init__(self, '; wait ' + ' '.join(toks))
        self.need = list(toks)
        self.kind = 'pseudo'


def insert_waits(prog, ds_age=10):
    out = []
    vm, lg = [], []
    done_ds = {}
    last_read_retired = {}
    pending_read = {}
    last_barrier = -1
    pos = 0
    fill_state = {}

    def retire(q, n):
        while len(q) > n:
            ins, _ = q.pop(0)
            if ins.fills is not None:
                fill_state[ins.fills[0]] = [ins.fills[1], len(out)]
            if ins.lds_r is not None:
                pending_read[ins.lds_r] -= 1
                if pending_read[ins.lds_r] == 0:
                    last_read_retired[ins.lds_r] = len(out)

    for ins in prog:
        if ins.text.startswith(';drain'):
            retire(vm, 0)
            retire(lg, 0)
            continue
        touched = ins.r | ins.w
        nv = nl = None
        for q, which in ((vm, 'v'), (lg, 'l')):
            need = None
            for k, (o, _) in enumerate(q):
                hit = bool(o.w & touched) or (o.tok is not None and o.tok in ins.need)
                if hit:
                    need = len(q) - 1 - k
            if need is not None:
                if which == 'l':
                    k = len(q) - 1 - need
                    while k + 1 < len(q) and pos - q[k + 1][1] >= ds_age:
                        k += 1
                    nl = min(len(q) - 1 - k, 15)
                else:
                    nv = min(need, 63)
        if ins.kind == 'wait':
            m = re.search(r'vmcnt\((\d+)\)', ins.text)
            if m:
                retire(vm, int(m.group(1)))
            m = re.search(r'lgkmcnt\((\d+)\)', ins.text)
            if m:
                retire(lg, int(m.group(1)))
        if nv is not None or nl is not None:
            txt = 's_waitcnt'
            if nv is not None:
                txt += f' vmcnt({nv})'
                retire(vm, nv)
            if nl is not None:
                txt += f' lgkmcnt({nl})'
                retire(lg, nl)
            out.append(I(txt))
            pos += 1
        if ins.kind == 'pseudo':
            continue
        if ins.lds_w is not None:
            slot, shared_before = ins.lds_w
            assert pending_read.get(slot, 0) == 0, f'LDS slot {slot} overwritten while read outstanding: {ins.text}'
            if shared_before and slot in last_read_retired:
                assert last_barrier >= last_read_retired[slot], \
                    f'LDS slot {slot} reused without a barrier after its last read: {ins.text} ({ins.note})'
        if ins.lds_w is not None:
            fill_state[ins.lds_w[0]] = None
        if ins.lds_r is not None:
            st = fill_state.get(ins.lds_r)
            assert st is not None, f'LDS slot {ins.lds_r} read before its fill was waited for: {ins.text}'
            assert not st[0] or last_barrier >= st[1], f'shared slot {ins.lds_r} read without barrier: {ins.text}'
        if ins.kind == 'barrier':
            last_barrier = len(out)
        out.append(ins)
        pos += ins.slots()
        if ins.kind == 'vm':
            vm.append((ins, pos))
            assert len(vm) <= 63, 'vmcnt overflow'
        elif ins.kind == 'ds':
            lg.append((ins, pos))
            if ins.lds_r is not None:
                pending_read[ins.lds_r] = pending_read.get(ins.lds_r, 0) + 1
    return out


def states(ins):
    if ins.kind in ('label', 'pseudo'):
        return 0
    if ins.mn == 's_nop':
        return int(ins.text.split()[1]) + 1
    return 1


def required_gap(p, c):
    vgpr = lambda s: {x for x in s if x[0] in 'va'}
    sgpr = lambda s: {x for x in s if x[0] == 's'}
    g = 0
    pv = p.kind in ('valu', 'trans')
    cv = c.kind in ('valu', 'trans')
    if pv:
        wv = vgpr(p.w)
        ws = sgpr(p.w)
        if c.kind == 'mfma' and wv & c.r:
            g = max(g, 2)
        if p.kind == 'trans' and cv and c.kind != 'trans' and wv & c.r:
            g = max(g, 1)
        if p.kind == 'trans' and c.kind == 'trans' and wv & c.r:
            g = max(g, 1)
        if cv and c.base.startswith('v_permlane') and wv & c.r:
            g = max(g, 2)
        if cv and c.base.startswith(('v_readfirstlane', 'v_readlane')) and wv & c.r:
            g = max(g, 1)
        if cv and '_dpp' in c.mn and wv & c.r:
            g = max(g, 2)
        if ws & c.r:
            if cv:
                g = max(g, 2)
            elif c.kind == 'vm':
                g = max(g, 5)
            elif c.kind == 'salu':
                g = max(g, 1)
        if getattr(p, 'dot', False) and wv & (c.r | c.w):
            same = cv and c.base == p.base and not (wv & (c.r - c.w))
            if not same:
                g = max(g, 3)
    if p.kind == 'mfma':
        big = {2: 5, 4: 8, 8: 12}[p.passes]
        if c.kind == 'mfma':
            if p.w & c.srcAB:
                g = max(g, big)
            if p.w & c.srcC and not (p.w == c.srcC and p.passes == c.passes):
                g = max(g, {2: 4, 4: 6, 8: 10}[p.passes])
            if p.w == c.srcC and p.passes == 2:
                g = max(g, 2)
            if p.w & c.w and not (p.w & c.srcC):
                g = max(g, big)
        elif c.kind in ('valu', 'trans', 'ds', 'vm'):
            if p.w & (c.r | c.w):
                g = max(g, big)
            if cv and p.srcC & c.w:
                g = max(g, {2: 1, 4: 3, 8: 7}[p.passes])
    if p.kind == 'salu' and ('s', 'm0') in p.w and ('s', 'm0') in c.r and c.kind == 'vm':
        g = max(g, 1)
    if p.kind == 'vm' and getattr(p, 'wide', None) and p.wide & c.w:
        g = max(g, 2)
    return g


def pad_hazards(prog, window=24):
    out = []
    for ins in prog:
        if ins.kind not in ('label', 'pseudo'):
            dist = 0
            short = 0
            for p in reversed(out):
                if dist >= window:
                    break
                if p.kind not in ('label', 'pseudo'):
                    short = max(short, required_gap(p, ins) - dist)
                dist += states(p)
            while short > 0:
                n = min(short, 16)
                out.append(I(f's_nop {n - 1}'))
                short -= n
        out.append(ins)
    return out


def render(prog):
    lines = []
    for ins in prog:
        t = ins.text
        if ins.kind == 'label':
            lines.append(t)
        else:
            lines.append('    ' + t)
    return '\n'.join(lines)


def weave(mfmas, fill, pinned=None, first_gap=0, last_gap=None):
    pinned = pinned or {}
    n = len(mfmas)
    last_gap = n - 1 if last_gap is None else last_gap
    fixed = [sum(i.slots() for i in mfmas[g]) + sum(i.slots() for i in pinned.get(g, [])) for g in range(n)]
    total = sum(i.slots() for i in fill)
    span = list(range(first_gap, last_gap + 1))
    level = (total + sum(fixed[g] for g in span)) / len(span)
    out = []
    k = 0
    credit = 0.0
    for g in range(n):
        out += mfmas[g]
        out += pinned.get(g, [])
        if first_gap <= g <= last_gap:
            credit += level - fixed[g]
            while k < len(fill) and (credit >= fill[k].slots() - 0.5 or g == last_gap):
                out.append(fill[k])
                credit -= fill[k].slots()
                k += 1
                while k < len(fill) and fill[k].mn.startswith(('s_cselect', 's_cbranch')):
                    out.append(fill[k])
                    credit -= fill[k].slots()
                    k += 1
    assert k == len(fill)
    return out
```

```python
import sys, os
sys.path.insert(0, os.path.dirname(os.path.abspath(__file__)))
from asmlib import I, Wait, insert_waits, pad_hazards, render, weave

KN = 'parallel_sum__ssm_conv_s5__dense_activation_mish__prompt_kernel'
OPT = dict(prof=0, spin=20000, out_flags='', burst=6, la3=6)
for a in sys.argv[2:]:
    k, v = a.split('=')
    OPT[k] = int(v) if v.lstrip('-').isdigit() else v
PROF = OPT['prof']

WS_EP, WS_FL, WS_AG, WS_A = 0, 0x1000, 0x8000, 0x40000
WS_SIZE = WS_A + 64 * 176 * 1024
WS_PROF = 0xC00000
OOB = 0x7ff00000
SLOT = 16384
TB = 9 * SLOT
T_STAT, T_B1, T_SEG, T_LB, T_H = TB, TB + 1024, TB + 2048, TB + 6144, TB + 8192
LOG2E, LN2, M2LN2 = 0x3fb8aa3b, 0x3f317218, 0xbfb17218
INV2PI = '0.15915494'

sX, sB, sW1, sCre, sCim, sW2, sWS, sOUT, sTMP = 36, 40, 44, 48, 52, 56, 60, 64, 68
sI, sJ, sW, sROT, sTAG, sE2 = 72, 73, 74, 75, 76, 77
sKC = [78, 79, 80, 81]
sWOFF, sT0, sT1, sXB, sBB, sW1A, sW1B = 82, 83, 84, 85, 86, 87, 88
sAS = 89
sFST = [90, 91, 92, 93]
sSST, sCB, sW2B, sFSEL, sONES, sCNT, sR, sT2 = 94, 95, 96, 97, 98, 99, 100, 101
srd = lambda b: f's[{b}:{b + 3}]'
vL, t0, t1, t2 = 0, 1, 2, 3
AS = [4, 5, 6, 7]
ASc = [8, 9, 10, 11]
XG = [12, 13, 14, 15]
PG = [16, 17, 18, 19]
QG = [20, 21, 22, 23]
FA0, FAc, RL2, VLN2, VL16, VNM, VRS, t3 = 24, 25, 26, 27, 28, 29, 30, 31
LR, LI, NLI, CR, NCI, NCR, L16R, L16I, LSR, LSI, L128R, L128I, WR, WI, PR, PI = range(32, 48)
TT = 48
FACC = [64, 80]
SRE, SIM = 96, 112
X = 128
aS, aF, aP, aC = 0, 32, 64, 128
vr = lambda b, n: f'v[{b}:{b + n - 1}]'
ar = lambda b, n: f'a[{b}:{b + n - 1}]'

stamp_regs = [4, 6, 8, 10, 12, 14, 16, 18, 22, 24, 26, 28, 30, 32, 34]
stamp_names = []


def stamp(name):
    if not PROF:
        return []
    r = stamp_regs[len(stamp_names)]
    stamp_names.append(name)
    return [I(f's_memtime s[{r}:{r + 1}]')]


def L(text):
    return [I(t.strip()) for t in text.strip().split('\n') if t.strip()]


def mfma(d, a, b, c):
    return I(f'v_mfma_f32_32x32x16_bf16 {d}, {a}, {b}, {c}')


slot_shared = {}


def dma_round(name, slot, voffs, rsrc, soff_code, shared):
    out = [I(f's_add_u32 m0, s{sWOFF}, {slot * SLOT}')] + L(soff_code)
    for g in range(4):
        out.append(I(f'buffer_load_dwordx4 v{voffs[g]}, {srd(rsrc)}, s{sT0} offen offset:{1024 * g} lds',
                     tok=name if g == 3 else None,
                     lds_w=(slot, slot_shared.get(slot, False)) if g == 0 else None, note=name,
                     fills=(slot, shared) if g == 3 else None))
    slot_shared[slot] = shared
    return out


def rx(s, slot):
    return dma_round(f'x{s}', slot, XG, sX,
                     f's_add_u32 s{sT0}, s{sROT}, {s}\ns_and_b32 s{sT0}, s{sT0}, 7\n'
                     f's_lshl_b32 s{sT0}, s{sT0}, 7\ns_add_u32 s{sT0}, s{sT0}, s{sXB}', False)


G_SLOT = [4, 5, 6, 7, 8, 0, 1, 2, 7, 5, 6, 3]
C_SLOT = [3, 4, 3, 4, 5, 6, 3, 4]
W_SLOT = [4, 8, 0, 1, 2, 7, 5, 6, 3, 4, 8, 0, 1, 2]


def rg(g):
    if g < 4:
        return dma_round(f'G{g}', G_SLOT[g], PG, sB,
                         f's_lshl_b32 s{sT0}, s{sKC[g]}, 7\ns_add_u32 s{sT0}, s{sT0}, s{sBB}', True)
    base = sW1A if g < 8 else sW1B
    return dma_round(f'G{g}', G_SLOT[g], QG, sW1,
                     f's_mul_i32 s{sT0}, s{sKC[g & 3]}, {64 * 3584}\ns_add_u32 s{sT0}, s{sT0}, s{base}', True)


C_PAIRS = [(0, 0), (1, 0), (0, 1), (1, 1)]


def rc(cc):
    ri, kc = C_PAIRS[cc >> 1]
    nb = cc & 1
    code = f's_add_u32 s{sT0}, s{sCB}, {kc * 128}'
    if nb:
        code += f'\ns_xor_b32 s{sT0}, s{sT0}, {32 * 1024}'
    return dma_round(f'C{cc}', C_SLOT[cc], PG, sCim if ri else sCre, code, False)


def rc_read(cc):
    out = [I(f'v_add_u32 v{ASc[q]}, s{sT1}, v{AS[q]}') for q in range(4)]
    out = [I(f's_add_u32 s{sT1}, s{sWOFF}, {C_SLOT[cc] * SLOT}')] + out + [Wait(f'C{cc}')]
    for q in range(4):
        out.append(I(f'ds_read_b128 {ar(aC + 16 * cc + 4 * q, 4)}, v{ASc[q]}', lds_r=C_SLOT[cc],
                     tok=f'Cr{cc}' if q == 3 else None))
    return out


HB_ORDER = [0, 1, 4, 5, 8, 9, 12, 13, 2, 6, 7, 10, 3, 11]


def rw(e):
    return dma_round(f'W{e}', W_SLOT[e], PG, sW2, f's_add_u32 s{sT0}, s{sW2B}, {HB_ORDER[e] * 32 * 1024}', False)


retry_blocks = []


def poll(name, loads, check):
    retry_blocks.append((name, loads, check))
    return L(check) + [I(f's_cbranch_vccnz L_retry_{name}'), I(f'L_back_{name}:')]


def cexp(dr, di, scale, zr, za):
    return L(f'''v_mul_f32 v{dr}, {scale}, v{zr}
        v_mul_f32 v{di}, {scale}, v{za}
        v_exp_f32 v{dr}, v{dr}
        v_fract_f32 v{di}, v{di}
        v_cos_f32 v{t3}, v{di}
        v_sin_f32 v{di}, v{di}
        v_mul_f32 v{di}, v{dr}, v{di}
        v_mul_f32 v{dr}, v{dr}, v{t3}''')


def cmul_add(dr, di, ar_, ai, br, bi, cr=None, ci=None):
    if cr is None:
        head = f'v_mul_f32 v{dr}, v{ar_}, v{br}\nv_mul_f32 v{di}, v{ar_}, v{bi}'
    else:
        head = f'v_fma_f32 v{dr}, v{ar_}, v{br}, v{cr}\nv_fma_f32 v{di}, v{ar_}, v{bi}, v{ci}'
    return L(head + f'\nv_fma_f32 v{dr}, -v{ai}, v{bi}, v{dr}\nv_fmac_f32 v{di}, v{ai}, v{br}')


def mish(b, voff=VL16):
    A = FACC[b & 1]
    out = [I(f'ds_read_b128 {vr(TT + 4 * q, 4)}, v{t2} offset:{T_B1 - TB + 128 * b + 16 * q}') for q in range(4)]
    for q in range(4):
        rs = range(4 * q, 4 * q + 4)
        out += [I(f'v_fmac_f32 v{TT + r}, v{A + r}, v{RL2}') for r in rs]
        out += [I(f'v_exp_f32 v{A + r}, v{TT + r}') for r in rs]
        out += [I(f'v_add_f32 v{A + r}, 1.0, v{A + r}') for r in rs]
        out += [I(f'v_fma_f32 v{A + r}, v{A + r}, v{A + r}, 1.0') for r in rs]
        out += [I(f'v_rcp_f32 v{A + r}, v{A + r}') for r in rs]
        out += [I(f'v_fmamk_f32 v{A + r}, v{A + r}, {M2LN2:#x}, v{VLN2}') for r in rs]
        out += [I(f'v_mul_f32 v{TT + r}, v{TT + r}, v{A + r}') for r in rs]
        out += [I(f'v_cvt_pk_bf16_f32 v{A + p}, v{TT + 2 * p}, v{TT + 2 * p + 1}') for p in (2 * q, 2 * q + 1)]
        if q & 1:
            fr = q >> 1
            out.append(I(f'buffer_store_dwordx4 {vr(A + 4 * fr, 4)}, v{voff}, {srd(sWS)}, s{sFST[b]} offen '
                         f'offset:{1024 * fr} sc1', tok=f'stF{b}' if fr else None))
    return out


P = []
P += L(f'''
s_cmp_ge_u32 s2, 256
s_cbranch_scc1 L_end
{'s_memtime s[98:99]' if PROF else ''}
{'s_memrealtime s[100:101]' if PROF else ''}
s_load_dwordx16 s[4:19], s[0:1], 0
s_load_dwordx16 s[20:35], s[0:1], 64
s_getpc_b64 s[{sTMP}:{sTMP + 1}]
v_lshrrev_b32 v{t0}, 6, v0
v_and_b32 v{vL}, 63, v0
s_and_b32 s{sTMP}, s{sTMP}, 0xffffff80
v_readfirstlane_b32 s{sW}, v{t0}
s_mov_b32 s{sTMP + 2}, L_code_end-{KN}
s_mov_b32 s{sTMP + 3}, 0x00020000
s_lshr_b32 s{sT0}, s2, 3
s_lshl_b32 s{sT0}, s{sT0}, 2
s_add_u32 s{sT0}, s{sT0}, s{sW}
s_lshl_b32 s{sT0}, s{sT0}, 9
v_and_b32 v{t1}, 3, v{vL}
v_lshlrev_b32 v{t1}, 7, v{t1}
buffer_load_dword v{t3}, v{t1}, {srd(sTMP)}, s{sT0} offen
s_and_b32 s{sI}, s2, 7
s_lshl_b32 s{sI}, s{sI}, 1
s_bfe_u32 s{sT0}, s2, 0x10003
s_or_b32 s{sI}, s{sI}, s{sT0}
s_lshr_b32 s{sJ}, s2, 4
s_lshl_b32 s{sROT}, s{sT0}, 2
s_add_u32 s{sROT}, s{sROT}, s{sJ}
s_and_b32 s{sT0}, s2, 7
s_add_u32 s{sROT}, s{sROT}, s{sT0}
s_and_b32 s{sROT}, s{sROT}, 7
s_lshl_b32 s{sWOFF}, s{sW}, 12
s_lshl_b32 s{sXB}, s{sI}, 17
s_lshl_b32 s{sT0}, s{sW}, 15
s_add_u32 s{sXB}, s{sXB}, s{sT0}
v_lshrrev_b32 v{t0}, 3, v{vL}
v_lshrrev_b32 v{t1}, 4, v{vL}
v_xor_b32 v{t1}, v{t1}, v{vL}
v_and_b32 v{t1}, 7, v{t1}
v_lshlrev_b32 v{t1}, 4, v{t1}
v_lshl_add_u32 v{PG[0]}, v{t0}, 10, v{t1}
v_lshrrev_b32 v{t2}, 5, v{vL}
v_mul_u32_u24 v{t2}, {12 * 1024}, v{t2}
v_add_u32 v{XG[0]}, v{PG[0]}, v{t2}
v_xor_b32 v{XG[1]}, 64, v{XG[0]}
v_add_u32 v{XG[2]}, {6 * 1024}, v{XG[0]}
v_add_u32 v{XG[3]}, {9 * 1024}, v{XG[1]}
v_add_u32 v{XG[1]}, {3 * 1024}, v{XG[1]}
s_waitcnt lgkmcnt(0)
{'v_accvgpr_write_b32 a96, s98' if PROF else ''}
{'v_accvgpr_write_b32 a97, s100' if PROF else ''}
s_mov_b32 s{sX}, s4
s_mov_b32 s{sX + 1}, s5
s_mov_b32 s{sX + 2}, 2097152
s_mov_b32 s{sX + 3}, 0x00020000
''')
P += rx(0, 0) + rx(1, 1) + rx(2, 2)
P += L(f'''
s_load_dword s{sE2}, s[34:35], {WS_EP}
v_and_b32 v{t0}, 31, v{vL}
s_lshl_b32 s{sT0}, s{sJ}, 6
v_lshl_add_u32 v{t1}, v{t0}, 1, s{sT0}
global_load_ushort v{LR}, v{t1}, s[6:7]
global_load_ushort v{LI}, v{t1}, s[8:9]
global_load_ushort v{NLI}, v{t1}, s[18:19]
s_and_b32 s{sT1}, s{sJ}, 3
s_lshr_b32 s{sT2}, s{sJ}, 2
s_mul_i32 s{sT2}, s{sT2}, 7
s_lshl_b32 s{sW1A}, s{sT1}, 1
s_add_u32 s{sW1B}, s{sW1A}, 1
s_cmp_eq_u32 s{sT1}, 3
s_cselect_b32 s{sW1B}, 3, s{sW1B}
s_cselect_b32 s{sFSEL}, 64, 0
s_lshl_b32 s{sAS}, s{sI}, 2
s_add_u32 s{sAS}, s{sAS}, s{sW}
s_lshl_b32 s{sAS}, s{sAS}, 2
s_lshr_b32 s{sT0}, s{sJ}, 2
s_add_u32 s{sAS}, s{sAS}, s{sT0}
s_mul_i32 s{sAS}, s{sAS}, {44 * 1024}
s_add_u32 s{sAS}, s{sAS}, {WS_A}
s_lshl_b32 s{sT0}, s{sW1A}, 12
s_add_u32 s{sFST[0]}, s{sAS}, s{sT0}
s_add_u32 s{sFST[1]}, s{sFST[0]}, 2048
s_lshl_b32 s{sT0}, s{sW1B}, 12
s_add_u32 s{sFST[3]}, s{sAS}, s{sT0}
s_lshl_b32 s{sT0}, s{sFSEL}, 5
s_add_u32 s{sFST[2]}, s{sFST[3]}, s{sT0}
s_add_u32 s{sFST[3]}, s{sFST[3]}, 2048
s_lshl_b32 s{sT0}, s{sT1}, 12
s_add_u32 s{sSST}, s{sAS}, s{sT0}
s_add_u32 s{sSST}, s{sSST}, {28 * 1024}
s_add_u32 s{sW1A}, s{sW1A}, s{sT2}
s_add_u32 s{sW1B}, s{sW1B}, s{sT2}
s_lshl_b32 s{sW1A}, s{sW1A}, 7
s_lshl_b32 s{sW1B}, s{sW1B}, 7
s_cmp_ge_u32 s{sW}, 2
s_cselect_b32 s{sT0}, s{sW1B}, s{sW1A}
s_cselect_b32 s{sT1}, s{sFSEL}, 0
s_and_b32 s{sT2}, s{sW}, 1
s_lshl_b32 s{sT2}, s{sT2}, 6
s_xor_b32 s{sT1}, s{sT1}, s{sT2}
s_add_u32 s{sT0}, s{sT0}, s{sT1}
v_and_b32 v{t1}, 3, v{vL}
v_bfe_u32 v{t2}, v{vL}, 2, 2
v_lshl_add_u32 v{t1}, v{t2}, 3, v{t1}
v_bfe_u32 v{t2}, v{vL}, 4, 1
v_lshl_add_u32 v{t1}, v{t2}, 2, v{t1}
v_lshl_add_u32 v{t1}, v{t1}, 1, s{sT0}
global_load_ushort v{CR}, v{t1}, s[26:27]
s_and_b32 s{sT0}, s{sW}, 1
s_cmp_eq_u32 s{sT0}, 1
s_cselect_b32 s{sB}, s12, s10
s_cselect_b32 s{sB + 1}, s13, s11
s_mul_i32 s{sT0}, s{sT0}, {32 * 3584}
s_add_u32 s{sW1A}, s{sW1A}, s{sT0}
s_add_u32 s{sW1B}, s{sW1B}, s{sT0}
s_mov_b32 s{sB + 2}, 524288
s_mov_b32 s{sB + 3}, 0x00020000
s_mov_b32 s{sW1}, s24
s_mov_b32 s{sW1 + 1}, s25
s_mov_b32 s{sW1 + 2}, 1835008
s_mov_b32 s{sW1 + 3}, 0x00020000
s_mov_b32 s{sCre}, s14
s_mov_b32 s{sCre + 1}, s15
s_mov_b32 s{sCre + 2}, 524288
s_mov_b32 s{sCre + 3}, 0x00020000
s_mov_b32 s{sCim}, s16
s_mov_b32 s{sCim + 1}, s17
s_mov_b32 s{sCim + 2}, 524288
s_mov_b32 s{sCim + 3}, 0x00020000
s_mov_b32 s{sW2}, s28
s_mov_b32 s{sW2 + 1}, s29
s_mov_b32 s{sW2 + 2}, 1835008
s_mov_b32 s{sW2 + 3}, 0x00020000
s_mov_b32 s{sWS}, s34
s_mov_b32 s{sWS + 1}, s35
s_mov_b32 s{sWS + 2}, {(WS_PROF + 0x40000) if PROF else WS_SIZE}
s_mov_b32 s{sWS + 3}, 0x00020000
s_mov_b32 s{sOUT}, s30
s_mov_b32 s{sOUT + 1}, s31
s_mov_b32 s{sOUT + 2}, 4194304
s_mov_b32 s{sOUT + 3}, 0x00020000
s_lshl_b32 s{sBB}, s{sJ}, 15
s_lshr_b32 s{sT0}, s{sW}, 1
s_add_u32 s{sT0}, s{sT0}, s{sROT}
s_and_b32 s{sKC[0]}, s{sT0}, 7
s_add_u32 s{sT0}, s{sT0}, 2
s_and_b32 s{sKC[1]}, s{sT0}, 7
s_add_u32 s{sT0}, s{sT0}, 2
s_and_b32 s{sKC[2]}, s{sT0}, 7
s_add_u32 s{sT0}, s{sT0}, 2
s_and_b32 s{sKC[3]}, s{sT0}, 7
s_and_b32 s{sR}, s{sJ}, 1
s_lshr_b32 s{sT0}, s{sJ}, 1
s_lshl_b32 s{sCB}, s{sT0}, 16
s_and_b32 s{sT1}, s{sW}, 1
s_lshl_b32 s{sT1}, s{sT1}, 15
s_add_u32 s{sCB}, s{sCB}, s{sT1}
s_lshl_b32 s{sT1}, s{sW}, 8
s_add_u32 s{sCB}, s{sCB}, s{sT1}
s_mul_i32 s{sW2B}, s{sW}, {448 * 1024}
s_lshl_b32 s{sT0}, s{sT0}, 7
s_add_u32 s{sW2B}, s{sW2B}, s{sT0}
s_mov_b32 s{sONES}, 0x3f803f80
v_xor_b32 v{PG[1]}, 64, v{PG[0]}
v_add_u32 v{PG[2]}, {14 * 1024}, v{PG[0]}
v_add_u32 v{PG[3]}, {21 * 1024}, v{PG[1]}
v_add_u32 v{PG[1]}, {7 * 1024}, v{PG[1]}
v_lshrrev_b32 v{t1}, 3, v{vL}
v_mul_u32_u24 v{t1}, 3584, v{t1}
v_bfe_u32 v{t2}, v{vL}, 4, 1
v_lshlrev_b32 v{t2}, 2, v{t2}
v_xor_b32 v{t2}, v{t2}, v{vL}
v_and_b32 v{t2}, 7, v{t2}
v_lshl_add_u32 v{QG[0]}, v{t2}, 4, v{t1}
v_add_u32 v{QG[1]}, {27648}, v{QG[0]}
v_add_u32 v{QG[2]}, {2 * 27648}, v{QG[0]}
v_add_u32 v{QG[3]}, {3 * 27648}, v{QG[0]}
v_lshrrev_b32 v{t1}, 5, v{vL}
v_bfe_u32 v{t2}, v{vL}, 1, 3
v_xor_b32 v{t1}, v{t1}, v{t2}
v_lshlrev_b32 v{t1}, 4, v{t1}
v_lshl_add_u32 v{AS[0]}, v{t0}, 7, v{t1}
v_xor_b32 v{AS[1]}, 32, v{AS[0]}
v_xor_b32 v{AS[2]}, 64, v{AS[0]}
v_xor_b32 v{AS[3]}, 0x60, v{AS[0]}
v_add_u32 v{ASc[0]}, s{sWOFF}, v{AS[0]}
v_add_u32 v{ASc[1]}, s{sWOFF}, v{AS[1]}
v_add_u32 v{ASc[2]}, s{sWOFF}, v{AS[2]}
v_add_u32 v{ASc[3]}, s{sWOFF}, v{AS[3]}
v_bfe_u32 v{t1}, v{vL}, 2, 2
v_lshrrev_b32 v{t2}, 5, v{vL}
v_lshl_add_u32 v{t2}, v{t2}, 3, v{t1}
v_lshlrev_b32 v{FA0}, 7, v{t2}
v_lshrrev_b32 v{t1}, 1, v{t1}
v_lshl_add_u32 v{FA0}, v{t1}, 6, v{FA0}
v_bfe_u32 v{t1}, v{vL}, 4, 1
v_lshl_add_u32 v{FA0}, v{t1}, 5, v{FA0}
v_and_b32 v{t1}, 3, v{vL}
v_lshl_add_u32 v{FA0}, v{t1}, 3, v{FA0}
v_lshlrev_b32 v{VL16}, 4, v{vL}
v_mov_b32 v{VLN2}, {LN2:#x}
''')
P += L(f'''
v_bfe_u32 v{t0}, v{vL}, 2, 1
v_lshrrev_b32 v{t1}, 5, v{vL}
v_and_b32 v{t2}, 1, v{vL}
v_lshlrev_b32 v{t2}, 4, v{t2}
v_mov_b32 v{VNM}, 0x3f80
v_lshlrev_b32 v{t2}, v{t2}, v{VNM}
v_cmp_eq_u32 vcc, v{t0}, v{t1}
v_bfe_u32 v{t0}, v{vL}, 1, 1
v_bfe_u32 v{t1}, v{vL}, 3, 2
v_cndmask_b32 v{t2}, 0, v{t2}, vcc
v_lshl_add_u32 v{t0}, v{t1}, 1, v{t0}
''')
for q in range(8):
    P += L(f'v_cmp_eq_u32 vcc, {q}, v{t0}\nv_cndmask_b32 v{TT + q}, 0, v{t2}, vcc')
SUM, SQ = [TT + 8, TT + 9], [TT + 10, TT + 11]
P += L(f'''
v_mov_b32 v{SUM[0]}, 0
v_mov_b32 v{SUM[1]}, 0
v_mov_b32 v{SQ[0]}, 0
v_mov_b32 v{SQ[1]}, 0
s_lshl_b32 s{sT0}, s{sW}, 9
s_add_u32 s{sT0}, s{sT0}, {T_SEG}
v_lshl_add_u32 v{t0}, v{vL}, 3, s{sT0}''')
P.append(I(f'ds_write_b64 v{t0}, {vr(SUM[0], 2)}', tok='zero'))
P += L(f'''s_waitcnt lgkmcnt(0)
s_mul_i32 s{sE2}, s{sE2}, 1664525
s_add_u32 s{sE2}, s{sE2}, 1013904226
s_or_b32 s{sTAG}, s{sE2}, 1''')
P += stamp('start')

for s in range(8):
    P.append(Wait(f'x{s}'))
    if s == 0:
        P += stamp('x0')
    for q in range(4):
        P.append(I(f'ds_read_b128 {vr(X + 16 * s + 4 * q, 4)}, v{ASc[q]} offset:{(s & 3) * SLOT}', lds_r=s & 3))
    P += rx(s + 3, (s + 3) & 3) if s < 5 else rg(s - 5)
    for r in range(16):
        P.append(I(f'v_dot2c_f32_bf16 v{SUM[r & 1]}, s{sONES}, v{X + 16 * s + r}'))
        P.append(I(f'v_dot2c_f32_bf16 v{SQ[r & 1]}, v{X + 16 * s + r}, v{X + 16 * s + r}'))
P += stamp('x7')
P += L(f'''
v_add_f32 v{SUM[0]}, v{SUM[0]}, v{SUM[1]}
v_add_f32 v{SQ[0]}, v{SQ[0]}, v{SQ[1]}
v_mov_b32 v{SUM[1]}, v{SUM[0]}
v_mov_b32 v{SQ[1]}, v{SQ[0]}
v_permlane32_swap_b32 v{SUM[1]}, v{SUM[0]}
v_permlane32_swap_b32 v{SQ[1]}, v{SQ[0]}
v_add_f32 v{SUM[0]}, v{SUM[0]}, v{SUM[1]}
v_add_f32 v{SQ[0]}, v{SQ[0]}, v{SQ[1]}
v_mul_f32 v{SUM[0]}, 0x3b000000, v{SUM[0]}
v_mul_f32 v{SQ[0]}, 0x3b000000, v{SQ[0]}
v_fma_f32 v{SQ[0]}, -v{SUM[0]}, v{SUM[0]}, v{SQ[0]}
v_max_f32 v{SQ[0]}, 0, v{SQ[0]}
v_cvt_pk_bf16_f32 v{t0}, v{SUM[0]}, v{SQ[0]}
v_lshlrev_b32 v{VNM}, 16, v{t0}
v_sub_f32 v{SIM}, 0, v{VNM}
v_sub_f32 v{SIM + 1}, 0, v{VNM}
''')
P += [I(f'v_mov_b64 {vr(SIM + 2 * q, 2)}, {vr(SIM, 2)}') for q in range(1, 8)]

DB = [FACC[0], FACC[1], SRE]
items = []
for q in range(16):
    d = vr(DB[q % 3], 16)
    for h in range(2):
        it = [mfma(d, vr(TT + 4 * h, 4), vr(X + 8 * q + 4 * h, 4), vr(SIM, 16) if h == 0 else d)]
        if q >= 2:
            o = q - 2
            it += [I(f'v_cvt_pk_bf16_f32 v{X + 8 * o + 4 * h + e}, v{DB[o % 3] + 8 * h + 2 * e}, '
                     f'v{DB[o % 3] + 8 * h + 2 * e + 1}') for e in range(4)]
        items.append(it)
fill = L(f'''
v_and_b32 v{t0}, 0xffff0000, v{t0}
v_add_f32 v{t0}, 0x3727c5ac, v{t0}
v_cvt_pk_bf16_f32 v{t0}, v{t0}, v{t0}
v_lshlrev_b32 v{t0}, 16, v{t0}
v_sqrt_f32 v{t0}, v{t0}
v_and_b32 v{t1}, 3, v{vL}
v_cvt_pk_bf16_f32 v{t0}, v{t0}, v{t0}
v_lshlrev_b32 v{t0}, 16, v{t0}
v_rcp_f32 v{VRS}, v{t0}
v_bfe_u32 v{t2}, v{vL}, 3, 2
v_lshl_add_u32 v{t1}, v{t2}, 2, v{t1}
v_bfe_u32 v{t2}, v{vL}, 2, 1
v_lshl_add_u32 v{t1}, v{t2}, 4, v{t1}
s_lshl_b32 s{sT1}, s{sW}, 8
s_add_u32 s{sT1}, s{sT1}, {T_STAT}
v_lshl_add_u32 v{t1}, v{t1}, 2, s{sT1}
v_mul_f32 v{RL2}, {LOG2E:#x}, v{VRS}
ds_write_b32 v{t1}, v{VNM}
ds_write_b32 v{t1}, v{VRS} offset:128
v_lshlrev_b32 v{CR}, 16, v{CR}
v_mul_f32 v{CR}, {LOG2E:#x}, v{CR}
v_and_b32 v{t1}, 31, v{vL}
s_lshl_b32 s{sT1}, s{sW}, 7
s_add_u32 s{sT1}, s{sT1}, {T_B1}
v_lshl_add_u32 v{t1}, v{t1}, 2, s{sT1}''')
fill.append(I(f'ds_write_b32 v{t1}, v{CR}', tok='tabw'))
LA_S, LA_F = 3, 4


def s_addr(g):
    return [I(f'v_add_u32 v{ASc[q]}, {G_SLOT[g] * SLOT}, v{AS[q]}') for q in range(4)]


def s_read(s, ri):
    return I(f'ds_read_b128 {ar(aS + 8 * (s & 3) + 4 * ri, 4)}, v{ASc[s & 3]} offset:{(2 * ((s >> 2) & 1) + ri) * 4096}',
             lds_r=G_SLOT[s >> 3])


def f_addr(b, g):
    slot = G_SLOT[(4 if b < 2 else 8) + g]
    if b < 2:
        sel = [I(f'v_xor_b32 v{FAc}, 64, v{FA0}')] if b else []
        return sel + [I(f'v_add_u32 v{FAc}, {slot * SLOT}, v{FAc if b else FA0}')]
    return [I(f'v_xor_b32 v{FAc}, s{sFSEL}, v{FA0}'), I(f'v_add_u32 v{FAc}, {slot * SLOT}, v{FAc}')]


def f_read(b, s):
    out = f_addr(b, s >> 3) if s % 8 == 0 else []
    k = (32 * b + s) & 7
    for u in range(2):
        out.append(I(f'ds_read_b64_tr_b16 {ar(aF + 4 * k + 2 * u, 2)}, v{FAc} '
                     f'offset:{((s >> 1) & 3) * 4096 + (s & 1) * 2048 + u * 512}',
                     lds_r=G_SLOT[(4 if b < 2 else 8) + (s >> 3)]))
    return out


pin = {2: rg(3), 12: rg(4), 22: rg(5),
       27: s_addr(0) + [Wait('G0', 'G1', 'tabw', 'zero'), I('s_barrier')]}
for k in range(LA_S):
    pin[28 + k] = [s_read(k, 0), s_read(k, 1)]
P += weave(items, fill, pin, 0, 20)
for o in (14, 15):
    P += [I(f'v_cvt_pk_bf16_f32 v{X + 8 * o + e}, v{DB[o % 3] + 2 * e}, v{DB[o % 3] + 2 * e + 1}') for e in range(8)]
P += stamp('centred')

S_items = []
for s in range(32):
    for ri, acc in ((0, SRE), (1, SIM)):
        it = [mfma(vr(acc, 16), vr(X + 4 * s, 4), ar(aS + 8 * (s & 3) + 4 * ri, 4), vr(acc, 16) if s else '0')]
        n = s + LA_S
        if n < 32:
            if ri == 0 and n % 8 == 0:
                it += s_addr(n >> 3)
            it.append(s_read(n, ri))
        S_items.append(it)
for k in range(LA_F):
    S_items[64 - LA_F + k] += f_read(0, k)
F_items = []
for b in range(4):
    its = []
    for s in range(32):
        acc = vr(FACC[b & 1], 16)
        it = [mfma(acc, ar(aF + 4 * ((32 * b + s) & 7), 4), vr(X + 4 * s, 4), acc if s else '0')]
        n = s + LA_F
        if n < 32:
            it += f_read(b, n)
        elif b < 3:
            if b == 2 and n == 32:
                it.append(I(f's_xor_b32 s{sFSEL}, s{sFSEL}, 64'))
            it += f_read(b + 1, n - 32)
        its.append(it)
    F_items.append(its)

ZR, ZA = TT, TT + 1
fill = L(f'''
v_lshlrev_b32 v{NLI}, 16, v{NLI}
v_mul_f32 v{NLI}, {LOG2E:#x}, v{NLI}
v_exp_f32 v{NLI}, v{NLI}
v_lshlrev_b32 v{TT + 2}, 16, v{LR}
v_lshlrev_b32 v{TT + 3}, 16, v{LI}
v_cvt_pk_bf16_f32 v{NLI}, v{NLI}, v{NLI}
v_lshlrev_b32 v{NLI}, 16, v{NLI}
v_mul_f32 v{ZR}, v{NLI}, v{TT + 2}
v_mul_f32 v{ZA}, v{NLI}, v{TT + 3}
v_mul_f32 v{ZR}, {LOG2E:#x}, v{ZR}
v_mul_f32 v{ZA}, 0xbe22f983, v{ZA}''')
fill += cexp(LR, LI, '1.0', ZR, ZA)
fill += L(f'''
v_mul_f32 v{TT + 4}, v{TT + 2}, v{TT + 2}
v_fmac_f32 v{TT + 4}, v{TT + 3}, v{TT + 3}
v_rcp_f32 v{TT + 4}, v{TT + 4}
v_add_f32 v{TT + 5}, -1.0, v{LR}
v_sub_f32 v{NLI}, 0, v{LI}
v_add_f32 v{TT + 4}, v{TT + 4}, v{TT + 4}
v_mul_f32 v{CR}, v{TT + 5}, v{TT + 2}
v_fmac_f32 v{CR}, v{NLI}, v{TT + 3}
v_mul_f32 v{NCI}, v{TT + 5}, v{TT + 3}
v_fmac_f32 v{NCI}, v{LI}, v{TT + 2}
v_mul_f32 v{CR}, v{CR}, v{TT + 4}
v_mul_f32 v{NCI}, v{NCI}, v{TT + 4}
v_sub_f32 v{NCR}, 0, v{CR}''')
fill += cexp(L16R, L16I, '0x41800000', ZR, ZA)
fill += cexp(L128R, L128I, '0x43000000', ZR, ZA)
fill += L(f'''
v_lshrrev_b32 v{TT + 6}, 5, v{vL}
s_lshl_b32 s{sT2}, s{sW}, 1
v_add_u32 v{TT + 6}, s{sT2}, v{TT + 6}
v_cvt_f32_u32 v{TT + 6}, v{TT + 6}
v_mul_f32 v{TT + 7}, 0x41800000, v{TT + 6}
v_sub_f32 v{TT + 6}, 0x40e00000, v{TT + 6}
v_mul_f32 v{TT + 6}, 0x43800000, v{TT + 6}''')
fill += cexp(LSR, LSI, f'v{TT + 7}', ZR, ZA)
fill += cexp(WR, WI, f'v{TT + 6}', ZR, ZA)
fill += L(f'''
v_lshrrev_b32 v{t2}, 5, v{vL}
v_lshlrev_b32 v{t2}, 6, v{t2}
v_add_u32 v{t2}, {TB}, v{t2}
s_lshl_b32 s{sT2}, s{sW}, 8
v_add_u32 v{t1}, s{sT2}, v{t2}''')
fill += [I(f'ds_read_b128 {vr(FACC[1] + 4 * q, 4)}, v{t1} offset:{128 + 16 * q}') for q in range(4)]
pin = {0: rg(6), 10: rg(7), 20: rc(0),
       24: [Wait('G2', 'G3'), I('s_barrier')],
       30: rc(1), 59: [Wait('G4', 'G5', 'G6', 'G7'), I('s_barrier')]}
P += weave(S_items, fill, pin, 1, 50)
P += stamp('S')

Q = FACC[1]
fill = []
for r in range(16):
    a, b_ = TT + 2 * (r & 1), TT + 2 * (r & 1) + 1
    fill += L(f'''v_mul_f32 v{a}, v{SRE + r}, v{CR}
        v_mul_f32 v{b_}, v{SRE + r}, v{NCI}
        v_fmac_f32 v{a}, v{SIM + r}, v{NCI}
        v_fmac_f32 v{b_}, v{SIM + r}, v{NCR}
        v_mul_f32 v{SRE + r}, v{a}, v{Q + r}
        v_mul_f32 v{SIM + r}, v{b_}, v{Q + r}''')
    if r:
        pr, pi_ = (SRE, SIM) if r == 1 else (TT + 4 + 2 * (r & 1), TT + 5 + 2 * (r & 1))
        nr, ni = TT + 4 + 2 * ((r + 1) & 1), TT + 5 + 2 * ((r + 1) & 1)
        fill += L(f'''v_fma_f32 v{nr}, v{LR}, v{pr}, v{SRE + r}
            v_fma_f32 v{ni}, v{LR}, v{pi_}, v{SIM + r}
            v_fmac_f32 v{nr}, v{NLI}, v{pi_}
            v_fmac_f32 v{ni}, v{LI}, v{pr}''')
AGR, AGI = TT + 4, TT + 5
fill += L(f'''s_lshl_b32 s{sT2}, s{sW}, 9
    s_add_u32 s{sT2}, s{sT2}, {T_SEG}
    v_lshl_add_u32 v{t1}, v{vL}, 3, s{sT2}''')
fill.append(I(f'ds_write_b64 v{t1}, {vr(AGR, 2)} offset:{7 * 256}', tok='segw'))
pin = {0: rc_read(0), 2: rc(4), 4: rc_read(1), 6: [Wait('Cr0')] + rc(2), 12: rc(5), 16: [Wait('Cr1')] + rc(3),
       22: rc_read(4), 26: rc_read(2),
       31: [Wait('segw'), I('s_barrier')] + rg(8)}
P += weave(F_items[0], fill, pin, 2, 30)
P += stamp('F0')

E = XG[0]
fill = [I(f'ds_read2_b64 {vr(TT + 8 + 4 * (q & 1), 4)}, v{t1} offset0:{64 * q} offset1:{64 * q + 32}') for q in range(2)]
fill += cmul_add(PR, PI, L16R, L16I, TT + 8, TT + 9, TT + 10, TT + 11)
fill += cmul_add(TT, TT + 1, L16R, L16I, PR, PI, TT + 12, TT + 13)
fill.append(I(f'ds_read2_b64 {vr(TT + 8, 4)}, v{t1} offset0:128 offset1:160'))
fill += cmul_add(PR, PI, L16R, L16I, TT, TT + 1, TT + 14, TT + 15)
fill.append(I(f'ds_read_b64 {vr(TT + 12, 2)}, v{t1} offset:{6 * 256}'))
fill += cmul_add(TT, TT + 1, L16R, L16I, PR, PI, TT + 8, TT + 9)
fill += cmul_add(TT + 2, TT + 3, L16R, L16I, TT, TT + 1, TT + 10, TT + 11)
fill += cmul_add(PR, PI, L16R, L16I, TT + 2, TT + 3, TT + 12, TT + 13)
fill += cmul_add(E, E + 2, L16R, L16I, PR, PI, AGR, AGI)
fill += L(f'''v_mov_b32 v{E + 1}, s{sTAG}
    v_mov_b32 v{E + 3}, s{sTAG}
    s_lshl_b32 s{sT2}, s{sJ}, 4
    s_add_u32 s{sT2}, s{sT2}, s{sI}
    s_lshl_b32 s{sT2}, s{sT2}, 9
    s_add_u32 s{sT2}, s{sT2}, {WS_AG - 512}
    s_cmp_eq_u32 s{sW}, 3
    s_cselect_b32 s{sT2}, s{sT2}, {OOB:#x}
    v_mov_b32 v{t0}, {OOB:#x}
    v_cmp_gt_u32 vcc, 32, v{vL}
    v_add_u32 v{t1}, s{sT2}, v{VL16}
    v_cndmask_b32 v{t1}, v{t1}, v{t0}, vcc
    buffer_store_dwordx4 {vr(E, 4)}, v{t1}, {srd(sWS)}, 0 offen sc1''')
fill += mish(0)
pin = {0: rc_read(5), 2: [Wait('Cr2')] + rc(6), 6: rc_read(3), 8: [Wait('Cr4')] + rg(9),
       12: [I('s_barrier')], 13: [Wait('Cr3')] + rc(7), 18: [Wait('Cr5')] + rg(10), 22: rc_read(6),
       26: [Wait('Cr6')] + rg(11), 27: [Wait('G8', 'G9'), I('s_barrier')], 29: rc_read(7)}
P += weave(F_items[1], fill, pin, 1, 31)
P += stamp('F1')

LBA = [AS[0], AS[1]]
LBE = [AS[2], AS[3]]
LBD = [XG[0], QG[0]]
q2 = L(f'''v_lshrrev_b32 v{t0}, 3, v{vL}
    v_bfe_u32 v{t1}, v{vL}, 4, 1
    v_lshlrev_b32 v{t1}, 2, v{t1}
    v_xor_b32 v{t1}, v{t1}, v{vL}
    v_and_b32 v{t1}, 7, v{t1}
    v_lshlrev_b32 v{t1}, 4, v{t1}
    v_lshl_add_u32 v{PG[0]}, v{t0}, 10, v{t1}
    v_add_u32 v{PG[1]}, {7 * 1024}, v{PG[0]}
    v_add_u32 v{PG[2]}, {14 * 1024}, v{PG[0]}
    v_add_u32 v{PG[3]}, {21 * 1024}, v{PG[0]}''')
lb_loads = '\n'.join(f'buffer_load_dwordx4 {vr(LBD[e], 4)}, v{LBA[e]}, {srd(sWS)}, 0 offen sc1' for e in range(2))
lb_setup = L(f'''v_lshrrev_b32 v{t0}, 5, v{vL}
    s_lshl_b32 s{sT2}, s{sW}, 2
    s_add_u32 s{sT2}, s{sT2}, s{sI}
    s_sub_u32 s{sT2}, s{sT2}, 16
    v_lshl_add_u32 v{t0}, v{t0}, 1, s{sT2}
    s_lshl_b32 s{sT2}, s{sJ}, 13
    s_add_u32 s{sT2}, s{sT2}, {WS_AG}
    v_and_b32 v{t1}, 31, v{vL}
    v_lshl_add_u32 v{t1}, v{t1}, 4, s{sT2}
    v_lshl_add_u32 v{LBA[0]}, v{t0}, 9, v{t1}
    v_add_u32 v{LBA[1]}, 512, v{LBA[0]}
    v_mov_b32 v{t1}, {OOB:#x}
    v_mov_b32 v{t3}, s{sTAG}
    v_cmp_gt_i32 vcc, 0, v{t0}
    v_cndmask_b32 v{LBA[0]}, v{LBA[0]}, v{t1}, vcc
    v_cndmask_b32 v{LBE[0]}, v{t3}, 0, vcc
    v_cmp_gt_i32 vcc, -1, v{t0}
    v_cndmask_b32 v{LBA[1]}, v{LBA[1]}, v{t1}, vcc
    v_cndmask_b32 v{LBE[1]}, v{t3}, 0, vcc''')
fill = mish(1) + lb_setup
pin = {0: q2, 2: [Wait('Cr7')] + rw(0),
       10: [Wait('G10', 'G11'), I('s_barrier')], 11: rw(1), 19: rw(2), 27: rw(3), 31: L(lb_loads)}
P += weave(F_items[2], fill, pin, 2, 30)
P += stamp('F2')

FLA, FLV, FLP = ASc[0], ASc[1], ASc[2]
flag_setup = L(f'''s_lshl_b32 s{sT2}, s{sI}, 2
    s_lshr_b32 s{sT1}, s{sJ}, 2
    s_add_u32 s{sT1}, s{sT1}, s{sT2}
    s_lshl_b32 s{sT1}, s{sT1}, 8
    s_add_u32 s{sT2}, s{sT2}, s{sW}
    s_lshl_b32 s{sT2}, s{sT2}, 8
    s_add_u32 s{sT2}, s{sT2}, {WS_FL}
    s_add_u32 s{sT1}, s{sT1}, {WS_FL}
    s_and_b32 s{sCNT}, s{sJ}, 3
    s_lshl_b32 s{sCNT}, s{sCNT}, 2
    s_add_u32 s{sCNT}, s{sCNT}, s{sW}
    s_lshl_b32 s{sCNT}, s{sCNT}, 2
    s_add_u32 s{sT1}, s{sT1}, s{sCNT}
    v_mov_b32 v{FLA}, s{sT1}
    v_mov_b32 v{FLV}, s{sTAG}
    s_lshl_b32 s{sCNT}, s{sR}, 3
    s_add_u32 s{sT2}, s{sT2}, s{sCNT}
    v_bfe_u32 v{t0}, v{vL}, 1, 2
    v_lshlrev_b32 v{t0}, 4, v{t0}
    v_and_b32 v{t1}, 1, v{vL}
    v_lshl_add_u32 v{t0}, v{t1}, 2, v{t0}
    v_add_u32 v{FLP}, s{sT2}, v{t0}''')


def flag_store(stage, toks):
    return [Wait(*toks), I(f'buffer_store_dword v{FLV}, v{FLA}, {srd(sWS)}, 0 offen offset:{128 * stage} sc1')]


lb_check = f'''v_bitop3_b32 v{t0}, v{LBD[0] + 1}, v{LBD[0] + 3}, v{LBE[0]} bitop3:0x7e
    v_bitop3_b32 v{t1}, v{LBD[1] + 1}, v{LBD[1] + 3}, v{LBE[1]} bitop3:0x7e
    v_or_b32 v{t0}, v{t0}, v{t1}
    v_cmp_ne_u32 vcc, 0, v{t0}'''
lb_part = poll('lb', lb_loads, lb_check)
lb_part += cmul_add(LBD[0] + 1, LBD[0] + 3, L128R, L128I, LBD[0], LBD[0] + 2, LBD[1], LBD[1] + 2)
lb_part += cmul_add(LBD[1], LBD[1] + 1, WR, WI, LBD[0] + 1, LBD[0] + 3)
lb_part += L(f'''s_lshl_b32 s{sT2}, s{sW}, 9
    s_add_u32 s{sT2}, s{sT2}, {T_LB}
    v_lshl_add_u32 v{t1}, v{vL}, 3, s{sT2}''')
lb_part.append(I(f'ds_write_b64 v{t1}, {vr(LBD[1], 2)}', tok='lbw'))
VA = [QG[2], QG[3]]
FP0, FPc = [24, 25], [29, 30]
p3_setup = L(f'''s_lshl_b32 s{sT2}, s{sI}, 2
    s_lshl_b32 s{sT1}, s{sR}, 1
    s_add_u32 s{sT2}, s{sT2}, s{sT1}
    s_lshr_b32 s{sT1}, s{sW}, 1
    s_add_u32 s{sAS}, s{sT2}, s{sT1}
    s_xor_b32 s{sT1}, s{sAS}, 1
    s_mul_i32 s{sT2}, s{sAS}, {176 * 1024}
    s_mul_i32 s{sT1}, s{sT1}, {176 * 1024}
    s_mul_i32 s{sCNT}, s{sW}, {44 * 1024}
    s_add_u32 s{sCNT}, s{sCNT}, {WS_A}
    s_add_u32 s{sT2}, s{sT2}, s{sCNT}
    s_add_u32 s{sT1}, s{sT1}, s{sCNT}
    v_add_u32 v{VA[0]}, s{sT2}, v{VL16}
    v_add_u32 v{VA[1]}, s{sT1}, v{VL16}''')
fill = flag_setup + mish(2) + lb_part + p3_setup
flagA_load = f'buffer_load_dword v{t3}, v{FLP}, {srd(sWS)}, 0 offen sc1'
pin = {3: rw(4), 12: [I('s_barrier')] + rw(5), 16: flag_store(0, ['stF0', 'stF1']),
       20: [I('s_barrier')] + rw(6), 28: [I('s_barrier')] + rw(7)}
P += weave(F_items[3], fill, pin, 2, 31)
P += stamp('F3')

steps = [('F', e, fr) for e in range(14) for fr in range(2)] + [('S', e, sp) for e in range(4) for sp in range(4)]
NA = 16


def ks_of(k):
    kind, e, x = steps[k]
    if kind == 'F':
        return 2 * HB_ORDER[e] + x
    ri, kc = C_PAIRS[e]
    return 28 + 4 * (2 * kc + (x >> 1)) + 2 * ri + (x & 1)


def a_load(k):
    ks = ks_of(k)
    out = [I(f's_mov_b32 s{sT1}, {(ks >> 2) * 4096}')]
    for a in range(2):
        out.append(I(f'buffer_load_dwordx4 {vr(X + 8 * (k % NA) + 4 * a, 4)}, v{VA[a]}, {srd(sWS)}, s{sT1} offen '
                     f'offset:{(ks & 3) * 1024} sc1'))
    return out


flag_check = f'v_cmp_ne_u32 vcc, s{sTAG}, v{t3}'
P += L(flagA_load)
P += [Wait('lbw'), I('s_barrier')] + rw(8)
P += L(f'''s_bitcmp1_b32 s{sJ}, 0
    s_cselect_b32 s{sT2}, {OOB:#x}, 0
    v_add_u32 v{FAc}, s{sT2}, v{VL16}''')
m3 = mish(3, FAc)
cut = 4 + 30
P += m3[:cut] + poll('fa', flagA_load, flag_check)
BURST = OPT['burst']
rest = m3[cut:]
for k in range(BURST):
    n = len(rest) // BURST
    P += a_load(k) + rest[k * n:(k + 1) * n if k < BURST - 1 else len(rest)]
P += L(f'''v_and_b32 v{t1}, 31, v{vL}
    v_lshlrev_b32 v{t1}, 3, v{t1}
    v_add_u32 v{t1}, {T_LB}, v{t1}''')
P += [I(f'ds_read2_b64 {vr(TT + 4 * q, 4)}, v{t1} offset0:{64 * q} offset1:{64 * q + 32}') for q in range(4)]
P += L(f'''v_and_b32 v{t0}, 31, v{vL}
    v_lshrrev_b32 v{t2}, 5, v{vL}
    v_lshlrev_b32 v{t0}, 6, v{t0}
    v_lshl_add_u32 v{t0}, v{t2}, 5, v{t0}
    s_lshl_b32 s{sT2}, s{sW}, 11
    s_add_u32 s{sT2}, s{sT2}, {T_H}
    v_add_u32 v{t0}, s{sT2}, v{t0}
    v_bfe_u32 v{t1}, v{vL}, 2, 2
    v_lshl_add_u32 v{t1}, v{t2}, 3, v{t1}
    v_lshlrev_b32 v{t1}, 6, v{t1}
    v_and_b32 v{t2}, 1, v{vL}
    v_lshl_add_u32 v{t1}, v{t2}, 5, v{t1}
    v_bfe_u32 v{t2}, v{vL}, 4, 1
    v_lshl_add_u32 v{t1}, v{t2}, 4, v{t1}
    v_bfe_u32 v{t2}, v{vL}, 1, 1
    v_lshl_add_u32 v{t1}, v{t2}, 3, v{t1}
    v_add_u32 v{t1}, s{sT2}, v{t1}''')
for a, b_ in ((0, 2), (4, 6), (8, 10), (12, 14), (0, 4), (8, 12), (0, 8)):
    P.append(I(f'v_pk_add_f32 {vr(TT + a, 2)}, {vr(TT + a, 2)}, {vr(TT + b_, 2)}'))
P += cmul_add(TT + 2, TT + 3, LSR, LSI, TT, TT + 1, PR, PI)
for r in range(16):
    pr, pi_ = (TT + 2, TT + 3) if r == 0 else (SRE + r - 1, SIM + r - 1)
    P += L(f'''v_fmac_f32 v{SRE + r}, v{LR}, v{pr}
        v_fmac_f32 v{SIM + r}, v{LR}, v{pi_}
        v_fmac_f32 v{SRE + r}, v{NLI}, v{pi_}
        v_fmac_f32 v{SIM + r}, v{LI}, v{pr}''')
    if r & 1:
        P += L(f'''v_cvt_pk_bf16_f32 v{TT + (r >> 1)}, v{SRE + r - 1}, v{SRE + r}
            v_cvt_pk_bf16_f32 v{TT + 8 + (r >> 1)}, v{SIM + r - 1}, v{SIM + r}''') if r > 7 else []
for r in range(1, 8, 2):
    P += L(f'''v_cvt_pk_bf16_f32 v{TT + (r >> 1)}, v{SRE + r - 1}, v{SRE + r}
        v_cvt_pk_bf16_f32 v{TT + 8 + (r >> 1)}, v{SIM + r - 1}, v{SIM + r}''')
for ri in range(2):
    P += [I(f'ds_write_b128 v{t0}, {vr(TT + 8 * ri + 4 * h, 4)} offset:{16 * h}') for h in range(2)]
    for fr in range(2):
        for u in range(2):
            P.append(I(f'ds_read_b64_tr_b16 {vr(LR + 8 * ri + 4 * fr + 2 * u, 2)}, v{t1} offset:{1024 * fr + 256 * u}'))
for q in range(4):
    P.append(I(f'buffer_store_dwordx4 {vr(LR + 4 * q, 4)}, v{VL16}, {srd(sWS)}, s{sSST} offen offset:{1024 * q} sc1',
               tok='stH' if q == 3 else None))
P += stamp('T0')

ACC = [[64, 80], [96, 112]]
P += L(f'''v_bfe_u32 v{t1}, v{vL}, 2, 2
    v_lshrrev_b32 v{t2}, 5, v{vL}
    v_lshl_add_u32 v{t2}, v{t2}, 2, v{t1}
    v_lshlrev_b32 v{FP0[0]}, 7, v{t2}
    v_lshrrev_b32 v{t1}, 1, v{t1}
    s_and_b32 s{sT2}, s{sW}, 1
    v_xor_b32 v{t1}, s{sT2}, v{t1}
    v_lshl_add_u32 v{FP0[0]}, v{t1}, 6, v{FP0[0]}
    v_bfe_u32 v{t1}, v{vL}, 4, 1
    v_lshl_add_u32 v{FP0[0]}, v{t1}, 5, v{FP0[0]}
    v_and_b32 v{t1}, 3, v{vL}
    v_lshl_add_u32 v{FP0[0]}, v{t1}, 3, v{FP0[0]}
    v_add_u32 v{FP0[0]}, s{sWOFF}, v{FP0[0]}
    v_xor_b32 v{FP0[1]}, 64, v{FP0[0]}''')


def w_read(k):
    kind, e, fr = steps[k]
    if kind != 'F':
        return []
    out = []
    if fr == 0:
        out += [I(f'v_add_u32 v{FPc[b]}, {W_SLOT[e] * SLOT}, v{FP0[b]}') for b in range(2)] + [Wait(f'W{e}')]
    for b in range(2):
        for u in range(2):
            out.append(I(f'ds_read_b64_tr_b16 {ar(aP + 8 * (k & 3) + 4 * b + 2 * u, 2)}, v{FPc[b]} '
                         f'offset:{2048 * fr + 1024 * u}', lds_r=W_SLOT[e],
                         tok=f'Wr{e}' if (fr, b, u) == (1, 1, 1) else None))
    return out


def w_frag(k, b):
    kind, e, x = steps[k]
    if kind == 'F':
        return ar(aP + 8 * (k & 3) + 4 * b, 4)
    return ar(aC + 16 * (2 * e + b) + 4 * x, 4)


LA_W, LA_A = 2, OPT['la3']
flagB_load = f'buffer_load_dword v{t3}, v{FLP}, {srd(sWS)}, 0 offen offset:128 sc1'
XE, ME = TT, LR
ep_setup = L(f'''v_and_b32 v{t0}, 31, v{vL}
    v_lshrrev_b32 v{t1}, 5, v{vL}
    v_lshlrev_b32 v{t2}, 14, v{t1}
    v_lshl_add_u32 v{t2}, v{t0}, 1, v{t2}
    s_lshr_b32 s{sT2}, s{sJ}, 1
    s_lshl_b32 s{sT2}, s{sT2}, 1
    s_and_b32 s{sCNT}, s{sW}, 1
    s_add_u32 s{sT2}, s{sT2}, s{sCNT}
    s_lshl_b32 s{sT2}, s{sT2}, 6
    v_lshl_add_u32 v{t0}, v{t0}, 1, s{sT2}
    s_lshl_b32 s{sXB}, s{sAS}, 15
    s_add_u32 s{sXB}, s{sXB}, s{sT2}
    global_load_ushort v{RL2}, v{t0}, s[20:21]
    s_and_b32 s{sT2}, s{sAS}, 3
    s_lshl_b32 s{sT2}, s{sT2}, 8
    s_add_u32 s{sT2}, s{sT2}, {T_STAT}
    v_lshl_add_u32 v{VLN2}, v{t1}, 6, s{sT2}
    v_lshlrev_b32 v{AS[0]}, 1, v{t2}''')
x_loads = []
for r in range(16):
    if r % 4 == 0:
        x_loads.append(I(f's_add_u32 s{sBB}, s{sXB}, {1024 * r}'))
    x_loads.append(I(f'buffer_load_ushort v{XE + r}, v{t2}, {srd(sX)}, s{sBB} offen offset:{1024 * (r & 3)}'))
base_calc = [I(f'v_lshlrev_b32 v{RL2}, 16, v{RL2}')]
for hf in range(2):
    base_calc += [I(f'ds_read_b128 {vr(ME + 4 * q, 4)}, v{VLN2} offset:{32 * hf + 16 * q}') for q in range(2)]
    base_calc += [I(f'ds_read_b128 {vr(ME + 8 + 4 * q, 4)}, v{VLN2} offset:{128 + 32 * hf + 16 * q}') for q in range(2)]
    rs = range(8)
    base_calc += [I(f'v_lshlrev_b32 v{XE + 8 * hf + r}, 16, v{XE + 8 * hf + r}') for r in rs]
    base_calc += [I(f'v_sub_f32 v{ME + r}, v{XE + 8 * hf + r}, v{ME + r}') for r in rs]
    base_calc += [I(f'v_mul_f32 v{ME + r}, v{ME + r}, v{ME + 8 + r}') for r in rs]
    base_calc += [I(f'v_fmac_f32 v{XE + 8 * hf + r}, v{ME + r}, v{RL2}') for r in rs]

for k in range(LA_W):
    P += w_read(k)
nxt = BURST
items, pin = [], {}
NLAST = 4
RED_SLOT = {1: 5, 2: 6, 3: 3}
for k in range(44 - NLAST):
    for qd in range(4):
        a, b = qd >> 1, qd & 1
        acc = vr(ACC[a][b], 16)
        it = [mfma(acc, vr(X + 8 * (k % NA) + 4 * a, 4), w_frag(k, b), acc if k else '0')]
        if qd == 0:
            if k == BURST:
                it += flag_store(1, ['stH', 'stF3', 'stF2'])
            lim = min(k + LA_A + 1, 44)
            while nxt < lim:
                if nxt == 16:
                    it += poll('fb', flagB_load, flag_check)
                it += a_load(nxt)
                nxt += 1
                if nxt == 14:
                    it += L(flagB_load)
        if qd == 1 and k + LA_W < 44:
            it += w_read(k + LA_W)
        if qd == 2 and k % 2 == 0 and 1 <= k // 2 <= 5:
            e = 8 + k // 2
            it += [Wait(f'Wr{e - 9}')] + rw(e)
        items.append(it)
assert BURST <= 13
fill = ep_setup + x_loads
P += weave(items[:64], fill, {}, 20, 60)
P += stamp('P3a')
P += weave(items[64:], base_calc, {}, 40, 90)
while nxt < 44:
    P += a_load(nxt)
    nxt += 1
P += L(f'v_add_u32 v{t0}, s{sWOFF}, v{VL16}')
for qd in (3, 2, 1, 0):
    a, b = qd >> 1, qd & 1
    acc = vr(ACC[a][b], 16)
    for n, k in enumerate(range(44 - NLAST, 44)):
        P.append(mfma(acc, vr(X + 8 * (k % NA) + 4 * a, 4), w_frag(k, b), acc))
        if n == 2 and qd < 3:
            d = qd + 1
            src = ACC[d >> 1][d & 1]
            P.append(I(f'v_add_u32 v{t1}, {RED_SLOT[d] * SLOT}, v{t0}'))
            P += [I(f'ds_write_b128 v{t1}, {vr(src + 4 * q, 4)} offset:{1024 * q}',
                    tok=f'red{d}' if q == 3 else None) for q in range(4)]
P += stamp('P3b')
for d in (1, 2, 3):
    P += L(f's_xor_b32 s{sT2}, s{sWOFF}, {d * 4096}\ns_add_u32 s{sT2}, s{sT2}, {RED_SLOT[d] * SLOT}\n'
           f'v_add_u32 v{ASc[d]}, s{sT2}, v{VL16}')
P += [Wait('red1', 'red2', 'red3'), I('s_barrier')]
for d in (3, 2, 1):
    dst = ACC[d >> 1][d & 1]
    P += [I(f'ds_read_b128 {vr(dst + 4 * q, 4)}, v{ASc[d]} offset:{1024 * q}') for q in range(4)]
A0 = ACC[0][0]
P += L(f's_lshl_b32 s{sXB}, s{sXB}, 1')
for q in range(8):
    P.append(I(f'v_pk_add_f32 {vr(A0 + 2 * q, 2)}, {vr(A0 + 2 * q, 2)}, {vr(XE + 2 * q, 2)}'))
for d in (3, 2):
    src = ACC[d >> 1][d & 1]
    for q in range(8):
        P.append(I(f'v_pk_add_f32 {vr(A0 + 2 * q, 2)}, {vr(A0 + 2 * q, 2)}, {vr(src + 2 * q, 2)}'))
for q in range(8):
    P.append(I(f'v_pk_add_f32 {vr(A0 + 2 * q, 2)}, {vr(A0 + 2 * q, 2)}, {vr(ACC[0][1] + 2 * q, 2)}'))
    P.append(I(f's_add_u32 s{sBB}, s{sXB}, {4096 * q}'))
    for h in range(2):
        P.append(I(f'buffer_store_dword v{A0 + 2 * q + h}, v{AS[0]}, {srd(sOUT)}, s{sBB} offen offset:{2048 * h} '
                   f'{OPT["out_flags"]}'))
P += L(f'''s_lshl_b32 s{sT2}, s{sJ}, 2
    s_add_u32 s{sT2}, s{sT2}, s{sW}
    s_xor_b32 s{sT1}, s{sI}, 15
    s_or_b32 s{sT2}, s{sT2}, s{sT1}
    s_cmp_eq_u32 s{sT2}, 0
    s_cselect_b32 s{sT2}, {WS_EP}, {OOB:#x}
    v_mov_b32 v{t0}, s{sE2}
    v_mov_b32 v{t1}, s{sT2}
    buffer_store_dword v{t0}, v{t1}, {srd(sWS)}, 0 offen''')
if PROF:
    P += stamp('end')
    P += L(f'''s_waitcnt vmcnt(0)
        s_memrealtime s[0:1]
        s_lshl_b32 s{sT2}, s2, 2
        s_add_u32 s{sT2}, s{sT2}, s{sW}
        s_lshl_b32 s{sT2}, s{sT2}, 7
        s_add_u32 s{sT2}, s{sT2}, {WS_PROF}
        v_mov_b32 v{t1}, s{sT2}
        s_waitcnt lgkmcnt(0)
        v_mov_b32 v{t0}, s0
        buffer_store_dword v{t0}, v{t1}, {srd(sWS)}, 0 offen offset:124
        buffer_store_dword a96, v{t1}, {srd(sWS)}, 0 offen offset:116
        buffer_store_dword a97, v{t1}, {srd(sWS)}, 0 offen offset:120''')
    for n in range(len(stamp_names)):
        P += L(f'v_mov_b32 v{t0}, s{stamp_regs[n]}\nbuffer_store_dword v{t0}, v{t1}, {srd(sWS)}, 0 offen offset:{4 * n}')
P += [I('L_end:'), I('s_endpgm')]

body = pad_hazards(insert_waits(P))
tail = []
for name, loads, check in retry_blocks:
    blk = [I(f'L_retry_{name}:'), I(f's_mov_b32 s3, {OPT["spin"]}'), I(f'L_spin_{name}:')]
    blk += L(loads) + [I('s_waitcnt vmcnt(0)')] + L(check)
    blk += L(f'''s_cbranch_vccz L_back_{name}
        s_sub_u32 s3, s3, 1
        s_cmp_lg_u32 s3, 0
        s_cbranch_scc1 L_spin_{name}
        s_branch L_back_{name}''')
    tail += pad_hazards(blk)

hdr = open(os.path.join(os.path.dirname(os.path.abspath(__file__)), 'header.txt')).read()
text = hdr + f'''; @launch grid=(256,1,1) block=(256,1,1) lds=163840
.amdgcn_target "amdgcn-amd-amdhsa--gfx950"
.text
.globl {KN}
.p2align 8
.type {KN},@function
{KN}:
{render(body)}
{render(tail)}
L_code_end:
    s_endpgm
.section .rodata,"a"
.p2align 6
.amdhsa_kernel {KN}
  .amdhsa_next_free_vgpr 512
  .amdhsa_next_free_sgpr 102
  .amdhsa_accum_offset 256
  .amdhsa_group_segment_fixed_size 0
  .amdhsa_kernarg_size 128
  .amdhsa_user_sgpr_count 2
  .amdhsa_user_sgpr_kernarg_segment_ptr 1
  .amdhsa_system_sgpr_workgroup_id_x 1
.end_amdhsa_kernel
'''
open(sys.argv[1], 'w').write(text)
if PROF:
    open(sys.argv[1][:-2] + '.stamps', 'w').write(' '.join(stamp_names))
from collections import Counter
cnt = Counter(i.kind for i in body)
print(dict(cnt), 'nops', sum(1 for i in body if i.mn == 's_nop'))
```

```python
import re

TRANS = ('v_exp_f32', 'v_log_f32', 'v_rcp_f32', 'v_rsq_f32', 'v_sqrt_f32', 'v_sin_f32', 'v_cos_f32')
RMW = ('v_fmac_f32', 'v_dot2c_f32_bf16', 'v_pk_fmac')
NO_DST_S = ('s_cmp', 's_waitcnt', 's_barrier', 's_cbranch', 's_branch', 's_nop', 's_sleep', 's_setprio',
            's_endpgm', 's_bitcmp')

_reg = re.compile(r'^(-|\|)?(abs\()?([vas])(\d+)\)?\|?$')
_rng = re.compile(r'^(-)?([vas])\[(\d+):(\d+)\]$')


def regs_of(op):
    op = op.strip()
    m = _rng.match(op)
    if m:
        return {(m.group(2), i) for i in range(int(m.group(3)), int(m.group(4)) + 1)}
    m = _reg.match(op)
    if m:
        return {(m.group(3), int(m.group(4)))}
    if op == 'vcc':
        return {('s', 'vcc')}
    if op == 'm0':
        return {('s', 'm0')}
    if op == 'exec':
        return {('s', 'exec')}
    return set()


class I:
    def __init__(self, text, tok=None, lds_r=None, lds_w=None, need=None, note=None, fills=None):
        self.text = text
        self.tok = tok
        self.lds_r = lds_r
        self.lds_w = lds_w
        self.need = need or []
        self.note = note
        self.fills = fills
        self.r = set()
        self.w = set()
        self.kind = 'other'
        self.srcC = set()
        self.srcAB = set()
        self.parse()

    def parse(self):
        t = self.text.strip()
        if t.endswith(':') or t.startswith('.') or t.startswith(';') or not t:
            self.kind = 'label'
            self.mn = ''
            return
        parts = t.split(None, 1)
        mn = parts[0]
        self.mn = mn
        rest = parts[1] if len(parts) > 1 else ''
        ops = [o.strip() for o in rest.split(',')] if rest else []
        if ops:
            last = ops[-1].split()
            ops[-1] = last[0] if last else ''
            mods = last[1:]
        else:
            mods = []
        R = [regs_of(o) for o in ops]
        allr = lambda lst: set().union(*lst) if lst else set()
        if mn.startswith('v_mfma'):
            self.kind = 'mfma'
            self.w = R[0]
            self.srcAB = R[1] | R[2]
            self.srcC = R[3]
            self.r = self.srcAB | self.srcC
            self.passes = 8 if '32x32x16' in mn else (4 if '16x16x32' in mn else 2)
        elif mn.startswith('v_'):
            base = re.sub(r'_(e32|e64|sdwa|dpp)$', '', mn)
            self.kind = 'trans' if base in TRANS else 'valu'
            self.w = R[0]
            self.r = allr(R[1:])
            if base in RMW or base.startswith('v_permlane'):
                self.r |= R[0]
            if base.startswith('v_permlane'):
                self.w |= R[1]
            if base.startswith('v_cndmask') and len(ops) == 3:
                self.r |= {('s', 'vcc')}
            if base.startswith(('v_add_co', 'v_sub_co', 'v_addc_co')):
                self.w |= R[1]
            self.dot = base.startswith('v_dot')
            self.base = base
        elif mn.startswith('ds_read'):
            self.kind = 'ds'
            self.w = R[0]
            self.r = allr(R[1:])
            if 'd16' in mn:
                self.r |= R[0]
        elif mn.startswith('ds_'):
            self.kind = 'ds'
            self.r = allr(R)
        elif mn.startswith('buffer_load') or mn.startswith('global_load'):
            self.kind = 'vm'
            if 'lds' in mods:
                self.r = allr(R) | {('s', 'm0')}
                self.dma = True
            else:
                self.w = R[0]
                self.r = allr(R[1:])
                if 'd16' in mn:
                    self.r |= R[0]
        elif mn.startswith('buffer_store') or mn.startswith('global_store'):
            self.kind = 'vm'
            self.r = allr(R)
            self.store = True
            data = R[0] if mn.startswith('buffer') else R[1]
            self.wide = data if ('x3' in mn or 'x4' in mn) else set()
        elif mn.startswith(('s_load', 's_memtime', 's_memrealtime')):
            self.kind = 'smem'
            self.w = R[0]
            self.r = allr(R[1:])
        elif mn == 's_barrier':
            self.kind = 'barrier'
        elif mn == 's_waitcnt':
            self.kind = 'wait'
        elif mn.startswith('s_'):
            self.kind = 'salu'
            if mn.startswith(NO_DST_S):
                self.r = allr(R)
            else:
                self.w = R[0]
                self.r = allr(R[1:])
            if mn.startswith(('s_addk', 's_mulk', 's_bitset')):
                self.r |= R[0]
        else:
            raise ValueError('cannot classify: ' + t)

    def slots(self):
        if self.kind == 'label':
            return 0
        if self.kind == 'trans':
            return 2
        if self.kind == 'mfma':
            return 2
        return 1


class Wait(I):
    def __init__(self, *toks):
        I.__init__(self, '; wait ' + ' '.join(toks))
        self.need = list(toks)
        self.kind = 'pseudo'


def insert_waits(prog, ds_age=10):
    out = []
    vm, lg = [], []
    done_ds = {}
    last_read_retired = {}
    pending_read = {}
    last_barrier = -1
    pos = 0
    fill_state = {}

    def retire(q, n):
        while len(q) > n:
            ins, _ = q.pop(0)
            if ins.fills is not None:
                fill_state[ins.fills[0]] = [ins.fills[1], len(out)]
            if ins.lds_r is not None:
                pending_read[ins.lds_r] -= 1
                if pending_read[ins.lds_r] == 0:
                    last_read_retired[ins.lds_r] = len(out)

    for ins in prog:
        if ins.text.startswith(';drain'):
            retire(vm, 0)
            retire(lg, 0)
            continue
        touched = ins.r | ins.w
        nv = nl = None
        for q, which in ((vm, 'v'), (lg, 'l')):
            need = None
            for k, (o, _) in enumerate(q):
                hit = bool(o.w & touched) or (o.tok is not None and o.tok in ins.need)
                if hit:
                    need = len(q) - 1 - k
            if need is not None:
                if which == 'l':
                    k = len(q) - 1 - need
                    while k + 1 < len(q) and pos - q[k + 1][1] >= ds_age:
                        k += 1
                    nl = min(len(q) - 1 - k, 15)
                else:
                    nv = min(need, 63)
        if ins.kind == 'wait':
            m = re.search(r'vmcnt\((\d+)\)', ins.text)
            if m:
                retire(vm, int(m.group(1)))
            m = re.search(r'lgkmcnt\((\d+)\)', ins.text)
            if m:
                retire(lg, int(m.group(1)))
        if nv is not None or nl is not None:
            txt = 's_waitcnt'
            if nv is not None:
                txt += f' vmcnt({nv})'
                retire(vm, nv)
            if nl is not None:
                txt += f' lgkmcnt({nl})'
                retire(lg, nl)
            out.append(I(txt))
            pos += 1
        if ins.kind == 'pseudo':
            continue
        if ins.lds_w is not None:
            slot, shared_before = ins.lds_w
            assert pending_read.get(slot, 0) == 0, f'LDS slot {slot} overwritten while read outstanding: {ins.text}'
            if shared_before and slot in last_read_retired:
                assert last_barrier >= last_read_retired[slot], \
                    f'LDS slot {slot} reused without a barrier after its last read: {ins.text} ({ins.note})'
        if ins.lds_w is not None:
            fill_state[ins.lds_w[0]] = None
        if ins.lds_r is not None:
            st = fill_state.get(ins.lds_r)
            assert st is not None, f'LDS slot {ins.lds_r} read before its fill was waited for: {ins.text}'
            assert not st[0] or last_barrier >= st[1], f'shared slot {ins.lds_r} read without barrier: {ins.text}'
        if ins.kind == 'barrier':
            last_barrier = len(out)
        out.append(ins)
        pos += ins.slots()
        if ins.kind == 'vm':
            vm.append((ins, pos))
            assert len(vm) <= 63, 'vmcnt overflow'
        elif ins.kind == 'ds':
            lg.append((ins, pos))
            if ins.lds_r is not None:
                pending_read[ins.lds_r] = pending_read.get(ins.lds_r, 0) + 1
    return out


def states(ins):
    if ins.kind in ('label', 'pseudo'):
        return 0
    if ins.mn == 's_nop':
        return int(ins.text.split()[1]) + 1
    return 1


def required_gap(p, c):
    vgpr = lambda s: {x for x in s if x[0] in 'va'}
    sgpr = lambda s: {x for x in s if x[0] == 's'}
    g = 0
    pv = p.kind in ('valu', 'trans')
    cv = c.kind in ('valu', 'trans')
    if pv:
        wv = vgpr(p.w)
        ws = sgpr(p.w)
        if c.kind == 'mfma' and wv & c.r:
            g = max(g, 2)
        if p.kind == 'trans' and cv and c.kind != 'trans' and wv & c.r:
            g = max(g, 1)
        if p.kind == 'trans' and c.kind == 'trans' and wv & c.r:
            g = max(g, 1)
        if cv and c.base.startswith('v_permlane') and wv & c.r:
            g = max(g, 2)
        if cv and c.base.startswith(('v_readfirstlane', 'v_readlane')) and wv & c.r:
            g = max(g, 1)
        if cv and '_dpp' in c.mn and wv & c.r:
            g = max(g, 2)
        if ws & c.r:
            if cv:
                g = max(g, 2)
            elif c.kind == 'vm':
                g = max(g, 5)
            elif c.kind == 'salu':
                g = max(g, 1)
        if getattr(p, 'dot', False) and wv & (c.r | c.w) and c.kind != 'label':
            same = cv and c.base == p.base and not (wv & (c.r - c.w))
            if not same:
                g = max(g, 3)
    if p.kind == 'mfma':
        big = {2: 5, 4: 8, 8: 12}[p.passes]
        if c.kind == 'mfma':
            if p.w & c.srcAB:
                g = max(g, big)
            if p.w & c.srcC and not (p.w == c.srcC and p.passes == c.passes):
                g = max(g, {2: 4, 4: 6, 8: 10}[p.passes])
            if p.w == c.srcC and p.passes == 2:
                g = max(g, 2)
            if p.w & c.w and not (p.w & c.srcC):
                g = max(g, big)
        elif c.kind in ('valu', 'trans', 'ds', 'vm'):
            if p.w & (c.r | c.w):
                g = max(g, big)
            if cv and p.srcC & c.w:
                g = max(g, {2: 1, 4: 3, 8: 7}[p.passes])
    if p.kind == 'salu' and ('s', 'm0') in p.w and ('s', 'm0') in c.r and c.kind == 'vm':
        g = max(g, 1)
    if p.kind == 'vm' and getattr(p, 'wide', None) and p.wide & c.w:
        g = max(g, 2)
    return g


def pad_hazards(prog, window=24):
    out = []
    for ins in prog:
        if ins.kind not in ('label', 'pseudo'):
            dist = 0
            short = 0
            for p in reversed(out):
                if dist >= window:
                    break
                if p.kind not in ('label', 'pseudo'):
                    short = max(short, required_gap(p, ins) - dist)
                dist += states(p)
            while short > 0:
                n = min(short, 16)
                out.append(I(f's_nop {n - 1}'))
                short -= n
        out.append(ins)
    return out


def render(prog):
    lines = []
    for ins in prog:
        t = ins.text
        if ins.kind == 'label':
            lines.append(t)
        else:
            lines.append('    ' + t)
    return '\n'.join(lines)


def weave(mfmas, fill, pinned=None, first_gap=0, last_gap=None):
    pinned = pinned or {}
    n = len(mfmas)
    last_gap = n - 1 if last_gap is None else last_gap
    fixed = [sum(i.slots() for i in mfmas[g]) + sum(i.slots() for i in pinned.get(g, [])) for g in range(n)]
    total = sum(i.slots() for i in fill)
    span = list(range(first_gap, last_gap + 1))
    level = (total + sum(fixed[g] for g in span)) / len(span)
    out = []
    k = 0
    credit = 0.0
    for g in range(n):
        out += mfmas[g]
        out += pinned.get(g, [])
        if first_gap <= g <= last_gap:
            credit += level - fixed[g]
            while k < len(fill) and (credit >= fill[k].slots() - 0.5 or g == last_gap):
                out.append(fill[k])
                credit -= fill[k].slots()
                k += 1
                while k < len(fill) and fill[k].mn.startswith(('s_cselect', 's_cbranch')):
                    out.append(fill[k])
                    credit -= fill[k].slots()
                    k += 1
    assert k == len(fill)
    return out


def split_ds_pairs(prog, dist=2):
    out = list(prog)
    k = 1
    while k < len(out):
        ins = out[k]
        if ins.kind == 'ds' and ins.w and out[k - 1].kind == 'ds' and out[k - 1].w and not ins.need:
            j = k
            moved = 0
            while moved < dist and j + 1 < len(out):
                nx = out[j + 1]
                if nx.kind not in ('valu', 'trans') or (nx.r | nx.w) & ins.w or nx.w & ins.r:
                    break
                out[j], out[j + 1] = nx, ins
                j += 1
                moved += nx.slots()
        k += 1
    return out
```

```python
import sys, os
sys.path.insert(0, os.path.dirname(os.path.abspath(__file__)))
from asmlib import I, Wait, insert_waits, pad_hazards, render, weave, split_ds_pairs

KN = 'parallel_sum__ssm_conv_s5__dense_activation_mish__prompt_kernel'
OPT = dict(prof=0, spin=20000, out_flags='', map='8x4', pf=1, age=24, laf=5, nlast=8, r1=6, r2=14, r3=22, m3end=12, fhs=8, fhl=13, fhc=16, fbs=20, fbl=26, fbc=29, split=0, fas=8, fal=17, fac=21)
for a in sys.argv[2:]:
    k, v = a.split('=')
    OPT[k] = int(v) if v.lstrip('-').isdigit() else v
PROF = OPT['prof']

WS_EP, WS_FL, WS_AG, WS_A = 0, 0x1000, 0x10000, 0x40000
WS_XC = WS_A + 64 * 176 * 1024
XC_BLK = 2560
WS_SIZE = WS_XC + 1024 * 3 * XC_BLK
WS_PROF = 0x1C00000
OOB = 0x7ff00000
SLOT = 16384
TB = 9 * SLOT
T_STAT, T_B1, T_SEG, T_LB, T_H = TB, TB + 1024, TB + 2048, TB + 6144, TB + 8192
LOG2E, LN2, M2LN2 = 0x3fb8aa3b, 0x3f317218, 0xbfb17218

sX, sB, sW1, sCre, sCim, sW2, sWS, sOUT, sTMP = 36, 40, 44, 48, 52, 56, 60, 64, 68
sI, sJ, sW, sROT, sTAG, sE2 = 72, 73, 74, 75, 76, 77
sKC = [78, 79, 80, 81]
sWOFF, sT0, sT1, sXB, sBB, sW1A, sW1B = 82, 83, 84, 85, 86, 87, 88
sAS = 89
sFST = [90, 91, 92, 93]
sSST, sCB, sW2B, sFSEL, sONES, sT3, sJJ, sT2 = 94, 95, 96, 97, 98, 99, 100, 101
sKQ, sPB, sXO = 22, [8, 9, 10], [11, 12, 13, 14]
sSEL = [15, 16, 17, 18]
srd = lambda b: f's[{b}:{b + 3}]'
vL, t0, t1, t2 = 0, 1, 2, 3
AS = [4, 5, 6, 7]
ASc = [8, 9, 10, 11]
XG = [12, 13, 14, 15]
PG = [16, 17, 18, 19]
QG = [20, 21, 22, 23]
FA0, FAc, RL2, VLN2, VL16, VNM, VRS, t3 = 24, 25, 26, 27, 28, 29, 30, 31
LR, LI, NLI, CR, NCI, NCR, L16R, L16I, LSR, LSI, L128R, L128I, WR, WI, PR, PI = range(32, 48)
TT = 48
FACC = [64, 80]
SRE, SIM = 96, 112
X = 128
aS, aF, aP, aOF, aOS, aWO, aAE = 0, 128, 0, 64, 88, 128, 176
STAMP_A = list(range(104, 128)) + list(range(48, 54))
vr = lambda b, n: f'v[{b}:{b + n - 1}]'
ar = lambda b, n: f'a[{b}:{b + n - 1}]'

stamp_names = []


def stamp(name):
    return [I(';stamp ' + name)] if PROF else []


def resolve_stamps(prog):
    out = []
    for ins in prog:
        if not ins.text.startswith(';stamp '):
            out.append(ins)
            continue
        name = ins.text.split()[1]
        n = len(stamp_names)
        if n:
            out.append(I(f'v_accvgpr_write_b32 a{STAMP_A[n - 1]}, s{4 + 2 * ((n - 1) & 1)}'))
        if name == 'DUMP':
            out += [I(f'buffer_store_dword a{STAMP_A[k]}, v{t1}, {srd(sWS)}, 0 offen offset:{4 * k}') for k in range(n)]
            continue
        assert n < 28
        stamp_names.append(name)
        out.append(I(f's_memtime s[{4 + 2 * (n & 1)}:{5 + 2 * (n & 1)}]'))
    return out


def L(text):
    return [I(t.strip()) for t in text.strip().split('\n') if t.strip()]


def mfma(d, a, b, c):
    return I(f'v_mfma_f32_32x32x16_bf16 {d}, {a}, {b}, {c}')


def mksrd(b, lo, size):
    return f's_mov_b32 s{b}, s{lo}\ns_mov_b32 s{b + 1}, s{lo + 1}\ns_mov_b32 s{b + 2}, {size}\ns_mov_b32 s{b + 3}, 0x00020000\n'


slot_shared = {}


def dma_round(name, slot, voffs, rsrc, soff_code, shared):
    out = [I(f's_add_u32 m0, s{sWOFF}, {slot * SLOT}')] + L(soff_code)
    for g in range(4):
        out.append(I(f'buffer_load_dwordx4 v{voffs[g]}, {srd(rsrc)}, s{sT0} offen offset:{1024 * g} lds',
                     tok=name if g == 3 else None,
                     lds_w=(slot, slot_shared.get(slot, False)) if g == 0 else None, note=name,
                     fills=(slot, shared) if g == 3 else None))
    slot_shared[slot] = shared
    return out


def rx(s, slot):
    return dma_round(f'x{s}', slot, XG, sX,
                     f's_add_u32 s{sT0}, s{sROT}, {s}\ns_and_b32 s{sT0}, s{sT0}, 7\n'
                     f's_lshl_b32 s{sT0}, s{sT0}, 7\ns_add_u32 s{sT0}, s{sT0}, s{sXB}', False)


G_SLOT = [4, 5, 6, 7, 8, 0, 1, 2, 3, 4, 5, 6]
W_SLOT = dict(WA0=7, CR0=8, CI0=0, WA1=1, WA2=2, WA3=3, WB0=4, CR1=5, CI1=6, WB1=7, WB2=1)


def rg(g):
    if g < 4:
        return dma_round(f'G{g}', G_SLOT[g], PG, sB,
                         f's_lshl_b32 s{sT0}, s{sKC[g]}, 7\ns_add_u32 s{sT0}, s{sT0}, s{sBB}', True)
    base = sW1A if g < 8 else sW1B
    return dma_round(f'G{g}', G_SLOT[g], QG, sW1,
                     f's_mul_i32 s{sT0}, s{sKC[g & 3]}, {64 * 3584}\ns_add_u32 s{sT0}, s{sT0}, s{base}', True)


def rw(name):
    e = int(name[2])
    if name[0] == 'C':
        code = f's_xor_b32 s{sT0}, s{sCB}, {128 * e}'
        return dma_round(name, W_SLOT[name], PG, sCim if name[1] == 'I' else sCre, code, True)
    if name[1] == 'A':
        code = f's_xor_b32 s{sT0}, s{sJJ}, {e}\ns_lshl_b32 s{sT0}, s{sT0}, 17\ns_add_u32 s{sT0}, s{sT0}, s{sW2B}'
    else:
        code = f's_lshl_b32 s{sT0}, s{sPB[e]}, 16\ns_add_u32 s{sT0}, s{sT0}, s{sW2B}'
        if e == 0:
            code += f'\ns_xor_b32 s{sT0}, s{sT0}, s{sSEL[0]}'
    return dma_round(name, W_SLOT[name], XG, sW2, code, True)


retry_blocks = []


def poll(name, loads, check):
    retry_blocks.append((name, loads, check))
    return L(check) + [I(f's_cbranch_vccnz L_retry_{name}'), I(f'L_back_{name}:')]


def cexp(dr, di, scale, zr, za):
    return L(f"""v_mul_f32 v{dr}, {scale}, v{zr}
        v_mul_f32 v{di}, {scale}, v{za}
        v_exp_f32 v{dr}, v{dr}
        v_fract_f32 v{di}, v{di}
        v_cos_f32 v{t3}, v{di}
        v_sin_f32 v{di}, v{di}
        v_mul_f32 v{di}, v{dr}, v{di}
        v_mul_f32 v{dr}, v{dr}, v{t3}""")


def cmul_add(dr, di, ar_, ai, br, bi, cr=None, ci=None):
    if cr is None:
        head = f'v_mul_f32 v{dr}, v{ar_}, v{br}\nv_mul_f32 v{di}, v{ar_}, v{bi}'
    else:
        head = f'v_fma_f32 v{dr}, v{ar_}, v{br}, v{cr}\nv_fma_f32 v{di}, v{ar_}, v{bi}, v{ci}'
    return L(head + f'\nv_fma_f32 v{dr}, -v{ai}, v{bi}, v{dr}\nv_fmac_f32 v{di}, v{ai}, v{br}')


def mish(b, voff=VL16):
    A = FACC[b & 1]
    out = [I(f'ds_read_b128 {vr(TT + 4 * q, 4)}, v{t2} offset:{T_B1 - TB + 128 * b + 16 * q}') for q in range(4)]
    for q in range(4):
        rs = range(4 * q, 4 * q + 4)
        out += [I(f'v_fmac_f32 v{TT + r}, v{A + r}, v{RL2}') for r in rs]
        out += [I(f'v_exp_f32 v{A + r}, v{TT + r}') for r in rs]
        out += [I(f'v_add_f32 v{A + r}, 1.0, v{A + r}') for r in rs]
        out += [I(f'v_fma_f32 v{A + r}, v{A + r}, v{A + r}, 1.0') for r in rs]
        out += [I(f'v_rcp_f32 v{A + r}, v{A + r}') for r in rs]
        out += [I(f'v_fmamk_f32 v{A + r}, v{A + r}, {M2LN2:#x}, v{VLN2}') for r in rs]
        out += [I(f'v_mul_f32 v{TT + r}, v{TT + r}, v{A + r}') for r in rs]
        out += [I(f'v_cvt_pk_bf16_f32 v{A + p}, v{TT + 2 * p}, v{TT + 2 * p + 1}') for p in (2 * q, 2 * q + 1)]
        if q & 1:
            fr = q >> 1
            out.append(I(f'buffer_store_dwordx4 {vr(A + 4 * fr, 4)}, v{voff}, {srd(sWS)}, s{sFST[b]} offen '
                         f'offset:{1024 * fr} sc1', tok=f'stF{b}' if fr else None))
            if b < 3:
                out += [I(f'v_accvgpr_write_b32 a{aOF + 8 * b + 4 * fr + e}, v{A + 4 * fr + e}') for e in range(4)]
    return out


P = []
if OPT['map'] == '8x4':
    ids = f"""s_and_b32 s{sKQ}, s2, 3
        s_bfe_u32 s{sJJ}, s2, 0x20003
        s_lshr_b32 s{sI}, s2, 5
        s_bfe_u32 s{sT0}, s2, 0x10002
        s_lshl_b32 s{sROT}, s{sT0}, 1
        s_lshl_b32 s{sT0}, s{sT0}, 3
        s_and_b32 s{sT1}, s{sI}, 1
        s_or_b32 s{sI}, s{sI}, s{sT0}
        s_add_u32 s{sROT}, s{sROT}, s{sT1}
        s_add_u32 s{sROT}, s{sROT}, s{sKQ}
        s_lshl_b32 s{sROT}, s{sROT}, 1
        s_and_b32 s{sROT}, s{sROT}, 7"""
else:
    ids = f"""s_and_b32 s{sKQ}, s2, 1
        s_lshl_b32 s{sKQ}, s{sKQ}, 1
        s_lshr_b32 s{sT0}, s2, 7
        s_or_b32 s{sKQ}, s{sKQ}, s{sT0}
        s_bfe_u32 s{sJJ}, s2, 0x20003
        s_bfe_u32 s{sI}, s2, 0x20005
        s_bfe_u32 s{sT0}, s2, 0x20001
        s_add_u32 s{sROT}, s{sT0}, s{sKQ}
        s_lshl_b32 s{sT0}, s{sT0}, 2
        s_or_b32 s{sI}, s{sI}, s{sT0}
        s_lshl_b32 s{sROT}, s{sROT}, 1
        s_and_b32 s{sROT}, s{sROT}, 7"""
P += L(f"""
s_cmp_ge_u32 s2, 256
s_cbranch_scc1 L_end
{'s_memtime s[98:99]' if PROF else ''}
{'s_memrealtime s[90:91]' if PROF else ''}
s_load_dwordx16 s[4:19], s[0:1], 0
s_load_dwordx16 s[20:35], s[0:1], 64
s_getpc_b64 s[{sTMP}:{sTMP + 1}]
v_lshrrev_b32 v{t0}, 6, v0
v_and_b32 v{vL}, 63, v0
s_and_b32 s{sTMP}, s{sTMP}, 0xffffff80
v_readfirstlane_b32 s{sW}, v{t0}
s_mov_b32 s{sTMP + 2}, L_code_end-{KN}
s_mov_b32 s{sTMP + 3}, 0x00020000
s_lshr_b32 s{sT0}, s2, 3
s_lshl_b32 s{sT0}, s{sT0}, 2
s_add_u32 s{sT0}, s{sT0}, s{sW}
s_lshl_b32 s{sT0}, s{sT0}, 9
v_and_b32 v{t1}, 3, v{vL}
v_lshlrev_b32 v{t1}, 7, v{t1}
buffer_load_dword v{t3}, v{t1}, {srd(sTMP)}, s{sT0} offen
v_lshrrev_b32 v{t0}, 3, v{vL}
v_lshrrev_b32 v{t1}, 4, v{vL}
v_xor_b32 v{t1}, v{t1}, v{vL}
v_and_b32 v{t1}, 7, v{t1}
v_lshlrev_b32 v{t1}, 4, v{t1}
v_lshl_add_u32 v{PG[0]}, v{t0}, 10, v{t1}
v_lshrrev_b32 v{t2}, 5, v{vL}
v_mul_u32_u24 v{t2}, {12 * 1024}, v{t2}
v_add_u32 v{XG[0]}, v{PG[0]}, v{t2}
v_xor_b32 v{XG[1]}, 64, v{XG[0]}
v_add_u32 v{XG[2]}, {6 * 1024}, v{XG[0]}
v_add_u32 v{XG[3]}, {9 * 1024}, v{XG[1]}
v_add_u32 v{XG[1]}, {3 * 1024}, v{XG[1]}
s_lshl_b32 s{sWOFF}, s{sW}, 12
s_mov_b32 s{sX + 2}, 2097152
s_mov_b32 s{sX + 3}, 0x00020000
s_waitcnt lgkmcnt(0)
{'v_accvgpr_write_b32 a62, s98' if PROF else ''}
{'v_accvgpr_write_b32 a63, s90' if PROF else ''}
{'s_mov_b32 s23, 0' if PROF else ''}
{ids}
s_lshl_b32 s{sXB}, s{sI}, 17
s_lshl_b32 s{sT0}, s{sW}, 15
s_add_u32 s{sXB}, s{sXB}, s{sT0}
s_mov_b32 s{sX}, s4
s_mov_b32 s{sX + 1}, s5
""")
P += stamp('ka') if 0 else []
P += rx(0, 0) + rx(1, 1) + rx(2, 2)
SUM, SQ = [TT + 8, TT + 9], [TT + 10, TT + 11]
P += L(f"""
s_load_dword s{sE2}, s[34:35], {WS_EP}
v_and_b32 v{t0}, 31, v{vL}
v_lshrrev_b32 v{t1}, 5, v{vL}
v_bfe_u32 v{t2}, v{vL}, 1, 3
v_xor_b32 v{t1}, v{t1}, v{t2}
v_lshlrev_b32 v{t1}, 4, v{t1}
v_lshl_add_u32 v{AS[0]}, v{t0}, 7, v{t1}
v_xor_b32 v{AS[1]}, 32, v{AS[0]}
v_xor_b32 v{AS[2]}, 64, v{AS[0]}
v_xor_b32 v{AS[3]}, 0x60, v{AS[0]}
v_add_u32 v{ASc[0]}, s{sWOFF}, v{AS[0]}
v_add_u32 v{ASc[1]}, s{sWOFF}, v{AS[1]}
v_add_u32 v{ASc[2]}, s{sWOFF}, v{AS[2]}
v_add_u32 v{ASc[3]}, s{sWOFF}, v{AS[3]}
s_mov_b32 s{sONES}, 0x3f803f80
v_mov_b32 v{SUM[0]}, 0
v_mov_b32 v{SUM[1]}, 0
v_mov_b32 v{SQ[0]}, 0
v_mov_b32 v{SQ[1]}, 0
s_lshl_b32 s{sJ}, s{sKQ}, 2
s_or_b32 s{sJ}, s{sJ}, s{sJJ}
s_lshl_b32 s{sT0}, s{sJ}, 6
v_lshl_add_u32 v{t1}, v{t0}, 1, s{sT0}
global_load_ushort v{LR}, v{t1}, s[6:7]
global_load_ushort v{LI}, v{t1}, s[8:9]
global_load_ushort v{NLI}, v{t1}, s[18:19]
s_lshl_b32 s{sT0}, s{sW}, 9
s_add_u32 s{sT0}, s{sT0}, {T_SEG}
v_lshl_add_u32 v{t0}, v{vL}, 3, s{sT0}""")
P.append(I(f'ds_write_b64 v{t0}, {vr(SUM[0], 2)}', tok='zero'))
P += rx(3, 3)
later = L(f"""
s_and_b32 s{sT3}, s{sW}, 1
s_cmp_eq_u32 s{sT3}, 1
s_cselect_b32 s{sB}, s12, s10
s_cselect_b32 s{sB + 1}, s13, s11
s_mov_b32 s{sB + 2}, 524288
s_mov_b32 s{sB + 3}, 0x00020000
s_lshl_b32 s{sBB}, s{sJ}, 15
s_lshr_b32 s{sT1}, s{sW}, 1
s_add_u32 s{sT1}, s{sT1}, s{sROT}
s_and_b32 s{sKC[0]}, s{sT1}, 7
s_add_u32 s{sT1}, s{sT1}, 2
s_and_b32 s{sKC[1]}, s{sT1}, 7
s_add_u32 s{sT1}, s{sT1}, 2
s_and_b32 s{sKC[2]}, s{sT1}, 7
s_add_u32 s{sT1}, s{sT1}, 2
s_and_b32 s{sKC[3]}, s{sT1}, 7
v_xor_b32 v{PG[1]}, 64, v{PG[0]}
v_add_u32 v{PG[2]}, {14 * 1024}, v{PG[0]}
v_add_u32 v{PG[3]}, {21 * 1024}, v{PG[1]}
v_add_u32 v{PG[1]}, {7 * 1024}, v{PG[1]}
s_mul_i32 s{sT2}, s{sKQ}, 7
s_lshl_b32 s{sW1A}, s{sJJ}, 1
s_add_u32 s{sW1B}, s{sW1A}, 1
s_cmp_eq_u32 s{sJJ}, 3
s_cselect_b32 s{sW1B}, 3, s{sW1B}
s_cselect_b32 s{sFSEL}, 64, 0
s_mov_b32 s{sSST}, s{sW1B}
s_add_u32 s{sW1A}, s{sW1A}, s{sT2}
s_add_u32 s{sW1B}, s{sW1B}, s{sT2}
s_lshl_b32 s{sW1A}, s{sW1A}, 7
s_lshl_b32 s{sW1B}, s{sW1B}, 7
s_cmp_ge_u32 s{sW}, 2
s_cselect_b32 s{sT2}, s{sW1B}, s{sW1A}
s_cselect_b32 s{sT1}, s{sFSEL}, 0
s_add_u32 s{sT2}, s{sT2}, s{sT1}
s_lshl_b32 s{sT1}, s{sT3}, 6
s_xor_b32 s{sT2}, s{sT2}, s{sT1}
v_and_b32 v{t1}, 3, v{vL}
v_bfe_u32 v{t2}, v{vL}, 2, 2
v_lshl_add_u32 v{t1}, v{t2}, 3, v{t1}
v_bfe_u32 v{t2}, v{vL}, 4, 1
v_lshl_add_u32 v{t1}, v{t2}, 2, v{t1}
v_lshl_add_u32 v{t1}, v{t1}, 1, s{sT2}
global_load_ushort v{CR}, v{t1}, s[26:27]
s_mul_i32 s{sT3}, s{sT3}, {32 * 3584}
s_add_u32 s{sW1A}, s{sW1A}, s{sT3}
s_add_u32 s{sW1B}, s{sW1B}, s{sT3}
v_bfe_u32 v{t0}, v{vL}, 2, 1
v_lshrrev_b32 v{t1}, 5, v{vL}
v_and_b32 v{t2}, 1, v{vL}
v_lshlrev_b32 v{t2}, 4, v{t2}
v_mov_b32 v{VNM}, 0x3f80
v_lshlrev_b32 v{t2}, v{t2}, v{VNM}
v_cmp_eq_u32 vcc, v{t0}, v{t1}
v_bfe_u32 v{t0}, v{vL}, 1, 1
v_bfe_u32 v{t1}, v{vL}, 3, 2
v_cndmask_b32 v{t2}, 0, v{t2}, vcc
v_lshl_add_u32 v{t0}, v{t1}, 1, v{t0}
""")
for q in range(0, 8, 2):
    later += L(f"""v_cmp_eq_u32 vcc, {q}, v{t0}
        v_cmp_eq_u32 s[32:33], {q + 1}, v{t0}
        s_nop 0
        v_cndmask_b32 v{TT + q}, 0, v{t2}, vcc
        v_cndmask_b32 v{TT + q + 1}, 0, v{t2}, s[32:33]""")
later += L(mksrd(sW1, 24, 1835008) + f"""
v_lshrrev_b32 v{t1}, 3, v{vL}
v_mul_u32_u24 v{t1}, 3584, v{t1}
v_bfe_u32 v{t2}, v{vL}, 4, 1
v_lshlrev_b32 v{t2}, 2, v{t2}
v_xor_b32 v{t2}, v{t2}, v{vL}
v_and_b32 v{t2}, 7, v{t2}
v_lshl_add_u32 v{QG[0]}, v{t2}, 4, v{t1}
v_add_u32 v{QG[1]}, {27648}, v{QG[0]}
v_add_u32 v{QG[2]}, {2 * 27648}, v{QG[0]}
v_add_u32 v{QG[3]}, {3 * 27648}, v{QG[0]}""")
later_s = L(f"""
v_bfe_u32 v{t1}, v{vL}, 2, 2
v_lshrrev_b32 v{t2}, 5, v{vL}
v_lshl_add_u32 v{t2}, v{t2}, 3, v{t1}
v_lshlrev_b32 v{FA0}, 7, v{t2}
v_lshrrev_b32 v{t1}, 1, v{t1}
v_lshl_add_u32 v{FA0}, v{t1}, 6, v{FA0}
v_bfe_u32 v{t1}, v{vL}, 4, 1
v_lshl_add_u32 v{FA0}, v{t1}, 5, v{FA0}
v_and_b32 v{t1}, 3, v{vL}
v_lshl_add_u32 v{FA0}, v{t1}, 3, v{FA0}
v_lshlrev_b32 v{VL16}, 4, v{vL}
v_mov_b32 v{VLN2}, {LN2:#x}
""" + mksrd(sCre, 14, 524288) + mksrd(sCim, 16, 524288) + mksrd(sW2, 28, 1835008)
            + mksrd(sWS, 34, (WS_PROF + 0x40000) if PROF else WS_SIZE) + mksrd(sOUT, 30, 4194304))
cuts = [0]
for n in range(1, 8):
    c = n * len(later) // 8
    while later[c].mn.startswith(('s_cselect', 'v_cndmask', 's_nop')) or later[c - 1].mn.startswith('v_cmp'):
        c += 1
    cuts.append(c)
cuts.append(len(later))
P += later[:cuts[1]] + [I('s_waitcnt lgkmcnt(0)')]

for s in range(8):
    P.append(Wait(f'x{s}'))
    if s == 0:
        P += stamp('x0')
    for q in range(4):
        P.append(I(f'ds_read_b128 {vr(X + 16 * s + 4 * q, 4)}, v{ASc[q]} offset:{(s & 3) * SLOT}', lds_r=s & 3,
                   tok=f'xr{s}' if q == 3 else None))
    P += later[cuts[s + 1]:cuts[s + 2]] if s < 7 else []
    if s >= 4:
        P += rg(s - 4)
    for r in range(16):
        if r == 4 and s < 4:
            P += [Wait(f'xr{s}')] + rx(s + 4, s)
        P.append(I(f'v_dot2c_f32_bf16 v{SUM[r & 1]}, s{sONES}, v{X + 16 * s + r}'))
        P.append(I(f'v_dot2c_f32_bf16 v{SQ[r & 1]}, v{X + 16 * s + r}, v{X + 16 * s + r}'))
P += stamp('x7')
P += L(f"""
v_add_f32 v{SUM[0]}, v{SUM[0]}, v{SUM[1]}
v_add_f32 v{SQ[0]}, v{SQ[0]}, v{SQ[1]}
v_mov_b32 v{SUM[1]}, v{SUM[0]}
v_mov_b32 v{SQ[1]}, v{SQ[0]}
v_permlane32_swap_b32 v{SUM[1]}, v{SUM[0]}
v_permlane32_swap_b32 v{SQ[1]}, v{SQ[0]}
v_add_f32 v{SUM[0]}, v{SUM[0]}, v{SUM[1]}
v_add_f32 v{SQ[0]}, v{SQ[0]}, v{SQ[1]}
v_mul_f32 v{SUM[0]}, 0x3b000000, v{SUM[0]}
v_mul_f32 v{SQ[0]}, 0x3b000000, v{SQ[0]}
v_fma_f32 v{SQ[0]}, -v{SUM[0]}, v{SUM[0]}, v{SQ[0]}
v_max_f32 v{SQ[0]}, 0, v{SQ[0]}
v_cvt_pk_bf16_f32 v{t0}, v{SUM[0]}, v{SQ[0]}
v_lshlrev_b32 v{VNM}, 16, v{t0}
v_sub_f32 v{SIM}, 0, v{VNM}
v_sub_f32 v{SIM + 1}, 0, v{VNM}
""")
P += [I(f'v_mov_b64 {vr(SIM + 2 * q, 2)}, {vr(SIM, 2)}') for q in range(1, 8)]

DB = [FACC[0], FACC[1], SRE]
items = []
for q in range(16):
    d = vr(DB[q % 3], 16)
    for h in range(2):
        it = [mfma(d, vr(TT + 4 * h, 4), vr(X + 8 * q + 4 * h, 4), vr(SIM, 16) if h == 0 else d)]
        if q >= 2:
            o = q - 2
            it += [I(f'v_cvt_pk_bf16_f32 v{X + 8 * o + 4 * h + e}, v{DB[o % 3] + 8 * h + 2 * e}, '
                     f'v{DB[o % 3] + 8 * h + 2 * e + 1}') for e in range(4)]
        items.append(it)
fill = L(f"""
v_and_b32 v{t0}, 0xffff0000, v{t0}
v_add_f32 v{t0}, 0x3727c5ac, v{t0}
v_cvt_pk_bf16_f32 v{t0}, v{t0}, v{t0}
v_lshlrev_b32 v{t0}, 16, v{t0}
v_sqrt_f32 v{t0}, v{t0}
v_and_b32 v{t1}, 3, v{vL}
v_cvt_pk_bf16_f32 v{t0}, v{t0}, v{t0}
v_lshlrev_b32 v{t0}, 16, v{t0}
v_rcp_f32 v{VRS}, v{t0}
v_bfe_u32 v{t2}, v{vL}, 3, 2
v_lshl_add_u32 v{t1}, v{t2}, 2, v{t1}
v_bfe_u32 v{t2}, v{vL}, 2, 1
v_lshl_add_u32 v{t1}, v{t2}, 4, v{t1}
s_lshl_b32 s{sT1}, s{sW}, 8
s_add_u32 s{sT1}, s{sT1}, {T_STAT}
v_lshl_add_u32 v{t1}, v{t1}, 2, s{sT1}
v_mul_f32 v{RL2}, {LOG2E:#x}, v{VRS}
ds_write_b32 v{t1}, v{VNM}
ds_write_b32 v{t1}, v{VRS} offset:128
v_lshlrev_b32 v{CR}, 16, v{CR}
v_mul_f32 v{CR}, {LOG2E:#x}, v{CR}
v_and_b32 v{t1}, 31, v{vL}
s_lshl_b32 s{sT1}, s{sW}, 7
s_add_u32 s{sT1}, s{sT1}, {T_B1}
v_lshl_add_u32 v{t1}, v{t1}, 2, s{sT1}""")
fill.append(I(f'ds_write_b32 v{t1}, v{CR}', tok='tabw'))
LA_S, LA_F = 3, OPT['laf']


def s_addr(slot):
    return [I(f'v_add_u32 v{ASc[q]}, {slot * SLOT}, v{AS[q]}') for q in range(4)]


def s_read(s, ri):
    return I(f'ds_read_b128 {ar(aS + 8 * (s & 3) + 4 * ri, 4)}, v{ASc[s & 3]} offset:{(2 * ((s >> 2) & 1) + ri) * 4096}',
             lds_r=G_SLOT[s >> 3])


def f_addr(b, g):
    slot = G_SLOT[(4 if b < 2 else 8) + g]
    if b < 2:
        sel = [I(f'v_xor_b32 v{FAc}, 64, v{FA0}')] if b else []
        return sel + [I(f'v_add_u32 v{FAc}, {slot * SLOT}, v{FAc if b else FA0}')]
    return [I(f'v_xor_b32 v{FAc}, s{sFSEL}, v{FA0}'), I(f'v_add_u32 v{FAc}, {slot * SLOT}, v{FAc}')]


def f_read(b, s):
    out = f_addr(b, s >> 3) if s % 8 == 0 else []
    k = (32 * b + s) & 7
    for u in range(2):
        out.append(I(f'ds_read_b64_tr_b16 {ar(aF + 4 * k + 2 * u, 2)}, v{FAc} '
                     f'offset:{((s >> 1) & 3) * 4096 + (s & 1) * 2048 + u * 512}',
                     lds_r=G_SLOT[(4 if b < 2 else 8) + (s >> 3)]))
    return out


pin = {8: rg(4), 20: rg(5),
       27: s_addr(G_SLOT[0]) + stamp('c27') + [Wait('G0', 'G1', 'tabw', 'zero'), I('s_barrier')] + stamp('b0')}
for k in range(LA_S):
    pin[28 + k] = [s_read(k, 0), s_read(k, 1)]
P += weave(items, fill, pin, 0, 20)
for o in (14, 15):
    P += [I(f'v_cvt_pk_bf16_f32 v{X + 8 * o + e}, v{DB[o % 3] + 2 * e}, v{DB[o % 3] + 2 * e + 1}') for e in range(8)]

S_items = []
for s in range(32):
    for ri, acc in ((0, SRE), (1, SIM)):
        it = [mfma(vr(acc, 16), vr(X + 4 * s, 4), ar(aS + 8 * (s & 3) + 4 * ri, 4), vr(acc, 16) if s else '0')]
        n = s + LA_S
        if n < 32:
            if ri == 0 and n % 8 == 0:
                it += s_addr(G_SLOT[n >> 3])
            it.append(s_read(n, ri))
        S_items.append(it)
for k in range(LA_F):
    S_items[64 - LA_F + k] += f_read(0, k)
F_items = []
for b in range(4):
    its = []
    for s in range(32):
        acc = vr(FACC[b & 1], 16)
        it = [mfma(acc, ar(aF + 4 * ((32 * b + s) & 7), 4), vr(X + 4 * s, 4), acc if s else '0')]
        n = s + LA_F
        if n < 32:
            it += f_read(b, n)
        elif b < 3:
            if b == 2 and n == 32:
                it.append(I(f's_xor_b32 s{sFSEL}, s{sFSEL}, 64'))
            it += f_read(b + 1, n - 32)
        its.append(it)
    F_items.append(its)

FLA, FLP = VNM, VRS
fill = later_s + L(f"""
s_mul_i32 s{sE2}, s{sE2}, 1664525
s_add_u32 s{sE2}, s{sE2}, 1013904226
s_or_b32 s{sTAG}, s{sE2}, 1
s_mov_b32 s{sPB[0]}, s{sSST}
s_cmp_eq_u32 s{sPB[0]}, 1
s_cselect_b32 s{sPB[1]}, 3, 1
s_cmp_eq_u32 s{sPB[0]}, 5
s_cselect_b32 s{sPB[2]}, 3, 5
s_lshl_b32 s{sSEL[0]}, s{sFSEL}, 9
s_lshl_b32 s{sAS}, s{sI}, 2
s_add_u32 s{sAS}, s{sAS}, s{sW}
s_lshl_b32 s{sAS}, s{sAS}, 2
s_add_u32 s{sAS}, s{sAS}, s{sKQ}
s_lshl_b32 s{sT3}, s{sAS}, 7
s_mul_i32 s{sAS}, s{sAS}, {44 * 1024}
s_add_u32 s{sAS}, s{sAS}, {WS_A}
s_lshl_b32 s{sT2}, s{sJJ}, 13
s_add_u32 s{sFST[0]}, s{sAS}, s{sT2}
s_add_u32 s{sFST[1]}, s{sFST[0]}, 2048
s_lshl_b32 s{sT2}, s{sPB[0]}, 12
s_add_u32 s{sFST[3]}, s{sAS}, s{sT2}
s_lshl_b32 s{sT2}, s{sFSEL}, 5
s_add_u32 s{sFST[2]}, s{sFST[3]}, s{sT2}
s_add_u32 s{sFST[3]}, s{sFST[3]}, 2048
s_lshl_b32 s{sT2}, s{sJJ}, 12
s_add_u32 s{sSST}, s{sAS}, s{sT2}
s_add_u32 s{sSST}, s{sSST}, {28 * 1024}
s_add_u32 s{sT3}, s{sT3}, {WS_FL}
s_lshl_b32 s{sT2}, s{sJJ}, 2
s_add_u32 s{sT2}, s{sT2}, s{sT3}
v_mov_b32 v{FLA}, s{sT2}
v_and_b32 v{t0}, 3, v{vL}
v_max_u32 v{t0}, 1, v{t0}
v_xor_b32 v{t0}, s{sJJ}, v{t0}
v_lshl_add_u32 v{FLP}, v{t0}, 2, s{sT3}
s_xor_b32 s{sT2}, s{sW}, s{sKQ}
s_lshl_b32 s{sT2}, s{sT2}, 15
s_lshl_b32 s{sCB}, s{sJJ}, 17
s_add_u32 s{sCB}, s{sCB}, s{sT2}
s_lshl_b32 s{sT2}, s{sKQ}, 8
s_add_u32 s{sCB}, s{sCB}, s{sT2}
s_lshr_b32 s{sT2}, s{sJJ}, 1
s_lshl_b32 s{sT2}, s{sT2}, 7
s_add_u32 s{sCB}, s{sCB}, s{sT2}
s_mul_i32 s{sW2B}, s{sKQ}, {448 * 1024}
s_lshr_b32 s{sT2}, s{sW}, 1
s_lshl_b32 s{sT2}, s{sT2}, 15
s_add_u32 s{sW2B}, s{sW2B}, s{sT2}
s_lshl_b32 s{sT2}, s{sJJ}, 8
s_add_u32 s{sW2B}, s{sW2B}, s{sT2}
s_lshr_b32 s{sT2}, s{sKQ}, 1
s_xor_b32 s{sT2}, s{sT2}, s{sW}
s_and_b32 s{sT2}, s{sT2}, 1
s_lshl_b32 s{sT2}, s{sT2}, 7
s_add_u32 s{sW2B}, s{sW2B}, s{sT2}
v_lshrrev_b32 v{t0}, 3, v{vL}
v_bfe_u32 v{t1}, v{vL}, 4, 1
v_lshlrev_b32 v{t1}, 2, v{t1}
v_xor_b32 v{t1}, v{t1}, v{vL}
v_and_b32 v{t1}, 7, v{t1}
v_lshlrev_b32 v{t1}, 4, v{t1}
v_lshl_add_u32 v{XG[0]}, v{t0}, 10, v{t1}
v_add_u32 v{XG[1]}, {7 * 1024}, v{XG[0]}
v_add_u32 v{XG[2]}, {14 * 1024}, v{XG[0]}
v_add_u32 v{XG[3]}, {21 * 1024}, v{XG[0]}""")
if OPT['pf']:
    fill += L(f"""
s_mul_i32 s{sT2}, s{sKQ}, 448
s_mul_i32 s{sT3}, s{sI}, 28
s_add_u32 s{sT2}, s{sT2}, s{sT3}
s_lshl_b32 s{sT2}, s{sT2}, 2
s_add_u32 s{sT2}, s{sT2}, s{sJJ}
s_lshl_b32 s{sT3}, s{sJJ}, 4
s_add_u32 s{sT3}, s{sT3}, s{sI}
s_lshl_b32 s{sT3}, s{sT3}, 5
s_add_u32 s{sT3}, s{sT3}, s{sKQ}
s_cmp_eq_u32 s{sW}, 0
s_cselect_b32 s{sT2}, s{sT2}, s{sT3}
s_cselect_b32 s{sT3}, 56, 16
s_cselect_b32 s{sTMP}, s{sW2}, s{sCre}
s_cselect_b32 s{sTMP + 1}, s{sW2 + 1}, s{sCre + 1}
s_cselect_b32 s{sTMP + 2}, s{sW2 + 2}, s{sCre + 2}
s_cmp_eq_u32 s{sW}, 2
s_cselect_b32 s{sTMP}, s{sCim}, s{sTMP}
s_cselect_b32 s{sTMP + 1}, s{sCim + 1}, s{sTMP + 1}
s_cmp_eq_u32 s{sW}, 3
s_cselect_b32 s{sT3}, 0, s{sT3}
s_lshl_b32 s{sT2}, s{sT2}, 8
v_lshrrev_b32 v{t0}, 1, v{vL}
v_and_b32 v{t1}, 1, v{vL}
v_lshlrev_b32 v{t1}, 7, v{t1}
v_lshl_add_u32 v{t0}, v{t0}, 10, v{t1}
v_add_u32 v{t0}, s{sT2}, v{t0}
v_mov_b32 v{t1}, {OOB:#x}
v_cmp_gt_u32 vcc, s{sT3}, v{vL}
v_cndmask_b32 v{t0}, v{t1}, v{t0}, vcc
buffer_load_dword v{PI}, v{t0}, {srd(sTMP)}, 0 offen""")
ZR, ZA = TT, TT + 1
fill += L(f"""
v_lshlrev_b32 v{NLI}, 16, v{NLI}
v_mul_f32 v{NLI}, {LOG2E:#x}, v{NLI}
v_exp_f32 v{NLI}, v{NLI}
v_lshlrev_b32 v{TT + 2}, 16, v{LR}
v_lshlrev_b32 v{TT + 3}, 16, v{LI}
v_cvt_pk_bf16_f32 v{NLI}, v{NLI}, v{NLI}
v_lshlrev_b32 v{NLI}, 16, v{NLI}
v_mul_f32 v{ZR}, v{NLI}, v{TT + 2}
v_mul_f32 v{ZA}, v{NLI}, v{TT + 3}
v_mul_f32 v{ZR}, {LOG2E:#x}, v{ZR}
v_mul_f32 v{ZA}, 0xbe22f983, v{ZA}""")
fill += cexp(LR, LI, '1.0', ZR, ZA)
fill += L(f"""
v_mul_f32 v{TT + 4}, v{TT + 2}, v{TT + 2}
v_fmac_f32 v{TT + 4}, v{TT + 3}, v{TT + 3}
v_rcp_f32 v{TT + 4}, v{TT + 4}
v_add_f32 v{TT + 5}, -1.0, v{LR}
v_sub_f32 v{NLI}, 0, v{LI}
v_add_f32 v{TT + 4}, v{TT + 4}, v{TT + 4}
v_mul_f32 v{CR}, v{TT + 5}, v{TT + 2}
v_fmac_f32 v{CR}, v{NLI}, v{TT + 3}
v_mul_f32 v{NCI}, v{TT + 5}, v{TT + 3}
v_fmac_f32 v{NCI}, v{LI}, v{TT + 2}
v_mul_f32 v{CR}, v{CR}, v{TT + 4}
v_mul_f32 v{NCI}, v{NCI}, v{TT + 4}
v_sub_f32 v{NCR}, 0, v{CR}""")
fill += cexp(L16R, L16I, '0x41800000', ZR, ZA)
fill += cexp(L128R, L128I, '0x43000000', ZR, ZA)
fill += L(f"""
v_lshrrev_b32 v{TT + 6}, 5, v{vL}
s_lshl_b32 s{sT2}, s{sW}, 1
v_add_u32 v{TT + 6}, s{sT2}, v{TT + 6}
v_cvt_f32_u32 v{TT + 6}, v{TT + 6}
v_mul_f32 v{TT + 7}, 0x41800000, v{TT + 6}
v_sub_f32 v{TT + 6}, 0x40e00000, v{TT + 6}
v_mul_f32 v{TT + 6}, 0x43800000, v{TT + 6}""")
fill += cexp(LSR, LSI, f'v{TT + 7}', ZR, ZA)
fill += cexp(WR, WI, f'v{TT + 6}', ZR, ZA)
fill += L(f"""
v_lshrrev_b32 v{t2}, 5, v{vL}
v_lshlrev_b32 v{t2}, 6, v{t2}
v_add_u32 v{t2}, {TB}, v{t2}
s_lshl_b32 s{sT2}, s{sW}, 8
v_add_u32 v{t1}, s{sT2}, v{t2}""")
fill += [I(f'ds_read_b128 {vr(FACC[1] + 4 * q, 4)}, v{t1} offset:{128 + 16 * q}') for q in range(4)]
pin = {2: rg(6), 14: rg(7),
       24: [Wait('G2', 'G3'), I('s_barrier')], 28: rg(8), 42: rg(9),
       63 - LA_F: stamp('s59') + [Wait('G4', 'G5', 'G6', 'G7'), I('s_barrier')] + stamp('b2')}
P += weave(S_items, fill, pin, 0, 62 - LA_F)

Q = FACC[1]
fill = []
for r in range(16):
    a, b_ = TT + 2 * (r & 1), TT + 2 * (r & 1) + 1
    fill += L(f"""v_mul_f32 v{a}, v{SRE + r}, v{CR}
        v_mul_f32 v{b_}, v{SRE + r}, v{NCI}
        v_fmac_f32 v{a}, v{SIM + r}, v{NCI}
        v_fmac_f32 v{b_}, v{SIM + r}, v{NCR}
        v_mul_f32 v{SRE + r}, v{a}, v{Q + r}
        v_mul_f32 v{SIM + r}, v{b_}, v{Q + r}""")
    if r:
        pr, pi_ = (SRE, SIM) if r == 1 else (TT + 4 + 2 * (r & 1), TT + 5 + 2 * (r & 1))
        nr, ni = TT + 4 + 2 * ((r + 1) & 1), TT + 5 + 2 * ((r + 1) & 1)
        fill += L(f"""v_fma_f32 v{nr}, v{LR}, v{pr}, v{SRE + r}
            v_fma_f32 v{ni}, v{LR}, v{pi_}, v{SIM + r}
            v_fmac_f32 v{nr}, v{NLI}, v{pi_}
            v_fmac_f32 v{ni}, v{LI}, v{pr}""")
AGR, AGI = TT + 4, TT + 5
fill += L(f"""s_lshl_b32 s{sT2}, s{sW}, 9
    s_add_u32 s{sT2}, s{sT2}, {T_SEG}
    v_lshl_add_u32 v{t1}, v{vL}, 3, s{sT2}""")
fill.append(I(f'ds_write_b64 v{t1}, {vr(AGR, 2)} offset:{7 * 256}', tok='segw'))
pin = {0: rg(10), 14: rg(11), 31: [Wait('segw'), I('s_barrier')] + rw('WA0')}
P += weave(F_items[0], fill, pin, 2, 30)
P += stamp('F0')

E = ASc[0]
fill = [I(f'ds_read2_b64 {vr(TT + 8 + 4 * (q & 1), 4)}, v{t1} offset0:{64 * q} offset1:{64 * q + 32}') for q in range(2)]
fill += cmul_add(PR, PI, L16R, L16I, TT + 8, TT + 9, TT + 10, TT + 11)
fill += cmul_add(TT, TT + 1, L16R, L16I, PR, PI, TT + 12, TT + 13)
fill.append(I(f'ds_read2_b64 {vr(TT + 8, 4)}, v{t1} offset0:128 offset1:160'))
fill += cmul_add(PR, PI, L16R, L16I, TT, TT + 1, TT + 14, TT + 15)
fill.append(I(f'ds_read_b64 {vr(TT + 12, 2)}, v{t1} offset:{6 * 256}'))
fill += cmul_add(TT, TT + 1, L16R, L16I, PR, PI, TT + 8, TT + 9)
fill += cmul_add(TT + 2, TT + 3, L16R, L16I, TT, TT + 1, TT + 10, TT + 11)
fill += cmul_add(PR, PI, L16R, L16I, TT + 2, TT + 3, TT + 12, TT + 13)
fill += cmul_add(E, E + 2, L16R, L16I, PR, PI, AGR, AGI)
fill += L(f"""v_mov_b32 v{E + 1}, s{sTAG}
    v_mov_b32 v{E + 3}, s{sTAG}
    s_lshl_b32 s{sT2}, s{sJ}, 4
    s_add_u32 s{sT2}, s{sT2}, s{sI}
    s_lshl_b32 s{sT2}, s{sT2}, 9
    s_add_u32 s{sT2}, s{sT2}, {WS_AG - 512}
    s_cmp_eq_u32 s{sW}, 3
    s_cselect_b32 s{sT2}, s{sT2}, {OOB:#x}
    v_mov_b32 v{t0}, {OOB:#x}
    v_cmp_gt_u32 vcc, 32, v{vL}
    v_add_u32 v{t1}, s{sT2}, v{VL16}
    v_cndmask_b32 v{t1}, v{t1}, v{t0}, vcc
    buffer_store_dwordx4 {vr(E, 4)}, v{t1}, {srd(sWS)}, 0 offen sc1""")
fill += mish(0)
pin = {31 - LA_F: [Wait('G8', 'G9', 'G10', 'G11'), I('s_barrier')] + rw('CR0')}
P += weave(F_items[1], fill, pin, 1, 31)
P += stamp('F1')

LBA = [CR, NCI]
LBE = [NCR, L16R]
LBD = [ASc[0], QG[0]]
FLV = L16I
lb_loads = '\n'.join(f'buffer_load_dwordx4 {vr(LBD[e], 4)}, v{LBA[e]}, {srd(sWS)}, 0 offen sc1' for e in range(2))
lb_setup = L(f"""v_lshrrev_b32 v{t0}, 5, v{vL}
    s_lshl_b32 s{sT2}, s{sW}, 2
    s_add_u32 s{sT2}, s{sT2}, s{sI}
    s_sub_u32 s{sT2}, s{sT2}, 16
    v_lshl_add_u32 v{t0}, v{t0}, 1, s{sT2}
    s_lshl_b32 s{sT2}, s{sJ}, 13
    s_add_u32 s{sT2}, s{sT2}, {WS_AG}
    v_and_b32 v{t1}, 31, v{vL}
    v_lshl_add_u32 v{t1}, v{t1}, 4, s{sT2}
    v_lshl_add_u32 v{LBA[0]}, v{t0}, 9, v{t1}
    v_add_u32 v{LBA[1]}, 512, v{LBA[0]}
    v_mov_b32 v{t1}, {OOB:#x}
    v_mov_b32 v{FLV}, s{sTAG}
    v_cmp_gt_i32 vcc, 0, v{t0}
    v_cndmask_b32 v{LBA[0]}, v{LBA[0]}, v{t1}, vcc
    v_cndmask_b32 v{LBE[0]}, v{FLV}, 0, vcc
    v_cmp_gt_i32 vcc, -1, v{t0}
    v_cndmask_b32 v{LBA[1]}, v{LBA[1]}, v{t1}, vcc
    v_cndmask_b32 v{LBE[1]}, v{FLV}, 0, vcc""")
fill = mish(1) + lb_setup
pin = {4: rw('CI0'), 12: [I('s_barrier')] + rw('WA1'), 22: rw('WA2'), 31: L(lb_loads)}
P += weave(F_items[2], fill, pin, 2, 30)
P += stamp('F2')


def flag_store(stage, toks):
    return [Wait(*toks), I(f'buffer_store_dword v{FLV}, v{FLA}, {srd(sWS)}, 0 offen offset:{16 * stage} sc1')]


def flag_load(stage):
    return f'buffer_load_dword v{t3}, v{FLP}, {srd(sWS)}, 0 offen offset:{16 * stage} sc1'


flag_check = f'v_cmp_ne_u32 vcc, s{sTAG}, v{t3}'
lb_check = f"""v_bitop3_b32 v{t0}, v{LBD[0] + 1}, v{LBD[0] + 3}, v{LBE[0]} bitop3:0x7e
    v_bitop3_b32 v{t1}, v{LBD[1] + 1}, v{LBD[1] + 3}, v{LBE[1]} bitop3:0x7e
    v_or_b32 v{t0}, v{t0}, v{t1}
    v_cmp_ne_u32 vcc, 0, v{t0}"""
lb_part = stamp('lb0') + poll('lb', lb_loads, lb_check) + stamp('lb1')
lb_part += cmul_add(LBD[0] + 1, LBD[0] + 3, L128R, L128I, LBD[0], LBD[0] + 2, LBD[1], LBD[1] + 2)
lb_part += cmul_add(LBD[1], LBD[1] + 1, WR, WI, LBD[0] + 1, LBD[0] + 3)
lb_part += L(f"""s_lshl_b32 s{sT2}, s{sW}, 9
    s_add_u32 s{sT2}, s{sT2}, {T_LB}
    v_lshl_add_u32 v{t1}, v{vL}, 3, s{sT2}""")
lb_part.append(I(f'ds_write_b64 v{t1}, {vr(LBD[1], 2)}', tok='lbw'))
FP0, FPc = [CR, NCI], [QG[2], QG[3]]
p3_setup = L(f"""v_bfe_u32 v{t1}, v{vL}, 2, 2
    v_lshrrev_b32 v{t0}, 5, v{vL}
    v_lshl_add_u32 v{t0}, v{t0}, 2, v{t1}
    v_lshlrev_b32 v{FP0[0]}, 7, v{t0}
    v_lshrrev_b32 v{t1}, 1, v{t1}
    s_and_b32 s{sT2}, s{sKQ}, 1
    v_xor_b32 v{t1}, s{sT2}, v{t1}
    v_lshl_add_u32 v{FP0[0]}, v{t1}, 6, v{FP0[0]}
    v_bfe_u32 v{t1}, v{vL}, 4, 1
    v_lshl_add_u32 v{FP0[0]}, v{t1}, 5, v{FP0[0]}
    v_and_b32 v{t1}, 3, v{vL}
    v_lshl_add_u32 v{FP0[0]}, v{t1}, 3, v{FP0[0]}
    v_xor_b32 v{FP0[1]}, 64, v{FP0[0]}
    s_and_b32 s{sT2}, s{sJJ}, 1
    s_lshl_b32 s{sT2}, s{sT2}, 6""") + [I(f'v_xor_b32 v{AS[q]}, s{sT2}, v{AS[q]}') for q in range(4)]
fill = mish(2) + lb_part + p3_setup

steps = ([('WA0', x, 'own') for x in range(4)]
         + [(n, x, 'own') for n in ('CR0', 'CI0') for x in range(2)]
         + [(f'WA{e}', x, 'A') for e in (1, 2, 3) for x in range(4)]
         + [('WB0', x, 'own') for x in range(4)]
         + [(n, x, 'H') for n in ('CR0', 'CI0') for x in (2, 3)]
         + [(n, x, 'H') for n in ('CR1', 'CI1') for x in range(4)]
         + [(f'WB{e}', x, 'B') for e in (1, 2) for x in range(4)])
deferred = [k for k, st in enumerate(steps) if st[2] != 'own']
A_REGS = ([192 + 4 * n for n in range(16)] + [SRE + 4 * n for n in range(8)]
          + [FACC[0] + 4 * n for n in range(4)] + [TT + 4 * n for n in range(4)])
ACC = [128, 144, 160, 176]
LA_W = 2
cur_addr = {}


def a_frag(k):
    name, x, src = steps[k]
    if src == 'A':
        return ar(aAE + 4 * deferred.index(k), 4)
    if src != 'own':
        return vr(A_REGS[deferred.index(k)], 4)
    if name == 'WA0':
        return ar(aOF + 4 * x, 4)
    if name == 'WB0':
        return ar(aOF + 16 + 4 * x, 4) if x < 2 else vr(FACC[1] + 4 * (x - 2), 4)
    return ar(aOS + 8 * (name[1] == 'I') + 4 * x, 4)


def w_reg(k, b, lo=0, n=4):
    if b == 0 and k in deferred:
        d = deferred.index(k)
        return vr(192 + 4 * d + lo, n) if d < 12 else ar(aWO + 4 * (d - 12) + lo, n)
    return ar(aP + 16 * (k % 3) + 4 * b + lo, n)


def w_read(k):
    name, x, src = steps[k]
    slot = W_SLOT[name]
    out = []
    if name[0] == 'C':
        out.append(I(f'v_add_u32 v{FAc}, {slot * SLOT}, v{AS[x]}'))
        return out + [I(f'ds_read_b128 {w_reg(k, b)}, v{FAc} offset:{4096 * b}', lds_r=slot) for b in (1, 2, 3, 0)]
    if cur_addr.get(FPc[0]) != slot:
        cur_addr[FPc[0]] = cur_addr[FPc[1]] = slot
        out += [I(f'v_add_u32 v{FPc[b]}, {slot * SLOT}, v{FP0[b]}') for b in range(2)]
    for b in (1, 2, 3, 0):
        for u in range(2):
            out.append(I(f'ds_read_b64_tr_b16 {w_reg(k, b, 2 * u, 2)}, v{FPc[b & 1]} '
                         f'offset:{8192 * (x >> 1) + 4096 * (b >> 1) + 2048 * (x & 1) + 1024 * u}', lds_r=slot))
    return out


def a_load(k):
    name, x, src = steps[k]
    e = int(name[2])
    if name[0] == 'C':
        code = f's_xor_b32 s{sT1}, s{sJJ}, {2 * e + (x >> 1)}\ns_lshl_b32 s{sT1}, s{sT1}, 12\n' \
               f's_add_u32 s{sT1}, s{sT1}, {28 * 1024}\ns_add_u32 s{sT1}, s{sT1}, s{sAS}'
        off = 2048 * (name[1] == 'I') + 1024 * (x & 1)
        fresh = x & 1 == 0
    else:
        if name[1] == 'A':
            code = f's_xor_b32 s{sT1}, s{sJJ}, {e}\ns_lshl_b32 s{sT1}, s{sT1}, 13\ns_add_u32 s{sT1}, s{sT1}, s{sAS}'
        else:
            code = f's_lshl_b32 s{sT1}, s{sPB[e]}, 12\ns_add_u32 s{sT1}, s{sT1}, s{sAS}'
        off = 1024 * x
        fresh = x == 0
    return (L(code) if fresh else []) + \
        [I(f'buffer_load_dwordx4 {a_frag(k)}, v{VL16}, {srd(sWS)}, s{sT1} offen offset:{off} sc1')]


pin = {g_: [] for g_ in range(32)}
pin[OPT['fas']] += flag_store(0, ['stF0', 'stF1'])
pin[10] += [I('s_barrier')] + rw('WA3')
pin[OPT['fal']] += L(flag_load(0))
pin[18] += [I('s_barrier')] + rw('WB0')
pin[OPT['fac']] += stamp('fa0') + poll('fa', flag_load(0), flag_check) + stamp('fa1')
for n, k in enumerate(range(8, 20)):
    pin[OPT['fac'] + n * (32 - OPT['fac']) // 12] += a_load(k)
pin[29] += [Wait('WA0', 'CR0', 'CI0', 'WA1', 'WA2', 'lbw'), I('s_barrier')]
pin[30] += w_read(0)
pin[31] += w_read(1)
P += weave(F_items[3], fill, pin, 2, 28)
P += stamp('F3')

tail = L(f"""v_and_b32 v{t1}, 31, v{vL}
    v_lshlrev_b32 v{t1}, 3, v{t1}
    v_add_u32 v{t1}, {T_LB}, v{t1}""")
tail += [I(f'ds_read2_b64 {vr(TT + 4 * q, 4)}, v{t1} offset0:{64 * q} offset1:{64 * q + 32}') for q in range(4)]
HW, HR = ASc[0], ASc[1]
tail += L(f"""v_and_b32 v{HW}, 31, v{vL}
    v_lshrrev_b32 v{t0}, 5, v{vL}
    v_lshlrev_b32 v{HW}, 6, v{HW}
    v_lshl_add_u32 v{HW}, v{t0}, 5, v{HW}
    s_lshl_b32 s{sT2}, s{sW}, 11
    s_add_u32 s{sT2}, s{sT2}, {T_H}
    v_add_u32 v{HW}, s{sT2}, v{HW}
    v_bfe_u32 v{HR}, v{vL}, 2, 2
    v_lshl_add_u32 v{HR}, v{t0}, 3, v{HR}
    v_lshlrev_b32 v{HR}, 6, v{HR}
    v_and_b32 v{t0}, 1, v{vL}
    v_lshl_add_u32 v{HR}, v{t0}, 5, v{HR}
    v_bfe_u32 v{t0}, v{vL}, 4, 1
    v_lshl_add_u32 v{HR}, v{t0}, 4, v{HR}
    v_bfe_u32 v{t0}, v{vL}, 1, 1
    v_lshl_add_u32 v{HR}, v{t0}, 3, v{HR}
    v_add_u32 v{HR}, s{sT2}, v{HR}""")
for a, b_ in ((0, 2), (4, 6), (8, 10), (12, 14), (0, 4), (8, 12), (0, 8)):
    tail += L(f'v_add_f32 v{TT + a}, v{TT + a}, v{TT + b_}\nv_add_f32 v{TT + a + 1}, v{TT + a + 1}, v{TT + b_ + 1}')
tail += cmul_add(t0, t1, LSR, LSI, TT, TT + 1, PR, PI)
for r in range(16):
    pr, pi_ = (t0, t1) if r == 0 else (SRE + r - 1, SIM + r - 1)
    tail += L(f"""v_fmac_f32 v{SRE + r}, v{LR}, v{pr}
        v_fmac_f32 v{SIM + r}, v{LR}, v{pi_}
        v_fmac_f32 v{SRE + r}, v{NLI}, v{pi_}
        v_fmac_f32 v{SIM + r}, v{LI}, v{pr}""")
    if r & 1:
        tail += L(f"""v_cvt_pk_bf16_f32 v{TT + (r >> 1)}, v{SRE + r - 1}, v{SRE + r}
            v_cvt_pk_bf16_f32 v{TT + 8 + (r >> 1)}, v{SIM + r - 1}, v{SIM + r}""")
for ri in range(2):
    tail += [I(f'ds_write_b128 v{HW}, {vr(TT + 8 * ri + 4 * h, 4)} offset:{16 * h}') for h in range(2)]
    for fr in range(2):
        for u in range(2):
            tail.append(I(f'ds_read_b64_tr_b16 {ar(aOS + 8 * ri + 4 * fr + 2 * u, 2)}, v{HR} offset:{1024 * fr + 256 * u}'))
tail += L(f"""s_bitcmp1_b32 s{sJJ}, 0
    s_cselect_b32 s{sT2}, {OOB:#x}, 0
    v_add_u32 v{ASc[2]}, s{sT2}, v{VL16}""")
m3 = mish(3, ASc[2])
tail += m3[:4]
for q in range(4):
    tail.append(I(f'buffer_store_dwordx4 {ar(aOS + 4 * q, 4)}, v{VL16}, {srd(sWS)}, s{sSST} offen offset:{1024 * q} sc1',
                  tok='stH' if q == 3 else None))
tail += stamp('stH')
tail2 = m3[4:] + stamp('m3')

XE, ME = FACC[1], LSR
ep_setup = L(f"""v_and_b32 v{t0}, 31, v{vL}
    v_lshrrev_b32 v{t1}, 5, v{vL}
    v_lshlrev_b32 v{t2}, 14, v{t1}
    v_lshl_add_u32 v{t2}, v{t0}, 1, v{t2}
    s_lshl_b32 s{sT2}, s{sJJ}, 2
    s_add_u32 s{sT2}, s{sT2}, s{sKQ}
    s_lshl_b32 s{sT2}, s{sT2}, 6
    v_lshl_add_u32 v{t0}, v{t0}, 1, s{sT2}
    s_add_u32 s{sXB}, s{sXB}, s{sT2}
    global_load_ushort v{RL2}, v{t0}, s[20:21]
    s_lshl_b32 s{sT2}, s{sW}, 8
    s_add_u32 s{sT2}, s{sT2}, {T_STAT}
    v_lshl_add_u32 v{VLN2}, v{t1}, 6, s{sT2}
    v_lshlrev_b32 v{FA0}, 1, v{t2}""")
for r in range(16):
    if r % 4 == 0:
        ep_setup.append(I(f's_add_u32 s{sBB}, s{sXB}, {1024 * r}'))
    ep_setup.append(I(f'buffer_load_ushort v{XE + r}, v{t2}, {srd(sX)}, s{sBB} offen offset:{1024 * (r & 3)}'))
VL4 = ASc[0]
ep_setup += L(f"""s_lshl_b32 s{sT2}, s{sI}, 4
    s_add_u32 s{sT2}, s{sT2}, s{sJJ}
    s_lshl_b32 s{sT2}, s{sT2}, 2
    s_add_u32 s{sT2}, s{sT2}, s{sW}
    v_lshlrev_b32 v{VL4}, 2, v{vL}""")
for b in range(4):
    ep_setup += L(f"""s_xor_b32 s{sT3}, s{sKQ}, {b}
        s_lshl_b32 s{sT3}, s{sT3}, 4
        s_add_u32 s{sT3}, s{sT3}, s{sT2}
        s_mul_i32 s{sT3}, s{sT3}, {3 * XC_BLK}
        s_add_u32 s{sXO[b]}, s{sT3}, {WS_XC + (b - 1) * XC_BLK if b else WS_XC}""")
base_calc = [I(f'v_lshlrev_b32 v{RL2}, 16, v{RL2}')]
for qt in range(4):
    base_calc += L(f'ds_read_b128 {vr(ME, 4)}, v{VLN2} offset:{16 * qt}\n'
                   f'ds_read_b128 {vr(ME + 4, 4)}, v{VLN2} offset:{128 + 16 * qt}')
    rs = range(4)
    base_calc += [I(f'v_lshlrev_b32 v{XE + 4 * qt + r}, 16, v{XE + 4 * qt + r}') for r in rs]
    base_calc += [I(f'v_sub_f32 v{ME + r}, v{XE + 4 * qt + r}, v{ME + r}') for r in rs]
    base_calc += [I(f'v_mul_f32 v{ME + r}, v{ME + r}, v{ME + 4 + r}') for r in rs]
    base_calc += [I(f'v_fmac_f32 v{XE + 4 * qt + r}, v{ME + r}, v{RL2}') for r in rs]

NLAST = OPT['nlast']
extra = {k: [] for k in range(44)}
extra[1] += rw('CR1')
extra[6] += [I('s_barrier')] + rw('CI1')
extra[10] += rw('WB1')
extra[13] += [Wait('WA3', 'WB0', 'CR1', 'CI1'), I('s_barrier')] + rw('WB2')
extra[OPT['fhs']] += flag_store(1, ['stH'])
extra[OPT['fhl']] += L(flag_load(1))
extra[OPT['fhc']] += stamp('fh0') + poll('fh', flag_load(1), flag_check) + stamp('fh1')
for n, k in enumerate(range(24, 36)):
    extra[OPT['fhc'] + n // 2] += a_load(k)
extra[OPT['fbs']] += flag_store(2, ['stF3', 'stF2'])
extra[OPT['fbl']] += L(flag_load(2))
extra[OPT['fbc']] += stamp('fb0') + poll('fb', flag_load(2), flag_check) + stamp('fb1')
for n, k in enumerate(range(36, 44)):
    extra[OPT['fbc'] + n // 2] += a_load(k)
extra[30] += [Wait('WB1', 'WB2'), I('s_barrier')]
items, first = [], {}
seen = set()
for k in range(44 - NLAST):
    first[k] = len(items)
    for n, b in enumerate((1, 2, 3) if k in deferred else (1, 2, 3, 0)):
        acc = vr(ACC[b], 16)
        it = [mfma(acc, a_frag(k), w_reg(k, b), acc if b in seen else '0')]
        seen.add(b)
        if n == 0:
            it += extra[k]
        if n == 1 and k + LA_W < 44 - NLAST:
            it += w_read(k + LA_W)
        items.append(it)
P += weave(items[:first[4]], tail, {})
P += weave(items[first[4]:first[OPT['m3end']]], tail2, {})
P += weave(items[first[OPT['m3end']]:first[24]], [], {})
P += stamp('k24')
P += weave(items[first[24]:], ep_setup, {}, 0, 24)
P += stamp('k40')


def checksum(dst, src, last):
    return [f'v_bitop3_b32 v{dst}, v{src}, v{src + 1}, {last} bitop3:0x96'] + \
           [f'v_bitop3_b32 v{dst}, v{src + e}, v{src + e + 1}, v{dst} bitop3:0x96' for e in (2, 4, 6)]


def send(b):
    A = ACC[b]
    out = []
    for q in range(2):
        out += [I(f'v_cvt_pk_bf16_f32 v{A + e}, v{A + 2 * e}, v{A + 2 * e + 1}') for e in range(4 * q, 4 * q + 4)]
        out.append(I(f'buffer_store_dwordx4 {vr(A + 4 * q, 4)}, v{VL16}, {srd(sWS)}, s{sXO[b]} offen '
                     f'offset:{1024 * q} sc1'))
    out += [I(c) for c in checksum(A + 8, A, f's{sTAG}')]
    out.append(I(f'buffer_store_dword v{A + 8}, v{VL4}, {srd(sWS)}, s{sXO[b]} offen offset:2048 sc1'))
    return out


def w_read1(k, b, dst):
    name, x, src = steps[k]
    slot = W_SLOT[name]
    key = FPc[b & 1]
    out = []
    if cur_addr.get(key) != slot:
        cur_addr[key] = slot
        out.append(I(f'v_add_u32 v{key}, {slot * SLOT}, v{FP0[b & 1]}'))
    return out + [I(f'ds_read_b64_tr_b16 {ar(dst + 2 * u, 2)}, v{key} '
                    f'offset:{8192 * (x >> 1) + 4096 * (b >> 1) + 2048 * (x & 1) + 1024 * u}', lds_r=slot) for u in range(2)]


seq = [(k, b) for b in (1, 2, 3) for k in range(44 - NLAST, 44)] + [(k, 0) for k in deferred]
JIT = {kb: 64 + 4 * (n & 7) for n, kb in enumerate(seq) if kb[0] >= 44 - NLAST}
LA_J = 5
order = sorted(JIT, key=seq.index)
items = []
rd = 0
for n, (k, b) in enumerate(seq):
    pre_rd = []
    while rd < len(order) and seq.index(order[rd]) <= n + LA_J:
        pre_rd += w_read1(*order[rd], JIT[order[rd]])
        rd += 1
    w = ar(JIT[k, b], 4) if (k, b) in JIT else w_reg(k, b)
    m = mfma(vr(ACC[b], 16), a_frag(k), w, vr(ACC[b], 16))
    items.append(pre_rd + [m] if n == 0 else [m] + pre_rd)
RX = {1: ACC[1], 2: ACC[2], 3: ACC[3]}


def recv(b):
    so = sXO[0] if b == 1 else sSEL[b]
    rl = [f'buffer_load_dwordx4 {vr(RX[b] + 4 * q, 4)}, v{VL16}, {srd(sWS)}, s{so} offen offset:{1024 * q} sc1' for q in range(2)]
    rl.append(f'buffer_load_dword v{RX[b] + 8}, v{VL4}, {srd(sWS)}, s{so} offen offset:2048 sc1')
    return '\n'.join(rl)


pre = L(f"""s_add_u32 s{sSEL[2]}, s{sXO[0]}, {XC_BLK}
    s_add_u32 s{sSEL[3]}, s{sXO[0]}, {2 * XC_BLK}
    s_lshl_b32 s{sXB}, s{sXB}, 1
    s_mov_b32 s{sKC[0]}, 0x00003f80
    s_mov_b32 s{sKC[1]}, 0x3f800000""")
N = NLAST
P += weave(items[:N + 2], pre, {})
P += weave(items[N + 2:2 * N + 2], send(1), {}, 0, 3)
P += weave(items[2 * N + 2:3 * N + 2], send(2), {}, 0, 3)
P += weave(items[3 * N + 2:3 * N + 6], send(3), {})
P += stamp('sent')
pin = {}
for b in (1, 2, 3):
    pin.setdefault(OPT[f'r{b}'] - 6, []).extend(L(recv(b)))
P += weave(items[3 * N + 6:], base_calc, pin)
P += stamp('own')
A0 = ACC[0]
for q in range(8):
    P.append(I(f'v_pk_add_f32 {vr(A0 + 2 * q, 2)}, {vr(A0 + 2 * q, 2)}, {vr(XE + 2 * q, 2)}'))
for b in (1, 2, 3):
    chk = checksum(RX[b] + 9, RX[b], f'v{RX[b] + 8}') + [f'v_cmp_ne_u32 vcc, s{sTAG}, v{RX[b] + 9}']
    P += poll(f'rx{b}', recv(b), '\n'.join(chk))
P += stamp('rx')
for q in range(8):
    for b in (1, 2, 3):
        P += [I(f'v_dot2c_f32_bf16 v{A0 + 2 * q + h}, s{sKC[h]}, v{RX[b] + q}') for h in range(2)]
    if q:
        P += sts
    sts = [I(f's_add_u32 s{sBB}, s{sXB}, {4096 * q}')]
    sts += [I(f'buffer_store_dword v{A0 + 2 * q + h}, v{FA0}, {srd(sOUT)}, s{sBB} offen offset:{2048 * h} '
              f'{OPT["out_flags"]}') for h in range(2)]
P += L(f"""s_lshl_b32 s{sT2}, s{sJ}, 2
    s_add_u32 s{sT2}, s{sT2}, s{sW}
    s_xor_b32 s{sT1}, s{sI}, 15
    s_or_b32 s{sT2}, s{sT2}, s{sT1}
    s_cmp_eq_u32 s{sT2}, 0
    s_cselect_b32 s{sT2}, {WS_EP}, {OOB:#x}
    v_mov_b32 v{t0}, s{sE2}
    v_mov_b32 v{t1}, s{sT2}""") + sts + L(f'buffer_store_dword v{t0}, v{t1}, {srd(sWS)}, 0 offen')
if PROF:
    P += stamp('end')
    P += L(f"""s_waitcnt vmcnt(0)
        s_memrealtime s[0:1]
        s_lshl_b32 s{sT2}, s2, 2
        s_add_u32 s{sT2}, s{sT2}, s{sW}
        s_lshl_b32 s{sT2}, s{sT2}, 7
        s_add_u32 s{sT2}, s{sT2}, {WS_PROF}
        v_mov_b32 v{t1}, s{sT2}
        s_waitcnt lgkmcnt(0)
        v_mov_b32 v{t0}, s0
        buffer_store_dword v{t0}, v{t1}, {srd(sWS)}, 0 offen offset:124
        v_mov_b32 v{t2}, s23
        buffer_store_dword v{t2}, v{t1}, {srd(sWS)}, 0 offen offset:112
        buffer_store_dword a62, v{t1}, {srd(sWS)}, 0 offen offset:116
        buffer_store_dword a63, v{t1}, {srd(sWS)}, 0 offen offset:120""")
    P += stamp('DUMP')
P += [I('L_end:'), I('s_endpgm')]

P = resolve_stamps(P)
if OPT['split']:
    P = split_ds_pairs(P)
body = pad_hazards(insert_waits(P, OPT['age']))
tail = []
for name, loads, check in retry_blocks:
    blk = [I(f'L_retry_{name}:'), I(f's_mov_b32 s3, {OPT["spin"]}'), I(f'L_spin_{name}:')]
    if PROF:
        blk.append(I(f's_add_u32 s23, s23, {1 << (4 * retry_blocks.index((name, loads, check)))}'))
    blk += L(loads) + [I('s_waitcnt vmcnt(0)')] + L(check)
    blk += L(f'''s_cbranch_vccz L_back_{name}
        s_sub_u32 s3, s3, 1
        s_cmp_lg_u32 s3, 0
        s_cbranch_scc1 L_spin_{name}
        s_branch L_back_{name}''')
    tail += pad_hazards(blk)

hdr = open(os.path.join(os.path.dirname(os.path.abspath(__file__)), 'header.txt')).read()
text = hdr + f'''; @launch grid=(256,1,1) block=(256,1,1) lds=163840
.amdgcn_target "amdgcn-amd-amdhsa--gfx950"
.text
.globl {KN}
.p2align 8
.type {KN},@function
{KN}:
{render(body)}
{render(tail)}
L_code_end:
    s_endpgm
.section .rodata,"a"
.p2align 6
.amdhsa_kernel {KN}
  .amdhsa_next_free_vgpr 512
  .amdhsa_next_free_sgpr 102
  .amdhsa_accum_offset 256
  .amdhsa_group_segment_fixed_size 0
  .amdhsa_kernarg_size 128
  .amdhsa_user_sgpr_count 2
  .amdhsa_user_sgpr_kernarg_segment_ptr 1
  .amdhsa_system_sgpr_workgroup_id_x 1
.end_amdhsa_kernel
'''
open(sys.argv[1], 'w').write(text)
if PROF:
    open(sys.argv[1][:-2] + '.stamps', 'w').write(' '.join(stamp_names))
from collections import Counter
cnt = Counter(i.kind for i in body)
print(dict(cnt), 'nops', sum(1 for i in body if i.mn == 's_nop'))
```

```python
import re

TRANS = ('v_exp_f32', 'v_log_f32', 'v_rcp_f32', 'v_rsq_f32', 'v_sqrt_f32', 'v_sin_f32', 'v_cos_f32')
RMW = ('v_fmac_f32', 'v_dot2c_f32_bf16', 'v_pk_fmac')
NO_DST_S = ('s_cmp', 's_waitcnt', 's_barrier', 's_cbranch', 's_branch', 's_nop', 's_sleep', 's_setprio',
            's_endpgm', 's_bitcmp')

_reg = re.compile(r'^(-|\|)?(abs\()?([vas])(\d+)\)?\|?$')
_rng = re.compile(r'^(-)?([vas])\[(\d+):(\d+)\]$')


def regs_of(op):
    op = op.strip()
    m = _rng.match(op)
    if m:
        return {(m.group(2), i) for i in range(int(m.group(3)), int(m.group(4)) + 1)}
    m = _reg.match(op)
    if m:
        return {(m.group(3), int(m.group(4)))}
    if op == 'vcc':
        return {('s', 'vcc')}
    if op == 'm0':
        return {('s', 'm0')}
    if op == 'exec':
        return {('s', 'exec')}
    return set()


class I:
    def __init__(self, text, tok=None, lds_r=None, lds_w=None, need=None, note=None, fills=None, hoist=False):
        self.text = text
        self.tok = tok
        self.lds_r = lds_r
        self.lds_w = lds_w
        self.need = need or []
        self.note = note
        self.hoist = hoist
        self.fills = fills
        self.r = set()
        self.w = set()
        self.kind = 'other'
        self.srcC = set()
        self.srcAB = set()
        self.parse()

    def parse(self):
        t = self.text.strip()
        if t.endswith(':') or t.startswith('.') or t.startswith(';') or not t:
            self.kind = 'label'
            self.mn = ''
            return
        parts = t.split(None, 1)
        mn = parts[0]
        self.mn = mn
        rest = parts[1] if len(parts) > 1 else ''
        ops = [o.strip() for o in rest.split(',')] if rest else []
        if ops:
            last = ops[-1].split()
            ops[-1] = last[0] if last else ''
            mods = last[1:]
        else:
            mods = []
        R = [regs_of(o) for o in ops]
        allr = lambda lst: set().union(*lst) if lst else set()
        if mn.startswith('v_mfma'):
            self.kind = 'mfma'
            self.w = R[0]
            self.srcAB = R[1] | R[2]
            self.srcC = R[3]
            self.r = self.srcAB | self.srcC
            self.passes = 8 if '32x32x16' in mn else (4 if '16x16x32' in mn else 2)
        elif mn.startswith('v_'):
            base = re.sub(r'_(e32|e64|sdwa|dpp)$', '', mn)
            self.kind = 'trans' if base in TRANS else 'valu'
            self.w = R[0]
            self.r = allr(R[1:])
            if base in RMW or base.startswith('v_permlane'):
                self.r |= R[0]
            if base.startswith('v_permlane'):
                self.w |= R[1]
            if base.startswith('v_cndmask') and len(ops) == 3:
                self.r |= {('s', 'vcc')}
            if base.startswith(('v_add_co', 'v_sub_co', 'v_addc_co')):
                self.w |= R[1]
            self.dot = base.startswith('v_dot')
            self.base = base
        elif mn.startswith('ds_read'):
            self.kind = 'ds'
            self.w = R[0]
            self.r = allr(R[1:])
            if 'd16' in mn:
                self.r |= R[0]
        elif mn.startswith('ds_'):
            self.kind = 'ds'
            self.r = allr(R)
        elif mn.startswith('buffer_load') or mn.startswith('global_load'):
            self.kind = 'vm'
            if 'lds' in mods:
                self.r = allr(R) | {('s', 'm0')}
                self.dma = True
            else:
                self.w = R[0]
                self.r = allr(R[1:])
                if 'd16' in mn:
                    self.r |= R[0]
        elif mn.startswith('buffer_store') or mn.startswith('global_store'):
            self.kind = 'vm'
            self.r = allr(R)
            self.store = True
            data = R[0] if mn.startswith('buffer') else R[1]
            self.wide = data if ('x3' in mn or 'x4' in mn) else set()
        elif mn.startswith(('s_load', 's_memtime', 's_memrealtime')):
            self.kind = 'smem'
            self.w = R[0]
            self.r = allr(R[1:])
        elif mn == 's_barrier':
            self.kind = 'barrier'
        elif mn == 's_waitcnt':
            self.kind = 'wait'
        elif mn.startswith('s_'):
            self.kind = 'salu'
            if mn.startswith(NO_DST_S):
                self.r = allr(R)
            else:
                self.w = R[0]
                self.r = allr(R[1:])
            if mn.startswith(('s_addk', 's_mulk', 's_bitset')):
                self.r |= R[0]
        else:
            raise ValueError('cannot classify: ' + t)

    def slots(self):
        if self.kind == 'label':
            return 0
        if self.kind == 'trans':
            return 2
        if self.kind == 'mfma':
            return 2
        return 1


class Wait(I):
    def __init__(self, *toks):
        I.__init__(self, '; wait ' + ' '.join(toks))
        self.need = list(toks)
        self.kind = 'pseudo'


def insert_waits(prog, ds_age=10):
    out = []
    vm, lg = [], []
    done_ds = {}
    last_read_retired = {}
    pending_read = {}
    last_barrier = -1
    pos = 0
    fill_state = {}

    def retire(q, n):
        while len(q) > n:
            ins, _ = q.pop(0)
            if ins.fills is not None:
                fill_state[ins.fills[0]] = [ins.fills[1], len(out)]
            if ins.lds_r is not None:
                pending_read[ins.lds_r] -= 1
                if pending_read[ins.lds_r] == 0:
                    last_read_retired[ins.lds_r] = len(out)

    for ins in prog:
        if ins.text.startswith(';drain'):
            retire(vm, 0)
            retire(lg, 0)
            continue
        touched = ins.r | ins.w
        nv = nl = None
        for q, which in ((vm, 'v'), (lg, 'l')):
            need = None
            for k, (o, _) in enumerate(q):
                hit = bool(o.w & touched) or (o.tok is not None and o.tok in ins.need)
                if hit:
                    need = len(q) - 1 - k
            if need is not None:
                if which == 'l':
                    k = len(q) - 1 - need
                    while k + 1 < len(q) and pos - q[k + 1][1] >= ds_age:
                        k += 1
                    nl = min(len(q) - 1 - k, 15)
                else:
                    nv = min(need, 63)
        if ins.kind == 'wait':
            m = re.search(r'vmcnt\((\d+)\)', ins.text)
            if m:
                retire(vm, int(m.group(1)))
            m = re.search(r'lgkmcnt\((\d+)\)', ins.text)
            if m:
                retire(lg, int(m.group(1)))
        if nv is not None or nl is not None:
            txt = 's_waitcnt'
            if nv is not None:
                txt += f' vmcnt({nv})'
                retire(vm, nv)
            if nl is not None:
                txt += f' lgkmcnt({nl})'
                retire(lg, nl)
            out.append(I(txt))
            pos += 1
        if ins.kind == 'pseudo':
            continue
        if ins.lds_w is not None:
            slot, shared_before = ins.lds_w
            assert pending_read.get(slot, 0) == 0, f'LDS slot {slot} overwritten while read outstanding: {ins.text}'
            if shared_before and slot in last_read_retired:
                assert last_barrier >= last_read_retired[slot], \
                    f'LDS slot {slot} reused without a barrier after its last read: {ins.text} ({ins.note})'
        if ins.lds_w is not None:
            fill_state[ins.lds_w[0]] = None
        if ins.lds_r is not None:
            st = fill_state.get(ins.lds_r)
            assert st is not None, f'LDS slot {ins.lds_r} read before its fill was waited for: {ins.text}'
            assert not st[0] or last_barrier >= st[1], f'shared slot {ins.lds_r} read without barrier: {ins.text}'
        if ins.kind == 'barrier':
            last_barrier = len(out)
        out.append(ins)
        pos += ins.slots()
        if ins.kind == 'vm':
            vm.append((ins, pos))
            assert len(vm) <= 63, 'vmcnt overflow'
        elif ins.kind == 'ds':
            lg.append((ins, pos))
            if ins.lds_r is not None:
                pending_read[ins.lds_r] = pending_read.get(ins.lds_r, 0) + 1
    return out


def states(ins):
    if ins.kind in ('label', 'pseudo'):
        return 0
    if ins.mn == 's_nop':
        return int(ins.text.split()[1]) + 1
    return 1


def required_gap(p, c):
    vgpr = lambda s: {x for x in s if x[0] in 'va'}
    sgpr = lambda s: {x for x in s if x[0] == 's'}
    g = 0
    pv = p.kind in ('valu', 'trans')
    cv = c.kind in ('valu', 'trans')
    if pv:
        wv = vgpr(p.w)
        ws = sgpr(p.w)
        if c.kind == 'mfma' and wv & c.r:
            g = max(g, 2)
        if p.kind == 'trans' and cv and c.kind != 'trans' and wv & c.r:
            g = max(g, 1)
        if p.kind == 'trans' and c.kind == 'trans' and wv & c.r:
            g = max(g, 1)
        if cv and c.base.startswith('v_permlane') and wv & c.r:
            g = max(g, 2)
        if cv and c.base.startswith(('v_readfirstlane', 'v_readlane')) and wv & c.r:
            g = max(g, 1)
        if cv and '_dpp' in c.mn and wv & c.r:
            g = max(g, 2)
        if ws & c.r:
            if cv:
                g = max(g, 2)
            elif c.kind == 'vm':
                g = max(g, 5)
            elif c.kind == 'salu':
                g = max(g, 1)
        if getattr(p, 'dot', False) and wv & (c.r | c.w) and c.kind != 'label':
            same = cv and c.base == p.base and not (wv & (c.r - c.w))
            if not same:
                g = max(g, 3)
    if p.kind == 'mfma':
        big = {2: 5, 4: 8, 8: 12}[p.passes]
        if c.kind == 'mfma':
            if p.w & c.srcAB:
                g = max(g, big)
            if p.w & c.srcC and not (p.w == c.srcC and p.passes == c.passes):
                g = max(g, {2: 4, 4: 6, 8: 10}[p.passes])
            if p.w == c.srcC and p.passes == 2:
                g = max(g, 2)
            if p.w & c.w and not (p.w & c.srcC):
                g = max(g, big)
        elif c.kind in ('valu', 'trans', 'ds', 'vm'):
            if p.w & (c.r | c.w):
                g = max(g, big)
            if cv and p.srcC & c.w:
                g = max(g, {2: 1, 4: 3, 8: 7}[p.passes])
    if p.kind == 'salu' and ('s', 'm0') in p.w and ('s', 'm0') in c.r and c.kind == 'vm':
        g = max(g, 1)
    if p.kind == 'vm' and getattr(p, 'wide', None) and p.wide & c.w:
        g = max(g, 2)
    return g


def pad_hazards(prog, window=24):
    out = []
    for ins in prog:
        if ins.kind not in ('label', 'pseudo'):
            dist = 0
            short = 0
            for p in reversed(out):
                if dist >= window:
                    break
                if p.kind not in ('label', 'pseudo'):
                    short = max(short, required_gap(p, ins) - dist)
                dist += states(p)
            while short > 0:
                n = min(short, 16)
                out.append(I(f's_nop {n - 1}'))
                short -= n
        out.append(ins)
    return out


def render(prog):
    lines = []
    for ins in prog:
        t = ins.text
        if ins.kind == 'label':
            lines.append(t)
        else:
            lines.append('    ' + t)
    return '\n'.join(lines)


def weave(mfmas, fill, pinned=None, first_gap=0, last_gap=None):
    pinned = pinned or {}
    n = len(mfmas)
    last_gap = n - 1 if last_gap is None else last_gap
    fixed = [sum(i.slots() for i in mfmas[g]) + sum(i.slots() for i in pinned.get(g, [])) for g in range(n)]
    total = sum(i.slots() for i in fill)
    span = list(range(first_gap, last_gap + 1))
    level = (total + sum(fixed[g] for g in span)) / len(span)
    out = []
    k = 0
    credit = 0.0
    for g in range(n):
        out += mfmas[g]
        out += pinned.get(g, [])
        if first_gap <= g <= last_gap:
            credit += level - fixed[g]
            while k < len(fill) and (credit >= fill[k].slots() - 0.5 or g == last_gap):
                out.append(fill[k])
                credit -= fill[k].slots()
                k += 1
                while k < len(fill) and fill[k].mn.startswith(('s_cselect', 's_cbranch')):
                    out.append(fill[k])
                    credit -= fill[k].slots()
                    k += 1
    assert k == len(fill)
    return out


def split_ds_pairs(prog, dist=2):
    out = list(prog)
    k = 1
    while k < len(out):
        ins = out[k]
        if ins.kind == 'ds' and ins.w and out[k - 1].kind == 'ds' and out[k - 1].w and not ins.need:
            j = k
            moved = 0
            while moved < dist and j + 1 < len(out):
                nx = out[j + 1]
                if nx.kind not in ('valu', 'trans') or (nx.r | nx.w) & ins.w or nx.w & ins.r:
                    break
                out[j], out[j + 1] = nx, ins
                j += 1
                moved += nx.slots()
        k += 1
    return out


def hoist_reads(prog, dist):
    out = list(prog)
    for k in range(len(out)):
        ins = out[k]
        if not ins.hoist:
            continue
        j = k
        moved = 0
        while j > 0 and moved < dist:
            pv = out[j - 1]
            stop = pv.kind in ('barrier', 'label', 'pseudo', 'wait') or pv.mn.startswith(('s_cbranch', 'ds_write'))
            if stop or (pv.r | pv.w) & ins.w or pv.w & ins.r:
                break
            out[j - 1], out[j] = ins, pv
            j -= 1
            moved += pv.slots()
    return out


def merge(a, b):
    ta = sum(i.slots() for i in a) or 1
    tb = sum(i.slots() for i in b) or 1
    out = []
    ia = ib = 0
    ca = cb = 0
    while ia < len(a) or ib < len(b):
        if ib >= len(b) or (ia < len(a) and ca * tb <= cb * ta):
            out.append(a[ia]); ca += a[ia].slots(); ia += 1
        else:
            out.append(b[ib]); cb += b[ib].slots(); ib += 1
    return out
```

```python
import sys, os
sys.path.insert(0, os.path.dirname(os.path.abspath(__file__)))
from asmlib import I, Wait, insert_waits, pad_hazards, render, weave, split_ds_pairs, hoist_reads, merge

KN = 'parallel_sum__ssm_conv_s5__dense_activation_mish__prompt_kernel'
OPT = dict(prof=0, spin=20000, out_flags='', map='8x4', pf=1, age=24, laf=5, r1=7, r2=14, r3=22, fls=11, fll=22, flc=27, nstep=0, split=0, diag='', fine='', fas=0, fal=22, nea=8, fhl=5, fhc=9, lbl=13, lbc=24, ppf=0, hoist=32)
for a in sys.argv[2:]:
    k, v = a.split('=')
    OPT[k] = int(v) if v.lstrip('-').isdigit() else v
PROF = OPT['prof']

WS_EP, WS_FL, WS_AG, WS_A = 0, 0x1000, 0x10000, 0x40000
WS_XC = WS_A + 64 * 176 * 1024
XC_BLK = 2560
WS_SIZE = WS_XC + 1024 * 3 * XC_BLK
WS_PROF = 0x1C00000
OOB = 0x7ff00000
SLOT = 16384
TB = 9 * SLOT
T_STAT, T_B1, T_SEG, T_LB, T_H = TB, TB + 1024, TB + 2048, TB + 6144, TB + 8192
LOG2E, LN2, M2LN2 = 0x3fb8aa3b, 0x3f317218, 0xbfb17218

sX, sB, sW1, sCre, sCim, sW2, sWS, sOUT, sTMP = 36, 40, 44, 48, 52, 56, 60, 64, 68
sI, sJ, sW, sROT, sTAG, sE2 = 72, 73, 74, 75, 76, 77
sKC = [78, 79, 80, 81]
sWOFF, sT0, sT1, sXB, sBB, sW1A, sW1B = 82, 83, 84, 85, 86, 87, 88
sAS = 89
sFST = [90, 91, 92, 93]
sSST, sCB, sW2B, sFSEL, sONES, sT3, sJJ, sT2 = 94, 95, 96, 97, 98, 99, 100, 101
sKQ, sPB, sXO = 22, [24, 25, 26], [27, 28, 29, 30]
sSEL = [31, 32, 33, 34]
sFLG = 35
pLRE, pLIM, pBRE, pBIM, pLDT, pDSK, pB1 = 8, 10, 12, 14, 16, 18, 20
srd = lambda b: f's[{b}:{b + 3}]'
vL, t0, t1, t2 = 0, 1, 2, 3
AS = [4, 5, 6, 7]
ASc = [8, 9, 10, 11]
XG = [12, 13, 14, 15]
PG = [16, 17, 18, 19]
QG = [20, 21, 22, 23]
FA0, FAc, RL2, VLN2, VL16, VNM, VRS, t3 = 24, 25, 26, 27, 28, 29, 30, 31
FAd = VNM
NLI, LI, LR, CR, NCI, NCR, L16R, L16I, LSR, LSI, L128R, L128I, WR, WI, PR, PI = range(32, 48)
TT = 48
FACC = [64, 80]
SRE, SIM = 96, 112
X = 128
aS, aF, aP, aOF, aOS, aWO, aXE = 0, 128, 0, 64, 88, 128, 224
STAMP_A = list(range(104, 128)) + list(range(48, 54))
vr = lambda b, n: f'v[{b}:{b + n - 1}]'
ar = lambda b, n: f'a[{b}:{b + n - 1}]'

stamp_names = []


def stamp(name):
    if OPT['fine'] and name in ('c27', 'b0', 's59', 'b2', 'lb0', 'lb1'):
        return []
    if OPT['diag'] == name:
        return [I('s_memrealtime s[4:5]')]
    return [I(';stamp ' + name)] if PROF else []


def resolve_stamps(prog):
    out = []
    for ins in prog:
        if not ins.text.startswith(';stamp '):
            out.append(ins)
            continue
        name = ins.text.split()[1]
        n = len(stamp_names)
        if n:
            out.append(I(f'v_accvgpr_write_b32 a{STAMP_A[n - 1]}, s{4 + 2 * ((n - 1) & 1)}'))
        if name == 'DUMP':
            out += [I(f'buffer_store_dword a{STAMP_A[k]}, v{t1}, {srd(sWS)}, 0 offen offset:{4 * k}') for k in range(n)]
            continue
        assert n < 28
        stamp_names.append(name)
        out.append(I(f's_memtime s[{4 + 2 * (n & 1)}:{5 + 2 * (n & 1)}]'))
    return out


def L(text):
    return [I(t.strip()) for t in text.strip().split('\n') if t.strip()]


def mfma(d, a, b, c):
    return I(f'v_mfma_f32_32x32x16_bf16 {d}, {a}, {b}, {c}')


def mksrd(b, lo, size):
    return f's_mov_b32 s{b}, s{lo}\ns_mov_b32 s{b + 1}, s{lo + 1}\ns_mov_b32 s{b + 2}, {size}\ns_mov_b32 s{b + 3}, 0x00020000\n'


slot_shared = {}


def dma_round(name, slot, voffs, rsrc, soff_code, shared):
    out = [I(f's_add_u32 m0, s{sWOFF}, {slot * SLOT}')] + L(soff_code)
    for g in range(4):
        out.append(I(f'buffer_load_dwordx4 v{voffs[g]}, {srd(rsrc)}, s{sT0} offen offset:{1024 * g} lds',
                     tok=name if g == 3 else None,
                     lds_w=(slot, slot_shared.get(slot, False)) if g == 0 else None, note=name,
                     fills=(slot, shared) if g == 3 else None))
    slot_shared[slot] = shared
    return out


def rx(s, slot):
    return dma_round(f'x{s}', slot, XG, sX,
                     f's_add_u32 s{sT0}, s{sROT}, {s}\ns_and_b32 s{sT0}, s{sT0}, 7\n'
                     f's_lshl_b32 s{sT0}, s{sT0}, 7\ns_add_u32 s{sT0}, s{sT0}, s{sXB}', False)


G_SLOT = [4, 5, 6, 7, 8, 0, 1, 2, 3, 4, 5, 6]
W_SLOT = dict(WA0=7, CR0=8, CI0=0, WA1=1, WA2=2, WA3=3, CR1=4, CI1=5, WB0=6, WB1=7, WB2=1)


def rg(g):
    if g < 4:
        return dma_round(f'G{g}', G_SLOT[g], PG, sB,
                         f's_lshl_b32 s{sT0}, s{sKC[g]}, 7\ns_add_u32 s{sT0}, s{sT0}, s{sBB}', True)
    base = sW1A if g < 8 else sW1B
    return dma_round(f'G{g}', G_SLOT[g], QG, sW1,
                     f's_mul_i32 s{sT0}, s{sKC[g & 3]}, {64 * 3584}\ns_add_u32 s{sT0}, s{sT0}, s{base}', True)


def rw(name):
    e = int(name[2])
    if name[0] == 'C':
        code = f's_xor_b32 s{sT0}, s{sCB}, {128 * e}'
        return dma_round(name, W_SLOT[name], PG, sCim if name[1] == 'I' else sCre, code, True)
    if name[1] == 'A':
        code = f's_xor_b32 s{sT0}, s{sJJ}, {e}\ns_lshl_b32 s{sT0}, s{sT0}, 17\ns_add_u32 s{sT0}, s{sT0}, s{sW2B}'
    else:
        code = f's_lshl_b32 s{sT0}, s{sPB[e]}, 16\ns_add_u32 s{sT0}, s{sT0}, s{sW2B}'
        if e == 0:
            code += f'\ns_xor_b32 s{sT0}, s{sT0}, s{sSEL[0]}'
    return dma_round(name, W_SLOT[name], XG, sW2, code, True)


retry_blocks = []


def poll(name, loads, check):
    retry_blocks.append((name, loads, check))
    return L(check) + [I(f's_cbranch_vccnz L_retry_{name}'), I(f'L_back_{name}:')]


def cexp(dr, di, scale, zr, za):
    return L(f"""v_mul_f32 v{dr}, {scale}, v{zr}
        v_mul_f32 v{di}, {scale}, v{za}
        v_exp_f32 v{dr}, v{dr}
        v_fract_f32 v{di}, v{di}
        v_cos_f32 v{t3}, v{di}
        v_sin_f32 v{di}, v{di}
        v_mul_f32 v{di}, v{dr}, v{di}
        v_mul_f32 v{dr}, v{dr}, v{t3}""")


def cmul_add(dr, di, ar_, ai, br, bi, cr=None, ci=None):
    if cr is None:
        head = f'v_mul_f32 v{dr}, v{ar_}, v{br}\nv_mul_f32 v{di}, v{ar_}, v{bi}'
    else:
        head = f'v_fma_f32 v{dr}, v{ar_}, v{br}, v{cr}\nv_fma_f32 v{di}, v{ar_}, v{bi}, v{ci}'
    return L(head + f'\nv_fma_f32 v{dr}, -v{ai}, v{bi}, v{dr}\nv_fmac_f32 v{di}, v{ai}, v{br}')


def mish(b, voff=VL16, quarters=range(4)):
    A = FACC[b & 1]
    out = []
    for q in quarters:
        rs = range(4 * q, 4 * q + 4)
        out.append(I(f'ds_read_b128 {vr(TT + 4 * q, 4)}, v{t2} offset:{T_B1 - TB + 128 * b + 16 * q}', hoist=True))
        out += [I(f'v_fmac_f32 v{TT + r}, v{A + r}, v{RL2}') for r in rs]
        out += [I(f'v_exp_f32 v{A + r}, v{TT + r}') for r in rs]
        out += [I(f'v_add_f32 v{A + r}, 1.0, v{A + r}') for r in rs]
        out += [I(f'v_fma_f32 v{A + r}, v{A + r}, v{A + r}, 1.0') for r in rs]
        out += [I(f'v_rcp_f32 v{A + r}, v{A + r}') for r in rs]
        out += [I(f'v_fmamk_f32 v{A + r}, v{A + r}, {M2LN2:#x}, v{VLN2}') for r in rs]
        out += [I(f'v_mul_f32 v{TT + r}, v{TT + r}, v{A + r}') for r in rs]
        out += [I(f'v_cvt_pk_bf16_f32 v{A + p}, v{TT + 2 * p}, v{TT + 2 * p + 1}') for p in (2 * q, 2 * q + 1)]
        if q & 1:
            fr = q >> 1
            out.append(I(f'buffer_store_dwordx4 {vr(A + 4 * fr, 4)}, v{voff}, {srd(sWS)}, s{sFST[b]} offen '
                         f'offset:{1024 * fr} sc1', tok=f'stF{b}' if fr else None))
            if b < 3:
                out += [I(f'v_accvgpr_write_b32 a{aOF + 8 * b + 4 * fr + e}, v{A + 4 * fr + e}') for e in range(4)]
    return out


def mish_pk(b, voff, halves=range(2)):
    A = FACC[b & 1]
    out = []
    for q in range(2 * len(halves)):
        out.append(I(f'ds_read_b128 {vr(TT + 4 * q, 4)}, v{t2} offset:{T_B1 - TB + 128 * b + 16 * q}', hoist=True))
    for h in halves:
        ps = range(8 * h, 8 * h + 8, 2)
        rs = range(8 * h, 8 * h + 8)
        out += [I(f'v_pk_fma_f32 {vr(TT + p, 2)}, {vr(A + p, 2)}, {vr(RL2, 2)}, {vr(TT + p, 2)} op_sel_hi:[1,0,1]') for p in ps]
        out += [I(f'v_exp_f32 v{A + r}, v{TT + r}') for r in rs]
        out += [I(f'v_pk_add_f32 {vr(A + p, 2)}, {vr(A + p, 2)}, 1.0 op_sel_hi:[1,0]') for p in ps]
        out += [I(f'v_pk_fma_f32 {vr(A + p, 2)}, {vr(A + p, 2)}, {vr(A + p, 2)}, 1.0 op_sel_hi:[1,1,0]') for p in ps]
        out += [I(f'v_rcp_f32 v{A + r}, v{A + r}') for r in rs]
        out += [I(f'v_pk_fma_f32 {vr(A + p, 2)}, {vr(A + p, 2)}, s[{sKC[0]}:{sKC[1]}], {vr(RL2, 2)} '
                  f'op_sel:[0,0,1] op_sel_hi:[1,0,1]') for p in ps]
        out += [I(f'v_pk_mul_f32 {vr(TT + p, 2)}, {vr(TT + p, 2)}, {vr(A + p, 2)}') for p in ps]
        out += [I(f'v_cvt_pk_bf16_f32 v{A + p // 2}, v{TT + p}, v{TT + p + 1}') for p in ps]
        out.append(I(f'buffer_store_dwordx4 {vr(A + 4 * h, 4)}, v{voff}, {srd(sWS)}, s{sFST[b]} offen '
                     f'offset:{1024 * h} sc1', tok=f'stF{b}' if h else None))
        if b < 3:
            out += [I(f'v_accvgpr_write_b32 a{aOF + 8 * b + 4 * h + e}, v{A + 4 * h + e}') for e in range(4)]
    return out


P = []
if OPT['map'] == '8x4':
    ids = f"""s_and_b32 s{sKQ}, s2, 3
        s_bfe_u32 s{sJJ}, s2, 0x20003
        s_lshr_b32 s{sI}, s2, 5
        s_bfe_u32 s{sT0}, s2, 0x10002
        s_lshl_b32 s{sROT}, s{sT0}, 1
        s_lshl_b32 s{sT0}, s{sT0}, 3
        s_and_b32 s{sT1}, s{sI}, 1
        s_or_b32 s{sI}, s{sI}, s{sT0}
        s_add_u32 s{sROT}, s{sROT}, s{sT1}
        s_add_u32 s{sROT}, s{sROT}, s{sKQ}
        s_lshl_b32 s{sROT}, s{sROT}, 1
        s_and_b32 s{sROT}, s{sROT}, 7"""
else:
    ids = f"""s_and_b32 s{sKQ}, s2, 1
        s_lshl_b32 s{sKQ}, s{sKQ}, 1
        s_lshr_b32 s{sT0}, s2, 7
        s_or_b32 s{sKQ}, s{sKQ}, s{sT0}
        s_bfe_u32 s{sJJ}, s2, 0x20003
        s_bfe_u32 s{sI}, s2, 0x20005
        s_bfe_u32 s{sT0}, s2, 0x20001
        s_add_u32 s{sROT}, s{sT0}, s{sKQ}
        s_lshl_b32 s{sT0}, s{sT0}, 2
        s_or_b32 s{sI}, s{sI}, s{sT0}
        s_lshl_b32 s{sROT}, s{sROT}, 1
        s_and_b32 s{sROT}, s{sROT}, 7"""
SUM, SQ = [TT + 8, TT + 9], [TT + 10, TT + 11]
sizes = ((sX, 2097152), (sB, 524288), (sW1, 1835008), (sCre, 524288), (sCim, 524288), (sW2, 1835008),
         (sWS, (WS_PROF + 0x40000) if PROF else WS_SIZE), (sOUT, 4194304))
P += L(f"""
s_cmp_ge_u32 s2, 256
s_cbranch_scc1 L_end
{'s_memtime s[98:99]' if PROF else ''}
{'s_memrealtime s[90:91]' if PROF or OPT['diag'] else ''}
s_load_dwordx2 s[{sX}:{sX + 1}], s[0:1], 0
s_load_dwordx2 s[{sWS}:{sWS + 1}], s[0:1], 120
s_getpc_b64 s[{sTMP}:{sTMP + 1}]
v_lshrrev_b32 v{t0}, 6, v0
v_and_b32 v{vL}, 63, v0
s_and_b32 s{sTMP}, s{sTMP}, 0xffffff80
v_readfirstlane_b32 s{sW}, v{t0}
s_mov_b32 s{sTMP + 2}, L_code_end-{KN}
s_mov_b32 s{sTMP + 3}, 0x00020000
s_lshr_b32 s{sT0}, s2, 3
s_lshl_b32 s{sT0}, s{sT0}, 2
s_add_u32 s{sT0}, s{sT0}, s{sW}
s_lshl_b32 s{sT0}, s{sT0}, 9
v_and_b32 v{t1}, 3, v{vL}
v_lshlrev_b32 v{t1}, 7, v{t1}
buffer_load_dword v{t3}, v{t1}, {srd(sTMP)}, s{sT0} offen
s_load_dwordx8 s[{pLRE}:{pLRE + 7}], s[0:1], 8
s_load_dwordx4 s[{pLDT}:{pLDT + 3}], s[0:1], 56
s_load_dwordx2 s[{pB1}:{pB1 + 1}], s[0:1], 88
s_load_dwordx2 s[{sW1}:{sW1 + 1}], s[0:1], 80
s_load_dwordx2 s[{sCre}:{sCre + 1}], s[0:1], 40
s_load_dwordx2 s[{sCim}:{sCim + 1}], s[0:1], 48
s_load_dwordx2 s[{sW2}:{sW2 + 1}], s[0:1], 96
s_load_dwordx2 s[{sOUT}:{sOUT + 1}], s[0:1], 104
v_lshrrev_b32 v{t0}, 3, v{vL}
v_lshrrev_b32 v{t1}, 4, v{vL}
v_xor_b32 v{t1}, v{t1}, v{vL}
v_and_b32 v{t1}, 7, v{t1}
v_lshlrev_b32 v{t1}, 4, v{t1}
v_lshl_add_u32 v{PG[0]}, v{t0}, 10, v{t1}
v_lshrrev_b32 v{t2}, 5, v{vL}
v_mul_u32_u24 v{t2}, {12 * 1024}, v{t2}
v_add_u32 v{XG[0]}, v{PG[0]}, v{t2}
v_xor_b32 v{XG[1]}, 64, v{XG[0]}
v_add_u32 v{XG[2]}, {6 * 1024}, v{XG[0]}
v_add_u32 v{XG[3]}, {9 * 1024}, v{XG[1]}
v_add_u32 v{XG[1]}, {3 * 1024}, v{XG[1]}
s_lshl_b32 s{sWOFF}, s{sW}, 12
{ids}
s_lshl_b32 s{sXB}, s{sI}, 17
s_lshl_b32 s{sT0}, s{sW}, 15
s_add_u32 s{sXB}, s{sXB}, s{sT0}
""" + ''.join(f's_mov_b32 s{b + 2}, {n}\ns_mov_b32 s{b + 3}, 0x00020000\n' for b, n in sizes) + f"""
s_waitcnt lgkmcnt(0)
{'v_accvgpr_write_b32 a62, s98' if PROF else ''}
{'v_accvgpr_write_b32 a63, s90' if PROF else ''}
{'s_mov_b32 s23, 0' if PROF else ''}
{'s_mov_b32 s23, s90' if OPT['diag'] else ''}
""")
P += stamp('ka') if OPT['diag'] else []
P += rx(0, 0) + rx(1, 1) + rx(2, 2)
P += L(f"""
s_load_dword s{sE2}, s[{sWS}:{sWS + 1}], {WS_EP}
v_and_b32 v{t0}, 31, v{vL}
s_lshl_b32 s{sJ}, s{sKQ}, 2
s_or_b32 s{sJ}, s{sJ}, s{sJJ}
s_lshl_b32 s{sT0}, s{sJ}, 6
v_lshl_add_u32 v{t1}, v{t0}, 1, s{sT0}
global_load_ushort v{LR}, v{t1}, s[{pLRE}:{pLRE + 1}]
global_load_ushort v{LI}, v{t1}, s[{pLIM}:{pLIM + 1}]
global_load_ushort v{NLI}, v{t1}, s[{pLDT}:{pLDT + 1}]
v_lshrrev_b32 v{t1}, 5, v{vL}
v_bfe_u32 v{t2}, v{vL}, 1, 3
v_xor_b32 v{t1}, v{t1}, v{t2}
v_lshlrev_b32 v{t1}, 4, v{t1}
v_lshl_add_u32 v{AS[0]}, v{t0}, 7, v{t1}
v_xor_b32 v{AS[1]}, 32, v{AS[0]}
v_xor_b32 v{AS[2]}, 64, v{AS[0]}
v_xor_b32 v{AS[3]}, 0x60, v{AS[0]}
v_add_u32 v{ASc[0]}, s{sWOFF}, v{AS[0]}
v_add_u32 v{ASc[1]}, s{sWOFF}, v{AS[1]}
v_add_u32 v{ASc[2]}, s{sWOFF}, v{AS[2]}
v_add_u32 v{ASc[3]}, s{sWOFF}, v{AS[3]}
s_mov_b32 s{sONES}, 0x3f803f80
v_mov_b32 v{SUM[0]}, 0
v_mov_b32 v{SUM[1]}, 0
v_mov_b32 v{SQ[0]}, 0
v_mov_b32 v{SQ[1]}, 0
s_lshl_b32 s{sT0}, s{sW}, 9
s_add_u32 s{sT0}, s{sT0}, {T_SEG}
v_lshl_add_u32 v{t0}, v{vL}, 3, s{sT0}""")
P.append(I(f'ds_write_b64 v{t0}, {vr(SUM[0], 2)}', tok='zero'))
P += rx(3, 3) + [I('s_waitcnt lgkmcnt(0)')]
mid = L(f"""
s_and_b32 s{sT3}, s{sW}, 1
s_mul_i32 s{sT2}, s{sKQ}, 7
s_lshl_b32 s{sW1A}, s{sJJ}, 1
s_add_u32 s{sPB[0]}, s{sW1A}, 1
s_cmp_eq_u32 s{sJJ}, 3
s_cselect_b32 s{sPB[0]}, 3, s{sPB[0]}
s_cselect_b32 s{sFSEL}, 64, 0
s_add_u32 s{sW1A}, s{sW1A}, s{sT2}
s_add_u32 s{sW1B}, s{sPB[0]}, s{sT2}
s_lshl_b32 s{sW1A}, s{sW1A}, 7
s_lshl_b32 s{sW1B}, s{sW1B}, 7
s_cmp_ge_u32 s{sW}, 2
s_cselect_b32 s{sT2}, s{sW1B}, s{sW1A}
s_cselect_b32 s{sT1}, s{sFSEL}, 0
s_add_u32 s{sT2}, s{sT2}, s{sT1}
s_lshl_b32 s{sT1}, s{sT3}, 6
s_xor_b32 s{sT2}, s{sT2}, s{sT1}
v_and_b32 v{t1}, 3, v{vL}
v_bfe_u32 v{t2}, v{vL}, 2, 2
v_lshl_add_u32 v{t1}, v{t2}, 3, v{t1}
v_bfe_u32 v{t2}, v{vL}, 4, 1
v_lshl_add_u32 v{t1}, v{t2}, 2, v{t1}
v_lshl_add_u32 v{t1}, v{t1}, 1, s{sT2}
global_load_ushort v{PR}, v{t1}, s[{pB1}:{pB1 + 1}]
s_cmp_eq_u32 s{sT3}, 1
s_cselect_b32 s{sB}, s{pBIM}, s{pBRE}
s_cselect_b32 s{sB + 1}, s{pBIM + 1}, s{pBRE + 1}
s_mul_i32 s{sT3}, s{sT3}, {32 * 3584}
s_add_u32 s{sW1A}, s{sW1A}, s{sT3}
s_add_u32 s{sW1B}, s{sW1B}, s{sT3}
s_lshl_b32 s{sBB}, s{sJ}, 15
s_lshr_b32 s{sT1}, s{sW}, 1
s_add_u32 s{sT1}, s{sT1}, s{sROT}
s_and_b32 s{sKC[0]}, s{sT1}, 7
s_add_u32 s{sT1}, s{sT1}, 2
s_and_b32 s{sKC[1]}, s{sT1}, 7
s_add_u32 s{sT1}, s{sT1}, 2
s_and_b32 s{sKC[2]}, s{sT1}, 7
s_add_u32 s{sT1}, s{sT1}, 2
s_and_b32 s{sKC[3]}, s{sT1}, 7
v_xor_b32 v{PG[1]}, 64, v{PG[0]}
v_add_u32 v{PG[2]}, {14 * 1024}, v{PG[0]}
v_add_u32 v{PG[3]}, {21 * 1024}, v{PG[1]}
v_add_u32 v{PG[1]}, {7 * 1024}, v{PG[1]}
v_bfe_u32 v{t0}, v{vL}, 2, 1
v_lshrrev_b32 v{t1}, 5, v{vL}
v_and_b32 v{t2}, 1, v{vL}
v_lshlrev_b32 v{t2}, 4, v{t2}
v_mov_b32 v{VNM}, 0x3f80
v_lshlrev_b32 v{t2}, v{t2}, v{VNM}
v_cmp_eq_u32 vcc, v{t0}, v{t1}
v_bfe_u32 v{t0}, v{vL}, 1, 1
v_bfe_u32 v{t1}, v{vL}, 3, 2
v_cndmask_b32 v{t2}, 0, v{t2}, vcc
v_lshl_add_u32 v{t0}, v{t1}, 1, v{t0}
""")
for q in range(0, 8, 2):
    mid += L(f"""v_cmp_eq_u32 vcc, {q}, v{t0}
        v_cmp_eq_u32 s[{sSEL[1]}:{sSEL[2]}], {q + 1}, v{t0}
        s_nop 0
        v_cndmask_b32 v{TT + q}, 0, v{t2}, vcc
        v_cndmask_b32 v{TT + q + 1}, 0, v{t2}, s[{sSEL[1]}:{sSEL[2]}]""")
mid += L(f"""
v_lshrrev_b32 v{t1}, 3, v{vL}
v_mul_u32_u24 v{t1}, 3584, v{t1}
v_bfe_u32 v{t2}, v{vL}, 4, 1
v_lshlrev_b32 v{t2}, 2, v{t2}
v_xor_b32 v{t2}, v{t2}, v{vL}
v_and_b32 v{t2}, 7, v{t2}
v_lshl_add_u32 v{QG[0]}, v{t2}, 4, v{t1}
v_add_u32 v{QG[1]}, {27648}, v{QG[0]}
v_add_u32 v{QG[2]}, {2 * 27648}, v{QG[0]}
v_add_u32 v{QG[3]}, {3 * 27648}, v{QG[0]}
""")
late = L(f"""
s_mul_i32 s{sE2}, s{sE2}, 1664525
s_add_u32 s{sE2}, s{sE2}, 1013904226
s_or_b32 s{sTAG}, s{sE2}, 1
v_bfe_u32 v{t1}, v{vL}, 2, 2
v_lshrrev_b32 v{t2}, 5, v{vL}
v_lshl_add_u32 v{t2}, v{t2}, 3, v{t1}
v_lshlrev_b32 v{FA0}, 7, v{t2}
v_lshrrev_b32 v{t1}, 1, v{t1}
v_lshl_add_u32 v{FA0}, v{t1}, 6, v{FA0}
v_bfe_u32 v{t1}, v{vL}, 4, 1
v_lshl_add_u32 v{FA0}, v{t1}, 5, v{FA0}
v_and_b32 v{t1}, 3, v{vL}
v_lshl_add_u32 v{FA0}, v{t1}, 3, v{FA0}
v_lshlrev_b32 v{VL16}, 4, v{vL}
v_mov_b32 v{VLN2}, {LN2:#x}
s_cmp_eq_u32 s{sPB[0]}, 1
s_cselect_b32 s{sPB[1]}, 3, 1
s_cmp_eq_u32 s{sPB[0]}, 5
s_cselect_b32 s{sPB[2]}, 3, 5
s_lshl_b32 s{sSEL[0]}, s{sFSEL}, 9
s_lshl_b32 s{sAS}, s{sI}, 2
s_add_u32 s{sAS}, s{sAS}, s{sW}
s_lshl_b32 s{sAS}, s{sAS}, 2
s_add_u32 s{sAS}, s{sAS}, s{sKQ}
s_lshl_b32 s{sFLG}, s{sAS}, 7
s_add_u32 s{sFLG}, s{sFLG}, {WS_FL}
s_mul_i32 s{sAS}, s{sAS}, {44 * 1024}
s_add_u32 s{sAS}, s{sAS}, {WS_A}
s_lshl_b32 s{sT2}, s{sJJ}, 13
s_add_u32 s{sFST[0]}, s{sAS}, s{sT2}
s_add_u32 s{sFST[1]}, s{sFST[0]}, 2048
s_lshl_b32 s{sT2}, s{sPB[0]}, 12
s_add_u32 s{sFST[3]}, s{sAS}, s{sT2}
s_lshl_b32 s{sT2}, s{sFSEL}, 5
s_add_u32 s{sFST[2]}, s{sFST[3]}, s{sT2}
s_add_u32 s{sFST[3]}, s{sFST[3]}, 2048
s_lshl_b32 s{sT2}, s{sJJ}, 12
s_add_u32 s{sSST}, s{sAS}, s{sT2}
s_add_u32 s{sSST}, s{sSST}, {28 * 1024}
s_xor_b32 s{sT2}, s{sW}, s{sKQ}
s_lshl_b32 s{sT2}, s{sT2}, 15
s_lshl_b32 s{sCB}, s{sJJ}, 17
s_add_u32 s{sCB}, s{sCB}, s{sT2}
s_lshl_b32 s{sT2}, s{sKQ}, 8
s_add_u32 s{sCB}, s{sCB}, s{sT2}
s_lshr_b32 s{sT2}, s{sJJ}, 1
s_lshl_b32 s{sT2}, s{sT2}, 7
s_add_u32 s{sCB}, s{sCB}, s{sT2}
s_mul_i32 s{sW2B}, s{sKQ}, {448 * 1024}
s_lshr_b32 s{sT2}, s{sW}, 1
s_lshl_b32 s{sT2}, s{sT2}, 15
s_add_u32 s{sW2B}, s{sW2B}, s{sT2}
s_lshl_b32 s{sT2}, s{sJJ}, 8
s_add_u32 s{sW2B}, s{sW2B}, s{sT2}
s_lshr_b32 s{sT2}, s{sKQ}, 1
s_xor_b32 s{sT2}, s{sT2}, s{sW}
s_and_b32 s{sT2}, s{sT2}, 1
s_lshl_b32 s{sT2}, s{sT2}, 7
s_add_u32 s{sW2B}, s{sW2B}, s{sT2}
s_lshl_b32 s{sT2}, s{sI}, 4
s_add_u32 s{sT2}, s{sT2}, s{sJJ}
s_lshl_b32 s{sT2}, s{sT2}, 2
s_add_u32 s{sT2}, s{sT2}, s{sW}""")
for b in range(4):
    late += L(f"""s_xor_b32 s{sT3}, s{sKQ}, {b}
        s_lshl_b32 s{sT3}, s{sT3}, 4
        s_add_u32 s{sT3}, s{sT3}, s{sT2}
        s_mul_i32 s{sT3}, s{sT3}, {3 * XC_BLK}
        s_add_u32 s{sXO[b]}, s{sT3}, {WS_XC + (b - 1) * XC_BLK if b else WS_XC}""")
late += L(f"""s_add_u32 s{sSEL[2]}, s{sXO[0]}, {XC_BLK}
    s_add_u32 s{sSEL[3]}, s{sXO[0]}, {2 * XC_BLK}
    s_and_b32 s{sT3}, s{sJJ}, 1
    s_sub_u32 s{sSEL[1]}, 6, s{sT3}""")
pf = []
if OPT['pf'] == 2:
    late += L(f"""
s_and_b32 s{sT1}, s{sI}, 7
s_lshl_b32 s{sT2}, s{sT1}, 1
s_add_u32 s{sT2}, s{sT2}, s{sW}
s_mul_i32 s{sT2}, s{sT2}, 28
s_mul_i32 s{sT3}, s{sKQ}, 448
s_add_u32 s{sT2}, s{sT2}, s{sT3}
s_lshl_b32 s{sT2}, s{sT2}, 2
s_add_u32 s{sT2}, s{sT2}, s{sJJ}
s_lshl_b32 s{sT3}, s{sJJ}, 3
s_add_u32 s{sT3}, s{sT3}, s{sT1}
s_lshl_b32 s{sT3}, s{sT3}, 6
s_add_u32 s{sT3}, s{sT3}, s{sKQ}
s_cmp_lt_u32 s{sW}, 2
s_cselect_b32 s{sT2}, s{sT2}, s{sT3}
s_cselect_b32 s{sT3}, 56, 32
s_cselect_b32 s{sTMP}, s{sW2}, s{sCre}
s_cselect_b32 s{sTMP + 1}, s{sW2 + 1}, s{sCre + 1}
s_cselect_b32 s{sTMP + 2}, s{sW2 + 2}, s{sCre + 2}
s_cmp_eq_u32 s{sW}, 3
s_cselect_b32 s{sTMP}, s{sCim}, s{sTMP}
s_cselect_b32 s{sTMP + 1}, s{sCim + 1}, s{sTMP + 1}""")
elif OPT['pf']:
    late += L(f"""
s_mul_i32 s{sT2}, s{sKQ}, 448
s_mul_i32 s{sT3}, s{sI}, 28
s_add_u32 s{sT2}, s{sT2}, s{sT3}
s_lshl_b32 s{sT2}, s{sT2}, 2
s_add_u32 s{sT2}, s{sT2}, s{sJJ}
s_lshl_b32 s{sT3}, s{sJJ}, 4
s_add_u32 s{sT3}, s{sT3}, s{sI}
s_lshl_b32 s{sT3}, s{sT3}, 5
s_add_u32 s{sT3}, s{sT3}, s{sKQ}
s_cmp_eq_u32 s{sW}, 0
s_cselect_b32 s{sT2}, s{sT2}, s{sT3}
s_cselect_b32 s{sT3}, 56, 16
s_cselect_b32 s{sTMP}, s{sW2}, s{sCre}
s_cselect_b32 s{sTMP + 1}, s{sW2 + 1}, s{sCre + 1}
s_cselect_b32 s{sTMP + 2}, s{sW2 + 2}, s{sCre + 2}
s_cmp_eq_u32 s{sW}, 2
s_cselect_b32 s{sTMP}, s{sCim}, s{sTMP}
s_cselect_b32 s{sTMP + 1}, s{sCim + 1}, s{sTMP + 1}
s_cmp_eq_u32 s{sW}, 3
s_cselect_b32 s{sT3}, 0, s{sT3}""")
if OPT['pf']:
    late += L(f"""s_lshl_b32 s{sT2}, s{sT2}, 8
v_lshrrev_b32 v{t0}, 1, v{vL}
v_and_b32 v{t1}, 1, v{vL}
v_lshlrev_b32 v{t1}, 7, v{t1}
v_lshl_add_u32 v{t0}, v{t0}, 10, v{t1}
v_add_u32 v{t0}, s{sT2}, v{t0}
v_mov_b32 v{t1}, {OOB:#x}
v_cmp_gt_u32 vcc, s{sT3}, v{vL}
v_cndmask_b32 v{PI}, v{t1}, v{t0}, vcc""")
    pf = L(f'buffer_load_dword v{PI}, v{PI}, {srd(sTMP)}, 0 offen')

Z = FACC[0]
later = L(f"""
v_lshlrev_b32 v{NLI}, 16, v{NLI}
v_mul_f32 v{NLI}, {LOG2E:#x}, v{NLI}
v_exp_f32 v{NLI}, v{NLI}
v_lshlrev_b32 v{Z + 2}, 16, v{LR}
v_lshlrev_b32 v{Z + 3}, 16, v{LI}
v_cvt_pk_bf16_f32 v{NLI}, v{NLI}, v{NLI}
v_lshlrev_b32 v{NLI}, 16, v{NLI}
v_mul_f32 v{Z}, v{NLI}, v{Z + 2}
v_mul_f32 v{Z + 1}, v{NLI}, v{Z + 3}
v_mul_f32 v{Z}, {LOG2E:#x}, v{Z}
v_mul_f32 v{Z + 1}, 0xbe22f983, v{Z + 1}""")
later += cexp(LR, LI, '1.0', Z, Z + 1)
later += L(f"""
v_mul_f32 v{Z + 4}, v{Z + 2}, v{Z + 2}
v_fmac_f32 v{Z + 4}, v{Z + 3}, v{Z + 3}
v_rcp_f32 v{Z + 4}, v{Z + 4}
v_add_f32 v{Z + 5}, -1.0, v{LR}
v_sub_f32 v{NLI}, 0, v{LI}
v_add_f32 v{Z + 4}, v{Z + 4}, v{Z + 4}
v_mul_f32 v{CR}, v{Z + 5}, v{Z + 2}
v_fmac_f32 v{CR}, v{NLI}, v{Z + 3}
v_mul_f32 v{NCI}, v{Z + 5}, v{Z + 3}
v_fmac_f32 v{NCI}, v{LI}, v{Z + 2}
v_mul_f32 v{CR}, v{CR}, v{Z + 4}
v_mul_f32 v{NCI}, v{NCI}, v{Z + 4}
v_sub_f32 v{NCR}, 0, v{CR}""")
later += cexp(L16R, L16I, '0x41800000', Z, Z + 1)
later += cexp(L128R, L128I, '0x43000000', Z, Z + 1)
later += L(f"""
v_lshrrev_b32 v{Z + 6}, 5, v{vL}
s_lshl_b32 s{sT2}, s{sW}, 1
v_add_u32 v{Z + 6}, s{sT2}, v{Z + 6}
v_cvt_f32_u32 v{Z + 6}, v{Z + 6}
v_mul_f32 v{Z + 7}, 0x41800000, v{Z + 6}
v_sub_f32 v{Z + 6}, 0x40e00000, v{Z + 6}
v_mul_f32 v{Z + 6}, 0x43800000, v{Z + 6}""")
later += cexp(LSR, LSI, f'v{Z + 7}', Z, Z + 1)
later += cexp(WR, WI, f'v{Z + 6}', Z, Z + 1)
later += L(f"""v_lshlrev_b32 v{PR}, 16, v{PR}
v_mul_f32 v{PR}, {LOG2E:#x}, v{PR}
v_and_b32 v{t1}, 31, v{vL}
s_lshl_b32 s{sT1}, s{sW}, 7
s_add_u32 s{sT1}, s{sT1}, {T_B1}
v_lshl_add_u32 v{t1}, v{t1}, 2, s{sT1}
ds_write_b32 v{t1}, v{PR}""")
later = mid + later + [I(f'v_accvgpr_write_b32 a{aXE + r}, 0') for r in range(17)]
cuts = [0]
for n in range(1, 7):
    c = n * len(later) // 7
    while later[c].mn.startswith(('s_cselect', 'v_cndmask', 's_nop')) or later[c - 1].mn.startswith('v_cmp'):
        c += 1
    cuts.append(c)
cuts.append(len(later))

for s in range(8):
    P.append(Wait(f'x{s}'))
    if s == 0:
        P += stamp('x0')
    for q in range(4):
        P.append(I(f'ds_read_b128 {vr(X + 16 * s + 4 * q, 4)}, v{ASc[q]} offset:{(s & 3) * SLOT}', lds_r=s & 3,
                   tok=f'xr{s}' if q == 3 else None))
    P += later[cuts[s]:cuts[s + 1]] if s < 7 else []
    if s >= 4:
        P += rg(s - 4)
    for r in range(16):
        if r == 4 and s < 4:
            P += [Wait(f'xr{s}')] + rx(s + 4, s)
        P.append(I(f'v_dot2c_f32_bf16 v{SUM[r & 1]}, s{sONES}, v{X + 16 * s + r}'))
        P.append(I(f'v_dot2c_f32_bf16 v{SQ[r & 1]}, v{X + 16 * s + r}, v{X + 16 * s + r}'))
P += stamp('x7')
P += L(f"""
v_add_f32 v{SUM[0]}, v{SUM[0]}, v{SUM[1]}
v_add_f32 v{SQ[0]}, v{SQ[0]}, v{SQ[1]}
v_mov_b32 v{SUM[1]}, v{SUM[0]}
v_mov_b32 v{SQ[1]}, v{SQ[0]}
v_permlane32_swap_b32 v{SUM[1]}, v{SUM[0]}
v_permlane32_swap_b32 v{SQ[1]}, v{SQ[0]}
v_add_f32 v{SUM[0]}, v{SUM[0]}, v{SUM[1]}
v_add_f32 v{SQ[0]}, v{SQ[0]}, v{SQ[1]}
v_mul_f32 v{SUM[0]}, 0x3b000000, v{SUM[0]}
v_mul_f32 v{SQ[0]}, 0x3b000000, v{SQ[0]}
v_fma_f32 v{SQ[0]}, -v{SUM[0]}, v{SUM[0]}, v{SQ[0]}
v_max_f32 v{SQ[0]}, 0, v{SQ[0]}
v_cvt_pk_bf16_f32 v{t0}, v{SUM[0]}, v{SQ[0]}
v_lshlrev_b32 v{VNM}, 16, v{t0}
v_sub_f32 v{SIM}, 0, v{VNM}
v_sub_f32 v{SIM + 1}, 0, v{VNM}
""")
P += [I(f'v_mov_b64 {vr(SIM + 2 * q, 2)}, {vr(SIM, 2)}') for q in range(1, 8)]

DB = [FACC[0], FACC[1], SRE]
items = []
for q in range(16):
    d = vr(DB[q % 3], 16)
    for h in range(2):
        it = [mfma(d, vr(TT + 4 * h, 4), vr(X + 8 * q + 4 * h, 4), vr(SIM, 16) if h == 0 else d)]
        if q >= 2:
            o = q - 2
            it += [I(f'v_cvt_pk_bf16_f32 v{X + 8 * o + 4 * h + e}, v{DB[o % 3] + 8 * h + 2 * e}, '
                     f'v{DB[o % 3] + 8 * h + 2 * e + 1}') for e in range(4)]
        items.append(it)
fill = L(f"""
v_and_b32 v{t0}, 0xffff0000, v{t0}
v_add_f32 v{t0}, 0x3727c5ac, v{t0}
v_cvt_pk_bf16_f32 v{t0}, v{t0}, v{t0}
v_lshlrev_b32 v{t0}, 16, v{t0}
v_sqrt_f32 v{t0}, v{t0}
v_and_b32 v{t1}, 3, v{vL}
v_cvt_pk_bf16_f32 v{t0}, v{t0}, v{t0}
v_lshlrev_b32 v{t0}, 16, v{t0}
v_rcp_f32 v{VRS}, v{t0}
v_bfe_u32 v{t2}, v{vL}, 3, 2
v_lshl_add_u32 v{t1}, v{t2}, 2, v{t1}
v_bfe_u32 v{t2}, v{vL}, 2, 1
v_lshl_add_u32 v{t1}, v{t2}, 4, v{t1}
s_lshl_b32 s{sT1}, s{sW}, 8
s_add_u32 s{sT1}, s{sT1}, {T_STAT}
v_lshl_add_u32 v{t1}, v{t1}, 2, s{sT1}
v_mul_f32 v{RL2}, {LOG2E:#x}, v{VRS}
ds_write_b32 v{t1}, v{VNM}
""")
fill.append(I(f'ds_write_b32 v{t1}, v{VRS} offset:128', tok='tabw'))
LA_S, LA_F = 3, OPT['laf']


def s_addr(slot):
    return [I(f'v_add_u32 v{ASc[q]}, {slot * SLOT}, v{AS[q]}') for q in range(4)]


def s_read(s, ri):
    return I(f'ds_read_b128 {ar(aS + 8 * (s & 3) + 4 * ri, 4)}, v{ASc[s & 3]} offset:{(2 * ((s >> 2) & 1) + ri) * 4096}',
             lds_r=G_SLOT[s >> 3])


def f_addr(b, g):
    slot = G_SLOT[(4 if b < 2 else 8) + g]
    if b < 2:
        sel = [I(f'v_xor_b32 v{FAc}, 64, v{FA0}')] if b else []
        return sel + [I(f'v_add_u32 v{FAc}, {slot * SLOT}, v{FAc if b else FA0}')]
    return [I(f'v_xor_b32 v{FAc}, s{sFSEL}, v{FA0}'), I(f'v_add_u32 v{FAc}, {slot * SLOT}, v{FAc}')]


def f_read(b, s):
    out = f_addr(b, s >> 3) if s % 8 == 0 else []
    k = (32 * b + s) & 7
    for u in range(2):
        out.append(I(f'ds_read_b64_tr_b16 {ar(aF + 4 * k + 2 * u, 2)}, v{FAc} '
                     f'offset:{((s >> 1) & 3) * 4096 + (s & 1) * 2048 + u * 512}',
                     lds_r=G_SLOT[(4 if b < 2 else 8) + (s >> 3)]))
    return out


pin = {8: rg(4), 20: rg(5),
       27: s_addr(G_SLOT[0]) + stamp('c27') + [Wait('G0', 'G1', 'tabw', 'zero'), I('s_barrier')] + stamp('b0')}
for k in range(LA_S):
    pin[28 + k] = [s_read(k, 0), s_read(k, 1)]
P += weave(items, fill, pin, 0, 20)
for o in (14, 15):
    P += [I(f'v_cvt_pk_bf16_f32 v{X + 8 * o + e}, v{DB[o % 3] + 2 * e}, v{DB[o % 3] + 2 * e + 1}') for e in range(8)]

S_items = []
for s in range(32):
    for ri, acc in ((0, SRE), (1, SIM)):
        it = [mfma(vr(acc, 16), vr(X + 4 * s, 4), ar(aS + 8 * (s & 3) + 4 * ri, 4), vr(acc, 16) if s else '0')]
        n = s + LA_S
        if n < 32:
            if ri == 0 and n % 8 == 0:
                it += s_addr(G_SLOT[n >> 3])
            it.append(s_read(n, ri))
        S_items.append(it)
for k in range(LA_F):
    S_items[64 - LA_F + k] += f_read(0, k)
F_items = []
for b in range(4):
    its = []
    for s in range(32):
        acc = vr(FACC[b & 1], 16)
        it = [mfma(acc, ar(aF + 4 * ((32 * b + s) & 7), 4), vr(X + 4 * s, 4), acc if s else '0')]
        n = s + LA_F
        if n < 32:
            it += f_read(b, n)
        elif b < 3:
            if b == 2 and n == 32:
                it.append(I(f's_xor_b32 s{sFSEL}, s{sFSEL}, 64'))
            it += f_read(b + 1, n - 32)
        its.append(it)
    F_items.append(its)

FLA, FLP = VNM, VRS
fill = late + pf + L(f"""
v_lshrrev_b32 v{t0}, 3, v{vL}
v_bfe_u32 v{t1}, v{vL}, 4, 1
v_lshlrev_b32 v{t1}, 2, v{t1}
v_xor_b32 v{t1}, v{t1}, v{vL}
v_and_b32 v{t1}, 7, v{t1}
v_lshlrev_b32 v{t1}, 4, v{t1}
v_lshl_add_u32 v{XG[0]}, v{t0}, 10, v{t1}
v_add_u32 v{XG[1]}, {7 * 1024}, v{XG[0]}
v_add_u32 v{XG[2]}, {14 * 1024}, v{XG[0]}
v_add_u32 v{XG[3]}, {21 * 1024}, v{XG[0]}
v_lshrrev_b32 v{t2}, 5, v{vL}
v_lshlrev_b32 v{t2}, 6, v{t2}
v_add_u32 v{t2}, {TB}, v{t2}
s_lshl_b32 s{sT2}, s{sW}, 8
v_add_u32 v{t1}, s{sT2}, v{t2}""")
fill += [I(f'ds_read_b128 {vr(FACC[1] + 4 * q, 4)}, v{t1} offset:{128 + 16 * q}') for q in range(4)]
xe = L(f"""v_and_b32 v{t0}, 31, v{vL}
    v_lshrrev_b32 v{t1}, 5, v{vL}
    v_lshlrev_b32 v{t1}, 14, v{t1}
    v_lshl_add_u32 v{t1}, v{t0}, 1, v{t1}
    s_lshl_b32 s{sT2}, s{sJJ}, 2
    s_add_u32 s{sT2}, s{sT2}, s{sKQ}
    s_lshl_b32 s{sT2}, s{sT2}, 6
    v_lshl_add_u32 v{t0}, v{t0}, 1, s{sT2}
    s_add_u32 s{sXB}, s{sXB}, s{sT2}
    global_load_short_d16_hi a{aXE + 16}, v{t0}, s[{pDSK}:{pDSK + 1}]""")
for r in range(16):
    if r % 4 == 0:
        xe.append(I(f's_add_u32 s{sT2}, s{sXB}, {1024 * r}'))
    xe.append(I(f'buffer_load_short_d16_hi a{aXE + r}, v{t1}, {srd(sX)}, s{sT2} offen offset:{1024 * (r & 3)}'))
fill += xe
pin = {2: rg(6), 14: rg(7),
       24: [Wait('G2', 'G3'), I('s_barrier')], 28: rg(8), 40: rg(9),
       63 - LA_F: stamp('s59') + [Wait('G4', 'G5', 'G6', 'G7'), I('s_barrier')] + stamp('b2')}
P += weave(S_items, fill, pin, 0, 62 - LA_F)

Q = FACC[1]
V = lambda t: SRE + t if t % 2 == 0 else SIM + t - 1
AGR, AGI = VRS, t3
fill = []
for q in range(8):
    for h in range(2):
        r = 2 * q + h
        fill += L(f"""v_mul_f32 v{TT + 2 * h}, v{SRE + r}, v{CR}
            v_mul_f32 v{TT + 2 * h + 1}, v{SRE + r}, v{NCI}
            v_fmac_f32 v{TT + 2 * h}, v{SIM + r}, v{NCI}
            v_fmac_f32 v{TT + 2 * h + 1}, v{SIM + r}, v{NCR}""")
    for h in range(2):
        r = 2 * q + h
        fill += L(f"""v_mul_f32 v{V(r)}, v{TT + 2 * h}, v{Q + r}
            v_mul_f32 v{V(r) + 1}, v{TT + 2 * h + 1}, v{Q + r}""")
    for r in (2 * q, 2 * q + 1):
        if r:
            pr = V(0) if r == 1 else (t0 if r & 1 else AGR)
            pi_ = V(0) + 1 if r == 1 else (FAd if r & 1 else AGI)
            nr, ni = (AGR, AGI) if r & 1 else (t0, FAd)
            fill += L(f"""v_fma_f32 v{nr}, v{LR}, v{pr}, v{V(r)}
                v_fma_f32 v{ni}, v{LR}, v{pi_}, v{V(r) + 1}
                v_fmac_f32 v{nr}, v{NLI}, v{pi_}
                v_fmac_f32 v{ni}, v{LI}, v{pr}""")
fill += L(f"""s_lshl_b32 s{sT2}, s{sW}, 9
    s_add_u32 s{sT2}, s{sT2}, {T_SEG}
    v_lshl_add_u32 v{t1}, v{vL}, 3, s{sT2}""")
fill.append(I(f'ds_write_b64 v{t1}, {vr(AGR, 2)} offset:{7 * 256}', tok='segw'))
pin = {0: rg(10), 14: rg(11), 31: [Wait('segw'), I('s_barrier')] + rw('WA0')}
P += weave(F_items[0], fill, pin, 2, 30)
P += stamp('F0')

E = ASc[0]
R0, R1, T0_, T1_ = QG[0], TT + 12, ASc[0], ASc[2]
m0 = mish(0)
q0 = len(m0) // 4 - 4
fill = [I(f'ds_read2_b64 {vr(R0, 4)}, v{t1} offset0:0 offset1:32'),
        I(f'ds_read2_b64 {vr(R1, 4)}, v{t1} offset0:64 offset1:96')] + m0[:q0]
fill += cmul_add(PR, PI, L16R, L16I, R0, R0 + 1, R0 + 2, R0 + 3)
fill.append(I(f'ds_read2_b64 {vr(R0, 4)}, v{t1} offset0:128 offset1:160'))
fill += cmul_add(T0_, T0_ + 1, L16R, L16I, PR, PI, R1, R1 + 1)
fill += cmul_add(PR, PI, L16R, L16I, T0_, T0_ + 1, R1 + 2, R1 + 3)
fill.append(I(f'ds_read_b64 {vr(R1, 2)}, v{t1} offset:{6 * 256}'))
fill += m0[q0:2 * q0]
fill += cmul_add(T0_, T0_ + 1, L16R, L16I, PR, PI, R0, R0 + 1)
fill += cmul_add(T1_, T1_ + 1, L16R, L16I, T0_, T0_ + 1, R0 + 2, R0 + 3)
fill += cmul_add(PR, PI, L16R, L16I, T1_, T1_ + 1, R1, R1 + 1)
fill += cmul_add(E, E + 2, L16R, L16I, PR, PI, AGR, AGI)
fill += L(f"""v_mov_b32 v{E + 1}, s{sTAG}
    v_mov_b32 v{E + 3}, s{sTAG}
    s_lshl_b32 s{sT2}, s{sJ}, 4
    s_add_u32 s{sT2}, s{sT2}, s{sI}
    s_lshl_b32 s{sT2}, s{sT2}, 9
    s_add_u32 s{sT2}, s{sT2}, {WS_AG - 512}
    s_cmp_eq_u32 s{sW}, 3
    s_cselect_b32 s{sT2}, s{sT2}, {OOB:#x}
    v_mov_b32 v{t0}, {OOB:#x}
    v_cmp_gt_u32 vcc, 32, v{vL}
    v_add_u32 v{t1}, s{sT2}, v{VL16}
    v_cndmask_b32 v{t1}, v{t1}, v{t0}, vcc
    buffer_store_dwordx4 {vr(E, 4)}, v{t1}, {srd(sWS)}, 0 offen sc1""")
fill += m0[2 * q0:]
pin = {31 - LA_F: [Wait('G8', 'G9', 'G10', 'G11'), I('s_barrier')] + rw('CR0')}
P += weave(F_items[1], fill, pin, 1, 31)
P += stamp('F1')

LBA = [CR, NCI]
LBE = [NCR, L16R]
LBD = [ASc[0], QG[0]]
FLV = L16I
lb_loads = '\n'.join(f'buffer_load_dwordx4 {vr(LBD[e], 4)}, v{LBA[e]}, {srd(sWS)}, 0 offen sc1' for e in range(2))
lb_setup = L(f"""v_lshrrev_b32 v{t0}, 5, v{vL}
    s_lshl_b32 s{sT2}, s{sW}, 2
    s_add_u32 s{sT2}, s{sT2}, s{sI}
    s_sub_u32 s{sT2}, s{sT2}, 16
    v_lshl_add_u32 v{t0}, v{t0}, 1, s{sT2}
    s_lshl_b32 s{sT2}, s{sJ}, 13
    s_add_u32 s{sT2}, s{sT2}, {WS_AG}
    v_and_b32 v{t1}, 31, v{vL}
    v_lshl_add_u32 v{t1}, v{t1}, 4, s{sT2}
    v_lshl_add_u32 v{LBA[0]}, v{t0}, 9, v{t1}
    v_add_u32 v{LBA[1]}, 512, v{LBA[0]}
    v_mov_b32 v{t1}, {OOB:#x}
    v_mov_b32 v{FLV}, s{sTAG}
    v_cmp_gt_i32 vcc, 0, v{t0}
    v_cndmask_b32 v{LBA[0]}, v{LBA[0]}, v{t1}, vcc
    v_cndmask_b32 v{LBE[0]}, v{FLV}, 0, vcc
    v_cmp_gt_i32 vcc, -1, v{t0}
    v_cndmask_b32 v{LBA[1]}, v{LBA[1]}, v{t1}, vcc
    v_cndmask_b32 v{LBE[1]}, v{FLV}, 0, vcc""")
lb_setup += L(f"""s_lshl_b32 s{sT2}, s{sJJ}, 2
    s_add_u32 s{sT2}, s{sT2}, s{sFLG}
    v_mov_b32 v{FLA}, s{sT2}
    v_and_b32 v{t0}, 3, v{vL}
    v_max_u32 v{t0}, 1, v{t0}
    v_xor_b32 v{t0}, s{sJJ}, v{t0}
    v_lshl_add_u32 v{FLP}, v{t0}, 2, s{sFLG}""")
def flag_store(stage, toks):
    out = [Wait(*toks), I(f'buffer_store_dword v{FLV}, v{FLA}, {srd(sWS)}, 0 offen offset:{16 * stage} sc1')]
    if OPT['ppf']:
        so = (sFST[0], sSST, sFST[2])[stage]
        vpf = L128R if stage else t3
        out = [I(f'v_lshlrev_b32 v{vpf}, {6 if stage < 2 else "s%d" % sSEL[1]}, v{vL}')] + out
        out.append(I(f'buffer_load_dword a{60 + (stage & 1)}, v{vpf}, {srd(sWS)}, s{so} offen sc1'))
    return out


def flag_load(stage):
    return f'buffer_load_dword v{t3}, v{FLP}, {srd(sWS)}, 0 offen offset:{16 * stage} sc1'


flag_check = f'v_cmp_ne_u32 vcc, s{sTAG}, v{t3}'
lb_check = f"""v_bitop3_b32 v{t0}, v{LBD[0] + 1}, v{LBD[0] + 3}, v{LBE[0]} bitop3:0x7e
    v_bitop3_b32 v{t1}, v{LBD[1] + 1}, v{LBD[1] + 3}, v{LBE[1]} bitop3:0x7e
    v_or_b32 v{t0}, v{t0}, v{t1}
    v_cmp_ne_u32 vcc, 0, v{t0}"""
lb_part = stamp('lb0') + poll('lb', lb_loads, lb_check) + stamp('lb1')
lb_part += cmul_add(LBD[0] + 1, LBD[0] + 3, L128R, L128I, LBD[0], LBD[0] + 2, LBD[1], LBD[1] + 2)
lb_part += cmul_add(LBD[1], LBD[1] + 1, WR, WI, LBD[0] + 1, LBD[0] + 3)
lb_part += L(f"""s_lshl_b32 s{sT2}, s{sW}, 9
    s_add_u32 s{sT2}, s{sT2}, {T_LB}
    v_lshl_add_u32 v{t1}, v{vL}, 3, s{sT2}""")
lb_part.append(I(f'ds_write_b64 v{t1}, {vr(LBD[1], 2)}', tok='lbw'))
HW, HR, HB = ASc[0], ASc[1], FACC[1]
HW2, HR2 = WR, WI
tail_addr = L(f"""v_and_b32 v{HW}, 31, v{vL}
    v_lshlrev_b32 v{ASc[3]}, 3, v{HW}
    v_add_u32 v{ASc[3]}, {T_LB}, v{ASc[3]}
    v_lshrrev_b32 v{t0}, 5, v{vL}
    s_lshl_b32 s{sT2}, s{sW}, 11
    s_add_u32 s{sT2}, s{sT2}, {T_H}
    v_lshl_add_u32 v{HW}, v{HW}, 6, s{sT2}
    v_bfe_u32 v{HR}, v{vL}, 1, 2
    v_lshlrev_b32 v{HW2}, 1, v{t0}
    v_xor_b32 v{HR}, v{HR}, v{HW2}
    v_lshl_add_u32 v{HW}, v{HR}, 4, v{HW}
    v_xor_b32 v{HW2}, 16, v{HW}
    v_bfe_u32 v{HR}, v{vL}, 2, 2
    v_lshl_add_u32 v{HR}, v{t0}, 3, v{HR}
    v_lshl_add_u32 v{HR}, v{HR}, 6, s{sT2}
    v_and_b32 v{t0}, 1, v{vL}
    v_lshl_add_u32 v{HR}, v{t0}, 5, v{HR}
    v_lshrrev_b32 v{t0}, 1, v{vL}
    v_xor_b32 v{t0}, v{t0}, v{vL}
    v_and_b32 v{t0}, 8, v{t0}
    v_lshl_add_u32 v{HR}, v{t0}, 1, v{HR}
    v_bfe_u32 v{t0}, v{vL}, 1, 1
    v_lshl_add_u32 v{HR}, v{t0}, 3, v{HR}
    v_xor_b32 v{HR2}, 32, v{HR}
    s_bitcmp1_b32 s{sJJ}, 0
    s_cselect_b32 s{sT2}, {OOB:#x}, 0
    v_add_u32 v{ASc[2]}, s{sT2}, v{VL16}
    s_mov_b32 s{sKC[0]}, {M2LN2:#x}""")
lb_reads = [I(f'ds_read2_b64 {vr(HB + 4 * q, 4)}, v{ASc[3]} offset0:{64 * q} offset1:{64 * q + 32}') for q in range(4)]
scan = [I(f'v_pk_add_f32 {vr(HB + a, 2)}, {vr(HB + a, 2)}, {vr(HB + b_, 2)}')
        for a, b_ in ((0, 2), (4, 6), (8, 10), (12, 14), (0, 4), (8, 12), (0, 8))]
scan += cmul_add(L128R, L128I, LSR, LSI, HB, HB + 1, PR, PI)
for r in range(16):
    prev = vr(L128R if r == 0 else V(r - 1), 2)
    scan += L(f"""v_pk_fma_f32 {vr(V(r), 2)}, {prev}, {vr(LR, 2)}, {vr(V(r), 2)} op_sel_hi:[1,0,1]
        v_pk_fma_f32 {vr(V(r), 2)}, {prev}, {vr(NLI, 2)}, {vr(V(r), 2)} op_sel:[1,0,0] op_sel_hi:[0,1,1]""")
    if r & 1:
        scan += L(f"""v_cvt_pk_bf16_f32 v{HB + (r >> 1)}, v{V(r - 1)}, v{V(r)}
            v_cvt_pk_bf16_f32 v{HB + 8 + (r >> 1)}, v{V(r - 1) + 1}, v{V(r) + 1}""")
for ri in range(2):
    scan += [I(f'ds_write_b128 v{(HW, HW2)[h]}, {vr(HB + 8 * ri + 4 * h, 4)}') for h in range(2)]
    for fr in range(2):
        for u in range(2):
            scan.append(I(f'ds_read_b64_tr_b16 {ar(aOS + 8 * ri + 4 * fr + 2 * u, 2)}, v{(HR, HR2)[u]} offset:{1024 * fr + 256 * u}'))
m1 = mish(1)
per = sum(i.slots() for i in lb_setup + m1 + lb_part + tail_addr) / 27
c1 = next(n for n in range(len(m1)) if sum(i.slots() for i in lb_setup + m1[:n]) >= per * (OPT['lbl'] - 2))
fill = lb_setup + m1[:c1] + L(lb_loads) + m1[c1:] + lb_part + tail_addr
pin = {4: rw('CI0'), 16: rw('WA1'), 29: [Wait('lbw'), I('s_barrier')] + lb_reads + rw('WA2')}
P += weave(F_items[2], fill, pin, 2, 28)
P += stamp('F2')
m2 = mish_pk(2, VL16, range(1))
P += m2[:2] + merge(scan, m2[2:-5])
for q in range(4):
    F_items[3][1 + q].append(I(f'buffer_store_dwordx4 {ar(aOS + 4 * q, 4)}, v{VL16}, {srd(sWS)}, s{sSST} offen '
                               f'offset:{1024 * q} sc1', tok='stH' if q == 3 else None))
P += stamp('scan')


FP0, FPc = [CR, NCI], [QG[2], QG[3]]
p3_setup = L(f"""v_bfe_u32 v{t1}, v{vL}, 2, 2
    v_lshrrev_b32 v{t0}, 5, v{vL}
    v_lshl_add_u32 v{t0}, v{t0}, 2, v{t1}
    v_lshlrev_b32 v{FP0[0]}, 7, v{t0}
    v_lshrrev_b32 v{t1}, 1, v{t1}
    s_and_b32 s{sT2}, s{sKQ}, 1
    v_xor_b32 v{t1}, s{sT2}, v{t1}
    v_lshl_add_u32 v{FP0[0]}, v{t1}, 6, v{FP0[0]}
    v_bfe_u32 v{t1}, v{vL}, 4, 1
    v_lshl_add_u32 v{FP0[0]}, v{t1}, 5, v{FP0[0]}
    v_and_b32 v{t1}, 3, v{vL}
    v_lshl_add_u32 v{FP0[0]}, v{t1}, 3, v{FP0[0]}
    v_xor_b32 v{FP0[1]}, 64, v{FP0[0]}
    s_and_b32 s{sT2}, s{sJJ}, 1
    s_lshl_b32 s{sT2}, s{sT2}, 6""") + [I(f'v_xor_b32 v{AS[q]}, s{sT2}, v{AS[q]}') for q in range(4)]
fill = m2[-5:] + mish(2, VL16, (2, 3)) + p3_setup

steps = ([('WA0', x, 'own') for x in range(4)]
         + [(n, x, 'own') for n in ('CR0', 'CI0') for x in range(2)]
         + [(f'WA{e}', x, 'A') for e in (1, 2, 3) for x in range(4)]
         + [(n, x, 'H') for n in ('CR0', 'CI0') for x in (2, 3)]
         + [(n, x, 'H') for n in ('CR1', 'CI1') for x in range(4)]
         + [('WB0', x, 'own') for x in range(4)]
         + [(f'WB{e}', x, 'B') for e in (1, 2) for x in range(4)])
deferred = [k for k, st in enumerate(steps) if st[2] != 'own']
A_REGS = ([192 + 4 * n for n in range(16)] + [SRE + 4 * n for n in range(8)]
          + [FACC[0] + 4 * n for n in range(4)] + [TT + 4 * n for n in range(4)])
ACC = [128, 144, 160, 176]
LA_W = 2
cur_addr = {}


def a_frag(k):
    name, x, src = steps[k]
    if src != 'own':
        return vr(A_REGS[deferred.index(k)], 4)
    if name == 'WA0':
        return ar(aOF + 4 * x, 4)
    if name == 'WB0':
        return ar(aOF + 16 + 4 * x, 4) if x < 2 else vr(FACC[1] + 4 * (x - 2), 4)
    return ar(aOS + 8 * (name[1] == 'I') + 4 * x, 4)


def w_reg(k, b, lo=0, n=4):
    if b == 0 and k in deferred:
        d = deferred.index(k)
        return ar(aWO + 4 * d + lo, n)
    return ar(aP + 16 * (k % 3) + 4 * b + lo, n)


def w_read(k):
    name, x, src = steps[k]
    slot = W_SLOT[name]
    out = []
    if name[0] == 'C':
        out.append(I(f'v_add_u32 v{FAc}, {slot * SLOT}, v{AS[x]}'))
        return out + [I(f'ds_read_b128 {w_reg(k, b)}, v{FAc} offset:{4096 * b}', lds_r=slot) for b in (1, 2, 3, 0)]
    if cur_addr.get(FPc[0]) != slot:
        cur_addr[FPc[0]] = cur_addr[FPc[1]] = slot
        out += [I(f'v_add_u32 v{FPc[b]}, {slot * SLOT}, v{FP0[b]}') for b in range(2)]
    for b in (1, 2, 3, 0):
        for u in range(2):
            out.append(I(f'ds_read_b64_tr_b16 {w_reg(k, b, 2 * u, 2)}, v{FPc[b & 1]} '
                         f'offset:{8192 * (x >> 1) + 4096 * (b >> 1) + 2048 * (x & 1) + 1024 * u}', lds_r=slot))
    return out


def a_load(k):
    name, x, src = steps[k]
    e = int(name[2])
    if name[0] == 'C':
        code = f's_xor_b32 s{sT1}, s{sJJ}, {2 * e + (x >> 1)}\ns_lshl_b32 s{sT1}, s{sT1}, 12\n' \
               f's_add_u32 s{sT1}, s{sT1}, {28 * 1024}\ns_add_u32 s{sT1}, s{sT1}, s{sAS}'
        off = 2048 * (name[1] == 'I') + 1024 * (x & 1)
        fresh = x & 1 == 0
    else:
        if name[1] == 'A':
            code = f's_xor_b32 s{sT1}, s{sJJ}, {e}\ns_lshl_b32 s{sT1}, s{sT1}, 13\ns_add_u32 s{sT1}, s{sT1}, s{sAS}'
        else:
            code = f's_lshl_b32 s{sT1}, s{sPB[e]}, 12\ns_add_u32 s{sT1}, s{sT1}, s{sAS}'
        off = 1024 * x
        fresh = x == 0
    return (L(code) if fresh else []) + \
        [I(f'buffer_load_dwordx4 {a_frag(k)}, v{VL16}, {srd(sWS)}, s{sT1} offen offset:{off} sc1')]


pin = {10: [I('s_barrier')] + rw('WA3'), 18: [I('s_barrier')] + rw('CR1'),
       OPT['fas']: flag_store(0, ['stF0', 'stF1']),
       OPT['fal']: L(flag_load(0)),
       30: [Wait('WA0', 'CR0', 'CI0', 'WA1', 'WA2'), I('s_barrier')]}
if OPT['fine'] == 'F3':
    for g_ in (5, 9, 11, 17, 19, 29):
        pin[g_] = pin.get(g_, []) + stamp(f'g{g_}')
P += weave(F_items[3], fill, pin, 1, 29)
P += stamp('F3')

m3 = mish_pk(3, ASc[2])
st0 = next(n for n, i_ in enumerate(m3) if i_.kind == 'vm')
early = sum((a_load(k) for k in range(8, 8 + OPT['nea'])), [])
P += m3[:st0 - 24] + flag_store(1, ['stH']) + stamp('fa0') + poll('fa', flag_load(0), flag_check) + stamp('fa1')
P += merge(m3[st0 - 24:st0], early) + m3[st0:-8] + w_read(0) + w_read(1) + m3[-8:]
P += stamp('tail')

XE, ME = FACC[1], LSR
ep_setup = L(f"""v_lshrrev_b32 v{t1}, 5, v{vL}
    s_lshl_b32 s{sT2}, s{sW}, 8
    s_add_u32 s{sT2}, s{sT2}, {T_STAT}
    v_lshl_add_u32 v{VLN2}, v{t1}, 6, s{sT2}
    v_lshlrev_b32 v{FA0}, 15, v{t1}
    v_and_b32 v{t0}, 31, v{vL}
    v_lshl_add_u32 v{FA0}, v{t0}, 2, v{FA0}""")
VL4 = ASc[0]
ep_setup = L(f'v_lshlrev_b32 v{VL4}, 2, v{vL}') + ep_setup
base_calc = [I(f'v_accvgpr_read_b32 v{RL2}, a{aXE + 16}')]
for qt in range(4):
    base_calc += [I(f'ds_read_b128 {vr(ME, 4)}, v{VLN2} offset:{16 * qt}', hoist=True),
                  I(f'ds_read_b128 {vr(ME + 4, 4)}, v{VLN2} offset:{128 + 16 * qt}', hoist=True)]
    rs = range(4)
    base_calc += [I(f'v_accvgpr_read_b32 v{XE + 4 * qt + r}, a{aXE + 4 * qt + r}') for r in rs]
    base_calc += [I(f'v_sub_f32 v{ME + r}, v{XE + 4 * qt + r}, v{ME + r}') for r in rs]
    base_calc += [I(f'v_mul_f32 v{ME + r}, v{ME + r}, v{ME + 4 + r}') for r in rs]
    base_calc += [I(f'v_fmac_f32 v{XE + 4 * qt + r}, v{ME + r}, v{RL2}') for r in rs]

NE = 36
extra = {k: [[], [], []] for k in range(NE)}
extra[5][0] += [I('s_barrier')]
extra[13][0] += [Wait('WA3', 'CR1', 'CI1'), I('s_barrier')]
extra[28][0] += [Wait('WB0', 'WB1', 'WB2'), I('s_barrier')]
extra[OPT['fhl']][0] += L(flag_load(1))
extra[OPT['fhc']][0] += stamp('fh0') + poll('fh', flag_load(1), flag_check) + stamp('fh1')
extra[OPT['fls']][0] += flag_store(2, ['stF3', 'stF2'])
extra[OPT['fll']][0] += L(flag_load(2))
extra[OPT['flc']][0] += stamp('fl0') + poll('fl', flag_load(2), flag_check) + stamp('fl1')
queue = [(0, a_load(k)) for k in range(8 + OPT['nea'], 16)] + [(0, rw('CI1'))]
queue += [(0, a_load(k)) for k in range(16, 20)] + [(5, rw('WB0'))]
queue += [(OPT['fhc'], a_load(k)) for k in range(20, 32)] + [(6, rw('WB1')), (13, rw('WB2'))]
queue += [(OPT['flc'], a_load(k)) for k in range(36, 44)]
k, n = 0, 1
for at, ins in queue:
    if at > k:
        k, n = at, 1
    pend = []
    for i_ in ins:
        pend.append(i_)
        if i_.kind == 'vm':
            extra[k][n] += pend
            pend = []
            n += 1
            if n == 3:
                k, n = k + 1, 1
P = P[:]
items = []
seen = set()
for k in range(NE):
    for n, b in enumerate((1, 2, 3) if k in deferred else (1, 2, 3, 0)):
        acc = vr(ACC[b], 16)
        it = [mfma(acc, a_frag(k), w_reg(k, b), acc if b in seen else '0')]
        seen.add(b)
        if n == 1 and k + LA_W < NE:
            it += w_read(k + LA_W)
        if n < 3:
            it += extra[k][n]
        items.append(it)
P += weave(items, [], {})
P += stamp('k36')


def checksum(dst, src, last):
    return [f'v_bitop3_b32 v{dst}, v{src}, v{src + 1}, {last} bitop3:0x96'] + \
           [f'v_bitop3_b32 v{dst}, v{src + e}, v{src + e + 1}, v{dst} bitop3:0x96' for e in (2, 4, 6)]


def send(b):
    A = ACC[b]
    out = []
    for q in range(2):
        out += [I(f'v_cvt_pk_bf16_f32 v{A + e}, v{A + 2 * e}, v{A + 2 * e + 1}') for e in range(4 * q, 4 * q + 4)]
        out.append(I(f'buffer_store_dwordx4 {vr(A + 4 * q, 4)}, v{VL16}, {srd(sWS)}, s{sXO[b]} offen '
                     f'offset:{1024 * q} sc1'))
    out += [I(c) for c in checksum(A + 8, A, f's{sTAG}')]
    out.append(I(f'buffer_store_dword v{A + 8}, v{VL4}, {srd(sWS)}, s{sXO[b]} offen offset:2048 sc1'))
    return out


def w_read1(k, b, dst):
    name, x, src = steps[k]
    slot = W_SLOT[name]
    if name[0] == 'C':
        return [I(f'v_add_u32 v{FAc}, {slot * SLOT}, v{AS[x]}'),
                I(f'ds_read_b128 {ar(dst, 4)}, v{FAc} offset:{4096 * b}', lds_r=slot)]
    key = FPc[b & 1]
    out = []
    if cur_addr.get(key) != slot:
        cur_addr[key] = slot
        out.append(I(f'v_add_u32 v{key}, {slot * SLOT}, v{FP0[b & 1]}'))
    return out + [I(f'ds_read_b64_tr_b16 {ar(dst + 2 * u, 2)}, v{key} '
                    f'offset:{8192 * (x >> 1) + 4096 * (b >> 1) + 2048 * (x & 1) + 1024 * u}', lds_r=slot) for u in range(2)]


NS = NE + OPT['nstep']
seq = [(k, b) for k in range(NE, NS) for b in (1, 2, 3)]
seq += [(k, b) for b in (1, 2, 3) for k in range(NS, 44)] + [(k, 0) for k in deferred]
done_at = {b: max(n for n, kb in enumerate(seq) if kb[1] == b) for b in (1, 2, 3)}
order = [kb for kb in seq if kb[0] >= NE]
JIT = {kb: 64 + 4 * (n & 7) for n, kb in enumerate(order)}
LA_J = 5
items = []
rd = 0
for n, (k, b) in enumerate(seq):
    pre_rd = []
    while rd < len(order) and seq.index(order[rd]) <= n + LA_J:
        pre_rd += w_read1(*order[rd], JIT[order[rd]])
        rd += 1
    w = ar(JIT[k, b], 4) if (k, b) in JIT else w_reg(k, b)
    m = mfma(vr(ACC[b], 16), a_frag(k), w, vr(ACC[b], 16))
    items.append(pre_rd + [m] if n == 0 else [m] + pre_rd)
RX = {1: ACC[1], 2: ACC[2], 3: ACC[3]}


def recv(b):
    so = sXO[0] if b == 1 else sSEL[b]
    rl = [f'buffer_load_dwordx4 {vr(RX[b] + 4 * q, 4)}, v{VL16}, {srd(sWS)}, s{so} offen offset:{1024 * q} sc1' for q in range(2)]
    rl.append(f'buffer_load_dword v{RX[b] + 8}, v{VL4}, {srd(sWS)}, s{so} offen offset:2048 sc1')
    return '\n'.join(rl)


pre = L(f"""s_lshl_b32 s{sXB}, s{sXB}, 1
    s_mov_b32 s{sKC[0]}, 0x00003f80
    s_mov_b32 s{sKC[1]}, 0x3f800000""")
pin = {n: [] for n in range(len(items))}
for b in (1, 2, 3):
    sd = send(b)
    for n in range(4):
        pin[done_at[b] + 3 + n] += sd[n * len(sd) // 4:(n + 1) * len(sd) // 4]
    pin[done_at[3] + OPT[f'r{b}']] += L(recv(b))
pin[done_at[3] + 6] += stamp('sent')
sub = lambda lo, hi: {n - lo: pin[n] for n in range(lo, hi)}
c1, c2 = 0, done_at[3] + 7
P += weave(items[c1:c2], ep_setup + pre, sub(c1, c2), 0, 20)
P += weave(items[c2:], base_calc, sub(c2, len(items)))
P += stamp('own')
A0 = ACC[0]
for q in range(8):
    P.append(I(f'v_pk_add_f32 {vr(A0 + 2 * q, 2)}, {vr(A0 + 2 * q, 2)}, {vr(XE + 2 * q, 2)}'))
for b in (1, 2, 3):
    chk = checksum(RX[b] + 9, RX[b], f'v{RX[b] + 8}') + [f'v_cmp_ne_u32 vcc, s{sTAG}, v{RX[b] + 9}']
    P += poll(f'rx{b}', recv(b), '\n'.join(chk))
P += stamp('rx')
for q in range(8):
    for b in (1, 2, 3):
        P += [I(f'v_dot2c_f32_bf16 v{A0 + 2 * q + h}, s{sKC[h]}, v{RX[b] + q}') for h in range(2)]
    if q:
        P += sts
    sts = [I(f's_add_u32 s{sBB}, s{sXB}, {4096 * q}')]
    sts += [I(f'buffer_store_dword v{A0 + 2 * q + h}, v{FA0}, {srd(sOUT)}, s{sBB} offen offset:{2048 * h} '
              f'{OPT["out_flags"]}') for h in range(2)]
P += L(f"""s_lshl_b32 s{sT2}, s{sJ}, 2
    s_add_u32 s{sT2}, s{sT2}, s{sW}
    s_xor_b32 s{sT1}, s{sI}, 15
    s_or_b32 s{sT2}, s{sT2}, s{sT1}
    s_cmp_eq_u32 s{sT2}, 0
    s_cselect_b32 s{sT2}, {WS_EP}, {OOB:#x}
    v_mov_b32 v{t0}, s{sE2}
    v_mov_b32 v{t1}, s{sT2}""") + sts + L(f'buffer_store_dword v{t0}, v{t1}, {srd(sWS)}, 0 offen')
if OPT['diag']:
    P += stamp('end') + L("""s_memrealtime s[6:7]
        s_waitcnt lgkmcnt(0)
        s_sub_u32 s4, s4, s23
        s_lshl_b32 s4, s4, 2
        s_min_u32 s4, s4, 20000
        L_diag:
        s_memrealtime s[0:1]
        s_waitcnt lgkmcnt(0)
        s_sub_u32 s0, s0, s6
        s_cmp_lt_u32 s0, s4
        s_cbranch_scc1 L_diag""")
if PROF:
    P += stamp('end')
    P += L(f"""s_waitcnt vmcnt(0)
        s_memrealtime s[0:1]
        s_lshl_b32 s{sT2}, s2, 2
        s_add_u32 s{sT2}, s{sT2}, s{sW}
        s_lshl_b32 s{sT2}, s{sT2}, 7
        s_add_u32 s{sT2}, s{sT2}, {WS_PROF}
        v_mov_b32 v{t1}, s{sT2}
        s_waitcnt lgkmcnt(0)
        v_mov_b32 v{t0}, s0
        buffer_store_dword v{t0}, v{t1}, {srd(sWS)}, 0 offen offset:124
        v_mov_b32 v{t2}, s23
        buffer_store_dword v{t2}, v{t1}, {srd(sWS)}, 0 offen offset:112
        buffer_store_dword a62, v{t1}, {srd(sWS)}, 0 offen offset:116
        buffer_store_dword a63, v{t1}, {srd(sWS)}, 0 offen offset:120""")
    P += stamp('DUMP')
P += [I('L_end:'), I('s_endpgm')]

P = resolve_stamps(P)
if OPT['split']:
    P = split_ds_pairs(P)
if OPT['hoist']:
    P = hoist_reads(P, OPT['hoist'])
body = pad_hazards(insert_waits(P, OPT['age']))
tail = []
for name, loads, check in retry_blocks:
    blk = [I(f'L_retry_{name}:'), I(f's_mov_b32 s3, {OPT["spin"]}'), I(f'L_spin_{name}:')]
    if PROF:
        blk.append(I(f's_add_u32 s23, s23, {1 << (4 * retry_blocks.index((name, loads, check)))}'))
    blk += L(loads) + [I('s_waitcnt vmcnt(0)')] + L(check)
    blk += L(f'''s_cbranch_vccz L_back_{name}
        s_sub_u32 s3, s3, 1
        s_cmp_lg_u32 s3, 0
        s_cbranch_scc1 L_spin_{name}
        s_branch L_back_{name}''')
    tail += pad_hazards(blk)

hdr = open(os.path.join(os.path.dirname(os.path.abspath(__file__)), 'header.txt')).read()
text = hdr + f'''; @launch grid=(256,1,1) block=(256,1,1) lds=163840
.amdgcn_target "amdgcn-amd-amdhsa--gfx950"
.text
.globl {KN}
.p2align 8
.type {KN},@function
{KN}:
{render(body)}
{render(tail)}
L_code_end:
    s_endpgm
.section .rodata,"a"
.p2align 6
.amdhsa_kernel {KN}
  .amdhsa_next_free_vgpr 512
  .amdhsa_next_free_sgpr 102
  .amdhsa_accum_offset 256
  .amdhsa_group_segment_fixed_size 0
  .amdhsa_kernarg_size 128
  .amdhsa_user_sgpr_count 2
  .amdhsa_user_sgpr_kernarg_segment_ptr 1
  .amdhsa_system_sgpr_workgroup_id_x 1
.end_amdhsa_kernel
'''
open(sys.argv[1], 'w').write(text)
if PROF:
    open(sys.argv[1][:-2] + '.stamps', 'w').write(' '.join(stamp_names))
from collections import Counter
cnt = Counter(i.kind for i in body)
print(dict(cnt), 'nops', sum(1 for i in body if i.mn == 's_nop'))
```

```python
import re

TRANS = ('v_exp_f32', 'v_log_f32', 'v_rcp_f32', 'v_rsq_f32', 'v_sqrt_f32', 'v_sin_f32', 'v_cos_f32')
RMW = ('v_fmac_f32', 'v_dot2c_f32_bf16', 'v_pk_fmac')
NO_DST_S = ('s_cmp', 's_waitcnt', 's_barrier', 's_cbranch', 's_branch', 's_nop', 's_sleep', 's_setprio',
            's_endpgm', 's_bitcmp')

_reg = re.compile(r'^(-|\|)?(abs\()?([vas])(\d+)\)?\|?$')
_rng = re.compile(r'^(-)?([vas])\[(\d+):(\d+)\]$')


def regs_of(op):
    op = op.strip()
    m = _rng.match(op)
    if m:
        return {(m.group(2), i) for i in range(int(m.group(3)), int(m.group(4)) + 1)}
    m = _reg.match(op)
    if m:
        return {(m.group(3), int(m.group(4)))}
    if op == 'vcc':
        return {('s', 'vcc')}
    if op == 'm0':
        return {('s', 'm0')}
    if op == 'exec':
        return {('s', 'exec')}
    return set()


class I:
    def __init__(self, text, tok=None, lds_r=None, lds_w=None, need=None, note=None, fills=None, hoist=False):
        self.text = text
        self.tok = tok
        self.lds_r = lds_r
        self.lds_w = lds_w
        self.need = need or []
        self.note = note
        self.hoist = hoist
        self.fills = fills
        self.r = set()
        self.w = set()
        self.kind = 'other'
        self.srcC = set()
        self.srcAB = set()
        self.parse()

    def parse(self):
        t = self.text.strip()
        if t.endswith(':') or t.startswith('.') or t.startswith(';') or not t:
            self.kind = 'label'
            self.mn = ''
            return
        parts = t.split(None, 1)
        mn = parts[0]
        self.mn = mn
        rest = parts[1] if len(parts) > 1 else ''
        ops = [o.strip() for o in rest.split(',')] if rest else []
        if ops:
            last = ops[-1].split()
            ops[-1] = last[0] if last else ''
            mods = last[1:]
        else:
            mods = []
        R = [regs_of(o) for o in ops]
        allr = lambda lst: set().union(*lst) if lst else set()
        if mn.startswith('v_mfma'):
            self.kind = 'mfma'
            self.w = R[0]
            self.srcAB = R[1] | R[2]
            self.srcC = R[3]
            self.r = self.srcAB | self.srcC
            self.passes = 8 if '32x32x16' in mn else (4 if '16x16x32' in mn else 2)
        elif mn.startswith('v_'):
            base = re.sub(r'_(e32|e64|sdwa|dpp)$', '', mn)
            self.kind = 'trans' if base in TRANS else 'valu'
            self.w = R[0]
            self.r = allr(R[1:])
            if base in RMW or base.startswith('v_permlane'):
                self.r |= R[0]
            if base.startswith('v_permlane'):
                self.w |= R[1]
            if base.startswith('v_cndmask') and len(ops) == 3:
                self.r |= {('s', 'vcc')}
            if base.startswith(('v_add_co', 'v_sub_co', 'v_addc_co')):
                self.w |= R[1]
            self.dot = base.startswith('v_dot')
            self.base = base
        elif mn.startswith('ds_read'):
            self.kind = 'ds'
            self.w = R[0]
            self.r = allr(R[1:])
            if 'd16' in mn:
                self.r |= R[0]
        elif mn.startswith('ds_'):
            self.kind = 'ds'
            self.r = allr(R)
        elif mn.startswith('buffer_load') or mn.startswith('global_load'):
            self.kind = 'vm'
            if 'lds' in mods:
                self.r = allr(R) | {('s', 'm0')}
                self.dma = True
            else:
                self.w = R[0]
                self.r = allr(R[1:])
                if 'd16' in mn:
                    self.r |= R[0]
        elif mn.startswith('buffer_store') or mn.startswith('global_store'):
            self.kind = 'vm'
            self.r = allr(R)
            self.store = True
            data = R[0] if mn.startswith('buffer') else R[1]
            self.wide = data if ('x3' in mn or 'x4' in mn) else set()
        elif mn.startswith(('s_load', 's_memtime', 's_memrealtime')):
            self.kind = 'smem'
            self.w = R[0]
            self.r = allr(R[1:])
        elif mn == 's_barrier':
            self.kind = 'barrier'
        elif mn == 's_waitcnt':
            self.kind = 'wait'
        elif mn.startswith('s_'):
            self.kind = 'salu'
            if mn.startswith(NO_DST_S):
                self.r = allr(R)
            else:
                self.w = R[0]
                self.r = allr(R[1:])
            if mn.startswith(('s_addk', 's_mulk', 's_bitset')):
                self.r |= R[0]
        else:
            raise ValueError('cannot classify: ' + t)

    def slots(self):
        if self.kind == 'label':
            return 0
        if self.kind == 'trans':
            return 2
        if self.kind == 'mfma':
            return 2
        return 1


class Wait(I):
    def __init__(self, *toks):
        I.__init__(self, '; wait ' + ' '.join(toks))
        self.need = list(toks)
        self.kind = 'pseudo'


def insert_waits(prog, ds_age=10):
    out = []
    vm, lg = [], []
    done_ds = {}
    last_read_retired = {}
    pending_read = {}
    last_barrier = -1
    pos = 0
    fill_state = {}

    def retire(q, n):
        while len(q) > n:
            ins, _ = q.pop(0)
            if ins.fills is not None:
                fill_state[ins.fills[0]] = [ins.fills[1], len(out)]
            if ins.lds_r is not None:
                pending_read[ins.lds_r] -= 1
                if pending_read[ins.lds_r] == 0:
                    last_read_retired[ins.lds_r] = len(out)

    for ins in prog:
        if ins.text.startswith(';drain'):
            retire(vm, 0)
            retire(lg, 0)
            continue
        touched = ins.r | ins.w
        nv = nl = None
        for q, which in ((vm, 'v'), (lg, 'l')):
            need = None
            for k, (o, _) in enumerate(q):
                hit = bool(o.w & touched) or (o.tok is not None and o.tok in ins.need)
                if hit:
                    need = len(q) - 1 - k
            if need is not None:
                if which == 'l':
                    k = len(q) - 1 - need
                    while k + 1 < len(q) and pos - q[k + 1][1] >= ds_age:
                        k += 1
                    nl = min(len(q) - 1 - k, 15)
                else:
                    nv = min(need, 63)
        if ins.kind == 'wait':
            m = re.search(r'vmcnt\((\d+)\)', ins.text)
            if m:
                retire(vm, int(m.group(1)))
            m = re.search(r'lgkmcnt\((\d+)\)', ins.text)
            if m:
                retire(lg, int(m.group(1)))
        if nv is not None or nl is not None:
            txt = 's_waitcnt'
            if nv is not None:
                txt += f' vmcnt({nv})'
                retire(vm, nv)
            if nl is not None:
                txt += f' lgkmcnt({nl})'
                retire(lg, nl)
            out.append(I(txt))
            pos += 1
        if ins.kind == 'pseudo':
            continue
        if ins.lds_w is not None:
            slot, shared_before = ins.lds_w
            assert pending_read.get(slot, 0) == 0, f'LDS slot {slot} overwritten while read outstanding: {ins.text}'
            if shared_before and slot in last_read_retired:
                assert last_barrier >= last_read_retired[slot], \
                    f'LDS slot {slot} reused without a barrier after its last read: {ins.text} ({ins.note})'
        if ins.lds_w is not None:
            fill_state[ins.lds_w[0]] = None
        if ins.lds_r is not None:
            st = fill_state.get(ins.lds_r)
            assert st is not None, f'LDS slot {ins.lds_r} read before its fill was waited for: {ins.text}'
            assert not st[0] or last_barrier >= st[1], f'shared slot {ins.lds_r} read without barrier: {ins.text}'
        if ins.kind == 'barrier':
            last_barrier = len(out)
        out.append(ins)
        pos += ins.slots()
        if ins.kind == 'vm':
            vm.append((ins, pos))
            assert len(vm) <= 63, 'vmcnt overflow'
        elif ins.kind == 'ds':
            lg.append((ins, pos))
            if ins.lds_r is not None:
                pending_read[ins.lds_r] = pending_read.get(ins.lds_r, 0) + 1
    return out


def states(ins):
    if ins.kind in ('label', 'pseudo'):
        return 0
    if ins.mn == 's_nop':
        return int(ins.text.split()[1]) + 1
    return 1


def required_gap(p, c):
    vgpr = lambda s: {x for x in s if x[0] in 'va'}
    sgpr = lambda s: {x for x in s if x[0] == 's'}
    g = 0
    pv = p.kind in ('valu', 'trans')
    cv = c.kind in ('valu', 'trans')
    if pv:
        wv = vgpr(p.w)
        ws = sgpr(p.w)
        if c.kind == 'mfma' and wv & c.r:
            g = max(g, 2)
        if p.kind == 'trans' and cv and c.kind != 'trans' and wv & c.r:
            g = max(g, 1)
        if p.kind == 'trans' and c.kind == 'trans' and wv & c.r:
            g = max(g, 1)
        if cv and c.base.startswith('v_permlane') and wv & c.r:
            g = max(g, 2)
        if cv and c.base.startswith(('v_readfirstlane', 'v_readlane')) and wv & c.r:
            g = max(g, 1)
        if cv and '_dpp' in c.mn and wv & c.r:
            g = max(g, 2)
        if ws & c.r:
            if cv:
                g = max(g, 2)
            elif c.kind == 'vm':
                g = max(g, 5)
            elif c.kind == 'salu':
                g = max(g, 1)
        if getattr(p, 'dot', False) and wv & (c.r | c.w) and c.kind != 'label':
            same = cv and c.base == p.base and not (wv & (c.r - c.w))
            if not same:
                g = max(g, 3)
    if p.kind == 'mfma':
        big = {2: 5, 4: 8, 8: 12}[p.passes]
        if c.kind == 'mfma':
            if p.w & c.srcAB:
                g = max(g, big)
            if p.w & c.srcC and not (p.w == c.srcC and p.passes == c.passes):
                g = max(g, {2: 4, 4: 6, 8: 10}[p.passes])
            if p.w == c.srcC and p.passes == 2:
                g = max(g, 2)
            if p.w & c.w and not (p.w & c.srcC):
                g = max(g, big)
        elif c.kind in ('valu', 'trans', 'ds', 'vm'):
            if p.w & (c.r | c.w):
                g = max(g, big)
            if cv and p.srcC & c.w:
                g = max(g, {2: 1, 4: 3, 8: 7}[p.passes])
    if p.kind == 'salu' and ('s', 'm0') in p.w and ('s', 'm0') in c.r and c.kind == 'vm':
        g = max(g, 1)
    if p.kind == 'vm' and getattr(p, 'wide', None) and p.wide & c.w:
        g = max(g, 2)
    return g


def pad_hazards(prog, window=24):
    out = []
    for ins in prog:
        if ins.kind not in ('label', 'pseudo'):
            dist = 0
            short = 0
            for p in reversed(out):
                if dist >= window:
                    break
                if p.kind not in ('label', 'pseudo'):
                    short = max(short, required_gap(p, ins) - dist)
                dist += states(p)
            while short > 0:
                n = min(short, 16)
                out.append(I(f's_nop {n - 1}'))
                short -= n
        out.append(ins)
    return out


def render(prog):
    lines = []
    for ins in prog:
        t = ins.text
        if ins.kind == 'label':
            lines.append(t)
        else:
            lines.append('    ' + t)
    return '\n'.join(lines)


def weave(mfmas, fill, pinned=None, first_gap=0, last_gap=None):
    pinned = pinned or {}
    n = len(mfmas)
    last_gap = n - 1 if last_gap is None else last_gap
    fixed = [sum(i.slots() for i in mfmas[g]) + sum(i.slots() for i in pinned.get(g, [])) for g in range(n)]
    total = sum(i.slots() for i in fill)
    span = list(range(first_gap, last_gap + 1))
    level = (total + sum(fixed[g] for g in span)) / len(span)
    out = []
    k = 0
    credit = 0.0
    for g in range(n):
        out += mfmas[g]
        out += pinned.get(g, [])
        if first_gap <= g <= last_gap:
            credit += level - fixed[g]
            while k < len(fill) and (credit >= fill[k].slots() - 0.5 or g == last_gap):
                out.append(fill[k])
                credit -= fill[k].slots()
                k += 1
                while k < len(fill) and fill[k].mn.startswith(('s_cselect', 's_cbranch')):
                    out.append(fill[k])
                    credit -= fill[k].slots()
                    k += 1
    assert k == len(fill)
    return out


def split_ds_pairs(prog, dist=2):
    out = list(prog)
    k = 1
    while k < len(out):
        ins = out[k]
        if ins.kind == 'ds' and ins.w and out[k - 1].kind == 'ds' and out[k - 1].w and not ins.need:
            j = k
            moved = 0
            while moved < dist and j + 1 < len(out):
                nx = out[j + 1]
                if nx.kind not in ('valu', 'trans') or (nx.r | nx.w) & ins.w or nx.w & ins.r:
                    break
                out[j], out[j + 1] = nx, ins
                j += 1
                moved += nx.slots()
        k += 1
    return out


def hoist_reads(prog, dist):
    out = list(prog)
    for k in range(len(out)):
        ins = out[k]
        if not ins.hoist:
            continue
        j = k
        moved = 0
        while j > 0 and moved < dist:
            pv = out[j - 1]
            stop = pv.kind in ('barrier', 'label', 'pseudo', 'wait') or pv.mn.startswith(('s_cbranch', 'ds_write'))
            if stop or (pv.r | pv.w) & ins.w or pv.w & ins.r:
                break
            out[j - 1], out[j] = ins, pv
            j -= 1
            moved += pv.slots()
    return out


def merge(a, b):
    ta = sum(i.slots() for i in a) or 1
    tb = sum(i.slots() for i in b) or 1
    out = []
    ia = ib = 0
    ca = cb = 0
    while ia < len(a) or ib < len(b):
        if ib >= len(b) or (ia < len(a) and ca * tb <= cb * ta):
            out.append(a[ia]); ca += a[ia].slots(); ia += 1
        else:
            out.append(b[ib]); cb += b[ib].slots(); ib += 1
    return out


def level(prog, free=6.0, vm_cost=2):
    cost = lambda i: vm_cost if i.kind == 'vm' else (0.5 if i.kind == 'salu' else (0.5 if i.kind == 'pseudo' else i.slots()))
    head, gaps = [], []
    for ins in prog:
        if ins.kind == 'mfma':
            gaps.append([ins])
        elif gaps:
            gaps[-1].append(ins)
        else:
            head.append(ins)
    out = list(head)
    carry = []
    remaining = sum(cost(i) for g in gaps for i in g[1:])
    credit = 0.0
    for n, g in enumerate(gaps):
        out.append(g[0])
        carry += g[1:]
        nxt = gaps[n + 1][0] if n + 1 < len(gaps) else None
        budget = max(free, remaining / (len(gaps) - n))
        credit = min(credit, 0.0) + budget
        must = -1
        for k, i in enumerate(carry):
            if nxt is None or (i.w & (nxt.r | nxt.w)) or (i.r & nxt.w):
                must = k
        k = 0
        while k < len(carry) and (k <= must or credit >= cost(carry[k]) - 0.25 or
                                  carry[k].kind == 'label' or carry[k].mn.startswith(('s_cselect', 's_cbranch'))):
            out.append(carry[k])
            credit -= cost(carry[k])
            remaining -= cost(carry[k])
            k += 1
        carry = carry[k:]
    return out


def ds_first(prog):
    out = list(prog)
    for k in range(len(out)):
        ins = out[k]
        if ins.kind != 'ds' or not ins.w:
            continue
        j = k
        while j > 0:
            pv = out[j - 1]
            if pv.kind not in ('valu', 'trans', 'salu', 'vm') or pv.mn.startswith('s_cbranch'):
                break
            if (pv.r | pv.w) & ins.w or pv.w & ins.r:
                break
            j -= 1
        if j < k and out[j - 1].kind in ('mfma', 'ds'):
            out.insert(j, out.pop(k))
    return out
```

```python
import sys, os
sys.path.insert(0, os.path.dirname(os.path.abspath(__file__)))
from asmlib import I, Wait, insert_waits, pad_hazards, render, weave, split_ds_pairs, hoist_reads, merge, level, ds_first

KN = 'parallel_sum__ssm_conv_s5__dense_activation_mish__prompt_kernel'
OPT = dict(prof=0, spin=20000, out_flags='', map='8x4', pf=1, age=24, laf=5, r1=20, r2=28, r3=24, e3=12, fls=28, fll=50, flc=68, ka2=1, nstep=0, split=0, diag='', laj=7, pace=13, lev=6, vmc=2, fine='', fas=-30, fal=12, fac=24, nea=8, fhs=-1, fhl=12, fhc=28, qord=0, lbl=13, lbc=24, ppf=0, hoist=32)
for a in sys.argv[2:]:
    k, v = a.split('=')
    OPT[k] = int(v) if v.lstrip('-').isdigit() else v
PROF = OPT['prof']

WS_EP, WS_AG, WS_A = 0, 0x10000, 0x40000
WS_XC = WS_A + 64 * 176 * 1024
XC_BLK = 2560
WS_FL = WS_XC + 1024 * 3 * XC_BLK
WS_SIZE = WS_FL + 1024 * 512
WS_PROF = 0x1C00000
OOB = 0x7ff00000
SLOT = 16384
TB = 9 * SLOT
T_STAT, T_B1, T_SEG, T_LB, T_H = TB, TB + 1024, TB + 2048, TB + 6144, TB + 8192
LOG2E, LN2, M2LN2 = 0x3fb8aa3b, 0x3f317218, 0xbfb17218

sX, sB, sW1, sCre, sCim, sW2, sWS, sOUT, sTMP = 36, 40, 44, 48, 52, 56, 60, 64, 68
sI, sJ, sW, sROT, sTAG, sE2 = 72, 73, 74, 75, 76, 77
sKC = [78, 79, 80, 81]
sWOFF, sT0, sT1, sXB, sBB, sW1A, sW1B = 82, 83, 84, 85, 86, 87, 88
sAS = 89
sFST = [90, 91, 92, 93]
sSST, sCB, sW2B, sFSEL, sONES, sT3, sJJ, sT2 = 94, 95, 96, 97, 98, 99, 100, 101
sKQ, sPB, sXO = 22, [24, 25, 26], [27, 28, 29, 30]
sSEL = [31, 32, 33, 34]
sFLG = 35
pLRE, pLIM, pBRE, pBIM, pLDT, pDSK, pB1 = 8, 10, 12, 14, 16, 18, 20
srd = lambda b: f's[{b}:{b + 3}]'
vL, t0, t1, t2 = 0, 1, 2, 3
AS = [4, 5, 6, 7]
ASc = [8, 9, 10, 11]
XG = [12, 13, 14, 15]
PG = [16, 17, 18, 19]
QG = [20, 21, 22, 23]
FA0, FAc, RL2, VLN2, VL16, VNM, VRS, t3 = 24, 25, 26, 27, 28, 29, 30, 31
FAd = VNM
NLI, LI, LR, CR, NCI, NCR, L16R, L16I, LSR, LSI, L128R, L128I, WR, WI, PR, PI = range(32, 48)
TT = 48
FACC = [64, 80]
SRE, SIM = 96, 112
X = 128
aS, aF, aP, aOF, aOS, aWO, aXE = 0, 128, 0, 64, 88, 128, 224
STAMP_A = list(range(104, 128)) + list(range(48, 54))
vr = lambda b, n: f'v[{b}:{b + n - 1}]'
ar = lambda b, n: f'a[{b}:{b + n - 1}]'

stamp_names = []
FINE_KEEP = dict(S=['x7', 'c27', 'b0', 'F0'], F0=['b2', 'F0', 'F1'], F2=['F1', 'F2', 'scan'], F3=['scan', 'F3', 'fa0', 'fa1', 'tail'],
                 P3=[], L=['k36', 'sent', 'own', 'rx'])


def fine(phase, items, step):
    if OPT['fine'] == phase:
        for n in range(step - 1, len(items), step):
            items[n] = items[n] + stamp(f'g{n}')
    return items


def stamp(name):
    if PROF == 3 and name not in ('end', 'DUMP'):
        return []
    if OPT['fine'] and not name.startswith('g') and name not in FINE_KEEP[OPT['fine']] + ['end', 'DUMP']:
        return []
    if OPT['diag'] == name:
        return [I('s_memrealtime s[4:5]')]
    return [I(';stamp ' + name)] if PROF else []


def resolve_stamps(prog):
    out = []
    for ins in prog:
        if not ins.text.startswith(';stamp '):
            out.append(ins)
            continue
        name = ins.text.split()[1]
        n = len(stamp_names)
        if n:
            out.append(I(f'v_accvgpr_write_b32 a{STAMP_A[n - 1]}, s{4 + 2 * ((n - 1) & 1)}'))
        if name == 'DUMP':
            out += [I(f'buffer_store_dword a{STAMP_A[k]}, v{t1}, {srd(sWS)}, 0 offen offset:{4 * k}') for k in range(n)]
            continue
        assert n < 29
        stamp_names.append(name)
        out.append(I(f's_mem{"real" if PROF == 2 else ""}time s[{4 + 2 * (n & 1)}:{5 + 2 * (n & 1)}]'))
    return out


def L(text):
    return [I(t.strip()) for t in text.strip().split('\n') if t.strip()]


def mfma(d, a, b, c):
    return I(f'v_mfma_f32_32x32x16_bf16 {d}, {a}, {b}, {c}')


def mksrd(b, lo, size):
    return f's_mov_b32 s{b}, s{lo}\ns_mov_b32 s{b + 1}, s{lo + 1}\ns_mov_b32 s{b + 2}, {size}\ns_mov_b32 s{b + 3}, 0x00020000\n'


slot_shared = {}


def dma_round(name, slot, voffs, rsrc, soff_code, shared):
    out = [I(f's_add_u32 m0, s{sWOFF}, {slot * SLOT}')] + L(soff_code)
    for g in range(4):
        out.append(I(f'buffer_load_dwordx4 v{voffs[g]}, {srd(rsrc)}, s{sT0} offen offset:{1024 * g} lds',
                     tok=name if g == 3 else None,
                     lds_w=(slot, slot_shared.get(slot, False)) if g == 0 else None, note=name,
                     fills=(slot, shared) if g == 3 else None))
    slot_shared[slot] = shared
    return out


def rx(s, slot):
    return dma_round(f'x{s}', slot, XG, sX,
                     f's_add_u32 s{sT0}, s{sROT}, {s}\ns_and_b32 s{sT0}, s{sT0}, 7\n'
                     f's_lshl_b32 s{sT0}, s{sT0}, 7\ns_add_u32 s{sT0}, s{sT0}, s{sXB}', False)


G_SLOT = [4, 5, 6, 7, 8, 0, 1, 2, 3, 4, 5, 6]
W_SLOT = dict(WA0=7, CR0=8, CI0=0, WA1=1, WA2=2, WA3=3, CR1=4, CI1=5, WB0=6, WB1=7, WB2=1)


def rg(g):
    if g < 4:
        return dma_round(f'G{g}', G_SLOT[g], PG, sB,
                         f's_lshl_b32 s{sT0}, s{sKC[g]}, 7\ns_add_u32 s{sT0}, s{sT0}, s{sBB}', True)
    base = sW1A if g < 8 else sW1B
    return dma_round(f'G{g}', G_SLOT[g], QG, sW1,
                     f's_mul_i32 s{sT0}, s{sKC[g & 3]}, {64 * 3584}\ns_add_u32 s{sT0}, s{sT0}, s{base}', True)


def rw(name):
    e = int(name[2])
    if name[0] == 'C':
        code = f's_xor_b32 s{sT0}, s{sCB}, {128 * e}'
        return dma_round(name, W_SLOT[name], PG, sCim if name[1] == 'I' else sCre, code, True)
    if name[1] == 'A':
        code = f's_xor_b32 s{sT0}, s{sJJ}, {e}\ns_lshl_b32 s{sT0}, s{sT0}, 17\ns_add_u32 s{sT0}, s{sT0}, s{sW2B}'
    else:
        code = f's_lshl_b32 s{sT0}, s{sPB[e]}, 16\ns_add_u32 s{sT0}, s{sT0}, s{sW2B}'
        if e == 0:
            code += f'\ns_xor_b32 s{sT0}, s{sT0}, s{sSEL[0]}'
    return dma_round(name, W_SLOT[name], XG, sW2, code, True)


retry_blocks = []


def poll(name, loads, check):
    retry_blocks.append((name, loads, check))
    return L(check) + [I(f's_cbranch_vccnz L_retry_{name}'), I(f'L_back_{name}:')]


def cexp(dr, di, scale, zr, za):
    return L(f"""v_mul_f32 v{dr}, {scale}, v{zr}
        v_mul_f32 v{di}, {scale}, v{za}
        v_exp_f32 v{dr}, v{dr}
        v_fract_f32 v{di}, v{di}
        v_cos_f32 v{t3}, v{di}
        v_sin_f32 v{di}, v{di}
        v_mul_f32 v{di}, v{dr}, v{di}
        v_mul_f32 v{dr}, v{dr}, v{t3}""")


def cmul_add(dr, di, ar_, ai, br, bi, cr=None, ci=None):
    if cr is None:
        head = f'v_mul_f32 v{dr}, v{ar_}, v{br}\nv_mul_f32 v{di}, v{ar_}, v{bi}'
    else:
        head = f'v_fma_f32 v{dr}, v{ar_}, v{br}, v{cr}\nv_fma_f32 v{di}, v{ar_}, v{bi}, v{ci}'
    return L(head + f'\nv_fma_f32 v{dr}, -v{ai}, v{bi}, v{dr}\nv_fmac_f32 v{di}, v{ai}, v{br}')


def mish(b, voff=VL16, quarters=range(4)):
    A = FACC[b & 1]
    out = []
    for q in quarters:
        rs = range(4 * q, 4 * q + 4)
        out.append(I(f'ds_read_b128 {vr(TT + 4 * q, 4)}, v{t2} offset:{T_B1 - TB + 128 * b + 16 * q}', hoist=True))
        out += [I(f'v_fmac_f32 v{TT + r}, v{A + r}, v{RL2}') for r in rs]
        out += [I(f'v_exp_f32 v{A + r}, v{TT + r}') for r in rs]
        out += [I(f'v_add_f32 v{A + r}, 1.0, v{A + r}') for r in rs]
        out += [I(f'v_fma_f32 v{A + r}, v{A + r}, v{A + r}, 1.0') for r in rs]
        out += [I(f'v_rcp_f32 v{A + r}, v{A + r}') for r in rs]
        out += [I(f'v_fmamk_f32 v{A + r}, v{A + r}, {M2LN2:#x}, v{VLN2}') for r in rs]
        out += [I(f'v_mul_f32 v{TT + r}, v{TT + r}, v{A + r}') for r in rs]
        out += [I(f'v_cvt_pk_bf16_f32 v{A + p}, v{TT + 2 * p}, v{TT + 2 * p + 1}') for p in (2 * q, 2 * q + 1)]
        if q & 1:
            fr = q >> 1
            out.append(I(f'buffer_store_dwordx4 {vr(A + 4 * fr, 4)}, v{voff}, {srd(sWS)}, s{sFST[b]} offen '
                         f'offset:{1024 * fr} sc1', tok=f'stF{b}' if fr else None))
            if b < 3:
                out += [I(f'v_accvgpr_write_b32 a{aOF + 8 * b + 4 * fr + e}, v{A + 4 * fr + e}') for e in range(4)]
    return out


def mish_pk(b, voff, halves=range(2)):
    A = FACC[b & 1]
    out = []
    for q in range(2 * len(halves)):
        out.append(I(f'ds_read_b128 {vr(TT + 4 * q, 4)}, v{t2} offset:{T_B1 - TB + 128 * b + 16 * q}', hoist=True))
    for h in halves:
        ps = range(8 * h, 8 * h + 8, 2)
        rs = range(8 * h, 8 * h + 8)
        out += [I(f'v_pk_fma_f32 {vr(TT + p, 2)}, {vr(A + p, 2)}, {vr(RL2, 2)}, {vr(TT + p, 2)} op_sel_hi:[1,0,1]') for p in ps]
        out += [I(f'v_exp_f32 v{A + r}, v{TT + r}') for r in rs]
        out += [I(f'v_pk_add_f32 {vr(A + p, 2)}, {vr(A + p, 2)}, 1.0 op_sel_hi:[1,0]') for p in ps]
        out += [I(f'v_pk_fma_f32 {vr(A + p, 2)}, {vr(A + p, 2)}, {vr(A + p, 2)}, 1.0 op_sel_hi:[1,1,0]') for p in ps]
        out += [I(f'v_rcp_f32 v{A + r}, v{A + r}') for r in rs]
        out += [I(f'v_pk_fma_f32 {vr(A + p, 2)}, {vr(A + p, 2)}, s[{sKC[0]}:{sKC[1]}], {vr(RL2, 2)} '
                  f'op_sel:[0,0,1] op_sel_hi:[1,0,1]') for p in ps]
        out += [I(f'v_pk_mul_f32 {vr(TT + p, 2)}, {vr(TT + p, 2)}, {vr(A + p, 2)}') for p in ps]
        out += [I(f'v_cvt_pk_bf16_f32 v{A + p // 2}, v{TT + p}, v{TT + p + 1}') for p in ps]
        out.append(I(f'buffer_store_dwordx4 {vr(A + 4 * h, 4)}, v{voff}, {srd(sWS)}, s{sFST[b]} offen '
                     f'offset:{1024 * h} sc1', tok=f'stF{b}' if h else None))
        if b < 3:
            out += [I(f'v_accvgpr_write_b32 a{aOF + 8 * b + 4 * h + e}, v{A + 4 * h + e}') for e in range(4)]
    return out


_weave = weave


def weave(*a):
    out = _weave(*a)
    return ds_first(level(out, OPT['lev'], OPT['vmc'])) if OPT['lev'] else out


P = []
if OPT['map'] == '8x4':
    ids = f"""s_and_b32 s{sKQ}, s2, 3
        s_bfe_u32 s{sJJ}, s2, 0x20003
        s_lshr_b32 s{sI}, s2, 5
        s_bfe_u32 s{sT0}, s2, 0x10002
        s_lshl_b32 s{sROT}, s{sT0}, 1
        s_lshl_b32 s{sT0}, s{sT0}, 3
        s_and_b32 s{sT1}, s{sI}, 1
        s_or_b32 s{sI}, s{sI}, s{sT0}
        s_add_u32 s{sROT}, s{sROT}, s{sT1}
        s_add_u32 s{sROT}, s{sROT}, s{sKQ}
        s_lshl_b32 s{sROT}, s{sROT}, 1
        s_and_b32 s{sROT}, s{sROT}, 7"""
else:
    ids = f"""s_and_b32 s{sKQ}, s2, 1
        s_lshl_b32 s{sKQ}, s{sKQ}, 1
        s_lshr_b32 s{sT0}, s2, 7
        s_or_b32 s{sKQ}, s{sKQ}, s{sT0}
        s_bfe_u32 s{sJJ}, s2, 0x20003
        s_bfe_u32 s{sI}, s2, 0x20005
        s_bfe_u32 s{sT0}, s2, 0x20001
        s_add_u32 s{sROT}, s{sT0}, s{sKQ}
        s_lshl_b32 s{sT0}, s{sT0}, 2
        s_or_b32 s{sI}, s{sI}, s{sT0}
        s_lshl_b32 s{sROT}, s{sROT}, 1
        s_and_b32 s{sROT}, s{sROT}, 7"""
ws_load = f's_load_dwordx2 s[{sWS}:{sWS + 1}], s[0:1], 120'
more_loads = f"""s_load_dwordx8 s[{pLRE}:{pLRE + 7}], s[0:1], 8
s_load_dwordx4 s[{pLDT}:{pLDT + 3}], s[0:1], 56
s_load_dwordx2 s[{pB1}:{pB1 + 1}], s[0:1], 88
s_load_dwordx2 s[{sW1}:{sW1 + 1}], s[0:1], 80
s_load_dwordx2 s[{sCre}:{sCre + 1}], s[0:1], 40
s_load_dwordx2 s[{sCim}:{sCim + 1}], s[0:1], 48
s_load_dwordx2 s[{sW2}:{sW2 + 1}], s[0:1], 96
s_load_dwordx2 s[{sOUT}:{sOUT + 1}], s[0:1], 104
"""
SUM, SQ = [TT + 8, TT + 9], [TT + 10, TT + 11]
sizes = ((sX, 2097152), (sB, 524288), (sW1, 1835008), (sCre, 524288), (sCim, 524288), (sW2, 1835008),
         (sWS, (WS_PROF + 0x40000) if PROF else WS_SIZE), (sOUT, 4194304))
P += L(f"""
s_cmp_ge_u32 s2, 256
s_cbranch_scc1 L_end
{'s_memtime s[98:99]' if PROF else ''}
{'s_memrealtime s[90:91]' if PROF or OPT['diag'] else ''}
s_load_dwordx2 s[{sX}:{sX + 1}], s[0:1], 0
{'' if OPT['ka2'] else ws_load}
s_getpc_b64 s[{sTMP}:{sTMP + 1}]
v_lshrrev_b32 v{t0}, 6, v0
v_and_b32 v{vL}, 63, v0
s_and_b32 s{sTMP}, s{sTMP}, 0xffffff80
v_readfirstlane_b32 s{sW}, v{t0}
s_mov_b32 s{sTMP + 2}, L_code_end-{KN}
s_mov_b32 s{sTMP + 3}, 0x00020000
s_lshr_b32 s{sT0}, s2, 3
s_lshl_b32 s{sT0}, s{sT0}, 2
s_add_u32 s{sT0}, s{sT0}, s{sW}
s_lshl_b32 s{sT0}, s{sT0}, 9
v_and_b32 v{t1}, 3, v{vL}
v_lshlrev_b32 v{t1}, 7, v{t1}
buffer_load_dword v{t3}, v{t1}, {srd(sTMP)}, s{sT0} offen
{'' if OPT['ka2'] else more_loads}
v_lshrrev_b32 v{t0}, 3, v{vL}
v_lshrrev_b32 v{t1}, 4, v{vL}
v_xor_b32 v{t1}, v{t1}, v{vL}
v_and_b32 v{t1}, 7, v{t1}
v_lshlrev_b32 v{t1}, 4, v{t1}
v_lshl_add_u32 v{PG[0]}, v{t0}, 10, v{t1}
v_lshrrev_b32 v{t2}, 5, v{vL}
v_mul_u32_u24 v{t2}, {12 * 1024}, v{t2}
v_add_u32 v{XG[0]}, v{PG[0]}, v{t2}
v_xor_b32 v{XG[1]}, 64, v{XG[0]}
v_add_u32 v{XG[2]}, {6 * 1024}, v{XG[0]}
v_add_u32 v{XG[3]}, {9 * 1024}, v{XG[1]}
v_add_u32 v{XG[1]}, {3 * 1024}, v{XG[1]}
s_lshl_b32 s{sWOFF}, s{sW}, 12
{ids}
s_lshl_b32 s{sXB}, s{sI}, 17
s_lshl_b32 s{sT0}, s{sW}, 15
s_add_u32 s{sXB}, s{sXB}, s{sT0}
""" + ''.join(f's_mov_b32 s{b + 2}, {n}\ns_mov_b32 s{b + 3}, 0x00020000\n' for b, n in sizes) + f"""
s_waitcnt lgkmcnt(0)
{'v_accvgpr_write_b32 a62, s98' if PROF else ''}
{'v_accvgpr_write_b32 a63, s90' if PROF else ''}
{'s_mov_b32 s23, 0' if PROF else ''}
{'s_mov_b32 s23, s90' if OPT['diag'] else ''}
""")
P += stamp('ka') if OPT['diag'] else []
P += rx(0, 0) + (L(ws_load + '\n' + more_loads) if OPT['ka2'] else []) + rx(1, 1) + rx(2, 2)
if OPT['ka2']:
    P.append(I('s_waitcnt lgkmcnt(0)'))
P += L(f"""
s_load_dword s{sE2}, s[{sWS}:{sWS + 1}], {WS_EP}
v_and_b32 v{t0}, 31, v{vL}
s_lshl_b32 s{sJ}, s{sKQ}, 2
s_or_b32 s{sJ}, s{sJ}, s{sJJ}
s_lshl_b32 s{sT0}, s{sJ}, 6
v_lshl_add_u32 v{t1}, v{t0}, 1, s{sT0}
global_load_ushort v{LR}, v{t1}, s[{pLRE}:{pLRE + 1}]
global_load_ushort v{LI}, v{t1}, s[{pLIM}:{pLIM + 1}]
global_load_ushort v{NLI}, v{t1}, s[{pLDT}:{pLDT + 1}]
v_lshrrev_b32 v{t1}, 5, v{vL}
v_bfe_u32 v{t2}, v{vL}, 1, 3
v_xor_b32 v{t1}, v{t1}, v{t2}
v_lshlrev_b32 v{t1}, 4, v{t1}
v_lshl_add_u32 v{AS[0]}, v{t0}, 7, v{t1}
v_xor_b32 v{AS[1]}, 32, v{AS[0]}
v_xor_b32 v{AS[2]}, 64, v{AS[0]}
v_xor_b32 v{AS[3]}, 0x60, v{AS[0]}
v_add_u32 v{ASc[0]}, s{sWOFF}, v{AS[0]}
v_add_u32 v{ASc[1]}, s{sWOFF}, v{AS[1]}
v_add_u32 v{ASc[2]}, s{sWOFF}, v{AS[2]}
v_add_u32 v{ASc[3]}, s{sWOFF}, v{AS[3]}
s_mov_b32 s{sONES}, 0x3f803f80
v_mov_b32 v{SUM[0]}, 0
v_mov_b32 v{SUM[1]}, 0
v_mov_b32 v{SQ[0]}, 0
v_mov_b32 v{SQ[1]}, 0
s_lshl_b32 s{sT0}, s{sW}, 9
s_add_u32 s{sT0}, s{sT0}, {T_SEG}
v_lshl_add_u32 v{t0}, v{vL}, 3, s{sT0}""")
P.append(I(f'ds_write_b64 v{t0}, {vr(SUM[0], 2)}', tok='zero'))
P += rx(3, 3) + [I('s_waitcnt lgkmcnt(0)')]
mid = L(f"""
s_and_b32 s{sT3}, s{sW}, 1
s_mul_i32 s{sT2}, s{sKQ}, 7
s_lshl_b32 s{sW1A}, s{sJJ}, 1
s_add_u32 s{sPB[0]}, s{sW1A}, 1
s_cmp_eq_u32 s{sJJ}, 3
s_cselect_b32 s{sPB[0]}, 3, s{sPB[0]}
s_cselect_b32 s{sFSEL}, 64, 0
s_add_u32 s{sW1A}, s{sW1A}, s{sT2}
s_add_u32 s{sW1B}, s{sPB[0]}, s{sT2}
s_lshl_b32 s{sW1A}, s{sW1A}, 7
s_lshl_b32 s{sW1B}, s{sW1B}, 7
s_cmp_ge_u32 s{sW}, 2
s_cselect_b32 s{sT2}, s{sW1B}, s{sW1A}
s_cselect_b32 s{sT1}, s{sFSEL}, 0
s_add_u32 s{sT2}, s{sT2}, s{sT1}
s_lshl_b32 s{sT1}, s{sT3}, 6
s_xor_b32 s{sT2}, s{sT2}, s{sT1}
v_and_b32 v{t1}, 3, v{vL}
v_bfe_u32 v{t2}, v{vL}, 2, 2
v_lshl_add_u32 v{t1}, v{t2}, 3, v{t1}
v_bfe_u32 v{t2}, v{vL}, 4, 1
v_lshl_add_u32 v{t1}, v{t2}, 2, v{t1}
v_lshl_add_u32 v{t1}, v{t1}, 1, s{sT2}
global_load_ushort v{PR}, v{t1}, s[{pB1}:{pB1 + 1}]
s_cmp_eq_u32 s{sT3}, 1
s_cselect_b32 s{sB}, s{pBIM}, s{pBRE}
s_cselect_b32 s{sB + 1}, s{pBIM + 1}, s{pBRE + 1}
s_mul_i32 s{sT3}, s{sT3}, {32 * 3584}
s_add_u32 s{sW1A}, s{sW1A}, s{sT3}
s_add_u32 s{sW1B}, s{sW1B}, s{sT3}
s_lshl_b32 s{sBB}, s{sJ}, 15
s_lshr_b32 s{sT1}, s{sW}, 1
s_add_u32 s{sT1}, s{sT1}, s{sROT}
s_and_b32 s{sKC[0]}, s{sT1}, 7
s_add_u32 s{sT1}, s{sT1}, 2
s_and_b32 s{sKC[1]}, s{sT1}, 7
s_add_u32 s{sT1}, s{sT1}, 2
s_and_b32 s{sKC[2]}, s{sT1}, 7
s_add_u32 s{sT1}, s{sT1}, 2
s_and_b32 s{sKC[3]}, s{sT1}, 7
v_xor_b32 v{PG[1]}, 64, v{PG[0]}
v_add_u32 v{PG[2]}, {14 * 1024}, v{PG[0]}
v_add_u32 v{PG[3]}, {21 * 1024}, v{PG[1]}
v_add_u32 v{PG[1]}, {7 * 1024}, v{PG[1]}
v_bfe_u32 v{t0}, v{vL}, 2, 1
v_lshrrev_b32 v{t1}, 5, v{vL}
v_and_b32 v{t2}, 1, v{vL}
v_lshlrev_b32 v{t2}, 4, v{t2}
v_mov_b32 v{VNM}, 0x3f80
v_lshlrev_b32 v{t2}, v{t2}, v{VNM}
v_cmp_eq_u32 vcc, v{t0}, v{t1}
v_bfe_u32 v{t0}, v{vL}, 1, 1
v_bfe_u32 v{t1}, v{vL}, 3, 2
v_cndmask_b32 v{t2}, 0, v{t2}, vcc
v_lshl_add_u32 v{t0}, v{t1}, 1, v{t0}
""")
for q in range(0, 8, 2):
    mid += L(f"""v_cmp_eq_u32 vcc, {q}, v{t0}
        v_cmp_eq_u32 s[{sSEL[1]}:{sSEL[2]}], {q + 1}, v{t0}
        s_nop 0
        v_cndmask_b32 v{TT + q}, 0, v{t2}, vcc
        v_cndmask_b32 v{TT + q + 1}, 0, v{t2}, s[{sSEL[1]}:{sSEL[2]}]""")
mid += L(f"""
v_lshrrev_b32 v{t1}, 3, v{vL}
v_mul_u32_u24 v{t1}, 3584, v{t1}
v_bfe_u32 v{t2}, v{vL}, 4, 1
v_lshlrev_b32 v{t2}, 2, v{t2}
v_xor_b32 v{t2}, v{t2}, v{vL}
v_and_b32 v{t2}, 7, v{t2}
v_lshl_add_u32 v{QG[0]}, v{t2}, 4, v{t1}
v_add_u32 v{QG[1]}, {27648}, v{QG[0]}
v_add_u32 v{QG[2]}, {2 * 27648}, v{QG[0]}
v_add_u32 v{QG[3]}, {3 * 27648}, v{QG[0]}
""")
late = L(f"""
s_mul_i32 s{sE2}, s{sE2}, 1664525
s_add_u32 s{sE2}, s{sE2}, 1013904226
s_or_b32 s{sTAG}, s{sE2}, 1
v_bfe_u32 v{t1}, v{vL}, 2, 2
v_lshrrev_b32 v{t2}, 5, v{vL}
v_lshl_add_u32 v{t2}, v{t2}, 3, v{t1}
v_lshlrev_b32 v{FA0}, 7, v{t2}
v_lshrrev_b32 v{t1}, 1, v{t1}
v_lshl_add_u32 v{FA0}, v{t1}, 6, v{FA0}
v_bfe_u32 v{t1}, v{vL}, 4, 1
v_lshl_add_u32 v{FA0}, v{t1}, 5, v{FA0}
v_and_b32 v{t1}, 3, v{vL}
v_lshl_add_u32 v{FA0}, v{t1}, 3, v{FA0}
v_lshlrev_b32 v{VL16}, 4, v{vL}
v_mov_b32 v{VLN2}, {LN2:#x}
s_cmp_eq_u32 s{sPB[0]}, 1
s_cselect_b32 s{sPB[1]}, 3, 1
s_cmp_eq_u32 s{sPB[0]}, 5
s_cselect_b32 s{sPB[2]}, 3, 5
s_lshl_b32 s{sSEL[0]}, s{sFSEL}, 9
s_lshl_b32 s{sAS}, s{sI}, 2
s_add_u32 s{sAS}, s{sAS}, s{sW}
s_lshl_b32 s{sAS}, s{sAS}, 2
s_add_u32 s{sAS}, s{sAS}, s{sKQ}
s_lshl_b32 s{sFLG}, s{sAS}, 11
s_add_u32 s{sFLG}, s{sFLG}, {WS_FL}
s_mul_i32 s{sAS}, s{sAS}, {44 * 1024}
s_add_u32 s{sAS}, s{sAS}, {WS_A}
s_lshl_b32 s{sT2}, s{sJJ}, 13
s_add_u32 s{sFST[0]}, s{sAS}, s{sT2}
s_add_u32 s{sFST[1]}, s{sFST[0]}, 2048
s_lshl_b32 s{sT2}, s{sPB[0]}, 12
s_add_u32 s{sFST[3]}, s{sAS}, s{sT2}
s_lshl_b32 s{sT2}, s{sFSEL}, 5
s_add_u32 s{sFST[2]}, s{sFST[3]}, s{sT2}
s_add_u32 s{sFST[3]}, s{sFST[3]}, 2048
s_lshl_b32 s{sT2}, s{sJJ}, 12
s_add_u32 s{sSST}, s{sAS}, s{sT2}
s_add_u32 s{sSST}, s{sSST}, {28 * 1024}
s_xor_b32 s{sT2}, s{sW}, s{sKQ}
s_lshl_b32 s{sT2}, s{sT2}, 15
s_lshl_b32 s{sCB}, s{sJJ}, 17
s_add_u32 s{sCB}, s{sCB}, s{sT2}
s_lshl_b32 s{sT2}, s{sKQ}, 8
s_add_u32 s{sCB}, s{sCB}, s{sT2}
s_lshr_b32 s{sT2}, s{sJJ}, 1
s_lshl_b32 s{sT2}, s{sT2}, 7
s_add_u32 s{sCB}, s{sCB}, s{sT2}
s_mul_i32 s{sW2B}, s{sKQ}, {448 * 1024}
s_lshr_b32 s{sT2}, s{sW}, 1
s_lshl_b32 s{sT2}, s{sT2}, 15
s_add_u32 s{sW2B}, s{sW2B}, s{sT2}
s_lshl_b32 s{sT2}, s{sJJ}, 8
s_add_u32 s{sW2B}, s{sW2B}, s{sT2}
s_lshr_b32 s{sT2}, s{sKQ}, 1
s_xor_b32 s{sT2}, s{sT2}, s{sW}
s_and_b32 s{sT2}, s{sT2}, 1
s_lshl_b32 s{sT2}, s{sT2}, 7
s_add_u32 s{sW2B}, s{sW2B}, s{sT2}
s_lshl_b32 s{sT2}, s{sI}, 4
s_add_u32 s{sT2}, s{sT2}, s{sJJ}
s_lshl_b32 s{sT2}, s{sT2}, 2
s_add_u32 s{sT2}, s{sT2}, s{sW}""")
for b in range(4):
    late += L(f"""s_xor_b32 s{sT3}, s{sKQ}, {b}
        s_lshl_b32 s{sT3}, s{sT3}, 4
        s_add_u32 s{sT3}, s{sT3}, s{sT2}
        s_mul_i32 s{sT3}, s{sT3}, {3 * XC_BLK}
        s_add_u32 s{sXO[b]}, s{sT3}, {WS_XC + (b - 1) * XC_BLK if b else WS_XC}""")
late += L(f"""s_add_u32 s{sSEL[2]}, s{sXO[0]}, {XC_BLK}
    s_add_u32 s{sSEL[3]}, s{sXO[0]}, {2 * XC_BLK}
    s_and_b32 s{sT3}, s{sJJ}, 1
    s_sub_u32 s{sSEL[1]}, 6, s{sT3}""")
pf = []
if OPT['pf'] == 2:
    late += L(f"""
s_and_b32 s{sT1}, s{sI}, 7
s_lshl_b32 s{sT2}, s{sT1}, 1
s_add_u32 s{sT2}, s{sT2}, s{sW}
s_mul_i32 s{sT2}, s{sT2}, 28
s_mul_i32 s{sT3}, s{sKQ}, 448
s_add_u32 s{sT2}, s{sT2}, s{sT3}
s_lshl_b32 s{sT2}, s{sT2}, 2
s_add_u32 s{sT2}, s{sT2}, s{sJJ}
s_lshl_b32 s{sT3}, s{sJJ}, 3
s_add_u32 s{sT3}, s{sT3}, s{sT1}
s_lshl_b32 s{sT3}, s{sT3}, 6
s_add_u32 s{sT3}, s{sT3}, s{sKQ}
s_cmp_lt_u32 s{sW}, 2
s_cselect_b32 s{sT2}, s{sT2}, s{sT3}
s_cselect_b32 s{sT3}, 56, 32
s_cselect_b32 s{sTMP}, s{sW2}, s{sCre}
s_cselect_b32 s{sTMP + 1}, s{sW2 + 1}, s{sCre + 1}
s_cselect_b32 s{sTMP + 2}, s{sW2 + 2}, s{sCre + 2}
s_cmp_eq_u32 s{sW}, 3
s_cselect_b32 s{sTMP}, s{sCim}, s{sTMP}
s_cselect_b32 s{sTMP + 1}, s{sCim + 1}, s{sTMP + 1}""")
elif OPT['pf']:
    late += L(f"""
s_mul_i32 s{sT2}, s{sKQ}, 448
s_mul_i32 s{sT3}, s{sI}, 28
s_add_u32 s{sT2}, s{sT2}, s{sT3}
s_lshl_b32 s{sT2}, s{sT2}, 2
s_add_u32 s{sT2}, s{sT2}, s{sJJ}
s_lshl_b32 s{sT3}, s{sJJ}, 4
s_add_u32 s{sT3}, s{sT3}, s{sI}
s_lshl_b32 s{sT3}, s{sT3}, 5
s_add_u32 s{sT3}, s{sT3}, s{sKQ}
s_cmp_eq_u32 s{sW}, 0
s_cselect_b32 s{sT2}, s{sT2}, s{sT3}
s_cselect_b32 s{sT3}, 56, 16
s_cselect_b32 s{sTMP}, s{sW2}, s{sCre}
s_cselect_b32 s{sTMP + 1}, s{sW2 + 1}, s{sCre + 1}
s_cselect_b32 s{sTMP + 2}, s{sW2 + 2}, s{sCre + 2}
s_cmp_eq_u32 s{sW}, 2
s_cselect_b32 s{sTMP}, s{sCim}, s{sTMP}
s_cselect_b32 s{sTMP + 1}, s{sCim + 1}, s{sTMP + 1}
s_cmp_eq_u32 s{sW}, 3
s_cselect_b32 s{sT3}, 0, s{sT3}""")
if OPT['pf']:
    late += L(f"""s_lshl_b32 s{sT2}, s{sT2}, 8
v_lshrrev_b32 v{t0}, 1, v{vL}
v_and_b32 v{t1}, 1, v{vL}
v_lshlrev_b32 v{t1}, 7, v{t1}
v_lshl_add_u32 v{t0}, v{t0}, 10, v{t1}
v_add_u32 v{t0}, s{sT2}, v{t0}
v_mov_b32 v{t1}, {OOB:#x}
v_cmp_gt_u32 vcc, s{sT3}, v{vL}
v_cndmask_b32 v{PI}, v{t1}, v{t0}, vcc""")
    pf = L(f'buffer_load_dword v{PI}, v{PI}, {srd(sTMP)}, 0 offen')

Z = FACC[0]
later = L(f"""
v_lshlrev_b32 v{NLI}, 16, v{NLI}
v_mul_f32 v{NLI}, {LOG2E:#x}, v{NLI}
v_exp_f32 v{NLI}, v{NLI}
v_lshlrev_b32 v{Z + 2}, 16, v{LR}
v_lshlrev_b32 v{Z + 3}, 16, v{LI}
v_cvt_pk_bf16_f32 v{NLI}, v{NLI}, v{NLI}
v_lshlrev_b32 v{NLI}, 16, v{NLI}
v_mul_f32 v{Z}, v{NLI}, v{Z + 2}
v_mul_f32 v{Z + 1}, v{NLI}, v{Z + 3}
v_mul_f32 v{Z}, {LOG2E:#x}, v{Z}
v_mul_f32 v{Z + 1}, 0xbe22f983, v{Z + 1}""")
later += cexp(LR, LI, '1.0', Z, Z + 1)
later += L(f"""
v_mul_f32 v{Z + 4}, v{Z + 2}, v{Z + 2}
v_fmac_f32 v{Z + 4}, v{Z + 3}, v{Z + 3}
v_rcp_f32 v{Z + 4}, v{Z + 4}
v_add_f32 v{Z + 5}, -1.0, v{LR}
v_sub_f32 v{NLI}, 0, v{LI}
v_add_f32 v{Z + 4}, v{Z + 4}, v{Z + 4}
v_mul_f32 v{CR}, v{Z + 5}, v{Z + 2}
v_fmac_f32 v{CR}, v{NLI}, v{Z + 3}
v_mul_f32 v{NCI}, v{Z + 5}, v{Z + 3}
v_fmac_f32 v{NCI}, v{LI}, v{Z + 2}
v_mul_f32 v{CR}, v{CR}, v{Z + 4}
v_mul_f32 v{NCI}, v{NCI}, v{Z + 4}
v_sub_f32 v{NCR}, 0, v{CR}""")
later += cexp(L16R, L16I, '0x41800000', Z, Z + 1)
later += cexp(L128R, L128I, '0x43000000', Z, Z + 1)
later += L(f"""
v_lshrrev_b32 v{Z + 6}, 5, v{vL}
s_lshl_b32 s{sT2}, s{sW}, 1
v_add_u32 v{Z + 6}, s{sT2}, v{Z + 6}
v_cvt_f32_u32 v{Z + 6}, v{Z + 6}
v_mul_f32 v{Z + 7}, 0x41800000, v{Z + 6}
v_sub_f32 v{Z + 6}, 0x40e00000, v{Z + 6}
v_mul_f32 v{Z + 6}, 0x43800000, v{Z + 6}""")
later += cexp(LSR, LSI, f'v{Z + 7}', Z, Z + 1)
later += cexp(WR, WI, f'v{Z + 6}', Z, Z + 1)
later += L(f"""v_lshlrev_b32 v{PR}, 16, v{PR}
v_mul_f32 v{PR}, {LOG2E:#x}, v{PR}
v_and_b32 v{t1}, 31, v{vL}
s_lshl_b32 s{sT1}, s{sW}, 7
s_add_u32 s{sT1}, s{sT1}, {T_B1}
v_lshl_add_u32 v{t1}, v{t1}, 2, s{sT1}
ds_write_b32 v{t1}, v{PR}""")
later = mid + later + [I(f'v_accvgpr_write_b32 a{aXE + r}, 0') for r in range(17)]
cuts = [0]
for n in range(1, 7):
    c = n * len(later) // 7
    while later[c].mn.startswith(('s_cselect', 'v_cndmask', 's_nop')) or later[c - 1].mn.startswith('v_cmp'):
        c += 1
    cuts.append(c)
cuts.append(len(later))

for s in range(8):
    P.append(Wait(f'x{s}'))
    if s == 0:
        P += stamp('x0')
    for q in range(4):
        P.append(I(f'ds_read_b128 {vr(X + 16 * s + 4 * q, 4)}, v{ASc[q]} offset:{(s & 3) * SLOT}', lds_r=s & 3,
                   tok=f'xr{s}' if q == 3 else None))
    P += later[cuts[s]:cuts[s + 1]] if s < 7 else []
    if s >= 4:
        P += rg(s - 4)
    for r in range(16):
        if r == 4 and s < 4:
            P += [Wait(f'xr{s}')] + rx(s + 4, s)
        P.append(I(f'v_dot2c_f32_bf16 v{SUM[r & 1]}, s{sONES}, v{X + 16 * s + r}'))
        P.append(I(f'v_dot2c_f32_bf16 v{SQ[r & 1]}, v{X + 16 * s + r}, v{X + 16 * s + r}'))
P += stamp('x7')
P += L(f"""
v_add_f32 v{SUM[0]}, v{SUM[0]}, v{SUM[1]}
v_add_f32 v{SQ[0]}, v{SQ[0]}, v{SQ[1]}
v_mov_b32 v{SUM[1]}, v{SUM[0]}
v_mov_b32 v{SQ[1]}, v{SQ[0]}
v_permlane32_swap_b32 v{SUM[1]}, v{SUM[0]}
v_permlane32_swap_b32 v{SQ[1]}, v{SQ[0]}
v_add_f32 v{SUM[0]}, v{SUM[0]}, v{SUM[1]}
v_add_f32 v{SQ[0]}, v{SQ[0]}, v{SQ[1]}
v_mul_f32 v{SUM[0]}, 0x3b000000, v{SUM[0]}
v_mul_f32 v{SQ[0]}, 0x3b000000, v{SQ[0]}
v_fma_f32 v{SQ[0]}, -v{SUM[0]}, v{SUM[0]}, v{SQ[0]}
v_max_f32 v{SQ[0]}, 0, v{SQ[0]}
v_cvt_pk_bf16_f32 v{t0}, v{SUM[0]}, v{SQ[0]}
v_lshlrev_b32 v{VNM}, 16, v{t0}
v_sub_f32 v{SIM}, 0, v{VNM}
v_sub_f32 v{SIM + 1}, 0, v{VNM}
""")
P += [I(f'v_mov_b64 {vr(SIM + 2 * q, 2)}, {vr(SIM, 2)}') for q in range(1, 8)]

DB = [FACC[0], FACC[1], SRE]
items = []
for q in range(16):
    d = vr(DB[q % 3], 16)
    for h in range(2):
        it = [mfma(d, vr(TT + 4 * h, 4), vr(X + 8 * q + 4 * h, 4), vr(SIM, 16) if h == 0 else d)]
        if q >= 2:
            o = q - 2
            it += [I(f'v_cvt_pk_bf16_f32 v{X + 8 * o + 4 * h + e}, v{DB[o % 3] + 8 * h + 2 * e}, '
                     f'v{DB[o % 3] + 8 * h + 2 * e + 1}') for e in range(4)]
        items.append(it)
fill = L(f"""
v_and_b32 v{t0}, 0xffff0000, v{t0}
v_add_f32 v{t0}, 0x3727c5ac, v{t0}
v_cvt_pk_bf16_f32 v{t0}, v{t0}, v{t0}
v_lshlrev_b32 v{t0}, 16, v{t0}
v_sqrt_f32 v{t0}, v{t0}
v_and_b32 v{t1}, 3, v{vL}
v_cvt_pk_bf16_f32 v{t0}, v{t0}, v{t0}
v_lshlrev_b32 v{t0}, 16, v{t0}
v_rcp_f32 v{VRS}, v{t0}
v_bfe_u32 v{t2}, v{vL}, 3, 2
v_lshl_add_u32 v{t1}, v{t2}, 2, v{t1}
v_bfe_u32 v{t2}, v{vL}, 2, 1
v_lshl_add_u32 v{t1}, v{t2}, 4, v{t1}
s_lshl_b32 s{sT1}, s{sW}, 8
s_add_u32 s{sT1}, s{sT1}, {T_STAT}
v_lshl_add_u32 v{t1}, v{t1}, 2, s{sT1}
v_mul_f32 v{RL2}, {LOG2E:#x}, v{VRS}
ds_write_b32 v{t1}, v{VNM}
""")
fill.append(I(f'ds_write_b32 v{t1}, v{VRS} offset:128', tok='tabw'))
LA_S, LA_F = 3, OPT['laf']


def s_addr(slot):
    return [I(f'v_add_u32 v{ASc[q]}, {slot * SLOT}, v{AS[q]}') for q in range(4)]


def s_read(s, ri):
    return I(f'ds_read_b128 {ar(aS + 8 * (s & 3) + 4 * ri, 4)}, v{ASc[s & 3]} offset:{(2 * ((s >> 2) & 1) + ri) * 4096}',
             lds_r=G_SLOT[s >> 3])


def f_addr(b, g):
    slot = G_SLOT[(4 if b < 2 else 8) + g]
    if b < 2:
        sel = [I(f'v_xor_b32 v{FAc}, 64, v{FA0}')] if b else []
        return sel + [I(f'v_add_u32 v{FAc}, {slot * SLOT}, v{FAc if b else FA0}')]
    return [I(f'v_xor_b32 v{FAc}, s{sFSEL}, v{FA0}'), I(f'v_add_u32 v{FAc}, {slot * SLOT}, v{FAc}')]


def f_read(b, s):
    out = f_addr(b, s >> 3) if s % 8 == 0 else []
    k = (32 * b + s) & 7
    for u in range(2):
        out.append(I(f'ds_read_b64_tr_b16 {ar(aF + 4 * k + 2 * u, 2)}, v{FAc} '
                     f'offset:{((s >> 1) & 3) * 4096 + (s & 1) * 2048 + u * 512}',
                     lds_r=G_SLOT[(4 if b < 2 else 8) + (s >> 3)]))
    return out


pin = {8: rg(4), 20: rg(5),
       27: s_addr(G_SLOT[0]) + stamp('c27') + [Wait('G0', 'G1', 'tabw', 'zero'), I('s_barrier')] + stamp('b0')}
for k in range(LA_S):
    pin[28 + k] = [s_read(k, 0), s_read(k, 1)]
P += weave(items, fill, pin, 0, 20)
for o in (14, 15):
    P += [I(f'v_cvt_pk_bf16_f32 v{X + 8 * o + e}, v{DB[o % 3] + 2 * e}, v{DB[o % 3] + 2 * e + 1}') for e in range(8)]

S_items = []
for s in range(32):
    for ri, acc in ((0, SRE), (1, SIM)):
        it = [mfma(vr(acc, 16), vr(X + 4 * s, 4), ar(aS + 8 * (s & 3) + 4 * ri, 4), vr(acc, 16) if s else '0')]
        n = s + LA_S
        if n < 32:
            if ri == 0 and n % 8 == 0:
                it += s_addr(G_SLOT[n >> 3])
            it.append(s_read(n, ri))
        S_items.append(it)
for k in range(LA_F):
    S_items[64 - LA_F + k] += f_read(0, k)
F_items = []
for b in range(4):
    its = []
    for s in range(32):
        acc = vr(FACC[b & 1], 16)
        it = [mfma(acc, ar(aF + 4 * ((32 * b + s) & 7), 4), vr(X + 4 * s, 4), acc if s else '0')]
        n = s + LA_F
        if n < 32:
            it += f_read(b, n)
        elif b < 3:
            if b == 2 and n == 32:
                it.append(I(f's_xor_b32 s{sFSEL}, s{sFSEL}, 64'))
            it += f_read(b + 1, n - 32)
        its.append(it)
    F_items.append(its)

FLA, FLP = VNM, VRS
fill = late + pf + L(f"""
v_lshrrev_b32 v{t0}, 3, v{vL}
v_bfe_u32 v{t1}, v{vL}, 4, 1
v_lshlrev_b32 v{t1}, 2, v{t1}
v_xor_b32 v{t1}, v{t1}, v{vL}
v_and_b32 v{t1}, 7, v{t1}
v_lshlrev_b32 v{t1}, 4, v{t1}
v_lshl_add_u32 v{XG[0]}, v{t0}, 10, v{t1}
v_add_u32 v{XG[1]}, {7 * 1024}, v{XG[0]}
v_add_u32 v{XG[2]}, {14 * 1024}, v{XG[0]}
v_add_u32 v{XG[3]}, {21 * 1024}, v{XG[0]}
v_lshrrev_b32 v{t2}, 5, v{vL}
v_lshlrev_b32 v{t2}, 6, v{t2}
v_add_u32 v{t2}, {TB}, v{t2}
s_lshl_b32 s{sT2}, s{sW}, 8
v_add_u32 v{t1}, s{sT2}, v{t2}""")
fill += [I(f'ds_read_b128 {vr(FACC[1] + 4 * q, 4)}, v{t1} offset:{128 + 16 * q}') for q in range(4)]
xe = L(f"""v_and_b32 v{t0}, 31, v{vL}
    v_lshrrev_b32 v{t1}, 5, v{vL}
    v_lshlrev_b32 v{t1}, 14, v{t1}
    v_lshl_add_u32 v{t1}, v{t0}, 1, v{t1}
    s_lshl_b32 s{sT2}, s{sJJ}, 2
    s_add_u32 s{sT2}, s{sT2}, s{sKQ}
    s_lshl_b32 s{sT2}, s{sT2}, 6
    v_lshl_add_u32 v{t0}, v{t0}, 1, s{sT2}
    s_add_u32 s{sXB}, s{sXB}, s{sT2}
    global_load_short_d16_hi a{aXE + 16}, v{t0}, s[{pDSK}:{pDSK + 1}]""")
for r in range(16):
    if r % 4 == 0:
        xe.append(I(f's_add_u32 s{sT2}, s{sXB}, {1024 * r}'))
    xe.append(I(f'buffer_load_short_d16_hi a{aXE + r}, v{t1}, {srd(sX)}, s{sT2} offen offset:{1024 * (r & 3)}'))
fill += xe
pin = {2: rg(6), 14: rg(7),
       24: [Wait('G2', 'G3'), I('s_barrier')], 28: rg(8), 40: rg(9),
       63 - LA_F: stamp('s59') + [Wait('G4', 'G5', 'G6', 'G7'), I('s_barrier')] + stamp('b2')}
P += weave(fine('S', S_items, 3), fill, pin, 0, 62 - LA_F)

Q = FACC[1]
V = lambda t: SRE + t if t % 2 == 0 else SIM + t - 1
AGR, AGI = VRS, t3
fill = []
for q in range(8):
    for h in range(2):
        r = 2 * q + h
        fill += L(f"""v_mul_f32 v{TT + 2 * h}, v{SRE + r}, v{CR}
            v_mul_f32 v{TT + 2 * h + 1}, v{SRE + r}, v{NCI}
            v_fmac_f32 v{TT + 2 * h}, v{SIM + r}, v{NCI}
            v_fmac_f32 v{TT + 2 * h + 1}, v{SIM + r}, v{NCR}""")
    for h in range(2):
        r = 2 * q + h
        fill += L(f"""v_mul_f32 v{V(r)}, v{TT + 2 * h}, v{Q + r}
            v_mul_f32 v{V(r) + 1}, v{TT + 2 * h + 1}, v{Q + r}""")
    for r in (2 * q, 2 * q + 1):
        if r:
            pr = V(0) if r == 1 else (t0 if r & 1 else AGR)
            pi_ = V(0) + 1 if r == 1 else (FAd if r & 1 else AGI)
            nr, ni = (AGR, AGI) if r & 1 else (t0, FAd)
            fill += L(f"""v_fma_f32 v{nr}, v{LR}, v{pr}, v{V(r)}
                v_fma_f32 v{ni}, v{LR}, v{pi_}, v{V(r) + 1}
                v_fmac_f32 v{nr}, v{NLI}, v{pi_}
                v_fmac_f32 v{ni}, v{LI}, v{pr}""")
fill += L(f"""s_lshl_b32 s{sT2}, s{sW}, 9
    s_add_u32 s{sT2}, s{sT2}, {T_SEG}
    v_lshl_add_u32 v{t1}, v{vL}, 3, s{sT2}""")
fill.append(I(f'ds_write_b64 v{t1}, {vr(AGR, 2)} offset:{7 * 256}', tok='segw'))
pin = {0: rg(10), 14: rg(11), 31: [Wait('segw'), I('s_barrier')] + rw('WA0')}
P += weave(fine('F0', F_items[0], 3), fill, pin, 2, 30)
P += stamp('F0')

E = ASc[0]
R0, R1, T0_, T1_ = QG[0], TT + 12, ASc[0], ASc[2]
m0 = mish(0)
q0 = len(m0) // 4 - 4
fill = [I(f'ds_read2_b64 {vr(R0, 4)}, v{t1} offset0:0 offset1:32'),
        I(f'ds_read2_b64 {vr(R1, 4)}, v{t1} offset0:64 offset1:96')] + m0[:q0]
fill += cmul_add(PR, PI, L16R, L16I, R0, R0 + 1, R0 + 2, R0 + 3)
fill.append(I(f'ds_read2_b64 {vr(R0, 4)}, v{t1} offset0:128 offset1:160'))
fill += cmul_add(T0_, T0_ + 1, L16R, L16I, PR, PI, R1, R1 + 1)
fill += cmul_add(PR, PI, L16R, L16I, T0_, T0_ + 1, R1 + 2, R1 + 3)
fill.append(I(f'ds_read_b64 {vr(R1, 2)}, v{t1} offset:{6 * 256}'))
fill += m0[q0:2 * q0]
fill += cmul_add(T0_, T0_ + 1, L16R, L16I, PR, PI, R0, R0 + 1)
fill += cmul_add(T1_, T1_ + 1, L16R, L16I, T0_, T0_ + 1, R0 + 2, R0 + 3)
fill += cmul_add(PR, PI, L16R, L16I, T1_, T1_ + 1, R1, R1 + 1)
fill += cmul_add(E, E + 2, L16R, L16I, PR, PI, AGR, AGI)
fill += L(f"""v_mov_b32 v{E + 1}, s{sTAG}
    v_mov_b32 v{E + 3}, s{sTAG}
    s_lshl_b32 s{sT2}, s{sJ}, 4
    s_add_u32 s{sT2}, s{sT2}, s{sI}
    s_lshl_b32 s{sT2}, s{sT2}, 9
    s_add_u32 s{sT2}, s{sT2}, {WS_AG - 512}
    s_cmp_eq_u32 s{sW}, 3
    s_cselect_b32 s{sT2}, s{sT2}, {OOB:#x}
    v_mov_b32 v{t0}, {OOB:#x}
    v_cmp_gt_u32 vcc, 32, v{vL}
    v_add_u32 v{t1}, s{sT2}, v{VL16}
    v_cndmask_b32 v{t1}, v{t1}, v{t0}, vcc
    buffer_store_dwordx4 {vr(E, 4)}, v{t1}, {srd(sWS)}, 0 offen sc1""")
fill += m0[2 * q0:]
pin = {31 - LA_F: [Wait('G8', 'G9', 'G10', 'G11'), I('s_barrier')] + rw('CR0')}
P += weave(fine('F0', F_items[1], 3), fill, pin, 1, 31)
P += stamp('F1')

LBA = [CR, NCI]
LBE = [NCR, L16R]
LBD = [ASc[0], QG[0]]
FLV = L16I
lb_loads = '\n'.join(f'buffer_load_dwordx4 {vr(LBD[e], 4)}, v{LBA[e]}, {srd(sWS)}, 0 offen sc1' for e in range(2))
lb_setup = L(f"""v_lshrrev_b32 v{t0}, 5, v{vL}
    s_lshl_b32 s{sT2}, s{sW}, 2
    s_add_u32 s{sT2}, s{sT2}, s{sI}
    s_sub_u32 s{sT2}, s{sT2}, 16
    v_lshl_add_u32 v{t0}, v{t0}, 1, s{sT2}
    s_lshl_b32 s{sT2}, s{sJ}, 13
    s_add_u32 s{sT2}, s{sT2}, {WS_AG}
    v_and_b32 v{t1}, 31, v{vL}
    v_lshl_add_u32 v{t1}, v{t1}, 4, s{sT2}
    v_lshl_add_u32 v{LBA[0]}, v{t0}, 9, v{t1}
    v_add_u32 v{LBA[1]}, 512, v{LBA[0]}
    v_mov_b32 v{t1}, {OOB:#x}
    v_mov_b32 v{FLV}, s{sTAG}
    v_cmp_gt_i32 vcc, 0, v{t0}
    v_cndmask_b32 v{LBA[0]}, v{LBA[0]}, v{t1}, vcc
    v_cndmask_b32 v{LBE[0]}, v{FLV}, 0, vcc
    v_cmp_gt_i32 vcc, -1, v{t0}
    v_cndmask_b32 v{LBA[1]}, v{LBA[1]}, v{t1}, vcc
    v_cndmask_b32 v{LBE[1]}, v{FLV}, 0, vcc""")
lb_setup += L(f"""s_lshl_b32 s{sT2}, s{sJJ}, 9
    s_add_u32 s{sT2}, s{sT2}, s{sFLG}
    v_and_b32 v{FLA}, 31, v{vL}
    v_lshl_add_u32 v{FLA}, v{FLA}, 2, s{sT2}
    v_and_b32 v{t0}, 3, v{vL}
    v_max_u32 v{t0}, 1, v{t0}
    v_xor_b32 v{t0}, s{sJJ}, v{t0}
    v_lshl_add_u32 v{FLP}, v{t0}, 9, s{sFLG}""")
def flag_store(stage, toks):
    out = [Wait(*toks), I(f'buffer_store_dword v{FLV}, v{FLA}, {srd(sWS)}, 0 offen offset:{128 * stage} sc1')]
    if OPT['ppf']:
        so = (sFST[0], sSST, sFST[2])[stage]
        vpf = L128R if stage else t3
        out = [I(f'v_lshlrev_b32 v{vpf}, {6 if stage < 2 else "s%d" % sSEL[1]}, v{vL}')] + out
        out.append(I(f'buffer_load_dword a{60 + (stage & 1)}, v{vpf}, {srd(sWS)}, s{so} offen sc1'))
    return out


def flag_load(stage):
    return f'buffer_load_dword v{t3}, v{FLP}, {srd(sWS)}, 0 offen offset:{128 * stage} sc1'


flag_check = f'v_cmp_ne_u32 vcc, s{sTAG}, v{t3}'
lb_check = f"""v_bitop3_b32 v{t0}, v{LBD[0] + 1}, v{LBD[0] + 3}, v{LBE[0]} bitop3:0x7e
    v_bitop3_b32 v{t1}, v{LBD[1] + 1}, v{LBD[1] + 3}, v{LBE[1]} bitop3:0x7e
    v_or_b32 v{t0}, v{t0}, v{t1}
    v_cmp_ne_u32 vcc, 0, v{t0}"""
lb_part = stamp('lb0') + poll('lb', lb_loads, lb_check) + stamp('lb1')
lb_part += cmul_add(LBD[0] + 1, LBD[0] + 3, L128R, L128I, LBD[0], LBD[0] + 2, LBD[1], LBD[1] + 2)
lb_part += cmul_add(LBD[1], LBD[1] + 1, WR, WI, LBD[0] + 1, LBD[0] + 3)
lb_part += L(f"""s_lshl_b32 s{sT2}, s{sW}, 9
    s_add_u32 s{sT2}, s{sT2}, {T_LB}
    v_lshl_add_u32 v{t1}, v{vL}, 3, s{sT2}""")
lb_part.append(I(f'ds_write_b64 v{t1}, {vr(LBD[1], 2)}', tok='lbw'))
HW, HR, HB = ASc[0], ASc[1], FACC[1]
HW2, HR2 = WR, WI
tail_addr = L(f"""v_and_b32 v{HW}, 31, v{vL}
    v_lshlrev_b32 v{ASc[3]}, 3, v{HW}
    v_add_u32 v{ASc[3]}, {T_LB}, v{ASc[3]}
    v_lshrrev_b32 v{t0}, 5, v{vL}
    s_lshl_b32 s{sT2}, s{sW}, 11
    s_add_u32 s{sT2}, s{sT2}, {T_H}
    v_lshl_add_u32 v{HW}, v{HW}, 6, s{sT2}
    v_bfe_u32 v{HR}, v{vL}, 1, 2
    v_lshlrev_b32 v{HW2}, 1, v{t0}
    v_xor_b32 v{HR}, v{HR}, v{HW2}
    v_lshl_add_u32 v{HW}, v{HR}, 4, v{HW}
    v_xor_b32 v{HW2}, 16, v{HW}
    v_bfe_u32 v{HR}, v{vL}, 2, 2
    v_lshl_add_u32 v{HR}, v{t0}, 3, v{HR}
    v_lshl_add_u32 v{HR}, v{HR}, 6, s{sT2}
    v_and_b32 v{t0}, 1, v{vL}
    v_lshl_add_u32 v{HR}, v{t0}, 5, v{HR}
    v_lshrrev_b32 v{t0}, 1, v{vL}
    v_xor_b32 v{t0}, v{t0}, v{vL}
    v_and_b32 v{t0}, 8, v{t0}
    v_lshl_add_u32 v{HR}, v{t0}, 1, v{HR}
    v_bfe_u32 v{t0}, v{vL}, 1, 1
    v_lshl_add_u32 v{HR}, v{t0}, 3, v{HR}
    v_xor_b32 v{HR2}, 32, v{HR}
    s_bitcmp1_b32 s{sJJ}, 0
    s_cselect_b32 s{sT2}, {OOB:#x}, 0
    v_add_u32 v{ASc[2]}, s{sT2}, v{VL16}
    s_mov_b32 s{sKC[0]}, {M2LN2:#x}""")
lb_reads = [I(f'ds_read2_b64 {vr(HB + 4 * q, 4)}, v{ASc[3]} offset0:{64 * q} offset1:{64 * q + 32}') for q in range(4)]
scan = [I(f'v_pk_add_f32 {vr(HB + a, 2)}, {vr(HB + a, 2)}, {vr(HB + b_, 2)}')
        for a, b_ in ((0, 2), (4, 6), (8, 10), (12, 14), (0, 4), (8, 12), (0, 8))]
scan += cmul_add(L128R, L128I, LSR, LSI, HB, HB + 1, PR, PI)
for r in range(16):
    prev = vr(L128R if r == 0 else V(r - 1), 2)
    scan += L(f"""v_pk_fma_f32 {vr(V(r), 2)}, {prev}, {vr(LR, 2)}, {vr(V(r), 2)} op_sel_hi:[1,0,1]
        v_pk_fma_f32 {vr(V(r), 2)}, {prev}, {vr(NLI, 2)}, {vr(V(r), 2)} op_sel:[1,0,0] op_sel_hi:[0,1,1]""")
    if r & 1:
        scan += L(f"""v_cvt_pk_bf16_f32 v{HB + (r >> 1)}, v{V(r - 1)}, v{V(r)}
            v_cvt_pk_bf16_f32 v{HB + 8 + (r >> 1)}, v{V(r - 1) + 1}, v{V(r) + 1}""")
for ri in range(2):
    scan += [I(f'ds_write_b128 v{(HW, HW2)[h]}, {vr(HB + 8 * ri + 4 * h, 4)}') for h in range(2)]
    for fr in range(2):
        for u in range(2):
            scan.append(I(f'ds_read_b64_tr_b16 {ar(aOS + 8 * ri + 4 * fr + 2 * u, 2)}, v{(HR, HR2)[u]} offset:{1024 * fr + 256 * u}'))
m1 = mish(1)
per = sum(i.slots() for i in lb_setup + m1 + lb_part + tail_addr) / 27
c1 = next(n for n in range(len(m1)) if sum(i.slots() for i in lb_setup + m1[:n]) >= per * (OPT['lbl'] - 2))
fill = lb_setup + m1[:c1] + L(lb_loads) + m1[c1:] + lb_part + tail_addr
pin = {4: rw('CI0'), 16: rw('WA1'), 29: [Wait('lbw'), I('s_barrier')] + lb_reads + rw('WA2')}
P += weave(fine('F2', F_items[2], 2), fill, pin, 2, 28)
P += stamp('F2')
m2 = mish_pk(2, VL16, range(1))
burst = m2[:2] + merge(scan, m2[2:-5])
if OPT['fas'] < 0:
    burst = burst[:OPT['fas']] + flag_store(0, ['stF0', 'stF1']) + burst[OPT['fas']:]
P += burst
for q in range(4):
    F_items[3][1 + q].append(I(f'buffer_store_dwordx4 {ar(aOS + 4 * q, 4)}, v{VL16}, {srd(sWS)}, s{sSST} offen '
                               f'offset:{1024 * q} sc1', tok='stH' if q == 3 else None))
P += stamp('scan')


FP0, FPc = [CR, NCI], [QG[2], QG[3]]
p3_setup = L(f"""v_bfe_u32 v{t1}, v{vL}, 2, 2
    v_lshrrev_b32 v{t0}, 5, v{vL}
    v_lshl_add_u32 v{t0}, v{t0}, 2, v{t1}
    v_lshlrev_b32 v{FP0[0]}, 7, v{t0}
    v_lshrrev_b32 v{t1}, 1, v{t1}
    s_and_b32 s{sT2}, s{sKQ}, 1
    v_xor_b32 v{t1}, s{sT2}, v{t1}
    v_lshl_add_u32 v{FP0[0]}, v{t1}, 6, v{FP0[0]}
    v_bfe_u32 v{t1}, v{vL}, 4, 1
    v_lshl_add_u32 v{FP0[0]}, v{t1}, 5, v{FP0[0]}
    v_and_b32 v{t1}, 3, v{vL}
    v_lshl_add_u32 v{FP0[0]}, v{t1}, 3, v{FP0[0]}
    v_xor_b32 v{FP0[1]}, 64, v{FP0[0]}
    s_and_b32 s{sT2}, s{sJJ}, 1
    s_lshl_b32 s{sT2}, s{sT2}, 6""") + [I(f'v_xor_b32 v{AS[q]}, s{sT2}, v{AS[q]}') for q in range(4)]
fill = m2[-5:] + mish(2, VL16, (2, 3)) + p3_setup

steps = ([('WA0', x, 'own') for x in range(4)]
         + [(n, x, 'own') for n in ('CR0', 'CI0') for x in range(2)]
         + [(f'WA{e}', x, 'A') for e in (1, 2, 3) for x in range(4)]
         + [(n, x, 'H') for n in ('CR0', 'CI0') for x in (2, 3)]
         + [(n, x, 'H') for n in ('CR1', 'CI1') for x in range(4)]
         + [('WB0', x, 'own') for x in range(4)]
         + [(f'WB{e}', x, 'B') for e in (1, 2) for x in range(4)])
deferred = [k for k, st in enumerate(steps) if st[2] != 'own']
A_REGS = ([192 + 4 * n for n in range(16)] + [SRE + 4 * n for n in range(8)]
          + [FACC[0] + 4 * n for n in range(4)] + [TT + 4 * n for n in range(4)])
ACC = [128, 144, 160, 176]
cur_addr = {}


def a_frag(k):
    name, x, src = steps[k]
    if src != 'own':
        return vr(A_REGS[deferred.index(k)], 4)
    if name == 'WA0':
        return ar(aOF + 4 * x, 4)
    if name == 'WB0':
        return ar(aOF + 16 + 4 * x, 4) if x < 2 else vr(FACC[1] + 4 * (x - 2), 4)
    return ar(aOS + 8 * (name[1] == 'I') + 4 * x, 4)


def a_load(k):
    name, x, src = steps[k]
    e = int(name[2])
    if name[0] == 'C':
        code = f's_xor_b32 s{sT1}, s{sJJ}, {2 * e + (x >> 1)}\ns_lshl_b32 s{sT1}, s{sT1}, 12\n' \
               f's_add_u32 s{sT1}, s{sT1}, {28 * 1024}\ns_add_u32 s{sT1}, s{sT1}, s{sAS}'
        off = 2048 * (name[1] == 'I') + 1024 * (x & 1)
        fresh = x & 1 == 0
    else:
        if name[1] == 'A':
            code = f's_xor_b32 s{sT1}, s{sJJ}, {e}\ns_lshl_b32 s{sT1}, s{sT1}, 13\ns_add_u32 s{sT1}, s{sT1}, s{sAS}'
        else:
            code = f's_lshl_b32 s{sT1}, s{sPB[e]}, 12\ns_add_u32 s{sT1}, s{sT1}, s{sAS}'
        off = 1024 * x
        fresh = x == 0
    return (L(code) if fresh else []) + \
        [I(f'buffer_load_dwordx4 {a_frag(k)}, v{VL16}, {srd(sWS)}, s{sT1} offen offset:{off} sc1')]


pin = {10: [I('s_barrier')] + rw('WA3'), 18: [I('s_barrier')] + rw('CR1'),
       OPT['fal']: L(flag_load(0)),
       30: [Wait('WA0', 'CR0', 'CI0', 'WA1', 'WA2'), I('s_barrier')]}
if OPT['fhs'] >= 0:
    pin[OPT['fhs']] = flag_store(1, ['stH'])
if OPT['fas'] >= 0:
    pin[OPT['fas']] = flag_store(0, ['stF0', 'stF1'])
P += weave(fine('F3', F_items[3], 2), fill, pin, 1, 29)
P += stamp('F3')

m3 = mish_pk(3, ASc[2])
st0 = next(n for n, i_ in enumerate(m3) if i_.kind == 'vm')
early = sum((a_load(k) for k in range(8, 8 + OPT['nea'])), [])
fac = st0 - OPT['fac']
P += m3[:fac] + (flag_store(1, ['stH']) if OPT['fhs'] < 0 else [])
P += stamp('fa0') + poll('fa', flag_load(0), flag_check) + stamp('fa1')
P += merge(m3[fac:st0], early) + (L(flag_load(1)) if OPT['fhl'] < 0 else []) + m3[st0:]
P += stamp('tail')

XE, ME = 192, LSR
ep_setup = L(f"""v_lshrrev_b32 v{t1}, 5, v{vL}
    s_lshl_b32 s{sT2}, s{sW}, 8
    s_add_u32 s{sT2}, s{sT2}, {T_STAT}
    v_lshl_add_u32 v{VLN2}, v{t1}, 6, s{sT2}
    v_lshlrev_b32 v{FA0}, 15, v{t1}
    v_and_b32 v{t0}, 31, v{vL}
    v_lshl_add_u32 v{FA0}, v{t0}, 2, v{FA0}""")
VL4 = ASc[0]
ep_setup = L(f'v_lshlrev_b32 v{VL4}, 2, v{vL}') + ep_setup
base_calc = [I(f'v_accvgpr_read_b32 v{RL2}, a{aXE + 16}')]
for qt in range(4):
    base_calc += [I(f'ds_read_b128 {vr(ME, 4)}, v{VLN2} offset:{16 * qt}', hoist=True),
                  I(f'ds_read_b128 {vr(ME + 4, 4)}, v{VLN2} offset:{128 + 16 * qt}', hoist=True)]
    rs = range(4)
    base_calc += [I(f'v_accvgpr_read_b32 v{XE + 4 * qt + r}, a{aXE + 4 * qt + r}') for r in rs]
    base_calc += [I(f'v_sub_f32 v{ME + r}, v{XE + 4 * qt + r}, v{ME + r}') for r in rs]
    base_calc += [I(f'v_mul_f32 v{ME + r}, v{ME + r}, v{ME + 4 + r}') for r in rs]
    base_calc += [I(f'v_fmac_f32 v{XE + 4 * qt + r}, v{ME + r}, v{RL2}') for r in rs]

def checksum(dst, src, last):
    return [f'v_bitop3_b32 v{dst}, v{src}, v{src + 1}, {last} bitop3:0x96'] + \
           [f'v_bitop3_b32 v{dst}, v{src + e}, v{src + e + 1}, v{dst} bitop3:0x96' for e in (2, 4, 6)]


def send(b):
    A = ACC[b]
    out = []
    for q in range(2):
        out += [I(f'v_cvt_pk_bf16_f32 v{A + e}, v{A + 2 * e}, v{A + 2 * e + 1}') for e in range(4 * q, 4 * q + 4)]
        out.append(I(f'buffer_store_dwordx4 {vr(A + 4 * q, 4)}, v{VL16}, {srd(sWS)}, s{sXO[b]} offen '
                     f'offset:{1024 * q} sc1'))
    out += [I(c) for c in checksum(A + 8, A, f's{sTAG}')]
    out.append(I(f'buffer_store_dword v{A + 8}, v{VL4}, {srd(sWS)}, s{sXO[b]} offen offset:2048 sc1'))
    return out


def w_read1(k, b, dst):
    name, x, src = steps[k]
    slot = W_SLOT[name]
    if name[0] == 'C':
        return [I(f'v_add_u32 v{FAc}, {slot * SLOT}, v{AS[x]}'),
                I(f'ds_read_b128 {ar(dst, 4)}, v{FAc} offset:{4096 * b}', lds_r=slot)]
    key = FPc[b & 1]
    out = []
    if cur_addr.get(key) != slot:
        cur_addr[key] = slot
        out.append(I(f'v_add_u32 v{key}, {slot * SLOT}, v{FP0[b & 1]}'))
    return out + [I(f'ds_read_b64_tr_b16 {ar(dst + 2 * u, 2)}, v{key} '
                    f'offset:{8192 * (x >> 1) + 4096 * (b >> 1) + 2048 * (x & 1) + 1024 * u}', lds_r=slot) for u in range(2)]


RX = {1: ACC[1], 2: ACC[2], 3: ACC[3]}


def recv(b):
    so = sXO[0] if b == 1 else sSEL[b]
    rl = [f'buffer_load_dwordx4 {vr(RX[b] + 4 * q, 4)}, v{VL16}, {srd(sWS)}, s{so} offen offset:{1024 * q} sc1' for q in range(2)]
    rl.append(f'buffer_load_dword v{RX[b] + 8}, v{VL4}, {srd(sWS)}, s{so} offen offset:2048 sc1')
    return '\n'.join(rl)


pre = L(f"""s_lshl_b32 s{sXB}, s{sXB}, 1
    s_mov_b32 s{sKC[0]}, 0x00003f80
    s_mov_b32 s{sKC[1]}, 0x3f800000""")
E3 = OPT['e3']
seq = [(k, b) for k in range(8) for b in (1, 2, 3, 0)] + [(k, b) for k in range(8, E3) for b in (1, 2, 3)]
seq += [(k, b) for k in range(E3, 36) for b in (1, 2)]
seq += [(k, b) for b in (1, 2) for k in range(36, 44)]
seq += [(k, 3) for k in range(E3, 44)] + [(k, 0) for k in range(8, 44)]
at = {kb: n for n, kb in enumerate(seq)}
done_at = {b: at[43, b] for b in (1, 2, 3)}
KEEP = {(k, 0): aWO + 4 * (k - 8) for k in range(8, 12)}
reads = sorted((kb for kb in seq), key=lambda kb: at[kb[0], 3] + 0.5 if kb in KEEP else at[kb])
RING = 12
where, nring = {}, 0
for kb in reads:
    if kb in KEEP:
        where[kb] = KEEP[kb]
    else:
        where[kb] = aP + 4 * (nring % RING)
        nring += 1
LA_J = OPT['laj']
items = []
rd = 0
seen = set()
for n, (k, b) in enumerate(seq):
    pre_rd = []
    while rd < len(reads) and (at[reads[rd][0], 3] if reads[rd] in KEEP else at[reads[rd]]) <= n + LA_J:
        pre_rd += w_read1(*reads[rd], where[reads[rd]])
        rd += 1
    m = mfma(vr(ACC[b], 16), a_frag(k), ar(where[k, b], 4), vr(ACC[b], 16) if b in seen else '0')
    seen.add(b)
    if n == 0:
        P = P[:-8 - (PROF in (1, 2))] + pre_rd + P[-8 - (PROF in (1, 2)):]
        pre_rd = []
    items.append([m] + pre_rd)
pin = {n: [] for n in range(len(items))}
pin[18] += [I('s_barrier')]
pin[at[16, 1] - LA_J - 1] += [Wait('WA3', 'CR1', 'CI1'), I('s_barrier')]
pin[at[32, 1] - LA_J - 1] += [Wait('WB0', 'WB1', 'WB2'), I('s_barrier')]
if OPT['fhl'] >= 0:
    pin[OPT['fhl']] += L(flag_load(1))
pin[OPT['fhc']] += stamp('fh0') + poll('fh', flag_load(1), flag_check) + stamp('fh1')
pin[OPT['fls']] += flag_store(2, ['stF3', 'stF2'])
pin[OPT['fll']] += L(flag_load(2))
pin[OPT['flc']] += stamp('fl0') + poll('fl', flag_load(2), flag_check) + stamp('fl1')
pin[at[36, 1] - 1] += stamp('k36')
queue = [(0, a_load(k)) for k in range(8 + OPT['nea'], 16)] + [(0, rw('CI1'))]
queue += [(0, a_load(k)) for k in range(max(16, 8 + OPT['nea']), 20)]
if OPT['qord'] == 0:
    queue += [(19, rw('WB0'))] + [(OPT['fhc'], a_load(k)) for k in range(20, 32)] + [(19, rw('WB1'))]
elif OPT['qord'] == 1:
    queue += [(19, rw('WB0')), (19, rw('WB1'))] + [(OPT['fhc'], a_load(k)) for k in range(20, 32)]
else:
    queue += [(OPT['fhc'], a_load(k)) for k in range(20, 24)] + [(19, rw('WB0')), (19, rw('WB1'))]
    queue += [(0, a_load(k)) for k in range(24, 32)]
queue += [(at[16, 1] - LA_J, rw('WB2'))]
queue += [(OPT['flc'], a_load(k)) for k in range(36, 44)]
n = 0.0
for first_gap, ins in queue:
    n = max(n, first_gap)
    pend = []
    for i_ in ins:
        pend.append(i_)
        if i_.kind == 'vm':
            pin[int(n)] += pend
            pend = []
            n += OPT['pace'] / 10
for b in (1, 2, 3):
    sd = send(b)
    for q in range(4):
        pin[done_at[b] + 3 + q] += sd[q * len(sd) // 4:(q + 1) * len(sd) // 4]
    pin[done_at[min(b + 1, 3) if b < 3 else 3] + OPT[f'r{b}'] if b != 2 else done_at[2] + OPT['r2']] += L(recv(b))
pin[done_at[2] + 6] += stamp('s12')
pin[done_at[3] + 6] += stamp('sent')
items = fine('P3', items[:112], 4) + items[112:]
sub = lambda lo, hi: {n - lo: pin[n] for n in range(lo, hi)}
c1, c2 = at[32, 1], at[11, 0] + 1
P += weave(items[:c1], [], sub(0, c1))
P += weave(items[c1:c2], ep_setup + pre, sub(c1, c2), 0, 4)
P += weave(items[c2:], base_calc, sub(c2, len(items)), 3, 26)
P += stamp('own')
A0 = ACC[0]
for q in range(8):
    P.append(I(f'v_pk_add_f32 {vr(A0 + 2 * q, 2)}, {vr(A0 + 2 * q, 2)}, {vr(XE + 2 * q, 2)}'))
for b in (1, 2, 3):
    chk = checksum(RX[b] + 9, RX[b], f'v{RX[b] + 8}') + [f'v_cmp_ne_u32 vcc, s{sTAG}, v{RX[b] + 9}']
    P += poll(f'rx{b}', recv(b), '\n'.join(chk))
P += stamp('rx')
for q in range(8):
    for b in (1, 2, 3):
        P += [I(f'v_dot2c_f32_bf16 v{A0 + 2 * q + h}, s{sKC[h]}, v{RX[b] + q}') for h in range(2)]
    if q:
        P += sts
    sts = [I(f's_add_u32 s{sBB}, s{sXB}, {4096 * q}')]
    sts += [I(f'buffer_store_dword v{A0 + 2 * q + h}, v{FA0}, {srd(sOUT)}, s{sBB} offen offset:{2048 * h} '
              f'{OPT["out_flags"]}') for h in range(2)]
P += L(f"""s_lshl_b32 s{sT2}, s{sJ}, 2
    s_add_u32 s{sT2}, s{sT2}, s{sW}
    s_xor_b32 s{sT1}, s{sI}, 15
    s_or_b32 s{sT2}, s{sT2}, s{sT1}
    s_cmp_eq_u32 s{sT2}, 0
    s_cselect_b32 s{sT2}, {WS_EP}, {OOB:#x}
    v_mov_b32 v{t0}, s{sE2}
    v_mov_b32 v{t1}, s{sT2}""") + sts + L(f'buffer_store_dword v{t0}, v{t1}, {srd(sWS)}, 0 offen')
if OPT['diag']:
    P += stamp('end') + L("""s_memrealtime s[6:7]
        s_waitcnt lgkmcnt(0)
        s_sub_u32 s4, s4, s23
        s_lshl_b32 s4, s4, 2
        s_min_u32 s4, s4, 20000
        L_diag:
        s_memrealtime s[0:1]
        s_waitcnt lgkmcnt(0)
        s_sub_u32 s0, s0, s6
        s_cmp_lt_u32 s0, s4
        s_cbranch_scc1 L_diag""")
if PROF:
    P += stamp('end')
    P += L(f"""s_waitcnt vmcnt(0)
        s_memrealtime s[0:1]
        s_lshl_b32 s{sT2}, s2, 2
        s_add_u32 s{sT2}, s{sT2}, s{sW}
        s_lshl_b32 s{sT2}, s{sT2}, 7
        s_add_u32 s{sT2}, s{sT2}, {WS_PROF}
        v_mov_b32 v{t1}, s{sT2}
        s_waitcnt lgkmcnt(0)
        v_mov_b32 v{t0}, s0
        buffer_store_dword v{t0}, v{t1}, {srd(sWS)}, 0 offen offset:124
        v_mov_b32 v{t2}, s23
        buffer_store_dword v{t2}, v{t1}, {srd(sWS)}, 0 offen offset:112
        buffer_store_dword a62, v{t1}, {srd(sWS)}, 0 offen offset:116
        buffer_store_dword a63, v{t1}, {srd(sWS)}, 0 offen offset:120""")
    P += stamp('DUMP')
P += [I('L_end:'), I('s_endpgm')]

P = resolve_stamps(P)
if OPT['split']:
    P = split_ds_pairs(P)
if OPT['hoist']:
    P = hoist_reads(P, OPT['hoist'])
body = pad_hazards(insert_waits(P, OPT['age']))
tail = []
for name, loads, check in retry_blocks:
    blk = [I(f'L_retry_{name}:'), I(f's_mov_b32 s3, {OPT["spin"]}'), I(f'L_spin_{name}:')]
    if PROF:
        blk.append(I(f's_add_u32 s23, s23, {1 << (4 * retry_blocks.index((name, loads, check)))}'))
    blk += L(loads) + [I('s_waitcnt vmcnt(0)')] + L(check)
    blk += L(f'''s_cbranch_vccz L_back_{name}
        s_sub_u32 s3, s3, 1
        s_cmp_lg_u32 s3, 0
        s_cbranch_scc1 L_spin_{name}
        s_branch L_back_{name}''')
    tail += pad_hazards(blk)

hdr = open(os.path.join(os.path.dirname(os.path.abspath(__file__)), 'header.txt')).read()
text = hdr + f'''; @launch grid=(256,1,1) block=(256,1,1) lds=163840
.amdgcn_target "amdgcn-amd-amdhsa--gfx950"
.text
.globl {KN}
.p2align 8
.type {KN},@function
{KN}:
{render(body)}
{render(tail)}
L_code_end:
    s_endpgm
.section .rodata,"a"
.p2align 6
.amdhsa_kernel {KN}
  .amdhsa_next_free_vgpr 512
  .amdhsa_next_free_sgpr 102
  .amdhsa_accum_offset 256
  .amdhsa_group_segment_fixed_size 0
  .amdhsa_kernarg_size 128
  .amdhsa_user_sgpr_count 2
  .amdhsa_user_sgpr_kernarg_segment_ptr 1
  .amdhsa_system_sgpr_workgroup_id_x 1
.end_amdhsa_kernel
'''
open(sys.argv[1], 'w').write(text)
if PROF:
    open(sys.argv[1][:-2] + '.stamps', 'w').write(' '.join(stamp_names))
from collections import Counter
cnt = Counter(i.kind for i in body)
print(dict(cnt), 'nops', sum(1 for i in body if i.mn == 's_nop'))
```

```python
import sys, os
sys.path.insert(0, os.path.dirname(os.path.abspath(__file__)))
from asmlib import I, Wait, insert_waits, pad_hazards, render, weave, split_ds_pairs, hoist_reads, merge, level, ds_first

KN = 'parallel_sum__ssm_conv_s5__dense_activation_mish__prompt_kernel'
OPT = dict(prof=0, spin=20000, out_flags='', map='8x4', pf=1, age=24, laf=5, r1=26, r2=32, r3=29, e3=12, fls=28, fll=50, flc=68, ka2=1, nstep=0, split=0, diag='', dsp=2, xel=1, laj=7, pace=13, lev=0, lev3=0, pa=2, fw=1, xw=0, vmc=2, fine='', fas=-30, fal=12, fac=24, nea=8, fhs=-1, fhl=12, fhc=28, qord=0, lbl=13, lbc=24, ppf=0, hoist=32)
for a in sys.argv[2:]:
    k, v = a.split('=')
    OPT[k] = int(v) if v.lstrip('-').isdigit() else v
PROF = OPT['prof']

WS_EP, WS_AG, WS_A = 0, 0x10000, 0x40000
WS_XC = WS_A + 64 * 176 * 1024
XC_BLK = 2560
WS_FL = WS_XC + 1024 * 3 * XC_BLK
WS_SIZE = WS_FL + 1024 * 512
WS_PROF = 0x1C00000
OOB = 0x7ff00000
SLOT = 16384
TB = 9 * SLOT
T_STAT, T_B1, T_SEG, T_LB, T_H = TB, TB + 1024, TB + 2048, TB + 6144, TB + 8192
LOG2E, LN2, M2LN2 = 0x3fb8aa3b, 0x3f317218, 0xbfb17218

sX, sB, sW1, sCre, sCim, sW2, sWS, sOUT, sTMP = 36, 40, 44, 48, 52, 56, 60, 64, 68
sI, sJ, sW, sROT, sTAG, sE2 = 72, 73, 74, 75, 76, 77
sKC = [78, 79, 80, 81]
sWOFF, sT0, sT1, sXB, sBB, sW1A, sW1B = 82, 83, 84, 85, 86, 87, 88
sAS = 89
sFST = [90, 91, 92, 93]
sSST, sCB, sW2B, sFSEL, sONES, sT3, sJJ, sT2 = 94, 95, 96, 97, 98, 99, 100, 101
sKQ, sPB, sXO = 22, [24, 25, 26], [27, 28, 29, 30]
sSEL = [31, 32, 33, 34]
sFLG = 35
pLRE, pLIM, pBRE, pBIM, pLDT, pDSK, pB1 = 8, 10, 12, 14, 16, 18, 20
srd = lambda b: f's[{b}:{b + 3}]'
vL, t0, t1, t2 = 0, 1, 2, 3
AS = [4, 5, 6, 7]
ASc = [8, 9, 10, 11]
XG = [12, 13, 14, 15]
PG = [16, 17, 18, 19]
QG = [20, 21, 22, 23]
FA0, FAc, RL2, VLN2, VL16, VNM, VRS, t3 = 24, 25, 26, 27, 28, 29, 30, 31
FAd = VNM
NLI, LI, LR, CR, NCI, NCR, L16R, L16I, LSR, LSI, L128R, L128I, WR, WI, PR, PI = range(32, 48)
TT = 48
FACC = [64, 80]
SRE, SIM = 96, 112
X = 128
aS, aF, aP, aOF, aOS, aWO, aXE = 0, 128, 0, 64, 88, 128, 224
STAMP_A = list(range(104, 128)) + list(range(48, 54))
vr = lambda b, n: f'v[{b}:{b + n - 1}]'
ar = lambda b, n: f'a[{b}:{b + n - 1}]'

stamp_names = []
FINE_KEEP = dict(S=['x7', 'c27', 'b0', 'F0'], F0=['b2', 'F0', 'F1'], F2=['F1', 'F2', 'scan'], F3=['scan', 'F3', 'fa0', 'fa1', 'tail'],
                 P3=[], L=['k36', 'sent', 'own', 'rx'])


def fine(phase, items, step):
    if OPT['fine'] == phase:
        for n in range(step - 1, len(items), step):
            items[n] = items[n] + stamp(f'g{n}')
    return items


def stamp(name):
    if PROF == 3 and name not in ('end', 'DUMP'):
        return []
    if OPT['fine'] and not name.startswith('g') and name not in FINE_KEEP[OPT['fine']] + ['end', 'DUMP']:
        return []
    if OPT['diag'] == name:
        return [I('s_memrealtime s[4:5]')]
    return [I(';stamp ' + name)] if PROF else []


def resolve_stamps(prog):
    out = []
    for ins in prog:
        if not ins.text.startswith(';stamp '):
            out.append(ins)
            continue
        name = ins.text.split()[1]
        n = len(stamp_names)
        if n:
            out.append(I(f'v_accvgpr_write_b32 a{STAMP_A[n - 1]}, s{4 + 2 * ((n - 1) & 1)}'))
        if name == 'DUMP':
            out += [I(f'buffer_store_dword a{STAMP_A[k]}, v{t1}, {srd(sWS)}, 0 offen offset:{4 * k}') for k in range(n)]
            continue
        assert n < 29
        stamp_names.append(name)
        out.append(I(f's_mem{"real" if PROF == 2 else ""}time s[{4 + 2 * (n & 1)}:{5 + 2 * (n & 1)}]'))
    return out


def L(text):
    return [I(t.strip()) for t in text.strip().split('\n') if t.strip()]


def mfma(d, a, b, c):
    return I(f'v_mfma_f32_32x32x16_bf16 {d}, {a}, {b}, {c}')


def mksrd(b, lo, size):
    return f's_mov_b32 s{b}, s{lo}\ns_mov_b32 s{b + 1}, s{lo + 1}\ns_mov_b32 s{b + 2}, {size}\ns_mov_b32 s{b + 3}, 0x00020000\n'


slot_shared = {}


def dma_round(name, slot, voffs, rsrc, soff_code, shared):
    out = [I(f's_add_u32 m0, s{sWOFF}, {slot * SLOT}')] + L(soff_code)
    for g in range(4):
        out.append(I(f'buffer_load_dwordx4 v{voffs[g]}, {srd(rsrc)}, s{sT0} offen offset:{1024 * g} lds',
                     tok=name if g == 3 else None,
                     lds_w=(slot, slot_shared.get(slot, False)) if g == 0 else None, note=name,
                     fills=(slot, shared) if g == 3 else None))
    slot_shared[slot] = shared
    return out


def rx(s, slot):
    return dma_round(f'x{s}', slot, XG, sX,
                     f's_add_u32 s{sT0}, s{sROT}, {s}\ns_and_b32 s{sT0}, s{sT0}, 7\n'
                     f's_lshl_b32 s{sT0}, s{sT0}, 7\ns_add_u32 s{sT0}, s{sT0}, s{sXB}', False)


G_SLOT = [4, 5, 6, 7, 8, 0, 1, 2, 3, 4, 5, 6]
W_SLOT = dict(WA0=7, CR0=8, CI0=0, WA1=1, WA2=2, WA3=3, CR1=4, CI1=5, WB0=6, WB1=7, WB2=1)


def rg(g):
    if g < 4:
        return dma_round(f'G{g}', G_SLOT[g], PG, sB,
                         f's_lshl_b32 s{sT0}, s{sKC[g]}, 7\ns_add_u32 s{sT0}, s{sT0}, s{sBB}', True)
    base = sW1A if g < 8 else sW1B
    return dma_round(f'G{g}', G_SLOT[g], QG, sW1,
                     f's_mul_i32 s{sT0}, s{sKC[g & 3]}, {64 * 3584}\ns_add_u32 s{sT0}, s{sT0}, s{base}', True)


def rw(name):
    e = int(name[2])
    if name[0] == 'C':
        code = f's_xor_b32 s{sT0}, s{sCB}, {128 * e}'
        return dma_round(name, W_SLOT[name], PG, sCim if name[1] == 'I' else sCre, code, True)
    if name[1] == 'A':
        code = f's_xor_b32 s{sT0}, s{sJJ}, {e}\ns_lshl_b32 s{sT0}, s{sT0}, 17\ns_add_u32 s{sT0}, s{sT0}, s{sW2B}'
    else:
        code = f's_lshl_b32 s{sT0}, s{sPB[e]}, 16\ns_add_u32 s{sT0}, s{sT0}, s{sW2B}'
        if e == 0:
            code += f'\ns_xor_b32 s{sT0}, s{sT0}, s{sSEL[0]}'
    return dma_round(name, W_SLOT[name], XG, sW2, code, True)


def pins(*parts):
    pin = {}
    for gap, ins in parts:
        head = [i_ for i_ in ins if not getattr(i_, 'dma', False)]
        pin.setdefault(gap, []).extend(head)
        for n, i_ in enumerate(ins[len(head):]):
            pin.setdefault(gap + n * OPT['dsp'], []).append(i_)
    return pin


BAR = lambda *toks: ([Wait(*toks)] if toks else []) + [I('s_barrier')]
retry_blocks = []


def poll(name, loads, check):
    retry_blocks.append((name, loads, check))
    return L(check) + [I(f's_cbranch_vccnz L_retry_{name}'), I(f'L_back_{name}:')]


def cexp(dr, di, scale, zr, za):
    return L(f"""v_mul_f32 v{dr}, {scale}, v{zr}
        v_mul_f32 v{di}, {scale}, v{za}
        v_exp_f32 v{dr}, v{dr}
        v_fract_f32 v{di}, v{di}
        v_cos_f32 v{t3}, v{di}
        v_sin_f32 v{di}, v{di}
        v_mul_f32 v{di}, v{dr}, v{di}
        v_mul_f32 v{dr}, v{dr}, v{t3}""")


def cmul_add(dr, di, ar_, ai, br, bi, cr=None, ci=None):
    if cr is None:
        head = f'v_mul_f32 v{dr}, v{ar_}, v{br}\nv_mul_f32 v{di}, v{ar_}, v{bi}'
    else:
        head = f'v_fma_f32 v{dr}, v{ar_}, v{br}, v{cr}\nv_fma_f32 v{di}, v{ar_}, v{bi}, v{ci}'
    return L(head + f'\nv_fma_f32 v{dr}, -v{ai}, v{bi}, v{dr}\nv_fmac_f32 v{di}, v{ai}, v{br}')


def mish(b, voff=VL16, quarters=range(4)):
    A = FACC[b & 1]
    out = []
    for q in quarters:
        rs = range(4 * q, 4 * q + 4)
        out.append(I(f'ds_read_b128 {vr(TT + 4 * q, 4)}, v{t2} offset:{T_B1 - TB + 128 * b + 16 * q}', hoist=True))
        out += [I(f'v_fmac_f32 v{TT + r}, v{A + r}, v{RL2}') for r in rs]
        out += [I(f'v_exp_f32 v{A + r}, v{TT + r}') for r in rs]
        out += [I(f'v_add_f32 v{A + r}, 1.0, v{A + r}') for r in rs]
        out += [I(f'v_fma_f32 v{A + r}, v{A + r}, v{A + r}, 1.0') for r in rs]
        out += [I(f'v_rcp_f32 v{A + r}, v{A + r}') for r in rs]
        out += [I(f'v_fmamk_f32 v{A + r}, v{A + r}, {M2LN2:#x}, v{VLN2}') for r in rs]
        out += [I(f'v_mul_f32 v{TT + r}, v{TT + r}, v{A + r}') for r in rs]
        out += [I(f'v_cvt_pk_bf16_f32 v{A + p}, v{TT + 2 * p}, v{TT + 2 * p + 1}') for p in (2 * q, 2 * q + 1)]
        if q & 1:
            fr = q >> 1
            out.append(I(f'buffer_store_dwordx4 {vr(A + 4 * fr, 4)}, v{voff}, {srd(sWS)}, s{sFST[b]} offen '
                         f'offset:{1024 * fr} sc1', tok=f'stF{b}' if fr else None))
            if b < 3:
                out += [I(f'v_accvgpr_write_b32 a{aOF + 8 * b + 4 * fr + e}, v{A + 4 * fr + e}') for e in range(4)]
    return out


def mish_pk(b, voff, halves=range(2)):
    A = FACC[b & 1]
    out = []
    for q in range(2 * len(halves)):
        out.append(I(f'ds_read_b128 {vr(TT + 4 * q, 4)}, v{t2} offset:{T_B1 - TB + 128 * b + 16 * q}', hoist=True))
    for h in halves:
        ps = range(8 * h, 8 * h + 8, 2)
        rs = range(8 * h, 8 * h + 8)
        out += [I(f'v_pk_fma_f32 {vr(TT + p, 2)}, {vr(A + p, 2)}, {vr(RL2, 2)}, {vr(TT + p, 2)} op_sel_hi:[1,0,1]') for p in ps]
        out += [I(f'v_exp_f32 v{A + r}, v{TT + r}') for r in rs]
        out += [I(f'v_pk_add_f32 {vr(A + p, 2)}, {vr(A + p, 2)}, 1.0 op_sel_hi:[1,0]') for p in ps]
        out += [I(f'v_pk_fma_f32 {vr(A + p, 2)}, {vr(A + p, 2)}, {vr(A + p, 2)}, 1.0 op_sel_hi:[1,1,0]') for p in ps]
        out += [I(f'v_rcp_f32 v{A + r}, v{A + r}') for r in rs]
        out += [I(f'v_pk_fma_f32 {vr(A + p, 2)}, {vr(A + p, 2)}, s[{sKC[0]}:{sKC[1]}], {vr(RL2, 2)} '
                  f'op_sel:[0,0,1] op_sel_hi:[1,0,1]') for p in ps]
        out += [I(f'v_pk_mul_f32 {vr(TT + p, 2)}, {vr(TT + p, 2)}, {vr(A + p, 2)}') for p in ps]
        out += [I(f'v_cvt_pk_bf16_f32 v{A + p // 2}, v{TT + p}, v{TT + p + 1}') for p in ps]
        out.append(I(f'buffer_store_dwordx4 {vr(A + 4 * h, 4)}, v{voff}, {srd(sWS)}, s{sFST[b]} offen '
                     f'offset:{1024 * h} sc1', tok=f'stF{b}' if h else None))
        if b < 3:
            out += [I(f'v_accvgpr_write_b32 a{aOF + 8 * b + 4 * h + e}, v{A + 4 * h + e}') for e in range(4)]
    return out


_weave = weave
LEV = [OPT['lev']]


def weave(*a):
    out = _weave(*a)
    return ds_first(level(out, LEV[0], OPT['vmc'])) if LEV[0] else out


P = []
if OPT['map'] == '8x4':
    ids = f"""s_and_b32 s{sKQ}, s2, 3
        s_bfe_u32 s{sJJ}, s2, 0x20003
        s_lshr_b32 s{sI}, s2, 5
        s_bfe_u32 s{sT0}, s2, 0x10002
        s_lshl_b32 s{sROT}, s{sT0}, 1
        s_lshl_b32 s{sT0}, s{sT0}, 3
        s_and_b32 s{sT1}, s{sI}, 1
        s_or_b32 s{sI}, s{sI}, s{sT0}
        s_add_u32 s{sROT}, s{sROT}, s{sT1}
        s_add_u32 s{sROT}, s{sROT}, s{sKQ}
        s_lshl_b32 s{sROT}, s{sROT}, 1
        s_and_b32 s{sROT}, s{sROT}, 7"""
else:
    ids = f"""s_and_b32 s{sKQ}, s2, 1
        s_lshl_b32 s{sKQ}, s{sKQ}, 1
        s_lshr_b32 s{sT0}, s2, 7
        s_or_b32 s{sKQ}, s{sKQ}, s{sT0}
        s_bfe_u32 s{sJJ}, s2, 0x20003
        s_bfe_u32 s{sI}, s2, 0x20005
        s_bfe_u32 s{sT0}, s2, 0x20001
        s_add_u32 s{sROT}, s{sT0}, s{sKQ}
        s_lshl_b32 s{sT0}, s{sT0}, 2
        s_or_b32 s{sI}, s{sI}, s{sT0}
        s_lshl_b32 s{sROT}, s{sROT}, 1
        s_and_b32 s{sROT}, s{sROT}, 7"""
ws_load = f's_load_dwordx2 s[{sWS}:{sWS + 1}], s[0:1], 120'
more_loads = f"""s_load_dwordx8 s[{pLRE}:{pLRE + 7}], s[0:1], 8
s_load_dwordx4 s[{pLDT}:{pLDT + 3}], s[0:1], 56
s_load_dwordx2 s[{pB1}:{pB1 + 1}], s[0:1], 88
s_load_dwordx2 s[{sW1}:{sW1 + 1}], s[0:1], 80
s_load_dwordx2 s[{sCre}:{sCre + 1}], s[0:1], 40
s_load_dwordx2 s[{sCim}:{sCim + 1}], s[0:1], 48
s_load_dwordx2 s[{sW2}:{sW2 + 1}], s[0:1], 96
s_load_dwordx2 s[{sOUT}:{sOUT + 1}], s[0:1], 104
"""
SUM, SQ = [TT + 8, TT + 9], [TT + 10, TT + 11]
sizes = ((sX, 2097152), (sB, 524288), (sW1, 1835008), (sCre, 524288), (sCim, 524288), (sW2, 1835008),
         (sWS, (WS_PROF + 0x40000) if PROF else WS_SIZE), (sOUT, 4194304))
P += L(f"""
s_cmp_ge_u32 s2, 256
s_cbranch_scc1 L_end
{'s_memtime s[98:99]' if PROF else ''}
{'s_memrealtime s[90:91]' if PROF or OPT['diag'] else ''}
s_load_dwordx2 s[{sX}:{sX + 1}], s[0:1], 0
{'' if OPT['ka2'] else ws_load}
s_getpc_b64 s[{sTMP}:{sTMP + 1}]
v_lshrrev_b32 v{t0}, 6, v0
v_and_b32 v{vL}, 63, v0
s_and_b32 s{sTMP}, s{sTMP}, 0xffffff80
v_readfirstlane_b32 s{sW}, v{t0}
s_mov_b32 s{sTMP + 2}, L_code_end-{KN}
s_mov_b32 s{sTMP + 3}, 0x00020000
s_lshr_b32 s{sT0}, s2, 3
s_lshl_b32 s{sT0}, s{sT0}, 2
s_add_u32 s{sT0}, s{sT0}, s{sW}
s_lshl_b32 s{sT0}, s{sT0}, 9
v_and_b32 v{t1}, 3, v{vL}
v_lshlrev_b32 v{t1}, 7, v{t1}
buffer_load_dword v{t3}, v{t1}, {srd(sTMP)}, s{sT0} offen
{'' if OPT['ka2'] else more_loads}
v_lshrrev_b32 v{t0}, 3, v{vL}
v_lshrrev_b32 v{t1}, 4, v{vL}
v_xor_b32 v{t1}, v{t1}, v{vL}
v_and_b32 v{t1}, 7, v{t1}
v_lshlrev_b32 v{t1}, 4, v{t1}
v_lshl_add_u32 v{PG[0]}, v{t0}, 10, v{t1}
v_lshrrev_b32 v{t2}, 5, v{vL}
v_mul_u32_u24 v{t2}, {12 * 1024}, v{t2}
v_add_u32 v{XG[0]}, v{PG[0]}, v{t2}
v_xor_b32 v{XG[1]}, 64, v{XG[0]}
v_add_u32 v{XG[2]}, {6 * 1024}, v{XG[0]}
v_add_u32 v{XG[3]}, {9 * 1024}, v{XG[1]}
v_add_u32 v{XG[1]}, {3 * 1024}, v{XG[1]}
s_lshl_b32 s{sWOFF}, s{sW}, 12
{ids}
s_lshl_b32 s{sXB}, s{sI}, 17
s_lshl_b32 s{sT0}, s{sW}, 15
s_add_u32 s{sXB}, s{sXB}, s{sT0}
""" + ''.join(f's_mov_b32 s{b + 2}, {n}\ns_mov_b32 s{b + 3}, 0x00020000\n' for b, n in sizes) + f"""
s_waitcnt lgkmcnt(0)
{'v_accvgpr_write_b32 a62, s98' if PROF else ''}
{'v_accvgpr_write_b32 a63, s90' if PROF else ''}
{'s_mov_b32 s23, 0' if PROF else ''}
{'s_mov_b32 s23, s90' if OPT['diag'] else ''}
""")
P += stamp('ka') if OPT['diag'] else []
P += rx(0, 0) + (L(ws_load + '\n' + more_loads) if OPT['ka2'] else []) + rx(1, 1)
P += L(f"""
v_and_b32 v{t0}, 31, v{vL}
s_lshl_b32 s{sJ}, s{sKQ}, 2
s_or_b32 s{sJ}, s{sJ}, s{sJJ}
v_lshrrev_b32 v{t1}, 5, v{vL}
v_bfe_u32 v{t2}, v{vL}, 1, 3
v_xor_b32 v{t1}, v{t1}, v{t2}
v_lshlrev_b32 v{t1}, 4, v{t1}
v_lshl_add_u32 v{AS[0]}, v{t0}, 7, v{t1}
v_xor_b32 v{AS[1]}, 32, v{AS[0]}
v_xor_b32 v{AS[2]}, 64, v{AS[0]}
v_xor_b32 v{AS[3]}, 0x60, v{AS[0]}
v_add_u32 v{ASc[0]}, s{sWOFF}, v{AS[0]}
v_add_u32 v{ASc[1]}, s{sWOFF}, v{AS[1]}
v_add_u32 v{ASc[2]}, s{sWOFF}, v{AS[2]}
v_add_u32 v{ASc[3]}, s{sWOFF}, v{AS[3]}
s_mov_b32 s{sONES}, 0x3f803f80
v_mov_b32 v{SUM[0]}, 0
v_mov_b32 v{SUM[1]}, 0
v_mov_b32 v{SQ[0]}, 0
v_mov_b32 v{SQ[1]}, 0
s_lshl_b32 s{sT0}, s{sW}, 9
s_add_u32 s{sT0}, s{sT0}, {T_SEG}
v_lshl_add_u32 v{t0}, v{vL}, 3, s{sT0}""")
P.append(I(f'ds_write_b64 v{t0}, {vr(SUM[0], 2)}', tok='zero'))
P += L(f's_waitcnt lgkmcnt(0)\ns_load_dword s{sE2}, s[{sWS}:{sWS + 1}], {WS_EP}')
mid = L(f"""
v_and_b32 v{t0}, 31, v{vL}
s_lshl_b32 s{sT1}, s{sJ}, 6
v_lshl_add_u32 v{t1}, v{t0}, 1, s{sT1}
global_load_ushort v{LR}, v{t1}, s[{pLRE}:{pLRE + 1}]
global_load_ushort v{LI}, v{t1}, s[{pLIM}:{pLIM + 1}]
global_load_ushort v{NLI}, v{t1}, s[{pLDT}:{pLDT + 1}]
s_and_b32 s{sT3}, s{sW}, 1
s_mul_i32 s{sT2}, s{sKQ}, 7
s_lshl_b32 s{sW1A}, s{sJJ}, 1
s_add_u32 s{sPB[0]}, s{sW1A}, 1
s_cmp_eq_u32 s{sJJ}, 3
s_cselect_b32 s{sPB[0]}, 3, s{sPB[0]}
s_cselect_b32 s{sFSEL}, 64, 0
s_add_u32 s{sW1A}, s{sW1A}, s{sT2}
s_add_u32 s{sW1B}, s{sPB[0]}, s{sT2}
s_lshl_b32 s{sW1A}, s{sW1A}, 7
s_lshl_b32 s{sW1B}, s{sW1B}, 7
s_cmp_ge_u32 s{sW}, 2
s_cselect_b32 s{sT2}, s{sW1B}, s{sW1A}
s_cselect_b32 s{sT1}, s{sFSEL}, 0
s_add_u32 s{sT2}, s{sT2}, s{sT1}
s_lshl_b32 s{sT1}, s{sT3}, 6
s_xor_b32 s{sT2}, s{sT2}, s{sT1}
v_and_b32 v{t1}, 3, v{vL}
v_bfe_u32 v{t2}, v{vL}, 2, 2
v_lshl_add_u32 v{t1}, v{t2}, 3, v{t1}
v_bfe_u32 v{t2}, v{vL}, 4, 1
v_lshl_add_u32 v{t1}, v{t2}, 2, v{t1}
v_lshl_add_u32 v{t1}, v{t1}, 1, s{sT2}
global_load_ushort v{PR}, v{t1}, s[{pB1}:{pB1 + 1}]
s_cmp_eq_u32 s{sT3}, 1
s_cselect_b32 s{sB}, s{pBIM}, s{pBRE}
s_cselect_b32 s{sB + 1}, s{pBIM + 1}, s{pBRE + 1}
s_mul_i32 s{sT3}, s{sT3}, {32 * 3584}
s_add_u32 s{sW1A}, s{sW1A}, s{sT3}
s_add_u32 s{sW1B}, s{sW1B}, s{sT3}
s_lshl_b32 s{sBB}, s{sJ}, 15
s_lshr_b32 s{sT1}, s{sW}, 1
s_add_u32 s{sT1}, s{sT1}, s{sROT}
s_and_b32 s{sKC[0]}, s{sT1}, 7
s_add_u32 s{sT1}, s{sT1}, 2
s_and_b32 s{sKC[1]}, s{sT1}, 7
s_add_u32 s{sT1}, s{sT1}, 2
s_and_b32 s{sKC[2]}, s{sT1}, 7
s_add_u32 s{sT1}, s{sT1}, 2
s_and_b32 s{sKC[3]}, s{sT1}, 7
v_xor_b32 v{PG[1]}, 64, v{PG[0]}
v_add_u32 v{PG[2]}, {14 * 1024}, v{PG[0]}
v_add_u32 v{PG[3]}, {21 * 1024}, v{PG[1]}
v_add_u32 v{PG[1]}, {7 * 1024}, v{PG[1]}
v_bfe_u32 v{t0}, v{vL}, 2, 1
v_lshrrev_b32 v{t1}, 5, v{vL}
v_and_b32 v{t2}, 1, v{vL}
v_lshlrev_b32 v{t2}, 4, v{t2}
v_mov_b32 v{VNM}, 0x3f80
v_lshlrev_b32 v{t2}, v{t2}, v{VNM}
v_cmp_eq_u32 vcc, v{t0}, v{t1}
v_bfe_u32 v{t0}, v{vL}, 1, 1
v_bfe_u32 v{t1}, v{vL}, 3, 2
v_cndmask_b32 v{t2}, 0, v{t2}, vcc
v_lshl_add_u32 v{t0}, v{t1}, 1, v{t0}
""")
for q in range(0, 8, 2):
    mid += L(f"""v_cmp_eq_u32 vcc, {q}, v{t0}
        v_cmp_eq_u32 s[{sSEL[1]}:{sSEL[2]}], {q + 1}, v{t0}
        s_nop 0
        v_cndmask_b32 v{TT + q}, 0, v{t2}, vcc
        v_cndmask_b32 v{TT + q + 1}, 0, v{t2}, s[{sSEL[1]}:{sSEL[2]}]""")
mid += L(f"""
v_lshrrev_b32 v{t1}, 3, v{vL}
v_mul_u32_u24 v{t1}, 3584, v{t1}
v_bfe_u32 v{t2}, v{vL}, 4, 1
v_lshlrev_b32 v{t2}, 2, v{t2}
v_xor_b32 v{t2}, v{t2}, v{vL}
v_and_b32 v{t2}, 7, v{t2}
v_lshl_add_u32 v{QG[0]}, v{t2}, 4, v{t1}
v_add_u32 v{QG[1]}, {27648}, v{QG[0]}
v_add_u32 v{QG[2]}, {2 * 27648}, v{QG[0]}
v_add_u32 v{QG[3]}, {3 * 27648}, v{QG[0]}
""")
late = L(f"""
s_mul_i32 s{sE2}, s{sE2}, 1664525
s_add_u32 s{sE2}, s{sE2}, 1013904226
s_or_b32 s{sTAG}, s{sE2}, 1
v_bfe_u32 v{t1}, v{vL}, 2, 2
v_lshrrev_b32 v{t2}, 5, v{vL}
v_lshl_add_u32 v{t2}, v{t2}, 3, v{t1}
v_lshlrev_b32 v{FA0}, 7, v{t2}
v_lshrrev_b32 v{t1}, 1, v{t1}
v_lshl_add_u32 v{FA0}, v{t1}, 6, v{FA0}
v_bfe_u32 v{t1}, v{vL}, 4, 1
v_lshl_add_u32 v{FA0}, v{t1}, 5, v{FA0}
v_and_b32 v{t1}, 3, v{vL}
v_lshl_add_u32 v{FA0}, v{t1}, 3, v{FA0}
v_lshlrev_b32 v{VL16}, 4, v{vL}
v_mov_b32 v{VLN2}, {LN2:#x}
s_cmp_eq_u32 s{sPB[0]}, 1
s_cselect_b32 s{sPB[1]}, 3, 1
s_cmp_eq_u32 s{sPB[0]}, 5
s_cselect_b32 s{sPB[2]}, 3, 5
s_lshl_b32 s{sSEL[0]}, s{sFSEL}, 9
s_lshl_b32 s{sAS}, s{sI}, 2
s_add_u32 s{sAS}, s{sAS}, s{sW}
s_lshl_b32 s{sAS}, s{sAS}, 2
s_add_u32 s{sAS}, s{sAS}, s{sKQ}
s_lshl_b32 s{sFLG}, s{sAS}, 11
s_add_u32 s{sFLG}, s{sFLG}, {WS_FL}
s_mul_i32 s{sAS}, s{sAS}, {44 * 1024}
s_add_u32 s{sAS}, s{sAS}, {WS_A}
s_lshl_b32 s{sT2}, s{sJJ}, 13
s_add_u32 s{sFST[0]}, s{sAS}, s{sT2}
s_add_u32 s{sFST[1]}, s{sFST[0]}, 2048
s_lshl_b32 s{sT2}, s{sPB[0]}, 12
s_add_u32 s{sFST[3]}, s{sAS}, s{sT2}
s_lshl_b32 s{sT2}, s{sFSEL}, 5
s_add_u32 s{sFST[2]}, s{sFST[3]}, s{sT2}
s_add_u32 s{sFST[3]}, s{sFST[3]}, 2048
s_lshl_b32 s{sT2}, s{sJJ}, 12
s_add_u32 s{sSST}, s{sAS}, s{sT2}
s_add_u32 s{sSST}, s{sSST}, {28 * 1024}
s_xor_b32 s{sT2}, s{sW}, s{sKQ}
s_lshl_b32 s{sT2}, s{sT2}, 15
s_lshl_b32 s{sCB}, s{sJJ}, 17
s_add_u32 s{sCB}, s{sCB}, s{sT2}
s_lshl_b32 s{sT2}, s{sKQ}, 8
s_add_u32 s{sCB}, s{sCB}, s{sT2}
s_lshr_b32 s{sT2}, s{sJJ}, 1
s_lshl_b32 s{sT2}, s{sT2}, 7
s_add_u32 s{sCB}, s{sCB}, s{sT2}
s_mul_i32 s{sW2B}, s{sKQ}, {448 * 1024}
s_lshr_b32 s{sT2}, s{sW}, 1
s_lshl_b32 s{sT2}, s{sT2}, 15
s_add_u32 s{sW2B}, s{sW2B}, s{sT2}
s_lshl_b32 s{sT2}, s{sJJ}, 8
s_add_u32 s{sW2B}, s{sW2B}, s{sT2}
s_lshr_b32 s{sT2}, s{sKQ}, 1
s_xor_b32 s{sT2}, s{sT2}, s{sW}
s_and_b32 s{sT2}, s{sT2}, 1
s_lshl_b32 s{sT2}, s{sT2}, 7
s_add_u32 s{sW2B}, s{sW2B}, s{sT2}
s_lshl_b32 s{sT2}, s{sI}, 4
s_add_u32 s{sT2}, s{sT2}, s{sJJ}
s_lshl_b32 s{sT2}, s{sT2}, 2
s_add_u32 s{sT2}, s{sT2}, s{sW}""")
for b in range(4):
    late += L(f"""s_xor_b32 s{sT3}, s{sKQ}, {b}
        s_lshl_b32 s{sT3}, s{sT3}, 4
        s_add_u32 s{sT3}, s{sT3}, s{sT2}
        s_mul_i32 s{sT3}, s{sT3}, {3 * XC_BLK}
        s_add_u32 s{sXO[b]}, s{sT3}, {WS_XC + (b - 1) * XC_BLK if b else WS_XC}""")
late += L(f"""s_add_u32 s{sSEL[2]}, s{sXO[0]}, {XC_BLK}
    s_add_u32 s{sSEL[3]}, s{sXO[0]}, {2 * XC_BLK}
    s_and_b32 s{sT3}, s{sJJ}, 1
    s_sub_u32 s{sSEL[1]}, 6, s{sT3}""")
pf = []
if OPT['pf'] == 2:
    late += L(f"""
s_and_b32 s{sT1}, s{sI}, 7
s_lshl_b32 s{sT2}, s{sT1}, 1
s_add_u32 s{sT2}, s{sT2}, s{sW}
s_mul_i32 s{sT2}, s{sT2}, 28
s_mul_i32 s{sT3}, s{sKQ}, 448
s_add_u32 s{sT2}, s{sT2}, s{sT3}
s_lshl_b32 s{sT2}, s{sT2}, 2
s_add_u32 s{sT2}, s{sT2}, s{sJJ}
s_lshl_b32 s{sT3}, s{sJJ}, 3
s_add_u32 s{sT3}, s{sT3}, s{sT1}
s_lshl_b32 s{sT3}, s{sT3}, 6
s_add_u32 s{sT3}, s{sT3}, s{sKQ}
s_cmp_lt_u32 s{sW}, 2
s_cselect_b32 s{sT2}, s{sT2}, s{sT3}
s_cselect_b32 s{sT3}, 56, 32
s_cselect_b32 s{sTMP}, s{sW2}, s{sCre}
s_cselect_b32 s{sTMP + 1}, s{sW2 + 1}, s{sCre + 1}
s_cselect_b32 s{sTMP + 2}, s{sW2 + 2}, s{sCre + 2}
s_cmp_eq_u32 s{sW}, 3
s_cselect_b32 s{sTMP}, s{sCim}, s{sTMP}
s_cselect_b32 s{sTMP + 1}, s{sCim + 1}, s{sTMP + 1}""")
elif OPT['pf']:
    late += L(f"""
s_mul_i32 s{sT2}, s{sKQ}, 448
s_mul_i32 s{sT3}, s{sI}, 28
s_add_u32 s{sT2}, s{sT2}, s{sT3}
s_lshl_b32 s{sT2}, s{sT2}, 2
s_add_u32 s{sT2}, s{sT2}, s{sJJ}
s_lshl_b32 s{sT3}, s{sJJ}, 4
s_add_u32 s{sT3}, s{sT3}, s{sI}
s_lshl_b32 s{sT3}, s{sT3}, 5
s_add_u32 s{sT3}, s{sT3}, s{sKQ}
s_cmp_eq_u32 s{sW}, 0
s_cselect_b32 s{sT2}, s{sT2}, s{sT3}
s_cselect_b32 s{sT3}, 56, 16
s_cselect_b32 s{sTMP}, s{sW2}, s{sCre}
s_cselect_b32 s{sTMP + 1}, s{sW2 + 1}, s{sCre + 1}
s_cselect_b32 s{sTMP + 2}, s{sW2 + 2}, s{sCre + 2}
s_cmp_eq_u32 s{sW}, 2
s_cselect_b32 s{sTMP}, s{sCim}, s{sTMP}
s_cselect_b32 s{sTMP + 1}, s{sCim + 1}, s{sTMP + 1}
s_cmp_eq_u32 s{sW}, 3
s_cselect_b32 s{sT3}, 0, s{sT3}""")
if OPT['pf']:
    late += L(f"""s_lshl_b32 s{sT2}, s{sT2}, 8
v_lshrrev_b32 v{t0}, 1, v{vL}
v_and_b32 v{t1}, 1, v{vL}
v_lshlrev_b32 v{t1}, 7, v{t1}
v_lshl_add_u32 v{t0}, v{t0}, 10, v{t1}
v_add_u32 v{t0}, s{sT2}, v{t0}
v_mov_b32 v{t1}, {OOB:#x}
v_cmp_gt_u32 vcc, s{sT3}, v{vL}
v_cndmask_b32 v{PI}, v{t1}, v{t0}, vcc""")
    pf = L(f'buffer_load_dword v{PI}, v{PI}, {srd(sTMP)}, 0 offen')

Z = FACC[0]
later = L(f"""
v_lshlrev_b32 v{NLI}, 16, v{NLI}
v_mul_f32 v{NLI}, {LOG2E:#x}, v{NLI}
v_exp_f32 v{NLI}, v{NLI}
v_lshlrev_b32 v{Z + 2}, 16, v{LR}
v_lshlrev_b32 v{Z + 3}, 16, v{LI}
v_cvt_pk_bf16_f32 v{NLI}, v{NLI}, v{NLI}
v_lshlrev_b32 v{NLI}, 16, v{NLI}
v_mul_f32 v{Z}, v{NLI}, v{Z + 2}
v_mul_f32 v{Z + 1}, v{NLI}, v{Z + 3}
v_mul_f32 v{Z}, {LOG2E:#x}, v{Z}
v_mul_f32 v{Z + 1}, 0xbe22f983, v{Z + 1}""")
later += cexp(LR, LI, '1.0', Z, Z + 1)
later += L(f"""
v_mul_f32 v{Z + 4}, v{Z + 2}, v{Z + 2}
v_fmac_f32 v{Z + 4}, v{Z + 3}, v{Z + 3}
v_rcp_f32 v{Z + 4}, v{Z + 4}
v_add_f32 v{Z + 5}, -1.0, v{LR}
v_sub_f32 v{NLI}, 0, v{LI}
v_add_f32 v{Z + 4}, v{Z + 4}, v{Z + 4}
v_mul_f32 v{CR}, v{Z + 5}, v{Z + 2}
v_fmac_f32 v{CR}, v{NLI}, v{Z + 3}
v_mul_f32 v{NCI}, v{Z + 5}, v{Z + 3}
v_fmac_f32 v{NCI}, v{LI}, v{Z + 2}
v_mul_f32 v{CR}, v{CR}, v{Z + 4}
v_mul_f32 v{NCI}, v{NCI}, v{Z + 4}
v_sub_f32 v{NCR}, 0, v{CR}""")
later += cexp(L16R, L16I, '0x41800000', Z, Z + 1)
later += cexp(L128R, L128I, '0x43000000', Z, Z + 1)
later += L(f"""
v_lshrrev_b32 v{Z + 6}, 5, v{vL}
s_lshl_b32 s{sT2}, s{sW}, 1
v_add_u32 v{Z + 6}, s{sT2}, v{Z + 6}
v_cvt_f32_u32 v{Z + 6}, v{Z + 6}
v_mul_f32 v{Z + 7}, 0x41800000, v{Z + 6}
v_sub_f32 v{Z + 6}, 0x40e00000, v{Z + 6}
v_mul_f32 v{Z + 6}, 0x43800000, v{Z + 6}""")
later += cexp(LSR, LSI, f'v{Z + 7}', Z, Z + 1)
later += cexp(WR, WI, f'v{Z + 6}', Z, Z + 1)
later += L(f"""v_lshlrev_b32 v{PR}, 16, v{PR}
v_mul_f32 v{PR}, {LOG2E:#x}, v{PR}
v_and_b32 v{t1}, 31, v{vL}
s_lshl_b32 s{sT1}, s{sW}, 7
s_add_u32 s{sT1}, s{sT1}, {T_B1}
v_lshl_add_u32 v{t1}, v{t1}, 2, s{sT1}
ds_write_b32 v{t1}, v{PR}""")
later = mid + later + [I(f'v_accvgpr_write_b32 a{aXE + r}, 0') for r in range(17)]
cuts = [0]
for n in range(1, 7):
    c = n * len(later) // 7
    while later[c].mn.startswith(('s_cselect', 'v_cndmask', 's_nop')) or later[c - 1].mn.startswith('v_cmp'):
        c += 1
    cuts.append(c)
cuts.append(len(later))

P += rx(2, 2) + [I('s_waitcnt lgkmcnt(0)')]
for s in range(8):
    P.append(Wait(f'x{s}'))
    if s == 0:
        P += stamp('x0')
    for q in range(4):
        P.append(I(f'ds_read_b128 {vr(X + 16 * s + 4 * q, 4)}, v{ASc[q]} offset:{(s & 3) * SLOT}', lds_r=s & 3,
                   tok=f'xr{s}' if q == 3 else None))
    P += later[cuts[s]:cuts[s + 1]] if s < 7 else []
    if s >= 5:
        P += rg(s - 5)
    for r in range(16):
        if r == 4 and s < 5:
            P += rx(s + 3, (s + 3) & 3)
        P.append(I(f'v_dot2c_f32_bf16 v{SUM[r & 1]}, s{sONES}, v{X + 16 * s + r}'))
        P.append(I(f'v_dot2c_f32_bf16 v{SQ[r & 1]}, v{X + 16 * s + r}, v{X + 16 * s + r}'))
P += stamp('x7')
P += L(f"""
v_add_f32 v{SUM[0]}, v{SUM[0]}, v{SUM[1]}
v_add_f32 v{SQ[0]}, v{SQ[0]}, v{SQ[1]}
v_mov_b32 v{SUM[1]}, v{SUM[0]}
v_mov_b32 v{SQ[1]}, v{SQ[0]}
v_permlane32_swap_b32 v{SUM[1]}, v{SUM[0]}
v_permlane32_swap_b32 v{SQ[1]}, v{SQ[0]}
v_add_f32 v{SUM[0]}, v{SUM[0]}, v{SUM[1]}
v_add_f32 v{SQ[0]}, v{SQ[0]}, v{SQ[1]}
v_mul_f32 v{SUM[0]}, 0x3b000000, v{SUM[0]}
v_mul_f32 v{SQ[0]}, 0x3b000000, v{SQ[0]}
v_fma_f32 v{SQ[0]}, -v{SUM[0]}, v{SUM[0]}, v{SQ[0]}
v_max_f32 v{SQ[0]}, 0, v{SQ[0]}
v_cvt_pk_bf16_f32 v{t0}, v{SUM[0]}, v{SQ[0]}
v_lshlrev_b32 v{VNM}, 16, v{t0}
v_sub_f32 v{SIM}, 0, v{VNM}
v_sub_f32 v{SIM + 1}, 0, v{VNM}
""")
P += [I(f'v_mov_b64 {vr(SIM + 2 * q, 2)}, {vr(SIM, 2)}') for q in range(1, 8)]

DB = [FACC[0], FACC[1], SRE]
items = []
for q in range(16):
    d = vr(DB[q % 3], 16)
    for h in range(2):
        it = [mfma(d, vr(TT + 4 * h, 4), vr(X + 8 * q + 4 * h, 4), vr(SIM, 16) if h == 0 else d)]
        if q >= 2:
            o = q - 2
            it += [I(f'v_cvt_pk_bf16_f32 v{X + 8 * o + 4 * h + e}, v{DB[o % 3] + 8 * h + 2 * e}, '
                     f'v{DB[o % 3] + 8 * h + 2 * e + 1}') for e in range(4)]
        items.append(it)
fill = L(f"""
v_and_b32 v{t0}, 0xffff0000, v{t0}
v_add_f32 v{t0}, 0x3727c5ac, v{t0}
v_cvt_pk_bf16_f32 v{t0}, v{t0}, v{t0}
v_lshlrev_b32 v{t0}, 16, v{t0}
v_sqrt_f32 v{t0}, v{t0}
v_and_b32 v{t1}, 3, v{vL}
v_cvt_pk_bf16_f32 v{t0}, v{t0}, v{t0}
v_lshlrev_b32 v{t0}, 16, v{t0}
v_rcp_f32 v{VRS}, v{t0}
v_bfe_u32 v{t2}, v{vL}, 3, 2
v_lshl_add_u32 v{t1}, v{t2}, 2, v{t1}
v_bfe_u32 v{t2}, v{vL}, 2, 1
v_lshl_add_u32 v{t1}, v{t2}, 4, v{t1}
s_lshl_b32 s{sT1}, s{sW}, 8
s_add_u32 s{sT1}, s{sT1}, {T_STAT}
v_lshl_add_u32 v{t1}, v{t1}, 2, s{sT1}
v_mul_f32 v{RL2}, {LOG2E:#x}, v{VRS}
ds_write_b32 v{t1}, v{VNM}
""")
fill.append(I(f'ds_write_b32 v{t1}, v{VRS} offset:128', tok='tabw'))
LA_S, LA_F = 3, OPT['laf']


def s_addr(slot):
    return [I(f'v_add_u32 v{ASc[q]}, {slot * SLOT}, v{AS[q]}') for q in range(4)]


def s_read(s, ri):
    return I(f'ds_read_b128 {ar(aS + 8 * (s & 3) + 4 * ri, 4)}, v{ASc[s & 3]} offset:{(2 * ((s >> 2) & 1) + ri) * 4096}',
             lds_r=G_SLOT[s >> 3])


def f_addr(b, g):
    slot = G_SLOT[(4 if b < 2 else 8) + g]
    if b < 2:
        sel = [I(f'v_xor_b32 v{FAc}, 64, v{FA0}')] if b else []
        return sel + [I(f'v_add_u32 v{FAc}, {slot * SLOT}, v{FAc if b else FA0}')]
    return [I(f'v_xor_b32 v{FAc}, s{sFSEL}, v{FA0}'), I(f'v_add_u32 v{FAc}, {slot * SLOT}, v{FAc}')]


def f_read(b, s):
    out = f_addr(b, s >> 3) if s % 8 == 0 else []
    k = (32 * b + s) & 7
    for u in range(2):
        out.append(I(f'ds_read_b64_tr_b16 {ar(aF + 4 * k + 2 * u, 2)}, v{FAc} '
                     f'offset:{((s >> 1) & 3) * 4096 + (s & 1) * 2048 + u * 512}',
                     lds_r=G_SLOT[(4 if b < 2 else 8) + (s >> 3)]))
    return out


pin = pins((1, rg(3)), (9, rg(4)), (17, rg(5)),
           (27, s_addr(G_SLOT[0]) + stamp('c27') + BAR('G0', 'G1', 'tabw', 'zero') + stamp('b0')))
for k in range(LA_S):
    pin[28 + k] = [s_read(k, 0), s_read(k, 1)]
P += weave(items, fill, pin, 0, 20)
for o in (14, 15):
    P += [I(f'v_cvt_pk_bf16_f32 v{X + 8 * o + e}, v{DB[o % 3] + 2 * e}, v{DB[o % 3] + 2 * e + 1}') for e in range(8)]

S_items = []
for s in range(32):
    for ri, acc in ((0, SRE), (1, SIM)):
        it = [mfma(vr(acc, 16), vr(X + 4 * s, 4), ar(aS + 8 * (s & 3) + 4 * ri, 4), vr(acc, 16) if s else '0')]
        n = s + LA_S
        if n < 32:
            if ri == 0 and n % 8 == 0:
                it += s_addr(G_SLOT[n >> 3])
            it.append(s_read(n, ri))
        S_items.append(it)
for k in range(LA_F):
    S_items[64 - LA_F + k] += f_read(0, k)
F_items = []
for b in range(4):
    its = []
    for s in range(32):
        acc = vr(FACC[b & 1], 16)
        it = [mfma(acc, ar(aF + 4 * ((32 * b + s) & 7), 4), vr(X + 4 * s, 4), acc if s else '0')]
        n = s + LA_F
        if n < 32:
            it += f_read(b, n)
        elif b < 3:
            if b == 2 and n == 32:
                it.append(I(f's_xor_b32 s{sFSEL}, s{sFSEL}, 64'))
            it += f_read(b + 1, n - 32)
        its.append(it)
    F_items.append(its)

FLA, FLP = VNM, VRS
fill = late + pf + L(f"""
v_lshrrev_b32 v{t0}, 3, v{vL}
v_bfe_u32 v{t1}, v{vL}, 4, 1
v_lshlrev_b32 v{t1}, 2, v{t1}
v_xor_b32 v{t1}, v{t1}, v{vL}
v_and_b32 v{t1}, 7, v{t1}
v_lshlrev_b32 v{t1}, 4, v{t1}
v_lshl_add_u32 v{XG[0]}, v{t0}, 10, v{t1}
v_add_u32 v{XG[1]}, {7 * 1024}, v{XG[0]}
v_add_u32 v{XG[2]}, {14 * 1024}, v{XG[0]}
v_add_u32 v{XG[3]}, {21 * 1024}, v{XG[0]}
v_lshrrev_b32 v{t2}, 5, v{vL}
v_lshlrev_b32 v{t2}, 6, v{t2}
v_add_u32 v{t2}, {TB}, v{t2}
s_lshl_b32 s{sT2}, s{sW}, 8
v_add_u32 v{t1}, s{sT2}, v{t2}""")
fill += [I(f'ds_read_b128 {vr(FACC[1] + 4 * q, 4)}, v{t1} offset:{128 + 16 * q}') for q in range(4)]
xe = L(f"""v_and_b32 v{t0}, 31, v{vL}
    v_lshrrev_b32 v{t1}, 5, v{vL}
    v_lshlrev_b32 v{t1}, 14, v{t1}
    v_lshl_add_u32 v{t1}, v{t0}, 1, v{t1}
    s_lshl_b32 s{sT2}, s{sJJ}, 2
    s_add_u32 s{sT2}, s{sT2}, s{sKQ}
    s_lshl_b32 s{sT2}, s{sT2}, 6
    v_lshl_add_u32 v{t0}, v{t0}, 1, s{sT2}
    s_add_u32 s{sXB}, s{sXB}, s{sT2}
    global_load_short_d16_hi a{aXE + 16}, v{t0}, s[{pDSK}:{pDSK + 1}]""")
for r in range(16):
    if r % 4 == 0:
        xe.append(I(f's_add_u32 s{sT2}, s{sXB}, {1024 * r}'))
    xe.append(I(f'buffer_load_short_d16_hi a{aXE + r}, v{t1}, {srd(sX)}, s{sT2} offen offset:{1024 * (r & 3)}'))
if OPT['fw']:
    fill += L(f"""s_lshl_b32 s{sT2}, s{sJJ}, 9
        s_add_u32 s{sT2}, s{sT2}, s{sFLG}
        v_lshlrev_b32 v{t0}, 3, v{vL}
        v_mov_b32 v{TT}, 0
        v_mov_b32 v{TT + 1}, 0
        buffer_store_dwordx2 {vr(TT, 2)}, v{t0}, {srd(sWS)}, s{sT2} offen sc1""")
if OPT['xw'] == 1:
    fill += L(f'v_lshlrev_b32 v{t0}, 2, v{vL}')
    for b in (1, 2, 3):
        fill += L(f"""buffer_store_dwordx4 {vr(TT, 4)}, v{VL16}, {srd(sWS)}, s{sXO[b]} offen sc1
            buffer_store_dwordx4 {vr(TT, 4)}, v{VL16}, {srd(sWS)}, s{sXO[b]} offen offset:1024 sc1
            buffer_store_dword v{vL}, v{t0}, {srd(sWS)}, s{sXO[b]} offen offset:2048 sc1""")
elif OPT['xw']:
    fill += L(f"""v_lshlrev_b32 v{t0}, 7, v{vL}
        v_min_u32 v{t0}, {59 * 128}, v{t0}
        buffer_load_dword a60, v{t0}, {srd(sWS)}, s{sXO[0]} offen {('', '', 'sc1', 'sc1 nt')[OPT['xw']]}""")
if not OPT['xel']:
    fill, xe = fill + xe, []
pin = pins((2, rg(6)), (12, rg(7)), (24, BAR('G2', 'G3')), (26, rg(8)), (38, rg(9)),
           (63 - LA_F, stamp('s59') + BAR('G4', 'G5', 'G6', 'G7') + stamp('b2')))
P += weave(fine('S', S_items, 3), fill, pin, 0, 62 - LA_F)

Q = FACC[1]
V = lambda t: SRE + t if t % 2 == 0 else SIM + t - 1
AGR, AGI = VRS, t3
fill = []
for q in range(8):
    for h in range(2):
        r = 2 * q + h
        fill += L(f"""v_mul_f32 v{TT + 2 * h}, v{SRE + r}, v{CR}
            v_mul_f32 v{TT + 2 * h + 1}, v{SRE + r}, v{NCI}
            v_fmac_f32 v{TT + 2 * h}, v{SIM + r}, v{NCI}
            v_fmac_f32 v{TT + 2 * h + 1}, v{SIM + r}, v{NCR}""")
    for h in range(2):
        r = 2 * q + h
        fill += L(f"""v_mul_f32 v{V(r)}, v{TT + 2 * h}, v{Q + r}
            v_mul_f32 v{V(r) + 1}, v{TT + 2 * h + 1}, v{Q + r}""")
    for r in (2 * q, 2 * q + 1):
        if r:
            pr = V(0) if r == 1 else (t0 if r & 1 else AGR)
            pi_ = V(0) + 1 if r == 1 else (FAd if r & 1 else AGI)
            nr, ni = (AGR, AGI) if r & 1 else (t0, FAd)
            fill += L(f"""v_fma_f32 v{nr}, v{LR}, v{pr}, v{V(r)}
                v_fma_f32 v{ni}, v{LR}, v{pi_}, v{V(r) + 1}
                v_fmac_f32 v{nr}, v{NLI}, v{pi_}
                v_fmac_f32 v{ni}, v{LI}, v{pr}""")
fill += L(f"""s_lshl_b32 s{sT2}, s{sW}, 9
    s_add_u32 s{sT2}, s{sT2}, {T_SEG}
    v_lshl_add_u32 v{t1}, v{vL}, 3, s{sT2}""")
fill.append(I(f'ds_write_b64 v{t1}, {vr(AGR, 2)} offset:{7 * 256}', tok='segw'))
pin = pins((1, rg(10)), (14, rg(11)), (31, BAR('segw')))
P += weave(fine('F0', F_items[0], 3), fill, pin, 2, 30)
P += stamp('F0')

E = ASc[0]
R0, R1, T0_, T1_ = QG[0], TT + 12, ASc[0], ASc[2]
m0 = mish(0)
q0 = len(m0) // 4 - 4
fill = [I(f'ds_read2_b64 {vr(R0, 4)}, v{t1} offset0:0 offset1:32'),
        I(f'ds_read2_b64 {vr(R1, 4)}, v{t1} offset0:64 offset1:96')] + m0[:q0]
fill += cmul_add(PR, PI, L16R, L16I, R0, R0 + 1, R0 + 2, R0 + 3)
fill.append(I(f'ds_read2_b64 {vr(R0, 4)}, v{t1} offset0:128 offset1:160'))
fill += cmul_add(T0_, T0_ + 1, L16R, L16I, PR, PI, R1, R1 + 1)
fill += cmul_add(PR, PI, L16R, L16I, T0_, T0_ + 1, R1 + 2, R1 + 3)
fill.append(I(f'ds_read_b64 {vr(R1, 2)}, v{t1} offset:{6 * 256}'))
fill += m0[q0:2 * q0]
fill += cmul_add(T0_, T0_ + 1, L16R, L16I, PR, PI, R0, R0 + 1)
fill += cmul_add(T1_, T1_ + 1, L16R, L16I, T0_, T0_ + 1, R0 + 2, R0 + 3)
fill += cmul_add(PR, PI, L16R, L16I, T1_, T1_ + 1, R1, R1 + 1)
fill += cmul_add(E, E + 2, L16R, L16I, PR, PI, AGR, AGI)
fill += L(f"""v_mov_b32 v{E + 1}, s{sTAG}
    v_mov_b32 v{E + 3}, s{sTAG}
    s_lshl_b32 s{sT2}, s{sJ}, 4
    s_add_u32 s{sT2}, s{sT2}, s{sI}
    s_lshl_b32 s{sT2}, s{sT2}, 9
    s_add_u32 s{sT2}, s{sT2}, {WS_AG - 512}
    s_cmp_eq_u32 s{sW}, 3
    s_cselect_b32 s{sT2}, s{sT2}, {OOB:#x}
    v_mov_b32 v{t0}, {OOB:#x}
    v_cmp_gt_u32 vcc, 32, v{vL}
    v_add_u32 v{t1}, s{sT2}, v{VL16}
    v_cndmask_b32 v{t1}, v{t1}, v{t0}, vcc
    buffer_store_dwordx4 {vr(E, 4)}, v{t1}, {srd(sWS)}, 0 offen sc1""")
fill += m0[2 * q0:]
pin = pins((4, rw('WA0')), (31 - LA_F, BAR('G8', 'G9', 'G10', 'G11')))
P += weave(fine('F0', F_items[1], 3), fill, pin, 1, 31)
P += stamp('F1')

LBA = [CR, NCI]
LBE = [NCR, L16R]
LBD = [ASc[0], QG[0]]
FLV = L16I
lb_loads = '\n'.join(f'buffer_load_dwordx4 {vr(LBD[e], 4)}, v{LBA[e]}, {srd(sWS)}, 0 offen sc1' for e in range(2))
lb_setup = L(f"""v_lshrrev_b32 v{t0}, 5, v{vL}
    s_lshl_b32 s{sT2}, s{sW}, 2
    s_add_u32 s{sT2}, s{sT2}, s{sI}
    s_sub_u32 s{sT2}, s{sT2}, 16
    v_lshl_add_u32 v{t0}, v{t0}, 1, s{sT2}
    s_lshl_b32 s{sT2}, s{sJ}, 13
    s_add_u32 s{sT2}, s{sT2}, {WS_AG}
    v_and_b32 v{t1}, 31, v{vL}
    v_lshl_add_u32 v{t1}, v{t1}, 4, s{sT2}
    v_lshl_add_u32 v{LBA[0]}, v{t0}, 9, v{t1}
    v_add_u32 v{LBA[1]}, 512, v{LBA[0]}
    v_mov_b32 v{t1}, {OOB:#x}
    v_mov_b32 v{FLV}, s{sTAG}
    v_cmp_gt_i32 vcc, 0, v{t0}
    v_cndmask_b32 v{LBA[0]}, v{LBA[0]}, v{t1}, vcc
    v_cndmask_b32 v{LBE[0]}, v{FLV}, 0, vcc
    v_cmp_gt_i32 vcc, -1, v{t0}
    v_cndmask_b32 v{LBA[1]}, v{LBA[1]}, v{t1}, vcc
    v_cndmask_b32 v{LBE[1]}, v{FLV}, 0, vcc""")
lb_setup += L(f"""s_lshl_b32 s{sT2}, s{sJJ}, 9
    s_add_u32 s{sT2}, s{sT2}, s{sFLG}
    v_and_b32 v{FLA}, 31, v{vL}
    v_lshl_add_u32 v{FLA}, v{FLA}, 2, s{sT2}
    v_and_b32 v{t0}, 3, v{vL}
    v_max_u32 v{t0}, 1, v{t0}
    v_xor_b32 v{t0}, s{sJJ}, v{t0}
    v_lshl_add_u32 v{FLP}, v{t0}, 9, s{sFLG}""")
def flag_store(stage, toks):
    out = [Wait(*toks), I(f'buffer_store_dword v{FLV}, v{FLA}, {srd(sWS)}, 0 offen offset:{128 * stage} sc1')]
    if OPT['ppf']:
        so = (sFST[0], sSST, sFST[2])[stage]
        vpf = L128R if stage else t3
        out = [I(f'v_lshlrev_b32 v{vpf}, {6 if stage < 2 else "s%d" % sSEL[1]}, v{vL}')] + out
        out.append(I(f'buffer_load_dword a{60 + (stage & 1)}, v{vpf}, {srd(sWS)}, s{so} offen sc1'))
    return out


def flag_load(stage):
    return f'buffer_load_dword v{t3}, v{FLP}, {srd(sWS)}, 0 offen offset:{128 * stage} sc1'


flag_check = f'v_cmp_ne_u32 vcc, s{sTAG}, v{t3}'
lb_check = f"""v_bitop3_b32 v{t0}, v{LBD[0] + 1}, v{LBD[0] + 3}, v{LBE[0]} bitop3:0x7e
    v_bitop3_b32 v{t1}, v{LBD[1] + 1}, v{LBD[1] + 3}, v{LBE[1]} bitop3:0x7e
    v_or_b32 v{t0}, v{t0}, v{t1}
    v_cmp_ne_u32 vcc, 0, v{t0}"""
lb_part = stamp('lb0') + poll('lb', lb_loads, lb_check) + stamp('lb1')
lb_part += cmul_add(LBD[0] + 1, LBD[0] + 3, L128R, L128I, LBD[0], LBD[0] + 2, LBD[1], LBD[1] + 2)
lb_part += cmul_add(LBD[1], LBD[1] + 1, WR, WI, LBD[0] + 1, LBD[0] + 3)
lb_part += L(f"""s_lshl_b32 s{sT2}, s{sW}, 9
    s_add_u32 s{sT2}, s{sT2}, {T_LB}
    v_lshl_add_u32 v{t1}, v{vL}, 3, s{sT2}""")
lb_part.append(I(f'ds_write_b64 v{t1}, {vr(LBD[1], 2)}', tok='lbw'))
HW, HR, HB = ASc[0], ASc[1], FACC[1]
HW2, HR2 = WR, WI
tail_addr = L(f"""v_and_b32 v{HW}, 31, v{vL}
    v_lshlrev_b32 v{ASc[3]}, 3, v{HW}
    v_add_u32 v{ASc[3]}, {T_LB}, v{ASc[3]}
    v_lshrrev_b32 v{t0}, 5, v{vL}
    s_lshl_b32 s{sT2}, s{sW}, 11
    s_add_u32 s{sT2}, s{sT2}, {T_H}
    v_lshl_add_u32 v{HW}, v{HW}, 6, s{sT2}
    v_bfe_u32 v{HR}, v{vL}, 1, 2
    v_lshlrev_b32 v{HW2}, 1, v{t0}
    v_xor_b32 v{HR}, v{HR}, v{HW2}
    v_lshl_add_u32 v{HW}, v{HR}, 4, v{HW}
    v_xor_b32 v{HW2}, 16, v{HW}
    v_bfe_u32 v{HR}, v{vL}, 2, 2
    v_lshl_add_u32 v{HR}, v{t0}, 3, v{HR}
    v_lshl_add_u32 v{HR}, v{HR}, 6, s{sT2}
    v_and_b32 v{t0}, 1, v{vL}
    v_lshl_add_u32 v{HR}, v{t0}, 5, v{HR}
    v_lshrrev_b32 v{t0}, 1, v{vL}
    v_xor_b32 v{t0}, v{t0}, v{vL}
    v_and_b32 v{t0}, 8, v{t0}
    v_lshl_add_u32 v{HR}, v{t0}, 1, v{HR}
    v_bfe_u32 v{t0}, v{vL}, 1, 1
    v_lshl_add_u32 v{HR}, v{t0}, 3, v{HR}
    v_xor_b32 v{HR2}, 32, v{HR}
    s_bitcmp1_b32 s{sJJ}, 0
    s_cselect_b32 s{sT2}, {OOB:#x}, 0
    v_add_u32 v{ASc[2]}, s{sT2}, v{VL16}
    s_mov_b32 s{sKC[0]}, {M2LN2:#x}""")
lb_reads = [I(f'ds_read2_b64 {vr(HB + 4 * q, 4)}, v{ASc[3]} offset0:{64 * q} offset1:{64 * q + 32}') for q in range(4)]
scan = [I(f'v_pk_add_f32 {vr(HB + a, 2)}, {vr(HB + a, 2)}, {vr(HB + b_, 2)}')
        for a, b_ in ((0, 2), (4, 6), (8, 10), (12, 14), (0, 4), (8, 12), (0, 8))]
scan += cmul_add(L128R, L128I, LSR, LSI, HB, HB + 1, PR, PI)
for r in range(16):
    prev = vr(L128R if r == 0 else V(r - 1), 2)
    scan += L(f"""v_pk_fma_f32 {vr(V(r), 2)}, {prev}, {vr(LR, 2)}, {vr(V(r), 2)} op_sel_hi:[1,0,1]
        v_pk_fma_f32 {vr(V(r), 2)}, {prev}, {vr(NLI, 2)}, {vr(V(r), 2)} op_sel:[1,0,0] op_sel_hi:[0,1,1]""")
    if r & 1:
        scan += L(f"""v_cvt_pk_bf16_f32 v{HB + (r >> 1)}, v{V(r - 1)}, v{V(r)}
            v_cvt_pk_bf16_f32 v{HB + 8 + (r >> 1)}, v{V(r - 1) + 1}, v{V(r) + 1}""")
for ri in range(2):
    scan += [I(f'ds_write_b128 v{(HW, HW2)[h]}, {vr(HB + 8 * ri + 4 * h, 4)}') for h in range(2)]
    for fr in range(2):
        for u in range(2):
            scan.append(I(f'ds_read_b64_tr_b16 {ar(aOS + 8 * ri + 4 * fr + 2 * u, 2)}, v{(HR, HR2)[u]} offset:{1024 * fr + 256 * u}'))
m1 = mish(1)
per = sum(i.slots() for i in lb_setup + m1 + lb_part + tail_addr) / 27
c1 = next(n for n in range(len(m1)) if sum(i.slots() for i in lb_setup + m1[:n]) >= per * (OPT['lbl'] - 2))
fill = lb_setup + m1[:c1] + L(lb_loads) + m1[c1:] + lb_part + tail_addr
pin = pins((0, rw('CR0')), (8, rw('CI0')), (18, rw('WA1')), (29, BAR('lbw') + lb_reads))
P += weave(fine('F2', F_items[2], 2), fill, pin, 2, 28)
P += stamp('F2')
m2 = mish_pk(2, VL16, range(1))
burst = m2[:2] + merge(scan, m2[2:-5])
if OPT['fas'] < 0:
    burst = burst[:OPT['fas']] + flag_store(0, ['stF0', 'stF1']) + burst[OPT['fas']:]
P += burst
for q in range(4):
    F_items[3][1 + q].append(I(f'buffer_store_dwordx4 {ar(aOS + 4 * q, 4)}, v{VL16}, {srd(sWS)}, s{sSST} offen '
                               f'offset:{1024 * q} sc1', tok='stH' if q == 3 else None))
P += stamp('scan')


FP0, FPc = [CR, NCI], [QG[2], QG[3]]
PA = OPT['pa']
p3_setup = L(f"""v_bfe_u32 v{t1}, v{vL}, 2, 2
    v_lshrrev_b32 v{t0}, 5, v{vL}
    v_lshl_add_u32 v{t0}, v{t0}, 2, v{t1}
    v_lshlrev_b32 v{FP0[0]}, 7, v{t0}
    v_lshrrev_b32 v{t1}, 1, v{t1}
    s_and_b32 s{sT2}, s{sKQ}, 1
    v_xor_b32 v{t1}, s{sT2}, v{t1}
    v_lshl_add_u32 v{FP0[0]}, v{t1}, 6, v{FP0[0]}
    v_bfe_u32 v{t1}, v{vL}, 4, 1
    v_lshl_add_u32 v{FP0[0]}, v{t1}, 5, v{FP0[0]}
    v_and_b32 v{t1}, 3, v{vL}
    v_lshl_add_u32 v{FP0[0]}, v{t1}, 3, v{FP0[0]}
    v_xor_b32 v{FP0[1]}, 64, v{FP0[0]}
    s_and_b32 s{sT2}, s{sJJ}, 1
    s_lshl_b32 s{sT2}, s{sT2}, 6""") + [I(f'v_xor_b32 v{AS[q]}, s{sT2}, v{AS[q]}') for q in range(4)]
fill = m2[-5:] + mish(2, VL16, (2, 3)) + p3_setup

steps = ([('WA0', x, 'own') for x in range(4)]
         + [(n, x, 'own') for n in ('CR0', 'CI0') for x in range(2)]
         + [(f'WA{e}', x, 'A') for e in (1, 2, 3) for x in range(4)]
         + [(n, x, 'H') for n in ('CR0', 'CI0') for x in (2, 3)]
         + [(n, x, 'H') for n in ('CR1', 'CI1') for x in range(4)]
         + [('WB0', x, 'own') for x in range(4)]
         + [(f'WB{e}', x, 'B') for e in (1, 2) for x in range(4)])
deferred = [k for k, st in enumerate(steps) if st[2] != 'own']
A_REGS = ([192 + 4 * n for n in range(16)] + [SRE + 4 * n for n in range(8)]
          + [FACC[0] + 4 * n for n in range(4)] + [TT + 4 * n for n in range(4)])
ACC = [128, 144, 160, 176]
cur_addr = {}


def a_frag(k):
    name, x, src = steps[k]
    if src != 'own':
        return vr(A_REGS[deferred.index(k)], 4)
    if name == 'WA0':
        return ar(aOF + 4 * x, 4)
    if name == 'WB0':
        return ar(aOF + 16 + 4 * x, 4) if x < 2 else vr(FACC[1] + 4 * (x - 2), 4)
    return ar(aOS + 8 * (name[1] == 'I') + 4 * x, 4)


def a_load(k):
    name, x, src = steps[k]
    e = int(name[2])
    if name[0] == 'C':
        code = f's_xor_b32 s{sT1}, s{sJJ}, {2 * e + (x >> 1)}\ns_lshl_b32 s{sT1}, s{sT1}, 12\n' \
               f's_add_u32 s{sT1}, s{sT1}, {28 * 1024}\ns_add_u32 s{sT1}, s{sT1}, s{sAS}'
        off = 2048 * (name[1] == 'I') + 1024 * (x & 1)
        fresh = x & 1 == 0
    else:
        if name[1] == 'A':
            code = f's_xor_b32 s{sT1}, s{sJJ}, {e}\ns_lshl_b32 s{sT1}, s{sT1}, 13\ns_add_u32 s{sT1}, s{sT1}, s{sAS}'
        else:
            code = f's_lshl_b32 s{sT1}, s{sPB[e]}, 12\ns_add_u32 s{sT1}, s{sT1}, s{sAS}'
        off = 1024 * x
        fresh = x == 0
    return (L(code) if fresh else []) + \
        [I(f'buffer_load_dwordx4 {a_frag(k)}, v{VL16}, {srd(sWS)}, s{sT1} offen offset:{off} sc1')]


pin = pins((PA, rw('WA2')), (PA + 8, BAR()), (PA + 9, rw('WA3')), (PA + 17, BAR()), (PA + 18, rw('CR1')),
           (OPT['fal'], L(flag_load(0))), (30, BAR('WA0', 'CR0', 'CI0', 'WA1')))
if OPT['fhs'] >= 0:
    pin[OPT['fhs']] = flag_store(1, ['stH'])
if OPT['fas'] >= 0:
    pin[OPT['fas']] = flag_store(0, ['stF0', 'stF1'])
P += weave(fine('F3', F_items[3], 2), fill, pin, 1, 29)
P += stamp('F3')

m3 = mish_pk(3, ASc[2])
st0 = next(n for n, i_ in enumerate(m3) if i_.kind == 'vm')
early = sum((a_load(k) for k in range(8, 8 + OPT['nea'])), [])
fac = st0 - OPT['fac']
P += m3[:fac] + (flag_store(1, ['stH']) if OPT['fhs'] < 0 else [])
P += stamp('fa0') + poll('fa', flag_load(0), flag_check) + stamp('fa1')
P += merge(m3[fac:st0], early) + (L(flag_load(1)) if OPT['fhl'] < 0 else []) + m3[st0:]
P += stamp('tail')

XE, ME = 192, LSR
ep_setup = L(f"""v_lshrrev_b32 v{t1}, 5, v{vL}
    s_lshl_b32 s{sT2}, s{sW}, 8
    s_add_u32 s{sT2}, s{sT2}, {T_STAT}
    v_lshl_add_u32 v{VLN2}, v{t1}, 6, s{sT2}
    v_lshlrev_b32 v{FA0}, 15, v{t1}
    v_and_b32 v{t0}, 31, v{vL}
    v_lshl_add_u32 v{FA0}, v{t0}, 2, v{FA0}""")
VL4 = ASc[0]
ep_setup = L(f'v_lshlrev_b32 v{VL4}, 2, v{vL}') + ep_setup
base_calc = [I(f'v_accvgpr_read_b32 v{RL2}, a{aXE + 16}')]
for qt in range(4):
    base_calc += [I(f'ds_read_b128 {vr(ME, 4)}, v{VLN2} offset:{16 * qt}', hoist=True),
                  I(f'ds_read_b128 {vr(ME + 4, 4)}, v{VLN2} offset:{128 + 16 * qt}', hoist=True)]
    rs = range(4)
    base_calc += [I(f'v_accvgpr_read_b32 v{XE + 4 * qt + r}, a{aXE + 4 * qt + r}') for r in rs]
    base_calc += [I(f'v_sub_f32 v{ME + r}, v{XE + 4 * qt + r}, v{ME + r}') for r in rs]
    base_calc += [I(f'v_mul_f32 v{ME + r}, v{ME + r}, v{ME + 4 + r}') for r in rs]
    base_calc += [I(f'v_fmac_f32 v{XE + 4 * qt + r}, v{ME + r}, v{RL2}') for r in rs]

def checksum(dst, src, last):
    return [f'v_bitop3_b32 v{dst}, v{src}, v{src + 1}, {last} bitop3:0x96'] + \
           [f'v_bitop3_b32 v{dst}, v{src + e}, v{src + e + 1}, v{dst} bitop3:0x96' for e in (2, 4, 6)]


def send(b):
    A = ACC[b]
    out = []
    for q in range(2):
        out += [I(f'v_cvt_pk_bf16_f32 v{A + e}, v{A + 2 * e}, v{A + 2 * e + 1}') for e in range(4 * q, 4 * q + 4)]
        out.append(I(f'buffer_store_dwordx4 {vr(A + 4 * q, 4)}, v{VL16}, {srd(sWS)}, s{sXO[b]} offen '
                     f'offset:{1024 * q} sc1'))
    out += [I(c) for c in checksum(A + 8, A, f's{sTAG}')]
    out.append(I(f'buffer_store_dword v{A + 8}, v{VL4}, {srd(sWS)}, s{sXO[b]} offen offset:2048 sc1'))
    return out


def w_read1(k, b, dst):
    name, x, src = steps[k]
    slot = W_SLOT[name]
    if name[0] == 'C':
        return [I(f'v_add_u32 v{FAc}, {slot * SLOT}, v{AS[x]}'),
                I(f'ds_read_b128 {ar(dst, 4)}, v{FAc} offset:{4096 * b}', lds_r=slot)]
    key = FPc[b & 1]
    out = []
    if cur_addr.get(key) != slot:
        cur_addr[key] = slot
        out.append(I(f'v_add_u32 v{key}, {slot * SLOT}, v{FP0[b & 1]}'))
    return out + [I(f'ds_read_b64_tr_b16 {ar(dst + 2 * u, 2)}, v{key} '
                    f'offset:{8192 * (x >> 1) + 4096 * (b >> 1) + 2048 * (x & 1) + 1024 * u}', lds_r=slot) for u in range(2)]


RX = {1: ACC[1], 2: ACC[2], 3: ACC[3]}


def recv(b):
    so = sXO[0] if b == 1 else sSEL[b]
    rl = [f'buffer_load_dwordx4 {vr(RX[b] + 4 * q, 4)}, v{VL16}, {srd(sWS)}, s{so} offen offset:{1024 * q} sc1' for q in range(2)]
    rl.append(f'buffer_load_dword v{RX[b] + 8}, v{VL4}, {srd(sWS)}, s{so} offen offset:2048 sc1')
    return '\n'.join(rl)


pre = L(f"""s_lshl_b32 s{sXB}, s{sXB}, 1
    s_mov_b32 s{sKC[0]}, 0x00003f80
    s_mov_b32 s{sKC[1]}, 0x3f800000""")
E3 = OPT['e3']
seq = [(k, b) for k in range(8) for b in (1, 2, 3, 0)] + [(k, b) for k in range(8, E3) for b in (1, 2, 3)]
seq += [(k, b) for k in range(E3, 36) for b in (1, 2)]
seq += [(k, b) for b in (1, 2) for k in range(36, 44)]
seq += [(k, 3) for k in range(E3, 44)] + [(k, 0) for k in range(8, 44)]
at = {kb: n for n, kb in enumerate(seq)}
done_at = {b: at[43, b] for b in (1, 2, 3)}
KEEP = {(k, 0): aWO + 4 * (k - 8) for k in range(8, 12)}
reads = sorted((kb for kb in seq), key=lambda kb: at[kb[0], 3] + 0.5 if kb in KEEP else at[kb])
RING = 12
where, nring = {}, 0
for kb in reads:
    if kb in KEEP:
        where[kb] = KEEP[kb]
    else:
        where[kb] = aP + 4 * (nring % RING)
        nring += 1
LA_J = OPT['laj']
items = []
rd = 0
seen = set()
for n, (k, b) in enumerate(seq):
    pre_rd = []
    while rd < len(reads) and (at[reads[rd][0], 3] if reads[rd] in KEEP else at[reads[rd]]) <= n + LA_J:
        pre_rd += w_read1(*reads[rd], where[reads[rd]])
        rd += 1
    m = mfma(vr(ACC[b], 16), a_frag(k), ar(where[k, b], 4), vr(ACC[b], 16) if b in seen else '0')
    seen.add(b)
    if n == 0:
        P = P[:-8 - (PROF in (1, 2))] + pre_rd + P[-8 - (PROF in (1, 2)):]
        pre_rd = []
    items.append([m] + pre_rd)
pin = {n: [] for n in range(len(items))}
pin[18] += BAR('WA2')
pin[at[16, 1] - LA_J - 1] += [Wait('WA3', 'CR1', 'CI1'), I('s_barrier')]
pin[at[32, 1] - LA_J - 1] += [Wait('WB0', 'WB1', 'WB2'), I('s_barrier')]
if OPT['fhl'] >= 0:
    pin[OPT['fhl']] += L(flag_load(1))
pin[OPT['fhc']] += stamp('fh0') + poll('fh', flag_load(1), flag_check) + stamp('fh1')
pin[OPT['fls']] += flag_store(2, ['stF3', 'stF2'])
pin[OPT['fll']] += L(flag_load(2))
pin[OPT['flc']] += stamp('fl0') + poll('fl', flag_load(2), flag_check) + stamp('fl1')
pin[at[36, 1] - 1] += stamp('k36')
queue = [(0, a_load(k)) for k in range(8 + OPT['nea'], 16)] + [(0, rw('CI1'))]
queue += [(0, a_load(k)) for k in range(max(16, 8 + OPT['nea']), 20)]
if OPT['qord'] == 0:
    queue += [(19, rw('WB0'))] + [(OPT['fhc'], a_load(k)) for k in range(20, 32)] + [(19, rw('WB1'))]
elif OPT['qord'] == 1:
    queue += [(19, rw('WB0')), (19, rw('WB1'))] + [(OPT['fhc'], a_load(k)) for k in range(20, 32)]
else:
    queue += [(OPT['fhc'], a_load(k)) for k in range(20, 24)] + [(19, rw('WB0')), (19, rw('WB1'))]
    queue += [(0, a_load(k)) for k in range(24, 32)]
queue += [(at[16, 1] - LA_J, rw('WB2'))]
queue += [(OPT['flc'], a_load(k)) for k in range(36, 44)]
n = 0.0
for first_gap, ins in queue:
    n = max(n, first_gap)
    pend = []
    for i_ in ins:
        pend.append(i_)
        if i_.kind == 'vm':
            pin[int(n)] += pend
            pend = []
            n += OPT['pace'] / 10
for b in (1, 2, 3):
    sd = send(b)
    for q in range(4):
        pin[done_at[b] + 3 + q] += sd[q * len(sd) // 4:(q + 1) * len(sd) // 4]
    pin[done_at[min(b + 1, 3) if b < 3 else 3] + OPT[f'r{b}'] if b != 2 else done_at[2] + OPT['r2']] += L(recv(b))
pin[done_at[2] + 6] += stamp('s12')
pin[done_at[3] + 6] += stamp('sent')
items = fine('P3', items[:112], 4) + items[112:]
LEV[0] = OPT['lev3']
sub = lambda lo, hi: {n - lo: pin[n] for n in range(lo, hi)}
c1, c2 = at[32, 1], at[11, 0] + 1
P += weave(items[:c1], [], sub(0, c1))
cx = done_at[2] + 8
P += weave(items[c1:cx], ep_setup, sub(c1, cx), 0, 4)
P += weave(items[cx:c2], xe + pre, sub(cx, c2), 0, 18)
P += weave(items[c2:], base_calc, sub(c2, len(items)), 3, 26)
P += stamp('own')
A0 = ACC[0]
for q in range(8):
    P.append(I(f'v_pk_add_f32 {vr(A0 + 2 * q, 2)}, {vr(A0 + 2 * q, 2)}, {vr(XE + 2 * q, 2)}'))
for b in (1, 2, 3):
    chk = checksum(RX[b] + 9, RX[b], f'v{RX[b] + 8}') + [f'v_cmp_ne_u32 vcc, s{sTAG}, v{RX[b] + 9}']
    P += poll(f'rx{b}', recv(b), '\n'.join(chk))
P += stamp('rx')
for q in range(8):
    for b in (1, 2, 3):
        P += [I(f'v_dot2c_f32_bf16 v{A0 + 2 * q + h}, s{sKC[h]}, v{RX[b] + q}') for h in range(2)]
    if q:
        P += sts
    sts = [I(f's_add_u32 s{sBB}, s{sXB}, {4096 * q}')]
    sts += [I(f'buffer_store_dword v{A0 + 2 * q + h}, v{FA0}, {srd(sOUT)}, s{sBB} offen offset:{2048 * h} '
              f'{OPT["out_flags"]}') for h in range(2)]
P += L(f"""s_lshl_b32 s{sT2}, s{sJ}, 2
    s_add_u32 s{sT2}, s{sT2}, s{sW}
    s_xor_b32 s{sT1}, s{sI}, 15
    s_or_b32 s{sT2}, s{sT2}, s{sT1}
    s_cmp_eq_u32 s{sT2}, 0
    s_cselect_b32 s{sT2}, {WS_EP}, {OOB:#x}
    v_mov_b32 v{t0}, s{sE2}
    v_mov_b32 v{t1}, s{sT2}""") + sts + L(f'buffer_store_dword v{t0}, v{t1}, {srd(sWS)}, 0 offen')
if OPT['diag']:
    P += stamp('end') + L("""s_memrealtime s[6:7]
        s_waitcnt lgkmcnt(0)
        s_sub_u32 s4, s4, s23
        s_lshl_b32 s4, s4, 2
        s_min_u32 s4, s4, 20000
        L_diag:
        s_memrealtime s[0:1]
        s_waitcnt lgkmcnt(0)
        s_sub_u32 s0, s0, s6
        s_cmp_lt_u32 s0, s4
        s_cbranch_scc1 L_diag""")
if PROF:
    P += stamp('end')
    P += L(f"""s_waitcnt vmcnt(0)
        s_memrealtime s[0:1]
        s_lshl_b32 s{sT2}, s2, 2
        s_add_u32 s{sT2}, s{sT2}, s{sW}
        s_lshl_b32 s{sT2}, s{sT2}, 7
        s_add_u32 s{sT2}, s{sT2}, {WS_PROF}
        v_mov_b32 v{t1}, s{sT2}
        s_waitcnt lgkmcnt(0)
        v_mov_b32 v{t0}, s0
        buffer_store_dword v{t0}, v{t1}, {srd(sWS)}, 0 offen offset:124
        v_mov_b32 v{t2}, s23
        buffer_store_dword v{t2}, v{t1}, {srd(sWS)}, 0 offen offset:112
        buffer_store_dword a62, v{t1}, {srd(sWS)}, 0 offen offset:116
        buffer_store_dword a63, v{t1}, {srd(sWS)}, 0 offen offset:120""")
    P += stamp('DUMP')
P += [I('L_end:'), I('s_endpgm')]

P = resolve_stamps(P)
if OPT['split']:
    P = split_ds_pairs(P)
if OPT['hoist']:
    P = hoist_reads(P, OPT['hoist'])
body = pad_hazards(insert_waits(P, OPT['age']))
tail = []
for name, loads, check in retry_blocks:
    blk = [I(f'L_retry_{name}:'), I(f's_mov_b32 s3, {OPT["spin"]}'), I(f'L_spin_{name}:')]
    if PROF:
        blk.append(I(f's_add_u32 s23, s23, {1 << (4 * retry_blocks.index((name, loads, check)))}'))
    blk += L(loads) + [I('s_waitcnt vmcnt(0)')] + L(check)
    blk += L(f'''s_cbranch_vccz L_back_{name}
        s_sub_u32 s3, s3, 1
        s_cmp_lg_u32 s3, 0
        s_cbranch_scc1 L_spin_{name}
        s_branch L_back_{name}''')
    tail += pad_hazards(blk)

hdr = open(os.path.join(os.path.dirname(os.path.abspath(__file__)), 'header.txt')).read()
text = hdr + f'''; @launch grid=(256,1,1) block=(256,1,1) lds=163840
.amdgcn_target "amdgcn-amd-amdhsa--gfx950"
.text
.globl {KN}
.p2align 8
.type {KN},@function
{KN}:
{render(body)}
{render(tail)}
L_code_end:
    s_endpgm
.section .rodata,"a"
.p2align 6
.amdhsa_kernel {KN}
  .amdhsa_next_free_vgpr 512
  .amdhsa_next_free_sgpr 102
  .amdhsa_accum_offset 256
  .amdhsa_group_segment_fixed_size 0
  .amdhsa_kernarg_size 128
  .amdhsa_user_sgpr_count 2
  .amdhsa_user_sgpr_kernarg_segment_ptr 1
  .amdhsa_system_sgpr_workgroup_id_x 1
.end_amdhsa_kernel
'''
open(sys.argv[1], 'w').write(text)
if PROF:
    open(sys.argv[1][:-2] + '.stamps', 'w').write(' '.join(stamp_names))
from collections import Counter
cnt = Counter(i.kind for i in body)
print(dict(cnt), 'nops', sum(1 for i in body if i.mn == 's_nop'))
```

```python
import sys, os
sys.path.insert(0, os.path.dirname(os.path.abspath(__file__)))
from asmlib import I, Wait, insert_waits, pad_hazards, render, weave, split_ds_pairs, hoist_reads, merge, level, ds_first

KN = 'parallel_sum__ssm_conv_s5__dense_activation_mish__prompt_kernel'
OPT = dict(prof=0, spin=20000, out_flags='', map='8x4', pf=1, age=24, laf=5, r1=26, r2=32, r3=29, e3=12, fls=28, fll=50, flc=68, ka2=1, nstep=0, split=0, diag='', dsp=2, xel=0, tlb=0, laj=7, pace=13, lev=0, lev3=0, pa=2, fw=1, xw=0, vmc=2, fine='', fas=-30, fal=12, fac=24, nea=8, fhs=-1, fhl=12, fhc=28, qord=0, lbl=13, lbc=24, ppf=0, hoist=32)
for a in sys.argv[2:]:
    k, v = a.split('=')
    OPT[k] = int(v) if v.lstrip('-').isdigit() else v
PROF = OPT['prof']

WS_EP, WS_AG, WS_A = 0, 0x10000, 0x40000
WS_XC = WS_A + 64 * 176 * 1024
XC_BLK = 2560
WS_FL = WS_XC + 1024 * 3 * XC_BLK
WS_SIZE = WS_FL + 1024 * 512
WS_PROF = 0x1C00000
OOB = 0x7ff00000
SLOT = 16384
TB = 9 * SLOT
T_STAT, T_B1, T_SEG, T_LB, T_H = TB, TB + 1024, TB + 2048, TB + 6144, TB + 8192
LOG2E, LN2, M2LN2 = 0x3fb8aa3b, 0x3f317218, 0xbfb17218

sX, sB, sW1, sCre, sCim, sW2, sWS, sOUT, sTMP = 36, 40, 44, 48, 52, 56, 60, 64, 68
sI, sJ, sW, sROT, sTAG, sE2 = 72, 73, 74, 75, 76, 77
sKC = [78, 79, 80, 81]
sWOFF, sT0, sT1, sXB, sBB, sW1A, sW1B = 82, 83, 84, 85, 86, 87, 88
sAS = 89
sFST = [90, 91, 92, 93]
sSST, sCB, sW2B, sFSEL, sONES, sT3, sJJ, sT2 = 94, 95, 96, 97, 98, 99, 100, 101
sKQ, sPB, sXO = 22, [24, 25, 26], [27, 28, 29, 30]
sSEL = [31, 32, 33, 34]
sFLG = 35
pLRE, pLIM, pBRE, pBIM, pLDT, pDSK, pB1 = 8, 10, 12, 14, 16, 18, 20
srd = lambda b: f's[{b}:{b + 3}]'
vL, t0, t1, t2 = 0, 1, 2, 3
AS = [4, 5, 6, 7]
ASc = [8, 9, 10, 11]
XG = [12, 13, 14, 15]
PG = [16, 17, 18, 19]
QG = [20, 21, 22, 23]
FA0, FAc, RL2, VLN2, VL16, VNM, VRS, t3 = 24, 25, 26, 27, 28, 29, 30, 31
FAd = VNM
NLI, LI, LR, CR, NCI, NCR, L16R, L16I, LSR, LSI, L128R, L128I, WR, WI, PR, PI = range(32, 48)
TT = 48
FACC = [64, 80]
SRE, SIM = 96, 112
X = 128
aS, aF, aP, aOF, aOS, aWO, aXE = 0, 128, 0, 64, 88, 128, 224
STAMP_A = list(range(104, 128)) + list(range(48, 54))
vr = lambda b, n: f'v[{b}:{b + n - 1}]'
ar = lambda b, n: f'a[{b}:{b + n - 1}]'

stamp_names = []
FINE_KEEP = dict(S=['x7', 'c27', 'b0', 'F0'], F0=['b2', 'F0', 'F1'], F2=['F1', 'F2', 'scan'], F3=['scan', 'F3', 'fa0', 'fa1', 'tail'],
                 P3=[], L=['k36', 'sent', 'own', 'rx'])


def fine(phase, items, step):
    if OPT['fine'] == phase:
        for n in range(step - 1, len(items), step):
            items[n] = items[n] + stamp(f'g{n}')
    return items


def stamp(name):
    if PROF == 3 and name not in ('end', 'DUMP'):
        return []
    if OPT['fine'] and not name.startswith('g') and name not in FINE_KEEP[OPT['fine']] + ['end', 'DUMP']:
        return []
    if OPT['diag'] == name:
        return [I('s_memrealtime s[4:5]')]
    return [I(';stamp ' + name)] if PROF else []


def resolve_stamps(prog):
    out = []
    for ins in prog:
        if not ins.text.startswith(';stamp '):
            out.append(ins)
            continue
        name = ins.text.split()[1]
        n = len(stamp_names)
        if n:
            out.append(I(f'v_accvgpr_write_b32 a{STAMP_A[n - 1]}, s{4 + 2 * ((n - 1) & 1)}'))
        if name == 'DUMP':
            out += [I(f'buffer_store_dword a{STAMP_A[k]}, v{t1}, {srd(sWS)}, 0 offen offset:{4 * k}') for k in range(n)]
            continue
        assert n < 29
        stamp_names.append(name)
        out.append(I(f's_mem{"real" if PROF == 2 else ""}time s[{4 + 2 * (n & 1)}:{5 + 2 * (n & 1)}]'))
    return out


def L(text):
    return [I(t.strip()) for t in text.strip().split('\n') if t.strip()]


def mfma(d, a, b, c):
    return I(f'v_mfma_f32_32x32x16_bf16 {d}, {a}, {b}, {c}')


def mksrd(b, lo, size):
    return f's_mov_b32 s{b}, s{lo}\ns_mov_b32 s{b + 1}, s{lo + 1}\ns_mov_b32 s{b + 2}, {size}\ns_mov_b32 s{b + 3}, 0x00020000\n'


slot_shared = {}


def dma_round(name, slot, voffs, rsrc, soff_code, shared):
    out = [I(f's_add_u32 m0, s{sWOFF}, {slot * SLOT}')] + L(soff_code)
    for g in range(4):
        out.append(I(f'buffer_load_dwordx4 v{voffs[g]}, {srd(rsrc)}, s{sT0} offen offset:{1024 * g} lds',
                     tok=name if g == 3 else None,
                     lds_w=(slot, slot_shared.get(slot, False)) if g == 0 else None, note=name,
                     fills=(slot, shared) if g == 3 else None))
    slot_shared[slot] = shared
    return out


def rx(s, slot):
    return dma_round(f'x{s}', slot, XG, sX,
                     f's_add_u32 s{sT0}, s{sROT}, {s}\ns_and_b32 s{sT0}, s{sT0}, 7\n'
                     f's_lshl_b32 s{sT0}, s{sT0}, 7\ns_add_u32 s{sT0}, s{sT0}, s{sXB}', False)


G_SLOT = [4, 5, 6, 7, 8, 0, 1, 2, 3, 4, 5, 6]
W_SLOT = dict(WA0=7, CR0=8, CI0=0, WA1=1, WA2=2, WA3=3, CR1=4, CI1=5, WB0=6, WB1=7, WB2=1)


def rg(g):
    if g < 4:
        return dma_round(f'G{g}', G_SLOT[g], PG, sB,
                         f's_lshl_b32 s{sT0}, s{sKC[g]}, 7\ns_add_u32 s{sT0}, s{sT0}, s{sBB}', True)
    base = sW1A if g < 8 else sW1B
    return dma_round(f'G{g}', G_SLOT[g], QG, sW1,
                     f's_mul_i32 s{sT0}, s{sKC[g & 3]}, {64 * 3584}\ns_add_u32 s{sT0}, s{sT0}, s{base}', True)


def rw(name):
    e = int(name[2])
    if name[0] == 'C':
        code = f's_xor_b32 s{sT0}, s{sCB}, {128 * e}'
        return dma_round(name, W_SLOT[name], PG, sCim if name[1] == 'I' else sCre, code, True)
    if name[1] == 'A':
        code = f's_xor_b32 s{sT0}, s{sJJ}, {e}\ns_lshl_b32 s{sT0}, s{sT0}, 17\ns_add_u32 s{sT0}, s{sT0}, s{sW2B}'
    else:
        code = f's_lshl_b32 s{sT0}, s{sPB[e]}, 16\ns_add_u32 s{sT0}, s{sT0}, s{sW2B}'
        if e == 0:
            code += f'\ns_xor_b32 s{sT0}, s{sT0}, s{sSEL[0]}'
    return dma_round(name, W_SLOT[name], XG, sW2, code, True)


def pins(*parts):
    pin = {}
    for gap, ins in parts:
        head = [i_ for i_ in ins if not getattr(i_, 'dma', False)]
        pin.setdefault(gap, []).extend(head)
        for n, i_ in enumerate(ins[len(head):]):
            pin.setdefault(gap + n * OPT['dsp'], []).append(i_)
    return pin


BAR = lambda *toks: ([Wait(*toks)] if toks else []) + [I('s_barrier')]
retry_blocks = []


def poll(name, loads, check):
    retry_blocks.append((name, loads, check))
    return L(check) + [I(f's_cbranch_vccnz L_retry_{name}'), I(f'L_back_{name}:')]


def cexp(dr, di, scale, zr, za):
    return L(f"""v_mul_f32 v{dr}, {scale}, v{zr}
        v_mul_f32 v{di}, {scale}, v{za}
        v_exp_f32 v{dr}, v{dr}
        v_fract_f32 v{di}, v{di}
        v_cos_f32 v{t3}, v{di}
        v_sin_f32 v{di}, v{di}
        v_mul_f32 v{di}, v{dr}, v{di}
        v_mul_f32 v{dr}, v{dr}, v{t3}""")


def cmul_add(dr, di, ar_, ai, br, bi, cr=None, ci=None):
    if cr is None:
        head = f'v_mul_f32 v{dr}, v{ar_}, v{br}\nv_mul_f32 v{di}, v{ar_}, v{bi}'
    else:
        head = f'v_fma_f32 v{dr}, v{ar_}, v{br}, v{cr}\nv_fma_f32 v{di}, v{ar_}, v{bi}, v{ci}'
    return L(head + f'\nv_fma_f32 v{dr}, -v{ai}, v{bi}, v{dr}\nv_fmac_f32 v{di}, v{ai}, v{br}')


def mish(b, voff=VL16, quarters=range(4)):
    A = FACC[b & 1]
    out = []
    for q in quarters:
        rs = range(4 * q, 4 * q + 4)
        out.append(I(f'ds_read_b128 {vr(TT + 4 * q, 4)}, v{t2} offset:{T_B1 - TB + 128 * b + 16 * q}', hoist=True))
        out += [I(f'v_fmac_f32 v{TT + r}, v{A + r}, v{RL2}') for r in rs]
        out += [I(f'v_exp_f32 v{A + r}, v{TT + r}') for r in rs]
        out += [I(f'v_add_f32 v{A + r}, 1.0, v{A + r}') for r in rs]
        out += [I(f'v_fma_f32 v{A + r}, v{A + r}, v{A + r}, 1.0') for r in rs]
        out += [I(f'v_rcp_f32 v{A + r}, v{A + r}') for r in rs]
        out += [I(f'v_fmamk_f32 v{A + r}, v{A + r}, {M2LN2:#x}, v{VLN2}') for r in rs]
        out += [I(f'v_mul_f32 v{TT + r}, v{TT + r}, v{A + r}') for r in rs]
        out += [I(f'v_cvt_pk_bf16_f32 v{A + p}, v{TT + 2 * p}, v{TT + 2 * p + 1}') for p in (2 * q, 2 * q + 1)]
        if q & 1:
            fr = q >> 1
            out.append(I(f'buffer_store_dwordx4 {vr(A + 4 * fr, 4)}, v{voff}, {srd(sWS)}, s{sFST[b]} offen '
                         f'offset:{1024 * fr} sc1', tok=f'stF{b}' if fr else None))
            if b < 3:
                out += [I(f'v_accvgpr_write_b32 a{aOF + 8 * b + 4 * fr + e}, v{A + 4 * fr + e}') for e in range(4)]
    return out


def mish_pk(b, voff, halves=range(2)):
    A = FACC[b & 1]
    out = []
    for q in range(2 * len(halves)):
        out.append(I(f'ds_read_b128 {vr(TT + 4 * q, 4)}, v{t2} offset:{T_B1 - TB + 128 * b + 16 * q}', hoist=True))
    for h in halves:
        ps = range(8 * h, 8 * h + 8, 2)
        rs = range(8 * h, 8 * h + 8)
        out += [I(f'v_pk_fma_f32 {vr(TT + p, 2)}, {vr(A + p, 2)}, {vr(RL2, 2)}, {vr(TT + p, 2)} op_sel_hi:[1,0,1]') for p in ps]
        out += [I(f'v_exp_f32 v{A + r}, v{TT + r}') for r in rs]
        out += [I(f'v_pk_add_f32 {vr(A + p, 2)}, {vr(A + p, 2)}, 1.0 op_sel_hi:[1,0]') for p in ps]
        out += [I(f'v_pk_fma_f32 {vr(A + p, 2)}, {vr(A + p, 2)}, {vr(A + p, 2)}, 1.0 op_sel_hi:[1,1,0]') for p in ps]
        out += [I(f'v_rcp_f32 v{A + r}, v{A + r}') for r in rs]
        out += [I(f'v_pk_fma_f32 {vr(A + p, 2)}, {vr(A + p, 2)}, s[{sKC[0]}:{sKC[1]}], {vr(RL2, 2)} '
                  f'op_sel:[0,0,1] op_sel_hi:[1,0,1]') for p in ps]
        out += [I(f'v_pk_mul_f32 {vr(TT + p, 2)}, {vr(TT + p, 2)}, {vr(A + p, 2)}') for p in ps]
        out += [I(f'v_cvt_pk_bf16_f32 v{A + p // 2}, v{TT + p}, v{TT + p + 1}') for p in ps]
        out.append(I(f'buffer_store_dwordx4 {vr(A + 4 * h, 4)}, v{voff}, {srd(sWS)}, s{sFST[b]} offen '
                     f'offset:{1024 * h} sc1', tok=f'stF{b}' if h else None))
        if b < 3:
            out += [I(f'v_accvgpr_write_b32 a{aOF + 8 * b + 4 * h + e}, v{A + 4 * h + e}') for e in range(4)]
    return out


_weave = weave
LEV = [OPT['lev']]


def weave(*a):
    out = _weave(*a)
    return ds_first(level(out, LEV[0], OPT['vmc'])) if LEV[0] else out


P = []
if OPT['map'] == '8x4':
    ids = f"""s_and_b32 s{sKQ}, s2, 3
        s_bfe_u32 s{sJJ}, s2, 0x20003
        s_lshr_b32 s{sI}, s2, 5
        s_bfe_u32 s{sT0}, s2, 0x10002
        s_lshl_b32 s{sROT}, s{sT0}, 1
        s_lshl_b32 s{sT0}, s{sT0}, 3
        s_and_b32 s{sT1}, s{sI}, 1
        s_or_b32 s{sI}, s{sI}, s{sT0}
        s_add_u32 s{sROT}, s{sROT}, s{sT1}
        s_add_u32 s{sROT}, s{sROT}, s{sKQ}
        s_lshl_b32 s{sROT}, s{sROT}, 1
        s_and_b32 s{sROT}, s{sROT}, 7"""
else:
    ids = f"""s_and_b32 s{sKQ}, s2, 1
        s_lshl_b32 s{sKQ}, s{sKQ}, 1
        s_lshr_b32 s{sT0}, s2, 7
        s_or_b32 s{sKQ}, s{sKQ}, s{sT0}
        s_bfe_u32 s{sJJ}, s2, 0x20003
        s_bfe_u32 s{sI}, s2, 0x20005
        s_bfe_u32 s{sT0}, s2, 0x20001
        s_add_u32 s{sROT}, s{sT0}, s{sKQ}
        s_lshl_b32 s{sT0}, s{sT0}, 2
        s_or_b32 s{sI}, s{sI}, s{sT0}
        s_lshl_b32 s{sROT}, s{sROT}, 1
        s_and_b32 s{sROT}, s{sROT}, 7"""
ws_load = f's_load_dwordx2 s[{sWS}:{sWS + 1}], s[0:1], 120'
more_loads = f"""s_load_dwordx8 s[{pLRE}:{pLRE + 7}], s[0:1], 8
s_load_dwordx4 s[{pLDT}:{pLDT + 3}], s[0:1], 56
s_load_dwordx2 s[{pB1}:{pB1 + 1}], s[0:1], 88
s_load_dwordx2 s[{sW1}:{sW1 + 1}], s[0:1], 80
s_load_dwordx2 s[{sCre}:{sCre + 1}], s[0:1], 40
s_load_dwordx2 s[{sCim}:{sCim + 1}], s[0:1], 48
s_load_dwordx2 s[{sW2}:{sW2 + 1}], s[0:1], 96
s_load_dwordx2 s[{sOUT}:{sOUT + 1}], s[0:1], 104
"""
SUM, SQ = [TT + 8, TT + 9], [TT + 10, TT + 11]
sizes = ((sX, 2097152), (sB, 524288), (sW1, 1835008), (sCre, 524288), (sCim, 524288), (sW2, 1835008),
         (sWS, (WS_PROF + 0x40000) if PROF else WS_SIZE), (sOUT, 4194304))
P += L(f"""
s_cmp_ge_u32 s2, 256
s_cbranch_scc1 L_end
{'s_memtime s[98:99]' if PROF else ''}
{'s_memrealtime s[90:91]' if PROF or OPT['diag'] else ''}
s_load_dwordx2 s[{sX}:{sX + 1}], s[0:1], 0
{'' if OPT['ka2'] else ws_load}
s_getpc_b64 s[{sTMP}:{sTMP + 1}]
v_lshrrev_b32 v{t0}, 6, v0
v_and_b32 v{vL}, 63, v0
s_and_b32 s{sTMP}, s{sTMP}, 0xffffff80
v_readfirstlane_b32 s{sW}, v{t0}
s_mov_b32 s{sTMP + 2}, L_code_end-{KN}
s_mov_b32 s{sTMP + 3}, 0x00020000
s_lshr_b32 s{sT0}, s2, 3
s_lshl_b32 s{sT0}, s{sT0}, 2
s_add_u32 s{sT0}, s{sT0}, s{sW}
s_lshl_b32 s{sT0}, s{sT0}, 9
v_and_b32 v{t1}, 3, v{vL}
v_lshlrev_b32 v{t1}, 7, v{t1}
buffer_load_dword v{t3}, v{t1}, {srd(sTMP)}, s{sT0} offen
{'' if OPT['ka2'] else more_loads}
v_lshrrev_b32 v{t0}, 3, v{vL}
v_lshrrev_b32 v{t1}, 4, v{vL}
v_xor_b32 v{t1}, v{t1}, v{vL}
v_and_b32 v{t1}, 7, v{t1}
v_lshlrev_b32 v{t1}, 4, v{t1}
v_lshl_add_u32 v{PG[0]}, v{t0}, 10, v{t1}
v_lshrrev_b32 v{t2}, 5, v{vL}
v_mul_u32_u24 v{t2}, {12 * 1024}, v{t2}
v_add_u32 v{XG[0]}, v{PG[0]}, v{t2}
v_xor_b32 v{XG[1]}, 64, v{XG[0]}
v_add_u32 v{XG[2]}, {6 * 1024}, v{XG[0]}
v_add_u32 v{XG[3]}, {9 * 1024}, v{XG[1]}
v_add_u32 v{XG[1]}, {3 * 1024}, v{XG[1]}
s_lshl_b32 s{sWOFF}, s{sW}, 12
{ids}
s_lshl_b32 s{sXB}, s{sI}, 17
s_lshl_b32 s{sT0}, s{sW}, 15
s_add_u32 s{sXB}, s{sXB}, s{sT0}
""" + ''.join(f's_mov_b32 s{b + 2}, {n}\ns_mov_b32 s{b + 3}, 0x00020000\n' for b, n in sizes) + f"""
s_waitcnt lgkmcnt(0)
{'v_accvgpr_write_b32 a62, s98' if PROF else ''}
{'v_accvgpr_write_b32 a63, s90' if PROF else ''}
{'s_mov_b32 s23, 0' if PROF else ''}
{'s_mov_b32 s23, s90' if OPT['diag'] else ''}
""")
P += stamp('ka') if OPT['diag'] else []
P += rx(0, 0) + (L(ws_load + '\n' + more_loads) if OPT['ka2'] else []) + rx(1, 1)
P += L(f"""
v_and_b32 v{t0}, 31, v{vL}
s_lshl_b32 s{sJ}, s{sKQ}, 2
s_or_b32 s{sJ}, s{sJ}, s{sJJ}
v_lshrrev_b32 v{t1}, 5, v{vL}
v_bfe_u32 v{t2}, v{vL}, 1, 3
v_xor_b32 v{t1}, v{t1}, v{t2}
v_lshlrev_b32 v{t1}, 4, v{t1}
v_lshl_add_u32 v{AS[0]}, v{t0}, 7, v{t1}
v_xor_b32 v{AS[1]}, 32, v{AS[0]}
v_xor_b32 v{AS[2]}, 64, v{AS[0]}
v_xor_b32 v{AS[3]}, 0x60, v{AS[0]}
v_add_u32 v{ASc[0]}, s{sWOFF}, v{AS[0]}
v_add_u32 v{ASc[1]}, s{sWOFF}, v{AS[1]}
v_add_u32 v{ASc[2]}, s{sWOFF}, v{AS[2]}
v_add_u32 v{ASc[3]}, s{sWOFF}, v{AS[3]}
s_mov_b32 s{sONES}, 0x3f803f80
v_mov_b32 v{SUM[0]}, 0
v_mov_b32 v{SUM[1]}, 0
v_mov_b32 v{SQ[0]}, 0
v_mov_b32 v{SQ[1]}, 0
s_lshl_b32 s{sT0}, s{sW}, 9
s_add_u32 s{sT0}, s{sT0}, {T_SEG}
v_lshl_add_u32 v{t0}, v{vL}, 3, s{sT0}""")
P.append(I(f'ds_write_b64 v{t0}, {vr(SUM[0], 2)}', tok='zero'))
P += L(f's_waitcnt lgkmcnt(0)\ns_load_dword s{sE2}, s[{sWS}:{sWS + 1}], {WS_EP}')
mid = L(f"""
v_and_b32 v{t0}, 31, v{vL}
s_lshl_b32 s{sT1}, s{sJ}, 6
v_lshl_add_u32 v{t1}, v{t0}, 1, s{sT1}
global_load_ushort v{LR}, v{t1}, s[{pLRE}:{pLRE + 1}]
global_load_ushort v{LI}, v{t1}, s[{pLIM}:{pLIM + 1}]
global_load_ushort v{NLI}, v{t1}, s[{pLDT}:{pLDT + 1}]
s_and_b32 s{sT3}, s{sW}, 1
s_mul_i32 s{sT2}, s{sKQ}, 7
s_lshl_b32 s{sW1A}, s{sJJ}, 1
s_add_u32 s{sPB[0]}, s{sW1A}, 1
s_cmp_eq_u32 s{sJJ}, 3
s_cselect_b32 s{sPB[0]}, 3, s{sPB[0]}
s_cselect_b32 s{sFSEL}, 64, 0
s_add_u32 s{sW1A}, s{sW1A}, s{sT2}
s_add_u32 s{sW1B}, s{sPB[0]}, s{sT2}
s_lshl_b32 s{sW1A}, s{sW1A}, 7
s_lshl_b32 s{sW1B}, s{sW1B}, 7
s_cmp_ge_u32 s{sW}, 2
s_cselect_b32 s{sT2}, s{sW1B}, s{sW1A}
s_cselect_b32 s{sT1}, s{sFSEL}, 0
s_add_u32 s{sT2}, s{sT2}, s{sT1}
s_lshl_b32 s{sT1}, s{sT3}, 6
s_xor_b32 s{sT2}, s{sT2}, s{sT1}
v_and_b32 v{t1}, 3, v{vL}
v_bfe_u32 v{t2}, v{vL}, 2, 2
v_lshl_add_u32 v{t1}, v{t2}, 3, v{t1}
v_bfe_u32 v{t2}, v{vL}, 4, 1
v_lshl_add_u32 v{t1}, v{t2}, 2, v{t1}
v_lshl_add_u32 v{t1}, v{t1}, 1, s{sT2}
global_load_ushort v{PR}, v{t1}, s[{pB1}:{pB1 + 1}]
s_cmp_eq_u32 s{sT3}, 1
s_cselect_b32 s{sB}, s{pBIM}, s{pBRE}
s_cselect_b32 s{sB + 1}, s{pBIM + 1}, s{pBRE + 1}
s_mul_i32 s{sT3}, s{sT3}, {32 * 3584}
s_add_u32 s{sW1A}, s{sW1A}, s{sT3}
s_add_u32 s{sW1B}, s{sW1B}, s{sT3}
s_lshl_b32 s{sBB}, s{sJ}, 15
s_lshr_b32 s{sT1}, s{sW}, 1
s_add_u32 s{sT1}, s{sT1}, s{sROT}
s_and_b32 s{sKC[0]}, s{sT1}, 7
s_add_u32 s{sT1}, s{sT1}, 2
s_and_b32 s{sKC[1]}, s{sT1}, 7
s_add_u32 s{sT1}, s{sT1}, 2
s_and_b32 s{sKC[2]}, s{sT1}, 7
s_add_u32 s{sT1}, s{sT1}, 2
s_and_b32 s{sKC[3]}, s{sT1}, 7
v_xor_b32 v{PG[1]}, 64, v{PG[0]}
v_add_u32 v{PG[2]}, {14 * 1024}, v{PG[0]}
v_add_u32 v{PG[3]}, {21 * 1024}, v{PG[1]}
v_add_u32 v{PG[1]}, {7 * 1024}, v{PG[1]}
v_bfe_u32 v{t0}, v{vL}, 2, 1
v_lshrrev_b32 v{t1}, 5, v{vL}
v_and_b32 v{t2}, 1, v{vL}
v_lshlrev_b32 v{t2}, 4, v{t2}
v_mov_b32 v{VNM}, 0x3f80
v_lshlrev_b32 v{t2}, v{t2}, v{VNM}
v_cmp_eq_u32 vcc, v{t0}, v{t1}
v_bfe_u32 v{t0}, v{vL}, 1, 1
v_bfe_u32 v{t1}, v{vL}, 3, 2
v_cndmask_b32 v{t2}, 0, v{t2}, vcc
v_lshl_add_u32 v{t0}, v{t1}, 1, v{t0}
""")
for q in range(0, 8, 2):
    mid += L(f"""v_cmp_eq_u32 vcc, {q}, v{t0}
        v_cmp_eq_u32 s[{sSEL[1]}:{sSEL[2]}], {q + 1}, v{t0}
        s_nop 0
        v_cndmask_b32 v{TT + q}, 0, v{t2}, vcc
        v_cndmask_b32 v{TT + q + 1}, 0, v{t2}, s[{sSEL[1]}:{sSEL[2]}]""")
mid += L(f"""
v_lshrrev_b32 v{t1}, 3, v{vL}
v_mul_u32_u24 v{t1}, 3584, v{t1}
v_bfe_u32 v{t2}, v{vL}, 4, 1
v_lshlrev_b32 v{t2}, 2, v{t2}
v_xor_b32 v{t2}, v{t2}, v{vL}
v_and_b32 v{t2}, 7, v{t2}
v_lshl_add_u32 v{QG[0]}, v{t2}, 4, v{t1}
v_add_u32 v{QG[1]}, {27648}, v{QG[0]}
v_add_u32 v{QG[2]}, {2 * 27648}, v{QG[0]}
v_add_u32 v{QG[3]}, {3 * 27648}, v{QG[0]}
""")
late = L(f"""
s_mul_i32 s{sE2}, s{sE2}, 1664525
s_add_u32 s{sE2}, s{sE2}, 1013904226
s_or_b32 s{sTAG}, s{sE2}, 1
v_bfe_u32 v{t1}, v{vL}, 2, 2
v_lshrrev_b32 v{t2}, 5, v{vL}
v_lshl_add_u32 v{t2}, v{t2}, 3, v{t1}
v_lshlrev_b32 v{FA0}, 7, v{t2}
v_lshrrev_b32 v{t1}, 1, v{t1}
v_lshl_add_u32 v{FA0}, v{t1}, 6, v{FA0}
v_bfe_u32 v{t1}, v{vL}, 4, 1
v_lshl_add_u32 v{FA0}, v{t1}, 5, v{FA0}
v_and_b32 v{t1}, 3, v{vL}
v_lshl_add_u32 v{FA0}, v{t1}, 3, v{FA0}
v_lshlrev_b32 v{VL16}, 4, v{vL}
v_mov_b32 v{VLN2}, {LN2:#x}
s_cmp_eq_u32 s{sPB[0]}, 1
s_cselect_b32 s{sPB[1]}, 3, 1
s_cmp_eq_u32 s{sPB[0]}, 5
s_cselect_b32 s{sPB[2]}, 3, 5
s_lshl_b32 s{sSEL[0]}, s{sFSEL}, 9
s_lshl_b32 s{sAS}, s{sI}, 2
s_add_u32 s{sAS}, s{sAS}, s{sW}
s_lshl_b32 s{sAS}, s{sAS}, 2
s_add_u32 s{sAS}, s{sAS}, s{sKQ}
s_lshl_b32 s{sFLG}, s{sAS}, 11
s_add_u32 s{sFLG}, s{sFLG}, {WS_FL}
s_mul_i32 s{sAS}, s{sAS}, {44 * 1024}
s_add_u32 s{sAS}, s{sAS}, {WS_A}
s_lshl_b32 s{sT2}, s{sJJ}, 13
s_add_u32 s{sFST[0]}, s{sAS}, s{sT2}
s_add_u32 s{sFST[1]}, s{sFST[0]}, 2048
s_lshl_b32 s{sT2}, s{sPB[0]}, 12
s_add_u32 s{sFST[3]}, s{sAS}, s{sT2}
s_lshl_b32 s{sT2}, s{sFSEL}, 5
s_add_u32 s{sFST[2]}, s{sFST[3]}, s{sT2}
s_add_u32 s{sFST[3]}, s{sFST[3]}, 2048
s_lshl_b32 s{sT2}, s{sJJ}, 12
s_add_u32 s{sSST}, s{sAS}, s{sT2}
s_add_u32 s{sSST}, s{sSST}, {28 * 1024}
s_xor_b32 s{sT2}, s{sW}, s{sKQ}
s_lshl_b32 s{sT2}, s{sT2}, 15
s_lshl_b32 s{sCB}, s{sJJ}, 17
s_add_u32 s{sCB}, s{sCB}, s{sT2}
s_lshl_b32 s{sT2}, s{sKQ}, 8
s_add_u32 s{sCB}, s{sCB}, s{sT2}
s_lshr_b32 s{sT2}, s{sJJ}, 1
s_lshl_b32 s{sT2}, s{sT2}, 7
s_add_u32 s{sCB}, s{sCB}, s{sT2}
s_mul_i32 s{sW2B}, s{sKQ}, {448 * 1024}
s_lshr_b32 s{sT2}, s{sW}, 1
s_lshl_b32 s{sT2}, s{sT2}, 15
s_add_u32 s{sW2B}, s{sW2B}, s{sT2}
s_lshl_b32 s{sT2}, s{sJJ}, 8
s_add_u32 s{sW2B}, s{sW2B}, s{sT2}
s_lshr_b32 s{sT2}, s{sKQ}, 1
s_xor_b32 s{sT2}, s{sT2}, s{sW}
s_and_b32 s{sT2}, s{sT2}, 1
s_lshl_b32 s{sT2}, s{sT2}, 7
s_add_u32 s{sW2B}, s{sW2B}, s{sT2}
s_lshl_b32 s{sT2}, s{sI}, 4
s_add_u32 s{sT2}, s{sT2}, s{sJJ}
s_lshl_b32 s{sT2}, s{sT2}, 2
s_add_u32 s{sT2}, s{sT2}, s{sW}""")
for b in range(4):
    late += L(f"""s_xor_b32 s{sT3}, s{sKQ}, {b}
        s_lshl_b32 s{sT3}, s{sT3}, 4
        s_add_u32 s{sT3}, s{sT3}, s{sT2}
        s_mul_i32 s{sT3}, s{sT3}, {3 * XC_BLK}
        s_add_u32 s{sXO[b]}, s{sT3}, {WS_XC + (b - 1) * XC_BLK if b else WS_XC}""")
late += L(f"""s_add_u32 s{sSEL[2]}, s{sXO[0]}, {XC_BLK}
    s_add_u32 s{sSEL[3]}, s{sXO[0]}, {2 * XC_BLK}
    s_and_b32 s{sT3}, s{sJJ}, 1
    s_sub_u32 s{sSEL[1]}, 6, s{sT3}""")
pf = []
if OPT['pf'] == 2:
    late += L(f"""
s_and_b32 s{sT1}, s{sI}, 7
s_lshl_b32 s{sT2}, s{sT1}, 1
s_add_u32 s{sT2}, s{sT2}, s{sW}
s_mul_i32 s{sT2}, s{sT2}, 28
s_mul_i32 s{sT3}, s{sKQ}, 448
s_add_u32 s{sT2}, s{sT2}, s{sT3}
s_lshl_b32 s{sT2}, s{sT2}, 2
s_add_u32 s{sT2}, s{sT2}, s{sJJ}
s_lshl_b32 s{sT3}, s{sJJ}, 3
s_add_u32 s{sT3}, s{sT3}, s{sT1}
s_lshl_b32 s{sT3}, s{sT3}, 6
s_add_u32 s{sT3}, s{sT3}, s{sKQ}
s_cmp_lt_u32 s{sW}, 2
s_cselect_b32 s{sT2}, s{sT2}, s{sT3}
s_cselect_b32 s{sT3}, 56, 32
s_cselect_b32 s{sTMP}, s{sW2}, s{sCre}
s_cselect_b32 s{sTMP + 1}, s{sW2 + 1}, s{sCre + 1}
s_cselect_b32 s{sTMP + 2}, s{sW2 + 2}, s{sCre + 2}
s_cmp_eq_u32 s{sW}, 3
s_cselect_b32 s{sTMP}, s{sCim}, s{sTMP}
s_cselect_b32 s{sTMP + 1}, s{sCim + 1}, s{sTMP + 1}""")
elif OPT['pf']:
    late += L(f"""
s_mul_i32 s{sT2}, s{sKQ}, 448
s_mul_i32 s{sT3}, s{sI}, 28
s_add_u32 s{sT2}, s{sT2}, s{sT3}
s_lshl_b32 s{sT2}, s{sT2}, 2
s_add_u32 s{sT2}, s{sT2}, s{sJJ}
s_lshl_b32 s{sT3}, s{sJJ}, 4
s_add_u32 s{sT3}, s{sT3}, s{sI}
s_lshl_b32 s{sT3}, s{sT3}, 5
s_add_u32 s{sT3}, s{sT3}, s{sKQ}
s_cmp_eq_u32 s{sW}, 0
s_cselect_b32 s{sT2}, s{sT2}, s{sT3}
s_cselect_b32 s{sT3}, 56, 16
s_cselect_b32 s{sTMP}, s{sW2}, s{sCre}
s_cselect_b32 s{sTMP + 1}, s{sW2 + 1}, s{sCre + 1}
s_cselect_b32 s{sTMP + 2}, s{sW2 + 2}, s{sCre + 2}
s_cmp_eq_u32 s{sW}, 2
s_cselect_b32 s{sTMP}, s{sCim}, s{sTMP}
s_cselect_b32 s{sTMP + 1}, s{sCim + 1}, s{sTMP + 1}
s_cmp_eq_u32 s{sW}, 3
s_cselect_b32 s{sT3}, 0, s{sT3}""")
if OPT['pf']:
    late += L(f"""s_lshl_b32 s{sT2}, s{sT2}, 8
v_lshrrev_b32 v{t0}, 1, v{vL}
v_and_b32 v{t1}, 1, v{vL}
v_lshlrev_b32 v{t1}, 7, v{t1}
v_lshl_add_u32 v{t0}, v{t0}, 10, v{t1}
v_add_u32 v{t0}, s{sT2}, v{t0}
v_mov_b32 v{t1}, {OOB:#x}
v_cmp_gt_u32 vcc, s{sT3}, v{vL}
v_cndmask_b32 v{PI}, v{t1}, v{t0}, vcc""")
    pf = L(f'buffer_load_dword v{PI}, v{PI}, {srd(sTMP)}, 0 offen')

Z = FACC[0]
later = L(f"""
v_lshlrev_b32 v{NLI}, 16, v{NLI}
v_mul_f32 v{NLI}, {LOG2E:#x}, v{NLI}
v_exp_f32 v{NLI}, v{NLI}
v_lshlrev_b32 v{Z + 2}, 16, v{LR}
v_lshlrev_b32 v{Z + 3}, 16, v{LI}
v_cvt_pk_bf16_f32 v{NLI}, v{NLI}, v{NLI}
v_lshlrev_b32 v{NLI}, 16, v{NLI}
v_mul_f32 v{Z}, v{NLI}, v{Z + 2}
v_mul_f32 v{Z + 1}, v{NLI}, v{Z + 3}
v_mul_f32 v{Z}, {LOG2E:#x}, v{Z}
v_mul_f32 v{Z + 1}, 0xbe22f983, v{Z + 1}""")
later += cexp(LR, LI, '1.0', Z, Z + 1)
later += L(f"""
v_mul_f32 v{Z + 4}, v{Z + 2}, v{Z + 2}
v_fmac_f32 v{Z + 4}, v{Z + 3}, v{Z + 3}
v_rcp_f32 v{Z + 4}, v{Z + 4}
v_add_f32 v{Z + 5}, -1.0, v{LR}
v_sub_f32 v{NLI}, 0, v{LI}
v_add_f32 v{Z + 4}, v{Z + 4}, v{Z + 4}
v_mul_f32 v{CR}, v{Z + 5}, v{Z + 2}
v_fmac_f32 v{CR}, v{NLI}, v{Z + 3}
v_mul_f32 v{NCI}, v{Z + 5}, v{Z + 3}
v_fmac_f32 v{NCI}, v{LI}, v{Z + 2}
v_mul_f32 v{CR}, v{CR}, v{Z + 4}
v_mul_f32 v{NCI}, v{NCI}, v{Z + 4}
v_sub_f32 v{NCR}, 0, v{CR}""")
later += cexp(L16R, L16I, '0x41800000', Z, Z + 1)
later += cexp(L128R, L128I, '0x43000000', Z, Z + 1)
later += L(f"""
v_lshrrev_b32 v{Z + 6}, 5, v{vL}
s_lshl_b32 s{sT2}, s{sW}, 1
v_add_u32 v{Z + 6}, s{sT2}, v{Z + 6}
v_cvt_f32_u32 v{Z + 6}, v{Z + 6}
v_mul_f32 v{Z + 7}, 0x41800000, v{Z + 6}
v_sub_f32 v{Z + 6}, 0x40e00000, v{Z + 6}
v_mul_f32 v{Z + 6}, 0x43800000, v{Z + 6}""")
later += cexp(LSR, LSI, f'v{Z + 7}', Z, Z + 1)
later += cexp(WR, WI, f'v{Z + 6}', Z, Z + 1)
later += L(f"""v_lshlrev_b32 v{PR}, 16, v{PR}
v_mul_f32 v{PR}, {LOG2E:#x}, v{PR}
v_and_b32 v{t1}, 31, v{vL}
s_lshl_b32 s{sT1}, s{sW}, 7
s_add_u32 s{sT1}, s{sT1}, {T_B1}
v_lshl_add_u32 v{t1}, v{t1}, 2, s{sT1}
ds_write_b32 v{t1}, v{PR}""")
later = mid + later + [I(f'v_accvgpr_write_b32 a{aXE + r}, 0') for r in range(17)]
cuts = [0]
for n in range(1, 7):
    c = n * len(later) // 7
    while later[c].mn.startswith(('s_cselect', 'v_cndmask', 's_nop')) or later[c - 1].mn.startswith('v_cmp'):
        c += 1
    cuts.append(c)
cuts.append(len(later))

touch_w = L(f'v_mov_b32 v{PI}, 0') + [
    I(f'buffer_load_dword a{56 + n}, v{PI}, {srd(r)}, 0 offen') for n, r in enumerate((sW1, sCre, sCim, sW2))]
touch_o = L(f"""v_min_u32 v{PR}, {WS_SIZE >> 21}, v{vL}
    v_lshlrev_b32 v{PR}, 21, v{PR}
    v_add_u32 v{PR}, 0x800, v{PR}
    buffer_load_dword a60, v{PR}, {srd(sWS)}, 0 offen
    buffer_load_dword a61, v{PR}, {srd(sOUT)}, 0 offen""")
if OPT['tlb'] in (1, 3, 4):
    P += touch_w
if OPT['tlb'] == 1:
    P += touch_o
P += rx(2, 2) + [I('s_waitcnt lgkmcnt(0)')]
for s in range(8):
    P.append(Wait(f'x{s}'))
    if s == 0:
        P += stamp('x0')
    for q in range(4):
        P.append(I(f'ds_read_b128 {vr(X + 16 * s + 4 * q, 4)}, v{ASc[q]} offset:{(s & 3) * SLOT}', lds_r=s & 3,
                   tok=f'xr{s}' if q == 3 else None))
    P += later[cuts[s]:cuts[s + 1]] if s < 7 else []
    if s >= 5:
        P += rg(s - 5)
    for r in range(16):
        if r == 4 and s < 5:
            P += rx(s + 3, (s + 3) & 3)
        P.append(I(f'v_dot2c_f32_bf16 v{SUM[r & 1]}, s{sONES}, v{X + 16 * s + r}'))
        P.append(I(f'v_dot2c_f32_bf16 v{SQ[r & 1]}, v{X + 16 * s + r}, v{X + 16 * s + r}'))
P += stamp('x7')
P += L(f"""
v_add_f32 v{SUM[0]}, v{SUM[0]}, v{SUM[1]}
v_add_f32 v{SQ[0]}, v{SQ[0]}, v{SQ[1]}
v_mov_b32 v{SUM[1]}, v{SUM[0]}
v_mov_b32 v{SQ[1]}, v{SQ[0]}
v_permlane32_swap_b32 v{SUM[1]}, v{SUM[0]}
v_permlane32_swap_b32 v{SQ[1]}, v{SQ[0]}
v_add_f32 v{SUM[0]}, v{SUM[0]}, v{SUM[1]}
v_add_f32 v{SQ[0]}, v{SQ[0]}, v{SQ[1]}
v_mul_f32 v{SUM[0]}, 0x3b000000, v{SUM[0]}
v_mul_f32 v{SQ[0]}, 0x3b000000, v{SQ[0]}
v_fma_f32 v{SQ[0]}, -v{SUM[0]}, v{SUM[0]}, v{SQ[0]}
v_max_f32 v{SQ[0]}, 0, v{SQ[0]}
v_cvt_pk_bf16_f32 v{t0}, v{SUM[0]}, v{SQ[0]}
v_lshlrev_b32 v{VNM}, 16, v{t0}
v_sub_f32 v{SIM}, 0, v{VNM}
v_sub_f32 v{SIM + 1}, 0, v{VNM}
""")
P += [I(f'v_mov_b64 {vr(SIM + 2 * q, 2)}, {vr(SIM, 2)}') for q in range(1, 8)]

DB = [FACC[0], FACC[1], SRE]
items = []
for q in range(16):
    d = vr(DB[q % 3], 16)
    for h in range(2):
        it = [mfma(d, vr(TT + 4 * h, 4), vr(X + 8 * q + 4 * h, 4), vr(SIM, 16) if h == 0 else d)]
        if q >= 2:
            o = q - 2
            it += [I(f'v_cvt_pk_bf16_f32 v{X + 8 * o + 4 * h + e}, v{DB[o % 3] + 8 * h + 2 * e}, '
                     f'v{DB[o % 3] + 8 * h + 2 * e + 1}') for e in range(4)]
        items.append(it)
fill = L(f"""
v_and_b32 v{t0}, 0xffff0000, v{t0}
v_add_f32 v{t0}, 0x3727c5ac, v{t0}
v_cvt_pk_bf16_f32 v{t0}, v{t0}, v{t0}
v_lshlrev_b32 v{t0}, 16, v{t0}
v_sqrt_f32 v{t0}, v{t0}
v_and_b32 v{t1}, 3, v{vL}
v_cvt_pk_bf16_f32 v{t0}, v{t0}, v{t0}
v_lshlrev_b32 v{t0}, 16, v{t0}
v_rcp_f32 v{VRS}, v{t0}
v_bfe_u32 v{t2}, v{vL}, 3, 2
v_lshl_add_u32 v{t1}, v{t2}, 2, v{t1}
v_bfe_u32 v{t2}, v{vL}, 2, 1
v_lshl_add_u32 v{t1}, v{t2}, 4, v{t1}
s_lshl_b32 s{sT1}, s{sW}, 8
s_add_u32 s{sT1}, s{sT1}, {T_STAT}
v_lshl_add_u32 v{t1}, v{t1}, 2, s{sT1}
v_mul_f32 v{RL2}, {LOG2E:#x}, v{VRS}
ds_write_b32 v{t1}, v{VNM}
""")
fill.append(I(f'ds_write_b32 v{t1}, v{VRS} offset:128', tok='tabw'))
LA_S, LA_F = 3, OPT['laf']


def s_addr(slot):
    return [I(f'v_add_u32 v{ASc[q]}, {slot * SLOT}, v{AS[q]}') for q in range(4)]


def s_read(s, ri):
    return I(f'ds_read_b128 {ar(aS + 8 * (s & 3) + 4 * ri, 4)}, v{ASc[s & 3]} offset:{(2 * ((s >> 2) & 1) + ri) * 4096}',
             lds_r=G_SLOT[s >> 3])


def f_addr(b, g):
    slot = G_SLOT[(4 if b < 2 else 8) + g]
    if b < 2:
        sel = [I(f'v_xor_b32 v{FAc}, 64, v{FA0}')] if b else []
        return sel + [I(f'v_add_u32 v{FAc}, {slot * SLOT}, v{FAc if b else FA0}')]
    return [I(f'v_xor_b32 v{FAc}, s{sFSEL}, v{FA0}'), I(f'v_add_u32 v{FAc}, {slot * SLOT}, v{FAc}')]


def f_read(b, s):
    out = f_addr(b, s >> 3) if s % 8 == 0 else []
    k = (32 * b + s) & 7
    for u in range(2):
        out.append(I(f'ds_read_b64_tr_b16 {ar(aF + 4 * k + 2 * u, 2)}, v{FAc} '
                     f'offset:{((s >> 1) & 3) * 4096 + (s & 1) * 2048 + u * 512}',
                     lds_r=G_SLOT[(4 if b < 2 else 8) + (s >> 3)]))
    return out


pin = pins((1, rg(3)), (9, rg(4)), (17, rg(5)),
           (27, s_addr(G_SLOT[0]) + stamp('c27') + BAR('G0', 'G1', 'tabw', 'zero') + stamp('b0')))
for k in range(LA_S):
    pin[28 + k] = [s_read(k, 0), s_read(k, 1)]
P += weave(items, fill, pin, 0, 20)
for o in (14, 15):
    P += [I(f'v_cvt_pk_bf16_f32 v{X + 8 * o + e}, v{DB[o % 3] + 2 * e}, v{DB[o % 3] + 2 * e + 1}') for e in range(8)]

S_items = []
for s in range(32):
    for ri, acc in ((0, SRE), (1, SIM)):
        it = [mfma(vr(acc, 16), vr(X + 4 * s, 4), ar(aS + 8 * (s & 3) + 4 * ri, 4), vr(acc, 16) if s else '0')]
        n = s + LA_S
        if n < 32:
            if ri == 0 and n % 8 == 0:
                it += s_addr(G_SLOT[n >> 3])
            it.append(s_read(n, ri))
        S_items.append(it)
for k in range(LA_F):
    S_items[64 - LA_F + k] += f_read(0, k)
F_items = []
for b in range(4):
    its = []
    for s in range(32):
        acc = vr(FACC[b & 1], 16)
        it = [mfma(acc, ar(aF + 4 * ((32 * b + s) & 7), 4), vr(X + 4 * s, 4), acc if s else '0')]
        n = s + LA_F
        if n < 32:
            it += f_read(b, n)
        elif b < 3:
            if b == 2 and n == 32:
                it.append(I(f's_xor_b32 s{sFSEL}, s{sFSEL}, 64'))
            it += f_read(b + 1, n - 32)
        its.append(it)
    F_items.append(its)

FLA, FLP = VNM, VRS
fill = late + pf + L(f"""
v_lshrrev_b32 v{t0}, 3, v{vL}
v_bfe_u32 v{t1}, v{vL}, 4, 1
v_lshlrev_b32 v{t1}, 2, v{t1}
v_xor_b32 v{t1}, v{t1}, v{vL}
v_and_b32 v{t1}, 7, v{t1}
v_lshlrev_b32 v{t1}, 4, v{t1}
v_lshl_add_u32 v{XG[0]}, v{t0}, 10, v{t1}
v_add_u32 v{XG[1]}, {7 * 1024}, v{XG[0]}
v_add_u32 v{XG[2]}, {14 * 1024}, v{XG[0]}
v_add_u32 v{XG[3]}, {21 * 1024}, v{XG[0]}
v_lshrrev_b32 v{t2}, 5, v{vL}
v_lshlrev_b32 v{t2}, 6, v{t2}
v_add_u32 v{t2}, {TB}, v{t2}
s_lshl_b32 s{sT2}, s{sW}, 8
v_add_u32 v{t1}, s{sT2}, v{t2}""")
fill += [I(f'ds_read_b128 {vr(FACC[1] + 4 * q, 4)}, v{t1} offset:{128 + 16 * q}') for q in range(4)]
xe = L(f"""v_and_b32 v{t0}, 31, v{vL}
    v_lshrrev_b32 v{t1}, 5, v{vL}
    v_lshlrev_b32 v{t1}, 14, v{t1}
    v_lshl_add_u32 v{t1}, v{t0}, 1, v{t1}
    s_lshl_b32 s{sT2}, s{sJJ}, 2
    s_add_u32 s{sT2}, s{sT2}, s{sKQ}
    s_lshl_b32 s{sT2}, s{sT2}, 6
    v_lshl_add_u32 v{t0}, v{t0}, 1, s{sT2}
    s_add_u32 s{sXB}, s{sXB}, s{sT2}
    global_load_short_d16_hi a{aXE + 16}, v{t0}, s[{pDSK}:{pDSK + 1}]""")
for r in range(16):
    if r % 4 == 0:
        xe.append(I(f's_add_u32 s{sT2}, s{sXB}, {1024 * r}'))
    xe.append(I(f'buffer_load_short_d16_hi a{aXE + r}, v{t1}, {srd(sX)}, s{sT2} offen offset:{1024 * (r & 3)}'))
if OPT['tlb'] in (2, 3):
    fill = touch_o + fill
if OPT['fw']:
    fill += L(f"""s_lshl_b32 s{sT2}, s{sJJ}, 9
        s_add_u32 s{sT2}, s{sT2}, s{sFLG}
        v_lshlrev_b32 v{t0}, 3, v{vL}
        v_mov_b32 v{TT}, 0
        v_mov_b32 v{TT + 1}, 0
        buffer_store_dwordx2 {vr(TT, 2)}, v{t0}, {srd(sWS)}, s{sT2} offen sc1""")
if OPT['xw'] == 1:
    fill += L(f'v_lshlrev_b32 v{t0}, 2, v{vL}')
    for b in (1, 2, 3):
        fill += L(f"""buffer_store_dwordx4 {vr(TT, 4)}, v{VL16}, {srd(sWS)}, s{sXO[b]} offen sc1
            buffer_store_dwordx4 {vr(TT, 4)}, v{VL16}, {srd(sWS)}, s{sXO[b]} offen offset:1024 sc1
            buffer_store_dword v{vL}, v{t0}, {srd(sWS)}, s{sXO[b]} offen offset:2048 sc1""")
elif OPT['xw']:
    fill += L(f"""v_lshlrev_b32 v{t0}, 7, v{vL}
        v_min_u32 v{t0}, {59 * 128}, v{t0}
        buffer_load_dword a60, v{t0}, {srd(sWS)}, s{sXO[0]} offen {('', '', 'sc1', 'sc1 nt')[OPT['xw']]}""")
if not OPT['xel']:
    fill, xe = fill + xe, []
pin = pins((2, rg(6)), (12, rg(7)), (24, BAR('G2', 'G3')), (26, rg(8)), (38, rg(9)),
           (63 - LA_F, stamp('s59') + BAR('G4', 'G5', 'G6', 'G7') + stamp('b2')))
P += weave(fine('S', S_items, 3), fill, pin, 0, 62 - LA_F)

Q = FACC[1]
V = lambda t: SRE + t if t % 2 == 0 else SIM + t - 1
AGR, AGI = VRS, t3
fill = []
for q in range(8):
    for h in range(2):
        r = 2 * q + h
        fill += L(f"""v_mul_f32 v{TT + 2 * h}, v{SRE + r}, v{CR}
            v_mul_f32 v{TT + 2 * h + 1}, v{SRE + r}, v{NCI}
            v_fmac_f32 v{TT + 2 * h}, v{SIM + r}, v{NCI}
            v_fmac_f32 v{TT + 2 * h + 1}, v{SIM + r}, v{NCR}""")
    for h in range(2):
        r = 2 * q + h
        fill += L(f"""v_mul_f32 v{V(r)}, v{TT + 2 * h}, v{Q + r}
            v_mul_f32 v{V(r) + 1}, v{TT + 2 * h + 1}, v{Q + r}""")
    for r in (2 * q, 2 * q + 1):
        if r:
            pr = V(0) if r == 1 else (t0 if r & 1 else AGR)
            pi_ = V(0) + 1 if r == 1 else (FAd if r & 1 else AGI)
            nr, ni = (AGR, AGI) if r & 1 else (t0, FAd)
            fill += L(f"""v_fma_f32 v{nr}, v{LR}, v{pr}, v{V(r)}
                v_fma_f32 v{ni}, v{LR}, v{pi_}, v{V(r) + 1}
                v_fmac_f32 v{nr}, v{NLI}, v{pi_}
                v_fmac_f32 v{ni}, v{LI}, v{pr}""")
fill += L(f"""s_lshl_b32 s{sT2}, s{sW}, 9
    s_add_u32 s{sT2}, s{sT2}, {T_SEG}
    v_lshl_add_u32 v{t1}, v{vL}, 3, s{sT2}""")
fill.append(I(f'ds_write_b64 v{t1}, {vr(AGR, 2)} offset:{7 * 256}', tok='segw'))
pin = pins((1, rg(10)), (14, rg(11)), (31, BAR('segw')))
P += weave(fine('F0', F_items[0], 3), fill, pin, 2, 30)
P += stamp('F0')

E = ASc[0]
R0, R1, T0_, T1_ = QG[0], TT + 12, ASc[0], ASc[2]
m0 = mish(0)
q0 = len(m0) // 4 - 4
fill = [I(f'ds_read2_b64 {vr(R0, 4)}, v{t1} offset0:0 offset1:32'),
        I(f'ds_read2_b64 {vr(R1, 4)}, v{t1} offset0:64 offset1:96')] + m0[:q0]
fill += cmul_add(PR, PI, L16R, L16I, R0, R0 + 1, R0 + 2, R0 + 3)
fill.append(I(f'ds_read2_b64 {vr(R0, 4)}, v{t1} offset0:128 offset1:160'))
fill += cmul_add(T0_, T0_ + 1, L16R, L16I, PR, PI, R1, R1 + 1)
fill += cmul_add(PR, PI, L16R, L16I, T0_, T0_ + 1, R1 + 2, R1 + 3)
fill.append(I(f'ds_read_b64 {vr(R1, 2)}, v{t1} offset:{6 * 256}'))
fill += m0[q0:2 * q0]
fill += cmul_add(T0_, T0_ + 1, L16R, L16I, PR, PI, R0, R0 + 1)
fill += cmul_add(T1_, T1_ + 1, L16R, L16I, T0_, T0_ + 1, R0 + 2, R0 + 3)
fill += cmul_add(PR, PI, L16R, L16I, T1_, T1_ + 1, R1, R1 + 1)
fill += cmul_add(E, E + 2, L16R, L16I, PR, PI, AGR, AGI)
fill += L(f"""v_mov_b32 v{E + 1}, s{sTAG}
    v_mov_b32 v{E + 3}, s{sTAG}
    s_lshl_b32 s{sT2}, s{sJ}, 4
    s_add_u32 s{sT2}, s{sT2}, s{sI}
    s_lshl_b32 s{sT2}, s{sT2}, 9
    s_add_u32 s{sT2}, s{sT2}, {WS_AG - 512}
    s_cmp_eq_u32 s{sW}, 3
    s_cselect_b32 s{sT2}, s{sT2}, {OOB:#x}
    v_mov_b32 v{t0}, {OOB:#x}
    v_cmp_gt_u32 vcc, 32, v{vL}
    v_add_u32 v{t1}, s{sT2}, v{VL16}
    v_cndmask_b32 v{t1}, v{t1}, v{t0}, vcc
    buffer_store_dwordx4 {vr(E, 4)}, v{t1}, {srd(sWS)}, 0 offen sc1""")
fill += m0[2 * q0:]
pin = pins((4, rw('WA0')), (31 - LA_F, BAR('G8', 'G9', 'G10', 'G11')))
P += weave(fine('F0', F_items[1], 3), fill, pin, 1, 31)
P += stamp('F1')

LBA = [CR, NCI]
LBE = [NCR, L16R]
LBD = [ASc[0], QG[0]]
FLV = L16I
lb_loads = '\n'.join(f'buffer_load_dwordx4 {vr(LBD[e], 4)}, v{LBA[e]}, {srd(sWS)}, 0 offen sc1' for e in range(2))
lb_setup = L(f"""v_lshrrev_b32 v{t0}, 5, v{vL}
    s_lshl_b32 s{sT2}, s{sW}, 2
    s_add_u32 s{sT2}, s{sT2}, s{sI}
    s_sub_u32 s{sT2}, s{sT2}, 16
    v_lshl_add_u32 v{t0}, v{t0}, 1, s{sT2}
    s_lshl_b32 s{sT2}, s{sJ}, 13
    s_add_u32 s{sT2}, s{sT2}, {WS_AG}
    v_and_b32 v{t1}, 31, v{vL}
    v_lshl_add_u32 v{t1}, v{t1}, 4, s{sT2}
    v_lshl_add_u32 v{LBA[0]}, v{t0}, 9, v{t1}
    v_add_u32 v{LBA[1]}, 512, v{LBA[0]}
    v_mov_b32 v{t1}, {OOB:#x}
    v_mov_b32 v{FLV}, s{sTAG}
    v_cmp_gt_i32 vcc, 0, v{t0}
    v_cndmask_b32 v{LBA[0]}, v{LBA[0]}, v{t1}, vcc
    v_cndmask_b32 v{LBE[0]}, v{FLV}, 0, vcc
    v_cmp_gt_i32 vcc, -1, v{t0}
    v_cndmask_b32 v{LBA[1]}, v{LBA[1]}, v{t1}, vcc
    v_cndmask_b32 v{LBE[1]}, v{FLV}, 0, vcc""")
lb_setup += L(f"""s_lshl_b32 s{sT2}, s{sJJ}, 9
    s_add_u32 s{sT2}, s{sT2}, s{sFLG}
    v_and_b32 v{FLA}, 31, v{vL}
    v_lshl_add_u32 v{FLA}, v{FLA}, 2, s{sT2}
    v_and_b32 v{t0}, 3, v{vL}
    v_max_u32 v{t0}, 1, v{t0}
    v_xor_b32 v{t0}, s{sJJ}, v{t0}
    v_lshl_add_u32 v{FLP}, v{t0}, 9, s{sFLG}""")
def flag_store(stage, toks):
    out = [Wait(*toks), I(f'buffer_store_dword v{FLV}, v{FLA}, {srd(sWS)}, 0 offen offset:{128 * stage} sc1')]
    if OPT['ppf']:
        so = (sFST[0], sSST, sFST[2])[stage]
        vpf = L128R if stage else t3
        out = [I(f'v_lshlrev_b32 v{vpf}, {6 if stage < 2 else "s%d" % sSEL[1]}, v{vL}')] + out
        out.append(I(f'buffer_load_dword a{60 + (stage & 1)}, v{vpf}, {srd(sWS)}, s{so} offen sc1'))
    return out


def flag_load(stage):
    return f'buffer_load_dword v{t3}, v{FLP}, {srd(sWS)}, 0 offen offset:{128 * stage} sc1'


flag_check = f'v_cmp_ne_u32 vcc, s{sTAG}, v{t3}'
lb_check = f"""v_bitop3_b32 v{t0}, v{LBD[0] + 1}, v{LBD[0] + 3}, v{LBE[0]} bitop3:0x7e
    v_bitop3_b32 v{t1}, v{LBD[1] + 1}, v{LBD[1] + 3}, v{LBE[1]} bitop3:0x7e
    v_or_b32 v{t0}, v{t0}, v{t1}
    v_cmp_ne_u32 vcc, 0, v{t0}"""
lb_part = stamp('lb0') + poll('lb', lb_loads, lb_check) + stamp('lb1')
lb_part += cmul_add(LBD[0] + 1, LBD[0] + 3, L128R, L128I, LBD[0], LBD[0] + 2, LBD[1], LBD[1] + 2)
lb_part += cmul_add(LBD[1], LBD[1] + 1, WR, WI, LBD[0] + 1, LBD[0] + 3)
lb_part += L(f"""s_lshl_b32 s{sT2}, s{sW}, 9
    s_add_u32 s{sT2}, s{sT2}, {T_LB}
    v_lshl_add_u32 v{t1}, v{vL}, 3, s{sT2}""")
lb_part.append(I(f'ds_write_b64 v{t1}, {vr(LBD[1], 2)}', tok='lbw'))
HW, HR, HB = ASc[0], ASc[1], FACC[1]
HW2, HR2 = WR, WI
tail_addr = L(f"""v_and_b32 v{HW}, 31, v{vL}
    v_lshlrev_b32 v{ASc[3]}, 3, v{HW}
    v_add_u32 v{ASc[3]}, {T_LB}, v{ASc[3]}
    v_lshrrev_b32 v{t0}, 5, v{vL}
    s_lshl_b32 s{sT2}, s{sW}, 11
    s_add_u32 s{sT2}, s{sT2}, {T_H}
    v_lshl_add_u32 v{HW}, v{HW}, 6, s{sT2}
    v_bfe_u32 v{HR}, v{vL}, 1, 2
    v_lshlrev_b32 v{HW2}, 1, v{t0}
    v_xor_b32 v{HR}, v{HR}, v{HW2}
    v_lshl_add_u32 v{HW}, v{HR}, 4, v{HW}
    v_xor_b32 v{HW2}, 16, v{HW}
    v_bfe_u32 v{HR}, v{vL}, 2, 2
    v_lshl_add_u32 v{HR}, v{t0}, 3, v{HR}
    v_lshl_add_u32 v{HR}, v{HR}, 6, s{sT2}
    v_and_b32 v{t0}, 1, v{vL}
    v_lshl_add_u32 v{HR}, v{t0}, 5, v{HR}
    v_lshrrev_b32 v{t0}, 1, v{vL}
    v_xor_b32 v{t0}, v{t0}, v{vL}
    v_and_b32 v{t0}, 8, v{t0}
    v_lshl_add_u32 v{HR}, v{t0}, 1, v{HR}
    v_bfe_u32 v{t0}, v{vL}, 1, 1
    v_lshl_add_u32 v{HR}, v{t0}, 3, v{HR}
    v_xor_b32 v{HR2}, 32, v{HR}
    s_bitcmp1_b32 s{sJJ}, 0
    s_cselect_b32 s{sT2}, {OOB:#x}, 0
    v_add_u32 v{ASc[2]}, s{sT2}, v{VL16}
    s_mov_b32 s{sKC[0]}, {M2LN2:#x}""")
lb_reads = [I(f'ds_read2_b64 {vr(HB + 4 * q, 4)}, v{ASc[3]} offset0:{64 * q} offset1:{64 * q + 32}') for q in range(4)]
scan = [I(f'v_pk_add_f32 {vr(HB + a, 2)}, {vr(HB + a, 2)}, {vr(HB + b_, 2)}')
        for a, b_ in ((0, 2), (4, 6), (8, 10), (12, 14), (0, 4), (8, 12), (0, 8))]
scan += cmul_add(L128R, L128I, LSR, LSI, HB, HB + 1, PR, PI)
for r in range(16):
    prev = vr(L128R if r == 0 else V(r - 1), 2)
    scan += L(f"""v_pk_fma_f32 {vr(V(r), 2)}, {prev}, {vr(LR, 2)}, {vr(V(r), 2)} op_sel_hi:[1,0,1]
        v_pk_fma_f32 {vr(V(r), 2)}, {prev}, {vr(NLI, 2)}, {vr(V(r), 2)} op_sel:[1,0,0] op_sel_hi:[0,1,1]""")
    if r & 1:
        scan += L(f"""v_cvt_pk_bf16_f32 v{HB + (r >> 1)}, v{V(r - 1)}, v{V(r)}
            v_cvt_pk_bf16_f32 v{HB + 8 + (r >> 1)}, v{V(r - 1) + 1}, v{V(r) + 1}""")
for ri in range(2):
    scan += [I(f'ds_write_b128 v{(HW, HW2)[h]}, {vr(HB + 8 * ri + 4 * h, 4)}') for h in range(2)]
    for fr in range(2):
        for u in range(2):
            scan.append(I(f'ds_read_b64_tr_b16 {ar(aOS + 8 * ri + 4 * fr + 2 * u, 2)}, v{(HR, HR2)[u]} offset:{1024 * fr + 256 * u}'))
m1 = mish(1)
per = sum(i.slots() for i in lb_setup + m1 + lb_part + tail_addr) / 27
c1 = next(n for n in range(len(m1)) if sum(i.slots() for i in lb_setup + m1[:n]) >= per * (OPT['lbl'] - 2))
fill = lb_setup + m1[:c1] + L(lb_loads) + m1[c1:] + lb_part + tail_addr
pin = pins((0, rw('CR0')), (8, rw('CI0')), (18, rw('WA1')), (29, BAR('lbw') + lb_reads))
P += weave(fine('F2', F_items[2], 2), fill, pin, 2, 28)
P += stamp('F2')
m2 = mish_pk(2, VL16, range(1))
burst = m2[:2] + merge(scan, m2[2:-5])
if OPT['fas'] < 0:
    burst = burst[:OPT['fas']] + flag_store(0, ['stF0', 'stF1']) + burst[OPT['fas']:]
P += burst
for q in range(4):
    F_items[3][1 + q].append(I(f'buffer_store_dwordx4 {ar(aOS + 4 * q, 4)}, v{VL16}, {srd(sWS)}, s{sSST} offen '
                               f'offset:{1024 * q} sc1', tok='stH' if q == 3 else None))
P += stamp('scan')


FP0, FPc = [CR, NCI], [QG[2], QG[3]]
PA = OPT['pa']
p3_setup = L(f"""v_bfe_u32 v{t1}, v{vL}, 2, 2
    v_lshrrev_b32 v{t0}, 5, v{vL}
    v_lshl_add_u32 v{t0}, v{t0}, 2, v{t1}
    v_lshlrev_b32 v{FP0[0]}, 7, v{t0}
    v_lshrrev_b32 v{t1}, 1, v{t1}
    s_and_b32 s{sT2}, s{sKQ}, 1
    v_xor_b32 v{t1}, s{sT2}, v{t1}
    v_lshl_add_u32 v{FP0[0]}, v{t1}, 6, v{FP0[0]}
    v_bfe_u32 v{t1}, v{vL}, 4, 1
    v_lshl_add_u32 v{FP0[0]}, v{t1}, 5, v{FP0[0]}
    v_and_b32 v{t1}, 3, v{vL}
    v_lshl_add_u32 v{FP0[0]}, v{t1}, 3, v{FP0[0]}
    v_xor_b32 v{FP0[1]}, 64, v{FP0[0]}
    s_and_b32 s{sT2}, s{sJJ}, 1
    s_lshl_b32 s{sT2}, s{sT2}, 6""") + [I(f'v_xor_b32 v{AS[q]}, s{sT2}, v{AS[q]}') for q in range(4)]
fill = m2[-5:] + mish(2, VL16, (2, 3)) + p3_setup

steps = ([('WA0', x, 'own') for x in range(4)]
         + [(n, x, 'own') for n in ('CR0', 'CI0') for x in range(2)]
         + [(f'WA{e}', x, 'A') for e in (1, 2, 3) for x in range(4)]
         + [(n, x, 'H') for n in ('CR0', 'CI0') for x in (2, 3)]
         + [(n, x, 'H') for n in ('CR1', 'CI1') for x in range(4)]
         + [('WB0', x, 'own') for x in range(4)]
         + [(f'WB{e}', x, 'B') for e in (1, 2) for x in range(4)])
deferred = [k for k, st in enumerate(steps) if st[2] != 'own']
A_REGS = ([192 + 4 * n for n in range(16)] + [SRE + 4 * n for n in range(8)]
          + [FACC[0] + 4 * n for n in range(4)] + [TT + 4 * n for n in range(4)])
ACC = [128, 144, 160, 176]
cur_addr = {}


def a_frag(k):
    name, x, src = steps[k]
    if src != 'own':
        return vr(A_REGS[deferred.index(k)], 4)
    if name == 'WA0':
        return ar(aOF + 4 * x, 4)
    if name == 'WB0':
        return ar(aOF + 16 + 4 * x, 4) if x < 2 else vr(FACC[1] + 4 * (x - 2), 4)
    return ar(aOS + 8 * (name[1] == 'I') + 4 * x, 4)


def a_load(k):
    name, x, src = steps[k]
    e = int(name[2])
    if name[0] == 'C':
        code = f's_xor_b32 s{sT1}, s{sJJ}, {2 * e + (x >> 1)}\ns_lshl_b32 s{sT1}, s{sT1}, 12\n' \
               f's_add_u32 s{sT1}, s{sT1}, {28 * 1024}\ns_add_u32 s{sT1}, s{sT1}, s{sAS}'
        off = 2048 * (name[1] == 'I') + 1024 * (x & 1)
        fresh = x & 1 == 0
    else:
        if name[1] == 'A':
            code = f's_xor_b32 s{sT1}, s{sJJ}, {e}\ns_lshl_b32 s{sT1}, s{sT1}, 13\ns_add_u32 s{sT1}, s{sT1}, s{sAS}'
        else:
            code = f's_lshl_b32 s{sT1}, s{sPB[e]}, 12\ns_add_u32 s{sT1}, s{sT1}, s{sAS}'
        off = 1024 * x
        fresh = x == 0
    return (L(code) if fresh else []) + \
        [I(f'buffer_load_dwordx4 {a_frag(k)}, v{VL16}, {srd(sWS)}, s{sT1} offen offset:{off} sc1')]


pin = pins((PA, rw('WA2')), (PA + 8, BAR()), (PA + 9, rw('WA3')), (PA + 17, BAR()), (PA + 18, rw('CR1')),
           (OPT['fal'], L(flag_load(0))), (30, BAR('WA0', 'CR0', 'CI0', 'WA1')))
if OPT['fhs'] >= 0:
    pin[OPT['fhs']] = flag_store(1, ['stH'])
if OPT['fas'] >= 0:
    pin[OPT['fas']] = flag_store(0, ['stF0', 'stF1'])
P += weave(fine('F3', F_items[3], 2), fill, pin, 1, 29)
P += stamp('F3')

m3 = mish_pk(3, ASc[2])
st0 = next(n for n, i_ in enumerate(m3) if i_.kind == 'vm')
early = sum((a_load(k) for k in range(8, 8 + OPT['nea'])), [])
fac = st0 - OPT['fac']
P += m3[:fac] + (flag_store(1, ['stH']) if OPT['fhs'] < 0 else [])
P += stamp('fa0') + poll('fa', flag_load(0), flag_check) + stamp('fa1')
P += merge(m3[fac:st0], early) + (L(flag_load(1)) if OPT['fhl'] < 0 else []) + m3[st0:]
P += stamp('tail')

XE, ME = 192, LSR
ep_setup = L(f"""v_lshrrev_b32 v{t1}, 5, v{vL}
    s_lshl_b32 s{sT2}, s{sW}, 8
    s_add_u32 s{sT2}, s{sT2}, {T_STAT}
    v_lshl_add_u32 v{VLN2}, v{t1}, 6, s{sT2}
    v_lshlrev_b32 v{FA0}, 15, v{t1}
    v_and_b32 v{t0}, 31, v{vL}
    v_lshl_add_u32 v{FA0}, v{t0}, 2, v{FA0}""")
VL4 = ASc[0]
ep_setup = L(f'v_lshlrev_b32 v{VL4}, 2, v{vL}') + ep_setup
base_calc = [I(f'v_accvgpr_read_b32 v{RL2}, a{aXE + 16}')]
for qt in range(4):
    base_calc += [I(f'ds_read_b128 {vr(ME, 4)}, v{VLN2} offset:{16 * qt}', hoist=True),
                  I(f'ds_read_b128 {vr(ME + 4, 4)}, v{VLN2} offset:{128 + 16 * qt}', hoist=True)]
    rs = range(4)
    base_calc += [I(f'v_accvgpr_read_b32 v{XE + 4 * qt + r}, a{aXE + 4 * qt + r}') for r in rs]
    base_calc += [I(f'v_sub_f32 v{ME + r}, v{XE + 4 * qt + r}, v{ME + r}') for r in rs]
    base_calc += [I(f'v_mul_f32 v{ME + r}, v{ME + r}, v{ME + 4 + r}') for r in rs]
    base_calc += [I(f'v_fmac_f32 v{XE + 4 * qt + r}, v{ME + r}, v{RL2}') for r in rs]

def checksum(dst, src, last):
    return [f'v_bitop3_b32 v{dst}, v{src}, v{src + 1}, {last} bitop3:0x96'] + \
           [f'v_bitop3_b32 v{dst}, v{src + e}, v{src + e + 1}, v{dst} bitop3:0x96' for e in (2, 4, 6)]


def send(b):
    A = ACC[b]
    out = []
    for q in range(2):
        out += [I(f'v_cvt_pk_bf16_f32 v{A + e}, v{A + 2 * e}, v{A + 2 * e + 1}') for e in range(4 * q, 4 * q + 4)]
        out.append(I(f'buffer_store_dwordx4 {vr(A + 4 * q, 4)}, v{VL16}, {srd(sWS)}, s{sXO[b]} offen '
                     f'offset:{1024 * q} sc1'))
    out += [I(c) for c in checksum(A + 8, A, f's{sTAG}')]
    out.append(I(f'buffer_store_dword v{A + 8}, v{VL4}, {srd(sWS)}, s{sXO[b]} offen offset:2048 sc1'))
    return out


def w_read1(k, b, dst):
    name, x, src = steps[k]
    slot = W_SLOT[name]
    if name[0] == 'C':
        return [I(f'v_add_u32 v{FAc}, {slot * SLOT}, v{AS[x]}'),
                I(f'ds_read_b128 {ar(dst, 4)}, v{FAc} offset:{4096 * b}', lds_r=slot)]
    key = FPc[b & 1]
    out = []
    if cur_addr.get(key) != slot:
        cur_addr[key] = slot
        out.append(I(f'v_add_u32 v{key}, {slot * SLOT}, v{FP0[b & 1]}'))
    return out + [I(f'ds_read_b64_tr_b16 {ar(dst + 2 * u, 2)}, v{key} '
                    f'offset:{8192 * (x >> 1) + 4096 * (b >> 1) + 2048 * (x & 1) + 1024 * u}', lds_r=slot) for u in range(2)]


RX = {1: ACC[1], 2: ACC[2], 3: ACC[3]}


def recv(b):
    so = sXO[0] if b == 1 else sSEL[b]
    rl = [f'buffer_load_dwordx4 {vr(RX[b] + 4 * q, 4)}, v{VL16}, {srd(sWS)}, s{so} offen offset:{1024 * q} sc1' for q in range(2)]
    rl.append(f'buffer_load_dword v{RX[b] + 8}, v{VL4}, {srd(sWS)}, s{so} offen offset:2048 sc1')
    return '\n'.join(rl)


pre = L(f"""s_lshl_b32 s{sXB}, s{sXB}, 1
    s_mov_b32 s{sKC[0]}, 0x00003f80
    s_mov_b32 s{sKC[1]}, 0x3f800000""")
E3 = OPT['e3']
seq = [(k, b) for k in range(8) for b in (1, 2, 3, 0)] + [(k, b) for k in range(8, E3) for b in (1, 2, 3)]
seq += [(k, b) for k in range(E3, 36) for b in (1, 2)]
seq += [(k, b) for b in (1, 2) for k in range(36, 44)]
seq += [(k, 3) for k in range(E3, 44)] + [(k, 0) for k in range(8, 44)]
at = {kb: n for n, kb in enumerate(seq)}
done_at = {b: at[43, b] for b in (1, 2, 3)}
KEEP = {(k, 0): aWO + 4 * (k - 8) for k in range(8, 12)}
reads = sorted((kb for kb in seq), key=lambda kb: at[kb[0], 3] + 0.5 if kb in KEEP else at[kb])
RING = 12
where, nring = {}, 0
for kb in reads:
    if kb in KEEP:
        where[kb] = KEEP[kb]
    else:
        where[kb] = aP + 4 * (nring % RING)
        nring += 1
LA_J = OPT['laj']
items = []
rd = 0
seen = set()
for n, (k, b) in enumerate(seq):
    pre_rd = []
    while rd < len(reads) and (at[reads[rd][0], 3] if reads[rd] in KEEP else at[reads[rd]]) <= n + LA_J:
        pre_rd += w_read1(*reads[rd], where[reads[rd]])
        rd += 1
    m = mfma(vr(ACC[b], 16), a_frag(k), ar(where[k, b], 4), vr(ACC[b], 16) if b in seen else '0')
    seen.add(b)
    if n == 0:
        P = P[:-8 - (PROF in (1, 2))] + pre_rd + P[-8 - (PROF in (1, 2)):]
        pre_rd = []
    items.append([m] + pre_rd)
pin = {n: [] for n in range(len(items))}
pin[18] += BAR('WA2')
pin[at[16, 1] - LA_J - 1] += [Wait('WA3', 'CR1', 'CI1'), I('s_barrier')]
pin[at[32, 1] - LA_J - 1] += [Wait('WB0', 'WB1', 'WB2'), I('s_barrier')]
if OPT['fhl'] >= 0:
    pin[OPT['fhl']] += L(flag_load(1))
pin[OPT['fhc']] += stamp('fh0') + poll('fh', flag_load(1), flag_check) + stamp('fh1')
pin[OPT['fls']] += flag_store(2, ['stF3', 'stF2'])
pin[OPT['fll']] += L(flag_load(2))
pin[OPT['flc']] += stamp('fl0') + poll('fl', flag_load(2), flag_check) + stamp('fl1')
pin[at[36, 1] - 1] += stamp('k36')
queue = [(0, a_load(k)) for k in range(8 + OPT['nea'], 16)] + [(0, rw('CI1'))]
queue += [(0, a_load(k)) for k in range(max(16, 8 + OPT['nea']), 20)]
if OPT['qord'] == 0:
    queue += [(19, rw('WB0'))] + [(OPT['fhc'], a_load(k)) for k in range(20, 32)] + [(19, rw('WB1'))]
elif OPT['qord'] == 1:
    queue += [(19, rw('WB0')), (19, rw('WB1'))] + [(OPT['fhc'], a_load(k)) for k in range(20, 32)]
else:
    queue += [(OPT['fhc'], a_load(k)) for k in range(20, 24)] + [(19, rw('WB0')), (19, rw('WB1'))]
    queue += [(0, a_load(k)) for k in range(24, 32)]
queue += [(at[16, 1] - LA_J, rw('WB2'))]
queue += [(OPT['flc'], a_load(k)) for k in range(36, 44)]
n = 0.0
for first_gap, ins in queue:
    n = max(n, first_gap)
    pend = []
    for i_ in ins:
        pend.append(i_)
        if i_.kind == 'vm':
            pin[int(n)] += pend
            pend = []
            n += OPT['pace'] / 10
for b in (1, 2, 3):
    sd = send(b)
    for q in range(4):
        pin[done_at[b] + 3 + q] += sd[q * len(sd) // 4:(q + 1) * len(sd) // 4]
    pin[done_at[min(b + 1, 3) if b < 3 else 3] + OPT[f'r{b}'] if b != 2 else done_at[2] + OPT['r2']] += L(recv(b))
pin[done_at[2] + 6] += stamp('s12')
pin[done_at[3] + 6] += stamp('sent')
items = fine('P3', items[:112], 4) + items[112:]
LEV[0] = OPT['lev3']
sub = lambda lo, hi: {n - lo: pin[n] for n in range(lo, hi)}
c1, c2 = at[32, 1], at[11, 0] + 1
P += weave(items[:c1], [], sub(0, c1))
cx = done_at[2] + 8
P += weave(items[c1:cx], ep_setup, sub(c1, cx), 0, 4)
P += weave(items[cx:c2], xe + pre, sub(cx, c2), 0, 18)
P += weave(items[c2:], base_calc, sub(c2, len(items)), 3, 26)
P += stamp('own')
A0 = ACC[0]
for q in range(8):
    P.append(I(f'v_pk_add_f32 {vr(A0 + 2 * q, 2)}, {vr(A0 + 2 * q, 2)}, {vr(XE + 2 * q, 2)}'))
for b in (1, 2, 3):
    chk = checksum(RX[b] + 9, RX[b], f'v{RX[b] + 8}') + [f'v_cmp_ne_u32 vcc, s{sTAG}, v{RX[b] + 9}']
    P += poll(f'rx{b}', recv(b), '\n'.join(chk))
P += stamp('rx')
for q in range(8):
    for b in (1, 2, 3):
        P += [I(f'v_dot2c_f32_bf16 v{A0 + 2 * q + h}, s{sKC[h]}, v{RX[b] + q}') for h in range(2)]
    if q:
        P += sts
    sts = [I(f's_add_u32 s{sBB}, s{sXB}, {4096 * q}')]
    sts += [I(f'buffer_store_dword v{A0 + 2 * q + h}, v{FA0}, {srd(sOUT)}, s{sBB} offen offset:{2048 * h} '
              f'{OPT["out_flags"]}') for h in range(2)]
P += L(f"""s_lshl_b32 s{sT2}, s{sJ}, 2
    s_add_u32 s{sT2}, s{sT2}, s{sW}
    s_xor_b32 s{sT1}, s{sI}, 15
    s_or_b32 s{sT2}, s{sT2}, s{sT1}
    s_cmp_eq_u32 s{sT2}, 0
    s_cselect_b32 s{sT2}, {WS_EP}, {OOB:#x}
    v_mov_b32 v{t0}, s{sE2}
    v_mov_b32 v{t1}, s{sT2}""") + sts + L(f'buffer_store_dword v{t0}, v{t1}, {srd(sWS)}, 0 offen')
if OPT['diag']:
    P += stamp('end') + L("""s_memrealtime s[6:7]
        s_waitcnt lgkmcnt(0)
        s_sub_u32 s4, s4, s23
        s_lshl_b32 s4, s4, 2
        s_min_u32 s4, s4, 20000
        L_diag:
        s_memrealtime s[0:1]
        s_waitcnt lgkmcnt(0)
        s_sub_u32 s0, s0, s6
        s_cmp_lt_u32 s0, s4
        s_cbranch_scc1 L_diag""")
if PROF:
    P += stamp('end')
    P += L(f"""s_waitcnt vmcnt(0)
        s_memrealtime s[0:1]
        s_lshl_b32 s{sT2}, s2, 2
        s_add_u32 s{sT2}, s{sT2}, s{sW}
        s_lshl_b32 s{sT2}, s{sT2}, 7
        s_add_u32 s{sT2}, s{sT2}, {WS_PROF}
        v_mov_b32 v{t1}, s{sT2}
        s_waitcnt lgkmcnt(0)
        v_mov_b32 v{t0}, s0
        buffer_store_dword v{t0}, v{t1}, {srd(sWS)}, 0 offen offset:124
        v_mov_b32 v{t2}, s23
        buffer_store_dword v{t2}, v{t1}, {srd(sWS)}, 0 offen offset:112
        buffer_store_dword a62, v{t1}, {srd(sWS)}, 0 offen offset:116
        buffer_store_dword a63, v{t1}, {srd(sWS)}, 0 offen offset:120""")
    P += stamp('DUMP')
P += [I('L_end:'), I('s_endpgm')]

P = resolve_stamps(P)
if OPT['split']:
    P = split_ds_pairs(P)
if OPT['hoist']:
    P = hoist_reads(P, OPT['hoist'])
body = pad_hazards(insert_waits(P, OPT['age']))
tail = []
for name, loads, check in retry_blocks:
    blk = [I(f'L_retry_{name}:'), I(f's_mov_b32 s3, {OPT["spin"]}'), I(f'L_spin_{name}:')]
    if PROF:
        blk.append(I(f's_add_u32 s23, s23, {1 << (4 * retry_blocks.index((name, loads, check)))}'))
    blk += L(loads) + [I('s_waitcnt vmcnt(0)')] + L(check)
    blk += L(f'''s_cbranch_vccz L_back_{name}
        s_sub_u32 s3, s3, 1
        s_cmp_lg_u32 s3, 0
        s_cbranch_scc1 L_spin_{name}
        s_branch L_back_{name}''')
    tail += pad_hazards(blk)

hdr = open(os.path.join(os.path.dirname(os.path.abspath(__file__)), 'header.txt')).read()
text = hdr + f'''; @launch grid=(256,1,1) block=(256,1,1) lds=163840
.amdgcn_target "amdgcn-amd-amdhsa--gfx950"
.text
.globl {KN}
.p2align 8
.type {KN},@function
{KN}:
{render(body)}
{render(tail)}
L_code_end:
    s_endpgm
.section .rodata,"a"
.p2align 6
.amdhsa_kernel {KN}
  .amdhsa_next_free_vgpr 512
  .amdhsa_next_free_sgpr 102
  .amdhsa_accum_offset 256
  .amdhsa_group_segment_fixed_size 0
  .amdhsa_kernarg_size 128
  .amdhsa_user_sgpr_count 2
  .amdhsa_user_sgpr_kernarg_segment_ptr 1
  .amdhsa_system_sgpr_workgroup_id_x 1
.end_amdhsa_kernel
'''
open(sys.argv[1], 'w').write(text)
if PROF:
    open(sys.argv[1][:-2] + '.stamps', 'w').write(' '.join(stamp_names))
from collections import Counter
cnt = Counter(i.kind for i in body)
print(dict(cnt), 'nops', sum(1 for i in body if i.mn == 's_nop'))
```

```python
import sys, os
sys.path.insert(0, os.path.dirname(os.path.abspath(__file__)))
from asmlib import I, Wait, insert_waits, pad_hazards, render, weave, split_ds_pairs, hoist_reads, merge, level, ds_first

KN = 'parallel_sum__ssm_conv_s5__dense_activation_mish__prompt_kernel'
OPT = dict(prof=0, spin=20000, out_flags='', map='8x4', pf=1, age=24, laf=5, r1=26, r2=32, r3=29, e3=12, fls=28, fll=50, flc=68, ka2=1, nstep=0, split=0, diag='', dsp=2, xel=0, tlb=0, rotj=0, laj=7, pace=13, lev=0, lev3=0, pa=2, fw=1, xw=0, vmc=2, fine='', fas=-30, fal=12, fac=24, nea=8, fhs=-1, fhl=12, fhc=28, qord=0, lbl=13, lbc=24, ppf=0, hoist=32)
for a in sys.argv[2:]:
    k, v = a.split('=')
    OPT[k] = int(v) if v.lstrip('-').isdigit() else v
PROF = OPT['prof']

WS_EP, WS_AG, WS_A = 0, 0x10000, 0x40000
WS_XC = WS_A + 64 * 176 * 1024
XC_BLK = 2560
WS_FL = WS_XC + 1024 * 3 * XC_BLK
WS_SIZE = WS_FL + 1024 * 512
WS_PROF = 0x1C00000
OOB = 0x7ff00000
SLOT = 16384
TB = 9 * SLOT
T_STAT, T_B1, T_SEG, T_LB, T_H = TB, TB + 1024, TB + 2048, TB + 6144, TB + 8192
LOG2E, LN2, M2LN2 = 0x3fb8aa3b, 0x3f317218, 0xbfb17218

sX, sB, sW1, sCre, sCim, sW2, sWS, sOUT, sTMP = 36, 40, 44, 48, 52, 56, 60, 64, 68
sI, sJ, sW, sROT, sTAG, sE2 = 72, 73, 74, 75, 76, 77
sKC = [78, 79, 80, 81]
sWOFF, sT0, sT1, sXB, sBB, sW1A, sW1B = 82, 83, 84, 85, 86, 87, 88
sAS = 89
sFST = [90, 91, 92, 93]
sSST, sCB, sW2B, sFSEL, sONES, sT3, sJJ, sT2 = 94, 95, 96, 97, 98, 99, 100, 101
sKQ, sPB, sXO = 22, [24, 25, 26], [27, 28, 29, 30]
sSEL = [31, 32, 33, 34]
sFLG = 35
pLRE, pLIM, pBRE, pBIM, pLDT, pDSK, pB1 = 8, 10, 12, 14, 16, 18, 20
srd = lambda b: f's[{b}:{b + 3}]'
vL, t0, t1, t2 = 0, 1, 2, 3
AS = [4, 5, 6, 7]
ASc = [8, 9, 10, 11]
XG = [12, 13, 14, 15]
PG = [16, 17, 18, 19]
QG = [20, 21, 22, 23]
FA0, FAc, RL2, VLN2, VL16, VNM, VRS, t3 = 24, 25, 26, 27, 28, 29, 30, 31
FAd = VNM
NLI, LI, LR, CR, NCI, NCR, L16R, L16I, LSR, LSI, L128R, L128I, WR, WI, PR, PI = range(32, 48)
TT = 48
FACC = [64, 80]
SRE, SIM = 96, 112
X = 128
aS, aF, aP, aOF, aOS, aWO, aXE = 0, 128, 0, 64, 88, 128, 224
STAMP_A = list(range(104, 128)) + list(range(48, 54))
vr = lambda b, n: f'v[{b}:{b + n - 1}]'
ar = lambda b, n: f'a[{b}:{b + n - 1}]'

stamp_names = []
FINE_KEEP = dict(T=['lb1', 'F2', 'scan', 'F3', 'fa0', 'fa1', 'tail', 'fh0'], S=['x7', 'c27', 'b0', 'F0'], F0=['b2', 'F0', 'F1'], F2=['F1', 'F2', 'scan'], F3=['scan', 'F3', 'fa0', 'fa1', 'tail'],
                 P3=[], L=['k36', 'sent', 'own', 'rx'])


def fine(phase, items, step):
    if OPT['fine'] == phase:
        for n in range(step - 1, len(items), step):
            items[n] = items[n] + stamp(f'g{n}')
    return items


def stamp(name):
    if PROF == 3 and name not in ('end', 'DUMP'):
        return []
    if OPT['fine'] and not name.startswith('g') and name not in FINE_KEEP[OPT['fine']] + ['end', 'DUMP']:
        return []
    if OPT['diag'] == name:
        return [I('s_memrealtime s[4:5]')]
    return [I(';stamp ' + name)] if PROF else []


def resolve_stamps(prog):
    out = []
    for ins in prog:
        if not ins.text.startswith(';stamp '):
            out.append(ins)
            continue
        name = ins.text.split()[1]
        n = len(stamp_names)
        if n:
            out.append(I(f'v_accvgpr_write_b32 a{STAMP_A[n - 1]}, s{4 + 2 * ((n - 1) & 1)}'))
        if name == 'DUMP':
            out += [I(f'buffer_store_dword a{STAMP_A[k]}, v{t1}, {srd(sWS)}, 0 offen offset:{4 * k}') for k in range(n)]
            continue
        assert n < 29
        stamp_names.append(name)
        out.append(I(f's_mem{"real" if PROF == 2 else ""}time s[{4 + 2 * (n & 1)}:{5 + 2 * (n & 1)}]'))
    return out


def L(text):
    return [I(t.strip()) for t in text.strip().split('\n') if t.strip()]


def mfma(d, a, b, c):
    return I(f'v_mfma_f32_32x32x16_bf16 {d}, {a}, {b}, {c}')


def mksrd(b, lo, size):
    return f's_mov_b32 s{b}, s{lo}\ns_mov_b32 s{b + 1}, s{lo + 1}\ns_mov_b32 s{b + 2}, {size}\ns_mov_b32 s{b + 3}, 0x00020000\n'


slot_shared = {}


def dma_round(name, slot, voffs, rsrc, soff_code, shared):
    out = [I(f's_add_u32 m0, s{sWOFF}, {slot * SLOT}')] + L(soff_code)
    for g in range(4):
        out.append(I(f'buffer_load_dwordx4 v{voffs[g]}, {srd(rsrc)}, s{sT0} offen offset:{1024 * g} lds',
                     tok=name if g == 3 else None,
                     lds_w=(slot, slot_shared.get(slot, False)) if g == 0 else None, note=name,
                     fills=(slot, shared) if g == 3 else None))
    slot_shared[slot] = shared
    return out


def rx(s, slot):
    return dma_round(f'x{s}', slot, XG, sX,
                     f's_add_u32 s{sT0}, s{sROT}, {s}\ns_and_b32 s{sT0}, s{sT0}, 7\n'
                     f's_lshl_b32 s{sT0}, s{sT0}, 7\ns_add_u32 s{sT0}, s{sT0}, s{sXB}', False)


G_SLOT = [4, 5, 6, 7, 8, 0, 1, 2, 3, 4, 5, 6]
W_SLOT = dict(WA0=7, CR0=8, CI0=0, WA1=1, WA2=2, WA3=3, CR1=4, CI1=5, WB0=6, WB1=7, WB2=1)


def rg(g):
    if g < 4:
        return dma_round(f'G{g}', G_SLOT[g], PG, sB,
                         f's_lshl_b32 s{sT0}, s{sKC[g]}, 7\ns_add_u32 s{sT0}, s{sT0}, s{sBB}', True)
    base = sW1A if g < 8 else sW1B
    return dma_round(f'G{g}', G_SLOT[g], QG, sW1,
                     f's_mul_i32 s{sT0}, s{sKC[g & 3]}, {64 * 3584}\ns_add_u32 s{sT0}, s{sT0}, s{base}', True)


def rw(name):
    e = int(name[2])
    if name[0] == 'C':
        code = f's_xor_b32 s{sT0}, s{sCB}, {128 * e}'
        return dma_round(name, W_SLOT[name], PG, sCim if name[1] == 'I' else sCre, code, True)
    if name[1] == 'A':
        code = f's_xor_b32 s{sT0}, s{sJJ}, {e}\ns_lshl_b32 s{sT0}, s{sT0}, 17\ns_add_u32 s{sT0}, s{sT0}, s{sW2B}'
    else:
        code = f's_lshl_b32 s{sT0}, s{sPB[e]}, 16\ns_add_u32 s{sT0}, s{sT0}, s{sW2B}'
        if e == 0:
            code += f'\ns_xor_b32 s{sT0}, s{sT0}, s{sSEL[0]}'
    return dma_round(name, W_SLOT[name], XG, sW2, code, True)


def pins(*parts):
    pin = {}
    for gap, ins in parts:
        head = [i_ for i_ in ins if not getattr(i_, 'dma', False)]
        pin.setdefault(gap, []).extend(head)
        for n, i_ in enumerate(ins[len(head):]):
            pin.setdefault(gap + n * OPT['dsp'], []).append(i_)
    return pin


BAR = lambda *toks: ([Wait(*toks)] if toks else []) + [I('s_barrier')]
retry_blocks = []


def poll(name, loads, check):
    retry_blocks.append((name, loads, check))
    return L(check) + [I(f's_cbranch_vccnz L_retry_{name}'), I(f'L_back_{name}:')]


def cexp(dr, di, scale, zr, za):
    return L(f"""v_mul_f32 v{dr}, {scale}, v{zr}
        v_mul_f32 v{di}, {scale}, v{za}
        v_exp_f32 v{dr}, v{dr}
        v_fract_f32 v{di}, v{di}
        v_cos_f32 v{t3}, v{di}
        v_sin_f32 v{di}, v{di}
        v_mul_f32 v{di}, v{dr}, v{di}
        v_mul_f32 v{dr}, v{dr}, v{t3}""")


def cmul_add(dr, di, ar_, ai, br, bi, cr=None, ci=None):
    if cr is None:
        head = f'v_mul_f32 v{dr}, v{ar_}, v{br}\nv_mul_f32 v{di}, v{ar_}, v{bi}'
    else:
        head = f'v_fma_f32 v{dr}, v{ar_}, v{br}, v{cr}\nv_fma_f32 v{di}, v{ar_}, v{bi}, v{ci}'
    return L(head + f'\nv_fma_f32 v{dr}, -v{ai}, v{bi}, v{dr}\nv_fmac_f32 v{di}, v{ai}, v{br}')


def mish(b, voff=VL16, quarters=range(4)):
    A = FACC[b & 1]
    out = []
    for q in quarters:
        rs = range(4 * q, 4 * q + 4)
        out.append(I(f'ds_read_b128 {vr(TT + 4 * q, 4)}, v{t2} offset:{T_B1 - TB + 128 * b + 16 * q}', hoist=True))
        out += [I(f'v_fmac_f32 v{TT + r}, v{A + r}, v{RL2}') for r in rs]
        out += [I(f'v_exp_f32 v{A + r}, v{TT + r}') for r in rs]
        out += [I(f'v_add_f32 v{A + r}, 1.0, v{A + r}') for r in rs]
        out += [I(f'v_fma_f32 v{A + r}, v{A + r}, v{A + r}, 1.0') for r in rs]
        out += [I(f'v_rcp_f32 v{A + r}, v{A + r}') for r in rs]
        out += [I(f'v_fmamk_f32 v{A + r}, v{A + r}, {M2LN2:#x}, v{VLN2}') for r in rs]
        out += [I(f'v_mul_f32 v{TT + r}, v{TT + r}, v{A + r}') for r in rs]
        out += [I(f'v_cvt_pk_bf16_f32 v{A + p}, v{TT + 2 * p}, v{TT + 2 * p + 1}') for p in (2 * q, 2 * q + 1)]
        if q & 1:
            fr = q >> 1
            out.append(I(f'buffer_store_dwordx4 {vr(A + 4 * fr, 4)}, v{voff}, {srd(sWS)}, s{sFST[b]} offen '
                         f'offset:{1024 * fr} sc1', tok=f'stF{b}' if fr else None))
            if b < 3:
                out += [I(f'v_accvgpr_write_b32 a{aOF + 8 * b + 4 * fr + e}, v{A + 4 * fr + e}') for e in range(4)]
    return out


def mish_pk(b, voff, halves=range(2)):
    A = FACC[b & 1]
    out = []
    for q in range(2 * len(halves)):
        out.append(I(f'ds_read_b128 {vr(TT + 4 * q, 4)}, v{t2} offset:{T_B1 - TB + 128 * b + 16 * q}', hoist=True))
    for h in halves:
        ps = range(8 * h, 8 * h + 8, 2)
        rs = range(8 * h, 8 * h + 8)
        out += [I(f'v_pk_fma_f32 {vr(TT + p, 2)}, {vr(A + p, 2)}, {vr(RL2, 2)}, {vr(TT + p, 2)} op_sel_hi:[1,0,1]') for p in ps]
        out += [I(f'v_exp_f32 v{A + r}, v{TT + r}') for r in rs]
        out += [I(f'v_pk_add_f32 {vr(A + p, 2)}, {vr(A + p, 2)}, 1.0 op_sel_hi:[1,0]') for p in ps]
        out += [I(f'v_pk_fma_f32 {vr(A + p, 2)}, {vr(A + p, 2)}, {vr(A + p, 2)}, 1.0 op_sel_hi:[1,1,0]') for p in ps]
        out += [I(f'v_rcp_f32 v{A + r}, v{A + r}') for r in rs]
        out += [I(f'v_pk_fma_f32 {vr(A + p, 2)}, {vr(A + p, 2)}, s[{sKC[0]}:{sKC[1]}], {vr(RL2, 2)} '
                  f'op_sel:[0,0,1] op_sel_hi:[1,0,1]') for p in ps]
        out += [I(f'v_pk_mul_f32 {vr(TT + p, 2)}, {vr(TT + p, 2)}, {vr(A + p, 2)}') for p in ps]
        out += [I(f'v_cvt_pk_bf16_f32 v{A + p // 2}, v{TT + p}, v{TT + p + 1}') for p in ps]
        out.append(I(f'buffer_store_dwordx4 {vr(A + 4 * h, 4)}, v{voff}, {srd(sWS)}, s{sFST[b]} offen '
                     f'offset:{1024 * h} sc1', tok=f'stF{b}' if h else None))
        if b < 3:
            out += [I(f'v_accvgpr_write_b32 a{aOF + 8 * b + 4 * h + e}, v{A + 4 * h + e}') for e in range(4)]
    return out


_weave = weave
LEV = [OPT['lev']]


def weave(*a):
    out = _weave(*a)
    return ds_first(level(out, LEV[0], OPT['vmc'])) if LEV[0] else out


P = []
if OPT['map'] == '8x4':
    ids = f"""s_and_b32 s{sKQ}, s2, 3
        s_bfe_u32 s{sJJ}, s2, 0x20003
        s_lshr_b32 s{sI}, s2, 5
        s_bfe_u32 s{sT0}, s2, 0x10002
        s_lshl_b32 s{sROT}, s{sT0}, 1
        s_lshl_b32 s{sT0}, s{sT0}, 3
        s_and_b32 s{sT1}, s{sI}, 1
        s_or_b32 s{sI}, s{sI}, s{sT0}
        s_add_u32 s{sROT}, s{sROT}, s{sT1}
        s_add_u32 s{sROT}, s{sROT}, s{sKQ}
        s_lshl_b32 s{sROT}, s{sROT}, 1
        s_and_b32 s{sT1}, s{sJJ}, {OPT['rotj']}
        s_add_u32 s{sROT}, s{sROT}, s{sT1}
        s_and_b32 s{sROT}, s{sROT}, 7"""
else:
    ids = f"""s_and_b32 s{sKQ}, s2, 1
        s_lshl_b32 s{sKQ}, s{sKQ}, 1
        s_lshr_b32 s{sT0}, s2, 7
        s_or_b32 s{sKQ}, s{sKQ}, s{sT0}
        s_bfe_u32 s{sJJ}, s2, 0x20003
        s_bfe_u32 s{sI}, s2, 0x20005
        s_bfe_u32 s{sT0}, s2, 0x20001
        s_add_u32 s{sROT}, s{sT0}, s{sKQ}
        s_lshl_b32 s{sT0}, s{sT0}, 2
        s_or_b32 s{sI}, s{sI}, s{sT0}
        s_lshl_b32 s{sROT}, s{sROT}, 1
        s_and_b32 s{sROT}, s{sROT}, 7"""
ws_load = f's_load_dwordx2 s[{sWS}:{sWS + 1}], s[0:1], 120'
more_loads = f"""s_load_dwordx8 s[{pLRE}:{pLRE + 7}], s[0:1], 8
s_load_dwordx4 s[{pLDT}:{pLDT + 3}], s[0:1], 56
s_load_dwordx2 s[{pB1}:{pB1 + 1}], s[0:1], 88
s_load_dwordx2 s[{sW1}:{sW1 + 1}], s[0:1], 80
s_load_dwordx2 s[{sCre}:{sCre + 1}], s[0:1], 40
s_load_dwordx2 s[{sCim}:{sCim + 1}], s[0:1], 48
s_load_dwordx2 s[{sW2}:{sW2 + 1}], s[0:1], 96
s_load_dwordx2 s[{sOUT}:{sOUT + 1}], s[0:1], 104
"""
SUM, SQ = [TT + 8, TT + 9], [TT + 10, TT + 11]
sizes = ((sX, 2097152), (sB, 524288), (sW1, 1835008), (sCre, 524288), (sCim, 524288), (sW2, 1835008),
         (sWS, (WS_PROF + 0x40000) if PROF else WS_SIZE), (sOUT, 4194304))
P += L(f"""
s_cmp_ge_u32 s2, 256
s_cbranch_scc1 L_end
{'s_memtime s[98:99]' if PROF else ''}
{'s_memrealtime s[90:91]' if PROF or OPT['diag'] else ''}
s_load_dwordx2 s[{sX}:{sX + 1}], s[0:1], 0
{'' if OPT['ka2'] else ws_load}
s_getpc_b64 s[{sTMP}:{sTMP + 1}]
v_lshrrev_b32 v{t0}, 6, v0
v_and_b32 v{vL}, 63, v0
s_and_b32 s{sTMP}, s{sTMP}, 0xffffff80
v_readfirstlane_b32 s{sW}, v{t0}
s_mov_b32 s{sTMP + 2}, L_code_end-{KN}
s_mov_b32 s{sTMP + 3}, 0x00020000
s_lshr_b32 s{sT0}, s2, 3
s_lshl_b32 s{sT0}, s{sT0}, 2
s_add_u32 s{sT0}, s{sT0}, s{sW}
s_lshl_b32 s{sT0}, s{sT0}, 9
v_and_b32 v{t1}, 3, v{vL}
v_lshlrev_b32 v{t1}, 7, v{t1}
buffer_load_dword v{t3}, v{t1}, {srd(sTMP)}, s{sT0} offen
{'' if OPT['ka2'] else more_loads}
v_lshrrev_b32 v{t0}, 3, v{vL}
v_lshrrev_b32 v{t1}, 4, v{vL}
v_xor_b32 v{t1}, v{t1}, v{vL}
v_and_b32 v{t1}, 7, v{t1}
v_lshlrev_b32 v{t1}, 4, v{t1}
v_lshl_add_u32 v{PG[0]}, v{t0}, 10, v{t1}
v_lshrrev_b32 v{t2}, 5, v{vL}
v_mul_u32_u24 v{t2}, {12 * 1024}, v{t2}
v_add_u32 v{XG[0]}, v{PG[0]}, v{t2}
v_xor_b32 v{XG[1]}, 64, v{XG[0]}
v_add_u32 v{XG[2]}, {6 * 1024}, v{XG[0]}
v_add_u32 v{XG[3]}, {9 * 1024}, v{XG[1]}
v_add_u32 v{XG[1]}, {3 * 1024}, v{XG[1]}
s_lshl_b32 s{sWOFF}, s{sW}, 12
{ids}
s_lshl_b32 s{sXB}, s{sI}, 17
s_lshl_b32 s{sT0}, s{sW}, 15
s_add_u32 s{sXB}, s{sXB}, s{sT0}
""" + ''.join(f's_mov_b32 s{b + 2}, {n}\ns_mov_b32 s{b + 3}, 0x00020000\n' for b, n in sizes) + f"""
s_waitcnt lgkmcnt(0)
{'v_accvgpr_write_b32 a62, s98' if PROF else ''}
{'v_accvgpr_write_b32 a63, s90' if PROF else ''}
{'s_mov_b32 s23, 0' if PROF else ''}
{'s_mov_b32 s23, s90' if OPT['diag'] else ''}
""")
P += stamp('ka') if OPT['diag'] else []
P += rx(0, 0) + (L(ws_load + '\n' + more_loads) if OPT['ka2'] else []) + rx(1, 1)
P += L(f"""
v_and_b32 v{t0}, 31, v{vL}
s_lshl_b32 s{sJ}, s{sKQ}, 2
s_or_b32 s{sJ}, s{sJ}, s{sJJ}
v_lshrrev_b32 v{t1}, 5, v{vL}
v_bfe_u32 v{t2}, v{vL}, 1, 3
v_xor_b32 v{t1}, v{t1}, v{t2}
v_lshlrev_b32 v{t1}, 4, v{t1}
v_lshl_add_u32 v{AS[0]}, v{t0}, 7, v{t1}
v_xor_b32 v{AS[1]}, 32, v{AS[0]}
v_xor_b32 v{AS[2]}, 64, v{AS[0]}
v_xor_b32 v{AS[3]}, 0x60, v{AS[0]}
v_add_u32 v{ASc[0]}, s{sWOFF}, v{AS[0]}
v_add_u32 v{ASc[1]}, s{sWOFF}, v{AS[1]}
v_add_u32 v{ASc[2]}, s{sWOFF}, v{AS[2]}
v_add_u32 v{ASc[3]}, s{sWOFF}, v{AS[3]}
s_mov_b32 s{sONES}, 0x3f803f80
v_mov_b32 v{SUM[0]}, 0
v_mov_b32 v{SUM[1]}, 0
v_mov_b32 v{SQ[0]}, 0
v_mov_b32 v{SQ[1]}, 0
s_lshl_b32 s{sT0}, s{sW}, 9
s_add_u32 s{sT0}, s{sT0}, {T_SEG}
v_lshl_add_u32 v{t0}, v{vL}, 3, s{sT0}""")
P.append(I(f'ds_write_b64 v{t0}, {vr(SUM[0], 2)}', tok='zero'))
P += L(f's_waitcnt lgkmcnt(0)\ns_load_dword s{sE2}, s[{sWS}:{sWS + 1}], {WS_EP}')
mid = L(f"""
v_and_b32 v{t0}, 31, v{vL}
s_lshl_b32 s{sT1}, s{sJ}, 6
v_lshl_add_u32 v{t1}, v{t0}, 1, s{sT1}
global_load_ushort v{LR}, v{t1}, s[{pLRE}:{pLRE + 1}]
global_load_ushort v{LI}, v{t1}, s[{pLIM}:{pLIM + 1}]
global_load_ushort v{NLI}, v{t1}, s[{pLDT}:{pLDT + 1}]
s_and_b32 s{sT3}, s{sW}, 1
s_mul_i32 s{sT2}, s{sKQ}, 7
s_lshl_b32 s{sW1A}, s{sJJ}, 1
s_add_u32 s{sPB[0]}, s{sW1A}, 1
s_cmp_eq_u32 s{sJJ}, 3
s_cselect_b32 s{sPB[0]}, 3, s{sPB[0]}
s_cselect_b32 s{sFSEL}, 64, 0
s_add_u32 s{sW1A}, s{sW1A}, s{sT2}
s_add_u32 s{sW1B}, s{sPB[0]}, s{sT2}
s_lshl_b32 s{sW1A}, s{sW1A}, 7
s_lshl_b32 s{sW1B}, s{sW1B}, 7
s_cmp_ge_u32 s{sW}, 2
s_cselect_b32 s{sT2}, s{sW1B}, s{sW1A}
s_cselect_b32 s{sT1}, s{sFSEL}, 0
s_add_u32 s{sT2}, s{sT2}, s{sT1}
s_lshl_b32 s{sT1}, s{sT3}, 6
s_xor_b32 s{sT2}, s{sT2}, s{sT1}
v_and_b32 v{t1}, 3, v{vL}
v_bfe_u32 v{t2}, v{vL}, 2, 2
v_lshl_add_u32 v{t1}, v{t2}, 3, v{t1}
v_bfe_u32 v{t2}, v{vL}, 4, 1
v_lshl_add_u32 v{t1}, v{t2}, 2, v{t1}
v_lshl_add_u32 v{t1}, v{t1}, 1, s{sT2}
global_load_ushort v{PR}, v{t1}, s[{pB1}:{pB1 + 1}]
s_cmp_eq_u32 s{sT3}, 1
s_cselect_b32 s{sB}, s{pBIM}, s{pBRE}
s_cselect_b32 s{sB + 1}, s{pBIM + 1}, s{pBRE + 1}
s_mul_i32 s{sT3}, s{sT3}, {32 * 3584}
s_add_u32 s{sW1A}, s{sW1A}, s{sT3}
s_add_u32 s{sW1B}, s{sW1B}, s{sT3}
s_lshl_b32 s{sBB}, s{sJ}, 15
s_lshr_b32 s{sT1}, s{sW}, 1
s_add_u32 s{sT1}, s{sT1}, s{sROT}
s_and_b32 s{sKC[0]}, s{sT1}, 7
s_add_u32 s{sT1}, s{sT1}, 2
s_and_b32 s{sKC[1]}, s{sT1}, 7
s_add_u32 s{sT1}, s{sT1}, 2
s_and_b32 s{sKC[2]}, s{sT1}, 7
s_add_u32 s{sT1}, s{sT1}, 2
s_and_b32 s{sKC[3]}, s{sT1}, 7
v_xor_b32 v{PG[1]}, 64, v{PG[0]}
v_add_u32 v{PG[2]}, {14 * 1024}, v{PG[0]}
v_add_u32 v{PG[3]}, {21 * 1024}, v{PG[1]}
v_add_u32 v{PG[1]}, {7 * 1024}, v{PG[1]}
v_bfe_u32 v{t0}, v{vL}, 2, 1
v_lshrrev_b32 v{t1}, 5, v{vL}
v_and_b32 v{t2}, 1, v{vL}
v_lshlrev_b32 v{t2}, 4, v{t2}
v_mov_b32 v{VNM}, 0x3f80
v_lshlrev_b32 v{t2}, v{t2}, v{VNM}
v_cmp_eq_u32 vcc, v{t0}, v{t1}
v_bfe_u32 v{t0}, v{vL}, 1, 1
v_bfe_u32 v{t1}, v{vL}, 3, 2
v_cndmask_b32 v{t2}, 0, v{t2}, vcc
v_lshl_add_u32 v{t0}, v{t1}, 1, v{t0}
""")
for q in range(0, 8, 2):
    mid += L(f"""v_cmp_eq_u32 vcc, {q}, v{t0}
        v_cmp_eq_u32 s[{sSEL[1]}:{sSEL[2]}], {q + 1}, v{t0}
        s_nop 0
        v_cndmask_b32 v{TT + q}, 0, v{t2}, vcc
        v_cndmask_b32 v{TT + q + 1}, 0, v{t2}, s[{sSEL[1]}:{sSEL[2]}]""")
mid += L(f"""
v_lshrrev_b32 v{t1}, 3, v{vL}
v_mul_u32_u24 v{t1}, 3584, v{t1}
v_bfe_u32 v{t2}, v{vL}, 4, 1
v_lshlrev_b32 v{t2}, 2, v{t2}
v_xor_b32 v{t2}, v{t2}, v{vL}
v_and_b32 v{t2}, 7, v{t2}
v_lshl_add_u32 v{QG[0]}, v{t2}, 4, v{t1}
v_add_u32 v{QG[1]}, {27648}, v{QG[0]}
v_add_u32 v{QG[2]}, {2 * 27648}, v{QG[0]}
v_add_u32 v{QG[3]}, {3 * 27648}, v{QG[0]}
""")
late = L(f"""
s_mul_i32 s{sE2}, s{sE2}, 1664525
s_add_u32 s{sE2}, s{sE2}, 1013904226
s_or_b32 s{sTAG}, s{sE2}, 1
v_bfe_u32 v{t1}, v{vL}, 2, 2
v_lshrrev_b32 v{t2}, 5, v{vL}
v_lshl_add_u32 v{t2}, v{t2}, 3, v{t1}
v_lshlrev_b32 v{FA0}, 7, v{t2}
v_lshrrev_b32 v{t1}, 1, v{t1}
v_lshl_add_u32 v{FA0}, v{t1}, 6, v{FA0}
v_bfe_u32 v{t1}, v{vL}, 4, 1
v_lshl_add_u32 v{FA0}, v{t1}, 5, v{FA0}
v_and_b32 v{t1}, 3, v{vL}
v_lshl_add_u32 v{FA0}, v{t1}, 3, v{FA0}
v_lshlrev_b32 v{VL16}, 4, v{vL}
v_mov_b32 v{VLN2}, {LN2:#x}
s_cmp_eq_u32 s{sPB[0]}, 1
s_cselect_b32 s{sPB[1]}, 3, 1
s_cmp_eq_u32 s{sPB[0]}, 5
s_cselect_b32 s{sPB[2]}, 3, 5
s_lshl_b32 s{sSEL[0]}, s{sFSEL}, 9
s_lshl_b32 s{sAS}, s{sI}, 2
s_add_u32 s{sAS}, s{sAS}, s{sW}
s_lshl_b32 s{sAS}, s{sAS}, 2
s_add_u32 s{sAS}, s{sAS}, s{sKQ}
s_lshl_b32 s{sFLG}, s{sAS}, 11
s_add_u32 s{sFLG}, s{sFLG}, {WS_FL}
s_mul_i32 s{sAS}, s{sAS}, {44 * 1024}
s_add_u32 s{sAS}, s{sAS}, {WS_A}
s_lshl_b32 s{sT2}, s{sJJ}, 13
s_add_u32 s{sFST[0]}, s{sAS}, s{sT2}
s_add_u32 s{sFST[1]}, s{sFST[0]}, 2048
s_lshl_b32 s{sT2}, s{sPB[0]}, 12
s_add_u32 s{sFST[3]}, s{sAS}, s{sT2}
s_lshl_b32 s{sT2}, s{sFSEL}, 5
s_add_u32 s{sFST[2]}, s{sFST[3]}, s{sT2}
s_add_u32 s{sFST[3]}, s{sFST[3]}, 2048
s_lshl_b32 s{sT2}, s{sJJ}, 12
s_add_u32 s{sSST}, s{sAS}, s{sT2}
s_add_u32 s{sSST}, s{sSST}, {28 * 1024}
s_xor_b32 s{sT2}, s{sW}, s{sKQ}
s_lshl_b32 s{sT2}, s{sT2}, 15
s_lshl_b32 s{sCB}, s{sJJ}, 17
s_add_u32 s{sCB}, s{sCB}, s{sT2}
s_lshl_b32 s{sT2}, s{sKQ}, 8
s_add_u32 s{sCB}, s{sCB}, s{sT2}
s_lshr_b32 s{sT2}, s{sJJ}, 1
s_lshl_b32 s{sT2}, s{sT2}, 7
s_add_u32 s{sCB}, s{sCB}, s{sT2}
s_mul_i32 s{sW2B}, s{sKQ}, {448 * 1024}
s_lshr_b32 s{sT2}, s{sW}, 1
s_lshl_b32 s{sT2}, s{sT2}, 15
s_add_u32 s{sW2B}, s{sW2B}, s{sT2}
s_lshl_b32 s{sT2}, s{sJJ}, 8
s_add_u32 s{sW2B}, s{sW2B}, s{sT2}
s_lshr_b32 s{sT2}, s{sKQ}, 1
s_xor_b32 s{sT2}, s{sT2}, s{sW}
s_and_b32 s{sT2}, s{sT2}, 1
s_lshl_b32 s{sT2}, s{sT2}, 7
s_add_u32 s{sW2B}, s{sW2B}, s{sT2}
s_lshl_b32 s{sT2}, s{sI}, 4
s_add_u32 s{sT2}, s{sT2}, s{sJJ}
s_lshl_b32 s{sT2}, s{sT2}, 2
s_add_u32 s{sT2}, s{sT2}, s{sW}""")
for b in range(4):
    late += L(f"""s_xor_b32 s{sT3}, s{sKQ}, {b}
        s_lshl_b32 s{sT3}, s{sT3}, 4
        s_add_u32 s{sT3}, s{sT3}, s{sT2}
        s_mul_i32 s{sT3}, s{sT3}, {3 * XC_BLK}
        s_add_u32 s{sXO[b]}, s{sT3}, {WS_XC + (b - 1) * XC_BLK if b else WS_XC}""")
late += L(f"""s_add_u32 s{sSEL[2]}, s{sXO[0]}, {XC_BLK}
    s_add_u32 s{sSEL[3]}, s{sXO[0]}, {2 * XC_BLK}
    s_and_b32 s{sT3}, s{sJJ}, 1
    s_sub_u32 s{sSEL[1]}, 6, s{sT3}""")
pf = []
if OPT['pf'] == 2:
    late += L(f"""
s_and_b32 s{sT1}, s{sI}, 7
s_lshl_b32 s{sT2}, s{sT1}, 1
s_add_u32 s{sT2}, s{sT2}, s{sW}
s_mul_i32 s{sT2}, s{sT2}, 28
s_mul_i32 s{sT3}, s{sKQ}, 448
s_add_u32 s{sT2}, s{sT2}, s{sT3}
s_lshl_b32 s{sT2}, s{sT2}, 2
s_add_u32 s{sT2}, s{sT2}, s{sJJ}
s_lshl_b32 s{sT3}, s{sJJ}, 3
s_add_u32 s{sT3}, s{sT3}, s{sT1}
s_lshl_b32 s{sT3}, s{sT3}, 6
s_add_u32 s{sT3}, s{sT3}, s{sKQ}
s_cmp_lt_u32 s{sW}, 2
s_cselect_b32 s{sT2}, s{sT2}, s{sT3}
s_cselect_b32 s{sT3}, 56, 32
s_cselect_b32 s{sTMP}, s{sW2}, s{sCre}
s_cselect_b32 s{sTMP + 1}, s{sW2 + 1}, s{sCre + 1}
s_cselect_b32 s{sTMP + 2}, s{sW2 + 2}, s{sCre + 2}
s_cmp_eq_u32 s{sW}, 3
s_cselect_b32 s{sTMP}, s{sCim}, s{sTMP}
s_cselect_b32 s{sTMP + 1}, s{sCim + 1}, s{sTMP + 1}""")
elif OPT['pf']:
    late += L(f"""
s_mul_i32 s{sT2}, s{sKQ}, 448
s_mul_i32 s{sT3}, s{sI}, 28
s_add_u32 s{sT2}, s{sT2}, s{sT3}
s_lshl_b32 s{sT2}, s{sT2}, 2
s_add_u32 s{sT2}, s{sT2}, s{sJJ}
s_lshl_b32 s{sT3}, s{sJJ}, 4
s_add_u32 s{sT3}, s{sT3}, s{sI}
s_lshl_b32 s{sT3}, s{sT3}, 5
s_add_u32 s{sT3}, s{sT3}, s{sKQ}
s_cmp_eq_u32 s{sW}, 0
s_cselect_b32 s{sT2}, s{sT2}, s{sT3}
s_cselect_b32 s{sT3}, 56, 16
s_cselect_b32 s{sTMP}, s{sW2}, s{sCre}
s_cselect_b32 s{sTMP + 1}, s{sW2 + 1}, s{sCre + 1}
s_cselect_b32 s{sTMP + 2}, s{sW2 + 2}, s{sCre + 2}
s_cmp_eq_u32 s{sW}, 2
s_cselect_b32 s{sTMP}, s{sCim}, s{sTMP}
s_cselect_b32 s{sTMP + 1}, s{sCim + 1}, s{sTMP + 1}
s_cmp_eq_u32 s{sW}, 3
s_cselect_b32 s{sT3}, 0, s{sT3}""")
if OPT['pf']:
    late += L(f"""s_lshl_b32 s{sT2}, s{sT2}, 8
v_lshrrev_b32 v{t0}, 1, v{vL}
v_and_b32 v{t1}, 1, v{vL}
v_lshlrev_b32 v{t1}, 7, v{t1}
v_lshl_add_u32 v{t0}, v{t0}, 10, v{t1}
v_add_u32 v{t0}, s{sT2}, v{t0}
v_mov_b32 v{t1}, {OOB:#x}
v_cmp_gt_u32 vcc, s{sT3}, v{vL}
v_cndmask_b32 v{PI}, v{t1}, v{t0}, vcc""")
    pf = L(f'buffer_load_dword v{PI}, v{PI}, {srd(sTMP)}, 0 offen')

Z = FACC[0]
later = L(f"""
v_lshlrev_b32 v{NLI}, 16, v{NLI}
v_mul_f32 v{NLI}, {LOG2E:#x}, v{NLI}
v_exp_f32 v{NLI}, v{NLI}
v_lshlrev_b32 v{Z + 2}, 16, v{LR}
v_lshlrev_b32 v{Z + 3}, 16, v{LI}
v_cvt_pk_bf16_f32 v{NLI}, v{NLI}, v{NLI}
v_lshlrev_b32 v{NLI}, 16, v{NLI}
v_mul_f32 v{Z}, v{NLI}, v{Z + 2}
v_mul_f32 v{Z + 1}, v{NLI}, v{Z + 3}
v_mul_f32 v{Z}, {LOG2E:#x}, v{Z}
v_mul_f32 v{Z + 1}, 0xbe22f983, v{Z + 1}""")
later += cexp(LR, LI, '1.0', Z, Z + 1)
later += L(f"""
v_mul_f32 v{Z + 4}, v{Z + 2}, v{Z + 2}
v_fmac_f32 v{Z + 4}, v{Z + 3}, v{Z + 3}
v_rcp_f32 v{Z + 4}, v{Z + 4}
v_add_f32 v{Z + 5}, -1.0, v{LR}
v_sub_f32 v{NLI}, 0, v{LI}
v_add_f32 v{Z + 4}, v{Z + 4}, v{Z + 4}
v_mul_f32 v{CR}, v{Z + 5}, v{Z + 2}
v_fmac_f32 v{CR}, v{NLI}, v{Z + 3}
v_mul_f32 v{NCI}, v{Z + 5}, v{Z + 3}
v_fmac_f32 v{NCI}, v{LI}, v{Z + 2}
v_mul_f32 v{CR}, v{CR}, v{Z + 4}
v_mul_f32 v{NCI}, v{NCI}, v{Z + 4}
v_sub_f32 v{NCR}, 0, v{CR}""")
later += cexp(L16R, L16I, '0x41800000', Z, Z + 1)
later += cexp(L128R, L128I, '0x43000000', Z, Z + 1)
later += L(f"""
v_lshrrev_b32 v{Z + 6}, 5, v{vL}
s_lshl_b32 s{sT2}, s{sW}, 1
v_add_u32 v{Z + 6}, s{sT2}, v{Z + 6}
v_cvt_f32_u32 v{Z + 6}, v{Z + 6}
v_mul_f32 v{Z + 7}, 0x41800000, v{Z + 6}
v_sub_f32 v{Z + 6}, 0x40e00000, v{Z + 6}
v_mul_f32 v{Z + 6}, 0x43800000, v{Z + 6}""")
later += cexp(LSR, LSI, f'v{Z + 7}', Z, Z + 1)
later += cexp(WR, WI, f'v{Z + 6}', Z, Z + 1)
later += L(f"""v_lshlrev_b32 v{PR}, 16, v{PR}
v_mul_f32 v{PR}, {LOG2E:#x}, v{PR}
v_and_b32 v{t1}, 31, v{vL}
s_lshl_b32 s{sT1}, s{sW}, 7
s_add_u32 s{sT1}, s{sT1}, {T_B1}
v_lshl_add_u32 v{t1}, v{t1}, 2, s{sT1}
ds_write_b32 v{t1}, v{PR}""")
later = mid + later + [I(f'v_accvgpr_write_b32 a{aXE + r}, 0') for r in range(17)]
cuts = [0]
for n in range(1, 7):
    c = n * len(later) // 7
    while later[c].mn.startswith(('s_cselect', 'v_cndmask', 's_nop')) or later[c - 1].mn.startswith('v_cmp'):
        c += 1
    cuts.append(c)
cuts.append(len(later))

touch_w = L(f'v_mov_b32 v{PI}, 0') + [
    I(f'buffer_load_dword a{56 + n}, v{PI}, {srd(r)}, 0 offen') for n, r in enumerate((sW1, sCre, sCim, sW2))]
touch_o = L(f"""v_min_u32 v{PR}, {WS_SIZE >> 21}, v{vL}
    v_lshlrev_b32 v{PR}, 21, v{PR}
    v_add_u32 v{PR}, 0x800, v{PR}
    buffer_load_dword a60, v{PR}, {srd(sWS)}, 0 offen
    buffer_load_dword a61, v{PR}, {srd(sOUT)}, 0 offen""")
if OPT['tlb'] in (1, 3, 4):
    P += touch_w
if OPT['tlb'] == 1:
    P += touch_o
P += rx(2, 2) + [I('s_waitcnt lgkmcnt(0)')]
for s in range(8):
    P.append(Wait(f'x{s}'))
    if s == 0:
        P += stamp('x0')
    for q in range(4):
        P.append(I(f'ds_read_b128 {vr(X + 16 * s + 4 * q, 4)}, v{ASc[q]} offset:{(s & 3) * SLOT}', lds_r=s & 3,
                   tok=f'xr{s}' if q == 3 else None))
    P += later[cuts[s]:cuts[s + 1]] if s < 7 else []
    if s >= 5:
        P += rg(s - 5)
    for r in range(16):
        if r == 4 and s < 5:
            P += rx(s + 3, (s + 3) & 3)
        P.append(I(f'v_dot2c_f32_bf16 v{SUM[r & 1]}, s{sONES}, v{X + 16 * s + r}'))
        P.append(I(f'v_dot2c_f32_bf16 v{SQ[r & 1]}, v{X + 16 * s + r}, v{X + 16 * s + r}'))
P += stamp('x7')
P += L(f"""
v_add_f32 v{SUM[0]}, v{SUM[0]}, v{SUM[1]}
v_add_f32 v{SQ[0]}, v{SQ[0]}, v{SQ[1]}
v_mov_b32 v{SUM[1]}, v{SUM[0]}
v_mov_b32 v{SQ[1]}, v{SQ[0]}
v_permlane32_swap_b32 v{SUM[1]}, v{SUM[0]}
v_permlane32_swap_b32 v{SQ[1]}, v{SQ[0]}
v_add_f32 v{SUM[0]}, v{SUM[0]}, v{SUM[1]}
v_add_f32 v{SQ[0]}, v{SQ[0]}, v{SQ[1]}
v_mul_f32 v{SUM[0]}, 0x3b000000, v{SUM[0]}
v_mul_f32 v{SQ[0]}, 0x3b000000, v{SQ[0]}
v_fma_f32 v{SQ[0]}, -v{SUM[0]}, v{SUM[0]}, v{SQ[0]}
v_max_f32 v{SQ[0]}, 0, v{SQ[0]}
v_cvt_pk_bf16_f32 v{t0}, v{SUM[0]}, v{SQ[0]}
v_lshlrev_b32 v{VNM}, 16, v{t0}
v_sub_f32 v{SIM}, 0, v{VNM}
v_sub_f32 v{SIM + 1}, 0, v{VNM}
""")
P += [I(f'v_mov_b64 {vr(SIM + 2 * q, 2)}, {vr(SIM, 2)}') for q in range(1, 8)]

DB = [FACC[0], FACC[1], SRE]
items = []
for q in range(16):
    d = vr(DB[q % 3], 16)
    for h in range(2):
        it = [mfma(d, vr(TT + 4 * h, 4), vr(X + 8 * q + 4 * h, 4), vr(SIM, 16) if h == 0 else d)]
        if q >= 2:
            o = q - 2
            it += [I(f'v_cvt_pk_bf16_f32 v{X + 8 * o + 4 * h + e}, v{DB[o % 3] + 8 * h + 2 * e}, '
                     f'v{DB[o % 3] + 8 * h + 2 * e + 1}') for e in range(4)]
        items.append(it)
fill = L(f"""
v_and_b32 v{t0}, 0xffff0000, v{t0}
v_add_f32 v{t0}, 0x3727c5ac, v{t0}
v_cvt_pk_bf16_f32 v{t0}, v{t0}, v{t0}
v_lshlrev_b32 v{t0}, 16, v{t0}
v_sqrt_f32 v{t0}, v{t0}
v_and_b32 v{t1}, 3, v{vL}
v_cvt_pk_bf16_f32 v{t0}, v{t0}, v{t0}
v_lshlrev_b32 v{t0}, 16, v{t0}
v_rcp_f32 v{VRS}, v{t0}
v_bfe_u32 v{t2}, v{vL}, 3, 2
v_lshl_add_u32 v{t1}, v{t2}, 2, v{t1}
v_bfe_u32 v{t2}, v{vL}, 2, 1
v_lshl_add_u32 v{t1}, v{t2}, 4, v{t1}
s_lshl_b32 s{sT1}, s{sW}, 8
s_add_u32 s{sT1}, s{sT1}, {T_STAT}
v_lshl_add_u32 v{t1}, v{t1}, 2, s{sT1}
v_mul_f32 v{RL2}, {LOG2E:#x}, v{VRS}
ds_write_b32 v{t1}, v{VNM}
""")
fill.append(I(f'ds_write_b32 v{t1}, v{VRS} offset:128', tok='tabw'))
LA_S, LA_F = 3, OPT['laf']


def s_addr(slot):
    return [I(f'v_add_u32 v{ASc[q]}, {slot * SLOT}, v{AS[q]}') for q in range(4)]


def s_read(s, ri):
    return I(f'ds_read_b128 {ar(aS + 8 * (s & 3) + 4 * ri, 4)}, v{ASc[s & 3]} offset:{(2 * ((s >> 2) & 1) + ri) * 4096}',
             lds_r=G_SLOT[s >> 3])


def f_addr(b, g):
    slot = G_SLOT[(4 if b < 2 else 8) + g]
    if b < 2:
        sel = [I(f'v_xor_b32 v{FAc}, 64, v{FA0}')] if b else []
        return sel + [I(f'v_add_u32 v{FAc}, {slot * SLOT}, v{FAc if b else FA0}')]
    return [I(f'v_xor_b32 v{FAc}, s{sFSEL}, v{FA0}'), I(f'v_add_u32 v{FAc}, {slot * SLOT}, v{FAc}')]


def f_read(b, s):
    out = f_addr(b, s >> 3) if s % 8 == 0 else []
    k = (32 * b + s) & 7
    for u in range(2):
        out.append(I(f'ds_read_b64_tr_b16 {ar(aF + 4 * k + 2 * u, 2)}, v{FAc} '
                     f'offset:{((s >> 1) & 3) * 4096 + (s & 1) * 2048 + u * 512}',
                     lds_r=G_SLOT[(4 if b < 2 else 8) + (s >> 3)]))
    return out


pin = pins((1, rg(3)), (9, rg(4)), (17, rg(5)),
           (27, s_addr(G_SLOT[0]) + stamp('c27') + BAR('G0', 'G1', 'tabw', 'zero') + stamp('b0')))
for k in range(LA_S):
    pin[28 + k] = [s_read(k, 0), s_read(k, 1)]
P += weave(items, fill, pin, 0, 20)
for o in (14, 15):
    P += [I(f'v_cvt_pk_bf16_f32 v{X + 8 * o + e}, v{DB[o % 3] + 2 * e}, v{DB[o % 3] + 2 * e + 1}') for e in range(8)]

S_items = []
for s in range(32):
    for ri, acc in ((0, SRE), (1, SIM)):
        it = [mfma(vr(acc, 16), vr(X + 4 * s, 4), ar(aS + 8 * (s & 3) + 4 * ri, 4), vr(acc, 16) if s else '0')]
        n = s + LA_S
        if n < 32:
            if ri == 0 and n % 8 == 0:
                it += s_addr(G_SLOT[n >> 3])
            it.append(s_read(n, ri))
        S_items.append(it)
for k in range(LA_F):
    S_items[64 - LA_F + k] += f_read(0, k)
F_items = []
for b in range(4):
    its = []
    for s in range(32):
        acc = vr(FACC[b & 1], 16)
        it = [mfma(acc, ar(aF + 4 * ((32 * b + s) & 7), 4), vr(X + 4 * s, 4), acc if s else '0')]
        n = s + LA_F
        if n < 32:
            it += f_read(b, n)
        elif b < 3:
            if b == 2 and n == 32:
                it.append(I(f's_xor_b32 s{sFSEL}, s{sFSEL}, 64'))
            it += f_read(b + 1, n - 32)
        its.append(it)
    F_items.append(its)

FLA, FLP = VNM, VRS
fill = late + pf + L(f"""
v_lshrrev_b32 v{t0}, 3, v{vL}
v_bfe_u32 v{t1}, v{vL}, 4, 1
v_lshlrev_b32 v{t1}, 2, v{t1}
v_xor_b32 v{t1}, v{t1}, v{vL}
v_and_b32 v{t1}, 7, v{t1}
v_lshlrev_b32 v{t1}, 4, v{t1}
v_lshl_add_u32 v{XG[0]}, v{t0}, 10, v{t1}
v_add_u32 v{XG[1]}, {7 * 1024}, v{XG[0]}
v_add_u32 v{XG[2]}, {14 * 1024}, v{XG[0]}
v_add_u32 v{XG[3]}, {21 * 1024}, v{XG[0]}
v_lshrrev_b32 v{t2}, 5, v{vL}
v_lshlrev_b32 v{t2}, 6, v{t2}
v_add_u32 v{t2}, {TB}, v{t2}
s_lshl_b32 s{sT2}, s{sW}, 8
v_add_u32 v{t1}, s{sT2}, v{t2}""")
fill += [I(f'ds_read_b128 {vr(FACC[1] + 4 * q, 4)}, v{t1} offset:{128 + 16 * q}') for q in range(4)]
xe = L(f"""v_and_b32 v{t0}, 31, v{vL}
    v_lshrrev_b32 v{t1}, 5, v{vL}
    v_lshlrev_b32 v{t1}, 14, v{t1}
    v_lshl_add_u32 v{t1}, v{t0}, 1, v{t1}
    s_lshl_b32 s{sT2}, s{sJJ}, 2
    s_add_u32 s{sT2}, s{sT2}, s{sKQ}
    s_lshl_b32 s{sT2}, s{sT2}, 6
    v_lshl_add_u32 v{t0}, v{t0}, 1, s{sT2}
    s_add_u32 s{sXB}, s{sXB}, s{sT2}
    global_load_short_d16_hi a{aXE + 16}, v{t0}, s[{pDSK}:{pDSK + 1}]""")
for r in range(16):
    if r % 4 == 0:
        xe.append(I(f's_add_u32 s{sT2}, s{sXB}, {1024 * r}'))
    xe.append(I(f'buffer_load_short_d16_hi a{aXE + r}, v{t1}, {srd(sX)}, s{sT2} offen offset:{1024 * (r & 3)}'))
if OPT['tlb'] in (2, 3):
    fill = touch_o + fill
if OPT['fw']:
    fill += L(f"""s_lshl_b32 s{sT2}, s{sJJ}, 9
        s_add_u32 s{sT2}, s{sT2}, s{sFLG}
        v_lshlrev_b32 v{t0}, 3, v{vL}
        v_mov_b32 v{TT}, 0
        v_mov_b32 v{TT + 1}, 0
        buffer_store_dwordx2 {vr(TT, 2)}, v{t0}, {srd(sWS)}, s{sT2} offen sc1""")
if OPT['xw'] == 1:
    fill += L(f'v_lshlrev_b32 v{t0}, 2, v{vL}')
    for b in (1, 2, 3):
        fill += L(f"""buffer_store_dwordx4 {vr(TT, 4)}, v{VL16}, {srd(sWS)}, s{sXO[b]} offen sc1
            buffer_store_dwordx4 {vr(TT, 4)}, v{VL16}, {srd(sWS)}, s{sXO[b]} offen offset:1024 sc1
            buffer_store_dword v{vL}, v{t0}, {srd(sWS)}, s{sXO[b]} offen offset:2048 sc1""")
elif OPT['xw']:
    fill += L(f"""v_lshlrev_b32 v{t0}, 7, v{vL}
        v_min_u32 v{t0}, {59 * 128}, v{t0}
        buffer_load_dword a60, v{t0}, {srd(sWS)}, s{sXO[0]} offen {('', '', 'sc1', 'sc1 nt')[OPT['xw']]}""")
if not OPT['xel']:
    fill, xe = fill + xe, []
pin = pins((2, rg(6)), (12, rg(7)), (24, BAR('G2', 'G3')), (26, rg(8)), (38, rg(9)),
           (63 - LA_F, stamp('s59') + BAR('G4', 'G5', 'G6', 'G7') + stamp('b2')))
P += weave(fine('S', S_items, 3), fill, pin, 0, 62 - LA_F)

Q = FACC[1]
V = lambda t: SRE + t if t % 2 == 0 else SIM + t - 1
AGR, AGI = VRS, t3
fill = []
for q in range(8):
    for h in range(2):
        r = 2 * q + h
        fill += L(f"""v_mul_f32 v{TT + 2 * h}, v{SRE + r}, v{CR}
            v_mul_f32 v{TT + 2 * h + 1}, v{SRE + r}, v{NCI}
            v_fmac_f32 v{TT + 2 * h}, v{SIM + r}, v{NCI}
            v_fmac_f32 v{TT + 2 * h + 1}, v{SIM + r}, v{NCR}""")
    for h in range(2):
        r = 2 * q + h
        fill += L(f"""v_mul_f32 v{V(r)}, v{TT + 2 * h}, v{Q + r}
            v_mul_f32 v{V(r) + 1}, v{TT + 2 * h + 1}, v{Q + r}""")
    for r in (2 * q, 2 * q + 1):
        if r:
            pr = V(0) if r == 1 else (t0 if r & 1 else AGR)
            pi_ = V(0) + 1 if r == 1 else (FAd if r & 1 else AGI)
            nr, ni = (AGR, AGI) if r & 1 else (t0, FAd)
            fill += L(f"""v_fma_f32 v{nr}, v{LR}, v{pr}, v{V(r)}
                v_fma_f32 v{ni}, v{LR}, v{pi_}, v{V(r) + 1}
                v_fmac_f32 v{nr}, v{NLI}, v{pi_}
                v_fmac_f32 v{ni}, v{LI}, v{pr}""")
fill += L(f"""s_lshl_b32 s{sT2}, s{sW}, 9
    s_add_u32 s{sT2}, s{sT2}, {T_SEG}
    v_lshl_add_u32 v{t1}, v{vL}, 3, s{sT2}""")
fill.append(I(f'ds_write_b64 v{t1}, {vr(AGR, 2)} offset:{7 * 256}', tok='segw'))
pin = pins((1, rg(10)), (14, rg(11)), (31, BAR('segw')))
P += weave(fine('F0', F_items[0], 3), fill, pin, 2, 30)
P += stamp('F0')

E = ASc[0]
R0, R1, T0_, T1_ = QG[0], TT + 12, ASc[0], ASc[2]
m0 = mish(0)
q0 = len(m0) // 4 - 4
fill = [I(f'ds_read2_b64 {vr(R0, 4)}, v{t1} offset0:0 offset1:32'),
        I(f'ds_read2_b64 {vr(R1, 4)}, v{t1} offset0:64 offset1:96')] + m0[:q0]
fill += cmul_add(PR, PI, L16R, L16I, R0, R0 + 1, R0 + 2, R0 + 3)
fill.append(I(f'ds_read2_b64 {vr(R0, 4)}, v{t1} offset0:128 offset1:160'))
fill += cmul_add(T0_, T0_ + 1, L16R, L16I, PR, PI, R1, R1 + 1)
fill += cmul_add(PR, PI, L16R, L16I, T0_, T0_ + 1, R1 + 2, R1 + 3)
fill.append(I(f'ds_read_b64 {vr(R1, 2)}, v{t1} offset:{6 * 256}'))
fill += m0[q0:2 * q0]
fill += cmul_add(T0_, T0_ + 1, L16R, L16I, PR, PI, R0, R0 + 1)
fill += cmul_add(T1_, T1_ + 1, L16R, L16I, T0_, T0_ + 1, R0 + 2, R0 + 3)
fill += cmul_add(PR, PI, L16R, L16I, T1_, T1_ + 1, R1, R1 + 1)
fill += cmul_add(E, E + 2, L16R, L16I, PR, PI, AGR, AGI)
fill += L(f"""v_mov_b32 v{E + 1}, s{sTAG}
    v_mov_b32 v{E + 3}, s{sTAG}
    s_lshl_b32 s{sT2}, s{sJ}, 4
    s_add_u32 s{sT2}, s{sT2}, s{sI}
    s_lshl_b32 s{sT2}, s{sT2}, 9
    s_add_u32 s{sT2}, s{sT2}, {WS_AG - 512}
    s_cmp_eq_u32 s{sW}, 3
    s_cselect_b32 s{sT2}, s{sT2}, {OOB:#x}
    v_mov_b32 v{t0}, {OOB:#x}
    v_cmp_gt_u32 vcc, 32, v{vL}
    v_add_u32 v{t1}, s{sT2}, v{VL16}
    v_cndmask_b32 v{t1}, v{t1}, v{t0}, vcc
    buffer_store_dwordx4 {vr(E, 4)}, v{t1}, {srd(sWS)}, 0 offen sc1""")
fill += m0[2 * q0:]
pin = pins((4, rw('WA0')), (31 - LA_F, BAR('G8', 'G9', 'G10', 'G11')))
P += weave(fine('F0', F_items[1], 3), fill, pin, 1, 31)
P += stamp('F1')

LBA = [CR, NCI]
LBE = [NCR, L16R]
LBD = [ASc[0], QG[0]]
FLV = L16I
lb_loads = '\n'.join(f'buffer_load_dwordx4 {vr(LBD[e], 4)}, v{LBA[e]}, {srd(sWS)}, 0 offen sc1' for e in range(2))
lb_setup = L(f"""v_lshrrev_b32 v{t0}, 5, v{vL}
    s_lshl_b32 s{sT2}, s{sW}, 2
    s_add_u32 s{sT2}, s{sT2}, s{sI}
    s_sub_u32 s{sT2}, s{sT2}, 16
    v_lshl_add_u32 v{t0}, v{t0}, 1, s{sT2}
    s_lshl_b32 s{sT2}, s{sJ}, 13
    s_add_u32 s{sT2}, s{sT2}, {WS_AG}
    v_and_b32 v{t1}, 31, v{vL}
    v_lshl_add_u32 v{t1}, v{t1}, 4, s{sT2}
    v_lshl_add_u32 v{LBA[0]}, v{t0}, 9, v{t1}
    v_add_u32 v{LBA[1]}, 512, v{LBA[0]}
    v_mov_b32 v{t1}, {OOB:#x}
    v_mov_b32 v{FLV}, s{sTAG}
    v_cmp_gt_i32 vcc, 0, v{t0}
    v_cndmask_b32 v{LBA[0]}, v{LBA[0]}, v{t1}, vcc
    v_cndmask_b32 v{LBE[0]}, v{FLV}, 0, vcc
    v_cmp_gt_i32 vcc, -1, v{t0}
    v_cndmask_b32 v{LBA[1]}, v{LBA[1]}, v{t1}, vcc
    v_cndmask_b32 v{LBE[1]}, v{FLV}, 0, vcc""")
lb_setup += L(f"""s_lshl_b32 s{sT2}, s{sJJ}, 9
    s_add_u32 s{sT2}, s{sT2}, s{sFLG}
    v_and_b32 v{FLA}, 31, v{vL}
    v_lshl_add_u32 v{FLA}, v{FLA}, 2, s{sT2}
    v_and_b32 v{t0}, 3, v{vL}
    v_max_u32 v{t0}, 1, v{t0}
    v_xor_b32 v{t0}, s{sJJ}, v{t0}
    v_lshl_add_u32 v{FLP}, v{t0}, 9, s{sFLG}""")
def flag_store(stage, toks):
    out = [Wait(*toks), I(f'buffer_store_dword v{FLV}, v{FLA}, {srd(sWS)}, 0 offen offset:{128 * stage} sc1')]
    if OPT['ppf']:
        so = (sFST[0], sSST, sFST[2])[stage]
        vpf = L128R if stage else t3
        out = [I(f'v_lshlrev_b32 v{vpf}, {6 if stage < 2 else "s%d" % sSEL[1]}, v{vL}')] + out
        out.append(I(f'buffer_load_dword a{60 + (stage & 1)}, v{vpf}, {srd(sWS)}, s{so} offen sc1'))
    return out


def flag_load(stage):
    return f'buffer_load_dword v{t3}, v{FLP}, {srd(sWS)}, 0 offen offset:{128 * stage} sc1'


flag_check = f'v_cmp_ne_u32 vcc, s{sTAG}, v{t3}'
lb_check = f"""v_bitop3_b32 v{t0}, v{LBD[0] + 1}, v{LBD[0] + 3}, v{LBE[0]} bitop3:0x7e
    v_bitop3_b32 v{t1}, v{LBD[1] + 1}, v{LBD[1] + 3}, v{LBE[1]} bitop3:0x7e
    v_or_b32 v{t0}, v{t0}, v{t1}
    v_cmp_ne_u32 vcc, 0, v{t0}"""
lb_part = stamp('lb0') + poll('lb', lb_loads, lb_check) + stamp('lb1')
lb_part += cmul_add(LBD[0] + 1, LBD[0] + 3, L128R, L128I, LBD[0], LBD[0] + 2, LBD[1], LBD[1] + 2)
lb_part += cmul_add(LBD[1], LBD[1] + 1, WR, WI, LBD[0] + 1, LBD[0] + 3)
lb_part += L(f"""s_lshl_b32 s{sT2}, s{sW}, 9
    s_add_u32 s{sT2}, s{sT2}, {T_LB}
    v_lshl_add_u32 v{t1}, v{vL}, 3, s{sT2}""")
lb_part.append(I(f'ds_write_b64 v{t1}, {vr(LBD[1], 2)}', tok='lbw'))
HW, HR, HB = ASc[0], ASc[1], FACC[1]
HW2, HR2 = WR, WI
tail_addr = L(f"""v_and_b32 v{HW}, 31, v{vL}
    v_lshlrev_b32 v{ASc[3]}, 3, v{HW}
    v_add_u32 v{ASc[3]}, {T_LB}, v{ASc[3]}
    v_lshrrev_b32 v{t0}, 5, v{vL}
    s_lshl_b32 s{sT2}, s{sW}, 11
    s_add_u32 s{sT2}, s{sT2}, {T_H}
    v_lshl_add_u32 v{HW}, v{HW}, 6, s{sT2}
    v_bfe_u32 v{HR}, v{vL}, 1, 2
    v_lshlrev_b32 v{HW2}, 1, v{t0}
    v_xor_b32 v{HR}, v{HR}, v{HW2}
    v_lshl_add_u32 v{HW}, v{HR}, 4, v{HW}
    v_xor_b32 v{HW2}, 16, v{HW}
    v_bfe_u32 v{HR}, v{vL}, 2, 2
    v_lshl_add_u32 v{HR}, v{t0}, 3, v{HR}
    v_lshl_add_u32 v{HR}, v{HR}, 6, s{sT2}
    v_and_b32 v{t0}, 1, v{vL}
    v_lshl_add_u32 v{HR}, v{t0}, 5, v{HR}
    v_lshrrev_b32 v{t0}, 1, v{vL}
    v_xor_b32 v{t0}, v{t0}, v{vL}
    v_and_b32 v{t0}, 8, v{t0}
    v_lshl_add_u32 v{HR}, v{t0}, 1, v{HR}
    v_bfe_u32 v{t0}, v{vL}, 1, 1
    v_lshl_add_u32 v{HR}, v{t0}, 3, v{HR}
    v_xor_b32 v{HR2}, 32, v{HR}
    s_bitcmp1_b32 s{sJJ}, 0
    s_cselect_b32 s{sT2}, {OOB:#x}, 0
    v_add_u32 v{ASc[2]}, s{sT2}, v{VL16}
    s_mov_b32 s{sKC[0]}, {M2LN2:#x}""")
lb_reads = [I(f'ds_read2_b64 {vr(HB + 4 * q, 4)}, v{ASc[3]} offset0:{64 * q} offset1:{64 * q + 32}') for q in range(4)]
scan = [I(f'v_pk_add_f32 {vr(HB + a, 2)}, {vr(HB + a, 2)}, {vr(HB + b_, 2)}')
        for a, b_ in ((0, 2), (4, 6), (8, 10), (12, 14), (0, 4), (8, 12), (0, 8))]
scan += cmul_add(L128R, L128I, LSR, LSI, HB, HB + 1, PR, PI)
for r in range(16):
    prev = vr(L128R if r == 0 else V(r - 1), 2)
    scan += L(f"""v_pk_fma_f32 {vr(V(r), 2)}, {prev}, {vr(LR, 2)}, {vr(V(r), 2)} op_sel_hi:[1,0,1]
        v_pk_fma_f32 {vr(V(r), 2)}, {prev}, {vr(NLI, 2)}, {vr(V(r), 2)} op_sel:[1,0,0] op_sel_hi:[0,1,1]""")
    if r & 1:
        scan += L(f"""v_cvt_pk_bf16_f32 v{HB + (r >> 1)}, v{V(r - 1)}, v{V(r)}
            v_cvt_pk_bf16_f32 v{HB + 8 + (r >> 1)}, v{V(r - 1) + 1}, v{V(r) + 1}""")
for ri in range(2):
    scan += [I(f'ds_write_b128 v{(HW, HW2)[h]}, {vr(HB + 8 * ri + 4 * h, 4)}') for h in range(2)]
    for fr in range(2):
        for u in range(2):
            scan.append(I(f'ds_read_b64_tr_b16 {ar(aOS + 8 * ri + 4 * fr + 2 * u, 2)}, v{(HR, HR2)[u]} offset:{1024 * fr + 256 * u}'))
m1 = mish(1)
per = sum(i.slots() for i in lb_setup + m1 + lb_part + tail_addr) / 27
c1 = next(n for n in range(len(m1)) if sum(i.slots() for i in lb_setup + m1[:n]) >= per * (OPT['lbl'] - 2))
fill = lb_setup + m1[:c1] + L(lb_loads) + m1[c1:] + lb_part + tail_addr
pin = pins((0, rw('CR0')), (8, rw('CI0')), (18, rw('WA1')), (29, BAR('lbw') + lb_reads))
P += weave(fine('F2', F_items[2], 2), fill, pin, 2, 28)
P += stamp('F2')
m2 = mish_pk(2, VL16, range(1))
burst = m2[:2] + merge(scan, m2[2:-5])
if OPT['fas'] < 0:
    burst = burst[:OPT['fas']] + flag_store(0, ['stF0', 'stF1']) + burst[OPT['fas']:]
if OPT['fine'] == 'T':
    for n in range(len(burst) - 12, 0, -12):
        burst = burst[:n] + stamp(f'g{n}') + burst[n:]
P += burst
for q in range(4):
    F_items[3][1 + q].append(I(f'buffer_store_dwordx4 {ar(aOS + 4 * q, 4)}, v{VL16}, {srd(sWS)}, s{sSST} offen '
                               f'offset:{1024 * q} sc1', tok='stH' if q == 3 else None))
P += stamp('scan')


FP0, FPc = [CR, NCI], [QG[2], QG[3]]
PA = OPT['pa']
p3_setup = L(f"""v_bfe_u32 v{t1}, v{vL}, 2, 2
    v_lshrrev_b32 v{t0}, 5, v{vL}
    v_lshl_add_u32 v{t0}, v{t0}, 2, v{t1}
    v_lshlrev_b32 v{FP0[0]}, 7, v{t0}
    v_lshrrev_b32 v{t1}, 1, v{t1}
    s_and_b32 s{sT2}, s{sKQ}, 1
    v_xor_b32 v{t1}, s{sT2}, v{t1}
    v_lshl_add_u32 v{FP0[0]}, v{t1}, 6, v{FP0[0]}
    v_bfe_u32 v{t1}, v{vL}, 4, 1
    v_lshl_add_u32 v{FP0[0]}, v{t1}, 5, v{FP0[0]}
    v_and_b32 v{t1}, 3, v{vL}
    v_lshl_add_u32 v{FP0[0]}, v{t1}, 3, v{FP0[0]}
    v_xor_b32 v{FP0[1]}, 64, v{FP0[0]}
    s_and_b32 s{sT2}, s{sJJ}, 1
    s_lshl_b32 s{sT2}, s{sT2}, 6""") + [I(f'v_xor_b32 v{AS[q]}, s{sT2}, v{AS[q]}') for q in range(4)]
fill = m2[-5:] + mish(2, VL16, (2, 3)) + p3_setup

steps = ([('WA0', x, 'own') for x in range(4)]
         + [(n, x, 'own') for n in ('CR0', 'CI0') for x in range(2)]
         + [(f'WA{e}', x, 'A') for e in (1, 2, 3) for x in range(4)]
         + [(n, x, 'H') for n in ('CR0', 'CI0') for x in (2, 3)]
         + [(n, x, 'H') for n in ('CR1', 'CI1') for x in range(4)]
         + [('WB0', x, 'own') for x in range(4)]
         + [(f'WB{e}', x, 'B') for e in (1, 2) for x in range(4)])
deferred = [k for k, st in enumerate(steps) if st[2] != 'own']
A_REGS = ([192 + 4 * n for n in range(16)] + [SRE + 4 * n for n in range(8)]
          + [FACC[0] + 4 * n for n in range(4)] + [TT + 4 * n for n in range(4)])
ACC = [128, 144, 160, 176]
cur_addr = {}


def a_frag(k):
    name, x, src = steps[k]
    if src != 'own':
        return vr(A_REGS[deferred.index(k)], 4)
    if name == 'WA0':
        return ar(aOF + 4 * x, 4)
    if name == 'WB0':
        return ar(aOF + 16 + 4 * x, 4) if x < 2 else vr(FACC[1] + 4 * (x - 2), 4)
    return ar(aOS + 8 * (name[1] == 'I') + 4 * x, 4)


def a_load(k):
    name, x, src = steps[k]
    e = int(name[2])
    if name[0] == 'C':
        code = f's_xor_b32 s{sT1}, s{sJJ}, {2 * e + (x >> 1)}\ns_lshl_b32 s{sT1}, s{sT1}, 12\n' \
               f's_add_u32 s{sT1}, s{sT1}, {28 * 1024}\ns_add_u32 s{sT1}, s{sT1}, s{sAS}'
        off = 2048 * (name[1] == 'I') + 1024 * (x & 1)
        fresh = x & 1 == 0
    else:
        if name[1] == 'A':
            code = f's_xor_b32 s{sT1}, s{sJJ}, {e}\ns_lshl_b32 s{sT1}, s{sT1}, 13\ns_add_u32 s{sT1}, s{sT1}, s{sAS}'
        else:
            code = f's_lshl_b32 s{sT1}, s{sPB[e]}, 12\ns_add_u32 s{sT1}, s{sT1}, s{sAS}'
        off = 1024 * x
        fresh = x == 0
    return (L(code) if fresh else []) + \
        [I(f'buffer_load_dwordx4 {a_frag(k)}, v{VL16}, {srd(sWS)}, s{sT1} offen offset:{off} sc1')]


pin = pins((PA, rw('WA2')), (PA + 8, BAR()), (PA + 9, rw('WA3')), (PA + 17, BAR()), (PA + 18, rw('CR1')),
           (OPT['fal'], L(flag_load(0))), (30, BAR('WA0', 'CR0', 'CI0', 'WA1')))
if OPT['fhs'] >= 0:
    pin[OPT['fhs']] = flag_store(1, ['stH'])
if OPT['fas'] >= 0:
    pin[OPT['fas']] = flag_store(0, ['stF0', 'stF1'])
P += weave(fine('F3', F_items[3], 2), fill, pin, 1, 29)
P += stamp('F3')

m3 = mish_pk(3, ASc[2])
st0 = next(n for n, i_ in enumerate(m3) if i_.kind == 'vm')
early = sum((a_load(k) for k in range(8, 8 + OPT['nea'])), [])
fac = st0 - OPT['fac']
P += m3[:fac] + (flag_store(1, ['stH']) if OPT['fhs'] < 0 else [])
P += stamp('fa0') + poll('fa', flag_load(0), flag_check) + stamp('fa1')
tl = merge(m3[fac:st0], early) + (L(flag_load(1)) if OPT['fhl'] < 0 else []) + m3[st0:]
if OPT['fine'] == 'T':
    for n in range(len(tl) - 12, 0, -12):
        tl = tl[:n] + stamp(f'gt{n}') + tl[n:]
P += tl
P += stamp('tail')

XE, ME = 192, LSR
ep_setup = L(f"""v_lshrrev_b32 v{t1}, 5, v{vL}
    s_lshl_b32 s{sT2}, s{sW}, 8
    s_add_u32 s{sT2}, s{sT2}, {T_STAT}
    v_lshl_add_u32 v{VLN2}, v{t1}, 6, s{sT2}
    v_lshlrev_b32 v{FA0}, 15, v{t1}
    v_and_b32 v{t0}, 31, v{vL}
    v_lshl_add_u32 v{FA0}, v{t0}, 2, v{FA0}""")
VL4 = ASc[0]
ep_setup = L(f'v_lshlrev_b32 v{VL4}, 2, v{vL}') + ep_setup
base_calc = [I(f'v_accvgpr_read_b32 v{RL2}, a{aXE + 16}')]
for qt in range(4):
    base_calc += [I(f'ds_read_b128 {vr(ME, 4)}, v{VLN2} offset:{16 * qt}', hoist=True),
                  I(f'ds_read_b128 {vr(ME + 4, 4)}, v{VLN2} offset:{128 + 16 * qt}', hoist=True)]
    rs = range(4)
    base_calc += [I(f'v_accvgpr_read_b32 v{XE + 4 * qt + r}, a{aXE + 4 * qt + r}') for r in rs]
    base_calc += [I(f'v_sub_f32 v{ME + r}, v{XE + 4 * qt + r}, v{ME + r}') for r in rs]
    base_calc += [I(f'v_mul_f32 v{ME + r}, v{ME + r}, v{ME + 4 + r}') for r in rs]
    base_calc += [I(f'v_fmac_f32 v{XE + 4 * qt + r}, v{ME + r}, v{RL2}') for r in rs]

def checksum(dst, src, last):
    return [f'v_bitop3_b32 v{dst}, v{src}, v{src + 1}, {last} bitop3:0x96'] + \
           [f'v_bitop3_b32 v{dst}, v{src + e}, v{src + e + 1}, v{dst} bitop3:0x96' for e in (2, 4, 6)]


def send(b):
    A = ACC[b]
    out = []
    for q in range(2):
        out += [I(f'v_cvt_pk_bf16_f32 v{A + e}, v{A + 2 * e}, v{A + 2 * e + 1}') for e in range(4 * q, 4 * q + 4)]
        out.append(I(f'buffer_store_dwordx4 {vr(A + 4 * q, 4)}, v{VL16}, {srd(sWS)}, s{sXO[b]} offen '
                     f'offset:{1024 * q} sc1'))
    out += [I(c) for c in checksum(A + 8, A, f's{sTAG}')]
    out.append(I(f'buffer_store_dword v{A + 8}, v{VL4}, {srd(sWS)}, s{sXO[b]} offen offset:2048 sc1'))
    return out


def w_read1(k, b, dst):
    name, x, src = steps[k]
    slot = W_SLOT[name]
    if name[0] == 'C':
        return [I(f'v_add_u32 v{FAc}, {slot * SLOT}, v{AS[x]}'),
                I(f'ds_read_b128 {ar(dst, 4)}, v{FAc} offset:{4096 * b}', lds_r=slot)]
    key = FPc[b & 1]
    out = []
    if cur_addr.get(key) != slot:
        cur_addr[key] = slot
        out.append(I(f'v_add_u32 v{key}, {slot * SLOT}, v{FP0[b & 1]}'))
    return out + [I(f'ds_read_b64_tr_b16 {ar(dst + 2 * u, 2)}, v{key} '
                    f'offset:{8192 * (x >> 1) + 4096 * (b >> 1) + 2048 * (x & 1) + 1024 * u}', lds_r=slot) for u in range(2)]


RX = {1: ACC[1], 2: ACC[2], 3: ACC[3]}


def recv(b):
    so = sXO[0] if b == 1 else sSEL[b]
    rl = [f'buffer_load_dwordx4 {vr(RX[b] + 4 * q, 4)}, v{VL16}, {srd(sWS)}, s{so} offen offset:{1024 * q} sc1' for q in range(2)]
    rl.append(f'buffer_load_dword v{RX[b] + 8}, v{VL4}, {srd(sWS)}, s{so} offen offset:2048 sc1')
    return '\n'.join(rl)


pre = L(f"""s_lshl_b32 s{sXB}, s{sXB}, 1
    s_mov_b32 s{sKC[0]}, 0x00003f80
    s_mov_b32 s{sKC[1]}, 0x3f800000""")
E3 = OPT['e3']
seq = [(k, b) for k in range(8) for b in (1, 2, 3, 0)] + [(k, b) for k in range(8, E3) for b in (1, 2, 3)]
seq += [(k, b) for k in range(E3, 36) for b in (1, 2)]
seq += [(k, b) for b in (1, 2) for k in range(36, 44)]
seq += [(k, 3) for k in range(E3, 44)] + [(k, 0) for k in range(8, 44)]
at = {kb: n for n, kb in enumerate(seq)}
done_at = {b: at[43, b] for b in (1, 2, 3)}
KEEP = {(k, 0): aWO + 4 * (k - 8) for k in range(8, 12)}
reads = sorted((kb for kb in seq), key=lambda kb: at[kb[0], 3] + 0.5 if kb in KEEP else at[kb])
RING = 12
where, nring = {}, 0
for kb in reads:
    if kb in KEEP:
        where[kb] = KEEP[kb]
    else:
        where[kb] = aP + 4 * (nring % RING)
        nring += 1
LA_J = OPT['laj']
items = []
rd = 0
seen = set()
for n, (k, b) in enumerate(seq):
    pre_rd = []
    while rd < len(reads) and (at[reads[rd][0], 3] if reads[rd] in KEEP else at[reads[rd]]) <= n + LA_J:
        pre_rd += w_read1(*reads[rd], where[reads[rd]])
        rd += 1
    m = mfma(vr(ACC[b], 16), a_frag(k), ar(where[k, b], 4), vr(ACC[b], 16) if b in seen else '0')
    seen.add(b)
    if n == 0:
        P = P[:-8 - (PROF in (1, 2))] + pre_rd + P[-8 - (PROF in (1, 2)):]
        pre_rd = []
    items.append([m] + pre_rd)
pin = {n: [] for n in range(len(items))}
pin[18] += BAR('WA2')
pin[at[16, 1] - LA_J - 1] += [Wait('WA3', 'CR1', 'CI1'), I('s_barrier')]
pin[at[32, 1] - LA_J - 1] += [Wait('WB0', 'WB1', 'WB2'), I('s_barrier')]
if OPT['fhl'] >= 0:
    pin[OPT['fhl']] += L(flag_load(1))
pin[OPT['fhc']] += stamp('fh0') + poll('fh', flag_load(1), flag_check) + stamp('fh1')
pin[OPT['fls']] += flag_store(2, ['stF3', 'stF2'])
pin[OPT['fll']] += L(flag_load(2))
pin[OPT['flc']] += stamp('fl0') + poll('fl', flag_load(2), flag_check) + stamp('fl1')
pin[at[36, 1] - 1] += stamp('k36')
queue = [(0, a_load(k)) for k in range(8 + OPT['nea'], 16)] + [(0, rw('CI1'))]
queue += [(0, a_load(k)) for k in range(max(16, 8 + OPT['nea']), 20)]
if OPT['qord'] == 0:
    queue += [(19, rw('WB0'))] + [(OPT['fhc'], a_load(k)) for k in range(20, 32)] + [(19, rw('WB1'))]
elif OPT['qord'] == 1:
    queue += [(19, rw('WB0')), (19, rw('WB1'))] + [(OPT['fhc'], a_load(k)) for k in range(20, 32)]
else:
    queue += [(OPT['fhc'], a_load(k)) for k in range(20, 24)] + [(19, rw('WB0')), (19, rw('WB1'))]
    queue += [(0, a_load(k)) for k in range(24, 32)]
queue += [(at[16, 1] - LA_J, rw('WB2'))]
queue += [(OPT['flc'], a_load(k)) for k in range(36, 44)]
n = 0.0
for first_gap, ins in queue:
    n = max(n, first_gap)
    pend = []
    for i_ in ins:
        pend.append(i_)
        if i_.kind == 'vm':
            pin[int(n)] += pend
            pend = []
            n += OPT['pace'] / 10
for b in (1, 2, 3):
    sd = send(b)
    for q in range(4):
        pin[done_at[b] + 3 + q] += sd[q * len(sd) // 4:(q + 1) * len(sd) // 4]
    pin[done_at[min(b + 1, 3) if b < 3 else 3] + OPT[f'r{b}'] if b != 2 else done_at[2] + OPT['r2']] += L(recv(b))
pin[done_at[2] + 6] += stamp('s12')
pin[done_at[3] + 6] += stamp('sent')
items = fine('P3', items[:112], 4) + items[112:]
LEV[0] = OPT['lev3']
sub = lambda lo, hi: {n - lo: pin[n] for n in range(lo, hi)}
c1, c2 = at[32, 1], at[11, 0] + 1
P += weave(items[:c1], [], sub(0, c1))
cx = done_at[2] + 8
P += weave(items[c1:cx], ep_setup, sub(c1, cx), 0, 4)
P += weave(items[cx:c2], xe + pre, sub(cx, c2), 0, 18)
P += weave(items[c2:], base_calc, sub(c2, len(items)), 3, 26)
P += stamp('own')
A0 = ACC[0]
for q in range(8):
    P.append(I(f'v_pk_add_f32 {vr(A0 + 2 * q, 2)}, {vr(A0 + 2 * q, 2)}, {vr(XE + 2 * q, 2)}'))
for b in (1, 2, 3):
    chk = checksum(RX[b] + 9, RX[b], f'v{RX[b] + 8}') + [f'v_cmp_ne_u32 vcc, s{sTAG}, v{RX[b] + 9}']
    P += poll(f'rx{b}', recv(b), '\n'.join(chk))
P += stamp('rx')
for q in range(8):
    for b in (1, 2, 3):
        P += [I(f'v_dot2c_f32_bf16 v{A0 + 2 * q + h}, s{sKC[h]}, v{RX[b] + q}') for h in range(2)]
    if q:
        P += sts
    sts = [I(f's_add_u32 s{sBB}, s{sXB}, {4096 * q}')]
    sts += [I(f'buffer_store_dword v{A0 + 2 * q + h}, v{FA0}, {srd(sOUT)}, s{sBB} offen offset:{2048 * h} '
              f'{OPT["out_flags"]}') for h in range(2)]
P += L(f"""s_lshl_b32 s{sT2}, s{sJ}, 2
    s_add_u32 s{sT2}, s{sT2}, s{sW}
    s_xor_b32 s{sT1}, s{sI}, 15
    s_or_b32 s{sT2}, s{sT2}, s{sT1}
    s_cmp_eq_u32 s{sT2}, 0
    s_cselect_b32 s{sT2}, {WS_EP}, {OOB:#x}
    v_mov_b32 v{t0}, s{sE2}
    v_mov_b32 v{t1}, s{sT2}""") + sts + L(f'buffer_store_dword v{t0}, v{t1}, {srd(sWS)}, 0 offen')
if OPT['diag']:
    P += stamp('end') + L("""s_memrealtime s[6:7]
        s_waitcnt lgkmcnt(0)
        s_sub_u32 s4, s4, s23
        s_lshl_b32 s4, s4, 2
        s_min_u32 s4, s4, 20000
        L_diag:
        s_memrealtime s[0:1]
        s_waitcnt lgkmcnt(0)
        s_sub_u32 s0, s0, s6
        s_cmp_lt_u32 s0, s4
        s_cbranch_scc1 L_diag""")
if PROF:
    P += stamp('end')
    P += L(f"""s_waitcnt vmcnt(0)
        s_memrealtime s[0:1]
        s_lshl_b32 s{sT2}, s2, 2
        s_add_u32 s{sT2}, s{sT2}, s{sW}
        s_lshl_b32 s{sT2}, s{sT2}, 7
        s_add_u32 s{sT2}, s{sT2}, {WS_PROF}
        v_mov_b32 v{t1}, s{sT2}
        s_waitcnt lgkmcnt(0)
        v_mov_b32 v{t0}, s0
        buffer_store_dword v{t0}, v{t1}, {srd(sWS)}, 0 offen offset:124
        v_mov_b32 v{t2}, s23
        buffer_store_dword v{t2}, v{t1}, {srd(sWS)}, 0 offen offset:112
        buffer_store_dword a62, v{t1}, {srd(sWS)}, 0 offen offset:116
        buffer_store_dword a63, v{t1}, {srd(sWS)}, 0 offen offset:120""")
    P += stamp('DUMP')
P += [I('L_end:'), I('s_endpgm')]

P = resolve_stamps(P)
if OPT['split']:
    P = split_ds_pairs(P)
if OPT['hoist']:
    P = hoist_reads(P, OPT['hoist'])
body = pad_hazards(insert_waits(P, OPT['age']))
tail = []
for name, loads, check in retry_blocks:
    blk = [I(f'L_retry_{name}:'), I(f's_mov_b32 s3, {OPT["spin"]}'), I(f'L_spin_{name}:')]
    if PROF:
        blk.append(I(f's_add_u32 s23, s23, {1 << (4 * retry_blocks.index((name, loads, check)))}'))
    blk += L(loads) + [I('s_waitcnt vmcnt(0)')] + L(check)
    blk += L(f'''s_cbranch_vccz L_back_{name}
        s_sub_u32 s3, s3, 1
        s_cmp_lg_u32 s3, 0
        s_cbranch_scc1 L_spin_{name}
        s_branch L_back_{name}''')
    tail += pad_hazards(blk)

hdr = open(os.path.join(os.path.dirname(os.path.abspath(__file__)), 'header.txt')).read()
text = hdr + f'''; @launch grid=(256,1,1) block=(256,1,1) lds=163840
.amdgcn_target "amdgcn-amd-amdhsa--gfx950"
.text
.globl {KN}
.p2align 8
.type {KN},@function
{KN}:
{render(body)}
{render(tail)}
L_code_end:
    s_endpgm
.section .rodata,"a"
.p2align 6
.amdhsa_kernel {KN}
  .amdhsa_next_free_vgpr 512
  .amdhsa_next_free_sgpr 102
  .amdhsa_accum_offset 256
  .amdhsa_group_segment_fixed_size 0
  .amdhsa_kernarg_size 128
  .amdhsa_user_sgpr_count 2
  .amdhsa_user_sgpr_kernarg_segment_ptr 1
  .amdhsa_system_sgpr_workgroup_id_x 1
.end_amdhsa_kernel
'''
open(sys.argv[1], 'w').write(text)
if PROF:
    open(sys.argv[1][:-2] + '.stamps', 'w').write(' '.join(stamp_names))
from collections import Counter
cnt = Counter(i.kind for i in body)
print(dict(cnt), 'nops', sum(1 for i in body if i.mn == 's_nop'))
```

```python
import sys, os
sys.path.insert(0, os.path.dirname(os.path.abspath(__file__)))
from asmlib import I, Wait, insert_waits, pad_hazards, render, weave, split_ds_pairs, hoist_reads, merge, level, ds_first

KN = 'parallel_sum__ssm_conv_s5__dense_activation_mish__prompt_kernel'
OPT = dict(prof=0, spin=20000, out_flags='', map='8x4', pf=1, age=24, laf=5, r1=26, r2=32, r3=29, e3=12, fls=28, fll=50, flc=68, ka2=1, nstep=0, split=0, diag='', dsp=2, xel=0, tlb=0, pk_in=0, rotj=0, laj=7, pace=13, lev=0, lev3=0, pa=2, fw=1, xw=0, vmc=2, fine='', fas=-30, fal=12, fac=24, nea=8, fhs=-1, fhl=12, fhc=28, qord=0, lbl=13, lbc=24, ppf=0, hoist=32)
for a in sys.argv[2:]:
    k, v = a.split('=')
    OPT[k] = int(v) if v.lstrip('-').isdigit() else v
PROF = OPT['prof']

WS_EP, WS_AG, WS_A = 0, 0x10000, 0x40000
WS_XC = WS_A + 64 * 176 * 1024
XC_BLK = 2560
WS_FL = WS_XC + 1024 * 3 * XC_BLK
WS_SIZE = WS_FL + 1024 * 512
WS_PROF = 0x1C00000
OOB = 0x7ff00000
SLOT = 16384
TB = 9 * SLOT
T_STAT, T_B1, T_SEG, T_LB, T_H = TB, TB + 1024, TB + 2048, TB + 6144, TB + 8192
LOG2E, LN2, M2LN2 = 0x3fb8aa3b, 0x3f317218, 0xbfb17218

sX, sB, sW1, sCre, sCim, sW2, sWS, sOUT, sTMP = 36, 40, 44, 48, 52, 56, 60, 64, 68
sI, sJ, sW, sROT, sTAG, sE2 = 72, 73, 74, 75, 76, 77
sKC = [78, 79, 80, 81]
sWOFF, sT0, sT1, sXB, sBB, sW1A, sW1B = 82, 83, 84, 85, 86, 87, 88
sAS = 89
sFST = [90, 91, 92, 93]
sSST, sCB, sW2B, sFSEL, sONES, sT3, sJJ, sT2 = 94, 95, 96, 97, 98, 99, 100, 101
sKQ, sPB, sXO = 22, [24, 25, 26], [27, 28, 29, 30]
sSEL = [31, 32, 33, 34]
sFLG = 35
pLRE, pLIM, pBRE, pBIM, pLDT, pDSK, pB1 = 8, 10, 12, 14, 16, 18, 20
srd = lambda b: f's[{b}:{b + 3}]'
vL, t0, t1, t2 = 0, 1, 2, 3
AS = [4, 5, 6, 7]
ASc = [8, 9, 10, 11]
XG = [12, 13, 14, 15]
PG = [16, 17, 18, 19]
QG = [20, 21, 22, 23]
FA0, FAc, RL2, VLN2, VL16, VNM, VRS, t3 = 24, 25, 26, 27, 28, 29, 30, 31
FAd = VNM
NLI, LI, LR, CR, NCI, NCR, L16R, L16I, LSR, LSI, L128R, L128I, WR, WI, PR, PI = range(32, 48)
TT = 48
FACC = [64, 80]
SRE, SIM = 96, 112
X = 128
aS, aF, aP, aOF, aOS, aWO, aXE = 0, 128, 0, 64, 88, 128, 224
STAMP_A = list(range(104, 128)) + list(range(48, 54))
vr = lambda b, n: f'v[{b}:{b + n - 1}]'
ar = lambda b, n: f'a[{b}:{b + n - 1}]'

stamp_names = []
FINE_KEEP = dict(T=['lb1', 'F2', 'scan', 'F3', 'fa0', 'fa1', 'tail', 'fh0'], S=['x7', 'c27', 'b0', 'F0'], F0=['b2', 'F0', 'F1'], F2=['F1', 'F2', 'scan'], F3=['scan', 'F3', 'fa0', 'fa1', 'tail'],
                 P3=[], L=['k36', 'sent', 'own', 'rx'])


def fine(phase, items, step):
    if OPT['fine'] == phase:
        for n in range(step - 1, len(items), step):
            items[n] = items[n] + stamp(f'g{n}')
    return items


def stamp(name):
    if PROF == 3 and name not in ('end', 'DUMP'):
        return []
    if OPT['fine'] and not name.startswith('g') and name not in FINE_KEEP[OPT['fine']] + ['end', 'DUMP']:
        return []
    if OPT['diag'] == name:
        return [I('s_memrealtime s[4:5]')]
    return [I(';stamp ' + name)] if PROF else []


def resolve_stamps(prog):
    out = []
    for ins in prog:
        if not ins.text.startswith(';stamp '):
            out.append(ins)
            continue
        name = ins.text.split()[1]
        n = len(stamp_names)
        if n:
            out.append(I(f'v_accvgpr_write_b32 a{STAMP_A[n - 1]}, s{4 + 2 * ((n - 1) & 1)}'))
        if name == 'DUMP':
            out += [I(f'buffer_store_dword a{STAMP_A[k]}, v{t1}, {srd(sWS)}, 0 offen offset:{4 * k}') for k in range(n)]
            continue
        assert n < 29
        stamp_names.append(name)
        out.append(I(f's_mem{"real" if PROF == 2 else ""}time s[{4 + 2 * (n & 1)}:{5 + 2 * (n & 1)}]'))
    return out


def L(text):
    return [I(t.strip()) for t in text.strip().split('\n') if t.strip()]


def mfma(d, a, b, c):
    return I(f'v_mfma_f32_32x32x16_bf16 {d}, {a}, {b}, {c}')


def mksrd(b, lo, size):
    return f's_mov_b32 s{b}, s{lo}\ns_mov_b32 s{b + 1}, s{lo + 1}\ns_mov_b32 s{b + 2}, {size}\ns_mov_b32 s{b + 3}, 0x00020000\n'


slot_shared = {}


def dma_round(name, slot, voffs, rsrc, soff_code, shared):
    out = [I(f's_add_u32 m0, s{sWOFF}, {slot * SLOT}')] + L(soff_code)
    for g in range(4):
        out.append(I(f'buffer_load_dwordx4 v{voffs[g]}, {srd(rsrc)}, s{sT0} offen offset:{1024 * g} lds',
                     tok=name if g == 3 else None,
                     lds_w=(slot, slot_shared.get(slot, False)) if g == 0 else None, note=name,
                     fills=(slot, shared) if g == 3 else None))
    slot_shared[slot] = shared
    return out


def rx(s, slot):
    return dma_round(f'x{s}', slot + 1, XG, sX,
                     f's_add_u32 s{sT0}, s{sROT}, {s}\ns_and_b32 s{sT0}, s{sT0}, 7\n'
                     f's_lshl_b32 s{sT0}, s{sT0}, 7\ns_add_u32 s{sT0}, s{sT0}, s{sXB}', False)


G_SLOT = [5, 6, 7, 8, 0, 1, 2, 3, 4, 5, 6, 7]
W_SLOT = dict(WA0=8, CR0=0, CI0=1, WA1=2, WA2=3, WA3=4, CR1=5, CI1=6, WB0=7, WB1=8, WB2=2)


def rg(g):
    if g < 4:
        return dma_round(f'G{g}', G_SLOT[g], PG, sB,
                         f's_lshl_b32 s{sT0}, s{sKC[g]}, 7\ns_add_u32 s{sT0}, s{sT0}, s{sBB}', True)
    base = sW1A if g < 8 else sW1B
    return dma_round(f'G{g}', G_SLOT[g], QG, sW1,
                     f's_mul_i32 s{sT0}, s{sKC[g & 3]}, {64 * 3584}\ns_add_u32 s{sT0}, s{sT0}, s{base}', True)


def rw(name):
    e = int(name[2])
    if name[0] == 'C':
        code = f's_xor_b32 s{sT0}, s{sCB}, {128 * e}'
        return dma_round(name, W_SLOT[name], PG, sCim if name[1] == 'I' else sCre, code, True)
    if name[1] == 'A':
        code = f's_xor_b32 s{sT0}, s{sJJ}, {e}\ns_lshl_b32 s{sT0}, s{sT0}, 17\ns_add_u32 s{sT0}, s{sT0}, s{sW2B}'
    else:
        code = f's_lshl_b32 s{sT0}, s{sPB[e]}, 16\ns_add_u32 s{sT0}, s{sT0}, s{sW2B}'
        if e == 0:
            code += f'\ns_xor_b32 s{sT0}, s{sT0}, s{sSEL[0]}'
    return dma_round(name, W_SLOT[name], XG, sW2, code, True)


def pins(*parts):
    pin = {}
    for gap, ins in parts:
        head = [i_ for i_ in ins if not getattr(i_, 'dma', False)]
        pin.setdefault(gap, []).extend(head)
        for n, i_ in enumerate(ins[len(head):]):
            pin.setdefault(gap + n * OPT['dsp'], []).append(i_)
    return pin


BAR = lambda *toks: ([Wait(*toks)] if toks else []) + [I('s_barrier')]
PARK = {n: 160 + k for k, n in enumerate('pub seg lba0 lba1 lbe0 lbe1 fla flp lbw lbr hw hw2 hr hr2 f3o fp0 fp1'.split())}


def park(**regs):
    return [I(f'v_accvgpr_write_b32 a{PARK[n]}, v{r}') for n, r in regs.items()]


def fetch(**regs):
    return [I(f'v_accvgpr_read_b32 v{r}, a{PARK[n]}') for n, r in regs.items()]


retry_blocks = []


def poll(name, loads, check):
    retry_blocks.append((name, loads, check))
    return L(check) + [I(f's_cbranch_vccnz L_retry_{name}'), I(f'L_back_{name}:')]


def cexp(dr, di, scale, zr, za):
    return L(f"""v_mul_f32 v{dr}, {scale}, v{zr}
        v_mul_f32 v{di}, {scale}, v{za}
        v_exp_f32 v{dr}, v{dr}
        v_fract_f32 v{di}, v{di}
        v_cos_f32 v{t3}, v{di}
        v_sin_f32 v{di}, v{di}
        v_mul_f32 v{di}, v{dr}, v{di}
        v_mul_f32 v{dr}, v{dr}, v{t3}""")


def cmul_add(dr, di, ar_, ai, br, bi, cr=None, ci=None):
    if cr is None:
        head = f'v_mul_f32 v{dr}, v{ar_}, v{br}\nv_mul_f32 v{di}, v{ar_}, v{bi}'
    else:
        head = f'v_fma_f32 v{dr}, v{ar_}, v{br}, v{cr}\nv_fma_f32 v{di}, v{ar_}, v{bi}, v{ci}'
    return L(head + f'\nv_fma_f32 v{dr}, -v{ai}, v{bi}, v{dr}\nv_fmac_f32 v{di}, v{ai}, v{br}')


def mish(b, voff=VL16, quarters=range(4)):
    A = FACC[b & 1]
    out = []
    for q in quarters:
        rs = range(4 * q, 4 * q + 4)
        out.append(I(f'ds_read_b128 {vr(TT + 4 * q, 4)}, v{t2} offset:{T_B1 - TB + 128 * b + 16 * q}', hoist=True))
        out += [I(f'v_fmac_f32 v{TT + r}, v{A + r}, v{RL2}') for r in rs]
        out += [I(f'v_exp_f32 v{A + r}, v{TT + r}') for r in rs]
        out += [I(f'v_add_f32 v{A + r}, 1.0, v{A + r}') for r in rs]
        out += [I(f'v_fma_f32 v{A + r}, v{A + r}, v{A + r}, 1.0') for r in rs]
        out += [I(f'v_rcp_f32 v{A + r}, v{A + r}') for r in rs]
        out += [I(f'v_fmamk_f32 v{A + r}, v{A + r}, {M2LN2:#x}, v{VLN2}') for r in rs]
        out += [I(f'v_mul_f32 v{TT + r}, v{TT + r}, v{A + r}') for r in rs]
        out += [I(f'v_cvt_pk_bf16_f32 v{A + p}, v{TT + 2 * p}, v{TT + 2 * p + 1}') for p in (2 * q, 2 * q + 1)]
        if q & 1:
            fr = q >> 1
            out.append(I(f'buffer_store_dwordx4 {vr(A + 4 * fr, 4)}, v{voff}, {srd(sWS)}, s{sFST[b]} offen '
                         f'offset:{1024 * fr} sc1', tok=f'stF{b}' if fr else None))
            if b < 3:
                out += [I(f'v_accvgpr_write_b32 a{aOF + 8 * b + 4 * fr + e}, v{A + 4 * fr + e}') for e in range(4)]
    return out


def mish_pk(b, voff, halves=range(2)):
    A = FACC[b & 1]
    out = []
    for q in range(2 * len(halves)):
        out.append(I(f'ds_read_b128 {vr(TT + 4 * q, 4)}, v{t2} offset:{T_B1 - TB + 128 * b + 16 * q}', hoist=True))
    for h in halves:
        ps = range(8 * h, 8 * h + 8, 2)
        rs = range(8 * h, 8 * h + 8)
        out += [I(f'v_pk_fma_f32 {vr(TT + p, 2)}, {vr(A + p, 2)}, {vr(RL2, 2)}, {vr(TT + p, 2)} op_sel_hi:[1,0,1]') for p in ps]
        out += [I(f'v_exp_f32 v{A + r}, v{TT + r}') for r in rs]
        out += [I(f'v_pk_add_f32 {vr(A + p, 2)}, {vr(A + p, 2)}, 1.0 op_sel_hi:[1,0]') for p in ps]
        out += [I(f'v_pk_fma_f32 {vr(A + p, 2)}, {vr(A + p, 2)}, {vr(A + p, 2)}, 1.0 op_sel_hi:[1,1,0]') for p in ps]
        out += [I(f'v_rcp_f32 v{A + r}, v{A + r}') for r in rs]
        out += [I(f'v_pk_fma_f32 {vr(A + p, 2)}, {vr(A + p, 2)}, s[{sKC[0]}:{sKC[1]}], {vr(RL2, 2)} '
                  f'op_sel:[0,0,1] op_sel_hi:[1,0,1]') for p in ps]
        out += [I(f'v_pk_mul_f32 {vr(TT + p, 2)}, {vr(TT + p, 2)}, {vr(A + p, 2)}') for p in ps]
        out += [I(f'v_cvt_pk_bf16_f32 v{A + p // 2}, v{TT + p}, v{TT + p + 1}') for p in ps]
        out.append(I(f'buffer_store_dwordx4 {vr(A + 4 * h, 4)}, v{voff}, {srd(sWS)}, s{sFST[b]} offen '
                     f'offset:{1024 * h} sc1', tok=f'stF{b}' if h else None))
        if b < 3:
            out += [I(f'v_accvgpr_write_b32 a{aOF + 8 * b + 4 * h + e}, v{A + 4 * h + e}') for e in range(4)]
    return out


_weave = weave
LEV = [OPT['lev']]


def weave(*a):
    out = _weave(*a)
    return ds_first(level(out, LEV[0], OPT['vmc'])) if LEV[0] else out


P = []
if OPT['map'] == '8x4':
    ids = f"""s_and_b32 s{sKQ}, s2, 3
        s_bfe_u32 s{sJJ}, s2, 0x20003
        s_lshr_b32 s{sI}, s2, 5
        s_bfe_u32 s{sT0}, s2, 0x10002
        s_lshl_b32 s{sROT}, s{sT0}, 1
        s_lshl_b32 s{sT0}, s{sT0}, 3
        s_and_b32 s{sT1}, s{sI}, 1
        s_or_b32 s{sI}, s{sI}, s{sT0}
        s_add_u32 s{sROT}, s{sROT}, s{sT1}
        s_add_u32 s{sROT}, s{sROT}, s{sKQ}
        s_lshl_b32 s{sROT}, s{sROT}, 1
        s_and_b32 s{sT1}, s{sJJ}, {OPT['rotj']}
        s_add_u32 s{sROT}, s{sROT}, s{sT1}
        s_and_b32 s{sROT}, s{sROT}, 7"""
else:
    ids = f"""s_and_b32 s{sKQ}, s2, 1
        s_lshl_b32 s{sKQ}, s{sKQ}, 1
        s_lshr_b32 s{sT0}, s2, 7
        s_or_b32 s{sKQ}, s{sKQ}, s{sT0}
        s_bfe_u32 s{sJJ}, s2, 0x20003
        s_bfe_u32 s{sI}, s2, 0x20005
        s_bfe_u32 s{sT0}, s2, 0x20001
        s_add_u32 s{sROT}, s{sT0}, s{sKQ}
        s_lshl_b32 s{sT0}, s{sT0}, 2
        s_or_b32 s{sI}, s{sI}, s{sT0}
        s_lshl_b32 s{sROT}, s{sROT}, 1
        s_and_b32 s{sROT}, s{sROT}, 7"""
ws_load = f's_load_dwordx2 s[{sWS}:{sWS + 1}], s[0:1], 120'
more_loads = f"""s_load_dwordx8 s[{pLRE}:{pLRE + 7}], s[0:1], 8
s_load_dwordx4 s[{pLDT}:{pLDT + 3}], s[0:1], 56
s_load_dwordx2 s[{pB1}:{pB1 + 1}], s[0:1], 88
s_load_dwordx2 s[{sW1}:{sW1 + 1}], s[0:1], 80
s_load_dwordx2 s[{sCre}:{sCre + 1}], s[0:1], 40
s_load_dwordx2 s[{sCim}:{sCim + 1}], s[0:1], 48
s_load_dwordx2 s[{sW2}:{sW2 + 1}], s[0:1], 96
s_load_dwordx2 s[{sOUT}:{sOUT + 1}], s[0:1], 104
"""
SUM, SQ = [TT + 8, TT + 9], [TT + 10, TT + 11]
sizes = ((sX, 2097152), (sB, 524288), (sW1, 1835008), (sCre, 524288), (sCim, 524288), (sW2, 1835008),
         (sWS, (WS_PROF + 0x40000) if PROF else WS_SIZE), (sOUT, 4194304))
P += L(f"""
s_cmp_ge_u32 s2, 256
s_cbranch_scc1 L_end
{'s_memtime s[98:99]' if PROF else ''}
{'s_memrealtime s[90:91]' if PROF or OPT['diag'] else ''}
s_load_dwordx2 s[{sX}:{sX + 1}], s[0:1], 0
{'' if OPT['ka2'] else ws_load}
s_getpc_b64 s[{sTMP}:{sTMP + 1}]
v_lshrrev_b32 v{t0}, 6, v0
v_and_b32 v{vL}, 63, v0
s_and_b32 s{sTMP}, s{sTMP}, 0xffffff80
v_readfirstlane_b32 s{sW}, v{t0}
s_mov_b32 s{sTMP + 2}, L_code_end-{KN}
s_mov_b32 s{sTMP + 3}, 0x00020000
s_lshr_b32 s{sT0}, s2, 3
s_lshl_b32 s{sT0}, s{sT0}, 2
s_add_u32 s{sT0}, s{sT0}, s{sW}
s_lshl_b32 s{sT0}, s{sT0}, 9
v_and_b32 v{t1}, 3, v{vL}
v_lshlrev_b32 v{t1}, 7, v{t1}
buffer_load_dword v{t3}, v{t1}, {srd(sTMP)}, s{sT0} offen
{'' if OPT['ka2'] else more_loads}
v_lshrrev_b32 v{t0}, 3, v{vL}
v_lshrrev_b32 v{t1}, 4, v{vL}
v_xor_b32 v{t1}, v{t1}, v{vL}
v_and_b32 v{t1}, 7, v{t1}
v_lshlrev_b32 v{t1}, 4, v{t1}
v_lshl_add_u32 v{PG[0]}, v{t0}, 10, v{t1}
v_lshrrev_b32 v{t2}, 5, v{vL}
v_mul_u32_u24 v{t2}, {12 * 1024}, v{t2}
v_add_u32 v{XG[0]}, v{PG[0]}, v{t2}
v_xor_b32 v{XG[1]}, 64, v{XG[0]}
v_add_u32 v{XG[2]}, {6 * 1024}, v{XG[0]}
v_add_u32 v{XG[3]}, {9 * 1024}, v{XG[1]}
v_add_u32 v{XG[1]}, {3 * 1024}, v{XG[1]}
s_lshl_b32 s{sWOFF}, s{sW}, 12
{ids}
s_lshl_b32 s{sXB}, s{sI}, 17
s_lshl_b32 s{sT0}, s{sW}, 15
s_add_u32 s{sXB}, s{sXB}, s{sT0}
""" + ''.join(f's_mov_b32 s{b + 2}, {n}\ns_mov_b32 s{b + 3}, 0x00020000\n' for b, n in sizes) + f"""
s_waitcnt lgkmcnt(0)
{'v_accvgpr_write_b32 a62, s98' if PROF else ''}
{'v_accvgpr_write_b32 a63, s90' if PROF else ''}
{'s_mov_b32 s23, 0' if PROF else ''}
{'s_mov_b32 s23, s90' if OPT['diag'] else ''}
""")
P += stamp('ka') if OPT['diag'] else []
P += rx(0, 0) + (L(ws_load + '\n' + more_loads) if OPT['ka2'] else []) + rx(1, 1)
P += L(f"""
v_and_b32 v{t0}, 31, v{vL}
s_lshl_b32 s{sJ}, s{sKQ}, 2
s_or_b32 s{sJ}, s{sJ}, s{sJJ}
v_lshrrev_b32 v{t1}, 5, v{vL}
v_bfe_u32 v{t2}, v{vL}, 1, 3
v_xor_b32 v{t1}, v{t1}, v{t2}
v_lshlrev_b32 v{t1}, 4, v{t1}
v_lshl_add_u32 v{AS[0]}, v{t0}, 7, v{t1}
v_xor_b32 v{AS[1]}, 32, v{AS[0]}
v_xor_b32 v{AS[2]}, 64, v{AS[0]}
v_xor_b32 v{AS[3]}, 0x60, v{AS[0]}
s_add_u32 s{sT0}, s{sWOFF}, {SLOT}
v_add_u32 v{ASc[0]}, s{sT0}, v{AS[0]}
v_add_u32 v{ASc[1]}, s{sT0}, v{AS[1]}
v_add_u32 v{ASc[2]}, s{sT0}, v{AS[2]}
v_add_u32 v{ASc[3]}, s{sT0}, v{AS[3]}
s_mov_b32 s{sONES}, 0x3f803f80
v_mov_b32 v{SUM[0]}, 0
v_mov_b32 v{SUM[1]}, 0
v_mov_b32 v{SQ[0]}, 0
v_mov_b32 v{SQ[1]}, 0
s_lshl_b32 s{sT0}, s{sW}, 9
s_add_u32 s{sT0}, s{sT0}, {T_SEG}
v_lshl_add_u32 v{t0}, v{vL}, 3, s{sT0}""")
P.append(I(f'ds_write_b64 v{t0}, {vr(SUM[0], 2)}', tok='zero'))
P += L(f's_waitcnt lgkmcnt(0)\ns_load_dword s{sE2}, s[{sWS}:{sWS + 1}], {WS_EP}')
mid = L(f"""
v_and_b32 v{t0}, 31, v{vL}
s_lshl_b32 s{sT1}, s{sJ}, 6
v_lshl_add_u32 v{t1}, v{t0}, 1, s{sT1}
global_load_ushort v{LR}, v{t1}, s[{pLRE}:{pLRE + 1}]
global_load_ushort v{LI}, v{t1}, s[{pLIM}:{pLIM + 1}]
global_load_ushort v{NLI}, v{t1}, s[{pLDT}:{pLDT + 1}]
s_and_b32 s{sT3}, s{sW}, 1
s_mul_i32 s{sT2}, s{sKQ}, 7
s_lshl_b32 s{sW1A}, s{sJJ}, 1
s_add_u32 s{sPB[0]}, s{sW1A}, 1
s_cmp_eq_u32 s{sJJ}, 3
s_cselect_b32 s{sPB[0]}, 3, s{sPB[0]}
s_cselect_b32 s{sFSEL}, 64, 0
s_add_u32 s{sW1A}, s{sW1A}, s{sT2}
s_add_u32 s{sW1B}, s{sPB[0]}, s{sT2}
s_lshl_b32 s{sW1A}, s{sW1A}, 7
s_lshl_b32 s{sW1B}, s{sW1B}, 7
s_cmp_ge_u32 s{sW}, 2
s_cselect_b32 s{sT2}, s{sW1B}, s{sW1A}
s_cselect_b32 s{sT1}, s{sFSEL}, 0
s_add_u32 s{sT2}, s{sT2}, s{sT1}
s_lshl_b32 s{sT1}, s{sT3}, 6
s_xor_b32 s{sT2}, s{sT2}, s{sT1}
v_and_b32 v{t1}, 3, v{vL}
v_bfe_u32 v{t2}, v{vL}, 2, 2
v_lshl_add_u32 v{t1}, v{t2}, 3, v{t1}
v_bfe_u32 v{t2}, v{vL}, 4, 1
v_lshl_add_u32 v{t1}, v{t2}, 2, v{t1}
v_lshl_add_u32 v{t1}, v{t1}, 1, s{sT2}
global_load_ushort v{PR}, v{t1}, s[{pB1}:{pB1 + 1}]
s_cmp_eq_u32 s{sT3}, 1
s_cselect_b32 s{sB}, s{pBIM}, s{pBRE}
s_cselect_b32 s{sB + 1}, s{pBIM + 1}, s{pBRE + 1}
s_mul_i32 s{sT3}, s{sT3}, {32 * 3584}
s_add_u32 s{sW1A}, s{sW1A}, s{sT3}
s_add_u32 s{sW1B}, s{sW1B}, s{sT3}
s_lshl_b32 s{sBB}, s{sJ}, 15
s_lshr_b32 s{sT1}, s{sW}, 1
s_add_u32 s{sT1}, s{sT1}, s{sROT}
s_and_b32 s{sKC[0]}, s{sT1}, 7
s_add_u32 s{sT1}, s{sT1}, 2
s_and_b32 s{sKC[1]}, s{sT1}, 7
s_add_u32 s{sT1}, s{sT1}, 2
s_and_b32 s{sKC[2]}, s{sT1}, 7
s_add_u32 s{sT1}, s{sT1}, 2
s_and_b32 s{sKC[3]}, s{sT1}, 7
v_xor_b32 v{PG[1]}, 64, v{PG[0]}
v_add_u32 v{PG[2]}, {14 * 1024}, v{PG[0]}
v_add_u32 v{PG[3]}, {21 * 1024}, v{PG[1]}
v_add_u32 v{PG[1]}, {7 * 1024}, v{PG[1]}
v_bfe_u32 v{t0}, v{vL}, 2, 1
v_lshrrev_b32 v{t1}, 5, v{vL}
v_and_b32 v{t2}, 1, v{vL}
v_lshlrev_b32 v{t2}, 4, v{t2}
v_mov_b32 v{VNM}, 0x3f80
v_lshlrev_b32 v{t2}, v{t2}, v{VNM}
v_cmp_eq_u32 vcc, v{t0}, v{t1}
v_bfe_u32 v{t0}, v{vL}, 1, 1
v_bfe_u32 v{t1}, v{vL}, 3, 2
v_cndmask_b32 v{t2}, 0, v{t2}, vcc
v_lshl_add_u32 v{t0}, v{t1}, 1, v{t0}
""")
for q in range(0, 8, 2):
    mid += L(f"""v_cmp_eq_u32 vcc, {q}, v{t0}
        v_cmp_eq_u32 s[{sSEL[1]}:{sSEL[2]}], {q + 1}, v{t0}
        s_nop 0
        v_cndmask_b32 v{TT + q}, 0, v{t2}, vcc
        v_cndmask_b32 v{TT + q + 1}, 0, v{t2}, s[{sSEL[1]}:{sSEL[2]}]""")
mid += L(f"""
v_lshrrev_b32 v{t1}, 3, v{vL}
v_mul_u32_u24 v{t1}, 3584, v{t1}
v_bfe_u32 v{t2}, v{vL}, 4, 1
v_lshlrev_b32 v{t2}, 2, v{t2}
v_xor_b32 v{t2}, v{t2}, v{vL}
v_and_b32 v{t2}, 7, v{t2}
v_lshl_add_u32 v{QG[0]}, v{t2}, 4, v{t1}
v_add_u32 v{QG[1]}, {27648}, v{QG[0]}
v_add_u32 v{QG[2]}, {2 * 27648}, v{QG[0]}
v_add_u32 v{QG[3]}, {3 * 27648}, v{QG[0]}
""")
late = L(f"""
s_mul_i32 s{sE2}, s{sE2}, 1664525
s_add_u32 s{sE2}, s{sE2}, 1013904226
s_or_b32 s{sTAG}, s{sE2}, 1
v_bfe_u32 v{t1}, v{vL}, 2, 2
v_lshrrev_b32 v{t2}, 5, v{vL}
v_lshl_add_u32 v{t2}, v{t2}, 3, v{t1}
v_lshlrev_b32 v{FA0}, 7, v{t2}
v_lshrrev_b32 v{t1}, 1, v{t1}
v_lshl_add_u32 v{FA0}, v{t1}, 6, v{FA0}
v_bfe_u32 v{t1}, v{vL}, 4, 1
v_lshl_add_u32 v{FA0}, v{t1}, 5, v{FA0}
v_and_b32 v{t1}, 3, v{vL}
v_lshl_add_u32 v{FA0}, v{t1}, 3, v{FA0}
v_lshlrev_b32 v{VL16}, 4, v{vL}
v_mov_b32 v{VLN2}, {LN2:#x}
s_cmp_eq_u32 s{sPB[0]}, 1
s_cselect_b32 s{sPB[1]}, 3, 1
s_cmp_eq_u32 s{sPB[0]}, 5
s_cselect_b32 s{sPB[2]}, 3, 5
s_lshl_b32 s{sSEL[0]}, s{sFSEL}, 9
s_lshl_b32 s{sAS}, s{sI}, 2
s_add_u32 s{sAS}, s{sAS}, s{sW}
s_lshl_b32 s{sAS}, s{sAS}, 2
s_add_u32 s{sAS}, s{sAS}, s{sKQ}
s_lshl_b32 s{sFLG}, s{sAS}, 11
s_add_u32 s{sFLG}, s{sFLG}, {WS_FL}
s_mul_i32 s{sAS}, s{sAS}, {44 * 1024}
s_add_u32 s{sAS}, s{sAS}, {WS_A}
s_lshl_b32 s{sT2}, s{sJJ}, 13
s_add_u32 s{sFST[0]}, s{sAS}, s{sT2}
s_add_u32 s{sFST[1]}, s{sFST[0]}, 2048
s_lshl_b32 s{sT2}, s{sPB[0]}, 12
s_add_u32 s{sFST[3]}, s{sAS}, s{sT2}
s_lshl_b32 s{sT2}, s{sFSEL}, 5
s_add_u32 s{sFST[2]}, s{sFST[3]}, s{sT2}
s_add_u32 s{sFST[3]}, s{sFST[3]}, 2048
s_lshl_b32 s{sT2}, s{sJJ}, 12
s_add_u32 s{sSST}, s{sAS}, s{sT2}
s_add_u32 s{sSST}, s{sSST}, {28 * 1024}
s_xor_b32 s{sT2}, s{sW}, s{sKQ}
s_lshl_b32 s{sT2}, s{sT2}, 15
s_lshl_b32 s{sCB}, s{sJJ}, 17
s_add_u32 s{sCB}, s{sCB}, s{sT2}
s_lshl_b32 s{sT2}, s{sKQ}, 8
s_add_u32 s{sCB}, s{sCB}, s{sT2}
s_lshr_b32 s{sT2}, s{sJJ}, 1
s_lshl_b32 s{sT2}, s{sT2}, 7
s_add_u32 s{sCB}, s{sCB}, s{sT2}
s_mul_i32 s{sW2B}, s{sKQ}, {448 * 1024}
s_lshr_b32 s{sT2}, s{sW}, 1
s_lshl_b32 s{sT2}, s{sT2}, 15
s_add_u32 s{sW2B}, s{sW2B}, s{sT2}
s_lshl_b32 s{sT2}, s{sJJ}, 8
s_add_u32 s{sW2B}, s{sW2B}, s{sT2}
s_lshr_b32 s{sT2}, s{sKQ}, 1
s_xor_b32 s{sT2}, s{sT2}, s{sW}
s_and_b32 s{sT2}, s{sT2}, 1
s_lshl_b32 s{sT2}, s{sT2}, 7
s_add_u32 s{sW2B}, s{sW2B}, s{sT2}
s_lshl_b32 s{sT2}, s{sI}, 4
s_add_u32 s{sT2}, s{sT2}, s{sJJ}
s_lshl_b32 s{sT2}, s{sT2}, 2
s_add_u32 s{sT2}, s{sT2}, s{sW}""")
for b in range(4):
    late += L(f"""s_xor_b32 s{sT3}, s{sKQ}, {b}
        s_lshl_b32 s{sT3}, s{sT3}, 4
        s_add_u32 s{sT3}, s{sT3}, s{sT2}
        s_mul_i32 s{sT3}, s{sT3}, {3 * XC_BLK}
        s_add_u32 s{sXO[b]}, s{sT3}, {WS_XC + (b - 1) * XC_BLK if b else WS_XC}""")
late += L(f"""s_add_u32 s{sSEL[2]}, s{sXO[0]}, {XC_BLK}
    s_add_u32 s{sSEL[3]}, s{sXO[0]}, {2 * XC_BLK}
    s_and_b32 s{sT3}, s{sJJ}, 1
    s_sub_u32 s{sSEL[1]}, 6, s{sT3}""")
pf = []
if OPT['pf'] == 2:
    late += L(f"""
s_and_b32 s{sT1}, s{sI}, 7
s_lshl_b32 s{sT2}, s{sT1}, 1
s_add_u32 s{sT2}, s{sT2}, s{sW}
s_mul_i32 s{sT2}, s{sT2}, 28
s_mul_i32 s{sT3}, s{sKQ}, 448
s_add_u32 s{sT2}, s{sT2}, s{sT3}
s_lshl_b32 s{sT2}, s{sT2}, 2
s_add_u32 s{sT2}, s{sT2}, s{sJJ}
s_lshl_b32 s{sT3}, s{sJJ}, 3
s_add_u32 s{sT3}, s{sT3}, s{sT1}
s_lshl_b32 s{sT3}, s{sT3}, 6
s_add_u32 s{sT3}, s{sT3}, s{sKQ}
s_cmp_lt_u32 s{sW}, 2
s_cselect_b32 s{sT2}, s{sT2}, s{sT3}
s_cselect_b32 s{sT3}, 56, 32
s_cselect_b32 s{sTMP}, s{sW2}, s{sCre}
s_cselect_b32 s{sTMP + 1}, s{sW2 + 1}, s{sCre + 1}
s_cselect_b32 s{sTMP + 2}, s{sW2 + 2}, s{sCre + 2}
s_cmp_eq_u32 s{sW}, 3
s_cselect_b32 s{sTMP}, s{sCim}, s{sTMP}
s_cselect_b32 s{sTMP + 1}, s{sCim + 1}, s{sTMP + 1}""")
elif OPT['pf']:
    late += L(f"""
s_mul_i32 s{sT2}, s{sKQ}, 448
s_mul_i32 s{sT3}, s{sI}, 28
s_add_u32 s{sT2}, s{sT2}, s{sT3}
s_lshl_b32 s{sT2}, s{sT2}, 2
s_add_u32 s{sT2}, s{sT2}, s{sJJ}
s_lshl_b32 s{sT3}, s{sJJ}, 4
s_add_u32 s{sT3}, s{sT3}, s{sI}
s_lshl_b32 s{sT3}, s{sT3}, 5
s_add_u32 s{sT3}, s{sT3}, s{sKQ}
s_cmp_eq_u32 s{sW}, 0
s_cselect_b32 s{sT2}, s{sT2}, s{sT3}
s_cselect_b32 s{sT3}, 56, 16
s_cselect_b32 s{sTMP}, s{sW2}, s{sCre}
s_cselect_b32 s{sTMP + 1}, s{sW2 + 1}, s{sCre + 1}
s_cselect_b32 s{sTMP + 2}, s{sW2 + 2}, s{sCre + 2}
s_cmp_eq_u32 s{sW}, 2
s_cselect_b32 s{sTMP}, s{sCim}, s{sTMP}
s_cselect_b32 s{sTMP + 1}, s{sCim + 1}, s{sTMP + 1}
s_cmp_eq_u32 s{sW}, 3
s_cselect_b32 s{sT3}, 0, s{sT3}""")
if OPT['pf']:
    late += L(f"""s_lshl_b32 s{sT2}, s{sT2}, 8
v_lshrrev_b32 v{t0}, 1, v{vL}
v_and_b32 v{t1}, 1, v{vL}
v_lshlrev_b32 v{t1}, 7, v{t1}
v_lshl_add_u32 v{t0}, v{t0}, 10, v{t1}
v_add_u32 v{t0}, s{sT2}, v{t0}
v_mov_b32 v{t1}, {OOB:#x}
v_cmp_gt_u32 vcc, s{sT3}, v{vL}
v_cndmask_b32 v{PI}, v{t1}, v{t0}, vcc""")
    pf = L(f'buffer_load_dword v{PI}, v{PI}, {srd(sTMP)}, 0 offen')

Z = FACC[0]
later = L(f"""
v_lshlrev_b32 v{NLI}, 16, v{NLI}
v_mul_f32 v{NLI}, {LOG2E:#x}, v{NLI}
v_exp_f32 v{NLI}, v{NLI}
v_lshlrev_b32 v{Z + 2}, 16, v{LR}
v_lshlrev_b32 v{Z + 3}, 16, v{LI}
v_cvt_pk_bf16_f32 v{NLI}, v{NLI}, v{NLI}
v_lshlrev_b32 v{NLI}, 16, v{NLI}
v_mul_f32 v{Z}, v{NLI}, v{Z + 2}
v_mul_f32 v{Z + 1}, v{NLI}, v{Z + 3}
v_mul_f32 v{Z}, {LOG2E:#x}, v{Z}
v_mul_f32 v{Z + 1}, 0xbe22f983, v{Z + 1}""")
later += cexp(LR, LI, '1.0', Z, Z + 1)
later += L(f"""
v_mul_f32 v{Z + 4}, v{Z + 2}, v{Z + 2}
v_fmac_f32 v{Z + 4}, v{Z + 3}, v{Z + 3}
v_rcp_f32 v{Z + 4}, v{Z + 4}
v_add_f32 v{Z + 5}, -1.0, v{LR}
v_sub_f32 v{NLI}, 0, v{LI}
v_add_f32 v{Z + 4}, v{Z + 4}, v{Z + 4}
v_mul_f32 v{CR}, v{Z + 5}, v{Z + 2}
v_fmac_f32 v{CR}, v{NLI}, v{Z + 3}
v_mul_f32 v{NCI}, v{Z + 5}, v{Z + 3}
v_fmac_f32 v{NCI}, v{LI}, v{Z + 2}
v_mul_f32 v{CR}, v{CR}, v{Z + 4}
v_mul_f32 v{NCI}, v{NCI}, v{Z + 4}
v_sub_f32 v{NCR}, 0, v{CR}""")
later += cexp(L16R, L16I, '0x41800000', Z, Z + 1)
later += cexp(L128R, L128I, '0x43000000', Z, Z + 1)
later += L(f"""
v_lshrrev_b32 v{Z + 6}, 5, v{vL}
s_lshl_b32 s{sT2}, s{sW}, 1
v_add_u32 v{Z + 6}, s{sT2}, v{Z + 6}
v_cvt_f32_u32 v{Z + 6}, v{Z + 6}
v_mul_f32 v{Z + 7}, 0x41800000, v{Z + 6}
v_sub_f32 v{Z + 6}, 0x40e00000, v{Z + 6}
v_mul_f32 v{Z + 6}, 0x43800000, v{Z + 6}""")
later += cexp(LSR, LSI, f'v{Z + 7}', Z, Z + 1)
later += cexp(WR, WI, f'v{Z + 6}', Z, Z + 1)
later += L(f"""v_lshlrev_b32 v{PR}, 16, v{PR}
v_mul_f32 v{PR}, {LOG2E:#x}, v{PR}
v_and_b32 v{t1}, 31, v{vL}
s_lshl_b32 s{sT1}, s{sW}, 7
s_add_u32 s{sT1}, s{sT1}, {T_B1}
v_lshl_add_u32 v{t1}, v{t1}, 2, s{sT1}
ds_write_b32 v{t1}, v{PR}""")
Y = SRE
later += L(f"""v_and_b32 v{Y}, 31, v{vL}
    v_lshlrev_b32 v{Y + 1}, 3, v{Y}
    v_add_u32 v{Y + 1}, {T_LB}, v{Y + 1}
    v_lshrrev_b32 v{t0}, 5, v{vL}
    s_lshl_b32 s{sT2}, s{sW}, 11
    s_add_u32 s{sT2}, s{sT2}, {T_H}
    v_lshl_add_u32 v{Y}, v{Y}, 6, s{sT2}
    v_bfe_u32 v{Y + 2}, v{vL}, 1, 2
    v_lshlrev_b32 v{Y + 3}, 1, v{t0}
    v_xor_b32 v{Y + 2}, v{Y + 2}, v{Y + 3}
    v_lshl_add_u32 v{Y}, v{Y + 2}, 4, v{Y}
    v_xor_b32 v{Y + 3}, 16, v{Y}
    v_bfe_u32 v{Y + 6}, v{vL}, 2, 2
    v_lshl_add_u32 v{Y + 2}, v{t0}, 3, v{Y + 6}
    v_lshl_add_u32 v{Y + 2}, v{Y + 2}, 6, s{sT2}
    v_and_b32 v{t1}, 1, v{vL}
    v_lshl_add_u32 v{Y + 2}, v{t1}, 5, v{Y + 2}
    v_lshrrev_b32 v{t1}, 1, v{vL}
    v_xor_b32 v{t1}, v{t1}, v{vL}
    v_and_b32 v{t1}, 8, v{t1}
    v_lshl_add_u32 v{Y + 2}, v{t1}, 1, v{Y + 2}
    v_bfe_u32 v{t1}, v{vL}, 1, 1
    v_lshl_add_u32 v{Y + 2}, v{t1}, 3, v{Y + 2}
    v_xor_b32 v{Y + 4}, 32, v{Y + 2}
    v_lshl_add_u32 v{t0}, v{t0}, 2, v{Y + 6}
    v_lshlrev_b32 v{Y + 5}, 7, v{t0}
    v_lshrrev_b32 v{t1}, 1, v{Y + 6}
    s_and_b32 s{sT2}, s{sKQ}, 1
    v_xor_b32 v{t1}, s{sT2}, v{t1}
    v_lshl_add_u32 v{Y + 5}, v{t1}, 6, v{Y + 5}
    v_bfe_u32 v{t1}, v{vL}, 4, 1
    v_lshl_add_u32 v{Y + 5}, v{t1}, 5, v{Y + 5}
    v_and_b32 v{t1}, 3, v{vL}
    v_lshl_add_u32 v{Y + 5}, v{t1}, 3, v{Y + 5}
    v_xor_b32 v{Y + 6}, 64, v{Y + 5}
    s_lshl_b32 s{sT2}, s{sW}, 9
    s_add_u32 s{sT1}, s{sT2}, {T_SEG}
    s_add_u32 s{sT2}, s{sT2}, {T_LB}
    v_lshl_add_u32 v{Y + 7}, v{vL}, 3, s{sT1}
    v_lshl_add_u32 v{Y + 8}, v{vL}, 3, s{sT2}""")
later += park(hw=Y, lbr=Y + 1, hr=Y + 2, hw2=Y + 3, hr2=Y + 4, fp0=Y + 5, fp1=Y + 6, seg=Y + 7, lbw=Y + 8)
later = mid + later + [I(f'v_accvgpr_write_b32 a{aXE + r}, 0') for r in range(17)]
cuts = [0]
for n in range(1, 7):
    c = n * len(later) // 7
    while later[c].mn.startswith(('s_cselect', 'v_cndmask', 's_nop')) or later[c - 1].mn.startswith('v_cmp'):
        c += 1
    cuts.append(c)
cuts.append(len(later))

touch_w = L(f'v_mov_b32 v{PI}, 0') + [
    I(f'buffer_load_dword a{56 + n}, v{PI}, {srd(r)}, 0 offen') for n, r in enumerate((sW1, sCre, sCim, sW2))]
touch_o = L(f"""v_min_u32 v{PR}, {WS_SIZE >> 21}, v{vL}
    v_lshlrev_b32 v{PR}, 21, v{PR}
    v_add_u32 v{PR}, 0x800, v{PR}
    buffer_load_dword a60, v{PR}, {srd(sWS)}, 0 offen
    buffer_load_dword a61, v{PR}, {srd(sOUT)}, 0 offen""")
if OPT['tlb'] in (1, 3, 4):
    P += touch_w
if OPT['tlb'] == 1:
    P += touch_o
P += rx(2, 2) + [I('s_waitcnt lgkmcnt(0)')]
for s in range(8):
    P.append(Wait(f'x{s}'))
    if s == 0:
        P += stamp('x0')
    for q in range(4):
        P.append(I(f'ds_read_b128 {vr(X + 16 * s + 4 * q, 4)}, v{ASc[q]} offset:{(s & 3) * SLOT}', lds_r=(s & 3) + 1,
                   tok=f'xr{s}' if q == 3 else None))
    P += later[cuts[s]:cuts[s + 1]] if s < 7 else []
    if s >= 5:
        P += rg(s - 5)
    for r in range(16):
        if r == 4 and s < 5:
            P += rx(s + 3, (s + 3) & 3)
        P.append(I(f'v_dot2c_f32_bf16 v{SUM[r & 1]}, s{sONES}, v{X + 16 * s + r}'))
        P.append(I(f'v_dot2c_f32_bf16 v{SQ[r & 1]}, v{X + 16 * s + r}, v{X + 16 * s + r}'))
P += stamp('x7')
P += L(f"""
v_add_f32 v{SUM[0]}, v{SUM[0]}, v{SUM[1]}
v_add_f32 v{SQ[0]}, v{SQ[0]}, v{SQ[1]}
v_mov_b32 v{SUM[1]}, v{SUM[0]}
v_mov_b32 v{SQ[1]}, v{SQ[0]}
v_permlane32_swap_b32 v{SUM[1]}, v{SUM[0]}
v_permlane32_swap_b32 v{SQ[1]}, v{SQ[0]}
v_add_f32 v{SUM[0]}, v{SUM[0]}, v{SUM[1]}
v_add_f32 v{SQ[0]}, v{SQ[0]}, v{SQ[1]}
v_mul_f32 v{SUM[0]}, 0x3b000000, v{SUM[0]}
v_mul_f32 v{SQ[0]}, 0x3b000000, v{SQ[0]}
v_fma_f32 v{SQ[0]}, -v{SUM[0]}, v{SUM[0]}, v{SQ[0]}
v_max_f32 v{SQ[0]}, 0, v{SQ[0]}
v_cvt_pk_bf16_f32 v{t0}, v{SUM[0]}, v{SQ[0]}
v_lshlrev_b32 v{VNM}, 16, v{t0}
v_sub_f32 v{SIM}, 0, v{VNM}
v_sub_f32 v{SIM + 1}, 0, v{VNM}
""")
P += [I(f'v_mov_b64 {vr(SIM + 2 * q, 2)}, {vr(SIM, 2)}') for q in range(1, 8)]

DB = [FACC[0], FACC[1], SRE]
items = []
for q in range(16):
    d = vr(DB[q % 3], 16)
    for h in range(2):
        it = [mfma(d, vr(TT + 4 * h, 4), vr(X + 8 * q + 4 * h, 4), vr(SIM, 16) if h == 0 else d)]
        if q >= 2:
            o = q - 2
            it += [I(f'v_cvt_pk_bf16_f32 v{X + 8 * o + 4 * h + e}, v{DB[o % 3] + 8 * h + 2 * e}, '
                     f'v{DB[o % 3] + 8 * h + 2 * e + 1}') for e in range(4)]
        items.append(it)
fill = L(f"""
v_and_b32 v{t0}, 0xffff0000, v{t0}
v_add_f32 v{t0}, 0x3727c5ac, v{t0}
v_cvt_pk_bf16_f32 v{t0}, v{t0}, v{t0}
v_lshlrev_b32 v{t0}, 16, v{t0}
v_sqrt_f32 v{t0}, v{t0}
v_and_b32 v{t1}, 3, v{vL}
v_cvt_pk_bf16_f32 v{t0}, v{t0}, v{t0}
v_lshlrev_b32 v{t0}, 16, v{t0}
v_rcp_f32 v{VRS}, v{t0}
v_bfe_u32 v{t2}, v{vL}, 3, 2
v_lshl_add_u32 v{t1}, v{t2}, 2, v{t1}
v_bfe_u32 v{t2}, v{vL}, 2, 1
v_lshl_add_u32 v{t1}, v{t2}, 4, v{t1}
s_lshl_b32 s{sT1}, s{sW}, 8
s_add_u32 s{sT1}, s{sT1}, {T_STAT}
v_lshl_add_u32 v{t1}, v{t1}, 2, s{sT1}
v_mul_f32 v{RL2}, {LOG2E:#x}, v{VRS}
ds_write_b32 v{t1}, v{VNM}
""")
fill.append(I(f'ds_write_b32 v{t1}, v{VRS} offset:128', tok='tabw'))
LA_S, LA_F = 3, OPT['laf']


def s_addr(slot):
    return [I(f'v_add_u32 v{ASc[q]}, {slot * SLOT}, v{AS[q]}') for q in range(4)]


def s_read(s, ri):
    return I(f'ds_read_b128 {ar(aS + 8 * (s & 3) + 4 * ri, 4)}, v{ASc[s & 3]} offset:{(s >> 3) * SLOT + (2 * ((s >> 2) & 1) + ri) * 4096}',
             lds_r=G_SLOT[s >> 3])


def f_addr(b):
    if b < 2:
        return [I(f'v_xor_b32 v{FAc}, {64 * b}, v{FA0}')]
    if b == 3:
        return [I(f'v_xor_b32 v{FAc}, 64, v{FAc}')]
    return [I(f'v_xor_b32 v{FAc}, s{sFSEL}, v{FA0}'), I(f'v_add_u32 v{FAc}, {G_SLOT[8] * SLOT}, v{FAc}')]


def f_read(b, s):
    out = f_addr(b) if s == 0 else []
    k = (32 * b + s) & 7
    for u in range(2):
        out.append(I(f'ds_read_b64_tr_b16 {ar(aF + 4 * k + 2 * u, 2)}, v{FAc} '
                     f'offset:{(s >> 3) * SLOT + ((s >> 1) & 3) * 4096 + (s & 1) * 2048 + u * 512}',
                     lds_r=G_SLOT[(4 if b < 2 else 8) + (s >> 3)]))
    return out


pin = pins((1, rg(3)), (9, rg(4)), (17, rg(5)),
           (27, s_addr(G_SLOT[0]) + stamp('c27') + BAR('G0', 'G1', 'tabw', 'zero') + stamp('b0')))
for k in range(LA_S):
    pin[28 + k] = [s_read(k, 0), s_read(k, 1)]
P += weave(items, fill, pin, 0, 20)
for o in (14, 15):
    P += [I(f'v_cvt_pk_bf16_f32 v{X + 8 * o + e}, v{DB[o % 3] + 2 * e}, v{DB[o % 3] + 2 * e + 1}') for e in range(8)]

S_items = []
for s in range(32):
    for ri, acc in ((0, SRE), (1, SIM)):
        it = [mfma(vr(acc, 16), vr(X + 4 * s, 4), ar(aS + 8 * (s & 3) + 4 * ri, 4), vr(acc, 16) if s else '0')]
        n = s + LA_S
        if n < 32:
            it.append(s_read(n, ri))
        S_items.append(it)
for k in range(LA_F):
    S_items[64 - LA_F + k] += f_read(0, k)
F_items = []
for b in range(4):
    its = []
    for s in range(32):
        acc = vr(FACC[b & 1], 16)
        it = [mfma(acc, ar(aF + 4 * ((32 * b + s) & 7), 4), vr(X + 4 * s, 4), acc if s else '0')]
        n = s + LA_F
        if n < 32:
            it += f_read(b, n)
        elif b < 3:
            it += f_read(b + 1, n - 32)
        its.append(it)
    F_items.append(its)

FLA, FLP = VNM, VRS
fill = late + pf + L(f"""
v_lshrrev_b32 v{t0}, 3, v{vL}
v_bfe_u32 v{t1}, v{vL}, 4, 1
v_lshlrev_b32 v{t1}, 2, v{t1}
v_xor_b32 v{t1}, v{t1}, v{vL}
v_and_b32 v{t1}, 7, v{t1}
v_lshlrev_b32 v{t1}, 4, v{t1}
v_lshl_add_u32 v{XG[0]}, v{t0}, 10, v{t1}
v_add_u32 v{XG[1]}, {7 * 1024}, v{XG[0]}
v_add_u32 v{XG[2]}, {14 * 1024}, v{XG[0]}
v_add_u32 v{XG[3]}, {21 * 1024}, v{XG[0]}
v_lshrrev_b32 v{t2}, 5, v{vL}
v_lshlrev_b32 v{t2}, 6, v{t2}
v_add_u32 v{t2}, {TB}, v{t2}
s_lshl_b32 s{sT2}, s{sW}, 8
v_add_u32 v{t1}, s{sT2}, v{t2}""")
fill += [I(f'ds_read_b128 {vr(FACC[1] + 4 * q, 4)}, v{t1} offset:{128 + 16 * q}') for q in range(4)]
xe = L(f"""v_and_b32 v{t0}, 31, v{vL}
    v_lshrrev_b32 v{t1}, 5, v{vL}
    v_lshlrev_b32 v{t1}, 14, v{t1}
    v_lshl_add_u32 v{t1}, v{t0}, 1, v{t1}
    s_lshl_b32 s{sT2}, s{sJJ}, 2
    s_add_u32 s{sT2}, s{sT2}, s{sKQ}
    s_lshl_b32 s{sT2}, s{sT2}, 6
    v_lshl_add_u32 v{t0}, v{t0}, 1, s{sT2}
    s_add_u32 s{sXB}, s{sXB}, s{sT2}
    global_load_short_d16_hi a{aXE + 16}, v{t0}, s[{pDSK}:{pDSK + 1}]""")
for r in range(16):
    if r % 4 == 0:
        xe.append(I(f's_add_u32 s{sT2}, s{sXB}, {1024 * r}'))
    xe.append(I(f'buffer_load_short_d16_hi a{aXE + r}, v{t1}, {srd(sX)}, s{sT2} offen offset:{1024 * (r & 3)}'))
Y = FACC[0]
fill += L(f"""s_lshl_b32 s{sT2}, s{sJ}, 4
    s_add_u32 s{sT2}, s{sT2}, s{sI}
    s_lshl_b32 s{sT2}, s{sT2}, 9
    s_add_u32 s{sT2}, s{sT2}, {WS_AG - 512}
    s_cmp_eq_u32 s{sW}, 3
    s_cselect_b32 s{sT2}, s{sT2}, {OOB:#x}
    v_mov_b32 v{Y + 8}, {OOB:#x}
    v_cmp_gt_u32 vcc, 32, v{vL}
    v_add_u32 v{Y}, s{sT2}, v{VL16}
    v_lshrrev_b32 v{t0}, 5, v{vL}
    v_cndmask_b32 v{Y}, v{Y}, v{Y + 8}, vcc
    s_lshl_b32 s{sT2}, s{sW}, 2
    s_add_u32 s{sT2}, s{sT2}, s{sI}
    s_sub_u32 s{sT2}, s{sT2}, 16
    v_lshl_add_u32 v{t0}, v{t0}, 1, s{sT2}
    s_lshl_b32 s{sT2}, s{sJ}, 13
    s_add_u32 s{sT2}, s{sT2}, {WS_AG}
    v_and_b32 v{Y + 9}, 31, v{vL}
    v_lshl_add_u32 v{t1}, v{Y + 9}, 4, s{sT2}
    v_lshl_add_u32 v{Y + 1}, v{t0}, 9, v{t1}
    v_cmp_gt_i32 vcc, 0, v{t0}
    v_add_u32 v{Y + 2}, 512, v{Y + 1}
    v_mov_b32 v{t1}, s{sTAG}
    v_cndmask_b32 v{Y + 1}, v{Y + 1}, v{Y + 8}, vcc
    v_cndmask_b32 v{Y + 3}, v{t1}, 0, vcc
    v_cmp_gt_i32 vcc, -1, v{t0}
    s_lshl_b32 s{sT2}, s{sJJ}, 9
    s_add_u32 s{sT2}, s{sT2}, s{sFLG}
    v_cndmask_b32 v{Y + 2}, v{Y + 2}, v{Y + 8}, vcc
    v_cndmask_b32 v{Y + 4}, v{t1}, 0, vcc
    v_lshl_add_u32 v{Y + 5}, v{Y + 9}, 2, s{sT2}
    v_and_b32 v{t0}, 3, v{vL}
    v_max_u32 v{t0}, 1, v{t0}
    v_xor_b32 v{t0}, s{sJJ}, v{t0}
    v_lshl_add_u32 v{Y + 6}, v{t0}, 9, s{sFLG}
    s_bitcmp1_b32 s{sJJ}, 0
    s_cselect_b32 s{sT2}, {OOB:#x}, 0
    v_add_u32 v{Y + 7}, s{sT2}, v{VL16}
    s_and_b32 s{sT2}, s{sJJ}, 1
    s_lshl_b32 s{sT2}, s{sT2}, 6""") + [I(f'v_xor_b32 v{AS[q]}, s{sT2}, v{AS[q]}') for q in range(4)]
fill += park(pub=Y, lba0=Y + 1, lba1=Y + 2, lbe0=Y + 3, lbe1=Y + 4, fla=Y + 5, flp=Y + 6, f3o=Y + 7)
if OPT['tlb'] in (2, 3):
    fill = touch_o + fill
if OPT['fw']:
    fill += L(f"""s_lshl_b32 s{sT2}, s{sJJ}, 9
        s_add_u32 s{sT2}, s{sT2}, s{sFLG}
        v_lshlrev_b32 v{t0}, 3, v{vL}
        v_mov_b32 v{TT}, 0
        v_mov_b32 v{TT + 1}, 0
        buffer_store_dwordx2 {vr(TT, 2)}, v{t0}, {srd(sWS)}, s{sT2} offen sc1""")
if OPT['xw'] == 1:
    fill += L(f'v_lshlrev_b32 v{t0}, 2, v{vL}')
    for b in (1, 2, 3):
        fill += L(f"""buffer_store_dwordx4 {vr(TT, 4)}, v{VL16}, {srd(sWS)}, s{sXO[b]} offen sc1
            buffer_store_dwordx4 {vr(TT, 4)}, v{VL16}, {srd(sWS)}, s{sXO[b]} offen offset:1024 sc1
            buffer_store_dword v{vL}, v{t0}, {srd(sWS)}, s{sXO[b]} offen offset:2048 sc1""")
elif OPT['xw']:
    fill += L(f"""v_lshlrev_b32 v{t0}, 7, v{vL}
        v_min_u32 v{t0}, {59 * 128}, v{t0}
        buffer_load_dword a60, v{t0}, {srd(sWS)}, s{sXO[0]} offen {('', '', 'sc1', 'sc1 nt')[OPT['xw']]}""")
if not OPT['xel']:
    fill, xe = fill + xe, []
pin = pins((2, rg(6)), (12, rg(7)), (24, BAR('G2', 'G3')), (26, rg(8)), (38, rg(9)),
           (63 - LA_F, stamp('s59') + BAR('G4', 'G5', 'G6', 'G7') + stamp('b2')))
P += weave(fine('S', S_items, 3), fill, pin, 0, 62 - LA_F)

Q = FACC[1]
V = lambda t: SRE + t if t % 2 == 0 else SIM + t - 1
AGR, AGI = VRS, t3
fill = []
for q in range(8):
    for h in range(2):
        r = 2 * q + h
        fill += L(f"""v_mul_f32 v{TT + 2 * h}, v{SRE + r}, v{CR}
            v_mul_f32 v{TT + 2 * h + 1}, v{SRE + r}, v{NCI}
            v_fmac_f32 v{TT + 2 * h}, v{SIM + r}, v{NCI}
            v_fmac_f32 v{TT + 2 * h + 1}, v{SIM + r}, v{NCR}""")
    for h in range(2):
        r = 2 * q + h
        fill += L(f"""v_mul_f32 v{V(r)}, v{TT + 2 * h}, v{Q + r}
            v_mul_f32 v{V(r) + 1}, v{TT + 2 * h + 1}, v{Q + r}""")
    for r in (2 * q, 2 * q + 1):
        if r:
            pr = V(0) if r == 1 else (t0 if r & 1 else AGR)
            pi_ = V(0) + 1 if r == 1 else (FAd if r & 1 else AGI)
            nr, ni = (AGR, AGI) if r & 1 else (t0, FAd)
            fill += L(f"""v_fma_f32 v{nr}, v{LR}, v{pr}, v{V(r)}
                v_fma_f32 v{ni}, v{LR}, v{pi_}, v{V(r) + 1}
                v_fmac_f32 v{nr}, v{NLI}, v{pi_}
                v_fmac_f32 v{ni}, v{LI}, v{pr}""")
fill = fetch(seg=t1) + fill
fill.append(I(f'ds_write_b64 v{t1}, {vr(AGR, 2)} offset:{7 * 256}', tok='segw'))
pin = pins((1, rg(10)), (14, rg(11)), (31, BAR('segw')))
P += weave(fine('F0', F_items[0], 3), fill, pin, 2, 30)
P += stamp('F0')

E = ASc[0]
R0, R1, T0_, T1_ = QG[0], TT + 12, ASc[0], ASc[2]
m0 = mish(0)
q0 = len(m0) // 4 - 4
fill = [I(f'ds_read2_b64 {vr(R0, 4)}, v{t1} offset0:0 offset1:32'),
        I(f'ds_read2_b64 {vr(R1, 4)}, v{t1} offset0:64 offset1:96')] + m0[:q0]
fill += cmul_add(PR, PI, L16R, L16I, R0, R0 + 1, R0 + 2, R0 + 3)
fill.append(I(f'ds_read2_b64 {vr(R0, 4)}, v{t1} offset0:128 offset1:160'))
fill += cmul_add(T0_, T0_ + 1, L16R, L16I, PR, PI, R1, R1 + 1)
fill += cmul_add(PR, PI, L16R, L16I, T0_, T0_ + 1, R1 + 2, R1 + 3)
fill.append(I(f'ds_read_b64 {vr(R1, 2)}, v{t1} offset:{6 * 256}'))
fill += m0[q0:2 * q0]
fill += cmul_add(T0_, T0_ + 1, L16R, L16I, PR, PI, R0, R0 + 1)
fill += cmul_add(T1_, T1_ + 1, L16R, L16I, T0_, T0_ + 1, R0 + 2, R0 + 3)
fill += cmul_add(PR, PI, L16R, L16I, T1_, T1_ + 1, R1, R1 + 1)
fill += cmul_add(E, E + 2, L16R, L16I, PR, PI, AGR, AGI)
fill += fetch(pub=t1) + L(f"""v_mov_b32 v{E + 1}, s{sTAG}
    v_mov_b32 v{E + 3}, s{sTAG}
    buffer_store_dwordx4 {vr(E, 4)}, v{t1}, {srd(sWS)}, 0 offen sc1""")
fill += m0[2 * q0:]
pin = pins((4, rw('WA0')), (31 - LA_F, BAR('G8', 'G9', 'G10', 'G11')))
P += weave(fine('F0', F_items[1], 3), fill, pin, 1, 31)
P += stamp('F1')

LBA = [CR, NCI]
LBE = [NCR, L16R]
LBD = [ASc[0], QG[0]]
FLV = L16I
lb_loads = '\n'.join(f'buffer_load_dwordx4 {vr(LBD[e], 4)}, v{LBA[e]}, {srd(sWS)}, 0 offen sc1' for e in range(2))
lb_setup = fetch(lba0=LBA[0], lba1=LBA[1], lbe0=LBE[0], lbe1=LBE[1])


def flag_store(stage, toks):
    out = [Wait(*toks), I(f'buffer_store_dword v{FLV}, v{FLA}, {srd(sWS)}, 0 offen offset:{128 * stage} sc1')]
    if OPT['ppf']:
        so = (sFST[0], sSST, sFST[2])[stage]
        vpf = L128R if stage else t3
        out = [I(f'v_lshlrev_b32 v{vpf}, {6 if stage < 2 else "s%d" % sSEL[1]}, v{vL}')] + out
        out.append(I(f'buffer_load_dword a{60 + (stage & 1)}, v{vpf}, {srd(sWS)}, s{so} offen sc1'))
    return out


def flag_load(stage):
    return f'buffer_load_dword v{t3}, v{FLP}, {srd(sWS)}, 0 offen offset:{128 * stage} sc1'


flag_check = f'v_cmp_ne_u32 vcc, s{sTAG}, v{t3}'
lb_check = f"""v_bitop3_b32 v{t0}, v{LBD[0] + 1}, v{LBD[0] + 3}, v{LBE[0]} bitop3:0x7e
    v_bitop3_b32 v{t1}, v{LBD[1] + 1}, v{LBD[1] + 3}, v{LBE[1]} bitop3:0x7e
    v_or_b32 v{t0}, v{t0}, v{t1}
    v_cmp_ne_u32 vcc, 0, v{t0}"""
lb_part = stamp('lb0') + poll('lb', lb_loads, lb_check) + stamp('lb1')
lb_part += cmul_add(LBD[0] + 1, LBD[0] + 3, L128R, L128I, LBD[0], LBD[0] + 2, LBD[1], LBD[1] + 2)
lb_part += cmul_add(LBD[1], LBD[1] + 1, WR, WI, LBD[0] + 1, LBD[0] + 3)
lb_part += fetch(lbw=t1)
lb_part.append(I(f'ds_write_b64 v{t1}, {vr(LBD[1], 2)}', tok='lbw'))
HW, HR, HB = ASc[0], ASc[1], FACC[1]
HW2, HR2 = WR, WI
tail_addr = fetch(lbr=ASc[3], fla=FLA, flp=FLP) + L(f'v_mov_b32 v{FLV}, s{sTAG}\ns_mov_b32 s{sKC[0]}, {M2LN2:#x}')
lb_reads = [I(f'ds_read2_b64 {vr(HB + 4 * q, 4)}, v{ASc[3]} offset0:{64 * q} offset1:{64 * q + 32}') for q in range(4)]
scan = [I(f'v_pk_add_f32 {vr(HB + a, 2)}, {vr(HB + a, 2)}, {vr(HB + b_, 2)}')
        for a, b_ in ((0, 2), (4, 6), (8, 10), (12, 14), (0, 4), (8, 12), (0, 8))]
scan += cmul_add(L128R, L128I, LSR, LSI, HB, HB + 1, PR, PI)
pack = lambda q: L(f"""v_cvt_pk_bf16_f32 v{SRE + q}, v{V(2 * q)}, v{V(2 * q + 1)}
    v_cvt_pk_bf16_f32 v{SIM + q}, v{V(2 * q) + 1}, v{V(2 * q + 1) + 1}""")
for r in range(16):
    prev = vr(L128R if r == 0 else V(r - 1), 2)
    scan += L(f"""v_pk_fma_f32 {vr(V(r), 2)}, {prev}, {vr(LR, 2)}, {vr(V(r), 2)} op_sel_hi:[1,0,1]
        v_pk_fma_f32 {vr(V(r), 2)}, {prev}, {vr(NLI, 2)}, {vr(V(r), 2)} op_sel:[1,0,0] op_sel_hi:[0,1,1]""")
    if r >= 2 and r % 2 == 0 and OPT['pk_in']:
        scan += pack(r // 2 - 1)
transp = fetch(hw=HW, hw2=HW2, hr=HR, hr2=HR2) + sum((pack(q) for q in range(7 if OPT['pk_in'] else 0, 8)), [])
for ri in range(2):
    transp += [I(f'ds_write_b128 v{(HW, HW2)[h]}, {vr((SRE, SIM)[ri] + 4 * h, 4)}') for h in range(2)]
    for fr in range(2):
        for u in range(2):
            transp.append(I(f'ds_read_b64_tr_b16 {ar(aOS + 8 * ri + 4 * fr + 2 * u, 2)}, v{(HR, HR2)[u]} offset:{1024 * fr + 256 * u}'))
stH = [I(f'buffer_store_dwordx4 {ar(aOS + 4 * q, 4)}, v{VL16}, {srd(sWS)}, s{sSST} offen offset:{1024 * q} sc1',
         tok='stH' if q == 3 else None) for q in range(4)]
m1 = mish(1)
per = sum(i.slots() for i in lb_setup + m1 + lb_part + tail_addr) / 27
c1 = next(n for n in range(len(m1)) if sum(i.slots() for i in lb_setup + m1[:n]) >= per * (OPT['lbl'] - 2))
fill = lb_setup + m1[:c1] + L(lb_loads) + m1[c1:] + lb_part + tail_addr
pin = pins((0, rw('CR0')), (8, rw('CI0')), (18, rw('WA1')), (29, BAR('lbw') + lb_reads))
P += weave(fine('F2', F_items[2], 2), fill, pin, 2, 28)
P += stamp('F2')
m2 = mish_pk(2, VL16, range(1))
burst = m2[:2] + merge(scan, m2[2:-5])
if OPT['fas'] < 0:
    burst = burst[:OPT['fas']] + flag_store(0, ['stF0', 'stF1']) + burst[OPT['fas']:]
if OPT['fine'] == 'T':
    for n in range(len(burst) - 12, 0, -12):
        burst = burst[:n] + stamp(f'g{n}') + burst[n:]
P += burst
P += stamp('scan')


FP0, FPc = [CR, NCI], [QG[2], QG[3]]
PA = OPT['pa']
p3_setup = fetch(fp0=FP0[0], fp1=FP0[1], f3o=ASc[2])
mq = mish(2, VL16, (2, 3))
hs = len(mq) // 10
fill = transp + m2[-5:]
for q in range(4):
    fill += mq[q * hs:(q + 1) * hs] + [stH[q]]
fill += mq[4 * hs:] + p3_setup

steps = ([('WA0', x, 'own') for x in range(4)]
         + [(n, x, 'own') for n in ('CR0', 'CI0') for x in range(2)]
         + [(f'WA{e}', x, 'A') for e in (1, 2, 3) for x in range(4)]
         + [(n, x, 'H') for n in ('CR0', 'CI0') for x in (2, 3)]
         + [(n, x, 'H') for n in ('CR1', 'CI1') for x in range(4)]
         + [('WB0', x, 'own') for x in range(4)]
         + [(f'WB{e}', x, 'B') for e in (1, 2) for x in range(4)])
deferred = [k for k, st in enumerate(steps) if st[2] != 'own']
A_REGS = ([192 + 4 * n for n in range(16)] + [SRE + 4 * n for n in range(8)]
          + [FACC[0] + 4 * n for n in range(4)] + [TT + 4 * n for n in range(4)])
ACC = [128, 144, 160, 176]
cur_addr = {}


def a_frag(k):
    name, x, src = steps[k]
    if src != 'own':
        return vr(A_REGS[deferred.index(k)], 4)
    if name == 'WA0':
        return ar(aOF + 4 * x, 4)
    if name == 'WB0':
        return ar(aOF + 16 + 4 * x, 4) if x < 2 else vr(FACC[1] + 4 * (x - 2), 4)
    return ar(aOS + 8 * (name[1] == 'I') + 4 * x, 4)


def a_load(k):
    name, x, src = steps[k]
    e = int(name[2])
    if name[0] == 'C':
        code = f's_xor_b32 s{sT1}, s{sJJ}, {2 * e + (x >> 1)}\ns_lshl_b32 s{sT1}, s{sT1}, 12\n' \
               f's_add_u32 s{sT1}, s{sT1}, {28 * 1024}\ns_add_u32 s{sT1}, s{sT1}, s{sAS}'
        off = 2048 * (name[1] == 'I') + 1024 * (x & 1)
        fresh = x & 1 == 0
    else:
        if name[1] == 'A':
            code = f's_xor_b32 s{sT1}, s{sJJ}, {e}\ns_lshl_b32 s{sT1}, s{sT1}, 13\ns_add_u32 s{sT1}, s{sT1}, s{sAS}'
        else:
            code = f's_lshl_b32 s{sT1}, s{sPB[e]}, 12\ns_add_u32 s{sT1}, s{sT1}, s{sAS}'
        off = 1024 * x
        fresh = x == 0
    return (L(code) if fresh else []) + \
        [I(f'buffer_load_dwordx4 {a_frag(k)}, v{VL16}, {srd(sWS)}, s{sT1} offen offset:{off} sc1')]


pin = pins((PA, rw('WA2')), (PA + 8, BAR()), (PA + 9, rw('WA3')), (PA + 17, BAR()), (PA + 18, rw('CR1')),
           (OPT['fal'], L(flag_load(0))), (30, BAR('WA0', 'CR0', 'CI0', 'WA1')))
if OPT['fhs'] >= 0:
    pin[OPT['fhs']] = flag_store(1, ['stH'])
if OPT['fas'] >= 0:
    pin[OPT['fas']] = flag_store(0, ['stF0', 'stF1'])
P += weave(fine('F3', F_items[3], 2), fill, pin, 1, 29)
P += stamp('F3')

m3 = mish_pk(3, ASc[2])
st0 = next(n for n, i_ in enumerate(m3) if i_.kind == 'vm')
early = sum((a_load(k) for k in range(8, 8 + OPT['nea'])), [])
fac = st0 - OPT['fac']
TAIL0 = len(P) + 4
P += m3[:fac] + (flag_store(1, ['stH']) if OPT['fhs'] < 0 else [])
P += stamp('fa0') + poll('fa', flag_load(0), flag_check) + stamp('fa1')
tl = merge(m3[fac:st0], early) + (L(flag_load(1)) if OPT['fhl'] < 0 else []) + m3[st0:]
if OPT['fine'] == 'T':
    for n in range(len(tl) - 12, 0, -12):
        tl = tl[:n] + stamp(f'gt{n}') + tl[n:]
P += tl
P += stamp('tail')

XE, ME = 192, LSR
ep_setup = L(f"""v_lshrrev_b32 v{t1}, 5, v{vL}
    s_lshl_b32 s{sT2}, s{sW}, 8
    s_add_u32 s{sT2}, s{sT2}, {T_STAT}
    v_lshl_add_u32 v{VLN2}, v{t1}, 6, s{sT2}
    v_lshlrev_b32 v{FA0}, 15, v{t1}
    v_and_b32 v{t0}, 31, v{vL}
    v_lshl_add_u32 v{FA0}, v{t0}, 2, v{FA0}""")
VL4 = ASc[0]
ep_setup = L(f'v_lshlrev_b32 v{VL4}, 2, v{vL}') + ep_setup
base_calc = [I(f'v_accvgpr_read_b32 v{RL2}, a{aXE + 16}')]
for qt in range(4):
    base_calc += [I(f'ds_read_b128 {vr(ME, 4)}, v{VLN2} offset:{16 * qt}', hoist=True),
                  I(f'ds_read_b128 {vr(ME + 4, 4)}, v{VLN2} offset:{128 + 16 * qt}', hoist=True)]
    rs = range(4)
    base_calc += [I(f'v_accvgpr_read_b32 v{XE + 4 * qt + r}, a{aXE + 4 * qt + r}') for r in rs]
    base_calc += [I(f'v_sub_f32 v{ME + r}, v{XE + 4 * qt + r}, v{ME + r}') for r in rs]
    base_calc += [I(f'v_mul_f32 v{ME + r}, v{ME + r}, v{ME + 4 + r}') for r in rs]
    base_calc += [I(f'v_fmac_f32 v{XE + 4 * qt + r}, v{ME + r}, v{RL2}') for r in rs]

def checksum(dst, src, last):
    return [f'v_bitop3_b32 v{dst}, v{src}, v{src + 1}, {last} bitop3:0x96'] + \
           [f'v_bitop3_b32 v{dst}, v{src + e}, v{src + e + 1}, v{dst} bitop3:0x96' for e in (2, 4, 6)]


def send(b):
    A = ACC[b]
    out = []
    for q in range(2):
        out += [I(f'v_cvt_pk_bf16_f32 v{A + e}, v{A + 2 * e}, v{A + 2 * e + 1}') for e in range(4 * q, 4 * q + 4)]
        out.append(I(f'buffer_store_dwordx4 {vr(A + 4 * q, 4)}, v{VL16}, {srd(sWS)}, s{sXO[b]} offen '
                     f'offset:{1024 * q} sc1'))
    out += [I(c) for c in checksum(A + 8, A, f's{sTAG}')]
    out.append(I(f'buffer_store_dword v{A + 8}, v{VL4}, {srd(sWS)}, s{sXO[b]} offen offset:2048 sc1'))
    return out


def w_read1(k, b, dst):
    name, x, src = steps[k]
    slot = W_SLOT[name]
    if name[0] == 'C':
        return [I(f'v_add_u32 v{FAc}, {slot * SLOT}, v{AS[x]}'),
                I(f'ds_read_b128 {ar(dst, 4)}, v{FAc} offset:{4096 * b}', lds_r=slot)]
    key = FPc[b & 1]
    out = []
    if cur_addr.get(key) != slot:
        cur_addr[key] = slot
        out.append(I(f'v_add_u32 v{key}, {slot * SLOT}, v{FP0[b & 1]}'))
    return out + [I(f'ds_read_b64_tr_b16 {ar(dst + 2 * u, 2)}, v{key} '
                    f'offset:{8192 * (x >> 1) + 4096 * (b >> 1) + 2048 * (x & 1) + 1024 * u}', lds_r=slot) for u in range(2)]


RX = {1: ACC[1], 2: ACC[2], 3: ACC[3]}


def recv(b):
    so = sXO[0] if b == 1 else sSEL[b]
    rl = [f'buffer_load_dwordx4 {vr(RX[b] + 4 * q, 4)}, v{VL16}, {srd(sWS)}, s{so} offen offset:{1024 * q} sc1' for q in range(2)]
    rl.append(f'buffer_load_dword v{RX[b] + 8}, v{VL4}, {srd(sWS)}, s{so} offen offset:2048 sc1')
    return '\n'.join(rl)


pre = L(f"""s_lshl_b32 s{sXB}, s{sXB}, 1
    s_mov_b32 s{sKC[0]}, 0x00003f80
    s_mov_b32 s{sKC[1]}, 0x3f800000""")
E3 = OPT['e3']
seq = [(k, b) for k in range(8) for b in (1, 2, 3, 0)] + [(k, b) for k in range(8, E3) for b in (1, 2, 3)]
seq += [(k, b) for k in range(E3, 36) for b in (1, 2)]
seq += [(k, b) for b in (1, 2) for k in range(36, 44)]
seq += [(k, 3) for k in range(E3, 44)] + [(k, 0) for k in range(8, 44)]
at = {kb: n for n, kb in enumerate(seq)}
done_at = {b: at[43, b] for b in (1, 2, 3)}
KEEP = {(k, 0): aWO + 4 * (k - 8) for k in range(8, 12)}
reads = sorted((kb for kb in seq), key=lambda kb: at[kb[0], 3] + 0.5 if kb in KEEP else at[kb])
RING = 12
where, nring = {}, 0
for kb in reads:
    if kb in KEEP:
        where[kb] = KEEP[kb]
    else:
        where[kb] = aP + 4 * (nring % RING)
        nring += 1
LA_J = OPT['laj']
items = []
rd = 0
seen = set()
for n, (k, b) in enumerate(seq):
    pre_rd = []
    while rd < len(reads) and (at[reads[rd][0], 3] if reads[rd] in KEEP else at[reads[rd]]) <= n + LA_J:
        pre_rd += w_read1(*reads[rd], where[reads[rd]])
        rd += 1
    m = mfma(vr(ACC[b], 16), a_frag(k), ar(where[k, b], 4), vr(ACC[b], 16) if b in seen else '0')
    seen.add(b)
    if n == 0:
        P = P[:TAIL0] + pre_rd + P[TAIL0:]
        pre_rd = []
    items.append([m] + pre_rd)
pin = {n: [] for n in range(len(items))}
pin[18] += BAR('WA2')
pin[at[16, 1] - LA_J - 1] += [Wait('WA3', 'CR1', 'CI1'), I('s_barrier')]
pin[at[32, 1] - LA_J - 1] += [Wait('WB0', 'WB1', 'WB2'), I('s_barrier')]
if OPT['fhl'] >= 0:
    pin[OPT['fhl']] += L(flag_load(1))
pin[OPT['fhc']] += stamp('fh0') + poll('fh', flag_load(1), flag_check) + stamp('fh1')
pin[OPT['fls']] += flag_store(2, ['stF3', 'stF2'])
pin[OPT['fll']] += L(flag_load(2))
pin[OPT['flc']] += stamp('fl0') + poll('fl', flag_load(2), flag_check) + stamp('fl1')
pin[at[36, 1] - 1] += stamp('k36')
queue = [(0, a_load(k)) for k in range(8 + OPT['nea'], 16)] + [(0, rw('CI1'))]
queue += [(0, a_load(k)) for k in range(max(16, 8 + OPT['nea']), 20)]
if OPT['qord'] == 0:
    queue += [(19, rw('WB0'))] + [(OPT['fhc'], a_load(k)) for k in range(20, 32)] + [(19, rw('WB1'))]
elif OPT['qord'] == 1:
    queue += [(19, rw('WB0')), (19, rw('WB1'))] + [(OPT['fhc'], a_load(k)) for k in range(20, 32)]
else:
    queue += [(OPT['fhc'], a_load(k)) for k in range(20, 24)] + [(19, rw('WB0')), (19, rw('WB1'))]
    queue += [(0, a_load(k)) for k in range(24, 32)]
queue += [(at[16, 1] - LA_J, rw('WB2'))]
queue += [(OPT['flc'], a_load(k)) for k in range(36, 44)]
n = 0.0
for first_gap, ins in queue:
    n = max(n, first_gap)
    pend = []
    for i_ in ins:
        pend.append(i_)
        if i_.kind == 'vm':
            pin[int(n)] += pend
            pend = []
            n += OPT['pace'] / 10
for b in (1, 2, 3):
    sd = send(b)
    for q in range(4):
        pin[done_at[b] + 3 + q] += sd[q * len(sd) // 4:(q + 1) * len(sd) // 4]
    pin[done_at[min(b + 1, 3) if b < 3 else 3] + OPT[f'r{b}'] if b != 2 else done_at[2] + OPT['r2']] += L(recv(b))
pin[done_at[2] + 6] += stamp('s12')
pin[done_at[3] + 6] += stamp('sent')
items = fine('P3', items[:112], 4) + items[112:]
LEV[0] = OPT['lev3']
sub = lambda lo, hi: {n - lo: pin[n] for n in range(lo, hi)}
c1, c2 = at[32, 1], at[11, 0] + 1
P += weave(items[:c1], [], sub(0, c1))
cx = done_at[2] + 8
P += weave(items[c1:cx], ep_setup, sub(c1, cx), 0, 4)
P += weave(items[cx:c2], xe + pre, sub(cx, c2), 0, 18)
P += weave(items[c2:], base_calc, sub(c2, len(items)), 3, 26)
P += stamp('own')
A0 = ACC[0]
for q in range(8):
    P.append(I(f'v_pk_add_f32 {vr(A0 + 2 * q, 2)}, {vr(A0 + 2 * q, 2)}, {vr(XE + 2 * q, 2)}'))
for b in (1, 2, 3):
    chk = checksum(RX[b] + 9, RX[b], f'v{RX[b] + 8}') + [f'v_cmp_ne_u32 vcc, s{sTAG}, v{RX[b] + 9}']
    P += poll(f'rx{b}', recv(b), '\n'.join(chk))
P += stamp('rx')
for q in range(8):
    for b in (1, 2, 3):
        P += [I(f'v_dot2c_f32_bf16 v{A0 + 2 * q + h}, s{sKC[h]}, v{RX[b] + q}') for h in range(2)]
    if q:
        P += sts
    sts = [I(f's_add_u32 s{sBB}, s{sXB}, {4096 * q}')]
    sts += [I(f'buffer_store_dword v{A0 + 2 * q + h}, v{FA0}, {srd(sOUT)}, s{sBB} offen offset:{2048 * h} '
              f'{OPT["out_flags"]}') for h in range(2)]
P += L(f"""s_lshl_b32 s{sT2}, s{sJ}, 2
    s_add_u32 s{sT2}, s{sT2}, s{sW}
    s_xor_b32 s{sT1}, s{sI}, 15
    s_or_b32 s{sT2}, s{sT2}, s{sT1}
    s_cmp_eq_u32 s{sT2}, 0
    s_cselect_b32 s{sT2}, {WS_EP}, {OOB:#x}
    v_mov_b32 v{t0}, s{sE2}
    v_mov_b32 v{t1}, s{sT2}""") + sts + L(f'buffer_store_dword v{t0}, v{t1}, {srd(sWS)}, 0 offen')
if OPT['diag']:
    P += stamp('end') + L("""s_memrealtime s[6:7]
        s_waitcnt lgkmcnt(0)
        s_sub_u32 s4, s4, s23
        s_lshl_b32 s4, s4, 2
        s_min_u32 s4, s4, 20000
        L_diag:
        s_memrealtime s[0:1]
        s_waitcnt lgkmcnt(0)
        s_sub_u32 s0, s0, s6
        s_cmp_lt_u32 s0, s4
        s_cbranch_scc1 L_diag""")
if PROF:
    P += stamp('end')
    P += L(f"""s_waitcnt vmcnt(0)
        s_memrealtime s[0:1]
        s_lshl_b32 s{sT2}, s2, 2
        s_add_u32 s{sT2}, s{sT2}, s{sW}
        s_lshl_b32 s{sT2}, s{sT2}, 7
        s_add_u32 s{sT2}, s{sT2}, {WS_PROF}
        v_mov_b32 v{t1}, s{sT2}
        s_waitcnt lgkmcnt(0)
        v_mov_b32 v{t0}, s0
        buffer_store_dword v{t0}, v{t1}, {srd(sWS)}, 0 offen offset:124
        v_mov_b32 v{t2}, s23
        buffer_store_dword v{t2}, v{t1}, {srd(sWS)}, 0 offen offset:112
        buffer_store_dword a62, v{t1}, {srd(sWS)}, 0 offen offset:116
        buffer_store_dword a63, v{t1}, {srd(sWS)}, 0 offen offset:120""")
    P += stamp('DUMP')
P += [I('L_end:'), I('s_endpgm')]

P = resolve_stamps(P)
if OPT['split']:
    P = split_ds_pairs(P)
if OPT['hoist']:
    P = hoist_reads(P, OPT['hoist'])
body = pad_hazards(insert_waits(P, OPT['age']))
tail = []
for name, loads, check in retry_blocks:
    blk = [I(f'L_retry_{name}:'), I(f's_mov_b32 s3, {OPT["spin"]}'), I(f'L_spin_{name}:')]
    if PROF:
        blk.append(I(f's_add_u32 s23, s23, {1 << (4 * retry_blocks.index((name, loads, check)))}'))
    blk += L(loads) + [I('s_waitcnt vmcnt(0)')] + L(check)
    blk += L(f'''s_cbranch_vccz L_back_{name}
        s_sub_u32 s3, s3, 1
        s_cmp_lg_u32 s3, 0
        s_cbranch_scc1 L_spin_{name}
        s_branch L_back_{name}''')
    tail += pad_hazards(blk)

hdr = open(os.path.join(os.path.dirname(os.path.abspath(__file__)), 'header.txt')).read()
text = hdr + f'''; @launch grid=(256,1,1) block=(256,1,1) lds=163840
.amdgcn_target "amdgcn-amd-amdhsa--gfx950"
.text
.globl {KN}
.p2align 8
.type {KN},@function
{KN}:
{render(body)}
{render(tail)}
L_code_end:
    s_endpgm
.section .rodata,"a"
.p2align 6
.amdhsa_kernel {KN}
  .amdhsa_next_free_vgpr 512
  .amdhsa_next_free_sgpr 102
  .amdhsa_accum_offset 256
  .amdhsa_group_segment_fixed_size 0
  .amdhsa_kernarg_size 128
  .amdhsa_user_sgpr_count 2
  .amdhsa_user_sgpr_kernarg_segment_ptr 1
  .amdhsa_system_sgpr_workgroup_id_x 1
.end_amdhsa_kernel
'''
open(sys.argv[1], 'w').write(text)
if PROF:
    open(sys.argv[1][:-2] + '.stamps', 'w').write(' '.join(stamp_names))
from collections import Counter
cnt = Counter(i.kind for i in body)
print(dict(cnt), 'nops', sum(1 for i in body if i.mn == 's_nop'))
```

```python
import re

TRANS = ('v_exp_f32', 'v_log_f32', 'v_rcp_f32', 'v_rsq_f32', 'v_sqrt_f32', 'v_sin_f32', 'v_cos_f32')
RMW = ('v_fmac_f32', 'v_dot2c_f32_bf16', 'v_pk_fmac')
NO_DST_S = ('s_cmp', 's_waitcnt', 's_barrier', 's_cbranch', 's_branch', 's_nop', 's_sleep', 's_setprio',
            's_endpgm', 's_bitcmp')

_reg = re.compile(r'^(-|\|)?(abs\()?([vas])(\d+)\)?\|?$')
_rng = re.compile(r'^(-)?([vas])\[(\d+):(\d+)\]$')


def regs_of(op):
    op = op.strip()
    m = _rng.match(op)
    if m:
        return {(m.group(2), i) for i in range(int(m.group(3)), int(m.group(4)) + 1)}
    m = _reg.match(op)
    if m:
        return {(m.group(3), int(m.group(4)))}
    if op == 'vcc':
        return {('s', 'vcc')}
    if op == 'm0':
        return {('s', 'm0')}
    if op == 'exec':
        return {('s', 'exec')}
    return set()


class I:
    def __init__(self, text, tok=None, lds_r=None, lds_w=None, need=None, note=None, fills=None, hoist=False, sync=None):
        self.text = text
        self.tok = tok
        self.lds_r = lds_r
        self.lds_w = lds_w
        self.need = need or []
        self.note = note
        self.sync = sync
        self.hoist = hoist
        self.fills = fills
        self.r = set()
        self.w = set()
        self.kind = 'other'
        self.srcC = set()
        self.srcAB = set()
        self.parse()

    def parse(self):
        t = self.text.strip()
        if t.endswith(':') or t.startswith('.') or t.startswith(';') or not t:
            self.kind = 'label'
            self.mn = ''
            return
        parts = t.split(None, 1)
        mn = parts[0]
        self.mn = mn
        rest = parts[1] if len(parts) > 1 else ''
        ops = [o.strip() for o in rest.split(',')] if rest else []
        if ops:
            last = ops[-1].split()
            ops[-1] = last[0] if last else ''
            mods = last[1:]
        else:
            mods = []
        R = [regs_of(o) for o in ops]
        allr = lambda lst: set().union(*lst) if lst else set()
        if mn.startswith('v_mfma'):
            self.kind = 'mfma'
            self.w = R[0]
            self.srcAB = R[1] | R[2]
            self.srcC = R[3]
            self.r = self.srcAB | self.srcC
            self.passes = 8 if '32x32x16' in mn else (4 if '16x16x32' in mn else 2)
        elif mn.startswith('v_'):
            base = re.sub(r'_(e32|e64|sdwa|dpp)$', '', mn)
            self.kind = 'trans' if base in TRANS else 'valu'
            self.w = R[0]
            self.r = allr(R[1:])
            if base in RMW or base.startswith('v_permlane'):
                self.r |= R[0]
            if base.startswith('v_permlane'):
                self.w |= R[1]
            if base.startswith('v_cndmask') and len(ops) == 3:
                self.r |= {('s', 'vcc')}
            if base.startswith(('v_add_co', 'v_sub_co', 'v_addc_co')):
                self.w |= R[1]
            self.dot = base.startswith('v_dot')
            self.base = base
        elif mn.startswith('ds_read'):
            self.kind = 'ds'
            self.w = R[0]
            self.r = allr(R[1:])
            if 'd16' in mn:
                self.r |= R[0]
        elif mn.startswith('ds_'):
            self.kind = 'ds'
            self.r = allr(R)
        elif mn.startswith('buffer_load') or mn.startswith('global_load'):
            self.kind = 'vm'
            if 'lds' in mods:
                self.r = allr(R) | {('s', 'm0')}
                self.dma = True
            else:
                self.w = R[0]
                self.r = allr(R[1:])
                if 'd16' in mn:
                    self.r |= R[0]
        elif mn.startswith('buffer_store') or mn.startswith('global_store'):
            self.kind = 'vm'
            self.r = allr(R)
            self.store = True
            data = R[0] if mn.startswith('buffer') else R[1]
            self.wide = data if ('x3' in mn or 'x4' in mn) else set()
        elif mn.startswith(('s_load', 's_memtime', 's_memrealtime')):
            self.kind = 'smem'
            self.w = R[0]
            self.r = allr(R[1:])
        elif mn == 's_barrier':
            self.kind = 'barrier'
        elif mn == 's_waitcnt':
            self.kind = 'wait'
        elif mn.startswith('s_'):
            self.kind = 'salu'
            if mn.startswith(NO_DST_S):
                self.r = allr(R)
            else:
                self.w = R[0]
                self.r = allr(R[1:])
            if mn.startswith(('s_addk', 's_mulk', 's_bitset')):
                self.r |= R[0]
        else:
            raise ValueError('cannot classify: ' + t)

    def slots(self):
        if self.kind == 'label':
            return 0
        if self.kind == 'trans':
            return 2
        if self.kind == 'mfma':
            return 2
        return 1


class Wait(I):
    def __init__(self, *toks):
        I.__init__(self, '; wait ' + ' '.join(toks))
        self.need = list(toks)
        self.kind = 'pseudo'


def insert_waits(prog, ds_age=10):
    out = []
    vm, lg = [], []
    done_ds = {}
    last_read_retired = {}
    pending_read = {}
    last_barrier = -1
    arrived = -1
    last_read_issue = {}
    split_ok = -1
    pos = 0
    fill_state = {}

    def retire(q, n):
        while len(q) > n:
            ins, _ = q.pop(0)
            if ins.fills is not None:
                fill_state[ins.fills[0]] = [ins.fills[1], len(out)]
            if ins.lds_r is not None:
                pending_read[ins.lds_r] -= 1
                if pending_read[ins.lds_r] == 0:
                    last_read_retired[ins.lds_r] = len(out)

    for ins in prog:
        if ins.text.startswith(';drain'):
            retire(vm, 0)
            retire(lg, 0)
            continue
        touched = ins.r | ins.w
        nv = nl = None
        for q, which in ((vm, 'v'), (lg, 'l')):
            need = None
            for k, (o, _) in enumerate(q):
                hit = bool(o.w & touched) or (o.tok is not None and o.tok in ins.need)
                if hit:
                    need = len(q) - 1 - k
            if need is not None:
                if which == 'l':
                    k = len(q) - 1 - need
                    while k + 1 < len(q) and pos - q[k + 1][1] >= ds_age:
                        k += 1
                    nl = min(len(q) - 1 - k, 15)
                else:
                    nv = min(need, 63)
        if ins.kind == 'wait':
            m = re.search(r'vmcnt\((\d+)\)', ins.text)
            if m:
                retire(vm, int(m.group(1)))
            m = re.search(r'lgkmcnt\((\d+)\)', ins.text)
            if m:
                retire(lg, int(m.group(1)))
        if nv is not None or nl is not None:
            txt = 's_waitcnt'
            if nv is not None:
                txt += f' vmcnt({nv})'
                retire(vm, nv)
            if nl is not None:
                txt += f' lgkmcnt({nl})'
                retire(lg, nl)
            out.append(I(txt))
            pos += 1
        if ins.kind == 'pseudo':
            continue
        if ins.lds_w is not None:
            slot, shared_before = ins.lds_w
            assert pending_read.get(slot, 0) == 0, f'LDS slot {slot} overwritten while read outstanding: {ins.text}'
            if shared_before and slot in last_read_retired:
                assert last_barrier >= last_read_retired[slot] or split_ok >= last_read_issue[slot], \
                    f'LDS slot {slot} reused without a barrier after its last read: {ins.text} ({ins.note})'
        if ins.lds_w is not None:
            fill_state[ins.lds_w[0]] = None
        if ins.lds_r is not None:
            st = fill_state.get(ins.lds_r)
            assert st is not None, f'LDS slot {ins.lds_r} read before its fill was waited for: {ins.text}'
            assert not st[0] or max(last_barrier, split_ok) >= st[1], f'shared slot {ins.lds_r} read without barrier: {ins.text}'
        if ins.kind == 'barrier':
            last_barrier = len(out)
        if ins.sync == 'arrive':
            arrived = len(out)
        if ins.sync == 'done':
            split_ok = arrived
        if ins.lds_r is not None:
            last_read_issue[ins.lds_r] = len(out)
        out.append(ins)
        pos += ins.slots()
        if ins.kind == 'vm':
            vm.append((ins, pos))
            assert len(vm) <= 63, 'vmcnt overflow'
        elif ins.kind == 'ds':
            lg.append((ins, pos))
            if ins.lds_r is not None:
                pending_read[ins.lds_r] = pending_read.get(ins.lds_r, 0) + 1
    return out


def states(ins):
    if ins.kind in ('label', 'pseudo'):
        return 0
    if ins.mn == 's_nop':
        return int(ins.text.split()[1]) + 1
    return 1


def required_gap(p, c):
    vgpr = lambda s: {x for x in s if x[0] in 'va'}
    sgpr = lambda s: {x for x in s if x[0] == 's'}
    g = 0
    pv = p.kind in ('valu', 'trans')
    cv = c.kind in ('valu', 'trans')
    if pv:
        wv = vgpr(p.w)
        ws = sgpr(p.w)
        if c.kind == 'mfma' and wv & c.r:
            g = max(g, 2)
        if p.kind == 'trans' and cv and c.kind != 'trans' and wv & c.r:
            g = max(g, 1)
        if p.kind == 'trans' and c.kind == 'trans' and wv & c.r:
            g = max(g, 1)
        if cv and c.base.startswith('v_permlane') and wv & c.r:
            g = max(g, 2)
        if cv and c.base.startswith(('v_readfirstlane', 'v_readlane')) and wv & c.r:
            g = max(g, 1)
        if cv and '_dpp' in c.mn and wv & c.r:
            g = max(g, 2)
        if ws & c.r:
            if cv:
                g = max(g, 2)
            elif c.kind == 'vm':
                g = max(g, 5)
            elif c.kind == 'salu':
                g = max(g, 1)
        if getattr(p, 'dot', False) and wv & (c.r | c.w) and c.kind != 'label':
            same = cv and c.base == p.base and not (wv & (c.r - c.w))
            if not same:
                g = max(g, 3)
    if p.kind == 'mfma':
        big = {2: 5, 4: 8, 8: 12}[p.passes]
        if c.kind == 'mfma':
            if p.w & c.srcAB:
                g = max(g, big)
            if p.w & c.srcC and not (p.w == c.srcC and p.passes == c.passes):
                g = max(g, {2: 4, 4: 6, 8: 10}[p.passes])
            if p.w == c.srcC and p.passes == 2:
                g = max(g, 2)
            if p.w & c.w and not (p.w & c.srcC):
                g = max(g, big)
        elif c.kind in ('valu', 'trans', 'ds', 'vm'):
            if p.w & (c.r | c.w):
                g = max(g, big)
            if cv and p.srcC & c.w:
                g = max(g, {2: 1, 4: 3, 8: 7}[p.passes])
    if p.kind == 'salu' and ('s', 'm0') in p.w and ('s', 'm0') in c.r and c.kind == 'vm':
        g = max(g, 1)
    if p.kind == 'vm' and getattr(p, 'wide', None) and p.wide & c.w:
        g = max(g, 2)
    return g


def pad_hazards(prog, window=24):
    out = []
    for ins in prog:
        if ins.kind not in ('label', 'pseudo'):
            dist = 0
            short = 0
            for p in reversed(out):
                if dist >= window:
                    break
                if p.kind not in ('label', 'pseudo'):
                    short = max(short, required_gap(p, ins) - dist)
                dist += states(p)
            while short > 0:
                n = min(short, 16)
                out.append(I(f's_nop {n - 1}'))
                short -= n
        out.append(ins)
    return out


def render(prog):
    lines = []
    for ins in prog:
        t = ins.text
        if ins.kind == 'label':
            lines.append(t)
        else:
            lines.append('    ' + t)
    return '\n'.join(lines)


def weave(mfmas, fill, pinned=None, first_gap=0, last_gap=None):
    pinned = pinned or {}
    n = len(mfmas)
    last_gap = n - 1 if last_gap is None else last_gap
    fixed = [sum(i.slots() for i in mfmas[g]) + sum(i.slots() for i in pinned.get(g, [])) for g in range(n)]
    total = sum(i.slots() for i in fill)
    span = list(range(first_gap, last_gap + 1))
    level = (total + sum(fixed[g] for g in span)) / len(span)
    out = []
    k = 0
    credit = 0.0
    for g in range(n):
        out += mfmas[g]
        out += pinned.get(g, [])
        if first_gap <= g <= last_gap:
            credit += level - fixed[g]
            while k < len(fill) and (credit >= fill[k].slots() - 0.5 or g == last_gap):
                out.append(fill[k])
                credit -= fill[k].slots()
                k += 1
                while k < len(fill) and fill[k].mn.startswith(('s_cselect', 's_cbranch')):
                    out.append(fill[k])
                    credit -= fill[k].slots()
                    k += 1
    assert k == len(fill)
    return out


def split_ds_pairs(prog, dist=2):
    out = list(prog)
    k = 1
    while k < len(out):
        ins = out[k]
        if ins.kind == 'ds' and ins.w and out[k - 1].kind == 'ds' and out[k - 1].w and not ins.need:
            j = k
            moved = 0
            while moved < dist and j + 1 < len(out):
                nx = out[j + 1]
                if nx.kind not in ('valu', 'trans') or (nx.r | nx.w) & ins.w or nx.w & ins.r:
                    break
                out[j], out[j + 1] = nx, ins
                j += 1
                moved += nx.slots()
        k += 1
    return out


def hoist_reads(prog, dist):
    out = list(prog)
    for k in range(len(out)):
        ins = out[k]
        if not ins.hoist:
            continue
        j = k
        moved = 0
        while j > 0 and moved < dist:
            pv = out[j - 1]
            stop = pv.kind in ('barrier', 'label', 'pseudo', 'wait') or pv.mn.startswith(('s_cbranch', 'ds_write'))
            if stop or (pv.r | pv.w) & ins.w or pv.w & ins.r:
                break
            out[j - 1], out[j] = ins, pv
            j -= 1
            moved += pv.slots()
    return out


def merge(a, b):
    ta = sum(i.slots() for i in a) or 1
    tb = sum(i.slots() for i in b) or 1
    out = []
    ia = ib = 0
    ca = cb = 0
    while ia < len(a) or ib < len(b):
        glued = ia < len(a) and a[ia].mn.startswith('s_cselect')
        if ib >= len(b) or glued or (ia < len(a) and ca * tb <= cb * ta):
            out.append(a[ia]); ca += a[ia].slots(); ia += 1
        else:
            out.append(b[ib]); cb += b[ib].slots(); ib += 1
    return out


def level(prog, free=6.0, vm_cost=2):
    cost = lambda i: vm_cost if i.kind == 'vm' else (0.5 if i.kind == 'salu' else (0.5 if i.kind == 'pseudo' else i.slots()))
    head, gaps = [], []
    for ins in prog:
        if ins.kind == 'mfma':
            gaps.append([ins])
        elif gaps:
            gaps[-1].append(ins)
        else:
            head.append(ins)
    out = list(head)
    carry = []
    remaining = sum(cost(i) for g in gaps for i in g[1:])
    credit = 0.0
    for n, g in enumerate(gaps):
        out.append(g[0])
        carry += g[1:]
        nxt = gaps[n + 1][0] if n + 1 < len(gaps) else None
        budget = max(free, remaining / (len(gaps) - n))
        credit = min(credit, 0.0) + budget
        must = -1
        for k, i in enumerate(carry):
            if nxt is None or (i.w & (nxt.r | nxt.w)) or (i.r & nxt.w):
                must = k
        k = 0
        while k < len(carry) and (k <= must or credit >= cost(carry[k]) - 0.25 or
                                  carry[k].kind == 'label' or carry[k].mn.startswith(('s_cselect', 's_cbranch'))):
            out.append(carry[k])
            credit -= cost(carry[k])
            remaining -= cost(carry[k])
            k += 1
        carry = carry[k:]
    return out


def ds_first(prog):
    out = list(prog)
    for k in range(len(out)):
        ins = out[k]
        if ins.kind != 'ds' or not ins.w:
            continue
        j = k
        while j > 0:
            pv = out[j - 1]
            if pv.kind not in ('valu', 'trans', 'salu', 'vm') or pv.mn.startswith('s_cbranch'):
                break
            if (pv.r | pv.w) & ins.w or pv.w & ins.r:
                break
            j -= 1
        if j < k and out[j - 1].kind in ('mfma', 'ds'):
            out.insert(j, out.pop(k))
    return out
```

```python
import sys, os
sys.path.insert(0, os.path.dirname(os.path.abspath(__file__)))
from asmlib import I, Wait, insert_waits, pad_hazards, render, weave, split_ds_pairs, hoist_reads, merge, level, ds_first

KN = 'parallel_sum__ssm_conv_s5__dense_activation_mish__prompt_kernel'
OPT = dict(prof=0, spin=20000, out_flags='nt', map='8x4', pf=2, age=24, laf=5, r1=26, r2=32, r3=29, e3=12, fls=28, fll=50, flc=68, ka2=1, nstep=0, split=0, diag='', dsp=2, xel=0, tlb=0, pk_in=1, lbt=0, rxe=0, dspc=3, dsps=3, sch=2, g3=24, fn=2, stg=0, q0=6, pfat=24, wa0=17, xes=40, hs=2, rotj=0, laj=7, pace=16, lev=0, lev3=0, pa=2, fw=1, xw=0, vmc=2, fine='', fas=-30, fal=12, fac=16, nea=8, fhs=-1, fhl=12, fhc=28, qord=0, lbl=13, lbc=24, ppf=0, hoist=32)
for a in sys.argv[2:]:
    k, v = a.split('=')
    OPT[k] = int(v) if v.lstrip('-').isdigit() else v
PROF = OPT['prof']

WS_EP, WS_AG, WS_A = 0, 0x10000, 0x40000
WS_XC = WS_A + 64 * 176 * 1024
XC_BLK = 2560
WS_FL = WS_XC + 1024 * 3 * XC_BLK
WS_SIZE = WS_FL + 1024 * 512
WS_PROF = 0x1C00000
OOB = 0x7ff00000
SLOT = 16384
TB = 9 * SLOT
T_STAT, T_B1, T_SEG, T_LB, T_H = TB, TB + 1024, TB + 2048, TB + 6144, TB + 8192
LOG2E, LN2, M2LN2 = 0x3fb8aa3b, 0x3f317218, 0xbfb17218

sX, sB, sW1, sCre, sCim, sW2, sWS, sOUT, sTMP = 36, 40, 44, 48, 52, 56, 60, 64, 68
sI, sJ, sW, sROT, sTAG, sE2 = 72, 73, 74, 75, 76, 77
sKC = [78, 79, 80, 81]
sWOFF, sT0, sT1, sXB, sBB, sW1A, sW1B = 82, 83, 84, 85, 86, 87, 88
sAS = 89
sFST = [90, 91, 92, 93]
sSST, sCB, sW2B, sFSEL, sONES, sT3, sJJ, sT2 = 94, 95, 96, 97, 98, 99, 100, 101
sKQ, sPB, sXO = 22, [24, 25, 26], [27, 28, 29, 30]
sSEL = [31, 32, 33, 34]
sFLG = 35
pLRE, pLIM, pBRE, pBIM, pLDT, pDSK, pB1 = 8, 10, 12, 14, 16, 18, 20
srd = lambda b: f's[{b}:{b + 3}]'
vL, t0, t1, t2 = 0, 1, 2, 3
AS = [4, 5, 6, 7]
ASc = [8, 9, 10, 11]
XG = [12, 13, 14, 15]
PG = [16, 17, 18, 19]
QG = [20, 21, 22, 23]
FA0, FAc, RL2, VLN2, VL16, VNM, VRS, t3 = 24, 25, 26, 27, 28, 29, 30, 31
FAd = VNM
NLI, LI, LR, CR, NCI, NCR, L16R, L16I, LSR, LSI, L128R, L128I, WR, WI, PR, PI = range(32, 48)
TT = 48
FACC = [64, 80]
SRE, SIM = 96, 112
X = 128
aS, aF, aP, aOF, aOS, aWO, aXE = 0, 128, 0, 64, 88, 128, 224
STAMP_A = list(range(104, 128)) + list(range(241, 247))
vr = lambda b, n: f'v[{b}:{b + n - 1}]'
ar = lambda b, n: f'a[{b}:{b + n - 1}]'

stamp_names = []
FINE_KEEP = dict(T=['lb1', 'F2', 'scan', 'F3', 'fa0', 'fa1', 'tail', 'fh0'], S=['x7', 'c27', 'b0', 'F0'], F0=['b2', 'F0', 'F1'], F2=['F1', 'F2', 'scan'], F3=['scan', 'F3', 'fa0', 'fa1', 'tail'],
                 P3=['tail'], L=['k36', 'sent', 'own', 'rx'])


def fine(phase, items, step):
    if OPT['fine'] == phase:
        for n in range(step - 1, len(items), step):
            items[n] = items[n] + stamp(f'g{n}')
    return items


def stamp(name):
    if PROF == 3 and name not in ('end', 'DUMP'):
        return []
    if OPT['fine'] and not name.startswith('g') and name not in FINE_KEEP[OPT['fine']] + ['end', 'DUMP']:
        return []
    if OPT['diag'] == name:
        return [I('s_memrealtime s[4:5]')]
    return [I(';stamp ' + name)] if PROF else []


def resolve_stamps(prog):
    out = []
    for ins in prog:
        if not ins.text.startswith(';stamp '):
            out.append(ins)
            continue
        name = ins.text.split()[1]
        n = len(stamp_names)
        if n:
            out.append(I(f'v_accvgpr_write_b32 a{STAMP_A[n - 1]}, s{4 + 2 * ((n - 1) & 1)}'))
        if name == 'DUMP':
            out += [I(f'buffer_store_dword a{STAMP_A[k]}, v{t1}, {srd(sWS)}, 0 offen offset:{4 * k}') for k in range(n)]
            continue
        assert n < 29
        stamp_names.append(name)
        out.append(I(f's_mem{"real" if PROF == 2 else ""}time s[{4 + 2 * (n & 1)}:{5 + 2 * (n & 1)}]'))
    return out


def L(text):
    return [I(t.strip()) for t in text.strip().split('\n') if t.strip()]


def mfma(d, a, b, c):
    return I(f'v_mfma_f32_32x32x16_bf16 {d}, {a}, {b}, {c}')


def mksrd(b, lo, size):
    return f's_mov_b32 s{b}, s{lo}\ns_mov_b32 s{b + 1}, s{lo + 1}\ns_mov_b32 s{b + 2}, {size}\ns_mov_b32 s{b + 3}, 0x00020000\n'


slot_shared = {}


def dma_round(name, slot, voffs, rsrc, soff_code, shared):
    out = [I(f's_add_u32 m0, s{sWOFF}, {slot * SLOT}')] + L(soff_code)
    for g in range(4):
        out.append(I(f'buffer_load_dwordx4 v{voffs[g]}, {srd(rsrc)}, s{sT0} offen offset:{1024 * g} lds',
                     tok=name if g == 3 else None,
                     lds_w=(slot, slot_shared.get(slot, False)) if g == 0 else None, note=name,
                     fills=(slot, shared) if g == 3 else None))
    slot_shared[slot] = shared
    return out


def rx(s, slot):
    return dma_round(f'x{s}', slot + 1, XG, sX,
                     f's_add_u32 s{sT0}, s{sROT}, {s}\ns_and_b32 s{sT0}, s{sT0}, 7\n'
                     f's_lshl_b32 s{sT0}, s{sT0}, 7\ns_add_u32 s{sT0}, s{sT0}, s{sXB}', False)


G_SLOT = [5, 6, 7, 8, 0, 1, 2, 3, 4, 5, 6, 7]
W_SLOT = dict(WA0=8, CR0=0, CI0=1, WA1=2, WA2=3, WA3=4, CR1=5, CI1=6, WB0=7, WB1=8, WB2=2)


def rg(g):
    if g < 4:
        return dma_round(f'G{g}', G_SLOT[g], PG, sB,
                         f's_lshl_b32 s{sT0}, s{sKC[g]}, 7\ns_add_u32 s{sT0}, s{sT0}, s{sBB}', True)
    base = sW1A if g < 8 else sW1B
    return dma_round(f'G{g}', G_SLOT[g], QG, sW1,
                     f's_mul_i32 s{sT0}, s{sKC[g & 3]}, {64 * 3584}\ns_add_u32 s{sT0}, s{sT0}, s{base}', True)


def rw(name):
    e = int(name[2])
    if name[0] == 'C':
        code = f's_xor_b32 s{sT0}, s{sCB}, {128 * e}'
        return dma_round(name, W_SLOT[name], PG, sCim if name[1] == 'I' else sCre, code, True)
    if name[1] == 'A':
        code = f's_xor_b32 s{sT0}, s{sJJ}, {e}\ns_lshl_b32 s{sT0}, s{sT0}, 17\ns_add_u32 s{sT0}, s{sT0}, s{sW2B}'
    else:
        code = f's_lshl_b32 s{sT0}, s{sPB[e]}, 16\ns_add_u32 s{sT0}, s{sT0}, s{sW2B}'
        if e == 0:
            code += f'\ns_xor_b32 s{sT0}, s{sT0}, s{sSEL[0]}'
    return dma_round(name, W_SLOT[name], XG, sW2, code, True)


STAGE = dict(CI1=160, WB0=176, WB1=192, WB2=208)
VST = FA0


def stage_load(name):
    keep = dict(slot_shared)
    out = []
    for i_ in rw(name)[1:]:
        if i_.kind == 'vm':
            n = sum(j.kind == 'vm' for j in out)
            i_ = I(i_.text.replace('dwordx4 ', f'dwordx4 {ar(STAGE[name] + 4 * n, 4)}, ').replace(' lds', ''))
            i_.dma = True
        out.append(i_)
    slot_shared.clear()
    slot_shared.update(keep)
    return out


def stage_write(name):
    slot = W_SLOT[name]
    out = [I(f's_add_u32 s{sT0}, s{sWOFF}, {slot * SLOT}'), I(f'v_add_u32 v{VST}, s{sT0}, v{VL16}')]
    out += [I(f'ds_write_b128 v{VST}, {ar(STAGE[name] + 4 * g_, 4)} offset:{1024 * g_}', tok=name if g_ == 3 else None,
              lds_w=(slot, True) if g_ == 0 else None, note=name, fills=(slot, True) if g_ == 3 else None)
            for g_ in range(4)]
    return out


def pins(*parts):
    pin = {}
    for gap, ins in parts:
        head = [i_ for i_ in ins if not getattr(i_, 'dma', False)]
        pin.setdefault(gap, []).extend(head)
        for n, i_ in enumerate(ins[len(head):]):
            pin.setdefault(gap + n * OPT['dsp'], []).append(i_)
    return pin


BAR = lambda *toks: ([Wait(*toks)] if toks else []) + [I('s_barrier')]
PARK = {n: 247 if k == 16 else 48 + k for k, n in enumerate('pub seg lba0 lba1 lbe0 lbe1 fla flp lbw lbr hw hw2 hr hr2 f3o fp0 fp1'.split())}


def park(**regs):
    return [I(f'v_accvgpr_write_b32 a{PARK[n]}, v{r}') for n, r in regs.items()]


def fetch(**regs):
    return [I(f'v_accvgpr_read_b32 v{r}, a{PARK[n]}') for n, r in regs.items()]


retry_blocks = []


def poll(name, loads, check):
    retry_blocks.append((name, loads, check))
    return L(check) + [I(f's_cbranch_vccnz L_retry_{name}'), I(f'L_back_{name}:')]


def cexp(dr, di, scale, zr, za):
    return L(f"""v_mul_f32 v{dr}, {scale}, v{zr}
        v_mul_f32 v{di}, {scale}, v{za}
        v_exp_f32 v{dr}, v{dr}
        v_fract_f32 v{di}, v{di}
        v_cos_f32 v{t3}, v{di}
        v_sin_f32 v{di}, v{di}
        v_mul_f32 v{di}, v{dr}, v{di}
        v_mul_f32 v{dr}, v{dr}, v{t3}""")


def cmul_add(dr, di, ar_, ai, br, bi, cr=None, ci=None):
    if cr is None:
        head = f'v_mul_f32 v{dr}, v{ar_}, v{br}\nv_mul_f32 v{di}, v{ar_}, v{bi}'
    else:
        head = f'v_fma_f32 v{dr}, v{ar_}, v{br}, v{cr}\nv_fma_f32 v{di}, v{ar_}, v{bi}, v{ci}'
    return L(head + f'\nv_fma_f32 v{dr}, -v{ai}, v{bi}, v{dr}\nv_fmac_f32 v{di}, v{ai}, v{br}')


def mish(b, voff=VL16, quarters=range(4)):
    A = FACC[b & 1]
    out = []
    for q in quarters:
        rs = range(4 * q, 4 * q + 4)
        out.append(I(f'ds_read_b128 {vr(TT + 4 * q, 4)}, v{t2} offset:{T_B1 - TB + 128 * b + 16 * q}', hoist=True))
        out += [I(f'v_fmac_f32 v{TT + r}, v{A + r}, v{RL2}') for r in rs]
        out += [I(f'v_exp_f32 v{A + r}, v{TT + r}') for r in rs]
        out += [I(f'v_add_f32 v{A + r}, 1.0, v{A + r}') for r in rs]
        out += [I(f'v_fma_f32 v{A + r}, v{A + r}, v{A + r}, 1.0') for r in rs]
        out += [I(f'v_rcp_f32 v{A + r}, v{A + r}') for r in rs]
        out += [I(f'v_fmamk_f32 v{A + r}, v{A + r}, {M2LN2:#x}, v{VLN2}') for r in rs]
        out += [I(f'v_mul_f32 v{TT + r}, v{TT + r}, v{A + r}') for r in rs]
        out += [I(f'v_cvt_pk_bf16_f32 v{A + p}, v{TT + 2 * p}, v{TT + 2 * p + 1}') for p in (2 * q, 2 * q + 1)]
        if q & 1:
            fr = q >> 1
            out.append(I(f'buffer_store_dwordx4 {vr(A + 4 * fr, 4)}, v{voff}, {srd(sWS)}, s{sFST[b]} offen '
                         f'offset:{1024 * fr} sc1', tok=f'stF{b}' if fr else None))
            if b < 3:
                out += [I(f'v_accvgpr_write_b32 a{aOF + 8 * b + 4 * fr + e}, v{A + 4 * fr + e}') for e in range(4)]
    return out


def mish_pk(b, voff, halves=range(2)):
    A = FACC[b & 1]
    out = []
    for q in range(2 * len(halves)):
        out.append(I(f'ds_read_b128 {vr(TT + 4 * q, 4)}, v{t2} offset:{T_B1 - TB + 128 * b + 16 * q}', hoist=True))
    for h in halves:
        ps = range(8 * h, 8 * h + 8, 2)
        rs = range(8 * h, 8 * h + 8)
        out += [I(f'v_pk_fma_f32 {vr(TT + p, 2)}, {vr(A + p, 2)}, {vr(RL2, 2)}, {vr(TT + p, 2)} op_sel_hi:[1,0,1]') for p in ps]
        out += [I(f'v_exp_f32 v{A + r}, v{TT + r}') for r in rs]
        out += [I(f'v_pk_add_f32 {vr(A + p, 2)}, {vr(A + p, 2)}, 1.0 op_sel_hi:[1,0]') for p in ps]
        out += [I(f'v_pk_fma_f32 {vr(A + p, 2)}, {vr(A + p, 2)}, {vr(A + p, 2)}, 1.0 op_sel_hi:[1,1,0]') for p in ps]
        out += [I(f'v_rcp_f32 v{A + r}, v{A + r}') for r in rs]
        out += [I(f'v_pk_fma_f32 {vr(A + p, 2)}, {vr(A + p, 2)}, s[{sKC[0]}:{sKC[1]}], {vr(RL2, 2)} '
                  f'op_sel:[0,0,1] op_sel_hi:[1,0,1]') for p in ps]
        out += [I(f'v_pk_mul_f32 {vr(TT + p, 2)}, {vr(TT + p, 2)}, {vr(A + p, 2)}') for p in ps]
        out += [I(f'v_cvt_pk_bf16_f32 v{A + p // 2}, v{TT + p}, v{TT + p + 1}') for p in ps]
        out.append(I(f'buffer_store_dwordx4 {vr(A + 4 * h, 4)}, v{voff}, {srd(sWS)}, s{sFST[b]} offen '
                     f'offset:{1024 * h} sc1', tok=f'stF{b}' if h else None))
        if b < 3:
            out += [I(f'v_accvgpr_write_b32 a{aOF + 8 * b + 4 * h + e}, v{A + 4 * h + e}') for e in range(4)]
    return out


_weave = weave
LEV = [OPT['lev']]


def weave(*a):
    out = _weave(*a)
    return ds_first(level(out, LEV[0], OPT['vmc'])) if LEV[0] else out


P = []
if OPT['map'] == '8x4':
    ids = f"""s_and_b32 s{sKQ}, s2, 3
        s_bfe_u32 s{sJJ}, s2, 0x20003
        s_lshr_b32 s{sI}, s2, 5
        s_bfe_u32 s{sT0}, s2, 0x10002
        s_lshl_b32 s{sROT}, s{sT0}, 1
        s_lshl_b32 s{sT0}, s{sT0}, 3
        s_and_b32 s{sT1}, s{sI}, 1
        s_or_b32 s{sI}, s{sI}, s{sT0}
        s_add_u32 s{sROT}, s{sROT}, s{sT1}
        s_add_u32 s{sROT}, s{sROT}, s{sKQ}
        s_lshl_b32 s{sROT}, s{sROT}, 1
        s_and_b32 s{sT1}, s{sJJ}, {OPT['rotj']}
        s_add_u32 s{sROT}, s{sROT}, s{sT1}
        s_and_b32 s{sROT}, s{sROT}, 7"""
else:
    ids = f"""s_and_b32 s{sKQ}, s2, 1
        s_lshl_b32 s{sKQ}, s{sKQ}, 1
        s_lshr_b32 s{sT0}, s2, 7
        s_or_b32 s{sKQ}, s{sKQ}, s{sT0}
        s_bfe_u32 s{sJJ}, s2, 0x20003
        s_bfe_u32 s{sI}, s2, 0x20005
        s_bfe_u32 s{sT0}, s2, 0x20001
        s_add_u32 s{sROT}, s{sT0}, s{sKQ}
        s_lshl_b32 s{sT0}, s{sT0}, 2
        s_or_b32 s{sI}, s{sI}, s{sT0}
        s_lshl_b32 s{sROT}, s{sROT}, 1
        s_and_b32 s{sROT}, s{sROT}, 7"""
ws_load = f's_load_dwordx2 s[{sWS}:{sWS + 1}], s[0:1], 120'
more_loads = f"""s_load_dwordx8 s[{pLRE}:{pLRE + 7}], s[0:1], 8
s_load_dwordx4 s[{pLDT}:{pLDT + 3}], s[0:1], 56
s_load_dwordx2 s[{pB1}:{pB1 + 1}], s[0:1], 88
s_load_dwordx2 s[{sW1}:{sW1 + 1}], s[0:1], 80
s_load_dwordx2 s[{sCre}:{sCre + 1}], s[0:1], 40
s_load_dwordx2 s[{sCim}:{sCim + 1}], s[0:1], 48
s_load_dwordx2 s[{sW2}:{sW2 + 1}], s[0:1], 96
s_load_dwordx2 s[{sOUT}:{sOUT + 1}], s[0:1], 104
"""
SUM, SQ = [TT + 8, TT + 9], [TT + 10, TT + 11]
sizes = ((sX, 2097152), (sB, 524288), (sW1, 1835008), (sCre, 524288), (sCim, 524288), (sW2, 1835008),
         (sWS, (WS_PROF + 0x40000) if PROF else WS_SIZE), (sOUT, 4194304))
P += L(f"""
s_cmp_ge_u32 s2, 256
s_cbranch_scc1 L_end
{'s_memtime s[98:99]' if PROF else ''}
{'s_memrealtime s[90:91]' if PROF or OPT['diag'] else ''}
s_load_dwordx2 s[{sX}:{sX + 1}], s[0:1], 0
{'' if OPT['ka2'] else ws_load}
s_getpc_b64 s[{sTMP}:{sTMP + 1}]
v_lshrrev_b32 v{t0}, 6, v0
v_and_b32 v{vL}, 63, v0
s_and_b32 s{sTMP}, s{sTMP}, 0xffffff80
v_readfirstlane_b32 s{sW}, v{t0}
s_mov_b32 s{sTMP + 2}, L_code_end-{KN}
s_mov_b32 s{sTMP + 3}, 0x00020000
s_lshr_b32 s{sT0}, s2, 3
s_lshl_b32 s{sT0}, s{sT0}, 2
s_add_u32 s{sT0}, s{sT0}, s{sW}
s_lshl_b32 s{sT0}, s{sT0}, 9
v_and_b32 v{t1}, 3, v{vL}
v_lshlrev_b32 v{t1}, 7, v{t1}
buffer_load_dword v{t3}, v{t1}, {srd(sTMP)}, s{sT0} offen
{'' if OPT['ka2'] else more_loads}
v_lshrrev_b32 v{t0}, 3, v{vL}
v_lshrrev_b32 v{t1}, 4, v{vL}
v_xor_b32 v{t1}, v{t1}, v{vL}
v_and_b32 v{t1}, 7, v{t1}
v_lshlrev_b32 v{t1}, 4, v{t1}
v_lshl_add_u32 v{PG[0]}, v{t0}, 10, v{t1}
v_lshrrev_b32 v{t2}, 5, v{vL}
v_mul_u32_u24 v{t2}, {12 * 1024}, v{t2}
v_add_u32 v{XG[0]}, v{PG[0]}, v{t2}
v_xor_b32 v{XG[1]}, 64, v{XG[0]}
v_add_u32 v{XG[2]}, {6 * 1024}, v{XG[0]}
v_add_u32 v{XG[3]}, {9 * 1024}, v{XG[1]}
v_add_u32 v{XG[1]}, {3 * 1024}, v{XG[1]}
s_lshl_b32 s{sWOFF}, s{sW}, 12
{ids}
s_lshl_b32 s{sXB}, s{sI}, 17
s_lshl_b32 s{sT0}, s{sW}, 15
s_add_u32 s{sXB}, s{sXB}, s{sT0}
""" + ''.join(f's_mov_b32 s{b + 2}, {n}\ns_mov_b32 s{b + 3}, 0x00020000\n' for b, n in sizes) + f"""
s_waitcnt lgkmcnt(0)
{'v_accvgpr_write_b32 a254, s98' if PROF else ''}
{'v_accvgpr_write_b32 a255, s90' if PROF else ''}
{'s_mov_b32 s23, 0' if PROF else ''}
{'s_mov_b32 s23, s90' if OPT['diag'] else ''}
""")
P += stamp('ka') if OPT['diag'] else []
P += rx(0, 0) + (L(ws_load + '\n' + more_loads) if OPT['ka2'] else []) + rx(1, 1)
P += L(f"""
v_and_b32 v{t0}, 31, v{vL}
s_lshl_b32 s{sJ}, s{sKQ}, 2
s_or_b32 s{sJ}, s{sJ}, s{sJJ}
v_lshrrev_b32 v{t1}, 5, v{vL}
v_bfe_u32 v{t2}, v{vL}, 1, 3
v_xor_b32 v{t1}, v{t1}, v{t2}
v_lshlrev_b32 v{t1}, 4, v{t1}
v_lshl_add_u32 v{AS[0]}, v{t0}, 7, v{t1}
v_xor_b32 v{AS[1]}, 32, v{AS[0]}
v_xor_b32 v{AS[2]}, 64, v{AS[0]}
v_xor_b32 v{AS[3]}, 0x60, v{AS[0]}
s_add_u32 s{sT0}, s{sWOFF}, {SLOT}
v_add_u32 v{ASc[0]}, s{sT0}, v{AS[0]}
v_add_u32 v{ASc[1]}, s{sT0}, v{AS[1]}
v_add_u32 v{ASc[2]}, s{sT0}, v{AS[2]}
v_add_u32 v{ASc[3]}, s{sT0}, v{AS[3]}
s_mov_b32 s{sONES}, 0x3f803f80
v_mov_b32 v{SUM[0]}, 0
v_mov_b32 v{SUM[1]}, 0
v_mov_b32 v{SQ[0]}, 0
v_mov_b32 v{SQ[1]}, 0
s_lshl_b32 s{sT0}, s{sW}, 9
s_add_u32 s{sT0}, s{sT0}, {T_SEG}
v_lshl_add_u32 v{t0}, v{vL}, 3, s{sT0}""")
P.append(I(f'ds_write_b64 v{t0}, {vr(SUM[0], 2)}', tok='zero'))
P += L(f's_waitcnt lgkmcnt(0)\ns_load_dword s{sE2}, s[{sWS}:{sWS + 1}], {WS_EP}')
mid = L(f"""
v_and_b32 v{t0}, 31, v{vL}
s_lshl_b32 s{sT1}, s{sJ}, 6
v_lshl_add_u32 v{t1}, v{t0}, 1, s{sT1}
global_load_ushort v{LR}, v{t1}, s[{pLRE}:{pLRE + 1}]
global_load_ushort v{LI}, v{t1}, s[{pLIM}:{pLIM + 1}]
global_load_ushort v{NLI}, v{t1}, s[{pLDT}:{pLDT + 1}]
s_and_b32 s{sT3}, s{sW}, 1
s_mul_i32 s{sT2}, s{sKQ}, 7
s_lshl_b32 s{sW1A}, s{sJJ}, 1
s_add_u32 s{sPB[0]}, s{sW1A}, 1
s_cmp_eq_u32 s{sJJ}, 3
s_cselect_b32 s{sPB[0]}, 3, s{sPB[0]}
s_cselect_b32 s{sFSEL}, 64, 0
s_add_u32 s{sW1A}, s{sW1A}, s{sT2}
s_add_u32 s{sW1B}, s{sPB[0]}, s{sT2}
s_lshl_b32 s{sW1A}, s{sW1A}, 7
s_lshl_b32 s{sW1B}, s{sW1B}, 7
s_cmp_ge_u32 s{sW}, 2
s_cselect_b32 s{sT2}, s{sW1B}, s{sW1A}
s_cselect_b32 s{sT1}, s{sFSEL}, 0
s_add_u32 s{sT2}, s{sT2}, s{sT1}
s_lshl_b32 s{sT1}, s{sT3}, 6
s_xor_b32 s{sT2}, s{sT2}, s{sT1}
v_and_b32 v{t1}, 3, v{vL}
v_bfe_u32 v{t2}, v{vL}, 2, 2
v_lshl_add_u32 v{t1}, v{t2}, 3, v{t1}
v_bfe_u32 v{t2}, v{vL}, 4, 1
v_lshl_add_u32 v{t1}, v{t2}, 2, v{t1}
v_lshl_add_u32 v{t1}, v{t1}, 1, s{sT2}
global_load_ushort v{PR}, v{t1}, s[{pB1}:{pB1 + 1}]
s_cmp_eq_u32 s{sT3}, 1
s_cselect_b32 s{sB}, s{pBIM}, s{pBRE}
s_cselect_b32 s{sB + 1}, s{pBIM + 1}, s{pBRE + 1}
s_mul_i32 s{sT3}, s{sT3}, {32 * 3584}
s_add_u32 s{sW1A}, s{sW1A}, s{sT3}
s_add_u32 s{sW1B}, s{sW1B}, s{sT3}
s_lshl_b32 s{sBB}, s{sJ}, 15
s_lshr_b32 s{sT1}, s{sW}, 1
s_add_u32 s{sT1}, s{sT1}, s{sROT}
s_and_b32 s{sKC[0]}, s{sT1}, 7
s_add_u32 s{sT1}, s{sT1}, 2
s_and_b32 s{sKC[1]}, s{sT1}, 7
s_add_u32 s{sT1}, s{sT1}, 2
s_and_b32 s{sKC[2]}, s{sT1}, 7
s_add_u32 s{sT1}, s{sT1}, 2
s_and_b32 s{sKC[3]}, s{sT1}, 7
v_xor_b32 v{PG[1]}, 64, v{PG[0]}
v_add_u32 v{PG[2]}, {14 * 1024}, v{PG[0]}
v_add_u32 v{PG[3]}, {21 * 1024}, v{PG[1]}
v_add_u32 v{PG[1]}, {7 * 1024}, v{PG[1]}
v_and_b32 v{t2}, 1, v{vL}
v_lshlrev_b32 v{t2}, 4, v{t2}
v_mov_b32 v{VNM}, 0x3f80
v_lshlrev_b32 v{t2}, v{t2}, v{VNM}
v_bfe_i32 v{t0}, v{vL}, 1, 1
v_and_b32 v{TT + 1}, v{t0}, v{t2}
v_xor_b32 v{TT}, v{TT + 1}, v{t2}
""")
mid += L(f"""
v_lshrrev_b32 v{t1}, 3, v{vL}
v_mul_u32_u24 v{t1}, 3584, v{t1}
v_bfe_u32 v{t2}, v{vL}, 4, 1
v_lshlrev_b32 v{t2}, 2, v{t2}
v_xor_b32 v{t2}, v{t2}, v{vL}
v_and_b32 v{t2}, 7, v{t2}
v_lshl_add_u32 v{QG[0]}, v{t2}, 4, v{t1}
v_add_u32 v{QG[1]}, {27648}, v{QG[0]}
v_add_u32 v{QG[2]}, {2 * 27648}, v{QG[0]}
v_add_u32 v{QG[3]}, {3 * 27648}, v{QG[0]}
""")
late = L(f"""
s_mul_i32 s{sE2}, s{sE2}, 1664525
s_add_u32 s{sE2}, s{sE2}, 1013904226
s_or_b32 s{sTAG}, s{sE2}, 1
v_bfe_u32 v{t1}, v{vL}, 2, 2
v_lshrrev_b32 v{t2}, 5, v{vL}
v_lshl_add_u32 v{t2}, v{t2}, 3, v{t1}
v_lshlrev_b32 v{FA0}, 7, v{t2}
v_lshrrev_b32 v{t1}, 1, v{t1}
v_lshl_add_u32 v{FA0}, v{t1}, 6, v{FA0}
v_bfe_u32 v{t1}, v{vL}, 4, 1
v_lshl_add_u32 v{FA0}, v{t1}, 5, v{FA0}
v_and_b32 v{t1}, 3, v{vL}
v_lshl_add_u32 v{FA0}, v{t1}, 3, v{FA0}
v_lshlrev_b32 v{VL16}, 4, v{vL}
v_mov_b32 v{VLN2}, {LN2:#x}
s_cmp_eq_u32 s{sPB[0]}, 1
s_cselect_b32 s{sPB[1]}, 3, 1
s_cmp_eq_u32 s{sPB[0]}, 5
s_cselect_b32 s{sPB[2]}, 3, 5
s_lshl_b32 s{sSEL[0]}, s{sFSEL}, 9
s_lshl_b32 s{sAS}, s{sI}, 2
s_add_u32 s{sAS}, s{sAS}, s{sW}
s_lshl_b32 s{sAS}, s{sAS}, 2
s_add_u32 s{sAS}, s{sAS}, s{sKQ}
s_lshl_b32 s{sFLG}, s{sAS}, 11
s_add_u32 s{sFLG}, s{sFLG}, {WS_FL}
s_mul_i32 s{sAS}, s{sAS}, {44 * 1024}
s_add_u32 s{sAS}, s{sAS}, {WS_A}
s_lshl_b32 s{sT2}, s{sJJ}, 13
s_add_u32 s{sFST[0]}, s{sAS}, s{sT2}
s_add_u32 s{sFST[1]}, s{sFST[0]}, 2048
s_lshl_b32 s{sT2}, s{sPB[0]}, 12
s_add_u32 s{sFST[3]}, s{sAS}, s{sT2}
s_lshl_b32 s{sT2}, s{sFSEL}, 5
s_add_u32 s{sFST[2]}, s{sFST[3]}, s{sT2}
s_add_u32 s{sFST[3]}, s{sFST[3]}, 2048
s_lshl_b32 s{sT2}, s{sJJ}, 12
s_add_u32 s{sSST}, s{sAS}, s{sT2}
s_add_u32 s{sSST}, s{sSST}, {28 * 1024}
s_xor_b32 s{sT2}, s{sW}, s{sKQ}
s_lshl_b32 s{sT2}, s{sT2}, 15
s_lshl_b32 s{sCB}, s{sJJ}, 17
s_add_u32 s{sCB}, s{sCB}, s{sT2}
s_lshl_b32 s{sT2}, s{sKQ}, 8
s_add_u32 s{sCB}, s{sCB}, s{sT2}
s_lshr_b32 s{sT2}, s{sJJ}, 1
s_lshl_b32 s{sT2}, s{sT2}, 7
s_add_u32 s{sCB}, s{sCB}, s{sT2}
s_mul_i32 s{sW2B}, s{sKQ}, {448 * 1024}
s_lshr_b32 s{sT2}, s{sW}, 1
s_lshl_b32 s{sT2}, s{sT2}, 15
s_add_u32 s{sW2B}, s{sW2B}, s{sT2}
s_lshl_b32 s{sT2}, s{sJJ}, 8
s_add_u32 s{sW2B}, s{sW2B}, s{sT2}
s_lshr_b32 s{sT2}, s{sKQ}, 1
s_xor_b32 s{sT2}, s{sT2}, s{sW}
s_and_b32 s{sT2}, s{sT2}, 1
s_lshl_b32 s{sT2}, s{sT2}, 7
s_add_u32 s{sW2B}, s{sW2B}, s{sT2}
s_lshl_b32 s{sT2}, s{sI}, 4
s_add_u32 s{sT2}, s{sT2}, s{sJJ}
s_lshl_b32 s{sT2}, s{sT2}, 2
s_add_u32 s{sT2}, s{sT2}, s{sW}""")
for b in range(4):
    late += L(f"""s_xor_b32 s{sT3}, s{sKQ}, {b}
        s_lshl_b32 s{sT3}, s{sT3}, 4
        s_add_u32 s{sT3}, s{sT3}, s{sT2}
        s_mul_i32 s{sT3}, s{sT3}, {3 * XC_BLK}
        s_add_u32 s{sXO[b]}, s{sT3}, {WS_XC + (b - 1) * XC_BLK if b else WS_XC}""")
late += L(f"""s_add_u32 s{sSEL[2]}, s{sXO[0]}, {XC_BLK}
    s_add_u32 s{sSEL[3]}, s{sXO[0]}, {2 * XC_BLK}
    s_and_b32 s{sT3}, s{sJJ}, 1
    s_sub_u32 s{sSEL[1]}, 6, s{sT3}""")
pf = []
if OPT['pf'] == 2:
    late += L(f"""
s_and_b32 s{sT1}, s{sI}, 7
s_lshl_b32 s{sT2}, s{sT1}, 1
s_add_u32 s{sT2}, s{sT2}, s{sW}
s_mul_i32 s{sT2}, s{sT2}, 28
s_mul_i32 s{sT3}, s{sKQ}, 448
s_add_u32 s{sT2}, s{sT2}, s{sT3}
s_lshl_b32 s{sT2}, s{sT2}, 2
s_add_u32 s{sT2}, s{sT2}, s{sJJ}
s_lshl_b32 s{sT3}, s{sJJ}, 3
s_add_u32 s{sT3}, s{sT3}, s{sT1}
s_lshl_b32 s{sT3}, s{sT3}, 6
s_add_u32 s{sT3}, s{sT3}, s{sKQ}
s_cmp_lt_u32 s{sW}, 2
s_cselect_b32 s{sT2}, s{sT2}, s{sT3}
s_cselect_b32 s{sT3}, 56, 32
s_cselect_b32 s{sTMP}, s{sW2}, s{sCre}
s_cselect_b32 s{sTMP + 1}, s{sW2 + 1}, s{sCre + 1}
s_cselect_b32 s{sTMP + 2}, s{sW2 + 2}, s{sCre + 2}
s_cmp_eq_u32 s{sW}, 3
s_cselect_b32 s{sTMP}, s{sCim}, s{sTMP}
s_cselect_b32 s{sTMP + 1}, s{sCim + 1}, s{sTMP + 1}""")
elif OPT['pf']:
    late += L(f"""
s_mul_i32 s{sT2}, s{sKQ}, 448
s_mul_i32 s{sT3}, s{sI}, 28
s_add_u32 s{sT2}, s{sT2}, s{sT3}
s_lshl_b32 s{sT2}, s{sT2}, 2
s_add_u32 s{sT2}, s{sT2}, s{sJJ}
s_lshl_b32 s{sT3}, s{sJJ}, 4
s_add_u32 s{sT3}, s{sT3}, s{sI}
s_lshl_b32 s{sT3}, s{sT3}, 5
s_add_u32 s{sT3}, s{sT3}, s{sKQ}
s_cmp_eq_u32 s{sW}, 0
s_cselect_b32 s{sT2}, s{sT2}, s{sT3}
s_cselect_b32 s{sT3}, 56, 16
s_cselect_b32 s{sTMP}, s{sW2}, s{sCre}
s_cselect_b32 s{sTMP + 1}, s{sW2 + 1}, s{sCre + 1}
s_cselect_b32 s{sTMP + 2}, s{sW2 + 2}, s{sCre + 2}
s_cmp_eq_u32 s{sW}, 2
s_cselect_b32 s{sTMP}, s{sCim}, s{sTMP}
s_cselect_b32 s{sTMP + 1}, s{sCim + 1}, s{sTMP + 1}
s_cmp_eq_u32 s{sW}, 3
s_cselect_b32 s{sT3}, 0, s{sT3}""")
if OPT['pf']:
    late += L(f"""s_lshl_b32 s{sT2}, s{sT2}, 8
v_lshrrev_b32 v{t0}, 1, v{vL}
v_and_b32 v{t1}, 1, v{vL}
v_lshlrev_b32 v{t1}, 7, v{t1}
v_lshl_add_u32 v{t0}, v{t0}, 10, v{t1}
v_add_u32 v{t0}, s{sT2}, v{t0}
v_mov_b32 v{t1}, {OOB:#x}
v_cmp_gt_u32 vcc, s{sT3}, v{vL}
v_cndmask_b32 v{PI}, v{t1}, v{t0}, vcc""")
    pf = L(f'buffer_load_dword a248, v{PI}, {srd(sTMP)}, 0 offen')

Z = FACC[0]
later = L(f"""
v_lshlrev_b32 v{NLI}, 16, v{NLI}
v_mul_f32 v{NLI}, {LOG2E:#x}, v{NLI}
v_exp_f32 v{NLI}, v{NLI}
v_lshlrev_b32 v{Z + 2}, 16, v{LR}
v_lshlrev_b32 v{Z + 3}, 16, v{LI}
v_cvt_pk_bf16_f32 v{NLI}, v{NLI}, v{NLI}
v_lshlrev_b32 v{NLI}, 16, v{NLI}
v_mul_f32 v{Z}, v{NLI}, v{Z + 2}
v_mul_f32 v{Z + 1}, v{NLI}, v{Z + 3}
v_mul_f32 v{Z}, {LOG2E:#x}, v{Z}
v_mul_f32 v{Z + 1}, 0xbe22f983, v{Z + 1}""")
later += cexp(LR, LI, '1.0', Z, Z + 1)
later += L(f"""
v_mul_f32 v{Z + 4}, v{Z + 2}, v{Z + 2}
v_fmac_f32 v{Z + 4}, v{Z + 3}, v{Z + 3}
v_rcp_f32 v{Z + 4}, v{Z + 4}
v_add_f32 v{Z + 5}, -1.0, v{LR}
v_sub_f32 v{NLI}, 0, v{LI}
v_add_f32 v{Z + 4}, v{Z + 4}, v{Z + 4}
v_mul_f32 v{CR}, v{Z + 5}, v{Z + 2}
v_fmac_f32 v{CR}, v{NLI}, v{Z + 3}
v_mul_f32 v{NCI}, v{Z + 5}, v{Z + 3}
v_fmac_f32 v{NCI}, v{LI}, v{Z + 2}
v_mul_f32 v{CR}, v{CR}, v{Z + 4}
v_mul_f32 v{NCI}, v{NCI}, v{Z + 4}
v_sub_f32 v{NCR}, 0, v{CR}""")
later += cexp(L16R, L16I, '0x41800000', Z, Z + 1)
later += cexp(L128R, L128I, '0x43000000', Z, Z + 1)
later += L(f"""
v_lshrrev_b32 v{Z + 6}, 5, v{vL}
s_lshl_b32 s{sT2}, s{sW}, 1
v_add_u32 v{Z + 6}, s{sT2}, v{Z + 6}
v_cvt_f32_u32 v{Z + 6}, v{Z + 6}
v_mul_f32 v{Z + 7}, 0x41800000, v{Z + 6}
v_sub_f32 v{Z + 6}, 0x40e00000, v{Z + 6}
v_mul_f32 v{Z + 6}, 0x43800000, v{Z + 6}""")
later += cexp(LSR, LSI, f'v{Z + 7}', Z, Z + 1)
later += cexp(WR, WI, f'v{Z + 6}', Z, Z + 1)
later += L(f"""v_lshlrev_b32 v{PR}, 16, v{PR}
v_mul_f32 v{PR}, {LOG2E:#x}, v{PR}
v_and_b32 v{t1}, 31, v{vL}
s_lshl_b32 s{sT1}, s{sW}, 7
s_add_u32 s{sT1}, s{sT1}, {T_B1}
v_lshl_add_u32 v{t1}, v{t1}, 2, s{sT1}
ds_write_b32 v{t1}, v{PR}""")
Y = SRE
later += L(f"""v_and_b32 v{Y}, 31, v{vL}
    v_lshlrev_b32 v{Y + 1}, 3, v{Y}
    v_add_u32 v{Y + 1}, {T_LB}, v{Y + 1}
    v_lshrrev_b32 v{t0}, 5, v{vL}
    s_lshl_b32 s{sT2}, s{sW}, 11
    s_add_u32 s{sT2}, s{sT2}, {T_H}
    v_lshl_add_u32 v{Y}, v{Y}, 6, s{sT2}
    v_bfe_u32 v{Y + 2}, v{vL}, 1, 2
    v_lshlrev_b32 v{Y + 3}, 1, v{t0}
    v_xor_b32 v{Y + 2}, v{Y + 2}, v{Y + 3}
    v_lshl_add_u32 v{Y}, v{Y + 2}, 4, v{Y}
    v_xor_b32 v{Y + 3}, 16, v{Y}
    v_bfe_u32 v{Y + 6}, v{vL}, 2, 2
    v_lshl_add_u32 v{Y + 2}, v{t0}, 3, v{Y + 6}
    v_lshl_add_u32 v{Y + 2}, v{Y + 2}, 6, s{sT2}
    v_and_b32 v{t1}, 1, v{vL}
    v_lshl_add_u32 v{Y + 2}, v{t1}, 5, v{Y + 2}
    v_lshrrev_b32 v{t1}, 1, v{vL}
    v_xor_b32 v{t1}, v{t1}, v{vL}
    v_and_b32 v{t1}, 8, v{t1}
    v_lshl_add_u32 v{Y + 2}, v{t1}, 1, v{Y + 2}
    v_bfe_u32 v{t1}, v{vL}, 1, 1
    v_lshl_add_u32 v{Y + 2}, v{t1}, 3, v{Y + 2}
    v_xor_b32 v{Y + 4}, 32, v{Y + 2}
    v_lshl_add_u32 v{t0}, v{t0}, 2, v{Y + 6}
    v_lshlrev_b32 v{Y + 5}, 7, v{t0}
    v_lshrrev_b32 v{t1}, 1, v{Y + 6}
    s_and_b32 s{sT2}, s{sKQ}, 1
    v_xor_b32 v{t1}, s{sT2}, v{t1}
    v_lshl_add_u32 v{Y + 5}, v{t1}, 6, v{Y + 5}
    v_bfe_u32 v{t1}, v{vL}, 4, 1
    v_lshl_add_u32 v{Y + 5}, v{t1}, 5, v{Y + 5}
    v_and_b32 v{t1}, 3, v{vL}
    v_lshl_add_u32 v{Y + 5}, v{t1}, 3, v{Y + 5}
    v_xor_b32 v{Y + 6}, 64, v{Y + 5}
    s_lshl_b32 s{sT2}, s{sW}, 9
    s_add_u32 s{sT1}, s{sT2}, {T_SEG}
    s_add_u32 s{sT2}, s{sT2}, {T_LB}
    v_lshl_add_u32 v{Y + 7}, v{vL}, 3, s{sT1}
    v_lshl_add_u32 v{Y + 8}, v{vL}, 3, s{sT2}""")
later += park(hw=Y, lbr=Y + 1, hr=Y + 2, hw2=Y + 3, hr2=Y + 4, fp0=Y + 5, fp1=Y + 6, seg=Y + 7, lbw=Y + 8)
later = mid + later + [I(f'v_accvgpr_write_b32 a{aXE + r}, 0') for r in range(17)]
cuts = [0]
for n in range(1, 7):
    c = n * len(later) // 7
    while later[c].mn.startswith(('s_cselect', 'v_cndmask', 's_nop')) or later[c - 1].mn.startswith('v_cmp'):
        c += 1
    cuts.append(c)
cuts.append(len(later))

touch_w = L(f'v_mov_b32 v{PI}, 0') + [
    I(f'buffer_load_dword a{56 + n}, v{PI}, {srd(r)}, 0 offen') for n, r in enumerate((sW1, sCre, sCim, sW2))]
touch_o = L(f"""v_min_u32 v{PR}, {WS_SIZE >> 21}, v{vL}
    v_lshlrev_b32 v{PR}, 21, v{PR}
    v_add_u32 v{PR}, 0x800, v{PR}
    buffer_load_dword a60, v{PR}, {srd(sWS)}, 0 offen
    buffer_load_dword a61, v{PR}, {srd(sOUT)}, 0 offen""")
if OPT['tlb'] in (1, 3, 4):
    P += touch_w
if OPT['tlb'] == 1:
    P += touch_o
P += rx(2, 2) + [I('s_waitcnt lgkmcnt(0)')]
for s in range(8):
    P.append(Wait(f'x{s}'))
    if s == 0:
        P += stamp('x0')
    for q in range(4):
        P.append(I(f'ds_read_b128 {vr(X + 16 * s + 4 * q, 4)}, v{ASc[q]} offset:{(s & 3) * SLOT}', lds_r=(s & 3) + 1,
                   tok=f'xr{s}' if q == 3 else None))
    P += later[cuts[s]:cuts[s + 1]] if s < 7 else []
    if s >= 5:
        P += rg(s - 5)
    for r in range(16):
        if r == 4 and s < 5:
            P += rx(s + 3, (s + 3) & 3)
        P.append(I(f'v_dot2c_f32_bf16 v{SUM[r & 1]}, s{sONES}, v{X + 16 * s + r}'))
        P.append(I(f'v_dot2c_f32_bf16 v{SQ[r & 1]}, v{X + 16 * s + r}, v{X + 16 * s + r}'))
P += stamp('x7')
P += L(f"""
v_add_f32 v{SUM[0]}, v{SUM[0]}, v{SUM[1]}
v_add_f32 v{SQ[0]}, v{SQ[0]}, v{SQ[1]}
v_mov_b32 v{SUM[1]}, v{SUM[0]}
v_mov_b32 v{SQ[1]}, v{SQ[0]}
v_permlane32_swap_b32 v{SUM[1]}, v{SUM[0]}
v_permlane32_swap_b32 v{SQ[1]}, v{SQ[0]}
v_add_f32 v{SUM[0]}, v{SUM[0]}, v{SUM[1]}
v_add_f32 v{SQ[0]}, v{SQ[0]}, v{SQ[1]}
v_mul_f32 v{SUM[0]}, 0x3b000000, v{SUM[0]}
v_mul_f32 v{SQ[0]}, 0x3b000000, v{SQ[0]}
v_fma_f32 v{SQ[0]}, -v{SUM[0]}, v{SUM[0]}, v{SQ[0]}
v_max_f32 v{SQ[0]}, 0, v{SQ[0]}
v_cvt_pk_bf16_f32 v{t0}, v{SUM[0]}, v{SQ[0]}
v_lshlrev_b32 v{VNM}, 16, v{t0}
v_sub_f32 v{SIM}, 0, v{VNM}
v_sub_f32 v{SIM + 1}, 0, v{VNM}
v_sub_f32 v{SIM + 2}, 0, v{VNM}
v_sub_f32 v{SIM + 3}, 0, v{VNM}
""")

back = lambda o: [I(f'v_cvt_pk_bf16_f32 v{X + 2 * o + e}, v{FACC[0] + 4 * (o & 3) + 2 * e}, '
                    f'v{FACC[0] + 4 * (o & 3) + 2 * e + 1}') for e in range(2)]
items = [[I(f'v_mfma_f32_4x4x4_16b_bf16 {vr(FACC[0] + 4 * (n & 3), 4)}, {vr(TT, 2)}, {vr(X + 2 * n, 2)}, {vr(SIM, 4)}')]
         + (back(n - 2) if n >= 2 else []) for n in range(64)]
fill = L(f"""
v_and_b32 v{t0}, 0xffff0000, v{t0}
v_add_f32 v{t0}, 0x3727c5ac, v{t0}
v_cvt_pk_bf16_f32 v{t0}, v{t0}, v{t0}
v_lshlrev_b32 v{t0}, 16, v{t0}
v_sqrt_f32 v{t0}, v{t0}
v_and_b32 v{t1}, 3, v{vL}
v_cvt_pk_bf16_f32 v{t0}, v{t0}, v{t0}
v_lshlrev_b32 v{t0}, 16, v{t0}
v_rcp_f32 v{VRS}, v{t0}
v_bfe_u32 v{t2}, v{vL}, 3, 2
v_lshl_add_u32 v{t1}, v{t2}, 2, v{t1}
v_bfe_u32 v{t2}, v{vL}, 2, 1
v_lshl_add_u32 v{t1}, v{t2}, 4, v{t1}
s_lshl_b32 s{sT1}, s{sW}, 8
s_add_u32 s{sT1}, s{sT1}, {T_STAT}
v_lshl_add_u32 v{t1}, v{t1}, 2, s{sT1}
v_mul_f32 v{RL2}, {LOG2E:#x}, v{VRS}
ds_write_b32 v{t1}, v{VNM}
""")
fill.append(I(f'ds_write_b32 v{t1}, v{VRS} offset:128', tok='tabw'))
LA_S, LA_F = 3, OPT['laf']


def s_addr(slot):
    return [I(f'v_add_u32 v{ASc[q]}, {slot * SLOT}, v{AS[q]}') for q in range(4)]


def s_read(s, ri):
    return I(f'ds_read_b128 {ar(aS + 8 * (s & 3) + 4 * ri, 4)}, v{ASc[s & 3]} offset:{(s >> 3) * SLOT + (2 * ((s >> 2) & 1) + ri) * 4096}',
             lds_r=G_SLOT[s >> 3])


def f_addr(b):
    if b < 2:
        return [I(f'v_xor_b32 v{FAc}, {64 * b}, v{FA0}')]
    if b == 3:
        return [I(f'v_xor_b32 v{FAc}, 64, v{FAc}')]
    return [I(f'v_xor_b32 v{FAc}, s{sFSEL}, v{FA0}'), I(f'v_add_u32 v{FAc}, {G_SLOT[8] * SLOT}, v{FAc}')]


def f_read(b, s):
    out = f_addr(b) if s == 0 else []
    k = (32 * b + s) & 7
    for u in range(2):
        out.append(I(f'ds_read_b64_tr_b16 {ar(aF + 4 * k + 2 * u, 2)}, v{FAc} '
                     f'offset:{(s >> 3) * SLOT + ((s >> 1) & 3) * 4096 + (s & 1) * 2048 + u * 512}',
                     lds_r=G_SLOT[(4 if b < 2 else 8) + (s >> 3)]))
    return out


DSP = OPT['dsp']
OPT['dsp'] = OPT['dspc']
pin = pins((OPT['g3'], rg(3)), *([(OPT['g3'] + 4 * OPT['dspc'], rg(4))] if OPT['sch'] == 2 else []),
           (54, s_addr(G_SLOT[0]) + stamp('c27') + BAR('G0', 'G1', 'tabw', 'zero') + stamp('b0')))
OPT['dsp'] = DSP
for k in range(LA_S):
    pin[55 + 2 * k] = [s_read(k, 0), s_read(k, 1)]
P += weave(items, fill, pin, 0, 40) + back(62) + back(63)

S_items = []
for s in range(32):
    for ri, acc in ((0, SRE), (1, SIM)):
        it = [mfma(vr(acc, 16), vr(X + 4 * s, 4), ar(aS + 8 * (s & 3) + 4 * ri, 4), vr(acc, 16) if s else '0')]
        n = s + LA_S
        if n < 32:
            it.append(s_read(n, ri))
        S_items.append(it)
for k in range(LA_F):
    S_items[64 - LA_F + k] += f_read(0, k)
F_items = []
for b in range(4):
    its = []
    for s in range(32):
        acc = vr(FACC[b & 1], 16)
        it = [mfma(acc, ar(aF + 4 * ((32 * b + s) & 7), 4), vr(X + 4 * s, 4), acc if s else '0')]
        n = s + LA_F
        if n < 32:
            it += f_read(b, n)
        elif b < 3:
            it += f_read(b + 1, n - 32)
        its.append(it)
    F_items.append(its)

FLA, FLP = VNM, VRS
fill = late + (pf if OPT['pfat'] < 0 else []) + L(f"""
v_lshrrev_b32 v{t0}, 3, v{vL}
v_bfe_u32 v{t1}, v{vL}, 4, 1
v_lshlrev_b32 v{t1}, 2, v{t1}
v_xor_b32 v{t1}, v{t1}, v{vL}
v_and_b32 v{t1}, 7, v{t1}
v_lshlrev_b32 v{t1}, 4, v{t1}
v_lshl_add_u32 v{XG[0]}, v{t0}, 10, v{t1}
v_add_u32 v{XG[1]}, {7 * 1024}, v{XG[0]}
v_add_u32 v{XG[2]}, {14 * 1024}, v{XG[0]}
v_add_u32 v{XG[3]}, {21 * 1024}, v{XG[0]}
v_lshrrev_b32 v{t2}, 5, v{vL}
v_lshlrev_b32 v{t2}, 6, v{t2}
v_add_u32 v{t2}, {TB}, v{t2}
s_lshl_b32 s{sT2}, s{sW}, 8
v_add_u32 v{t1}, s{sT2}, v{t2}""")
fill += [I(f'ds_read_b128 {vr(FACC[1] + 4 * q, 4)}, v{t1} offset:{128 + 16 * q}') for q in range(4)]
xa, xb = TT + 14, TT + 15
xe = L(f"""v_and_b32 v{xa}, 31, v{vL}
    v_lshrrev_b32 v{xb}, 5, v{vL}
    v_lshlrev_b32 v{xb}, 14, v{xb}
    v_lshl_add_u32 v{xb}, v{xa}, 1, v{xb}
    s_lshl_b32 s{sONES}, s{sJJ}, 2
    s_add_u32 s{sONES}, s{sONES}, s{sKQ}
    s_lshl_b32 s{sONES}, s{sONES}, 6
    v_lshl_add_u32 v{xa}, v{xa}, 1, s{sONES}
    s_add_u32 s{sXB}, s{sXB}, s{sONES}
    global_load_short_d16_hi a{aXE + 16}, v{xa}, s[{pDSK}:{pDSK + 1}]""")
for r in range(16):
    if r % 4 == 0:
        xe.append(I(f's_add_u32 s{sONES}, s{sXB}, {1024 * r}'))
    xe.append(I(f'buffer_load_short_d16_hi a{aXE + r}, v{xb}, {srd(sX)}, s{sONES} offen offset:{1024 * (r & 3)}'))
Y = FACC[0]
fill += L(f"""s_lshl_b32 s{sT2}, s{sJ}, 4
    s_add_u32 s{sT2}, s{sT2}, s{sI}
    s_lshl_b32 s{sT2}, s{sT2}, 9
    s_add_u32 s{sT2}, s{sT2}, {WS_AG - 512}
    s_cmp_eq_u32 s{sW}, 3
    s_cselect_b32 s{sT2}, s{sT2}, {OOB:#x}
    v_mov_b32 v{Y + 8}, {OOB:#x}
    v_cmp_gt_u32 vcc, 32, v{vL}
    v_add_u32 v{Y}, s{sT2}, v{VL16}
    v_lshrrev_b32 v{t0}, 5, v{vL}
    v_cndmask_b32 v{Y}, v{Y}, v{Y + 8}, vcc
    s_lshl_b32 s{sT2}, s{sW}, 2
    s_add_u32 s{sT2}, s{sT2}, s{sI}
    s_sub_u32 s{sT2}, s{sT2}, 16
    v_lshl_add_u32 v{t0}, v{t0}, 1, s{sT2}
    s_lshl_b32 s{sT2}, s{sJ}, 13
    s_add_u32 s{sT2}, s{sT2}, {WS_AG}
    v_and_b32 v{Y + 9}, 31, v{vL}
    v_lshl_add_u32 v{t1}, v{Y + 9}, 4, s{sT2}
    v_lshl_add_u32 v{Y + 1}, v{t0}, 9, v{t1}
    v_cmp_gt_i32 vcc, 0, v{t0}
    v_add_u32 v{Y + 2}, 512, v{Y + 1}
    v_mov_b32 v{t1}, s{sTAG}
    v_cndmask_b32 v{Y + 1}, v{Y + 1}, v{Y + 8}, vcc
    v_cndmask_b32 v{Y + 3}, v{t1}, 0, vcc
    v_cmp_gt_i32 vcc, -1, v{t0}
    s_lshl_b32 s{sT2}, s{sJJ}, 9
    s_add_u32 s{sT2}, s{sT2}, s{sFLG}
    v_cndmask_b32 v{Y + 2}, v{Y + 2}, v{Y + 8}, vcc
    v_cndmask_b32 v{Y + 4}, v{t1}, 0, vcc
    v_lshl_add_u32 v{Y + 5}, v{Y + 9}, 2, s{sT2}
    v_and_b32 v{t0}, 3, v{vL}
    v_max_u32 v{t0}, 1, v{t0}
    v_xor_b32 v{t0}, s{sJJ}, v{t0}
    v_lshl_add_u32 v{Y + 6}, v{t0}, 9, s{sFLG}
    s_bitcmp1_b32 s{sJJ}, 0
    s_cselect_b32 s{sT2}, {OOB:#x}, 0
    v_add_u32 v{Y + 7}, s{sT2}, v{VL16}
    s_and_b32 s{sT2}, s{sJJ}, 1
    s_lshl_b32 s{sT2}, s{sT2}, 6""") + [I(f'v_xor_b32 v{AS[q]}, s{sT2}, v{AS[q]}') for q in range(4)]
fill += park(pub=Y, lba0=Y + 1, lba1=Y + 2, lbe0=Y + 3, lbe1=Y + 4, fla=Y + 5, flp=Y + 6, f3o=Y + 7)
if OPT['tlb'] in (2, 3):
    fill = touch_o + fill
if OPT['fw']:
    fill += L(f"""s_lshl_b32 s{sT2}, s{sJJ}, 9
        s_add_u32 s{sT2}, s{sT2}, s{sFLG}
        v_lshlrev_b32 v{t0}, 3, v{vL}
        v_mov_b32 v{TT}, 0
        v_mov_b32 v{TT + 1}, 0
        buffer_store_dwordx2 {vr(TT, 2)}, v{t0}, {srd(sWS)}, s{sT2} offen sc1""")
if OPT['xw'] == 1:
    fill += L(f'v_lshlrev_b32 v{t0}, 2, v{vL}')
    for b in (1, 2, 3):
        fill += L(f"""buffer_store_dwordx4 {vr(TT, 4)}, v{VL16}, {srd(sWS)}, s{sXO[b]} offen sc1
            buffer_store_dwordx4 {vr(TT, 4)}, v{VL16}, {srd(sWS)}, s{sXO[b]} offen offset:1024 sc1
            buffer_store_dword v{vL}, v{t0}, {srd(sWS)}, s{sXO[b]} offen offset:2048 sc1""")
elif OPT['xw']:
    fill += L(f"""v_lshlrev_b32 v{t0}, 7, v{vL}
        v_min_u32 v{t0}, {59 * 128}, v{t0}
        buffer_load_dword a60, v{t0}, {srd(sWS)}, s{sXO[0]} offen {('', '', 'sc1', 'sc1 nt')[OPT['xw']]}""")
if not OPT['xel']:
    cut = len(fill) * OPT['xes'] // 100
    fill, xe = fill[:cut] + merge(fill[cut:], xe), []
OPT['dsp'] = OPT['dsps']
srounds = [(2, rg(4)), (14, rg(5)), (28, rg(6)), (42, rg(7))] if OPT['sch'] == 1 else \
    [(2, rg(5)), (14, rg(6)), (28, rg(7)), (42, rg(8))]
pin = pins(*srounds, (24, BAR('G2', 'G3')), (63 - LA_F, stamp('s59') + BAR('G4', 'G5') + stamp('b2')))
OPT['dsp'] = DSP
P += weave(fine('S', S_items, 3), fill, pin, 0, 62 - LA_F)

Q = FACC[1]
V = lambda t: SRE + t if t % 2 == 0 else SIM + t - 1
AGR, AGI = VRS, t3
fill = []
for q in range(8):
    for h in range(2):
        r = 2 * q + h
        fill += L(f"""v_mul_f32 v{TT + 2 * h}, v{SRE + r}, v{CR}
            v_mul_f32 v{TT + 2 * h + 1}, v{SRE + r}, v{NCI}
            v_fmac_f32 v{TT + 2 * h}, v{SIM + r}, v{NCI}
            v_fmac_f32 v{TT + 2 * h + 1}, v{SIM + r}, v{NCR}""")
    for h in range(2):
        r = 2 * q + h
        fill += L(f"""v_mul_f32 v{V(r)}, v{TT + 2 * h}, v{Q + r}
            v_mul_f32 v{V(r) + 1}, v{TT + 2 * h + 1}, v{Q + r}""")
    for r in (2 * q, 2 * q + 1):
        if r:
            pr = V(0) if r == 1 else (t0 if r & 1 else AGR)
            pi_ = V(0) + 1 if r == 1 else (FAd if r & 1 else AGI)
            nr, ni = (AGR, AGI) if r & 1 else (t0, FAd)
            fill += L(f"""v_fma_f32 v{nr}, v{LR}, v{pr}, v{V(r)}
                v_fma_f32 v{ni}, v{LR}, v{pi_}, v{V(r) + 1}
                v_fmac_f32 v{nr}, v{NLI}, v{pi_}
                v_fmac_f32 v{ni}, v{LI}, v{pr}""")
fill = fetch(seg=t1) + fill
fill.append(I(f'ds_write_b64 v{t1}, {vr(AGR, 2)} offset:{7 * 256}', tok='segw'))
frounds = [(1, rg(8)), (12, rg(9))] if OPT['sch'] == 1 else [(1, rg(9)), (12, rg(10))]
pin = pins(*frounds, (15 - LA_F, BAR('G6', 'G7')), (31, BAR('segw')))
if 0 <= OPT['pfat'] < 32:
    pin.setdefault(OPT['pfat'], []).extend(pf)
P += weave(fine('F0', F_items[0], 3), fill, pin, 2, 30)
P += stamp('F0')

E = ASc[0]
R0, R1, T0_, T1_ = TT + 8, TT + 12, ASc[0], ASc[2]
m0 = mish(0)
q0 = len(m0) // 4 - 4
fill = [I(f'ds_read2_b64 {vr(R0, 4)}, v{t1} offset0:0 offset1:32'),
        I(f'ds_read2_b64 {vr(R1, 4)}, v{t1} offset0:64 offset1:96')] + m0[:q0]
fill += cmul_add(PR, PI, L16R, L16I, R0, R0 + 1, R0 + 2, R0 + 3)
fill.append(I(f'ds_read2_b64 {vr(R0, 4)}, v{t1} offset0:128 offset1:160'))
fill += cmul_add(T0_, T0_ + 1, L16R, L16I, PR, PI, R1, R1 + 1)
fill += cmul_add(PR, PI, L16R, L16I, T0_, T0_ + 1, R1 + 2, R1 + 3)
fill.append(I(f'ds_read_b64 {vr(R1, 2)}, v{t1} offset:{6 * 256}'))
fill += m0[q0:2 * q0]
fill += cmul_add(T0_, T0_ + 1, L16R, L16I, PR, PI, R0, R0 + 1)
fill += cmul_add(T1_, T1_ + 1, L16R, L16I, T0_, T0_ + 1, R0 + 2, R0 + 3)
fill += cmul_add(PR, PI, L16R, L16I, T1_, T1_ + 1, R1, R1 + 1)
fill += cmul_add(E, E + 2, L16R, L16I, PR, PI, AGR, AGI)
fill += fetch(pub=t1) + L(f"""v_mov_b32 v{E + 1}, s{sTAG}
    v_mov_b32 v{E + 3}, s{sTAG}
    buffer_store_dwordx4 {vr(E, 4)}, v{t1}, {srd(sWS)}, 0 offen sc1""")
fill += m0[2 * q0:]
frounds = [(0, rg(10)), (8, rg(11))] if OPT['sch'] == 1 else [(0, rg(11))]
pin = pins(*frounds, (OPT['wa0'], rw('WA0')), (31 - LA_F, BAR('G8', 'G9', 'G10', 'G11')))
P += weave(fine('F0', F_items[1], 3), fill, pin, 1, 31)
P += stamp('F1')

LBA = [CR, NCI]
LBE = [NCR, L16R]
LBD = [ASc[0], QG[0]]
FLV = L16I
lb_loads = '\n'.join(f'buffer_load_dwordx4 {vr(LBD[e], 4)}, v{LBA[e]}, {srd(sWS)}, 0 offen sc1' for e in range(2))
lb_setup = fetch(lba0=LBA[0], lba1=LBA[1], lbe0=LBE[0], lbe1=LBE[1])


def flag_store(stage, toks):
    out = [Wait(*toks), I(f'buffer_store_dword v{FLV}, v{FLA}, {srd(sWS)}, 0 offen offset:{128 * stage} sc1')]
    if OPT['ppf']:
        so = (sFST[0], sSST, sFST[2])[stage]
        vpf = L128R if stage else t3
        out = [I(f'v_lshlrev_b32 v{vpf}, {6 if stage < 2 else "s%d" % sSEL[1]}, v{vL}')] + out
        out.append(I(f'buffer_load_dword a{60 + (stage & 1)}, v{vpf}, {srd(sWS)}, s{so} offen sc1'))
    return out


def flag_load(stage):
    return f'buffer_load_dword v{t3}, v{FLP}, {srd(sWS)}, 0 offen offset:{128 * stage} sc1'


flag_check = f'v_cmp_ne_u32 vcc, s{sTAG}, v{t3}'
lb_check = f"""v_bitop3_b32 v{t0}, v{LBD[0] + 1}, v{LBD[0] + 3}, v{LBE[0]} bitop3:0x7e
    v_bitop3_b32 v{t1}, v{LBD[1] + 1}, v{LBD[1] + 3}, v{LBE[1]} bitop3:0x7e
    v_or_b32 v{t0}, v{t0}, v{t1}
    v_cmp_ne_u32 vcc, 0, v{t0}"""
lb_part = stamp('lb0') + poll('lb', lb_loads, lb_check) + stamp('lb1')
lb_part += cmul_add(LBD[0] + 1, LBD[0] + 3, L128R, L128I, LBD[0], LBD[0] + 2, LBD[1], LBD[1] + 2)
lb_part += cmul_add(LBD[1], LBD[1] + 1, WR, WI, LBD[0] + 1, LBD[0] + 3)
lb_part += fetch(lbw=t1)
lb_part.append(I(f'ds_write_b64 v{t1}, {vr(LBD[1], 2)}', tok='lbw'))
HW, HR, HB = ASc[0], ASc[1], FACC[1]
HW2, HR2 = WR, WI
tail_addr = fetch(lbr=ASc[3], fla=FLA, flp=FLP) + L(f'v_mov_b32 v{FLV}, s{sTAG}\ns_mov_b32 s{sKC[0]}, {M2LN2:#x}')
lb_reads = [I(f'ds_read2_b64 {vr(HB + 4 * q, 4)}, v{ASc[3]} offset0:{64 * q} offset1:{64 * q + 32}') for q in range(4)]
scan = [I(f'v_pk_add_f32 {vr(HB + a, 2)}, {vr(HB + a, 2)}, {vr(HB + b_, 2)}')
        for a, b_ in ((0, 2), (4, 6), (8, 10), (12, 14), (0, 4), (8, 12), (0, 8))]
scan += cmul_add(L128R, L128I, LSR, LSI, HB, HB + 1, PR, PI)
pack = lambda q: L(f"""v_cvt_pk_bf16_f32 v{SRE + q}, v{V(2 * q)}, v{V(2 * q + 1)}
    v_cvt_pk_bf16_f32 v{SIM + q}, v{V(2 * q) + 1}, v{V(2 * q + 1) + 1}""")
for r in range(16):
    prev = vr(L128R if r == 0 else V(r - 1), 2)
    scan += L(f"""v_pk_fma_f32 {vr(V(r), 2)}, {prev}, {vr(LR, 2)}, {vr(V(r), 2)} op_sel_hi:[1,0,1]
        v_pk_fma_f32 {vr(V(r), 2)}, {prev}, {vr(NLI, 2)}, {vr(V(r), 2)} op_sel:[1,0,0] op_sel_hi:[0,1,1]""")
    if r >= 2 and r % 2 == 0 and OPT['pk_in']:
        scan += pack(r // 2 - 1)
transp = fetch(hw=HW, hw2=HW2, hr=HR, hr2=HR2) + sum((pack(q) for q in range(7 if OPT['pk_in'] else 0, 8)), [])
for ri in range(2):
    transp += [I(f'ds_write_b128 v{(HW, HW2)[h]}, {vr((SRE, SIM)[ri] + 4 * h, 4)}') for h in range(2)]
    for fr in range(2):
        for u in range(2):
            transp.append(I(f'ds_read_b64_tr_b16 {ar(aOS + 8 * ri + 4 * fr + 2 * u, 2)}, v{(HR, HR2)[u]} offset:{1024 * fr + 256 * u}'))
stH = [I(f'buffer_store_dwordx4 {ar(aOS + 4 * q, 4)}, v{VL16}, {srd(sWS)}, s{sSST} offen offset:{1024 * q} sc1',
         tok='stH' if q == 3 else None) for q in range(4)]
m1 = mish(1)
per = sum(i.slots() for i in lb_setup + m1 + lb_part + tail_addr) / 27
c1 = next(n for n in range(len(m1)) if sum(i.slots() for i in lb_setup + m1[:n]) >= per * (OPT['lbl'] - 2))
c2 = len(m1) - OPT['lbt']
fill = lb_setup + m1[:c1] + L(lb_loads) + m1[c1:c2] + lb_part + m1[c2:] + tail_addr
pin = pins((0, rw('CR0')), (8, rw('CI0')), (18, rw('WA1')), (29, BAR('lbw') + lb_reads))
P += weave(fine('F2', F_items[2], 2), fill, pin, 2, 28)
P += stamp('F2')
m2 = mish_pk(2, VL16, range(1))
burst = m2[:2] + merge(scan, m2[2:-5])
if OPT['fas'] < 0:
    burst = burst[:OPT['fas']] + flag_store(0, ['stF0', 'stF1']) + burst[OPT['fas']:]
if OPT['fine'] == 'T':
    for n in range(len(burst) - 12, 0, -12):
        burst = burst[:n] + stamp(f'g{n}') + burst[n:]
P += burst
P += stamp('scan')


FP0, FPc = [CR, NCI], [QG[2], QG[3]]
PA = OPT['pa']
p3_setup = fetch(fp0=FP0[0], fp1=FP0[1], f3o=ASc[2])
mq = mish(2, VL16, (2, 3))
hs = OPT['hs']
lead = [i_ for i_ in transp if i_.kind != 'ds']
tds = transp[len(lead):]
P += lead
fill = m2[-5:] + mq + p3_setup
tpins = [(0, tds[0:1]), (1, tds[1:2]), (2, tds[2:4]), (3, tds[4:6]), (4, tds[6:7]), (5, tds[7:8] + stH[0:1]),
         (6, tds[8:10]), (7, tds[10:12] + stH[1:2]), (7 + hs, stH[2:3]), (7 + 2 * hs, stH[3:4])]

steps = ([('WA0', x, 'own') for x in range(4)]
         + [(n, x, 'own') for n in ('CR0', 'CI0') for x in range(2)]
         + [(f'WA{e}', x, 'A') for e in (1, 2, 3) for x in range(4)]
         + [(n, x, 'H') for n in ('CR0', 'CI0') for x in (2, 3)]
         + [(n, x, 'H') for n in ('CR1', 'CI1') for x in range(4)]
         + [('WB0', x, 'own') for x in range(4)]
         + [(f'WB{e}', x, 'B') for e in (1, 2) for x in range(4)])
deferred = [k for k, st in enumerate(steps) if st[2] != 'own']
A_REGS = ([192 + 4 * n for n in range(16)] + [SRE + 4 * n for n in range(8)]
          + [FACC[0] + 4 * n for n in range(4)] + [TT + 4 * n for n in range(4)])
ACC = [128, 144, 160, 176]
cur_addr = {}


def a_frag(k):
    name, x, src = steps[k]
    if src != 'own':
        return vr(A_REGS[deferred.index(k)], 4)
    if name == 'WA0':
        return ar(aOF + 4 * x, 4)
    if name == 'WB0':
        return ar(aOF + 16 + 4 * x, 4) if x < 2 else vr(FACC[1] + 4 * (x - 2), 4)
    return ar(aOS + 8 * (name[1] == 'I') + 4 * x, 4)


def a_load(k):
    name, x, src = steps[k]
    e = int(name[2])
    if name[0] == 'C':
        code = f's_xor_b32 s{sT1}, s{sJJ}, {2 * e + (x >> 1)}\ns_lshl_b32 s{sT1}, s{sT1}, 12\n' \
               f's_add_u32 s{sT1}, s{sT1}, {28 * 1024}\ns_add_u32 s{sT1}, s{sT1}, s{sAS}'
        off = 2048 * (name[1] == 'I') + 1024 * (x & 1)
        fresh = x & 1 == 0
    else:
        if name[1] == 'A':
            code = f's_xor_b32 s{sT1}, s{sJJ}, {e}\ns_lshl_b32 s{sT1}, s{sT1}, 13\ns_add_u32 s{sT1}, s{sT1}, s{sAS}'
        else:
            code = f's_lshl_b32 s{sT1}, s{sPB[e]}, 12\ns_add_u32 s{sT1}, s{sT1}, s{sAS}'
        off = 1024 * x
        fresh = x == 0
    return (L(code) if fresh else []) + \
        [I(f'buffer_load_dwordx4 {a_frag(k)}, v{VL16}, {srd(sWS)}, s{sT1} offen offset:{off} sc1')]


pin = pins((PA, rw('WA2')), (PA + 8, BAR()), (PA + 9, rw('WA3')), (PA + 17, BAR()), (PA + 18, rw('CR1')),
           (OPT['fal'], L(flag_load(0))), (30, BAR('WA0', 'CR0', 'CI0', 'WA1')), *tpins)
if OPT['fhs'] >= 0:
    pin[OPT['fhs']] = flag_store(1, ['stH'])
if OPT['fas'] >= 0:
    pin[OPT['fas']] = flag_store(0, ['stF0', 'stF1'])
P += weave(fine('F3', F_items[3], 2), fill, pin, 1, 29)
P += stamp('F3')

m3 = mish_pk(3, ASc[2])
st0 = next(n for n, i_ in enumerate(m3) if i_.kind == 'vm')
early = sum((a_load(k) for k in range(8, 8 + OPT['nea'])), [])
fac = st0 - OPT['fac']
TAIL0 = len(P) + 4
P += m3[:fac] + (flag_store(1, ['stH']) if OPT['fhs'] == -1 else [])
P += stamp('fa0') + poll('fa', flag_load(0), flag_check) + stamp('fa1')
tl = merge(m3[fac:st0], early) + (L(flag_load(1)) if OPT['fhl'] < 0 else []) + m3[st0:]
if OPT['fine'] == 'T':
    for n in range(len(tl) - 12, 0, -12):
        tl = tl[:n] + stamp(f'gt{n}') + tl[n:]
P += tl
P += stamp('tail')

XE, ME = 192, LSR
ep_setup = L(f"""v_lshrrev_b32 v{t1}, 5, v{vL}
    s_lshl_b32 s{sT2}, s{sW}, 8
    s_add_u32 s{sT2}, s{sT2}, {T_STAT}
    v_lshl_add_u32 v{VLN2}, v{t1}, 6, s{sT2}
    v_lshlrev_b32 v{FA0}, 15, v{t1}
    v_and_b32 v{t0}, 31, v{vL}
    v_lshl_add_u32 v{FA0}, v{t0}, 2, v{FA0}""")
VL4 = ASc[0]
ep_setup = L(f'v_lshlrev_b32 v{VL4}, 2, v{vL}') + ep_setup
base_calc = [I(f'v_accvgpr_read_b32 v{RL2}, a{aXE + 16}')]
for qt in range(4):
    base_calc += [I(f'ds_read_b128 {vr(ME, 4)}, v{VLN2} offset:{16 * qt}', hoist=True),
                  I(f'ds_read_b128 {vr(ME + 4, 4)}, v{VLN2} offset:{128 + 16 * qt}', hoist=True)]
    rs = range(4)
    base_calc += [I(f'v_accvgpr_read_b32 v{XE + 4 * qt + r}, a{aXE + 4 * qt + r}') for r in rs]
    base_calc += [I(f'v_sub_f32 v{ME + r}, v{XE + 4 * qt + r}, v{ME + r}') for r in rs]
    base_calc += [I(f'v_mul_f32 v{ME + r}, v{ME + r}, v{ME + 4 + r}') for r in rs]
    base_calc += [I(f'v_fmac_f32 v{XE + 4 * qt + r}, v{ME + r}, v{RL2}') for r in rs]

def checksum(dst, src, last):
    return [f'v_bitop3_b32 v{dst}, v{src}, v{src + 1}, {last} bitop3:0x96'] + \
           [f'v_bitop3_b32 v{dst}, v{src + e}, v{src + e + 1}, v{dst} bitop3:0x96' for e in (2, 4, 6)]


def send(b):
    A = ACC[b]
    out = []
    for q in range(2):
        out += [I(f'v_cvt_pk_bf16_f32 v{A + e}, v{A + 2 * e}, v{A + 2 * e + 1}') for e in range(4 * q, 4 * q + 4)]
        out.append(I(f'buffer_store_dwordx4 {vr(A + 4 * q, 4)}, v{VL16}, {srd(sWS)}, s{sXO[b]} offen '
                     f'offset:{1024 * q} sc1'))
    out += [I(c) for c in checksum(A + 8, A, f's{sTAG}')]
    out.append(I(f'buffer_store_dword v{A + 8}, v{VL4}, {srd(sWS)}, s{sXO[b]} offen offset:2048 sc1'))
    return out


def w_read1(k, b, dst):
    name, x, src = steps[k]
    slot = W_SLOT[name]
    if name[0] == 'C':
        return [I(f'v_add_u32 v{FAc}, {slot * SLOT}, v{AS[x]}'),
                I(f'ds_read_b128 {ar(dst, 4)}, v{FAc} offset:{4096 * b}', lds_r=slot)]
    key = FPc[b & 1]
    out = []
    if cur_addr.get(key) != slot:
        cur_addr[key] = slot
        out.append(I(f'v_add_u32 v{key}, {slot * SLOT}, v{FP0[b & 1]}'))
    return out + [I(f'ds_read_b64_tr_b16 {ar(dst + 2 * u, 2)}, v{key} '
                    f'offset:{8192 * (x >> 1) + 4096 * (b >> 1) + 2048 * (x & 1) + 1024 * u}', lds_r=slot) for u in range(2)]


RX = {1: ACC[1], 2: ACC[2], 3: ACC[3]}


def recv(b):
    so = sXO[0] if b == 1 else sSEL[b]
    rl = [f'buffer_load_dwordx4 {vr(RX[b] + 4 * q, 4)}, v{VL16}, {srd(sWS)}, s{so} offen offset:{1024 * q} sc1' for q in range(2)]
    rl.append(f'buffer_load_dword v{RX[b] + 8}, v{VL4}, {srd(sWS)}, s{so} offen offset:2048 sc1')
    return '\n'.join(rl)


pre = L(f"""s_lshl_b32 s{sXB}, s{sXB}, 1
    s_mov_b32 s{sKC[0]}, 0x00003f80
    s_mov_b32 s{sKC[1]}, 0x3f800000""")
E3 = OPT['e3']
seq = [(k, b) for k in range(8) for b in (1, 2, 3, 0)] + [(k, b) for k in range(8, E3) for b in (1, 2, 3)]
seq += [(k, b) for k in range(E3, 36) for b in (1, 2)]
seq += [(k, b) for b in (1, 2) for k in range(36, 44)]
seq += [(k, 3) for k in range(E3, 44)] + [(k, 0) for k in range(8, 44)]
at = {kb: n for n, kb in enumerate(seq)}
done_at = {b: at[43, b] for b in (1, 2, 3)}
KEEP = {(k, 0): aWO + 4 * (k - 8) for k in range(8, 12)}
reads = sorted((kb for kb in seq), key=lambda kb: at[kb[0], 3] + 0.5 if kb in KEEP else at[kb])
RING = 12
where, nring = {}, 0
for kb in reads:
    if kb in KEEP:
        where[kb] = KEEP[kb]
    else:
        where[kb] = aP + 4 * (nring % RING)
        nring += 1
LA_J = OPT['laj']
items = []
rd = 0
seen = set()
for n, (k, b) in enumerate(seq):
    pre_rd = []
    while rd < len(reads) and (at[reads[rd][0], 3] if reads[rd] in KEEP else at[reads[rd]]) <= n + LA_J:
        pre_rd += w_read1(*reads[rd], where[reads[rd]])
        rd += 1
    m = mfma(vr(ACC[b], 16), a_frag(k), ar(where[k, b], 4), vr(ACC[b], 16) if b in seen else '0')
    seen.add(b)
    if n == 0:
        P = P[:TAIL0] + pre_rd + P[TAIL0:]
        pre_rd = []
    items.append([m] + pre_rd)
pin = {n: [] for n in range(len(items))}
pin[18] += BAR('WA2')
pin[at[16, 1] - LA_J - 1] += [Wait('WA3', 'CR1', 'CI1'), I('s_barrier')]
pin[at[32, 1] - LA_J - 1] += [Wait('WB0', 'WB1', 'WB2'), I('s_barrier')]
if OPT['fhs'] < -1:
    pin[-OPT['fhs']] += flag_store(1, ['stH'])
if OPT['fhl'] >= 0:
    pin[OPT['fhl']] += L(flag_load(1))
pin[OPT['fhc']] += stamp('fh0') + poll('fh', flag_load(1), flag_check) + stamp('fh1')
pin[OPT['fls']] += flag_store(2, ['stF3', 'stF2'])
pin[OPT['fll']] += L(flag_load(2))
pin[OPT['flc']] += stamp('fl0') + poll('fl', flag_load(2), flag_check) + stamp('fl1')
pin[at[36, 1] - 1] += stamp('k36')
if OPT['stg']:
    rw = lambda name: []
    for name, gap in (('CI1', 1), ('WB0', 19), ('WB1', 24), ('WB2', at[16, 1] - LA_J)):
        for n, i_ in enumerate(stage_write(name)):
            pin[gap + max(n - 2, 0)].append(i_)
queue = [(OPT['q0'], a_load(k)) for k in range(8 + OPT['nea'], 16)] + [(0, rw('CI1'))]
queue += [(OPT['q0'], a_load(k)) for k in range(max(16, 8 + OPT['nea']), 20)]
if OPT['qord'] == 0:
    queue += [(19, rw('WB0'))] + [(OPT['fhc'], a_load(k)) for k in range(20, 32)] + [(19, rw('WB1'))]
elif OPT['qord'] == 1:
    queue += [(19, rw('WB0')), (19, rw('WB1'))] + [(OPT['fhc'], a_load(k)) for k in range(20, 32)]
else:
    queue += [(OPT['fhc'], a_load(k)) for k in range(20, 24)] + [(19, rw('WB0')), (19, rw('WB1'))]
    queue += [(0, a_load(k)) for k in range(24, 32)]
queue += [(at[16, 1] - LA_J, rw('WB2'))]
queue += [(OPT['flc'], a_load(k)) for k in range(36, 44)]
n = 0.0
for first_gap, ins in queue:
    n = max(n, first_gap)
    pend = []
    for i_ in ins:
        pend.append(i_)
        if i_.kind == 'vm':
            pin[int(n)] += pend
            pend = []
            n += OPT['pace'] / 10
for b in (1, 2, 3):
    sd = send(b)
    for q in range(4):
        pin[done_at[b] + 3 + q] += sd[q * len(sd) // 4:(q + 1) * len(sd) // 4]
    pin[done_at[min(b + 1, 3) if b < 3 else 3] + OPT[f'r{b}'] if b != 2 else done_at[2] + OPT['r2']] += L(recv(b))
pin[done_at[2] + 6] += stamp('s12')
pin[done_at[3] + 6] += stamp('sent')
items = fine('P3', items[:OPT['fn'] * 27], OPT['fn']) + items[OPT['fn'] * 27:]
LEV[0] = OPT['lev3']
sub = lambda lo, hi: {n - lo: pin[n] for n in range(lo, hi)}
c1, c2 = at[32, 1], at[11, 0] + 1
P += weave(items[:c1], [], sub(0, c1))
cx = done_at[2] + 8
P += weave(items[c1:cx], ep_setup, sub(c1, cx), 0, 4)
P += weave(items[cx:c2], xe + pre, sub(cx, c2), 0, 18)
def rx_check(b):
    chk = checksum(RX[b] + 9, RX[b], f'v{RX[b] + 8}') + [f'v_cmp_ne_u32 vcc, s{sTAG}, v{RX[b] + 9}']
    return poll(f'rx{b}', recv(b), '\n'.join(chk))


EARLY = range(1, 1 + OPT['rxe'])
for b in EARLY:
    base_calc += rx_check(b)
    for q in range(8):
        u = RX[b] + 10 + 2 * (q & 1)
        base_calc += L(f"""v_lshlrev_b32 v{u}, 16, v{RX[b] + q}
            v_and_b32 v{u + 1}, 0xffff0000, v{RX[b] + q}
            v_add_f32 v{XE + 2 * q}, v{XE + 2 * q}, v{u}
            v_add_f32 v{XE + 2 * q + 1}, v{XE + 2 * q + 1}, v{u + 1}""")
P += weave(items[c2:], base_calc, sub(c2, len(items)), 3, 30 if OPT['rxe'] else 26)
P += stamp('own')
A0 = ACC[0]
for q in range(8):
    P.append(I(f'v_pk_add_f32 {vr(A0 + 2 * q, 2)}, {vr(A0 + 2 * q, 2)}, {vr(XE + 2 * q, 2)}'))
LATE = [b for b in (1, 2, 3) if b not in EARLY]
for b in LATE:
    P += rx_check(b)
P += stamp('rx')
for q in range(8):
    for b in LATE:
        P += [I(f'v_dot2c_f32_bf16 v{A0 + 2 * q + h}, s{sKC[h]}, v{RX[b] + q}') for h in range(2)]
    if q:
        P += sts
    sts = [I(f's_add_u32 s{sBB}, s{sXB}, {4096 * q}')]
    sts += [I(f'buffer_store_dword v{A0 + 2 * q + h}, v{FA0}, {srd(sOUT)}, s{sBB} offen offset:{2048 * h} '
              f'{OPT["out_flags"].replace("+", " ")}') for h in range(2)]
P += L(f"""s_lshl_b32 s{sT2}, s{sJ}, 2
    s_add_u32 s{sT2}, s{sT2}, s{sW}
    s_xor_b32 s{sT1}, s{sI}, 15
    s_or_b32 s{sT2}, s{sT2}, s{sT1}
    s_cmp_eq_u32 s{sT2}, 0
    s_cselect_b32 s{sT2}, {WS_EP}, {OOB:#x}
    v_mov_b32 v{t0}, s{sE2}
    v_mov_b32 v{t1}, s{sT2}""") + sts + L(f'buffer_store_dword v{t0}, v{t1}, {srd(sWS)}, 0 offen')
if OPT['diag']:
    P += stamp('end') + L("""s_memrealtime s[6:7]
        s_waitcnt lgkmcnt(0)
        s_sub_u32 s4, s4, s23
        s_lshl_b32 s4, s4, 2
        s_min_u32 s4, s4, 20000
        L_diag:
        s_memrealtime s[0:1]
        s_waitcnt lgkmcnt(0)
        s_sub_u32 s0, s0, s6
        s_cmp_lt_u32 s0, s4
        s_cbranch_scc1 L_diag""")
if PROF:
    P += stamp('end')
    P += L(f"""s_waitcnt vmcnt(0)
        s_memrealtime s[0:1]
        s_lshl_b32 s{sT2}, s2, 2
        s_add_u32 s{sT2}, s{sT2}, s{sW}
        s_lshl_b32 s{sT2}, s{sT2}, 7
        s_add_u32 s{sT2}, s{sT2}, {WS_PROF}
        v_mov_b32 v{t1}, s{sT2}
        s_waitcnt lgkmcnt(0)
        v_mov_b32 v{t0}, s0
        buffer_store_dword v{t0}, v{t1}, {srd(sWS)}, 0 offen offset:124
        v_mov_b32 v{t2}, s23
        buffer_store_dword v{t2}, v{t1}, {srd(sWS)}, 0 offen offset:112
        buffer_store_dword a254, v{t1}, {srd(sWS)}, 0 offen offset:116
        buffer_store_dword a255, v{t1}, {srd(sWS)}, 0 offen offset:120""")
    P += stamp('DUMP')
P += [I('L_end:'), I('s_endpgm')]

P = resolve_stamps(P)
if OPT['split']:
    P = split_ds_pairs(P)
if OPT['hoist']:
    P = hoist_reads(P, OPT['hoist'])
body = pad_hazards(insert_waits(P, OPT['age']))
tail = []
for name, loads, check in retry_blocks:
    blk = [I(f'L_retry_{name}:'), I(f's_mov_b32 s3, {OPT["spin"]}'), I(f'L_spin_{name}:')]
    if PROF:
        blk.append(I(f's_add_u32 s23, s23, {1 << (4 * retry_blocks.index((name, loads, check)))}'))
    blk += L(loads) + [I('s_waitcnt vmcnt(0)')] + L(check)
    blk += L(f'''s_cbranch_vccz L_back_{name}
        s_sub_u32 s3, s3, 1
        s_cmp_lg_u32 s3, 0
        s_cbranch_scc1 L_spin_{name}
        s_branch L_back_{name}''')
    tail += pad_hazards(blk)

hdr = open(os.path.join(os.path.dirname(os.path.abspath(__file__)), 'header.txt')).read()
text = hdr + f'''; @launch grid=(256,1,1) block=(256,1,1) lds=163840
.amdgcn_target "amdgcn-amd-amdhsa--gfx950"
.text
.globl {KN}
.p2align 8
.type {KN},@function
{KN}:
{render(body)}
{render(tail)}
L_code_end:
    s_endpgm
.section .rodata,"a"
.p2align 6
.amdhsa_kernel {KN}
  .amdhsa_next_free_vgpr 512
  .amdhsa_next_free_sgpr 102
  .amdhsa_accum_offset 256
  .amdhsa_group_segment_fixed_size 0
  .amdhsa_kernarg_size 128
  .amdhsa_user_sgpr_count 2
  .amdhsa_user_sgpr_kernarg_segment_ptr 1
  .amdhsa_system_sgpr_workgroup_id_x 1
.end_amdhsa_kernel
'''
open(sys.argv[1], 'w').write(text)
if PROF:
    open(sys.argv[1][:-2] + '.stamps', 'w').write(' '.join(stamp_names))
from collections import Counter
cnt = Counter(i.kind for i in body)
print(dict(cnt), 'nops', sum(1 for i in body if i.mn == 's_nop'))
```

```python
import re

TRANS = ('v_exp_f32', 'v_log_f32', 'v_rcp_f32', 'v_rsq_f32', 'v_sqrt_f32', 'v_sin_f32', 'v_cos_f32')
RMW = ('v_fmac_f32', 'v_dot2c_f32_bf16', 'v_pk_fmac')
NO_DST_S = ('s_cmp', 's_waitcnt', 's_barrier', 's_cbranch', 's_branch', 's_nop', 's_sleep', 's_setprio',
            's_endpgm', 's_bitcmp')

_reg = re.compile(r'^(-|\|)?(abs\()?([vas])(\d+)\)?\|?$')
_rng = re.compile(r'^(-)?([vas])\[(\d+):(\d+)\]$')


def regs_of(op):
    op = op.strip()
    m = _rng.match(op)
    if m:
        return {(m.group(2), i) for i in range(int(m.group(3)), int(m.group(4)) + 1)}
    m = _reg.match(op)
    if m:
        return {(m.group(3), int(m.group(4)))}
    if op == 'vcc':
        return {('s', 'vcc')}
    if op == 'm0':
        return {('s', 'm0')}
    if op == 'exec':
        return {('s', 'exec')}
    return set()


class I:
    def __init__(self, text, tok=None, lds_r=None, lds_w=None, need=None, note=None, fills=None, hoist=False, sync=None):
        self.text = text
        self.tok = tok
        self.lds_r = lds_r
        self.lds_w = lds_w
        self.need = need or []
        self.note = note
        self.sync = sync
        self.hoist = hoist
        self.fills = fills
        self.r = set()
        self.w = set()
        self.kind = 'other'
        self.srcC = set()
        self.srcAB = set()
        self.parse()

    def parse(self):
        t = self.text.strip()
        if t.endswith(':') or t.startswith('.') or t.startswith(';') or not t:
            self.kind = 'label'
            self.mn = ''
            return
        parts = t.split(None, 1)
        mn = parts[0]
        self.mn = mn
        rest = parts[1] if len(parts) > 1 else ''
        ops = [o.strip() for o in re.split(r',(?![^\[]*\])', rest)] if rest else []
        if ops:
            last = ops[-1].split()
            ops[-1] = last[0] if last else ''
            mods = last[1:]
        else:
            mods = []
        R = [regs_of(o) for o in ops]
        allr = lambda lst: set().union(*lst) if lst else set()
        if mn.startswith('v_mfma'):
            self.kind = 'mfma'
            self.w = R[0]
            self.srcAB = R[1] | R[2]
            self.srcC = R[3]
            self.r = self.srcAB | self.srcC
            self.passes = 8 if '32x32x16' in mn else (4 if '16x16x32' in mn else 2)
        elif mn.startswith('v_'):
            base = re.sub(r'_(e32|e64|sdwa|dpp)$', '', mn)
            self.kind = 'trans' if base in TRANS else 'valu'
            self.w = R[0]
            self.r = allr(R[1:])
            if base in RMW or base.startswith('v_permlane'):
                self.r |= R[0]
            if base.startswith('v_permlane'):
                self.w |= R[1]
            if base.startswith('v_cndmask') and len(ops) == 3:
                self.r |= {('s', 'vcc')}
            if base.startswith(('v_add_co', 'v_sub_co', 'v_addc_co')):
                self.w |= R[1]
            self.dot = base.startswith('v_dot')
            self.base = base
        elif mn.startswith('ds_read'):
            self.kind = 'ds'
            self.w = R[0]
            self.r = allr(R[1:])
            if 'd16' in mn:
                self.r |= R[0]
        elif mn.startswith('ds_'):
            self.kind = 'ds'
            self.r = allr(R)
        elif mn.startswith('buffer_load') or mn.startswith('global_load'):
            self.kind = 'vm'
            if 'lds' in mods:
                self.r = allr(R) | {('s', 'm0')}
                self.dma = True
            else:
                self.w = R[0]
                self.r = allr(R[1:])
                if 'd16' in mn:
                    self.r |= R[0]
        elif mn.startswith(('buffer_store', 'global_store', 'buffer_atomic')):
            self.kind = 'vm'
            self.r = allr(R)
            self.store = True
            data = R[0] if mn.startswith('buffer') else R[1]
            self.wide = data if ('x3' in mn or 'x4' in mn) else set()
        elif mn.startswith(('s_load', 's_memtime', 's_memrealtime')):
            self.kind = 'smem'
            self.w = R[0]
            self.r = allr(R[1:])
        elif mn == 's_barrier':
            self.kind = 'barrier'
        elif mn == 's_waitcnt':
            self.kind = 'wait'
        elif mn.startswith('s_'):
            self.kind = 'salu'
            if mn.startswith(NO_DST_S):
                self.r = allr(R)
            else:
                self.w = R[0]
                self.r = allr(R[1:])
            if mn.startswith(('s_addk', 's_mulk', 's_bitset')):
                self.r |= R[0]
        else:
            raise ValueError('cannot classify: ' + t)

    def slots(self):
        if self.kind == 'label':
            return 0
        if self.kind == 'trans':
            return 2
        if self.kind == 'mfma':
            return 2
        return 1


class Wait(I):
    def __init__(self, *toks):
        I.__init__(self, '; wait ' + ' '.join(toks))
        self.need = list(toks)
        self.kind = 'pseudo'


def insert_waits(prog, ds_age=10):
    out = []
    vm, lg = [], []
    done_ds = {}
    last_read_retired = {}
    pending_read = {}
    last_barrier = -1
    arrived = -1
    last_read_issue = {}
    split_ok = -1
    pos = 0
    fill_state = {}

    def retire(q, n):
        while len(q) > n:
            ins, _ = q.pop(0)
            if ins.fills is not None:
                fill_state[ins.fills[0]] = [ins.fills[1], len(out)]
            if ins.lds_r is not None:
                pending_read[ins.lds_r] -= 1
                if pending_read[ins.lds_r] == 0:
                    last_read_retired[ins.lds_r] = len(out)

    for ins in prog:
        if ins.text.startswith(';age'):
            ds_age = int(ins.text.split()[1])
            continue
        if ins.text.startswith(';drain'):
            retire(vm, 0)
            retire(lg, 0)
            continue
        touched = ins.r | ins.w
        nv = nl = None
        for q, which in ((vm, 'v'), (lg, 'l')):
            need = None
            for k, (o, _) in enumerate(q):
                hit = bool(o.w & touched) or (o.tok is not None and o.tok in ins.need)
                if hit:
                    need = len(q) - 1 - k
            if need is not None:
                if which == 'l':
                    k = len(q) - 1 - need
                    while k + 1 < len(q) and pos - q[k + 1][1] >= ds_age:
                        k += 1
                    nl = min(len(q) - 1 - k, 15)
                else:
                    nv = min(need, 63)
        if ins.kind == 'wait':
            m = re.search(r'vmcnt\((\d+)\)', ins.text)
            if m:
                retire(vm, int(m.group(1)))
            m = re.search(r'lgkmcnt\((\d+)\)', ins.text)
            if m:
                retire(lg, int(m.group(1)))
        if nv is not None or nl is not None:
            txt = 's_waitcnt'
            if nv is not None:
                txt += f' vmcnt({nv})'
                retire(vm, nv)
            if nl is not None:
                txt += f' lgkmcnt({nl})'
                retire(lg, nl)
            out.append(I(txt))
            pos += 1
        if ins.kind == 'pseudo':
            continue
        if ins.lds_w is not None:
            slot, shared_before = ins.lds_w
            assert pending_read.get(slot, 0) == 0, f'LDS slot {slot} overwritten while read outstanding: {ins.text}'
            if shared_before and slot in last_read_retired:
                assert last_barrier >= last_read_retired[slot] or split_ok >= last_read_issue[slot], \
                    f'LDS slot {slot} reused without a barrier after its last read: {ins.text} ({ins.note})'
        if ins.lds_w is not None:
            fill_state[ins.lds_w[0]] = None
        if ins.lds_r is not None:
            st = fill_state.get(ins.lds_r)
            assert st is not None, f'LDS slot {ins.lds_r} read before its fill was waited for: {ins.text}'
            assert not st[0] or max(last_barrier, split_ok) >= st[1], f'shared slot {ins.lds_r} read without barrier: {ins.text}'
        if ins.kind == 'barrier':
            last_barrier = len(out)
        if ins.sync == 'arrive':
            arrived = len(out)
        if ins.sync == 'done':
            split_ok = arrived
        if ins.lds_r is not None:
            last_read_issue[ins.lds_r] = len(out)
        out.append(ins)
        pos += ins.slots()
        if ins.kind == 'vm':
            vm.append((ins, pos))
            assert len(vm) <= 63, 'vmcnt overflow'
        elif ins.kind == 'ds':
            lg.append((ins, pos))
            if ins.lds_r is not None:
                pending_read[ins.lds_r] = pending_read.get(ins.lds_r, 0) + 1
    return out


def states(ins):
    if ins.kind in ('label', 'pseudo'):
        return 0
    if ins.mn == 's_nop':
        return int(ins.text.split()[1]) + 1
    return 1


def required_gap(p, c):
    vgpr = lambda s: {x for x in s if x[0] in 'va'}
    sgpr = lambda s: {x for x in s if x[0] == 's'}
    g = 0
    pv = p.kind in ('valu', 'trans')
    cv = c.kind in ('valu', 'trans')
    if pv:
        wv = vgpr(p.w)
        ws = sgpr(p.w)
        if c.kind == 'mfma' and wv & c.r:
            g = max(g, 2)
        if p.kind == 'trans' and cv and c.kind != 'trans' and wv & c.r:
            g = max(g, 1)
        if p.kind == 'trans' and c.kind == 'trans' and wv & c.r:
            g = max(g, 1)
        if cv and c.base.startswith('v_permlane') and wv & c.r:
            g = max(g, 2)
        if cv and c.base.startswith(('v_readfirstlane', 'v_readlane')) and wv & c.r:
            g = max(g, 1)
        if cv and '_dpp' in c.mn and wv & c.r:
            g = max(g, 2)
        if ws & c.r:
            if cv:
                g = max(g, 2)
            elif c.kind == 'vm':
                g = max(g, 5)
            elif c.kind == 'salu':
                g = max(g, 1)
        if getattr(p, 'dot', False) and wv & (c.r | c.w) and c.kind != 'label':
            same = cv and c.base == p.base and not (wv & (c.r - c.w))
            if not same:
                g = max(g, 3)
    if p.kind == 'mfma':
        big = {2: 5, 4: 8, 8: 12}[p.passes]
        if c.kind == 'mfma':
            if p.w & c.srcAB:
                g = max(g, big)
            if p.w & c.srcC and not (p.w == c.srcC and p.passes == c.passes):
                g = max(g, {2: 4, 4: 6, 8: 10}[p.passes])
            if p.w == c.srcC and p.passes == 2:
                g = max(g, 2)
            if p.w & c.w and not (p.w & c.srcC):
                g = max(g, big)
        elif c.kind in ('valu', 'trans', 'ds', 'vm'):
            if p.w & (c.r | c.w):
                g = max(g, big)
            if cv and p.srcC & c.w:
                g = max(g, {2: 1, 4: 3, 8: 7}[p.passes])
    if p.kind == 'salu' and ('s', 'm0') in p.w and ('s', 'm0') in c.r and c.kind == 'vm':
        g = max(g, 1)
    if p.kind == 'vm' and getattr(p, 'wide', None) and p.wide & c.w:
        g = max(g, 2)
    return g


def pad_hazards(prog, window=24):
    out = []
    for ins in prog:
        if ins.kind not in ('label', 'pseudo'):
            dist = 0
            short = 0
            for p in reversed(out):
                if dist >= window:
                    break
                if p.kind not in ('label', 'pseudo'):
                    short = max(short, required_gap(p, ins) - dist)
                dist += states(p)
            while short > 0:
                n = min(short, 16)
                out.append(I(f's_nop {n - 1}'))
                short -= n
        out.append(ins)
    return out


def render(prog):
    lines = []
    for ins in prog:
        t = ins.text
        if ins.kind == 'label':
            lines.append(t)
        else:
            lines.append('    ' + t)
    return '\n'.join(lines)


def weave(mfmas, fill, pinned=None, first_gap=0, last_gap=None):
    pinned = pinned or {}
    n = len(mfmas)
    last_gap = n - 1 if last_gap is None else last_gap
    fixed = [sum(i.slots() for i in mfmas[g]) + sum(i.slots() for i in pinned.get(g, [])) for g in range(n)]
    total = sum(i.slots() for i in fill)
    span = list(range(first_gap, last_gap + 1))
    level = (total + sum(fixed[g] for g in span)) / len(span)
    out = []
    k = 0
    credit = 0.0
    for g in range(n):
        out += mfmas[g]
        out += pinned.get(g, [])
        if first_gap <= g <= last_gap:
            credit += level - fixed[g]
            while k < len(fill) and (credit >= fill[k].slots() - 0.5 or g == last_gap):
                out.append(fill[k])
                credit -= fill[k].slots()
                k += 1
                while k < len(fill) and (fill[k].mn.startswith(('s_cselect', 's_cbranch')) or fill[k].text.endswith(':')):
                    out.append(fill[k])
                    credit -= fill[k].slots()
                    k += 1
    assert k == len(fill)
    return out


def split_ds_pairs(prog, dist=2):
    out = list(prog)
    k = 1
    while k < len(out):
        ins = out[k]
        if ins.kind == 'ds' and ins.w and out[k - 1].kind == 'ds' and out[k - 1].w and not ins.need:
            j = k
            moved = 0
            while moved < dist and j + 1 < len(out):
                nx = out[j + 1]
                if nx.kind not in ('valu', 'trans') or (nx.r | nx.w) & ins.w or nx.w & ins.r:
                    break
                out[j], out[j + 1] = nx, ins
                j += 1
                moved += nx.slots()
        k += 1
    return out


def hoist_reads(prog, dist):
    out = list(prog)
    for k in range(len(out)):
        ins = out[k]
        if not ins.hoist:
            continue
        j = k
        moved = 0
        while j > 0 and moved < dist:
            pv = out[j - 1]
            stop = pv.kind in ('barrier', 'label', 'pseudo', 'wait') or pv.mn.startswith(('s_cbranch', 'ds_write'))
            if stop or (pv.r | pv.w) & ins.w or pv.w & ins.r:
                break
            out[j - 1], out[j] = ins, pv
            j -= 1
            moved += pv.slots()
    return out


def merge(a, b):
    ta = sum(i.slots() for i in a) or 1
    tb = sum(i.slots() for i in b) or 1
    out = []
    ia = ib = 0
    ca = cb = 0
    while ia < len(a) or ib < len(b):
        glued = ia < len(a) and (a[ia].mn.startswith(('s_cselect', 's_cbranch')) or a[ia].text.endswith(':'))
        if ib >= len(b) or glued or (ia < len(a) and ca * tb <= cb * ta):
            out.append(a[ia]); ca += a[ia].slots(); ia += 1
        else:
            out.append(b[ib]); cb += b[ib].slots(); ib += 1
    return out


def level(prog, free=6.0, vm_cost=2):
    cost = lambda i: vm_cost if i.kind == 'vm' else (0.5 if i.kind == 'salu' else (0.5 if i.kind == 'pseudo' else i.slots()))
    head, gaps = [], []
    for ins in prog:
        if ins.kind == 'mfma':
            gaps.append([ins])
        elif gaps:
            gaps[-1].append(ins)
        else:
            head.append(ins)
    out = list(head)
    carry = []
    remaining = sum(cost(i) for g in gaps for i in g[1:])
    credit = 0.0
    for n, g in enumerate(gaps):
        out.append(g[0])
        carry += g[1:]
        nxt = gaps[n + 1][0] if n + 1 < len(gaps) else None
        budget = max(free, remaining / (len(gaps) - n))
        credit = min(credit, 0.0) + budget
        must = -1
        for k, i in enumerate(carry):
            if nxt is None or (i.w & (nxt.r | nxt.w)) or (i.r & nxt.w):
                must = k
        k = 0
        while k < len(carry) and (k <= must or credit >= cost(carry[k]) - 0.25 or
                                  carry[k].kind == 'label' or carry[k].mn.startswith(('s_cselect', 's_cbranch'))):
            out.append(carry[k])
            credit -= cost(carry[k])
            remaining -= cost(carry[k])
            k += 1
        carry = carry[k:]
    return out


def ds_first(prog):
    out = list(prog)
    for k in range(len(out)):
        ins = out[k]
        if ins.kind != 'ds' or not ins.w:
            continue
        j = k
        while j > 0:
            pv = out[j - 1]
            if pv.kind not in ('valu', 'trans', 'salu', 'vm') or pv.mn.startswith('s_cbranch'):
                break
            if (pv.r | pv.w) & ins.w or pv.w & ins.r:
                break
            j -= 1
        if j < k and out[j - 1].kind in ('mfma', 'ds'):
            out.insert(j, out.pop(k))
    return out


def check_polls(prog):
    for k, ins in enumerate(prog):
        if ins.text.startswith('s_cbranch_vccnz L_retry_'):
            name = ins.text.split('L_retry_')[1]
            assert prog[k + 1].text == f'L_back_{name}:', f'retry {name} skips code'
            assert prog[k - 1].mn.startswith('v_cmp'), f'retry {name} detached from its compare'
        if ins.mn.startswith('s_cselect'):
            j = k - 1
            while prog[j].mn.startswith(('s_cselect', 's_waitcnt', 's_nop')) or prog[j].kind in ('valu', 'ds', 'vm', 'mfma'):
                j -= 1
            assert prog[j].mn.startswith(('s_cmp', 's_bitcmp')), f'SCC clobbered before {ins.text}'
```

```python
import sys, os
sys.path.insert(0, os.path.dirname(os.path.abspath(__file__)))
from asmlib import I, Wait, insert_waits, pad_hazards, render, weave, split_ds_pairs, hoist_reads, merge, level, ds_first, check_polls

KN = 'parallel_sum__ssm_conv_s5__dense_activation_mish__prompt_kernel'
OPT = dict(prof=0, spin=20000, out_flags='nt', map='8x4', pf=2, age=24, laf=5, r1=26, r2=32, r3=29, e3=12, fls=28, fll=50, flc=68, ka2=1, nstep=0, split=0, diag='', dsp=2, xel=0, tlb=0, pk_in=1, nb0=2, stg3='8.16.23', stg1='2.7.12.17.22.27', stg2='2.6.14.21', fhp=0, wmix=1, ntx=0, ntg=0, ntw=0, lbt=0, rxe=0, dspc=3, dsps=3, sch=2, g3=24, fn=2, stg=0, q0=6, pfat=24, wa0=17, xes=40, hs=2, rotj=0, rotm=0, laj=7, pace=16, lev=0, lev3=0, pa=2, fw=1, xw=0, vmc=2, fine='', fas=-10, fal=12, fac=16, nea=8, fhs=-1, fhl=12, fhc=28, qord=0, lbl=13, lbc=24, ppf=0, hoist=32)
for a in sys.argv[2:]:
    k, v = a.split('=')
    OPT[k] = int(v) if v.lstrip('-').isdigit() else v
PROF = OPT['prof']

WS_EP, WS_AG, WS_A = 0, 0x10000, 0x40000
WS_XC = WS_A + 64 * 176 * 1024
XC_BLK = 2560
WS_FL = WS_XC + 1024 * 3 * XC_BLK
WS_SIZE = WS_FL + 1024 * 512
WS_PROF = 0x1C00000
OOB = 0x7ff00000
SLOT = 16384
TB = 9 * SLOT
T_STAT, T_B1, T_SEG, T_LB, T_H = TB, TB + 1024, TB + 2048, TB + 6144, TB + 8192
LOG2E, LN2, M2LN2 = 0x3fb8aa3b, 0x3f317218, 0xbfb17218

sX, sB, sW1, sCre, sCim, sW2, sWS, sOUT, sTMP = 36, 40, 44, 48, 52, 56, 60, 64, 68
sI, sJ, sW, sROT, sTAG, sE2 = 72, 73, 74, 75, 76, 77
sKC = [78, 79, 80, 81]
sWOFF, sT0, sT1, sXB, sBB, sW1A, sW1B = 82, 83, 84, 85, 86, 87, 88
sAS = 89
sFST = [90, 91, 92, 93]
sSST, sCB, sW2B, sFSEL, sONES, sT3, sJJ, sT2 = 94, 95, 96, 97, 98, 99, 100, 101
sKQ, sPB, sXO = 22, [24, 25, 26], [27, 28, 29, 30]
sSEL = [31, 32, 33, 34]
sFLG = 35
pLRE, pLIM, pBRE, pBIM, pLDT, pDSK, pB1 = 8, 10, 12, 14, 16, 18, 20
srd = lambda b: f's[{b}:{b + 3}]'
vL, t0, t1, t2 = 0, 1, 2, 3
AS = [4, 5, 6, 7]
ASc = [8, 9, 10, 11]
XG = [12, 13, 14, 15]
PG = [16, 17, 18, 19]
QG = [20, 21, 22, 23]
FA0, FAc, RL2, VLN2, VL16, VNM, VRS, t3 = 24, 25, 26, 27, 28, 29, 30, 31
FAd = VNM
NLI, LI, LR, CR, NCI, NCR, L16R, L16I, LSR, LSI, L128R, L128I, WR, WI, PR, PI = range(32, 48)
TT = 48
FACC = [64, 80]
SRE, SIM = 96, 112
X = 128
aS, aF, aP, aOF, aOS, aWO, aXE = 0, 128, 0, 64, 88, 128, 224
STAMP_A = list(range(104, 128)) + list(range(241, 247))
vr = lambda b, n: f'v[{b}:{b + n - 1}]'
ar = lambda b, n: f'a[{b}:{b + n - 1}]'

stamp_names = []
FINE_KEEP = dict(T=['lb1', 'F2', 'scan', 'F3', 'fa0', 'fa1', 'tail', 'fh0'], S=['x7', 'c27', 'b0', 'F0'], F0=['b2', 'F0', 'F1'], F2=['F1', 'F2', 'scan'], F3=['F2', 'scan', 'F3', 'fa0', 'fa1', 'tail'],
                 P3=['tail'], L=['k36', 'sent', 'own', 'rx'])


def fine(phase, items, step):
    if OPT['fine'] == phase:
        for n in range(step - 1, len(items), step):
            items[n] = items[n] + stamp(f'g{n}')
    return items


def stamp(name):
    if PROF == 3 and name not in ('end', 'DUMP'):
        return []
    if OPT['fine'] and not name.startswith('g') and name not in FINE_KEEP[OPT['fine']] + ['end', 'DUMP']:
        return []
    if OPT['diag'] == name:
        return [I('s_memrealtime s[4:5]')]
    return [I(';stamp ' + name)] if PROF else []


def resolve_stamps(prog):
    out = []
    for ins in prog:
        if not ins.text.startswith(';stamp '):
            out.append(ins)
            continue
        name = ins.text.split()[1]
        n = len(stamp_names)
        if n:
            out.append(I(f'v_accvgpr_write_b32 a{STAMP_A[n - 1]}, s{4 + 2 * ((n - 1) & 1)}'))
        if name == 'DUMP':
            out += [I(f'buffer_store_dword a{STAMP_A[k]}, v{t1}, {srd(sWS)}, 0 offen offset:{4 * k}') for k in range(n)]
            continue
        assert n < 29
        stamp_names.append(name)
        out.append(I(f's_mem{"real" if PROF == 2 else ""}time s[{4 + 2 * (n & 1)}:{5 + 2 * (n & 1)}]'))
    return out


def L(text):
    return [I(t.strip()) for t in text.strip().split('\n') if t.strip()]


def mfma(d, a, b, c):
    return I(f'v_mfma_f32_32x32x16_bf16 {d}, {a}, {b}, {c}')


def mksrd(b, lo, size):
    return f's_mov_b32 s{b}, s{lo}\ns_mov_b32 s{b + 1}, s{lo + 1}\ns_mov_b32 s{b + 2}, {size}\ns_mov_b32 s{b + 3}, 0x00020000\n'


slot_shared = {}


def dma_round(name, slot, voffs, rsrc, soff_code, shared):
    out = [I(f's_add_u32 m0, s{sWOFF}, {slot * SLOT}')] + L(soff_code)
    for g in range(4):
        nt = int(name[1:]) < OPT['ntx'] if name[0] == 'x' else OPT['ntg'] if name[0] == 'G' else OPT['ntw']
        out.append(I(f'buffer_load_dwordx4 v{voffs[g]}, {srd(rsrc)}, s{sT0} offen offset:{1024 * g} {"nt " if nt else ""}lds',
                     tok=name if g == 3 else None,
                     lds_w=(slot, slot_shared.get(slot, False)) if g == 0 else None, note=name,
                     fills=(slot, shared) if g == 3 else None))
    slot_shared[slot] = shared
    return out


def rx(s, slot):
    return dma_round(f'x{s}', slot + 1, XG, sX,
                     f's_add_u32 s{sT0}, s{sROT}, {s}\ns_and_b32 s{sT0}, s{sT0}, 7\n'
                     f's_lshl_b32 s{sT0}, s{sT0}, 7\ns_add_u32 s{sT0}, s{sT0}, s{sXB}', False)


G_SLOT = [5, 6, 7, 8, 0, 1, 2, 3, 4, 5, 6, 7]
W_SLOT = dict(WA0=8, CR0=0, CI0=1, WA1=2, WA2=3, WA3=4, CR1=5, CI1=6, WB0=7, WB1=8, WB2=2)


def rg(g):
    if g < 4:
        return dma_round(f'G{g}', G_SLOT[g], PG, sB,
                         f's_lshl_b32 s{sT0}, s{sKC[g]}, 7\ns_add_u32 s{sT0}, s{sT0}, s{sBB}', True)
    base = sW1A if g < 8 else sW1B
    return dma_round(f'G{g}', G_SLOT[g], QG, sW1,
                     f's_mul_i32 s{sT0}, s{sKC[g & 3]}, {64 * 3584}\ns_add_u32 s{sT0}, s{sT0}, s{base}', True)


def rw(name):
    e = int(name[2])
    if name[0] == 'C':
        code = f's_xor_b32 s{sT0}, s{sCB}, {128 * e}'
        return dma_round(name, W_SLOT[name], PG, sCim if name[1] == 'I' else sCre, code, True)
    if name[1] == 'A':
        code = f's_xor_b32 s{sT0}, s{sJJ}, {e}\ns_lshl_b32 s{sT0}, s{sT0}, 17\ns_add_u32 s{sT0}, s{sT0}, s{sW2B}'
    else:
        code = f's_lshl_b32 s{sT0}, s{sPB[e]}, 16\ns_add_u32 s{sT0}, s{sT0}, s{sW2B}'
        if e == 0:
            code += f'\ns_xor_b32 s{sT0}, s{sT0}, s{sSEL[0]}'
    return dma_round(name, W_SLOT[name], XG, sW2, code, True)


STAGE = {n: 160 + 16 * k for k, n in enumerate(x for x in str(OPT['stg']).split('.') if x != '0')}
VST = t0


def stage_load(name):
    keep = dict(slot_shared)
    out = []
    for i_ in rw(name)[1:]:
        if i_.kind == 'vm':
            n = sum(j.kind == 'vm' for j in out)
            i_ = I(i_.text.replace('dwordx4 ', f'dwordx4 {ar(STAGE[name] + 4 * n, 4)}, ').replace(' lds', ''))
            i_.dma = True
        out.append(i_)
    slot_shared.clear()
    slot_shared.update(keep)
    return out


def stage_write(name):
    slot = W_SLOT[name]
    out = [I(f's_add_u32 s{sT0}, s{sWOFF}, {slot * SLOT}'), I(f'v_add_u32 v{VST}, s{sT0}, v{VL16}')]
    out += [I(f'ds_write_b128 v{VST}, {ar(STAGE[name] + 4 * g_, 4)} offset:{1024 * g_}', tok=name if g_ == 3 else None,
              lds_w=(slot, True) if g_ == 0 else None, note=name, fills=(slot, True) if g_ == 3 else None)
            for g_ in range(4)]
    return out


def rw2(name):
    if name not in STAGE:
        return rw(name)
    out = stage_write(name)
    for i_ in out[2:]:
        i_.dma = True
    return out


def pins(*parts):
    pin = {}
    for gap, ins in parts:
        head = [i_ for i_ in ins if not getattr(i_, 'dma', False)]
        pin.setdefault(gap, []).extend(head)
        for n, i_ in enumerate(ins[len(head):]):
            pin.setdefault(gap + n * OPT['dsp'], []).append(i_)
    return pin


BAR = lambda *toks: ([Wait(*toks)] if toks else []) + [I('s_barrier')]
PARK = {n: 247 if k == 16 else 48 + k for k, n in enumerate('pub seg lba0 lba1 lbe0 lbe1 fla flp lbw lbr hw hw2 hr hr2 f3o fp0 fp1'.split())}


def park(**regs):
    return [I(f'v_accvgpr_write_b32 a{PARK[n]}, v{r}') for n, r in regs.items()]


def fetch(**regs):
    return [I(f'v_accvgpr_read_b32 v{r}, a{PARK[n]}') for n, r in regs.items()]


retry_blocks = []


def poll(name, loads, check):
    retry_blocks.append((name, loads, check))
    return L(check) + [I(f's_cbranch_vccnz L_retry_{name}'), I(f'L_back_{name}:')]


def cexp(dr, di, scale, zr, za):
    return L(f"""v_mul_f32 v{dr}, {scale}, v{zr}
        v_mul_f32 v{di}, {scale}, v{za}
        v_exp_f32 v{dr}, v{dr}
        v_fract_f32 v{di}, v{di}
        v_cos_f32 v{t3}, v{di}
        v_sin_f32 v{di}, v{di}
        v_mul_f32 v{di}, v{dr}, v{di}
        v_mul_f32 v{dr}, v{dr}, v{t3}""")


def cmul_add(dr, di, ar_, ai, br, bi, cr=None, ci=None):
    if cr is None:
        head = f'v_mul_f32 v{dr}, v{ar_}, v{br}\nv_mul_f32 v{di}, v{ar_}, v{bi}'
    else:
        head = f'v_fma_f32 v{dr}, v{ar_}, v{br}, v{cr}\nv_fma_f32 v{di}, v{ar_}, v{bi}, v{ci}'
    return L(head + f'\nv_fma_f32 v{dr}, -v{ai}, v{bi}, v{dr}\nv_fmac_f32 v{di}, v{ai}, v{br}')


def mish(b, voff=VL16, quarters=range(4)):
    A = FACC[b & 1]
    out = []
    for q in quarters:
        rs = range(4 * q, 4 * q + 4)
        out.append(I(f'ds_read_b128 {vr(TT + 4 * q, 4)}, v{t2} offset:{T_B1 - TB + 128 * b + 16 * q}', hoist=True))
        out += [I(f'v_fmac_f32 v{TT + r}, v{A + r}, v{RL2}') for r in rs]
        out += [I(f'v_exp_f32 v{A + r}, v{TT + r}') for r in rs]
        out += [I(f'v_add_f32 v{A + r}, 1.0, v{A + r}') for r in rs]
        out += [I(f'v_fma_f32 v{A + r}, v{A + r}, v{A + r}, 1.0') for r in rs]
        out += [I(f'v_rcp_f32 v{A + r}, v{A + r}') for r in rs]
        out += [I(f'v_fmamk_f32 v{A + r}, v{A + r}, {M2LN2:#x}, v{VLN2}') for r in rs]
        out += [I(f'v_mul_f32 v{TT + r}, v{TT + r}, v{A + r}') for r in rs]
        out += [I(f'v_cvt_pk_bf16_f32 v{A + p}, v{TT + 2 * p}, v{TT + 2 * p + 1}') for p in (2 * q, 2 * q + 1)]
        if q & 1:
            fr = q >> 1
            out.append(I(f'buffer_store_dwordx4 {vr(A + 4 * fr, 4)}, v{voff}, {srd(sWS)}, s{sFST[b]} offen '
                         f'offset:{1024 * fr} sc1', tok=f'stF{b}' if fr else None))
            if b < 3:
                out += [I(f'v_accvgpr_write_b32 a{aOF + 8 * b + 4 * fr + e}, v{A + 4 * fr + e}') for e in range(4)]
    return out


def mish_pk(b, voff, halves=range(2)):
    A = FACC[b & 1]
    out = []
    for q in range(2 * len(halves)):
        out.append(I(f'ds_read_b128 {vr(TT + 4 * q, 4)}, v{t2} offset:{T_B1 - TB + 128 * b + 16 * q}', hoist=True))
    for h in halves:
        ps = range(8 * h, 8 * h + 8, 2)
        rs = range(8 * h, 8 * h + 8)
        out += [I(f'v_pk_fma_f32 {vr(TT + p, 2)}, {vr(A + p, 2)}, {vr(RL2, 2)}, {vr(TT + p, 2)} op_sel_hi:[1,0,1]') for p in ps]
        out += [I(f'v_exp_f32 v{A + r}, v{TT + r}') for r in rs]
        out += [I(f'v_pk_add_f32 {vr(A + p, 2)}, {vr(A + p, 2)}, 1.0 op_sel_hi:[1,0]') for p in ps]
        out += [I(f'v_pk_fma_f32 {vr(A + p, 2)}, {vr(A + p, 2)}, {vr(A + p, 2)}, 1.0 op_sel_hi:[1,1,0]') for p in ps]
        out += [I(f'v_rcp_f32 v{A + r}, v{A + r}') for r in rs]
        out += [I(f'v_pk_fma_f32 {vr(A + p, 2)}, {vr(A + p, 2)}, s[{sKC[0]}:{sKC[1]}], {vr(RL2, 2)} '
                  f'op_sel:[0,0,1] op_sel_hi:[1,0,1]') for p in ps]
        out += [I(f'v_pk_mul_f32 {vr(TT + p, 2)}, {vr(TT + p, 2)}, {vr(A + p, 2)}') for p in ps]
        out += [I(f'v_cvt_pk_bf16_f32 v{A + p // 2}, v{TT + p}, v{TT + p + 1}') for p in ps]
        out.append(I(f'buffer_store_dwordx4 {vr(A + 4 * h, 4)}, v{voff}, {srd(sWS)}, s{sFST[b]} offen '
                     f'offset:{1024 * h} sc1', tok=f'stF{b}' if h else None))
        if b < 3:
            out += [I(f'v_accvgpr_write_b32 a{aOF + 8 * b + 4 * h + e}, v{A + 4 * h + e}') for e in range(4)]
    return out


def mish_stages(b, h):
    m = mish_pk(b, VL16, range(2))
    body = m[4:]
    n = len(body) // 2
    body = body[h * n:(h + 1) * n]
    return dict(rd=m[2 * h:2 * h + 2], A=body[0:4], ex=body[4:12], B=body[12:20], rc=body[20:28], C=body[28:36],
                fin=body[36:])


def cmul_pk(d, a, b, c):
    return L(f"""v_pk_fma_f32 {vr(d, 2)}, {vr(b, 2)}, {vr(a, 2)}, {vr(c, 2)} op_sel_hi:[1,0,1]
        v_pk_fma_f32 {vr(d, 2)}, {vr(b, 2)}, {vr(a, 2)}, {vr(d, 2)} op_sel:[1,1,0] op_sel_hi:[0,1,1] neg_lo:[0,1,0]""")


def staged(items, pin, plan):
    out, lo = [], 0
    for hi, fill_, burst_ in plan:
        out += weave(items[lo:hi + 1], fill_, {g_ - lo: v for g_, v in pin.items() if lo <= g_ <= hi}) + burst_
        lo = hi + 1
    return out


_weave = weave
LEV = [OPT['lev']]


def weave(*a):
    out = _weave(*a)
    return ds_first(level(out, LEV[0], OPT['vmc'])) if LEV[0] else out


P = []
if OPT['map'] == '8x4':
    ids = f"""s_and_b32 s{sKQ}, s2, 3
        s_bfe_u32 s{sJJ}, s2, 0x20003
        s_lshr_b32 s{sI}, s2, 5
        s_bfe_u32 s{sT0}, s2, 0x10002
        s_lshl_b32 s{sROT}, s{sT0}, 1
        s_lshl_b32 s{sT0}, s{sT0}, 3
        s_and_b32 s{sT1}, s{sI}, 1
        s_or_b32 s{sI}, s{sI}, s{sT0}
        s_add_u32 s{sROT}, s{sROT}, s{sT1}
        s_add_u32 s{sROT}, s{sROT}, s{sJJ if OPT['rotm'] else sKQ}
        s_lshl_b32 s{sROT}, s{sROT}, 1
        s_and_b32 s{sT1}, s{sKQ if OPT['rotm'] else sJJ}, {OPT['rotj']}
        s_add_u32 s{sROT}, s{sROT}, s{sT1}
        s_and_b32 s{sROT}, s{sROT}, 7"""
else:
    ids = f"""s_and_b32 s{sKQ}, s2, 1
        s_lshl_b32 s{sKQ}, s{sKQ}, 1
        s_lshr_b32 s{sT0}, s2, 7
        s_or_b32 s{sKQ}, s{sKQ}, s{sT0}
        s_bfe_u32 s{sJJ}, s2, 0x20003
        s_bfe_u32 s{sI}, s2, 0x20005
        s_bfe_u32 s{sT0}, s2, 0x20001
        s_add_u32 s{sROT}, s{sT0}, s{sKQ}
        s_lshl_b32 s{sT0}, s{sT0}, 2
        s_or_b32 s{sI}, s{sI}, s{sT0}
        s_lshl_b32 s{sROT}, s{sROT}, 1
        {'s_lshr_b32 s%d, s2, 7' % sT0 if OPT['rotm'] else ''}
        {'s_lshl_b32 s%d, s%d, 1' % (sROT, sJJ) if OPT['rotm'] else ''}
        {'s_add_u32 s%d, s%d, s%d' % (sROT, sROT, sT0) if OPT['rotm'] else ''}
        s_and_b32 s{sROT}, s{sROT}, 7"""
ws_load = f's_load_dwordx2 s[{sWS}:{sWS + 1}], s[0:1], 120'
more_loads = f"""s_load_dwordx8 s[{pLRE}:{pLRE + 7}], s[0:1], 8
s_load_dwordx4 s[{pLDT}:{pLDT + 3}], s[0:1], 56
s_load_dwordx2 s[{pB1}:{pB1 + 1}], s[0:1], 88
s_load_dwordx2 s[{sW1}:{sW1 + 1}], s[0:1], 80
s_load_dwordx2 s[{sCre}:{sCre + 1}], s[0:1], 40
s_load_dwordx2 s[{sCim}:{sCim + 1}], s[0:1], 48
s_load_dwordx2 s[{sW2}:{sW2 + 1}], s[0:1], 96
s_load_dwordx2 s[{sOUT}:{sOUT + 1}], s[0:1], 104
"""
SUM, SQ = [TT + 8, TT + 9], [TT + 10, TT + 11]
sizes = ((sX, 2097152), (sB, 524288), (sW1, 1835008), (sCre, 524288), (sCim, 524288), (sW2, 1835008),
         (sWS, (WS_PROF + 0x40000) if PROF else WS_SIZE), (sOUT, 4194304))
P += L(f"""
s_cmp_ge_u32 s2, 256
s_cbranch_scc1 L_end
{'s_memtime s[98:99]' if PROF else ''}
{'s_memrealtime s[90:91]' if PROF or OPT['diag'] else ''}
s_load_dwordx2 s[{sX}:{sX + 1}], s[0:1], 0
{'' if OPT['ka2'] else ws_load}
s_getpc_b64 s[{sTMP}:{sTMP + 1}]
v_lshrrev_b32 v{t0}, 6, v0
v_and_b32 v{vL}, 63, v0
s_and_b32 s{sTMP}, s{sTMP}, 0xffffff80
v_readfirstlane_b32 s{sW}, v{t0}
s_mov_b32 s{sTMP + 2}, L_code_end-{KN}
s_mov_b32 s{sTMP + 3}, 0x00020000
s_lshr_b32 s{sT0}, s2, 3
s_lshl_b32 s{sT0}, s{sT0}, 2
s_add_u32 s{sT0}, s{sT0}, s{sW}
s_lshl_b32 s{sT0}, s{sT0}, 9
v_and_b32 v{t1}, 3, v{vL}
v_lshlrev_b32 v{t1}, 7, v{t1}
buffer_load_dword v{t3}, v{t1}, {srd(sTMP)}, s{sT0} offen
{'' if OPT['ka2'] else more_loads}
v_lshrrev_b32 v{t0}, 3, v{vL}
v_lshrrev_b32 v{t1}, 4, v{vL}
v_xor_b32 v{t1}, v{t1}, v{vL}
v_and_b32 v{t1}, 7, v{t1}
v_lshlrev_b32 v{t1}, 4, v{t1}
v_lshl_add_u32 v{PG[0]}, v{t0}, 10, v{t1}
v_lshrrev_b32 v{t2}, 5, v{vL}
v_mul_u32_u24 v{t2}, {12 * 1024}, v{t2}
v_add_u32 v{XG[0]}, v{PG[0]}, v{t2}
v_xor_b32 v{XG[1]}, 64, v{XG[0]}
v_add_u32 v{XG[2]}, {6 * 1024}, v{XG[0]}
v_add_u32 v{XG[3]}, {9 * 1024}, v{XG[1]}
v_add_u32 v{XG[1]}, {3 * 1024}, v{XG[1]}
s_lshl_b32 s{sWOFF}, s{sW}, 12
{ids}
s_lshl_b32 s{sXB}, s{sI}, 17
s_lshl_b32 s{sT0}, s{sW}, 15
s_add_u32 s{sXB}, s{sXB}, s{sT0}
""" + ''.join(f's_mov_b32 s{b + 2}, {n}\ns_mov_b32 s{b + 3}, 0x00020000\n' for b, n in sizes) + f"""
s_waitcnt lgkmcnt(0)
{'v_accvgpr_write_b32 a254, s98' if PROF else ''}
{'v_accvgpr_write_b32 a255, s90' if PROF else ''}
{'s_mov_b32 s23, 0' if PROF else ''}
{'s_mov_b32 s23, s90' if OPT['diag'] else ''}
""")
P += stamp('ka') if OPT['diag'] else []
P += rx(0, 0) + (L(ws_load + '\n' + more_loads) if OPT['ka2'] else []) + rx(1, 1)
P += L(f"""
v_and_b32 v{t0}, 31, v{vL}
s_lshl_b32 s{sJ}, s{sKQ}, 2
s_or_b32 s{sJ}, s{sJ}, s{sJJ}
v_lshrrev_b32 v{t1}, 5, v{vL}
v_bfe_u32 v{t2}, v{vL}, 1, 3
v_xor_b32 v{t1}, v{t1}, v{t2}
v_lshlrev_b32 v{t1}, 4, v{t1}
v_lshl_add_u32 v{AS[0]}, v{t0}, 7, v{t1}
v_xor_b32 v{AS[1]}, 32, v{AS[0]}
v_xor_b32 v{AS[2]}, 64, v{AS[0]}
v_xor_b32 v{AS[3]}, 0x60, v{AS[0]}
s_add_u32 s{sT0}, s{sWOFF}, {SLOT}
v_add_u32 v{ASc[0]}, s{sT0}, v{AS[0]}
v_add_u32 v{ASc[1]}, s{sT0}, v{AS[1]}
v_add_u32 v{ASc[2]}, s{sT0}, v{AS[2]}
v_add_u32 v{ASc[3]}, s{sT0}, v{AS[3]}
s_mov_b32 s{sONES}, 0x3f803f80
v_mov_b32 v{SUM[0]}, 0
v_mov_b32 v{SUM[1]}, 0
v_mov_b32 v{SQ[0]}, 0
v_mov_b32 v{SQ[1]}, 0
s_lshl_b32 s{sT0}, s{sW}, 9
s_add_u32 s{sT0}, s{sT0}, {T_SEG}
v_lshl_add_u32 v{t0}, v{vL}, 3, s{sT0}""")
P.append(I(f'ds_write_b64 v{t0}, {vr(SUM[0], 2)}', tok='zero'))
P += L(f's_waitcnt lgkmcnt(0)\ns_load_dword s{sE2}, s[{sWS}:{sWS + 1}], {WS_EP}')
mid = L(f"""
v_and_b32 v{t0}, 31, v{vL}
s_lshl_b32 s{sT1}, s{sJ}, 6
v_lshl_add_u32 v{t1}, v{t0}, 1, s{sT1}
global_load_ushort v{LR}, v{t1}, s[{pLRE}:{pLRE + 1}]
global_load_ushort v{LI}, v{t1}, s[{pLIM}:{pLIM + 1}]
global_load_ushort v{NLI}, v{t1}, s[{pLDT}:{pLDT + 1}]
s_and_b32 s{sT3}, s{sW}, 1
s_mul_i32 s{sT2}, s{sKQ}, 7
s_lshl_b32 s{sW1A}, s{sJJ}, 1
s_add_u32 s{sPB[0]}, s{sW1A}, 1
s_cmp_eq_u32 s{sJJ}, 3
s_cselect_b32 s{sPB[0]}, 3, s{sPB[0]}
s_cselect_b32 s{sFSEL}, 64, 0
s_add_u32 s{sW1A}, s{sW1A}, s{sT2}
s_add_u32 s{sW1B}, s{sPB[0]}, s{sT2}
s_lshl_b32 s{sW1A}, s{sW1A}, 7
s_lshl_b32 s{sW1B}, s{sW1B}, 7
s_cmp_ge_u32 s{sW}, 2
s_cselect_b32 s{sT2}, s{sW1B}, s{sW1A}
s_cselect_b32 s{sT1}, s{sFSEL}, 0
s_add_u32 s{sT2}, s{sT2}, s{sT1}
s_lshl_b32 s{sT1}, s{sT3}, 6
s_xor_b32 s{sT2}, s{sT2}, s{sT1}
v_and_b32 v{t1}, 3, v{vL}
v_bfe_u32 v{t2}, v{vL}, 2, 2
v_lshl_add_u32 v{t1}, v{t2}, 3, v{t1}
v_bfe_u32 v{t2}, v{vL}, 4, 1
v_lshl_add_u32 v{t1}, v{t2}, 2, v{t1}
v_lshl_add_u32 v{t1}, v{t1}, 1, s{sT2}
global_load_ushort v{PR}, v{t1}, s[{pB1}:{pB1 + 1}]
s_cmp_eq_u32 s{sT3}, 1
s_cselect_b32 s{sB}, s{pBIM}, s{pBRE}
s_cselect_b32 s{sB + 1}, s{pBIM + 1}, s{pBRE + 1}
s_mul_i32 s{sT3}, s{sT3}, {32 * 3584}
s_add_u32 s{sW1A}, s{sW1A}, s{sT3}
s_add_u32 s{sW1B}, s{sW1B}, s{sT3}
s_lshl_b32 s{sBB}, s{sJ}, 15
s_lshr_b32 s{sT1}, s{sW}, 1
s_add_u32 s{sT1}, s{sT1}, s{sROT}
s_and_b32 s{sKC[0]}, s{sT1}, 7
s_add_u32 s{sT1}, s{sT1}, 2
s_and_b32 s{sKC[1]}, s{sT1}, 7
s_add_u32 s{sT1}, s{sT1}, 2
s_and_b32 s{sKC[2]}, s{sT1}, 7
s_add_u32 s{sT1}, s{sT1}, 2
s_and_b32 s{sKC[3]}, s{sT1}, 7
v_xor_b32 v{PG[1]}, 64, v{PG[0]}
v_add_u32 v{PG[2]}, {14 * 1024}, v{PG[0]}
v_add_u32 v{PG[3]}, {21 * 1024}, v{PG[1]}
v_add_u32 v{PG[1]}, {7 * 1024}, v{PG[1]}
v_and_b32 v{t2}, 1, v{vL}
v_lshlrev_b32 v{t2}, 4, v{t2}
v_mov_b32 v{VNM}, 0x3f80
v_lshlrev_b32 v{t2}, v{t2}, v{VNM}
v_bfe_i32 v{t0}, v{vL}, 1, 1
v_and_b32 v{TT + 1}, v{t0}, v{t2}
v_xor_b32 v{TT}, v{TT + 1}, v{t2}
""")
mid += L(f"""
v_lshrrev_b32 v{t1}, 3, v{vL}
v_mul_u32_u24 v{t1}, 3584, v{t1}
v_bfe_u32 v{t2}, v{vL}, 4, 1
v_lshlrev_b32 v{t2}, 2, v{t2}
v_xor_b32 v{t2}, v{t2}, v{vL}
v_and_b32 v{t2}, 7, v{t2}
v_lshl_add_u32 v{QG[0]}, v{t2}, 4, v{t1}
v_add_u32 v{QG[1]}, {27648}, v{QG[0]}
v_add_u32 v{QG[2]}, {2 * 27648}, v{QG[0]}
v_add_u32 v{QG[3]}, {3 * 27648}, v{QG[0]}
""")
late = L(f"""
s_mul_i32 s{sE2}, s{sE2}, 1664525
s_add_u32 s{sE2}, s{sE2}, 1013904226
s_or_b32 s{sTAG}, s{sE2}, 1
v_bfe_u32 v{t1}, v{vL}, 2, 2
v_lshrrev_b32 v{t2}, 5, v{vL}
v_lshl_add_u32 v{t2}, v{t2}, 3, v{t1}
v_lshlrev_b32 v{FA0}, 7, v{t2}
v_lshrrev_b32 v{t1}, 1, v{t1}
v_lshl_add_u32 v{FA0}, v{t1}, 6, v{FA0}
v_bfe_u32 v{t1}, v{vL}, 4, 1
v_lshl_add_u32 v{FA0}, v{t1}, 5, v{FA0}
v_and_b32 v{t1}, 3, v{vL}
v_lshl_add_u32 v{FA0}, v{t1}, 3, v{FA0}
v_lshlrev_b32 v{VL16}, 4, v{vL}
v_mov_b32 v{VLN2}, {LN2:#x}
s_cmp_eq_u32 s{sPB[0]}, 1
s_cselect_b32 s{sPB[1]}, 3, 1
s_cmp_eq_u32 s{sPB[0]}, 5
s_cselect_b32 s{sPB[2]}, 3, 5
s_lshl_b32 s{sSEL[0]}, s{sFSEL}, 9
s_lshl_b32 s{sAS}, s{sI}, 2
s_add_u32 s{sAS}, s{sAS}, s{sW}
s_lshl_b32 s{sAS}, s{sAS}, 2
s_add_u32 s{sAS}, s{sAS}, s{sKQ}
s_lshl_b32 s{sFLG}, s{sAS}, 11
s_add_u32 s{sFLG}, s{sFLG}, {WS_FL}
s_mul_i32 s{sAS}, s{sAS}, {44 * 1024}
s_add_u32 s{sAS}, s{sAS}, {WS_A}
s_lshl_b32 s{sT2}, s{sJJ}, 13
s_add_u32 s{sFST[0]}, s{sAS}, s{sT2}
s_add_u32 s{sFST[1]}, s{sFST[0]}, 2048
s_lshl_b32 s{sT2}, s{sPB[0]}, 12
s_add_u32 s{sFST[3]}, s{sAS}, s{sT2}
s_lshl_b32 s{sT2}, s{sFSEL}, 5
s_add_u32 s{sFST[2]}, s{sFST[3]}, s{sT2}
s_add_u32 s{sFST[3]}, s{sFST[3]}, 2048
s_lshl_b32 s{sT2}, s{sJJ}, 12
s_add_u32 s{sSST}, s{sAS}, s{sT2}
s_add_u32 s{sSST}, s{sSST}, {28 * 1024}
s_xor_b32 s{sT2}, s{sW}, s{sKQ}
s_lshl_b32 s{sT2}, s{sT2}, 15
s_lshl_b32 s{sCB}, s{sJJ}, 17
s_add_u32 s{sCB}, s{sCB}, s{sT2}
s_lshl_b32 s{sT2}, s{sKQ}, 8
s_add_u32 s{sCB}, s{sCB}, s{sT2}
s_lshr_b32 s{sT2}, s{sJJ}, 1
s_lshl_b32 s{sT2}, s{sT2}, 7
s_add_u32 s{sCB}, s{sCB}, s{sT2}
s_mul_i32 s{sW2B}, s{sKQ}, {448 * 1024}
s_lshr_b32 s{sT2}, s{sW}, 1
s_lshl_b32 s{sT2}, s{sT2}, 15
s_add_u32 s{sW2B}, s{sW2B}, s{sT2}
s_lshl_b32 s{sT2}, s{sJJ}, 8
s_add_u32 s{sW2B}, s{sW2B}, s{sT2}
s_lshr_b32 s{sT2}, s{sKQ}, 1
s_xor_b32 s{sT2}, s{sT2}, s{sW}
s_and_b32 s{sT2}, s{sT2}, 1
s_lshl_b32 s{sT2}, s{sT2}, 7
s_add_u32 s{sW2B}, s{sW2B}, s{sT2}
s_lshl_b32 s{sT2}, s{sI}, 4
s_add_u32 s{sT2}, s{sT2}, s{sJJ}
s_lshl_b32 s{sT2}, s{sT2}, 2
s_add_u32 s{sT2}, s{sT2}, s{sW}""")
for b in range(4):
    late += L(f"""s_xor_b32 s{sT3}, s{sKQ}, {b}
        s_lshl_b32 s{sT3}, s{sT3}, 4
        s_add_u32 s{sT3}, s{sT3}, s{sT2}
        s_mul_i32 s{sT3}, s{sT3}, {3 * XC_BLK}
        s_add_u32 s{sXO[b]}, s{sT3}, {WS_XC + (b - 1) * XC_BLK if b else WS_XC}""")
late += L(f"""s_add_u32 s{sSEL[2]}, s{sXO[0]}, {XC_BLK}
    s_add_u32 s{sSEL[3]}, s{sXO[0]}, {2 * XC_BLK}
    s_and_b32 s{sT3}, s{sJJ}, 1
    s_sub_u32 s{sSEL[1]}, 6, s{sT3}""")
pf = []
if OPT['pf'] == 2:
    late += L(f"""
s_and_b32 s{sT1}, s{sI}, 7
s_lshl_b32 s{sT2}, s{sT1}, 1
s_add_u32 s{sT2}, s{sT2}, s{sW}
s_mul_i32 s{sT2}, s{sT2}, 28
s_mul_i32 s{sT3}, s{sKQ}, 448
s_add_u32 s{sT2}, s{sT2}, s{sT3}
s_lshl_b32 s{sT2}, s{sT2}, 2
s_add_u32 s{sT2}, s{sT2}, s{sJJ}
s_lshl_b32 s{sT3}, s{sJJ}, 3
s_add_u32 s{sT3}, s{sT3}, s{sT1}
s_lshl_b32 s{sT3}, s{sT3}, 6
s_add_u32 s{sT3}, s{sT3}, s{sKQ}
s_cmp_lt_u32 s{sW}, 2
s_cselect_b32 s{sT2}, s{sT2}, s{sT3}
s_cselect_b32 s{sT3}, 56, 32
s_cselect_b32 s{sTMP}, s{sW2}, s{sCre}
s_cselect_b32 s{sTMP + 1}, s{sW2 + 1}, s{sCre + 1}
s_cselect_b32 s{sTMP + 2}, s{sW2 + 2}, s{sCre + 2}
s_cmp_eq_u32 s{sW}, 3
s_cselect_b32 s{sTMP}, s{sCim}, s{sTMP}
s_cselect_b32 s{sTMP + 1}, s{sCim + 1}, s{sTMP + 1}""")
elif OPT['pf']:
    late += L(f"""
s_mul_i32 s{sT2}, s{sKQ}, 448
s_mul_i32 s{sT3}, s{sI}, 28
s_add_u32 s{sT2}, s{sT2}, s{sT3}
s_lshl_b32 s{sT2}, s{sT2}, 2
s_add_u32 s{sT2}, s{sT2}, s{sJJ}
s_lshl_b32 s{sT3}, s{sJJ}, 4
s_add_u32 s{sT3}, s{sT3}, s{sI}
s_lshl_b32 s{sT3}, s{sT3}, 5
s_add_u32 s{sT3}, s{sT3}, s{sKQ}
s_cmp_eq_u32 s{sW}, 0
s_cselect_b32 s{sT2}, s{sT2}, s{sT3}
s_cselect_b32 s{sT3}, 56, 16
s_cselect_b32 s{sTMP}, s{sW2}, s{sCre}
s_cselect_b32 s{sTMP + 1}, s{sW2 + 1}, s{sCre + 1}
s_cselect_b32 s{sTMP + 2}, s{sW2 + 2}, s{sCre + 2}
s_cmp_eq_u32 s{sW}, 2
s_cselect_b32 s{sTMP}, s{sCim}, s{sTMP}
s_cselect_b32 s{sTMP + 1}, s{sCim + 1}, s{sTMP + 1}
s_cmp_eq_u32 s{sW}, 3
s_cselect_b32 s{sT3}, 0, s{sT3}""")
if OPT['pf']:
    late += L(f"""s_lshl_b32 s{sT2}, s{sT2}, 8
v_lshrrev_b32 v{t0}, 1, v{vL}
v_and_b32 v{t1}, 1, v{vL}
v_lshlrev_b32 v{t1}, 7, v{t1}
v_lshl_add_u32 v{t0}, v{t0}, 10, v{t1}
v_add_u32 v{t0}, s{sT2}, v{t0}
v_mov_b32 v{t1}, {OOB:#x}
v_cmp_gt_u32 vcc, s{sT3}, v{vL}
v_cndmask_b32 v{PI}, v{t1}, v{t0}, vcc""")
    pf = L(f'buffer_load_dword a248, v{PI}, {srd(sTMP)}, 0 offen')

Z = FACC[0]
later = L(f"""
v_lshlrev_b32 v{NLI}, 16, v{NLI}
v_mul_f32 v{NLI}, {LOG2E:#x}, v{NLI}
v_exp_f32 v{NLI}, v{NLI}
v_lshlrev_b32 v{Z + 2}, 16, v{LR}
v_lshlrev_b32 v{Z + 3}, 16, v{LI}
v_cvt_pk_bf16_f32 v{NLI}, v{NLI}, v{NLI}
v_lshlrev_b32 v{NLI}, 16, v{NLI}
v_mul_f32 v{Z}, v{NLI}, v{Z + 2}
v_mul_f32 v{Z + 1}, v{NLI}, v{Z + 3}
v_mul_f32 v{Z}, {LOG2E:#x}, v{Z}
v_mul_f32 v{Z + 1}, 0xbe22f983, v{Z + 1}""")
later += cexp(LR, LI, '1.0', Z, Z + 1)
later += L(f"""
v_mul_f32 v{Z + 4}, v{Z + 2}, v{Z + 2}
v_fmac_f32 v{Z + 4}, v{Z + 3}, v{Z + 3}
v_rcp_f32 v{Z + 4}, v{Z + 4}
v_add_f32 v{Z + 5}, -1.0, v{LR}
v_sub_f32 v{NLI}, 0, v{LI}
v_add_f32 v{Z + 4}, v{Z + 4}, v{Z + 4}
v_mul_f32 v{CR}, v{Z + 5}, v{Z + 2}
v_fmac_f32 v{CR}, v{NLI}, v{Z + 3}
v_mul_f32 v{NCI}, v{Z + 5}, v{Z + 3}
v_fmac_f32 v{NCI}, v{LI}, v{Z + 2}
v_mul_f32 v{CR}, v{CR}, v{Z + 4}
v_mul_f32 v{NCI}, v{NCI}, v{Z + 4}
v_sub_f32 v{NCR}, 0, v{CR}""")
later += cexp(L16R, L16I, '0x41800000', Z, Z + 1)
later += cexp(L128R, L128I, '0x43000000', Z, Z + 1)
later += L(f"""
v_lshrrev_b32 v{Z + 6}, 5, v{vL}
s_lshl_b32 s{sT2}, s{sW}, 1
v_add_u32 v{Z + 6}, s{sT2}, v{Z + 6}
v_cvt_f32_u32 v{Z + 6}, v{Z + 6}
v_mul_f32 v{Z + 7}, 0x41800000, v{Z + 6}
v_sub_f32 v{Z + 6}, 0x40e00000, v{Z + 6}
v_mul_f32 v{Z + 6}, 0x43800000, v{Z + 6}""")
later += cexp(LSR, LSI, f'v{Z + 7}', Z, Z + 1)
later += cexp(WR, WI, f'v{Z + 6}', Z, Z + 1)
later += L(f"""v_lshlrev_b32 v{PR}, 16, v{PR}
v_mul_f32 v{PR}, {LOG2E:#x}, v{PR}
v_and_b32 v{t1}, 31, v{vL}
s_lshl_b32 s{sT1}, s{sW}, 7
s_add_u32 s{sT1}, s{sT1}, {T_B1}
v_lshl_add_u32 v{t1}, v{t1}, 2, s{sT1}
ds_write_b32 v{t1}, v{PR}""")
Y = SRE
later += L(f"""v_and_b32 v{Y}, 31, v{vL}
    v_lshlrev_b32 v{Y + 1}, 3, v{Y}
    v_add_u32 v{Y + 1}, {T_LB}, v{Y + 1}
    v_lshrrev_b32 v{t0}, 5, v{vL}
    s_lshl_b32 s{sT2}, s{sW}, 11
    s_add_u32 s{sT2}, s{sT2}, {T_H}
    v_lshl_add_u32 v{Y}, v{Y}, 6, s{sT2}
    v_bfe_u32 v{Y + 2}, v{vL}, 1, 2
    v_lshlrev_b32 v{Y + 3}, 1, v{t0}
    v_xor_b32 v{Y + 2}, v{Y + 2}, v{Y + 3}
    v_lshl_add_u32 v{Y}, v{Y + 2}, 4, v{Y}
    v_xor_b32 v{Y + 3}, 16, v{Y}
    v_bfe_u32 v{Y + 6}, v{vL}, 2, 2
    v_lshl_add_u32 v{Y + 2}, v{t0}, 3, v{Y + 6}
    v_lshl_add_u32 v{Y + 2}, v{Y + 2}, 6, s{sT2}
    v_and_b32 v{t1}, 1, v{vL}
    v_lshl_add_u32 v{Y + 2}, v{t1}, 5, v{Y + 2}
    v_lshrrev_b32 v{t1}, 1, v{vL}
    v_xor_b32 v{t1}, v{t1}, v{vL}
    v_and_b32 v{t1}, 8, v{t1}
    v_lshl_add_u32 v{Y + 2}, v{t1}, 1, v{Y + 2}
    v_bfe_u32 v{t1}, v{vL}, 1, 1
    v_lshl_add_u32 v{Y + 2}, v{t1}, 3, v{Y + 2}
    v_xor_b32 v{Y + 4}, 32, v{Y + 2}
    v_lshl_add_u32 v{t0}, v{t0}, 2, v{Y + 6}
    v_lshlrev_b32 v{Y + 5}, 7, v{t0}
    v_lshrrev_b32 v{t1}, 1, v{Y + 6}
    s_and_b32 s{sT2}, s{sKQ}, 1
    v_xor_b32 v{t1}, s{sT2}, v{t1}
    v_lshl_add_u32 v{Y + 5}, v{t1}, 6, v{Y + 5}
    v_bfe_u32 v{t1}, v{vL}, 4, 1
    v_lshl_add_u32 v{Y + 5}, v{t1}, 5, v{Y + 5}
    v_and_b32 v{t1}, 3, v{vL}
    v_lshl_add_u32 v{Y + 5}, v{t1}, 3, v{Y + 5}
    v_xor_b32 v{Y + 6}, 64, v{Y + 5}
    s_lshl_b32 s{sT2}, s{sW}, 9
    s_add_u32 s{sT1}, s{sT2}, {T_SEG}
    s_add_u32 s{sT2}, s{sT2}, {T_LB}
    v_lshl_add_u32 v{Y + 7}, v{vL}, 3, s{sT1}
    v_lshl_add_u32 v{Y + 8}, v{vL}, 3, s{sT2}""")
later += park(hw=Y, lbr=Y + 1, hr=Y + 2, hw2=Y + 3, hr2=Y + 4, fp0=Y + 5, fp1=Y + 6, seg=Y + 7, lbw=Y + 8)
later = mid + later + [I(f'v_accvgpr_write_b32 a{aXE + r}, 0') for r in range(17)]
cuts = [0]
for n in range(1, 7):
    c = n * len(later) // 7
    while later[c].mn.startswith(('s_cselect', 'v_cndmask', 's_nop')) or later[c - 1].mn.startswith('v_cmp'):
        c += 1
    cuts.append(c)
cuts.append(len(later))

touch_w = L(f'v_mov_b32 v{PI}, 0') + [
    I(f'buffer_load_dword a{56 + n}, v{PI}, {srd(r)}, 0 offen') for n, r in enumerate((sW1, sCre, sCim, sW2))]
touch_o = L(f"""v_min_u32 v{PR}, {WS_SIZE >> 21}, v{vL}
    v_lshlrev_b32 v{PR}, 21, v{PR}
    v_add_u32 v{PR}, 0x800, v{PR}
    buffer_load_dword a60, v{PR}, {srd(sWS)}, 0 offen
    buffer_load_dword a61, v{PR}, {srd(sOUT)}, 0 offen""")
if OPT['tlb'] in (1, 3, 4):
    P += touch_w
if OPT['tlb'] == 1:
    P += touch_o
P += rx(2, 2) + [I('s_waitcnt lgkmcnt(0)')]
for s in range(8):
    P.append(Wait(f'x{s}'))
    if s == 0:
        P += stamp('x0')
    for q in range(4):
        P.append(I(f'ds_read_b128 {vr(X + 16 * s + 4 * q, 4)}, v{ASc[q]} offset:{(s & 3) * SLOT}', lds_r=(s & 3) + 1,
                   tok=f'xr{s}' if q == 3 else None))
    P += later[cuts[s]:cuts[s + 1]] if s < 7 else []
    if s >= 5:
        P += rg(s - 5)
    for r in range(16):
        if r == 4 and s < 5:
            P += rx(s + 3, (s + 3) & 3)
        P.append(I(f'v_dot2c_f32_bf16 v{SUM[r & 1]}, s{sONES}, v{X + 16 * s + r}'))
        P.append(I(f'v_dot2c_f32_bf16 v{SQ[r & 1]}, v{X + 16 * s + r}, v{X + 16 * s + r}'))
P += stamp('x7')
P += L(f"""
v_add_f32 v{SUM[0]}, v{SUM[0]}, v{SUM[1]}
v_add_f32 v{SQ[0]}, v{SQ[0]}, v{SQ[1]}
v_mov_b32 v{SUM[1]}, v{SUM[0]}
v_mov_b32 v{SQ[1]}, v{SQ[0]}
v_permlane32_swap_b32 v{SUM[1]}, v{SUM[0]}
v_permlane32_swap_b32 v{SQ[1]}, v{SQ[0]}
v_add_f32 v{SUM[0]}, v{SUM[0]}, v{SUM[1]}
v_add_f32 v{SQ[0]}, v{SQ[0]}, v{SQ[1]}
v_mul_f32 v{SUM[0]}, 0x3b000000, v{SUM[0]}
v_mul_f32 v{SQ[0]}, 0x3b000000, v{SQ[0]}
v_fma_f32 v{SQ[0]}, -v{SUM[0]}, v{SUM[0]}, v{SQ[0]}
v_max_f32 v{SQ[0]}, 0, v{SQ[0]}
v_cvt_pk_bf16_f32 v{t0}, v{SUM[0]}, v{SQ[0]}
v_lshlrev_b32 v{VNM}, 16, v{t0}
v_sub_f32 v{SIM}, 0, v{VNM}
v_sub_f32 v{SIM + 1}, 0, v{VNM}
v_sub_f32 v{SIM + 2}, 0, v{VNM}
v_sub_f32 v{SIM + 3}, 0, v{VNM}
""")

back = lambda o: [I(f'v_cvt_pk_bf16_f32 v{X + 2 * o + e}, v{FACC[0] + 4 * (o & 3) + 2 * e}, '
                    f'v{FACC[0] + 4 * (o & 3) + 2 * e + 1}') for e in range(2)]
items = [[I(f'v_mfma_f32_4x4x4_16b_bf16 {vr(FACC[0] + 4 * (n & 3), 4)}, {vr(TT, 2)}, {vr(X + 2 * n, 2)}, {vr(SIM, 4)}')]
         + (back(n - 2) if n >= 2 else []) for n in range(64)]
fill = L(f"""
v_and_b32 v{t0}, 0xffff0000, v{t0}
v_add_f32 v{t0}, 0x3727c5ac, v{t0}
v_cvt_pk_bf16_f32 v{t0}, v{t0}, v{t0}
v_lshlrev_b32 v{t0}, 16, v{t0}
v_sqrt_f32 v{t0}, v{t0}
v_and_b32 v{t1}, 3, v{vL}
v_cvt_pk_bf16_f32 v{t0}, v{t0}, v{t0}
v_lshlrev_b32 v{t0}, 16, v{t0}
v_rcp_f32 v{VRS}, v{t0}
v_bfe_u32 v{t2}, v{vL}, 3, 2
v_lshl_add_u32 v{t1}, v{t2}, 2, v{t1}
v_bfe_u32 v{t2}, v{vL}, 2, 1
v_lshl_add_u32 v{t1}, v{t2}, 4, v{t1}
s_lshl_b32 s{sT1}, s{sW}, 8
s_add_u32 s{sT1}, s{sT1}, {T_STAT}
v_lshl_add_u32 v{t1}, v{t1}, 2, s{sT1}
v_mul_f32 v{RL2}, {LOG2E:#x}, v{VRS}
ds_write_b32 v{t1}, v{VNM}
""")
fill.append(I(f'ds_write_b32 v{t1}, v{VRS} offset:128', tok='tabw'))
LA_S, LA_F = 3, OPT['laf']


def s_addr(slot):
    return [I(f'v_add_u32 v{ASc[q]}, {slot * SLOT}, v{AS[q]}') for q in range(4)]


def s_read(s, ri):
    return I(f'ds_read_b128 {ar(aS + 8 * (s & 3) + 4 * ri, 4)}, v{ASc[s & 3]} offset:{(s >> 3) * SLOT + (2 * ((s >> 2) & 1) + ri) * 4096}',
             lds_r=G_SLOT[s >> 3])


def f_addr(b):
    if b < 2:
        return [I(f'v_xor_b32 v{FAc}, {64 * b}, v{FA0}')]
    if b == 3:
        return [I(f'v_xor_b32 v{FAc}, 64, v{FAc}')]
    return [I(f'v_xor_b32 v{FAc}, s{sFSEL}, v{FA0}'), I(f'v_add_u32 v{FAc}, {G_SLOT[8] * SLOT}, v{FAc}')]


def f_read(b, s):
    out = f_addr(b) if s == 0 else []
    k = (32 * b + s) & 7
    for u in range(2):
        out.append(I(f'ds_read_b64_tr_b16 {ar(aF + 4 * k + 2 * u, 2)}, v{FAc} '
                     f'offset:{(s >> 3) * SLOT + ((s >> 1) & 3) * 4096 + (s & 1) * 2048 + u * 512}',
                     lds_r=G_SLOT[(4 if b < 2 else 8) + (s >> 3)]))
    return out


DSP = OPT['dsp']
OPT['dsp'] = OPT['dspc']
pin = pins((OPT['g3'], rg(3)), *([(OPT['g3'] + 4 * OPT['dspc'], rg(4))] if OPT['sch'] == 2 else []),
           (54, s_addr(G_SLOT[0]) + stamp('c27') + BAR('G0', 'G1', 'tabw', 'zero') + stamp('b0')))
OPT['dsp'] = DSP
for k in range(LA_S):
    pin[55 + 2 * k] = [s_read(k, 0), s_read(k, 1)]
P += weave(items, fill, pin, 0, 40) + back(62) + back(63)

S_items = []
for s in range(32):
    for ri, acc in ((0, SRE), (1, SIM)):
        it = [mfma(vr(acc, 16), vr(X + 4 * s, 4), ar(aS + 8 * (s & 3) + 4 * ri, 4), vr(acc, 16) if s else '0')]
        n = s + LA_S
        if n < 32:
            it.append(s_read(n, ri))
        S_items.append(it)
for k in range(LA_F):
    S_items[64 - LA_F + k] += f_read(0, k)
F_items = []
for b in range(4):
    its = []
    for s in range(32):
        acc = vr(FACC[b & 1], 16)
        it = [mfma(acc, ar(aF + 4 * ((32 * b + s) & 7), 4), vr(X + 4 * s, 4), acc if s else '0')]
        n = s + LA_F
        if n < 32:
            it += f_read(b, n)
        elif b < 3:
            it += f_read(b + 1, n - 32)
        its.append(it)
    F_items.append(its)

FLA, FLP = VNM, VRS
fill = late + (pf if OPT['pfat'] < 0 else []) + L(f"""
v_lshrrev_b32 v{t0}, 3, v{vL}
v_bfe_u32 v{t1}, v{vL}, 4, 1
v_lshlrev_b32 v{t1}, 2, v{t1}
v_xor_b32 v{t1}, v{t1}, v{vL}
v_and_b32 v{t1}, 7, v{t1}
v_lshlrev_b32 v{t1}, 4, v{t1}
v_lshl_add_u32 v{XG[0]}, v{t0}, 10, v{t1}
v_add_u32 v{XG[1]}, {7 * 1024}, v{XG[0]}
v_add_u32 v{XG[2]}, {14 * 1024}, v{XG[0]}
v_add_u32 v{XG[3]}, {21 * 1024}, v{XG[0]}
v_lshrrev_b32 v{t2}, 5, v{vL}
v_lshlrev_b32 v{t2}, 6, v{t2}
v_add_u32 v{t2}, {TB}, v{t2}
s_lshl_b32 s{sT2}, s{sW}, 8
v_add_u32 v{t1}, s{sT2}, v{t2}""")
fill += [I(f'ds_read_b128 {vr(FACC[1] + 4 * q, 4)}, v{t1} offset:{128 + 16 * q}') for q in range(4)]
xa, xb = TT + 14, TT + 15
xe = L(f"""v_and_b32 v{xa}, 31, v{vL}
    v_lshrrev_b32 v{xb}, 5, v{vL}
    v_lshlrev_b32 v{xb}, 14, v{xb}
    v_lshl_add_u32 v{xb}, v{xa}, 1, v{xb}
    s_lshl_b32 s{sONES}, s{sJJ}, 2
    s_add_u32 s{sONES}, s{sONES}, s{sKQ}
    s_lshl_b32 s{sONES}, s{sONES}, 6
    v_lshl_add_u32 v{xa}, v{xa}, 1, s{sONES}
    s_add_u32 s{sXB}, s{sXB}, s{sONES}
    global_load_short_d16_hi a{aXE + 16}, v{xa}, s[{pDSK}:{pDSK + 1}]""")
for r in range(16):
    if r % 4 == 0:
        xe.append(I(f's_add_u32 s{sONES}, s{sXB}, {1024 * r}'))
    xe.append(I(f'buffer_load_short_d16_hi a{aXE + r}, v{xb}, {srd(sX)}, s{sONES} offen offset:{1024 * (r & 3)}'))
Y = FACC[0]
fill += L(f"""s_lshl_b32 s{sT2}, s{sJ}, 4
    s_add_u32 s{sT2}, s{sT2}, s{sI}
    s_lshl_b32 s{sT2}, s{sT2}, 9
    s_add_u32 s{sT2}, s{sT2}, {WS_AG - 512}
    s_cmp_eq_u32 s{sW}, 3
    s_cselect_b32 s{sT2}, s{sT2}, {OOB:#x}
    v_mov_b32 v{Y + 8}, {OOB:#x}
    v_cmp_gt_u32 vcc, 32, v{vL}
    v_add_u32 v{Y}, s{sT2}, v{VL16}
    v_lshrrev_b32 v{t0}, 5, v{vL}
    v_cndmask_b32 v{Y}, v{Y}, v{Y + 8}, vcc
    s_lshl_b32 s{sT2}, s{sW}, 2
    s_add_u32 s{sT2}, s{sT2}, s{sI}
    s_sub_u32 s{sT2}, s{sT2}, 16
    v_lshl_add_u32 v{t0}, v{t0}, 1, s{sT2}
    s_lshl_b32 s{sT2}, s{sJ}, 13
    s_add_u32 s{sT2}, s{sT2}, {WS_AG}
    v_and_b32 v{Y + 9}, 31, v{vL}
    v_lshl_add_u32 v{t1}, v{Y + 9}, 4, s{sT2}
    v_lshl_add_u32 v{Y + 1}, v{t0}, 9, v{t1}
    v_cmp_gt_i32 vcc, 0, v{t0}
    v_add_u32 v{Y + 2}, 512, v{Y + 1}
    v_mov_b32 v{t1}, s{sTAG}
    v_cndmask_b32 v{Y + 1}, v{Y + 1}, v{Y + 8}, vcc
    v_cndmask_b32 v{Y + 3}, v{t1}, 0, vcc
    v_cmp_gt_i32 vcc, -1, v{t0}
    s_lshl_b32 s{sT2}, s{sJJ}, 9
    s_add_u32 s{sT2}, s{sT2}, s{sFLG}
    v_cndmask_b32 v{Y + 2}, v{Y + 2}, v{Y + 8}, vcc
    v_cndmask_b32 v{Y + 4}, v{t1}, 0, vcc
    v_lshl_add_u32 v{Y + 5}, v{Y + 9}, 2, s{sT2}
    v_and_b32 v{t0}, 3, v{vL}
    v_max_u32 v{t0}, 1, v{t0}
    v_xor_b32 v{t0}, s{sJJ}, v{t0}
    v_lshl_add_u32 v{Y + 6}, v{t0}, 9, s{sFLG}
    s_bitcmp1_b32 s{sJJ}, 0
    s_cselect_b32 s{sT2}, {OOB:#x}, 0
    v_add_u32 v{Y + 7}, s{sT2}, v{VL16}
    s_and_b32 s{sT2}, s{sJJ}, 1
    s_lshl_b32 s{sT2}, s{sT2}, 6""") + [I(f'v_xor_b32 v{AS[q]}, s{sT2}, v{AS[q]}') for q in range(4)]
fill += park(pub=Y, lba0=Y + 1, lba1=Y + 2, lbe0=Y + 3, lbe1=Y + 4, fla=Y + 5, flp=Y + 6, f3o=Y + 7)
if OPT['tlb'] in (2, 3):
    fill = touch_o + fill
if OPT['fw']:
    fill += L(f"""s_lshl_b32 s{sT2}, s{sJJ}, 9
        s_add_u32 s{sT2}, s{sT2}, s{sFLG}
        v_lshlrev_b32 v{t0}, 3, v{vL}
        v_mov_b32 v{TT}, 0
        v_mov_b32 v{TT + 1}, 0
        buffer_store_dwordx2 {vr(TT, 2)}, v{t0}, {srd(sWS)}, s{sT2} offen sc1""")
if OPT['xw'] == 1:
    fill += L(f'v_lshlrev_b32 v{t0}, 2, v{vL}')
    for b in (1, 2, 3):
        fill += L(f"""buffer_store_dwordx4 {vr(TT, 4)}, v{VL16}, {srd(sWS)}, s{sXO[b]} offen sc1
            buffer_store_dwordx4 {vr(TT, 4)}, v{VL16}, {srd(sWS)}, s{sXO[b]} offen offset:1024 sc1
            buffer_store_dword v{vL}, v{t0}, {srd(sWS)}, s{sXO[b]} offen offset:2048 sc1""")
elif OPT['xw']:
    fill += L(f"""v_lshlrev_b32 v{t0}, 7, v{vL}
        v_min_u32 v{t0}, {59 * 128}, v{t0}
        buffer_load_dword a60, v{t0}, {srd(sWS)}, s{sXO[0]} offen {('', '', 'sc1', 'sc1 nt')[OPT['xw']]}""")
if not OPT['xel']:
    cut = len(fill) * OPT['xes'] // 100
    fill, xe = fill[:cut] + merge(fill[cut:], xe), []
OPT['dsp'] = OPT['dsps']
srounds = [(2, rg(4)), (14, rg(5)), (28, rg(6)), (42, rg(7))] if OPT['sch'] == 1 else \
    [(2, rg(5)), (14, rg(6)), (28, rg(7)), (42, rg(8))]
pin = pins(*srounds, (24, BAR('G2', 'G3')), (63 - LA_F, stamp('s59') + BAR('G4', 'G5') + stamp('b2')))
OPT['dsp'] = DSP
P += weave(fine('S', S_items, 3), fill, pin, 0, 62 - LA_F)

Q = FACC[1]
V = lambda t: SRE + t if t % 2 == 0 else SIM + t - 1
AGR, AGI = VRS, t3
fill = []
coef = []
for q in range(8):
    for h in range(2):
        r = 2 * q + h
        fill += L(f"""v_mul_f32 v{TT + 2 * h}, v{SRE + r}, v{CR}
            v_mul_f32 v{TT + 2 * h + 1}, v{SRE + r}, v{NCI}
            v_fmac_f32 v{TT + 2 * h}, v{SIM + r}, v{NCI}
            v_fmac_f32 v{TT + 2 * h + 1}, v{SIM + r}, v{NCR}""")
    for h in range(2):
        r = 2 * q + h
        fill += L(f"""v_mul_f32 v{V(r)}, v{TT + 2 * h}, v{Q + r}
            v_mul_f32 v{V(r) + 1}, v{TT + 2 * h + 1}, v{Q + r}""")
    coef.append(fill)
    fill = []
step = lambda d, p, c: L(f"""v_pk_fma_f32 {vr(d, 2)}, {vr(p, 2)}, {vr(LR, 2)}, {vr(c, 2)} op_sel_hi:[1,0,1]
    v_pk_fma_f32 {vr(d, 2)}, {vr(p, 2)}, {vr(NLI, 2)}, {vr(d, 2)} op_sel:[1,0,0] op_sel_hi:[0,1,1]""")
horner = [step(AGR if r & 1 else TT + 4, V(0) if r == 1 else (TT + 4 if r & 1 else AGR), V(r)) for r in range(1, 16)]
fill = fetch(seg=t1) + fill + L(f's_mov_b32 s{sKC[0]}, {M2LN2:#x}')
fill.append(I(f'ds_write_b64 v{t1}, {vr(AGR, 2)} offset:{7 * 256}', tok='segw'))
frounds = [(1, rg(8)), (12, rg(9))] if OPT['sch'] == 1 else [(1, rg(9)), (12, rg(10))]
staged_names = list(STAGE)
pin = pins(*frounds, (15 - LA_F, BAR('G6', 'G7')), (31, BAR('segw')),
           *[(22, stage_load(n)) for n in staged_names[:1]])
if 0 <= OPT['pfat'] < 32:
    pin.setdefault(OPT['pfat'], []).extend(pf)
NB = OPT['nb0']
per = 8 // NB
plan = [(1, [], [])]
for n in range(NB):
    lo, hi = max(2 * per * n - 1, 0), 2 * per * (n + 1) - 1
    plan.append((1 + (n + 1) * 28 // NB, sum(coef[per * n:per * (n + 1)], []), sum(horner[lo:hi], [])))
P += staged(fine('F0', F_items[0], 3), pin, plan + [(30, fill, []), (31, [], [])])
P += stamp('F0')

E = ASc[0]
R0, R1, T0_, T1_ = TT + 8, TT + 12, ASc[0], ASc[2]
h0, h1 = mish_stages(0, 0), mish_stages(0, 1)
rd = lambda dst, k: I(f'ds_read2_b64 {vr(dst, 4)}, v{t1} offset0:{32 * k} offset1:{32 * k + 32}')
publish = cmul_add(E, E + 2, L16R, L16I, PR, PI, AGR, AGI) + fetch(pub=t1) + L(f"""v_mov_b32 v{E + 1}, s{sTAG}
    v_mov_b32 v{E + 3}, s{sTAG}
    buffer_store_dwordx4 {vr(E, 4)}, v{t1}, {srd(sWS)}, 0 offen sc1""")
frounds = [(0, rg(10)), (8, rg(11))] if OPT['sch'] == 1 else [(0, rg(11))]
pin = pins(*frounds, (OPT['wa0'], rw('WA0')), (31 - LA_F, BAR('G8', 'G9', 'G10', 'G11')),
           *zip((8, 24), map(stage_load, staged_names[1:3])))
GA = [int(x) for x in str(OPT['stg1']).split('.')]
P += staged(fine('F0', F_items[1], 3), pin, [
    (GA[0], [rd(R0, 0), rd(R1, 2)] + h0['rd'], h0['A']),
    (GA[1], h0['ex'], cmul_pk(PR, L16R, R0, R0 + 2) + cmul_pk(T0_, L16R, PR, R1) + cmul_pk(PR, L16R, T0_, R1 + 2) + h0['B']),
    (GA[2], [rd(R0, 4), I(f'ds_read_b64 {vr(R1, 2)}, v{t1} offset:{6 * 256}')] + h0['rc'],
     cmul_pk(T0_, L16R, PR, R0) + cmul_pk(T1_, L16R, T0_, R0 + 2) + cmul_pk(PR, L16R, T1_, R1) + h0['C']),
    (GA[3], h1['rd'] + publish + h0['fin'], h1['A']),
    (GA[4], h1['ex'], h1['B']),
    (GA[5], h1['rc'], h1['C']),
    (31, h1['fin'], [])])
P += stamp('F1')

LBA = [CR, NCI]
LBE = [NCR, L16R]
LBD = [ASc[0], QG[0]]
FLV = L16I
lb_loads = '\n'.join(f'buffer_load_dwordx4 {vr(LBD[e], 4)}, v{LBA[e]}, {srd(sWS)}, 0 offen sc1' for e in range(2))
lb_setup = fetch(lba0=LBA[0], lba1=LBA[1], lbe0=LBE[0], lbe1=LBE[1])


def flag_store(stage, toks):
    out = [Wait(*toks), I(f'buffer_store_dword v{FLV}, v{FLA}, {srd(sWS)}, 0 offen offset:{128 * stage} sc1')]
    if OPT['ppf']:
        so = (sFST[0], sSST, sFST[2])[stage]
        vpf = L128R if stage else t3
        out = [I(f'v_lshlrev_b32 v{vpf}, {6 if stage < 2 else "s%d" % sSEL[1]}, v{vL}')] + out
        out.append(I(f'buffer_load_dword a{60 + (stage & 1)}, v{vpf}, {srd(sWS)}, s{so} offen sc1'))
    return out


def flag_load(stage):
    return f'buffer_load_dword v{t3}, v{FLP}, {srd(sWS)}, 0 offen offset:{128 * stage} sc1'


flag_check = f'v_cmp_ne_u32 vcc, s{sTAG}, v{t3}'
lb_check = f"""v_bitop3_b32 v{t0}, v{LBD[0] + 1}, v{LBD[0] + 3}, v{LBE[0]} bitop3:0x7e
    v_bitop3_b32 v{t1}, v{LBD[1] + 1}, v{LBD[1] + 3}, v{LBE[1]} bitop3:0x7e
    v_or_b32 v{t0}, v{t0}, v{t1}
    v_cmp_ne_u32 vcc, 0, v{t0}"""
lb_part = stamp('lb0') + poll('lb', lb_loads, lb_check) + stamp('lb1')
lb_part += cmul_add(LBD[0] + 1, LBD[0] + 3, L128R, L128I, LBD[0], LBD[0] + 2, LBD[1], LBD[1] + 2)
lb_part += cmul_add(LBD[1], LBD[1] + 1, WR, WI, LBD[0] + 1, LBD[0] + 3)
lb_part += fetch(lbw=t1)
lb_part.append(I(f'ds_write_b64 v{t1}, {vr(LBD[1], 2)}', tok='lbw'))
HW, HR, HB = ASc[0], ASc[1], FACC[1]
HW2, HR2 = WR, WI
tail_addr = fetch(lbr=ASc[3], fla=FLA, flp=FLP) + L(f'v_mov_b32 v{FLV}, s{sTAG}')
lb_reads = [I(f'ds_read2_b64 {vr(HB + 4 * q, 4)}, v{ASc[3]} offset0:{64 * q} offset1:{64 * q + 32}') for q in range(4)]
scan = [I(f'v_pk_add_f32 {vr(HB + a, 2)}, {vr(HB + a, 2)}, {vr(HB + b_, 2)}')
        for a, b_ in ((0, 2), (4, 6), (8, 10), (12, 14), (0, 4), (8, 12), (0, 8))]
scan += cmul_add(L128R, L128I, LSR, LSI, HB, HB + 1, PR, PI)
pack = lambda q: L(f"""v_cvt_pk_bf16_f32 v{SRE + q}, v{V(2 * q)}, v{V(2 * q + 1)}
    v_cvt_pk_bf16_f32 v{SIM + q}, v{V(2 * q) + 1}, v{V(2 * q + 1) + 1}""")
for r in range(16):
    prev = vr(L128R if r == 0 else V(r - 1), 2)
    scan += L(f"""v_pk_fma_f32 {vr(V(r), 2)}, {prev}, {vr(LR, 2)}, {vr(V(r), 2)} op_sel_hi:[1,0,1]
        v_pk_fma_f32 {vr(V(r), 2)}, {prev}, {vr(NLI, 2)}, {vr(V(r), 2)} op_sel:[1,0,0] op_sel_hi:[0,1,1]""")
    if r >= 2 and r % 2 == 0 and OPT['pk_in']:
        scan += pack(r // 2 - 1)
transp = fetch(hw=HW, hw2=HW2, hr=HR, hr2=HR2) + sum((pack(q) for q in range(7 if OPT['pk_in'] else 0, 8)), [])
for ri in range(2):
    transp += [I(f'ds_write_b128 v{(HW, HW2)[h]}, {vr((SRE, SIM)[ri] + 4 * h, 4)}') for h in range(2)]
    for fr in range(2):
        for u in range(2):
            transp.append(I(f'ds_read_b64_tr_b16 {ar(aOS + 8 * ri + 4 * fr + 2 * u, 2)}, v{(HR, HR2)[u]} offset:{1024 * fr + 256 * u}'))
stH = [I(f'buffer_store_dwordx4 {ar(aOS + 4 * q, 4)}, v{VL16}, {srd(sWS)}, s{sSST} offen offset:{1024 * q} sc1',
         tok='stH' if q == 3 else None) for q in range(4)]
h0, h1 = mish_stages(1, 0), mish_stages(1, 1)
g0, g1 = mish_stages(2, 0), mish_stages(2, 1)
pin = pins((0, rw('CR0')), (8, rw('CI0')), (18, rw('WA1')), (29, BAR('lbw') + lb_reads + g0['rd'] + g1['rd']), (OPT['lbl'], L(lb_loads)),
           *[(25, stage_load(n)) for n in staged_names[3:4]])
GB = [int(x) for x in str(OPT['stg2']).split('.')]
P += staged(fine('F2', F_items[2], 2), pin, [
    (GB[0], h0['rd'] + h1['rd'] + lb_setup, h0['A']),
    (GB[1], h0['ex'], h0['B'] + h1['A']),
    (GB[2], h0['rc'] + h1['ex'], h0['C'] + h1['B']),
    (GB[3], h0['fin'] + h1['rc'], h1['C']),
    (28, h1['fin'] + lb_part + tail_addr, []),
    (31, [], [])])
P += stamp('F2')
burst = scan + g0['A']
if OPT['fas'] < 0:
    burst = burst[:OPT['fas']] + flag_store(0, ['stF0', 'stF1']) + burst[OPT['fas']:]
if OPT['fine'] == 'T':
    for n in range(len(burst) - 12, 0, -12):
        burst = burst[:n] + stamp(f'g{n}') + burst[n:]
P += burst
P += stamp('scan')


FP0, FPc = [CR, NCI], [QG[2], QG[3]]
PA = OPT['pa']
p3_setup = fetch(fp0=FP0[0], fp1=FP0[1], f3o=ASc[2])
hs = OPT['hs']
lead = [i_ for i_ in transp if i_.kind != 'ds']
tds = transp[len(lead):]
P += lead
tpins = [(0, tds[0:1]), (1, tds[1:2]), (2, tds[2:4]), (3, tds[4:6]), (4, tds[6:7]), (5, tds[7:8] + stH[0:1]),
         (6, tds[8:10]), (7, tds[10:12] + stH[1:2]), (7 + hs, stH[2:3]), (7 + 2 * hs, stH[3:4])]

steps = ([('WA0', x, 'own') for x in range(4)]
         + [(n, x, 'own') for n in ('CR0', 'CI0') for x in range(2)]
         + [(f'WA{e}', x, 'A') for e in (1, 2, 3) for x in range(4)]
         + [(n, x, 'H') for n in ('CR0', 'CI0') for x in (2, 3)]
         + [(n, x, 'H') for n in ('CR1', 'CI1') for x in range(4)]
         + [('WB0', x, 'own') for x in range(4)]
         + [(f'WB{e}', x, 'B') for e in (1, 2) for x in range(4)])
deferred = [k for k, st in enumerate(steps) if st[2] != 'own']
A_REGS = ([192 + 4 * n for n in range(16)] + [SRE + 4 * n for n in range(8)]
          + [FACC[0] + 4 * n for n in range(4)] + [TT + 4 * n for n in range(4)])
ACC = [128, 144, 160, 176]
cur_addr = {}


def a_frag(k):
    name, x, src = steps[k]
    if src != 'own':
        return vr(A_REGS[deferred.index(k)], 4)
    if name == 'WA0':
        return ar(aOF + 4 * x, 4)
    if name == 'WB0':
        return ar(aOF + 16 + 4 * x, 4) if x < 2 else vr(FACC[1] + 4 * (x - 2), 4)
    return ar(aOS + 8 * (name[1] == 'I') + 4 * x, 4)


def a_load(k):
    name, x, src = steps[k]
    e = int(name[2])
    if name[0] == 'C':
        code = f's_xor_b32 s{sT1}, s{sJJ}, {2 * e + (x >> 1)}\ns_lshl_b32 s{sT1}, s{sT1}, 12\n' \
               f's_add_u32 s{sT1}, s{sT1}, {28 * 1024}\ns_add_u32 s{sT1}, s{sT1}, s{sAS}'
        off = 2048 * (name[1] == 'I') + 1024 * (x & 1)
        fresh = x & 1 == 0
    else:
        if name[1] == 'A':
            code = f's_xor_b32 s{sT1}, s{sJJ}, {e}\ns_lshl_b32 s{sT1}, s{sT1}, 13\ns_add_u32 s{sT1}, s{sT1}, s{sAS}'
        else:
            code = f's_lshl_b32 s{sT1}, s{sPB[e]}, 12\ns_add_u32 s{sT1}, s{sT1}, s{sAS}'
        off = 1024 * x
        fresh = x == 0
    return (L(code) if fresh else []) + \
        [I(f'buffer_load_dwordx4 {a_frag(k)}, v{VL16}, {srd(sWS)}, s{sT1} offen offset:{off} sc1')]


pin = pins((PA, rw2('WA2')), (PA + 8, BAR()), (PA + 9, rw2('WA3')), (PA + 17, BAR()), (PA + 18, rw2('CR1')),
           (OPT['fal'], L(flag_load(0))), (30, BAR('WA0', 'CR0', 'CI0', 'WA1')), *tpins)
if OPT['fhs'] >= 0:
    pin.setdefault(OPT['fhs'], []).extend(flag_store(1, ['stH']))
if OPT['fas'] >= 0:
    pin.setdefault(OPT['fas'], []).extend(flag_store(0, ['stF0', 'stF1']))
m3 = mish_pk(3, ASc[2])
GC = [int(x) for x in str(OPT['stg3']).split('.')]
P += staged(fine('F3', F_items[3], 2), pin, [
    (GC[0], g0['ex'], g0['B'] + g1['A']),
    (GC[1], g0['rc'] + g1['ex'], g0['C'] + g1['B']),
    (GC[2], g0['fin'] + g1['rc'], g1['C']),
    (29, g1['fin'][:4] + m3[:4] + g1['fin'][4:] + p3_setup, []),
    (31, [], [])])
P += stamp('F3')

m3 = m3[4:]
st0 = next(n for n, i_ in enumerate(m3) if i_.kind == 'vm')
early = sum((a_load(k) for k in range(8, 8 + OPT['nea'])), [])
fac = st0 - OPT['fac']
TAIL0 = len(P)
P += m3[:fac] + (flag_store(1, ['stH']) if OPT['fhs'] == -1 and not OPT['fhp'] else [])
P += stamp('fa0') + poll('fa', flag_load(0), flag_check) + stamp('fa1')
tl = merge(m3[fac:st0], early) + (flag_store(1, ['stH']) if OPT['fhp'] else []) + m3[st0:]
TAIL1 = len(P) + len(tl) - len(m3) + st0 + 1
if OPT['fine'] == 'T':
    for n in range(len(tl) - 12, 0, -12):
        tl = tl[:n] + stamp(f'gt{n}') + tl[n:]
P += tl
P += stamp('tail')

XE, ME = 192, LSR
ep_setup = L(f"""v_lshrrev_b32 v{t1}, 5, v{vL}
    s_lshl_b32 s{sT2}, s{sW}, 8
    s_add_u32 s{sT2}, s{sT2}, {T_STAT}
    v_lshl_add_u32 v{VLN2}, v{t1}, 6, s{sT2}
    v_lshlrev_b32 v{FA0}, 15, v{t1}
    v_and_b32 v{t0}, 31, v{vL}
    v_lshl_add_u32 v{FA0}, v{t0}, 2, v{FA0}""")
VL4 = ASc[0]
ep_setup = L(f'v_lshlrev_b32 v{VL4}, 2, v{vL}') + ep_setup
base_calc = [I(f'v_accvgpr_read_b32 v{RL2}, a{aXE + 16}')]
for qt in range(4):
    base_calc += [I(f'ds_read_b128 {vr(ME, 4)}, v{VLN2} offset:{16 * qt}', hoist=True),
                  I(f'ds_read_b128 {vr(ME + 4, 4)}, v{VLN2} offset:{128 + 16 * qt}', hoist=True)]
    rs = range(4)
    base_calc += [I(f'v_accvgpr_read_b32 v{XE + 4 * qt + r}, a{aXE + 4 * qt + r}') for r in rs]
    base_calc += [I(f'v_sub_f32 v{ME + r}, v{XE + 4 * qt + r}, v{ME + r}') for r in rs]
    base_calc += [I(f'v_mul_f32 v{ME + r}, v{ME + r}, v{ME + 4 + r}') for r in rs]
    base_calc += [I(f'v_fmac_f32 v{XE + 4 * qt + r}, v{ME + r}, v{RL2}') for r in rs]

def checksum(dst, src, last):
    return [f'v_bitop3_b32 v{dst}, v{src}, v{src + 1}, {last} bitop3:0x96'] + \
           [f'v_bitop3_b32 v{dst}, v{src + e}, v{src + e + 1}, v{dst} bitop3:0x96' for e in (2, 4, 6)]


def send(b):
    A = ACC[b]
    out = []
    for q in range(2):
        out += [I(f'v_cvt_pk_bf16_f32 v{A + e}, v{A + 2 * e}, v{A + 2 * e + 1}') for e in range(4 * q, 4 * q + 4)]
        out.append(I(f'buffer_store_dwordx4 {vr(A + 4 * q, 4)}, v{VL16}, {srd(sWS)}, s{sXO[b]} offen '
                     f'offset:{1024 * q} sc1'))
    out += [I(c) for c in checksum(A + 8, A, f's{sTAG}')]
    out.append(I(f'buffer_store_dword v{A + 8}, v{VL4}, {srd(sWS)}, s{sXO[b]} offen offset:2048 sc1'))
    return out


def w_read1(k, b, dst):
    name, x, src = steps[k]
    slot = W_SLOT[name]
    if name[0] == 'C':
        return [I(f'v_add_u32 v{FAc}, {slot * SLOT}, v{AS[x]}'),
                I(f'ds_read_b128 {ar(dst, 4)}, v{FAc} offset:{4096 * b}', lds_r=slot)]
    key = FPc[b & 1]
    out = []
    if cur_addr.get(key) != slot:
        cur_addr[key] = slot
        out.append(I(f'v_add_u32 v{key}, {slot * SLOT}, v{FP0[b & 1]}'))
    return out + [I(f'ds_read_b64_tr_b16 {ar(dst + 2 * u, 2)}, v{key} '
                    f'offset:{8192 * (x >> 1) + 4096 * (b >> 1) + 2048 * (x & 1) + 1024 * u}', lds_r=slot) for u in range(2)]


RX = {1: ACC[1], 2: ACC[2], 3: ACC[3]}


def recv(b):
    so = sXO[0] if b == 1 else sSEL[b]
    rl = [f'buffer_load_dwordx4 {vr(RX[b] + 4 * q, 4)}, v{VL16}, {srd(sWS)}, s{so} offen offset:{1024 * q} sc1' for q in range(2)]
    rl.append(f'buffer_load_dword v{RX[b] + 8}, v{VL4}, {srd(sWS)}, s{so} offen offset:2048 sc1')
    return '\n'.join(rl)


pre = L(f"""s_lshl_b32 s{sXB}, s{sXB}, 1
    s_mov_b32 s{sKC[0]}, 0x00003f80
    s_mov_b32 s{sKC[1]}, 0x3f800000""")
E3 = OPT['e3']
seq = [(k, b) for k in range(8) for b in (1, 2, 3, 0)] + [(k, b) for k in range(8, E3) for b in (1, 2, 3)]
seq += [(k, b) for k in range(E3, 36) for b in (1, 2)]
seq += [(k, b) for b in (1, 2) for k in range(36, 44)]
seq += [(k, 3) for k in range(E3, 44)] + [(k, 0) for k in range(8, 44)]
at = {kb: n for n, kb in enumerate(seq)}
done_at = {b: at[43, b] for b in (1, 2, 3)}
KEEP = {(k, 0): aWO + 4 * (k - 8) for k in range(8, 12)}
reads = sorted((kb for kb in seq), key=lambda kb: at[kb[0], 3] + 0.5 if kb in KEEP else at[kb])
RING = 12
where, nring = {}, 0
for kb in reads:
    if kb in KEEP:
        where[kb] = KEEP[kb]
    else:
        where[kb] = aP + 4 * (nring % RING)
        nring += 1
LA_J = OPT['laj']
items = []
rd = 0
seen = set()
for n, (k, b) in enumerate(seq):
    pre_rd = []
    while rd < len(reads) and (at[reads[rd][0], 3] if reads[rd] in KEEP else at[reads[rd]]) <= n + LA_J:
        pre_rd += w_read1(*reads[rd], where[reads[rd]])
        rd += 1
    m = mfma(vr(ACC[b], 16), a_frag(k), ar(where[k, b], 4), vr(ACC[b], 16) if b in seen else '0')
    seen.add(b)
    if n == 0:
        if OPT['wmix']:
            end = len(P) - (PROF in (1, 2)) - 5
            P = P[:TAIL1] + merge(P[TAIL1:end], pre_rd) + P[end:]
        else:
            P = P[:TAIL0] + pre_rd + P[TAIL0:]
        pre_rd = []
    items.append([m] + pre_rd)
pin = {n: [] for n in range(len(items))}
pin[18] += BAR('WA2')
pin[at[16, 1] - LA_J - 1] += [Wait('WA3', 'CR1', 'CI1'), I('s_barrier')]
pin[at[32, 1] - LA_J - 1] += [Wait('WB0', 'WB1', 'WB2'), I('s_barrier')]
if OPT['fhs'] < -1:
    pin[-OPT['fhs']] += flag_store(1, ['stH'])
if OPT['fhl'] >= 0:
    pin[OPT['fhl']] += L(flag_load(1))
pin[OPT['fhc']] += stamp('fh0') + poll('fh', flag_load(1), flag_check) + stamp('fh1')
pin[OPT['fls']] += flag_store(2, ['stF3', 'stF2'])
pin[OPT['fll']] += L(flag_load(2))
pin[OPT['flc']] += stamp('fl0') + poll('fl', flag_load(2), flag_check) + stamp('fl1')
pin[at[36, 1] - 1] += stamp('k36')
for name, gap in (('CI1', 1), ('WB0', 19), ('WB1', 24), ('WB2', at[16, 1] - LA_J)):
    if name in STAGE:
        for n, i_ in enumerate(stage_write(name)):
            pin[gap + max(n - 2, 0)].append(i_)
_rw = rw
rw = lambda name: [] if name in STAGE else _rw(name)
queue = [(OPT['q0'], a_load(k)) for k in range(8 + OPT['nea'], 16)] + [(0, rw('CI1'))]
queue += [(OPT['q0'], a_load(k)) for k in range(max(16, 8 + OPT['nea']), 20)]
if OPT['qord'] == 0:
    queue += [(19, rw('WB0'))] + [(OPT['fhc'], a_load(k)) for k in range(20, 32)] + [(19, rw('WB1'))]
elif OPT['qord'] == 1:
    queue += [(19, rw('WB0')), (19, rw('WB1'))] + [(OPT['fhc'], a_load(k)) for k in range(20, 32)]
else:
    queue += [(OPT['fhc'], a_load(k)) for k in range(20, 24)] + [(19, rw('WB0')), (19, rw('WB1'))]
    queue += [(0, a_load(k)) for k in range(24, 32)]
queue += [(at[16, 1] - LA_J, rw('WB2'))]
queue += [(OPT['flc'], a_load(k)) for k in range(36, 44)]
n = 0.0
for first_gap, ins in queue:
    n = max(n, first_gap)
    pend = []
    for i_ in ins:
        pend.append(i_)
        if i_.kind == 'vm':
            pin[int(n)] += pend
            pend = []
            n += OPT['pace'] / 10
for b in (1, 2, 3):
    sd = send(b)
    for q in range(4):
        pin[done_at[b] + 3 + q] += sd[q * len(sd) // 4:(q + 1) * len(sd) // 4]
    pin[done_at[min(b + 1, 3) if b < 3 else 3] + OPT[f'r{b}'] if b != 2 else done_at[2] + OPT['r2']] += L(recv(b))
pin[done_at[2] + 6] += stamp('s12')
pin[done_at[3] + 6] += stamp('sent')
items = fine('P3', items[:OPT['fn'] * 27], OPT['fn']) + items[OPT['fn'] * 27:]
LEV[0] = OPT['lev3']
sub = lambda lo, hi: {n - lo: pin[n] for n in range(lo, hi)}
c1, c2 = at[32, 1], at[11, 0] + 1
P += weave(items[:c1], [], sub(0, c1))
cx = done_at[2] + 8
P += weave(items[c1:cx], ep_setup, sub(c1, cx), 0, 4)
P += weave(items[cx:c2], xe + pre, sub(cx, c2), 0, 18)
def rx_check(b):
    chk = checksum(RX[b] + 9, RX[b], f'v{RX[b] + 8}') + [f'v_cmp_ne_u32 vcc, s{sTAG}, v{RX[b] + 9}']
    return poll(f'rx{b}', recv(b), '\n'.join(chk))


EARLY = range(1, 1 + OPT['rxe'])
for b in EARLY:
    base_calc += rx_check(b)
    for q in range(8):
        u = RX[b] + 10 + 2 * (q & 1)
        base_calc += L(f"""v_lshlrev_b32 v{u}, 16, v{RX[b] + q}
            v_and_b32 v{u + 1}, 0xffff0000, v{RX[b] + q}
            v_add_f32 v{XE + 2 * q}, v{XE + 2 * q}, v{u}
            v_add_f32 v{XE + 2 * q + 1}, v{XE + 2 * q + 1}, v{u + 1}""")
P += weave(items[c2:], base_calc, sub(c2, len(items)), 3, 30 if OPT['rxe'] else 26)
P += stamp('own')
A0 = ACC[0]
for q in range(8):
    P.append(I(f'v_pk_add_f32 {vr(A0 + 2 * q, 2)}, {vr(A0 + 2 * q, 2)}, {vr(XE + 2 * q, 2)}'))
LATE = [b for b in (1, 2, 3) if b not in EARLY]
for b in LATE:
    P += rx_check(b)
P += stamp('rx')
for q in range(8):
    for b in LATE:
        P += [I(f'v_dot2c_f32_bf16 v{A0 + 2 * q + h}, s{sKC[h]}, v{RX[b] + q}') for h in range(2)]
    if q:
        P += sts
    sts = [I(f's_add_u32 s{sBB}, s{sXB}, {4096 * q}')]
    sts += [I(f'buffer_store_dword v{A0 + 2 * q + h}, v{FA0}, {srd(sOUT)}, s{sBB} offen offset:{2048 * h} '
              f'{OPT["out_flags"].replace("+", " ")}') for h in range(2)]
P += L(f"""s_lshl_b32 s{sT2}, s{sJ}, 2
    s_add_u32 s{sT2}, s{sT2}, s{sW}
    s_xor_b32 s{sT1}, s{sI}, 15
    s_or_b32 s{sT2}, s{sT2}, s{sT1}
    s_cmp_eq_u32 s{sT2}, 0
    s_cselect_b32 s{sT2}, {WS_EP}, {OOB:#x}
    v_mov_b32 v{t0}, s{sE2}
    v_mov_b32 v{t1}, s{sT2}""") + sts + L(f'buffer_store_dword v{t0}, v{t1}, {srd(sWS)}, 0 offen')
if OPT['diag']:
    P += stamp('end') + L("""s_memrealtime s[6:7]
        s_waitcnt lgkmcnt(0)
        s_sub_u32 s4, s4, s23
        s_lshl_b32 s4, s4, 2
        s_min_u32 s4, s4, 20000
        L_diag:
        s_memrealtime s[0:1]
        s_waitcnt lgkmcnt(0)
        s_sub_u32 s0, s0, s6
        s_cmp_lt_u32 s0, s4
        s_cbranch_scc1 L_diag""")
if PROF:
    P += stamp('end')
    P += L(f"""s_waitcnt vmcnt(0)
        s_memrealtime s[0:1]
        s_lshl_b32 s{sT2}, s2, 2
        s_add_u32 s{sT2}, s{sT2}, s{sW}
        s_lshl_b32 s{sT2}, s{sT2}, 7
        s_add_u32 s{sT2}, s{sT2}, {WS_PROF}
        v_mov_b32 v{t1}, s{sT2}
        s_waitcnt lgkmcnt(0)
        v_mov_b32 v{t0}, s0
        buffer_store_dword v{t0}, v{t1}, {srd(sWS)}, 0 offen offset:124
        v_mov_b32 v{t2}, s23
        buffer_store_dword v{t2}, v{t1}, {srd(sWS)}, 0 offen offset:112
        buffer_store_dword a254, v{t1}, {srd(sWS)}, 0 offen offset:116
        buffer_store_dword a255, v{t1}, {srd(sWS)}, 0 offen offset:120""")
    P += stamp('DUMP')
P += [I('L_end:'), I('s_endpgm')]

P = resolve_stamps(P)
if OPT['split']:
    P = split_ds_pairs(P)
if OPT['hoist']:
    P = hoist_reads(P, OPT['hoist'])
body = pad_hazards(insert_waits(P, OPT['age']))
check_polls(body)
tail = []
for name, loads, check in retry_blocks:
    blk = [I(f'L_retry_{name}:'), I(f's_mov_b32 s3, {OPT["spin"]}'), I(f'L_spin_{name}:')]
    if PROF:
        blk.append(I(f's_add_u32 s23, s23, {1 << (4 * retry_blocks.index((name, loads, check)))}'))
    blk += L(loads) + [I('s_waitcnt vmcnt(0)')] + L(check)
    blk += L(f'''s_cbranch_vccz L_back_{name}
        s_sub_u32 s3, s3, 1
        s_cmp_lg_u32 s3, 0
        s_cbranch_scc1 L_spin_{name}
        s_branch L_back_{name}''')
    tail += pad_hazards(blk)

hdr = open(os.path.join(os.path.dirname(os.path.abspath(__file__)), 'header.txt')).read()
text = hdr + f'''; @launch grid=(256,1,1) block=(256,1,1) lds=163840
.amdgcn_target "amdgcn-amd-amdhsa--gfx950"
.text
.globl {KN}
.p2align 8
.type {KN},@function
{KN}:
{render(body)}
{render(tail)}
L_code_end:
    s_endpgm
.section .rodata,"a"
.p2align 6
.amdhsa_kernel {KN}
  .amdhsa_next_free_vgpr 512
  .amdhsa_next_free_sgpr 102
  .amdhsa_accum_offset 256
  .amdhsa_group_segment_fixed_size 0
  .amdhsa_kernarg_size 128
  .amdhsa_user_sgpr_count 2
  .amdhsa_user_sgpr_kernarg_segment_ptr 1
  .amdhsa_system_sgpr_workgroup_id_x 1
.end_amdhsa_kernel
'''
open(sys.argv[1], 'w').write(text)
if PROF:
    open(sys.argv[1][:-2] + '.stamps', 'w').write(' '.join(stamp_names))
from collections import Counter
cnt = Counter(i.kind for i in body)
print(dict(cnt), 'nops', sum(1 for i in body if i.mn == 's_nop'))
```

```python
import sys, os
sys.path.insert(0, os.path.dirname(os.path.abspath(__file__)))
from asmlib import I, Wait, insert_waits, pad_hazards, render, weave, split_ds_pairs, hoist_reads, merge, level, ds_first, check_polls

KN = 'parallel_sum__ssm_conv_s5__dense_activation_mish__prompt_kernel'
OPT = dict(prof=0, spin=20000, out_flags='nt', map='8x4', pf=2, age=16, laf=5, r1=30, r2=36, r3=29, e3=12, fls=26, fll=47, flc=64, ka2=1, nstep=0, split=0, diag='', dsp=2, xel=0, tlb=0, pk_in=1, lateln=100, d0=4, o8=1, bal=0, fineg=1, xes=0, xfirst=1, parat=4, nb0=2, stg3='8.16.23', stg1='2.7.12.17.22.27', stg2='2.6.14.21', fhp=0, wmix=1, ntx=0, ntg=0, ntw=0, lbt=0, rxe=0, dspc=3, dsps=3, sch=2, g3=24, fn=2, stg=0, q0=6, pfat=24, wa0=17, hs=2, rotj=0, rotm=0, laj=7, pace=16, lev=0, lev3=0, pa=2, fw=1, xw=0, vmc=2, fine='', fas=-10, fal=12, fac=16, nea=8, fhs=-1, fhl=12, fhc=26, qord=0, lbl=13, lbc=24, ppf=0, hoist=32)
for a in sys.argv[2:]:
    k, v = a.split('=')
    OPT[k] = int(v) if v.lstrip('-').isdigit() else v
PROF = OPT['prof']

WS_EP, WS_AG, WS_A = 0, 0x10000, 0x40000
WS_XC = WS_A + 64 * 176 * 1024
XC_BLK = 2560
WS_FL = WS_XC + 1024 * 3 * XC_BLK
WS_SIZE = WS_FL + 1024 * 512
WS_PROF = 0x1C00000
OOB = 0x7ff00000
SLOT = 16384
TB = 9 * SLOT
T_STAT, T_B1, T_SEG, T_LB, T_H = TB, TB + 1024, TB + 2048, TB + 6144, TB + 8192
LOG2E, LN2, M2LN2 = 0x3fb8aa3b, 0x3f317218, 0xbfb17218

sX, sB, sW1, sCre, sCim, sW2, sWS, sOUT, sTMP = 36, 40, 44, 48, 52, 56, 60, 64, 68
sI, sJ, sW, sROT, sTAG, sE2 = 72, 73, 74, 75, 76, 77
sKC = [78, 79, 80, 81]
sWOFF, sT0, sT1, sXB, sBB, sW1A, sW1B = 82, 83, 84, 85, 86, 87, 88
sAS = 89
sFST = [90, 91, 92, 93]
sSST, sCB, sW2B, sFSEL, sONES, sT3, sJJ, sT2 = 94, 95, 96, 97, 98, 99, 100, 101
sKQ, sPB, sXO = 22, [24, 25, 26], [27, 28, 29, 30]
sSEL = [31, 32, 33, 34]
sFLG = 35
pLRE, pLIM, pBRE, pBIM, pLDT, pDSK, pB1 = 8, 10, 12, 14, 16, 18, 20
srd = lambda b: f's[{b}:{b + 3}]'
vL, t0, t1, t2 = 0, 1, 2, 3
AS = [4, 5, 6, 7]
ASc = [8, 9, 10, 11]
XG = [12, 13, 14, 15]
PG = [16, 17, 18, 19]
QG = [20, 21, 22, 23]
FA0, FAc, RL2, VLN2, VL16, VNM, VRS, t3 = 24, 25, 26, 27, 28, 29, 30, 31
FAd = VNM
NLI, LI, LR, CR, NCI, NCR, L16R, L16I, LSR, LSI, L128R, L128I, WR, WI, PR, PI = range(32, 48)
TT = 48
FACC = [64, 80]
SRE, SIM = 96, 112
X = 128
aS, aF, aP, aOF, aOS, aWO, aXE = 0, 128, 0, 64, 88, 128, 224
STAMP_A = list(range(104, 128)) + list(range(241, 247))
vr = lambda b, n: f'v[{b}:{b + n - 1}]'
ar = lambda b, n: f'a[{b}:{b + n - 1}]'

stamp_names = []
FINE_KEEP = dict(T=['lb1', 'F2', 'scan', 'F3', 'fa0', 'fa1', 'tail', 'fh0'], S=['x7', 'c27', 'b0', 'F0'], F0=['b2', 'F0', 'F1'], F2=['F1', 'F2', 'scan'], F3=['F2', 'scan', 'F3', 'fa0', 'fa1', 'tail'],
                 P3=['tail'], L=['k36', 'sent', 'own', 'rx'])


def fine(phase, items, step):
    if OPT['fine'] == phase:
        for n in range(step - 1, len(items), step):
            items[n] = items[n] + stamp(f'g{n}')
    return items


def stamp(name):
    if PROF == 3 and name not in ('end', 'DUMP'):
        return []
    if OPT['fine'] and not name.startswith('g') and name not in FINE_KEEP[OPT['fine']] + ['end', 'DUMP']:
        return []
    if OPT['diag'] == name:
        return [I('s_memrealtime s[4:5]')]
    return [I(';stamp ' + name)] if PROF else []


def resolve_stamps(prog):
    out = []
    for ins in prog:
        if not ins.text.startswith(';stamp '):
            out.append(ins)
            continue
        name = ins.text.split()[1]
        n = len(stamp_names)
        if n:
            out.append(I(f'v_accvgpr_write_b32 a{STAMP_A[n - 1]}, s{4 + 2 * ((n - 1) & 1)}'))
        if name == 'DUMP':
            out += [I(f'buffer_store_dword a{STAMP_A[k]}, v{t1}, {srd(sWS)}, 0 offen offset:{4 * k}') for k in range(n)]
            continue
        assert n < 29
        stamp_names.append(name)
        out.append(I(f's_mem{"real" if PROF == 2 else ""}time s[{4 + 2 * (n & 1)}:{5 + 2 * (n & 1)}]'))
    return out


def L(text):
    return [I(t.strip()) for t in text.strip().split('\n') if t.strip()]


def mfma(d, a, b, c):
    return I(f'v_mfma_f32_32x32x16_bf16 {d}, {a}, {b}, {c}')


def mksrd(b, lo, size):
    return f's_mov_b32 s{b}, s{lo}\ns_mov_b32 s{b + 1}, s{lo + 1}\ns_mov_b32 s{b + 2}, {size}\ns_mov_b32 s{b + 3}, 0x00020000\n'


slot_shared = {}


def dma_round(name, slot, voffs, rsrc, soff_code, shared):
    out = [I(f's_add_u32 m0, s{sWOFF}, {slot * SLOT}')] + L(soff_code)
    for g in range(4):
        nt = int(name[1:]) < OPT['ntx'] if name[0] == 'x' else OPT['ntg'] if name[0] == 'G' else OPT['ntw']
        out.append(I(f'buffer_load_dwordx4 v{voffs[g]}, {srd(rsrc)}, s{sT0} offen offset:{1024 * g} {"nt " if nt else ""}lds',
                     tok=name if g == 3 else None,
                     lds_w=(slot, slot_shared.get(slot, False)) if g == 0 else None, note=name,
                     fills=(slot, shared) if g == 3 else None))
    slot_shared[slot] = shared
    return out


def rx(s, slot):
    return dma_round(f'x{s}', slot + 1, XG, sX,
                     f's_add_u32 s{sT0}, s{sROT}, {s}\ns_and_b32 s{sT0}, s{sT0}, 7\n'
                     f's_lshl_b32 s{sT0}, s{sT0}, 7\ns_add_u32 s{sT0}, s{sT0}, s{sXB}', False)


G_SLOT = [5, 6, 7, 8, 0, 1, 2, 3, 4, 5, 6, 7]
W_SLOT = dict(WA0=8, CR0=0, CI0=1, WA1=2, WA2=3, WA3=4, CR1=5, CI1=6, WB0=7, WB1=8, WB2=2)


def rg(g):
    if g < 4:
        return dma_round(f'G{g}', G_SLOT[g], PG, sB,
                         f's_lshl_b32 s{sT0}, s{sKC[g]}, 7\ns_add_u32 s{sT0}, s{sT0}, s{sBB}', True)
    base = sW1A if g < 8 else sW1B
    return dma_round(f'G{g}', G_SLOT[g], QG, sW1,
                     f's_mul_i32 s{sT0}, s{sKC[g & 3]}, {64 * 3584}\ns_add_u32 s{sT0}, s{sT0}, s{base}', True)


def rw(name):
    e = int(name[2])
    if name[0] == 'C':
        code = f's_xor_b32 s{sT0}, s{sCB}, {128 * e}'
        return dma_round(name, W_SLOT[name], PG, sCim if name[1] == 'I' else sCre, code, True)
    if name[1] == 'A':
        code = f's_xor_b32 s{sT0}, s{sJJ}, {e}\ns_lshl_b32 s{sT0}, s{sT0}, 17\ns_add_u32 s{sT0}, s{sT0}, s{sW2B}'
    else:
        code = f's_lshl_b32 s{sT0}, s{sPB[e]}, 16\ns_add_u32 s{sT0}, s{sT0}, s{sW2B}'
        if e == 0:
            code += f'\ns_xor_b32 s{sT0}, s{sT0}, s{sSEL[0]}'
    return dma_round(name, W_SLOT[name], XG, sW2, code, True)


STAGE = {n: 160 + 16 * k for k, n in enumerate(x for x in str(OPT['stg']).split('.') if x != '0')}
VST = t0


def stage_load(name):
    keep = dict(slot_shared)
    out = []
    for i_ in rw(name)[1:]:
        if i_.kind == 'vm':
            n = sum(j.kind == 'vm' for j in out)
            i_ = I(i_.text.replace('dwordx4 ', f'dwordx4 {ar(STAGE[name] + 4 * n, 4)}, ').replace(' lds', ''))
            i_.dma = True
        out.append(i_)
    slot_shared.clear()
    slot_shared.update(keep)
    return out


def stage_write(name):
    slot = W_SLOT[name]
    out = [I(f's_add_u32 s{sT0}, s{sWOFF}, {slot * SLOT}'), I(f'v_add_u32 v{VST}, s{sT0}, v{VL16}')]
    out += [I(f'ds_write_b128 v{VST}, {ar(STAGE[name] + 4 * g_, 4)} offset:{1024 * g_}', tok=name if g_ == 3 else None,
              lds_w=(slot, True) if g_ == 0 else None, note=name, fills=(slot, True) if g_ == 3 else None)
            for g_ in range(4)]
    return out


def rw2(name):
    if name not in STAGE:
        return rw(name)
    out = stage_write(name)
    for i_ in out[2:]:
        i_.dma = True
    return out


def pins(*parts):
    pin = {}
    for gap, ins in parts:
        head = [i_ for i_ in ins if not getattr(i_, 'dma', False)]
        pin.setdefault(gap, []).extend(head)
        for n, i_ in enumerate(ins[len(head):]):
            pin.setdefault(gap + n * OPT['dsp'], []).append(i_)
    return pin


BAR = lambda *toks: ([Wait(*toks)] if toks else []) + [I('s_barrier')]
PARK = {n: 247 if k == 16 else 48 + k for k, n in enumerate('pub seg lba0 lba1 lbe0 lbe1 fla flp lbw lbr hw hw2 hr hr2 f3o fp0 fp1'.split())}


def park(**regs):
    return [I(f'v_accvgpr_write_b32 a{PARK[n]}, v{r}') for n, r in regs.items()]


def fetch(**regs):
    return [I(f'v_accvgpr_read_b32 v{r}, a{PARK[n]}') for n, r in regs.items()]


retry_blocks = []


def poll(name, loads, check):
    retry_blocks.append((name, loads, check))
    return L(check) + [I(f's_cbranch_vccnz L_retry_{name}'), I(f'L_back_{name}:')]


def cexp(dr, di, scale, zr, za):
    return L(f"""v_mul_f32 v{dr}, {scale}, v{zr}
        v_mul_f32 v{di}, {scale}, v{za}
        v_exp_f32 v{dr}, v{dr}
        v_fract_f32 v{di}, v{di}
        v_cos_f32 v{t3}, v{di}
        v_sin_f32 v{di}, v{di}
        v_mul_f32 v{di}, v{dr}, v{di}
        v_mul_f32 v{dr}, v{dr}, v{t3}""")


def cmul_add(dr, di, ar_, ai, br, bi, cr=None, ci=None):
    if cr is None:
        head = f'v_mul_f32 v{dr}, v{ar_}, v{br}\nv_mul_f32 v{di}, v{ar_}, v{bi}'
    else:
        head = f'v_fma_f32 v{dr}, v{ar_}, v{br}, v{cr}\nv_fma_f32 v{di}, v{ar_}, v{bi}, v{ci}'
    return L(head + f'\nv_fma_f32 v{dr}, -v{ai}, v{bi}, v{dr}\nv_fmac_f32 v{di}, v{ai}, v{br}')


def mish(b, voff=VL16, quarters=range(4)):
    A = FACC[b & 1]
    out = []
    for q in quarters:
        rs = range(4 * q, 4 * q + 4)
        out.append(I(f'ds_read_b128 {vr(TT + 4 * q, 4)}, v{t2} offset:{T_B1 - TB + 128 * b + 16 * q}', hoist=True))
        out += [I(f'v_fmac_f32 v{TT + r}, v{A + r}, v{RL2}') for r in rs]
        out += [I(f'v_exp_f32 v{A + r}, v{TT + r}') for r in rs]
        out += [I(f'v_add_f32 v{A + r}, 1.0, v{A + r}') for r in rs]
        out += [I(f'v_fma_f32 v{A + r}, v{A + r}, v{A + r}, 1.0') for r in rs]
        out += [I(f'v_rcp_f32 v{A + r}, v{A + r}') for r in rs]
        out += [I(f'v_fmamk_f32 v{A + r}, v{A + r}, {M2LN2:#x}, v{VLN2}') for r in rs]
        out += [I(f'v_mul_f32 v{TT + r}, v{TT + r}, v{A + r}') for r in rs]
        out += [I(f'v_cvt_pk_bf16_f32 v{A + p}, v{TT + 2 * p}, v{TT + 2 * p + 1}') for p in (2 * q, 2 * q + 1)]
        if q & 1:
            fr = q >> 1
            out.append(I(f'buffer_store_dwordx4 {vr(A + 4 * fr, 4)}, v{voff}, {srd(sWS)}, s{sFST[b]} offen '
                         f'offset:{1024 * fr} sc1', tok=f'stF{b}' if fr else None))
            if b < 3:
                out += [I(f'v_accvgpr_write_b32 a{aOF + 8 * b + 4 * fr + e}, v{A + 4 * fr + e}') for e in range(4)]
    return out


def mish_pk(b, voff, halves=range(2)):
    A = FACC[b & 1]
    out = []
    for q in range(2 * len(halves)):
        out.append(I(f'ds_read_b128 {vr(TT + 4 * q, 4)}, v{t2} offset:{T_B1 - TB + 128 * b + 16 * q}', hoist=True))
    for h in halves:
        ps = range(8 * h, 8 * h + 8, 2)
        rs = range(8 * h, 8 * h + 8)
        out += [I(f'v_pk_fma_f32 {vr(TT + p, 2)}, {vr(A + p, 2)}, {vr(RL2, 2)}, {vr(TT + p, 2)} op_sel_hi:[1,0,1]') for p in ps]
        out += [I(f'v_exp_f32 v{A + r}, v{TT + r}') for r in rs]
        out += [I(f'v_pk_add_f32 {vr(A + p, 2)}, {vr(A + p, 2)}, 1.0 op_sel_hi:[1,0]') for p in ps]
        out += [I(f'v_pk_fma_f32 {vr(A + p, 2)}, {vr(A + p, 2)}, {vr(A + p, 2)}, 1.0 op_sel_hi:[1,1,0]') for p in ps]
        out += [I(f'v_rcp_f32 v{A + r}, v{A + r}') for r in rs]
        out += [I(f'v_pk_fma_f32 {vr(A + p, 2)}, {vr(A + p, 2)}, s[{sKC[0]}:{sKC[1]}], {vr(RL2, 2)} '
                  f'op_sel:[0,0,1] op_sel_hi:[1,0,1]') for p in ps]
        out += [I(f'v_pk_mul_f32 {vr(TT + p, 2)}, {vr(TT + p, 2)}, {vr(A + p, 2)}') for p in ps]
        out += [I(f'v_cvt_pk_bf16_f32 v{A + p // 2}, v{TT + p}, v{TT + p + 1}') for p in ps]
    out += [I(f'v_permlane16_swap_b32 v{A + e}, v{A + 4 + e}') for e in range(4)]
    for h in range(2):
        out.append(I(f'buffer_store_dwordx4 {vr(A + 4 * h, 4)}, v{voff}, {srd(sWS)}, s{sFST[b]} offen '
                     f'offset:{1024 * h} sc1', tok=f'stF{b}' if h else None))
        if b < 3:
            out += [I(f'v_accvgpr_write_b32 a{aOF + 8 * b + 4 * h + e}, v{A + 4 * h + e}') for e in range(4)]
    return out


def mish_stages(b, h):
    m = mish_pk(b, VL16, range(2))
    body = m[4:]
    body = body[40:] if h else body[:40]
    return dict(rd=m[2 * h:2 * h + 2], A=body[0:4], ex=body[4:12], B=body[12:20], rc=body[20:28], C=body[28:36],
                fin=body[36:])


def cmul_pk(d, a, b, c):
    return L(f"""v_pk_fma_f32 {vr(d, 2)}, {vr(b, 2)}, {vr(a, 2)}, {vr(c, 2)} op_sel_hi:[1,0,1]
        v_pk_fma_f32 {vr(d, 2)}, {vr(b, 2)}, {vr(a, 2)}, {vr(d, 2)} op_sel:[1,1,0] op_sel_hi:[0,1,1] neg_lo:[0,1,0]""")


def staged(items, pin, plan):
    out, lo = [], 0
    for hi, fill_, burst_ in plan:
        out += weave(items[lo:hi + 1], fill_, {g_ - lo: v for g_, v in pin.items() if lo <= g_ <= hi}) + burst_
        lo = hi + 1
    return out


_weave = weave
LEV = [OPT['lev']]


def weave(*a):
    out = _weave(*a)
    return ds_first(level(out, LEV[0], OPT['vmc'])) if LEV[0] else out


P = []
if OPT['map'] == '8x4':
    ids = f"""s_and_b32 s{sKQ}, s2, 3
        s_bfe_u32 s{sJJ}, s2, 0x20003
        s_lshr_b32 s{sI}, s2, 5
        s_bfe_u32 s{sT0}, s2, 0x10002
        s_lshl_b32 s{sROT}, s{sT0}, 1
        s_lshl_b32 s{sT0}, s{sT0}, 3
        s_and_b32 s{sT1}, s{sI}, 1
        s_or_b32 s{sI}, s{sI}, s{sT0}
        s_add_u32 s{sROT}, s{sROT}, s{sT1}
        s_add_u32 s{sROT}, s{sROT}, s{sJJ if OPT['rotm'] else sKQ}
        s_lshl_b32 s{sROT}, s{sROT}, 1
        s_and_b32 s{sT1}, s{sKQ if OPT['rotm'] else sJJ}, {OPT['rotj']}
        s_add_u32 s{sROT}, s{sROT}, s{sT1}
        s_and_b32 s{sROT}, s{sROT}, 7"""
else:
    ids = f"""s_and_b32 s{sKQ}, s2, 1
        s_lshl_b32 s{sKQ}, s{sKQ}, 1
        s_lshr_b32 s{sT0}, s2, 7
        s_or_b32 s{sKQ}, s{sKQ}, s{sT0}
        s_bfe_u32 s{sJJ}, s2, 0x20003
        s_bfe_u32 s{sI}, s2, 0x20005
        s_bfe_u32 s{sT0}, s2, 0x20001
        s_add_u32 s{sROT}, s{sT0}, s{sKQ}
        s_lshl_b32 s{sT0}, s{sT0}, 2
        s_or_b32 s{sI}, s{sI}, s{sT0}
        s_lshl_b32 s{sROT}, s{sROT}, 1
        {'s_lshr_b32 s%d, s2, 7' % sT0 if OPT['rotm'] else ''}
        {'s_lshl_b32 s%d, s%d, 1' % (sROT, sJJ) if OPT['rotm'] else ''}
        {'s_add_u32 s%d, s%d, s%d' % (sROT, sROT, sT0) if OPT['rotm'] else ''}
        s_and_b32 s{sROT}, s{sROT}, 7"""
ws_load = f's_load_dwordx2 s[{sWS}:{sWS + 1}], s[0:1], 120'
more_loads = f"""s_load_dwordx8 s[{pLRE}:{pLRE + 7}], s[0:1], 8
s_load_dwordx4 s[{pLDT}:{pLDT + 3}], s[0:1], 56
s_load_dwordx2 s[{pB1}:{pB1 + 1}], s[0:1], 88
s_load_dwordx2 s[{sW1}:{sW1 + 1}], s[0:1], 80
s_load_dwordx2 s[{sCre}:{sCre + 1}], s[0:1], 40
s_load_dwordx2 s[{sCim}:{sCim + 1}], s[0:1], 48
s_load_dwordx2 s[{sW2}:{sW2 + 1}], s[0:1], 96
s_load_dwordx2 s[{sOUT}:{sOUT + 1}], s[0:1], 104
"""
SUM, SQ = [TT + 8, TT + 9], [TT + 10, TT + 11]
sizes = ((sX, 2097152), (sB, 524288), (sW1, 1835008), (sCre, 524288), (sCim, 524288), (sW2, 1835008),
         (sWS, (WS_PROF + 0x40000) if PROF else WS_SIZE), (sOUT, 4194304))
P += L(f"""
s_cmp_ge_u32 s2, 256
s_cbranch_scc1 L_end
{'s_memtime s[98:99]' if PROF else ''}
{'s_memrealtime s[90:91]' if PROF or OPT['diag'] else ''}
s_load_dwordx2 s[{sX}:{sX + 1}], s[0:1], 0
{'' if OPT['ka2'] else ws_load}
s_getpc_b64 s[{sTMP}:{sTMP + 1}]
v_lshrrev_b32 v{t0}, 6, v0
v_and_b32 v{vL}, 63, v0
s_and_b32 s{sTMP}, s{sTMP}, 0xffffff80
v_readfirstlane_b32 s{sW}, v{t0}
s_mov_b32 s{sTMP + 2}, L_code_end-{KN}
s_mov_b32 s{sTMP + 3}, 0x00020000
s_lshr_b32 s{sT0}, s2, 3
s_lshl_b32 s{sT0}, s{sT0}, 2
s_add_u32 s{sT0}, s{sT0}, s{sW}
s_lshl_b32 s{sT0}, s{sT0}, 9
v_and_b32 v{t1}, 3, v{vL}
v_lshlrev_b32 v{t1}, 7, v{t1}
buffer_load_dword v{t3}, v{t1}, {srd(sTMP)}, s{sT0} offen
{'' if OPT['ka2'] else more_loads}
v_lshrrev_b32 v{t0}, 3, v{vL}
v_lshrrev_b32 v{t1}, 4, v{vL}
v_xor_b32 v{t1}, v{t1}, v{vL}
v_and_b32 v{t1}, 7, v{t1}
v_lshlrev_b32 v{t1}, 4, v{t1}
v_lshl_add_u32 v{PG[0]}, v{t0}, 10, v{t1}
v_lshrrev_b32 v{t2}, 5, v{vL}
v_mul_u32_u24 v{t2}, {12 * 1024}, v{t2}
v_add_u32 v{XG[0]}, v{PG[0]}, v{t2}
v_xor_b32 v{XG[1]}, 64, v{XG[0]}
v_add_u32 v{XG[2]}, {6 * 1024}, v{XG[0]}
v_add_u32 v{XG[3]}, {9 * 1024}, v{XG[1]}
v_add_u32 v{XG[1]}, {3 * 1024}, v{XG[1]}
s_lshl_b32 s{sWOFF}, s{sW}, 12
{ids}
s_lshl_b32 s{sXB}, s{sI}, 17
s_lshl_b32 s{sT0}, s{sW}, 15
s_add_u32 s{sXB}, s{sXB}, s{sT0}
""" + ''.join(f's_mov_b32 s{b + 2}, {n}\ns_mov_b32 s{b + 3}, 0x00020000\n' for b, n in sizes) + f"""
s_waitcnt lgkmcnt(0)
{'v_accvgpr_write_b32 a254, s98' if PROF else ''}
{'v_accvgpr_write_b32 a255, s90' if PROF else ''}
{'s_mov_b32 s23, 0' if PROF else ''}
{'s_mov_b32 s23, s90' if OPT['diag'] else ''}
""")
P += stamp('ka') if OPT['diag'] else []
P += rx(0, 0) + (L(ws_load + '\n' + more_loads) if OPT['ka2'] else []) + rx(1, 1)
P += L(f"""
v_and_b32 v{t0}, 31, v{vL}
s_lshl_b32 s{sJ}, s{sKQ}, 2
s_or_b32 s{sJ}, s{sJ}, s{sJJ}
v_lshrrev_b32 v{t1}, 5, v{vL}
v_bfe_u32 v{t2}, v{vL}, 1, 3
v_xor_b32 v{t1}, v{t1}, v{t2}
v_lshlrev_b32 v{t1}, 4, v{t1}
v_lshl_add_u32 v{AS[0]}, v{t0}, 7, v{t1}
v_xor_b32 v{AS[1]}, 32, v{AS[0]}
v_xor_b32 v{AS[2]}, 64, v{AS[0]}
v_xor_b32 v{AS[3]}, 0x60, v{AS[0]}
s_add_u32 s{sT0}, s{sWOFF}, {SLOT}
v_add_u32 v{ASc[0]}, s{sT0}, v{AS[0]}
v_add_u32 v{ASc[1]}, s{sT0}, v{AS[1]}
v_add_u32 v{ASc[2]}, s{sT0}, v{AS[2]}
v_add_u32 v{ASc[3]}, s{sT0}, v{AS[3]}
s_mov_b32 s{sONES}, 0x3f803f80
v_mov_b32 v{SUM[0]}, 0
v_mov_b32 v{SUM[1]}, 0
v_mov_b32 v{SQ[0]}, 0
v_mov_b32 v{SQ[1]}, 0
s_lshl_b32 s{sT0}, s{sW}, 9
s_add_u32 s{sT0}, s{sT0}, {T_SEG}
v_lshl_add_u32 v{t0}, v{vL}, 3, s{sT0}""")
P.append(I(f'ds_write_b64 v{t0}, {vr(SUM[0], 2)}', tok='zero'))
P += L(f's_waitcnt lgkmcnt(0)\ns_load_dword s{sE2}, s[{sWS}:{sWS + 1}], {WS_EP}')
mid = L(f"""
v_and_b32 v{t0}, 31, v{vL}
s_lshl_b32 s{sT1}, s{sJ}, 6
v_lshl_add_u32 v{NLI}, v{t0}, 1, s{sT1}
s_and_b32 s{sT3}, s{sW}, 1
s_mul_i32 s{sT2}, s{sKQ}, 7
s_lshl_b32 s{sW1A}, s{sJJ}, 1
s_add_u32 s{sPB[0]}, s{sW1A}, 1
s_cmp_eq_u32 s{sJJ}, 3
s_cselect_b32 s{sPB[0]}, 3, s{sPB[0]}
s_cselect_b32 s{sFSEL}, 64, 0
s_add_u32 s{sW1A}, s{sW1A}, s{sT2}
s_add_u32 s{sW1B}, s{sPB[0]}, s{sT2}
s_lshl_b32 s{sW1A}, s{sW1A}, 7
s_lshl_b32 s{sW1B}, s{sW1B}, 7
s_cmp_ge_u32 s{sW}, 2
s_cselect_b32 s{sT2}, s{sW1B}, s{sW1A}
s_cselect_b32 s{sT1}, s{sFSEL}, 0
s_add_u32 s{sT2}, s{sT2}, s{sT1}
s_lshl_b32 s{sT1}, s{sT3}, 6
s_xor_b32 s{sT2}, s{sT2}, s{sT1}
v_and_b32 v{t1}, 3, v{vL}
v_bfe_u32 v{t2}, v{vL}, 2, 2
v_lshl_add_u32 v{t1}, v{t2}, 3, v{t1}
v_bfe_u32 v{t2}, v{vL}, 4, 1
v_lshl_add_u32 v{t1}, v{t2}, 2, v{t1}
v_lshl_add_u32 v{PR}, v{t1}, 1, s{sT2}
s_cmp_eq_u32 s{sT3}, 1
s_cselect_b32 s{sB}, s{pBIM}, s{pBRE}
s_cselect_b32 s{sB + 1}, s{pBIM + 1}, s{pBRE + 1}
s_mul_i32 s{sT3}, s{sT3}, {32 * 3584}
s_add_u32 s{sW1A}, s{sW1A}, s{sT3}
s_add_u32 s{sW1B}, s{sW1B}, s{sT3}
s_lshl_b32 s{sBB}, s{sJ}, 15
s_lshr_b32 s{sT1}, s{sW}, 1
s_add_u32 s{sT1}, s{sT1}, s{sROT}
s_and_b32 s{sKC[0]}, s{sT1}, 7
s_add_u32 s{sT1}, s{sT1}, 2
s_and_b32 s{sKC[1]}, s{sT1}, 7
s_add_u32 s{sT1}, s{sT1}, 2
s_and_b32 s{sKC[2]}, s{sT1}, 7
s_add_u32 s{sT1}, s{sT1}, 2
s_and_b32 s{sKC[3]}, s{sT1}, 7
v_xor_b32 v{PG[1]}, 64, v{PG[0]}
v_add_u32 v{PG[2]}, {14 * 1024}, v{PG[0]}
v_add_u32 v{PG[3]}, {21 * 1024}, v{PG[1]}
v_add_u32 v{PG[1]}, {7 * 1024}, v{PG[1]}
v_and_b32 v{t2}, 1, v{vL}
v_lshlrev_b32 v{t2}, 4, v{t2}
v_mov_b32 v{VNM}, 0x3f80
v_lshlrev_b32 v{t2}, v{t2}, v{VNM}
v_bfe_i32 v{t0}, v{vL}, 1, 1
v_and_b32 v{TT + 1}, v{t0}, v{t2}
v_xor_b32 v{TT}, v{TT + 1}, v{t2}
""")
mid += L(f"""
v_lshrrev_b32 v{t1}, 3, v{vL}
v_mul_u32_u24 v{t1}, 3584, v{t1}
v_bfe_u32 v{t2}, v{vL}, 4, 1
v_lshlrev_b32 v{t2}, 2, v{t2}
v_xor_b32 v{t2}, v{t2}, v{vL}
v_and_b32 v{t2}, 7, v{t2}
v_lshl_add_u32 v{QG[0]}, v{t2}, 4, v{t1}
v_add_u32 v{QG[1]}, {27648}, v{QG[0]}
v_add_u32 v{QG[2]}, {2 * 27648}, v{QG[0]}
v_add_u32 v{QG[3]}, {3 * 27648}, v{QG[0]}
""")
late = L(f"""
s_mul_i32 s{sE2}, s{sE2}, 1664525
s_add_u32 s{sE2}, s{sE2}, 1013904226
s_or_b32 s{sTAG}, s{sE2}, 1
v_bfe_u32 v{t1}, v{vL}, 2, 2
v_lshrrev_b32 v{t2}, 5, v{vL}
v_lshl_add_u32 v{t2}, v{t2}, 3, v{t1}
v_lshlrev_b32 v{FA0}, 7, v{t2}
v_lshrrev_b32 v{t1}, 1, v{t1}
v_lshl_add_u32 v{FA0}, v{t1}, 6, v{FA0}
v_bfe_u32 v{t1}, v{vL}, 4, 1
v_lshl_add_u32 v{FA0}, v{t1}, 5, v{FA0}
v_and_b32 v{t1}, 3, v{vL}
v_lshl_add_u32 v{FA0}, v{t1}, 3, v{FA0}
v_lshlrev_b32 v{VL16}, 4, v{vL}
v_mov_b32 v{VLN2}, {LN2:#x}
s_cmp_eq_u32 s{sPB[0]}, 1
s_cselect_b32 s{sPB[1]}, 3, 1
s_cmp_eq_u32 s{sPB[0]}, 5
s_cselect_b32 s{sPB[2]}, 3, 5
s_lshl_b32 s{sSEL[0]}, s{sFSEL}, 9
s_lshl_b32 s{sAS}, s{sI}, 2
s_add_u32 s{sAS}, s{sAS}, s{sW}
s_lshl_b32 s{sAS}, s{sAS}, 2
s_add_u32 s{sAS}, s{sAS}, s{sKQ}
s_lshl_b32 s{sFLG}, s{sAS}, 11
s_add_u32 s{sFLG}, s{sFLG}, {WS_FL}
s_mul_i32 s{sAS}, s{sAS}, {44 * 1024}
s_add_u32 s{sAS}, s{sAS}, {WS_A}
s_lshl_b32 s{sT2}, s{sJJ}, 13
s_add_u32 s{sFST[0]}, s{sAS}, s{sT2}
s_add_u32 s{sFST[1]}, s{sFST[0]}, 2048
s_lshl_b32 s{sT2}, s{sPB[0]}, 12
s_add_u32 s{sFST[3]}, s{sAS}, s{sT2}
s_lshl_b32 s{sT2}, s{sFSEL}, 5
s_add_u32 s{sFST[2]}, s{sFST[3]}, s{sT2}
s_add_u32 s{sFST[3]}, s{sFST[3]}, 2048
s_lshl_b32 s{sT2}, s{sJJ}, 12
s_add_u32 s{sSST}, s{sAS}, s{sT2}
s_add_u32 s{sSST}, s{sSST}, {28 * 1024}
s_xor_b32 s{sT2}, s{sW}, s{sKQ}
s_lshl_b32 s{sT2}, s{sT2}, 15
s_lshl_b32 s{sCB}, s{sJJ}, 17
s_add_u32 s{sCB}, s{sCB}, s{sT2}
s_lshl_b32 s{sT2}, s{sKQ}, 8
s_add_u32 s{sCB}, s{sCB}, s{sT2}
s_lshr_b32 s{sT2}, s{sJJ}, 1
s_lshl_b32 s{sT2}, s{sT2}, 7
s_add_u32 s{sCB}, s{sCB}, s{sT2}
s_mul_i32 s{sW2B}, s{sKQ}, {448 * 1024}
s_lshr_b32 s{sT2}, s{sW}, 1
s_lshl_b32 s{sT2}, s{sT2}, 15
s_add_u32 s{sW2B}, s{sW2B}, s{sT2}
s_lshl_b32 s{sT2}, s{sJJ}, 8
s_add_u32 s{sW2B}, s{sW2B}, s{sT2}
s_lshr_b32 s{sT2}, s{sKQ}, 1
s_xor_b32 s{sT2}, s{sT2}, s{sW}
s_and_b32 s{sT2}, s{sT2}, 1
s_lshl_b32 s{sT2}, s{sT2}, 7
s_add_u32 s{sW2B}, s{sW2B}, s{sT2}
s_lshl_b32 s{sT2}, s{sI}, 4
s_add_u32 s{sT2}, s{sT2}, s{sJJ}
s_lshl_b32 s{sT2}, s{sT2}, 2
s_add_u32 s{sT2}, s{sT2}, s{sW}""")
for b in range(4):
    late += L(f"""s_xor_b32 s{sT3}, s{sKQ}, {b}
        s_lshl_b32 s{sT3}, s{sT3}, 4
        s_add_u32 s{sT3}, s{sT3}, s{sT2}
        s_mul_i32 s{sT3}, s{sT3}, {3 * XC_BLK}
        s_add_u32 s{sXO[b]}, s{sT3}, {WS_XC + (b - 1) * XC_BLK if b else WS_XC}""")
late += L(f"""s_add_u32 s{sSEL[2]}, s{sXO[0]}, {XC_BLK}
    s_add_u32 s{sSEL[3]}, s{sXO[0]}, {2 * XC_BLK}
    s_and_b32 s{sT3}, s{sJJ}, 1
    s_sub_u32 s{sSEL[1]}, 6, s{sT3}""")
pf = []
if OPT['pf'] == 2:
    late += L(f"""
s_and_b32 s{sT1}, s{sI}, 7
s_lshl_b32 s{sT2}, s{sT1}, 1
s_add_u32 s{sT2}, s{sT2}, s{sW}
s_mul_i32 s{sT2}, s{sT2}, 28
s_mul_i32 s{sT3}, s{sKQ}, 448
s_add_u32 s{sT2}, s{sT2}, s{sT3}
s_lshl_b32 s{sT2}, s{sT2}, 2
s_add_u32 s{sT2}, s{sT2}, s{sJJ}
s_lshl_b32 s{sT3}, s{sJJ}, 3
s_add_u32 s{sT3}, s{sT3}, s{sT1}
s_lshl_b32 s{sT3}, s{sT3}, 6
s_add_u32 s{sT3}, s{sT3}, s{sKQ}
s_cmp_lt_u32 s{sW}, 2
s_cselect_b32 s{sT2}, s{sT2}, s{sT3}
s_cselect_b32 s{sT3}, 56, 32
s_cselect_b32 s{sTMP}, s{sW2}, s{sCre}
s_cselect_b32 s{sTMP + 1}, s{sW2 + 1}, s{sCre + 1}
s_cselect_b32 s{sTMP + 2}, s{sW2 + 2}, s{sCre + 2}
s_cmp_eq_u32 s{sW}, 3
s_cselect_b32 s{sTMP}, s{sCim}, s{sTMP}
s_cselect_b32 s{sTMP + 1}, s{sCim + 1}, s{sTMP + 1}""")
elif OPT['pf']:
    late += L(f"""
s_mul_i32 s{sT2}, s{sKQ}, 448
s_mul_i32 s{sT3}, s{sI}, 28
s_add_u32 s{sT2}, s{sT2}, s{sT3}
s_lshl_b32 s{sT2}, s{sT2}, 2
s_add_u32 s{sT2}, s{sT2}, s{sJJ}
s_lshl_b32 s{sT3}, s{sJJ}, 4
s_add_u32 s{sT3}, s{sT3}, s{sI}
s_lshl_b32 s{sT3}, s{sT3}, 5
s_add_u32 s{sT3}, s{sT3}, s{sKQ}
s_cmp_eq_u32 s{sW}, 0
s_cselect_b32 s{sT2}, s{sT2}, s{sT3}
s_cselect_b32 s{sT3}, 56, 16
s_cselect_b32 s{sTMP}, s{sW2}, s{sCre}
s_cselect_b32 s{sTMP + 1}, s{sW2 + 1}, s{sCre + 1}
s_cselect_b32 s{sTMP + 2}, s{sW2 + 2}, s{sCre + 2}
s_cmp_eq_u32 s{sW}, 2
s_cselect_b32 s{sTMP}, s{sCim}, s{sTMP}
s_cselect_b32 s{sTMP + 1}, s{sCim + 1}, s{sTMP + 1}
s_cmp_eq_u32 s{sW}, 3
s_cselect_b32 s{sT3}, 0, s{sT3}""")
if OPT['pf']:
    late += L(f"""s_lshl_b32 s{sT2}, s{sT2}, 8
v_lshrrev_b32 v{t0}, 1, v{vL}
v_and_b32 v{t1}, 1, v{vL}
v_lshlrev_b32 v{t1}, 7, v{t1}
v_lshl_add_u32 v{t0}, v{t0}, 10, v{t1}
v_add_u32 v{t0}, s{sT2}, v{t0}
v_mov_b32 v{t1}, {OOB:#x}
v_cmp_gt_u32 vcc, s{sT3}, v{vL}
v_cndmask_b32 v{PI}, v{t1}, v{t0}, vcc""")
    pf = L(f'buffer_load_dword a248, v{PI}, {srd(sTMP)}, 0 offen')

Z = TT + 2
consts = L(f"""
v_lshlrev_b32 v{NLI}, 16, v{NLI}
v_mul_f32 v{NLI}, {LOG2E:#x}, v{NLI}
v_exp_f32 v{NLI}, v{NLI}
v_lshlrev_b32 v{Z + 2}, 16, v{LR}
v_lshlrev_b32 v{Z + 3}, 16, v{LI}
v_cvt_pk_bf16_f32 v{NLI}, v{NLI}, v{NLI}
v_lshlrev_b32 v{NLI}, 16, v{NLI}
v_mul_f32 v{Z}, v{NLI}, v{Z + 2}
v_mul_f32 v{Z + 1}, v{NLI}, v{Z + 3}
v_mul_f32 v{Z}, {LOG2E:#x}, v{Z}
v_mul_f32 v{Z + 1}, 0xbe22f983, v{Z + 1}""")
consts += cexp(LR, LI, '1.0', Z, Z + 1)
consts += L(f"""
v_mul_f32 v{Z + 4}, v{Z + 2}, v{Z + 2}
v_fmac_f32 v{Z + 4}, v{Z + 3}, v{Z + 3}
v_rcp_f32 v{Z + 4}, v{Z + 4}
v_add_f32 v{Z + 5}, -1.0, v{LR}
v_sub_f32 v{NLI}, 0, v{LI}
v_add_f32 v{Z + 4}, v{Z + 4}, v{Z + 4}
v_mul_f32 v{CR}, v{Z + 5}, v{Z + 2}
v_fmac_f32 v{CR}, v{NLI}, v{Z + 3}
v_mul_f32 v{NCI}, v{Z + 5}, v{Z + 3}
v_fmac_f32 v{NCI}, v{LI}, v{Z + 2}
v_mul_f32 v{CR}, v{CR}, v{Z + 4}
v_mul_f32 v{NCI}, v{NCI}, v{Z + 4}
v_sub_f32 v{NCR}, 0, v{CR}""")
consts += cexp(L16R, L16I, '0x41800000', Z, Z + 1)
consts += cexp(L128R, L128I, '0x43000000', Z, Z + 1)
consts += L(f"""
v_lshrrev_b32 v{Z + 6}, 5, v{vL}
s_lshl_b32 s{sT2}, s{sW}, 1
v_add_u32 v{Z + 6}, s{sT2}, v{Z + 6}
v_cvt_f32_u32 v{Z + 6}, v{Z + 6}
v_mul_f32 v{Z + 7}, 0x41800000, v{Z + 6}
v_sub_f32 v{Z + 6}, 0x40e00000, v{Z + 6}
v_mul_f32 v{Z + 6}, 0x43800000, v{Z + 6}""")
consts += cexp(LSR, LSI, f'v{Z + 7}', Z, Z + 1)
consts += cexp(WR, WI, f'v{Z + 6}', Z, Z + 1)
consts += L(f"""v_lshlrev_b32 v{PR}, 16, v{PR}
v_mul_f32 v{PR}, {LOG2E:#x}, v{PR}
v_and_b32 v{t1}, 31, v{vL}
s_lshl_b32 s{sT1}, s{sW}, 7
s_add_u32 s{sT1}, s{sT1}, {T_B1}
v_lshl_add_u32 v{t1}, v{t1}, 2, s{sT1}
""") + [I(f'ds_write_b32 v{t1}, v{PR}', tok='b1w')]
later = []
Y = SRE
later += L(f"""v_and_b32 v{Y}, 31, v{vL}
    v_lshlrev_b32 v{Y + 1}, 3, v{Y}
    v_add_u32 v{Y + 1}, {T_LB}, v{Y + 1}
    v_lshrrev_b32 v{t0}, 5, v{vL}
    s_lshl_b32 s{sT2}, s{sW}, 11
    s_add_u32 s{sT2}, s{sT2}, {T_H}
    v_lshl_add_u32 v{Y}, v{Y}, 6, s{sT2}
    v_bfe_u32 v{Y + 2}, v{vL}, 1, 2
    v_lshlrev_b32 v{Y + 3}, 1, v{t0}
    v_xor_b32 v{Y + 2}, v{Y + 2}, v{Y + 3}
    v_bfe_u32 v{Y + 3}, v{vL}, 3, 1
    v_xor_b32 v{Y + 2}, v{Y + 2}, v{Y + 3}
    v_lshl_add_u32 v{Y}, v{Y + 2}, 4, v{Y}
    v_xor_b32 v{Y + 3}, 16, v{Y}
    v_bfe_u32 v{Y + 6}, v{vL}, 2, 2
    v_lshrrev_b32 v{t1}, 4, v{vL}
    v_lshl_add_u32 v{Y + 2}, v{t1}, 3, v{Y + 6}
    v_lshl_add_u32 v{Y + 2}, v{Y + 2}, 6, s{sT2}
    v_and_b32 v{t1}, 1, v{vL}
    v_lshl_add_u32 v{Y + 2}, v{t1}, 5, v{Y + 2}
    v_lshrrev_b32 v{t1}, 1, v{vL}
    v_xor_b32 v{t1}, v{t1}, v{vL}
    v_and_b32 v{t1}, 8, v{t1}
    v_lshl_add_u32 v{Y + 2}, v{t1}, 1, v{Y + 2}
    v_bfe_u32 v{t1}, v{vL}, 1, 1
    v_lshl_add_u32 v{Y + 2}, v{t1}, 3, v{Y + 2}
    v_bfe_u32 v{t1}, v{vL}, 4, 1
    v_lshl_add_u32 v{Y + 5}, v{t0}, 2, v{Y + 6}
    v_lshl_add_u32 v{Y + 5}, v{t1}, 4, v{Y + 5}
    v_lshlrev_b32 v{Y + 5}, 7, v{Y + 5}
    s_and_b32 s{sT2}, s{sKQ}, 1
    v_xor_b32 v{t1}, s{sT2}, v{t1}
    v_lshl_add_u32 v{Y + 5}, v{t1}, 6, v{Y + 5}
    v_bfe_u32 v{t1}, v{vL}, 3, 1
    v_lshl_add_u32 v{Y + 5}, v{t1}, 5, v{Y + 5}
    v_and_b32 v{t1}, 3, v{vL}
    v_lshl_add_u32 v{Y + 5}, v{t1}, 3, v{Y + 5}
    v_and_b32 v{Y + 6}, 15, v{vL}
    v_lshrrev_b32 v{t1}, 4, v{vL}
    v_bfe_u32 v{Y + 4}, v{vL}, 1, 3
    v_xor_b32 v{t1}, v{t1}, v{Y + 4}
    v_lshlrev_b32 v{t1}, 4, v{t1}
    v_lshl_add_u32 v{Y + 6}, v{Y + 6}, 7, v{t1}
    s_and_b32 s{sT2}, s{sJJ}, 1
    s_lshl_b32 s{sT2}, s{sT2}, 6
    v_xor_b32 v{Y + 6}, s{sT2}, v{Y + 6}
    s_lshl_b32 s{sT2}, s{sW}, 9
    s_add_u32 s{sT1}, s{sT2}, {T_SEG}
    s_add_u32 s{sT2}, s{sT2}, {T_LB}
    v_lshl_add_u32 v{Y + 7}, v{vL}, 3, s{sT1}
    v_lshl_add_u32 v{Y + 8}, v{vL}, 3, s{sT2}""")
later += park(hw=Y, lbr=Y + 1, hr=Y + 2, hw2=Y + 3, fp0=Y + 5, fp1=Y + 6, seg=Y + 7, lbw=Y + 8)
park2 = []
Y = FACC[0]
park2 += L(f"""s_lshl_b32 s{sT2}, s{sJ}, 4
    s_add_u32 s{sT2}, s{sT2}, s{sI}
    s_lshl_b32 s{sT2}, s{sT2}, 9
    s_add_u32 s{sT2}, s{sT2}, {WS_AG - 512}
    s_cmp_eq_u32 s{sW}, 3
    s_cselect_b32 s{sT2}, s{sT2}, {OOB:#x}
    v_mov_b32 v{Y + 8}, {OOB:#x}
    v_cmp_gt_u32 vcc, 32, v{vL}
    v_add_u32 v{Y}, s{sT2}, v{VL16}
    v_lshrrev_b32 v{t0}, 5, v{vL}
    v_cndmask_b32 v{Y}, v{Y}, v{Y + 8}, vcc
    s_lshl_b32 s{sT2}, s{sW}, 2
    s_add_u32 s{sT2}, s{sT2}, s{sI}
    s_sub_u32 s{sT2}, s{sT2}, 16
    v_lshl_add_u32 v{t0}, v{t0}, 1, s{sT2}
    s_lshl_b32 s{sT2}, s{sJ}, 13
    s_add_u32 s{sT2}, s{sT2}, {WS_AG}
    v_and_b32 v{Y + 9}, 31, v{vL}
    v_lshl_add_u32 v{t1}, v{Y + 9}, 4, s{sT2}
    v_lshl_add_u32 v{Y + 1}, v{t0}, 9, v{t1}
    v_cmp_gt_i32 vcc, 0, v{t0}
    v_add_u32 v{Y + 2}, 512, v{Y + 1}
    v_mov_b32 v{t1}, s{sTAG}
    v_cndmask_b32 v{Y + 1}, v{Y + 1}, v{Y + 8}, vcc
    v_cndmask_b32 v{Y + 3}, v{t1}, 0, vcc
    v_cmp_gt_i32 vcc, -1, v{t0}
    s_lshl_b32 s{sT2}, s{sJJ}, 9
    s_add_u32 s{sT2}, s{sT2}, s{sFLG}
    v_cndmask_b32 v{Y + 2}, v{Y + 2}, v{Y + 8}, vcc
    v_cndmask_b32 v{Y + 4}, v{t1}, 0, vcc
    v_lshl_add_u32 v{Y + 5}, v{Y + 9}, 2, s{sT2}
    v_and_b32 v{t0}, 3, v{vL}
    v_max_u32 v{t0}, 1, v{t0}
    v_xor_b32 v{t0}, s{sJJ}, v{t0}
    v_lshl_add_u32 v{Y + 6}, v{t0}, 9, s{sFLG}
    s_bitcmp1_b32 s{sJJ}, 0
    s_cselect_b32 s{sT2}, {OOB:#x}, 0
    v_add_u32 v{Y + 7}, s{sT2}, v{VL16}
    """)
park2 += park(pub=Y, lba0=Y + 1, lba1=Y + 2, lbe0=Y + 3, lbe1=Y + 4, fla=Y + 5, flp=Y + 6, f3o=Y + 7)
params = L(f"""global_load_ushort v{LR}, v{NLI}, s[{pLRE}:{pLRE + 1}]
    global_load_ushort v{LI}, v{NLI}, s[{pLIM}:{pLIM + 1}]
    global_load_ushort v{NLI}, v{NLI}, s[{pLDT}:{pLDT + 1}]
    global_load_ushort v{PR}, v{PR}, s[{pB1}:{pB1 + 1}]""")
nl = len(late) * OPT['lateln'] // 100
while late[nl - 1].mn.startswith(('s_cmp', 'v_cmp', 's_cselect')) or (nl < len(late) and late[nl].mn.startswith('v_cndmask')):
    nl += 1
if nl >= len(late):
    later, late, park2 = later + late + park2, [], []
else:
    later, late = later + late[:nl], late[nl:]
later = mid + later + [I(f'v_accvgpr_write_b32 a{aXE + r}, 0') for r in range(17)]
cuts = [0]
for n in range(1, 7):
    c = n * len(later) // 7
    while later[c].mn.startswith(('s_cselect', 'v_cndmask', 's_nop')) or later[c - 1].mn.startswith('v_cmp'):
        c += 1
    cuts.append(c)
cuts.append(len(later))

touch_w = L(f'v_mov_b32 v{PI}, 0') + [
    I(f'buffer_load_dword a{56 + n}, v{PI}, {srd(r)}, 0 offen') for n, r in enumerate((sW1, sCre, sCim, sW2))]
touch_o = L(f"""v_min_u32 v{PR}, {WS_SIZE >> 21}, v{vL}
    v_lshlrev_b32 v{PR}, 21, v{PR}
    v_add_u32 v{PR}, 0x800, v{PR}
    buffer_load_dword a60, v{PR}, {srd(sWS)}, 0 offen
    buffer_load_dword a61, v{PR}, {srd(sOUT)}, 0 offen""")
if OPT['tlb'] in (1, 3, 4):
    P += touch_w
if OPT['tlb'] == 1:
    P += touch_o
P += rx(2, 2) + [I('s_waitcnt lgkmcnt(0)')]
for s in range(8):
    P.append(Wait(f'x{s}'))
    if s == 0:
        P += stamp('x0')
    for q in range(4):
        P.append(I(f'ds_read_b128 {vr(X + 16 * s + 4 * q, 4)}, v{ASc[q]} offset:{(s & 3) * SLOT}', lds_r=(s & 3) + 1,
                   tok=f'xr{s}' if q == 3 else None))
    nxt = rg(s - 5) if s >= 5 else rx(s + 3, (s + 3) & 3) + (params if s == OPT['parat'] else [])
    piece = later[cuts[s]:cuts[s + 1]] if s < 7 else []
    P += nxt + piece if OPT['xfirst'] else piece + nxt
    for r in range(16):
        P.append(I(f'v_dot2c_f32_bf16 v{SUM[r & 1]}, s{sONES}, v{X + 16 * s + r}'))
        P.append(I(f'v_dot2c_f32_bf16 v{SQ[r & 1]}, v{X + 16 * s + r}, v{X + 16 * s + r}'))
P += stamp('x7')
P += L(f"""
v_add_f32 v{SUM[0]}, v{SUM[0]}, v{SUM[1]}
v_add_f32 v{SQ[0]}, v{SQ[0]}, v{SQ[1]}
v_mov_b32 v{SUM[1]}, v{SUM[0]}
v_mov_b32 v{SQ[1]}, v{SQ[0]}
v_permlane32_swap_b32 v{SUM[1]}, v{SUM[0]}
v_permlane32_swap_b32 v{SQ[1]}, v{SQ[0]}
v_add_f32 v{SUM[0]}, v{SUM[0]}, v{SUM[1]}
v_add_f32 v{SQ[0]}, v{SQ[0]}, v{SQ[1]}
v_mul_f32 v{SUM[0]}, 0x3b000000, v{SUM[0]}
v_mul_f32 v{SQ[0]}, 0x3b000000, v{SQ[0]}
v_fma_f32 v{SQ[0]}, -v{SUM[0]}, v{SUM[0]}, v{SQ[0]}
v_max_f32 v{SQ[0]}, 0, v{SQ[0]}
v_cvt_pk_bf16_f32 v{t0}, v{SUM[0]}, v{SQ[0]}
v_lshlrev_b32 v{VNM}, 16, v{t0}
v_sub_f32 v{SIM}, 0, v{VNM}
v_sub_f32 v{SIM + 1}, 0, v{VNM}
v_sub_f32 v{SIM + 2}, 0, v{VNM}
v_sub_f32 v{SIM + 3}, 0, v{VNM}
""")

back = lambda o: [I(f'v_cvt_pk_bf16_f32 v{X + 2 * o + e}, v{FACC[0] + 4 * (o & 3) + 2 * e}, '
                    f'v{FACC[0] + 4 * (o & 3) + 2 * e + 1}') for e in range(2)]
items = [[I(f'v_mfma_f32_4x4x4_16b_bf16 {vr(FACC[0] + 4 * (n & 3), 4)}, {vr(TT, 2)}, {vr(X + 2 * n, 2)}, {vr(SIM, 4)}')]
         + (back(n - 2) if n >= 2 else []) for n in range(64)]
fill = L(f"""
v_and_b32 v{t0}, 0xffff0000, v{t0}
v_add_f32 v{t0}, 0x3727c5ac, v{t0}
v_cvt_pk_bf16_f32 v{t0}, v{t0}, v{t0}
v_lshlrev_b32 v{t0}, 16, v{t0}
v_sqrt_f32 v{t0}, v{t0}
v_and_b32 v{t1}, 3, v{vL}
v_cvt_pk_bf16_f32 v{t0}, v{t0}, v{t0}
v_lshlrev_b32 v{t0}, 16, v{t0}
v_rcp_f32 v{VRS}, v{t0}
v_bfe_u32 v{t2}, v{vL}, 3, 2
v_lshl_add_u32 v{t1}, v{t2}, 2, v{t1}
v_bfe_u32 v{t2}, v{vL}, 2, 1
v_lshl_add_u32 v{t1}, v{t2}, 4, v{t1}
s_lshl_b32 s{sT1}, s{sW}, 8
s_add_u32 s{sT1}, s{sT1}, {T_STAT}
v_lshl_add_u32 v{t1}, v{t1}, 2, s{sT1}
v_mul_f32 v{RL2}, {LOG2E:#x}, v{VRS}
ds_write_b32 v{t1}, v{VNM}
""")
fill.append(I(f'ds_write_b32 v{t1}, v{VRS} offset:128', tok='tabw'))
LA_S, LA_F = 3, OPT['laf']


def s_addr(slot):
    return [I(f'v_add_u32 v{ASc[q]}, {slot * SLOT}, v{AS[q]}') for q in range(4)]


def s_read(s, ri):
    return I(f'ds_read_b128 {ar(aS + 8 * (s & 3) + 4 * ri, 4)}, v{ASc[s & 3]} offset:{(s >> 3) * SLOT + (2 * ((s >> 2) & 1) + ri) * 4096}',
             lds_r=G_SLOT[s >> 3])


def f_addr(b):
    if b < 2:
        return [I(f'v_xor_b32 v{FAc}, {64 * b}, v{FA0}')]
    if b == 3:
        return [I(f'v_xor_b32 v{FAc}, 64, v{FAc}')]
    return [I(f'v_xor_b32 v{FAc}, s{sFSEL}, v{FA0}'), I(f'v_add_u32 v{FAc}, {G_SLOT[8] * SLOT}, v{FAc}')]


def f_read(b, s):
    out = f_addr(b) if s == 0 else []
    k = (32 * b + s) & 7
    for u in range(2):
        out.append(I(f'ds_read_b64_tr_b16 {ar(aF + 4 * k + 2 * u, 2)}, v{FAc} '
                     f'offset:{(s >> 3) * SLOT + ((s >> 1) & 3) * 4096 + (s & 1) * 2048 + u * 512}',
                     lds_r=G_SLOT[(4 if b < 2 else 8) + (s >> 3)]))
    return out


DSP = OPT['dsp']
OPT['dsp'] = OPT['dspc']
pin = pins((OPT['g3'], rg(3)), *([(OPT['g3'] + 4 * OPT['dspc'], rg(4))] if OPT['sch'] == 2 else []),
           (54, s_addr(G_SLOT[0]) + stamp('c27') + BAR('G0', 'G1', 'tabw', 'zero') + stamp('b0')))
OPT['dsp'] = DSP
for k in range(LA_S):
    pin[55 + 2 * k] = [s_read(k, 0), s_read(k, 1)]
P += weave(items, fill, pin, 0, 40) + back(62) + back(63)

S_items = []
for s in range(32):
    for ri, acc in ((0, SRE), (1, SIM)):
        it = [mfma(vr(acc, 16), vr(X + 4 * s, 4), ar(aS + 8 * (s & 3) + 4 * ri, 4), vr(acc, 16) if s else '0')]
        n = s + LA_S
        if n < 32:
            it.append(s_read(n, ri))
        S_items.append(it)
for k in range(LA_F):
    S_items[64 - LA_F + k] += f_read(0, k)
F_items = []
for b in range(4):
    its = []
    for s in range(32):
        acc = vr(FACC[b & 1], 16)
        it = [mfma(acc, ar(aF + 4 * ((32 * b + s) & 7), 4), vr(X + 4 * s, 4), acc if s else '0')]
        n = s + LA_F
        if n < 32:
            it += f_read(b, n)
        elif b < 3:
            it += f_read(b + 1, n - 32)
        its.append(it)
    F_items.append(its)

FLA, FLP = VNM, VRS
fill = late + park2 + consts + (pf if OPT['pfat'] < 0 else []) + L(f"""
v_lshrrev_b32 v{t0}, 3, v{vL}
v_bfe_u32 v{t1}, v{vL}, 4, 1
v_lshlrev_b32 v{t1}, 1, v{t1}
v_xor_b32 v{t1}, v{t1}, v{vL}
v_and_b32 v{t1}, 7, v{t1}
v_lshlrev_b32 v{t1}, 4, v{t1}
v_lshl_add_u32 v{XG[0]}, v{t0}, 10, v{t1}
v_add_u32 v{XG[1]}, {7 * 1024}, v{XG[0]}
v_xor_b32 v{XG[2]}, 64, v{XG[0]}
v_add_u32 v{XG[3]}, {21 * 1024}, v{XG[2]}
v_add_u32 v{XG[2]}, {14 * 1024}, v{XG[2]}
v_lshrrev_b32 v{t2}, 5, v{vL}
v_lshlrev_b32 v{t2}, 6, v{t2}
v_add_u32 v{t2}, {TB}, v{t2}
s_lshl_b32 s{sT2}, s{sW}, 8
v_add_u32 v{t1}, s{sT2}, v{t2}""")
fill += [I(f'ds_read_b128 {vr(FACC[1] + 4 * q, 4)}, v{t1} offset:{128 + 16 * q}') for q in range(4)]
xa, xb = TT + 14, TT + 15
ROW = lambda n: 16 * ((n >> 2) & 1) + 8 * (n >> 3) + (n & 3)
xe = L(f"""v_and_b32 v{xa}, 31, v{vL}
    v_lshrrev_b32 v{xb}, 5, v{vL}
    v_lshlrev_b32 v{xb}, 12, v{xb}
    v_lshl_add_u32 v{xb}, v{xa}, 1, v{xb}
    s_lshl_b32 s{sONES}, s{sJJ}, 2
    s_add_u32 s{sONES}, s{sONES}, s{sKQ}
    s_lshl_b32 s{sONES}, s{sONES}, 6
    v_lshl_add_u32 v{xa}, v{xa}, 1, s{sONES}
    s_add_u32 s{sXB}, s{sXB}, s{sONES}
    global_load_short_d16_hi a{aXE + 16}, v{xa}, s[{pDSK}:{pDSK + 1}]""")
for r in range(16):
    if r % 4 == 0:
        xe.append(I(f's_add_u32 s{sONES}, s{sXB}, {1024 * ROW(r)}'))
    xe.append(I(f'buffer_load_short_d16_hi a{aXE + r}, v{xb}, {srd(sX)}, s{sONES} offen offset:{1024 * (r & 3)}'))
sAO = dict(A={1: 8, 2: 9, 3: 10}, H={1: 11, 2: 12, 3: 13}, B={1: 14, 2: 15})
for e in (1, 2, 3):
    fill += L(f"""s_xor_b32 s{sT2}, s{sJJ}, {e}
        s_lshl_b32 s{sT2}, s{sT2}, 12
        s_add_u32 s{sAO['H'][e]}, s{sT2}, s{sAS}
        s_add_u32 s{sAO['A'][e]}, s{sAO['H'][e]}, s{sT2}
        s_add_u32 s{sAO['H'][e]}, s{sAO['H'][e]}, {28 * 1024}""")
for e in (1, 2):
    fill += L(f's_lshl_b32 s{sT2}, s{sPB[e]}, 12\ns_add_u32 s{sAO["B"][e]}, s{sT2}, s{sAS}')
if OPT['tlb'] in (2, 3):
    fill = touch_o + fill
if OPT['fw']:
    fill += L(f"""s_lshl_b32 s{sT2}, s{sJJ}, 9
        s_add_u32 s{sT2}, s{sT2}, s{sFLG}
        v_lshlrev_b32 v{t0}, 3, v{vL}
        v_mov_b32 v{TT}, 0
        v_mov_b32 v{TT + 1}, 0
        buffer_store_dwordx2 {vr(TT, 2)}, v{t0}, {srd(sWS)}, s{sT2} offen sc1""")
if OPT['xw'] == 1:
    fill += L(f'v_lshlrev_b32 v{t0}, 2, v{vL}')
    for b in (1, 2, 3):
        fill += L(f"""buffer_store_dwordx4 {vr(TT, 4)}, v{VL16}, {srd(sWS)}, s{sXO[b]} offen sc1
            buffer_store_dwordx4 {vr(TT, 4)}, v{VL16}, {srd(sWS)}, s{sXO[b]} offen offset:1024 sc1
            buffer_store_dword v{vL}, v{t0}, {srd(sWS)}, s{sXO[b]} offen offset:2048 sc1""")
elif OPT['xw']:
    fill += L(f"""v_lshlrev_b32 v{t0}, 7, v{vL}
        v_min_u32 v{t0}, {59 * 128}, v{t0}
        buffer_load_dword a60, v{t0}, {srd(sWS)}, s{sXO[0]} offen {('', '', 'sc1', 'sc1 nt')[OPT['xw']]}""")
if not OPT['xel']:
    cut = len(fill) * OPT['xes'] // 100
    fill, xe = fill[:cut] + merge(fill[cut:], xe), []
OPT['dsp'] = OPT['dsps']
srounds = [(2, rg(4)), (14, rg(5)), (28, rg(6)), (42, rg(7))] if OPT['sch'] == 1 else \
    [(2, rg(5)), (14, rg(6)), (28, rg(7)), (42, rg(8))]
pin = pins(*srounds, (24, BAR('G2', 'G3')), (63 - LA_F, stamp('s59') + BAR('G4', 'G5', 'b1w') + stamp('b2')))
OPT['dsp'] = DSP
P += weave(fine('S', S_items, 3), fill, pin, 0, 62 - LA_F)

Q = FACC[1]
V = lambda t: SRE + t if t % 2 == 0 else SIM + t - 1
AGR, AGI = VRS, t3
fill = []
coef = []
for q in range(8):
    for h in range(2):
        r = 2 * q + h
        fill += L(f"""v_mul_f32 v{TT + 2 * h}, v{SRE + r}, v{CR}
            v_mul_f32 v{TT + 2 * h + 1}, v{SRE + r}, v{NCI}
            v_fmac_f32 v{TT + 2 * h}, v{SIM + r}, v{NCI}
            v_fmac_f32 v{TT + 2 * h + 1}, v{SIM + r}, v{NCR}""")
    for h in range(2):
        r = 2 * q + h
        fill += L(f"""v_mul_f32 v{V(r)}, v{TT + 2 * h}, v{Q + r}
            v_mul_f32 v{V(r) + 1}, v{TT + 2 * h + 1}, v{Q + r}""")
    coef.append(fill)
    fill = []
step = lambda d, p, c: L(f"""v_pk_fma_f32 {vr(d, 2)}, {vr(p, 2)}, {vr(LR, 2)}, {vr(c, 2)} op_sel_hi:[1,0,1]
    v_pk_fma_f32 {vr(d, 2)}, {vr(p, 2)}, {vr(NLI, 2)}, {vr(d, 2)} op_sel:[1,0,0] op_sel_hi:[0,1,1]""")
horner = [step(AGR if r & 1 else TT + 4, V(0) if r == 1 else (TT + 4 if r & 1 else AGR), V(r)) for r in range(1, 16)]
fill = fetch(seg=t1) + fill + L(f's_mov_b32 s{sKC[0]}, {M2LN2:#x}')
fill.append(I(f'ds_write_b64 v{t1}, {vr(AGR, 2)} offset:{7 * 256}', tok='segw'))
frounds = [(1, rg(8)), (12, rg(9))] if OPT['sch'] == 1 else [(1, rg(9)), (12, rg(10))]
staged_names = list(STAGE)
pin = pins(*frounds, (15 - LA_F, BAR('G6', 'G7')), (31, BAR('segw')),
           *[(22, stage_load(n)) for n in staged_names[:1]])
if 0 <= OPT['pfat'] < 32:
    pin.setdefault(OPT['pfat'], []).extend(pf)
NB = OPT['nb0']
per = 8 // NB
plan = [(1, [], [])]
for n in range(NB):
    lo, hi = max(2 * per * n - 1, 0), 2 * per * (n + 1) - 1
    plan.append((1 + (n + 1) * 28 // NB, sum(coef[per * n:per * (n + 1)], []), sum(horner[lo:hi], [])))
P += staged(fine('F0', F_items[0], 3), pin, plan + [(30, fill, []), (31, [], [])])
P += stamp('F0')

E = ASc[0]
R0, R1, T0_, T1_ = TT + 8, TT + 12, ASc[0], ASc[2]
h0, h1 = mish_stages(0, 0), mish_stages(0, 1)
rd = lambda dst, k: I(f'ds_read2_b64 {vr(dst, 4)}, v{t1} offset0:{32 * k} offset1:{32 * k + 32}')
publish = cmul_add(E, E + 2, L16R, L16I, PR, PI, AGR, AGI) + fetch(pub=t1) + L(f"""v_mov_b32 v{E + 1}, s{sTAG}
    v_mov_b32 v{E + 3}, s{sTAG}
    buffer_store_dwordx4 {vr(E, 4)}, v{t1}, {srd(sWS)}, 0 offen sc1""")
frounds = [(0, rg(10)), (8, rg(11))] if OPT['sch'] == 1 else [(0, rg(11))]
pin = pins(*frounds, (OPT['wa0'], rw('WA0')), (31 - LA_F, BAR('G8', 'G9', 'G10', 'G11')),
           *zip((8, 24), map(stage_load, staged_names[1:3])))
GA = [int(x) for x in str(OPT['stg1']).split('.')]
P += staged(fine('F0', F_items[1], 3), pin, [
    (GA[0], [rd(R0, 0), rd(R1, 2)] + h0['rd'], h0['A']),
    (GA[1], h0['ex'], cmul_pk(PR, L16R, R0, R0 + 2) + cmul_pk(T0_, L16R, PR, R1) + cmul_pk(PR, L16R, T0_, R1 + 2) + h0['B']),
    (GA[2], [rd(R0, 4), I(f'ds_read_b64 {vr(R1, 2)}, v{t1} offset:{6 * 256}')] + h0['rc'],
     cmul_pk(T0_, L16R, PR, R0) + cmul_pk(T1_, L16R, T0_, R0 + 2) + cmul_pk(PR, L16R, T1_, R1) + h0['C']),
    (GA[3], h1['rd'] + publish + h0['fin'], h1['A']),
    (GA[4], h1['ex'], h1['B']),
    (GA[5], h1['rc'], h1['C']),
    (31, h1['fin'], [])])
P += stamp('F1')

LBA = [CR, NCI]
LBE = [NCR, L16R]
LBD = [ASc[0], QG[0]]
FLV = L16I
lb_loads = '\n'.join(f'buffer_load_dwordx4 {vr(LBD[e], 4)}, v{LBA[e]}, {srd(sWS)}, 0 offen sc1' for e in range(2))
lb_setup = fetch(lba0=LBA[0], lba1=LBA[1], lbe0=LBE[0], lbe1=LBE[1])


def flag_store(stage, toks):
    out = [Wait(*toks), I(f'buffer_store_dword v{FLV}, v{FLA}, {srd(sWS)}, 0 offen offset:{128 * stage} sc1')]
    if OPT['ppf']:
        so = (sFST[0], sSST, sFST[2])[stage]
        vpf = L128R if stage else t3
        out = [I(f'v_lshlrev_b32 v{vpf}, {6 if stage < 2 else "s%d" % sSEL[1]}, v{vL}')] + out
        out.append(I(f'buffer_load_dword a{60 + (stage & 1)}, v{vpf}, {srd(sWS)}, s{so} offen sc1'))
    return out


def flag_load(stage):
    return f'buffer_load_dword v{t3}, v{FLP}, {srd(sWS)}, 0 offen offset:{128 * stage} sc1'


flag_check = f'v_cmp_ne_u32 vcc, s{sTAG}, v{t3}'
lb_check = f"""v_bitop3_b32 v{t0}, v{LBD[0] + 1}, v{LBD[0] + 3}, v{LBE[0]} bitop3:0x7e
    v_bitop3_b32 v{t1}, v{LBD[1] + 1}, v{LBD[1] + 3}, v{LBE[1]} bitop3:0x7e
    v_or_b32 v{t0}, v{t0}, v{t1}
    v_cmp_ne_u32 vcc, 0, v{t0}"""
lb_part = stamp('lb0') + poll('lb', lb_loads, lb_check) + stamp('lb1')
lb_part += cmul_add(LBD[0] + 1, LBD[0] + 3, L128R, L128I, LBD[0], LBD[0] + 2, LBD[1], LBD[1] + 2)
lb_part += cmul_add(LBD[1], LBD[1] + 1, WR, WI, LBD[0] + 1, LBD[0] + 3)
lb_part += fetch(lbw=t1)
lb_part.append(I(f'ds_write_b64 v{t1}, {vr(LBD[1], 2)}', tok='lbw'))
HW, HR, HB = ASc[0], ASc[1], FACC[1]
HW2, HR2 = WR, WI
tail_addr = fetch(lbr=ASc[3], fla=FLA, flp=FLP) + L(f'v_mov_b32 v{FLV}, s{sTAG}')
lb_reads = [I(f'ds_read2_b64 {vr(HB + 4 * q, 4)}, v{ASc[3]} offset0:{64 * q} offset1:{64 * q + 32}') for q in range(4)]
scan = [I(f'v_pk_add_f32 {vr(HB + a, 2)}, {vr(HB + a, 2)}, {vr(HB + b_, 2)}')
        for a, b_ in ((0, 2), (4, 6), (8, 10), (12, 14), (0, 4), (8, 12), (0, 8))]
scan += cmul_add(L128R, L128I, LSR, LSI, HB, HB + 1, PR, PI)
pack = lambda q: L(f"""v_cvt_pk_bf16_f32 v{SRE + q}, v{V(2 * q)}, v{V(2 * q + 1)}
    v_cvt_pk_bf16_f32 v{SIM + q}, v{V(2 * q) + 1}, v{V(2 * q + 1) + 1}""")
for r in range(16):
    prev = vr(L128R if r == 0 else V(r - 1), 2)
    scan += L(f"""v_pk_fma_f32 {vr(V(r), 2)}, {prev}, {vr(LR, 2)}, {vr(V(r), 2)} op_sel_hi:[1,0,1]
        v_pk_fma_f32 {vr(V(r), 2)}, {prev}, {vr(NLI, 2)}, {vr(V(r), 2)} op_sel:[1,0,0] op_sel_hi:[0,1,1]""")
    if r >= 2 and r % 2 == 0 and OPT['pk_in']:
        scan += pack(r // 2 - 1)
HRS = AS
transp = fetch(hw=HW, hw2=HW2, hr=HRS[0]) + [I(f'v_xor_b32 v{HRS[n]}, {16 * n}, v{HRS[0]}') for n in (1, 2, 3)] + sum((pack(q) for q in range(7 if OPT['pk_in'] else 0, 8)), [])
for ri in range(2):
    transp += [I(f'ds_write_b128 v{(HW, HW2)[h]}, {vr((SRE, SIM)[ri] + 4 * h, 4)}') for h in range(2)]
    for fr in range(2):
        for u in range(2):
            transp.append(I(f'ds_read_b64_tr_b16 {ar(aOS + 8 * ri + 4 * fr + 2 * u, 2)}, v{HRS[2 * u + fr]} offset:{256 * u}'))
stH = [I(f'buffer_store_dwordx4 {ar(aOS + 4 * q, 4)}, v{VL16}, {srd(sWS)}, s{sSST} offen offset:{1024 * q} sc1',
         tok='stH' if q == 3 else None) for q in range(4)]
h0, h1 = mish_stages(1, 0), mish_stages(1, 1)
g0, g1 = mish_stages(2, 0), mish_stages(2, 1)
pin = pins((0, rw('CR0')), (8, rw('CI0')), (18, rw('WA1')), (29, BAR('lbw') + lb_reads + g0['rd'] + g1['rd']), (OPT['lbl'], L(lb_loads)),
           *[(25, stage_load(n)) for n in staged_names[3:4]])
GB = [int(x) for x in str(OPT['stg2']).split('.')]
P += staged(fine('F2', F_items[2], 2), pin, [
    (GB[0], h0['rd'] + h1['rd'] + lb_setup, h0['A']),
    (GB[1], h0['ex'], h0['B'] + h1['A']),
    (GB[2], h0['rc'] + h1['ex'], h0['C'] + h1['B']),
    (GB[3], h0['fin'] + h1['rc'], h1['C']),
    (28, h1['fin'] + lb_part + tail_addr, []),
    (31, [], [])])
P += stamp('F2')
burst = scan + g0['A']
if OPT['fas'] < 0:
    burst = burst[:OPT['fas']] + flag_store(0, ['stF0', 'stF1']) + burst[OPT['fas']:]
if OPT['fine'] == 'T':
    for n in range(len(burst) - 12, 0, -12):
        burst = burst[:n] + stamp(f'g{n}') + burst[n:]
P += burst
P += stamp('scan')


FP0, CP0, FPc = [NLI, LI, LR, CR], [NCI, NCR], QG
PA = OPT['pa']
p3_setup = fetch(fp0=FP0[0], fp1=CP0[0], f3o=ASc[2]) + [I(f'v_xor_b32 v{FP0[n]}, {32 * n}, v{FP0[0]}') for n in (1, 2, 3)]
p3_setup.append(I(f'v_xor_b32 v{CP0[1]}, 64, v{CP0[0]}'))
hs = OPT['hs']
lead = [i_ for i_ in transp if i_.kind != 'ds']
tds = transp[len(lead):]
P += lead
tpins = [(0, tds[0:1]), (1, tds[1:2]), (2, tds[2:4]), (3, tds[4:6]), (4, tds[6:7]), (5, tds[7:8] + stH[0:1]),
         (6, tds[8:10]), (7, tds[10:12] + stH[1:2]), (7 + hs, stH[2:3]), (7 + 2 * hs, stH[3:4])]

steps = ([('WA0', x, 'own') for x in range(4)]
         + [(n, x, 'own') for n in ('CR0', 'CI0') for x in range(2)]
         + [(f'WA{e}', x, 'A') for e in (1, 2, 3) for x in range(4)]
         + [(n, x, 'H') for n in ('CR0', 'CI0') for x in (2, 3)]
         + [(n, x, 'H') for n in ('CR1', 'CI1') for x in range(4)]
         + [('WB0', x, 'own') for x in range(4)]
         + [(f'WB{e}', x, 'B') for e in (1, 2) for x in range(4)])
deferred = [k for k, st in enumerate(steps) if st[2] != 'own']
A_REGS = ([192 + 4 * n for n in range(16)] + [SRE + 4 * n for n in range(8)]
          + [FACC[0] + 4 * n for n in range(4)] + [TT + 4 * n for n in range(4)])
ACC = [128, 144, 160, 176]
cur_addr = {}


def a_frag(k):
    name, x, src = steps[k]
    if src != 'own':
        return vr(A_REGS[deferred.index(k)], 4)
    if name == 'WA0':
        return ar(aOF + 4 * x, 4)
    if name == 'WB0':
        return ar(aOF + 16 + 4 * x, 4) if x < 2 else vr(FACC[1] + 4 * (x - 2), 4)
    return ar(aOS + 8 * (name[1] == 'I') + 4 * x, 4)


def a_load(k):
    name, x, src = steps[k]
    e = int(name[2])
    if name[0] == 'C':
        so, off = sAO['H'][2 * e + (x >> 1)], 2048 * (name[1] == 'I') + 1024 * (x & 1)
    else:
        so, off = sAO[name[1]][e], 1024 * x
    return [I(f'buffer_load_dwordx4 {a_frag(k)}, v{VL16}, {srd(sWS)}, s{so} offen offset:{off} sc1')]


pin = pins((PA, rw2('WA2')), (PA + 8, BAR()), (PA + 9, rw2('WA3')), (PA + 17, BAR()), (PA + 18, rw2('CR1')),
           (OPT['fal'], L(flag_load(0))), (30, BAR('WA0', 'CR0', 'CI0', 'WA1')), *tpins)
if OPT['fhs'] >= 0:
    pin.setdefault(OPT['fhs'], []).extend(flag_store(1, ['stH']))
if OPT['fas'] >= 0:
    pin.setdefault(OPT['fas'], []).extend(flag_store(0, ['stF0', 'stF1']))
m3 = mish_pk(3, ASc[2])
GC = [int(x) for x in str(OPT['stg3']).split('.')]
P += staged(fine('F3', F_items[3], 2), pin, [
    (GC[0], g0['ex'], g0['B'] + g1['A']),
    (GC[1], g0['rc'] + g1['ex'], g0['C'] + g1['B']),
    (GC[2], g0['fin'] + g1['rc'], g1['C']),
    (29, g1['fin'][:4] + m3[:4] + g1['fin'][4:] + p3_setup, []),
    (31, [], [])])
P += stamp('F3')

m3 = m3[4:]
st0 = 40
early = sum((a_load(k) for k in range(8, 8 + OPT['nea'])), [])
fac = st0 - OPT['fac']
TAIL0 = len(P)
P += m3[:fac] + (flag_store(1, ['stH']) if OPT['fhs'] == -1 and not OPT['fhp'] else [])
P += stamp('fa0') + poll('fa', flag_load(0), flag_check) + stamp('fa1')
tl = merge(m3[fac:st0], early) + (flag_store(1, ['stH']) if OPT['fhp'] else []) + m3[st0:]
TAIL1 = len(P) + len(tl) - len(m3) + st0
if OPT['fine'] == 'T':
    for n in range(len(tl) - 12, 0, -12):
        tl = tl[:n] + stamp(f'gt{n}') + tl[n:]
P += tl
P += stamp('tail')

XE, ME = 192, LSR
ep_setup = L(f"""v_lshrrev_b32 v{t1}, 5, v{vL}
    s_lshl_b32 s{sT2}, s{sW}, 8
    s_add_u32 s{sT2}, s{sT2}, {T_STAT}
    v_lshl_add_u32 v{VLN2}, v{t1}, 4, s{sT2}
    v_lshlrev_b32 v{FA0}, 13, v{t1}
    v_and_b32 v{t0}, 31, v{vL}
    v_lshl_add_u32 v{FA0}, v{t0}, 2, v{FA0}""")
VL4 = ASc[0]
ep_setup = L(f'v_lshlrev_b32 v{VL4}, 2, v{vL}') + ep_setup
base_calc = [I(f'v_accvgpr_read_b32 v{RL2}, a{aXE + 16}')]
for qt in range(4):
    base_calc += [I(f'ds_read_b128 {vr(ME, 4)}, v{VLN2} offset:{4 * ROW(4 * qt)}', hoist=True),
                  I(f'ds_read_b128 {vr(ME + 4, 4)}, v{VLN2} offset:{128 + 4 * ROW(4 * qt)}', hoist=True)]
    rs = range(4)
    base_calc += [I(f'v_accvgpr_read_b32 v{XE + 4 * qt + r}, a{aXE + 4 * qt + r}') for r in rs]
    base_calc += [I(f'v_sub_f32 v{ME + r}, v{XE + 4 * qt + r}, v{ME + r}') for r in rs]
    base_calc += [I(f'v_mul_f32 v{ME + r}, v{ME + r}, v{ME + 4 + r}') for r in rs]
    base_calc += [I(f'v_fmac_f32 v{XE + 4 * qt + r}, v{ME + r}, v{RL2}') for r in rs]

def checksum(dst, src, last):
    return [f'v_bitop3_b32 v{dst}, v{src}, v{src + 1}, {last} bitop3:0x96'] + \
           [f'v_bitop3_b32 v{dst}, v{src + e}, v{src + e + 1}, v{dst} bitop3:0x96' for e in (2, 4, 6)]


def send(b):
    A = ACC[b]
    out = []
    for q in range(2):
        out += [I(f'v_cvt_pk_bf16_f32 v{A + e}, v{A + 2 * e}, v{A + 2 * e + 1}') for e in range(4 * q, 4 * q + 4)]
        out.append(I(f'buffer_store_dwordx4 {vr(A + 4 * q, 4)}, v{VL16}, {srd(sWS)}, s{sXO[b]} offen '
                     f'offset:{1024 * q} sc1'))
    out += [I(c) for c in checksum(A + 8, A, f's{sTAG}')]
    out.append(I(f'buffer_store_dword v{A + 8}, v{VL4}, {srd(sWS)}, s{sXO[b]} offen offset:2048 sc1'))
    return out


def w_read1(k, b, dst):
    name, x, src = steps[k]
    slot = W_SLOT[name]
    out = []

    def address(cur, base):
        if slot < 4:
            return base, slot * SLOT
        if not 0 <= slot - cur_addr.get(cur, -9) < 4:
            cur_addr[cur] = 4 if slot == 4 else 5
            out.append(I(f'v_add_u32 v{cur}, {cur_addr[cur] * SLOT}, v{base}'))
        return cur, (slot - cur_addr[cur]) * SLOT

    if name[0] == 'C':
        a, off = address(AS[x >> 1], CP0[x >> 1])
        return out + [I(f'ds_read_b128 {ar(dst, 4)}, v{a} offset:{off + 4096 * b + 2048 * (x & 1)}', lds_r=slot)]
    var = 2 * (b & 1) + (x & 1)
    a, off = address(FPc[var], FP0[var])
    return out + [I(f'ds_read_b64_tr_b16 {ar(dst + 2 * u, 2)}, v{a} '
                    f'offset:{off + 8192 * (x >> 1) + 4096 * (b >> 1) + 1024 * u}', lds_r=slot) for u in range(2)]


RX = {1: ACC[1], 2: ACC[2], 3: ACC[3]}


def recv(b):
    so = sXO[0] if b == 1 else sSEL[b]
    rl = [f'buffer_load_dwordx4 {vr(RX[b] + 4 * q, 4)}, v{VL16}, {srd(sWS)}, s{so} offen offset:{1024 * q} sc1' for q in range(2)]
    rl.append(f'buffer_load_dword v{RX[b] + 8}, v{VL4}, {srd(sWS)}, s{so} offen offset:2048 sc1')
    return '\n'.join(rl)


pre = L(f"""s_lshl_b32 s{sXB}, s{sXB}, 1
    s_mov_b32 s{sKC[0]}, 0x00003f80
    s_mov_b32 s{sKC[1]}, 0x3f800000""")
E3 = OPT['e3']
D0 = OPT['d0']
seq = [(k, b) for k in range(D0) for b in (1, 2, 3, 0)] + [(k, b) for k in range(D0, E3) for b in (1, 2, 3)]
seq += [(k, b) for k in range(E3, 36) for b in (1, 2)]
seq += [(k, b) for b in (1, 2) for k in range(36, 44)]
own8 = [(k, 0) for k in range(8, 12)]
seq += (own8 if OPT['o8'] else []) + [(k, 3) for k in range(E3, 44)] + ([] if OPT['o8'] else own8)
seq += [(k, 0) for k in list(range(D0, 8)) + list(range(12, 44))]
at = {kb: n for n, kb in enumerate(seq)}
done_at = {b: at[43, b] for b in (1, 2, 3)}
KEEP = {(k, 0): aWO + 4 * (k - 8) for k in range(8, 12)}
KEEP.update({(k, 0): aWO + 16 + 4 * k for k in range(D0, 4)})
reads = sorted((kb for kb in seq), key=lambda kb: at[kb[0], 3] + 0.5 if kb in KEEP else at[kb])
RING = 12
where, nring = {}, 0
for kb in reads:
    if kb in KEEP:
        where[kb] = KEEP[kb]
    else:
        where[kb] = aP + 4 * (nring % RING)
        nring += 1
LA_J = OPT['laj']
items = []
rd = 0
seen = set()
for n, (k, b) in enumerate(seq):
    pre_rd = []
    while rd < len(reads) and (at[reads[rd][0], 3] if reads[rd] in KEEP else at[reads[rd]]) <= n + LA_J:
        pre_rd += w_read1(*reads[rd], where[reads[rd]])
        rd += 1
    mm = []
    for a in range(2):
        d = vr(ACC[b] + 8 * a + 4 * (k & 1), 4)
        mm.append(I(f'v_mfma_f32_16x16x32_bf16 {d}, {a_frag((k & ~1) + a)}, {ar(where[k, b], 4)}, '
                    f'{d if (b, k & 1) in seen else 0}'))
    seen.add((b, k & 1))
    if n == 0:
        if OPT['wmix']:
            end = len(P) - (PROF in (1, 2)) - 10
            P = P[:TAIL1] + merge(P[TAIL1:end], pre_rd) + P[end:]
        else:
            P = P[:TAIL0] + pre_rd + P[TAIL0:]
        pre_rd = []
    nds = [n_ for n_, i_ in enumerate(pre_rd) if i_.kind == 'ds']
    half = nds[len(nds) // 2] if OPT['bal'] and len(nds) > 1 else len(pre_rd)
    items.append([mm[0]] + pre_rd[:half] + [mm[1]] + pre_rd[half:])
pin = {n: [] for n in range(len(items))}
B1 = at[4, 1] + 2
pin[B1] += BAR('WA2')
pin[at[16, 1] - LA_J - 1] += [Wait('WA3', 'CR1', 'CI1'), I('s_barrier')]
pin[at[32, 1] - LA_J - 1] += [Wait('WB0', 'WB1', 'WB2'), I('s_barrier')]
if OPT['fhs'] < -1:
    pin[-OPT['fhs']] += flag_store(1, ['stH'])
if OPT['fhl'] >= 0:
    pin[OPT['fhl']] += L(flag_load(1))
pin[OPT['fhc']] += stamp('fh0') + poll('fh', flag_load(1), flag_check) + stamp('fh1')
pin[OPT['fls']] += flag_store(2, ['stF3', 'stF2'])
pin[OPT['fll']] += L(flag_load(2))
pin[OPT['flc']] += stamp('fl0') + poll('fl', flag_load(2), flag_check) + stamp('fl1')
pin[at[36, 1] - 1] += stamp('k36')
for name, gap in (('CI1', 1), ('WB0', 19), ('WB1', 24), ('WB2', at[16, 1] - LA_J)):
    if name in STAGE:
        for n, i_ in enumerate(stage_write(name)):
            pin[gap + max(n - 2, 0)].append(i_)
_rw = rw
rw = lambda name: [] if name in STAGE else _rw(name)
queue = [(OPT['q0'], a_load(k)) for k in range(8 + OPT['nea'], 16)] + [(0, rw('CI1'))]
queue += [(OPT['q0'], a_load(k)) for k in range(max(16, 8 + OPT['nea']), 20)]
if OPT['qord'] == 0:
    queue += [(B1 + 1, rw('WB0'))] + [(OPT['fhc'], a_load(k)) for k in range(20, 32)] + [(B1 + 1, rw('WB1'))]
elif OPT['qord'] == 1:
    queue += [(B1 + 1, rw('WB0')), (B1 + 1, rw('WB1'))] + [(OPT['fhc'], a_load(k)) for k in range(20, 32)]
else:
    queue += [(OPT['fhc'], a_load(k)) for k in range(20, 24)] + [(B1 + 1, rw('WB0')), (B1 + 1, rw('WB1'))]
    queue += [(0, a_load(k)) for k in range(24, 32)]
queue += [(at[16, 1] - LA_J, rw('WB2'))]
queue += [(OPT['flc'], a_load(k)) for k in range(36, 44)]
n = 0.0
for first_gap, ins in queue:
    n = max(n, first_gap)
    pend = []
    for i_ in ins:
        pend.append(i_)
        if i_.kind == 'vm':
            pin[int(n)] += pend
            pend = []
            n += OPT['pace'] / 10
for b in (1, 2, 3):
    sd = send(b)
    for q in range(4):
        pin[done_at[b] + 3 + q] += sd[q * len(sd) // 4:(q + 1) * len(sd) // 4]
    pin[done_at[min(b + 1, 3) if b < 3 else 3] + OPT[f'r{b}'] if b != 2 else done_at[2] + OPT['r2']] += L(recv(b))
pin[done_at[2] + 6] += stamp('s12')
pin[done_at[3] + 6] += stamp('sent')
items = fine('P3', items[:OPT['fn'] * 27], OPT['fn']) + items[OPT['fn'] * 27:]
LEV[0] = OPT['lev3']
sub = lambda lo, hi: {n - lo: pin[n] for n in range(lo, hi)}
unit_weave = weave


def weave(its, fill_, pin_, lo=0, hi=None):
    if not OPT['fineg']:
        return unit_weave(its, fill_, pin_, lo, hi)
    flat, pin2 = [], {}
    for n, it in enumerate(its):
        cut_ = max(k_ for k_, i_ in enumerate(it) if i_.kind == 'mfma')
        flat += [it[:cut_], it[cut_:]]
        ordered = any(i_.kind in ('barrier', 'pseudo', 'label') for i_ in pin_.get(n, []))
        first = len(flat[-2]) < len(flat[-1]) and not ordered
        pin2[2 * n + (0 if first else 1)] = pin_.get(n, [])
    return unit_weave(flat, fill_, pin2, 2 * lo, None if hi is None else 2 * hi + 1)


c1, c2 = at[32, 1], at[11, 0] + 1
P += weave(items[:c1], [], sub(0, c1))
P += weave(items[c1:c2], ep_setup + pre, sub(c1, c2), 0, 6)
SWAPS = lambda R: [I(f'v_permlane16_swap_b32 v{R + 8 * a + r}, v{R + 8 * a + 4 + r}') for a in range(2) for r in range(4)]
base_calc += SWAPS(XE)


def rx_check(b):
    chk = checksum(RX[b] + 9, RX[b], f'v{RX[b] + 8}') + [f'v_cmp_ne_u32 vcc, s{sTAG}, v{RX[b] + 9}']
    return poll(f'rx{b}', recv(b), '\n'.join(chk))


EARLY = range(1, 1 + OPT['rxe'])
for b in EARLY:
    base_calc += rx_check(b)
    for q in range(8):
        u = RX[b] + 10 + 2 * (q & 1)
        base_calc += L(f"""v_lshlrev_b32 v{u}, 16, v{RX[b] + q}
            v_and_b32 v{u + 1}, 0xffff0000, v{RX[b] + q}
            v_add_f32 v{XE + 2 * q}, v{XE + 2 * q}, v{u}
            v_add_f32 v{XE + 2 * q + 1}, v{XE + 2 * q + 1}, v{u + 1}""")
P += weave(items[c2:], base_calc, sub(c2, len(items)), 3, len(items) - c2 - (3 if OPT['rxe'] else 6))
P += stamp('own')
A0 = ACC[0]
for q in range(8):
    P.append(I(f'v_pk_add_f32 {vr(A0 + 2 * q, 2)}, {vr(A0 + 2 * q, 2)}, {vr(XE + 2 * q, 2)}'))
LATE = [b for b in (1, 2, 3) if b not in EARLY]
for b in LATE:
    P += rx_check(b)
P += stamp('rx')
sts = []
for a in range(2):
    for q in range(4 * a, 4 * a + 4):
        for b in LATE:
            P += [I(f'v_dot2c_f32_bf16 v{A0 + 2 * q + h}, s{sKC[h]}, v{RX[b] + q}') for h in range(2)]
        P += sts[3 * (q & 3):3 * (q & 3) + 3]
    P += SWAPS(A0)[4 * a:4 * a + 4]
    sts = []
    for q in range(4 * a, 4 * a + 4):
        sts.append(I(f's_add_u32 s{sBB}, s{sXB}, {2048 * ROW(2 * q)}'))
        sts += [I(f'buffer_store_dword v{A0 + 2 * q + h}, v{FA0}, {srd(sOUT)}, s{sBB} offen offset:{2048 * h} '
                  f'{OPT["out_flags"].replace("+", " ")}') for h in range(2)]
P += L(f"""s_lshl_b32 s{sT2}, s{sJ}, 2
    s_add_u32 s{sT2}, s{sT2}, s{sW}
    s_xor_b32 s{sT1}, s{sI}, 15
    s_or_b32 s{sT2}, s{sT2}, s{sT1}
    s_cmp_eq_u32 s{sT2}, 0
    s_cselect_b32 s{sT2}, {WS_EP}, {OOB:#x}
    v_mov_b32 v{t0}, s{sE2}
    v_mov_b32 v{t1}, s{sT2}""") + sts + L(f'buffer_store_dword v{t0}, v{t1}, {srd(sWS)}, 0 offen')
if OPT['diag']:
    P += stamp('end') + L("""s_memrealtime s[6:7]
        s_waitcnt lgkmcnt(0)
        s_sub_u32 s4, s4, s23
        s_lshl_b32 s4, s4, 2
        s_min_u32 s4, s4, 20000
        L_diag:
        s_memrealtime s[0:1]
        s_waitcnt lgkmcnt(0)
        s_sub_u32 s0, s0, s6
        s_cmp_lt_u32 s0, s4
        s_cbranch_scc1 L_diag""")
if PROF:
    P += stamp('end')
    P += L(f"""s_waitcnt vmcnt(0)
        s_memrealtime s[0:1]
        s_lshl_b32 s{sT2}, s2, 2
        s_add_u32 s{sT2}, s{sT2}, s{sW}
        s_lshl_b32 s{sT2}, s{sT2}, 7
        s_add_u32 s{sT2}, s{sT2}, {WS_PROF}
        v_mov_b32 v{t1}, s{sT2}
        s_waitcnt lgkmcnt(0)
        v_mov_b32 v{t0}, s0
        buffer_store_dword v{t0}, v{t1}, {srd(sWS)}, 0 offen offset:124
        v_mov_b32 v{t2}, s23
        buffer_store_dword v{t2}, v{t1}, {srd(sWS)}, 0 offen offset:112
        buffer_store_dword a254, v{t1}, {srd(sWS)}, 0 offen offset:116
        buffer_store_dword a255, v{t1}, {srd(sWS)}, 0 offen offset:120""")
    P += stamp('DUMP')
P += [I('L_end:'), I('s_endpgm')]

P = resolve_stamps(P)
if OPT['split']:
    P = split_ds_pairs(P)
if OPT['hoist']:
    P = hoist_reads(P, OPT['hoist'])
body = pad_hazards(insert_waits(P, OPT['age']))
check_polls(body)
tail = []
for name, loads, check in retry_blocks:
    blk = [I(f'L_retry_{name}:'), I(f's_mov_b32 s3, {OPT["spin"]}'), I(f'L_spin_{name}:')]
    if PROF:
        blk.append(I(f's_add_u32 s23, s23, {1 << (4 * retry_blocks.index((name, loads, check)))}'))
    blk += L(loads) + [I('s_waitcnt vmcnt(0)')] + L(check)
    blk += L(f'''s_cbranch_vccz L_back_{name}
        s_sub_u32 s3, s3, 1
        s_cmp_lg_u32 s3, 0
        s_cbranch_scc1 L_spin_{name}
        s_branch L_back_{name}''')
    tail += pad_hazards(blk)

hdr = open(os.path.join(os.path.dirname(os.path.abspath(__file__)), 'header.txt')).read()
text = hdr + f'''; @launch grid=(256,1,1) block=(256,1,1) lds=163840
.amdgcn_target "amdgcn-amd-amdhsa--gfx950"
.text
.globl {KN}
.p2align 8
.type {KN},@function
{KN}:
{render(body)}
{render(tail)}
L_code_end:
    s_endpgm
.section .rodata,"a"
.p2align 6
.amdhsa_kernel {KN}
  .amdhsa_next_free_vgpr 512
  .amdhsa_next_free_sgpr 102
  .amdhsa_accum_offset 256
  .amdhsa_group_segment_fixed_size 0
  .amdhsa_kernarg_size 128
  .amdhsa_user_sgpr_count 2
  .amdhsa_user_sgpr_kernarg_segment_ptr 1
  .amdhsa_system_sgpr_workgroup_id_x 1
.end_amdhsa_kernel
'''
open(sys.argv[1], 'w').write(text)
if PROF:
    open(sys.argv[1][:-2] + '.stamps', 'w').write(' '.join(stamp_names))
from collections import Counter
cnt = Counter(i.kind for i in body)
print(dict(cnt), 'nops', sum(1 for i in body if i.mn == 's_nop'))
import subprocess
chk = subprocess.run([sys.executable, 'cdna_unwritten_srd_check.py', sys.argv[1]],
                     capture_output=True, text=True)
if chk.returncode != 0:
    os.remove(sys.argv[1])
    sys.exit('address check failed: ' + chk.stdout[-600:])
```

```python
import sys, os
sys.path.insert(0, os.path.dirname(os.path.abspath(__file__)))
from asmlib import I, Wait, insert_waits, pad_hazards, render, weave, split_ds_pairs, hoist_reads, merge, level, ds_first, check_polls

KN = 'parallel_sum__ssm_conv_s5__dense_activation_mish__prompt_kernel'
OPT = dict(prof=0, spin=20000, out_flags='nt', map='8x4', pf=2, age=16, laf=5, r1=30, r2=36, r3=29, e3=12, fls=26, fll=47, flc=64, ka2=1, nstep=0, split=0, diag='', dsp=2, xel=0, tlb=0, pk_in=1, lateln=100, d0=4, o8=1, bal=0, fineg=1, xes=0, xfirst=1, parat=4, nb0=2, stg3='8.16.23', stg1='2.7.12.17.22.27', stg2='2.6.14.21', fhp=0, wmix=1, ntx=0, ntg=0, ntw=0, lbt=0, rxe=0, dspc=3, dsps=3, sch=3, g3=24, fn=2, stg=0, q0=6, pfat=24, seqadd=1, g10=8, wa0=17, hs=2, rotj=0, rotm=0, laj=7, pace=16, lev=0, lev3=0, pa=2, fw=1, xw=0, vmc=2, fine='', fas=-10, fal=12, fac=16, nea=8, fhs=-1, fhl=12, fhc=32, qord=1, lbl=13, lbc=24, ppf=0, hoist=32)
for a in sys.argv[2:]:
    k, v = a.split('=')
    OPT[k] = int(v) if v.lstrip('-').isdigit() else v
PROF = OPT['prof']

WS_EP, WS_AG, WS_A = 0, 0x10000, 0x40000
WS_XC = WS_A + 64 * 176 * 1024
XC_BLK = 2560
WS_FL = WS_XC + 1024 * 3 * XC_BLK
WS_SIZE = WS_FL + 1024 * 512
WS_PROF = 0x1C00000
OOB = 0x7ff00000
SLOT = 16384
TB = 9 * SLOT
T_STAT, T_B1, T_SEG, T_LB, T_H = TB, TB + 1024, TB + 2048, TB + 6144, TB + 8192
LOG2E, LN2, M2LN2 = 0x3fb8aa3b, 0x3f317218, 0xbfb17218

sX, sB, sW1, sCre, sCim, sW2, sWS, sOUT, sTMP = 36, 40, 44, 48, 52, 56, 60, 64, 68
sI, sJ, sW, sROT, sTAG, sE2 = 72, 73, 74, 75, 76, 77
sKC = [78, 79, 80, 81]
sWOFF, sT0, sT1, sXB, sBB, sW1A, sW1B = 82, 83, 84, 85, 86, 87, 88
sAS = 89
sFST = [90, 91, 92, 93]
sSST, sCB, sW2B, sFSEL, sONES, sT3, sJJ, sT2 = 94, 95, 96, 97, 98, 99, 100, 101
sKQ, sPB, sXO = 22, [24, 25, 26], [27, 28, 29, 30]
sSEL = [31, 32, 33, 34]
sFLG = 35
pLRE, pLIM, pBRE, pBIM, pLDT, pDSK, pB1 = 8, 10, 12, 14, 16, 18, 20
srd = lambda b: f's[{b}:{b + 3}]'
vL, t0, t1, t2 = 0, 1, 2, 3
AS = [4, 5, 6, 7]
ASc = [8, 9, 10, 11]
XG = [12, 13, 14, 15]
PG = [16, 17, 18, 19]
QG = [20, 21, 22, 23]
FA0, FAc, RL2, VLN2, VL16, VNM, VRS, t3 = 24, 25, 26, 27, 28, 29, 30, 31
FAd = VNM
NLI, LI, LR, CR, NCI, NCR, L16R, L16I, LSR, LSI, L128R, L128I, WR, WI, PR, PI = range(32, 48)
TT = 48
FACC = [64, 80]
SRE, SIM = 96, 112
X = 128
aS, aF, aP, aOF, aOS, aWO, aXE = 0, 128, 0, 64, 88, 128, 224
STAMP_A = list(range(104, 128)) + list(range(241, 247))
vr = lambda b, n: f'v[{b}:{b + n - 1}]'
ar = lambda b, n: f'a[{b}:{b + n - 1}]'

stamp_names = []
FINE_KEEP = dict(T=['lb1', 'F2', 'scan', 'F3', 'fa0', 'fa1', 'tail', 'fh0'], S=['x7', 'c27', 'b0', 'F0'], F0=['b2', 'F0', 'F1'], F2=['F1', 'F2', 'scan'], F3=['F2', 'scan', 'F3', 'fa0', 'fa1', 'tail'],
                 P3=['tail'], L=['k36', 'sent', 'own', 'rx'])


def fine(phase, items, step):
    if OPT['fine'] == phase:
        for n in range(step - 1, len(items), step):
            items[n] = items[n] + stamp(f'g{n}')
    return items


def stamp(name):
    if PROF == 3 and name not in ('end', 'DUMP'):
        return []
    if OPT['fine'] and not name.startswith('g') and name not in FINE_KEEP[OPT['fine']] + ['end', 'DUMP']:
        return []
    if OPT['diag'] == name:
        return [I('s_memrealtime s[4:5]')]
    return [I(';stamp ' + name)] if PROF else []


def resolve_stamps(prog):
    out = []
    for ins in prog:
        if not ins.text.startswith(';stamp '):
            out.append(ins)
            continue
        name = ins.text.split()[1]
        n = len(stamp_names)
        if n:
            out.append(I(f'v_accvgpr_write_b32 a{STAMP_A[n - 1]}, s{4 + 2 * ((n - 1) & 1)}'))
        if name == 'DUMP':
            out += [I(f'buffer_store_dword a{STAMP_A[k]}, v{t1}, {srd(sWS)}, 0 offen offset:{4 * k}') for k in range(n)]
            continue
        assert n < 29
        stamp_names.append(name)
        out.append(I(f's_mem{"real" if PROF == 2 else ""}time s[{4 + 2 * (n & 1)}:{5 + 2 * (n & 1)}]'))
    return out


def L(text):
    return [I(t.strip()) for t in text.strip().split('\n') if t.strip()]


def mfma(d, a, b, c):
    return I(f'v_mfma_f32_32x32x16_bf16 {d}, {a}, {b}, {c}')


def mksrd(b, lo, size):
    return f's_mov_b32 s{b}, s{lo}\ns_mov_b32 s{b + 1}, s{lo + 1}\ns_mov_b32 s{b + 2}, {size}\ns_mov_b32 s{b + 3}, 0x00020000\n'


slot_shared = {}


def dma_round(name, slot, voffs, rsrc, soff_code, shared):
    out = [I(f's_add_u32 m0, s{sWOFF}, {slot * SLOT}')] + L(soff_code)
    for g in range(4):
        nt = int(name[1:]) < OPT['ntx'] if name[0] == 'x' else OPT['ntg'] if name[0] == 'G' else OPT['ntw']
        out.append(I(f'buffer_load_dwordx4 v{voffs[g]}, {srd(rsrc)}, s{sT0} offen offset:{1024 * g} {"nt " if nt else ""}lds',
                     tok=name if g == 3 else None,
                     lds_w=(slot, slot_shared.get(slot, False)) if g == 0 else None, note=name,
                     fills=(slot, shared) if g == 3 else None))
    slot_shared[slot] = shared
    return out


def rx(s, slot):
    return dma_round(f'x{s}', slot + 1, XG, sX,
                     f's_add_u32 s{sT0}, s{sROT}, {s}\ns_and_b32 s{sT0}, s{sT0}, 7\n'
                     f's_lshl_b32 s{sT0}, s{sT0}, 7\ns_add_u32 s{sT0}, s{sT0}, s{sXB}', False)


G_SLOT = [5, 6, 7, 8, 0, 1, 2, 3, 4, 5, 6, 7]
W_SLOT = dict(WA0=8, CR0=0, CI0=1, WA1=2, WA2=3, WA3=4, CR1=5, CI1=6, WB0=7, WB1=8, WB2=2)


def rg(g):
    if g < 4:
        return dma_round(f'G{g}', G_SLOT[g], PG, sB,
                         f's_lshl_b32 s{sT0}, s{sKC[g]}, 7\ns_add_u32 s{sT0}, s{sT0}, s{sBB}', True)
    base = sW1A if g < 8 else sW1B
    return dma_round(f'G{g}', G_SLOT[g], QG, sW1,
                     f's_mul_i32 s{sT0}, s{sKC[g & 3]}, {64 * 3584}\ns_add_u32 s{sT0}, s{sT0}, s{base}', True)


def rw(name):
    e = int(name[2])
    if name[0] == 'C':
        code = f's_xor_b32 s{sT0}, s{sCB}, {128 * e}'
        return dma_round(name, W_SLOT[name], PG, sCim if name[1] == 'I' else sCre, code, True)
    if name[1] == 'A':
        code = f's_xor_b32 s{sT0}, s{sJJ}, {e}\ns_lshl_b32 s{sT0}, s{sT0}, 17\ns_add_u32 s{sT0}, s{sT0}, s{sW2B}'
    else:
        code = f's_lshl_b32 s{sT0}, s{sPB[e]}, 16\ns_add_u32 s{sT0}, s{sT0}, s{sW2B}'
        if e == 0:
            code += f'\ns_xor_b32 s{sT0}, s{sT0}, s{sSEL[0]}'
    return dma_round(name, W_SLOT[name], XG, sW2, code, True)


STAGE = {n: 160 + 16 * k for k, n in enumerate(x for x in str(OPT['stg']).split('.') if x != '0')}
VST = t0


def stage_load(name):
    keep = dict(slot_shared)
    out = []
    for i_ in rw(name)[1:]:
        if i_.kind == 'vm':
            n = sum(j.kind == 'vm' for j in out)
            i_ = I(i_.text.replace('dwordx4 ', f'dwordx4 {ar(STAGE[name] + 4 * n, 4)}, ').replace(' lds', ''))
            i_.dma = True
        out.append(i_)
    slot_shared.clear()
    slot_shared.update(keep)
    return out


def stage_write(name):
    slot = W_SLOT[name]
    out = [I(f's_add_u32 s{sT0}, s{sWOFF}, {slot * SLOT}'), I(f'v_add_u32 v{VST}, s{sT0}, v{VL16}')]
    out += [I(f'ds_write_b128 v{VST}, {ar(STAGE[name] + 4 * g_, 4)} offset:{1024 * g_}', tok=name if g_ == 3 else None,
              lds_w=(slot, True) if g_ == 0 else None, note=name, fills=(slot, True) if g_ == 3 else None)
            for g_ in range(4)]
    return out


def rw2(name):
    if name not in STAGE:
        return rw(name)
    out = stage_write(name)
    for i_ in out[2:]:
        i_.dma = True
    return out


def pins(*parts):
    pin = {}
    for gap, ins in parts:
        head = [i_ for i_ in ins if not getattr(i_, 'dma', False)]
        pin.setdefault(gap, []).extend(head)
        for n, i_ in enumerate(ins[len(head):]):
            pin.setdefault(gap + n * OPT['dsp'], []).append(i_)
    return pin


BAR = lambda *toks: ([Wait(*toks)] if toks else []) + [I('s_barrier')]
PARK = {n: 247 if k == 16 else 48 + k for k, n in enumerate('pub seg lba0 lba1 lbe0 lbe1 fla flp lbw lbr hw hw2 hr hr2 f3o fp0 fp1'.split())}
PARK['pfa'] = 249


def park(**regs):
    return [I(f'v_accvgpr_write_b32 a{PARK[n]}, v{r}') for n, r in regs.items()]


def fetch(**regs):
    return [I(f'v_accvgpr_read_b32 v{r}, a{PARK[n]}') for n, r in regs.items()]


retry_blocks = []


def poll(name, loads, check):
    retry_blocks.append((name, loads, check))
    return L(check) + [I(f's_cbranch_vccnz L_retry_{name}'), I(f'L_back_{name}:')]


def cexp(dr, di, scale, zr, za):
    return L(f"""v_mul_f32 v{dr}, {scale}, v{zr}
        v_mul_f32 v{di}, {scale}, v{za}
        v_exp_f32 v{dr}, v{dr}
        v_fract_f32 v{di}, v{di}
        v_cos_f32 v{t3}, v{di}
        v_sin_f32 v{di}, v{di}
        v_mul_f32 v{di}, v{dr}, v{di}
        v_mul_f32 v{dr}, v{dr}, v{t3}""")


def cmul_add(dr, di, ar_, ai, br, bi, cr=None, ci=None):
    if cr is None:
        head = f'v_mul_f32 v{dr}, v{ar_}, v{br}\nv_mul_f32 v{di}, v{ar_}, v{bi}'
    else:
        head = f'v_fma_f32 v{dr}, v{ar_}, v{br}, v{cr}\nv_fma_f32 v{di}, v{ar_}, v{bi}, v{ci}'
    return L(head + f'\nv_fma_f32 v{dr}, -v{ai}, v{bi}, v{dr}\nv_fmac_f32 v{di}, v{ai}, v{br}')


def mish(b, voff=VL16, quarters=range(4)):
    A = FACC[b & 1]
    out = []
    for q in quarters:
        rs = range(4 * q, 4 * q + 4)
        out.append(I(f'ds_read_b128 {vr(TT + 4 * q, 4)}, v{t2} offset:{T_B1 - TB + 128 * b + 16 * q}', hoist=True))
        out += [I(f'v_fmac_f32 v{TT + r}, v{A + r}, v{RL2}') for r in rs]
        out += [I(f'v_exp_f32 v{A + r}, v{TT + r}') for r in rs]
        out += [I(f'v_add_f32 v{A + r}, 1.0, v{A + r}') for r in rs]
        out += [I(f'v_fma_f32 v{A + r}, v{A + r}, v{A + r}, 1.0') for r in rs]
        out += [I(f'v_rcp_f32 v{A + r}, v{A + r}') for r in rs]
        out += [I(f'v_fmamk_f32 v{A + r}, v{A + r}, {M2LN2:#x}, v{VLN2}') for r in rs]
        out += [I(f'v_mul_f32 v{TT + r}, v{TT + r}, v{A + r}') for r in rs]
        out += [I(f'v_cvt_pk_bf16_f32 v{A + p}, v{TT + 2 * p}, v{TT + 2 * p + 1}') for p in (2 * q, 2 * q + 1)]
        if q & 1:
            fr = q >> 1
            out.append(I(f'buffer_store_dwordx4 {vr(A + 4 * fr, 4)}, v{voff}, {srd(sWS)}, s{sFST[b]} offen '
                         f'offset:{1024 * fr} sc1', tok=f'stF{b}' if fr else None))
            if b < 3:
                out += [I(f'v_accvgpr_write_b32 a{aOF + 8 * b + 4 * fr + e}, v{A + 4 * fr + e}') for e in range(4)]
    return out


def mish_pk(b, voff, halves=range(2)):
    A = FACC[b & 1]
    out = []
    for q in range(2 * len(halves)):
        out.append(I(f'ds_read_b128 {vr(TT + 4 * q, 4)}, v{t2} offset:{T_B1 - TB + 128 * b + 16 * q}', hoist=True))
    for h in halves:
        ps = range(8 * h, 8 * h + 8, 2)
        rs = range(8 * h, 8 * h + 8)
        out += [I(f'v_pk_fma_f32 {vr(TT + p, 2)}, {vr(A + p, 2)}, {vr(RL2, 2)}, {vr(TT + p, 2)} op_sel_hi:[1,0,1]') for p in ps]
        out += [I(f'v_exp_f32 v{A + r}, v{TT + r}') for r in rs]
        out += [I(f'v_pk_add_f32 {vr(A + p, 2)}, {vr(A + p, 2)}, 1.0 op_sel_hi:[1,0]') for p in ps]
        out += [I(f'v_pk_fma_f32 {vr(A + p, 2)}, {vr(A + p, 2)}, {vr(A + p, 2)}, 1.0 op_sel_hi:[1,1,0]') for p in ps]
        out += [I(f'v_rcp_f32 v{A + r}, v{A + r}') for r in rs]
        out += [I(f'v_pk_fma_f32 {vr(A + p, 2)}, {vr(A + p, 2)}, s[{sKC[0]}:{sKC[1]}], {vr(RL2, 2)} '
                  f'op_sel:[0,0,1] op_sel_hi:[1,0,1]') for p in ps]
        out += [I(f'v_pk_mul_f32 {vr(TT + p, 2)}, {vr(TT + p, 2)}, {vr(A + p, 2)}') for p in ps]
        out += [I(f'v_cvt_pk_bf16_f32 v{A + p // 2}, v{TT + p}, v{TT + p + 1}') for p in ps]
    out += [I(f'v_permlane16_swap_b32 v{A + e}, v{A + 4 + e}') for e in range(4)]
    for h in range(2):
        out.append(I(f'buffer_store_dwordx4 {vr(A + 4 * h, 4)}, v{voff}, {srd(sWS)}, s{sFST[b]} offen '
                     f'offset:{1024 * h} sc1', tok=f'stF{b}' if h else None))
        if b < 3:
            out += [I(f'v_accvgpr_write_b32 a{aOF + 8 * b + 4 * h + e}, v{A + 4 * h + e}') for e in range(4)]
    return out


def mish_stages(b, h):
    m = mish_pk(b, VL16, range(2))
    body = m[4:]
    body = body[40:] if h else body[:40]
    return dict(rd=m[2 * h:2 * h + 2], A=body[0:4], ex=body[4:12], B=body[12:20], rc=body[20:28], C=body[28:36],
                fin=body[36:])


def cmul_pk(d, a, b, c):
    return L(f"""v_pk_fma_f32 {vr(d, 2)}, {vr(b, 2)}, {vr(a, 2)}, {vr(c, 2)} op_sel_hi:[1,0,1]
        v_pk_fma_f32 {vr(d, 2)}, {vr(b, 2)}, {vr(a, 2)}, {vr(d, 2)} op_sel:[1,1,0] op_sel_hi:[0,1,1] neg_lo:[0,1,0]""")


def staged(items, pin, plan):
    out, lo = [], 0
    for hi, fill_, burst_ in plan:
        out += weave(items[lo:hi + 1], fill_, {g_ - lo: v for g_, v in pin.items() if lo <= g_ <= hi}) + burst_
        lo = hi + 1
    return out


_weave = weave
LEV = [OPT['lev']]


def weave(*a):
    out = _weave(*a)
    return ds_first(level(out, LEV[0], OPT['vmc'])) if LEV[0] else out


P = []
if OPT['map'] == '8x4':
    ids = f"""s_and_b32 s{sKQ}, s2, 3
        s_bfe_u32 s{sJJ}, s2, 0x20003
        s_lshr_b32 s{sI}, s2, 5
        s_bfe_u32 s{sT0}, s2, 0x10002
        s_lshl_b32 s{sROT}, s{sT0}, 1
        s_lshl_b32 s{sT0}, s{sT0}, 3
        s_and_b32 s{sT1}, s{sI}, 1
        s_or_b32 s{sI}, s{sI}, s{sT0}
        s_add_u32 s{sROT}, s{sROT}, s{sT1}
        s_add_u32 s{sROT}, s{sROT}, s{sJJ if OPT['rotm'] else sKQ}
        s_lshl_b32 s{sROT}, s{sROT}, 1
        s_and_b32 s{sT1}, s{sKQ if OPT['rotm'] else sJJ}, {OPT['rotj']}
        s_add_u32 s{sROT}, s{sROT}, s{sT1}
        s_and_b32 s{sROT}, s{sROT}, 7"""
else:
    ids = f"""s_and_b32 s{sKQ}, s2, 1
        s_lshl_b32 s{sKQ}, s{sKQ}, 1
        s_lshr_b32 s{sT0}, s2, 7
        s_or_b32 s{sKQ}, s{sKQ}, s{sT0}
        s_bfe_u32 s{sJJ}, s2, 0x20003
        s_bfe_u32 s{sI}, s2, 0x20005
        s_bfe_u32 s{sT0}, s2, 0x20001
        s_add_u32 s{sROT}, s{sT0}, s{sKQ}
        s_lshl_b32 s{sT0}, s{sT0}, 2
        s_or_b32 s{sI}, s{sI}, s{sT0}
        s_lshl_b32 s{sROT}, s{sROT}, 1
        {'s_lshr_b32 s%d, s2, 7' % sT0 if OPT['rotm'] else ''}
        {'s_lshl_b32 s%d, s%d, 1' % (sROT, sJJ) if OPT['rotm'] else ''}
        {'s_add_u32 s%d, s%d, s%d' % (sROT, sROT, sT0) if OPT['rotm'] else ''}
        s_and_b32 s{sROT}, s{sROT}, 7"""
ws_load = f's_load_dwordx2 s[{sWS}:{sWS + 1}], s[0:1], 120'
more_loads = f"""s_load_dwordx8 s[{pLRE}:{pLRE + 7}], s[0:1], 8
s_load_dwordx4 s[{pLDT}:{pLDT + 3}], s[0:1], 56
s_load_dwordx2 s[{pB1}:{pB1 + 1}], s[0:1], 88
s_load_dwordx2 s[{sW1}:{sW1 + 1}], s[0:1], 80
s_load_dwordx2 s[{sCre}:{sCre + 1}], s[0:1], 40
s_load_dwordx2 s[{sCim}:{sCim + 1}], s[0:1], 48
s_load_dwordx2 s[{sW2}:{sW2 + 1}], s[0:1], 96
s_load_dwordx2 s[{sOUT}:{sOUT + 1}], s[0:1], 104
"""
SUM, SQ = [TT + 8, TT + 9], [TT + 10, TT + 11]
sizes = ((sX, 2097152), (sB, 524288), (sW1, 1835008), (sCre, 524288), (sCim, 524288), (sW2, 1835008),
         (sWS, (WS_PROF + 0x40000) if PROF else WS_SIZE), (sOUT, 4194304))
P += L(f"""
s_cmp_ge_u32 s2, 256
s_cbranch_scc1 L_end
{'s_memtime s[98:99]' if PROF else ''}
{'s_memrealtime s[90:91]' if PROF or OPT['diag'] else ''}
s_load_dwordx2 s[{sX}:{sX + 1}], s[0:1], 0
{'' if OPT['ka2'] else ws_load}
s_getpc_b64 s[{sTMP}:{sTMP + 1}]
v_lshrrev_b32 v{t0}, 6, v0
v_and_b32 v{vL}, 63, v0
s_and_b32 s{sTMP}, s{sTMP}, 0xffffff80
v_readfirstlane_b32 s{sW}, v{t0}
s_mov_b32 s{sTMP + 2}, L_code_end-{KN}
s_mov_b32 s{sTMP + 3}, 0x00020000
s_lshr_b32 s{sT0}, s2, 3
s_lshl_b32 s{sT0}, s{sT0}, 2
s_add_u32 s{sT0}, s{sT0}, s{sW}
s_lshl_b32 s{sT0}, s{sT0}, 9
v_and_b32 v{t1}, 3, v{vL}
v_lshlrev_b32 v{t1}, 7, v{t1}
buffer_load_dword v{t3}, v{t1}, {srd(sTMP)}, s{sT0} offen
{'' if OPT['ka2'] else more_loads}
v_lshrrev_b32 v{t0}, 3, v{vL}
v_lshrrev_b32 v{t1}, 4, v{vL}
v_xor_b32 v{t1}, v{t1}, v{vL}
v_and_b32 v{t1}, 7, v{t1}
v_lshlrev_b32 v{t1}, 4, v{t1}
v_lshl_add_u32 v{PG[0]}, v{t0}, 10, v{t1}
v_lshrrev_b32 v{t2}, 5, v{vL}
v_mul_u32_u24 v{t2}, {12 * 1024}, v{t2}
v_add_u32 v{XG[0]}, v{PG[0]}, v{t2}
v_xor_b32 v{XG[1]}, 64, v{XG[0]}
v_add_u32 v{XG[2]}, {6 * 1024}, v{XG[0]}
v_add_u32 v{XG[3]}, {9 * 1024}, v{XG[1]}
v_add_u32 v{XG[1]}, {3 * 1024}, v{XG[1]}
s_lshl_b32 s{sWOFF}, s{sW}, 12
{ids}
s_lshl_b32 s{sXB}, s{sI}, 17
s_lshl_b32 s{sT0}, s{sW}, 15
s_add_u32 s{sXB}, s{sXB}, s{sT0}
""" + ''.join(f's_mov_b32 s{b + 2}, {n}\ns_mov_b32 s{b + 3}, 0x00020000\n' for b, n in sizes) + f"""
s_waitcnt lgkmcnt(0)
{'v_accvgpr_write_b32 a254, s98' if PROF else ''}
{'v_accvgpr_write_b32 a255, s90' if PROF else ''}
{'s_mov_b32 s23, 0' if PROF else ''}
{'s_mov_b32 s23, s90' if OPT['diag'] else ''}
""")
P += stamp('ka') if OPT['diag'] else []
P += rx(0, 0) + (L(ws_load + '\n' + more_loads) if OPT['ka2'] else []) + rx(1, 1)
P += L(f"""
v_and_b32 v{t0}, 31, v{vL}
s_lshl_b32 s{sJ}, s{sKQ}, 2
s_or_b32 s{sJ}, s{sJ}, s{sJJ}
v_lshrrev_b32 v{t1}, 5, v{vL}
v_bfe_u32 v{t2}, v{vL}, 1, 3
v_xor_b32 v{t1}, v{t1}, v{t2}
v_lshlrev_b32 v{t1}, 4, v{t1}
v_lshl_add_u32 v{AS[0]}, v{t0}, 7, v{t1}
v_xor_b32 v{AS[1]}, 32, v{AS[0]}
v_xor_b32 v{AS[2]}, 64, v{AS[0]}
v_xor_b32 v{AS[3]}, 0x60, v{AS[0]}
s_add_u32 s{sT0}, s{sWOFF}, {SLOT}
v_add_u32 v{ASc[0]}, s{sT0}, v{AS[0]}
v_add_u32 v{ASc[1]}, s{sT0}, v{AS[1]}
v_add_u32 v{ASc[2]}, s{sT0}, v{AS[2]}
v_add_u32 v{ASc[3]}, s{sT0}, v{AS[3]}
s_mov_b32 s{sONES}, 0x3f803f80
v_mov_b32 v{SUM[0]}, 0
v_mov_b32 v{SUM[1]}, 0
v_mov_b32 v{SQ[0]}, 0
v_mov_b32 v{SQ[1]}, 0
s_lshl_b32 s{sT0}, s{sW}, 9
s_add_u32 s{sT0}, s{sT0}, {T_SEG}
v_lshl_add_u32 v{t0}, v{vL}, 3, s{sT0}""")
P.append(I(f'ds_write_b64 v{t0}, {vr(SUM[0], 2)}', tok='zero'))
P += L(f's_waitcnt lgkmcnt(0)\ns_load_dword s{sE2}, s[{sWS}:{sWS + 1}], {WS_EP}')
mid = L(f"""
v_and_b32 v{t0}, 31, v{vL}
s_lshl_b32 s{sT1}, s{sJ}, 6
v_lshl_add_u32 v{NLI}, v{t0}, 1, s{sT1}
s_and_b32 s{sT3}, s{sW}, 1
s_mul_i32 s{sT2}, s{sKQ}, 7
s_lshl_b32 s{sW1A}, s{sJJ}, 1
s_add_u32 s{sPB[0]}, s{sW1A}, 1
s_cmp_eq_u32 s{sJJ}, 3
s_cselect_b32 s{sPB[0]}, 3, s{sPB[0]}
s_cselect_b32 s{sFSEL}, 64, 0
s_add_u32 s{sW1A}, s{sW1A}, s{sT2}
s_add_u32 s{sW1B}, s{sPB[0]}, s{sT2}
s_lshl_b32 s{sW1A}, s{sW1A}, 7
s_lshl_b32 s{sW1B}, s{sW1B}, 7
s_cmp_ge_u32 s{sW}, 2
s_cselect_b32 s{sT2}, s{sW1B}, s{sW1A}
s_cselect_b32 s{sT1}, s{sFSEL}, 0
s_add_u32 s{sT2}, s{sT2}, s{sT1}
s_lshl_b32 s{sT1}, s{sT3}, 6
s_xor_b32 s{sT2}, s{sT2}, s{sT1}
v_and_b32 v{t1}, 3, v{vL}
v_bfe_u32 v{t2}, v{vL}, 2, 2
v_lshl_add_u32 v{t1}, v{t2}, 3, v{t1}
v_bfe_u32 v{t2}, v{vL}, 4, 1
v_lshl_add_u32 v{t1}, v{t2}, 2, v{t1}
v_lshl_add_u32 v{PR}, v{t1}, 1, s{sT2}
s_cmp_eq_u32 s{sT3}, 1
s_cselect_b32 s{sB}, s{pBIM}, s{pBRE}
s_cselect_b32 s{sB + 1}, s{pBIM + 1}, s{pBRE + 1}
s_mul_i32 s{sT3}, s{sT3}, {32 * 3584}
s_add_u32 s{sW1A}, s{sW1A}, s{sT3}
s_add_u32 s{sW1B}, s{sW1B}, s{sT3}
s_lshl_b32 s{sBB}, s{sJ}, 15
s_lshr_b32 s{sT1}, s{sW}, 1
s_add_u32 s{sT1}, s{sT1}, s{sROT}
s_and_b32 s{sKC[0]}, s{sT1}, 7
s_add_u32 s{sT1}, s{sT1}, 2
s_and_b32 s{sKC[1]}, s{sT1}, 7
s_add_u32 s{sT1}, s{sT1}, 2
s_and_b32 s{sKC[2]}, s{sT1}, 7
s_add_u32 s{sT1}, s{sT1}, 2
s_and_b32 s{sKC[3]}, s{sT1}, 7
v_xor_b32 v{PG[1]}, 64, v{PG[0]}
v_add_u32 v{PG[2]}, {14 * 1024}, v{PG[0]}
v_add_u32 v{PG[3]}, {21 * 1024}, v{PG[1]}
v_add_u32 v{PG[1]}, {7 * 1024}, v{PG[1]}
v_and_b32 v{t2}, 1, v{vL}
v_lshlrev_b32 v{t2}, 4, v{t2}
v_mov_b32 v{VNM}, 0x3f80
v_lshlrev_b32 v{t2}, v{t2}, v{VNM}
v_bfe_i32 v{t0}, v{vL}, 1, 1
v_and_b32 v{TT + 1}, v{t0}, v{t2}
v_xor_b32 v{TT}, v{TT + 1}, v{t2}
""")
mid += L(f"""
v_lshrrev_b32 v{t1}, 3, v{vL}
v_mul_u32_u24 v{t1}, 3584, v{t1}
v_bfe_u32 v{t2}, v{vL}, 4, 1
v_lshlrev_b32 v{t2}, 2, v{t2}
v_xor_b32 v{t2}, v{t2}, v{vL}
v_and_b32 v{t2}, 7, v{t2}
v_lshl_add_u32 v{QG[0]}, v{t2}, 4, v{t1}
v_add_u32 v{QG[1]}, {27648}, v{QG[0]}
v_add_u32 v{QG[2]}, {2 * 27648}, v{QG[0]}
v_add_u32 v{QG[3]}, {3 * 27648}, v{QG[0]}
""")
late = L(f"""
s_mul_i32 s{sE2}, s{sE2}, 1664525
s_add_u32 s{sE2}, s{sE2}, 1013904226
s_or_b32 s{sTAG}, s{sE2}, 1
v_bfe_u32 v{t1}, v{vL}, 2, 2
v_lshrrev_b32 v{t2}, 5, v{vL}
v_lshl_add_u32 v{t2}, v{t2}, 3, v{t1}
v_lshlrev_b32 v{FA0}, 7, v{t2}
v_lshrrev_b32 v{t1}, 1, v{t1}
v_lshl_add_u32 v{FA0}, v{t1}, 6, v{FA0}
v_bfe_u32 v{t1}, v{vL}, 4, 1
v_lshl_add_u32 v{FA0}, v{t1}, 5, v{FA0}
v_and_b32 v{t1}, 3, v{vL}
v_lshl_add_u32 v{FA0}, v{t1}, 3, v{FA0}
v_lshlrev_b32 v{VL16}, 4, v{vL}
v_mov_b32 v{VLN2}, {LN2:#x}
s_cmp_eq_u32 s{sPB[0]}, 1
s_cselect_b32 s{sPB[1]}, 3, 1
s_cmp_eq_u32 s{sPB[0]}, 5
s_cselect_b32 s{sPB[2]}, 3, 5
s_lshl_b32 s{sSEL[0]}, s{sFSEL}, 9
s_lshl_b32 s{sAS}, s{sI}, 2
s_add_u32 s{sAS}, s{sAS}, s{sW}
s_lshl_b32 s{sAS}, s{sAS}, 2
s_add_u32 s{sAS}, s{sAS}, s{sKQ}
s_lshl_b32 s{sFLG}, s{sAS}, 11
s_add_u32 s{sFLG}, s{sFLG}, {WS_FL}
s_mul_i32 s{sAS}, s{sAS}, {44 * 1024}
s_add_u32 s{sAS}, s{sAS}, {WS_A}
s_lshl_b32 s{sT2}, s{sJJ}, 13
s_add_u32 s{sFST[0]}, s{sAS}, s{sT2}
s_add_u32 s{sFST[1]}, s{sFST[0]}, 2048
s_lshl_b32 s{sT2}, s{sPB[0]}, 12
s_add_u32 s{sFST[3]}, s{sAS}, s{sT2}
s_lshl_b32 s{sT2}, s{sFSEL}, 5
s_add_u32 s{sFST[2]}, s{sFST[3]}, s{sT2}
s_add_u32 s{sFST[3]}, s{sFST[3]}, 2048
s_lshl_b32 s{sT2}, s{sJJ}, 12
s_add_u32 s{sSST}, s{sAS}, s{sT2}
s_add_u32 s{sSST}, s{sSST}, {28 * 1024}
s_xor_b32 s{sT2}, s{sW}, s{sKQ}
s_lshl_b32 s{sT2}, s{sT2}, 15
s_lshl_b32 s{sCB}, s{sJJ}, 17
s_add_u32 s{sCB}, s{sCB}, s{sT2}
s_lshl_b32 s{sT2}, s{sKQ}, 8
s_add_u32 s{sCB}, s{sCB}, s{sT2}
s_lshr_b32 s{sT2}, s{sJJ}, 1
s_lshl_b32 s{sT2}, s{sT2}, 7
s_add_u32 s{sCB}, s{sCB}, s{sT2}
s_mul_i32 s{sW2B}, s{sKQ}, {448 * 1024}
s_lshr_b32 s{sT2}, s{sW}, 1
s_lshl_b32 s{sT2}, s{sT2}, 15
s_add_u32 s{sW2B}, s{sW2B}, s{sT2}
s_lshl_b32 s{sT2}, s{sJJ}, 8
s_add_u32 s{sW2B}, s{sW2B}, s{sT2}
s_lshr_b32 s{sT2}, s{sKQ}, 1
s_xor_b32 s{sT2}, s{sT2}, s{sW}
s_and_b32 s{sT2}, s{sT2}, 1
s_lshl_b32 s{sT2}, s{sT2}, 7
s_add_u32 s{sW2B}, s{sW2B}, s{sT2}
s_lshl_b32 s{sT2}, s{sI}, 4
s_add_u32 s{sT2}, s{sT2}, s{sJJ}
s_lshl_b32 s{sT2}, s{sT2}, 2
s_add_u32 s{sT2}, s{sT2}, s{sW}""")
for b in range(4):
    late += L(f"""s_xor_b32 s{sT3}, s{sKQ}, {b}
        s_lshl_b32 s{sT3}, s{sT3}, 4
        s_add_u32 s{sT3}, s{sT3}, s{sT2}
        s_mul_i32 s{sT3}, s{sT3}, {3 * XC_BLK}
        s_add_u32 s{sXO[b]}, s{sT3}, {WS_XC + (b - 1) * XC_BLK if b else WS_XC}""")
late += L(f"""s_add_u32 s{sSEL[2]}, s{sXO[0]}, {XC_BLK}
    s_add_u32 s{sSEL[3]}, s{sXO[0]}, {2 * XC_BLK}
    s_and_b32 s{sT3}, s{sJJ}, 1
    s_sub_u32 s{sSEL[1]}, 6, s{sT3}""")
pf = []
if OPT['pf'] == 2:
    late += L(f"""
s_and_b32 s{sT1}, s{sI}, 7
s_lshl_b32 s{sT2}, s{sT1}, 1
s_add_u32 s{sT2}, s{sT2}, s{sW}
s_mul_i32 s{sT2}, s{sT2}, 28
s_mul_i32 s{sT3}, s{sKQ}, 448
s_add_u32 s{sT2}, s{sT2}, s{sT3}
s_lshl_b32 s{sT2}, s{sT2}, 2
s_add_u32 s{sT2}, s{sT2}, s{sJJ}
s_lshl_b32 s{sT3}, s{sJJ}, 3
s_add_u32 s{sT3}, s{sT3}, s{sT1}
s_lshl_b32 s{sT3}, s{sT3}, 6
s_add_u32 s{sT3}, s{sT3}, s{sKQ}
s_cmp_lt_u32 s{sW}, 2
s_cselect_b32 s{sT2}, s{sT2}, s{sT3}
s_cselect_b32 s{sT3}, 56, 32
s_cselect_b32 s{sTMP}, s{sW2}, s{sCre}
s_cselect_b32 s{sTMP + 1}, s{sW2 + 1}, s{sCre + 1}
s_cselect_b32 s{sTMP + 2}, s{sW2 + 2}, s{sCre + 2}
s_cmp_eq_u32 s{sW}, 3
s_cselect_b32 s{sTMP}, s{sCim}, s{sTMP}
s_cselect_b32 s{sTMP + 1}, s{sCim + 1}, s{sTMP + 1}""")
elif OPT['pf']:
    late += L(f"""
s_mul_i32 s{sT2}, s{sKQ}, 448
s_mul_i32 s{sT3}, s{sI}, 28
s_add_u32 s{sT2}, s{sT2}, s{sT3}
s_lshl_b32 s{sT2}, s{sT2}, 2
s_add_u32 s{sT2}, s{sT2}, s{sJJ}
s_lshl_b32 s{sT3}, s{sJJ}, 4
s_add_u32 s{sT3}, s{sT3}, s{sI}
s_lshl_b32 s{sT3}, s{sT3}, 5
s_add_u32 s{sT3}, s{sT3}, s{sKQ}
s_cmp_eq_u32 s{sW}, 0
s_cselect_b32 s{sT2}, s{sT2}, s{sT3}
s_cselect_b32 s{sT3}, 56, 16
s_cselect_b32 s{sTMP}, s{sW2}, s{sCre}
s_cselect_b32 s{sTMP + 1}, s{sW2 + 1}, s{sCre + 1}
s_cselect_b32 s{sTMP + 2}, s{sW2 + 2}, s{sCre + 2}
s_cmp_eq_u32 s{sW}, 2
s_cselect_b32 s{sTMP}, s{sCim}, s{sTMP}
s_cselect_b32 s{sTMP + 1}, s{sCim + 1}, s{sTMP + 1}
s_cmp_eq_u32 s{sW}, 3
s_cselect_b32 s{sT3}, 0, s{sT3}""")
if OPT['pf']:
    late += L(f"""s_lshl_b32 s{sT2}, s{sT2}, 8
v_lshrrev_b32 v{t0}, 1, v{vL}
v_and_b32 v{t1}, 1, v{vL}
v_lshlrev_b32 v{t1}, 7, v{t1}
v_lshl_add_u32 v{t0}, v{t0}, 10, v{t1}
v_add_u32 v{t0}, s{sT2}, v{t0}
v_mov_b32 v{t1}, {OOB:#x}
v_cmp_gt_u32 vcc, s{sT3}, v{vL}
v_cndmask_b32 v{PI}, v{t1}, v{t0}, vcc""")
    pf = L(f'buffer_load_dword a248, v{PI}, {srd(sTMP)}, 0 offen')

Z = TT + 2
consts = L(f"""
v_lshlrev_b32 v{NLI}, 16, v{NLI}
v_mul_f32 v{NLI}, {LOG2E:#x}, v{NLI}
v_exp_f32 v{NLI}, v{NLI}
v_lshlrev_b32 v{Z + 2}, 16, v{LR}
v_lshlrev_b32 v{Z + 3}, 16, v{LI}
v_cvt_pk_bf16_f32 v{NLI}, v{NLI}, v{NLI}
v_lshlrev_b32 v{NLI}, 16, v{NLI}
v_mul_f32 v{Z}, v{NLI}, v{Z + 2}
v_mul_f32 v{Z + 1}, v{NLI}, v{Z + 3}
v_mul_f32 v{Z}, {LOG2E:#x}, v{Z}
v_mul_f32 v{Z + 1}, 0xbe22f983, v{Z + 1}""")
consts += cexp(LR, LI, '1.0', Z, Z + 1)
consts += L(f"""
v_mul_f32 v{Z + 4}, v{Z + 2}, v{Z + 2}
v_fmac_f32 v{Z + 4}, v{Z + 3}, v{Z + 3}
v_rcp_f32 v{Z + 4}, v{Z + 4}
v_add_f32 v{Z + 5}, -1.0, v{LR}
v_sub_f32 v{NLI}, 0, v{LI}
v_add_f32 v{Z + 4}, v{Z + 4}, v{Z + 4}
v_mul_f32 v{CR}, v{Z + 5}, v{Z + 2}
v_fmac_f32 v{CR}, v{NLI}, v{Z + 3}
v_mul_f32 v{NCI}, v{Z + 5}, v{Z + 3}
v_fmac_f32 v{NCI}, v{LI}, v{Z + 2}
v_mul_f32 v{CR}, v{CR}, v{Z + 4}
v_mul_f32 v{NCI}, v{NCI}, v{Z + 4}
v_sub_f32 v{NCR}, 0, v{CR}""")
consts += cexp(L16R, L16I, '0x41800000', Z, Z + 1)
consts += cexp(L128R, L128I, '0x43000000', Z, Z + 1)
consts += L(f"""
v_lshrrev_b32 v{Z + 6}, 5, v{vL}
s_lshl_b32 s{sT2}, s{sW}, 1
v_add_u32 v{Z + 6}, s{sT2}, v{Z + 6}
v_cvt_f32_u32 v{Z + 6}, v{Z + 6}
v_mul_f32 v{Z + 7}, 0x41800000, v{Z + 6}
v_sub_f32 v{Z + 6}, 0x40e00000, v{Z + 6}
v_mul_f32 v{Z + 6}, 0x43800000, v{Z + 6}""")
consts += cexp(LSR, LSI, f'v{Z + 7}', Z, Z + 1)
consts += cexp(WR, WI, f'v{Z + 6}', Z, Z + 1)
consts += L(f"""v_lshlrev_b32 v{PR}, 16, v{PR}
v_mul_f32 v{PR}, {LOG2E:#x}, v{PR}
v_and_b32 v{t1}, 31, v{vL}
s_lshl_b32 s{sT1}, s{sW}, 7
s_add_u32 s{sT1}, s{sT1}, {T_B1}
v_lshl_add_u32 v{t1}, v{t1}, 2, s{sT1}
""") + [I(f'ds_write_b32 v{t1}, v{PR}', tok='b1w')]
later = []
Y = SRE
later += L(f"""v_and_b32 v{Y}, 31, v{vL}
    v_lshlrev_b32 v{Y + 1}, 3, v{Y}
    v_add_u32 v{Y + 1}, {T_LB}, v{Y + 1}
    v_lshrrev_b32 v{t0}, 5, v{vL}
    s_lshl_b32 s{sT2}, s{sW}, 11
    s_add_u32 s{sT2}, s{sT2}, {T_H}
    v_lshl_add_u32 v{Y}, v{Y}, 6, s{sT2}
    v_bfe_u32 v{Y + 2}, v{vL}, 1, 2
    v_lshlrev_b32 v{Y + 3}, 1, v{t0}
    v_xor_b32 v{Y + 2}, v{Y + 2}, v{Y + 3}
    v_bfe_u32 v{Y + 3}, v{vL}, 3, 1
    v_xor_b32 v{Y + 2}, v{Y + 2}, v{Y + 3}
    v_lshl_add_u32 v{Y}, v{Y + 2}, 4, v{Y}
    v_xor_b32 v{Y + 3}, 16, v{Y}
    v_bfe_u32 v{Y + 6}, v{vL}, 2, 2
    v_lshrrev_b32 v{t1}, 4, v{vL}
    v_lshl_add_u32 v{Y + 2}, v{t1}, 3, v{Y + 6}
    v_lshl_add_u32 v{Y + 2}, v{Y + 2}, 6, s{sT2}
    v_and_b32 v{t1}, 1, v{vL}
    v_lshl_add_u32 v{Y + 2}, v{t1}, 5, v{Y + 2}
    v_lshrrev_b32 v{t1}, 1, v{vL}
    v_xor_b32 v{t1}, v{t1}, v{vL}
    v_and_b32 v{t1}, 8, v{t1}
    v_lshl_add_u32 v{Y + 2}, v{t1}, 1, v{Y + 2}
    v_bfe_u32 v{t1}, v{vL}, 1, 1
    v_lshl_add_u32 v{Y + 2}, v{t1}, 3, v{Y + 2}
    v_bfe_u32 v{t1}, v{vL}, 4, 1
    v_lshl_add_u32 v{Y + 5}, v{t0}, 2, v{Y + 6}
    v_lshl_add_u32 v{Y + 5}, v{t1}, 4, v{Y + 5}
    v_lshlrev_b32 v{Y + 5}, 7, v{Y + 5}
    s_and_b32 s{sT2}, s{sKQ}, 1
    v_xor_b32 v{t1}, s{sT2}, v{t1}
    v_lshl_add_u32 v{Y + 5}, v{t1}, 6, v{Y + 5}
    v_bfe_u32 v{t1}, v{vL}, 3, 1
    v_lshl_add_u32 v{Y + 5}, v{t1}, 5, v{Y + 5}
    v_and_b32 v{t1}, 3, v{vL}
    v_lshl_add_u32 v{Y + 5}, v{t1}, 3, v{Y + 5}
    v_and_b32 v{Y + 6}, 15, v{vL}
    v_lshrrev_b32 v{t1}, 4, v{vL}
    v_bfe_u32 v{Y + 4}, v{vL}, 1, 3
    v_xor_b32 v{t1}, v{t1}, v{Y + 4}
    v_lshlrev_b32 v{t1}, 4, v{t1}
    v_lshl_add_u32 v{Y + 6}, v{Y + 6}, 7, v{t1}
    s_and_b32 s{sT2}, s{sJJ}, 1
    s_lshl_b32 s{sT2}, s{sT2}, 6
    v_xor_b32 v{Y + 6}, s{sT2}, v{Y + 6}
    s_lshl_b32 s{sT2}, s{sW}, 9
    s_add_u32 s{sT1}, s{sT2}, {T_SEG}
    s_add_u32 s{sT2}, s{sT2}, {T_LB}
    v_lshl_add_u32 v{Y + 7}, v{vL}, 3, s{sT1}
    v_lshl_add_u32 v{Y + 8}, v{vL}, 3, s{sT2}""")
later += park(hw=Y, lbr=Y + 1, hr=Y + 2, hw2=Y + 3, fp0=Y + 5, fp1=Y + 6, seg=Y + 7, lbw=Y + 8)
park2 = []
Y = FACC[0]
park2 += L(f"""s_lshl_b32 s{sT2}, s{sJ}, 4
    s_add_u32 s{sT2}, s{sT2}, s{sI}
    s_lshl_b32 s{sT2}, s{sT2}, 9
    s_add_u32 s{sT2}, s{sT2}, {WS_AG - 512}
    s_cmp_eq_u32 s{sW}, 3
    s_cselect_b32 s{sT2}, s{sT2}, {OOB:#x}
    v_mov_b32 v{Y + 8}, {OOB:#x}
    v_cmp_gt_u32 vcc, 32, v{vL}
    v_add_u32 v{Y}, s{sT2}, v{VL16}
    v_lshrrev_b32 v{t0}, 5, v{vL}
    v_cndmask_b32 v{Y}, v{Y}, v{Y + 8}, vcc
    s_lshl_b32 s{sT2}, s{sW}, 2
    s_add_u32 s{sT2}, s{sT2}, s{sI}
    s_sub_u32 s{sT2}, s{sT2}, 16
    v_lshl_add_u32 v{t0}, v{t0}, 1, s{sT2}
    s_lshl_b32 s{sT2}, s{sJ}, 13
    s_add_u32 s{sT2}, s{sT2}, {WS_AG}
    v_and_b32 v{Y + 9}, 31, v{vL}
    v_lshl_add_u32 v{t1}, v{Y + 9}, 4, s{sT2}
    v_lshl_add_u32 v{Y + 1}, v{t0}, 9, v{t1}
    v_cmp_gt_i32 vcc, 0, v{t0}
    v_add_u32 v{Y + 2}, 512, v{Y + 1}
    v_mov_b32 v{t1}, s{sTAG}
    v_cndmask_b32 v{Y + 1}, v{Y + 1}, v{Y + 8}, vcc
    v_cndmask_b32 v{Y + 3}, v{t1}, 0, vcc
    v_cmp_gt_i32 vcc, -1, v{t0}
    s_lshl_b32 s{sT2}, s{sJJ}, 9
    s_add_u32 s{sT2}, s{sT2}, s{sFLG}
    v_cndmask_b32 v{Y + 2}, v{Y + 2}, v{Y + 8}, vcc
    v_cndmask_b32 v{Y + 4}, v{t1}, 0, vcc
    v_lshl_add_u32 v{Y + 5}, v{Y + 9}, 2, s{sT2}
    v_and_b32 v{t0}, 3, v{vL}
    v_max_u32 v{t0}, 1, v{t0}
    v_xor_b32 v{t0}, s{sJJ}, v{t0}
    v_lshl_add_u32 v{Y + 6}, v{t0}, 9, s{sFLG}
    s_bitcmp1_b32 s{sJJ}, 0
    s_cselect_b32 s{sT2}, {OOB:#x}, 0
    v_add_u32 v{Y + 7}, s{sT2}, v{VL16}
    """)
park2 += park(pfa=PI)
park2 += park(pub=Y, lba0=Y + 1, lba1=Y + 2, lbe0=Y + 3, lbe1=Y + 4, fla=Y + 5, flp=Y + 6, f3o=Y + 7)
params = L(f"""global_load_ushort v{LR}, v{NLI}, s[{pLRE}:{pLRE + 1}]
    global_load_ushort v{LI}, v{NLI}, s[{pLIM}:{pLIM + 1}]
    global_load_ushort v{NLI}, v{NLI}, s[{pLDT}:{pLDT + 1}]
    global_load_ushort v{PR}, v{PR}, s[{pB1}:{pB1 + 1}]""")
nl = len(late) * OPT['lateln'] // 100
while late[nl - 1].mn.startswith(('s_cmp', 'v_cmp', 's_cselect')) or (nl < len(late) and late[nl].mn.startswith('v_cndmask')):
    nl += 1
if nl >= len(late):
    later, late, park2 = later + late + park2, [], []
else:
    later, late = later + late[:nl], late[nl:]
later = mid + later + [I(f'v_accvgpr_write_b32 a{aXE + r}, 0') for r in range(17)]
cuts = [0]
for n in range(1, 7):
    c = n * len(later) // 7
    while later[c].mn.startswith(('s_cselect', 'v_cndmask', 's_nop')) or later[c - 1].mn.startswith('v_cmp'):
        c += 1
    cuts.append(c)
cuts.append(len(later))

touch_w = L(f'v_mov_b32 v{PI}, 0') + [
    I(f'buffer_load_dword a{56 + n}, v{PI}, {srd(r)}, 0 offen') for n, r in enumerate((sW1, sCre, sCim, sW2))]
touch_o = L(f"""v_min_u32 v{PR}, {WS_SIZE >> 21}, v{vL}
    v_lshlrev_b32 v{PR}, 21, v{PR}
    v_add_u32 v{PR}, 0x800, v{PR}
    buffer_load_dword a60, v{PR}, {srd(sWS)}, 0 offen
    buffer_load_dword a61, v{PR}, {srd(sOUT)}, 0 offen""")
if OPT['tlb'] in (1, 3, 4):
    P += touch_w
if OPT['tlb'] == 1:
    P += touch_o
P += rx(2, 2) + [I('s_waitcnt lgkmcnt(0)')]
for s in range(8):
    P.append(Wait(f'x{s}'))
    if s == 0:
        P += stamp('x0')
    for q in range(4):
        P.append(I(f'ds_read_b128 {vr(X + 16 * s + 4 * q, 4)}, v{ASc[q]} offset:{(s & 3) * SLOT}', lds_r=(s & 3) + 1,
                   tok=f'xr{s}' if q == 3 else None))
    nxt = rg(s - 5) if s >= 5 else rx(s + 3, (s + 3) & 3) + (params if s == OPT['parat'] else [])
    piece = later[cuts[s]:cuts[s + 1]] if s < 7 else []
    P += nxt + piece if OPT['xfirst'] else piece + nxt
    for r in range(16):
        P.append(I(f'v_dot2c_f32_bf16 v{SUM[r & 1]}, s{sONES}, v{X + 16 * s + r}'))
        P.append(I(f'v_dot2c_f32_bf16 v{SQ[r & 1]}, v{X + 16 * s + r}, v{X + 16 * s + r}'))
P += stamp('x7')
P += L(f"""
v_add_f32 v{SUM[0]}, v{SUM[0]}, v{SUM[1]}
v_add_f32 v{SQ[0]}, v{SQ[0]}, v{SQ[1]}
v_mov_b32 v{SUM[1]}, v{SUM[0]}
v_mov_b32 v{SQ[1]}, v{SQ[0]}
v_permlane32_swap_b32 v{SUM[1]}, v{SUM[0]}
v_permlane32_swap_b32 v{SQ[1]}, v{SQ[0]}
v_add_f32 v{SUM[0]}, v{SUM[0]}, v{SUM[1]}
v_add_f32 v{SQ[0]}, v{SQ[0]}, v{SQ[1]}
v_mul_f32 v{SUM[0]}, 0x3b000000, v{SUM[0]}
v_mul_f32 v{SQ[0]}, 0x3b000000, v{SQ[0]}
v_fma_f32 v{SQ[0]}, -v{SUM[0]}, v{SUM[0]}, v{SQ[0]}
v_max_f32 v{SQ[0]}, 0, v{SQ[0]}
v_cvt_pk_bf16_f32 v{t0}, v{SUM[0]}, v{SQ[0]}
v_lshlrev_b32 v{VNM}, 16, v{t0}
v_sub_f32 v{SIM}, 0, v{VNM}
v_sub_f32 v{SIM + 1}, 0, v{VNM}
v_sub_f32 v{SIM + 2}, 0, v{VNM}
v_sub_f32 v{SIM + 3}, 0, v{VNM}
""")

back = lambda o: [I(f'v_cvt_pk_bf16_f32 v{X + 2 * o + e}, v{FACC[0] + 4 * (o & 3) + 2 * e}, '
                    f'v{FACC[0] + 4 * (o & 3) + 2 * e + 1}') for e in range(2)]
items = [[I(f'v_mfma_f32_4x4x4_16b_bf16 {vr(FACC[0] + 4 * (n & 3), 4)}, {vr(TT, 2)}, {vr(X + 2 * n, 2)}, {vr(SIM, 4)}')]
         + (back(n - 2) if n >= 2 else []) for n in range(64)]
fill = L(f"""
v_and_b32 v{t0}, 0xffff0000, v{t0}
v_add_f32 v{t0}, 0x3727c5ac, v{t0}
v_cvt_pk_bf16_f32 v{t0}, v{t0}, v{t0}
v_lshlrev_b32 v{t0}, 16, v{t0}
v_sqrt_f32 v{t0}, v{t0}
v_and_b32 v{t1}, 3, v{vL}
v_cvt_pk_bf16_f32 v{t0}, v{t0}, v{t0}
v_lshlrev_b32 v{t0}, 16, v{t0}
v_rcp_f32 v{VRS}, v{t0}
v_bfe_u32 v{t2}, v{vL}, 3, 2
v_lshl_add_u32 v{t1}, v{t2}, 2, v{t1}
v_bfe_u32 v{t2}, v{vL}, 2, 1
v_lshl_add_u32 v{t1}, v{t2}, 4, v{t1}
s_lshl_b32 s{sT1}, s{sW}, 8
s_add_u32 s{sT1}, s{sT1}, {T_STAT}
v_lshl_add_u32 v{t1}, v{t1}, 2, s{sT1}
v_mul_f32 v{RL2}, {LOG2E:#x}, v{VRS}
ds_write_b32 v{t1}, v{VNM}
""")
fill.append(I(f'ds_write_b32 v{t1}, v{VRS} offset:128', tok='tabw'))
LA_S, LA_F = 3, OPT['laf']


def s_addr(slot):
    return [I(f'v_add_u32 v{ASc[q]}, {slot * SLOT}, v{AS[q]}') for q in range(4)]


def s_read(s, ri):
    return I(f'ds_read_b128 {ar(aS + 8 * (s & 3) + 4 * ri, 4)}, v{ASc[s & 3]} offset:{(s >> 3) * SLOT + (2 * ((s >> 2) & 1) + ri) * 4096}',
             lds_r=G_SLOT[s >> 3])


def f_addr(b):
    if b < 2:
        return [I(f'v_xor_b32 v{FAc}, {64 * b}, v{FA0}')]
    if b == 3:
        return [I(f'v_xor_b32 v{FAc}, 64, v{FAc}')]
    return [I(f'v_xor_b32 v{FAc}, s{sFSEL}, v{FA0}'), I(f'v_add_u32 v{FAc}, {G_SLOT[8] * SLOT}, v{FAc}')]


def f_read(b, s):
    out = f_addr(b) if s == 0 else []
    k = (32 * b + s) & 7
    for u in range(2):
        out.append(I(f'ds_read_b64_tr_b16 {ar(aF + 4 * k + 2 * u, 2)}, v{FAc} '
                     f'offset:{(s >> 3) * SLOT + ((s >> 1) & 3) * 4096 + (s & 1) * 2048 + u * 512}',
                     lds_r=G_SLOT[(4 if b < 2 else 8) + (s >> 3)]))
    return out


DSP = OPT['dsp']
OPT['dsp'] = OPT['dspc']
pin = pins((OPT['g3'], rg(3)), *([(OPT['g3'] + 4 * OPT['dspc'], rg(4))] if OPT['sch'] >= 2 else []),
           (54, s_addr(G_SLOT[0]) + stamp('c27') + BAR('G0', 'G1', 'tabw', 'zero') + stamp('b0')))
OPT['dsp'] = DSP
for k in range(LA_S):
    pin[55 + 2 * k] = [s_read(k, 0), s_read(k, 1)]
P += weave(items, fill, pin, 0, 40) + back(62) + back(63)

S_items = []
for s in range(32):
    for ri, acc in ((0, SRE), (1, SIM)):
        it = [mfma(vr(acc, 16), vr(X + 4 * s, 4), ar(aS + 8 * (s & 3) + 4 * ri, 4), vr(acc, 16) if s else '0')]
        n = s + LA_S
        if n < 32:
            it.append(s_read(n, ri))
        S_items.append(it)
for k in range(LA_F):
    S_items[64 - LA_F + k] += f_read(0, k)
F_items = []
for b in range(4):
    its = []
    for s in range(32):
        acc = vr(FACC[b & 1], 16)
        it = [mfma(acc, ar(aF + 4 * ((32 * b + s) & 7), 4), vr(X + 4 * s, 4), acc if s else '0')]
        n = s + LA_F
        if n < 32:
            it += f_read(b, n)
        elif b < 3:
            it += f_read(b + 1, n - 32)
        its.append(it)
    F_items.append(its)

FLA, FLP = VNM, VRS
fill = late + park2 + consts + (pf if OPT['pfat'] < 0 else []) + L(f"""
v_lshrrev_b32 v{t0}, 3, v{vL}
v_bfe_u32 v{t1}, v{vL}, 4, 1
v_lshlrev_b32 v{t1}, 1, v{t1}
v_xor_b32 v{t1}, v{t1}, v{vL}
v_and_b32 v{t1}, 7, v{t1}
v_lshlrev_b32 v{t1}, 4, v{t1}
v_lshl_add_u32 v{XG[0]}, v{t0}, 10, v{t1}
v_add_u32 v{XG[1]}, {7 * 1024}, v{XG[0]}
v_xor_b32 v{XG[2]}, 64, v{XG[0]}
v_add_u32 v{XG[3]}, {21 * 1024}, v{XG[2]}
v_add_u32 v{XG[2]}, {14 * 1024}, v{XG[2]}
v_lshrrev_b32 v{t2}, 5, v{vL}
v_lshlrev_b32 v{t2}, 6, v{t2}
v_add_u32 v{t2}, {TB}, v{t2}
s_lshl_b32 s{sT2}, s{sW}, 8
v_add_u32 v{t1}, s{sT2}, v{t2}""")
fill += [I(f'ds_read_b128 {vr(FACC[1] + 4 * q, 4)}, v{t1} offset:{128 + 16 * q}') for q in range(4)]
xa, xb = TT + 14, TT + 15
ROW = lambda n: 16 * ((n >> 2) & 1) + 8 * (n >> 3) + (n & 3)
xe = L(f"""v_and_b32 v{xa}, 31, v{vL}
    v_lshrrev_b32 v{xb}, 5, v{vL}
    v_lshlrev_b32 v{xb}, 12, v{xb}
    v_lshl_add_u32 v{xb}, v{xa}, 1, v{xb}
    s_lshl_b32 s{sONES}, s{sJJ}, 2
    s_add_u32 s{sONES}, s{sONES}, s{sKQ}
    s_lshl_b32 s{sONES}, s{sONES}, 6
    v_lshl_add_u32 v{xa}, v{xa}, 1, s{sONES}
    s_add_u32 s{sXB}, s{sXB}, s{sONES}
    global_load_short_d16_hi a{aXE + 16}, v{xa}, s[{pDSK}:{pDSK + 1}]""")
for r in range(16):
    if r % 4 == 0:
        xe.append(I(f's_add_u32 s{sONES}, s{sXB}, {1024 * ROW(r)}'))
    xe.append(I(f'buffer_load_short_d16_hi a{aXE + r}, v{xb}, {srd(sX)}, s{sONES} offen offset:{1024 * (r & 3)}'))
sAO = dict(A={1: 8, 2: 9, 3: 10}, H={1: 11, 2: 12, 3: 13}, B={1: 14, 2: 15})
for e in (1, 2, 3):
    fill += L(f"""s_xor_b32 s{sT2}, s{sJJ}, {e}
        s_lshl_b32 s{sT2}, s{sT2}, 12
        s_add_u32 s{sAO['H'][e]}, s{sT2}, s{sAS}
        s_add_u32 s{sAO['A'][e]}, s{sAO['H'][e]}, s{sT2}
        s_add_u32 s{sAO['H'][e]}, s{sAO['H'][e]}, {28 * 1024}""")
for e in (1, 2):
    fill += L(f's_lshl_b32 s{sT2}, s{sPB[e]}, 12\ns_add_u32 s{sAO["B"][e]}, s{sT2}, s{sAS}')
if OPT['tlb'] in (2, 3):
    fill = touch_o + fill
if OPT['fw']:
    fill += L(f"""s_lshl_b32 s{sT2}, s{sJJ}, 9
        s_add_u32 s{sT2}, s{sT2}, s{sFLG}
        v_lshlrev_b32 v{t0}, 3, v{vL}
        v_mov_b32 v{TT}, 0
        v_mov_b32 v{TT + 1}, 0
        buffer_store_dwordx2 {vr(TT, 2)}, v{t0}, {srd(sWS)}, s{sT2} offen sc1""")
if OPT['xw'] == 1:
    fill += L(f'v_lshlrev_b32 v{t0}, 2, v{vL}')
    for b in (1, 2, 3):
        fill += L(f"""buffer_store_dwordx4 {vr(TT, 4)}, v{VL16}, {srd(sWS)}, s{sXO[b]} offen sc1
            buffer_store_dwordx4 {vr(TT, 4)}, v{VL16}, {srd(sWS)}, s{sXO[b]} offen offset:1024 sc1
            buffer_store_dword v{vL}, v{t0}, {srd(sWS)}, s{sXO[b]} offen offset:2048 sc1""")
elif OPT['xw']:
    fill += L(f"""v_lshlrev_b32 v{t0}, 7, v{vL}
        v_min_u32 v{t0}, {59 * 128}, v{t0}
        buffer_load_dword a60, v{t0}, {srd(sWS)}, s{sXO[0]} offen {('', '', 'sc1', 'sc1 nt')[OPT['xw']]}""")
if not OPT['xel']:
    cut = len(fill) * OPT['xes'] // 100
    fill, xe = fill[:cut] + merge(fill[cut:], xe), []
OPT['dsp'] = OPT['dsps']
srounds = [(2, rg(4)), (14, rg(5)), (28, rg(6)), (42, rg(7))] if OPT['sch'] == 1 else \
    [(2, rg(5)), (14, rg(6)), (28, rg(7)), (42, rg(8))]
pin = pins(*srounds, (24, BAR('G2', 'G3')), (63 - LA_F, stamp('s59') + BAR('G4', 'G5', 'b1w') + stamp('b2')))
OPT['dsp'] = DSP
P += weave(fine('S', S_items, 3), fill, pin, 0, 62 - LA_F)

Q = FACC[1]
V = lambda t: SRE + t if t % 2 == 0 else SIM + t - 1
AGR, AGI = VRS, t3
fill = []
coef = []
for q in range(8):
    for h in range(2):
        r = 2 * q + h
        fill += L(f"""v_mul_f32 v{TT + 2 * h}, v{SRE + r}, v{CR}
            v_mul_f32 v{TT + 2 * h + 1}, v{SRE + r}, v{NCI}
            v_fmac_f32 v{TT + 2 * h}, v{SIM + r}, v{NCI}
            v_fmac_f32 v{TT + 2 * h + 1}, v{SIM + r}, v{NCR}""")
    for h in range(2):
        r = 2 * q + h
        fill += L(f"""v_mul_f32 v{V(r)}, v{TT + 2 * h}, v{Q + r}
            v_mul_f32 v{V(r) + 1}, v{TT + 2 * h + 1}, v{Q + r}""")
    coef.append(fill)
    fill = []
step = lambda d, p, c: L(f"""v_pk_fma_f32 {vr(d, 2)}, {vr(p, 2)}, {vr(LR, 2)}, {vr(c, 2)} op_sel_hi:[1,0,1]
    v_pk_fma_f32 {vr(d, 2)}, {vr(p, 2)}, {vr(NLI, 2)}, {vr(d, 2)} op_sel:[1,0,0] op_sel_hi:[0,1,1]""")
horner = [step(AGR if r & 1 else TT + 4, V(0) if r == 1 else (TT + 4 if r & 1 else AGR), V(r)) for r in range(1, 16)]
fill = fetch(seg=t1) + fill + L(f's_mov_b32 s{sKC[0]}, {M2LN2:#x}')
fill.append(I(f'ds_write_b64 v{t1}, {vr(AGR, 2)} offset:{7 * 256}', tok='segw'))
frounds = [(1, rg(8)), (12, rg(9))] if OPT['sch'] == 1 else [(1, rg(9)), (12, rg(10))] if OPT['sch'] == 2 else \
    [(0, rg(9)), (OPT['g10'], rg(10)), (2 * OPT['g10'], rg(11))]
staged_names = list(STAGE)
pin = pins(*frounds, (15 - LA_F, BAR('G6', 'G7')), (31, BAR('segw')),
           *[(22, stage_load(n)) for n in staged_names[:1]])
if 0 <= OPT['pfat'] < 32:
    pin.setdefault(OPT['pfat'], []).extend(pf)
NB = OPT['nb0']
per = 8 // NB
plan = [(1, [], [])]
for n in range(NB):
    lo, hi = max(2 * per * n - 1, 0), 2 * per * (n + 1) - 1
    plan.append((1 + (n + 1) * 28 // NB, sum(coef[per * n:per * (n + 1)], []), sum(horner[lo:hi], [])))
P += staged(fine('F0', F_items[0], 3), pin, plan + [(30, fill, []), (31, [], [])])
P += stamp('F0')

E = ASc[0]
R0, R1, T0_, T1_ = TT + 8, TT + 12, ASc[0], ASc[2]
h0, h1 = mish_stages(0, 0), mish_stages(0, 1)
rd = lambda dst, k: I(f'ds_read2_b64 {vr(dst, 4)}, v{t1} offset0:{32 * k} offset1:{32 * k + 32}')
publish = cmul_add(E, E + 2, L16R, L16I, PR, PI, AGR, AGI) + fetch(pub=t1) + L(f"""v_mov_b32 v{E + 1}, s{sTAG}
    v_mov_b32 v{E + 3}, s{sTAG}
    buffer_store_dwordx4 {vr(E, 4)}, v{t1}, {srd(sWS)}, 0 offen sc1""")
frounds = [(0, rg(10)), (8, rg(11))] if OPT['sch'] == 1 else [(0, rg(11))] if OPT['sch'] == 2 else []
pin = pins(*frounds, (OPT['wa0'], rw('WA0')), (31 - LA_F, BAR('G8', 'G9', 'G10', 'G11')),
           *zip((8, 24), map(stage_load, staged_names[1:3])))
if OPT['pfat'] >= 32:
    pin.setdefault(OPT['pfat'] - 32, []).extend(fetch(pfa=FAd) + L(pf[0].text.replace(f'v{PI}', f'v{FAd}')))
GA = [int(x) for x in str(OPT['stg1']).split('.')]
P += staged(fine('F0', F_items[1], 3), pin, [
    (GA[0], [rd(R0, 0), rd(R1, 2)] + h0['rd'], h0['A']),
    (GA[1], h0['ex'], cmul_pk(PR, L16R, R0, R0 + 2) + cmul_pk(T0_, L16R, PR, R1) + cmul_pk(PR, L16R, T0_, R1 + 2) + h0['B']),
    (GA[2], [rd(R0, 4), I(f'ds_read_b64 {vr(R1, 2)}, v{t1} offset:{6 * 256}')] + h0['rc'],
     cmul_pk(T0_, L16R, PR, R0) + cmul_pk(T1_, L16R, T0_, R0 + 2) + cmul_pk(PR, L16R, T1_, R1) + h0['C']),
    (GA[3], h1['rd'] + publish + h0['fin'], h1['A']),
    (GA[4], h1['ex'], h1['B']),
    (GA[5], h1['rc'], h1['C']),
    (31, h1['fin'], [])])
P += stamp('F1')

LBA = [CR, NCI]
LBE = [NCR, L16R]
LBD = [ASc[0], QG[0]]
FLV = L16I
lb_loads = '\n'.join(f'buffer_load_dwordx4 {vr(LBD[e], 4)}, v{LBA[e]}, {srd(sWS)}, 0 offen sc1' for e in range(2))
lb_setup = fetch(lba0=LBA[0], lba1=LBA[1], lbe0=LBE[0], lbe1=LBE[1])


def flag_store(stage, toks):
    out = [Wait(*toks), I(f'buffer_store_dword v{FLV}, v{FLA}, {srd(sWS)}, 0 offen offset:{128 * stage} sc1')]
    if OPT['ppf']:
        so = (sFST[0], sSST, sFST[2])[stage]
        vpf = L128R if stage else t3
        out = [I(f'v_lshlrev_b32 v{vpf}, {6 if stage < 2 else "s%d" % sSEL[1]}, v{vL}')] + out
        out.append(I(f'buffer_load_dword a{60 + (stage & 1)}, v{vpf}, {srd(sWS)}, s{so} offen sc1'))
    return out


def flag_load(stage):
    return f'buffer_load_dword v{t3}, v{FLP}, {srd(sWS)}, 0 offen offset:{128 * stage} sc1'


flag_check = f'v_cmp_ne_u32 vcc, s{sTAG}, v{t3}'
lb_check = f"""v_bitop3_b32 v{t0}, v{LBD[0] + 1}, v{LBD[0] + 3}, v{LBE[0]} bitop3:0x7e
    v_bitop3_b32 v{t1}, v{LBD[1] + 1}, v{LBD[1] + 3}, v{LBE[1]} bitop3:0x7e
    v_or_b32 v{t0}, v{t0}, v{t1}
    v_cmp_ne_u32 vcc, 0, v{t0}"""
lb_part = stamp('lb0') + poll('lb', lb_loads, lb_check) + stamp('lb1')
lb_part += cmul_add(LBD[0] + 1, LBD[0] + 3, L128R, L128I, LBD[0], LBD[0] + 2, LBD[1], LBD[1] + 2)
lb_part += cmul_add(LBD[1], LBD[1] + 1, WR, WI, LBD[0] + 1, LBD[0] + 3)
lb_part += fetch(lbw=t1)
lb_part.append(I(f'ds_write_b64 v{t1}, {vr(LBD[1], 2)}', tok='lbw'))
HW, HR, HB = ASc[0], ASc[1], FACC[1]
HW2, HR2 = WR, WI
tail_addr = fetch(lbr=ASc[3], fla=FLA, flp=FLP) + L(f'v_mov_b32 v{FLV}, s{sTAG}')
lb_reads = [I(f'ds_read2_b64 {vr(HB + 4 * q, 4)}, v{ASc[3]} offset0:{64 * q} offset1:{64 * q + 32}') for q in range(4)]
scan = [I(f'v_pk_add_f32 {vr(HB + a, 2)}, {vr(HB + a, 2)}, {vr(HB + b_, 2)}')
        for a, b_ in ((0, 2), (4, 6), (8, 10), (12, 14), (0, 4), (8, 12), (0, 8))]
scan += cmul_add(L128R, L128I, LSR, LSI, HB, HB + 1, PR, PI)
pack = lambda q: L(f"""v_cvt_pk_bf16_f32 v{SRE + q}, v{V(2 * q)}, v{V(2 * q + 1)}
    v_cvt_pk_bf16_f32 v{SIM + q}, v{V(2 * q) + 1}, v{V(2 * q + 1) + 1}""")
for r in range(16):
    prev = vr(L128R if r == 0 else V(r - 1), 2)
    scan += L(f"""v_pk_fma_f32 {vr(V(r), 2)}, {prev}, {vr(LR, 2)}, {vr(V(r), 2)} op_sel_hi:[1,0,1]
        v_pk_fma_f32 {vr(V(r), 2)}, {prev}, {vr(NLI, 2)}, {vr(V(r), 2)} op_sel:[1,0,0] op_sel_hi:[0,1,1]""")
    if r >= 2 and r % 2 == 0 and OPT['pk_in']:
        scan += pack(r // 2 - 1)
HRS = AS
transp = fetch(hw=HW, hw2=HW2, hr=HRS[0]) + [I(f'v_xor_b32 v{HRS[n]}, {16 * n}, v{HRS[0]}') for n in (1, 2, 3)] + sum((pack(q) for q in range(7 if OPT['pk_in'] else 0, 8)), [])
for ri in range(2):
    transp += [I(f'ds_write_b128 v{(HW, HW2)[h]}, {vr((SRE, SIM)[ri] + 4 * h, 4)}') for h in range(2)]
    for fr in range(2):
        for u in range(2):
            transp.append(I(f'ds_read_b64_tr_b16 {ar(aOS + 8 * ri + 4 * fr + 2 * u, 2)}, v{HRS[2 * u + fr]} offset:{256 * u}'))
stH = [I(f'buffer_store_dwordx4 {ar(aOS + 4 * q, 4)}, v{VL16}, {srd(sWS)}, s{sSST} offen offset:{1024 * q} sc1',
         tok='stH' if q == 3 else None) for q in range(4)]
h0, h1 = mish_stages(1, 0), mish_stages(1, 1)
g0, g1 = mish_stages(2, 0), mish_stages(2, 1)
pin = pins((0, rw('CR0')), (8, rw('CI0')), (18, rw('WA1')), (29, BAR('lbw') + lb_reads + g0['rd'] + g1['rd']), (OPT['lbl'], L(lb_loads)),
           *[(25, stage_load(n)) for n in staged_names[3:4]])
GB = [int(x) for x in str(OPT['stg2']).split('.')]
P += staged(fine('F2', F_items[2], 2), pin, [
    (GB[0], h0['rd'] + h1['rd'] + lb_setup, h0['A']),
    (GB[1], h0['ex'], h0['B'] + h1['A']),
    (GB[2], h0['rc'] + h1['ex'], h0['C'] + h1['B']),
    (GB[3], h0['fin'] + h1['rc'], h1['C']),
    (28, h1['fin'] + lb_part + tail_addr, []),
    (31, [], [])])
P += stamp('F2')
burst = scan + g0['A']
if OPT['fas'] < 0:
    burst = burst[:OPT['fas']] + flag_store(0, ['stF0', 'stF1']) + burst[OPT['fas']:]
if OPT['fine'] == 'T':
    for n in range(len(burst) - 12, 0, -12):
        burst = burst[:n] + stamp(f'g{n}') + burst[n:]
P += burst
P += stamp('scan')


FP0, CP0, FPc = [NLI, LI, LR, CR], [NCI, NCR], QG
PA = OPT['pa']
p3_setup = fetch(fp0=FP0[0], fp1=CP0[0], f3o=ASc[2]) + [I(f'v_xor_b32 v{FP0[n]}, {32 * n}, v{FP0[0]}') for n in (1, 2, 3)]
p3_setup.append(I(f'v_xor_b32 v{CP0[1]}, 64, v{CP0[0]}'))
hs = OPT['hs']
lead = [i_ for i_ in transp if i_.kind != 'ds']
tds = transp[len(lead):]
P += lead
tpins = [(0, tds[0:1]), (1, tds[1:2]), (2, tds[2:4]), (3, tds[4:6]), (4, tds[6:7]), (5, tds[7:8] + stH[0:1]),
         (6, tds[8:10]), (7, tds[10:12] + stH[1:2]), (7 + hs, stH[2:3]), (7 + 2 * hs, stH[3:4])]

steps = ([('WA0', x, 'own') for x in range(4)]
         + [(n, x, 'own') for n in ('CR0', 'CI0') for x in range(2)]
         + [(f'WA{e}', x, 'A') for e in (1, 2, 3) for x in range(4)]
         + [(n, x, 'H') for n in ('CR0', 'CI0') for x in (2, 3)]
         + [(n, x, 'H') for n in ('CR1', 'CI1') for x in range(4)]
         + [('WB0', x, 'own') for x in range(4)]
         + [(f'WB{e}', x, 'B') for e in (1, 2) for x in range(4)])
deferred = [k for k, st in enumerate(steps) if st[2] != 'own']
A_REGS = ([192 + 4 * n for n in range(16)] + [SRE + 4 * n for n in range(8)]
          + [FACC[0] + 4 * n for n in range(4)] + [TT + 4 * n for n in range(4)])
ACC = [128, 144, 160, 176]
cur_addr = {}


def a_frag(k):
    name, x, src = steps[k]
    if src != 'own':
        return vr(A_REGS[deferred.index(k)], 4)
    if name == 'WA0':
        return ar(aOF + 4 * x, 4)
    if name == 'WB0':
        return ar(aOF + 16 + 4 * x, 4) if x < 2 else vr(FACC[1] + 4 * (x - 2), 4)
    return ar(aOS + 8 * (name[1] == 'I') + 4 * x, 4)


def a_load(k):
    name, x, src = steps[k]
    e = int(name[2])
    if name[0] == 'C':
        so, off = sAO['H'][2 * e + (x >> 1)], 2048 * (name[1] == 'I') + 1024 * (x & 1)
    else:
        so, off = sAO[name[1]][e], 1024 * x
    return [I(f'buffer_load_dwordx4 {a_frag(k)}, v{VL16}, {srd(sWS)}, s{so} offen offset:{off} sc1')]


pin = pins((PA, rw2('WA2')), (PA + 8, BAR()), (PA + 9, rw2('WA3')), (PA + 17, BAR()), (PA + 18, rw2('CR1')),
           (OPT['fal'], L(flag_load(0))), (30, BAR('WA0', 'CR0', 'CI0', 'WA1')), *tpins)
if OPT['fhs'] >= 0:
    pin.setdefault(OPT['fhs'], []).extend(flag_store(1, ['stH']))
if OPT['fas'] >= 0:
    pin.setdefault(OPT['fas'], []).extend(flag_store(0, ['stF0', 'stF1']))
m3 = mish_pk(3, ASc[2])
GC = [int(x) for x in str(OPT['stg3']).split('.')]
P += staged(fine('F3', F_items[3], 2), pin, [
    (GC[0], g0['ex'], g0['B'] + g1['A']),
    (GC[1], g0['rc'] + g1['ex'], g0['C'] + g1['B']),
    (GC[2], g0['fin'] + g1['rc'], g1['C']),
    (29, g1['fin'][:4] + m3[:4] + g1['fin'][4:] + p3_setup, []),
    (31, [], [])])
P += stamp('F3')

m3 = m3[4:]
st0 = 40
early = sum((a_load(k) for k in range(8, 8 + OPT['nea'])), [])
fac = st0 - OPT['fac']
TAIL0 = len(P)
P += m3[:fac] + (flag_store(1, ['stH']) if OPT['fhs'] == -1 and not OPT['fhp'] else [])
P += stamp('fa0') + poll('fa', flag_load(0), flag_check) + stamp('fa1')
tl = merge(m3[fac:st0], early) + (flag_store(1, ['stH']) if OPT['fhp'] else []) + m3[st0:]
TAIL1 = len(P) + len(tl) - len(m3) + st0
if OPT['fine'] == 'T':
    for n in range(len(tl) - 12, 0, -12):
        tl = tl[:n] + stamp(f'gt{n}') + tl[n:]
P += tl
P += stamp('tail')

XE, ME = 192, LSR
ep_setup = L(f"""v_lshrrev_b32 v{t1}, 5, v{vL}
    s_lshl_b32 s{sT2}, s{sW}, 8
    s_add_u32 s{sT2}, s{sT2}, {T_STAT}
    v_lshl_add_u32 v{VLN2}, v{t1}, 4, s{sT2}
    v_lshlrev_b32 v{FA0}, 13, v{t1}
    v_and_b32 v{t0}, 31, v{vL}
    v_lshl_add_u32 v{FA0}, v{t0}, 2, v{FA0}""")
VL4 = ASc[0]
ep_setup = L(f'v_lshlrev_b32 v{VL4}, 2, v{vL}') + ep_setup
base_calc = [I(f'v_accvgpr_read_b32 v{RL2}, a{aXE + 16}')]
for qt in range(4):
    base_calc += [I(f'ds_read_b128 {vr(ME, 4)}, v{VLN2} offset:{4 * ROW(4 * qt)}', hoist=True),
                  I(f'ds_read_b128 {vr(ME + 4, 4)}, v{VLN2} offset:{128 + 4 * ROW(4 * qt)}', hoist=True)]
    rs = range(4)
    base_calc += [I(f'v_accvgpr_read_b32 v{XE + 4 * qt + r}, a{aXE + 4 * qt + r}') for r in rs]
    base_calc += [I(f'v_sub_f32 v{ME + r}, v{XE + 4 * qt + r}, v{ME + r}') for r in rs]
    base_calc += [I(f'v_mul_f32 v{ME + r}, v{ME + r}, v{ME + 4 + r}') for r in rs]
    base_calc += [I(f'v_fmac_f32 v{XE + 4 * qt + r}, v{ME + r}, v{RL2}') for r in rs]

def checksum(dst, src, last):
    return [f'v_bitop3_b32 v{dst}, v{src}, v{src + 1}, {last} bitop3:0x96'] + \
           [f'v_bitop3_b32 v{dst}, v{src + e}, v{src + e + 1}, v{dst} bitop3:0x96' for e in (2, 4, 6)]


def send(b):
    A = ACC[b]
    out = []
    for q in range(2):
        out += [I(f'v_cvt_pk_bf16_f32 v{A + e}, v{A + 2 * e}, v{A + 2 * e + 1}') for e in range(4 * q, 4 * q + 4)]
        out.append(I(f'buffer_store_dwordx4 {vr(A + 4 * q, 4)}, v{VL16}, {srd(sWS)}, s{sXO[b]} offen '
                     f'offset:{1024 * q} sc1'))
    out += [I(c) for c in checksum(A + 8, A, f's{sTAG}')]
    out.append(I(f'buffer_store_dword v{A + 8}, v{VL4}, {srd(sWS)}, s{sXO[b]} offen offset:2048 sc1'))
    return out


def w_read1(k, b, dst):
    name, x, src = steps[k]
    slot = W_SLOT[name]
    out = []

    def address(cur, base):
        if slot < 4:
            return base, slot * SLOT
        if not 0 <= slot - cur_addr.get(cur, -9) < 4:
            cur_addr[cur] = 4 if slot == 4 else 5
            out.append(I(f'v_add_u32 v{cur}, {cur_addr[cur] * SLOT}, v{base}'))
        return cur, (slot - cur_addr[cur]) * SLOT

    if name[0] == 'C':
        a, off = address(AS[x >> 1], CP0[x >> 1])
        return out + [I(f'ds_read_b128 {ar(dst, 4)}, v{a} offset:{off + 4096 * b + 2048 * (x & 1)}', lds_r=slot)]
    var = 2 * (b & 1) + (x & 1)
    a, off = address(FPc[var], FP0[var])
    return out + [I(f'ds_read_b64_tr_b16 {ar(dst + 2 * u, 2)}, v{a} '
                    f'offset:{off + 8192 * (x >> 1) + 4096 * (b >> 1) + 1024 * u}', lds_r=slot) for u in range(2)]


RX = {1: ACC[1], 2: ACC[2], 3: ACC[3]}


def recv(b):
    so = sXO[0] if b == 1 else sSEL[b]
    rl = [f'buffer_load_dwordx4 {vr(RX[b] + 4 * q, 4)}, v{VL16}, {srd(sWS)}, s{so} offen offset:{1024 * q} sc1' for q in range(2)]
    rl.append(f'buffer_load_dword v{RX[b] + 8}, v{VL4}, {srd(sWS)}, s{so} offen offset:2048 sc1')
    return '\n'.join(rl)


pre = L(f"""s_lshl_b32 s{sXB}, s{sXB}, 1
    s_mov_b32 s{sKC[0]}, 0x00003f80
    s_mov_b32 s{sKC[1]}, 0x3f800000""")
E3 = OPT['e3']
D0 = OPT['d0']
seq = [(k, b) for k in range(D0) for b in (1, 2, 3, 0)] + [(k, b) for k in range(D0, E3) for b in (1, 2, 3)]
seq += [(k, b) for k in range(E3, 36) for b in (1, 2)]
seq += [(k, b) for b in (1, 2) for k in range(36, 44)]
own8 = [(k, 0) for k in range(8, 12)]
seq += (own8 if OPT['o8'] else []) + [(k, 3) for k in range(E3, 44)] + ([] if OPT['o8'] else own8)
seq += [(k, 0) for k in list(range(D0, 8)) + list(range(12, 44))]
at = {kb: n for n, kb in enumerate(seq)}
done_at = {b: at[43, b] for b in (1, 2, 3)}
KEEP = {(k, 0): aWO + 4 * (k - 8) for k in range(8, 12)}
KEEP.update({(k, 0): aWO + 16 + 4 * k for k in range(D0, 4)})
reads = sorted((kb for kb in seq), key=lambda kb: at[kb[0], 3] + 0.5 if kb in KEEP else at[kb])
RING = 12
where, nring = {}, 0
for kb in reads:
    if kb in KEEP:
        where[kb] = KEEP[kb]
    else:
        where[kb] = aP + 4 * (nring % RING)
        nring += 1
LA_J = OPT['laj']
items = []
rd = 0
seen = set()
for n, (k, b) in enumerate(seq):
    pre_rd = []
    while rd < len(reads) and (at[reads[rd][0], 3] if reads[rd] in KEEP else at[reads[rd]]) <= n + LA_J:
        pre_rd += w_read1(*reads[rd], where[reads[rd]])
        rd += 1
    mm = []
    for a in range(2):
        d = vr(ACC[b] + 8 * a + 4 * (k & 1), 4)
        mm.append(I(f'v_mfma_f32_16x16x32_bf16 {d}, {a_frag((k & ~1) + a)}, {ar(where[k, b], 4)}, '
                    f'{d if (b, k & 1) in seen else 0}'))
    seen.add((b, k & 1))
    if n == 0:
        if OPT['wmix']:
            end = len(P) - (PROF in (1, 2)) - 10
            P = P[:TAIL1] + merge(P[TAIL1:end], pre_rd) + P[end:]
        else:
            P = P[:TAIL0] + pre_rd + P[TAIL0:]
        pre_rd = []
    nds = [n_ for n_, i_ in enumerate(pre_rd) if i_.kind == 'ds']
    half = nds[len(nds) // 2] if OPT['bal'] and len(nds) > 1 else len(pre_rd)
    items.append([mm[0]] + pre_rd[:half] + [mm[1]] + pre_rd[half:])
pin = {n: [] for n in range(len(items))}
B1 = at[4, 1] + 2
pin[B1] += BAR('WA2')
pin[at[16, 1] - LA_J - 1] += [Wait('WA3', 'CR1', 'CI1'), I('s_barrier')]
pin[at[32, 1] - LA_J - 1] += [Wait('WB0', 'WB1', 'WB2'), I('s_barrier')]
if OPT['fhs'] < -1:
    pin[-OPT['fhs']] += flag_store(1, ['stH'])
if OPT['fhl'] >= 0:
    pin[OPT['fhl']] += L(flag_load(1))
pin[OPT['fhc']] += stamp('fh0') + poll('fh', flag_load(1), flag_check) + stamp('fh1')
pin[OPT['fls']] += flag_store(2, ['stF3', 'stF2'])
pin[OPT['fll']] += L(flag_load(2))
pin[OPT['flc']] += stamp('fl0') + poll('fl', flag_load(2), flag_check) + stamp('fl1')
pin[at[36, 1] - 1] += stamp('k36')
for name, gap in (('CI1', 1), ('WB0', 19), ('WB1', 24), ('WB2', at[16, 1] - LA_J)):
    if name in STAGE:
        for n, i_ in enumerate(stage_write(name)):
            pin[gap + max(n - 2, 0)].append(i_)
_rw = rw
rw = lambda name: [] if name in STAGE else _rw(name)
queue = [(OPT['q0'], a_load(k)) for k in range(8 + OPT['nea'], 16)] + [(0, rw('CI1'))]
queue += [(OPT['q0'], a_load(k)) for k in range(max(16, 8 + OPT['nea']), 20)]
if OPT['qord'] == 0:
    queue += [(B1 + 1, rw('WB0'))] + [(OPT['fhc'], a_load(k)) for k in range(20, 32)] + [(B1 + 1, rw('WB1'))]
elif OPT['qord'] == 1:
    queue += [(B1 + 1, rw('WB0')), (B1 + 1, rw('WB1'))] + [(OPT['fhc'], a_load(k)) for k in range(20, 32)]
else:
    queue += [(OPT['fhc'], a_load(k)) for k in range(20, 24)] + [(B1 + 1, rw('WB0')), (B1 + 1, rw('WB1'))]
    queue += [(0, a_load(k)) for k in range(24, 32)]
queue += [(at[16, 1] - LA_J, rw('WB2'))]
queue += [(OPT['flc'], a_load(k)) for k in range(36, 44)]
n = 0.0
for first_gap, ins in queue:
    n = max(n, first_gap)
    pend = []
    for i_ in ins:
        pend.append(i_)
        if i_.kind == 'vm':
            pin[int(n)] += pend
            pend = []
            n += OPT['pace'] / 10
for b in (1, 2, 3):
    sd = send(b)
    for q in range(4):
        pin[done_at[b] + 3 + q] += sd[q * len(sd) // 4:(q + 1) * len(sd) // 4]
    pin[done_at[min(b + 1, 3) if b < 3 else 3] + OPT[f'r{b}'] if b != 2 else done_at[2] + OPT['r2']] += L(recv(b))
pin[done_at[2] + 6] += stamp('s12')
pin[done_at[3] + 6] += stamp('sent')
items = fine('P3', items[:OPT['fn'] * 27], OPT['fn']) + items[OPT['fn'] * 27:]
LEV[0] = OPT['lev3']
sub = lambda lo, hi: {n - lo: pin[n] for n in range(lo, hi)}
unit_weave = weave


def weave(its, fill_, pin_, lo=0, hi=None):
    if not OPT['fineg']:
        return unit_weave(its, fill_, pin_, lo, hi)
    flat, pin2 = [], {}
    for n, it in enumerate(its):
        cut_ = max(k_ for k_, i_ in enumerate(it) if i_.kind == 'mfma')
        flat += [it[:cut_], it[cut_:]]
        ordered = any(i_.kind in ('barrier', 'pseudo', 'label') for i_ in pin_.get(n, []))
        first = len(flat[-2]) < len(flat[-1]) and not ordered
        pin2[2 * n + (0 if first else 1)] = pin_.get(n, [])
    return unit_weave(flat, fill_, pin2, 2 * lo, None if hi is None else 2 * hi + 1)


c1, c2 = at[32, 1], at[11, 0] + 1
P += weave(items[:c1], [], sub(0, c1))
P += weave(items[c1:c2], ep_setup + pre, sub(c1, c2), 0, 6)
SWAPS = lambda R: [I(f'v_permlane16_swap_b32 v{R + 8 * a + r}, v{R + 8 * a + 4 + r}') for a in range(2) for r in range(4)]
base_calc += SWAPS(XE)


def rx_check(b):
    chk = checksum(RX[b] + 9, RX[b], f'v{RX[b] + 8}') + [f'v_cmp_ne_u32 vcc, s{sTAG}, v{RX[b] + 9}']
    return poll(f'rx{b}', recv(b), '\n'.join(chk))


EARLY = range(1, 1 + OPT['rxe'])
for b in EARLY:
    base_calc += rx_check(b)
    for q in range(8):
        u = RX[b] + 10 + 2 * (q & 1)
        base_calc += L(f"""v_lshlrev_b32 v{u}, 16, v{RX[b] + q}
            v_and_b32 v{u + 1}, 0xffff0000, v{RX[b] + q}
            v_add_f32 v{XE + 2 * q}, v{XE + 2 * q}, v{u}
            v_add_f32 v{XE + 2 * q + 1}, v{XE + 2 * q + 1}, v{u + 1}""")
P += weave(items[c2:], base_calc, sub(c2, len(items)), 3, len(items) - c2 - (3 if OPT['rxe'] else 6))
P += stamp('own')
A0 = ACC[0]
for q in range(8):
    P.append(I(f'v_pk_add_f32 {vr(A0 + 2 * q, 2)}, {vr(A0 + 2 * q, 2)}, {vr(XE + 2 * q, 2)}'))
LATE = [b for b in (1, 2, 3) if b not in EARLY]
for b in LATE:
    P += rx_check(b)
    if OPT['seqadd'] and b < 3:
        P += [I(f'v_dot2c_f32_bf16 v{A0 + 2 * q + h}, s{sKC[h]}, v{RX[b] + q}') for q in range(8) for h in range(2)]
if OPT['seqadd']:
    LATE = [3]
P += stamp('rx')
sts = []
for a in range(2):
    for q in range(4 * a, 4 * a + 4):
        for b in LATE:
            P += [I(f'v_dot2c_f32_bf16 v{A0 + 2 * q + h}, s{sKC[h]}, v{RX[b] + q}') for h in range(2)]
        P += sts[3 * (q & 3):3 * (q & 3) + 3]
    P += SWAPS(A0)[4 * a:4 * a + 4]
    sts = []
    for q in range(4 * a, 4 * a + 4):
        sts.append(I(f's_add_u32 s{sBB}, s{sXB}, {2048 * ROW(2 * q)}'))
        sts += [I(f'buffer_store_dword v{A0 + 2 * q + h}, v{FA0}, {srd(sOUT)}, s{sBB} offen offset:{2048 * h} '
                  f'{OPT["out_flags"].replace("+", " ")}') for h in range(2)]
P += L(f"""s_lshl_b32 s{sT2}, s{sJ}, 2
    s_add_u32 s{sT2}, s{sT2}, s{sW}
    s_xor_b32 s{sT1}, s{sI}, 15
    s_or_b32 s{sT2}, s{sT2}, s{sT1}
    s_cmp_eq_u32 s{sT2}, 0
    s_cselect_b32 s{sT2}, {WS_EP}, {OOB:#x}
    v_mov_b32 v{t0}, s{sE2}
    v_mov_b32 v{t1}, s{sT2}""") + sts + L(f'buffer_store_dword v{t0}, v{t1}, {srd(sWS)}, 0 offen')
if OPT['diag']:
    P += stamp('end') + L("""s_memrealtime s[6:7]
        s_waitcnt lgkmcnt(0)
        s_sub_u32 s4, s4, s23
        s_lshl_b32 s4, s4, 2
        s_min_u32 s4, s4, 20000
        L_diag:
        s_memrealtime s[0:1]
        s_waitcnt lgkmcnt(0)
        s_sub_u32 s0, s0, s6
        s_cmp_lt_u32 s0, s4
        s_cbranch_scc1 L_diag""")
if PROF:
    P += stamp('end')
    P += L(f"""s_waitcnt vmcnt(0)
        s_memrealtime s[0:1]
        s_lshl_b32 s{sT2}, s2, 2
        s_add_u32 s{sT2}, s{sT2}, s{sW}
        s_lshl_b32 s{sT2}, s{sT2}, 7
        s_add_u32 s{sT2}, s{sT2}, {WS_PROF}
        v_mov_b32 v{t1}, s{sT2}
        s_waitcnt lgkmcnt(0)
        v_mov_b32 v{t0}, s0
        buffer_store_dword v{t0}, v{t1}, {srd(sWS)}, 0 offen offset:124
        v_mov_b32 v{t2}, s23
        buffer_store_dword v{t2}, v{t1}, {srd(sWS)}, 0 offen offset:112
        buffer_store_dword a254, v{t1}, {srd(sWS)}, 0 offen offset:116
        buffer_store_dword a255, v{t1}, {srd(sWS)}, 0 offen offset:120""")
    P += stamp('DUMP')
P += [I('L_end:'), I('s_endpgm')]

P = resolve_stamps(P)
if OPT['split']:
    P = split_ds_pairs(P)
if OPT['hoist']:
    P = hoist_reads(P, OPT['hoist'])
body = pad_hazards(insert_waits(P, OPT['age']))
check_polls(body)
tail = []
for name, loads, check in retry_blocks:
    blk = [I(f'L_retry_{name}:'), I(f's_mov_b32 s3, {OPT["spin"]}'), I(f'L_spin_{name}:')]
    if PROF:
        blk.append(I(f's_add_u32 s23, s23, {1 << (4 * retry_blocks.index((name, loads, check)))}'))
    blk += L(loads) + [I('s_waitcnt vmcnt(0)')] + L(check)
    blk += L(f'''s_cbranch_vccz L_back_{name}
        s_sub_u32 s3, s3, 1
        s_cmp_lg_u32 s3, 0
        s_cbranch_scc1 L_spin_{name}
        s_branch L_back_{name}''')
    tail += pad_hazards(blk)

hdr = open(os.path.join(os.path.dirname(os.path.abspath(__file__)), 'header.txt')).read()
text = hdr + f'''; @launch grid=(256,1,1) block=(256,1,1) lds=163840
.amdgcn_target "amdgcn-amd-amdhsa--gfx950"
.text
.globl {KN}
.p2align 8
.type {KN},@function
{KN}:
{render(body)}
{render(tail)}
L_code_end:
    s_endpgm
.section .rodata,"a"
.p2align 6
.amdhsa_kernel {KN}
  .amdhsa_next_free_vgpr 512
  .amdhsa_next_free_sgpr 102
  .amdhsa_accum_offset 256
  .amdhsa_group_segment_fixed_size 0
  .amdhsa_kernarg_size 128
  .amdhsa_user_sgpr_count 2
  .amdhsa_user_sgpr_kernarg_segment_ptr 1
  .amdhsa_system_sgpr_workgroup_id_x 1
.end_amdhsa_kernel
'''
open(sys.argv[1], 'w').write(text)
if PROF:
    open(sys.argv[1][:-2] + '.stamps', 'w').write(' '.join(stamp_names))
from collections import Counter
cnt = Counter(i.kind for i in body)
print(dict(cnt), 'nops', sum(1 for i in body if i.mn == 's_nop'))
import subprocess
chk = subprocess.run([sys.executable, 'cdna_unwritten_srd_check.py', sys.argv[1]],
                     capture_output=True, text=True)
if chk.returncode != 0:
    os.remove(sys.argv[1])
    sys.exit('address check failed: ' + chk.stdout[-600:])
```

```python
import sys, os
sys.path.insert(0, os.path.dirname(os.path.abspath(__file__)))
from asmlib import I, Wait, insert_waits, pad_hazards, render, weave, split_ds_pairs, hoist_reads, merge, level, ds_first, check_polls

KN = 'parallel_sum__ssm_conv_s5__dense_activation_mish__prompt_kernel'
OPT = dict(prof=0, spin=20000, out_flags='nt', map='8x4', pf=2, age=16, laf=5, r1=30, r2=36, r3=29, e3=12, fls=28, fll=50, flc=68, ka2=1, nstep=0, split=0, diag='', dsp=2, xel=0, tlb=0, pk_in=1, lateln=100, d0=4, o8=1, bal=0, fineg=1, xes=0, xfirst=1, parat=4, nb0=2, stg3='8.16.23', stg1='2.7.12.17.22.27', stg2='2.6.14.21', fhp=0, wmix=1, ntx=0, ntg=0, ntw=0, lbt=0, rxe=0, dspc=3, dsps=3, sch=3, g3=24, fn=2, stg=0, q0=2, pfat=24, seqadd=1, cfs=1, bsp=1, ovl=0, ofa=0, stg4='1.9.17.21', g10=8, wa0=17, hs=2, rotj=0, rotm=0, laj=7, pace=16, lev=0, lev3=0, pa=2, fw=1, xw=0, vmc=2, fine='', fas=-10, fal=12, fac=16, nea=8, fhs=-1, fhl=12, fhc=32, qord=1, lbl=13, lbc=24, ppf=0, hoist=32)
for a in sys.argv[2:]:
    k, v = a.split('=')
    OPT[k] = int(v) if v.lstrip('-').isdigit() else v
PROF = OPT['prof']

WS_EP, WS_AG, WS_A = 0, 0x10000, 0x40000
WS_XC = WS_A + 64 * 176 * 1024
XC_BLK = 2560
WS_FL = WS_XC + 1024 * 3 * XC_BLK
WS_SIZE = WS_FL + 1024 * 512
WS_PROF = 0x1C00000
OOB = 0x7ff00000
SLOT = 16384
TB = 9 * SLOT
T_STAT, T_B1, T_SEG, T_LB, T_H = TB, TB + 1024, TB + 2048, TB + 6144, TB + 8192
LOG2E, LN2, M2LN2 = 0x3fb8aa3b, 0x3f317218, 0xbfb17218

sX, sB, sW1, sCre, sCim, sW2, sWS, sOUT, sTMP = 36, 40, 44, 48, 52, 56, 60, 64, 68
sI, sJ, sW, sROT, sTAG, sE2 = 72, 73, 74, 75, 76, 77
sKC = [78, 79, 80, 81]
sWOFF, sT0, sT1, sXB, sBB, sW1A, sW1B = 82, 83, 84, 85, 86, 87, 88
sAS = 89
sFST = [90, 91, 92, 93]
sSST, sCB, sW2B, sFSEL, sONES, sT3, sJJ, sT2 = 94, 95, 96, 97, 98, 99, 100, 101
sKQ, sPB, sXO = 22, [24, 25, 26], [27, 28, 29, 30]
sSEL = [31, 32, 33, 34]
sFLG = 35
pLRE, pLIM, pBRE, pBIM, pLDT, pDSK, pB1 = 8, 10, 12, 14, 16, 18, 20
srd = lambda b: f's[{b}:{b + 3}]'
vL, t0, t1, t2 = 0, 1, 2, 3
AS = [4, 5, 6, 7]
ASc = [8, 9, 10, 11]
XG = [12, 13, 14, 15]
PG = [16, 17, 18, 19]
QG = [20, 21, 22, 23]
FA0, FAc, RL2, VLN2, VL16, VNM, VRS, t3 = 24, 25, 26, 27, 28, 29, 30, 31
FAd = VNM
NLI, LI, LR, CR, NCI, NCR, L16R, L16I, LSR, LSI, L128R, L128I, WR, WI, PR, PI = range(32, 48)
TT = 48
FACC = [64, 80]
SRE, SIM = 96, 112
X = 128
aS, aF, aP, aOF, aOS, aWO, aXE = 0, 128, 0, 64, 88, 128, 224
STAMP_A = list(range(104, 128)) + list(range(241, 247))
vr = lambda b, n: f'v[{b}:{b + n - 1}]'
ar = lambda b, n: f'a[{b}:{b + n - 1}]'

stamp_names = []
FINE_KEEP = dict(T=['lb1', 'F2', 'scan', 'F3', 'fa0', 'fa1', 'tail', 'fh0'], S=['x7', 'c27', 'b0', 'F0'], F0=['b2', 'F0', 'F1'], F2=['F1', 'F2', 'scan'], F3=['F2', 'scan', 'F3', 'fa0', 'fa1', 'tail'],
                 P3=['tail'], L=['k36', 'sent', 'own', 'rx'])


def fine(phase, items, step):
    if OPT['fine'] == phase:
        for n in range(step - 1, len(items), step):
            items[n] = items[n] + stamp(f'g{n}')
    return items


def stamp(name):
    if PROF == 3 and name not in ('end', 'DUMP'):
        return []
    if OPT['fine'] and not name.startswith('g') and name not in FINE_KEEP[OPT['fine']] + ['end', 'DUMP']:
        return []
    if OPT['diag'] == name:
        return [I('s_memrealtime s[4:5]')]
    return [I(';stamp ' + name)] if PROF else []


def resolve_stamps(prog):
    out = []
    for ins in prog:
        if not ins.text.startswith(';stamp '):
            out.append(ins)
            continue
        name = ins.text.split()[1]
        n = len(stamp_names)
        if n:
            out.append(I(f'v_accvgpr_write_b32 a{STAMP_A[n - 1]}, s{4 + 2 * ((n - 1) & 1)}'))
        if name == 'DUMP':
            out += [I(f'buffer_store_dword a{STAMP_A[k]}, v{t1}, {srd(sWS)}, 0 offen offset:{4 * k}') for k in range(n)]
            continue
        assert n < 29
        stamp_names.append(name)
        out.append(I(f's_mem{"real" if PROF == 2 else ""}time s[{4 + 2 * (n & 1)}:{5 + 2 * (n & 1)}]'))
    return out


def L(text):
    return [I(t.strip()) for t in text.strip().split('\n') if t.strip()]


def mfma(d, a, b, c):
    return I(f'v_mfma_f32_32x32x16_bf16 {d}, {a}, {b}, {c}')


def mksrd(b, lo, size):
    return f's_mov_b32 s{b}, s{lo}\ns_mov_b32 s{b + 1}, s{lo + 1}\ns_mov_b32 s{b + 2}, {size}\ns_mov_b32 s{b + 3}, 0x00020000\n'


slot_shared = {}


def dma_round(name, slot, voffs, rsrc, soff_code, shared):
    out = [I(f's_add_u32 m0, s{sWOFF}, {slot * SLOT}')] + L(soff_code)
    for g in range(4):
        nt = int(name[1:]) < OPT['ntx'] if name[0] == 'x' else OPT['ntg'] if name[0] == 'G' else OPT['ntw']
        out.append(I(f'buffer_load_dwordx4 v{voffs[g]}, {srd(rsrc)}, s{sT0} offen offset:{1024 * g} {"nt " if nt else ""}lds',
                     tok=name if g == 3 else None,
                     lds_w=(slot, slot_shared.get(slot, False)) if g == 0 else None, note=name,
                     fills=(slot, shared) if g == 3 else None))
    slot_shared[slot] = shared
    return out


def rx(s, slot):
    return dma_round(f'x{s}', slot + 1, XG, sX,
                     f's_add_u32 s{sT0}, s{sROT}, {s}\ns_and_b32 s{sT0}, s{sT0}, 7\n'
                     f's_lshl_b32 s{sT0}, s{sT0}, 7\ns_add_u32 s{sT0}, s{sT0}, s{sXB}', False)


G_SLOT = [5, 6, 7, 8, 0, 1, 2, 3, 4, 5, 6, 7]
W_SLOT = dict(WA0=8, CR0=0, CI0=1, WA1=2, WA2=3, WA3=4, CR1=5, CI1=6, WB0=7, WB1=8, WB2=2)


def rg(g):
    if g < 4:
        return dma_round(f'G{g}', G_SLOT[g], PG, sB,
                         f's_lshl_b32 s{sT0}, s{sKC[g]}, 7\ns_add_u32 s{sT0}, s{sT0}, s{sBB}', True)
    base = sW1A if g < 8 else sW1B
    return dma_round(f'G{g}', G_SLOT[g], QG, sW1,
                     f's_mul_i32 s{sT0}, s{sKC[g & 3]}, {64 * 3584}\ns_add_u32 s{sT0}, s{sT0}, s{base}', True)


def rw(name):
    e = int(name[2])
    if name[0] == 'C':
        code = f's_xor_b32 s{sT0}, s{sCB}, {128 * e}'
        return dma_round(name, W_SLOT[name], PG, sCim if name[1] == 'I' else sCre, code, True)
    if name[1] == 'A':
        code = f's_xor_b32 s{sT0}, s{sJJ}, {e}\ns_lshl_b32 s{sT0}, s{sT0}, 17\ns_add_u32 s{sT0}, s{sT0}, s{sW2B}'
    else:
        code = f's_lshl_b32 s{sT0}, s{sPB[e]}, 16\ns_add_u32 s{sT0}, s{sT0}, s{sW2B}'
        if e == 0:
            code += f'\ns_xor_b32 s{sT0}, s{sT0}, s{sSEL[0]}'
    return dma_round(name, W_SLOT[name], XG, sW2, code, True)


STAGE = {n: 160 + 16 * k for k, n in enumerate(x for x in str(OPT['stg']).split('.') if x != '0')}
VST = t0


def stage_load(name):
    keep = dict(slot_shared)
    out = []
    for i_ in rw(name)[1:]:
        if i_.kind == 'vm':
            n = sum(j.kind == 'vm' for j in out)
            i_ = I(i_.text.replace('dwordx4 ', f'dwordx4 {ar(STAGE[name] + 4 * n, 4)}, ').replace(' lds', ''))
            i_.dma = True
        out.append(i_)
    slot_shared.clear()
    slot_shared.update(keep)
    return out


def stage_write(name):
    slot = W_SLOT[name]
    out = [I(f's_add_u32 s{sT0}, s{sWOFF}, {slot * SLOT}'), I(f'v_add_u32 v{VST}, s{sT0}, v{VL16}')]
    out += [I(f'ds_write_b128 v{VST}, {ar(STAGE[name] + 4 * g_, 4)} offset:{1024 * g_}', tok=name if g_ == 3 else None,
              lds_w=(slot, True) if g_ == 0 else None, note=name, fills=(slot, True) if g_ == 3 else None)
            for g_ in range(4)]
    return out


def rw2(name):
    if name not in STAGE:
        return rw(name)
    out = stage_write(name)
    for i_ in out[2:]:
        i_.dma = True
    return out


def pins(*parts):
    pin = {}
    for gap, ins in parts:
        head = [i_ for i_ in ins if not getattr(i_, 'dma', False)]
        pin.setdefault(gap, []).extend(head)
        for n, i_ in enumerate(ins[len(head):]):
            pin.setdefault(gap + n * OPT['dsp'], []).append(i_)
    return pin


BAR = lambda *toks: ([Wait(*toks)] if toks else []) + [I('s_barrier')]
PARK = {n: 247 if k == 16 else 48 + k for k, n in enumerate('pub seg lba0 lba1 lbe0 lbe1 fla flp lbw lbr hw hw2 hr hr2 f3o fp0 fp1'.split())}
PARK['pfa'] = 249


def park(**regs):
    return [I(f'v_accvgpr_write_b32 a{PARK[n]}, v{r}') for n, r in regs.items()]


def fetch(**regs):
    return [I(f'v_accvgpr_read_b32 v{r}, a{PARK[n]}') for n, r in regs.items()]


retry_blocks = []


def poll(name, loads, check):
    retry_blocks.append((name, loads, check))
    return L(check) + [I(f's_cbranch_vccnz L_retry_{name}'), I(f'L_back_{name}:')]


def cexp(dr, di, scale, zr, za):
    return L(f"""v_mul_f32 v{dr}, {scale}, v{zr}
        v_mul_f32 v{di}, {scale}, v{za}
        v_exp_f32 v{dr}, v{dr}
        v_fract_f32 v{di}, v{di}
        v_cos_f32 v{t3}, v{di}
        v_sin_f32 v{di}, v{di}
        v_mul_f32 v{di}, v{dr}, v{di}
        v_mul_f32 v{dr}, v{dr}, v{t3}""")


def cmul_add(dr, di, ar_, ai, br, bi, cr=None, ci=None):
    if cr is None:
        head = f'v_mul_f32 v{dr}, v{ar_}, v{br}\nv_mul_f32 v{di}, v{ar_}, v{bi}'
    else:
        head = f'v_fma_f32 v{dr}, v{ar_}, v{br}, v{cr}\nv_fma_f32 v{di}, v{ar_}, v{bi}, v{ci}'
    return L(head + f'\nv_fma_f32 v{dr}, -v{ai}, v{bi}, v{dr}\nv_fmac_f32 v{di}, v{ai}, v{br}')


def mish(b, voff=VL16, quarters=range(4)):
    A = FACC[b & 1]
    out = []
    for q in quarters:
        rs = range(4 * q, 4 * q + 4)
        out.append(I(f'ds_read_b128 {vr(TT + 4 * q, 4)}, v{t2} offset:{T_B1 - TB + 128 * b + 16 * q}', hoist=True))
        out += [I(f'v_fmac_f32 v{TT + r}, v{A + r}, v{RL2}') for r in rs]
        out += [I(f'v_exp_f32 v{A + r}, v{TT + r}') for r in rs]
        out += [I(f'v_add_f32 v{A + r}, 1.0, v{A + r}') for r in rs]
        out += [I(f'v_fma_f32 v{A + r}, v{A + r}, v{A + r}, 1.0') for r in rs]
        out += [I(f'v_rcp_f32 v{A + r}, v{A + r}') for r in rs]
        out += [I(f'v_fmamk_f32 v{A + r}, v{A + r}, {M2LN2:#x}, v{VLN2}') for r in rs]
        out += [I(f'v_mul_f32 v{TT + r}, v{TT + r}, v{A + r}') for r in rs]
        out += [I(f'v_cvt_pk_bf16_f32 v{A + p}, v{TT + 2 * p}, v{TT + 2 * p + 1}') for p in (2 * q, 2 * q + 1)]
        if q & 1:
            fr = q >> 1
            out.append(I(f'buffer_store_dwordx4 {vr(A + 4 * fr, 4)}, v{voff}, {srd(sWS)}, s{sFST[b]} offen '
                         f'offset:{1024 * fr} sc1', tok=f'stF{b}' if fr else None))
            if b < 3:
                out += [I(f'v_accvgpr_write_b32 a{aOF + 8 * b + 4 * fr + e}, v{A + 4 * fr + e}') for e in range(4)]
    return out


def mish_pk(b, voff, halves=range(2)):
    A = FACC[b & 1]
    out = []
    for q in range(2 * len(halves)):
        out.append(I(f'ds_read_b128 {vr(TT + 4 * q, 4)}, v{t2} offset:{T_B1 - TB + 128 * b + 16 * q}', hoist=True))
    for h in halves:
        ps = range(8 * h, 8 * h + 8, 2)
        rs = range(8 * h, 8 * h + 8)
        out += [I(f'v_pk_fma_f32 {vr(TT + p, 2)}, {vr(A + p, 2)}, {vr(RL2, 2)}, {vr(TT + p, 2)} op_sel_hi:[1,0,1]') for p in ps]
        out += [I(f'v_exp_f32 v{A + r}, v{TT + r}') for r in rs]
        out += [I(f'v_pk_add_f32 {vr(A + p, 2)}, {vr(A + p, 2)}, 1.0 op_sel_hi:[1,0]') for p in ps]
        out += [I(f'v_pk_fma_f32 {vr(A + p, 2)}, {vr(A + p, 2)}, {vr(A + p, 2)}, 1.0 op_sel_hi:[1,1,0]') for p in ps]
        out += [I(f'v_rcp_f32 v{A + r}, v{A + r}') for r in rs]
        out += [I(f'v_pk_fma_f32 {vr(A + p, 2)}, {vr(A + p, 2)}, s[{sKC[0]}:{sKC[1]}], {vr(RL2, 2)} '
                  f'op_sel:[0,0,1] op_sel_hi:[1,0,1]') for p in ps]
        out += [I(f'v_pk_mul_f32 {vr(TT + p, 2)}, {vr(TT + p, 2)}, {vr(A + p, 2)}') for p in ps]
        out += [I(f'v_cvt_pk_bf16_f32 v{A + p // 2}, v{TT + p}, v{TT + p + 1}') for p in ps]
    out += [I(f'v_permlane16_swap_b32 v{A + e}, v{A + 4 + e}') for e in range(4)]
    for h in range(2):
        out.append(I(f'buffer_store_dwordx4 {vr(A + 4 * h, 4)}, v{voff}, {srd(sWS)}, s{sFST[b]} offen '
                     f'offset:{1024 * h} sc1', tok=f'stF{b}' if h else None))
        if b < 3:
            out += [I(f'v_accvgpr_write_b32 a{aOF + 8 * b + 4 * h + e}, v{A + 4 * h + e}') for e in range(4)]
    return out


def mish_stages(b, h):
    m = mish_pk(b, VL16, range(2))
    body = m[4:]
    body = body[40:] if h else body[:40]
    return dict(rd=m[2 * h:2 * h + 2], A=body[0:4], ex=body[4:12], B=body[12:20], rc=body[20:28], C=body[28:36],
                fin=body[36:])


def cmul_pk(d, a, b, c):
    return L(f"""v_pk_fma_f32 {vr(d, 2)}, {vr(b, 2)}, {vr(a, 2)}, {vr(c, 2)} op_sel_hi:[1,0,1]
        v_pk_fma_f32 {vr(d, 2)}, {vr(b, 2)}, {vr(a, 2)}, {vr(d, 2)} op_sel:[1,1,0] op_sel_hi:[0,1,1] neg_lo:[0,1,0]""")


def staged(items, pin, plan):
    out, lo = [], 0
    for hi, fill_, burst_ in plan:
        out += weave(items[lo:hi + 1], fill_, {g_ - lo: v for g_, v in pin.items() if lo <= g_ <= hi}) + burst_
        lo = hi + 1
    return out


_weave = weave
LEV = [OPT['lev']]


def weave(*a):
    out = _weave(*a)
    return ds_first(level(out, LEV[0], OPT['vmc'])) if LEV[0] else out


P = []
if OPT['map'] == '8x4':
    ids = f"""s_and_b32 s{sKQ}, s2, 3
        s_bfe_u32 s{sJJ}, s2, 0x20003
        s_lshr_b32 s{sI}, s2, 5
        s_bfe_u32 s{sT0}, s2, 0x10002
        s_lshl_b32 s{sROT}, s{sT0}, 1
        s_lshl_b32 s{sT0}, s{sT0}, 3
        s_and_b32 s{sT1}, s{sI}, 1
        s_or_b32 s{sI}, s{sI}, s{sT0}
        s_add_u32 s{sROT}, s{sROT}, s{sT1}
        s_add_u32 s{sROT}, s{sROT}, s{sJJ if OPT['rotm'] else sKQ}
        s_lshl_b32 s{sROT}, s{sROT}, 1
        s_and_b32 s{sT1}, s{sKQ if OPT['rotm'] else sJJ}, {OPT['rotj']}
        s_add_u32 s{sROT}, s{sROT}, s{sT1}
        s_and_b32 s{sROT}, s{sROT}, 7"""
else:
    ids = f"""s_and_b32 s{sKQ}, s2, 1
        s_lshl_b32 s{sKQ}, s{sKQ}, 1
        s_lshr_b32 s{sT0}, s2, 7
        s_or_b32 s{sKQ}, s{sKQ}, s{sT0}
        s_bfe_u32 s{sJJ}, s2, 0x20003
        s_bfe_u32 s{sI}, s2, 0x20005
        s_bfe_u32 s{sT0}, s2, 0x20001
        s_add_u32 s{sROT}, s{sT0}, s{sKQ}
        s_lshl_b32 s{sT0}, s{sT0}, 2
        s_or_b32 s{sI}, s{sI}, s{sT0}
        s_lshl_b32 s{sROT}, s{sROT}, 1
        {'s_lshr_b32 s%d, s2, 7' % sT0 if OPT['rotm'] else ''}
        {'s_lshl_b32 s%d, s%d, 1' % (sROT, sJJ) if OPT['rotm'] else ''}
        {'s_add_u32 s%d, s%d, s%d' % (sROT, sROT, sT0) if OPT['rotm'] else ''}
        s_and_b32 s{sROT}, s{sROT}, 7"""
ws_load = f's_load_dwordx2 s[{sWS}:{sWS + 1}], s[0:1], 120'
more_loads = f"""s_load_dwordx8 s[{pLRE}:{pLRE + 7}], s[0:1], 8
s_load_dwordx4 s[{pLDT}:{pLDT + 3}], s[0:1], 56
s_load_dwordx2 s[{pB1}:{pB1 + 1}], s[0:1], 88
s_load_dwordx2 s[{sW1}:{sW1 + 1}], s[0:1], 80
s_load_dwordx2 s[{sCre}:{sCre + 1}], s[0:1], 40
s_load_dwordx2 s[{sCim}:{sCim + 1}], s[0:1], 48
s_load_dwordx2 s[{sW2}:{sW2 + 1}], s[0:1], 96
s_load_dwordx2 s[{sOUT}:{sOUT + 1}], s[0:1], 104
"""
SUM, SQ = [TT + 8, TT + 9], [TT + 10, TT + 11]
sizes = ((sX, 2097152), (sB, 524288), (sW1, 1835008), (sCre, 524288), (sCim, 524288), (sW2, 1835008),
         (sWS, (WS_PROF + 0x40000) if PROF else WS_SIZE), (sOUT, 4194304))
P += L(f"""
s_cmp_ge_u32 s2, 256
s_cbranch_scc1 L_end
{'s_memtime s[98:99]' if PROF else ''}
{'s_memrealtime s[90:91]' if PROF or OPT['diag'] else ''}
s_load_dwordx2 s[{sX}:{sX + 1}], s[0:1], 0
{'' if OPT['ka2'] else ws_load}
s_getpc_b64 s[{sTMP}:{sTMP + 1}]
v_lshrrev_b32 v{t0}, 6, v0
v_and_b32 v{vL}, 63, v0
s_and_b32 s{sTMP}, s{sTMP}, 0xffffff80
v_readfirstlane_b32 s{sW}, v{t0}
s_mov_b32 s{sTMP + 2}, L_code_end-{KN}
s_mov_b32 s{sTMP + 3}, 0x00020000
s_lshr_b32 s{sT0}, s2, 3
s_lshl_b32 s{sT0}, s{sT0}, 2
s_add_u32 s{sT0}, s{sT0}, s{sW}
s_lshl_b32 s{sT0}, s{sT0}, 9
v_and_b32 v{t1}, 3, v{vL}
v_lshlrev_b32 v{t1}, 7, v{t1}
buffer_load_dword v{t3}, v{t1}, {srd(sTMP)}, s{sT0} offen
{'' if OPT['ka2'] else more_loads}
v_lshrrev_b32 v{t0}, 3, v{vL}
v_lshrrev_b32 v{t1}, 4, v{vL}
v_xor_b32 v{t1}, v{t1}, v{vL}
v_and_b32 v{t1}, 7, v{t1}
v_lshlrev_b32 v{t1}, 4, v{t1}
v_lshl_add_u32 v{PG[0]}, v{t0}, 10, v{t1}
v_lshrrev_b32 v{t2}, 5, v{vL}
v_mul_u32_u24 v{t2}, {12 * 1024}, v{t2}
v_add_u32 v{XG[0]}, v{PG[0]}, v{t2}
v_xor_b32 v{XG[1]}, 64, v{XG[0]}
v_add_u32 v{XG[2]}, {6 * 1024}, v{XG[0]}
v_add_u32 v{XG[3]}, {9 * 1024}, v{XG[1]}
v_add_u32 v{XG[1]}, {3 * 1024}, v{XG[1]}
s_lshl_b32 s{sWOFF}, s{sW}, 12
{ids}
s_lshl_b32 s{sXB}, s{sI}, 17
s_lshl_b32 s{sT0}, s{sW}, 15
s_add_u32 s{sXB}, s{sXB}, s{sT0}
""" + ''.join(f's_mov_b32 s{b + 2}, {n}\ns_mov_b32 s{b + 3}, 0x00020000\n' for b, n in sizes) + f"""
s_waitcnt lgkmcnt(0)
{'v_accvgpr_write_b32 a254, s98' if PROF else ''}
{'v_accvgpr_write_b32 a255, s90' if PROF else ''}
{'s_mov_b32 s23, 0' if PROF else ''}
{'s_mov_b32 s23, s90' if OPT['diag'] else ''}
""")
P += stamp('ka') if OPT['diag'] else []
P += rx(0, 0) + (L(ws_load + '\n' + more_loads) if OPT['ka2'] else []) + rx(1, 1)
P += L(f"""
v_and_b32 v{t0}, 31, v{vL}
s_lshl_b32 s{sJ}, s{sKQ}, 2
s_or_b32 s{sJ}, s{sJ}, s{sJJ}
v_lshrrev_b32 v{t1}, 5, v{vL}
v_bfe_u32 v{t2}, v{vL}, 1, 3
v_xor_b32 v{t1}, v{t1}, v{t2}
v_lshlrev_b32 v{t1}, 4, v{t1}
v_lshl_add_u32 v{AS[0]}, v{t0}, 7, v{t1}
v_xor_b32 v{AS[1]}, 32, v{AS[0]}
v_xor_b32 v{AS[2]}, 64, v{AS[0]}
v_xor_b32 v{AS[3]}, 0x60, v{AS[0]}
s_add_u32 s{sT0}, s{sWOFF}, {SLOT}
v_add_u32 v{ASc[0]}, s{sT0}, v{AS[0]}
v_add_u32 v{ASc[1]}, s{sT0}, v{AS[1]}
v_add_u32 v{ASc[2]}, s{sT0}, v{AS[2]}
v_add_u32 v{ASc[3]}, s{sT0}, v{AS[3]}
s_mov_b32 s{sONES}, 0x3f803f80
v_mov_b32 v{SUM[0]}, 0
v_mov_b32 v{SUM[1]}, 0
v_mov_b32 v{SQ[0]}, 0
v_mov_b32 v{SQ[1]}, 0
s_lshl_b32 s{sT0}, s{sW}, 9
s_add_u32 s{sT0}, s{sT0}, {T_SEG}
v_lshl_add_u32 v{t0}, v{vL}, 3, s{sT0}""")
P.append(I(f'ds_write_b64 v{t0}, {vr(SUM[0], 2)}', tok='zero'))
P += L(f's_waitcnt lgkmcnt(0)\ns_load_dword s{sE2}, s[{sWS}:{sWS + 1}], {WS_EP}')
mid = L(f"""
v_and_b32 v{t0}, 31, v{vL}
s_lshl_b32 s{sT1}, s{sJ}, 6
v_lshl_add_u32 v{NLI}, v{t0}, 1, s{sT1}
s_and_b32 s{sT3}, s{sW}, 1
s_mul_i32 s{sT2}, s{sKQ}, 7
s_lshl_b32 s{sW1A}, s{sJJ}, 1
s_add_u32 s{sPB[0]}, s{sW1A}, 1
s_cmp_eq_u32 s{sJJ}, 3
s_cselect_b32 s{sPB[0]}, 3, s{sPB[0]}
s_cselect_b32 s{sFSEL}, 64, 0
s_add_u32 s{sW1A}, s{sW1A}, s{sT2}
s_add_u32 s{sW1B}, s{sPB[0]}, s{sT2}
s_lshl_b32 s{sW1A}, s{sW1A}, 7
s_lshl_b32 s{sW1B}, s{sW1B}, 7
s_cmp_ge_u32 s{sW}, 2
s_cselect_b32 s{sT2}, s{sW1B}, s{sW1A}
s_cselect_b32 s{sT1}, s{sFSEL}, 0
s_add_u32 s{sT2}, s{sT2}, s{sT1}
s_lshl_b32 s{sT1}, s{sT3}, 6
s_xor_b32 s{sT2}, s{sT2}, s{sT1}
v_and_b32 v{t1}, 3, v{vL}
v_bfe_u32 v{t2}, v{vL}, 2, 2
v_lshl_add_u32 v{t1}, v{t2}, 3, v{t1}
v_bfe_u32 v{t2}, v{vL}, 4, 1
v_lshl_add_u32 v{t1}, v{t2}, 2, v{t1}
v_lshl_add_u32 v{PR}, v{t1}, 1, s{sT2}
s_cmp_eq_u32 s{sT3}, 1
s_cselect_b32 s{sB}, s{pBIM}, s{pBRE}
s_cselect_b32 s{sB + 1}, s{pBIM + 1}, s{pBRE + 1}
s_mul_i32 s{sT3}, s{sT3}, {32 * 3584}
s_add_u32 s{sW1A}, s{sW1A}, s{sT3}
s_add_u32 s{sW1B}, s{sW1B}, s{sT3}
s_lshl_b32 s{sBB}, s{sJ}, 15
s_lshr_b32 s{sT1}, s{sW}, 1
s_add_u32 s{sT1}, s{sT1}, s{sROT}
s_and_b32 s{sKC[0]}, s{sT1}, 7
s_add_u32 s{sT1}, s{sT1}, 2
s_and_b32 s{sKC[1]}, s{sT1}, 7
s_add_u32 s{sT1}, s{sT1}, 2
s_and_b32 s{sKC[2]}, s{sT1}, 7
s_add_u32 s{sT1}, s{sT1}, 2
s_and_b32 s{sKC[3]}, s{sT1}, 7
v_xor_b32 v{PG[1]}, 64, v{PG[0]}
v_add_u32 v{PG[2]}, {14 * 1024}, v{PG[0]}
v_add_u32 v{PG[3]}, {21 * 1024}, v{PG[1]}
v_add_u32 v{PG[1]}, {7 * 1024}, v{PG[1]}
v_and_b32 v{t2}, 1, v{vL}
v_lshlrev_b32 v{t2}, 4, v{t2}
v_mov_b32 v{VNM}, 0x3f80
v_lshlrev_b32 v{t2}, v{t2}, v{VNM}
v_bfe_i32 v{t0}, v{vL}, 1, 1
v_and_b32 v{TT + 1}, v{t0}, v{t2}
v_xor_b32 v{TT}, v{TT + 1}, v{t2}
""")
mid += L(f"""
v_lshrrev_b32 v{t1}, 3, v{vL}
v_mul_u32_u24 v{t1}, 3584, v{t1}
v_bfe_u32 v{t2}, v{vL}, 4, 1
v_lshlrev_b32 v{t2}, 2, v{t2}
v_xor_b32 v{t2}, v{t2}, v{vL}
v_and_b32 v{t2}, 7, v{t2}
v_lshl_add_u32 v{QG[0]}, v{t2}, 4, v{t1}
v_add_u32 v{QG[1]}, {27648}, v{QG[0]}
v_add_u32 v{QG[2]}, {2 * 27648}, v{QG[0]}
v_add_u32 v{QG[3]}, {3 * 27648}, v{QG[0]}
""")
late = L(f"""
s_mul_i32 s{sE2}, s{sE2}, 1664525
s_add_u32 s{sE2}, s{sE2}, 1013904226
s_or_b32 s{sTAG}, s{sE2}, 1
v_bfe_u32 v{t1}, v{vL}, 2, 2
v_lshrrev_b32 v{t2}, 5, v{vL}
v_lshl_add_u32 v{t2}, v{t2}, 3, v{t1}
v_lshlrev_b32 v{FA0}, 7, v{t2}
v_lshrrev_b32 v{t1}, 1, v{t1}
v_lshl_add_u32 v{FA0}, v{t1}, 6, v{FA0}
v_bfe_u32 v{t1}, v{vL}, 4, 1
v_lshl_add_u32 v{FA0}, v{t1}, 5, v{FA0}
v_and_b32 v{t1}, 3, v{vL}
v_lshl_add_u32 v{FA0}, v{t1}, 3, v{FA0}
v_lshlrev_b32 v{VL16}, 4, v{vL}
v_mov_b32 v{VLN2}, {LN2:#x}
s_cmp_eq_u32 s{sPB[0]}, 1
s_cselect_b32 s{sPB[1]}, 3, 1
s_cmp_eq_u32 s{sPB[0]}, 5
s_cselect_b32 s{sPB[2]}, 3, 5
s_lshl_b32 s{sSEL[0]}, s{sFSEL}, 9
s_lshl_b32 s{sAS}, s{sI}, 2
s_add_u32 s{sAS}, s{sAS}, s{sW}
s_lshl_b32 s{sAS}, s{sAS}, 2
s_add_u32 s{sAS}, s{sAS}, s{sKQ}
s_lshl_b32 s{sFLG}, s{sAS}, 11
s_add_u32 s{sFLG}, s{sFLG}, {WS_FL}
s_mul_i32 s{sAS}, s{sAS}, {44 * 1024}
s_add_u32 s{sAS}, s{sAS}, {WS_A}
s_lshl_b32 s{sT2}, s{sJJ}, 13
s_add_u32 s{sFST[0]}, s{sAS}, s{sT2}
s_add_u32 s{sFST[1]}, s{sFST[0]}, 2048
s_lshl_b32 s{sT2}, s{sPB[0]}, 12
s_add_u32 s{sFST[3]}, s{sAS}, s{sT2}
s_lshl_b32 s{sT2}, s{sFSEL}, 5
s_add_u32 s{sFST[2]}, s{sFST[3]}, s{sT2}
s_add_u32 s{sFST[3]}, s{sFST[3]}, 2048
s_lshl_b32 s{sT2}, s{sJJ}, 12
s_add_u32 s{sSST}, s{sAS}, s{sT2}
s_add_u32 s{sSST}, s{sSST}, {28 * 1024}
s_xor_b32 s{sT2}, s{sW}, s{sKQ}
s_lshl_b32 s{sT2}, s{sT2}, 15
s_lshl_b32 s{sCB}, s{sJJ}, 17
s_add_u32 s{sCB}, s{sCB}, s{sT2}
s_lshl_b32 s{sT2}, s{sKQ}, 8
s_add_u32 s{sCB}, s{sCB}, s{sT2}
s_lshr_b32 s{sT2}, s{sJJ}, 1
s_lshl_b32 s{sT2}, s{sT2}, 7
s_add_u32 s{sCB}, s{sCB}, s{sT2}
s_mul_i32 s{sW2B}, s{sKQ}, {448 * 1024}
s_lshr_b32 s{sT2}, s{sW}, 1
s_lshl_b32 s{sT2}, s{sT2}, 15
s_add_u32 s{sW2B}, s{sW2B}, s{sT2}
s_lshl_b32 s{sT2}, s{sJJ}, 8
s_add_u32 s{sW2B}, s{sW2B}, s{sT2}
s_lshr_b32 s{sT2}, s{sKQ}, 1
s_xor_b32 s{sT2}, s{sT2}, s{sW}
s_and_b32 s{sT2}, s{sT2}, 1
s_lshl_b32 s{sT2}, s{sT2}, 7
s_add_u32 s{sW2B}, s{sW2B}, s{sT2}
s_lshl_b32 s{sT2}, s{sI}, 4
s_add_u32 s{sT2}, s{sT2}, s{sJJ}
s_lshl_b32 s{sT2}, s{sT2}, 2
s_add_u32 s{sT2}, s{sT2}, s{sW}""")
for b in range(4):
    late += L(f"""s_xor_b32 s{sT3}, s{sKQ}, {b}
        s_lshl_b32 s{sT3}, s{sT3}, 4
        s_add_u32 s{sT3}, s{sT3}, s{sT2}
        s_mul_i32 s{sT3}, s{sT3}, {3 * XC_BLK}
        s_add_u32 s{sXO[b]}, s{sT3}, {WS_XC + (b - 1) * XC_BLK if b else WS_XC}""")
late += L(f"""s_add_u32 s{sSEL[2]}, s{sXO[0]}, {XC_BLK}
    s_add_u32 s{sSEL[3]}, s{sXO[0]}, {2 * XC_BLK}
    s_and_b32 s{sT3}, s{sJJ}, 1
    s_sub_u32 s{sSEL[1]}, 6, s{sT3}""")
pf = []
if OPT['pf'] == 2:
    late += L(f"""
s_and_b32 s{sT1}, s{sI}, 7
s_lshl_b32 s{sT2}, s{sT1}, 1
s_add_u32 s{sT2}, s{sT2}, s{sW}
s_mul_i32 s{sT2}, s{sT2}, 28
s_mul_i32 s{sT3}, s{sKQ}, 448
s_add_u32 s{sT2}, s{sT2}, s{sT3}
s_lshl_b32 s{sT2}, s{sT2}, 2
s_add_u32 s{sT2}, s{sT2}, s{sJJ}
s_lshl_b32 s{sT3}, s{sJJ}, 3
s_add_u32 s{sT3}, s{sT3}, s{sT1}
s_lshl_b32 s{sT3}, s{sT3}, 6
s_add_u32 s{sT3}, s{sT3}, s{sKQ}
s_cmp_lt_u32 s{sW}, 2
s_cselect_b32 s{sT2}, s{sT2}, s{sT3}
s_cselect_b32 s{sT3}, 56, 32
s_cselect_b32 s{sTMP}, s{sW2}, s{sCre}
s_cselect_b32 s{sTMP + 1}, s{sW2 + 1}, s{sCre + 1}
s_cselect_b32 s{sTMP + 2}, s{sW2 + 2}, s{sCre + 2}
s_cmp_eq_u32 s{sW}, 3
s_cselect_b32 s{sTMP}, s{sCim}, s{sTMP}
s_cselect_b32 s{sTMP + 1}, s{sCim + 1}, s{sTMP + 1}""")
elif OPT['pf']:
    late += L(f"""
s_mul_i32 s{sT2}, s{sKQ}, 448
s_mul_i32 s{sT3}, s{sI}, 28
s_add_u32 s{sT2}, s{sT2}, s{sT3}
s_lshl_b32 s{sT2}, s{sT2}, 2
s_add_u32 s{sT2}, s{sT2}, s{sJJ}
s_lshl_b32 s{sT3}, s{sJJ}, 4
s_add_u32 s{sT3}, s{sT3}, s{sI}
s_lshl_b32 s{sT3}, s{sT3}, 5
s_add_u32 s{sT3}, s{sT3}, s{sKQ}
s_cmp_eq_u32 s{sW}, 0
s_cselect_b32 s{sT2}, s{sT2}, s{sT3}
s_cselect_b32 s{sT3}, 56, 16
s_cselect_b32 s{sTMP}, s{sW2}, s{sCre}
s_cselect_b32 s{sTMP + 1}, s{sW2 + 1}, s{sCre + 1}
s_cselect_b32 s{sTMP + 2}, s{sW2 + 2}, s{sCre + 2}
s_cmp_eq_u32 s{sW}, 2
s_cselect_b32 s{sTMP}, s{sCim}, s{sTMP}
s_cselect_b32 s{sTMP + 1}, s{sCim + 1}, s{sTMP + 1}
s_cmp_eq_u32 s{sW}, 3
s_cselect_b32 s{sT3}, 0, s{sT3}""")
if OPT['pf']:
    late += L(f"""s_lshl_b32 s{sT2}, s{sT2}, 8
v_lshrrev_b32 v{t0}, 1, v{vL}
v_and_b32 v{t1}, 1, v{vL}
v_lshlrev_b32 v{t1}, 7, v{t1}
v_lshl_add_u32 v{t0}, v{t0}, 10, v{t1}
v_add_u32 v{t0}, s{sT2}, v{t0}
v_mov_b32 v{t1}, {OOB:#x}
v_cmp_gt_u32 vcc, s{sT3}, v{vL}
v_cndmask_b32 v{PI}, v{t1}, v{t0}, vcc""")
    pf = L(f'buffer_load_dword a248, v{PI}, {srd(sTMP)}, 0 offen')

Z = TT + 2
consts = L(f"""
v_lshlrev_b32 v{NLI}, 16, v{NLI}
v_mul_f32 v{NLI}, {LOG2E:#x}, v{NLI}
v_exp_f32 v{NLI}, v{NLI}
v_lshlrev_b32 v{Z + 2}, 16, v{LR}
v_lshlrev_b32 v{Z + 3}, 16, v{LI}
v_cvt_pk_bf16_f32 v{NLI}, v{NLI}, v{NLI}
v_lshlrev_b32 v{NLI}, 16, v{NLI}
v_mul_f32 v{Z}, v{NLI}, v{Z + 2}
v_mul_f32 v{Z + 1}, v{NLI}, v{Z + 3}
v_mul_f32 v{Z}, {LOG2E:#x}, v{Z}
v_mul_f32 v{Z + 1}, 0xbe22f983, v{Z + 1}""")
consts += cexp(LR, LI, '1.0', Z, Z + 1)
consts += L(f"""
v_mul_f32 v{Z + 4}, v{Z + 2}, v{Z + 2}
v_fmac_f32 v{Z + 4}, v{Z + 3}, v{Z + 3}
v_rcp_f32 v{Z + 4}, v{Z + 4}
v_add_f32 v{Z + 5}, -1.0, v{LR}
v_sub_f32 v{NLI}, 0, v{LI}
v_add_f32 v{Z + 4}, v{Z + 4}, v{Z + 4}
v_mul_f32 v{CR}, v{Z + 5}, v{Z + 2}
v_fmac_f32 v{CR}, v{NLI}, v{Z + 3}
v_mul_f32 v{NCI}, v{Z + 5}, v{Z + 3}
v_fmac_f32 v{NCI}, v{LI}, v{Z + 2}
v_mul_f32 v{CR}, v{CR}, v{Z + 4}
v_mul_f32 v{NCI}, v{NCI}, v{Z + 4}
v_sub_f32 v{NCR}, 0, v{CR}""")
consts += cexp(L16R, L16I, '0x41800000', Z, Z + 1)
consts += cexp(L128R, L128I, '0x43000000', Z, Z + 1)
consts += L(f"""
v_lshrrev_b32 v{Z + 6}, 5, v{vL}
s_lshl_b32 s{sT2}, s{sW}, 1
v_add_u32 v{Z + 6}, s{sT2}, v{Z + 6}
v_cvt_f32_u32 v{Z + 6}, v{Z + 6}
v_mul_f32 v{Z + 7}, 0x41800000, v{Z + 6}
v_sub_f32 v{Z + 6}, 0x40e00000, v{Z + 6}
v_mul_f32 v{Z + 6}, 0x43800000, v{Z + 6}""")
consts += cexp(LSR, LSI, f'v{Z + 7}', Z, Z + 1)
consts += cexp(WR, WI, f'v{Z + 6}', Z, Z + 1)
consts += L(f"""v_lshlrev_b32 v{PR}, 16, v{PR}
v_mul_f32 v{PR}, {LOG2E:#x}, v{PR}
v_and_b32 v{t1}, 31, v{vL}
s_lshl_b32 s{sT1}, s{sW}, 7
s_add_u32 s{sT1}, s{sT1}, {T_B1}
v_lshl_add_u32 v{t1}, v{t1}, 2, s{sT1}
""") + [I(f'ds_write_b32 v{t1}, v{PR}', tok='b1w')]
later = []
Y = SRE
later += L(f"""v_and_b32 v{Y}, 31, v{vL}
    v_lshlrev_b32 v{Y + 1}, 3, v{Y}
    v_add_u32 v{Y + 1}, {T_LB}, v{Y + 1}
    v_lshrrev_b32 v{t0}, 5, v{vL}
    s_lshl_b32 s{sT2}, s{sW}, 11
    s_add_u32 s{sT2}, s{sT2}, {T_H}
    v_lshl_add_u32 v{Y}, v{Y}, 6, s{sT2}
    v_bfe_u32 v{Y + 2}, v{vL}, 1, 2
    v_lshlrev_b32 v{Y + 3}, 1, v{t0}
    v_xor_b32 v{Y + 2}, v{Y + 2}, v{Y + 3}
    v_bfe_u32 v{Y + 3}, v{vL}, 3, 1
    v_xor_b32 v{Y + 2}, v{Y + 2}, v{Y + 3}
    v_lshl_add_u32 v{Y}, v{Y + 2}, 4, v{Y}
    v_xor_b32 v{Y + 3}, 16, v{Y}
    v_bfe_u32 v{Y + 6}, v{vL}, 2, 2
    v_lshrrev_b32 v{t1}, 4, v{vL}
    v_lshl_add_u32 v{Y + 2}, v{t1}, 3, v{Y + 6}
    v_lshl_add_u32 v{Y + 2}, v{Y + 2}, 6, s{sT2}
    v_and_b32 v{t1}, 1, v{vL}
    v_lshl_add_u32 v{Y + 2}, v{t1}, 5, v{Y + 2}
    v_lshrrev_b32 v{t1}, 1, v{vL}
    v_xor_b32 v{t1}, v{t1}, v{vL}
    v_and_b32 v{t1}, 8, v{t1}
    v_lshl_add_u32 v{Y + 2}, v{t1}, 1, v{Y + 2}
    v_bfe_u32 v{t1}, v{vL}, 1, 1
    v_lshl_add_u32 v{Y + 2}, v{t1}, 3, v{Y + 2}
    v_bfe_u32 v{t1}, v{vL}, 4, 1
    v_lshl_add_u32 v{Y + 5}, v{t0}, 2, v{Y + 6}
    v_lshl_add_u32 v{Y + 5}, v{t1}, 4, v{Y + 5}
    v_lshlrev_b32 v{Y + 5}, 7, v{Y + 5}
    s_and_b32 s{sT2}, s{sKQ}, 1
    v_xor_b32 v{t1}, s{sT2}, v{t1}
    v_lshl_add_u32 v{Y + 5}, v{t1}, 6, v{Y + 5}
    v_bfe_u32 v{t1}, v{vL}, 3, 1
    v_lshl_add_u32 v{Y + 5}, v{t1}, 5, v{Y + 5}
    v_and_b32 v{t1}, 3, v{vL}
    v_lshl_add_u32 v{Y + 5}, v{t1}, 3, v{Y + 5}
    v_and_b32 v{Y + 6}, 15, v{vL}
    v_lshrrev_b32 v{t1}, 4, v{vL}
    v_bfe_u32 v{Y + 4}, v{vL}, 1, 3
    v_xor_b32 v{t1}, v{t1}, v{Y + 4}
    v_lshlrev_b32 v{t1}, 4, v{t1}
    v_lshl_add_u32 v{Y + 6}, v{Y + 6}, 7, v{t1}
    s_and_b32 s{sT2}, s{sJJ}, 1
    s_lshl_b32 s{sT2}, s{sT2}, 6
    v_xor_b32 v{Y + 6}, s{sT2}, v{Y + 6}
    s_lshl_b32 s{sT2}, s{sW}, 9
    s_add_u32 s{sT1}, s{sT2}, {T_SEG}
    s_add_u32 s{sT2}, s{sT2}, {T_LB}
    v_lshl_add_u32 v{Y + 7}, v{vL}, 3, s{sT1}
    v_lshl_add_u32 v{Y + 8}, v{vL}, 3, s{sT2}""")
later += park(hw=Y, lbr=Y + 1, hr=Y + 2, hw2=Y + 3, fp0=Y + 5, fp1=Y + 6, seg=Y + 7, lbw=Y + 8)
park2 = []
Y = FACC[0]
park2 += L(f"""s_lshl_b32 s{sT2}, s{sJ}, 4
    s_add_u32 s{sT2}, s{sT2}, s{sI}
    s_lshl_b32 s{sT2}, s{sT2}, 9
    s_add_u32 s{sT2}, s{sT2}, {WS_AG - 512}
    s_cmp_eq_u32 s{sW}, 3
    s_cselect_b32 s{sT2}, s{sT2}, {OOB:#x}
    v_mov_b32 v{Y + 8}, {OOB:#x}
    v_cmp_gt_u32 vcc, 32, v{vL}
    v_add_u32 v{Y}, s{sT2}, v{VL16}
    v_lshrrev_b32 v{t0}, 5, v{vL}
    v_cndmask_b32 v{Y}, v{Y}, v{Y + 8}, vcc
    s_lshl_b32 s{sT2}, s{sW}, 2
    s_add_u32 s{sT2}, s{sT2}, s{sI}
    s_sub_u32 s{sT2}, s{sT2}, 16
    v_lshl_add_u32 v{t0}, v{t0}, 1, s{sT2}
    s_lshl_b32 s{sT2}, s{sJ}, 13
    s_add_u32 s{sT2}, s{sT2}, {WS_AG}
    v_and_b32 v{Y + 9}, 31, v{vL}
    v_lshl_add_u32 v{t1}, v{Y + 9}, 4, s{sT2}
    v_lshl_add_u32 v{Y + 1}, v{t0}, 9, v{t1}
    v_cmp_gt_i32 vcc, 0, v{t0}
    v_add_u32 v{Y + 2}, 512, v{Y + 1}
    v_mov_b32 v{t1}, s{sTAG}
    v_cndmask_b32 v{Y + 1}, v{Y + 1}, v{Y + 8}, vcc
    v_cndmask_b32 v{Y + 3}, v{t1}, 0, vcc
    v_cmp_gt_i32 vcc, -1, v{t0}
    s_lshl_b32 s{sT2}, s{sJJ}, 9
    s_add_u32 s{sT2}, s{sT2}, s{sFLG}
    v_cndmask_b32 v{Y + 2}, v{Y + 2}, v{Y + 8}, vcc
    v_cndmask_b32 v{Y + 4}, v{t1}, 0, vcc
    v_lshl_add_u32 v{Y + 5}, v{Y + 9}, 2, s{sT2}
    v_and_b32 v{t0}, 3, v{vL}
    v_max_u32 v{t0}, 1, v{t0}
    v_xor_b32 v{t0}, s{sJJ}, v{t0}
    v_lshl_add_u32 v{Y + 6}, v{t0}, 9, s{sFLG}
    s_bitcmp1_b32 s{sJJ}, 0
    s_cselect_b32 s{sT2}, {OOB:#x}, 0
    v_add_u32 v{Y + 7}, s{sT2}, v{VL16}
    """)
park2 += park(pfa=PI)
park2 += park(pub=Y, lba0=Y + 1, lba1=Y + 2, lbe0=Y + 3, lbe1=Y + 4, fla=Y + 5, flp=Y + 6, f3o=Y + 7)
params = L(f"""global_load_ushort v{LR}, v{NLI}, s[{pLRE}:{pLRE + 1}]
    global_load_ushort v{LI}, v{NLI}, s[{pLIM}:{pLIM + 1}]
    global_load_ushort v{NLI}, v{NLI}, s[{pLDT}:{pLDT + 1}]
    global_load_ushort v{PR}, v{PR}, s[{pB1}:{pB1 + 1}]""")
nl = len(late) * OPT['lateln'] // 100
while late[nl - 1].mn.startswith(('s_cmp', 'v_cmp', 's_cselect')) or (nl < len(late) and late[nl].mn.startswith('v_cndmask')):
    nl += 1
if nl >= len(late):
    later, late, park2 = later + late + park2, [], []
else:
    later, late = later + late[:nl], late[nl:]
later = mid + later + [I(f'v_accvgpr_write_b32 a{aXE + r}, 0') for r in range(17)]
cuts = [0]
for n in range(1, 7):
    c = n * len(later) // 7
    while later[c].mn.startswith(('s_cselect', 'v_cndmask', 's_nop')) or later[c - 1].mn.startswith('v_cmp'):
        c += 1
    cuts.append(c)
cuts.append(len(later))

touch_w = L(f'v_mov_b32 v{PI}, 0') + [
    I(f'buffer_load_dword a{56 + n}, v{PI}, {srd(r)}, 0 offen') for n, r in enumerate((sW1, sCre, sCim, sW2))]
touch_o = L(f"""v_min_u32 v{PR}, {WS_SIZE >> 21}, v{vL}
    v_lshlrev_b32 v{PR}, 21, v{PR}
    v_add_u32 v{PR}, 0x800, v{PR}
    buffer_load_dword a60, v{PR}, {srd(sWS)}, 0 offen
    buffer_load_dword a61, v{PR}, {srd(sOUT)}, 0 offen""")
if OPT['tlb'] in (1, 3, 4):
    P += touch_w
if OPT['tlb'] == 1:
    P += touch_o
P += rx(2, 2) + [I('s_waitcnt lgkmcnt(0)')]
for s in range(8):
    P.append(Wait(f'x{s}'))
    if s == 0:
        P += stamp('x0')
    for q in range(4):
        P.append(I(f'ds_read_b128 {vr(X + 16 * s + 4 * q, 4)}, v{ASc[q]} offset:{(s & 3) * SLOT}', lds_r=(s & 3) + 1,
                   tok=f'xr{s}' if q == 3 else None))
    nxt = rg(s - 5) if s >= 5 else rx(s + 3, (s + 3) & 3) + (params if s == OPT['parat'] else [])
    piece = later[cuts[s]:cuts[s + 1]] if s < 7 else []
    P += nxt + piece if OPT['xfirst'] else piece + nxt
    for r in range(16):
        P.append(I(f'v_dot2c_f32_bf16 v{SUM[r & 1]}, s{sONES}, v{X + 16 * s + r}'))
        P.append(I(f'v_dot2c_f32_bf16 v{SQ[r & 1]}, v{X + 16 * s + r}, v{X + 16 * s + r}'))
P += stamp('x7')
P += L(f"""
v_add_f32 v{SUM[0]}, v{SUM[0]}, v{SUM[1]}
v_add_f32 v{SQ[0]}, v{SQ[0]}, v{SQ[1]}
v_mov_b32 v{SUM[1]}, v{SUM[0]}
v_mov_b32 v{SQ[1]}, v{SQ[0]}
v_permlane32_swap_b32 v{SUM[1]}, v{SUM[0]}
v_add_f32 v{SUM[0]}, v{SUM[0]}, v{SUM[1]}
v_mul_f32 v{SUM[0]}, 0xbb000000, v{SUM[0]}
v_cvt_pk_bf16_f32 v{t0}, v{SUM[0]}, v{SUM[0]}
v_lshlrev_b32 v{SIM}, 16, v{t0}
v_lshlrev_b32 v{SIM + 1}, 16, v{t0}
v_lshlrev_b32 v{SIM + 2}, 16, v{t0}
v_lshlrev_b32 v{SIM + 3}, 16, v{t0}
""")

back = lambda o: [I(f'v_cvt_pk_bf16_f32 v{X + 2 * o + e}, v{FACC[0] + 4 * (o & 3) + 2 * e}, '
                    f'v{FACC[0] + 4 * (o & 3) + 2 * e + 1}') for e in range(2)]
items = [[I(f'v_mfma_f32_4x4x4_16b_bf16 {vr(FACC[0] + 4 * (n & 3), 4)}, {vr(TT, 2)}, {vr(X + 2 * n, 2)}, {vr(SIM, 4)}')]
         + (back(n - 2) if n >= 2 else []) for n in range(64)]
fill = L(f"""
v_permlane32_swap_b32 v{SQ[1]}, v{SQ[0]}
v_sub_f32 v{VNM}, 0, v{SIM}
v_add_f32 v{SQ[0]}, v{SQ[0]}, v{SQ[1]}
v_mul_f32 v{SQ[0]}, 0x3b000000, v{SQ[0]}
v_fma_f32 v{SQ[0]}, -v{SUM[0]}, v{SUM[0]}, v{SQ[0]}
v_max_f32 v{SQ[0]}, 0, v{SQ[0]}
v_cvt_pk_bf16_f32 v{t0}, v{SQ[0]}, v{SQ[0]}
v_lshlrev_b32 v{t0}, 16, v{t0}
v_add_f32 v{t0}, 0x3727c5ac, v{t0}
v_cvt_pk_bf16_f32 v{t0}, v{t0}, v{t0}
v_lshlrev_b32 v{t0}, 16, v{t0}
v_sqrt_f32 v{t0}, v{t0}
v_and_b32 v{t1}, 3, v{vL}
v_cvt_pk_bf16_f32 v{t0}, v{t0}, v{t0}
v_lshlrev_b32 v{t0}, 16, v{t0}
v_rcp_f32 v{VRS}, v{t0}
v_bfe_u32 v{t2}, v{vL}, 3, 2
v_lshl_add_u32 v{t1}, v{t2}, 2, v{t1}
v_bfe_u32 v{t2}, v{vL}, 2, 1
v_lshl_add_u32 v{t1}, v{t2}, 4, v{t1}
s_lshl_b32 s{sT1}, s{sW}, 8
s_add_u32 s{sT1}, s{sT1}, {T_STAT}
v_lshl_add_u32 v{t1}, v{t1}, 2, s{sT1}
v_mul_f32 v{RL2}, {LOG2E:#x}, v{VRS}
ds_write_b32 v{t1}, v{VNM}
""")
fill.append(I(f'ds_write_b32 v{t1}, v{VRS} offset:128', tok='tabw'))
LA_S, LA_F = 3, OPT['laf']


def s_addr(slot):
    return [I(f'v_add_u32 v{ASc[q]}, {slot * SLOT}, v{AS[q]}') for q in range(4)]


def s_read(s, ri):
    return I(f'ds_read_b128 {ar(aS + 8 * (s & 3) + 4 * ri, 4)}, v{ASc[s & 3]} offset:{(s >> 3) * SLOT + (2 * ((s >> 2) & 1) + ri) * 4096}',
             lds_r=G_SLOT[s >> 3])


def f_addr(b):
    if b < 2:
        return [I(f'v_xor_b32 v{FAc}, {64 * b}, v{FA0}')]
    if b == 3:
        return [I(f'v_xor_b32 v{FAc}, 64, v{FAc}')]
    return [I(f'v_xor_b32 v{FAc}, s{sFSEL}, v{FA0}'), I(f'v_add_u32 v{FAc}, {G_SLOT[8] * SLOT}, v{FAc}')]


def f_read(b, s):
    out = f_addr(b) if s == 0 else []
    k = (32 * b + s) & 7
    for u in range(2):
        out.append(I(f'ds_read_b64_tr_b16 {ar(aF + 4 * k + 2 * u, 2)}, v{FAc} '
                     f'offset:{(s >> 3) * SLOT + ((s >> 1) & 3) * 4096 + (s & 1) * 2048 + u * 512}',
                     lds_r=G_SLOT[(4 if b < 2 else 8) + (s >> 3)]))
    return out


DSP = OPT['dsp']
OPT['dsp'] = OPT['dspc']
pin = pins((OPT['g3'], rg(3)), *([(OPT['g3'] + 4 * OPT['dspc'], rg(4))] if OPT['sch'] >= 2 else []),
           (54, s_addr(G_SLOT[0]) + stamp('c27') + BAR('G0', 'zero', *([] if OPT['bsp'] else ['G1'])) + stamp('b0')))
OPT['dsp'] = DSP
for k in range(LA_S):
    pin[55 + 2 * k] = [s_read(k, 0), s_read(k, 1)]
stat_fill = fill
if OPT['cfs']:
    fill = stat_fill[:2]
    stat_fill = stat_fill[2:]
else:
    stat_fill = []
P += weave(items, fill, pin, 0, 40) + back(62) + back(63)

S_items = []
for s in range(32):
    for ri, acc in ((0, SRE), (1, SIM)):
        it = [mfma(vr(acc, 16), vr(X + 4 * s, 4), ar(aS + 8 * (s & 3) + 4 * ri, 4), vr(acc, 16) if s else '0')]
        n = s + LA_S
        if n < 32:
            it.append(s_read(n, ri))
        S_items.append(it)
for k in range(LA_F):
    S_items[64 - LA_F + k] += f_read(0, k)
F_items = []
for b in range(4):
    its = []
    for s in range(32):
        acc = vr(FACC[b & 1], 16)
        it = [mfma(acc, ar(aF + 4 * ((32 * b + s) & 7), 4), vr(X + 4 * s, 4), acc if s else '0')]
        n = s + LA_F
        if n < 32:
            it += f_read(b, n)
        elif b < 3:
            it += f_read(b + 1, n - 32)
        its.append(it)
    F_items.append(its)

FLA, FLP = VNM, VRS
fill = stat_fill + late + park2 + consts + (pf if OPT['pfat'] < 0 else []) + L(f"""
v_lshrrev_b32 v{t0}, 3, v{vL}
v_bfe_u32 v{t1}, v{vL}, 4, 1
v_lshlrev_b32 v{t1}, 1, v{t1}
v_xor_b32 v{t1}, v{t1}, v{vL}
v_and_b32 v{t1}, 7, v{t1}
v_lshlrev_b32 v{t1}, 4, v{t1}
v_lshl_add_u32 v{XG[0]}, v{t0}, 10, v{t1}
v_add_u32 v{XG[1]}, {7 * 1024}, v{XG[0]}
v_xor_b32 v{XG[2]}, 64, v{XG[0]}
v_add_u32 v{XG[3]}, {21 * 1024}, v{XG[2]}
v_add_u32 v{XG[2]}, {14 * 1024}, v{XG[2]}
v_lshrrev_b32 v{t2}, 5, v{vL}
v_lshlrev_b32 v{t2}, 6, v{t2}
v_add_u32 v{t2}, {TB}, v{t2}
s_lshl_b32 s{sT2}, s{sW}, 8
v_add_u32 v{t1}, s{sT2}, v{t2}""")
fill += [I(f'ds_read_b128 {vr(FACC[1] + 4 * q, 4)}, v{t1} offset:{128 + 16 * q}') for q in range(4)]
xa, xb = TT + 14, TT + 15
ROW = lambda n: 16 * ((n >> 2) & 1) + 8 * (n >> 3) + (n & 3)
xe = L(f"""v_and_b32 v{xa}, 31, v{vL}
    v_lshrrev_b32 v{xb}, 5, v{vL}
    v_lshlrev_b32 v{xb}, 12, v{xb}
    v_lshl_add_u32 v{xb}, v{xa}, 1, v{xb}
    s_lshl_b32 s{sONES}, s{sJJ}, 2
    s_add_u32 s{sONES}, s{sONES}, s{sKQ}
    s_lshl_b32 s{sONES}, s{sONES}, 6
    v_lshl_add_u32 v{xa}, v{xa}, 1, s{sONES}
    s_add_u32 s{sXB}, s{sXB}, s{sONES}
    global_load_short_d16_hi a{aXE + 16}, v{xa}, s[{pDSK}:{pDSK + 1}]""")
for r in range(16):
    if r % 4 == 0:
        xe.append(I(f's_add_u32 s{sONES}, s{sXB}, {1024 * ROW(r)}'))
    xe.append(I(f'buffer_load_short_d16_hi a{aXE + r}, v{xb}, {srd(sX)}, s{sONES} offen offset:{1024 * (r & 3)}'))
sAO = dict(A={1: 8, 2: 9, 3: 10}, H={1: 11, 2: 12, 3: 13}, B={1: 14, 2: 15})
for e in (1, 2, 3):
    fill += L(f"""s_xor_b32 s{sT2}, s{sJJ}, {e}
        s_lshl_b32 s{sT2}, s{sT2}, 12
        s_add_u32 s{sAO['H'][e]}, s{sT2}, s{sAS}
        s_add_u32 s{sAO['A'][e]}, s{sAO['H'][e]}, s{sT2}
        s_add_u32 s{sAO['H'][e]}, s{sAO['H'][e]}, {28 * 1024}""")
for e in (1, 2):
    fill += L(f's_lshl_b32 s{sT2}, s{sPB[e]}, 12\ns_add_u32 s{sAO["B"][e]}, s{sT2}, s{sAS}')
if OPT['tlb'] in (2, 3):
    fill = touch_o + fill
if OPT['fw']:
    fill += L(f"""s_lshl_b32 s{sT2}, s{sJJ}, 9
        s_add_u32 s{sT2}, s{sT2}, s{sFLG}
        v_lshlrev_b32 v{t0}, 3, v{vL}
        v_mov_b32 v{TT}, 0
        v_mov_b32 v{TT + 1}, 0
        buffer_store_dwordx2 {vr(TT, 2)}, v{t0}, {srd(sWS)}, s{sT2} offen sc1""")
if OPT['xw'] == 1:
    fill += L(f'v_lshlrev_b32 v{t0}, 2, v{vL}')
    for b in (1, 2, 3):
        fill += L(f"""buffer_store_dwordx4 {vr(TT, 4)}, v{VL16}, {srd(sWS)}, s{sXO[b]} offen sc1
            buffer_store_dwordx4 {vr(TT, 4)}, v{VL16}, {srd(sWS)}, s{sXO[b]} offen offset:1024 sc1
            buffer_store_dword v{vL}, v{t0}, {srd(sWS)}, s{sXO[b]} offen offset:2048 sc1""")
elif OPT['xw']:
    fill += L(f"""v_lshlrev_b32 v{t0}, 7, v{vL}
        v_min_u32 v{t0}, {59 * 128}, v{t0}
        buffer_load_dword a60, v{t0}, {srd(sWS)}, s{sXO[0]} offen {('', '', 'sc1', 'sc1 nt')[OPT['xw']]}""")
if not OPT['xel']:
    cut = len(fill) * OPT['xes'] // 100
    fill, xe = fill[:cut] + merge(fill[cut:], xe), []
OPT['dsp'] = OPT['dsps']
srounds = [(2, rg(4)), (14, rg(5)), (28, rg(6)), (42, rg(7))] if OPT['sch'] == 1 else \
    [(2, rg(5)), (14, rg(6)), (28, rg(7)), (42, rg(8))]
sbars = [(9, BAR('G1')), (25, BAR('G2', 'G3'))] if OPT['bsp'] == 1 else \
    [(9, BAR('G1', 'G2')), (41, BAR('G3'))] if OPT['bsp'] else [(24, BAR('G2', 'G3'))]
pin = pins(*srounds, *sbars, (63 - LA_F, stamp('s59') + BAR('G4', 'G5', 'b1w') + stamp('b2')))
OPT['dsp'] = DSP
P += weave(fine('S', S_items, 3), fill, pin, 0, 62 - LA_F)

Q = FACC[1]
V = lambda t: SRE + t if t % 2 == 0 else SIM + t - 1
AGR, AGI = VRS, t3
fill = []
coef = []
for q in range(8):
    for h in range(2):
        r = 2 * q + h
        fill += L(f"""v_mul_f32 v{TT + 2 * h}, v{SRE + r}, v{CR}
            v_mul_f32 v{TT + 2 * h + 1}, v{SRE + r}, v{NCI}
            v_fmac_f32 v{TT + 2 * h}, v{SIM + r}, v{NCI}
            v_fmac_f32 v{TT + 2 * h + 1}, v{SIM + r}, v{NCR}""")
    for h in range(2):
        r = 2 * q + h
        fill += L(f"""v_mul_f32 v{V(r)}, v{TT + 2 * h}, v{Q + r}
            v_mul_f32 v{V(r) + 1}, v{TT + 2 * h + 1}, v{Q + r}""")
    coef.append(fill)
    fill = []
step = lambda d, p, c: L(f"""v_pk_fma_f32 {vr(d, 2)}, {vr(p, 2)}, {vr(LR, 2)}, {vr(c, 2)} op_sel_hi:[1,0,1]
    v_pk_fma_f32 {vr(d, 2)}, {vr(p, 2)}, {vr(NLI, 2)}, {vr(d, 2)} op_sel:[1,0,0] op_sel_hi:[0,1,1]""")
horner = [step(AGR if r & 1 else TT + 4, V(0) if r == 1 else (TT + 4 if r & 1 else AGR), V(r)) for r in range(1, 16)]
fill = fetch(seg=t1) + fill + L(f's_mov_b32 s{sKC[0]}, {M2LN2:#x}')
fill.append(I(f'ds_write_b64 v{t1}, {vr(AGR, 2)} offset:{7 * 256}', tok='segw'))
frounds = [(1, rg(8)), (12, rg(9))] if OPT['sch'] == 1 else [(1, rg(9)), (12, rg(10))] if OPT['sch'] == 2 else \
    [(0, rg(9)), (OPT['g10'], rg(10)), (2 * OPT['g10'], rg(11))]
staged_names = list(STAGE)
pin = pins(*frounds, (15 - LA_F, BAR('G6', 'G7')), (31, BAR('segw')),
           *[(22, stage_load(n)) for n in staged_names[:1]])
if 0 <= OPT['pfat'] < 32:
    pin.setdefault(OPT['pfat'], []).extend(pf)
NB = OPT['nb0']
per = 8 // NB
plan = [(1, [], [])]
for n in range(NB):
    lo, hi = max(2 * per * n - 1, 0), 2 * per * (n + 1) - 1
    plan.append((1 + (n + 1) * 28 // NB, sum(coef[per * n:per * (n + 1)], []), sum(horner[lo:hi], [])))
P += staged(fine('F0', F_items[0], 3), pin, plan + [(30, fill, []), (31, [], [])])
P += stamp('F0')

E = ASc[0]
R0, R1, T0_, T1_ = TT + 8, TT + 12, ASc[0], ASc[2]
h0, h1 = mish_stages(0, 0), mish_stages(0, 1)
rd = lambda dst, k: I(f'ds_read2_b64 {vr(dst, 4)}, v{t1} offset0:{32 * k} offset1:{32 * k + 32}')
publish = cmul_add(E, E + 2, L16R, L16I, PR, PI, AGR, AGI) + fetch(pub=t1) + L(f"""v_mov_b32 v{E + 1}, s{sTAG}
    v_mov_b32 v{E + 3}, s{sTAG}
    buffer_store_dwordx4 {vr(E, 4)}, v{t1}, {srd(sWS)}, 0 offen sc1""")
frounds = [(0, rg(10)), (8, rg(11))] if OPT['sch'] == 1 else [(0, rg(11))] if OPT['sch'] == 2 else []
pin = pins(*frounds, (OPT['wa0'], rw('WA0')), (31 - LA_F, BAR('G8', 'G9', 'G10', 'G11')),
           *zip((8, 24), map(stage_load, staged_names[1:3])))
if OPT['pfat'] >= 32:
    pin.setdefault(OPT['pfat'] - 32, []).extend(fetch(pfa=FAd) + L(pf[0].text.replace(f'v{PI}', f'v{FAd}')))
GA = [int(x) for x in str(OPT['stg1']).split('.')]
P += staged(fine('F0', F_items[1], 3), pin, [
    (GA[0], [rd(R0, 0), rd(R1, 2)] + h0['rd'], h0['A']),
    (GA[1], h0['ex'], cmul_pk(PR, L16R, R0, R0 + 2) + cmul_pk(T0_, L16R, PR, R1) + cmul_pk(PR, L16R, T0_, R1 + 2) + h0['B']),
    (GA[2], [rd(R0, 4), I(f'ds_read_b64 {vr(R1, 2)}, v{t1} offset:{6 * 256}')] + h0['rc'],
     cmul_pk(T0_, L16R, PR, R0) + cmul_pk(T1_, L16R, T0_, R0 + 2) + cmul_pk(PR, L16R, T1_, R1) + h0['C']),
    (GA[3], h1['rd'] + publish + h0['fin'], h1['A']),
    (GA[4], h1['ex'], h1['B']),
    (GA[5], h1['rc'], h1['C']),
    (31, h1['fin'], [])])
P += stamp('F1')

LBA = [CR, NCI]
LBE = [NCR, L16R]
LBD = [ASc[0], QG[0]]
FLV = L16I
lb_loads = '\n'.join(f'buffer_load_dwordx4 {vr(LBD[e], 4)}, v{LBA[e]}, {srd(sWS)}, 0 offen sc1' for e in range(2))
lb_setup = fetch(lba0=LBA[0], lba1=LBA[1], lbe0=LBE[0], lbe1=LBE[1])


def flag_store(stage, toks):
    out = [Wait(*toks), I(f'buffer_store_dword v{FLV}, v{FLA}, {srd(sWS)}, 0 offen offset:{128 * stage} sc1')]
    if OPT['ppf']:
        so = (sFST[0], sSST, sFST[2])[stage]
        vpf = L128R if stage else t3
        out = [I(f'v_lshlrev_b32 v{vpf}, {6 if stage < 2 else "s%d" % sSEL[1]}, v{vL}')] + out
        out.append(I(f'buffer_load_dword a{60 + (stage & 1)}, v{vpf}, {srd(sWS)}, s{so} offen sc1'))
    return out


def flag_load(stage):
    return f'buffer_load_dword v{t3}, v{FLP}, {srd(sWS)}, 0 offen offset:{128 * stage} sc1'


flag_check = f'v_cmp_ne_u32 vcc, s{sTAG}, v{t3}'
lb_check = f"""v_bitop3_b32 v{t0}, v{LBD[0] + 1}, v{LBD[0] + 3}, v{LBE[0]} bitop3:0x7e
    v_bitop3_b32 v{t1}, v{LBD[1] + 1}, v{LBD[1] + 3}, v{LBE[1]} bitop3:0x7e
    v_or_b32 v{t0}, v{t0}, v{t1}
    v_cmp_ne_u32 vcc, 0, v{t0}"""
lb_part = stamp('lb0') + poll('lb', lb_loads, lb_check) + stamp('lb1')
lb_part += cmul_add(LBD[0] + 1, LBD[0] + 3, L128R, L128I, LBD[0], LBD[0] + 2, LBD[1], LBD[1] + 2)
lb_part += cmul_add(LBD[1], LBD[1] + 1, WR, WI, LBD[0] + 1, LBD[0] + 3)
lb_part += fetch(lbw=t1)
lb_part.append(I(f'ds_write_b64 v{t1}, {vr(LBD[1], 2)}', tok='lbw'))
HW, HR, HB = ASc[0], ASc[1], FACC[1]
HW2, HR2 = WR, WI
tail_addr = fetch(lbr=ASc[3], fla=FLA, flp=FLP) + L(f'v_mov_b32 v{FLV}, s{sTAG}')
lb_reads = [I(f'ds_read2_b64 {vr(HB + 4 * q, 4)}, v{ASc[3]} offset0:{64 * q} offset1:{64 * q + 32}') for q in range(4)]
scan = [I(f'v_pk_add_f32 {vr(HB + a, 2)}, {vr(HB + a, 2)}, {vr(HB + b_, 2)}')
        for a, b_ in ((0, 2), (4, 6), (8, 10), (12, 14), (0, 4), (8, 12), (0, 8))]
scan += cmul_add(L128R, L128I, LSR, LSI, HB, HB + 1, PR, PI)
pack = lambda q: L(f"""v_cvt_pk_bf16_f32 v{SRE + q}, v{V(2 * q)}, v{V(2 * q + 1)}
    v_cvt_pk_bf16_f32 v{SIM + q}, v{V(2 * q) + 1}, v{V(2 * q + 1) + 1}""")
for r in range(16):
    prev = vr(L128R if r == 0 else V(r - 1), 2)
    scan += L(f"""v_pk_fma_f32 {vr(V(r), 2)}, {prev}, {vr(LR, 2)}, {vr(V(r), 2)} op_sel_hi:[1,0,1]
        v_pk_fma_f32 {vr(V(r), 2)}, {prev}, {vr(NLI, 2)}, {vr(V(r), 2)} op_sel:[1,0,0] op_sel_hi:[0,1,1]""")
    if r >= 2 and r % 2 == 0 and OPT['pk_in']:
        scan += pack(r // 2 - 1)
HRS = AS
transp = fetch(hw=HW, hw2=HW2, hr=HRS[0]) + [I(f'v_xor_b32 v{HRS[n]}, {16 * n}, v{HRS[0]}') for n in (1, 2, 3)] + sum((pack(q) for q in range(7 if OPT['pk_in'] else 0, 8)), [])
for ri in range(2):
    transp += [I(f'ds_write_b128 v{(HW, HW2)[h]}, {vr((SRE, SIM)[ri] + 4 * h, 4)}') for h in range(2)]
    for fr in range(2):
        for u in range(2):
            transp.append(I(f'ds_read_b64_tr_b16 {ar(aOS + 8 * ri + 4 * fr + 2 * u, 2)}, v{HRS[2 * u + fr]} offset:{256 * u}'))
stH = [I(f'buffer_store_dwordx4 {ar(aOS + 4 * q, 4)}, v{VL16}, {srd(sWS)}, s{sSST} offen offset:{1024 * q} sc1',
         tok='stH' if q == 3 else None) for q in range(4)]
h0, h1 = mish_stages(1, 0), mish_stages(1, 1)
g0, g1 = mish_stages(2, 0), mish_stages(2, 1)
pin = pins((0, rw('CR0')), (8, rw('CI0')), (18, rw('WA1')), (29, BAR('lbw') + lb_reads + g0['rd'] + g1['rd']), (OPT['lbl'], L(lb_loads)),
           *[(25, stage_load(n)) for n in staged_names[3:4]])
GB = [int(x) for x in str(OPT['stg2']).split('.')]
P += staged(fine('F2', F_items[2], 2), pin, [
    (GB[0], h0['rd'] + h1['rd'] + lb_setup, h0['A']),
    (GB[1], h0['ex'], h0['B'] + h1['A']),
    (GB[2], h0['rc'] + h1['ex'], h0['C'] + h1['B']),
    (GB[3], h0['fin'] + h1['rc'], h1['C']),
    (28, h1['fin'] + lb_part + tail_addr, []),
    (31, [], [])])
P += stamp('F2')
burst = scan + g0['A']
if OPT['fas'] < 0:
    burst = burst[:OPT['fas']] + flag_store(0, ['stF0', 'stF1']) + burst[OPT['fas']:]
if OPT['fine'] == 'T':
    for n in range(len(burst) - 12, 0, -12):
        burst = burst[:n] + stamp(f'g{n}') + burst[n:]
P += burst
P += stamp('scan')


FP0, CP0, FPc = [NLI, LI, LR, CR], [NCI, NCR], QG
PA = OPT['pa']
p3_setup = fetch(fp0=FP0[0], fp1=CP0[0], f3o=ASc[2]) + [I(f'v_xor_b32 v{FP0[n]}, {32 * n}, v{FP0[0]}') for n in (1, 2, 3)]
p3_setup.append(I(f'v_xor_b32 v{CP0[1]}, 64, v{CP0[0]}'))
hs = OPT['hs']
lead = [i_ for i_ in transp if i_.kind != 'ds']
tds = transp[len(lead):]
P += lead
tpins = [(0, tds[0:1]), (1, tds[1:2]), (2, tds[2:4]), (3, tds[4:6]), (4, tds[6:7]), (5, tds[7:8] + stH[0:1]),
         (6, tds[8:10]), (7, tds[10:12] + stH[1:2]), (7 + hs, stH[2:3]), (7 + 2 * hs, stH[3:4])]

steps = ([('WA0', x, 'own') for x in range(4)]
         + [(n, x, 'own') for n in ('CR0', 'CI0') for x in range(2)]
         + [(f'WA{e}', x, 'A') for e in (1, 2, 3) for x in range(4)]
         + [(n, x, 'H') for n in ('CR0', 'CI0') for x in (2, 3)]
         + [(n, x, 'H') for n in ('CR1', 'CI1') for x in range(4)]
         + [('WB0', x, 'own') for x in range(4)]
         + [(f'WB{e}', x, 'B') for e in (1, 2) for x in range(4)])
deferred = [k for k, st in enumerate(steps) if st[2] != 'own']
A_REGS = ([192 + 4 * n for n in range(16)] + [SRE + 4 * n for n in range(8)]
          + [FACC[0] + 4 * n for n in range(4)] + [TT + 4 * n for n in range(4)])
ACC = [128, 144, 160, 176]
cur_addr = {}


def a_frag(k):
    name, x, src = steps[k]
    if src != 'own':
        return vr(A_REGS[deferred.index(k)], 4)
    if name == 'WA0':
        return ar(aOF + 4 * x, 4)
    if name == 'WB0':
        return ar(aOF + 16 + 4 * x, 4) if x < 2 else vr(FACC[1] + 4 * (x - 2), 4)
    return ar(aOS + 8 * (name[1] == 'I') + 4 * x, 4)


def a_load(k):
    name, x, src = steps[k]
    e = int(name[2])
    if name[0] == 'C':
        so, off = sAO['H'][2 * e + (x >> 1)], 2048 * (name[1] == 'I') + 1024 * (x & 1)
    else:
        so, off = sAO[name[1]][e], 1024 * x
    return [I(f'buffer_load_dwordx4 {a_frag(k)}, v{VL16}, {srd(sWS)}, s{so} offen offset:{off} sc1')]


pin = pins((PA, rw2('WA2')), (PA + 8, BAR()), (PA + 9, rw2('WA3')), (PA + 17, BAR()), (PA + 18, rw2('CR1')),
           (OPT['fal'], L(flag_load(0))), (30, BAR('WA0', 'CR0', 'CI0', 'WA1')), *tpins)
if OPT['fhs'] >= 0:
    pin.setdefault(OPT['fhs'], []).extend(flag_store(1, ['stH']))
if OPT['fas'] >= 0:
    pin.setdefault(OPT['fas'], []).extend(flag_store(0, ['stF0', 'stF1']))
m3 = mish_pk(3, ASc[2])
GC = [int(x) for x in str(OPT['stg3']).split('.')]
P += staged(fine('F3', F_items[3], 2), pin, [
    (GC[0], g0['ex'], g0['B'] + g1['A']),
    (GC[1], g0['rc'] + g1['ex'], g0['C'] + g1['B']),
    (GC[2], g0['fin'] + g1['rc'], g1['C']),
    (29, g1['fin'][:4] + m3[:4] + g1['fin'][4:] + p3_setup, []),
    (31, [], [])])
P += stamp('F3')

m3 = m3[4:]
st0 = 40
early = sum((a_load(k) for k in range(8, 8 + OPT['nea'])), [])
if not OPT['ovl']:
    fac = st0 - OPT['fac']
    TAIL0 = len(P)
    P += m3[:fac] + (flag_store(1, ['stH']) if OPT['fhs'] == -1 and not OPT['fhp'] else [])
    P += stamp('fa0') + poll('fa', flag_load(0), flag_check) + stamp('fa1')
    tl = merge(m3[fac:st0], early) + (flag_store(1, ['stH']) if OPT['fhp'] else []) + m3[st0:]
    TAIL1 = len(P) + len(tl) - len(m3) + st0
    if OPT['fine'] == 'T':
        for n in range(len(tl) - 12, 0, -12):
            tl = tl[:n] + stamp(f'gt{n}') + tl[n:]
    P += tl
    P += stamp('tail')

XE, ME = 192, LSR
ep_setup = L(f"""v_lshrrev_b32 v{t1}, 5, v{vL}
    s_lshl_b32 s{sT2}, s{sW}, 8
    s_add_u32 s{sT2}, s{sT2}, {T_STAT}
    v_lshl_add_u32 v{VLN2}, v{t1}, 4, s{sT2}
    v_lshlrev_b32 v{FA0}, 13, v{t1}
    v_and_b32 v{t0}, 31, v{vL}
    v_lshl_add_u32 v{FA0}, v{t0}, 2, v{FA0}""")
VL4 = ASc[0]
ep_setup = L(f'v_lshlrev_b32 v{VL4}, 2, v{vL}') + ep_setup
base_calc = [I(f'v_accvgpr_read_b32 v{RL2}, a{aXE + 16}')]
for qt in range(4):
    base_calc += [I(f'ds_read_b128 {vr(ME, 4)}, v{VLN2} offset:{4 * ROW(4 * qt)}', hoist=True),
                  I(f'ds_read_b128 {vr(ME + 4, 4)}, v{VLN2} offset:{128 + 4 * ROW(4 * qt)}', hoist=True)]
    rs = range(4)
    base_calc += [I(f'v_accvgpr_read_b32 v{XE + 4 * qt + r}, a{aXE + 4 * qt + r}') for r in rs]
    base_calc += [I(f'v_sub_f32 v{ME + r}, v{XE + 4 * qt + r}, v{ME + r}') for r in rs]
    base_calc += [I(f'v_mul_f32 v{ME + r}, v{ME + r}, v{ME + 4 + r}') for r in rs]
    base_calc += [I(f'v_fmac_f32 v{XE + 4 * qt + r}, v{ME + r}, v{RL2}') for r in rs]

def checksum(dst, src, last):
    return [f'v_bitop3_b32 v{dst}, v{src}, v{src + 1}, {last} bitop3:0x96'] + \
           [f'v_bitop3_b32 v{dst}, v{src + e}, v{src + e + 1}, v{dst} bitop3:0x96' for e in (2, 4, 6)]


def send(b):
    A = ACC[b]
    out = []
    for q in range(2):
        out += [I(f'v_cvt_pk_bf16_f32 v{A + e}, v{A + 2 * e}, v{A + 2 * e + 1}') for e in range(4 * q, 4 * q + 4)]
        out.append(I(f'buffer_store_dwordx4 {vr(A + 4 * q, 4)}, v{VL16}, {srd(sWS)}, s{sXO[b]} offen '
                     f'offset:{1024 * q} sc1'))
    out += [I(c) for c in checksum(A + 8, A, f's{sTAG}')]
    out.append(I(f'buffer_store_dword v{A + 8}, v{VL4}, {srd(sWS)}, s{sXO[b]} offen offset:2048 sc1'))
    return out


def w_read1(k, b, dst):
    name, x, src = steps[k]
    slot = W_SLOT[name]
    out = []

    def address(cur, base):
        if slot < 4:
            return base, slot * SLOT
        if not 0 <= slot - cur_addr.get(cur, -9) < 4:
            cur_addr[cur] = 4 if slot == 4 else 5
            out.append(I(f'v_add_u32 v{cur}, {cur_addr[cur] * SLOT}, v{base}'))
        return cur, (slot - cur_addr[cur]) * SLOT

    if name[0] == 'C':
        a, off = address(AS[x >> 1], CP0[x >> 1])
        return out + [I(f'ds_read_b128 {ar(dst, 4)}, v{a} offset:{off + 4096 * b + 2048 * (x & 1)}', lds_r=slot)]
    var = 2 * (b & 1) + (x & 1)
    a, off = address(FPc[var], FP0[var])
    return out + [I(f'ds_read_b64_tr_b16 {ar(dst + 2 * u, 2)}, v{a} '
                    f'offset:{off + 8192 * (x >> 1) + 4096 * (b >> 1) + 1024 * u}', lds_r=slot) for u in range(2)]


RX = {1: ACC[1], 2: ACC[2], 3: ACC[3]}


def recv(b):
    so = sXO[0] if b == 1 else sSEL[b]
    rl = [f'buffer_load_dwordx4 {vr(RX[b] + 4 * q, 4)}, v{VL16}, {srd(sWS)}, s{so} offen offset:{1024 * q} sc1' for q in range(2)]
    rl.append(f'buffer_load_dword v{RX[b] + 8}, v{VL4}, {srd(sWS)}, s{so} offen offset:2048 sc1')
    return '\n'.join(rl)


pre = L(f"""s_lshl_b32 s{sXB}, s{sXB}, 1
    s_mov_b32 s{sKC[0]}, 0x00003f80
    s_mov_b32 s{sKC[1]}, 0x3f800000""")
E3 = OPT['e3']
D0 = OPT['d0']
seq = [(k, b) for k in range(D0) for b in (1, 2, 3, 0)] + [(k, b) for k in range(D0, E3) for b in (1, 2, 3)]
seq += [(k, b) for k in range(E3, 36) for b in (1, 2)]
seq += [(k, b) for b in (1, 2) for k in range(36, 44)]
own8 = [(k, 0) for k in range(8, 12)]
seq += (own8 if OPT['o8'] else []) + [(k, 3) for k in range(E3, 44)] + ([] if OPT['o8'] else own8)
seq += [(k, 0) for k in list(range(D0, 8)) + list(range(12, 44))]
at = {kb: n for n, kb in enumerate(seq)}
done_at = {b: at[43, b] for b in (1, 2, 3)}
KEEP = {(k, 0): aWO + 4 * (k - 8) for k in range(8, 12)}
KEEP.update({(k, 0): aWO + 16 + 4 * k for k in range(D0, 4)})
reads = sorted((kb for kb in seq), key=lambda kb: at[kb[0], 3] + 0.5 if kb in KEEP else at[kb])
RING = 12
where, nring = {}, 0
for kb in reads:
    if kb in KEEP:
        where[kb] = KEEP[kb]
    else:
        where[kb] = aP + 4 * (nring % RING)
        nring += 1
LA_J = OPT['laj']
items = []
rd = 0
seen = set()
for n, (k, b) in enumerate(seq):
    pre_rd = []
    while rd < len(reads) and (at[reads[rd][0], 3] if reads[rd] in KEEP else at[reads[rd]]) <= n + LA_J:
        pre_rd += w_read1(*reads[rd], where[reads[rd]])
        rd += 1
    mm = []
    for a in range(2):
        d = vr(ACC[b] + 8 * a + 4 * (k & 1), 4)
        mm.append(I(f'v_mfma_f32_16x16x32_bf16 {d}, {a_frag((k & ~1) + a)}, {ar(where[k, b], 4)}, '
                    f'{d if (b, k & 1) in seen else 0}'))
    seen.add((b, k & 1))
    if n == 0:
        if OPT['ovl']:
            k_ = max(n_ for n_, i_ in enumerate(P) if i_.kind == 'barrier') + 1
            P = P[:k_] + pre_rd + P[k_:]
        elif OPT['wmix']:
            end = len(P) - (PROF in (1, 2)) - 10
            P = P[:TAIL1] + merge(P[TAIL1:end], pre_rd) + P[end:]
        else:
            P = P[:TAIL0] + pre_rd + P[TAIL0:]
        pre_rd = []
    nds = [n_ for n_, i_ in enumerate(pre_rd) if i_.kind == 'ds']
    half = nds[len(nds) // 2] if OPT['bal'] and len(nds) > 1 else len(pre_rd)
    items.append([mm[0]] + pre_rd[:half] + [mm[1]] + pre_rd[half:])
pin = {n: [] for n in range(len(items))}
B1 = at[4, 1] + 2
pin[B1] += BAR('WA2')
pin[at[16, 1] - LA_J - 1] += [Wait('WA3', 'CR1', 'CI1'), I('s_barrier')]
pin[at[32, 1] - LA_J - 1] += [Wait('WB0', 'WB1', 'WB2'), I('s_barrier')]
if OPT['fhs'] < -1:
    pin[-OPT['fhs']] += flag_store(1, ['stH'])
if OPT['fhl'] >= 0:
    pin[OPT['fhl']] += L(flag_load(1))
pin[OPT['fhc']] += stamp('fh0') + poll('fh', flag_load(1), flag_check) + stamp('fh1')
pin[OPT['fls']] += flag_store(2, ['stF3', 'stF2'])
pin[OPT['fll']] += L(flag_load(2))
pin[OPT['flc']] += stamp('fl0') + poll('fl', flag_load(2), flag_check) + stamp('fl1')
pin[at[36, 1] - 1] += stamp('k36')
for name, gap in (('CI1', 1), ('WB0', 19), ('WB1', 24), ('WB2', at[16, 1] - LA_J)):
    if name in STAGE:
        for n, i_ in enumerate(stage_write(name)):
            pin[gap + max(n - 2, 0)].append(i_)
_rw = rw
rw = lambda name: [] if name in STAGE else _rw(name)
queue = []
if OPT['ovl']:
    pin[OPT['ofa']] += stamp('fa0') + poll('fa', flag_load(0), flag_check) + stamp('fa1')
    queue += [(OPT['ofa'], a_load(k)) for k in range(8, 8 + OPT['nea'])]
queue += [(OPT['q0'], a_load(k)) for k in range(8 + OPT['nea'], 16)] + [(0, rw('CI1'))]
queue += [(OPT['q0'], a_load(k)) for k in range(max(16, 8 + OPT['nea']), 20)]
if OPT['qord'] == 0:
    queue += [(B1 + 1, rw('WB0'))] + [(OPT['fhc'], a_load(k)) for k in range(20, 32)] + [(B1 + 1, rw('WB1'))]
elif OPT['qord'] == 1:
    queue += [(B1 + 1, rw('WB0')), (B1 + 1, rw('WB1'))] + [(OPT['fhc'], a_load(k)) for k in range(20, 32)]
else:
    queue += [(OPT['fhc'], a_load(k)) for k in range(20, 24)] + [(B1 + 1, rw('WB0')), (B1 + 1, rw('WB1'))]
    queue += [(0, a_load(k)) for k in range(24, 32)]
queue += [(at[16, 1] - LA_J, rw('WB2'))]
queue += [(OPT['flc'], a_load(k)) for k in range(36, 44)]
n = 0.0
for first_gap, ins in queue:
    n = max(n, first_gap)
    pend = []
    for i_ in ins:
        pend.append(i_)
        if i_.kind == 'vm':
            pin[int(n)] += pend
            pend = []
            n += OPT['pace'] / 10
for b in (1, 2, 3):
    sd = send(b)
    for q in range(4):
        pin[done_at[b] + 3 + q] += sd[q * len(sd) // 4:(q + 1) * len(sd) // 4]
    pin[done_at[min(b + 1, 3) if b < 3 else 3] + OPT[f'r{b}'] if b != 2 else done_at[2] + OPT['r2']] += L(recv(b))
pin[done_at[2] + 6] += stamp('s12')
pin[done_at[3] + 6] += stamp('sent')
items = fine('P3', items[:OPT['fn'] * 27], OPT['fn']) + items[OPT['fn'] * 27:]
LEV[0] = OPT['lev3']
sub = lambda lo, hi: {n - lo: pin[n] for n in range(lo, hi)}
unit_weave = weave


def weave(its, fill_, pin_, lo=0, hi=None):
    if not OPT['fineg']:
        return unit_weave(its, fill_, pin_, lo, hi)
    flat, pin2 = [], {}
    for n, it in enumerate(its):
        cut_ = max(k_ for k_, i_ in enumerate(it) if i_.kind == 'mfma')
        flat += [it[:cut_], it[cut_:]]
        ordered = any(i_.kind in ('barrier', 'pseudo', 'label') for i_ in pin_.get(n, []))
        first = len(flat[-2]) < len(flat[-1]) and not ordered
        pin2[2 * n + (0 if first else 1)] = pin_.get(n, [])
    return unit_weave(flat, fill_, pin2, 2 * lo, None if hi is None else 2 * hi + 1)


c1, c2 = at[32, 1], at[11, 0] + 1
if OPT['ovl']:
    GD = [int(x) for x in str(OPT['stg4']).split('.')]
    both = lambda lo, hi: m3[lo:hi] + m3[40 + lo:40 + hi]
    P += staged(items[:c1], pin, [(GD[0], [], both(0, 4)), (GD[1], both(4, 12), both(12, 20)),
                                  (GD[2], both(20, 28), both(28, 36)),
                                  (GD[3], both(36, 40) + m3[80:] + stamp('tail'), []), (c1 - 1, [], [])])
else:
    P += weave(items[:c1], [], sub(0, c1))
P += weave(items[c1:c2], ep_setup + pre, sub(c1, c2), 0, 6)
SWAPS = lambda R: [I(f'v_permlane16_swap_b32 v{R + 8 * a + r}, v{R + 8 * a + 4 + r}') for a in range(2) for r in range(4)]
base_calc += SWAPS(XE)


def rx_check(b):
    chk = checksum(RX[b] + 9, RX[b], f'v{RX[b] + 8}') + [f'v_cmp_ne_u32 vcc, s{sTAG}, v{RX[b] + 9}']
    return poll(f'rx{b}', recv(b), '\n'.join(chk))


EARLY = range(1, 1 + OPT['rxe'])
for b in EARLY:
    base_calc += rx_check(b)
    for q in range(8):
        u = RX[b] + 10 + 2 * (q & 1)
        base_calc += L(f"""v_lshlrev_b32 v{u}, 16, v{RX[b] + q}
            v_and_b32 v{u + 1}, 0xffff0000, v{RX[b] + q}
            v_add_f32 v{XE + 2 * q}, v{XE + 2 * q}, v{u}
            v_add_f32 v{XE + 2 * q + 1}, v{XE + 2 * q + 1}, v{u + 1}""")
P += weave(items[c2:], base_calc, sub(c2, len(items)), 3, len(items) - c2 - (3 if OPT['rxe'] else 6))
P += stamp('own')
A0 = ACC[0]
for q in range(8):
    P.append(I(f'v_pk_add_f32 {vr(A0 + 2 * q, 2)}, {vr(A0 + 2 * q, 2)}, {vr(XE + 2 * q, 2)}'))
LATE = [b for b in (1, 2, 3) if b not in EARLY]
for b in LATE:
    P += rx_check(b)
    if OPT['seqadd'] and b < 3:
        P += [I(f'v_dot2c_f32_bf16 v{A0 + 2 * q + h}, s{sKC[h]}, v{RX[b] + q}') for q in range(8) for h in range(2)]
if OPT['seqadd']:
    LATE = [3]
P += stamp('rx')
sts = []
for a in range(2):
    for q in range(4 * a, 4 * a + 4):
        for b in LATE:
            P += [I(f'v_dot2c_f32_bf16 v{A0 + 2 * q + h}, s{sKC[h]}, v{RX[b] + q}') for h in range(2)]
        P += sts[3 * (q & 3):3 * (q & 3) + 3]
    P += SWAPS(A0)[4 * a:4 * a + 4]
    sts = []
    for q in range(4 * a, 4 * a + 4):
        sts.append(I(f's_add_u32 s{sBB}, s{sXB}, {2048 * ROW(2 * q)}'))
        sts += [I(f'buffer_store_dword v{A0 + 2 * q + h}, v{FA0}, {srd(sOUT)}, s{sBB} offen offset:{2048 * h} '
                  f'{OPT["out_flags"].replace("+", " ")}') for h in range(2)]
P += L(f"""s_lshl_b32 s{sT2}, s{sJ}, 2
    s_add_u32 s{sT2}, s{sT2}, s{sW}
    s_xor_b32 s{sT1}, s{sI}, 15
    s_or_b32 s{sT2}, s{sT2}, s{sT1}
    s_cmp_eq_u32 s{sT2}, 0
    s_cselect_b32 s{sT2}, {WS_EP}, {OOB:#x}
    v_mov_b32 v{t0}, s{sE2}
    v_mov_b32 v{t1}, s{sT2}""") + sts + L(f'buffer_store_dword v{t0}, v{t1}, {srd(sWS)}, 0 offen')
if OPT['diag']:
    P += stamp('end') + L("""s_memrealtime s[6:7]
        s_waitcnt lgkmcnt(0)
        s_sub_u32 s4, s4, s23
        s_lshl_b32 s4, s4, 2
        s_min_u32 s4, s4, 20000
        L_diag:
        s_memrealtime s[0:1]
        s_waitcnt lgkmcnt(0)
        s_sub_u32 s0, s0, s6
        s_cmp_lt_u32 s0, s4
        s_cbranch_scc1 L_diag""")
if PROF:
    P += stamp('end')
    P += L(f"""s_waitcnt vmcnt(0)
        s_memrealtime s[0:1]
        s_lshl_b32 s{sT2}, s2, 2
        s_add_u32 s{sT2}, s{sT2}, s{sW}
        s_lshl_b32 s{sT2}, s{sT2}, 7
        s_add_u32 s{sT2}, s{sT2}, {WS_PROF}
        v_mov_b32 v{t1}, s{sT2}
        s_waitcnt lgkmcnt(0)
        v_mov_b32 v{t0}, s0
        buffer_store_dword v{t0}, v{t1}, {srd(sWS)}, 0 offen offset:124
        v_mov_b32 v{t2}, s23
        buffer_store_dword v{t2}, v{t1}, {srd(sWS)}, 0 offen offset:112
        buffer_store_dword a254, v{t1}, {srd(sWS)}, 0 offen offset:116
        buffer_store_dword a255, v{t1}, {srd(sWS)}, 0 offen offset:120""")
    P += stamp('DUMP')
P += [I('L_end:'), I('s_endpgm')]

P = resolve_stamps(P)
if OPT['split']:
    P = split_ds_pairs(P)
if OPT['hoist']:
    P = hoist_reads(P, OPT['hoist'])
body = pad_hazards(insert_waits(P, OPT['age']))
check_polls(body)
tail = []
for name, loads, check in retry_blocks:
    blk = [I(f'L_retry_{name}:'), I(f's_mov_b32 s3, {OPT["spin"]}'), I(f'L_spin_{name}:')]
    if PROF:
        blk.append(I(f's_add_u32 s23, s23, {1 << (4 * retry_blocks.index((name, loads, check)))}'))
    blk += L(loads) + [I('s_waitcnt vmcnt(0)')] + L(check)
    blk += L(f'''s_cbranch_vccz L_back_{name}
        s_sub_u32 s3, s3, 1
        s_cmp_lg_u32 s3, 0
        s_cbranch_scc1 L_spin_{name}
        s_branch L_back_{name}''')
    tail += pad_hazards(blk)

hdr = open(os.path.join(os.path.dirname(os.path.abspath(__file__)), 'header.txt')).read()
text = hdr + f'''; @launch grid=(256,1,1) block=(256,1,1) lds=163840
.amdgcn_target "amdgcn-amd-amdhsa--gfx950"
.text
.globl {KN}
.p2align 8
.type {KN},@function
{KN}:
{render(body)}
{render(tail)}
L_code_end:
    s_endpgm
.section .rodata,"a"
.p2align 6
.amdhsa_kernel {KN}
  .amdhsa_next_free_vgpr 512
  .amdhsa_next_free_sgpr 102
  .amdhsa_accum_offset 256
  .amdhsa_group_segment_fixed_size 0
  .amdhsa_kernarg_size 128
  .amdhsa_user_sgpr_count 2
  .amdhsa_user_sgpr_kernarg_segment_ptr 1
  .amdhsa_system_sgpr_workgroup_id_x 1
.end_amdhsa_kernel
'''
open(sys.argv[1], 'w').write(text)
if PROF:
    open(sys.argv[1][:-2] + '.stamps', 'w').write(' '.join(stamp_names))
from collections import Counter
cnt = Counter(i.kind for i in body)
print(dict(cnt), 'nops', sum(1 for i in body if i.mn == 's_nop'))
import subprocess
chk = subprocess.run([sys.executable, 'cdna_unwritten_srd_check.py', sys.argv[1]],
                     capture_output=True, text=True)
if chk.returncode != 0:
    os.remove(sys.argv[1])
    sys.exit('address check failed: ' + chk.stdout[-600:])
```

```python
import sys, os
sys.path.insert(0, os.path.dirname(os.path.abspath(__file__)))
from asmlib import I, Wait, insert_waits, pad_hazards, render, weave, split_ds_pairs, hoist_reads, merge, level, ds_first, check_polls

KN = 'parallel_sum__ssm_conv_s5__dense_activation_mish__prompt_kernel'
OPT = dict(prof=0, spin=20000, out_flags='nt', map='8x4', pf=2, age=16, laf=5, r1=30, r2=36, r3=29, e3=12, fls=28, fll=50, flc=68, ka2=1, nstep=0, split=0, diag='', dsp=2, xel=0, tlb=0, pk_in=1, lateln=100, d0=4, o8=1, bal=0, fineg=1, xes=0, xfirst=1, parat=4, nb0=2, stg3='8.16.23', stg1='2.7.12.17.22.27', stg2='2.6.14.21', fhp=0, wmix=1, ntx=0, ntg=0, ntw=0, lbt=0, rxe=0, dspc=3, dsps=3, sch=3, g3=24, fn=2, stg=0, q0=2, pfat=24, seqadd=1, cfs=1, bsp=2, bsa=0, bsb=0, ovl=0, ofa=0, stg4='1.9.17.21', g10=8, wa0=17, hs=2, rotj=0, rotm=0, laj=7, pace=16, lev=0, lev3=0, pa=2, fw=1, xw=0, vmc=2, fine='', fas=-10, fal=12, fac=16, nea=8, fhs=-1, fhl=12, fhc=32, qord=1, lbl=13, lbc=24, ppf=0, hoist=32)
for a in sys.argv[2:]:
    k, v = a.split('=')
    OPT[k] = int(v) if v.lstrip('-').isdigit() else v
PROF = OPT['prof']

WS_EP, WS_AG, WS_A = 0, 0x10000, 0x40000
WS_XC = WS_A + 64 * 176 * 1024
XC_BLK = 2560
WS_FL = WS_XC + 1024 * 3 * XC_BLK
WS_SIZE = WS_FL + 1024 * 512
WS_PROF = 0x1C00000
OOB = 0x7ff00000
SLOT = 16384
TB = 9 * SLOT
T_STAT, T_B1, T_SEG, T_LB, T_H = TB, TB + 1024, TB + 2048, TB + 6144, TB + 8192
LOG2E, LN2, M2LN2 = 0x3fb8aa3b, 0x3f317218, 0xbfb17218

sX, sB, sW1, sCre, sCim, sW2, sWS, sOUT, sTMP = 36, 40, 44, 48, 52, 56, 60, 64, 68
sI, sJ, sW, sROT, sTAG, sE2 = 72, 73, 74, 75, 76, 77
sKC = [78, 79, 80, 81]
sWOFF, sT0, sT1, sXB, sBB, sW1A, sW1B = 82, 83, 84, 85, 86, 87, 88
sAS = 89
sFST = [90, 91, 92, 93]
sSST, sCB, sW2B, sFSEL, sONES, sT3, sJJ, sT2 = 94, 95, 96, 97, 98, 99, 100, 101
sKQ, sPB, sXO = 22, [24, 25, 26], [27, 28, 29, 30]
sSEL = [31, 32, 33, 34]
sFLG = 35
pLRE, pLIM, pBRE, pBIM, pLDT, pDSK, pB1 = 8, 10, 12, 14, 16, 18, 20
srd = lambda b: f's[{b}:{b + 3}]'
vL, t0, t1, t2 = 0, 1, 2, 3
AS = [4, 5, 6, 7]
ASc = [8, 9, 10, 11]
XG = [12, 13, 14, 15]
PG = [16, 17, 18, 19]
QG = [20, 21, 22, 23]
FA0, FAc, RL2, VLN2, VL16, VNM, VRS, t3 = 24, 25, 26, 27, 28, 29, 30, 31
FAd = VNM
NLI, LI, LR, CR, NCI, NCR, L16R, L16I, LSR, LSI, L128R, L128I, WR, WI, PR, PI = range(32, 48)
TT = 48
FACC = [64, 80]
SRE, SIM = 96, 112
X = 128
aS, aF, aP, aOF, aOS, aWO, aXE = 0, 128, 0, 64, 88, 128, 224
STAMP_A = list(range(104, 128)) + list(range(241, 247))
vr = lambda b, n: f'v[{b}:{b + n - 1}]'
ar = lambda b, n: f'a[{b}:{b + n - 1}]'

stamp_names = []
FINE_KEEP = dict(T=['lb1', 'F2', 'scan', 'F3', 'fa0', 'fa1', 'tail', 'fh0'], S=['x7', 'c27', 'b0', 'F0'], F0=['b2', 'F0', 'F1'], F2=['F1', 'F2', 'scan'], F3=['F2', 'scan', 'F3', 'fa0', 'fa1', 'tail'],
                 P3=['tail'], L=['k36', 'sent', 'own', 'rx'])


def fine(phase, items, step):
    if OPT['fine'] == phase:
        for n in range(step - 1, len(items), step):
            items[n] = items[n] + stamp(f'g{n}')
    return items


def stamp(name):
    if PROF == 3 and name not in ('end', 'DUMP'):
        return []
    if OPT['fine'] and not name.startswith('g') and name not in FINE_KEEP[OPT['fine']] + ['end', 'DUMP']:
        return []
    if OPT['diag'] == name:
        return [I('s_memrealtime s[4:5]')]
    return [I(';stamp ' + name)] if PROF else []


def resolve_stamps(prog):
    out = []
    for ins in prog:
        if not ins.text.startswith(';stamp '):
            out.append(ins)
            continue
        name = ins.text.split()[1]
        n = len(stamp_names)
        if n:
            out.append(I(f'v_accvgpr_write_b32 a{STAMP_A[n - 1]}, s{4 + 2 * ((n - 1) & 1)}'))
        if name == 'DUMP':
            out += [I(f'buffer_store_dword a{STAMP_A[k]}, v{t1}, {srd(sWS)}, 0 offen offset:{4 * k}') for k in range(n)]
            continue
        assert n < 29
        stamp_names.append(name)
        out.append(I(f's_mem{"real" if PROF == 2 else ""}time s[{4 + 2 * (n & 1)}:{5 + 2 * (n & 1)}]'))
    return out


def L(text):
    return [I(t.strip()) for t in text.strip().split('\n') if t.strip()]


def mfma(d, a, b, c):
    return I(f'v_mfma_f32_32x32x16_bf16 {d}, {a}, {b}, {c}')


def mksrd(b, lo, size):
    return f's_mov_b32 s{b}, s{lo}\ns_mov_b32 s{b + 1}, s{lo + 1}\ns_mov_b32 s{b + 2}, {size}\ns_mov_b32 s{b + 3}, 0x00020000\n'


slot_shared = {}


def dma_round(name, slot, voffs, rsrc, soff_code, shared):
    out = [I(f's_add_u32 m0, s{sWOFF}, {slot * SLOT}')] + L(soff_code)
    for g in range(4):
        nt = int(name[1:]) < OPT['ntx'] if name[0] == 'x' else OPT['ntg'] if name[0] == 'G' else OPT['ntw']
        out.append(I(f'buffer_load_dwordx4 v{voffs[g]}, {srd(rsrc)}, s{sT0} offen offset:{1024 * g} {"nt " if nt else ""}lds',
                     tok=name if g == 3 else None,
                     lds_w=(slot, slot_shared.get(slot, False)) if g == 0 else None, note=name,
                     fills=(slot, shared) if g == 3 else None))
    slot_shared[slot] = shared
    return out


def rx(s, slot):
    return dma_round(f'x{s}', slot + 1, XG, sX,
                     f's_add_u32 s{sT0}, s{sROT}, {s}\ns_and_b32 s{sT0}, s{sT0}, 7\n'
                     f's_lshl_b32 s{sT0}, s{sT0}, 7\ns_add_u32 s{sT0}, s{sT0}, s{sXB}', False)


G_SLOT = [5, 6, 7, 8, 0, 1, 2, 3, 4, 5, 6, 7]
W_SLOT = dict(WA0=8, CR0=0, CI0=1, WA1=2, WA2=3, WA3=4, CR1=5, CI1=6, WB0=7, WB1=8, WB2=2)


def rg(g):
    if g < 4:
        return dma_round(f'G{g}', G_SLOT[g], PG, sB,
                         f's_lshl_b32 s{sT0}, s{sKC[g]}, 7\ns_add_u32 s{sT0}, s{sT0}, s{sBB}', True)
    base = sW1A if g < 8 else sW1B
    return dma_round(f'G{g}', G_SLOT[g], QG, sW1,
                     f's_mul_i32 s{sT0}, s{sKC[g & 3]}, {64 * 3584}\ns_add_u32 s{sT0}, s{sT0}, s{base}', True)


def rw(name):
    e = int(name[2])
    if name[0] == 'C':
        code = f's_xor_b32 s{sT0}, s{sCB}, {128 * e}'
        return dma_round(name, W_SLOT[name], PG, sCim if name[1] == 'I' else sCre, code, True)
    if name[1] == 'A':
        code = f's_xor_b32 s{sT0}, s{sJJ}, {e}\ns_lshl_b32 s{sT0}, s{sT0}, 17\ns_add_u32 s{sT0}, s{sT0}, s{sW2B}'
    else:
        code = f's_lshl_b32 s{sT0}, s{sPB[e]}, 16\ns_add_u32 s{sT0}, s{sT0}, s{sW2B}'
        if e == 0:
            code += f'\ns_xor_b32 s{sT0}, s{sT0}, s{sSEL[0]}'
    return dma_round(name, W_SLOT[name], XG, sW2, code, True)


STAGE = {n: 160 + 16 * k for k, n in enumerate(x for x in str(OPT['stg']).split('.') if x != '0')}
VST = t0


def stage_load(name):
    keep = dict(slot_shared)
    out = []
    for i_ in rw(name)[1:]:
        if i_.kind == 'vm':
            n = sum(j.kind == 'vm' for j in out)
            i_ = I(i_.text.replace('dwordx4 ', f'dwordx4 {ar(STAGE[name] + 4 * n, 4)}, ').replace(' lds', ''))
            i_.dma = True
        out.append(i_)
    slot_shared.clear()
    slot_shared.update(keep)
    return out


def stage_write(name):
    slot = W_SLOT[name]
    out = [I(f's_add_u32 s{sT0}, s{sWOFF}, {slot * SLOT}'), I(f'v_add_u32 v{VST}, s{sT0}, v{VL16}')]
    out += [I(f'ds_write_b128 v{VST}, {ar(STAGE[name] + 4 * g_, 4)} offset:{1024 * g_}', tok=name if g_ == 3 else None,
              lds_w=(slot, True) if g_ == 0 else None, note=name, fills=(slot, True) if g_ == 3 else None)
            for g_ in range(4)]
    return out


def rw2(name):
    if name not in STAGE:
        return rw(name)
    out = stage_write(name)
    for i_ in out[2:]:
        i_.dma = True
    return out


def pins(*parts):
    pin = {}
    for gap, ins in parts:
        head = [i_ for i_ in ins if not getattr(i_, 'dma', False)]
        pin.setdefault(gap, []).extend(head)
        for n, i_ in enumerate(ins[len(head):]):
            pin.setdefault(gap + n * OPT['dsp'], []).append(i_)
    return pin


BAR = lambda *toks: ([Wait(*toks)] if toks else []) + [I('s_barrier')]
PARK = {n: 247 if k == 16 else 48 + k for k, n in enumerate('pub seg lba0 lba1 lbe0 lbe1 fla flp lbw lbr hw hw2 hr hr2 f3o fp0 fp1'.split())}
PARK['pfa'] = 249


def park(**regs):
    return [I(f'v_accvgpr_write_b32 a{PARK[n]}, v{r}') for n, r in regs.items()]


def fetch(**regs):
    return [I(f'v_accvgpr_read_b32 v{r}, a{PARK[n]}') for n, r in regs.items()]


retry_blocks = []


def poll(name, loads, check):
    retry_blocks.append((name, loads, check))
    return L(check) + [I(f's_cbranch_vccnz L_retry_{name}'), I(f'L_back_{name}:')]


def cexp(dr, di, scale, zr, za):
    return L(f"""v_mul_f32 v{dr}, {scale}, v{zr}
        v_mul_f32 v{di}, {scale}, v{za}
        v_exp_f32 v{dr}, v{dr}
        v_fract_f32 v{di}, v{di}
        v_cos_f32 v{t3}, v{di}
        v_sin_f32 v{di}, v{di}
        v_mul_f32 v{di}, v{dr}, v{di}
        v_mul_f32 v{dr}, v{dr}, v{t3}""")


def cmul_add(dr, di, ar_, ai, br, bi, cr=None, ci=None):
    if cr is None:
        head = f'v_mul_f32 v{dr}, v{ar_}, v{br}\nv_mul_f32 v{di}, v{ar_}, v{bi}'
    else:
        head = f'v_fma_f32 v{dr}, v{ar_}, v{br}, v{cr}\nv_fma_f32 v{di}, v{ar_}, v{bi}, v{ci}'
    return L(head + f'\nv_fma_f32 v{dr}, -v{ai}, v{bi}, v{dr}\nv_fmac_f32 v{di}, v{ai}, v{br}')


def mish(b, voff=VL16, quarters=range(4)):
    A = FACC[b & 1]
    out = []
    for q in quarters:
        rs = range(4 * q, 4 * q + 4)
        out.append(I(f'ds_read_b128 {vr(TT + 4 * q, 4)}, v{t2} offset:{T_B1 - TB + 128 * b + 16 * q}', hoist=True))
        out += [I(f'v_fmac_f32 v{TT + r}, v{A + r}, v{RL2}') for r in rs]
        out += [I(f'v_exp_f32 v{A + r}, v{TT + r}') for r in rs]
        out += [I(f'v_add_f32 v{A + r}, 1.0, v{A + r}') for r in rs]
        out += [I(f'v_fma_f32 v{A + r}, v{A + r}, v{A + r}, 1.0') for r in rs]
        out += [I(f'v_rcp_f32 v{A + r}, v{A + r}') for r in rs]
        out += [I(f'v_fmamk_f32 v{A + r}, v{A + r}, {M2LN2:#x}, v{VLN2}') for r in rs]
        out += [I(f'v_mul_f32 v{TT + r}, v{TT + r}, v{A + r}') for r in rs]
        out += [I(f'v_cvt_pk_bf16_f32 v{A + p}, v{TT + 2 * p}, v{TT + 2 * p + 1}') for p in (2 * q, 2 * q + 1)]
        if q & 1:
            fr = q >> 1
            out.append(I(f'buffer_store_dwordx4 {vr(A + 4 * fr, 4)}, v{voff}, {srd(sWS)}, s{sFST[b]} offen '
                         f'offset:{1024 * fr} sc1', tok=f'stF{b}' if fr else None))
            if b < 3:
                out += [I(f'v_accvgpr_write_b32 a{aOF + 8 * b + 4 * fr + e}, v{A + 4 * fr + e}') for e in range(4)]
    return out


def mish_pk(b, voff, halves=range(2)):
    A = FACC[b & 1]
    out = []
    for q in range(2 * len(halves)):
        out.append(I(f'ds_read_b128 {vr(TT + 4 * q, 4)}, v{t2} offset:{T_B1 - TB + 128 * b + 16 * q}', hoist=True))
    for h in halves:
        ps = range(8 * h, 8 * h + 8, 2)
        rs = range(8 * h, 8 * h + 8)
        out += [I(f'v_pk_fma_f32 {vr(TT + p, 2)}, {vr(A + p, 2)}, {vr(RL2, 2)}, {vr(TT + p, 2)} op_sel_hi:[1,0,1]') for p in ps]
        out += [I(f'v_exp_f32 v{A + r}, v{TT + r}') for r in rs]
        out += [I(f'v_pk_add_f32 {vr(A + p, 2)}, {vr(A + p, 2)}, 1.0 op_sel_hi:[1,0]') for p in ps]
        out += [I(f'v_pk_fma_f32 {vr(A + p, 2)}, {vr(A + p, 2)}, {vr(A + p, 2)}, 1.0 op_sel_hi:[1,1,0]') for p in ps]
        out += [I(f'v_rcp_f32 v{A + r}, v{A + r}') for r in rs]
        out += [I(f'v_pk_fma_f32 {vr(A + p, 2)}, {vr(A + p, 2)}, s[{sKC[0]}:{sKC[1]}], {vr(RL2, 2)} '
                  f'op_sel:[0,0,1] op_sel_hi:[1,0,1]') for p in ps]
        out += [I(f'v_pk_mul_f32 {vr(TT + p, 2)}, {vr(TT + p, 2)}, {vr(A + p, 2)}') for p in ps]
        out += [I(f'v_cvt_pk_bf16_f32 v{A + p // 2}, v{TT + p}, v{TT + p + 1}') for p in ps]
    out += [I(f'v_permlane16_swap_b32 v{A + e}, v{A + 4 + e}') for e in range(4)]
    for h in range(2):
        out.append(I(f'buffer_store_dwordx4 {vr(A + 4 * h, 4)}, v{voff}, {srd(sWS)}, s{sFST[b]} offen '
                     f'offset:{1024 * h} sc1', tok=f'stF{b}' if h else None))
        if b < 3:
            out += [I(f'v_accvgpr_write_b32 a{aOF + 8 * b + 4 * h + e}, v{A + 4 * h + e}') for e in range(4)]
    return out


def mish_stages(b, h):
    m = mish_pk(b, VL16, range(2))
    body = m[4:]
    body = body[40:] if h else body[:40]
    return dict(rd=m[2 * h:2 * h + 2], A=body[0:4], ex=body[4:12], B=body[12:20], rc=body[20:28], C=body[28:36],
                fin=body[36:])


def cmul_pk(d, a, b, c):
    return L(f"""v_pk_fma_f32 {vr(d, 2)}, {vr(b, 2)}, {vr(a, 2)}, {vr(c, 2)} op_sel_hi:[1,0,1]
        v_pk_fma_f32 {vr(d, 2)}, {vr(b, 2)}, {vr(a, 2)}, {vr(d, 2)} op_sel:[1,1,0] op_sel_hi:[0,1,1] neg_lo:[0,1,0]""")


def staged(items, pin, plan):
    out, lo = [], 0
    for hi, fill_, burst_ in plan:
        out += weave(items[lo:hi + 1], fill_, {g_ - lo: v for g_, v in pin.items() if lo <= g_ <= hi}) + burst_
        lo = hi + 1
    return out


_weave = weave
LEV = [OPT['lev']]


def weave(*a):
    out = _weave(*a)
    return ds_first(level(out, LEV[0], OPT['vmc'])) if LEV[0] else out


P = []
if OPT['map'] == '8x4':
    ids = f"""s_and_b32 s{sKQ}, s2, 3
        s_bfe_u32 s{sJJ}, s2, 0x20003
        s_lshr_b32 s{sI}, s2, 5
        s_bfe_u32 s{sT0}, s2, 0x10002
        s_lshl_b32 s{sROT}, s{sT0}, 1
        s_lshl_b32 s{sT0}, s{sT0}, 3
        s_and_b32 s{sT1}, s{sI}, 1
        s_or_b32 s{sI}, s{sI}, s{sT0}
        s_add_u32 s{sROT}, s{sROT}, s{sT1}
        s_add_u32 s{sROT}, s{sROT}, s{sJJ if OPT['rotm'] else sKQ}
        s_lshl_b32 s{sROT}, s{sROT}, 1
        s_and_b32 s{sT1}, s{sKQ if OPT['rotm'] else sJJ}, {OPT['rotj']}
        s_add_u32 s{sROT}, s{sROT}, s{sT1}
        s_and_b32 s{sROT}, s{sROT}, 7"""
else:
    ids = f"""s_and_b32 s{sKQ}, s2, 1
        s_lshl_b32 s{sKQ}, s{sKQ}, 1
        s_lshr_b32 s{sT0}, s2, 7
        s_or_b32 s{sKQ}, s{sKQ}, s{sT0}
        s_bfe_u32 s{sJJ}, s2, 0x20003
        s_bfe_u32 s{sI}, s2, 0x20005
        s_bfe_u32 s{sT0}, s2, 0x20001
        s_add_u32 s{sROT}, s{sT0}, s{sKQ}
        s_lshl_b32 s{sT0}, s{sT0}, 2
        s_or_b32 s{sI}, s{sI}, s{sT0}
        s_lshl_b32 s{sROT}, s{sROT}, 1
        {'s_lshr_b32 s%d, s2, 7' % sT0 if OPT['rotm'] else ''}
        {'s_lshl_b32 s%d, s%d, 1' % (sROT, sJJ) if OPT['rotm'] else ''}
        {'s_add_u32 s%d, s%d, s%d' % (sROT, sROT, sT0) if OPT['rotm'] else ''}
        s_and_b32 s{sROT}, s{sROT}, 7"""
ws_load = f's_load_dwordx2 s[{sWS}:{sWS + 1}], s[0:1], 120'
more_loads = f"""s_load_dwordx8 s[{pLRE}:{pLRE + 7}], s[0:1], 8
s_load_dwordx4 s[{pLDT}:{pLDT + 3}], s[0:1], 56
s_load_dwordx2 s[{pB1}:{pB1 + 1}], s[0:1], 88
s_load_dwordx2 s[{sW1}:{sW1 + 1}], s[0:1], 80
s_load_dwordx2 s[{sCre}:{sCre + 1}], s[0:1], 40
s_load_dwordx2 s[{sCim}:{sCim + 1}], s[0:1], 48
s_load_dwordx2 s[{sW2}:{sW2 + 1}], s[0:1], 96
s_load_dwordx2 s[{sOUT}:{sOUT + 1}], s[0:1], 104
"""
SUM, SQ = [TT + 8, TT + 9], [TT + 10, TT + 11]
sizes = ((sX, 2097152), (sB, 524288), (sW1, 1835008), (sCre, 524288), (sCim, 524288), (sW2, 1835008),
         (sWS, (WS_PROF + 0x40000) if PROF else WS_SIZE), (sOUT, 4194304))
P += L(f"""
s_cmp_ge_u32 s2, 256
s_cbranch_scc1 L_end
{'s_memtime s[98:99]' if PROF else ''}
{'s_memrealtime s[90:91]' if PROF or OPT['diag'] else ''}
s_load_dwordx2 s[{sX}:{sX + 1}], s[0:1], 0
{'' if OPT['ka2'] else ws_load}
s_getpc_b64 s[{sTMP}:{sTMP + 1}]
v_lshrrev_b32 v{t0}, 6, v0
v_and_b32 v{vL}, 63, v0
s_and_b32 s{sTMP}, s{sTMP}, 0xffffff80
v_readfirstlane_b32 s{sW}, v{t0}
s_mov_b32 s{sTMP + 2}, L_code_end-{KN}
s_mov_b32 s{sTMP + 3}, 0x00020000
s_lshr_b32 s{sT0}, s2, 3
s_lshl_b32 s{sT0}, s{sT0}, 2
s_add_u32 s{sT0}, s{sT0}, s{sW}
s_lshl_b32 s{sT0}, s{sT0}, 9
v_and_b32 v{t1}, 3, v{vL}
v_lshlrev_b32 v{t1}, 7, v{t1}
buffer_load_dword v{t3}, v{t1}, {srd(sTMP)}, s{sT0} offen
{'' if OPT['ka2'] else more_loads}
v_lshrrev_b32 v{t0}, 3, v{vL}
v_lshrrev_b32 v{t1}, 4, v{vL}
v_xor_b32 v{t1}, v{t1}, v{vL}
v_and_b32 v{t1}, 7, v{t1}
v_lshlrev_b32 v{t1}, 4, v{t1}
v_lshl_add_u32 v{PG[0]}, v{t0}, 10, v{t1}
v_lshrrev_b32 v{t2}, 5, v{vL}
v_mul_u32_u24 v{t2}, {12 * 1024}, v{t2}
v_add_u32 v{XG[0]}, v{PG[0]}, v{t2}
v_xor_b32 v{XG[1]}, 64, v{XG[0]}
v_add_u32 v{XG[2]}, {6 * 1024}, v{XG[0]}
v_add_u32 v{XG[3]}, {9 * 1024}, v{XG[1]}
v_add_u32 v{XG[1]}, {3 * 1024}, v{XG[1]}
s_lshl_b32 s{sWOFF}, s{sW}, 12
{ids}
s_lshl_b32 s{sXB}, s{sI}, 17
s_lshl_b32 s{sT0}, s{sW}, 15
s_add_u32 s{sXB}, s{sXB}, s{sT0}
""" + ''.join(f's_mov_b32 s{b + 2}, {n}\ns_mov_b32 s{b + 3}, 0x00020000\n' for b, n in sizes) + f"""
s_waitcnt lgkmcnt(0)
{'v_accvgpr_write_b32 a254, s98' if PROF else ''}
{'v_accvgpr_write_b32 a255, s90' if PROF else ''}
{'s_mov_b32 s23, 0' if PROF else ''}
{'s_mov_b32 s23, s90' if OPT['diag'] else ''}
""")
P += stamp('ka') if OPT['diag'] else []
P += rx(0, 0) + (L(ws_load + '\n' + more_loads) if OPT['ka2'] else []) + rx(1, 1)
P += L(f"""
v_and_b32 v{t0}, 31, v{vL}
s_lshl_b32 s{sJ}, s{sKQ}, 2
s_or_b32 s{sJ}, s{sJ}, s{sJJ}
v_lshrrev_b32 v{t1}, 5, v{vL}
v_bfe_u32 v{t2}, v{vL}, 1, 3
v_xor_b32 v{t1}, v{t1}, v{t2}
v_lshlrev_b32 v{t1}, 4, v{t1}
v_lshl_add_u32 v{AS[0]}, v{t0}, 7, v{t1}
v_xor_b32 v{AS[1]}, 32, v{AS[0]}
v_xor_b32 v{AS[2]}, 64, v{AS[0]}
v_xor_b32 v{AS[3]}, 0x60, v{AS[0]}
s_add_u32 s{sT0}, s{sWOFF}, {SLOT}
v_add_u32 v{ASc[0]}, s{sT0}, v{AS[0]}
v_add_u32 v{ASc[1]}, s{sT0}, v{AS[1]}
v_add_u32 v{ASc[2]}, s{sT0}, v{AS[2]}
v_add_u32 v{ASc[3]}, s{sT0}, v{AS[3]}
s_mov_b32 s{sONES}, 0x3f803f80
v_mov_b32 v{SUM[0]}, 0
v_mov_b32 v{SUM[1]}, 0
v_mov_b32 v{SQ[0]}, 0
v_mov_b32 v{SQ[1]}, 0
s_lshl_b32 s{sT0}, s{sW}, 9
s_add_u32 s{sT0}, s{sT0}, {T_SEG}
v_lshl_add_u32 v{t0}, v{vL}, 3, s{sT0}""")
P.append(I(f'ds_write_b64 v{t0}, {vr(SUM[0], 2)}', tok='zero'))
P += L(f's_waitcnt lgkmcnt(0)\ns_load_dword s{sE2}, s[{sWS}:{sWS + 1}], {WS_EP}')
mid = L(f"""
v_and_b32 v{t0}, 31, v{vL}
s_lshl_b32 s{sT1}, s{sJ}, 6
v_lshl_add_u32 v{NLI}, v{t0}, 1, s{sT1}
s_and_b32 s{sT3}, s{sW}, 1
s_mul_i32 s{sT2}, s{sKQ}, 7
s_lshl_b32 s{sW1A}, s{sJJ}, 1
s_add_u32 s{sPB[0]}, s{sW1A}, 1
s_cmp_eq_u32 s{sJJ}, 3
s_cselect_b32 s{sPB[0]}, 3, s{sPB[0]}
s_cselect_b32 s{sFSEL}, 64, 0
s_add_u32 s{sW1A}, s{sW1A}, s{sT2}
s_add_u32 s{sW1B}, s{sPB[0]}, s{sT2}
s_lshl_b32 s{sW1A}, s{sW1A}, 7
s_lshl_b32 s{sW1B}, s{sW1B}, 7
s_cmp_ge_u32 s{sW}, 2
s_cselect_b32 s{sT2}, s{sW1B}, s{sW1A}
s_cselect_b32 s{sT1}, s{sFSEL}, 0
s_add_u32 s{sT2}, s{sT2}, s{sT1}
s_lshl_b32 s{sT1}, s{sT3}, 6
s_xor_b32 s{sT2}, s{sT2}, s{sT1}
v_and_b32 v{t1}, 3, v{vL}
v_bfe_u32 v{t2}, v{vL}, 2, 2
v_lshl_add_u32 v{t1}, v{t2}, 3, v{t1}
v_bfe_u32 v{t2}, v{vL}, 4, 1
v_lshl_add_u32 v{t1}, v{t2}, 2, v{t1}
v_lshl_add_u32 v{PR}, v{t1}, 1, s{sT2}
s_cmp_eq_u32 s{sT3}, 1
s_cselect_b32 s{sB}, s{pBIM}, s{pBRE}
s_cselect_b32 s{sB + 1}, s{pBIM + 1}, s{pBRE + 1}
s_mul_i32 s{sT3}, s{sT3}, {32 * 3584}
s_add_u32 s{sW1A}, s{sW1A}, s{sT3}
s_add_u32 s{sW1B}, s{sW1B}, s{sT3}
s_lshl_b32 s{sBB}, s{sJ}, 15
s_lshr_b32 s{sT1}, s{sW}, 1
s_add_u32 s{sT1}, s{sT1}, s{sROT}
s_and_b32 s{sKC[0]}, s{sT1}, 7
s_add_u32 s{sT1}, s{sT1}, 2
s_and_b32 s{sKC[1]}, s{sT1}, 7
s_add_u32 s{sT1}, s{sT1}, 2
s_and_b32 s{sKC[2]}, s{sT1}, 7
s_add_u32 s{sT1}, s{sT1}, 2
s_and_b32 s{sKC[3]}, s{sT1}, 7
v_xor_b32 v{PG[1]}, 64, v{PG[0]}
v_add_u32 v{PG[2]}, {14 * 1024}, v{PG[0]}
v_add_u32 v{PG[3]}, {21 * 1024}, v{PG[1]}
v_add_u32 v{PG[1]}, {7 * 1024}, v{PG[1]}
v_and_b32 v{t2}, 1, v{vL}
v_lshlrev_b32 v{t2}, 4, v{t2}
v_mov_b32 v{VNM}, 0x3f80
v_lshlrev_b32 v{t2}, v{t2}, v{VNM}
v_bfe_i32 v{t0}, v{vL}, 1, 1
v_and_b32 v{TT + 1}, v{t0}, v{t2}
v_xor_b32 v{TT}, v{TT + 1}, v{t2}
""")
mid += L(f"""
v_lshrrev_b32 v{t1}, 3, v{vL}
v_mul_u32_u24 v{t1}, 3584, v{t1}
v_bfe_u32 v{t2}, v{vL}, 4, 1
v_lshlrev_b32 v{t2}, 2, v{t2}
v_xor_b32 v{t2}, v{t2}, v{vL}
v_and_b32 v{t2}, 7, v{t2}
v_lshl_add_u32 v{QG[0]}, v{t2}, 4, v{t1}
v_add_u32 v{QG[1]}, {27648}, v{QG[0]}
v_add_u32 v{QG[2]}, {2 * 27648}, v{QG[0]}
v_add_u32 v{QG[3]}, {3 * 27648}, v{QG[0]}
""")
late = L(f"""
s_mul_i32 s{sE2}, s{sE2}, 1664525
s_add_u32 s{sE2}, s{sE2}, 1013904226
s_or_b32 s{sTAG}, s{sE2}, 1
v_bfe_u32 v{t1}, v{vL}, 2, 2
v_lshrrev_b32 v{t2}, 5, v{vL}
v_lshl_add_u32 v{t2}, v{t2}, 3, v{t1}
v_lshlrev_b32 v{FA0}, 7, v{t2}
v_lshrrev_b32 v{t1}, 1, v{t1}
v_lshl_add_u32 v{FA0}, v{t1}, 6, v{FA0}
v_bfe_u32 v{t1}, v{vL}, 4, 1
v_lshl_add_u32 v{FA0}, v{t1}, 5, v{FA0}
v_and_b32 v{t1}, 3, v{vL}
v_lshl_add_u32 v{FA0}, v{t1}, 3, v{FA0}
v_lshlrev_b32 v{VL16}, 4, v{vL}
v_mov_b32 v{VLN2}, {LN2:#x}
s_cmp_eq_u32 s{sPB[0]}, 1
s_cselect_b32 s{sPB[1]}, 3, 1
s_cmp_eq_u32 s{sPB[0]}, 5
s_cselect_b32 s{sPB[2]}, 3, 5
s_lshl_b32 s{sSEL[0]}, s{sFSEL}, 9
s_lshl_b32 s{sAS}, s{sI}, 2
s_add_u32 s{sAS}, s{sAS}, s{sW}
s_lshl_b32 s{sAS}, s{sAS}, 2
s_add_u32 s{sAS}, s{sAS}, s{sKQ}
s_lshl_b32 s{sFLG}, s{sAS}, 11
s_add_u32 s{sFLG}, s{sFLG}, {WS_FL}
s_mul_i32 s{sAS}, s{sAS}, {44 * 1024}
s_add_u32 s{sAS}, s{sAS}, {WS_A}
s_lshl_b32 s{sT2}, s{sJJ}, 13
s_add_u32 s{sFST[0]}, s{sAS}, s{sT2}
s_add_u32 s{sFST[1]}, s{sFST[0]}, 2048
s_lshl_b32 s{sT2}, s{sPB[0]}, 12
s_add_u32 s{sFST[3]}, s{sAS}, s{sT2}
s_lshl_b32 s{sT2}, s{sFSEL}, 5
s_add_u32 s{sFST[2]}, s{sFST[3]}, s{sT2}
s_add_u32 s{sFST[3]}, s{sFST[3]}, 2048
s_lshl_b32 s{sT2}, s{sJJ}, 12
s_add_u32 s{sSST}, s{sAS}, s{sT2}
s_add_u32 s{sSST}, s{sSST}, {28 * 1024}
s_xor_b32 s{sT2}, s{sW}, s{sKQ}
s_lshl_b32 s{sT2}, s{sT2}, 15
s_lshl_b32 s{sCB}, s{sJJ}, 17
s_add_u32 s{sCB}, s{sCB}, s{sT2}
s_lshl_b32 s{sT2}, s{sKQ}, 8
s_add_u32 s{sCB}, s{sCB}, s{sT2}
s_lshr_b32 s{sT2}, s{sJJ}, 1
s_lshl_b32 s{sT2}, s{sT2}, 7
s_add_u32 s{sCB}, s{sCB}, s{sT2}
s_mul_i32 s{sW2B}, s{sKQ}, {448 * 1024}
s_lshr_b32 s{sT2}, s{sW}, 1
s_lshl_b32 s{sT2}, s{sT2}, 15
s_add_u32 s{sW2B}, s{sW2B}, s{sT2}
s_lshl_b32 s{sT2}, s{sJJ}, 8
s_add_u32 s{sW2B}, s{sW2B}, s{sT2}
s_lshr_b32 s{sT2}, s{sKQ}, 1
s_xor_b32 s{sT2}, s{sT2}, s{sW}
s_and_b32 s{sT2}, s{sT2}, 1
s_lshl_b32 s{sT2}, s{sT2}, 7
s_add_u32 s{sW2B}, s{sW2B}, s{sT2}
s_lshl_b32 s{sT2}, s{sI}, 4
s_add_u32 s{sT2}, s{sT2}, s{sJJ}
s_lshl_b32 s{sT2}, s{sT2}, 2
s_add_u32 s{sT2}, s{sT2}, s{sW}""")
for b in range(4):
    late += L(f"""s_xor_b32 s{sT3}, s{sKQ}, {b}
        s_lshl_b32 s{sT3}, s{sT3}, 4
        s_add_u32 s{sT3}, s{sT3}, s{sT2}
        s_mul_i32 s{sT3}, s{sT3}, {3 * XC_BLK}
        s_add_u32 s{sXO[b]}, s{sT3}, {WS_XC + (b - 1) * XC_BLK if b else WS_XC}""")
late += L(f"""s_add_u32 s{sSEL[2]}, s{sXO[0]}, {XC_BLK}
    s_add_u32 s{sSEL[3]}, s{sXO[0]}, {2 * XC_BLK}
    s_and_b32 s{sT3}, s{sJJ}, 1
    s_sub_u32 s{sSEL[1]}, 6, s{sT3}""")
pf = []
if OPT['pf'] == 2:
    late += L(f"""
s_and_b32 s{sT1}, s{sI}, 7
s_lshl_b32 s{sT2}, s{sT1}, 1
s_add_u32 s{sT2}, s{sT2}, s{sW}
s_mul_i32 s{sT2}, s{sT2}, 28
s_mul_i32 s{sT3}, s{sKQ}, 448
s_add_u32 s{sT2}, s{sT2}, s{sT3}
s_lshl_b32 s{sT2}, s{sT2}, 2
s_add_u32 s{sT2}, s{sT2}, s{sJJ}
s_lshl_b32 s{sT3}, s{sJJ}, 3
s_add_u32 s{sT3}, s{sT3}, s{sT1}
s_lshl_b32 s{sT3}, s{sT3}, 6
s_add_u32 s{sT3}, s{sT3}, s{sKQ}
s_cmp_lt_u32 s{sW}, 2
s_cselect_b32 s{sT2}, s{sT2}, s{sT3}
s_cselect_b32 s{sT3}, 56, 32
s_cselect_b32 s{sTMP}, s{sW2}, s{sCre}
s_cselect_b32 s{sTMP + 1}, s{sW2 + 1}, s{sCre + 1}
s_cselect_b32 s{sTMP + 2}, s{sW2 + 2}, s{sCre + 2}
s_cmp_eq_u32 s{sW}, 3
s_cselect_b32 s{sTMP}, s{sCim}, s{sTMP}
s_cselect_b32 s{sTMP + 1}, s{sCim + 1}, s{sTMP + 1}""")
elif OPT['pf']:
    late += L(f"""
s_mul_i32 s{sT2}, s{sKQ}, 448
s_mul_i32 s{sT3}, s{sI}, 28
s_add_u32 s{sT2}, s{sT2}, s{sT3}
s_lshl_b32 s{sT2}, s{sT2}, 2
s_add_u32 s{sT2}, s{sT2}, s{sJJ}
s_lshl_b32 s{sT3}, s{sJJ}, 4
s_add_u32 s{sT3}, s{sT3}, s{sI}
s_lshl_b32 s{sT3}, s{sT3}, 5
s_add_u32 s{sT3}, s{sT3}, s{sKQ}
s_cmp_eq_u32 s{sW}, 0
s_cselect_b32 s{sT2}, s{sT2}, s{sT3}
s_cselect_b32 s{sT3}, 56, 16
s_cselect_b32 s{sTMP}, s{sW2}, s{sCre}
s_cselect_b32 s{sTMP + 1}, s{sW2 + 1}, s{sCre + 1}
s_cselect_b32 s{sTMP + 2}, s{sW2 + 2}, s{sCre + 2}
s_cmp_eq_u32 s{sW}, 2
s_cselect_b32 s{sTMP}, s{sCim}, s{sTMP}
s_cselect_b32 s{sTMP + 1}, s{sCim + 1}, s{sTMP + 1}
s_cmp_eq_u32 s{sW}, 3
s_cselect_b32 s{sT3}, 0, s{sT3}""")
if OPT['pf']:
    late += L(f"""s_lshl_b32 s{sT2}, s{sT2}, 8
v_lshrrev_b32 v{t0}, 1, v{vL}
v_and_b32 v{t1}, 1, v{vL}
v_lshlrev_b32 v{t1}, 7, v{t1}
v_lshl_add_u32 v{t0}, v{t0}, 10, v{t1}
v_add_u32 v{t0}, s{sT2}, v{t0}
v_mov_b32 v{t1}, {OOB:#x}
v_cmp_gt_u32 vcc, s{sT3}, v{vL}
v_cndmask_b32 v{PI}, v{t1}, v{t0}, vcc""")
    pf = L(f'buffer_load_dword a248, v{PI}, {srd(sTMP)}, 0 offen')

Z = TT + 2
consts = L(f"""
v_lshlrev_b32 v{NLI}, 16, v{NLI}
v_mul_f32 v{NLI}, {LOG2E:#x}, v{NLI}
v_exp_f32 v{NLI}, v{NLI}
v_lshlrev_b32 v{Z + 2}, 16, v{LR}
v_lshlrev_b32 v{Z + 3}, 16, v{LI}
v_cvt_pk_bf16_f32 v{NLI}, v{NLI}, v{NLI}
v_lshlrev_b32 v{NLI}, 16, v{NLI}
v_mul_f32 v{Z}, v{NLI}, v{Z + 2}
v_mul_f32 v{Z + 1}, v{NLI}, v{Z + 3}
v_mul_f32 v{Z}, {LOG2E:#x}, v{Z}
v_mul_f32 v{Z + 1}, 0xbe22f983, v{Z + 1}""")
consts += cexp(LR, LI, '1.0', Z, Z + 1)
consts += L(f"""
v_mul_f32 v{Z + 4}, v{Z + 2}, v{Z + 2}
v_fmac_f32 v{Z + 4}, v{Z + 3}, v{Z + 3}
v_rcp_f32 v{Z + 4}, v{Z + 4}
v_add_f32 v{Z + 5}, -1.0, v{LR}
v_sub_f32 v{NLI}, 0, v{LI}
v_add_f32 v{Z + 4}, v{Z + 4}, v{Z + 4}
v_mul_f32 v{CR}, v{Z + 5}, v{Z + 2}
v_fmac_f32 v{CR}, v{NLI}, v{Z + 3}
v_mul_f32 v{NCI}, v{Z + 5}, v{Z + 3}
v_fmac_f32 v{NCI}, v{LI}, v{Z + 2}
v_mul_f32 v{CR}, v{CR}, v{Z + 4}
v_mul_f32 v{NCI}, v{NCI}, v{Z + 4}
v_sub_f32 v{NCR}, 0, v{CR}""")
consts += cexp(L16R, L16I, '0x41800000', Z, Z + 1)
consts += cexp(L128R, L128I, '0x43000000', Z, Z + 1)
consts += L(f"""
v_lshrrev_b32 v{Z + 6}, 5, v{vL}
s_lshl_b32 s{sT2}, s{sW}, 1
v_add_u32 v{Z + 6}, s{sT2}, v{Z + 6}
v_cvt_f32_u32 v{Z + 6}, v{Z + 6}
v_mul_f32 v{Z + 7}, 0x41800000, v{Z + 6}
v_sub_f32 v{Z + 6}, 0x40e00000, v{Z + 6}
v_mul_f32 v{Z + 6}, 0x43800000, v{Z + 6}""")
consts += cexp(LSR, LSI, f'v{Z + 7}', Z, Z + 1)
consts += cexp(WR, WI, f'v{Z + 6}', Z, Z + 1)
consts += L(f"""v_lshlrev_b32 v{PR}, 16, v{PR}
v_mul_f32 v{PR}, {LOG2E:#x}, v{PR}
v_and_b32 v{t1}, 31, v{vL}
s_lshl_b32 s{sT1}, s{sW}, 7
s_add_u32 s{sT1}, s{sT1}, {T_B1}
v_lshl_add_u32 v{t1}, v{t1}, 2, s{sT1}
""") + [I(f'ds_write_b32 v{t1}, v{PR}', tok='b1w')]
later = []
Y = SRE
later += L(f"""v_and_b32 v{Y}, 31, v{vL}
    v_lshlrev_b32 v{Y + 1}, 3, v{Y}
    v_add_u32 v{Y + 1}, {T_LB}, v{Y + 1}
    v_lshrrev_b32 v{t0}, 5, v{vL}
    s_lshl_b32 s{sT2}, s{sW}, 11
    s_add_u32 s{sT2}, s{sT2}, {T_H}
    v_lshl_add_u32 v{Y}, v{Y}, 6, s{sT2}
    v_bfe_u32 v{Y + 2}, v{vL}, 1, 2
    v_lshlrev_b32 v{Y + 3}, 1, v{t0}
    v_xor_b32 v{Y + 2}, v{Y + 2}, v{Y + 3}
    v_bfe_u32 v{Y + 3}, v{vL}, 3, 1
    v_xor_b32 v{Y + 2}, v{Y + 2}, v{Y + 3}
    v_lshl_add_u32 v{Y}, v{Y + 2}, 4, v{Y}
    v_xor_b32 v{Y + 3}, 16, v{Y}
    v_bfe_u32 v{Y + 6}, v{vL}, 2, 2
    v_lshrrev_b32 v{t1}, 4, v{vL}
    v_lshl_add_u32 v{Y + 2}, v{t1}, 3, v{Y + 6}
    v_lshl_add_u32 v{Y + 2}, v{Y + 2}, 6, s{sT2}
    v_and_b32 v{t1}, 1, v{vL}
    v_lshl_add_u32 v{Y + 2}, v{t1}, 5, v{Y + 2}
    v_lshrrev_b32 v{t1}, 1, v{vL}
    v_xor_b32 v{t1}, v{t1}, v{vL}
    v_and_b32 v{t1}, 8, v{t1}
    v_lshl_add_u32 v{Y + 2}, v{t1}, 1, v{Y + 2}
    v_bfe_u32 v{t1}, v{vL}, 1, 1
    v_lshl_add_u32 v{Y + 2}, v{t1}, 3, v{Y + 2}
    v_bfe_u32 v{t1}, v{vL}, 4, 1
    v_lshl_add_u32 v{Y + 5}, v{t0}, 2, v{Y + 6}
    v_lshl_add_u32 v{Y + 5}, v{t1}, 4, v{Y + 5}
    v_lshlrev_b32 v{Y + 5}, 7, v{Y + 5}
    s_and_b32 s{sT2}, s{sKQ}, 1
    v_xor_b32 v{t1}, s{sT2}, v{t1}
    v_lshl_add_u32 v{Y + 5}, v{t1}, 6, v{Y + 5}
    v_bfe_u32 v{t1}, v{vL}, 3, 1
    v_lshl_add_u32 v{Y + 5}, v{t1}, 5, v{Y + 5}
    v_and_b32 v{t1}, 3, v{vL}
    v_lshl_add_u32 v{Y + 5}, v{t1}, 3, v{Y + 5}
    v_and_b32 v{Y + 6}, 15, v{vL}
    v_lshrrev_b32 v{t1}, 4, v{vL}
    v_bfe_u32 v{Y + 4}, v{vL}, 1, 3
    v_xor_b32 v{t1}, v{t1}, v{Y + 4}
    v_lshlrev_b32 v{t1}, 4, v{t1}
    v_lshl_add_u32 v{Y + 6}, v{Y + 6}, 7, v{t1}
    s_and_b32 s{sT2}, s{sJJ}, 1
    s_lshl_b32 s{sT2}, s{sT2}, 6
    v_xor_b32 v{Y + 6}, s{sT2}, v{Y + 6}
    s_lshl_b32 s{sT2}, s{sW}, 9
    s_add_u32 s{sT1}, s{sT2}, {T_SEG}
    s_add_u32 s{sT2}, s{sT2}, {T_LB}
    v_lshl_add_u32 v{Y + 7}, v{vL}, 3, s{sT1}
    v_lshl_add_u32 v{Y + 8}, v{vL}, 3, s{sT2}""")
later += park(hw=Y, lbr=Y + 1, hr=Y + 2, hw2=Y + 3, fp0=Y + 5, fp1=Y + 6, seg=Y + 7, lbw=Y + 8)
park2 = []
Y = FACC[0]
park2 += L(f"""s_lshl_b32 s{sT2}, s{sJ}, 4
    s_add_u32 s{sT2}, s{sT2}, s{sI}
    s_lshl_b32 s{sT2}, s{sT2}, 9
    s_add_u32 s{sT2}, s{sT2}, {WS_AG - 512}
    s_cmp_eq_u32 s{sW}, 3
    s_cselect_b32 s{sT2}, s{sT2}, {OOB:#x}
    v_mov_b32 v{Y + 8}, {OOB:#x}
    v_cmp_gt_u32 vcc, 32, v{vL}
    v_add_u32 v{Y}, s{sT2}, v{VL16}
    v_lshrrev_b32 v{t0}, 5, v{vL}
    v_cndmask_b32 v{Y}, v{Y}, v{Y + 8}, vcc
    s_lshl_b32 s{sT2}, s{sW}, 2
    s_add_u32 s{sT2}, s{sT2}, s{sI}
    s_sub_u32 s{sT2}, s{sT2}, 16
    v_lshl_add_u32 v{t0}, v{t0}, 1, s{sT2}
    s_lshl_b32 s{sT2}, s{sJ}, 13
    s_add_u32 s{sT2}, s{sT2}, {WS_AG}
    v_and_b32 v{Y + 9}, 31, v{vL}
    v_lshl_add_u32 v{t1}, v{Y + 9}, 4, s{sT2}
    v_lshl_add_u32 v{Y + 1}, v{t0}, 9, v{t1}
    v_cmp_gt_i32 vcc, 0, v{t0}
    v_add_u32 v{Y + 2}, 512, v{Y + 1}
    v_mov_b32 v{t1}, s{sTAG}
    v_cndmask_b32 v{Y + 1}, v{Y + 1}, v{Y + 8}, vcc
    v_cndmask_b32 v{Y + 3}, v{t1}, 0, vcc
    v_cmp_gt_i32 vcc, -1, v{t0}
    s_lshl_b32 s{sT2}, s{sJJ}, 9
    s_add_u32 s{sT2}, s{sT2}, s{sFLG}
    v_cndmask_b32 v{Y + 2}, v{Y + 2}, v{Y + 8}, vcc
    v_cndmask_b32 v{Y + 4}, v{t1}, 0, vcc
    v_lshl_add_u32 v{Y + 5}, v{Y + 9}, 2, s{sT2}
    v_and_b32 v{t0}, 3, v{vL}
    v_max_u32 v{t0}, 1, v{t0}
    v_xor_b32 v{t0}, s{sJJ}, v{t0}
    v_lshl_add_u32 v{Y + 6}, v{t0}, 9, s{sFLG}
    s_bitcmp1_b32 s{sJJ}, 0
    s_cselect_b32 s{sT2}, {OOB:#x}, 0
    v_add_u32 v{Y + 7}, s{sT2}, v{VL16}
    """)
park2 += park(pfa=PI)
park2 += park(pub=Y, lba0=Y + 1, lba1=Y + 2, lbe0=Y + 3, lbe1=Y + 4, fla=Y + 5, flp=Y + 6, f3o=Y + 7)
params = L(f"""global_load_ushort v{LR}, v{NLI}, s[{pLRE}:{pLRE + 1}]
    global_load_ushort v{LI}, v{NLI}, s[{pLIM}:{pLIM + 1}]
    global_load_ushort v{NLI}, v{NLI}, s[{pLDT}:{pLDT + 1}]
    global_load_ushort v{PR}, v{PR}, s[{pB1}:{pB1 + 1}]""")
nl = len(late) * OPT['lateln'] // 100
while late[nl - 1].mn.startswith(('s_cmp', 'v_cmp', 's_cselect')) or (nl < len(late) and late[nl].mn.startswith('v_cndmask')):
    nl += 1
if nl >= len(late):
    later, late, park2 = later + late + park2, [], []
else:
    later, late = later + late[:nl], late[nl:]
later = mid + later + [I(f'v_accvgpr_write_b32 a{aXE + r}, 0') for r in range(17)]
cuts = [0]
for n in range(1, 7):
    c = n * len(later) // 7
    while later[c].mn.startswith(('s_cselect', 'v_cndmask', 's_nop')) or later[c - 1].mn.startswith('v_cmp'):
        c += 1
    cuts.append(c)
cuts.append(len(later))

touch_w = L(f'v_mov_b32 v{PI}, 0') + [
    I(f'buffer_load_dword a{56 + n}, v{PI}, {srd(r)}, 0 offen') for n, r in enumerate((sW1, sCre, sCim, sW2))]
touch_o = L(f"""v_min_u32 v{PR}, {WS_SIZE >> 21}, v{vL}
    v_lshlrev_b32 v{PR}, 21, v{PR}
    v_add_u32 v{PR}, 0x800, v{PR}
    buffer_load_dword a60, v{PR}, {srd(sWS)}, 0 offen
    buffer_load_dword a61, v{PR}, {srd(sOUT)}, 0 offen""")
if OPT['tlb'] in (1, 3, 4):
    P += touch_w
if OPT['tlb'] == 1:
    P += touch_o
P += rx(2, 2) + [I('s_waitcnt lgkmcnt(0)')]
for s in range(8):
    P.append(Wait(f'x{s}'))
    if s == 0:
        P += stamp('x0')
    for q in range(4):
        P.append(I(f'ds_read_b128 {vr(X + 16 * s + 4 * q, 4)}, v{ASc[q]} offset:{(s & 3) * SLOT}', lds_r=(s & 3) + 1,
                   tok=f'xr{s}' if q == 3 else None))
    nxt = rg(s - 5) if s >= 5 else rx(s + 3, (s + 3) & 3) + (params if s == OPT['parat'] else [])
    piece = later[cuts[s]:cuts[s + 1]] if s < 7 else []
    P += nxt + piece if OPT['xfirst'] else piece + nxt
    for r in range(16):
        P.append(I(f'v_dot2c_f32_bf16 v{SUM[r & 1]}, s{sONES}, v{X + 16 * s + r}'))
        P.append(I(f'v_dot2c_f32_bf16 v{SQ[r & 1]}, v{X + 16 * s + r}, v{X + 16 * s + r}'))
P += stamp('x7')
P += L(f"""
v_add_f32 v{SUM[0]}, v{SUM[0]}, v{SUM[1]}
v_add_f32 v{SQ[0]}, v{SQ[0]}, v{SQ[1]}
v_mov_b32 v{SUM[1]}, v{SUM[0]}
v_mov_b32 v{SQ[1]}, v{SQ[0]}
v_permlane32_swap_b32 v{SUM[1]}, v{SUM[0]}
v_add_f32 v{SUM[0]}, v{SUM[0]}, v{SUM[1]}
v_mul_f32 v{SUM[0]}, 0xbb000000, v{SUM[0]}
v_cvt_pk_bf16_f32 v{t0}, v{SUM[0]}, v{SUM[0]}
v_lshlrev_b32 v{SIM}, 16, v{t0}
v_lshlrev_b32 v{SIM + 1}, 16, v{t0}
v_lshlrev_b32 v{SIM + 2}, 16, v{t0}
v_lshlrev_b32 v{SIM + 3}, 16, v{t0}
""")

back = lambda o: [I(f'v_cvt_pk_bf16_f32 v{X + 2 * o + e}, v{FACC[0] + 4 * (o & 3) + 2 * e}, '
                    f'v{FACC[0] + 4 * (o & 3) + 2 * e + 1}') for e in range(2)]
items = [[I(f'v_mfma_f32_4x4x4_16b_bf16 {vr(FACC[0] + 4 * (n & 3), 4)}, {vr(TT, 2)}, {vr(X + 2 * n, 2)}, {vr(SIM, 4)}')]
         + (back(n - 2) if n >= 2 else []) for n in range(64)]
fill = L(f"""
v_permlane32_swap_b32 v{SQ[1]}, v{SQ[0]}
v_sub_f32 v{VNM}, 0, v{SIM}
v_add_f32 v{SQ[0]}, v{SQ[0]}, v{SQ[1]}
v_mul_f32 v{SQ[0]}, 0x3b000000, v{SQ[0]}
v_fma_f32 v{SQ[0]}, -v{SUM[0]}, v{SUM[0]}, v{SQ[0]}
v_max_f32 v{SQ[0]}, 0, v{SQ[0]}
v_cvt_pk_bf16_f32 v{t0}, v{SQ[0]}, v{SQ[0]}
v_lshlrev_b32 v{t0}, 16, v{t0}
v_add_f32 v{t0}, 0x3727c5ac, v{t0}
v_cvt_pk_bf16_f32 v{t0}, v{t0}, v{t0}
v_lshlrev_b32 v{t0}, 16, v{t0}
v_sqrt_f32 v{t0}, v{t0}
v_and_b32 v{t1}, 3, v{vL}
v_cvt_pk_bf16_f32 v{t0}, v{t0}, v{t0}
v_lshlrev_b32 v{t0}, 16, v{t0}
v_rcp_f32 v{VRS}, v{t0}
v_bfe_u32 v{t2}, v{vL}, 3, 2
v_lshl_add_u32 v{t1}, v{t2}, 2, v{t1}
v_bfe_u32 v{t2}, v{vL}, 2, 1
v_lshl_add_u32 v{t1}, v{t2}, 4, v{t1}
s_lshl_b32 s{sT1}, s{sW}, 8
s_add_u32 s{sT1}, s{sT1}, {T_STAT}
v_lshl_add_u32 v{t1}, v{t1}, 2, s{sT1}
v_mul_f32 v{RL2}, {LOG2E:#x}, v{VRS}
ds_write_b32 v{t1}, v{VNM}
""")
fill.append(I(f'ds_write_b32 v{t1}, v{VRS} offset:128', tok='tabw'))
LA_S, LA_F = 3, OPT['laf']


def s_addr(slot):
    return [I(f'v_add_u32 v{ASc[q]}, {slot * SLOT}, v{AS[q]}') for q in range(4)]


def s_read(s, ri):
    return I(f'ds_read_b128 {ar(aS + 8 * (s & 3) + 4 * ri, 4)}, v{ASc[s & 3]} offset:{(s >> 3) * SLOT + (2 * ((s >> 2) & 1) + ri) * 4096}',
             lds_r=G_SLOT[s >> 3])


def f_addr(b):
    if b < 2:
        return [I(f'v_xor_b32 v{FAc}, {64 * b}, v{FA0}')]
    if b == 3:
        return [I(f'v_xor_b32 v{FAc}, 64, v{FAc}')]
    return [I(f'v_xor_b32 v{FAc}, s{sFSEL}, v{FA0}'), I(f'v_add_u32 v{FAc}, {G_SLOT[8] * SLOT}, v{FAc}')]


def f_read(b, s):
    out = f_addr(b) if s == 0 else []
    k = (32 * b + s) & 7
    for u in range(2):
        out.append(I(f'ds_read_b64_tr_b16 {ar(aF + 4 * k + 2 * u, 2)}, v{FAc} '
                     f'offset:{(s >> 3) * SLOT + ((s >> 1) & 3) * 4096 + (s & 1) * 2048 + u * 512}',
                     lds_r=G_SLOT[(4 if b < 2 else 8) + (s >> 3)]))
    return out


DSP = OPT['dsp']
OPT['dsp'] = OPT['dspc']
pin = pins((OPT['g3'], rg(3)), *([(OPT['g3'] + 4 * OPT['dspc'], rg(4))] if OPT['sch'] >= 2 else []),
           (54, s_addr(G_SLOT[0]) + stamp('c27') + BAR('G0', 'zero', *([] if OPT['bsp'] else ['G1'])) + stamp('b0')))
OPT['dsp'] = DSP
for k in range(LA_S):
    pin[55 + 2 * k] = [s_read(k, 0), s_read(k, 1)]
stat_fill = fill
if OPT['cfs']:
    fill = stat_fill[:2]
    stat_fill = stat_fill[2:]
else:
    stat_fill = []
P += weave(items, fill, pin, 0, 40) + back(62) + back(63)

S_items = []
for s in range(32):
    for ri, acc in ((0, SRE), (1, SIM)):
        it = [mfma(vr(acc, 16), vr(X + 4 * s, 4), ar(aS + 8 * (s & 3) + 4 * ri, 4), vr(acc, 16) if s else '0')]
        n = s + LA_S
        if n < 32:
            it.append(s_read(n, ri))
        S_items.append(it)
for k in range(LA_F):
    S_items[64 - LA_F + k] += f_read(0, k)
F_items = []
for b in range(4):
    its = []
    for s in range(32):
        acc = vr(FACC[b & 1], 16)
        it = [mfma(acc, ar(aF + 4 * ((32 * b + s) & 7), 4), vr(X + 4 * s, 4), acc if s else '0')]
        n = s + LA_F
        if n < 32:
            it += f_read(b, n)
        elif b < 3:
            it += f_read(b + 1, n - 32)
        its.append(it)
    F_items.append(its)

FLA, FLP = VNM, VRS
fill = stat_fill + late + park2 + consts + (pf if OPT['pfat'] < 0 else []) + L(f"""
v_lshrrev_b32 v{t0}, 3, v{vL}
v_bfe_u32 v{t1}, v{vL}, 4, 1
v_lshlrev_b32 v{t1}, 1, v{t1}
v_xor_b32 v{t1}, v{t1}, v{vL}
v_and_b32 v{t1}, 7, v{t1}
v_lshlrev_b32 v{t1}, 4, v{t1}
v_lshl_add_u32 v{XG[0]}, v{t0}, 10, v{t1}
v_add_u32 v{XG[1]}, {7 * 1024}, v{XG[0]}
v_xor_b32 v{XG[2]}, 64, v{XG[0]}
v_add_u32 v{XG[3]}, {21 * 1024}, v{XG[2]}
v_add_u32 v{XG[2]}, {14 * 1024}, v{XG[2]}
v_lshrrev_b32 v{t2}, 5, v{vL}
v_lshlrev_b32 v{t2}, 6, v{t2}
v_add_u32 v{t2}, {TB}, v{t2}
s_lshl_b32 s{sT2}, s{sW}, 8
v_add_u32 v{t1}, s{sT2}, v{t2}""")
fill += [I(f'ds_read_b128 {vr(FACC[1] + 4 * q, 4)}, v{t1} offset:{128 + 16 * q}') for q in range(4)]
xa, xb = TT + 14, TT + 15
ROW = lambda n: 16 * ((n >> 2) & 1) + 8 * (n >> 3) + (n & 3)
xe = L(f"""v_and_b32 v{xa}, 31, v{vL}
    v_lshrrev_b32 v{xb}, 5, v{vL}
    v_lshlrev_b32 v{xb}, 12, v{xb}
    v_lshl_add_u32 v{xb}, v{xa}, 1, v{xb}
    s_lshl_b32 s{sONES}, s{sJJ}, 2
    s_add_u32 s{sONES}, s{sONES}, s{sKQ}
    s_lshl_b32 s{sONES}, s{sONES}, 6
    v_lshl_add_u32 v{xa}, v{xa}, 1, s{sONES}
    s_add_u32 s{sXB}, s{sXB}, s{sONES}
    global_load_short_d16_hi a{aXE + 16}, v{xa}, s[{pDSK}:{pDSK + 1}]""")
for r in range(16):
    if r % 4 == 0:
        xe.append(I(f's_add_u32 s{sONES}, s{sXB}, {1024 * ROW(r)}'))
    xe.append(I(f'buffer_load_short_d16_hi a{aXE + r}, v{xb}, {srd(sX)}, s{sONES} offen offset:{1024 * (r & 3)}'))
sAO = dict(A={1: 8, 2: 9, 3: 10}, H={1: 11, 2: 12, 3: 13}, B={1: 14, 2: 15})
for e in (1, 2, 3):
    fill += L(f"""s_xor_b32 s{sT2}, s{sJJ}, {e}
        s_lshl_b32 s{sT2}, s{sT2}, 12
        s_add_u32 s{sAO['H'][e]}, s{sT2}, s{sAS}
        s_add_u32 s{sAO['A'][e]}, s{sAO['H'][e]}, s{sT2}
        s_add_u32 s{sAO['H'][e]}, s{sAO['H'][e]}, {28 * 1024}""")
for e in (1, 2):
    fill += L(f's_lshl_b32 s{sT2}, s{sPB[e]}, 12\ns_add_u32 s{sAO["B"][e]}, s{sT2}, s{sAS}')
if OPT['tlb'] in (2, 3):
    fill = touch_o + fill
if OPT['fw']:
    fill += L(f"""s_lshl_b32 s{sT2}, s{sJJ}, 9
        s_add_u32 s{sT2}, s{sT2}, s{sFLG}
        v_lshlrev_b32 v{t0}, 3, v{vL}
        v_mov_b32 v{TT}, 0
        v_mov_b32 v{TT + 1}, 0
        buffer_store_dwordx2 {vr(TT, 2)}, v{t0}, {srd(sWS)}, s{sT2} offen sc1""")
if OPT['xw'] == 1:
    fill += L(f'v_lshlrev_b32 v{t0}, 2, v{vL}')
    for b in (1, 2, 3):
        fill += L(f"""buffer_store_dwordx4 {vr(TT, 4)}, v{VL16}, {srd(sWS)}, s{sXO[b]} offen sc1
            buffer_store_dwordx4 {vr(TT, 4)}, v{VL16}, {srd(sWS)}, s{sXO[b]} offen offset:1024 sc1
            buffer_store_dword v{vL}, v{t0}, {srd(sWS)}, s{sXO[b]} offen offset:2048 sc1""")
elif OPT['xw']:
    fill += L(f"""v_lshlrev_b32 v{t0}, 7, v{vL}
        v_min_u32 v{t0}, {59 * 128}, v{t0}
        buffer_load_dword a60, v{t0}, {srd(sWS)}, s{sXO[0]} offen {('', '', 'sc1', 'sc1 nt')[OPT['xw']]}""")
if not OPT['xel']:
    cut = len(fill) * OPT['xes'] // 100
    fill, xe = fill[:cut] + merge(fill[cut:], xe), []
OPT['dsp'] = OPT['dsps']
srounds = [(2, rg(4)), (14, rg(5)), (28, rg(6)), (42, rg(7))] if OPT['sch'] == 1 else \
    [(2, rg(5)), (14, rg(6)), (28, rg(7)), (42, rg(8))]
sbars = [(9, BAR('G1')), (25, BAR('G2', 'G3'))] if OPT['bsp'] == 1 else \
    [(9, BAR('G1')), (25, BAR('G2')), (41, BAR('G3'))] if OPT['bsp'] else [(24, BAR('G2', 'G3'))]
pin = pins(*srounds, *sbars, (63 - LA_F, stamp('s59') + BAR('G4', 'b1w', *([] if OPT['bsa'] & 1 else ['G5'])) + stamp('b2')))
OPT['dsp'] = DSP
P += weave(fine('S', S_items, 3), fill, pin, 0, 62 - LA_F)

Q = FACC[1]
V = lambda t: SRE + t if t % 2 == 0 else SIM + t - 1
AGR, AGI = VRS, t3
fill = []
coef = []
for q in range(8):
    for h in range(2):
        r = 2 * q + h
        fill += L(f"""v_mul_f32 v{TT + 2 * h}, v{SRE + r}, v{CR}
            v_mul_f32 v{TT + 2 * h + 1}, v{SRE + r}, v{NCI}
            v_fmac_f32 v{TT + 2 * h}, v{SIM + r}, v{NCI}
            v_fmac_f32 v{TT + 2 * h + 1}, v{SIM + r}, v{NCR}""")
    for h in range(2):
        r = 2 * q + h
        fill += L(f"""v_mul_f32 v{V(r)}, v{TT + 2 * h}, v{Q + r}
            v_mul_f32 v{V(r) + 1}, v{TT + 2 * h + 1}, v{Q + r}""")
    coef.append(fill)
    fill = []
step = lambda d, p, c: L(f"""v_pk_fma_f32 {vr(d, 2)}, {vr(p, 2)}, {vr(LR, 2)}, {vr(c, 2)} op_sel_hi:[1,0,1]
    v_pk_fma_f32 {vr(d, 2)}, {vr(p, 2)}, {vr(NLI, 2)}, {vr(d, 2)} op_sel:[1,0,0] op_sel_hi:[0,1,1]""")
horner = [step(AGR if r & 1 else TT + 4, V(0) if r == 1 else (TT + 4 if r & 1 else AGR), V(r)) for r in range(1, 16)]
fill = fetch(seg=t1) + fill + L(f's_mov_b32 s{sKC[0]}, {M2LN2:#x}')
fill.append(I(f'ds_write_b64 v{t1}, {vr(AGR, 2)} offset:{7 * 256}', tok='segw'))
frounds = [(1, rg(8)), (12, rg(9))] if OPT['sch'] == 1 else [(1, rg(9)), (12, rg(10))] if OPT['sch'] == 2 else \
    [(0, rg(9)), (OPT['g10'], rg(10)), (2 * OPT['g10'], rg(11))]
staged_names = list(STAGE)
abars = [(7 - LA_F, BAR('G5'))] if OPT['bsa'] & 1 else []
abars += [(15 - LA_F, BAR('G6')), (23 - LA_F, BAR('G7'))] if OPT['bsa'] & 2 else [(15 - LA_F, BAR('G6', 'G7'))]
pin = pins(*frounds, *abars, (31, BAR('segw')),
           *[(22, stage_load(n)) for n in staged_names[:1]])
if 0 <= OPT['pfat'] < 32:
    pin.setdefault(OPT['pfat'], []).extend(pf)
NB = OPT['nb0']
per = 8 // NB
plan = [(1, [], [])]
for n in range(NB):
    lo, hi = max(2 * per * n - 1, 0), 2 * per * (n + 1) - 1
    plan.append((1 + (n + 1) * 28 // NB, sum(coef[per * n:per * (n + 1)], []), sum(horner[lo:hi], [])))
P += staged(fine('F0', F_items[0], 3), pin, plan + [(30, fill, []), (31, [], [])])
P += stamp('F0')

E = ASc[0]
R0, R1, T0_, T1_ = TT + 8, TT + 12, ASc[0], ASc[2]
h0, h1 = mish_stages(0, 0), mish_stages(0, 1)
rd = lambda dst, k: I(f'ds_read2_b64 {vr(dst, 4)}, v{t1} offset0:{32 * k} offset1:{32 * k + 32}')
publish = cmul_add(E, E + 2, L16R, L16I, PR, PI, AGR, AGI) + fetch(pub=t1) + L(f"""v_mov_b32 v{E + 1}, s{sTAG}
    v_mov_b32 v{E + 3}, s{sTAG}
    buffer_store_dwordx4 {vr(E, 4)}, v{t1}, {srd(sWS)}, 0 offen sc1""")
frounds = [(0, rg(10)), (8, rg(11))] if OPT['sch'] == 1 else [(0, rg(11))] if OPT['sch'] == 2 else []
pin = pins(*frounds, (OPT['wa0'], rw('WA0')), (31 - LA_F, BAR('G8', 'G9', *([] if OPT['bsb'] else ['G10', 'G11']))),
           *zip((8, 24), map(stage_load, staged_names[1:3])))
if OPT['pfat'] >= 32:
    pin.setdefault(OPT['pfat'] - 32, []).extend(fetch(pfa=FAd) + L(pf[0].text.replace(f'v{PI}', f'v{FAd}')))
GA = [int(x) for x in str(OPT['stg1']).split('.')]
P += staged(fine('F0', F_items[1], 3), pin, [
    (GA[0], [rd(R0, 0), rd(R1, 2)] + h0['rd'], h0['A']),
    (GA[1], h0['ex'], cmul_pk(PR, L16R, R0, R0 + 2) + cmul_pk(T0_, L16R, PR, R1) + cmul_pk(PR, L16R, T0_, R1 + 2) + h0['B']),
    (GA[2], [rd(R0, 4), I(f'ds_read_b64 {vr(R1, 2)}, v{t1} offset:{6 * 256}')] + h0['rc'],
     cmul_pk(T0_, L16R, PR, R0) + cmul_pk(T1_, L16R, T0_, R0 + 2) + cmul_pk(PR, L16R, T1_, R1) + h0['C']),
    (GA[3], h1['rd'] + publish + h0['fin'], h1['A']),
    (GA[4], h1['ex'], h1['B']),
    (GA[5], h1['rc'], h1['C']),
    (31, h1['fin'], [])])
P += stamp('F1')

LBA = [CR, NCI]
LBE = [NCR, L16R]
LBD = [ASc[0], QG[0]]
FLV = L16I
lb_loads = '\n'.join(f'buffer_load_dwordx4 {vr(LBD[e], 4)}, v{LBA[e]}, {srd(sWS)}, 0 offen sc1' for e in range(2))
lb_setup = fetch(lba0=LBA[0], lba1=LBA[1], lbe0=LBE[0], lbe1=LBE[1])


def flag_store(stage, toks):
    out = [Wait(*toks), I(f'buffer_store_dword v{FLV}, v{FLA}, {srd(sWS)}, 0 offen offset:{128 * stage} sc1')]
    if OPT['ppf']:
        so = (sFST[0], sSST, sFST[2])[stage]
        vpf = L128R if stage else t3
        out = [I(f'v_lshlrev_b32 v{vpf}, {6 if stage < 2 else "s%d" % sSEL[1]}, v{vL}')] + out
        out.append(I(f'buffer_load_dword a{60 + (stage & 1)}, v{vpf}, {srd(sWS)}, s{so} offen sc1'))
    return out


def flag_load(stage):
    return f'buffer_load_dword v{t3}, v{FLP}, {srd(sWS)}, 0 offen offset:{128 * stage} sc1'


flag_check = f'v_cmp_ne_u32 vcc, s{sTAG}, v{t3}'
lb_check = f"""v_bitop3_b32 v{t0}, v{LBD[0] + 1}, v{LBD[0] + 3}, v{LBE[0]} bitop3:0x7e
    v_bitop3_b32 v{t1}, v{LBD[1] + 1}, v{LBD[1] + 3}, v{LBE[1]} bitop3:0x7e
    v_or_b32 v{t0}, v{t0}, v{t1}
    v_cmp_ne_u32 vcc, 0, v{t0}"""
lb_part = stamp('lb0') + poll('lb', lb_loads, lb_check) + stamp('lb1')
lb_part += cmul_add(LBD[0] + 1, LBD[0] + 3, L128R, L128I, LBD[0], LBD[0] + 2, LBD[1], LBD[1] + 2)
lb_part += cmul_add(LBD[1], LBD[1] + 1, WR, WI, LBD[0] + 1, LBD[0] + 3)
lb_part += fetch(lbw=t1)
lb_part.append(I(f'ds_write_b64 v{t1}, {vr(LBD[1], 2)}', tok='lbw'))
HW, HR, HB = ASc[0], ASc[1], FACC[1]
HW2, HR2 = WR, WI
tail_addr = fetch(lbr=ASc[3], fla=FLA, flp=FLP) + L(f'v_mov_b32 v{FLV}, s{sTAG}')
lb_reads = [I(f'ds_read2_b64 {vr(HB + 4 * q, 4)}, v{ASc[3]} offset0:{64 * q} offset1:{64 * q + 32}') for q in range(4)]
scan = [I(f'v_pk_add_f32 {vr(HB + a, 2)}, {vr(HB + a, 2)}, {vr(HB + b_, 2)}')
        for a, b_ in ((0, 2), (4, 6), (8, 10), (12, 14), (0, 4), (8, 12), (0, 8))]
scan += cmul_add(L128R, L128I, LSR, LSI, HB, HB + 1, PR, PI)
pack = lambda q: L(f"""v_cvt_pk_bf16_f32 v{SRE + q}, v{V(2 * q)}, v{V(2 * q + 1)}
    v_cvt_pk_bf16_f32 v{SIM + q}, v{V(2 * q) + 1}, v{V(2 * q + 1) + 1}""")
for r in range(16):
    prev = vr(L128R if r == 0 else V(r - 1), 2)
    scan += L(f"""v_pk_fma_f32 {vr(V(r), 2)}, {prev}, {vr(LR, 2)}, {vr(V(r), 2)} op_sel_hi:[1,0,1]
        v_pk_fma_f32 {vr(V(r), 2)}, {prev}, {vr(NLI, 2)}, {vr(V(r), 2)} op_sel:[1,0,0] op_sel_hi:[0,1,1]""")
    if r >= 2 and r % 2 == 0 and OPT['pk_in']:
        scan += pack(r // 2 - 1)
HRS = AS
transp = fetch(hw=HW, hw2=HW2, hr=HRS[0]) + [I(f'v_xor_b32 v{HRS[n]}, {16 * n}, v{HRS[0]}') for n in (1, 2, 3)] + sum((pack(q) for q in range(7 if OPT['pk_in'] else 0, 8)), [])
for ri in range(2):
    transp += [I(f'ds_write_b128 v{(HW, HW2)[h]}, {vr((SRE, SIM)[ri] + 4 * h, 4)}') for h in range(2)]
    for fr in range(2):
        for u in range(2):
            transp.append(I(f'ds_read_b64_tr_b16 {ar(aOS + 8 * ri + 4 * fr + 2 * u, 2)}, v{HRS[2 * u + fr]} offset:{256 * u}'))
stH = [I(f'buffer_store_dwordx4 {ar(aOS + 4 * q, 4)}, v{VL16}, {srd(sWS)}, s{sSST} offen offset:{1024 * q} sc1',
         tok='stH' if q == 3 else None) for q in range(4)]
h0, h1 = mish_stages(1, 0), mish_stages(1, 1)
g0, g1 = mish_stages(2, 0), mish_stages(2, 1)
pin = pins((0, rw('CR0')), (8, rw('CI0')), (18, rw('WA1')), *([(15 - LA_F, BAR('G10', 'G11'))] if OPT['bsb'] else []), (29, BAR('lbw') + lb_reads + g0['rd'] + g1['rd']), (OPT['lbl'], L(lb_loads)),
           *[(25, stage_load(n)) for n in staged_names[3:4]])
GB = [int(x) for x in str(OPT['stg2']).split('.')]
P += staged(fine('F2', F_items[2], 2), pin, [
    (GB[0], h0['rd'] + h1['rd'] + lb_setup, h0['A']),
    (GB[1], h0['ex'], h0['B'] + h1['A']),
    (GB[2], h0['rc'] + h1['ex'], h0['C'] + h1['B']),
    (GB[3], h0['fin'] + h1['rc'], h1['C']),
    (28, h1['fin'] + lb_part + tail_addr, []),
    (31, [], [])])
P += stamp('F2')
burst = scan + g0['A']
if OPT['fas'] < 0:
    burst = burst[:OPT['fas']] + flag_store(0, ['stF0', 'stF1']) + burst[OPT['fas']:]
if OPT['fine'] == 'T':
    for n in range(len(burst) - 12, 0, -12):
        burst = burst[:n] + stamp(f'g{n}') + burst[n:]
P += burst
P += stamp('scan')


FP0, CP0, FPc = [NLI, LI, LR, CR], [NCI, NCR], QG
PA = OPT['pa']
p3_setup = fetch(fp0=FP0[0], fp1=CP0[0], f3o=ASc[2]) + [I(f'v_xor_b32 v{FP0[n]}, {32 * n}, v{FP0[0]}') for n in (1, 2, 3)]
p3_setup.append(I(f'v_xor_b32 v{CP0[1]}, 64, v{CP0[0]}'))
hs = OPT['hs']
lead = [i_ for i_ in transp if i_.kind != 'ds']
tds = transp[len(lead):]
P += lead
tpins = [(0, tds[0:1]), (1, tds[1:2]), (2, tds[2:4]), (3, tds[4:6]), (4, tds[6:7]), (5, tds[7:8] + stH[0:1]),
         (6, tds[8:10]), (7, tds[10:12] + stH[1:2]), (7 + hs, stH[2:3]), (7 + 2 * hs, stH[3:4])]

steps = ([('WA0', x, 'own') for x in range(4)]
         + [(n, x, 'own') for n in ('CR0', 'CI0') for x in range(2)]
         + [(f'WA{e}', x, 'A') for e in (1, 2, 3) for x in range(4)]
         + [(n, x, 'H') for n in ('CR0', 'CI0') for x in (2, 3)]
         + [(n, x, 'H') for n in ('CR1', 'CI1') for x in range(4)]
         + [('WB0', x, 'own') for x in range(4)]
         + [(f'WB{e}', x, 'B') for e in (1, 2) for x in range(4)])
deferred = [k for k, st in enumerate(steps) if st[2] != 'own']
A_REGS = ([192 + 4 * n for n in range(16)] + [SRE + 4 * n for n in range(8)]
          + [FACC[0] + 4 * n for n in range(4)] + [TT + 4 * n for n in range(4)])
ACC = [128, 144, 160, 176]
cur_addr = {}


def a_frag(k):
    name, x, src = steps[k]
    if src != 'own':
        return vr(A_REGS[deferred.index(k)], 4)
    if name == 'WA0':
        return ar(aOF + 4 * x, 4)
    if name == 'WB0':
        return ar(aOF + 16 + 4 * x, 4) if x < 2 else vr(FACC[1] + 4 * (x - 2), 4)
    return ar(aOS + 8 * (name[1] == 'I') + 4 * x, 4)


def a_load(k):
    name, x, src = steps[k]
    e = int(name[2])
    if name[0] == 'C':
        so, off = sAO['H'][2 * e + (x >> 1)], 2048 * (name[1] == 'I') + 1024 * (x & 1)
    else:
        so, off = sAO[name[1]][e], 1024 * x
    return [I(f'buffer_load_dwordx4 {a_frag(k)}, v{VL16}, {srd(sWS)}, s{so} offen offset:{off} sc1')]


pin = pins((PA, rw2('WA2')), (PA + 8, BAR()), (PA + 9, rw2('WA3')), (PA + 17, BAR()), (PA + 18, rw2('CR1')),
           (OPT['fal'], L(flag_load(0))), (30, BAR('WA0', 'CR0', 'CI0', 'WA1')), *tpins)
if OPT['fhs'] >= 0:
    pin.setdefault(OPT['fhs'], []).extend(flag_store(1, ['stH']))
if OPT['fas'] >= 0:
    pin.setdefault(OPT['fas'], []).extend(flag_store(0, ['stF0', 'stF1']))
m3 = mish_pk(3, ASc[2])
GC = [int(x) for x in str(OPT['stg3']).split('.')]
P += staged(fine('F3', F_items[3], 2), pin, [
    (GC[0], g0['ex'], g0['B'] + g1['A']),
    (GC[1], g0['rc'] + g1['ex'], g0['C'] + g1['B']),
    (GC[2], g0['fin'] + g1['rc'], g1['C']),
    (29, g1['fin'][:4] + m3[:4] + g1['fin'][4:] + p3_setup, []),
    (31, [], [])])
P += stamp('F3')

m3 = m3[4:]
st0 = 40
early = sum((a_load(k) for k in range(8, 8 + OPT['nea'])), [])
if not OPT['ovl']:
    fac = st0 - OPT['fac']
    TAIL0 = len(P)
    P += m3[:fac] + (flag_store(1, ['stH']) if OPT['fhs'] == -1 and not OPT['fhp'] else [])
    P += stamp('fa0') + poll('fa', flag_load(0), flag_check) + stamp('fa1')
    tl = merge(m3[fac:st0], early) + (flag_store(1, ['stH']) if OPT['fhp'] else []) + m3[st0:]
    TAIL1 = len(P) + len(tl) - len(m3) + st0
    if OPT['fine'] == 'T':
        for n in range(len(tl) - 12, 0, -12):
            tl = tl[:n] + stamp(f'gt{n}') + tl[n:]
    P += tl
    P += stamp('tail')

XE, ME = 192, LSR
ep_setup = L(f"""v_lshrrev_b32 v{t1}, 5, v{vL}
    s_lshl_b32 s{sT2}, s{sW}, 8
    s_add_u32 s{sT2}, s{sT2}, {T_STAT}
    v_lshl_add_u32 v{VLN2}, v{t1}, 4, s{sT2}
    v_lshlrev_b32 v{FA0}, 13, v{t1}
    v_and_b32 v{t0}, 31, v{vL}
    v_lshl_add_u32 v{FA0}, v{t0}, 2, v{FA0}""")
VL4 = ASc[0]
ep_setup = L(f'v_lshlrev_b32 v{VL4}, 2, v{vL}') + ep_setup
base_calc = [I(f'v_accvgpr_read_b32 v{RL2}, a{aXE + 16}')]
for qt in range(4):
    base_calc += [I(f'ds_read_b128 {vr(ME, 4)}, v{VLN2} offset:{4 * ROW(4 * qt)}', hoist=True),
                  I(f'ds_read_b128 {vr(ME + 4, 4)}, v{VLN2} offset:{128 + 4 * ROW(4 * qt)}', hoist=True)]
    rs = range(4)
    base_calc += [I(f'v_accvgpr_read_b32 v{XE + 4 * qt + r}, a{aXE + 4 * qt + r}') for r in rs]
    base_calc += [I(f'v_sub_f32 v{ME + r}, v{XE + 4 * qt + r}, v{ME + r}') for r in rs]
    base_calc += [I(f'v_mul_f32 v{ME + r}, v{ME + r}, v{ME + 4 + r}') for r in rs]
    base_calc += [I(f'v_fmac_f32 v{XE + 4 * qt + r}, v{ME + r}, v{RL2}') for r in rs]

def checksum(dst, src, last):
    return [f'v_bitop3_b32 v{dst}, v{src}, v{src + 1}, {last} bitop3:0x96'] + \
           [f'v_bitop3_b32 v{dst}, v{src + e}, v{src + e + 1}, v{dst} bitop3:0x96' for e in (2, 4, 6)]


def send(b):
    A = ACC[b]
    out = []
    for q in range(2):
        out += [I(f'v_cvt_pk_bf16_f32 v{A + e}, v{A + 2 * e}, v{A + 2 * e + 1}') for e in range(4 * q, 4 * q + 4)]
        out.append(I(f'buffer_store_dwordx4 {vr(A + 4 * q, 4)}, v{VL16}, {srd(sWS)}, s{sXO[b]} offen '
                     f'offset:{1024 * q} sc1'))
    out += [I(c) for c in checksum(A + 8, A, f's{sTAG}')]
    out.append(I(f'buffer_store_dword v{A + 8}, v{VL4}, {srd(sWS)}, s{sXO[b]} offen offset:2048 sc1'))
    return out


def w_read1(k, b, dst):
    name, x, src = steps[k]
    slot = W_SLOT[name]
    out = []

    def address(cur, base):
        if slot < 4:
            return base, slot * SLOT
        if not 0 <= slot - cur_addr.get(cur, -9) < 4:
            cur_addr[cur] = 4 if slot == 4 else 5
            out.append(I(f'v_add_u32 v{cur}, {cur_addr[cur] * SLOT}, v{base}'))
        return cur, (slot - cur_addr[cur]) * SLOT

    if name[0] == 'C':
        a, off = address(AS[x >> 1], CP0[x >> 1])
        return out + [I(f'ds_read_b128 {ar(dst, 4)}, v{a} offset:{off + 4096 * b + 2048 * (x & 1)}', lds_r=slot)]
    var = 2 * (b & 1) + (x & 1)
    a, off = address(FPc[var], FP0[var])
    return out + [I(f'ds_read_b64_tr_b16 {ar(dst + 2 * u, 2)}, v{a} '
                    f'offset:{off + 8192 * (x >> 1) + 4096 * (b >> 1) + 1024 * u}', lds_r=slot) for u in range(2)]


RX = {1: ACC[1], 2: ACC[2], 3: ACC[3]}


def recv(b):
    so = sXO[0] if b == 1 else sSEL[b]
    rl = [f'buffer_load_dwordx4 {vr(RX[b] + 4 * q, 4)}, v{VL16}, {srd(sWS)}, s{so} offen offset:{1024 * q} sc1' for q in range(2)]
    rl.append(f'buffer_load_dword v{RX[b] + 8}, v{VL4}, {srd(sWS)}, s{so} offen offset:2048 sc1')
    return '\n'.join(rl)


pre = L(f"""s_lshl_b32 s{sXB}, s{sXB}, 1
    s_mov_b32 s{sKC[0]}, 0x00003f80
    s_mov_b32 s{sKC[1]}, 0x3f800000""")
E3 = OPT['e3']
D0 = OPT['d0']
seq = [(k, b) for k in range(D0) for b in (1, 2, 3, 0)] + [(k, b) for k in range(D0, E3) for b in (1, 2, 3)]
seq += [(k, b) for k in range(E3, 36) for b in (1, 2)]
seq += [(k, b) for b in (1, 2) for k in range(36, 44)]
own8 = [(k, 0) for k in range(8, 12)]
seq += (own8 if OPT['o8'] else []) + [(k, 3) for k in range(E3, 44)] + ([] if OPT['o8'] else own8)
seq += [(k, 0) for k in list(range(D0, 8)) + list(range(12, 44))]
at = {kb: n for n, kb in enumerate(seq)}
done_at = {b: at[43, b] for b in (1, 2, 3)}
KEEP = {(k, 0): aWO + 4 * (k - 8) for k in range(8, 12)}
KEEP.update({(k, 0): aWO + 16 + 4 * k for k in range(D0, 4)})
reads = sorted((kb for kb in seq), key=lambda kb: at[kb[0], 3] + 0.5 if kb in KEEP else at[kb])
RING = 12
where, nring = {}, 0
for kb in reads:
    if kb in KEEP:
        where[kb] = KEEP[kb]
    else:
        where[kb] = aP + 4 * (nring % RING)
        nring += 1
LA_J = OPT['laj']
items = []
rd = 0
seen = set()
for n, (k, b) in enumerate(seq):
    pre_rd = []
    while rd < len(reads) and (at[reads[rd][0], 3] if reads[rd] in KEEP else at[reads[rd]]) <= n + LA_J:
        pre_rd += w_read1(*reads[rd], where[reads[rd]])
        rd += 1
    mm = []
    for a in range(2):
        d = vr(ACC[b] + 8 * a + 4 * (k & 1), 4)
        mm.append(I(f'v_mfma_f32_16x16x32_bf16 {d}, {a_frag((k & ~1) + a)}, {ar(where[k, b], 4)}, '
                    f'{d if (b, k & 1) in seen else 0}'))
    seen.add((b, k & 1))
    if n == 0:
        if OPT['ovl']:
            k_ = max(n_ for n_, i_ in enumerate(P) if i_.kind == 'barrier') + 1
            P = P[:k_] + pre_rd + P[k_:]
        elif OPT['wmix']:
            end = len(P) - (PROF in (1, 2)) - 10
            P = P[:TAIL1] + merge(P[TAIL1:end], pre_rd) + P[end:]
        else:
            P = P[:TAIL0] + pre_rd + P[TAIL0:]
        pre_rd = []
    nds = [n_ for n_, i_ in enumerate(pre_rd) if i_.kind == 'ds']
    half = nds[len(nds) // 2] if OPT['bal'] and len(nds) > 1 else len(pre_rd)
    items.append([mm[0]] + pre_rd[:half] + [mm[1]] + pre_rd[half:])
pin = {n: [] for n in range(len(items))}
B1 = at[4, 1] + 2
pin[B1] += BAR('WA2')
pin[at[16, 1] - LA_J - 1] += [Wait('WA3', 'CR1', 'CI1'), I('s_barrier')]
pin[at[32, 1] - LA_J - 1] += [Wait('WB0', 'WB1', 'WB2'), I('s_barrier')]
if OPT['fhs'] < -1:
    pin[-OPT['fhs']] += flag_store(1, ['stH'])
if OPT['fhl'] >= 0:
    pin[OPT['fhl']] += L(flag_load(1))
pin[OPT['fhc']] += stamp('fh0') + poll('fh', flag_load(1), flag_check) + stamp('fh1')
pin[OPT['fls']] += flag_store(2, ['stF3', 'stF2'])
pin[OPT['fll']] += L(flag_load(2))
pin[OPT['flc']] += stamp('fl0') + poll('fl', flag_load(2), flag_check) + stamp('fl1')
pin[at[36, 1] - 1] += stamp('k36')
for name, gap in (('CI1', 1), ('WB0', 19), ('WB1', 24), ('WB2', at[16, 1] - LA_J)):
    if name in STAGE:
        for n, i_ in enumerate(stage_write(name)):
            pin[gap + max(n - 2, 0)].append(i_)
_rw = rw
rw = lambda name: [] if name in STAGE else _rw(name)
queue = []
if OPT['ovl']:
    pin[OPT['ofa']] += stamp('fa0') + poll('fa', flag_load(0), flag_check) + stamp('fa1')
    queue += [(OPT['ofa'], a_load(k)) for k in range(8, 8 + OPT['nea'])]
queue += [(OPT['q0'], a_load(k)) for k in range(8 + OPT['nea'], 16)] + [(0, rw('CI1'))]
queue += [(OPT['q0'], a_load(k)) for k in range(max(16, 8 + OPT['nea']), 20)]
if OPT['qord'] == 0:
    queue += [(B1 + 1, rw('WB0'))] + [(OPT['fhc'], a_load(k)) for k in range(20, 32)] + [(B1 + 1, rw('WB1'))]
elif OPT['qord'] == 1:
    queue += [(B1 + 1, rw('WB0')), (B1 + 1, rw('WB1'))] + [(OPT['fhc'], a_load(k)) for k in range(20, 32)]
else:
    queue += [(OPT['fhc'], a_load(k)) for k in range(20, 24)] + [(B1 + 1, rw('WB0')), (B1 + 1, rw('WB1'))]
    queue += [(0, a_load(k)) for k in range(24, 32)]
queue += [(at[16, 1] - LA_J, rw('WB2'))]
queue += [(OPT['flc'], a_load(k)) for k in range(36, 44)]
n = 0.0
for first_gap, ins in queue:
    n = max(n, first_gap)
    pend = []
    for i_ in ins:
        pend.append(i_)
        if i_.kind == 'vm':
            pin[int(n)] += pend
            pend = []
            n += OPT['pace'] / 10
for b in (1, 2, 3):
    sd = send(b)
    for q in range(4):
        pin[done_at[b] + 3 + q] += sd[q * len(sd) // 4:(q + 1) * len(sd) // 4]
    pin[done_at[min(b + 1, 3) if b < 3 else 3] + OPT[f'r{b}'] if b != 2 else done_at[2] + OPT['r2']] += L(recv(b))
pin[done_at[2] + 6] += stamp('s12')
pin[done_at[3] + 6] += stamp('sent')
items = fine('P3', items[:OPT['fn'] * 27], OPT['fn']) + items[OPT['fn'] * 27:]
LEV[0] = OPT['lev3']
sub = lambda lo, hi: {n - lo: pin[n] for n in range(lo, hi)}
unit_weave = weave


def weave(its, fill_, pin_, lo=0, hi=None):
    if not OPT['fineg']:
        return unit_weave(its, fill_, pin_, lo, hi)
    flat, pin2 = [], {}
    for n, it in enumerate(its):
        cut_ = max(k_ for k_, i_ in enumerate(it) if i_.kind == 'mfma')
        flat += [it[:cut_], it[cut_:]]
        ordered = any(i_.kind in ('barrier', 'pseudo', 'label') for i_ in pin_.get(n, []))
        first = len(flat[-2]) < len(flat[-1]) and not ordered
        pin2[2 * n + (0 if first else 1)] = pin_.get(n, [])
    return unit_weave(flat, fill_, pin2, 2 * lo, None if hi is None else 2 * hi + 1)


c1, c2 = at[32, 1], at[11, 0] + 1
if OPT['ovl']:
    GD = [int(x) for x in str(OPT['stg4']).split('.')]
    both = lambda lo, hi: m3[lo:hi] + m3[40 + lo:40 + hi]
    P += staged(items[:c1], pin, [(GD[0], [], both(0, 4)), (GD[1], both(4, 12), both(12, 20)),
                                  (GD[2], both(20, 28), both(28, 36)),
                                  (GD[3], both(36, 40) + m3[80:] + stamp('tail'), []), (c1 - 1, [], [])])
else:
    P += weave(items[:c1], [], sub(0, c1))
P += weave(items[c1:c2], ep_setup + pre, sub(c1, c2), 0, 6)
SWAPS = lambda R: [I(f'v_permlane16_swap_b32 v{R + 8 * a + r}, v{R + 8 * a + 4 + r}') for a in range(2) for r in range(4)]
base_calc += SWAPS(XE)


def rx_check(b):
    chk = checksum(RX[b] + 9, RX[b], f'v{RX[b] + 8}') + [f'v_cmp_ne_u32 vcc, s{sTAG}, v{RX[b] + 9}']
    return poll(f'rx{b}', recv(b), '\n'.join(chk))


EARLY = range(1, 1 + OPT['rxe'])
for b in EARLY:
    base_calc += rx_check(b)
    for q in range(8):
        u = RX[b] + 10 + 2 * (q & 1)
        base_calc += L(f"""v_lshlrev_b32 v{u}, 16, v{RX[b] + q}
            v_and_b32 v{u + 1}, 0xffff0000, v{RX[b] + q}
            v_add_f32 v{XE + 2 * q}, v{XE + 2 * q}, v{u}
            v_add_f32 v{XE + 2 * q + 1}, v{XE + 2 * q + 1}, v{u + 1}""")
P += weave(items[c2:], base_calc, sub(c2, len(items)), 3, len(items) - c2 - (3 if OPT['rxe'] else 6))
P += stamp('own')
A0 = ACC[0]
for q in range(8):
    P.append(I(f'v_pk_add_f32 {vr(A0 + 2 * q, 2)}, {vr(A0 + 2 * q, 2)}, {vr(XE + 2 * q, 2)}'))
LATE = [b for b in (1, 2, 3) if b not in EARLY]
for b in LATE:
    P += rx_check(b)
    if OPT['seqadd'] and b < 3:
        P += [I(f'v_dot2c_f32_bf16 v{A0 + 2 * q + h}, s{sKC[h]}, v{RX[b] + q}') for q in range(8) for h in range(2)]
if OPT['seqadd']:
    LATE = [3]
P += stamp('rx')
sts = []
for a in range(2):
    for q in range(4 * a, 4 * a + 4):
        for b in LATE:
            P += [I(f'v_dot2c_f32_bf16 v{A0 + 2 * q + h}, s{sKC[h]}, v{RX[b] + q}') for h in range(2)]
        P += sts[3 * (q & 3):3 * (q & 3) + 3]
    P += SWAPS(A0)[4 * a:4 * a + 4]
    sts = []
    for q in range(4 * a, 4 * a + 4):
        sts.append(I(f's_add_u32 s{sBB}, s{sXB}, {2048 * ROW(2 * q)}'))
        sts += [I(f'buffer_store_dword v{A0 + 2 * q + h}, v{FA0}, {srd(sOUT)}, s{sBB} offen offset:{2048 * h} '
                  f'{OPT["out_flags"].replace("+", " ")}') for h in range(2)]
P += L(f"""s_lshl_b32 s{sT2}, s{sJ}, 2
    s_add_u32 s{sT2}, s{sT2}, s{sW}
    s_xor_b32 s{sT1}, s{sI}, 15
    s_or_b32 s{sT2}, s{sT2}, s{sT1}
    s_cmp_eq_u32 s{sT2}, 0
    s_cselect_b32 s{sT2}, {WS_EP}, {OOB:#x}
    v_mov_b32 v{t0}, s{sE2}
    v_mov_b32 v{t1}, s{sT2}""") + sts + L(f'buffer_store_dword v{t0}, v{t1}, {srd(sWS)}, 0 offen')
if OPT['diag']:
    P += stamp('end') + L("""s_memrealtime s[6:7]
        s_waitcnt lgkmcnt(0)
        s_sub_u32 s4, s4, s23
        s_lshl_b32 s4, s4, 2
        s_min_u32 s4, s4, 20000
        L_diag:
        s_memrealtime s[0:1]
        s_waitcnt lgkmcnt(0)
        s_sub_u32 s0, s0, s6
        s_cmp_lt_u32 s0, s4
        s_cbranch_scc1 L_diag""")
if PROF:
    P += stamp('end')
    P += L(f"""s_waitcnt vmcnt(0)
        s_memrealtime s[0:1]
        s_lshl_b32 s{sT2}, s2, 2
        s_add_u32 s{sT2}, s{sT2}, s{sW}
        s_lshl_b32 s{sT2}, s{sT2}, 7
        s_add_u32 s{sT2}, s{sT2}, {WS_PROF}
        v_mov_b32 v{t1}, s{sT2}
        s_waitcnt lgkmcnt(0)
        v_mov_b32 v{t0}, s0
        buffer_store_dword v{t0}, v{t1}, {srd(sWS)}, 0 offen offset:124
        v_mov_b32 v{t2}, s23
        buffer_store_dword v{t2}, v{t1}, {srd(sWS)}, 0 offen offset:112
        buffer_store_dword a254, v{t1}, {srd(sWS)}, 0 offen offset:116
        buffer_store_dword a255, v{t1}, {srd(sWS)}, 0 offen offset:120""")
    P += stamp('DUMP')
P += [I('L_end:'), I('s_endpgm')]

P = resolve_stamps(P)
if OPT['split']:
    P = split_ds_pairs(P)
if OPT['hoist']:
    P = hoist_reads(P, OPT['hoist'])
body = pad_hazards(insert_waits(P, OPT['age']))
check_polls(body)
tail = []
for name, loads, check in retry_blocks:
    blk = [I(f'L_retry_{name}:'), I(f's_mov_b32 s3, {OPT["spin"]}'), I(f'L_spin_{name}:')]
    if PROF:
        blk.append(I(f's_add_u32 s23, s23, {1 << (4 * retry_blocks.index((name, loads, check)))}'))
    blk += L(loads) + [I('s_waitcnt vmcnt(0)')] + L(check)
    blk += L(f'''s_cbranch_vccz L_back_{name}
        s_sub_u32 s3, s3, 1
        s_cmp_lg_u32 s3, 0
        s_cbranch_scc1 L_spin_{name}
        s_branch L_back_{name}''')
    tail += pad_hazards(blk)

hdr = open(os.path.join(os.path.dirname(os.path.abspath(__file__)), 'header.txt')).read()
text = hdr + f'''; @launch grid=(256,1,1) block=(256,1,1) lds=163840
.amdgcn_target "amdgcn-amd-amdhsa--gfx950"
.text
.globl {KN}
.p2align 8
.type {KN},@function
{KN}:
{render(body)}
{render(tail)}
L_code_end:
    s_endpgm
.section .rodata,"a"
.p2align 6
.amdhsa_kernel {KN}
  .amdhsa_next_free_vgpr 512
  .amdhsa_next_free_sgpr 102
  .amdhsa_accum_offset 256
  .amdhsa_group_segment_fixed_size 0
  .amdhsa_kernarg_size 128
  .amdhsa_user_sgpr_count 2
  .amdhsa_user_sgpr_kernarg_segment_ptr 1
  .amdhsa_system_sgpr_workgroup_id_x 1
.end_amdhsa_kernel
'''
open(sys.argv[1], 'w').write(text)
if PROF:
    open(sys.argv[1][:-2] + '.stamps', 'w').write(' '.join(stamp_names))
from collections import Counter
cnt = Counter(i.kind for i in body)
print(dict(cnt), 'nops', sum(1 for i in body if i.mn == 's_nop'))
import subprocess
chk = subprocess.run([sys.executable, 'cdna_unwritten_srd_check.py', sys.argv[1]],
                     capture_output=True, text=True)
if chk.returncode != 0:
    os.remove(sys.argv[1])
    sys.exit('address check failed: ' + chk.stdout[-600:])
```

```python
import sys, os
sys.path.insert(0, os.path.dirname(os.path.abspath(__file__)))
from asmlib import I, Wait, insert_waits, pad_hazards, render, weave, split_ds_pairs, hoist_reads, merge, level, ds_first, check_polls

KN = 'parallel_sum__ssm_conv_s5__dense_activation_mish__prompt_kernel'
OPT = dict(prof=0, spin=20000, out_flags='nt', map='8x4', pf=2, age=16, laf=5, r1=30, r2=36, r3=29, e3=12, fls=28, fll=50, flc=68, ka2=1, nstep=0, split=0, diag='', dsp=2, xel=0, tlb=0, pk_in=1, lateln=100, d0=4, o8=1, bal=0, fineg=1, xes=0, xfirst=1, parat=4, nb0=2, stg3='8.16.23', stg1='2.7.12.17.22.27', stg2='2.6.14.21', fhp=0, wmix=1, ntx=0, ntg=0, ntw=0, lbt=0, rxe=0, dspc=3, dsps=3, sch=3, g3=24, fn=2, stg=0, q0=2, pfat=24, seqadd=1, rxall=1, dbg=0, cfs=1, bsp=2, bsa=2, bsb=0, ovl=0, ofa=0, stg4='1.9.17.21', g10=8, wa0=17, hs=2, rotj=0, rotm=0, laj=7, pace=16, lev=0, lev3=0, pa=2, fw=1, xw=0, vmc=2, fine='', fas=-10, fal=12, fac=16, nea=8, fhs=-1, fhl=12, fhc=32, qord=1, lbl=13, lbc=24, ppf=0, hoist=32)
for a in sys.argv[2:]:
    k, v = a.split('=')
    OPT[k] = int(v) if v.lstrip('-').isdigit() else v
PROF = OPT['prof']

WS_EP, WS_AG, WS_A = 0, 0x10000, 0x40000
WS_XC = WS_A + 64 * 176 * 1024
XC_BLK = 2560
WS_FL = WS_XC + 1024 * 3 * XC_BLK
WS_SIZE = WS_FL + 1024 * 512
WS_PROF = 0x1C00000
OOB = 0x7ff00000
SLOT = 16384
TB = 9 * SLOT
T_STAT, T_B1, T_SEG, T_LB, T_H = TB, TB + 1024, TB + 2048, TB + 6144, TB + 8192
LOG2E, LN2, M2LN2 = 0x3fb8aa3b, 0x3f317218, 0xbfb17218

sX, sB, sW1, sCre, sCim, sW2, sWS, sOUT, sTMP = 36, 40, 44, 48, 52, 56, 60, 64, 68
sI, sJ, sW, sROT, sTAG, sE2 = 72, 73, 74, 75, 76, 77
sKC = [78, 79, 80, 81]
sWOFF, sT0, sT1, sXB, sBB, sW1A, sW1B = 82, 83, 84, 85, 86, 87, 88
sAS = 89
sFST = [90, 91, 92, 93]
sSST, sCB, sW2B, sFSEL, sONES, sT3, sJJ, sT2 = 94, 95, 96, 97, 98, 99, 100, 101
sKQ, sPB, sXO = 22, [24, 25, 26], [27, 28, 29, 30]
sSEL = [31, 32, 33, 34]
sFLG = 35
pLRE, pLIM, pBRE, pBIM, pLDT, pDSK, pB1 = 8, 10, 12, 14, 16, 18, 20
srd = lambda b: f's[{b}:{b + 3}]'
vL, t0, t1, t2 = 0, 1, 2, 3
AS = [4, 5, 6, 7]
ASc = [8, 9, 10, 11]
XG = [12, 13, 14, 15]
PG = [16, 17, 18, 19]
QG = [20, 21, 22, 23]
FA0, FAc, RL2, VLN2, VL16, VNM, VRS, t3 = 24, 25, 26, 27, 28, 29, 30, 31
FAd = VNM
NLI, LI, LR, CR, NCI, NCR, L16R, L16I, LSR, LSI, L128R, L128I, WR, WI, PR, PI = range(32, 48)
TT = 48
FACC = [64, 80]
SRE, SIM = 96, 112
X = 128
aS, aF, aP, aOF, aOS, aWO, aXE = 0, 128, 0, 64, 88, 128, 224
STAMP_A = list(range(104, 128)) + list(range(241, 247))
vr = lambda b, n: f'v[{b}:{b + n - 1}]'
ar = lambda b, n: f'a[{b}:{b + n - 1}]'

stamp_names = []
FINE_KEEP = dict(T=['lb1', 'F2', 'scan', 'F3', 'fa0', 'fa1', 'tail', 'fh0'], S=['x7', 'c27', 'b0', 'F0'], F0=['b2', 'F0', 'F1'], F2=['F1', 'F2', 'scan'], F3=['F2', 'scan', 'F3', 'fa0', 'fa1', 'tail'],
                 P3=['tail'], L=['k36', 'sent', 'own', 'rx'])


def fine(phase, items, step):
    if OPT['fine'] == phase:
        for n in range(step - 1, len(items), step):
            items[n] = items[n] + stamp(f'g{n}')
    return items


def stamp(name):
    if PROF == 3 and name not in ('end', 'DUMP'):
        return []
    if OPT['fine'] and not name.startswith('g') and name not in FINE_KEEP[OPT['fine']] + ['end', 'DUMP']:
        return []
    if OPT['diag'] == name:
        return [I('s_memrealtime s[4:5]')]
    return [I(';stamp ' + name)] if PROF else []


def resolve_stamps(prog):
    out = []
    for ins in prog:
        if not ins.text.startswith(';stamp '):
            out.append(ins)
            continue
        name = ins.text.split()[1]
        n = len(stamp_names)
        if n:
            out.append(I(f'v_accvgpr_write_b32 a{STAMP_A[n - 1]}, s{4 + 2 * ((n - 1) & 1)}'))
        if name == 'DUMP':
            out += [I(f'buffer_store_dword a{STAMP_A[k]}, v{t1}, {srd(sWS)}, 0 offen offset:{4 * k}') for k in range(n)]
            continue
        assert n < 29
        stamp_names.append(name)
        out.append(I(f's_mem{"real" if PROF == 2 else ""}time s[{4 + 2 * (n & 1)}:{5 + 2 * (n & 1)}]'))
    return out


def L(text):
    return [I(t.strip()) for t in text.strip().split('\n') if t.strip()]


def mfma(d, a, b, c):
    return I(f'v_mfma_f32_32x32x16_bf16 {d}, {a}, {b}, {c}')


def mksrd(b, lo, size):
    return f's_mov_b32 s{b}, s{lo}\ns_mov_b32 s{b + 1}, s{lo + 1}\ns_mov_b32 s{b + 2}, {size}\ns_mov_b32 s{b + 3}, 0x00020000\n'


slot_shared = {}


def dma_round(name, slot, voffs, rsrc, soff_code, shared):
    out = [I(f's_add_u32 m0, s{sWOFF}, {slot * SLOT}')] + L(soff_code)
    for g in range(4):
        nt = int(name[1:]) < OPT['ntx'] if name[0] == 'x' else OPT['ntg'] if name[0] == 'G' else OPT['ntw']
        out.append(I(f'buffer_load_dwordx4 v{voffs[g]}, {srd(rsrc)}, s{sT0} offen offset:{1024 * g} {"nt " if nt else ""}lds',
                     tok=name if g == 3 else None,
                     lds_w=(slot, slot_shared.get(slot, False)) if g == 0 else None, note=name,
                     fills=(slot, shared) if g == 3 else None))
    slot_shared[slot] = shared
    return out


def rx(s, slot):
    return dma_round(f'x{s}', slot + 1, XG, sX,
                     f's_add_u32 s{sT0}, s{sROT}, {s}\ns_and_b32 s{sT0}, s{sT0}, 7\n'
                     f's_lshl_b32 s{sT0}, s{sT0}, 7\ns_add_u32 s{sT0}, s{sT0}, s{sXB}', False)


G_SLOT = [5, 6, 7, 8, 0, 1, 2, 3, 4, 5, 6, 7]
W_SLOT = dict(WA0=8, CR0=0, CI0=1, WA1=2, WA2=3, WA3=4, CR1=5, CI1=6, WB0=7, WB1=8, WB2=2)


def rg(g):
    if g < 4:
        return dma_round(f'G{g}', G_SLOT[g], PG, sB,
                         f's_lshl_b32 s{sT0}, s{sKC[g]}, 7\ns_add_u32 s{sT0}, s{sT0}, s{sBB}', True)
    base = sW1A if g < 8 else sW1B
    return dma_round(f'G{g}', G_SLOT[g], QG, sW1,
                     f's_mul_i32 s{sT0}, s{sKC[g & 3]}, {64 * 3584}\ns_add_u32 s{sT0}, s{sT0}, s{base}', True)


def rw(name):
    e = int(name[2])
    if name[0] == 'C':
        code = f's_xor_b32 s{sT0}, s{sCB}, {128 * e}'
        return dma_round(name, W_SLOT[name], PG, sCim if name[1] == 'I' else sCre, code, True)
    if name[1] == 'A':
        code = f's_xor_b32 s{sT0}, s{sJJ}, {e}\ns_lshl_b32 s{sT0}, s{sT0}, 17\ns_add_u32 s{sT0}, s{sT0}, s{sW2B}'
    else:
        code = f's_lshl_b32 s{sT0}, s{sPB[e]}, 16\ns_add_u32 s{sT0}, s{sT0}, s{sW2B}'
        if e == 0:
            code += f'\ns_xor_b32 s{sT0}, s{sT0}, s{sSEL[0]}'
    return dma_round(name, W_SLOT[name], XG, sW2, code, True)


STAGE = {n: 160 + 16 * k for k, n in enumerate(x for x in str(OPT['stg']).split('.') if x != '0')}
VST = t0


def stage_load(name):
    keep = dict(slot_shared)
    out = []
    for i_ in rw(name)[1:]:
        if i_.kind == 'vm':
            n = sum(j.kind == 'vm' for j in out)
            i_ = I(i_.text.replace('dwordx4 ', f'dwordx4 {ar(STAGE[name] + 4 * n, 4)}, ').replace(' lds', ''))
            i_.dma = True
        out.append(i_)
    slot_shared.clear()
    slot_shared.update(keep)
    return out


def stage_write(name):
    slot = W_SLOT[name]
    out = [I(f's_add_u32 s{sT0}, s{sWOFF}, {slot * SLOT}'), I(f'v_add_u32 v{VST}, s{sT0}, v{VL16}')]
    out += [I(f'ds_write_b128 v{VST}, {ar(STAGE[name] + 4 * g_, 4)} offset:{1024 * g_}', tok=name if g_ == 3 else None,
              lds_w=(slot, True) if g_ == 0 else None, note=name, fills=(slot, True) if g_ == 3 else None)
            for g_ in range(4)]
    return out


def rw2(name):
    if name not in STAGE:
        return rw(name)
    out = stage_write(name)
    for i_ in out[2:]:
        i_.dma = True
    return out


def pins(*parts):
    pin = {}
    for gap, ins in parts:
        head = [i_ for i_ in ins if not getattr(i_, 'dma', False)]
        pin.setdefault(gap, []).extend(head)
        for n, i_ in enumerate(ins[len(head):]):
            pin.setdefault(gap + n * OPT['dsp'], []).append(i_)
    return pin


BAR = lambda *toks: ([Wait(*toks)] if toks else []) + [I('s_barrier')]
PARK = {n: 247 if k == 16 else 48 + k for k, n in enumerate('pub seg lba0 lba1 lbe0 lbe1 fla flp lbw lbr hw hw2 hr hr2 f3o fp0 fp1'.split())}
PARK['pfa'] = 249


def park(**regs):
    return [I(f'v_accvgpr_write_b32 a{PARK[n]}, v{r}') for n, r in regs.items()]


def fetch(**regs):
    return [I(f'v_accvgpr_read_b32 v{r}, a{PARK[n]}') for n, r in regs.items()]


retry_blocks = []


def poll(name, loads, check):
    retry_blocks.append((name, loads, check))
    return L(check) + [I(f's_cbranch_vccnz L_retry_{name}'), I(f'L_back_{name}:')]


def cexp(dr, di, scale, zr, za):
    return L(f"""v_mul_f32 v{dr}, {scale}, v{zr}
        v_mul_f32 v{di}, {scale}, v{za}
        v_exp_f32 v{dr}, v{dr}
        v_fract_f32 v{di}, v{di}
        v_cos_f32 v{t3}, v{di}
        v_sin_f32 v{di}, v{di}
        v_mul_f32 v{di}, v{dr}, v{di}
        v_mul_f32 v{dr}, v{dr}, v{t3}""")


def cmul_add(dr, di, ar_, ai, br, bi, cr=None, ci=None):
    if cr is None:
        head = f'v_mul_f32 v{dr}, v{ar_}, v{br}\nv_mul_f32 v{di}, v{ar_}, v{bi}'
    else:
        head = f'v_fma_f32 v{dr}, v{ar_}, v{br}, v{cr}\nv_fma_f32 v{di}, v{ar_}, v{bi}, v{ci}'
    return L(head + f'\nv_fma_f32 v{dr}, -v{ai}, v{bi}, v{dr}\nv_fmac_f32 v{di}, v{ai}, v{br}')


def mish(b, voff=VL16, quarters=range(4)):
    A = FACC[b & 1]
    out = []
    for q in quarters:
        rs = range(4 * q, 4 * q + 4)
        out.append(I(f'ds_read_b128 {vr(TT + 4 * q, 4)}, v{t2} offset:{T_B1 - TB + 128 * b + 16 * q}', hoist=True))
        out += [I(f'v_fmac_f32 v{TT + r}, v{A + r}, v{RL2}') for r in rs]
        out += [I(f'v_exp_f32 v{A + r}, v{TT + r}') for r in rs]
        out += [I(f'v_add_f32 v{A + r}, 1.0, v{A + r}') for r in rs]
        out += [I(f'v_fma_f32 v{A + r}, v{A + r}, v{A + r}, 1.0') for r in rs]
        out += [I(f'v_rcp_f32 v{A + r}, v{A + r}') for r in rs]
        out += [I(f'v_fmamk_f32 v{A + r}, v{A + r}, {M2LN2:#x}, v{VLN2}') for r in rs]
        out += [I(f'v_mul_f32 v{TT + r}, v{TT + r}, v{A + r}') for r in rs]
        out += [I(f'v_cvt_pk_bf16_f32 v{A + p}, v{TT + 2 * p}, v{TT + 2 * p + 1}') for p in (2 * q, 2 * q + 1)]
        if q & 1:
            fr = q >> 1
            out.append(I(f'buffer_store_dwordx4 {vr(A + 4 * fr, 4)}, v{voff}, {srd(sWS)}, s{sFST[b]} offen '
                         f'offset:{1024 * fr} sc1', tok=f'stF{b}' if fr else None))
            if b < 3:
                out += [I(f'v_accvgpr_write_b32 a{aOF + 8 * b + 4 * fr + e}, v{A + 4 * fr + e}') for e in range(4)]
    return out


def mish_pk(b, voff, halves=range(2)):
    A = FACC[b & 1]
    out = []
    for q in range(2 * len(halves)):
        out.append(I(f'ds_read_b128 {vr(TT + 4 * q, 4)}, v{t2} offset:{T_B1 - TB + 128 * b + 16 * q}', hoist=True))
    for h in halves:
        ps = range(8 * h, 8 * h + 8, 2)
        rs = range(8 * h, 8 * h + 8)
        out += [I(f'v_pk_fma_f32 {vr(TT + p, 2)}, {vr(A + p, 2)}, {vr(RL2, 2)}, {vr(TT + p, 2)} op_sel_hi:[1,0,1]') for p in ps]
        out += [I(f'v_exp_f32 v{A + r}, v{TT + r}') for r in rs]
        out += [I(f'v_pk_add_f32 {vr(A + p, 2)}, {vr(A + p, 2)}, 1.0 op_sel_hi:[1,0]') for p in ps]
        out += [I(f'v_pk_fma_f32 {vr(A + p, 2)}, {vr(A + p, 2)}, {vr(A + p, 2)}, 1.0 op_sel_hi:[1,1,0]') for p in ps]
        out += [I(f'v_rcp_f32 v{A + r}, v{A + r}') for r in rs]
        out += [I(f'v_pk_fma_f32 {vr(A + p, 2)}, {vr(A + p, 2)}, s[{sKC[0]}:{sKC[1]}], {vr(RL2, 2)} '
                  f'op_sel:[0,0,1] op_sel_hi:[1,0,1]') for p in ps]
        out += [I(f'v_pk_mul_f32 {vr(TT + p, 2)}, {vr(TT + p, 2)}, {vr(A + p, 2)}') for p in ps]
        out += [I(f'v_cvt_pk_bf16_f32 v{A + p // 2}, v{TT + p}, v{TT + p + 1}') for p in ps]
    out += [I(f'v_permlane16_swap_b32 v{A + e}, v{A + 4 + e}') for e in range(4)]
    for h in range(2):
        out.append(I(f'buffer_store_dwordx4 {vr(A + 4 * h, 4)}, v{voff}, {srd(sWS)}, s{sFST[b]} offen '
                     f'offset:{1024 * h} sc1', tok=f'stF{b}' if h else None))
        if b < 3:
            out += [I(f'v_accvgpr_write_b32 a{aOF + 8 * b + 4 * h + e}, v{A + 4 * h + e}') for e in range(4)]
    return out


def mish_stages(b, h):
    m = mish_pk(b, VL16, range(2))
    body = m[4:]
    body = body[40:] if h else body[:40]
    return dict(rd=m[2 * h:2 * h + 2], A=body[0:4], ex=body[4:12], B=body[12:20], rc=body[20:28], C=body[28:36],
                fin=body[36:])


def cmul_pk(d, a, b, c):
    return L(f"""v_pk_fma_f32 {vr(d, 2)}, {vr(b, 2)}, {vr(a, 2)}, {vr(c, 2)} op_sel_hi:[1,0,1]
        v_pk_fma_f32 {vr(d, 2)}, {vr(b, 2)}, {vr(a, 2)}, {vr(d, 2)} op_sel:[1,1,0] op_sel_hi:[0,1,1] neg_lo:[0,1,0]""")


def staged(items, pin, plan):
    out, lo = [], 0
    for hi, fill_, burst_ in plan:
        out += weave(items[lo:hi + 1], fill_, {g_ - lo: v for g_, v in pin.items() if lo <= g_ <= hi}) + burst_
        lo = hi + 1
    return out


_weave = weave
LEV = [OPT['lev']]


def weave(*a):
    out = _weave(*a)
    return ds_first(level(out, LEV[0], OPT['vmc'])) if LEV[0] else out


P = []
if OPT['map'] == '8x4':
    ids = f"""s_and_b32 s{sKQ}, s2, 3
        s_bfe_u32 s{sJJ}, s2, 0x20003
        s_lshr_b32 s{sI}, s2, 5
        s_bfe_u32 s{sT0}, s2, 0x10002
        s_lshl_b32 s{sROT}, s{sT0}, 1
        s_lshl_b32 s{sT0}, s{sT0}, 3
        s_and_b32 s{sT1}, s{sI}, 1
        s_or_b32 s{sI}, s{sI}, s{sT0}
        s_add_u32 s{sROT}, s{sROT}, s{sT1}
        s_add_u32 s{sROT}, s{sROT}, s{sJJ if OPT['rotm'] else sKQ}
        s_lshl_b32 s{sROT}, s{sROT}, 1
        s_and_b32 s{sT1}, s{sKQ if OPT['rotm'] else sJJ}, {OPT['rotj']}
        s_add_u32 s{sROT}, s{sROT}, s{sT1}
        s_and_b32 s{sROT}, s{sROT}, 7"""
else:
    ids = f"""s_and_b32 s{sKQ}, s2, 1
        s_lshl_b32 s{sKQ}, s{sKQ}, 1
        s_lshr_b32 s{sT0}, s2, 7
        s_or_b32 s{sKQ}, s{sKQ}, s{sT0}
        s_bfe_u32 s{sJJ}, s2, 0x20003
        s_bfe_u32 s{sI}, s2, 0x20005
        s_bfe_u32 s{sT0}, s2, 0x20001
        s_add_u32 s{sROT}, s{sT0}, s{sKQ}
        s_lshl_b32 s{sT0}, s{sT0}, 2
        s_or_b32 s{sI}, s{sI}, s{sT0}
        s_lshl_b32 s{sROT}, s{sROT}, 1
        {'s_lshr_b32 s%d, s2, 7' % sT0 if OPT['rotm'] else ''}
        {'s_lshl_b32 s%d, s%d, 1' % (sROT, sJJ) if OPT['rotm'] else ''}
        {'s_add_u32 s%d, s%d, s%d' % (sROT, sROT, sT0) if OPT['rotm'] else ''}
        s_and_b32 s{sROT}, s{sROT}, 7"""
ws_load = f's_load_dwordx2 s[{sWS}:{sWS + 1}], s[0:1], 120'
more_loads = f"""s_load_dwordx8 s[{pLRE}:{pLRE + 7}], s[0:1], 8
s_load_dwordx4 s[{pLDT}:{pLDT + 3}], s[0:1], 56
s_load_dwordx2 s[{pB1}:{pB1 + 1}], s[0:1], 88
s_load_dwordx2 s[{sW1}:{sW1 + 1}], s[0:1], 80
s_load_dwordx2 s[{sCre}:{sCre + 1}], s[0:1], 40
s_load_dwordx2 s[{sCim}:{sCim + 1}], s[0:1], 48
s_load_dwordx2 s[{sW2}:{sW2 + 1}], s[0:1], 96
s_load_dwordx2 s[{sOUT}:{sOUT + 1}], s[0:1], 104
"""
SUM, SQ = [TT + 8, TT + 9], [TT + 10, TT + 11]
sizes = ((sX, 2097152), (sB, 524288), (sW1, 1835008), (sCre, 524288), (sCim, 524288), (sW2, 1835008),
         (sWS, (WS_PROF + 0x40000) if PROF else WS_SIZE), (sOUT, 4194304))
P += L(f"""
s_cmp_ge_u32 s2, 256
s_cbranch_scc1 L_end
{'s_memtime s[98:99]' if PROF else ''}
{'s_memrealtime s[90:91]' if PROF or OPT['diag'] or OPT['dbg'] else ''}
{'s_load_dwordx2 s[4:5], s[0:1], 112' if OPT['dbg'] else ''}
s_load_dwordx2 s[{sX}:{sX + 1}], s[0:1], 0
{'' if OPT['ka2'] else ws_load}
s_getpc_b64 s[{sTMP}:{sTMP + 1}]
v_lshrrev_b32 v{t0}, 6, v0
v_and_b32 v{vL}, 63, v0
s_and_b32 s{sTMP}, s{sTMP}, 0xffffff80
v_readfirstlane_b32 s{sW}, v{t0}
s_mov_b32 s{sTMP + 2}, L_code_end-{KN}
s_mov_b32 s{sTMP + 3}, 0x00020000
s_lshr_b32 s{sT0}, s2, 3
s_lshl_b32 s{sT0}, s{sT0}, 2
s_add_u32 s{sT0}, s{sT0}, s{sW}
s_lshl_b32 s{sT0}, s{sT0}, 9
v_and_b32 v{t1}, 3, v{vL}
v_lshlrev_b32 v{t1}, 7, v{t1}
buffer_load_dword v{t3}, v{t1}, {srd(sTMP)}, s{sT0} offen
{'' if OPT['ka2'] else more_loads}
v_lshrrev_b32 v{t0}, 3, v{vL}
v_lshrrev_b32 v{t1}, 4, v{vL}
v_xor_b32 v{t1}, v{t1}, v{vL}
v_and_b32 v{t1}, 7, v{t1}
v_lshlrev_b32 v{t1}, 4, v{t1}
v_lshl_add_u32 v{PG[0]}, v{t0}, 10, v{t1}
v_lshrrev_b32 v{t2}, 5, v{vL}
v_mul_u32_u24 v{t2}, {12 * 1024}, v{t2}
v_add_u32 v{XG[0]}, v{PG[0]}, v{t2}
v_xor_b32 v{XG[1]}, 64, v{XG[0]}
v_add_u32 v{XG[2]}, {6 * 1024}, v{XG[0]}
v_add_u32 v{XG[3]}, {9 * 1024}, v{XG[1]}
v_add_u32 v{XG[1]}, {3 * 1024}, v{XG[1]}
s_lshl_b32 s{sWOFF}, s{sW}, 12
{ids}
s_lshl_b32 s{sXB}, s{sI}, 17
s_lshl_b32 s{sT0}, s{sW}, 15
s_add_u32 s{sXB}, s{sXB}, s{sT0}
""" + ''.join(f's_mov_b32 s{b + 2}, {n}\ns_mov_b32 s{b + 3}, 0x00020000\n' for b, n in sizes) + f"""
s_waitcnt lgkmcnt(0)
{'v_accvgpr_write_b32 a254, s98' if PROF else ''}
{'v_accvgpr_write_b32 a255, s90' if PROF else ''}
{'s_mov_b32 s23, 0' if PROF or OPT['dbg'] else ''}
{'s_mov_b32 s3, s90' if OPT['dbg'] else ''}
{'s_mov_b32 s23, s90' if OPT['diag'] else ''}
""")
P += stamp('ka') if OPT['diag'] else []
P += rx(0, 0) + (L(ws_load + '\n' + more_loads) if OPT['ka2'] else []) + rx(1, 1)
P += L(f"""
v_and_b32 v{t0}, 31, v{vL}
s_lshl_b32 s{sJ}, s{sKQ}, 2
s_or_b32 s{sJ}, s{sJ}, s{sJJ}
v_lshrrev_b32 v{t1}, 5, v{vL}
v_bfe_u32 v{t2}, v{vL}, 1, 3
v_xor_b32 v{t1}, v{t1}, v{t2}
v_lshlrev_b32 v{t1}, 4, v{t1}
v_lshl_add_u32 v{AS[0]}, v{t0}, 7, v{t1}
v_xor_b32 v{AS[1]}, 32, v{AS[0]}
v_xor_b32 v{AS[2]}, 64, v{AS[0]}
v_xor_b32 v{AS[3]}, 0x60, v{AS[0]}
s_add_u32 s{sT0}, s{sWOFF}, {SLOT}
v_add_u32 v{ASc[0]}, s{sT0}, v{AS[0]}
v_add_u32 v{ASc[1]}, s{sT0}, v{AS[1]}
v_add_u32 v{ASc[2]}, s{sT0}, v{AS[2]}
v_add_u32 v{ASc[3]}, s{sT0}, v{AS[3]}
s_mov_b32 s{sONES}, 0x3f803f80
v_mov_b32 v{SUM[0]}, 0
v_mov_b32 v{SUM[1]}, 0
v_mov_b32 v{SQ[0]}, 0
v_mov_b32 v{SQ[1]}, 0
s_lshl_b32 s{sT0}, s{sW}, 9
s_add_u32 s{sT0}, s{sT0}, {T_SEG}
v_lshl_add_u32 v{t0}, v{vL}, 3, s{sT0}""")
P.append(I(f'ds_write_b64 v{t0}, {vr(SUM[0], 2)}', tok='zero'))
P += L(f's_waitcnt lgkmcnt(0)\ns_load_dword s{sE2}, s[{sWS}:{sWS + 1}], {WS_EP}')
mid = L(f"""
v_and_b32 v{t0}, 31, v{vL}
s_lshl_b32 s{sT1}, s{sJ}, 6
v_lshl_add_u32 v{NLI}, v{t0}, 1, s{sT1}
s_and_b32 s{sT3}, s{sW}, 1
s_mul_i32 s{sT2}, s{sKQ}, 7
s_lshl_b32 s{sW1A}, s{sJJ}, 1
s_add_u32 s{sPB[0]}, s{sW1A}, 1
s_cmp_eq_u32 s{sJJ}, 3
s_cselect_b32 s{sPB[0]}, 3, s{sPB[0]}
s_cselect_b32 s{sFSEL}, 64, 0
s_add_u32 s{sW1A}, s{sW1A}, s{sT2}
s_add_u32 s{sW1B}, s{sPB[0]}, s{sT2}
s_lshl_b32 s{sW1A}, s{sW1A}, 7
s_lshl_b32 s{sW1B}, s{sW1B}, 7
s_cmp_ge_u32 s{sW}, 2
s_cselect_b32 s{sT2}, s{sW1B}, s{sW1A}
s_cselect_b32 s{sT1}, s{sFSEL}, 0
s_add_u32 s{sT2}, s{sT2}, s{sT1}
s_lshl_b32 s{sT1}, s{sT3}, 6
s_xor_b32 s{sT2}, s{sT2}, s{sT1}
v_and_b32 v{t1}, 3, v{vL}
v_bfe_u32 v{t2}, v{vL}, 2, 2
v_lshl_add_u32 v{t1}, v{t2}, 3, v{t1}
v_bfe_u32 v{t2}, v{vL}, 4, 1
v_lshl_add_u32 v{t1}, v{t2}, 2, v{t1}
v_lshl_add_u32 v{PR}, v{t1}, 1, s{sT2}
s_cmp_eq_u32 s{sT3}, 1
s_cselect_b32 s{sB}, s{pBIM}, s{pBRE}
s_cselect_b32 s{sB + 1}, s{pBIM + 1}, s{pBRE + 1}
s_mul_i32 s{sT3}, s{sT3}, {32 * 3584}
s_add_u32 s{sW1A}, s{sW1A}, s{sT3}
s_add_u32 s{sW1B}, s{sW1B}, s{sT3}
s_lshl_b32 s{sBB}, s{sJ}, 15
s_lshr_b32 s{sT1}, s{sW}, 1
s_add_u32 s{sT1}, s{sT1}, s{sROT}
s_and_b32 s{sKC[0]}, s{sT1}, 7
s_add_u32 s{sT1}, s{sT1}, 2
s_and_b32 s{sKC[1]}, s{sT1}, 7
s_add_u32 s{sT1}, s{sT1}, 2
s_and_b32 s{sKC[2]}, s{sT1}, 7
s_add_u32 s{sT1}, s{sT1}, 2
s_and_b32 s{sKC[3]}, s{sT1}, 7
v_xor_b32 v{PG[1]}, 64, v{PG[0]}
v_add_u32 v{PG[2]}, {14 * 1024}, v{PG[0]}
v_add_u32 v{PG[3]}, {21 * 1024}, v{PG[1]}
v_add_u32 v{PG[1]}, {7 * 1024}, v{PG[1]}
v_and_b32 v{t2}, 1, v{vL}
v_lshlrev_b32 v{t2}, 4, v{t2}
v_mov_b32 v{VNM}, 0x3f80
v_lshlrev_b32 v{t2}, v{t2}, v{VNM}
v_bfe_i32 v{t0}, v{vL}, 1, 1
v_and_b32 v{TT + 1}, v{t0}, v{t2}
v_xor_b32 v{TT}, v{TT + 1}, v{t2}
""")
mid += L(f"""
v_lshrrev_b32 v{t1}, 3, v{vL}
v_mul_u32_u24 v{t1}, 3584, v{t1}
v_bfe_u32 v{t2}, v{vL}, 4, 1
v_lshlrev_b32 v{t2}, 2, v{t2}
v_xor_b32 v{t2}, v{t2}, v{vL}
v_and_b32 v{t2}, 7, v{t2}
v_lshl_add_u32 v{QG[0]}, v{t2}, 4, v{t1}
v_add_u32 v{QG[1]}, {27648}, v{QG[0]}
v_add_u32 v{QG[2]}, {2 * 27648}, v{QG[0]}
v_add_u32 v{QG[3]}, {3 * 27648}, v{QG[0]}
""")
late = L(f"""
s_mul_i32 s{sE2}, s{sE2}, 1664525
s_add_u32 s{sE2}, s{sE2}, 1013904226
s_or_b32 s{sTAG}, s{sE2}, 1
v_bfe_u32 v{t1}, v{vL}, 2, 2
v_lshrrev_b32 v{t2}, 5, v{vL}
v_lshl_add_u32 v{t2}, v{t2}, 3, v{t1}
v_lshlrev_b32 v{FA0}, 7, v{t2}
v_lshrrev_b32 v{t1}, 1, v{t1}
v_lshl_add_u32 v{FA0}, v{t1}, 6, v{FA0}
v_bfe_u32 v{t1}, v{vL}, 4, 1
v_lshl_add_u32 v{FA0}, v{t1}, 5, v{FA0}
v_and_b32 v{t1}, 3, v{vL}
v_lshl_add_u32 v{FA0}, v{t1}, 3, v{FA0}
v_lshlrev_b32 v{VL16}, 4, v{vL}
v_mov_b32 v{VLN2}, {LN2:#x}
s_cmp_eq_u32 s{sPB[0]}, 1
s_cselect_b32 s{sPB[1]}, 3, 1
s_cmp_eq_u32 s{sPB[0]}, 5
s_cselect_b32 s{sPB[2]}, 3, 5
s_lshl_b32 s{sSEL[0]}, s{sFSEL}, 9
s_lshl_b32 s{sAS}, s{sI}, 2
s_add_u32 s{sAS}, s{sAS}, s{sW}
s_lshl_b32 s{sAS}, s{sAS}, 2
s_add_u32 s{sAS}, s{sAS}, s{sKQ}
s_lshl_b32 s{sFLG}, s{sAS}, 11
s_add_u32 s{sFLG}, s{sFLG}, {WS_FL}
s_mul_i32 s{sAS}, s{sAS}, {44 * 1024}
s_add_u32 s{sAS}, s{sAS}, {WS_A}
s_lshl_b32 s{sT2}, s{sJJ}, 13
s_add_u32 s{sFST[0]}, s{sAS}, s{sT2}
s_add_u32 s{sFST[1]}, s{sFST[0]}, 2048
s_lshl_b32 s{sT2}, s{sPB[0]}, 12
s_add_u32 s{sFST[3]}, s{sAS}, s{sT2}
s_lshl_b32 s{sT2}, s{sFSEL}, 5
s_add_u32 s{sFST[2]}, s{sFST[3]}, s{sT2}
s_add_u32 s{sFST[3]}, s{sFST[3]}, 2048
s_lshl_b32 s{sT2}, s{sJJ}, 12
s_add_u32 s{sSST}, s{sAS}, s{sT2}
s_add_u32 s{sSST}, s{sSST}, {28 * 1024}
s_xor_b32 s{sT2}, s{sW}, s{sKQ}
s_lshl_b32 s{sT2}, s{sT2}, 15
s_lshl_b32 s{sCB}, s{sJJ}, 17
s_add_u32 s{sCB}, s{sCB}, s{sT2}
s_lshl_b32 s{sT2}, s{sKQ}, 8
s_add_u32 s{sCB}, s{sCB}, s{sT2}
s_lshr_b32 s{sT2}, s{sJJ}, 1
s_lshl_b32 s{sT2}, s{sT2}, 7
s_add_u32 s{sCB}, s{sCB}, s{sT2}
s_mul_i32 s{sW2B}, s{sKQ}, {448 * 1024}
s_lshr_b32 s{sT2}, s{sW}, 1
s_lshl_b32 s{sT2}, s{sT2}, 15
s_add_u32 s{sW2B}, s{sW2B}, s{sT2}
s_lshl_b32 s{sT2}, s{sJJ}, 8
s_add_u32 s{sW2B}, s{sW2B}, s{sT2}
s_lshr_b32 s{sT2}, s{sKQ}, 1
s_xor_b32 s{sT2}, s{sT2}, s{sW}
s_and_b32 s{sT2}, s{sT2}, 1
s_lshl_b32 s{sT2}, s{sT2}, 7
s_add_u32 s{sW2B}, s{sW2B}, s{sT2}
s_lshl_b32 s{sT2}, s{sI}, 4
s_add_u32 s{sT2}, s{sT2}, s{sJJ}
s_lshl_b32 s{sT2}, s{sT2}, 2
s_add_u32 s{sT2}, s{sT2}, s{sW}""")
for b in range(4):
    late += L(f"""s_xor_b32 s{sT3}, s{sKQ}, {b}
        s_lshl_b32 s{sT3}, s{sT3}, 4
        s_add_u32 s{sT3}, s{sT3}, s{sT2}
        s_mul_i32 s{sT3}, s{sT3}, {3 * XC_BLK}
        s_add_u32 s{sXO[b]}, s{sT3}, {WS_XC + (b - 1) * XC_BLK if b else WS_XC}""")
late += L(f"""s_add_u32 s{sSEL[2]}, s{sXO[0]}, {XC_BLK}
    s_add_u32 s{sSEL[3]}, s{sXO[0]}, {2 * XC_BLK}
    s_and_b32 s{sT3}, s{sJJ}, 1
    s_sub_u32 s{sSEL[1]}, 6, s{sT3}""")
pf = []
if OPT['pf'] == 2:
    late += L(f"""
s_and_b32 s{sT1}, s{sI}, 7
s_lshl_b32 s{sT2}, s{sT1}, 1
s_add_u32 s{sT2}, s{sT2}, s{sW}
s_mul_i32 s{sT2}, s{sT2}, 28
s_mul_i32 s{sT3}, s{sKQ}, 448
s_add_u32 s{sT2}, s{sT2}, s{sT3}
s_lshl_b32 s{sT2}, s{sT2}, 2
s_add_u32 s{sT2}, s{sT2}, s{sJJ}
s_lshl_b32 s{sT3}, s{sJJ}, 3
s_add_u32 s{sT3}, s{sT3}, s{sT1}
s_lshl_b32 s{sT3}, s{sT3}, 6
s_add_u32 s{sT3}, s{sT3}, s{sKQ}
s_cmp_lt_u32 s{sW}, 2
s_cselect_b32 s{sT2}, s{sT2}, s{sT3}
s_cselect_b32 s{sT3}, 56, 32
s_cselect_b32 s{sTMP}, s{sW2}, s{sCre}
s_cselect_b32 s{sTMP + 1}, s{sW2 + 1}, s{sCre + 1}
s_cselect_b32 s{sTMP + 2}, s{sW2 + 2}, s{sCre + 2}
s_cmp_eq_u32 s{sW}, 3
s_cselect_b32 s{sTMP}, s{sCim}, s{sTMP}
s_cselect_b32 s{sTMP + 1}, s{sCim + 1}, s{sTMP + 1}""")
elif OPT['pf']:
    late += L(f"""
s_mul_i32 s{sT2}, s{sKQ}, 448
s_mul_i32 s{sT3}, s{sI}, 28
s_add_u32 s{sT2}, s{sT2}, s{sT3}
s_lshl_b32 s{sT2}, s{sT2}, 2
s_add_u32 s{sT2}, s{sT2}, s{sJJ}
s_lshl_b32 s{sT3}, s{sJJ}, 4
s_add_u32 s{sT3}, s{sT3}, s{sI}
s_lshl_b32 s{sT3}, s{sT3}, 5
s_add_u32 s{sT3}, s{sT3}, s{sKQ}
s_cmp_eq_u32 s{sW}, 0
s_cselect_b32 s{sT2}, s{sT2}, s{sT3}
s_cselect_b32 s{sT3}, 56, 16
s_cselect_b32 s{sTMP}, s{sW2}, s{sCre}
s_cselect_b32 s{sTMP + 1}, s{sW2 + 1}, s{sCre + 1}
s_cselect_b32 s{sTMP + 2}, s{sW2 + 2}, s{sCre + 2}
s_cmp_eq_u32 s{sW}, 2
s_cselect_b32 s{sTMP}, s{sCim}, s{sTMP}
s_cselect_b32 s{sTMP + 1}, s{sCim + 1}, s{sTMP + 1}
s_cmp_eq_u32 s{sW}, 3
s_cselect_b32 s{sT3}, 0, s{sT3}""")
if OPT['pf']:
    late += L(f"""s_lshl_b32 s{sT2}, s{sT2}, 8
v_lshrrev_b32 v{t0}, 1, v{vL}
v_and_b32 v{t1}, 1, v{vL}
v_lshlrev_b32 v{t1}, 7, v{t1}
v_lshl_add_u32 v{t0}, v{t0}, 10, v{t1}
v_add_u32 v{t0}, s{sT2}, v{t0}
v_mov_b32 v{t1}, {OOB:#x}
v_cmp_gt_u32 vcc, s{sT3}, v{vL}
v_cndmask_b32 v{PI}, v{t1}, v{t0}, vcc""")
    pf = L(f'buffer_load_dword a248, v{PI}, {srd(sTMP)}, 0 offen')

Z = TT + 2
consts = L(f"""
v_lshlrev_b32 v{NLI}, 16, v{NLI}
v_mul_f32 v{NLI}, {LOG2E:#x}, v{NLI}
v_exp_f32 v{NLI}, v{NLI}
v_lshlrev_b32 v{Z + 2}, 16, v{LR}
v_lshlrev_b32 v{Z + 3}, 16, v{LI}
v_cvt_pk_bf16_f32 v{NLI}, v{NLI}, v{NLI}
v_lshlrev_b32 v{NLI}, 16, v{NLI}
v_mul_f32 v{Z}, v{NLI}, v{Z + 2}
v_mul_f32 v{Z + 1}, v{NLI}, v{Z + 3}
v_mul_f32 v{Z}, {LOG2E:#x}, v{Z}
v_mul_f32 v{Z + 1}, 0xbe22f983, v{Z + 1}""")
consts += cexp(LR, LI, '1.0', Z, Z + 1)
consts += L(f"""
v_mul_f32 v{Z + 4}, v{Z + 2}, v{Z + 2}
v_fmac_f32 v{Z + 4}, v{Z + 3}, v{Z + 3}
v_rcp_f32 v{Z + 4}, v{Z + 4}
v_add_f32 v{Z + 5}, -1.0, v{LR}
v_sub_f32 v{NLI}, 0, v{LI}
v_add_f32 v{Z + 4}, v{Z + 4}, v{Z + 4}
v_mul_f32 v{CR}, v{Z + 5}, v{Z + 2}
v_fmac_f32 v{CR}, v{NLI}, v{Z + 3}
v_mul_f32 v{NCI}, v{Z + 5}, v{Z + 3}
v_fmac_f32 v{NCI}, v{LI}, v{Z + 2}
v_mul_f32 v{CR}, v{CR}, v{Z + 4}
v_mul_f32 v{NCI}, v{NCI}, v{Z + 4}
v_sub_f32 v{NCR}, 0, v{CR}""")
consts += cexp(L16R, L16I, '0x41800000', Z, Z + 1)
consts += cexp(L128R, L128I, '0x43000000', Z, Z + 1)
consts += L(f"""
v_lshrrev_b32 v{Z + 6}, 5, v{vL}
s_lshl_b32 s{sT2}, s{sW}, 1
v_add_u32 v{Z + 6}, s{sT2}, v{Z + 6}
v_cvt_f32_u32 v{Z + 6}, v{Z + 6}
v_mul_f32 v{Z + 7}, 0x41800000, v{Z + 6}
v_sub_f32 v{Z + 6}, 0x40e00000, v{Z + 6}
v_mul_f32 v{Z + 6}, 0x43800000, v{Z + 6}""")
consts += cexp(LSR, LSI, f'v{Z + 7}', Z, Z + 1)
consts += cexp(WR, WI, f'v{Z + 6}', Z, Z + 1)
consts += L(f"""v_lshlrev_b32 v{PR}, 16, v{PR}
v_mul_f32 v{PR}, {LOG2E:#x}, v{PR}
v_and_b32 v{t1}, 31, v{vL}
s_lshl_b32 s{sT1}, s{sW}, 7
s_add_u32 s{sT1}, s{sT1}, {T_B1}
v_lshl_add_u32 v{t1}, v{t1}, 2, s{sT1}
""") + [I(f'ds_write_b32 v{t1}, v{PR}', tok='b1w')]
later = []
Y = SRE
later += L(f"""v_and_b32 v{Y}, 31, v{vL}
    v_lshlrev_b32 v{Y + 1}, 3, v{Y}
    v_add_u32 v{Y + 1}, {T_LB}, v{Y + 1}
    v_lshrrev_b32 v{t0}, 5, v{vL}
    s_lshl_b32 s{sT2}, s{sW}, 11
    s_add_u32 s{sT2}, s{sT2}, {T_H}
    v_lshl_add_u32 v{Y}, v{Y}, 6, s{sT2}
    v_bfe_u32 v{Y + 2}, v{vL}, 1, 2
    v_lshlrev_b32 v{Y + 3}, 1, v{t0}
    v_xor_b32 v{Y + 2}, v{Y + 2}, v{Y + 3}
    v_bfe_u32 v{Y + 3}, v{vL}, 3, 1
    v_xor_b32 v{Y + 2}, v{Y + 2}, v{Y + 3}
    v_lshl_add_u32 v{Y}, v{Y + 2}, 4, v{Y}
    v_xor_b32 v{Y + 3}, 16, v{Y}
    v_bfe_u32 v{Y + 6}, v{vL}, 2, 2
    v_lshrrev_b32 v{t1}, 4, v{vL}
    v_lshl_add_u32 v{Y + 2}, v{t1}, 3, v{Y + 6}
    v_lshl_add_u32 v{Y + 2}, v{Y + 2}, 6, s{sT2}
    v_and_b32 v{t1}, 1, v{vL}
    v_lshl_add_u32 v{Y + 2}, v{t1}, 5, v{Y + 2}
    v_lshrrev_b32 v{t1}, 1, v{vL}
    v_xor_b32 v{t1}, v{t1}, v{vL}
    v_and_b32 v{t1}, 8, v{t1}
    v_lshl_add_u32 v{Y + 2}, v{t1}, 1, v{Y + 2}
    v_bfe_u32 v{t1}, v{vL}, 1, 1
    v_lshl_add_u32 v{Y + 2}, v{t1}, 3, v{Y + 2}
    v_bfe_u32 v{t1}, v{vL}, 4, 1
    v_lshl_add_u32 v{Y + 5}, v{t0}, 2, v{Y + 6}
    v_lshl_add_u32 v{Y + 5}, v{t1}, 4, v{Y + 5}
    v_lshlrev_b32 v{Y + 5}, 7, v{Y + 5}
    s_and_b32 s{sT2}, s{sKQ}, 1
    v_xor_b32 v{t1}, s{sT2}, v{t1}
    v_lshl_add_u32 v{Y + 5}, v{t1}, 6, v{Y + 5}
    v_bfe_u32 v{t1}, v{vL}, 3, 1
    v_lshl_add_u32 v{Y + 5}, v{t1}, 5, v{Y + 5}
    v_and_b32 v{t1}, 3, v{vL}
    v_lshl_add_u32 v{Y + 5}, v{t1}, 3, v{Y + 5}
    v_and_b32 v{Y + 6}, 15, v{vL}
    v_lshrrev_b32 v{t1}, 4, v{vL}
    v_bfe_u32 v{Y + 4}, v{vL}, 1, 3
    v_xor_b32 v{t1}, v{t1}, v{Y + 4}
    v_lshlrev_b32 v{t1}, 4, v{t1}
    v_lshl_add_u32 v{Y + 6}, v{Y + 6}, 7, v{t1}
    s_and_b32 s{sT2}, s{sJJ}, 1
    s_lshl_b32 s{sT2}, s{sT2}, 6
    v_xor_b32 v{Y + 6}, s{sT2}, v{Y + 6}
    s_lshl_b32 s{sT2}, s{sW}, 9
    s_add_u32 s{sT1}, s{sT2}, {T_SEG}
    s_add_u32 s{sT2}, s{sT2}, {T_LB}
    v_lshl_add_u32 v{Y + 7}, v{vL}, 3, s{sT1}
    v_lshl_add_u32 v{Y + 8}, v{vL}, 3, s{sT2}""")
later += park(hw=Y, lbr=Y + 1, hr=Y + 2, hw2=Y + 3, fp0=Y + 5, fp1=Y + 6, seg=Y + 7, lbw=Y + 8)
park2 = []
Y = FACC[0]
park2 += L(f"""s_lshl_b32 s{sT2}, s{sJ}, 4
    s_add_u32 s{sT2}, s{sT2}, s{sI}
    s_lshl_b32 s{sT2}, s{sT2}, 9
    s_add_u32 s{sT2}, s{sT2}, {WS_AG - 512}
    s_cmp_eq_u32 s{sW}, 3
    s_cselect_b32 s{sT2}, s{sT2}, {OOB:#x}
    v_mov_b32 v{Y + 8}, {OOB:#x}
    v_cmp_gt_u32 vcc, 32, v{vL}
    v_add_u32 v{Y}, s{sT2}, v{VL16}
    v_lshrrev_b32 v{t0}, 5, v{vL}
    v_cndmask_b32 v{Y}, v{Y}, v{Y + 8}, vcc
    s_lshl_b32 s{sT2}, s{sW}, 2
    s_add_u32 s{sT2}, s{sT2}, s{sI}
    s_sub_u32 s{sT2}, s{sT2}, 16
    v_lshl_add_u32 v{t0}, v{t0}, 1, s{sT2}
    s_lshl_b32 s{sT2}, s{sJ}, 13
    s_add_u32 s{sT2}, s{sT2}, {WS_AG}
    v_and_b32 v{Y + 9}, 31, v{vL}
    v_lshl_add_u32 v{t1}, v{Y + 9}, 4, s{sT2}
    v_lshl_add_u32 v{Y + 1}, v{t0}, 9, v{t1}
    v_cmp_gt_i32 vcc, 0, v{t0}
    v_add_u32 v{Y + 2}, 512, v{Y + 1}
    v_mov_b32 v{t1}, s{sTAG}
    v_cndmask_b32 v{Y + 1}, v{Y + 1}, v{Y + 8}, vcc
    v_cndmask_b32 v{Y + 3}, v{t1}, 0, vcc
    v_cmp_gt_i32 vcc, -1, v{t0}
    s_lshl_b32 s{sT2}, s{sJJ}, 9
    s_add_u32 s{sT2}, s{sT2}, s{sFLG}
    v_cndmask_b32 v{Y + 2}, v{Y + 2}, v{Y + 8}, vcc
    v_cndmask_b32 v{Y + 4}, v{t1}, 0, vcc
    v_lshl_add_u32 v{Y + 5}, v{Y + 9}, 2, s{sT2}
    v_and_b32 v{t0}, 3, v{vL}
    v_max_u32 v{t0}, 1, v{t0}
    v_xor_b32 v{t0}, s{sJJ}, v{t0}
    v_lshl_add_u32 v{Y + 6}, v{t0}, 9, s{sFLG}
    s_bitcmp1_b32 s{sJJ}, 0
    s_cselect_b32 s{sT2}, {OOB:#x}, 0
    v_add_u32 v{Y + 7}, s{sT2}, v{VL16}
    """)
park2 += park(pfa=PI)
park2 += park(pub=Y, lba0=Y + 1, lba1=Y + 2, lbe0=Y + 3, lbe1=Y + 4, fla=Y + 5, flp=Y + 6, f3o=Y + 7)
params = L(f"""global_load_ushort v{LR}, v{NLI}, s[{pLRE}:{pLRE + 1}]
    global_load_ushort v{LI}, v{NLI}, s[{pLIM}:{pLIM + 1}]
    global_load_ushort v{NLI}, v{NLI}, s[{pLDT}:{pLDT + 1}]
    global_load_ushort v{PR}, v{PR}, s[{pB1}:{pB1 + 1}]""")
nl = len(late) * OPT['lateln'] // 100
while late[nl - 1].mn.startswith(('s_cmp', 'v_cmp', 's_cselect')) or (nl < len(late) and late[nl].mn.startswith('v_cndmask')):
    nl += 1
if nl >= len(late):
    later, late, park2 = later + late + park2, [], []
else:
    later, late = later + late[:nl], late[nl:]
later = mid + later + [I(f'v_accvgpr_write_b32 a{aXE + r}, 0') for r in range(17)]
cuts = [0]
for n in range(1, 7):
    c = n * len(later) // 7
    while later[c].mn.startswith(('s_cselect', 'v_cndmask', 's_nop')) or later[c - 1].mn.startswith('v_cmp'):
        c += 1
    cuts.append(c)
cuts.append(len(later))

touch_w = L(f'v_mov_b32 v{PI}, 0') + [
    I(f'buffer_load_dword a{56 + n}, v{PI}, {srd(r)}, 0 offen') for n, r in enumerate((sW1, sCre, sCim, sW2))]
touch_o = L(f"""v_min_u32 v{PR}, {WS_SIZE >> 21}, v{vL}
    v_lshlrev_b32 v{PR}, 21, v{PR}
    v_add_u32 v{PR}, 0x800, v{PR}
    buffer_load_dword a60, v{PR}, {srd(sWS)}, 0 offen
    buffer_load_dword a61, v{PR}, {srd(sOUT)}, 0 offen""")
if OPT['tlb'] in (1, 3, 4):
    P += touch_w
if OPT['tlb'] == 1:
    P += touch_o
P += rx(2, 2) + [I('s_waitcnt lgkmcnt(0)')]
for s in range(8):
    P.append(Wait(f'x{s}'))
    if s == 0:
        P += stamp('x0')
    for q in range(4):
        P.append(I(f'ds_read_b128 {vr(X + 16 * s + 4 * q, 4)}, v{ASc[q]} offset:{(s & 3) * SLOT}', lds_r=(s & 3) + 1,
                   tok=f'xr{s}' if q == 3 else None))
    nxt = rg(s - 5) if s >= 5 else rx(s + 3, (s + 3) & 3) + (params if s == OPT['parat'] else [])
    piece = later[cuts[s]:cuts[s + 1]] if s < 7 else []
    P += nxt + piece if OPT['xfirst'] else piece + nxt
    for r in range(16):
        P.append(I(f'v_dot2c_f32_bf16 v{SUM[r & 1]}, s{sONES}, v{X + 16 * s + r}'))
        P.append(I(f'v_dot2c_f32_bf16 v{SQ[r & 1]}, v{X + 16 * s + r}, v{X + 16 * s + r}'))
P += stamp('x7')
P += L(f"""
v_add_f32 v{SUM[0]}, v{SUM[0]}, v{SUM[1]}
v_add_f32 v{SQ[0]}, v{SQ[0]}, v{SQ[1]}
v_mov_b32 v{SUM[1]}, v{SUM[0]}
v_mov_b32 v{SQ[1]}, v{SQ[0]}
v_permlane32_swap_b32 v{SUM[1]}, v{SUM[0]}
v_add_f32 v{SUM[0]}, v{SUM[0]}, v{SUM[1]}
v_mul_f32 v{SUM[0]}, 0xbb000000, v{SUM[0]}
v_cvt_pk_bf16_f32 v{t0}, v{SUM[0]}, v{SUM[0]}
v_lshlrev_b32 v{SIM}, 16, v{t0}
v_lshlrev_b32 v{SIM + 1}, 16, v{t0}
v_lshlrev_b32 v{SIM + 2}, 16, v{t0}
v_lshlrev_b32 v{SIM + 3}, 16, v{t0}
""")

back = lambda o: [I(f'v_cvt_pk_bf16_f32 v{X + 2 * o + e}, v{FACC[0] + 4 * (o & 3) + 2 * e}, '
                    f'v{FACC[0] + 4 * (o & 3) + 2 * e + 1}') for e in range(2)]
items = [[I(f'v_mfma_f32_4x4x4_16b_bf16 {vr(FACC[0] + 4 * (n & 3), 4)}, {vr(TT, 2)}, {vr(X + 2 * n, 2)}, {vr(SIM, 4)}')]
         + (back(n - 2) if n >= 2 else []) for n in range(64)]
fill = L(f"""
v_permlane32_swap_b32 v{SQ[1]}, v{SQ[0]}
v_sub_f32 v{VNM}, 0, v{SIM}
v_add_f32 v{SQ[0]}, v{SQ[0]}, v{SQ[1]}
v_mul_f32 v{SQ[0]}, 0x3b000000, v{SQ[0]}
v_fma_f32 v{SQ[0]}, -v{SUM[0]}, v{SUM[0]}, v{SQ[0]}
v_max_f32 v{SQ[0]}, 0, v{SQ[0]}
v_cvt_pk_bf16_f32 v{t0}, v{SQ[0]}, v{SQ[0]}
v_lshlrev_b32 v{t0}, 16, v{t0}
v_add_f32 v{t0}, 0x3727c5ac, v{t0}
v_cvt_pk_bf16_f32 v{t0}, v{t0}, v{t0}
v_lshlrev_b32 v{t0}, 16, v{t0}
v_sqrt_f32 v{t0}, v{t0}
v_and_b32 v{t1}, 3, v{vL}
v_cvt_pk_bf16_f32 v{t0}, v{t0}, v{t0}
v_lshlrev_b32 v{t0}, 16, v{t0}
v_rcp_f32 v{VRS}, v{t0}
v_bfe_u32 v{t2}, v{vL}, 3, 2
v_lshl_add_u32 v{t1}, v{t2}, 2, v{t1}
v_bfe_u32 v{t2}, v{vL}, 2, 1
v_lshl_add_u32 v{t1}, v{t2}, 4, v{t1}
s_lshl_b32 s{sT1}, s{sW}, 8
s_add_u32 s{sT1}, s{sT1}, {T_STAT}
v_lshl_add_u32 v{t1}, v{t1}, 2, s{sT1}
v_mul_f32 v{RL2}, {LOG2E:#x}, v{VRS}
ds_write_b32 v{t1}, v{VNM}
""")
fill.append(I(f'ds_write_b32 v{t1}, v{VRS} offset:128', tok='tabw'))
LA_S, LA_F = 3, OPT['laf']


def s_addr(slot):
    return [I(f'v_add_u32 v{ASc[q]}, {slot * SLOT}, v{AS[q]}') for q in range(4)]


def s_read(s, ri):
    return I(f'ds_read_b128 {ar(aS + 8 * (s & 3) + 4 * ri, 4)}, v{ASc[s & 3]} offset:{(s >> 3) * SLOT + (2 * ((s >> 2) & 1) + ri) * 4096}',
             lds_r=G_SLOT[s >> 3])


def f_addr(b):
    if b < 2:
        return [I(f'v_xor_b32 v{FAc}, {64 * b}, v{FA0}')]
    if b == 3:
        return [I(f'v_xor_b32 v{FAc}, 64, v{FAc}')]
    return [I(f'v_xor_b32 v{FAc}, s{sFSEL}, v{FA0}'), I(f'v_add_u32 v{FAc}, {G_SLOT[8] * SLOT}, v{FAc}')]


def f_read(b, s):
    out = f_addr(b) if s == 0 else []
    k = (32 * b + s) & 7
    for u in range(2):
        out.append(I(f'ds_read_b64_tr_b16 {ar(aF + 4 * k + 2 * u, 2)}, v{FAc} '
                     f'offset:{(s >> 3) * SLOT + ((s >> 1) & 3) * 4096 + (s & 1) * 2048 + u * 512}',
                     lds_r=G_SLOT[(4 if b < 2 else 8) + (s >> 3)]))
    return out


DSP = OPT['dsp']
OPT['dsp'] = OPT['dspc']
pin = pins((OPT['g3'], rg(3)), *([(OPT['g3'] + 4 * OPT['dspc'], rg(4))] if OPT['sch'] >= 2 else []),
           (54, s_addr(G_SLOT[0]) + stamp('c27') + BAR('G0', 'zero', *([] if OPT['bsp'] else ['G1'])) + stamp('b0')))
OPT['dsp'] = DSP
for k in range(LA_S):
    pin[55 + 2 * k] = [s_read(k, 0), s_read(k, 1)]
stat_fill = fill
if OPT['cfs']:
    fill = stat_fill[:2]
    stat_fill = stat_fill[2:]
else:
    stat_fill = []
P += weave(items, fill, pin, 0, 40) + back(62) + back(63)

S_items = []
for s in range(32):
    for ri, acc in ((0, SRE), (1, SIM)):
        it = [mfma(vr(acc, 16), vr(X + 4 * s, 4), ar(aS + 8 * (s & 3) + 4 * ri, 4), vr(acc, 16) if s else '0')]
        n = s + LA_S
        if n < 32:
            it.append(s_read(n, ri))
        S_items.append(it)
for k in range(LA_F):
    S_items[64 - LA_F + k] += f_read(0, k)
F_items = []
for b in range(4):
    its = []
    for s in range(32):
        acc = vr(FACC[b & 1], 16)
        it = [mfma(acc, ar(aF + 4 * ((32 * b + s) & 7), 4), vr(X + 4 * s, 4), acc if s else '0')]
        n = s + LA_F
        if n < 32:
            it += f_read(b, n)
        elif b < 3:
            it += f_read(b + 1, n - 32)
        its.append(it)
    F_items.append(its)

FLA, FLP = VNM, VRS
fill = stat_fill + late + park2 + consts + (pf if OPT['pfat'] < 0 else []) + L(f"""
v_lshrrev_b32 v{t0}, 3, v{vL}
v_bfe_u32 v{t1}, v{vL}, 4, 1
v_lshlrev_b32 v{t1}, 1, v{t1}
v_xor_b32 v{t1}, v{t1}, v{vL}
v_and_b32 v{t1}, 7, v{t1}
v_lshlrev_b32 v{t1}, 4, v{t1}
v_lshl_add_u32 v{XG[0]}, v{t0}, 10, v{t1}
v_add_u32 v{XG[1]}, {7 * 1024}, v{XG[0]}
v_xor_b32 v{XG[2]}, 64, v{XG[0]}
v_add_u32 v{XG[3]}, {21 * 1024}, v{XG[2]}
v_add_u32 v{XG[2]}, {14 * 1024}, v{XG[2]}
v_lshrrev_b32 v{t2}, 5, v{vL}
v_lshlrev_b32 v{t2}, 6, v{t2}
v_add_u32 v{t2}, {TB}, v{t2}
s_lshl_b32 s{sT2}, s{sW}, 8
v_add_u32 v{t1}, s{sT2}, v{t2}""")
fill += [I(f'ds_read_b128 {vr(FACC[1] + 4 * q, 4)}, v{t1} offset:{128 + 16 * q}') for q in range(4)]
xa, xb = TT + 14, TT + 15
ROW = lambda n: 16 * ((n >> 2) & 1) + 8 * (n >> 3) + (n & 3)
xe = L(f"""v_and_b32 v{xa}, 31, v{vL}
    v_lshrrev_b32 v{xb}, 5, v{vL}
    v_lshlrev_b32 v{xb}, 12, v{xb}
    v_lshl_add_u32 v{xb}, v{xa}, 1, v{xb}
    s_lshl_b32 s{sONES}, s{sJJ}, 2
    s_add_u32 s{sONES}, s{sONES}, s{sKQ}
    s_lshl_b32 s{sONES}, s{sONES}, 6
    v_lshl_add_u32 v{xa}, v{xa}, 1, s{sONES}
    s_add_u32 s{sXB}, s{sXB}, s{sONES}
    global_load_short_d16_hi a{aXE + 16}, v{xa}, s[{pDSK}:{pDSK + 1}]""")
for r in range(16):
    if r % 4 == 0:
        xe.append(I(f's_add_u32 s{sONES}, s{sXB}, {1024 * ROW(r)}'))
    xe.append(I(f'buffer_load_short_d16_hi a{aXE + r}, v{xb}, {srd(sX)}, s{sONES} offen offset:{1024 * (r & 3)}'))
sAO = dict(A={1: 8, 2: 9, 3: 10}, H={1: 11, 2: 12, 3: 13}, B={1: 14, 2: 15})
for e in (1, 2, 3):
    fill += L(f"""s_xor_b32 s{sT2}, s{sJJ}, {e}
        s_lshl_b32 s{sT2}, s{sT2}, 12
        s_add_u32 s{sAO['H'][e]}, s{sT2}, s{sAS}
        s_add_u32 s{sAO['A'][e]}, s{sAO['H'][e]}, s{sT2}
        s_add_u32 s{sAO['H'][e]}, s{sAO['H'][e]}, {28 * 1024}""")
for e in (1, 2):
    fill += L(f's_lshl_b32 s{sT2}, s{sPB[e]}, 12\ns_add_u32 s{sAO["B"][e]}, s{sT2}, s{sAS}')
if OPT['tlb'] in (2, 3):
    fill = touch_o + fill
if OPT['fw']:
    fill += L(f"""s_lshl_b32 s{sT2}, s{sJJ}, 9
        s_add_u32 s{sT2}, s{sT2}, s{sFLG}
        v_lshlrev_b32 v{t0}, 3, v{vL}
        v_mov_b32 v{TT}, 0
        v_mov_b32 v{TT + 1}, 0
        buffer_store_dwordx2 {vr(TT, 2)}, v{t0}, {srd(sWS)}, s{sT2} offen sc1""")
if OPT['xw'] == 1:
    fill += L(f'v_lshlrev_b32 v{t0}, 2, v{vL}')
    for b in (1, 2, 3):
        fill += L(f"""buffer_store_dwordx4 {vr(TT, 4)}, v{VL16}, {srd(sWS)}, s{sXO[b]} offen sc1
            buffer_store_dwordx4 {vr(TT, 4)}, v{VL16}, {srd(sWS)}, s{sXO[b]} offen offset:1024 sc1
            buffer_store_dword v{vL}, v{t0}, {srd(sWS)}, s{sXO[b]} offen offset:2048 sc1""")
elif OPT['xw']:
    fill += L(f"""v_lshlrev_b32 v{t0}, 7, v{vL}
        v_min_u32 v{t0}, {59 * 128}, v{t0}
        buffer_load_dword a60, v{t0}, {srd(sWS)}, s{sXO[0]} offen {('', '', 'sc1', 'sc1 nt')[OPT['xw']]}""")
if not OPT['xel']:
    cut = len(fill) * OPT['xes'] // 100
    fill, xe = fill[:cut] + merge(fill[cut:], xe), []
OPT['dsp'] = OPT['dsps']
srounds = [(2, rg(4)), (14, rg(5)), (28, rg(6)), (42, rg(7))] if OPT['sch'] == 1 else \
    [(2, rg(5)), (14, rg(6)), (28, rg(7)), (42, rg(8))]
sbars = [(9, BAR('G1')), (25, BAR('G2', 'G3'))] if OPT['bsp'] == 1 else \
    [(9, BAR('G1')), (25, BAR('G2')), (41, BAR('G3'))] if OPT['bsp'] else [(24, BAR('G2', 'G3'))]
pin = pins(*srounds, *sbars, (63 - LA_F, stamp('s59') + BAR('G4', 'b1w', *([] if OPT['bsa'] & 1 else ['G5'])) + stamp('b2')))
OPT['dsp'] = DSP
P += weave(fine('S', S_items, 3), fill, pin, 0, 62 - LA_F)

Q = FACC[1]
V = lambda t: SRE + t if t % 2 == 0 else SIM + t - 1
AGR, AGI = VRS, t3
fill = []
coef = []
for q in range(8):
    for h in range(2):
        r = 2 * q + h
        fill += L(f"""v_mul_f32 v{TT + 2 * h}, v{SRE + r}, v{CR}
            v_mul_f32 v{TT + 2 * h + 1}, v{SRE + r}, v{NCI}
            v_fmac_f32 v{TT + 2 * h}, v{SIM + r}, v{NCI}
            v_fmac_f32 v{TT + 2 * h + 1}, v{SIM + r}, v{NCR}""")
    for h in range(2):
        r = 2 * q + h
        fill += L(f"""v_mul_f32 v{V(r)}, v{TT + 2 * h}, v{Q + r}
            v_mul_f32 v{V(r) + 1}, v{TT + 2 * h + 1}, v{Q + r}""")
    coef.append(fill)
    fill = []
step = lambda d, p, c: L(f"""v_pk_fma_f32 {vr(d, 2)}, {vr(p, 2)}, {vr(LR, 2)}, {vr(c, 2)} op_sel_hi:[1,0,1]
    v_pk_fma_f32 {vr(d, 2)}, {vr(p, 2)}, {vr(NLI, 2)}, {vr(d, 2)} op_sel:[1,0,0] op_sel_hi:[0,1,1]""")
horner = [step(AGR if r & 1 else TT + 4, V(0) if r == 1 else (TT + 4 if r & 1 else AGR), V(r)) for r in range(1, 16)]
fill = fetch(seg=t1) + fill + (L('s_mov_b32 s19, s3') if OPT['dbg'] else []) + L(f's_mov_b32 s{sKC[0]}, {M2LN2:#x}')
fill.append(I(f'ds_write_b64 v{t1}, {vr(AGR, 2)} offset:{7 * 256}', tok='segw'))
frounds = [(1, rg(8)), (12, rg(9))] if OPT['sch'] == 1 else [(1, rg(9)), (12, rg(10))] if OPT['sch'] == 2 else \
    [(0, rg(9)), (OPT['g10'], rg(10)), (2 * OPT['g10'], rg(11))]
staged_names = list(STAGE)
abars = [(7 - LA_F, BAR('G5'))] if OPT['bsa'] & 1 else []
abars += [(15 - LA_F, BAR('G6')), (23 - LA_F, BAR('G7'))] if OPT['bsa'] & 2 else [(15 - LA_F, BAR('G6', 'G7'))]
pin = pins(*frounds, *abars, (31, BAR('segw')),
           *[(22, stage_load(n)) for n in staged_names[:1]])
if 0 <= OPT['pfat'] < 32:
    pin.setdefault(OPT['pfat'], []).extend(pf)
NB = OPT['nb0']
per = 8 // NB
plan = [(1, [], [])]
for n in range(NB):
    lo, hi = max(2 * per * n - 1, 0), 2 * per * (n + 1) - 1
    plan.append((1 + (n + 1) * 28 // NB, sum(coef[per * n:per * (n + 1)], []), sum(horner[lo:hi], [])))
P += staged(fine('F0', F_items[0], 3), pin, plan + [(30, fill, []), (31, [], [])])
P += stamp('F0')

E = ASc[0]
R0, R1, T0_, T1_ = TT + 8, TT + 12, ASc[0], ASc[2]
h0, h1 = mish_stages(0, 0), mish_stages(0, 1)
rd = lambda dst, k: I(f'ds_read2_b64 {vr(dst, 4)}, v{t1} offset0:{32 * k} offset1:{32 * k + 32}')
publish = cmul_add(E, E + 2, L16R, L16I, PR, PI, AGR, AGI) + fetch(pub=t1) + L(f"""v_mov_b32 v{E + 1}, s{sTAG}
    v_mov_b32 v{E + 3}, s{sTAG}
    buffer_store_dwordx4 {vr(E, 4)}, v{t1}, {srd(sWS)}, 0 offen sc1""")
frounds = [(0, rg(10)), (8, rg(11))] if OPT['sch'] == 1 else [(0, rg(11))] if OPT['sch'] == 2 else []
pin = pins(*frounds, (OPT['wa0'], rw('WA0')), (31 - LA_F, BAR('G8', 'G9', *([] if OPT['bsb'] else ['G10', 'G11']))),
           *zip((8, 24), map(stage_load, staged_names[1:3])))
if OPT['pfat'] >= 32:
    pin.setdefault(OPT['pfat'] - 32, []).extend(fetch(pfa=FAd) + L(pf[0].text.replace(f'v{PI}', f'v{FAd}')))
GA = [int(x) for x in str(OPT['stg1']).split('.')]
P += staged(fine('F0', F_items[1], 3), pin, [
    (GA[0], [rd(R0, 0), rd(R1, 2)] + h0['rd'], h0['A']),
    (GA[1], h0['ex'], cmul_pk(PR, L16R, R0, R0 + 2) + cmul_pk(T0_, L16R, PR, R1) + cmul_pk(PR, L16R, T0_, R1 + 2) + h0['B']),
    (GA[2], [rd(R0, 4), I(f'ds_read_b64 {vr(R1, 2)}, v{t1} offset:{6 * 256}')] + h0['rc'],
     cmul_pk(T0_, L16R, PR, R0) + cmul_pk(T1_, L16R, T0_, R0 + 2) + cmul_pk(PR, L16R, T1_, R1) + h0['C']),
    (GA[3], h1['rd'] + publish + h0['fin'], h1['A']),
    (GA[4], h1['ex'], h1['B']),
    (GA[5], h1['rc'], h1['C']),
    (31, h1['fin'], [])])
P += stamp('F1')

LBA = [CR, NCI]
LBE = [NCR, L16R]
LBD = [ASc[0], QG[0]]
FLV = L16I
lb_loads = '\n'.join(f'buffer_load_dwordx4 {vr(LBD[e], 4)}, v{LBA[e]}, {srd(sWS)}, 0 offen sc1' for e in range(2))
lb_setup = fetch(lba0=LBA[0], lba1=LBA[1], lbe0=LBE[0], lbe1=LBE[1])


def flag_store(stage, toks):
    out = [Wait(*toks), I(f'buffer_store_dword v{FLV}, v{FLA}, {srd(sWS)}, 0 offen offset:{128 * stage} sc1')]
    if OPT['ppf']:
        so = (sFST[0], sSST, sFST[2])[stage]
        vpf = L128R if stage else t3
        out = [I(f'v_lshlrev_b32 v{vpf}, {6 if stage < 2 else "s%d" % sSEL[1]}, v{vL}')] + out
        out.append(I(f'buffer_load_dword a{60 + (stage & 1)}, v{vpf}, {srd(sWS)}, s{so} offen sc1'))
    return out


def flag_load(stage):
    return f'buffer_load_dword v{t3}, v{FLP}, {srd(sWS)}, 0 offen offset:{128 * stage} sc1'


flag_check = f'v_cmp_ne_u32 vcc, s{sTAG}, v{t3}'
lb_check = f"""v_bitop3_b32 v{t0}, v{LBD[0] + 1}, v{LBD[0] + 3}, v{LBE[0]} bitop3:0x7e
    v_bitop3_b32 v{t1}, v{LBD[1] + 1}, v{LBD[1] + 3}, v{LBE[1]} bitop3:0x7e
    v_or_b32 v{t0}, v{t0}, v{t1}
    v_cmp_ne_u32 vcc, 0, v{t0}"""
lb_part = stamp('lb0') + poll('lb', lb_loads, lb_check) + stamp('lb1')
lb_part += cmul_add(LBD[0] + 1, LBD[0] + 3, L128R, L128I, LBD[0], LBD[0] + 2, LBD[1], LBD[1] + 2)
lb_part += cmul_add(LBD[1], LBD[1] + 1, WR, WI, LBD[0] + 1, LBD[0] + 3)
lb_part += fetch(lbw=t1)
lb_part.append(I(f'ds_write_b64 v{t1}, {vr(LBD[1], 2)}', tok='lbw'))
HW, HR, HB = ASc[0], ASc[1], FACC[1]
HW2, HR2 = WR, WI
tail_addr = fetch(lbr=ASc[3], fla=FLA, flp=FLP) + L(f'v_mov_b32 v{FLV}, s{sTAG}')
lb_reads = [I(f'ds_read2_b64 {vr(HB + 4 * q, 4)}, v{ASc[3]} offset0:{64 * q} offset1:{64 * q + 32}') for q in range(4)]
scan = [I(f'v_pk_add_f32 {vr(HB + a, 2)}, {vr(HB + a, 2)}, {vr(HB + b_, 2)}')
        for a, b_ in ((0, 2), (4, 6), (8, 10), (12, 14), (0, 4), (8, 12), (0, 8))]
scan += cmul_add(L128R, L128I, LSR, LSI, HB, HB + 1, PR, PI)
pack = lambda q: L(f"""v_cvt_pk_bf16_f32 v{SRE + q}, v{V(2 * q)}, v{V(2 * q + 1)}
    v_cvt_pk_bf16_f32 v{SIM + q}, v{V(2 * q) + 1}, v{V(2 * q + 1) + 1}""")
for r in range(16):
    prev = vr(L128R if r == 0 else V(r - 1), 2)
    scan += L(f"""v_pk_fma_f32 {vr(V(r), 2)}, {prev}, {vr(LR, 2)}, {vr(V(r), 2)} op_sel_hi:[1,0,1]
        v_pk_fma_f32 {vr(V(r), 2)}, {prev}, {vr(NLI, 2)}, {vr(V(r), 2)} op_sel:[1,0,0] op_sel_hi:[0,1,1]""")
    if r >= 2 and r % 2 == 0 and OPT['pk_in']:
        scan += pack(r // 2 - 1)
HRS = AS
transp = fetch(hw=HW, hw2=HW2, hr=HRS[0]) + [I(f'v_xor_b32 v{HRS[n]}, {16 * n}, v{HRS[0]}') for n in (1, 2, 3)] + sum((pack(q) for q in range(7 if OPT['pk_in'] else 0, 8)), [])
for ri in range(2):
    transp += [I(f'ds_write_b128 v{(HW, HW2)[h]}, {vr((SRE, SIM)[ri] + 4 * h, 4)}') for h in range(2)]
    for fr in range(2):
        for u in range(2):
            transp.append(I(f'ds_read_b64_tr_b16 {ar(aOS + 8 * ri + 4 * fr + 2 * u, 2)}, v{HRS[2 * u + fr]} offset:{256 * u}'))
stH = [I(f'buffer_store_dwordx4 {ar(aOS + 4 * q, 4)}, v{VL16}, {srd(sWS)}, s{sSST} offen offset:{1024 * q} sc1',
         tok='stH' if q == 3 else None) for q in range(4)]
h0, h1 = mish_stages(1, 0), mish_stages(1, 1)
g0, g1 = mish_stages(2, 0), mish_stages(2, 1)
pin = pins((0, rw('CR0')), (8, rw('CI0')), (18, rw('WA1')), *([(15 - LA_F, BAR('G10', 'G11'))] if OPT['bsb'] else []), (29, BAR('lbw') + lb_reads + g0['rd'] + g1['rd']), (OPT['lbl'], L(lb_loads)),
           *[(25, stage_load(n)) for n in staged_names[3:4]])
GB = [int(x) for x in str(OPT['stg2']).split('.')]
P += staged(fine('F2', F_items[2], 2), pin, [
    (GB[0], h0['rd'] + h1['rd'] + lb_setup, h0['A']),
    (GB[1], h0['ex'], h0['B'] + h1['A']),
    (GB[2], h0['rc'] + h1['ex'], h0['C'] + h1['B']),
    (GB[3], h0['fin'] + h1['rc'], h1['C']),
    (28, h1['fin'] + lb_part + tail_addr, []),
    (31, [], [])])
P += stamp('F2')
burst = scan + g0['A']
if OPT['fas'] < 0:
    burst = burst[:OPT['fas']] + flag_store(0, ['stF0', 'stF1']) + burst[OPT['fas']:]
if OPT['fine'] == 'T':
    for n in range(len(burst) - 12, 0, -12):
        burst = burst[:n] + stamp(f'g{n}') + burst[n:]
P += burst
P += stamp('scan')


FP0, CP0, FPc = [NLI, LI, LR, CR], [NCI, NCR], QG
PA = OPT['pa']
p3_setup = fetch(fp0=FP0[0], fp1=CP0[0], f3o=ASc[2]) + [I(f'v_xor_b32 v{FP0[n]}, {32 * n}, v{FP0[0]}') for n in (1, 2, 3)]
p3_setup.append(I(f'v_xor_b32 v{CP0[1]}, 64, v{CP0[0]}'))
hs = OPT['hs']
lead = [i_ for i_ in transp if i_.kind != 'ds']
tds = transp[len(lead):]
P += lead
tpins = [(0, tds[0:1]), (1, tds[1:2]), (2, tds[2:4]), (3, tds[4:6]), (4, tds[6:7]), (5, tds[7:8] + stH[0:1]),
         (6, tds[8:10]), (7, tds[10:12] + stH[1:2]), (7 + hs, stH[2:3]), (7 + 2 * hs, stH[3:4])]

steps = ([('WA0', x, 'own') for x in range(4)]
         + [(n, x, 'own') for n in ('CR0', 'CI0') for x in range(2)]
         + [(f'WA{e}', x, 'A') for e in (1, 2, 3) for x in range(4)]
         + [(n, x, 'H') for n in ('CR0', 'CI0') for x in (2, 3)]
         + [(n, x, 'H') for n in ('CR1', 'CI1') for x in range(4)]
         + [('WB0', x, 'own') for x in range(4)]
         + [(f'WB{e}', x, 'B') for e in (1, 2) for x in range(4)])
deferred = [k for k, st in enumerate(steps) if st[2] != 'own']
A_REGS = ([192 + 4 * n for n in range(16)] + [SRE + 4 * n for n in range(8)]
          + [FACC[0] + 4 * n for n in range(4)] + [TT + 4 * n for n in range(4)])
ACC = [128, 144, 160, 176]
cur_addr = {}


def a_frag(k):
    name, x, src = steps[k]
    if src != 'own':
        return vr(A_REGS[deferred.index(k)], 4)
    if name == 'WA0':
        return ar(aOF + 4 * x, 4)
    if name == 'WB0':
        return ar(aOF + 16 + 4 * x, 4) if x < 2 else vr(FACC[1] + 4 * (x - 2), 4)
    return ar(aOS + 8 * (name[1] == 'I') + 4 * x, 4)


def a_load(k):
    name, x, src = steps[k]
    e = int(name[2])
    if name[0] == 'C':
        so, off = sAO['H'][2 * e + (x >> 1)], 2048 * (name[1] == 'I') + 1024 * (x & 1)
    else:
        so, off = sAO[name[1]][e], 1024 * x
    return [I(f'buffer_load_dwordx4 {a_frag(k)}, v{VL16}, {srd(sWS)}, s{so} offen offset:{off} sc1')]


pin = pins((PA, rw2('WA2')), (PA + 8, BAR()), (PA + 9, rw2('WA3')), (PA + 17, BAR()), (PA + 18, rw2('CR1')),
           (OPT['fal'], L(flag_load(0))), (30, BAR('WA0', 'CR0', 'CI0', 'WA1')), *tpins)
if OPT['fhs'] >= 0:
    pin.setdefault(OPT['fhs'], []).extend(flag_store(1, ['stH']))
if OPT['fas'] >= 0:
    pin.setdefault(OPT['fas'], []).extend(flag_store(0, ['stF0', 'stF1']))
m3 = mish_pk(3, ASc[2])
GC = [int(x) for x in str(OPT['stg3']).split('.')]
P += staged(fine('F3', F_items[3], 2), pin, [
    (GC[0], g0['ex'], g0['B'] + g1['A']),
    (GC[1], g0['rc'] + g1['ex'], g0['C'] + g1['B']),
    (GC[2], g0['fin'] + g1['rc'], g1['C']),
    (29, g1['fin'][:4] + m3[:4] + g1['fin'][4:] + p3_setup, []),
    (31, [], [])])
P += stamp('F3')

m3 = m3[4:]
st0 = 40
early = sum((a_load(k) for k in range(8, 8 + OPT['nea'])), [])
if not OPT['ovl']:
    fac = st0 - OPT['fac']
    TAIL0 = len(P)
    P += m3[:fac] + (flag_store(1, ['stH']) if OPT['fhs'] == -1 and not OPT['fhp'] else [])
    P += stamp('fa0') + poll('fa', flag_load(0), flag_check) + stamp('fa1')
    tl = merge(m3[fac:st0], early) + (flag_store(1, ['stH']) if OPT['fhp'] else []) + m3[st0:]
    TAIL1 = len(P) + len(tl) - len(m3) + st0
    if OPT['fine'] == 'T':
        for n in range(len(tl) - 12, 0, -12):
            tl = tl[:n] + stamp(f'gt{n}') + tl[n:]
    P += tl
    P += stamp('tail')

XE, ME = 192, LSR
ep_setup = L(f"""v_lshrrev_b32 v{t1}, 5, v{vL}
    s_lshl_b32 s{sT2}, s{sW}, 8
    s_add_u32 s{sT2}, s{sT2}, {T_STAT}
    v_lshl_add_u32 v{VLN2}, v{t1}, 4, s{sT2}
    v_lshlrev_b32 v{FA0}, 13, v{t1}
    v_and_b32 v{t0}, 31, v{vL}
    v_lshl_add_u32 v{FA0}, v{t0}, 2, v{FA0}""")
VL4 = ASc[0]
ep_setup = L(f'v_lshlrev_b32 v{VL4}, 2, v{vL}') + ep_setup
base_calc = [I(f'v_accvgpr_read_b32 v{RL2}, a{aXE + 16}')]
for qt in range(4):
    base_calc += [I(f'ds_read_b128 {vr(ME, 4)}, v{VLN2} offset:{4 * ROW(4 * qt)}', hoist=True),
                  I(f'ds_read_b128 {vr(ME + 4, 4)}, v{VLN2} offset:{128 + 4 * ROW(4 * qt)}', hoist=True)]
    rs = range(4)
    base_calc += [I(f'v_accvgpr_read_b32 v{XE + 4 * qt + r}, a{aXE + 4 * qt + r}') for r in rs]
    base_calc += [I(f'v_sub_f32 v{ME + r}, v{XE + 4 * qt + r}, v{ME + r}') for r in rs]
    base_calc += [I(f'v_mul_f32 v{ME + r}, v{ME + r}, v{ME + 4 + r}') for r in rs]
    base_calc += [I(f'v_fmac_f32 v{XE + 4 * qt + r}, v{ME + r}, v{RL2}') for r in rs]

def checksum(dst, src, last):
    return [f'v_bitop3_b32 v{dst}, v{src}, v{src + 1}, {last} bitop3:0x96'] + \
           [f'v_bitop3_b32 v{dst}, v{src + e}, v{src + e + 1}, v{dst} bitop3:0x96' for e in (2, 4, 6)]


def send(b):
    A = ACC[b]
    out = []
    for q in range(2):
        out += [I(f'v_cvt_pk_bf16_f32 v{A + e}, v{A + 2 * e}, v{A + 2 * e + 1}') for e in range(4 * q, 4 * q + 4)]
        out.append(I(f'buffer_store_dwordx4 {vr(A + 4 * q, 4)}, v{VL16}, {srd(sWS)}, s{sXO[b]} offen '
                     f'offset:{1024 * q} sc1'))
    out += [I(c) for c in checksum(A + 8, A, f's{sTAG}')]
    out.append(I(f'buffer_store_dword v{A + 8}, v{VL4}, {srd(sWS)}, s{sXO[b]} offen offset:2048 sc1'))
    return out


def w_read1(k, b, dst):
    name, x, src = steps[k]
    slot = W_SLOT[name]
    out = []

    def address(cur, base):
        if slot < 4:
            return base, slot * SLOT
        if not 0 <= slot - cur_addr.get(cur, -9) < 4:
            cur_addr[cur] = 4 if slot == 4 else 5
            out.append(I(f'v_add_u32 v{cur}, {cur_addr[cur] * SLOT}, v{base}'))
        return cur, (slot - cur_addr[cur]) * SLOT

    if name[0] == 'C':
        a, off = address(AS[x >> 1], CP0[x >> 1])
        return out + [I(f'ds_read_b128 {ar(dst, 4)}, v{a} offset:{off + 4096 * b + 2048 * (x & 1)}', lds_r=slot)]
    var = 2 * (b & 1) + (x & 1)
    a, off = address(FPc[var], FP0[var])
    return out + [I(f'ds_read_b64_tr_b16 {ar(dst + 2 * u, 2)}, v{a} '
                    f'offset:{off + 8192 * (x >> 1) + 4096 * (b >> 1) + 1024 * u}', lds_r=slot) for u in range(2)]


RX = {1: ACC[1], 2: ACC[2], 3: ACC[3]}


def recv(b):
    so = sXO[0] if b == 1 else sSEL[b]
    rl = [f'buffer_load_dwordx4 {vr(RX[b] + 4 * q, 4)}, v{VL16}, {srd(sWS)}, s{so} offen offset:{1024 * q} sc1' for q in range(2)]
    rl.append(f'buffer_load_dword v{RX[b] + 8}, v{VL4}, {srd(sWS)}, s{so} offen offset:2048 sc1')
    return '\n'.join(rl)


pre = L(f"""s_lshl_b32 s{sXB}, s{sXB}, 1
    s_mov_b32 s{sKC[0]}, 0x00003f80
    s_mov_b32 s{sKC[1]}, 0x3f800000""")
E3 = OPT['e3']
D0 = OPT['d0']
seq = [(k, b) for k in range(D0) for b in (1, 2, 3, 0)] + [(k, b) for k in range(D0, E3) for b in (1, 2, 3)]
seq += [(k, b) for k in range(E3, 36) for b in (1, 2)]
seq += [(k, b) for b in (1, 2) for k in range(36, 44)]
own8 = [(k, 0) for k in range(8, 12)]
seq += (own8 if OPT['o8'] else []) + [(k, 3) for k in range(E3, 44)] + ([] if OPT['o8'] else own8)
seq += [(k, 0) for k in list(range(D0, 8)) + list(range(12, 44))]
at = {kb: n for n, kb in enumerate(seq)}
done_at = {b: at[43, b] for b in (1, 2, 3)}
KEEP = {(k, 0): aWO + 4 * (k - 8) for k in range(8, 12)}
KEEP.update({(k, 0): aWO + 16 + 4 * k for k in range(D0, 4)})
reads = sorted((kb for kb in seq), key=lambda kb: at[kb[0], 3] + 0.5 if kb in KEEP else at[kb])
RING = 12
where, nring = {}, 0
for kb in reads:
    if kb in KEEP:
        where[kb] = KEEP[kb]
    else:
        where[kb] = aP + 4 * (nring % RING)
        nring += 1
LA_J = OPT['laj']
items = []
rd = 0
seen = set()
for n, (k, b) in enumerate(seq):
    pre_rd = []
    while rd < len(reads) and (at[reads[rd][0], 3] if reads[rd] in KEEP else at[reads[rd]]) <= n + LA_J:
        pre_rd += w_read1(*reads[rd], where[reads[rd]])
        rd += 1
    mm = []
    for a in range(2):
        d = vr(ACC[b] + 8 * a + 4 * (k & 1), 4)
        mm.append(I(f'v_mfma_f32_16x16x32_bf16 {d}, {a_frag((k & ~1) + a)}, {ar(where[k, b], 4)}, '
                    f'{d if (b, k & 1) in seen else 0}'))
    seen.add((b, k & 1))
    if n == 0:
        if OPT['ovl']:
            k_ = max(n_ for n_, i_ in enumerate(P) if i_.kind == 'barrier') + 1
            P = P[:k_] + pre_rd + P[k_:]
        elif OPT['wmix']:
            end = len(P) - (PROF in (1, 2)) - 10
            P = P[:TAIL1] + merge(P[TAIL1:end], pre_rd) + P[end:]
        else:
            P = P[:TAIL0] + pre_rd + P[TAIL0:]
        pre_rd = []
    nds = [n_ for n_, i_ in enumerate(pre_rd) if i_.kind == 'ds']
    half = nds[len(nds) // 2] if OPT['bal'] and len(nds) > 1 else len(pre_rd)
    items.append([mm[0]] + pre_rd[:half] + [mm[1]] + pre_rd[half:])
pin = {n: [] for n in range(len(items))}
B1 = at[4, 1] + 2
pin[B1] += BAR('WA2')
pin[at[16, 1] - LA_J - 1] += [Wait('WA3', 'CR1', 'CI1'), I('s_barrier')]
pin[at[32, 1] - LA_J - 1] += [Wait('WB0', 'WB1', 'WB2'), I('s_barrier')]
if OPT['fhs'] < -1:
    pin[-OPT['fhs']] += flag_store(1, ['stH'])
if OPT['fhl'] >= 0:
    pin[OPT['fhl']] += L(flag_load(1))
pin[OPT['fhc']] += stamp('fh0') + poll('fh', flag_load(1), flag_check) + stamp('fh1')
pin[OPT['fls']] += flag_store(2, ['stF3', 'stF2'])
pin[OPT['fll']] += L(flag_load(2))
pin[OPT['flc']] += stamp('fl0') + poll('fl', flag_load(2), flag_check) + stamp('fl1')
pin[at[36, 1] - 1] += stamp('k36')
for name, gap in (('CI1', 1), ('WB0', 19), ('WB1', 24), ('WB2', at[16, 1] - LA_J)):
    if name in STAGE:
        for n, i_ in enumerate(stage_write(name)):
            pin[gap + max(n - 2, 0)].append(i_)
_rw = rw
rw = lambda name: [] if name in STAGE else _rw(name)
queue = []
if OPT['ovl']:
    pin[OPT['ofa']] += stamp('fa0') + poll('fa', flag_load(0), flag_check) + stamp('fa1')
    queue += [(OPT['ofa'], a_load(k)) for k in range(8, 8 + OPT['nea'])]
queue += [(OPT['q0'], a_load(k)) for k in range(8 + OPT['nea'], 16)] + [(0, rw('CI1'))]
queue += [(OPT['q0'], a_load(k)) for k in range(max(16, 8 + OPT['nea']), 20)]
if OPT['qord'] == 0:
    queue += [(B1 + 1, rw('WB0'))] + [(OPT['fhc'], a_load(k)) for k in range(20, 32)] + [(B1 + 1, rw('WB1'))]
elif OPT['qord'] == 1:
    queue += [(B1 + 1, rw('WB0')), (B1 + 1, rw('WB1'))] + [(OPT['fhc'], a_load(k)) for k in range(20, 32)]
else:
    queue += [(OPT['fhc'], a_load(k)) for k in range(20, 24)] + [(B1 + 1, rw('WB0')), (B1 + 1, rw('WB1'))]
    queue += [(0, a_load(k)) for k in range(24, 32)]
queue += [(at[16, 1] - LA_J, rw('WB2'))]
queue += [(OPT['flc'], a_load(k)) for k in range(36, 44)]
n = 0.0
for first_gap, ins in queue:
    n = max(n, first_gap)
    pend = []
    for i_ in ins:
        pend.append(i_)
        if i_.kind == 'vm':
            pin[int(n)] += pend
            pend = []
            n += OPT['pace'] / 10
for b in (1, 2, 3):
    sd = send(b)
    for q in range(4):
        pin[done_at[b] + 3 + q] += sd[q * len(sd) // 4:(q + 1) * len(sd) // 4]
    pin[done_at[min(b + 1, 3) if b < 3 else 3] + OPT[f'r{b}'] if b != 2 else done_at[2] + OPT['r2']] += L(recv(b))
pin[done_at[2] + 6] += stamp('s12')
pin[done_at[3] + 6] += stamp('sent')
items = fine('P3', items[:OPT['fn'] * 27], OPT['fn']) + items[OPT['fn'] * 27:]
LEV[0] = OPT['lev3']
sub = lambda lo, hi: {n - lo: pin[n] for n in range(lo, hi)}
unit_weave = weave


def weave(its, fill_, pin_, lo=0, hi=None):
    if not OPT['fineg']:
        return unit_weave(its, fill_, pin_, lo, hi)
    flat, pin2 = [], {}
    for n, it in enumerate(its):
        cut_ = max(k_ for k_, i_ in enumerate(it) if i_.kind == 'mfma')
        flat += [it[:cut_], it[cut_:]]
        ordered = any(i_.kind in ('barrier', 'pseudo', 'label') for i_ in pin_.get(n, []))
        first = len(flat[-2]) < len(flat[-1]) and not ordered
        pin2[2 * n + (0 if first else 1)] = pin_.get(n, [])
    return unit_weave(flat, fill_, pin2, 2 * lo, None if hi is None else 2 * hi + 1)


c1, c2 = at[32, 1], at[11, 0] + 1
if OPT['ovl']:
    GD = [int(x) for x in str(OPT['stg4']).split('.')]
    both = lambda lo, hi: m3[lo:hi] + m3[40 + lo:40 + hi]
    P += staged(items[:c1], pin, [(GD[0], [], both(0, 4)), (GD[1], both(4, 12), both(12, 20)),
                                  (GD[2], both(20, 28), both(28, 36)),
                                  (GD[3], both(36, 40) + m3[80:] + stamp('tail'), []), (c1 - 1, [], [])])
else:
    P += weave(items[:c1], [], sub(0, c1))
P += weave(items[c1:c2], ep_setup + pre, sub(c1, c2), 0, 6)
SWAPS = lambda R: [I(f'v_permlane16_swap_b32 v{R + 8 * a + r}, v{R + 8 * a + 4 + r}') for a in range(2) for r in range(4)]
base_calc += SWAPS(XE)


def rx_check(b):
    chk = checksum(RX[b] + 9, RX[b], f'v{RX[b] + 8}') + [f'v_cmp_ne_u32 vcc, s{sTAG}, v{RX[b] + 9}']
    return poll(f'rx{b}', '\n'.join(recv(x) for x in range(b, 4 if OPT['rxall'] else b + 1)), '\n'.join(chk))


EARLY = range(1, 1 + OPT['rxe'])
for b in EARLY:
    base_calc += rx_check(b)
    for q in range(8):
        u = RX[b] + 10 + 2 * (q & 1)
        base_calc += L(f"""v_lshlrev_b32 v{u}, 16, v{RX[b] + q}
            v_and_b32 v{u + 1}, 0xffff0000, v{RX[b] + q}
            v_add_f32 v{XE + 2 * q}, v{XE + 2 * q}, v{u}
            v_add_f32 v{XE + 2 * q + 1}, v{XE + 2 * q + 1}, v{u + 1}""")
P += weave(items[c2:], base_calc, sub(c2, len(items)), 3, len(items) - c2 - (3 if OPT['rxe'] else 6))
P += stamp('own')
A0 = ACC[0]
for q in range(8):
    P.append(I(f'v_pk_add_f32 {vr(A0 + 2 * q, 2)}, {vr(A0 + 2 * q, 2)}, {vr(XE + 2 * q, 2)}'))
LATE = [b for b in (1, 2, 3) if b not in EARLY]
for b in LATE:
    P += rx_check(b)
    if OPT['seqadd'] and b < 3:
        P += [I(f'v_dot2c_f32_bf16 v{A0 + 2 * q + h}, s{sKC[h]}, v{RX[b] + q}') for q in range(8) for h in range(2)]
if OPT['seqadd']:
    LATE = [3]
P += stamp('rx')
sts = []
for a in range(2):
    for q in range(4 * a, 4 * a + 4):
        for b in LATE:
            P += [I(f'v_dot2c_f32_bf16 v{A0 + 2 * q + h}, s{sKC[h]}, v{RX[b] + q}') for h in range(2)]
        P += sts[3 * (q & 3):3 * (q & 3) + 3]
    P += SWAPS(A0)[4 * a:4 * a + 4]
    sts = []
    for q in range(4 * a, 4 * a + 4):
        sts.append(I(f's_add_u32 s{sBB}, s{sXB}, {2048 * ROW(2 * q)}'))
        sts += [I(f'buffer_store_dword v{A0 + 2 * q + h}, v{FA0}, {srd(sOUT)}, s{sBB} offen offset:{2048 * h} '
                  f'{OPT["out_flags"].replace("+", " ")}') for h in range(2)]
P += L(f"""s_lshl_b32 s{sT2}, s{sJ}, 2
    s_add_u32 s{sT2}, s{sT2}, s{sW}
    s_xor_b32 s{sT1}, s{sI}, 15
    s_or_b32 s{sT2}, s{sT2}, s{sT1}
    s_cmp_eq_u32 s{sT2}, 0
    s_cselect_b32 s{sT2}, {WS_EP}, {OOB:#x}
    v_mov_b32 v{t0}, s{sE2}
    v_mov_b32 v{t1}, s{sT2}""") + sts + L(f'buffer_store_dword v{t0}, v{t1}, {srd(sWS)}, 0 offen')
if OPT['diag']:
    P += stamp('end') + L("""s_memrealtime s[6:7]
        s_waitcnt lgkmcnt(0)
        s_sub_u32 s4, s4, s23
        s_lshl_b32 s4, s4, 2
        s_min_u32 s4, s4, 20000
        L_diag:
        s_memrealtime s[0:1]
        s_waitcnt lgkmcnt(0)
        s_sub_u32 s0, s0, s6
        s_cmp_lt_u32 s0, s4
        s_cbranch_scc1 L_diag""")
if OPT['dbg']:
    P += L(f"""s_memrealtime s[6:7]
        s_mov_b32 s{sTMP}, s4
        s_mov_b32 s{sTMP + 1}, s5
        s_mov_b32 s{sTMP + 2}, 256
        v_lshlrev_b32 v{t0}, 2, v{vL}
        v_lshrrev_b32 v{t1}, v{t0}, s23
        v_and_b32 v{t1}, 15, v{t1}
        v_min_u32 v{t1}, 1, v{t1}
        v_mov_b32 v{t2}, {OOB:#x}
        v_cmp_gt_u32 vcc, 7, v{vL}
        s_waitcnt lgkmcnt(0)
        v_cndmask_b32 v{t0}, v{t2}, v{t0}, vcc
        buffer_atomic_add v{t1}, v{t0}, {srd(sTMP)}, 0 offen
        s_sub_u32 s6, s6, s19
        v_mov_b32 v{t1}, s6
        v_cmp_eq_u32 vcc, 8, v{vL}
        v_lshlrev_b32 v{t0}, 2, v{vL}
        s_nop 0
        v_cndmask_b32 v{t0}, v{t2}, v{t0}, vcc
        buffer_atomic_umax v{t1}, v{t0}, {srd(sTMP)}, 0 offen""")
if PROF:
    P += stamp('end')
    P += L(f"""s_waitcnt vmcnt(0)
        s_memrealtime s[0:1]
        s_lshl_b32 s{sT2}, s2, 2
        s_add_u32 s{sT2}, s{sT2}, s{sW}
        s_lshl_b32 s{sT2}, s{sT2}, 7
        s_add_u32 s{sT2}, s{sT2}, {WS_PROF}
        v_mov_b32 v{t1}, s{sT2}
        s_waitcnt lgkmcnt(0)
        v_mov_b32 v{t0}, s0
        buffer_store_dword v{t0}, v{t1}, {srd(sWS)}, 0 offen offset:124
        v_mov_b32 v{t2}, s23
        buffer_store_dword v{t2}, v{t1}, {srd(sWS)}, 0 offen offset:112
        buffer_store_dword a254, v{t1}, {srd(sWS)}, 0 offen offset:116
        buffer_store_dword a255, v{t1}, {srd(sWS)}, 0 offen offset:120""")
    P += stamp('DUMP')
P += [I('L_end:'), I('s_endpgm')]

P = resolve_stamps(P)
if OPT['split']:
    P = split_ds_pairs(P)
if OPT['hoist']:
    P = hoist_reads(P, OPT['hoist'])
body = pad_hazards(insert_waits(P, OPT['age']))
check_polls(body)
tail = []
for name, loads, check in retry_blocks:
    blk = [I(f'L_retry_{name}:'), I(f's_mov_b32 s3, {OPT["spin"]}'), I(f'L_spin_{name}:')]
    if PROF or OPT['dbg']:
        blk.append(I(f's_add_u32 s23, s23, {1 << (4 * retry_blocks.index((name, loads, check)))}'))
    blk += L(loads) + [I('s_waitcnt vmcnt(0)')] + L(check)
    blk += L(f'''s_cbranch_vccz L_back_{name}
        s_sub_u32 s3, s3, 1
        s_cmp_lg_u32 s3, 0
        s_cbranch_scc1 L_spin_{name}
        s_branch L_back_{name}''')
    tail += pad_hazards(blk)

hdr = open(os.path.join(os.path.dirname(os.path.abspath(__file__)), 'header.txt')).read()
text = hdr + f'''; @launch grid=(256,1,1) block=(256,1,1) lds=163840
.amdgcn_target "amdgcn-amd-amdhsa--gfx950"
.text
.globl {KN}
.p2align 8
.type {KN},@function
{KN}:
{render(body)}
{render(tail)}
L_code_end:
    s_endpgm
.section .rodata,"a"
.p2align 6
.amdhsa_kernel {KN}
  .amdhsa_next_free_vgpr 512
  .amdhsa_next_free_sgpr 102
  .amdhsa_accum_offset 256
  .amdhsa_group_segment_fixed_size 0
  .amdhsa_kernarg_size 128
  .amdhsa_user_sgpr_count 2
  .amdhsa_user_sgpr_kernarg_segment_ptr 1
  .amdhsa_system_sgpr_workgroup_id_x 1
.end_amdhsa_kernel
'''
open(sys.argv[1], 'w').write(text)
if PROF:
    open(sys.argv[1][:-2] + '.stamps', 'w').write(' '.join(stamp_names))
from collections import Counter
cnt = Counter(i.kind for i in body)
print(dict(cnt), 'nops', sum(1 for i in body if i.mn == 's_nop'))
import subprocess
chk = subprocess.run([sys.executable, 'cdna_unwritten_srd_check.py', sys.argv[1]],
                     capture_output=True, text=True)
if chk.returncode != 0:
    os.remove(sys.argv[1])
    sys.exit('address check failed: ' + chk.stdout[-600:])
```

```python
import sys, os
sys.path.insert(0, os.path.dirname(os.path.abspath(__file__)))
from asmlib import I, Wait, insert_waits, pad_hazards, render, weave, split_ds_pairs, hoist_reads, merge, level, ds_first, check_polls

KN = 'parallel_sum__ssm_conv_s5__dense_activation_mish__prompt_kernel'
OPT = dict(prof=0, spin=20000, out_flags='nt', map='8x4', pf=2, age=16, laf=5, r1=30, r2=36, r3=29, e3=12, fls=28, fll=50, flc=68, ka2=1, nstep=0, split=0, diag='', dsp=2, xel=0, tlb=0, pk_in=1, lateln=100, d0=4, o8=1, bal=0, fineg=1, xes=0, xfirst=1, parat=4, nb0=2, stg3='8.16.23', stg1='2.7.12.17.22.27', stg2='2.6.14.21', fhp=0, wmix=1, ntx=0, ntg=0, ntw=0, lbt=0, rxe=0, dspc=3, dsps=3, sch=3, g3=24, fn=2, stg=0, q0=2, pfat=24, seqadd=1, lean=1, lb2s=1, xlds=0, cpf=1, rxall=1, dbg=0, cfs=1, bsp=2, bsa=2, bsb=0, ovl=0, ofa=0, stg4='1.9.17.21', g10=8, wa0=17, hs=2, rotj=0, rotm=0, laj=7, pace=16, lev=0, lev3=0, pa=2, fw=1, xw=0, vmc=2, fine='', fas=-10, fal=12, fac=16, nea=8, fhs=-1, fhl=12, fhc=32, qord=1, lbl=13, lbc=24, ppf=0, hoist=32)
for a in sys.argv[2:]:
    k, v = a.split('=')
    OPT[k] = int(v) if v.lstrip('-').isdigit() else v
PROF = OPT['prof']

WS_EP, WS_AG, WS_A = 0, 0x10000, 0x40000
WS_XC = WS_A + 64 * 176 * 1024
XC_BLK = 2560
WS_FL = WS_XC + 1024 * 3 * XC_BLK
WS_SIZE = WS_FL + 1024 * 512
WS_PROF = 0x1C00000
OOB = 0x7ff00000
SLOT = 16384
TB = 9 * SLOT
T_STAT, T_B1, T_SEG, T_LB, T_H = TB, TB + 1024, TB + 2048, TB + 6144, TB + 8192
LOG2E, LN2, M2LN2 = 0x3fb8aa3b, 0x3f317218, 0xbfb17218

sX, sB, sW1, sCre, sCim, sW2, sWS, sOUT, sTMP = 36, 40, 44, 48, 52, 56, 60, 64, 68
sI, sJ, sW, sROT, sTAG, sE2 = 72, 73, 74, 75, 76, 77
sKC = [78, 79, 80, 81]
sWOFF, sT0, sT1, sXB, sBB, sW1A, sW1B = 82, 83, 84, 85, 86, 87, 88
sAS = 89
sFST = [90, 91, 92, 93]
sSST, sCB, sW2B, sFSEL, sONES, sT3, sJJ, sT2 = 94, 95, 96, 97, 98, 99, 100, 101
sKQ, sPB, sXO = 22, [24, 25, 26], [27, 28, 29, 30]
sSEL = [31, 32, 33, 34]
sFLG = 35
pLRE, pLIM, pBRE, pBIM, pLDT, pDSK, pB1 = 8, 10, 12, 14, 16, 18, 20
srd = lambda b: f's[{b}:{b + 3}]'
vL, t0, t1, t2 = 0, 1, 2, 3
AS = [4, 5, 6, 7]
ASc = [8, 9, 10, 11]
XG = [12, 13, 14, 15]
PG = [16, 17, 18, 19]
QG = [20, 21, 22, 23]
FA0, FAc, RL2, VLN2, VL16, VNM, VRS, t3 = 24, 25, 26, 27, 28, 29, 30, 31
FAd = VNM
NLI, LI, LR, CR, NCI, NCR, L16R, L16I, LSR, LSI, L128R, L128I, WR, WI, PR, PI = range(32, 48)
TT = 48
FACC = [64, 80]
SRE, SIM = 96, 112
X = 128
aS, aF, aP, aOF, aOS, aWO, aXE = 0, 128, 0, 64, 88, 128, 224
STAMP_A = list(range(104, 128)) + list(range(241, 247))
vr = lambda b, n: f'v[{b}:{b + n - 1}]'
ar = lambda b, n: f'a[{b}:{b + n - 1}]'

stamp_names = []
FINE_KEEP = dict(T=['lb1', 'F2', 'scan', 'F3', 'fa0', 'fa1', 'tail', 'fh0'], S=['x7', 'c27', 'b0', 'F0'], F0=['b2', 'F0', 'F1'], F2=['F1', 'F2', 'scan'], F3=['F2', 'scan', 'F3', 'fa0', 'fa1', 'tail'],
                 P3=['tail'], L=['k36', 'sent', 'own', 'rx'])


def fine(phase, items, step):
    if OPT['fine'] == phase:
        for n in range(step - 1, len(items), step):
            items[n] = items[n] + stamp(f'g{n}')
    return items


def stamp(name):
    if PROF == 3 and name not in ('end', 'DUMP'):
        return []
    if OPT['fine'] and not name.startswith('g') and name not in FINE_KEEP[OPT['fine']] + ['end', 'DUMP']:
        return []
    if OPT['diag'] == name:
        return [I('s_memrealtime s[4:5]')]
    return [I(';stamp ' + name)] if PROF else []


def resolve_stamps(prog):
    out = []
    for ins in prog:
        if not ins.text.startswith(';stamp '):
            out.append(ins)
            continue
        name = ins.text.split()[1]
        n = len(stamp_names)
        if n:
            out.append(I(f'v_accvgpr_write_b32 a{STAMP_A[n - 1]}, s{4 + 2 * ((n - 1) & 1)}'))
        if name == 'DUMP':
            out += [I(f'buffer_store_dword a{STAMP_A[k]}, v{t1}, {srd(sWS)}, 0 offen offset:{4 * k}') for k in range(n)]
            continue
        assert n < 29
        stamp_names.append(name)
        out.append(I(f's_mem{"real" if PROF == 2 else ""}time s[{4 + 2 * (n & 1)}:{5 + 2 * (n & 1)}]'))
    return out


def L(text):
    return [I(t.strip()) for t in text.strip().split('\n') if t.strip()]


def mfma(d, a, b, c):
    return I(f'v_mfma_f32_32x32x16_bf16 {d}, {a}, {b}, {c}')


def mksrd(b, lo, size):
    return f's_mov_b32 s{b}, s{lo}\ns_mov_b32 s{b + 1}, s{lo + 1}\ns_mov_b32 s{b + 2}, {size}\ns_mov_b32 s{b + 3}, 0x00020000\n'


slot_shared = {}


def dma_round(name, slot, voffs, rsrc, soff_code, shared):
    out = [I(f's_add_u32 m0, s{sWOFF}, {slot * SLOT}')] + L(soff_code)
    for g in range(4):
        nt = int(name[1:]) < OPT['ntx'] if name[0] == 'x' else OPT['ntg'] if name[0] == 'G' else OPT['ntw']
        out.append(I(f'buffer_load_dwordx4 v{voffs[g]}, {srd(rsrc)}, s{sT0} offen offset:{1024 * g} {"nt " if nt else ""}lds',
                     tok=name if g == 3 else None,
                     lds_w=(slot, slot_shared.get(slot, False)) if g == 0 else None, note=name,
                     fills=(slot, shared) if g == 3 else None))
    slot_shared[slot] = shared
    return out


def rx(s, slot):
    return dma_round(f'x{s}', slot + 1, XG, sX,
                     f's_add_u32 s{sT0}, s{sROT}, {s}\ns_and_b32 s{sT0}, s{sT0}, 7\n'
                     f's_lshl_b32 s{sT0}, s{sT0}, 7\ns_add_u32 s{sT0}, s{sT0}, s{sXB}', False)


G_SLOT = [5, 6, 7, 8, 0, 1, 2, 3, 4, 5, 6, 7]
W_SLOT = dict(WA0=8, CR0=0, CI0=1, WA1=2, WA2=3, WA3=4, CR1=5, CI1=6, WB0=7, WB1=8, WB2=2)


def rg(g):
    if g < 4:
        return dma_round(f'G{g}', G_SLOT[g], PG, sB,
                         f's_lshl_b32 s{sT0}, s{sKC[g]}, 7\ns_add_u32 s{sT0}, s{sT0}, s{sBB}', True)
    base = sW1A if g < 8 else sW1B
    return dma_round(f'G{g}', G_SLOT[g], QG, sW1,
                     f's_mul_i32 s{sT0}, s{sKC[g & 3]}, {64 * 3584}\ns_add_u32 s{sT0}, s{sT0}, s{base}', True)


def rw(name):
    e = int(name[2])
    if name[0] == 'C':
        code = f's_xor_b32 s{sT0}, s{sCB}, {128 * e}'
        return dma_round(name, W_SLOT[name], PG, sCim if name[1] == 'I' else sCre, code, True)
    if name[1] == 'A':
        code = f's_xor_b32 s{sT0}, s{sJJ}, {e}\ns_lshl_b32 s{sT0}, s{sT0}, 17\ns_add_u32 s{sT0}, s{sT0}, s{sW2B}'
    else:
        code = f's_lshl_b32 s{sT0}, s{sPB[e]}, 16\ns_add_u32 s{sT0}, s{sT0}, s{sW2B}'
        if e == 0:
            code += f'\ns_xor_b32 s{sT0}, s{sT0}, s{sSEL[0]}'
    return dma_round(name, W_SLOT[name], XG, sW2, code, True)


STAGE = {n: 160 + 16 * k for k, n in enumerate(x for x in str(OPT['stg']).split('.') if x != '0')}
VST = t0


def stage_load(name):
    keep = dict(slot_shared)
    out = []
    for i_ in rw(name)[1:]:
        if i_.kind == 'vm':
            n = sum(j.kind == 'vm' for j in out)
            i_ = I(i_.text.replace('dwordx4 ', f'dwordx4 {ar(STAGE[name] + 4 * n, 4)}, ').replace(' lds', ''))
            i_.dma = True
        out.append(i_)
    slot_shared.clear()
    slot_shared.update(keep)
    return out


def stage_write(name):
    slot = W_SLOT[name]
    out = [I(f's_add_u32 s{sT0}, s{sWOFF}, {slot * SLOT}'), I(f'v_add_u32 v{VST}, s{sT0}, v{VL16}')]
    out += [I(f'ds_write_b128 v{VST}, {ar(STAGE[name] + 4 * g_, 4)} offset:{1024 * g_}', tok=name if g_ == 3 else None,
              lds_w=(slot, True) if g_ == 0 else None, note=name, fills=(slot, True) if g_ == 3 else None)
            for g_ in range(4)]
    return out


def rw2(name):
    if name not in STAGE:
        return rw(name)
    out = stage_write(name)
    for i_ in out[2:]:
        i_.dma = True
    return out


def pins(*parts):
    pin = {}
    for gap, ins in parts:
        head = [i_ for i_ in ins if not getattr(i_, 'dma', False)]
        pin.setdefault(gap, []).extend(head)
        for n, i_ in enumerate(ins[len(head):]):
            pin.setdefault(gap + n * OPT['dsp'], []).append(i_)
    return pin


BAR = lambda *toks: ([Wait(*toks)] if toks else []) + [I('s_barrier')]
PARK = {n: 247 if k == 16 else 48 + k for k, n in enumerate('pub seg lba0 lba1 lbe0 lbe1 fla flp lbw lbr hw hw2 hr hr2 f3o fp0 fp1'.split())}
PARK['pfa'] = 249


def park(**regs):
    return [I(f'v_accvgpr_write_b32 a{PARK[n]}, v{r}') for n, r in regs.items()]


def fetch(**regs):
    return [I(f'v_accvgpr_read_b32 v{r}, a{PARK[n]}') for n, r in regs.items()]


retry_blocks = []


def poll(name, loads, check):
    retry_blocks.append((name, loads, check))
    return L(check) + [I(f's_cbranch_vccnz L_retry_{name}'), I(f'L_back_{name}:')]


def cexp(dr, di, scale, zr, za):
    return L(f"""v_mul_f32 v{dr}, {scale}, v{zr}
        v_mul_f32 v{di}, {scale}, v{za}
        v_exp_f32 v{dr}, v{dr}
        v_fract_f32 v{di}, v{di}
        v_cos_f32 v{t3}, v{di}
        v_sin_f32 v{di}, v{di}
        v_mul_f32 v{di}, v{dr}, v{di}
        v_mul_f32 v{dr}, v{dr}, v{t3}""")


def cmul_add(dr, di, ar_, ai, br, bi, cr=None, ci=None):
    if cr is None:
        head = f'v_mul_f32 v{dr}, v{ar_}, v{br}\nv_mul_f32 v{di}, v{ar_}, v{bi}'
    else:
        head = f'v_fma_f32 v{dr}, v{ar_}, v{br}, v{cr}\nv_fma_f32 v{di}, v{ar_}, v{bi}, v{ci}'
    return L(head + f'\nv_fma_f32 v{dr}, -v{ai}, v{bi}, v{dr}\nv_fmac_f32 v{di}, v{ai}, v{br}')


def mish(b, voff=VL16, quarters=range(4)):
    A = FACC[b & 1]
    out = []
    for q in quarters:
        rs = range(4 * q, 4 * q + 4)
        out.append(I(f'ds_read_b128 {vr(TT + 4 * q, 4)}, v{t2} offset:{T_B1 - TB + 128 * b + 16 * q}', hoist=True))
        out += [I(f'v_fmac_f32 v{TT + r}, v{A + r}, v{RL2}') for r in rs]
        out += [I(f'v_exp_f32 v{A + r}, v{TT + r}') for r in rs]
        out += [I(f'v_add_f32 v{A + r}, 1.0, v{A + r}') for r in rs]
        out += [I(f'v_fma_f32 v{A + r}, v{A + r}, v{A + r}, 1.0') for r in rs]
        out += [I(f'v_rcp_f32 v{A + r}, v{A + r}') for r in rs]
        out += [I(f'v_fmamk_f32 v{A + r}, v{A + r}, {M2LN2:#x}, v{VLN2}') for r in rs]
        out += [I(f'v_mul_f32 v{TT + r}, v{TT + r}, v{A + r}') for r in rs]
        out += [I(f'v_cvt_pk_bf16_f32 v{A + p}, v{TT + 2 * p}, v{TT + 2 * p + 1}') for p in (2 * q, 2 * q + 1)]
        if q & 1:
            fr = q >> 1
            out.append(I(f'buffer_store_dwordx4 {vr(A + 4 * fr, 4)}, v{voff}, {srd(sWS)}, s{sFST[b]} offen '
                         f'offset:{1024 * fr} sc1', tok=f'stF{b}' if fr else None))
            if b < 3:
                out += [I(f'v_accvgpr_write_b32 a{aOF + 8 * b + 4 * fr + e}, v{A + 4 * fr + e}') for e in range(4)]
    return out


def mish_pk(b, voff, halves=range(2)):
    A = FACC[b & 1]
    out = []
    for q in range(2 * len(halves)):
        out.append(I(f'ds_read_b128 {vr(TT + 4 * q, 4)}, v{t2} offset:{T_B1 - TB + 128 * b + 16 * q}', hoist=True))
    for h in halves:
        ps = range(8 * h, 8 * h + 8, 2)
        rs = range(8 * h, 8 * h + 8)
        out += [I(f'v_pk_fma_f32 {vr(TT + p, 2)}, {vr(A + p, 2)}, {vr(RL2, 2)}, {vr(TT + p, 2)} op_sel_hi:[1,0,1]') for p in ps]
        out += [I(f'v_exp_f32 v{A + r}, v{TT + r}') for r in rs]
        out += [I(f'v_pk_add_f32 {vr(A + p, 2)}, {vr(A + p, 2)}, 1.0 op_sel_hi:[1,0]') for p in ps]
        out += [I(f'v_pk_fma_f32 {vr(A + p, 2)}, {vr(A + p, 2)}, {vr(A + p, 2)}, 1.0 op_sel_hi:[1,1,0]') for p in ps]
        out += [I(f'v_rcp_f32 v{A + r}, v{A + r}') for r in rs]
        out += [I(f'v_pk_fma_f32 {vr(A + p, 2)}, {vr(A + p, 2)}, s[{sKC[0]}:{sKC[1]}], {vr(RL2, 2)} '
                  f'op_sel:[0,0,1] op_sel_hi:[1,0,1]') for p in ps]
        out += [I(f'v_pk_mul_f32 {vr(TT + p, 2)}, {vr(TT + p, 2)}, {vr(A + p, 2)}') for p in ps]
        out += [I(f'v_cvt_pk_bf16_f32 v{A + p // 2}, v{TT + p}, v{TT + p + 1}') for p in ps]
    out += [I(f'v_permlane16_swap_b32 v{A + e}, v{A + 4 + e}') for e in range(4)]
    for h in range(2):
        out.append(I(f'buffer_store_dwordx4 {vr(A + 4 * h, 4)}, v{voff}, {srd(sWS)}, s{sFST[b]} offen '
                     f'offset:{1024 * h} sc1', tok=f'stF{b}' if h else None))
        if b < 3:
            out += [I(f'v_accvgpr_write_b32 a{aOF + 8 * b + 4 * h + e}, v{A + 4 * h + e}') for e in range(4)]
    return out


def mish_stages(b, h):
    m = mish_pk(b, VL16, range(2))
    body = m[4:]
    body = body[40:] if h else body[:40]
    return dict(rd=m[2 * h:2 * h + 2], A=body[0:4], ex=body[4:12], B=body[12:20], rc=body[20:28], C=body[28:36],
                fin=body[36:])


def cmul_pk(d, a, b, c):
    return L(f"""v_pk_fma_f32 {vr(d, 2)}, {vr(b, 2)}, {vr(a, 2)}, {vr(c, 2)} op_sel_hi:[1,0,1]
        v_pk_fma_f32 {vr(d, 2)}, {vr(b, 2)}, {vr(a, 2)}, {vr(d, 2)} op_sel:[1,1,0] op_sel_hi:[0,1,1] neg_lo:[0,1,0]""")


def staged(items, pin, plan):
    out, lo = [], 0
    for hi, fill_, burst_ in plan:
        out += weave(items[lo:hi + 1], fill_, {g_ - lo: v for g_, v in pin.items() if lo <= g_ <= hi}) + burst_
        lo = hi + 1
    return out


_weave = weave
LEV = [OPT['lev']]


def weave(*a):
    out = _weave(*a)
    return ds_first(level(out, LEV[0], OPT['vmc'])) if LEV[0] else out


P = []
if OPT['map'] == '8x4':
    ids = f"""s_and_b32 s{sKQ}, s2, 3
        s_bfe_u32 s{sJJ}, s2, 0x20003
        s_lshr_b32 s{sI}, s2, 5
        s_bfe_u32 s{sT0}, s2, 0x10002
        s_lshl_b32 s{sROT}, s{sT0}, 1
        s_lshl_b32 s{sT0}, s{sT0}, 3
        s_and_b32 s{sT1}, s{sI}, 1
        s_or_b32 s{sI}, s{sI}, s{sT0}
        s_add_u32 s{sROT}, s{sROT}, s{sT1}
        s_add_u32 s{sROT}, s{sROT}, s{sJJ if OPT['rotm'] else sKQ}
        s_lshl_b32 s{sROT}, s{sROT}, 1
        s_and_b32 s{sT1}, s{sKQ if OPT['rotm'] else sJJ}, {OPT['rotj']}
        s_add_u32 s{sROT}, s{sROT}, s{sT1}
        s_and_b32 s{sROT}, s{sROT}, 7"""
else:
    ids = f"""s_and_b32 s{sKQ}, s2, 1
        s_lshl_b32 s{sKQ}, s{sKQ}, 1
        s_lshr_b32 s{sT0}, s2, 7
        s_or_b32 s{sKQ}, s{sKQ}, s{sT0}
        s_bfe_u32 s{sJJ}, s2, 0x20003
        s_bfe_u32 s{sI}, s2, 0x20005
        s_bfe_u32 s{sT0}, s2, 0x20001
        s_add_u32 s{sROT}, s{sT0}, s{sKQ}
        s_lshl_b32 s{sT0}, s{sT0}, 2
        s_or_b32 s{sI}, s{sI}, s{sT0}
        s_lshl_b32 s{sROT}, s{sROT}, 1
        {'s_lshr_b32 s%d, s2, 7' % sT0 if OPT['rotm'] else ''}
        {'s_lshl_b32 s%d, s%d, 1' % (sROT, sJJ) if OPT['rotm'] else ''}
        {'s_add_u32 s%d, s%d, s%d' % (sROT, sROT, sT0) if OPT['rotm'] else ''}
        s_and_b32 s{sROT}, s{sROT}, 7"""
code_pf = f'buffer_load_dword v{t3}, v{FACC[0] if OPT["cpf"] == 2 else t1}, {srd(sTMP)}, s{sFLG if OPT["cpf"] == 2 else sT0} offen'
ws_load = f's_load_dwordx2 s[{sWS}:{sWS + 1}], s[0:1], 120'
more_loads = f"""s_load_dwordx8 s[{pLRE}:{pLRE + 7}], s[0:1], 8
s_load_dwordx4 s[{pLDT}:{pLDT + 3}], s[0:1], 56
s_load_dwordx2 s[{pB1}:{pB1 + 1}], s[0:1], 88
s_load_dwordx2 s[{sW1}:{sW1 + 1}], s[0:1], 80
s_load_dwordx2 s[{sCre}:{sCre + 1}], s[0:1], 40
s_load_dwordx2 s[{sCim}:{sCim + 1}], s[0:1], 48
s_load_dwordx2 s[{sW2}:{sW2 + 1}], s[0:1], 96
s_load_dwordx2 s[{sOUT}:{sOUT + 1}], s[0:1], 104
"""
SUM, SQ = [TT + 8, TT + 9], [TT + 10, TT + 11]
sizes = ((sX, 2097152), (sB, 524288), (sW1, 1835008), (sCre, 524288), (sCim, 524288), (sW2, 1835008),
         (sWS, (WS_PROF + 0x40000) if PROF else WS_SIZE), (sOUT, 4194304))
P += L(f"""
s_cmp_ge_u32 s2, 256
s_cbranch_scc1 L_end
{'s_memtime s[98:99]' if PROF else ''}
{'s_memrealtime s[90:91]' if PROF or OPT['diag'] or OPT['dbg'] else ''}
{'s_load_dwordx2 s[4:5], s[0:1], 112' if OPT['dbg'] else ''}
s_load_dwordx2 s[{sX}:{sX + 1}], s[0:1], 0
{'' if OPT['ka2'] else ws_load}
s_getpc_b64 s[{sTMP}:{sTMP + 1}]
v_lshrrev_b32 v{t0}, 6, v0
v_and_b32 v{vL}, 63, v0
s_and_b32 s{sTMP}, s{sTMP}, 0xffffff80
v_readfirstlane_b32 s{sW}, v{t0}
s_mov_b32 s{sTMP + 2}, L_code_end-{KN}
s_mov_b32 s{sTMP + 3}, 0x00020000
s_lshr_b32 s{sT0}, s2, 3
s_lshl_b32 s{sT0}, s{sT0}, 2
s_add_u32 s{sT0}, s{sT0}, s{sW}
s_lshl_b32 s{sT0}, s{sT0}, 9
v_and_b32 v{t1}, 3, v{vL}
v_lshlrev_b32 v{t1}, 7, v{t1}
{'' if OPT['cpf'] == 2 else code_pf}
{'' if OPT['ka2'] else more_loads}
v_lshrrev_b32 v{t0}, 3, v{vL}
v_lshrrev_b32 v{t1}, 4, v{vL}
v_xor_b32 v{t1}, v{t1}, v{vL}
v_and_b32 v{t1}, 7, v{t1}
v_lshlrev_b32 v{t1}, 4, v{t1}
v_lshl_add_u32 v{PG[0]}, v{t0}, 10, v{t1}
v_lshrrev_b32 v{t2}, 5, v{vL}
v_mul_u32_u24 v{t2}, {12 * 1024}, v{t2}
v_add_u32 v{XG[0]}, v{PG[0]}, v{t2}
v_xor_b32 v{XG[1]}, 64, v{XG[0]}
v_add_u32 v{XG[2]}, {6 * 1024}, v{XG[0]}
v_add_u32 v{XG[3]}, {9 * 1024}, v{XG[1]}
v_add_u32 v{XG[1]}, {3 * 1024}, v{XG[1]}
s_lshl_b32 s{sWOFF}, s{sW}, 12
{ids}
s_lshl_b32 s{sXB}, s{sI}, 17
s_lshl_b32 s{sT0}, s{sW}, 15
s_add_u32 s{sXB}, s{sXB}, s{sT0}
""" + ''.join(f's_mov_b32 s{b + 2}, {n}\ns_mov_b32 s{b + 3}, 0x00020000\n' for b, n in sizes[:1 if OPT['lean'] else 8]) + f"""
s_waitcnt lgkmcnt(0)
{'v_accvgpr_write_b32 a254, s98' if PROF else ''}
{'v_accvgpr_write_b32 a255, s90' if PROF else ''}
{'s_mov_b32 s23, 0' if PROF or OPT['dbg'] else ''}
{'s_mov_b32 s3, s90' if OPT['dbg'] else ''}
{'s_mov_b32 s23, s90' if OPT['diag'] else ''}
""")
P += stamp('ka') if OPT['diag'] else []
P += rx(0, 0) + (L(ws_load + '\n' + more_loads) if OPT['ka2'] else []) + rx(1, 1)
if OPT['lean']:
    P += L(''.join(f's_mov_b32 s{b + 2}, {n}\ns_mov_b32 s{b + 3}, 0x00020000\n' for b, n in sizes[1:]))
P += L(f"""
v_and_b32 v{t0}, 31, v{vL}
s_lshl_b32 s{sJ}, s{sKQ}, 2
s_or_b32 s{sJ}, s{sJ}, s{sJJ}
v_lshrrev_b32 v{t1}, 5, v{vL}
v_bfe_u32 v{t2}, v{vL}, 1, 3
v_xor_b32 v{t1}, v{t1}, v{t2}
v_lshlrev_b32 v{t1}, 4, v{t1}
v_lshl_add_u32 v{AS[0]}, v{t0}, 7, v{t1}
v_xor_b32 v{AS[1]}, 32, v{AS[0]}
v_xor_b32 v{AS[2]}, 64, v{AS[0]}
v_xor_b32 v{AS[3]}, 0x60, v{AS[0]}
s_add_u32 s{sT0}, s{sWOFF}, {SLOT}
v_add_u32 v{ASc[0]}, s{sT0}, v{AS[0]}
v_add_u32 v{ASc[1]}, s{sT0}, v{AS[1]}
v_add_u32 v{ASc[2]}, s{sT0}, v{AS[2]}
v_add_u32 v{ASc[3]}, s{sT0}, v{AS[3]}
s_mov_b32 s{sONES}, 0x3f803f80
v_mov_b32 v{SUM[0]}, 0
v_mov_b32 v{SUM[1]}, 0
v_mov_b32 v{SQ[0]}, 0
v_mov_b32 v{SQ[1]}, 0
s_lshl_b32 s{sT0}, s{sW}, 9
s_add_u32 s{sT0}, s{sT0}, {T_SEG}
v_lshl_add_u32 v{t0}, v{vL}, 3, s{sT0}""")
P.append(I(f'ds_write_b64 v{t0}, {vr(SUM[0], 2)}', tok='zero'))
P += L(f's_waitcnt lgkmcnt(0)\ns_load_dword s{sE2}, s[{sWS}:{sWS + 1}], {WS_EP}')
mid = L(f"""
v_and_b32 v{t0}, 31, v{vL}
s_lshl_b32 s{sT1}, s{sJ}, 6
v_lshl_add_u32 v{NLI}, v{t0}, 1, s{sT1}
s_and_b32 s{sT3}, s{sW}, 1
s_mul_i32 s{sT2}, s{sKQ}, 7
s_lshl_b32 s{sW1A}, s{sJJ}, 1
s_add_u32 s{sPB[0]}, s{sW1A}, 1
s_cmp_eq_u32 s{sJJ}, 3
s_cselect_b32 s{sPB[0]}, 3, s{sPB[0]}
s_cselect_b32 s{sFSEL}, 64, 0
s_add_u32 s{sW1A}, s{sW1A}, s{sT2}
s_add_u32 s{sW1B}, s{sPB[0]}, s{sT2}
s_lshl_b32 s{sW1A}, s{sW1A}, 7
s_lshl_b32 s{sW1B}, s{sW1B}, 7
s_cmp_ge_u32 s{sW}, 2
s_cselect_b32 s{sT2}, s{sW1B}, s{sW1A}
s_cselect_b32 s{sT1}, s{sFSEL}, 0
s_add_u32 s{sT2}, s{sT2}, s{sT1}
s_lshl_b32 s{sT1}, s{sT3}, 6
s_xor_b32 s{sT2}, s{sT2}, s{sT1}
v_and_b32 v{t1}, 3, v{vL}
v_bfe_u32 v{t2}, v{vL}, 2, 2
v_lshl_add_u32 v{t1}, v{t2}, 3, v{t1}
v_bfe_u32 v{t2}, v{vL}, 4, 1
v_lshl_add_u32 v{t1}, v{t2}, 2, v{t1}
v_lshl_add_u32 v{PR}, v{t1}, 1, s{sT2}
s_cmp_eq_u32 s{sT3}, 1
s_cselect_b32 s{sB}, s{pBIM}, s{pBRE}
s_cselect_b32 s{sB + 1}, s{pBIM + 1}, s{pBRE + 1}
s_mul_i32 s{sT3}, s{sT3}, {32 * 3584}
s_add_u32 s{sW1A}, s{sW1A}, s{sT3}
s_add_u32 s{sW1B}, s{sW1B}, s{sT3}
s_lshl_b32 s{sBB}, s{sJ}, 15
s_lshr_b32 s{sT1}, s{sW}, 1
s_add_u32 s{sT1}, s{sT1}, s{sROT}
s_and_b32 s{sKC[0]}, s{sT1}, 7
s_add_u32 s{sT1}, s{sT1}, 2
s_and_b32 s{sKC[1]}, s{sT1}, 7
s_add_u32 s{sT1}, s{sT1}, 2
s_and_b32 s{sKC[2]}, s{sT1}, 7
s_add_u32 s{sT1}, s{sT1}, 2
s_and_b32 s{sKC[3]}, s{sT1}, 7
v_xor_b32 v{PG[1]}, 64, v{PG[0]}
v_add_u32 v{PG[2]}, {14 * 1024}, v{PG[0]}
v_add_u32 v{PG[3]}, {21 * 1024}, v{PG[1]}
v_add_u32 v{PG[1]}, {7 * 1024}, v{PG[1]}
v_and_b32 v{t2}, 1, v{vL}
v_lshlrev_b32 v{t2}, 4, v{t2}
v_mov_b32 v{VNM}, 0x3f80
v_lshlrev_b32 v{t2}, v{t2}, v{VNM}
v_bfe_i32 v{t0}, v{vL}, 1, 1
v_and_b32 v{TT + 1}, v{t0}, v{t2}
v_xor_b32 v{TT}, v{TT + 1}, v{t2}
""")
mid += L(f"""
v_lshrrev_b32 v{t1}, 3, v{vL}
v_mul_u32_u24 v{t1}, 3584, v{t1}
v_bfe_u32 v{t2}, v{vL}, 4, 1
v_lshlrev_b32 v{t2}, 2, v{t2}
v_xor_b32 v{t2}, v{t2}, v{vL}
v_and_b32 v{t2}, 7, v{t2}
v_lshl_add_u32 v{QG[0]}, v{t2}, 4, v{t1}
v_add_u32 v{QG[1]}, {27648}, v{QG[0]}
v_add_u32 v{QG[2]}, {2 * 27648}, v{QG[0]}
v_add_u32 v{QG[3]}, {3 * 27648}, v{QG[0]}
""")
late = L(f"""
s_mul_i32 s{sE2}, s{sE2}, 1664525
s_add_u32 s{sE2}, s{sE2}, 1013904226
s_or_b32 s{sTAG}, s{sE2}, 1
v_bfe_u32 v{t1}, v{vL}, 2, 2
v_lshrrev_b32 v{t2}, 5, v{vL}
v_lshl_add_u32 v{t2}, v{t2}, 3, v{t1}
v_lshlrev_b32 v{FA0}, 7, v{t2}
v_lshrrev_b32 v{t1}, 1, v{t1}
v_lshl_add_u32 v{FA0}, v{t1}, 6, v{FA0}
v_bfe_u32 v{t1}, v{vL}, 4, 1
v_lshl_add_u32 v{FA0}, v{t1}, 5, v{FA0}
v_and_b32 v{t1}, 3, v{vL}
v_lshl_add_u32 v{FA0}, v{t1}, 3, v{FA0}
v_lshlrev_b32 v{VL16}, 4, v{vL}
v_mov_b32 v{VLN2}, {LN2:#x}
s_cmp_eq_u32 s{sPB[0]}, 1
s_cselect_b32 s{sPB[1]}, 3, 1
s_cmp_eq_u32 s{sPB[0]}, 5
s_cselect_b32 s{sPB[2]}, 3, 5
s_lshl_b32 s{sSEL[0]}, s{sFSEL}, 9
s_lshl_b32 s{sAS}, s{sI}, 2
s_add_u32 s{sAS}, s{sAS}, s{sW}
s_lshl_b32 s{sAS}, s{sAS}, 2
s_add_u32 s{sAS}, s{sAS}, s{sKQ}
s_lshl_b32 s{sFLG}, s{sAS}, 11
s_add_u32 s{sFLG}, s{sFLG}, {WS_FL}
s_mul_i32 s{sAS}, s{sAS}, {44 * 1024}
s_add_u32 s{sAS}, s{sAS}, {WS_A}
s_lshl_b32 s{sT2}, s{sJJ}, 13
s_add_u32 s{sFST[0]}, s{sAS}, s{sT2}
s_add_u32 s{sFST[1]}, s{sFST[0]}, 2048
s_lshl_b32 s{sT2}, s{sPB[0]}, 12
s_add_u32 s{sFST[3]}, s{sAS}, s{sT2}
s_lshl_b32 s{sT2}, s{sFSEL}, 5
s_add_u32 s{sFST[2]}, s{sFST[3]}, s{sT2}
s_add_u32 s{sFST[3]}, s{sFST[3]}, 2048
s_lshl_b32 s{sT2}, s{sJJ}, 12
s_add_u32 s{sSST}, s{sAS}, s{sT2}
s_add_u32 s{sSST}, s{sSST}, {28 * 1024}
s_xor_b32 s{sT2}, s{sW}, s{sKQ}
s_lshl_b32 s{sT2}, s{sT2}, 15
s_lshl_b32 s{sCB}, s{sJJ}, 17
s_add_u32 s{sCB}, s{sCB}, s{sT2}
s_lshl_b32 s{sT2}, s{sKQ}, 8
s_add_u32 s{sCB}, s{sCB}, s{sT2}
s_lshr_b32 s{sT2}, s{sJJ}, 1
s_lshl_b32 s{sT2}, s{sT2}, 7
s_add_u32 s{sCB}, s{sCB}, s{sT2}
s_mul_i32 s{sW2B}, s{sKQ}, {448 * 1024}
s_lshr_b32 s{sT2}, s{sW}, 1
s_lshl_b32 s{sT2}, s{sT2}, 15
s_add_u32 s{sW2B}, s{sW2B}, s{sT2}
s_lshl_b32 s{sT2}, s{sJJ}, 8
s_add_u32 s{sW2B}, s{sW2B}, s{sT2}
s_lshr_b32 s{sT2}, s{sKQ}, 1
s_xor_b32 s{sT2}, s{sT2}, s{sW}
s_and_b32 s{sT2}, s{sT2}, 1
s_lshl_b32 s{sT2}, s{sT2}, 7
s_add_u32 s{sW2B}, s{sW2B}, s{sT2}
s_lshl_b32 s{sT2}, s{sI}, 4
s_add_u32 s{sT2}, s{sT2}, s{sJJ}
s_lshl_b32 s{sT2}, s{sT2}, 2
s_add_u32 s{sT2}, s{sT2}, s{sW}""")
for b in range(4):
    late += L(f"""s_xor_b32 s{sT3}, s{sKQ}, {b}
        s_lshl_b32 s{sT3}, s{sT3}, 4
        s_add_u32 s{sT3}, s{sT3}, s{sT2}
        s_mul_i32 s{sT3}, s{sT3}, {3 * XC_BLK}
        s_add_u32 s{sXO[b]}, s{sT3}, {WS_XC + (b - 1) * XC_BLK if b else WS_XC}""")
late += L(f"""s_add_u32 s{sSEL[2]}, s{sXO[0]}, {XC_BLK}
    s_add_u32 s{sSEL[3]}, s{sXO[0]}, {2 * XC_BLK}
    s_and_b32 s{sT3}, s{sJJ}, 1
    s_sub_u32 s{sSEL[1]}, 6, s{sT3}""")
pf = []
if OPT['pf'] == 2:
    late += L(f"""
s_and_b32 s{sT1}, s{sI}, 7
s_lshl_b32 s{sT2}, s{sT1}, 1
s_add_u32 s{sT2}, s{sT2}, s{sW}
s_mul_i32 s{sT2}, s{sT2}, 28
s_mul_i32 s{sT3}, s{sKQ}, 448
s_add_u32 s{sT2}, s{sT2}, s{sT3}
s_lshl_b32 s{sT2}, s{sT2}, 2
s_add_u32 s{sT2}, s{sT2}, s{sJJ}
s_lshl_b32 s{sT3}, s{sJJ}, 3
s_add_u32 s{sT3}, s{sT3}, s{sT1}
s_lshl_b32 s{sT3}, s{sT3}, 6
s_add_u32 s{sT3}, s{sT3}, s{sKQ}
s_cmp_lt_u32 s{sW}, 2
s_cselect_b32 s{sT2}, s{sT2}, s{sT3}
s_cselect_b32 s{sT3}, 56, 32
s_cselect_b32 s{sTMP}, s{sW2}, s{sCre}
s_cselect_b32 s{sTMP + 1}, s{sW2 + 1}, s{sCre + 1}
s_cselect_b32 s{sTMP + 2}, s{sW2 + 2}, s{sCre + 2}
s_cmp_eq_u32 s{sW}, 3
s_cselect_b32 s{sTMP}, s{sCim}, s{sTMP}
s_cselect_b32 s{sTMP + 1}, s{sCim + 1}, s{sTMP + 1}""")
elif OPT['pf']:
    late += L(f"""
s_mul_i32 s{sT2}, s{sKQ}, 448
s_mul_i32 s{sT3}, s{sI}, 28
s_add_u32 s{sT2}, s{sT2}, s{sT3}
s_lshl_b32 s{sT2}, s{sT2}, 2
s_add_u32 s{sT2}, s{sT2}, s{sJJ}
s_lshl_b32 s{sT3}, s{sJJ}, 4
s_add_u32 s{sT3}, s{sT3}, s{sI}
s_lshl_b32 s{sT3}, s{sT3}, 5
s_add_u32 s{sT3}, s{sT3}, s{sKQ}
s_cmp_eq_u32 s{sW}, 0
s_cselect_b32 s{sT2}, s{sT2}, s{sT3}
s_cselect_b32 s{sT3}, 56, 16
s_cselect_b32 s{sTMP}, s{sW2}, s{sCre}
s_cselect_b32 s{sTMP + 1}, s{sW2 + 1}, s{sCre + 1}
s_cselect_b32 s{sTMP + 2}, s{sW2 + 2}, s{sCre + 2}
s_cmp_eq_u32 s{sW}, 2
s_cselect_b32 s{sTMP}, s{sCim}, s{sTMP}
s_cselect_b32 s{sTMP + 1}, s{sCim + 1}, s{sTMP + 1}
s_cmp_eq_u32 s{sW}, 3
s_cselect_b32 s{sT3}, 0, s{sT3}""")
if OPT['pf']:
    late += L(f"""s_lshl_b32 s{sT2}, s{sT2}, 8
v_lshrrev_b32 v{t0}, 1, v{vL}
v_and_b32 v{t1}, 1, v{vL}
v_lshlrev_b32 v{t1}, 7, v{t1}
v_lshl_add_u32 v{t0}, v{t0}, 10, v{t1}
v_add_u32 v{t0}, s{sT2}, v{t0}
v_mov_b32 v{t1}, {OOB:#x}
v_cmp_gt_u32 vcc, s{sT3}, v{vL}
v_cndmask_b32 v{PI}, v{t1}, v{t0}, vcc""")
    pf = L(f'buffer_load_dword a248, v{PI}, {srd(sTMP)}, 0 offen')

Z = TT + 2
consts = L(f"""
v_lshlrev_b32 v{NLI}, 16, v{NLI}
v_mul_f32 v{NLI}, {LOG2E:#x}, v{NLI}
v_exp_f32 v{NLI}, v{NLI}
v_lshlrev_b32 v{Z + 2}, 16, v{LR}
v_lshlrev_b32 v{Z + 3}, 16, v{LI}
v_cvt_pk_bf16_f32 v{NLI}, v{NLI}, v{NLI}
v_lshlrev_b32 v{NLI}, 16, v{NLI}
v_mul_f32 v{Z}, v{NLI}, v{Z + 2}
v_mul_f32 v{Z + 1}, v{NLI}, v{Z + 3}
v_mul_f32 v{Z}, {LOG2E:#x}, v{Z}
v_mul_f32 v{Z + 1}, 0xbe22f983, v{Z + 1}""")
consts += cexp(LR, LI, '1.0', Z, Z + 1)
consts += L(f"""
v_mul_f32 v{Z + 4}, v{Z + 2}, v{Z + 2}
v_fmac_f32 v{Z + 4}, v{Z + 3}, v{Z + 3}
v_rcp_f32 v{Z + 4}, v{Z + 4}
v_add_f32 v{Z + 5}, -1.0, v{LR}
v_sub_f32 v{NLI}, 0, v{LI}
v_add_f32 v{Z + 4}, v{Z + 4}, v{Z + 4}
v_mul_f32 v{CR}, v{Z + 5}, v{Z + 2}
v_fmac_f32 v{CR}, v{NLI}, v{Z + 3}
v_mul_f32 v{NCI}, v{Z + 5}, v{Z + 3}
v_fmac_f32 v{NCI}, v{LI}, v{Z + 2}
v_mul_f32 v{CR}, v{CR}, v{Z + 4}
v_mul_f32 v{NCI}, v{NCI}, v{Z + 4}
v_sub_f32 v{NCR}, 0, v{CR}""")
consts += cexp(L16R, L16I, '0x41800000', Z, Z + 1)
consts += cexp(L128R, L128I, '0x43000000', Z, Z + 1)
consts += L(f"""
v_lshrrev_b32 v{Z + 6}, 5, v{vL}
s_lshl_b32 s{sT2}, s{sW}, 1
v_add_u32 v{Z + 6}, s{sT2}, v{Z + 6}
v_cvt_f32_u32 v{Z + 6}, v{Z + 6}
v_mul_f32 v{Z + 7}, 0x41800000, v{Z + 6}
v_sub_f32 v{Z + 6}, 0x40e00000, v{Z + 6}
v_mul_f32 v{Z + 6}, 0x43800000, v{Z + 6}""")
consts += cexp(LSR, LSI, f'v{Z + 7}', Z, Z + 1)
consts += cexp(WR, WI, f'v{Z + 6}', Z, Z + 1)
consts += L(f"""v_lshlrev_b32 v{PR}, 16, v{PR}
v_mul_f32 v{PR}, {LOG2E:#x}, v{PR}
v_and_b32 v{t1}, 31, v{vL}
s_lshl_b32 s{sT1}, s{sW}, 7
s_add_u32 s{sT1}, s{sT1}, {T_B1}
v_lshl_add_u32 v{t1}, v{t1}, 2, s{sT1}
""") + [I(f'ds_write_b32 v{t1}, v{PR}', tok='b1w')]
later = []
Y = SRE
later += L(f"""v_and_b32 v{Y}, 31, v{vL}
    v_lshlrev_b32 v{Y + 1}, 3, v{Y}
    v_add_u32 v{Y + 1}, {T_LB}, v{Y + 1}
    v_lshrrev_b32 v{t0}, 5, v{vL}
    s_lshl_b32 s{sT2}, s{sW}, 11
    s_add_u32 s{sT2}, s{sT2}, {T_H}
    v_lshl_add_u32 v{Y}, v{Y}, 6, s{sT2}
    v_bfe_u32 v{Y + 2}, v{vL}, 1, 2
    v_lshlrev_b32 v{Y + 3}, 1, v{t0}
    v_xor_b32 v{Y + 2}, v{Y + 2}, v{Y + 3}
    v_bfe_u32 v{Y + 3}, v{vL}, 3, 1
    v_xor_b32 v{Y + 2}, v{Y + 2}, v{Y + 3}
    v_lshl_add_u32 v{Y}, v{Y + 2}, 4, v{Y}
    v_xor_b32 v{Y + 3}, 16, v{Y}
    v_bfe_u32 v{Y + 6}, v{vL}, 2, 2
    v_lshrrev_b32 v{t1}, 4, v{vL}
    v_lshl_add_u32 v{Y + 2}, v{t1}, 3, v{Y + 6}
    v_lshl_add_u32 v{Y + 2}, v{Y + 2}, 6, s{sT2}
    v_and_b32 v{t1}, 1, v{vL}
    v_lshl_add_u32 v{Y + 2}, v{t1}, 5, v{Y + 2}
    v_lshrrev_b32 v{t1}, 1, v{vL}
    v_xor_b32 v{t1}, v{t1}, v{vL}
    v_and_b32 v{t1}, 8, v{t1}
    v_lshl_add_u32 v{Y + 2}, v{t1}, 1, v{Y + 2}
    v_bfe_u32 v{t1}, v{vL}, 1, 1
    v_lshl_add_u32 v{Y + 2}, v{t1}, 3, v{Y + 2}
    v_bfe_u32 v{t1}, v{vL}, 4, 1
    v_lshl_add_u32 v{Y + 5}, v{t0}, 2, v{Y + 6}
    v_lshl_add_u32 v{Y + 5}, v{t1}, 4, v{Y + 5}
    v_lshlrev_b32 v{Y + 5}, 7, v{Y + 5}
    s_and_b32 s{sT2}, s{sKQ}, 1
    v_xor_b32 v{t1}, s{sT2}, v{t1}
    v_lshl_add_u32 v{Y + 5}, v{t1}, 6, v{Y + 5}
    v_bfe_u32 v{t1}, v{vL}, 3, 1
    v_lshl_add_u32 v{Y + 5}, v{t1}, 5, v{Y + 5}
    v_and_b32 v{t1}, 3, v{vL}
    v_lshl_add_u32 v{Y + 5}, v{t1}, 3, v{Y + 5}
    v_and_b32 v{Y + 6}, 15, v{vL}
    v_lshrrev_b32 v{t1}, 4, v{vL}
    v_bfe_u32 v{Y + 4}, v{vL}, 1, 3
    v_xor_b32 v{t1}, v{t1}, v{Y + 4}
    v_lshlrev_b32 v{t1}, 4, v{t1}
    v_lshl_add_u32 v{Y + 6}, v{Y + 6}, 7, v{t1}
    s_and_b32 s{sT2}, s{sJJ}, 1
    s_lshl_b32 s{sT2}, s{sT2}, 6
    v_xor_b32 v{Y + 6}, s{sT2}, v{Y + 6}
    s_lshl_b32 s{sT2}, s{sW}, 9
    s_add_u32 s{sT1}, s{sT2}, {T_SEG}
    s_add_u32 s{sT2}, s{sT2}, {T_LB}
    v_lshl_add_u32 v{Y + 7}, v{vL}, 3, s{sT1}
    v_lshl_add_u32 v{Y + 8}, v{vL}, 3, s{sT2}""")
later += park(hw=Y, lbr=Y + 1, hr=Y + 2, hw2=Y + 3, fp0=Y + 5, fp1=Y + 6, seg=Y + 7, lbw=Y + 8)
park2 = []
Y = FACC[0]
park2 += L(f"""s_lshl_b32 s{sT2}, s{sJ}, 4
    s_add_u32 s{sT2}, s{sT2}, s{sI}
    s_lshl_b32 s{sT2}, s{sT2}, 9
    s_add_u32 s{sT2}, s{sT2}, {WS_AG - 512}
    s_cmp_eq_u32 s{sW}, 3
    s_cselect_b32 s{sT2}, s{sT2}, {OOB:#x}
    v_mov_b32 v{Y + 8}, {OOB:#x}
    v_cmp_gt_u32 vcc, 32, v{vL}
    v_add_u32 v{Y}, s{sT2}, v{VL16}
    v_lshrrev_b32 v{t0}, 5, v{vL}
    v_cndmask_b32 v{Y}, v{Y}, v{Y + 8}, vcc
    s_lshl_b32 s{sT2}, s{sW}, 2
    s_add_u32 s{sT2}, s{sT2}, s{sI}
    s_sub_u32 s{sT2}, s{sT2}, 16
    v_lshl_add_u32 v{t0}, v{t0}, 1, s{sT2}
    s_lshl_b32 s{sT2}, s{sJ}, 13
    s_add_u32 s{sT2}, s{sT2}, {WS_AG}
    v_and_b32 v{Y + 9}, 31, v{vL}
    v_lshl_add_u32 v{t1}, v{Y + 9}, 4, s{sT2}
    v_lshl_add_u32 v{Y + 1}, v{t0}, 9, v{t1}
    v_cmp_gt_i32 vcc, 0, v{t0}
    v_add_u32 v{Y + 2}, 512, v{Y + 1}
    v_mov_b32 v{t1}, s{sTAG}
    v_cndmask_b32 v{Y + 1}, v{Y + 1}, v{Y + 8}, vcc
    v_cndmask_b32 v{Y + 3}, v{t1}, 0, vcc
    v_cmp_gt_i32 vcc, -1, v{t0}
    s_lshl_b32 s{sT2}, s{sJJ}, 9
    s_add_u32 s{sT2}, s{sT2}, s{sFLG}
    v_cndmask_b32 v{Y + 2}, v{Y + 2}, v{Y + 8}, vcc
    v_cndmask_b32 v{Y + 4}, v{t1}, 0, vcc
    v_lshl_add_u32 v{Y + 5}, v{Y + 9}, 2, s{sT2}
    v_and_b32 v{t0}, 3, v{vL}
    v_max_u32 v{t0}, 1, v{t0}
    v_xor_b32 v{t0}, s{sJJ}, v{t0}
    v_lshl_add_u32 v{Y + 6}, v{t0}, 9, s{sFLG}
    s_bitcmp1_b32 s{sJJ}, 0
    s_cselect_b32 s{sT2}, {OOB:#x}, 0
    v_add_u32 v{Y + 7}, s{sT2}, v{VL16}
    """)
park2 += park(pfa=PI)
park2 += park(pub=Y, lba0=Y + 1, lba1=Y + 2, lbe0=Y + 3, lbe1=Y + 4, fla=Y + 5, flp=Y + 6, f3o=Y + 7)
params = L(f"""global_load_ushort v{LR}, v{NLI}, s[{pLRE}:{pLRE + 1}]
    global_load_ushort v{LI}, v{NLI}, s[{pLIM}:{pLIM + 1}]
    global_load_ushort v{NLI}, v{NLI}, s[{pLDT}:{pLDT + 1}]
    global_load_ushort v{PR}, v{PR}, s[{pB1}:{pB1 + 1}]""")
XO_START = max(n for n, i_ in enumerate(late) if i_.text == f's_lshl_b32 s{sT2}, s{sI}, 4')
late_b = []
if OPT['lb2s']:
    late, late_b = late[:XO_START], late[XO_START:]
    park2 = [i_ for i_ in park2 if f'a{PARK["pfa"]},' not in i_.text]
if OPT['lb2s'] == 2:
    late_b, park2 = park2 + late_b, []
nl = len(late) * OPT['lateln'] // 100
while nl < len(late) and late[nl - 1].mn.startswith(('s_cmp', 'v_cmp', 's_cselect')) or (nl < len(late) and late[nl].mn.startswith('v_cndmask')):
    nl += 1
if nl >= len(late):
    later, late, park2 = later + late + park2, [], []
else:
    later, late = later + late[:nl], late[nl:]
zero_xe = [I(f'v_accvgpr_write_b32 a{aXE + r}, 0') for r in range(17)]
XA, sSTAR = FACC[1], sXO[3]
if OPT['xlds']:
    P += zero_xe + L(f"""s_lshl_b32 s{sSTAR}, s{sJJ}, 1
        s_lshr_b32 s{sT1}, s{sKQ}, 1
        s_add_u32 s{sSTAR}, s{sSTAR}, s{sT1}
        s_sub_u32 s{sSTAR}, s{sSTAR}, s{sROT}
        s_and_b32 s{sSTAR}, s{sSTAR}, 7
        s_and_b32 s{sT1}, s{sKQ}, 1
        v_lshrrev_b32 v{t0}, 5, v{vL}
        v_xor_b32 v{t1}, s{sT1}, v{t0}
        v_bfe_u32 v{t2}, v{vL}, 3, 2
        v_lshl_add_u32 v{t1}, v{t1}, 2, v{t2}
        v_lshlrev_b32 v{t1}, 4, v{t1}
        v_lshl_add_u32 v{t1}, v{t0}, 10, v{t1}
        v_and_b32 v{t2}, 7, v{vL}
        v_lshl_add_u32 v{t1}, v{t2}, 1, v{t1}
        s_add_u32 s{sT1}, s{sWOFF}, {SLOT}
        v_add_u32 v{XA}, s{sT1}, v{t1}""") + [I(f'v_xor_b32 v{XA + v}, {16 * v}, v{XA}') for v in (1, 2, 3)]
    zero_xe = []
later = mid + later + zero_xe
cuts = [0]
for n in range(1, 7):
    c = n * len(later) // 7
    while later[c].mn.startswith(('s_cselect', 'v_cndmask', 's_nop')) or later[c - 1].mn.startswith('v_cmp'):
        c += 1
    cuts.append(c)
cuts.append(len(later))

touch_w = L(f'v_mov_b32 v{PI}, 0') + [
    I(f'buffer_load_dword a{56 + n}, v{PI}, {srd(r)}, 0 offen') for n, r in enumerate((sW1, sCre, sCim, sW2))]
touch_o = L(f"""v_min_u32 v{PR}, {WS_SIZE >> 21}, v{vL}
    v_lshlrev_b32 v{PR}, 21, v{PR}
    v_add_u32 v{PR}, 0x800, v{PR}
    buffer_load_dword a60, v{PR}, {srd(sWS)}, 0 offen
    buffer_load_dword a61, v{PR}, {srd(sOUT)}, 0 offen""")
if OPT['tlb'] in (1, 3, 4):
    P += touch_w
if OPT['tlb'] == 1:
    P += touch_o
P += rx(2, 2) + [I('s_waitcnt lgkmcnt(0)')]
for s in range(8):
    P.append(Wait(f'x{s}'))
    if s == 0:
        P += stamp('x0')
    for q in range(4):
        P.append(I(f'ds_read_b128 {vr(X + 16 * s + 4 * q, 4)}, v{ASc[q]} offset:{(s & 3) * SLOT}', lds_r=(s & 3) + 1,
                   tok=f'xr{s}' if q == 3 else None))
    nxt = rg(s - 5) if s >= 5 else rx(s + 3, (s + 3) & 3) + (params if s == OPT['parat'] else [])
    piece = later[cuts[s]:cuts[s + 1]] if s < 7 else []
    P += nxt + piece if OPT['xfirst'] else piece + nxt
    for r in range(16):
        P.append(I(f'v_dot2c_f32_bf16 v{SUM[r & 1]}, s{sONES}, v{X + 16 * s + r}'))
        P.append(I(f'v_dot2c_f32_bf16 v{SQ[r & 1]}, v{X + 16 * s + r}, v{X + 16 * s + r}'))
        if OPT['xlds'] and r == (15 if s < 7 else 3):
            blk = [f'ds_read_u16_d16_hi a{aXE + n}, v{XA + ((n >> 1) & 1) + 2 * ((n >> 2) & 1)} '
                   f'offset:{(s & 3) * SLOT + ((n & 7) + 16 * (n >> 3)) * 128}' for n in range(16)]
            P += [Wait(f'xr{s}'), I(f's_cmp_lg_u32 s{sSTAR}, {s}'), I(f's_cbranch_scc1 L_xe{s}')]
            P.append(I('; epilogue x values\n    ' + '\n    '.join(blk + ['s_waitcnt lgkmcnt(0)'])))
            P.append(I(f'L_xe{s}:'))
P += stamp('x7')
P += L(f"""
v_add_f32 v{SUM[0]}, v{SUM[0]}, v{SUM[1]}
v_add_f32 v{SQ[0]}, v{SQ[0]}, v{SQ[1]}
v_mov_b32 v{SUM[1]}, v{SUM[0]}
v_mov_b32 v{SQ[1]}, v{SQ[0]}
v_permlane32_swap_b32 v{SUM[1]}, v{SUM[0]}
v_add_f32 v{SUM[0]}, v{SUM[0]}, v{SUM[1]}
v_mul_f32 v{SUM[0]}, 0xbb000000, v{SUM[0]}
v_cvt_pk_bf16_f32 v{t0}, v{SUM[0]}, v{SUM[0]}
v_lshlrev_b32 v{SIM}, 16, v{t0}
v_lshlrev_b32 v{SIM + 1}, 16, v{t0}
v_lshlrev_b32 v{SIM + 2}, 16, v{t0}
v_lshlrev_b32 v{SIM + 3}, 16, v{t0}
""")

back = lambda o: [I(f'v_cvt_pk_bf16_f32 v{X + 2 * o + e}, v{FACC[0] + 4 * (o & 3) + 2 * e}, '
                    f'v{FACC[0] + 4 * (o & 3) + 2 * e + 1}') for e in range(2)]
items = [[I(f'v_mfma_f32_4x4x4_16b_bf16 {vr(FACC[0] + 4 * (n & 3), 4)}, {vr(TT, 2)}, {vr(X + 2 * n, 2)}, {vr(SIM, 4)}')]
         + (back(n - 2) if n >= 2 else []) for n in range(64)]
fill = L(f"""
v_permlane32_swap_b32 v{SQ[1]}, v{SQ[0]}
v_sub_f32 v{VNM}, 0, v{SIM}
v_add_f32 v{SQ[0]}, v{SQ[0]}, v{SQ[1]}
v_mul_f32 v{SQ[0]}, 0x3b000000, v{SQ[0]}
v_fma_f32 v{SQ[0]}, -v{SUM[0]}, v{SUM[0]}, v{SQ[0]}
v_max_f32 v{SQ[0]}, 0, v{SQ[0]}
v_cvt_pk_bf16_f32 v{t0}, v{SQ[0]}, v{SQ[0]}
v_lshlrev_b32 v{t0}, 16, v{t0}
v_add_f32 v{t0}, 0x3727c5ac, v{t0}
v_cvt_pk_bf16_f32 v{t0}, v{t0}, v{t0}
v_lshlrev_b32 v{t0}, 16, v{t0}
v_sqrt_f32 v{t0}, v{t0}
v_and_b32 v{t1}, 3, v{vL}
v_cvt_pk_bf16_f32 v{t0}, v{t0}, v{t0}
v_lshlrev_b32 v{t0}, 16, v{t0}
v_rcp_f32 v{VRS}, v{t0}
v_bfe_u32 v{t2}, v{vL}, 3, 2
v_lshl_add_u32 v{t1}, v{t2}, 2, v{t1}
v_bfe_u32 v{t2}, v{vL}, 2, 1
v_lshl_add_u32 v{t1}, v{t2}, 4, v{t1}
s_lshl_b32 s{sT1}, s{sW}, 8
s_add_u32 s{sT1}, s{sT1}, {T_STAT}
v_lshl_add_u32 v{t1}, v{t1}, 2, s{sT1}
v_mul_f32 v{RL2}, {LOG2E:#x}, v{VRS}
ds_write_b32 v{t1}, v{VNM}
""")
fill.append(I(f'ds_write_b32 v{t1}, v{VRS} offset:128', tok='tabw'))
LA_S, LA_F = 3, OPT['laf']


def s_addr(slot):
    return [I(f'v_add_u32 v{ASc[q]}, {slot * SLOT}, v{AS[q]}') for q in range(4)]


def s_read(s, ri):
    return I(f'ds_read_b128 {ar(aS + 8 * (s & 3) + 4 * ri, 4)}, v{ASc[s & 3]} offset:{(s >> 3) * SLOT + (2 * ((s >> 2) & 1) + ri) * 4096}',
             lds_r=G_SLOT[s >> 3])


def f_addr(b):
    if b < 2:
        return [I(f'v_xor_b32 v{FAc}, {64 * b}, v{FA0}')]
    if b == 3:
        return [I(f'v_xor_b32 v{FAc}, 64, v{FAc}')]
    return [I(f'v_xor_b32 v{FAc}, s{sFSEL}, v{FA0}'), I(f'v_add_u32 v{FAc}, {G_SLOT[8] * SLOT}, v{FAc}')]


def f_read(b, s):
    out = f_addr(b) if s == 0 else []
    k = (32 * b + s) & 7
    for u in range(2):
        out.append(I(f'ds_read_b64_tr_b16 {ar(aF + 4 * k + 2 * u, 2)}, v{FAc} '
                     f'offset:{(s >> 3) * SLOT + ((s >> 1) & 3) * 4096 + (s & 1) * 2048 + u * 512}',
                     lds_r=G_SLOT[(4 if b < 2 else 8) + (s >> 3)]))
    return out


DSP = OPT['dsp']
OPT['dsp'] = OPT['dspc']
pin = pins((OPT['g3'], rg(3)), *([(OPT['g3'] + 4 * OPT['dspc'], rg(4))] if OPT['sch'] >= 2 else []),
           (54, s_addr(G_SLOT[0]) + stamp('c27') + BAR('G0', 'zero', *([] if OPT['bsp'] else ['G1'])) + stamp('b0')))
OPT['dsp'] = DSP
for k in range(LA_S):
    pin[55 + 2 * k] = [s_read(k, 0), s_read(k, 1)]
stat_fill = fill
if OPT['cfs']:
    fill = stat_fill[:2]
    stat_fill = stat_fill[2:]
else:
    stat_fill = []
P += weave(items, fill, pin, 0, 40) + back(62) + back(63)

S_items = []
for s in range(32):
    for ri, acc in ((0, SRE), (1, SIM)):
        it = [mfma(vr(acc, 16), vr(X + 4 * s, 4), ar(aS + 8 * (s & 3) + 4 * ri, 4), vr(acc, 16) if s else '0')]
        n = s + LA_S
        if n < 32:
            it.append(s_read(n, ri))
        S_items.append(it)
for k in range(LA_F):
    S_items[64 - LA_F + k] += f_read(0, k)
F_items = []
for b in range(4):
    its = []
    for s in range(32):
        acc = vr(FACC[b & 1], 16)
        it = [mfma(acc, ar(aF + 4 * ((32 * b + s) & 7), 4), vr(X + 4 * s, 4), acc if s else '0')]
        n = s + LA_F
        if n < 32:
            it += f_read(b, n)
        elif b < 3:
            it += f_read(b + 1, n - 32)
        its.append(it)
    F_items.append(its)

FLA, FLP = VNM, VRS
fill = stat_fill + late + park2 + late_b + consts + (pf if OPT['pfat'] < 0 else []) + L(f"""
v_lshrrev_b32 v{t0}, 3, v{vL}
v_bfe_u32 v{t1}, v{vL}, 4, 1
v_lshlrev_b32 v{t1}, 1, v{t1}
v_xor_b32 v{t1}, v{t1}, v{vL}
v_and_b32 v{t1}, 7, v{t1}
v_lshlrev_b32 v{t1}, 4, v{t1}
v_lshl_add_u32 v{XG[0]}, v{t0}, 10, v{t1}
v_add_u32 v{XG[1]}, {7 * 1024}, v{XG[0]}
v_xor_b32 v{XG[2]}, 64, v{XG[0]}
v_add_u32 v{XG[3]}, {21 * 1024}, v{XG[2]}
v_add_u32 v{XG[2]}, {14 * 1024}, v{XG[2]}
v_lshrrev_b32 v{t2}, 5, v{vL}
v_lshlrev_b32 v{t2}, 6, v{t2}
v_add_u32 v{t2}, {TB}, v{t2}
s_lshl_b32 s{sT2}, s{sW}, 8
v_add_u32 v{t1}, s{sT2}, v{t2}""")
fill += [I(f'ds_read_b128 {vr(FACC[1] + 4 * q, 4)}, v{t1} offset:{128 + 16 * q}') for q in range(4)]
xa, xb = TT + 14, TT + 15
ROW = lambda n: 16 * ((n >> 2) & 1) + 8 * (n >> 3) + (n & 3)
xe = L(f"""v_and_b32 v{xa}, 31, v{vL}
    v_lshrrev_b32 v{xb}, 5, v{vL}
    v_lshlrev_b32 v{xb}, 12, v{xb}
    v_lshl_add_u32 v{xb}, v{xa}, 1, v{xb}
    s_lshl_b32 s{sONES}, s{sJJ}, 2
    s_add_u32 s{sONES}, s{sONES}, s{sKQ}
    s_lshl_b32 s{sONES}, s{sONES}, 6
    v_lshl_add_u32 v{xa}, v{xa}, 1, s{sONES}
    s_add_u32 s{sXB}, s{sXB}, s{sONES}
    global_load_short_d16_hi a{aXE + 16}, v{xa}, s[{pDSK}:{pDSK + 1}]""")
for r in range(0 if OPT['xlds'] else 16):
    if r % 4 == 0:
        xe.append(I(f's_add_u32 s{sONES}, s{sXB}, {1024 * ROW(r)}'))
    xe.append(I(f'buffer_load_short_d16_hi a{aXE + r}, v{xb}, {srd(sX)}, s{sONES} offen offset:{1024 * (r & 3)}'))
sAO = dict(A={1: 8, 2: 9, 3: 10}, H={1: 11, 2: 12, 3: 13}, B={1: 14, 2: 15})
for e in (1, 2, 3):
    fill += L(f"""s_xor_b32 s{sT2}, s{sJJ}, {e}
        s_lshl_b32 s{sT2}, s{sT2}, 12
        s_add_u32 s{sAO['H'][e]}, s{sT2}, s{sAS}
        s_add_u32 s{sAO['A'][e]}, s{sAO['H'][e]}, s{sT2}
        s_add_u32 s{sAO['H'][e]}, s{sAO['H'][e]}, {28 * 1024}""")
for e in (1, 2):
    fill += L(f's_lshl_b32 s{sT2}, s{sPB[e]}, 12\ns_add_u32 s{sAO["B"][e]}, s{sT2}, s{sAS}')
if OPT['tlb'] in (2, 3):
    fill = touch_o + fill
if OPT['fw']:
    fill += L(f"""s_lshl_b32 s{sT2}, s{sJJ}, 9
        s_add_u32 s{sT2}, s{sT2}, s{sFLG}
        v_lshlrev_b32 v{t0}, 3, v{vL}
        v_mov_b32 v{TT}, 0
        v_mov_b32 v{TT + 1}, 0
        buffer_store_dwordx2 {vr(TT, 2)}, v{t0}, {srd(sWS)}, s{sT2} offen sc1""")
if OPT['xw'] == 1:
    fill += L(f'v_lshlrev_b32 v{t0}, 2, v{vL}')
    for b in (1, 2, 3):
        fill += L(f"""buffer_store_dwordx4 {vr(TT, 4)}, v{VL16}, {srd(sWS)}, s{sXO[b]} offen sc1
            buffer_store_dwordx4 {vr(TT, 4)}, v{VL16}, {srd(sWS)}, s{sXO[b]} offen offset:1024 sc1
            buffer_store_dword v{vL}, v{t0}, {srd(sWS)}, s{sXO[b]} offen offset:2048 sc1""")
elif OPT['xw']:
    fill += L(f"""v_lshlrev_b32 v{t0}, 7, v{vL}
        v_min_u32 v{t0}, {59 * 128}, v{t0}
        buffer_load_dword a60, v{t0}, {srd(sWS)}, s{sXO[0]} offen {('', '', 'sc1', 'sc1 nt')[OPT['xw']]}""")
if not OPT['xel']:
    cut = len(fill) * OPT['xes'] // 100
    fill, xe = fill[:cut] + merge(fill[cut:], xe), []
OPT['dsp'] = OPT['dsps']
srounds = [(2, rg(4)), (14, rg(5)), (28, rg(6)), (42, rg(7))] if OPT['sch'] == 1 else \
    [(2, rg(5)), (14, rg(6)), (28, rg(7)), (42, rg(8))]
sbars = [(9, BAR('G1')), (25, BAR('G2', 'G3'))] if OPT['bsp'] == 1 else \
    [(9, BAR('G1')), (25, BAR('G2')), (41, BAR('G3'))] if OPT['bsp'] else [(24, BAR('G2', 'G3'))]
pin = pins(*srounds, *sbars, (63 - LA_F, stamp('s59') + BAR('G4', 'b1w', *([] if OPT['bsa'] & 1 else ['G5'])) + stamp('b2')))
OPT['dsp'] = DSP
P += weave(fine('S', S_items, 3), fill, pin, 0, 62 - LA_F)

Q = FACC[1]
V = lambda t: SRE + t if t % 2 == 0 else SIM + t - 1
AGR, AGI = VRS, t3
fill = []
coef = []
for q in range(8):
    for h in range(2):
        r = 2 * q + h
        fill += L(f"""v_mul_f32 v{TT + 2 * h}, v{SRE + r}, v{CR}
            v_mul_f32 v{TT + 2 * h + 1}, v{SRE + r}, v{NCI}
            v_fmac_f32 v{TT + 2 * h}, v{SIM + r}, v{NCI}
            v_fmac_f32 v{TT + 2 * h + 1}, v{SIM + r}, v{NCR}""")
    for h in range(2):
        r = 2 * q + h
        fill += L(f"""v_mul_f32 v{V(r)}, v{TT + 2 * h}, v{Q + r}
            v_mul_f32 v{V(r) + 1}, v{TT + 2 * h + 1}, v{Q + r}""")
    coef.append(fill)
    fill = []
step = lambda d, p, c: L(f"""v_pk_fma_f32 {vr(d, 2)}, {vr(p, 2)}, {vr(LR, 2)}, {vr(c, 2)} op_sel_hi:[1,0,1]
    v_pk_fma_f32 {vr(d, 2)}, {vr(p, 2)}, {vr(NLI, 2)}, {vr(d, 2)} op_sel:[1,0,0] op_sel_hi:[0,1,1]""")
horner = [step(AGR if r & 1 else TT + 4, V(0) if r == 1 else (TT + 4 if r & 1 else AGR), V(r)) for r in range(1, 16)]
fill = fetch(seg=t1) + fill + (L('s_mov_b32 s19, s3') if OPT['dbg'] else []) + L(f's_mov_b32 s{sKC[0]}, {M2LN2:#x}')
fill.append(I(f'ds_write_b64 v{t1}, {vr(AGR, 2)} offset:{7 * 256}', tok='segw'))
frounds = [(1, rg(8)), (12, rg(9))] if OPT['sch'] == 1 else [(1, rg(9)), (12, rg(10))] if OPT['sch'] == 2 else \
    [(0, rg(9)), (OPT['g10'], rg(10)), (2 * OPT['g10'], rg(11))]
staged_names = list(STAGE)
abars = [(7 - LA_F, BAR('G5'))] if OPT['bsa'] & 1 else []
abars += [(15 - LA_F, BAR('G6')), (23 - LA_F, BAR('G7'))] if OPT['bsa'] & 2 else [(15 - LA_F, BAR('G6', 'G7'))]
pin = pins(*frounds, *abars, (31, BAR('segw')),
           *[(22, stage_load(n)) for n in staged_names[:1]])
if 0 <= OPT['pfat'] < 32:
    pin.setdefault(OPT['pfat'], []).extend(pf)
NB = OPT['nb0']
per = 8 // NB
plan = [(1, [], [])]
for n in range(NB):
    lo, hi = max(2 * per * n - 1, 0), 2 * per * (n + 1) - 1
    plan.append((1 + (n + 1) * 28 // NB, sum(coef[per * n:per * (n + 1)], []), sum(horner[lo:hi], [])))
P += staged(fine('F0', F_items[0], 3), pin, plan + [(30, fill, []), (31, [], [])])
P += stamp('F0')

E = ASc[0]
R0, R1, T0_, T1_ = TT + 8, TT + 12, ASc[0], ASc[2]
h0, h1 = mish_stages(0, 0), mish_stages(0, 1)
rd = lambda dst, k: I(f'ds_read2_b64 {vr(dst, 4)}, v{t1} offset0:{32 * k} offset1:{32 * k + 32}')
publish = cmul_add(E, E + 2, L16R, L16I, PR, PI, AGR, AGI) + fetch(pub=t1) + L(f"""v_mov_b32 v{E + 1}, s{sTAG}
    v_mov_b32 v{E + 3}, s{sTAG}
    buffer_store_dwordx4 {vr(E, 4)}, v{t1}, {srd(sWS)}, 0 offen sc1""")
frounds = [(0, rg(10)), (8, rg(11))] if OPT['sch'] == 1 else [(0, rg(11))] if OPT['sch'] == 2 else []
pin = pins(*frounds, (OPT['wa0'], rw('WA0')), (31 - LA_F, BAR('G8', 'G9', *([] if OPT['bsb'] else ['G10', 'G11']))),
           *zip((8, 24), map(stage_load, staged_names[1:3])))
if OPT['pfat'] >= 32:
    pin.setdefault(OPT['pfat'] - 32, []).extend(fetch(pfa=FAd) + L(pf[0].text.replace(f'v{PI}', f'v{FAd}')))
GA = [int(x) for x in str(OPT['stg1']).split('.')]
P += staged(fine('F0', F_items[1], 3), pin, [
    (GA[0], [rd(R0, 0), rd(R1, 2)] + h0['rd'], h0['A']),
    (GA[1], h0['ex'], cmul_pk(PR, L16R, R0, R0 + 2) + cmul_pk(T0_, L16R, PR, R1) + cmul_pk(PR, L16R, T0_, R1 + 2) + h0['B']),
    (GA[2], [rd(R0, 4), I(f'ds_read_b64 {vr(R1, 2)}, v{t1} offset:{6 * 256}')] + h0['rc'],
     cmul_pk(T0_, L16R, PR, R0) + cmul_pk(T1_, L16R, T0_, R0 + 2) + cmul_pk(PR, L16R, T1_, R1) + h0['C']),
    (GA[3], h1['rd'] + publish + h0['fin'], h1['A']),
    (GA[4], h1['ex'], h1['B']),
    (GA[5], h1['rc'], h1['C']),
    (31, h1['fin'], [])])
P += stamp('F1')

LBA = [CR, NCI]
LBE = [NCR, L16R]
LBD = [ASc[0], QG[0]]
FLV = L16I
lb_loads = '\n'.join(f'buffer_load_dwordx4 {vr(LBD[e], 4)}, v{LBA[e]}, {srd(sWS)}, 0 offen sc1' for e in range(2))
lb_setup = fetch(lba0=LBA[0], lba1=LBA[1], lbe0=LBE[0], lbe1=LBE[1])


def flag_store(stage, toks):
    out = [Wait(*toks), I(f'buffer_store_dword v{FLV}, v{FLA}, {srd(sWS)}, 0 offen offset:{128 * stage} sc1')]
    if OPT['ppf']:
        so = (sFST[0], sSST, sFST[2])[stage]
        vpf = L128R if stage else t3
        out = [I(f'v_lshlrev_b32 v{vpf}, {6 if stage < 2 else "s%d" % sSEL[1]}, v{vL}')] + out
        out.append(I(f'buffer_load_dword a{60 + (stage & 1)}, v{vpf}, {srd(sWS)}, s{so} offen sc1'))
    return out


def flag_load(stage):
    return f'buffer_load_dword v{t3}, v{FLP}, {srd(sWS)}, 0 offen offset:{128 * stage} sc1'


flag_check = f'v_cmp_ne_u32 vcc, s{sTAG}, v{t3}'
lb_check = f"""v_bitop3_b32 v{t0}, v{LBD[0] + 1}, v{LBD[0] + 3}, v{LBE[0]} bitop3:0x7e
    v_bitop3_b32 v{t1}, v{LBD[1] + 1}, v{LBD[1] + 3}, v{LBE[1]} bitop3:0x7e
    v_or_b32 v{t0}, v{t0}, v{t1}
    v_cmp_ne_u32 vcc, 0, v{t0}"""
lb_part = stamp('lb0') + poll('lb', lb_loads, lb_check) + stamp('lb1')
lb_part += cmul_add(LBD[0] + 1, LBD[0] + 3, L128R, L128I, LBD[0], LBD[0] + 2, LBD[1], LBD[1] + 2)
lb_part += cmul_add(LBD[1], LBD[1] + 1, WR, WI, LBD[0] + 1, LBD[0] + 3)
lb_part += fetch(lbw=t1)
lb_part.append(I(f'ds_write_b64 v{t1}, {vr(LBD[1], 2)}', tok='lbw'))
HW, HR, HB = ASc[0], ASc[1], FACC[1]
HW2, HR2 = WR, WI
tail_addr = fetch(lbr=ASc[3], fla=FLA, flp=FLP) + L(f'v_mov_b32 v{FLV}, s{sTAG}')
lb_reads = [I(f'ds_read2_b64 {vr(HB + 4 * q, 4)}, v{ASc[3]} offset0:{64 * q} offset1:{64 * q + 32}') for q in range(4)]
scan = [I(f'v_pk_add_f32 {vr(HB + a, 2)}, {vr(HB + a, 2)}, {vr(HB + b_, 2)}')
        for a, b_ in ((0, 2), (4, 6), (8, 10), (12, 14), (0, 4), (8, 12), (0, 8))]
scan += cmul_add(L128R, L128I, LSR, LSI, HB, HB + 1, PR, PI)
pack = lambda q: L(f"""v_cvt_pk_bf16_f32 v{SRE + q}, v{V(2 * q)}, v{V(2 * q + 1)}
    v_cvt_pk_bf16_f32 v{SIM + q}, v{V(2 * q) + 1}, v{V(2 * q + 1) + 1}""")
for r in range(16):
    prev = vr(L128R if r == 0 else V(r - 1), 2)
    scan += L(f"""v_pk_fma_f32 {vr(V(r), 2)}, {prev}, {vr(LR, 2)}, {vr(V(r), 2)} op_sel_hi:[1,0,1]
        v_pk_fma_f32 {vr(V(r), 2)}, {prev}, {vr(NLI, 2)}, {vr(V(r), 2)} op_sel:[1,0,0] op_sel_hi:[0,1,1]""")
    if r >= 2 and r % 2 == 0 and OPT['pk_in']:
        scan += pack(r // 2 - 1)
HRS = AS
transp = fetch(hw=HW, hw2=HW2, hr=HRS[0]) + [I(f'v_xor_b32 v{HRS[n]}, {16 * n}, v{HRS[0]}') for n in (1, 2, 3)] + sum((pack(q) for q in range(7 if OPT['pk_in'] else 0, 8)), [])
for ri in range(2):
    transp += [I(f'ds_write_b128 v{(HW, HW2)[h]}, {vr((SRE, SIM)[ri] + 4 * h, 4)}') for h in range(2)]
    for fr in range(2):
        for u in range(2):
            transp.append(I(f'ds_read_b64_tr_b16 {ar(aOS + 8 * ri + 4 * fr + 2 * u, 2)}, v{HRS[2 * u + fr]} offset:{256 * u}'))
stH = [I(f'buffer_store_dwordx4 {ar(aOS + 4 * q, 4)}, v{VL16}, {srd(sWS)}, s{sSST} offen offset:{1024 * q} sc1',
         tok='stH' if q == 3 else None) for q in range(4)]
h0, h1 = mish_stages(1, 0), mish_stages(1, 1)
g0, g1 = mish_stages(2, 0), mish_stages(2, 1)
pin = pins((0, rw('CR0')), (8, rw('CI0')), (18, rw('WA1')), *([(15 - LA_F, BAR('G10', 'G11'))] if OPT['bsb'] else []), (29, BAR('lbw') + lb_reads + g0['rd'] + g1['rd']), (OPT['lbl'], L(lb_loads)),
           *[(25, stage_load(n)) for n in staged_names[3:4]])
GB = [int(x) for x in str(OPT['stg2']).split('.')]
P += staged(fine('F2', F_items[2], 2), pin, [
    (GB[0], h0['rd'] + h1['rd'] + lb_setup, h0['A']),
    (GB[1], h0['ex'], h0['B'] + h1['A']),
    (GB[2], h0['rc'] + h1['ex'], h0['C'] + h1['B']),
    (GB[3], h0['fin'] + h1['rc'], h1['C']),
    (28, h1['fin'] + lb_part + tail_addr, []),
    (31, [], [])])
P += stamp('F2')
burst = scan + g0['A']
if OPT['fas'] < 0:
    burst = burst[:OPT['fas']] + flag_store(0, ['stF0', 'stF1']) + burst[OPT['fas']:]
if OPT['fine'] == 'T':
    for n in range(len(burst) - 12, 0, -12):
        burst = burst[:n] + stamp(f'g{n}') + burst[n:]
P += burst
P += stamp('scan')


FP0, CP0, FPc = [NLI, LI, LR, CR], [NCI, NCR], QG
PA = OPT['pa']
p3_setup = fetch(fp0=FP0[0], fp1=CP0[0], f3o=ASc[2]) + [I(f'v_xor_b32 v{FP0[n]}, {32 * n}, v{FP0[0]}') for n in (1, 2, 3)]
p3_setup.append(I(f'v_xor_b32 v{CP0[1]}, 64, v{CP0[0]}'))
hs = OPT['hs']
lead = [i_ for i_ in transp if i_.kind != 'ds']
tds = transp[len(lead):]
P += lead
tpins = [(0, tds[0:1]), (1, tds[1:2]), (2, tds[2:4]), (3, tds[4:6]), (4, tds[6:7]), (5, tds[7:8] + stH[0:1]),
         (6, tds[8:10]), (7, tds[10:12] + stH[1:2]), (7 + hs, stH[2:3]), (7 + 2 * hs, stH[3:4])]

steps = ([('WA0', x, 'own') for x in range(4)]
         + [(n, x, 'own') for n in ('CR0', 'CI0') for x in range(2)]
         + [(f'WA{e}', x, 'A') for e in (1, 2, 3) for x in range(4)]
         + [(n, x, 'H') for n in ('CR0', 'CI0') for x in (2, 3)]
         + [(n, x, 'H') for n in ('CR1', 'CI1') for x in range(4)]
         + [('WB0', x, 'own') for x in range(4)]
         + [(f'WB{e}', x, 'B') for e in (1, 2) for x in range(4)])
deferred = [k for k, st in enumerate(steps) if st[2] != 'own']
A_REGS = ([192 + 4 * n for n in range(16)] + [SRE + 4 * n for n in range(8)]
          + [FACC[0] + 4 * n for n in range(4)] + [TT + 4 * n for n in range(4)])
ACC = [128, 144, 160, 176]
cur_addr = {}


def a_frag(k):
    name, x, src = steps[k]
    if src != 'own':
        return vr(A_REGS[deferred.index(k)], 4)
    if name == 'WA0':
        return ar(aOF + 4 * x, 4)
    if name == 'WB0':
        return ar(aOF + 16 + 4 * x, 4) if x < 2 else vr(FACC[1] + 4 * (x - 2), 4)
    return ar(aOS + 8 * (name[1] == 'I') + 4 * x, 4)


def a_load(k):
    name, x, src = steps[k]
    e = int(name[2])
    if name[0] == 'C':
        so, off = sAO['H'][2 * e + (x >> 1)], 2048 * (name[1] == 'I') + 1024 * (x & 1)
    else:
        so, off = sAO[name[1]][e], 1024 * x
    return [I(f'buffer_load_dwordx4 {a_frag(k)}, v{VL16}, {srd(sWS)}, s{so} offen offset:{off} sc1')]


pin = pins((PA, rw2('WA2')), (PA + 8, BAR()), (PA + 9, rw2('WA3')), (PA + 17, BAR()), (PA + 18, rw2('CR1')),
           (OPT['fal'], L(flag_load(0))), (30, BAR('WA0', 'CR0', 'CI0', 'WA1')), *tpins)
if OPT['fhs'] >= 0:
    pin.setdefault(OPT['fhs'], []).extend(flag_store(1, ['stH']))
if OPT['fas'] >= 0:
    pin.setdefault(OPT['fas'], []).extend(flag_store(0, ['stF0', 'stF1']))
m3 = mish_pk(3, ASc[2])
GC = [int(x) for x in str(OPT['stg3']).split('.')]
P += staged(fine('F3', F_items[3], 2), pin, [
    (GC[0], g0['ex'], g0['B'] + g1['A']),
    (GC[1], g0['rc'] + g1['ex'], g0['C'] + g1['B']),
    (GC[2], g0['fin'] + g1['rc'], g1['C']),
    (29, g1['fin'][:4] + m3[:4] + g1['fin'][4:] + p3_setup, []),
    (31, [], [])])
P += stamp('F3')

m3 = m3[4:]
st0 = 40
early = sum((a_load(k) for k in range(8, 8 + OPT['nea'])), [])
if not OPT['ovl']:
    fac = st0 - OPT['fac']
    TAIL0 = len(P)
    P += m3[:fac] + (flag_store(1, ['stH']) if OPT['fhs'] == -1 and not OPT['fhp'] else [])
    P += stamp('fa0') + poll('fa', flag_load(0), flag_check) + stamp('fa1')
    tl = merge(m3[fac:st0], early) + (flag_store(1, ['stH']) if OPT['fhp'] else []) + m3[st0:]
    TAIL1 = len(P) + len(tl) - len(m3) + st0
    if OPT['fine'] == 'T':
        for n in range(len(tl) - 12, 0, -12):
            tl = tl[:n] + stamp(f'gt{n}') + tl[n:]
    P += tl
    P += stamp('tail')

XE, ME = 192, LSR
ep_setup = L(f"""v_lshrrev_b32 v{t1}, 5, v{vL}
    s_lshl_b32 s{sT2}, s{sW}, 8
    s_add_u32 s{sT2}, s{sT2}, {T_STAT}
    v_lshl_add_u32 v{VLN2}, v{t1}, 4, s{sT2}
    v_lshlrev_b32 v{FA0}, 13, v{t1}
    v_and_b32 v{t0}, 31, v{vL}
    v_lshl_add_u32 v{FA0}, v{t0}, 2, v{FA0}""")
VL4 = ASc[0]
ep_setup = L(f'v_lshlrev_b32 v{VL4}, 2, v{vL}') + ep_setup
base_calc = [I(f'v_accvgpr_read_b32 v{RL2}, a{aXE + 16}')]
for qt in range(4):
    base_calc += [I(f'ds_read_b128 {vr(ME, 4)}, v{VLN2} offset:{4 * ROW(4 * qt)}', hoist=True),
                  I(f'ds_read_b128 {vr(ME + 4, 4)}, v{VLN2} offset:{128 + 4 * ROW(4 * qt)}', hoist=True)]
    rs = range(4)
    base_calc += [I(f'v_accvgpr_read_b32 v{XE + 4 * qt + r}, a{aXE + 4 * qt + r}') for r in rs]
    base_calc += [I(f'v_sub_f32 v{ME + r}, v{XE + 4 * qt + r}, v{ME + r}') for r in rs]
    base_calc += [I(f'v_mul_f32 v{ME + r}, v{ME + r}, v{ME + 4 + r}') for r in rs]
    base_calc += [I(f'v_fmac_f32 v{XE + 4 * qt + r}, v{ME + r}, v{RL2}') for r in rs]

def checksum(dst, src, last):
    return [f'v_bitop3_b32 v{dst}, v{src}, v{src + 1}, {last} bitop3:0x96'] + \
           [f'v_bitop3_b32 v{dst}, v{src + e}, v{src + e + 1}, v{dst} bitop3:0x96' for e in (2, 4, 6)]


def send(b):
    A = ACC[b]
    out = []
    for q in range(2):
        out += [I(f'v_cvt_pk_bf16_f32 v{A + e}, v{A + 2 * e}, v{A + 2 * e + 1}') for e in range(4 * q, 4 * q + 4)]
        out.append(I(f'buffer_store_dwordx4 {vr(A + 4 * q, 4)}, v{VL16}, {srd(sWS)}, s{sXO[b]} offen '
                     f'offset:{1024 * q} sc1'))
    out += [I(c) for c in checksum(A + 8, A, f's{sTAG}')]
    out.append(I(f'buffer_store_dword v{A + 8}, v{VL4}, {srd(sWS)}, s{sXO[b]} offen offset:2048 sc1'))
    return out


def w_read1(k, b, dst):
    name, x, src = steps[k]
    slot = W_SLOT[name]
    out = []

    def address(cur, base):
        if slot < 4:
            return base, slot * SLOT
        if not 0 <= slot - cur_addr.get(cur, -9) < 4:
            cur_addr[cur] = 4 if slot == 4 else 5
            out.append(I(f'v_add_u32 v{cur}, {cur_addr[cur] * SLOT}, v{base}'))
        return cur, (slot - cur_addr[cur]) * SLOT

    if name[0] == 'C':
        a, off = address(AS[x >> 1], CP0[x >> 1])
        return out + [I(f'ds_read_b128 {ar(dst, 4)}, v{a} offset:{off + 4096 * b + 2048 * (x & 1)}', lds_r=slot)]
    var = 2 * (b & 1) + (x & 1)
    a, off = address(FPc[var], FP0[var])
    return out + [I(f'ds_read_b64_tr_b16 {ar(dst + 2 * u, 2)}, v{a} '
                    f'offset:{off + 8192 * (x >> 1) + 4096 * (b >> 1) + 1024 * u}', lds_r=slot) for u in range(2)]


RX = {1: ACC[1], 2: ACC[2], 3: ACC[3]}


def recv(b):
    so = sXO[0] if b == 1 else sSEL[b]
    rl = [f'buffer_load_dwordx4 {vr(RX[b] + 4 * q, 4)}, v{VL16}, {srd(sWS)}, s{so} offen offset:{1024 * q} sc1' for q in range(2)]
    rl.append(f'buffer_load_dword v{RX[b] + 8}, v{VL4}, {srd(sWS)}, s{so} offen offset:2048 sc1')
    return '\n'.join(rl)


pre = L(f"""s_lshl_b32 s{sXB}, s{sXB}, 1
    s_mov_b32 s{sKC[0]}, 0x00003f80
    s_mov_b32 s{sKC[1]}, 0x3f800000""")
E3 = OPT['e3']
D0 = OPT['d0']
seq = [(k, b) for k in range(D0) for b in (1, 2, 3, 0)] + [(k, b) for k in range(D0, E3) for b in (1, 2, 3)]
seq += [(k, b) for k in range(E3, 36) for b in (1, 2)]
seq += [(k, b) for b in (1, 2) for k in range(36, 44)]
own8 = [(k, 0) for k in range(8, 12)]
seq += (own8 if OPT['o8'] else []) + [(k, 3) for k in range(E3, 44)] + ([] if OPT['o8'] else own8)
seq += [(k, 0) for k in list(range(D0, 8)) + list(range(12, 44))]
at = {kb: n for n, kb in enumerate(seq)}
done_at = {b: at[43, b] for b in (1, 2, 3)}
KEEP = {(k, 0): aWO + 4 * (k - 8) for k in range(8, 12)}
KEEP.update({(k, 0): aWO + 16 + 4 * k for k in range(D0, 4)})
reads = sorted((kb for kb in seq), key=lambda kb: at[kb[0], 3] + 0.5 if kb in KEEP else at[kb])
RING = 12
where, nring = {}, 0
for kb in reads:
    if kb in KEEP:
        where[kb] = KEEP[kb]
    else:
        where[kb] = aP + 4 * (nring % RING)
        nring += 1
LA_J = OPT['laj']
items = []
rd = 0
seen = set()
for n, (k, b) in enumerate(seq):
    pre_rd = []
    while rd < len(reads) and (at[reads[rd][0], 3] if reads[rd] in KEEP else at[reads[rd]]) <= n + LA_J:
        pre_rd += w_read1(*reads[rd], where[reads[rd]])
        rd += 1
    mm = []
    for a in range(2):
        d = vr(ACC[b] + 8 * a + 4 * (k & 1), 4)
        mm.append(I(f'v_mfma_f32_16x16x32_bf16 {d}, {a_frag((k & ~1) + a)}, {ar(where[k, b], 4)}, '
                    f'{d if (b, k & 1) in seen else 0}'))
    seen.add((b, k & 1))
    if n == 0:
        if OPT['ovl']:
            k_ = max(n_ for n_, i_ in enumerate(P) if i_.kind == 'barrier') + 1
            P = P[:k_] + pre_rd + P[k_:]
        elif OPT['wmix']:
            end = len(P) - (PROF in (1, 2)) - 10
            P = P[:TAIL1] + merge(P[TAIL1:end], pre_rd) + P[end:]
        else:
            P = P[:TAIL0] + pre_rd + P[TAIL0:]
        pre_rd = []
    nds = [n_ for n_, i_ in enumerate(pre_rd) if i_.kind == 'ds']
    half = nds[len(nds) // 2] if OPT['bal'] and len(nds) > 1 else len(pre_rd)
    items.append([mm[0]] + pre_rd[:half] + [mm[1]] + pre_rd[half:])
pin = {n: [] for n in range(len(items))}
B1 = at[4, 1] + 2
pin[B1] += BAR('WA2')
pin[at[16, 1] - LA_J - 1] += [Wait('WA3', 'CR1', 'CI1'), I('s_barrier')]
pin[at[32, 1] - LA_J - 1] += [Wait('WB0', 'WB1', 'WB2'), I('s_barrier')]
if OPT['fhs'] < -1:
    pin[-OPT['fhs']] += flag_store(1, ['stH'])
if OPT['fhl'] >= 0:
    pin[OPT['fhl']] += L(flag_load(1))
pin[OPT['fhc']] += stamp('fh0') + poll('fh', flag_load(1), flag_check) + stamp('fh1')
pin[OPT['fls']] += flag_store(2, ['stF3', 'stF2'])
pin[OPT['fll']] += L(flag_load(2))
pin[OPT['flc']] += stamp('fl0') + poll('fl', flag_load(2), flag_check) + stamp('fl1')
pin[at[36, 1] - 1] += stamp('k36')
for name, gap in (('CI1', 1), ('WB0', 19), ('WB1', 24), ('WB2', at[16, 1] - LA_J)):
    if name in STAGE:
        for n, i_ in enumerate(stage_write(name)):
            pin[gap + max(n - 2, 0)].append(i_)
_rw = rw
rw = lambda name: [] if name in STAGE else _rw(name)
queue = []
if OPT['ovl']:
    pin[OPT['ofa']] += stamp('fa0') + poll('fa', flag_load(0), flag_check) + stamp('fa1')
    queue += [(OPT['ofa'], a_load(k)) for k in range(8, 8 + OPT['nea'])]
queue += [(OPT['q0'], a_load(k)) for k in range(8 + OPT['nea'], 16)] + [(0, rw('CI1'))]
queue += [(OPT['q0'], a_load(k)) for k in range(max(16, 8 + OPT['nea']), 20)]
if OPT['qord'] == 0:
    queue += [(B1 + 1, rw('WB0'))] + [(OPT['fhc'], a_load(k)) for k in range(20, 32)] + [(B1 + 1, rw('WB1'))]
elif OPT['qord'] == 1:
    queue += [(B1 + 1, rw('WB0')), (B1 + 1, rw('WB1'))] + [(OPT['fhc'], a_load(k)) for k in range(20, 32)]
else:
    queue += [(OPT['fhc'], a_load(k)) for k in range(20, 24)] + [(B1 + 1, rw('WB0')), (B1 + 1, rw('WB1'))]
    queue += [(0, a_load(k)) for k in range(24, 32)]
queue += [(at[16, 1] - LA_J, rw('WB2'))]
queue += [(OPT['flc'], a_load(k)) for k in range(36, 44)]
n = 0.0
for first_gap, ins in queue:
    n = max(n, first_gap)
    pend = []
    for i_ in ins:
        pend.append(i_)
        if i_.kind == 'vm':
            pin[int(n)] += pend
            pend = []
            n += OPT['pace'] / 10
for b in (1, 2, 3):
    sd = send(b)
    for q in range(4):
        pin[done_at[b] + 3 + q] += sd[q * len(sd) // 4:(q + 1) * len(sd) // 4]
    pin[done_at[min(b + 1, 3) if b < 3 else 3] + OPT[f'r{b}'] if b != 2 else done_at[2] + OPT['r2']] += L(recv(b))
pin[done_at[2] + 6] += stamp('s12')
pin[done_at[3] + 6] += stamp('sent')
items = fine('P3', items[:OPT['fn'] * 27], OPT['fn']) + items[OPT['fn'] * 27:]
LEV[0] = OPT['lev3']
sub = lambda lo, hi: {n - lo: pin[n] for n in range(lo, hi)}
unit_weave = weave


def weave(its, fill_, pin_, lo=0, hi=None):
    if not OPT['fineg']:
        return unit_weave(its, fill_, pin_, lo, hi)
    flat, pin2 = [], {}
    for n, it in enumerate(its):
        cut_ = max(k_ for k_, i_ in enumerate(it) if i_.kind == 'mfma')
        flat += [it[:cut_], it[cut_:]]
        ordered = any(i_.kind in ('barrier', 'pseudo', 'label') for i_ in pin_.get(n, []))
        first = len(flat[-2]) < len(flat[-1]) and not ordered
        pin2[2 * n + (0 if first else 1)] = pin_.get(n, [])
    return unit_weave(flat, fill_, pin2, 2 * lo, None if hi is None else 2 * hi + 1)


c1, c2 = at[32, 1], at[11, 0] + 1
if OPT['ovl']:
    GD = [int(x) for x in str(OPT['stg4']).split('.')]
    both = lambda lo, hi: m3[lo:hi] + m3[40 + lo:40 + hi]
    P += staged(items[:c1], pin, [(GD[0], [], both(0, 4)), (GD[1], both(4, 12), both(12, 20)),
                                  (GD[2], both(20, 28), both(28, 36)),
                                  (GD[3], both(36, 40) + m3[80:] + stamp('tail'), []), (c1 - 1, [], [])])
else:
    P += weave(items[:c1], [], sub(0, c1))
P += weave(items[c1:c2], ep_setup + pre, sub(c1, c2), 0, 6)
SWAPS = lambda R: [I(f'v_permlane16_swap_b32 v{R + 8 * a + r}, v{R + 8 * a + 4 + r}') for a in range(2) for r in range(4)]
base_calc += SWAPS(XE)


def rx_check(b):
    chk = checksum(RX[b] + 9, RX[b], f'v{RX[b] + 8}') + [f'v_cmp_ne_u32 vcc, s{sTAG}, v{RX[b] + 9}']
    return poll(f'rx{b}', '\n'.join(recv(x) for x in range(b, 4 if OPT['rxall'] else b + 1)), '\n'.join(chk))


EARLY = range(1, 1 + OPT['rxe'])
for b in EARLY:
    base_calc += rx_check(b)
    for q in range(8):
        u = RX[b] + 10 + 2 * (q & 1)
        base_calc += L(f"""v_lshlrev_b32 v{u}, 16, v{RX[b] + q}
            v_and_b32 v{u + 1}, 0xffff0000, v{RX[b] + q}
            v_add_f32 v{XE + 2 * q}, v{XE + 2 * q}, v{u}
            v_add_f32 v{XE + 2 * q + 1}, v{XE + 2 * q + 1}, v{u + 1}""")
P += weave(items[c2:], base_calc, sub(c2, len(items)), 3, len(items) - c2 - (3 if OPT['rxe'] else 6))
P += stamp('own')
A0 = ACC[0]
for q in range(8):
    P.append(I(f'v_pk_add_f32 {vr(A0 + 2 * q, 2)}, {vr(A0 + 2 * q, 2)}, {vr(XE + 2 * q, 2)}'))
LATE = [b for b in (1, 2, 3) if b not in EARLY]
for b in LATE:
    P += rx_check(b)
    if OPT['seqadd'] and b < 3:
        P += [I(f'v_dot2c_f32_bf16 v{A0 + 2 * q + h}, s{sKC[h]}, v{RX[b] + q}') for q in range(8) for h in range(2)]
if OPT['seqadd']:
    LATE = [3]
P += stamp('rx')
sts = []
for a in range(2):
    for q in range(4 * a, 4 * a + 4):
        for b in LATE:
            P += [I(f'v_dot2c_f32_bf16 v{A0 + 2 * q + h}, s{sKC[h]}, v{RX[b] + q}') for h in range(2)]
        P += sts[3 * (q & 3):3 * (q & 3) + 3]
    P += SWAPS(A0)[4 * a:4 * a + 4]
    sts = []
    for q in range(4 * a, 4 * a + 4):
        sts.append(I(f's_add_u32 s{sBB}, s{sXB}, {2048 * ROW(2 * q)}'))
        sts += [I(f'buffer_store_dword v{A0 + 2 * q + h}, v{FA0}, {srd(sOUT)}, s{sBB} offen offset:{2048 * h} '
                  f'{OPT["out_flags"].replace("+", " ")}') for h in range(2)]
P += L(f"""s_lshl_b32 s{sT2}, s{sJ}, 2
    s_add_u32 s{sT2}, s{sT2}, s{sW}
    s_xor_b32 s{sT1}, s{sI}, 15
    s_or_b32 s{sT2}, s{sT2}, s{sT1}
    s_cmp_eq_u32 s{sT2}, 0
    s_cselect_b32 s{sT2}, {WS_EP}, {OOB:#x}
    v_mov_b32 v{t0}, s{sE2}
    v_mov_b32 v{t1}, s{sT2}""") + sts + L(f'buffer_store_dword v{t0}, v{t1}, {srd(sWS)}, 0 offen')
if OPT['diag']:
    P += stamp('end') + L("""s_memrealtime s[6:7]
        s_waitcnt lgkmcnt(0)
        s_sub_u32 s4, s4, s23
        s_lshl_b32 s4, s4, 2
        s_min_u32 s4, s4, 20000
        L_diag:
        s_memrealtime s[0:1]
        s_waitcnt lgkmcnt(0)
        s_sub_u32 s0, s0, s6
        s_cmp_lt_u32 s0, s4
        s_cbranch_scc1 L_diag""")
if OPT['dbg']:
    P += L(f"""s_memrealtime s[6:7]
        s_mov_b32 s{sTMP}, s4
        s_mov_b32 s{sTMP + 1}, s5
        s_mov_b32 s{sTMP + 2}, 256
        v_lshlrev_b32 v{t0}, 2, v{vL}
        v_lshrrev_b32 v{t1}, v{t0}, s23
        v_and_b32 v{t1}, 15, v{t1}
        v_min_u32 v{t1}, 1, v{t1}
        v_mov_b32 v{t2}, {OOB:#x}
        v_cmp_gt_u32 vcc, 7, v{vL}
        s_waitcnt lgkmcnt(0)
        v_cndmask_b32 v{t0}, v{t2}, v{t0}, vcc
        buffer_atomic_add v{t1}, v{t0}, {srd(sTMP)}, 0 offen
        s_sub_u32 s6, s6, s19
        v_mov_b32 v{t1}, s6
        v_cmp_eq_u32 vcc, 8, v{vL}
        v_lshlrev_b32 v{t0}, 2, v{vL}
        s_nop 0
        v_cndmask_b32 v{t0}, v{t2}, v{t0}, vcc
        buffer_atomic_umax v{t1}, v{t0}, {srd(sTMP)}, 0 offen""")
if PROF:
    P += stamp('end')
    P += L(f"""s_waitcnt vmcnt(0)
        s_memrealtime s[0:1]
        s_lshl_b32 s{sT2}, s2, 2
        s_add_u32 s{sT2}, s{sT2}, s{sW}
        s_lshl_b32 s{sT2}, s{sT2}, 7
        s_add_u32 s{sT2}, s{sT2}, {WS_PROF}
        v_mov_b32 v{t1}, s{sT2}
        s_waitcnt lgkmcnt(0)
        v_mov_b32 v{t0}, s0
        buffer_store_dword v{t0}, v{t1}, {srd(sWS)}, 0 offen offset:124
        v_mov_b32 v{t2}, s23
        buffer_store_dword v{t2}, v{t1}, {srd(sWS)}, 0 offen offset:112
        buffer_store_dword a254, v{t1}, {srd(sWS)}, 0 offen offset:116
        buffer_store_dword a255, v{t1}, {srd(sWS)}, 0 offen offset:120""")
    P += stamp('DUMP')
P += [I('L_end:'), I('s_endpgm')]

P = resolve_stamps(P)
if OPT['split']:
    P = split_ds_pairs(P)
if OPT['hoist']:
    P = hoist_reads(P, OPT['hoist'])
body = pad_hazards(insert_waits(P, OPT['age']))
check_polls(body)
tail = []
for name, loads, check in retry_blocks:
    blk = [I(f'L_retry_{name}:'), I(f's_mov_b32 s3, {OPT["spin"]}'), I(f'L_spin_{name}:')]
    if PROF or OPT['dbg']:
        blk.append(I(f's_add_u32 s23, s23, {1 << (4 * retry_blocks.index((name, loads, check)))}'))
    blk += L(loads) + [I('s_waitcnt vmcnt(0)')] + L(check)
    blk += L(f'''s_cbranch_vccz L_back_{name}
        s_sub_u32 s3, s3, 1
        s_cmp_lg_u32 s3, 0
        s_cbranch_scc1 L_spin_{name}
        s_branch L_back_{name}''')
    tail += pad_hazards(blk)

hdr = open(os.path.join(os.path.dirname(os.path.abspath(__file__)), 'header.txt')).read()
text = hdr + f'''; @launch grid=(256,1,1) block=(256,1,1) lds=163840
.amdgcn_target "amdgcn-amd-amdhsa--gfx950"
.text
.globl {KN}
.p2align 8
.type {KN},@function
{KN}:
{render(body)}
{render(tail)}
L_code_end:
    s_endpgm
.section .rodata,"a"
.p2align 6
.amdhsa_kernel {KN}
  .amdhsa_next_free_vgpr 512
  .amdhsa_next_free_sgpr 102
  .amdhsa_accum_offset 256
  .amdhsa_group_segment_fixed_size 0
  .amdhsa_kernarg_size 128
  .amdhsa_user_sgpr_count 2
  .amdhsa_user_sgpr_kernarg_segment_ptr 1
  .amdhsa_system_sgpr_workgroup_id_x 1
.end_amdhsa_kernel
'''
open(sys.argv[1], 'w').write(text)
if PROF:
    open(sys.argv[1][:-2] + '.stamps', 'w').write(' '.join(stamp_names))
from collections import Counter
cnt = Counter(i.kind for i in body)
print(dict(cnt), 'nops', sum(1 for i in body if i.mn == 's_nop'))
import subprocess
chk = subprocess.run([sys.executable, 'cdna_unwritten_srd_check.py', sys.argv[1]],
                     capture_output=True, text=True)
if chk.returncode != 0:
    os.remove(sys.argv[1])
    sys.exit('address check failed: ' + chk.stdout[-600:])
```

```python
import sys, os
sys.path.insert(0, os.path.dirname(os.path.abspath(__file__)))
from asmlib import I, Wait, insert_waits, pad_hazards, render, weave, split_ds_pairs, hoist_reads, merge, level, ds_first, check_polls

KN = 'parallel_sum__ssm_conv_s5__dense_activation_mish__prompt_kernel'
OPT = dict(prof=0, spin=20000, out_flags='nt', map='8x4', pf=2, age=16, laf=5, r1=30, r2=36, r3=29, e3=12, fls=28, fll=50, flc=68, ka2=1, nstep=0, split=0, diag='', dsp=2, xel=0, tlb=0, pk_in=1, lateln=100, d0=4, o8=1, bal=0, fineg=1, xes=0, xfirst=1, parat=4, nb0=2, stg3='8.16.23', stg1='2.7.12.17.22.27', stg2='2.6.14.21', fhp=0, wmix=1, ntx=0, ntg=0, ntw=0, lbt=0, rxe=0, dspc=3, dsps=3, sch=3, g3=24, fn=2, stg=0, q0=2, pfat=24, seqadd=1, lean=1, lb2s=1, xlds=0, deep=0, back=0, cpf=1, rxall=1, dbg=0, cfs=1, bsp=2, bsa=2, bsb=0, ovl=0, ofa=0, stg4='1.9.17.21', g10=8, wa0=17, hs=2, rotj=0, rotm=0, laj=7, pace=16, lev=0, lev3=0, pa=2, fw=1, xw=0, vmc=2, fine='', fas=-10, fal=12, fac=16, nea=8, fhs=-1, fhl=12, fhc=32, qord=1, lbl=13, lbc=24, ppf=0, hoist=32)
for a in sys.argv[2:]:
    k, v = a.split('=')
    OPT[k] = int(v) if v.lstrip('-').isdigit() else v
PROF = OPT['prof']

WS_EP, WS_AG, WS_A = 0, 0x10000, 0x40000
WS_XC = WS_A + 64 * 176 * 1024
XC_BLK = 2560
WS_FL = WS_XC + 1024 * 3 * XC_BLK
WS_SIZE = WS_FL + 1024 * 512
WS_PROF = 0x1C00000
OOB = 0x7ff00000
SLOT = 16384
TB = 9 * SLOT
T_STAT, T_B1, T_SEG, T_LB, T_H = TB, TB + 1024, TB + 2048, TB + 6144, TB + 8192
LOG2E, LN2, M2LN2 = 0x3fb8aa3b, 0x3f317218, 0xbfb17218

sX, sB, sW1, sCre, sCim, sW2, sWS, sOUT, sTMP = 36, 40, 44, 48, 52, 56, 60, 64, 68
sI, sJ, sW, sROT, sTAG, sE2 = 72, 73, 74, 75, 76, 77
sKC = [78, 79, 80, 81]
sWOFF, sT0, sT1, sXB, sBB, sW1A, sW1B = 82, 83, 84, 85, 86, 87, 88
sAS = 89
sFST = [90, 91, 92, 93]
sSST, sCB, sW2B, sFSEL, sONES, sT3, sJJ, sT2 = 94, 95, 96, 97, 98, 99, 100, 101
sKQ, sPB, sXO = 22, [24, 25, 26], [27, 28, 29, 30]
sSEL = [31, 32, 33, 34]
sFLG = 35
pLRE, pLIM, pBRE, pBIM, pLDT, pDSK, pB1 = 8, 10, 12, 14, 16, 18, 20
srd = lambda b: f's[{b}:{b + 3}]'
vL, t0, t1, t2 = 0, 1, 2, 3
AS = [4, 5, 6, 7]
ASc = [8, 9, 10, 11]
XG = [12, 13, 14, 15]
PG = [16, 17, 18, 19]
QG = [20, 21, 22, 23]
FA0, FAc, RL2, VLN2, VL16, VNM, VRS, t3 = 24, 25, 26, 27, 28, 29, 30, 31
FAd = VNM
NLI, LI, LR, CR, NCI, NCR, L16R, L16I, LSR, LSI, L128R, L128I, WR, WI, PR, PI = range(32, 48)
TT = 48
FACC = [64, 80]
SRE, SIM = 96, 112
X = 128
aS, aF, aP, aOF, aOS, aWO, aXE = 0, 128, 0, 64, 88, 128, 224
STAMP_A = list(range(104, 128)) + list(range(241, 247))
vr = lambda b, n: f'v[{b}:{b + n - 1}]'
ar = lambda b, n: f'a[{b}:{b + n - 1}]'

stamp_names = []
FINE_KEEP = dict(T=['lb1', 'F2', 'scan', 'F3', 'fa0', 'fa1', 'tail', 'fh0'], S=['x7', 'c27', 'b0', 'F0'], F0=['b2', 'F0', 'F1'], F2=['F1', 'F2', 'scan'], F3=['F2', 'scan', 'F3', 'fa0', 'fa1', 'tail'],
                 P3=['tail'], L=['k36', 'sent', 'own', 'rx'])


def fine(phase, items, step):
    if OPT['fine'] == phase:
        for n in range(step - 1, len(items), step):
            items[n] = items[n] + stamp(f'g{n}')
    return items


def stamp(name):
    if PROF == 3 and name not in ('end', 'DUMP'):
        return []
    if OPT['fine'] and not name.startswith('g') and name not in FINE_KEEP[OPT['fine']] + ['end', 'DUMP']:
        return []
    if OPT['diag'] == name:
        return [I('s_memrealtime s[4:5]')]
    return [I(';stamp ' + name)] if PROF else []


def resolve_stamps(prog):
    out = []
    for ins in prog:
        if not ins.text.startswith(';stamp '):
            out.append(ins)
            continue
        name = ins.text.split()[1]
        n = len(stamp_names)
        if n:
            out.append(I(f'v_accvgpr_write_b32 a{STAMP_A[n - 1]}, s{4 + 2 * ((n - 1) & 1)}'))
        if name == 'DUMP':
            out += [I(f'buffer_store_dword a{STAMP_A[k]}, v{t1}, {srd(sWS)}, 0 offen offset:{4 * k}') for k in range(n)]
            continue
        assert n < 29
        stamp_names.append(name)
        out.append(I(f's_mem{"real" if PROF == 2 else ""}time s[{4 + 2 * (n & 1)}:{5 + 2 * (n & 1)}]'))
    return out


def L(text):
    return [I(t.strip()) for t in text.strip().split('\n') if t.strip()]


def mfma(d, a, b, c):
    return I(f'v_mfma_f32_32x32x16_bf16 {d}, {a}, {b}, {c}')


def mksrd(b, lo, size):
    return f's_mov_b32 s{b}, s{lo}\ns_mov_b32 s{b + 1}, s{lo + 1}\ns_mov_b32 s{b + 2}, {size}\ns_mov_b32 s{b + 3}, 0x00020000\n'


slot_shared = {}


def dma_round(name, slot, voffs, rsrc, soff_code, shared):
    out = [I(f's_add_u32 m0, s{sWOFF}, {slot * SLOT}')] + L(soff_code)
    for g in range(4):
        nt = int(name[1:]) < OPT['ntx'] if name[0] == 'x' else OPT['ntg'] if name[0] == 'G' else OPT['ntw']
        out.append(I(f'buffer_load_dwordx4 v{voffs[g]}, {srd(rsrc)}, s{sT0} offen offset:{1024 * g} {"nt " if nt else ""}lds',
                     tok=name if g == 3 else None,
                     lds_w=(slot, slot_shared.get(slot, False)) if g == 0 else None, note=name,
                     fills=(slot, shared) if g == 3 else None))
    slot_shared[slot] = shared
    return out


def rx(s, slot):
    return dma_round(f'x{s}', slot + 1, XG, sX,
                     f's_add_u32 s{sT0}, s{sROT}, {s}\ns_and_b32 s{sT0}, s{sT0}, 7\n'
                     f's_lshl_b32 s{sT0}, s{sT0}, 7\ns_add_u32 s{sT0}, s{sT0}, s{sXB}', False)


G_SLOT = [5, 6, 7, 8, 0, 1, 2, 3, 4, 5, 6, 7]
W_SLOT = dict(WA0=8, CR0=0, CI0=1, WA1=2, WA2=3, WA3=4, CR1=5, CI1=6, WB0=7, WB1=8, WB2=2)


def rg(g):
    if g < 4:
        return dma_round(f'G{g}', G_SLOT[g], PG, sB,
                         f's_lshl_b32 s{sT0}, s{sKC[g]}, 7\ns_add_u32 s{sT0}, s{sT0}, s{sBB}', True)
    base = sW1A if g < 8 else sW1B
    return dma_round(f'G{g}', G_SLOT[g], QG, sW1,
                     f's_mul_i32 s{sT0}, s{sKC[g & 3]}, {64 * 3584}\ns_add_u32 s{sT0}, s{sT0}, s{base}', True)


def rw(name):
    e = int(name[2])
    if name[0] == 'C':
        code = f's_xor_b32 s{sT0}, s{sCB}, {128 * e}'
        return dma_round(name, W_SLOT[name], PG, sCim if name[1] == 'I' else sCre, code, True)
    if name[1] == 'A':
        code = f's_xor_b32 s{sT0}, s{sJJ}, {e}\ns_lshl_b32 s{sT0}, s{sT0}, 17\ns_add_u32 s{sT0}, s{sT0}, s{sW2B}'
    else:
        code = f's_lshl_b32 s{sT0}, s{sPB[e]}, 16\ns_add_u32 s{sT0}, s{sT0}, s{sW2B}'
        if e == 0:
            code += f'\ns_xor_b32 s{sT0}, s{sT0}, s{sSEL[0]}'
    return dma_round(name, W_SLOT[name], XG, sW2, code, True)


STAGE = {n: 160 + 16 * k for k, n in enumerate(x for x in str(OPT['stg']).split('.') if x != '0')}
VST = t0


def stage_load(name):
    keep = dict(slot_shared)
    out = []
    for i_ in rw(name)[1:]:
        if i_.kind == 'vm':
            n = sum(j.kind == 'vm' for j in out)
            i_ = I(i_.text.replace('dwordx4 ', f'dwordx4 {ar(STAGE[name] + 4 * n, 4)}, ').replace(' lds', ''))
            i_.dma = True
        out.append(i_)
    slot_shared.clear()
    slot_shared.update(keep)
    return out


def stage_write(name):
    slot = W_SLOT[name]
    out = [I(f's_add_u32 s{sT0}, s{sWOFF}, {slot * SLOT}'), I(f'v_add_u32 v{VST}, s{sT0}, v{VL16}')]
    out += [I(f'ds_write_b128 v{VST}, {ar(STAGE[name] + 4 * g_, 4)} offset:{1024 * g_}', tok=name if g_ == 3 else None,
              lds_w=(slot, True) if g_ == 0 else None, note=name, fills=(slot, True) if g_ == 3 else None)
            for g_ in range(4)]
    return out


def rw2(name):
    if name not in STAGE:
        return rw(name)
    out = stage_write(name)
    for i_ in out[2:]:
        i_.dma = True
    return out


def pins(*parts):
    pin = {}
    for gap, ins in parts:
        head = [i_ for i_ in ins if not getattr(i_, 'dma', False)]
        pin.setdefault(gap, []).extend(head)
        for n, i_ in enumerate(ins[len(head):]):
            pin.setdefault(gap + n * OPT['dsp'], []).append(i_)
    return pin


BAR = lambda *toks: ([Wait(*toks)] if toks else []) + [I('s_barrier')]
PARK = {n: 247 if k == 16 else 48 + k for k, n in enumerate('pub seg lba0 lba1 lbe0 lbe1 fla flp lbw lbr hw hw2 hr hr2 f3o fp0 fp1'.split())}
PARK['pfa'] = 249


def park(**regs):
    return [I(f'v_accvgpr_write_b32 a{PARK[n]}, v{r}') for n, r in regs.items()]


def fetch(**regs):
    return [I(f'v_accvgpr_read_b32 v{r}, a{PARK[n]}') for n, r in regs.items()]


retry_blocks = []


def poll(name, loads, check):
    retry_blocks.append((name, loads, check))
    return L(check) + [I(f's_cbranch_vccnz L_retry_{name}'), I(f'L_back_{name}:')]


def cexp(dr, di, scale, zr, za):
    return L(f"""v_mul_f32 v{dr}, {scale}, v{zr}
        v_mul_f32 v{di}, {scale}, v{za}
        v_exp_f32 v{dr}, v{dr}
        v_fract_f32 v{di}, v{di}
        v_cos_f32 v{t3}, v{di}
        v_sin_f32 v{di}, v{di}
        v_mul_f32 v{di}, v{dr}, v{di}
        v_mul_f32 v{dr}, v{dr}, v{t3}""")


def cmul_add(dr, di, ar_, ai, br, bi, cr=None, ci=None):
    if cr is None:
        head = f'v_mul_f32 v{dr}, v{ar_}, v{br}\nv_mul_f32 v{di}, v{ar_}, v{bi}'
    else:
        head = f'v_fma_f32 v{dr}, v{ar_}, v{br}, v{cr}\nv_fma_f32 v{di}, v{ar_}, v{bi}, v{ci}'
    return L(head + f'\nv_fma_f32 v{dr}, -v{ai}, v{bi}, v{dr}\nv_fmac_f32 v{di}, v{ai}, v{br}')


def mish(b, voff=VL16, quarters=range(4)):
    A = FACC[b & 1]
    out = []
    for q in quarters:
        rs = range(4 * q, 4 * q + 4)
        out.append(I(f'ds_read_b128 {vr(TT + 4 * q, 4)}, v{t2} offset:{T_B1 - TB + 128 * b + 16 * q}', hoist=True))
        out += [I(f'v_fmac_f32 v{TT + r}, v{A + r}, v{RL2}') for r in rs]
        out += [I(f'v_exp_f32 v{A + r}, v{TT + r}') for r in rs]
        out += [I(f'v_add_f32 v{A + r}, 1.0, v{A + r}') for r in rs]
        out += [I(f'v_fma_f32 v{A + r}, v{A + r}, v{A + r}, 1.0') for r in rs]
        out += [I(f'v_rcp_f32 v{A + r}, v{A + r}') for r in rs]
        out += [I(f'v_fmamk_f32 v{A + r}, v{A + r}, {M2LN2:#x}, v{VLN2}') for r in rs]
        out += [I(f'v_mul_f32 v{TT + r}, v{TT + r}, v{A + r}') for r in rs]
        out += [I(f'v_cvt_pk_bf16_f32 v{A + p}, v{TT + 2 * p}, v{TT + 2 * p + 1}') for p in (2 * q, 2 * q + 1)]
        if q & 1:
            fr = q >> 1
            out.append(I(f'buffer_store_dwordx4 {vr(A + 4 * fr, 4)}, v{voff}, {srd(sWS)}, s{sFST[b]} offen '
                         f'offset:{1024 * fr} sc1', tok=f'stF{b}' if fr else None))
            if b < 3:
                out += [I(f'v_accvgpr_write_b32 a{aOF + 8 * b + 4 * fr + e}, v{A + 4 * fr + e}') for e in range(4)]
    return out


def mish_pk(b, voff, halves=range(2)):
    A = FACC[b & 1]
    out = []
    for q in range(2 * len(halves)):
        out.append(I(f'ds_read_b128 {vr(TT + 4 * q, 4)}, v{t2} offset:{T_B1 - TB + 128 * b + 16 * q}', hoist=True))
    for h in halves:
        ps = range(8 * h, 8 * h + 8, 2)
        rs = range(8 * h, 8 * h + 8)
        out += [I(f'v_pk_fma_f32 {vr(TT + p, 2)}, {vr(A + p, 2)}, {vr(RL2, 2)}, {vr(TT + p, 2)} op_sel_hi:[1,0,1]') for p in ps]
        out += [I(f'v_exp_f32 v{A + r}, v{TT + r}') for r in rs]
        out += [I(f'v_pk_add_f32 {vr(A + p, 2)}, {vr(A + p, 2)}, 1.0 op_sel_hi:[1,0]') for p in ps]
        out += [I(f'v_pk_fma_f32 {vr(A + p, 2)}, {vr(A + p, 2)}, {vr(A + p, 2)}, 1.0 op_sel_hi:[1,1,0]') for p in ps]
        out += [I(f'v_rcp_f32 v{A + r}, v{A + r}') for r in rs]
        out += [I(f'v_pk_fma_f32 {vr(A + p, 2)}, {vr(A + p, 2)}, s[{sKC[0]}:{sKC[1]}], {vr(RL2, 2)} '
                  f'op_sel:[0,0,1] op_sel_hi:[1,0,1]') for p in ps]
        out += [I(f'v_pk_mul_f32 {vr(TT + p, 2)}, {vr(TT + p, 2)}, {vr(A + p, 2)}') for p in ps]
        out += [I(f'v_cvt_pk_bf16_f32 v{A + p // 2}, v{TT + p}, v{TT + p + 1}') for p in ps]
    out += [I(f'v_permlane16_swap_b32 v{A + e}, v{A + 4 + e}') for e in range(4)]
    for h in range(2):
        out.append(I(f'buffer_store_dwordx4 {vr(A + 4 * h, 4)}, v{voff}, {srd(sWS)}, s{sFST[b]} offen '
                     f'offset:{1024 * h} sc1', tok=f'stF{b}' if h else None))
        if b < 3:
            out += [I(f'v_accvgpr_write_b32 a{aOF + 8 * b + 4 * h + e}, v{A + 4 * h + e}') for e in range(4)]
    return out


def mish_stages(b, h):
    m = mish_pk(b, VL16, range(2))
    body = m[4:]
    body = body[40:] if h else body[:40]
    return dict(rd=m[2 * h:2 * h + 2], A=body[0:4], ex=body[4:12], B=body[12:20], rc=body[20:28], C=body[28:36],
                fin=body[36:])


def cmul_pk(d, a, b, c):
    return L(f"""v_pk_fma_f32 {vr(d, 2)}, {vr(b, 2)}, {vr(a, 2)}, {vr(c, 2)} op_sel_hi:[1,0,1]
        v_pk_fma_f32 {vr(d, 2)}, {vr(b, 2)}, {vr(a, 2)}, {vr(d, 2)} op_sel:[1,1,0] op_sel_hi:[0,1,1] neg_lo:[0,1,0]""")


def staged(items, pin, plan):
    out, lo = [], 0
    for hi, fill_, burst_ in plan:
        out += weave(items[lo:hi + 1], fill_, {g_ - lo: v for g_, v in pin.items() if lo <= g_ <= hi}) + burst_
        lo = hi + 1
    return out


_weave = weave
LEV = [OPT['lev']]


def weave(*a):
    out = _weave(*a)
    return ds_first(level(out, LEV[0], OPT['vmc'])) if LEV[0] else out


P = []
if OPT['map'] == '8x4':
    ids = f"""s_and_b32 s{sKQ}, s2, 3
        s_bfe_u32 s{sJJ}, s2, 0x20003
        s_lshr_b32 s{sI}, s2, 5
        s_bfe_u32 s{sT0}, s2, 0x10002
        s_lshl_b32 s{sROT}, s{sT0}, 1
        s_lshl_b32 s{sT0}, s{sT0}, 3
        s_and_b32 s{sT1}, s{sI}, 1
        s_or_b32 s{sI}, s{sI}, s{sT0}
        s_add_u32 s{sROT}, s{sROT}, s{sT1}
        s_add_u32 s{sROT}, s{sROT}, s{sJJ if OPT['rotm'] else sKQ}
        s_lshl_b32 s{sROT}, s{sROT}, 1
        s_and_b32 s{sROT}, s{sROT}, 7"""
else:
    ids = f"""s_and_b32 s{sKQ}, s2, 1
        s_lshl_b32 s{sKQ}, s{sKQ}, 1
        s_lshr_b32 s{sT0}, s2, 7
        s_or_b32 s{sKQ}, s{sKQ}, s{sT0}
        s_bfe_u32 s{sJJ}, s2, 0x20003
        s_bfe_u32 s{sI}, s2, 0x20005
        s_bfe_u32 s{sT0}, s2, 0x20001
        s_add_u32 s{sROT}, s{sT0}, s{sKQ}
        s_lshl_b32 s{sT0}, s{sT0}, 2
        s_or_b32 s{sI}, s{sI}, s{sT0}
        s_lshl_b32 s{sROT}, s{sROT}, 1
        {'s_lshr_b32 s%d, s2, 7' % sT0 if OPT['rotm'] else ''}
        {'s_lshl_b32 s%d, s%d, 1' % (sROT, sJJ) if OPT['rotm'] else ''}
        {'s_add_u32 s%d, s%d, s%d' % (sROT, sROT, sT0) if OPT['rotm'] else ''}
        s_and_b32 s{sROT}, s{sROT}, 7"""
code_pf = f'buffer_load_dword v{t3}, v{FACC[0] if OPT["cpf"] == 2 else t1}, {srd(sTMP)}, s{sFLG if OPT["cpf"] == 2 else sT0} offen'
ws_load = f's_load_dwordx2 s[{sWS}:{sWS + 1}], s[0:1], 120'
more_loads = f"""s_load_dwordx8 s[{pLRE}:{pLRE + 7}], s[0:1], 8
s_load_dwordx4 s[{pLDT}:{pLDT + 3}], s[0:1], 56
s_load_dwordx2 s[{pB1}:{pB1 + 1}], s[0:1], 88
s_load_dwordx2 s[{sW1}:{sW1 + 1}], s[0:1], 80
s_load_dwordx2 s[{sCre}:{sCre + 1}], s[0:1], 40
s_load_dwordx2 s[{sCim}:{sCim + 1}], s[0:1], 48
s_load_dwordx2 s[{sW2}:{sW2 + 1}], s[0:1], 96
s_load_dwordx2 s[{sOUT}:{sOUT + 1}], s[0:1], 104
"""
SUM, SQ = [TT + 8, TT + 9], [TT + 10, TT + 11]
sizes = ((sX, 2097152), (sB, 524288), (sW1, 1835008), (sCre, 524288), (sCim, 524288), (sW2, 1835008),
         (sWS, (WS_PROF + 0x40000) if PROF else WS_SIZE), (sOUT, 4194304))
P += L(f"""
s_cmp_ge_u32 s2, 256
s_cbranch_scc1 L_end
{'s_memtime s[98:99]' if PROF else ''}
{'s_memrealtime s[90:91]' if PROF or OPT['diag'] or OPT['dbg'] else ''}
{'s_load_dwordx2 s[4:5], s[0:1], 112' if OPT['dbg'] else ''}
s_load_dwordx2 s[{sX}:{sX + 1}], s[0:1], 0
{'' if OPT['ka2'] else ws_load}
s_getpc_b64 s[{sTMP}:{sTMP + 1}]
v_lshrrev_b32 v{t0}, 6, v0
v_and_b32 v{vL}, 63, v0
s_and_b32 s{sTMP}, s{sTMP}, 0xffffff80
v_readfirstlane_b32 s{sW}, v{t0}
s_mov_b32 s{sTMP + 2}, L_code_end-{KN}
s_mov_b32 s{sTMP + 3}, 0x00020000
s_lshr_b32 s{sT0}, s2, 3
s_lshl_b32 s{sT0}, s{sT0}, 2
s_add_u32 s{sT0}, s{sT0}, s{sW}
s_lshl_b32 s{sT0}, s{sT0}, 9
v_and_b32 v{t1}, 3, v{vL}
v_lshlrev_b32 v{t1}, 7, v{t1}
{'' if OPT['cpf'] == 2 else code_pf}
{'' if OPT['ka2'] else more_loads}
v_lshrrev_b32 v{t0}, 3, v{vL}
v_lshrrev_b32 v{t1}, 4, v{vL}
v_xor_b32 v{t1}, v{t1}, v{vL}
v_and_b32 v{t1}, 7, v{t1}
v_lshlrev_b32 v{t1}, 4, v{t1}
v_lshl_add_u32 v{PG[0]}, v{t0}, 10, v{t1}
v_lshrrev_b32 v{t2}, 5, v{vL}
v_mul_u32_u24 v{t2}, {12 * 1024}, v{t2}
v_add_u32 v{XG[0]}, v{PG[0]}, v{t2}
v_xor_b32 v{XG[1]}, 64, v{XG[0]}
v_add_u32 v{XG[2]}, {6 * 1024}, v{XG[0]}
v_add_u32 v{XG[3]}, {9 * 1024}, v{XG[1]}
v_add_u32 v{XG[1]}, {3 * 1024}, v{XG[1]}
s_lshl_b32 s{sWOFF}, s{sW}, 12
{ids}
s_lshl_b32 s{sXB}, s{sI}, 17
s_lshl_b32 s{sT0}, s{sW}, 15
s_add_u32 s{sXB}, s{sXB}, s{sT0}
""" + ''.join(f's_mov_b32 s{b + 2}, {n}\ns_mov_b32 s{b + 3}, 0x00020000\n' for b, n in sizes[:1 if OPT['lean'] else 8]) + f"""
s_waitcnt lgkmcnt(0)
{'v_accvgpr_write_b32 a254, s98' if PROF else ''}
{'v_accvgpr_write_b32 a255, s90' if PROF else ''}
{'s_mov_b32 s23, 0' if PROF or OPT['dbg'] else ''}
{'s_mov_b32 s3, s90' if OPT['dbg'] else ''}
{'s_mov_b32 s23, s90' if OPT['diag'] else ''}
""")
P += stamp('ka') if OPT['diag'] else []
P += rx(0, 0) + (L(ws_load + '\n' + more_loads) if OPT['ka2'] else []) + rx(1, 1)
if OPT['lean']:
    P += L(''.join(f's_mov_b32 s{b + 2}, {n}\ns_mov_b32 s{b + 3}, 0x00020000\n' for b, n in sizes[1:]))
P += L(f"""
v_and_b32 v{t0}, 31, v{vL}
s_lshl_b32 s{sJ}, s{sKQ}, 2
s_or_b32 s{sJ}, s{sJ}, s{sJJ}
v_lshrrev_b32 v{t1}, 5, v{vL}
v_bfe_u32 v{t2}, v{vL}, 1, 3
v_xor_b32 v{t1}, v{t1}, v{t2}
v_lshlrev_b32 v{t1}, 4, v{t1}
v_lshl_add_u32 v{AS[0]}, v{t0}, 7, v{t1}
v_xor_b32 v{AS[1]}, 32, v{AS[0]}
v_xor_b32 v{AS[2]}, 64, v{AS[0]}
v_xor_b32 v{AS[3]}, 0x60, v{AS[0]}
s_add_u32 s{sT0}, s{sWOFF}, {SLOT}
v_add_u32 v{ASc[0]}, s{sT0}, v{AS[0]}
v_add_u32 v{ASc[1]}, s{sT0}, v{AS[1]}
v_add_u32 v{ASc[2]}, s{sT0}, v{AS[2]}
v_add_u32 v{ASc[3]}, s{sT0}, v{AS[3]}
s_mov_b32 s{sONES}, 0x3f803f80
v_mov_b32 v{SUM[0]}, 0
v_mov_b32 v{SUM[1]}, 0
v_mov_b32 v{SQ[0]}, 0
v_mov_b32 v{SQ[1]}, 0
s_lshl_b32 s{sT0}, s{sW}, 9
s_add_u32 s{sT0}, s{sT0}, {T_SEG}
v_lshl_add_u32 v{t0}, v{vL}, 3, s{sT0}""")
P.append(I(f'ds_write_b64 v{t0}, {vr(SUM[0], 2)}', tok='zero'))
P += L(f's_waitcnt lgkmcnt(0)\ns_load_dword s{sE2}, s[{sWS}:{sWS + 1}], {WS_EP}')
mid = L(f"""
v_and_b32 v{t0}, 31, v{vL}
s_lshl_b32 s{sT1}, s{sJ}, 6
v_lshl_add_u32 v{NLI}, v{t0}, 1, s{sT1}
s_and_b32 s{sT3}, s{sW}, 1
s_mul_i32 s{sT2}, s{sKQ}, 7
s_lshl_b32 s{sW1A}, s{sJJ}, 1
s_add_u32 s{sPB[0]}, s{sW1A}, 1
s_cmp_eq_u32 s{sJJ}, 3
s_cselect_b32 s{sPB[0]}, 3, s{sPB[0]}
s_cselect_b32 s{sFSEL}, 64, 0
s_add_u32 s{sW1A}, s{sW1A}, s{sT2}
s_add_u32 s{sW1B}, s{sPB[0]}, s{sT2}
s_lshl_b32 s{sW1A}, s{sW1A}, 7
s_lshl_b32 s{sW1B}, s{sW1B}, 7
s_cmp_ge_u32 s{sW}, 2
s_cselect_b32 s{sT2}, s{sW1B}, s{sW1A}
s_cselect_b32 s{sT1}, s{sFSEL}, 0
s_add_u32 s{sT2}, s{sT2}, s{sT1}
s_lshl_b32 s{sT1}, s{sT3}, 6
s_xor_b32 s{sT2}, s{sT2}, s{sT1}
v_and_b32 v{t1}, 3, v{vL}
v_bfe_u32 v{t2}, v{vL}, 2, 2
v_lshl_add_u32 v{t1}, v{t2}, 3, v{t1}
v_bfe_u32 v{t2}, v{vL}, 4, 1
v_lshl_add_u32 v{t1}, v{t2}, 2, v{t1}
v_lshl_add_u32 v{PR}, v{t1}, 1, s{sT2}
s_cmp_eq_u32 s{sT3}, 1
s_cselect_b32 s{sB}, s{pBIM}, s{pBRE}
s_cselect_b32 s{sB + 1}, s{pBIM + 1}, s{pBRE + 1}
s_mul_i32 s{sT3}, s{sT3}, {32 * 3584}
s_add_u32 s{sW1A}, s{sW1A}, s{sT3}
s_add_u32 s{sW1B}, s{sW1B}, s{sT3}
s_lshl_b32 s{sBB}, s{sJ}, 15
s_lshr_b32 s{sT1}, s{sW}, 1
s_add_u32 s{sT1}, s{sT1}, s{sROT}
s_and_b32 s{sKC[0]}, s{sT1}, 7
s_add_u32 s{sT1}, s{sT1}, 2
s_and_b32 s{sKC[1]}, s{sT1}, 7
s_add_u32 s{sT1}, s{sT1}, 2
s_and_b32 s{sKC[2]}, s{sT1}, 7
s_add_u32 s{sT1}, s{sT1}, 2
s_and_b32 s{sKC[3]}, s{sT1}, 7
v_xor_b32 v{PG[1]}, 64, v{PG[0]}
v_add_u32 v{PG[2]}, {14 * 1024}, v{PG[0]}
v_add_u32 v{PG[3]}, {21 * 1024}, v{PG[1]}
v_add_u32 v{PG[1]}, {7 * 1024}, v{PG[1]}
v_and_b32 v{t2}, 1, v{vL}
v_lshlrev_b32 v{t2}, 4, v{t2}
v_mov_b32 v{VNM}, 0x3f80
v_lshlrev_b32 v{t2}, v{t2}, v{VNM}
v_bfe_i32 v{t0}, v{vL}, 1, 1
v_and_b32 v{TT + 1}, v{t0}, v{t2}
v_xor_b32 v{TT}, v{TT + 1}, v{t2}
""")
mid += L(f"""
v_lshrrev_b32 v{t1}, 3, v{vL}
v_mul_u32_u24 v{t1}, 3584, v{t1}
v_bfe_u32 v{t2}, v{vL}, 4, 1
v_lshlrev_b32 v{t2}, 2, v{t2}
v_xor_b32 v{t2}, v{t2}, v{vL}
v_and_b32 v{t2}, 7, v{t2}
v_lshl_add_u32 v{QG[0]}, v{t2}, 4, v{t1}
v_add_u32 v{QG[1]}, {27648}, v{QG[0]}
v_add_u32 v{QG[2]}, {2 * 27648}, v{QG[0]}
v_add_u32 v{QG[3]}, {3 * 27648}, v{QG[0]}
""")
late = L(f"""
s_mul_i32 s{sE2}, s{sE2}, 1664525
s_add_u32 s{sE2}, s{sE2}, 1013904226
s_or_b32 s{sTAG}, s{sE2}, 1
v_bfe_u32 v{t1}, v{vL}, 2, 2
v_lshrrev_b32 v{t2}, 5, v{vL}
v_lshl_add_u32 v{t2}, v{t2}, 3, v{t1}
v_lshlrev_b32 v{FA0}, 7, v{t2}
v_lshrrev_b32 v{t1}, 1, v{t1}
v_lshl_add_u32 v{FA0}, v{t1}, 6, v{FA0}
v_bfe_u32 v{t1}, v{vL}, 4, 1
v_lshl_add_u32 v{FA0}, v{t1}, 5, v{FA0}
v_and_b32 v{t1}, 3, v{vL}
v_lshl_add_u32 v{FA0}, v{t1}, 3, v{FA0}
v_lshlrev_b32 v{VL16}, 4, v{vL}
v_mov_b32 v{VLN2}, {LN2:#x}
s_cmp_eq_u32 s{sPB[0]}, 1
s_cselect_b32 s{sPB[1]}, 3, 1
s_cmp_eq_u32 s{sPB[0]}, 5
s_cselect_b32 s{sPB[2]}, 3, 5
s_lshl_b32 s{sSEL[0]}, s{sFSEL}, 9
s_lshl_b32 s{sAS}, s{sI}, 2
s_add_u32 s{sAS}, s{sAS}, s{sW}
s_lshl_b32 s{sAS}, s{sAS}, 2
s_add_u32 s{sAS}, s{sAS}, s{sKQ}
s_lshl_b32 s{sFLG}, s{sAS}, 11
s_add_u32 s{sFLG}, s{sFLG}, {WS_FL}
s_mul_i32 s{sAS}, s{sAS}, {44 * 1024}
s_add_u32 s{sAS}, s{sAS}, {WS_A}
s_lshl_b32 s{sT2}, s{sJJ}, 13
s_add_u32 s{sFST[0]}, s{sAS}, s{sT2}
s_add_u32 s{sFST[1]}, s{sFST[0]}, 2048
s_lshl_b32 s{sT2}, s{sPB[0]}, 12
s_add_u32 s{sFST[3]}, s{sAS}, s{sT2}
s_lshl_b32 s{sT2}, s{sFSEL}, 5
s_add_u32 s{sFST[2]}, s{sFST[3]}, s{sT2}
s_add_u32 s{sFST[3]}, s{sFST[3]}, 2048
s_lshl_b32 s{sT2}, s{sJJ}, 12
s_add_u32 s{sSST}, s{sAS}, s{sT2}
s_add_u32 s{sSST}, s{sSST}, {28 * 1024}
s_xor_b32 s{sT2}, s{sW}, s{sKQ}
s_lshl_b32 s{sT2}, s{sT2}, 15
s_lshl_b32 s{sCB}, s{sJJ}, 17
s_add_u32 s{sCB}, s{sCB}, s{sT2}
s_lshl_b32 s{sT2}, s{sKQ}, 8
s_add_u32 s{sCB}, s{sCB}, s{sT2}
s_lshr_b32 s{sT2}, s{sJJ}, 1
s_lshl_b32 s{sT2}, s{sT2}, 7
s_add_u32 s{sCB}, s{sCB}, s{sT2}
s_mul_i32 s{sW2B}, s{sKQ}, {448 * 1024}
s_lshr_b32 s{sT2}, s{sW}, 1
s_lshl_b32 s{sT2}, s{sT2}, 15
s_add_u32 s{sW2B}, s{sW2B}, s{sT2}
s_lshl_b32 s{sT2}, s{sJJ}, 8
s_add_u32 s{sW2B}, s{sW2B}, s{sT2}
s_lshr_b32 s{sT2}, s{sKQ}, 1
s_xor_b32 s{sT2}, s{sT2}, s{sW}
s_and_b32 s{sT2}, s{sT2}, 1
s_lshl_b32 s{sT2}, s{sT2}, 7
s_add_u32 s{sW2B}, s{sW2B}, s{sT2}
s_lshl_b32 s{sT2}, s{sI}, 4
s_add_u32 s{sT2}, s{sT2}, s{sJJ}
s_lshl_b32 s{sT2}, s{sT2}, 2
s_add_u32 s{sT2}, s{sT2}, s{sW}""")
for b in range(4):
    late += L(f"""s_xor_b32 s{sT3}, s{sKQ}, {b}
        s_lshl_b32 s{sT3}, s{sT3}, 4
        s_add_u32 s{sT3}, s{sT3}, s{sT2}
        s_mul_i32 s{sT3}, s{sT3}, {3 * XC_BLK}
        s_add_u32 s{sXO[b]}, s{sT3}, {WS_XC + (b - 1) * XC_BLK if b else WS_XC}""")
late += L(f"""s_add_u32 s{sSEL[2]}, s{sXO[0]}, {XC_BLK}
    s_add_u32 s{sSEL[3]}, s{sXO[0]}, {2 * XC_BLK}
    s_and_b32 s{sT3}, s{sJJ}, 1
    s_sub_u32 s{sSEL[1]}, 6, s{sT3}""")
pf = []
if OPT['pf'] == 2:
    late += L(f"""
s_and_b32 s{sT1}, s{sI}, 7
s_lshl_b32 s{sT2}, s{sT1}, 1
s_add_u32 s{sT2}, s{sT2}, s{sW}
s_mul_i32 s{sT2}, s{sT2}, 28
s_mul_i32 s{sT3}, s{sKQ}, 448
s_add_u32 s{sT2}, s{sT2}, s{sT3}
s_lshl_b32 s{sT2}, s{sT2}, 2
s_add_u32 s{sT2}, s{sT2}, s{sJJ}
s_lshl_b32 s{sT3}, s{sJJ}, 3
s_add_u32 s{sT3}, s{sT3}, s{sT1}
s_lshl_b32 s{sT3}, s{sT3}, 6
s_add_u32 s{sT3}, s{sT3}, s{sKQ}
s_cmp_lt_u32 s{sW}, 2
s_cselect_b32 s{sT2}, s{sT2}, s{sT3}
s_cselect_b32 s{sT3}, 56, 32
s_cselect_b32 s{sTMP}, s{sW2}, s{sCre}
s_cselect_b32 s{sTMP + 1}, s{sW2 + 1}, s{sCre + 1}
s_cselect_b32 s{sTMP + 2}, s{sW2 + 2}, s{sCre + 2}
s_cmp_eq_u32 s{sW}, 3
s_cselect_b32 s{sTMP}, s{sCim}, s{sTMP}
s_cselect_b32 s{sTMP + 1}, s{sCim + 1}, s{sTMP + 1}""")
elif OPT['pf']:
    late += L(f"""
s_mul_i32 s{sT2}, s{sKQ}, 448
s_mul_i32 s{sT3}, s{sI}, 28
s_add_u32 s{sT2}, s{sT2}, s{sT3}
s_lshl_b32 s{sT2}, s{sT2}, 2
s_add_u32 s{sT2}, s{sT2}, s{sJJ}
s_lshl_b32 s{sT3}, s{sJJ}, 4
s_add_u32 s{sT3}, s{sT3}, s{sI}
s_lshl_b32 s{sT3}, s{sT3}, 5
s_add_u32 s{sT3}, s{sT3}, s{sKQ}
s_cmp_eq_u32 s{sW}, 0
s_cselect_b32 s{sT2}, s{sT2}, s{sT3}
s_cselect_b32 s{sT3}, 56, 16
s_cselect_b32 s{sTMP}, s{sW2}, s{sCre}
s_cselect_b32 s{sTMP + 1}, s{sW2 + 1}, s{sCre + 1}
s_cselect_b32 s{sTMP + 2}, s{sW2 + 2}, s{sCre + 2}
s_cmp_eq_u32 s{sW}, 2
s_cselect_b32 s{sTMP}, s{sCim}, s{sTMP}
s_cselect_b32 s{sTMP + 1}, s{sCim + 1}, s{sTMP + 1}
s_cmp_eq_u32 s{sW}, 3
s_cselect_b32 s{sT3}, 0, s{sT3}""")
if OPT['pf']:
    late += L(f"""s_lshl_b32 s{sT2}, s{sT2}, 8
v_lshrrev_b32 v{t0}, 1, v{vL}
v_and_b32 v{t1}, 1, v{vL}
v_lshlrev_b32 v{t1}, 7, v{t1}
v_lshl_add_u32 v{t0}, v{t0}, 10, v{t1}
v_add_u32 v{t0}, s{sT2}, v{t0}
v_mov_b32 v{t1}, {OOB:#x}
v_cmp_gt_u32 vcc, s{sT3}, v{vL}
v_cndmask_b32 v{PI}, v{t1}, v{t0}, vcc""")
    pf = L(f'buffer_load_dword a248, v{PI}, {srd(sTMP)}, 0 offen')

Z = TT + 2
consts = L(f"""
v_lshlrev_b32 v{NLI}, 16, v{NLI}
v_mul_f32 v{NLI}, {LOG2E:#x}, v{NLI}
v_exp_f32 v{NLI}, v{NLI}
v_lshlrev_b32 v{Z + 2}, 16, v{LR}
v_lshlrev_b32 v{Z + 3}, 16, v{LI}
v_cvt_pk_bf16_f32 v{NLI}, v{NLI}, v{NLI}
v_lshlrev_b32 v{NLI}, 16, v{NLI}
v_mul_f32 v{Z}, v{NLI}, v{Z + 2}
v_mul_f32 v{Z + 1}, v{NLI}, v{Z + 3}
v_mul_f32 v{Z}, {LOG2E:#x}, v{Z}
v_mul_f32 v{Z + 1}, 0xbe22f983, v{Z + 1}""")
consts += cexp(LR, LI, '1.0', Z, Z + 1)
consts += L(f"""
v_mul_f32 v{Z + 4}, v{Z + 2}, v{Z + 2}
v_fmac_f32 v{Z + 4}, v{Z + 3}, v{Z + 3}
v_rcp_f32 v{Z + 4}, v{Z + 4}
v_add_f32 v{Z + 5}, -1.0, v{LR}
v_sub_f32 v{NLI}, 0, v{LI}
v_add_f32 v{Z + 4}, v{Z + 4}, v{Z + 4}
v_mul_f32 v{CR}, v{Z + 5}, v{Z + 2}
v_fmac_f32 v{CR}, v{NLI}, v{Z + 3}
v_mul_f32 v{NCI}, v{Z + 5}, v{Z + 3}
v_fmac_f32 v{NCI}, v{LI}, v{Z + 2}
v_mul_f32 v{CR}, v{CR}, v{Z + 4}
v_mul_f32 v{NCI}, v{NCI}, v{Z + 4}
v_sub_f32 v{NCR}, 0, v{CR}""")
consts += cexp(L16R, L16I, '0x41800000', Z, Z + 1)
consts += cexp(L128R, L128I, '0x43000000', Z, Z + 1)
consts += L(f"""
v_lshrrev_b32 v{Z + 6}, 5, v{vL}
s_lshl_b32 s{sT2}, s{sW}, 1
v_add_u32 v{Z + 6}, s{sT2}, v{Z + 6}
v_cvt_f32_u32 v{Z + 6}, v{Z + 6}
v_mul_f32 v{Z + 7}, 0x41800000, v{Z + 6}
v_sub_f32 v{Z + 6}, 0x40e00000, v{Z + 6}
v_mul_f32 v{Z + 6}, 0x43800000, v{Z + 6}""")
consts += cexp(LSR, LSI, f'v{Z + 7}', Z, Z + 1)
consts += cexp(WR, WI, f'v{Z + 6}', Z, Z + 1)
consts += L(f"""v_lshlrev_b32 v{PR}, 16, v{PR}
v_mul_f32 v{PR}, {LOG2E:#x}, v{PR}
v_and_b32 v{t1}, 31, v{vL}
s_lshl_b32 s{sT1}, s{sW}, 7
s_add_u32 s{sT1}, s{sT1}, {T_B1}
v_lshl_add_u32 v{t1}, v{t1}, 2, s{sT1}
""") + [I(f'ds_write_b32 v{t1}, v{PR}', tok='b1w')]
later = []
Y = SRE
later += L(f"""v_and_b32 v{Y}, 31, v{vL}
    v_lshlrev_b32 v{Y + 1}, 3, v{Y}
    v_add_u32 v{Y + 1}, {T_LB}, v{Y + 1}
    v_lshrrev_b32 v{t0}, 5, v{vL}
    s_lshl_b32 s{sT2}, s{sW}, 11
    s_add_u32 s{sT2}, s{sT2}, {T_H}
    v_lshl_add_u32 v{Y}, v{Y}, 6, s{sT2}
    v_bfe_u32 v{Y + 2}, v{vL}, 1, 2
    v_lshlrev_b32 v{Y + 3}, 1, v{t0}
    v_xor_b32 v{Y + 2}, v{Y + 2}, v{Y + 3}
    v_bfe_u32 v{Y + 3}, v{vL}, 3, 1
    v_xor_b32 v{Y + 2}, v{Y + 2}, v{Y + 3}
    v_lshl_add_u32 v{Y}, v{Y + 2}, 4, v{Y}
    v_xor_b32 v{Y + 3}, 16, v{Y}
    v_bfe_u32 v{Y + 6}, v{vL}, 2, 2
    v_lshrrev_b32 v{t1}, 4, v{vL}
    v_lshl_add_u32 v{Y + 2}, v{t1}, 3, v{Y + 6}
    v_lshl_add_u32 v{Y + 2}, v{Y + 2}, 6, s{sT2}
    v_and_b32 v{t1}, 1, v{vL}
    v_lshl_add_u32 v{Y + 2}, v{t1}, 5, v{Y + 2}
    v_lshrrev_b32 v{t1}, 1, v{vL}
    v_xor_b32 v{t1}, v{t1}, v{vL}
    v_and_b32 v{t1}, 8, v{t1}
    v_lshl_add_u32 v{Y + 2}, v{t1}, 1, v{Y + 2}
    v_bfe_u32 v{t1}, v{vL}, 1, 1
    v_lshl_add_u32 v{Y + 2}, v{t1}, 3, v{Y + 2}
    v_bfe_u32 v{t1}, v{vL}, 4, 1
    v_lshl_add_u32 v{Y + 5}, v{t0}, 2, v{Y + 6}
    v_lshl_add_u32 v{Y + 5}, v{t1}, 4, v{Y + 5}
    v_lshlrev_b32 v{Y + 5}, 7, v{Y + 5}
    s_and_b32 s{sT2}, s{sKQ}, 1
    v_xor_b32 v{t1}, s{sT2}, v{t1}
    v_lshl_add_u32 v{Y + 5}, v{t1}, 6, v{Y + 5}
    v_bfe_u32 v{t1}, v{vL}, 3, 1
    v_lshl_add_u32 v{Y + 5}, v{t1}, 5, v{Y + 5}
    v_and_b32 v{t1}, 3, v{vL}
    v_lshl_add_u32 v{Y + 5}, v{t1}, 3, v{Y + 5}
    v_and_b32 v{Y + 6}, 15, v{vL}
    v_lshrrev_b32 v{t1}, 4, v{vL}
    v_bfe_u32 v{Y + 4}, v{vL}, 1, 3
    v_xor_b32 v{t1}, v{t1}, v{Y + 4}
    v_lshlrev_b32 v{t1}, 4, v{t1}
    v_lshl_add_u32 v{Y + 6}, v{Y + 6}, 7, v{t1}
    s_and_b32 s{sT2}, s{sJJ}, 1
    s_lshl_b32 s{sT2}, s{sT2}, 6
    v_xor_b32 v{Y + 6}, s{sT2}, v{Y + 6}
    s_lshl_b32 s{sT2}, s{sW}, 9
    s_add_u32 s{sT1}, s{sT2}, {T_SEG}
    s_add_u32 s{sT2}, s{sT2}, {T_LB}
    v_lshl_add_u32 v{Y + 7}, v{vL}, 3, s{sT1}
    v_lshl_add_u32 v{Y + 8}, v{vL}, 3, s{sT2}""")
later += park(hw=Y, lbr=Y + 1, hr=Y + 2, hw2=Y + 3, fp0=Y + 5, fp1=Y + 6, seg=Y + 7, lbw=Y + 8)
park2 = []
Y = FACC[0]
park2 += L(f"""s_lshl_b32 s{sT2}, s{sJ}, 4
    s_add_u32 s{sT2}, s{sT2}, s{sI}
    s_lshl_b32 s{sT2}, s{sT2}, 9
    s_add_u32 s{sT2}, s{sT2}, {WS_AG - 512}
    s_cmp_eq_u32 s{sW}, 3
    s_cselect_b32 s{sT2}, s{sT2}, {OOB:#x}
    v_mov_b32 v{Y + 8}, {OOB:#x}
    v_cmp_gt_u32 vcc, 32, v{vL}
    v_add_u32 v{Y}, s{sT2}, v{VL16}
    v_lshrrev_b32 v{t0}, 5, v{vL}
    v_cndmask_b32 v{Y}, v{Y}, v{Y + 8}, vcc
    s_lshl_b32 s{sT2}, s{sW}, 2
    s_add_u32 s{sT2}, s{sT2}, s{sI}
    s_sub_u32 s{sT2}, s{sT2}, 16
    v_lshl_add_u32 v{t0}, v{t0}, 1, s{sT2}
    s_lshl_b32 s{sT2}, s{sJ}, 13
    s_add_u32 s{sT2}, s{sT2}, {WS_AG}
    v_and_b32 v{Y + 9}, 31, v{vL}
    v_lshl_add_u32 v{t1}, v{Y + 9}, 4, s{sT2}
    v_lshl_add_u32 v{Y + 1}, v{t0}, 9, v{t1}
    v_cmp_gt_i32 vcc, 0, v{t0}
    v_add_u32 v{Y + 2}, 512, v{Y + 1}
    v_mov_b32 v{t1}, s{sTAG}
    v_cndmask_b32 v{Y + 1}, v{Y + 1}, v{Y + 8}, vcc
    v_cndmask_b32 v{Y + 3}, v{t1}, 0, vcc
    v_cmp_gt_i32 vcc, -1, v{t0}
    s_lshl_b32 s{sT2}, s{sJJ}, 9
    s_add_u32 s{sT2}, s{sT2}, s{sFLG}
    v_cndmask_b32 v{Y + 2}, v{Y + 2}, v{Y + 8}, vcc
    v_cndmask_b32 v{Y + 4}, v{t1}, 0, vcc
    v_lshl_add_u32 v{Y + 5}, v{Y + 9}, 2, s{sT2}
    v_and_b32 v{t0}, 3, v{vL}
    v_max_u32 v{t0}, 1, v{t0}
    v_xor_b32 v{t0}, s{sJJ}, v{t0}
    v_lshl_add_u32 v{Y + 6}, v{t0}, 9, s{sFLG}
    s_bitcmp1_b32 s{sJJ}, 0
    s_cselect_b32 s{sT2}, {OOB:#x}, 0
    v_add_u32 v{Y + 7}, s{sT2}, v{VL16}
    """)
park2 += park(pfa=PI)
park2 += park(pub=Y, lba0=Y + 1, lba1=Y + 2, lbe0=Y + 3, lbe1=Y + 4, fla=Y + 5, flp=Y + 6, f3o=Y + 7)
params = L(f"""global_load_ushort v{LR}, v{NLI}, s[{pLRE}:{pLRE + 1}]
    global_load_ushort v{LI}, v{NLI}, s[{pLIM}:{pLIM + 1}]
    global_load_ushort v{NLI}, v{NLI}, s[{pLDT}:{pLDT + 1}]
    global_load_ushort v{PR}, v{PR}, s[{pB1}:{pB1 + 1}]""")
XO_START = max(n for n, i_ in enumerate(late) if i_.text == f's_lshl_b32 s{sT2}, s{sI}, 4')
late_b = []
if OPT['lb2s']:
    late, late_b = late[:XO_START], late[XO_START:]
    park2 = [i_ for i_ in park2 if f'a{PARK["pfa"]},' not in i_.text]
if OPT['lb2s'] == 2:
    late_b, park2 = park2 + late_b, []
nl = len(late) * OPT['lateln'] // 100
while nl < len(late) and late[nl - 1].mn.startswith(('s_cmp', 'v_cmp', 's_cselect')) or (nl < len(late) and late[nl].mn.startswith('v_cndmask')):
    nl += 1
if nl >= len(late):
    later, late, park2 = later + late + park2, [], []
else:
    later, late = later + late[:nl], late[nl:]
zero_xe = [I(f'v_accvgpr_write_b32 a{aXE + r}, 0') for r in range(17)]
XA, sSTAR = FACC[1], sXO[3]
if OPT['xlds']:
    P += zero_xe + L(f"""s_lshl_b32 s{sSTAR}, s{sJJ}, 1
        s_lshr_b32 s{sT1}, s{sKQ}, 1
        s_add_u32 s{sSTAR}, s{sSTAR}, s{sT1}
        s_sub_u32 s{sSTAR}, s{sSTAR}, s{sROT}
        s_and_b32 s{sSTAR}, s{sSTAR}, 7
        s_and_b32 s{sT1}, s{sKQ}, 1
        v_lshrrev_b32 v{t0}, 5, v{vL}
        v_xor_b32 v{t1}, s{sT1}, v{t0}
        v_bfe_u32 v{t2}, v{vL}, 3, 2
        v_lshl_add_u32 v{t1}, v{t1}, 2, v{t2}
        v_lshlrev_b32 v{t1}, 4, v{t1}
        v_lshl_add_u32 v{t1}, v{t0}, 10, v{t1}
        v_and_b32 v{t2}, 7, v{vL}
        v_lshl_add_u32 v{t1}, v{t2}, 1, v{t1}
        s_add_u32 s{sT1}, s{sWOFF}, {SLOT}
        v_add_u32 v{XA}, s{sT1}, v{t1}""") + [I(f'v_xor_b32 v{XA + v}, {16 * v}, v{XA}') for v in (1, 2, 3)]
    zero_xe = []
later = mid + later + zero_xe
cuts = [0]
for n in range(1, 7):
    c = n * len(later) // 7 if not OPT['back'] else len(later) * (0, 6, 14, 24, 38, 56, 78)[n] // 100
    while later[c].mn.startswith(('s_cselect', 'v_cndmask', 's_nop')) or later[c - 1].mn.startswith('v_cmp'):
        c += 1
    cuts.append(c)
cuts.append(len(later))

touch_w = L(f'v_mov_b32 v{PI}, 0') + [
    I(f'buffer_load_dword a{56 + n}, v{PI}, {srd(r)}, 0 offen') for n, r in enumerate((sW1, sCre, sCim, sW2))]
touch_o = L(f"""v_min_u32 v{PR}, {WS_SIZE >> 21}, v{vL}
    v_lshlrev_b32 v{PR}, 21, v{PR}
    v_add_u32 v{PR}, 0x800, v{PR}
    buffer_load_dword a60, v{PR}, {srd(sWS)}, 0 offen
    buffer_load_dword a61, v{PR}, {srd(sOUT)}, 0 offen""")
if OPT['tlb'] in (1, 3, 4):
    P += touch_w
if OPT['tlb'] == 1:
    P += touch_o
P += rx(2, 2) + (rx(3, 3) if OPT['deep'] else []) + [I('s_waitcnt lgkmcnt(0)')]
for s in range(8):
    P.append(Wait(f'x{s}'))
    if s == 0:
        P += stamp('x0')
    for q in range(4):
        P.append(I(f'ds_read_b128 {vr(X + 16 * s + 4 * q, 4)}, v{ASc[q]} offset:{(s & 3) * SLOT}', lds_r=(s & 3) + 1,
                   tok=f'xr{s}' if q == 3 else None))
    if OPT['deep']:
        nxt = rg(s - 4) if s >= 4 else [Wait(f'xr{s}')] + rx(s + 4, s) + (params if s == 3 else [])
    else:
        nxt = rg(s - 5) if s >= 5 else rx(s + 3, (s + 3) & 3) + (params if s == OPT['parat'] else [])
    piece = later[cuts[s]:cuts[s + 1]] if s < 7 else []
    P += nxt + piece if OPT['xfirst'] else piece + nxt
    for r in range(16):
        P.append(I(f'v_dot2c_f32_bf16 v{SUM[r & 1]}, s{sONES}, v{X + 16 * s + r}'))
        P.append(I(f'v_dot2c_f32_bf16 v{SQ[r & 1]}, v{X + 16 * s + r}, v{X + 16 * s + r}'))
        if OPT['xlds'] and r == (15 if s < 7 else 3):
            blk = [f'ds_read_u16_d16_hi a{aXE + n}, v{XA + ((n >> 1) & 1) + 2 * ((n >> 2) & 1)} '
                   f'offset:{(s & 3) * SLOT + ((n & 7) + 16 * (n >> 3)) * 128}' for n in range(16)]
            P += [Wait(f'xr{s}'), I(f's_cmp_lg_u32 s{sSTAR}, {s}'), I(f's_cbranch_scc1 L_xe{s}')]
            P.append(I('; epilogue x values\n    ' + '\n    '.join(blk + ['s_waitcnt lgkmcnt(0)'])))
            P.append(I(f'L_xe{s}:'))
P += stamp('x7')
P += L(f"""
v_add_f32 v{SUM[0]}, v{SUM[0]}, v{SUM[1]}
v_add_f32 v{SQ[0]}, v{SQ[0]}, v{SQ[1]}
v_mov_b32 v{SUM[1]}, v{SUM[0]}
v_mov_b32 v{SQ[1]}, v{SQ[0]}
v_permlane32_swap_b32 v{SUM[1]}, v{SUM[0]}
v_add_f32 v{SUM[0]}, v{SUM[0]}, v{SUM[1]}
v_mul_f32 v{SUM[0]}, 0xbb000000, v{SUM[0]}
v_cvt_pk_bf16_f32 v{t0}, v{SUM[0]}, v{SUM[0]}
v_lshlrev_b32 v{SIM}, 16, v{t0}
v_lshlrev_b32 v{SIM + 1}, 16, v{t0}
v_lshlrev_b32 v{SIM + 2}, 16, v{t0}
v_lshlrev_b32 v{SIM + 3}, 16, v{t0}
""")

back = lambda o: [I(f'v_cvt_pk_bf16_f32 v{X + 2 * o + e}, v{FACC[0] + 4 * (o & 3) + 2 * e}, '
                    f'v{FACC[0] + 4 * (o & 3) + 2 * e + 1}') for e in range(2)]
items = [[I(f'v_mfma_f32_4x4x4_16b_bf16 {vr(FACC[0] + 4 * (n & 3), 4)}, {vr(TT, 2)}, {vr(X + 2 * n, 2)}, {vr(SIM, 4)}')]
         + (back(n - 2) if n >= 2 else []) for n in range(64)]
fill = L(f"""
v_permlane32_swap_b32 v{SQ[1]}, v{SQ[0]}
v_sub_f32 v{VNM}, 0, v{SIM}
v_add_f32 v{SQ[0]}, v{SQ[0]}, v{SQ[1]}
v_mul_f32 v{SQ[0]}, 0x3b000000, v{SQ[0]}
v_fma_f32 v{SQ[0]}, -v{SUM[0]}, v{SUM[0]}, v{SQ[0]}
v_max_f32 v{SQ[0]}, 0, v{SQ[0]}
v_cvt_pk_bf16_f32 v{t0}, v{SQ[0]}, v{SQ[0]}
v_lshlrev_b32 v{t0}, 16, v{t0}
v_add_f32 v{t0}, 0x3727c5ac, v{t0}
v_cvt_pk_bf16_f32 v{t0}, v{t0}, v{t0}
v_lshlrev_b32 v{t0}, 16, v{t0}
v_sqrt_f32 v{t0}, v{t0}
v_and_b32 v{t1}, 3, v{vL}
v_cvt_pk_bf16_f32 v{t0}, v{t0}, v{t0}
v_lshlrev_b32 v{t0}, 16, v{t0}
v_rcp_f32 v{VRS}, v{t0}
v_bfe_u32 v{t2}, v{vL}, 3, 2
v_lshl_add_u32 v{t1}, v{t2}, 2, v{t1}
v_bfe_u32 v{t2}, v{vL}, 2, 1
v_lshl_add_u32 v{t1}, v{t2}, 4, v{t1}
s_lshl_b32 s{sT1}, s{sW}, 8
s_add_u32 s{sT1}, s{sT1}, {T_STAT}
v_lshl_add_u32 v{t1}, v{t1}, 2, s{sT1}
v_mul_f32 v{RL2}, {LOG2E:#x}, v{VRS}
ds_write_b32 v{t1}, v{VNM}
""")
fill.append(I(f'ds_write_b32 v{t1}, v{VRS} offset:128', tok='tabw'))
LA_S, LA_F = 3, OPT['laf']


def s_addr(slot):
    return [I(f'v_add_u32 v{ASc[q]}, {slot * SLOT}, v{AS[q]}') for q in range(4)]


def s_read(s, ri):
    return I(f'ds_read_b128 {ar(aS + 8 * (s & 3) + 4 * ri, 4)}, v{ASc[s & 3]} offset:{(s >> 3) * SLOT + (2 * ((s >> 2) & 1) + ri) * 4096}',
             lds_r=G_SLOT[s >> 3])


def f_addr(b):
    if b < 2:
        return [I(f'v_xor_b32 v{FAc}, {64 * b}, v{FA0}')]
    if b == 3:
        return [I(f'v_xor_b32 v{FAc}, 64, v{FAc}')]
    return [I(f'v_xor_b32 v{FAc}, s{sFSEL}, v{FA0}'), I(f'v_add_u32 v{FAc}, {G_SLOT[8] * SLOT}, v{FAc}')]


def f_read(b, s):
    out = f_addr(b) if s == 0 else []
    k = (32 * b + s) & 7
    for u in range(2):
        out.append(I(f'ds_read_b64_tr_b16 {ar(aF + 4 * k + 2 * u, 2)}, v{FAc} '
                     f'offset:{(s >> 3) * SLOT + ((s >> 1) & 3) * 4096 + (s & 1) * 2048 + u * 512}',
                     lds_r=G_SLOT[(4 if b < 2 else 8) + (s >> 3)]))
    return out


DSP = OPT['dsp']
OPT['dsp'] = OPT['dspc']
pin = pins(*([] if OPT['deep'] else [(OPT['g3'], rg(3))]),
           *([(OPT['g3'] + 4 * OPT['dspc'], rg(4))] if OPT['sch'] >= 2 else []),
           (54, s_addr(G_SLOT[0]) + stamp('c27') + BAR('G0', 'zero', *([] if OPT['bsp'] else ['G1'])) + stamp('b0')))
OPT['dsp'] = DSP
for k in range(LA_S):
    pin[55 + 2 * k] = [s_read(k, 0), s_read(k, 1)]
stat_fill = fill
if OPT['cfs']:
    fill = stat_fill[:2]
    stat_fill = stat_fill[2:]
else:
    stat_fill = []
P += weave(items, fill, pin, 0, 40) + back(62) + back(63)

S_items = []
for s in range(32):
    for ri, acc in ((0, SRE), (1, SIM)):
        it = [mfma(vr(acc, 16), vr(X + 4 * s, 4), ar(aS + 8 * (s & 3) + 4 * ri, 4), vr(acc, 16) if s else '0')]
        n = s + LA_S
        if n < 32:
            it.append(s_read(n, ri))
        S_items.append(it)
for k in range(LA_F):
    S_items[64 - LA_F + k] += f_read(0, k)
F_items = []
for b in range(4):
    its = []
    for s in range(32):
        acc = vr(FACC[b & 1], 16)
        it = [mfma(acc, ar(aF + 4 * ((32 * b + s) & 7), 4), vr(X + 4 * s, 4), acc if s else '0')]
        n = s + LA_F
        if n < 32:
            it += f_read(b, n)
        elif b < 3:
            it += f_read(b + 1, n - 32)
        its.append(it)
    F_items.append(its)

FLA, FLP = VNM, VRS
fill = stat_fill + late + park2 + late_b + consts + (pf if OPT['pfat'] < 0 else []) + L(f"""
v_lshrrev_b32 v{t0}, 3, v{vL}
v_bfe_u32 v{t1}, v{vL}, 4, 1
v_lshlrev_b32 v{t1}, 1, v{t1}
v_xor_b32 v{t1}, v{t1}, v{vL}
v_and_b32 v{t1}, 7, v{t1}
v_lshlrev_b32 v{t1}, 4, v{t1}
v_lshl_add_u32 v{XG[0]}, v{t0}, 10, v{t1}
v_add_u32 v{XG[1]}, {7 * 1024}, v{XG[0]}
v_xor_b32 v{XG[2]}, 64, v{XG[0]}
v_add_u32 v{XG[3]}, {21 * 1024}, v{XG[2]}
v_add_u32 v{XG[2]}, {14 * 1024}, v{XG[2]}
v_lshrrev_b32 v{t2}, 5, v{vL}
v_lshlrev_b32 v{t2}, 6, v{t2}
v_add_u32 v{t2}, {TB}, v{t2}
s_lshl_b32 s{sT2}, s{sW}, 8
v_add_u32 v{t1}, s{sT2}, v{t2}""")
fill += [I(f'ds_read_b128 {vr(FACC[1] + 4 * q, 4)}, v{t1} offset:{128 + 16 * q}') for q in range(4)]
xa, xb = TT + 14, TT + 15
ROW = lambda n: 16 * ((n >> 2) & 1) + 8 * (n >> 3) + (n & 3)
xe = L(f"""v_and_b32 v{xa}, 31, v{vL}
    v_lshrrev_b32 v{xb}, 5, v{vL}
    v_lshlrev_b32 v{xb}, 12, v{xb}
    v_lshl_add_u32 v{xb}, v{xa}, 1, v{xb}
    s_lshl_b32 s{sONES}, s{sJJ}, 2
    s_add_u32 s{sONES}, s{sONES}, s{sKQ}
    s_lshl_b32 s{sONES}, s{sONES}, 6
    v_lshl_add_u32 v{xa}, v{xa}, 1, s{sONES}
    s_add_u32 s{sXB}, s{sXB}, s{sONES}
    global_load_short_d16_hi a{aXE + 16}, v{xa}, s[{pDSK}:{pDSK + 1}]""")
for r in range(0 if OPT['xlds'] else 16):
    if r % 4 == 0:
        xe.append(I(f's_add_u32 s{sONES}, s{sXB}, {1024 * ROW(r)}'))
    xe.append(I(f'buffer_load_short_d16_hi a{aXE + r}, v{xb}, {srd(sX)}, s{sONES} offen offset:{1024 * (r & 3)}'))
sAO = dict(A={1: 8, 2: 9, 3: 10}, H={1: 11, 2: 12, 3: 13}, B={1: 14, 2: 15})
for e in (1, 2, 3):
    fill += L(f"""s_xor_b32 s{sT2}, s{sJJ}, {e}
        s_lshl_b32 s{sT2}, s{sT2}, 12
        s_add_u32 s{sAO['H'][e]}, s{sT2}, s{sAS}
        s_add_u32 s{sAO['A'][e]}, s{sAO['H'][e]}, s{sT2}
        s_add_u32 s{sAO['H'][e]}, s{sAO['H'][e]}, {28 * 1024}""")
for e in (1, 2):
    fill += L(f's_lshl_b32 s{sT2}, s{sPB[e]}, 12\ns_add_u32 s{sAO["B"][e]}, s{sT2}, s{sAS}')
if OPT['tlb'] in (2, 3):
    fill = touch_o + fill
if OPT['fw']:
    fill += L(f"""s_lshl_b32 s{sT2}, s{sJJ}, 9
        s_add_u32 s{sT2}, s{sT2}, s{sFLG}
        v_lshlrev_b32 v{t0}, 3, v{vL}
        v_mov_b32 v{TT}, 0
        v_mov_b32 v{TT + 1}, 0
        buffer_store_dwordx2 {vr(TT, 2)}, v{t0}, {srd(sWS)}, s{sT2} offen sc1""")
if OPT['xw'] == 1:
    fill += L(f'v_lshlrev_b32 v{t0}, 2, v{vL}')
    for b in (1, 2, 3):
        fill += L(f"""buffer_store_dwordx4 {vr(TT, 4)}, v{VL16}, {srd(sWS)}, s{sXO[b]} offen sc1
            buffer_store_dwordx4 {vr(TT, 4)}, v{VL16}, {srd(sWS)}, s{sXO[b]} offen offset:1024 sc1
            buffer_store_dword v{vL}, v{t0}, {srd(sWS)}, s{sXO[b]} offen offset:2048 sc1""")
elif OPT['xw']:
    fill += L(f"""v_lshlrev_b32 v{t0}, 7, v{vL}
        v_min_u32 v{t0}, {59 * 128}, v{t0}
        buffer_load_dword a60, v{t0}, {srd(sWS)}, s{sXO[0]} offen {('', '', 'sc1', 'sc1 nt')[OPT['xw']]}""")
if not OPT['xel']:
    cut = len(fill) * OPT['xes'] // 100
    fill, xe = fill[:cut] + merge(fill[cut:], xe), []
OPT['dsp'] = OPT['dsps']
srounds = [(2, rg(4)), (14, rg(5)), (28, rg(6)), (42, rg(7))] if OPT['sch'] == 1 else \
    [(2, rg(5)), (14, rg(6)), (28, rg(7)), (42, rg(8))]
sbars = [(9, BAR('G1')), (25, BAR('G2', 'G3'))] if OPT['bsp'] == 1 else \
    [(9, BAR('G1')), (25, BAR('G2')), (41, BAR('G3'))] if OPT['bsp'] else [(24, BAR('G2', 'G3'))]
pin = pins(*srounds, *sbars, (63 - LA_F, stamp('s59') + BAR('G4', 'b1w', *([] if OPT['bsa'] & 1 else ['G5'])) + stamp('b2')))
OPT['dsp'] = DSP
P += weave(fine('S', S_items, 3), fill, pin, 0, 62 - LA_F)

Q = FACC[1]
V = lambda t: SRE + t if t % 2 == 0 else SIM + t - 1
AGR, AGI = VRS, t3
fill = []
coef = []
for q in range(8):
    for h in range(2):
        r = 2 * q + h
        fill += L(f"""v_mul_f32 v{TT + 2 * h}, v{SRE + r}, v{CR}
            v_mul_f32 v{TT + 2 * h + 1}, v{SRE + r}, v{NCI}
            v_fmac_f32 v{TT + 2 * h}, v{SIM + r}, v{NCI}
            v_fmac_f32 v{TT + 2 * h + 1}, v{SIM + r}, v{NCR}""")
    for h in range(2):
        r = 2 * q + h
        fill += L(f"""v_mul_f32 v{V(r)}, v{TT + 2 * h}, v{Q + r}
            v_mul_f32 v{V(r) + 1}, v{TT + 2 * h + 1}, v{Q + r}""")
    coef.append(fill)
    fill = []
step = lambda d, p, c: L(f"""v_pk_fma_f32 {vr(d, 2)}, {vr(p, 2)}, {vr(LR, 2)}, {vr(c, 2)} op_sel_hi:[1,0,1]
    v_pk_fma_f32 {vr(d, 2)}, {vr(p, 2)}, {vr(NLI, 2)}, {vr(d, 2)} op_sel:[1,0,0] op_sel_hi:[0,1,1]""")
horner = [step(AGR if r & 1 else TT + 4, V(0) if r == 1 else (TT + 4 if r & 1 else AGR), V(r)) for r in range(1, 16)]
fill = fetch(seg=t1) + fill + (L('s_mov_b32 s19, s3') if OPT['dbg'] else []) + L(f's_mov_b32 s{sKC[0]}, {M2LN2:#x}')
fill.append(I(f'ds_write_b64 v{t1}, {vr(AGR, 2)} offset:{7 * 256}', tok='segw'))
frounds = [(1, rg(8)), (12, rg(9))] if OPT['sch'] == 1 else [(1, rg(9)), (12, rg(10))] if OPT['sch'] == 2 else \
    [(0, rg(9)), (OPT['g10'], rg(10)), (2 * OPT['g10'], rg(11))]
staged_names = list(STAGE)
abars = [(7 - LA_F, BAR('G5'))] if OPT['bsa'] & 1 else []
abars += [(15 - LA_F, BAR('G6')), (23 - LA_F, BAR('G7'))] if OPT['bsa'] & 2 else [(15 - LA_F, BAR('G6', 'G7'))]
pin = pins(*frounds, *abars, (31, BAR('segw')),
           *[(22, stage_load(n)) for n in staged_names[:1]])
if 0 <= OPT['pfat'] < 32:
    pin.setdefault(OPT['pfat'], []).extend(pf)
NB = OPT['nb0']
per = 8 // NB
plan = [(1, [], [])]
for n in range(NB):
    lo, hi = max(2 * per * n - 1, 0), 2 * per * (n + 1) - 1
    plan.append((1 + (n + 1) * 28 // NB, sum(coef[per * n:per * (n + 1)], []), sum(horner[lo:hi], [])))
P += staged(fine('F0', F_items[0], 3), pin, plan + [(30, fill, []), (31, [], [])])
P += stamp('F0')

E = ASc[0]
R0, R1, T0_, T1_ = TT + 8, TT + 12, ASc[0], ASc[2]
h0, h1 = mish_stages(0, 0), mish_stages(0, 1)
rd = lambda dst, k: I(f'ds_read2_b64 {vr(dst, 4)}, v{t1} offset0:{32 * k} offset1:{32 * k + 32}')
publish = cmul_add(E, E + 2, L16R, L16I, PR, PI, AGR, AGI) + fetch(pub=t1) + L(f"""v_mov_b32 v{E + 1}, s{sTAG}
    v_mov_b32 v{E + 3}, s{sTAG}
    buffer_store_dwordx4 {vr(E, 4)}, v{t1}, {srd(sWS)}, 0 offen sc1""")
frounds = [(0, rg(10)), (8, rg(11))] if OPT['sch'] == 1 else [(0, rg(11))] if OPT['sch'] == 2 else []
pin = pins(*frounds, (OPT['wa0'], rw('WA0')), (31 - LA_F, BAR('G8', 'G9', *([] if OPT['bsb'] else ['G10', 'G11']))),
           *zip((8, 24), map(stage_load, staged_names[1:3])))
if OPT['pfat'] >= 32:
    pin.setdefault(OPT['pfat'] - 32, []).extend(fetch(pfa=FAd) + L(pf[0].text.replace(f'v{PI}', f'v{FAd}')))
GA = [int(x) for x in str(OPT['stg1']).split('.')]
P += staged(fine('F0', F_items[1], 3), pin, [
    (GA[0], [rd(R0, 0), rd(R1, 2)] + h0['rd'], h0['A']),
    (GA[1], h0['ex'], cmul_pk(PR, L16R, R0, R0 + 2) + cmul_pk(T0_, L16R, PR, R1) + cmul_pk(PR, L16R, T0_, R1 + 2) + h0['B']),
    (GA[2], [rd(R0, 4), I(f'ds_read_b64 {vr(R1, 2)}, v{t1} offset:{6 * 256}')] + h0['rc'],
     cmul_pk(T0_, L16R, PR, R0) + cmul_pk(T1_, L16R, T0_, R0 + 2) + cmul_pk(PR, L16R, T1_, R1) + h0['C']),
    (GA[3], h1['rd'] + publish + h0['fin'], h1['A']),
    (GA[4], h1['ex'], h1['B']),
    (GA[5], h1['rc'], h1['C']),
    (31, h1['fin'], [])])
P += stamp('F1')

LBA = [CR, NCI]
LBE = [NCR, L16R]
LBD = [ASc[0], QG[0]]
FLV = L16I
lb_loads = '\n'.join(f'buffer_load_dwordx4 {vr(LBD[e], 4)}, v{LBA[e]}, {srd(sWS)}, 0 offen sc1' for e in range(2))
lb_setup = fetch(lba0=LBA[0], lba1=LBA[1], lbe0=LBE[0], lbe1=LBE[1])


def flag_store(stage, toks):
    out = [Wait(*toks), I(f'buffer_store_dword v{FLV}, v{FLA}, {srd(sWS)}, 0 offen offset:{128 * stage} sc1')]
    if OPT['ppf']:
        so = (sFST[0], sSST, sFST[2])[stage]
        vpf = L128R if stage else t3
        out = [I(f'v_lshlrev_b32 v{vpf}, {6 if stage < 2 else "s%d" % sSEL[1]}, v{vL}')] + out
        out.append(I(f'buffer_load_dword a{60 + (stage & 1)}, v{vpf}, {srd(sWS)}, s{so} offen sc1'))
    return out


def flag_load(stage):
    return f'buffer_load_dword v{t3}, v{FLP}, {srd(sWS)}, 0 offen offset:{128 * stage} sc1'


flag_check = f'v_cmp_ne_u32 vcc, s{sTAG}, v{t3}'
lb_check = f"""v_bitop3_b32 v{t0}, v{LBD[0] + 1}, v{LBD[0] + 3}, v{LBE[0]} bitop3:0x7e
    v_bitop3_b32 v{t1}, v{LBD[1] + 1}, v{LBD[1] + 3}, v{LBE[1]} bitop3:0x7e
    v_or_b32 v{t0}, v{t0}, v{t1}
    v_cmp_ne_u32 vcc, 0, v{t0}"""
lb_part = stamp('lb0') + poll('lb', lb_loads, lb_check) + stamp('lb1')
lb_part += cmul_add(LBD[0] + 1, LBD[0] + 3, L128R, L128I, LBD[0], LBD[0] + 2, LBD[1], LBD[1] + 2)
lb_part += cmul_add(LBD[1], LBD[1] + 1, WR, WI, LBD[0] + 1, LBD[0] + 3)
lb_part += fetch(lbw=t1)
lb_part.append(I(f'ds_write_b64 v{t1}, {vr(LBD[1], 2)}', tok='lbw'))
HW, HR, HB = ASc[0], ASc[1], FACC[1]
HW2, HR2 = WR, WI
tail_addr = fetch(lbr=ASc[3], fla=FLA, flp=FLP) + L(f'v_mov_b32 v{FLV}, s{sTAG}')
lb_reads = [I(f'ds_read2_b64 {vr(HB + 4 * q, 4)}, v{ASc[3]} offset0:{64 * q} offset1:{64 * q + 32}') for q in range(4)]
scan = [I(f'v_pk_add_f32 {vr(HB + a, 2)}, {vr(HB + a, 2)}, {vr(HB + b_, 2)}')
        for a, b_ in ((0, 2), (4, 6), (8, 10), (12, 14), (0, 4), (8, 12), (0, 8))]
scan += cmul_add(L128R, L128I, LSR, LSI, HB, HB + 1, PR, PI)
pack = lambda q: L(f"""v_cvt_pk_bf16_f32 v{SRE + q}, v{V(2 * q)}, v{V(2 * q + 1)}
    v_cvt_pk_bf16_f32 v{SIM + q}, v{V(2 * q) + 1}, v{V(2 * q + 1) + 1}""")
for r in range(16):
    prev = vr(L128R if r == 0 else V(r - 1), 2)
    scan += L(f"""v_pk_fma_f32 {vr(V(r), 2)}, {prev}, {vr(LR, 2)}, {vr(V(r), 2)} op_sel_hi:[1,0,1]
        v_pk_fma_f32 {vr(V(r), 2)}, {prev}, {vr(NLI, 2)}, {vr(V(r), 2)} op_sel:[1,0,0] op_sel_hi:[0,1,1]""")
    if r >= 2 and r % 2 == 0 and OPT['pk_in']:
        scan += pack(r // 2 - 1)
HRS = AS
transp = fetch(hw=HW, hw2=HW2, hr=HRS[0]) + [I(f'v_xor_b32 v{HRS[n]}, {16 * n}, v{HRS[0]}') for n in (1, 2, 3)] + sum((pack(q) for q in range(7 if OPT['pk_in'] else 0, 8)), [])
for ri in range(2):
    transp += [I(f'ds_write_b128 v{(HW, HW2)[h]}, {vr((SRE, SIM)[ri] + 4 * h, 4)}') for h in range(2)]
    for fr in range(2):
        for u in range(2):
            transp.append(I(f'ds_read_b64_tr_b16 {ar(aOS + 8 * ri + 4 * fr + 2 * u, 2)}, v{HRS[2 * u + fr]} offset:{256 * u}'))
stH = [I(f'buffer_store_dwordx4 {ar(aOS + 4 * q, 4)}, v{VL16}, {srd(sWS)}, s{sSST} offen offset:{1024 * q} sc1',
         tok='stH' if q == 3 else None) for q in range(4)]
h0, h1 = mish_stages(1, 0), mish_stages(1, 1)
g0, g1 = mish_stages(2, 0), mish_stages(2, 1)
pin = pins((0, rw('CR0')), (8, rw('CI0')), (18, rw('WA1')), *([(15 - LA_F, BAR('G10', 'G11'))] if OPT['bsb'] else []), (29, BAR('lbw') + lb_reads + g0['rd'] + g1['rd']), (OPT['lbl'], L(lb_loads)),
           *[(25, stage_load(n)) for n in staged_names[3:4]])
GB = [int(x) for x in str(OPT['stg2']).split('.')]
P += staged(fine('F2', F_items[2], 2), pin, [
    (GB[0], h0['rd'] + h1['rd'] + lb_setup, h0['A']),
    (GB[1], h0['ex'], h0['B'] + h1['A']),
    (GB[2], h0['rc'] + h1['ex'], h0['C'] + h1['B']),
    (GB[3], h0['fin'] + h1['rc'], h1['C']),
    (28, h1['fin'] + lb_part + tail_addr, []),
    (31, [], [])])
P += stamp('F2')
burst = scan + g0['A']
if OPT['fas'] < 0:
    burst = burst[:OPT['fas']] + flag_store(0, ['stF0', 'stF1']) + burst[OPT['fas']:]
if OPT['fine'] == 'T':
    for n in range(len(burst) - 12, 0, -12):
        burst = burst[:n] + stamp(f'g{n}') + burst[n:]
P += burst
P += stamp('scan')


FP0, CP0, FPc = [NLI, LI, LR, CR], [NCI, NCR], QG
PA = OPT['pa']
p3_setup = fetch(fp0=FP0[0], fp1=CP0[0], f3o=ASc[2]) + [I(f'v_xor_b32 v{FP0[n]}, {32 * n}, v{FP0[0]}') for n in (1, 2, 3)]
p3_setup.append(I(f'v_xor_b32 v{CP0[1]}, 64, v{CP0[0]}'))
hs = OPT['hs']
lead = [i_ for i_ in transp if i_.kind != 'ds']
tds = transp[len(lead):]
P += lead
tpins = [(0, tds[0:1]), (1, tds[1:2]), (2, tds[2:4]), (3, tds[4:6]), (4, tds[6:7]), (5, tds[7:8] + stH[0:1]),
         (6, tds[8:10]), (7, tds[10:12] + stH[1:2]), (7 + hs, stH[2:3]), (7 + 2 * hs, stH[3:4])]

steps = ([('WA0', x, 'own') for x in range(4)]
         + [(n, x, 'own') for n in ('CR0', 'CI0') for x in range(2)]
         + [(f'WA{e}', x, 'A') for e in (1, 2, 3) for x in range(4)]
         + [(n, x, 'H') for n in ('CR0', 'CI0') for x in (2, 3)]
         + [(n, x, 'H') for n in ('CR1', 'CI1') for x in range(4)]
         + [('WB0', x, 'own') for x in range(4)]
         + [(f'WB{e}', x, 'B') for e in (1, 2) for x in range(4)])
deferred = [k for k, st in enumerate(steps) if st[2] != 'own']
A_REGS = ([192 + 4 * n for n in range(16)] + [SRE + 4 * n for n in range(8)]
          + [FACC[0] + 4 * n for n in range(4)] + [TT + 4 * n for n in range(4)])
ACC = [128, 144, 160, 176]
cur_addr = {}


def a_frag(k):
    name, x, src = steps[k]
    if src != 'own':
        return vr(A_REGS[deferred.index(k)], 4)
    if name == 'WA0':
        return ar(aOF + 4 * x, 4)
    if name == 'WB0':
        return ar(aOF + 16 + 4 * x, 4) if x < 2 else vr(FACC[1] + 4 * (x - 2), 4)
    return ar(aOS + 8 * (name[1] == 'I') + 4 * x, 4)


def a_load(k):
    name, x, src = steps[k]
    e = int(name[2])
    if name[0] == 'C':
        so, off = sAO['H'][2 * e + (x >> 1)], 2048 * (name[1] == 'I') + 1024 * (x & 1)
    else:
        so, off = sAO[name[1]][e], 1024 * x
    return [I(f'buffer_load_dwordx4 {a_frag(k)}, v{VL16}, {srd(sWS)}, s{so} offen offset:{off} sc1')]


pin = pins((PA, rw2('WA2')), (PA + 8, BAR()), (PA + 9, rw2('WA3')), (PA + 17, BAR()), (PA + 18, rw2('CR1')),
           (OPT['fal'], L(flag_load(0))), (30, BAR('WA0', 'CR0', 'CI0', 'WA1')), *tpins)
if OPT['fhs'] >= 0:
    pin.setdefault(OPT['fhs'], []).extend(flag_store(1, ['stH']))
if OPT['fas'] >= 0:
    pin.setdefault(OPT['fas'], []).extend(flag_store(0, ['stF0', 'stF1']))
m3 = mish_pk(3, ASc[2])
GC = [int(x) for x in str(OPT['stg3']).split('.')]
P += staged(fine('F3', F_items[3], 2), pin, [
    (GC[0], g0['ex'], g0['B'] + g1['A']),
    (GC[1], g0['rc'] + g1['ex'], g0['C'] + g1['B']),
    (GC[2], g0['fin'] + g1['rc'], g1['C']),
    (29, g1['fin'][:4] + m3[:4] + g1['fin'][4:] + p3_setup, []),
    (31, [], [])])
P += stamp('F3')

m3 = m3[4:]
st0 = 40
early = sum((a_load(k) for k in range(8, 8 + OPT['nea'])), [])
if not OPT['ovl']:
    fac = st0 - OPT['fac']
    TAIL0 = len(P)
    P += m3[:fac] + (flag_store(1, ['stH']) if OPT['fhs'] == -1 and not OPT['fhp'] else [])
    P += stamp('fa0') + poll('fa', flag_load(0), flag_check) + stamp('fa1')
    tl = merge(m3[fac:st0], early) + (flag_store(1, ['stH']) if OPT['fhp'] else []) + m3[st0:]
    TAIL1 = len(P) + len(tl) - len(m3) + st0
    if OPT['fine'] == 'T':
        for n in range(len(tl) - 12, 0, -12):
            tl = tl[:n] + stamp(f'gt{n}') + tl[n:]
    P += tl
    P += stamp('tail')

XE, ME = 192, LSR
ep_setup = L(f"""v_lshrrev_b32 v{t1}, 5, v{vL}
    s_lshl_b32 s{sT2}, s{sW}, 8
    s_add_u32 s{sT2}, s{sT2}, {T_STAT}
    v_lshl_add_u32 v{VLN2}, v{t1}, 4, s{sT2}
    v_lshlrev_b32 v{FA0}, 13, v{t1}
    v_and_b32 v{t0}, 31, v{vL}
    v_lshl_add_u32 v{FA0}, v{t0}, 2, v{FA0}""")
VL4 = ASc[0]
ep_setup = L(f'v_lshlrev_b32 v{VL4}, 2, v{vL}') + ep_setup
base_calc = [I(f'v_accvgpr_read_b32 v{RL2}, a{aXE + 16}')]
for qt in range(4):
    base_calc += [I(f'ds_read_b128 {vr(ME, 4)}, v{VLN2} offset:{4 * ROW(4 * qt)}', hoist=True),
                  I(f'ds_read_b128 {vr(ME + 4, 4)}, v{VLN2} offset:{128 + 4 * ROW(4 * qt)}', hoist=True)]
    rs = range(4)
    base_calc += [I(f'v_accvgpr_read_b32 v{XE + 4 * qt + r}, a{aXE + 4 * qt + r}') for r in rs]
    base_calc += [I(f'v_sub_f32 v{ME + r}, v{XE + 4 * qt + r}, v{ME + r}') for r in rs]
    base_calc += [I(f'v_mul_f32 v{ME + r}, v{ME + r}, v{ME + 4 + r}') for r in rs]
    base_calc += [I(f'v_fmac_f32 v{XE + 4 * qt + r}, v{ME + r}, v{RL2}') for r in rs]

def checksum(dst, src, last):
    return [f'v_bitop3_b32 v{dst}, v{src}, v{src + 1}, {last} bitop3:0x96'] + \
           [f'v_bitop3_b32 v{dst}, v{src + e}, v{src + e + 1}, v{dst} bitop3:0x96' for e in (2, 4, 6)]


def send(b):
    A = ACC[b]
    out = []
    for q in range(2):
        out += [I(f'v_cvt_pk_bf16_f32 v{A + e}, v{A + 2 * e}, v{A + 2 * e + 1}') for e in range(4 * q, 4 * q + 4)]
        out.append(I(f'buffer_store_dwordx4 {vr(A + 4 * q, 4)}, v{VL16}, {srd(sWS)}, s{sXO[b]} offen '
                     f'offset:{1024 * q} sc1'))
    out += [I(c) for c in checksum(A + 8, A, f's{sTAG}')]
    out.append(I(f'buffer_store_dword v{A + 8}, v{VL4}, {srd(sWS)}, s{sXO[b]} offen offset:2048 sc1'))
    return out


def w_read1(k, b, dst):
    name, x, src = steps[k]
    slot = W_SLOT[name]
    out = []

    def address(cur, base):
        if slot < 4:
            return base, slot * SLOT
        if not 0 <= slot - cur_addr.get(cur, -9) < 4:
            cur_addr[cur] = 4 if slot == 4 else 5
            out.append(I(f'v_add_u32 v{cur}, {cur_addr[cur] * SLOT}, v{base}'))
        return cur, (slot - cur_addr[cur]) * SLOT

    if name[0] == 'C':
        a, off = address(AS[x >> 1], CP0[x >> 1])
        return out + [I(f'ds_read_b128 {ar(dst, 4)}, v{a} offset:{off + 4096 * b + 2048 * (x & 1)}', lds_r=slot)]
    var = 2 * (b & 1) + (x & 1)
    a, off = address(FPc[var], FP0[var])
    return out + [I(f'ds_read_b64_tr_b16 {ar(dst + 2 * u, 2)}, v{a} '
                    f'offset:{off + 8192 * (x >> 1) + 4096 * (b >> 1) + 1024 * u}', lds_r=slot) for u in range(2)]


RX = {1: ACC[1], 2: ACC[2], 3: ACC[3]}


def recv(b):
    so = sXO[0] if b == 1 else sSEL[b]
    rl = [f'buffer_load_dwordx4 {vr(RX[b] + 4 * q, 4)}, v{VL16}, {srd(sWS)}, s{so} offen offset:{1024 * q} sc1' for q in range(2)]
    rl.append(f'buffer_load_dword v{RX[b] + 8}, v{VL4}, {srd(sWS)}, s{so} offen offset:2048 sc1')
    return '\n'.join(rl)


pre = L(f"""s_lshl_b32 s{sXB}, s{sXB}, 1
    s_mov_b32 s{sKC[0]}, 0x00003f80
    s_mov_b32 s{sKC[1]}, 0x3f800000""")
E3 = OPT['e3']
D0 = OPT['d0']
seq = [(k, b) for k in range(D0) for b in (1, 2, 3, 0)] + [(k, b) for k in range(D0, E3) for b in (1, 2, 3)]
seq += [(k, b) for k in range(E3, 36) for b in (1, 2)]
seq += [(k, b) for b in (1, 2) for k in range(36, 44)]
own8 = [(k, 0) for k in range(8, 12)]
seq += (own8 if OPT['o8'] else []) + [(k, 3) for k in range(E3, 44)] + ([] if OPT['o8'] else own8)
seq += [(k, 0) for k in list(range(D0, 8)) + list(range(12, 44))]
at = {kb: n for n, kb in enumerate(seq)}
done_at = {b: at[43, b] for b in (1, 2, 3)}
KEEP = {(k, 0): aWO + 4 * (k - 8) for k in range(8, 12)}
KEEP.update({(k, 0): aWO + 16 + 4 * k for k in range(D0, 4)})
reads = sorted((kb for kb in seq), key=lambda kb: at[kb[0], 3] + 0.5 if kb in KEEP else at[kb])
RING = 12
where, nring = {}, 0
for kb in reads:
    if kb in KEEP:
        where[kb] = KEEP[kb]
    else:
        where[kb] = aP + 4 * (nring % RING)
        nring += 1
LA_J = OPT['laj']
items = []
rd = 0
seen = set()
for n, (k, b) in enumerate(seq):
    pre_rd = []
    while rd < len(reads) and (at[reads[rd][0], 3] if reads[rd] in KEEP else at[reads[rd]]) <= n + LA_J:
        pre_rd += w_read1(*reads[rd], where[reads[rd]])
        rd += 1
    mm = []
    for a in range(2):
        d = vr(ACC[b] + 8 * a + 4 * (k & 1), 4)
        mm.append(I(f'v_mfma_f32_16x16x32_bf16 {d}, {a_frag((k & ~1) + a)}, {ar(where[k, b], 4)}, '
                    f'{d if (b, k & 1) in seen else 0}'))
    seen.add((b, k & 1))
    if n == 0:
        if OPT['ovl']:
            k_ = max(n_ for n_, i_ in enumerate(P) if i_.kind == 'barrier') + 1
            P = P[:k_] + pre_rd + P[k_:]
        elif OPT['wmix']:
            end = len(P) - (PROF in (1, 2)) - 10
            P = P[:TAIL1] + merge(P[TAIL1:end], pre_rd) + P[end:]
        else:
            P = P[:TAIL0] + pre_rd + P[TAIL0:]
        pre_rd = []
    nds = [n_ for n_, i_ in enumerate(pre_rd) if i_.kind == 'ds']
    half = nds[len(nds) // 2] if OPT['bal'] and len(nds) > 1 else len(pre_rd)
    items.append([mm[0]] + pre_rd[:half] + [mm[1]] + pre_rd[half:])
pin = {n: [] for n in range(len(items))}
B1 = at[4, 1] + 2
pin[B1] += BAR('WA2')
pin[at[16, 1] - LA_J - 1] += [Wait('WA3', 'CR1', 'CI1'), I('s_barrier')]
pin[at[32, 1] - LA_J - 1] += [Wait('WB0', 'WB1', 'WB2'), I('s_barrier')]
if OPT['fhs'] < -1:
    pin[-OPT['fhs']] += flag_store(1, ['stH'])
if OPT['fhl'] >= 0:
    pin[OPT['fhl']] += L(flag_load(1))
pin[OPT['fhc']] += stamp('fh0') + poll('fh', flag_load(1), flag_check) + stamp('fh1')
pin[OPT['fls']] += flag_store(2, ['stF3', 'stF2'])
pin[OPT['fll']] += L(flag_load(2))
pin[OPT['flc']] += stamp('fl0') + poll('fl', flag_load(2), flag_check) + stamp('fl1')
pin[at[36, 1] - 1] += stamp('k36')
for name, gap in (('CI1', 1), ('WB0', 19), ('WB1', 24), ('WB2', at[16, 1] - LA_J)):
    if name in STAGE:
        for n, i_ in enumerate(stage_write(name)):
            pin[gap + max(n - 2, 0)].append(i_)
_rw = rw
rw = lambda name: [] if name in STAGE else _rw(name)
queue = []
if OPT['ovl']:
    pin[OPT['ofa']] += stamp('fa0') + poll('fa', flag_load(0), flag_check) + stamp('fa1')
    queue += [(OPT['ofa'], a_load(k)) for k in range(8, 8 + OPT['nea'])]
queue += [(OPT['q0'], a_load(k)) for k in range(8 + OPT['nea'], 16)] + [(0, rw('CI1'))]
queue += [(OPT['q0'], a_load(k)) for k in range(max(16, 8 + OPT['nea']), 20)]
if OPT['qord'] == 0:
    queue += [(B1 + 1, rw('WB0'))] + [(OPT['fhc'], a_load(k)) for k in range(20, 32)] + [(B1 + 1, rw('WB1'))]
elif OPT['qord'] == 1:
    queue += [(B1 + 1, rw('WB0')), (B1 + 1, rw('WB1'))] + [(OPT['fhc'], a_load(k)) for k in range(20, 32)]
else:
    queue += [(OPT['fhc'], a_load(k)) for k in range(20, 24)] + [(B1 + 1, rw('WB0')), (B1 + 1, rw('WB1'))]
    queue += [(0, a_load(k)) for k in range(24, 32)]
queue += [(at[16, 1] - LA_J, rw('WB2'))]
queue += [(OPT['flc'], a_load(k)) for k in range(36, 44)]
n = 0.0
for first_gap, ins in queue:
    n = max(n, first_gap)
    pend = []
    for i_ in ins:
        pend.append(i_)
        if i_.kind == 'vm':
            pin[int(n)] += pend
            pend = []
            n += OPT['pace'] / 10
for b in (1, 2, 3):
    sd = send(b)
    for q in range(4):
        pin[done_at[b] + 3 + q] += sd[q * len(sd) // 4:(q + 1) * len(sd) // 4]
    pin[done_at[min(b + 1, 3) if b < 3 else 3] + OPT[f'r{b}'] if b != 2 else done_at[2] + OPT['r2']] += L(recv(b))
pin[done_at[2] + 6] += stamp('s12')
pin[done_at[3] + 6] += stamp('sent')
items = fine('P3', items[:OPT['fn'] * 27], OPT['fn']) + items[OPT['fn'] * 27:]
LEV[0] = OPT['lev3']
sub = lambda lo, hi: {n - lo: pin[n] for n in range(lo, hi)}
unit_weave = weave


def weave(its, fill_, pin_, lo=0, hi=None):
    if not OPT['fineg']:
        return unit_weave(its, fill_, pin_, lo, hi)
    flat, pin2 = [], {}
    for n, it in enumerate(its):
        cut_ = max(k_ for k_, i_ in enumerate(it) if i_.kind == 'mfma')
        flat += [it[:cut_], it[cut_:]]
        ordered = any(i_.kind in ('barrier', 'pseudo', 'label') for i_ in pin_.get(n, []))
        first = len(flat[-2]) < len(flat[-1]) and not ordered
        pin2[2 * n + (0 if first else 1)] = pin_.get(n, [])
    return unit_weave(flat, fill_, pin2, 2 * lo, None if hi is None else 2 * hi + 1)


c1, c2 = at[32, 1], at[11, 0] + 1
if OPT['ovl']:
    GD = [int(x) for x in str(OPT['stg4']).split('.')]
    both = lambda lo, hi: m3[lo:hi] + m3[40 + lo:40 + hi]
    P += staged(items[:c1], pin, [(GD[0], [], both(0, 4)), (GD[1], both(4, 12), both(12, 20)),
                                  (GD[2], both(20, 28), both(28, 36)),
                                  (GD[3], both(36, 40) + m3[80:] + stamp('tail'), []), (c1 - 1, [], [])])
else:
    P += weave(items[:c1], [], sub(0, c1))
P += weave(items[c1:c2], ep_setup + pre, sub(c1, c2), 0, 6)
SWAPS = lambda R: [I(f'v_permlane16_swap_b32 v{R + 8 * a + r}, v{R + 8 * a + 4 + r}') for a in range(2) for r in range(4)]
base_calc += SWAPS(XE)


def rx_check(b):
    chk = checksum(RX[b] + 9, RX[b], f'v{RX[b] + 8}') + [f'v_cmp_ne_u32 vcc, s{sTAG}, v{RX[b] + 9}']
    return poll(f'rx{b}', '\n'.join(recv(x) for x in range(b, 4 if OPT['rxall'] else b + 1)), '\n'.join(chk))


EARLY = range(1, 1 + OPT['rxe'])
for b in EARLY:
    base_calc += rx_check(b)
    for q in range(8):
        u = RX[b] + 10 + 2 * (q & 1)
        base_calc += L(f"""v_lshlrev_b32 v{u}, 16, v{RX[b] + q}
            v_and_b32 v{u + 1}, 0xffff0000, v{RX[b] + q}
            v_add_f32 v{XE + 2 * q}, v{XE + 2 * q}, v{u}
            v_add_f32 v{XE + 2 * q + 1}, v{XE + 2 * q + 1}, v{u + 1}""")
P += weave(items[c2:], base_calc, sub(c2, len(items)), 3, len(items) - c2 - (3 if OPT['rxe'] else 6))
P += stamp('own')
A0 = ACC[0]
for q in range(8):
    P.append(I(f'v_pk_add_f32 {vr(A0 + 2 * q, 2)}, {vr(A0 + 2 * q, 2)}, {vr(XE + 2 * q, 2)}'))
LATE = [b for b in (1, 2, 3) if b not in EARLY]
for b in LATE:
    P += rx_check(b)
    if OPT['seqadd'] and b < 3:
        P += [I(f'v_dot2c_f32_bf16 v{A0 + 2 * q + h}, s{sKC[h]}, v{RX[b] + q}') for q in range(8) for h in range(2)]
if OPT['seqadd']:
    LATE = [3]
P += stamp('rx')
sts = []
for a in range(2):
    for q in range(4 * a, 4 * a + 4):
        for b in LATE:
            P += [I(f'v_dot2c_f32_bf16 v{A0 + 2 * q + h}, s{sKC[h]}, v{RX[b] + q}') for h in range(2)]
        P += sts[3 * (q & 3):3 * (q & 3) + 3]
    P += SWAPS(A0)[4 * a:4 * a + 4]
    sts = []
    for q in range(4 * a, 4 * a + 4):
        sts.append(I(f's_add_u32 s{sBB}, s{sXB}, {2048 * ROW(2 * q)}'))
        sts += [I(f'buffer_store_dword v{A0 + 2 * q + h}, v{FA0}, {srd(sOUT)}, s{sBB} offen offset:{2048 * h} '
                  f'{OPT["out_flags"].replace("+", " ")}') for h in range(2)]
P += L(f"""s_lshl_b32 s{sT2}, s{sJ}, 2
    s_add_u32 s{sT2}, s{sT2}, s{sW}
    s_xor_b32 s{sT1}, s{sI}, 15
    s_or_b32 s{sT2}, s{sT2}, s{sT1}
    s_cmp_eq_u32 s{sT2}, 0
    s_cselect_b32 s{sT2}, {WS_EP}, {OOB:#x}
    v_mov_b32 v{t0}, s{sE2}
    v_mov_b32 v{t1}, s{sT2}""") + sts + L(f'buffer_store_dword v{t0}, v{t1}, {srd(sWS)}, 0 offen')
if OPT['diag']:
    P += stamp('end') + L("""s_memrealtime s[6:7]
        s_waitcnt lgkmcnt(0)
        s_sub_u32 s4, s4, s23
        s_lshl_b32 s4, s4, 2
        s_min_u32 s4, s4, 20000
        L_diag:
        s_memrealtime s[0:1]
        s_waitcnt lgkmcnt(0)
        s_sub_u32 s0, s0, s6
        s_cmp_lt_u32 s0, s4
        s_cbranch_scc1 L_diag""")
if OPT['dbg']:
    P += L(f"""s_memrealtime s[6:7]
        s_mov_b32 s{sTMP}, s4
        s_mov_b32 s{sTMP + 1}, s5
        s_mov_b32 s{sTMP + 2}, 256
        v_lshlrev_b32 v{t0}, 2, v{vL}
        v_lshrrev_b32 v{t1}, v{t0}, s23
        v_and_b32 v{t1}, 15, v{t1}
        v_min_u32 v{t1}, 1, v{t1}
        v_mov_b32 v{t2}, {OOB:#x}
        v_cmp_gt_u32 vcc, 7, v{vL}
        s_waitcnt lgkmcnt(0)
        v_cndmask_b32 v{t0}, v{t2}, v{t0}, vcc
        buffer_atomic_add v{t1}, v{t0}, {srd(sTMP)}, 0 offen
        s_sub_u32 s6, s6, s19
        v_mov_b32 v{t1}, s6
        v_cmp_eq_u32 vcc, 8, v{vL}
        v_lshlrev_b32 v{t0}, 2, v{vL}
        s_nop 0
        v_cndmask_b32 v{t0}, v{t2}, v{t0}, vcc
        buffer_atomic_umax v{t1}, v{t0}, {srd(sTMP)}, 0 offen""")
if PROF:
    P += stamp('end')
    P += L(f"""s_waitcnt vmcnt(0)
        s_memrealtime s[0:1]
        s_lshl_b32 s{sT2}, s2, 2
        s_add_u32 s{sT2}, s{sT2}, s{sW}
        s_lshl_b32 s{sT2}, s{sT2}, 7
        s_add_u32 s{sT2}, s{sT2}, {WS_PROF}
        v_mov_b32 v{t1}, s{sT2}
        s_waitcnt lgkmcnt(0)
        v_mov_b32 v{t0}, s0
        buffer_store_dword v{t0}, v{t1}, {srd(sWS)}, 0 offen offset:124
        v_mov_b32 v{t2}, s23
        buffer_store_dword v{t2}, v{t1}, {srd(sWS)}, 0 offen offset:112
        buffer_store_dword a254, v{t1}, {srd(sWS)}, 0 offen offset:116
        buffer_store_dword a255, v{t1}, {srd(sWS)}, 0 offen offset:120""")
    P += stamp('DUMP')
P += [I('L_end:'), I('s_endpgm')]

P = resolve_stamps(P)
if OPT['split']:
    P = split_ds_pairs(P)
if OPT['hoist']:
    P = hoist_reads(P, OPT['hoist'])
body = pad_hazards(insert_waits(P, OPT['age']))
check_polls(body)
tail = []
for name, loads, check in retry_blocks:
    blk = [I(f'L_retry_{name}:'), I(f's_mov_b32 s3, {OPT["spin"]}'), I(f'L_spin_{name}:')]
    if PROF or OPT['dbg']:
        blk.append(I(f's_add_u32 s23, s23, {1 << (4 * retry_blocks.index((name, loads, check)))}'))
    blk += L(loads) + [I('s_waitcnt vmcnt(0)')] + L(check)
    blk += L(f'''s_cbranch_vccz L_back_{name}
        s_sub_u32 s3, s3, 1
        s_cmp_lg_u32 s3, 0
        s_cbranch_scc1 L_spin_{name}
        s_branch L_back_{name}''')
    tail += pad_hazards(blk)

hdr = open(os.path.join(os.path.dirname(os.path.abspath(__file__)), 'header.txt')).read()
text = hdr + f'''; @launch grid=(256,1,1) block=(256,1,1) lds=163840
.amdgcn_target "amdgcn-amd-amdhsa--gfx950"
.text
.globl {KN}
.p2align 8
.type {KN},@function
{KN}:
{render(body)}
{render(tail)}
L_code_end:
    s_endpgm
.section .rodata,"a"
.p2align 6
.amdhsa_kernel {KN}
  .amdhsa_next_free_vgpr 512
  .amdhsa_next_free_sgpr 102
  .amdhsa_accum_offset 256
  .amdhsa_group_segment_fixed_size 0
  .amdhsa_kernarg_size 128
  .amdhsa_user_sgpr_count 2
  .amdhsa_user_sgpr_kernarg_segment_ptr 1
  .amdhsa_system_sgpr_workgroup_id_x 1
.end_amdhsa_kernel
'''
open(sys.argv[1], 'w').write(text)
if PROF:
    open(sys.argv[1][:-2] + '.stamps', 'w').write(' '.join(stamp_names))
from collections import Counter
cnt = Counter(i.kind for i in body)
print(dict(cnt), 'nops', sum(1 for i in body if i.mn == 's_nop'))
import subprocess
chk = subprocess.run([sys.executable, 'cdna_unwritten_srd_check.py', sys.argv[1]],
                     capture_output=True, text=True)
if chk.returncode != 0:
    os.remove(sys.argv[1])
    sys.exit('address check failed: ' + chk.stdout[-600:])
```

```python
import sys, os
sys.path.insert(0, os.path.dirname(os.path.abspath(__file__)))
from asmlib import I, Wait, insert_waits, pad_hazards, render, weave, split_ds_pairs, hoist_reads, merge, level, ds_first, check_polls

KN = 'parallel_sum__ssm_conv_s5__dense_activation_mish__prompt_kernel'
OPT = dict(prof=0, spin=20000, out_flags='nt', map='8x4', pf=2, age=16, laf=5, r1=30, r2=36, r3=29, e3=12, fls=28, fll=50, flc=68, ka2=1, nstep=0, split=0, diag='', dsp=2, xel=0, tlb=0, pk_in=1, lateln=100, d0=4, o8=1, bal=0, fineg=1, xes=0, xfirst=1, parat=4, nb0=2, stg3='8.16.23', stg1='2.7.12.17.22.27', stg2='2.6.14.21', fhp=0, wmix=1, ntx=0, ntg=0, ntw=0, lbt=0, rxe=0, dspc=3, dsps=3, sch=3, g3=24, fn=2, stg=0, q0=2, pfat=24, seqadd=1, lean=1, lb2s=1, xlds=0, deep=0, back=1, early=0, ncr=2, cpf=1, rxall=1, dbg=0, cfs=1, bsp=2, bsa=2, bsb=0, ovl=0, ofa=0, stg4='1.9.17.21', g10=8, wa0=17, hs=2, rotj=0, rotm=0, laj=7, pace=16, lev=0, lev3=0, pa=2, fw=1, xw=0, vmc=2, fine='', fas=-10, fal=12, fac=16, nea=8, fhs=-1, fhl=12, fhc=32, qord=1, lbl=13, lbc=24, ppf=0, hoist=32)
for a in sys.argv[2:]:
    k, v = a.split('=')
    OPT[k] = int(v) if v.lstrip('-').isdigit() else v
PROF = OPT['prof']

WS_EP, WS_AG, WS_A = 0, 0x10000, 0x40000
WS_XC = WS_A + 64 * 176 * 1024
XC_BLK = 2560
WS_FL = WS_XC + 1024 * 3 * XC_BLK
WS_SIZE = WS_FL + 1024 * 512
WS_PROF = 0x1C00000
OOB = 0x7ff00000
SLOT = 16384
TB = 9 * SLOT
T_STAT, T_B1, T_SEG, T_LB, T_H = TB, TB + 1024, TB + 2048, TB + 6144, TB + 8192
LOG2E, LN2, M2LN2 = 0x3fb8aa3b, 0x3f317218, 0xbfb17218

sX, sB, sW1, sCre, sCim, sW2, sWS, sOUT, sTMP = 36, 40, 44, 48, 52, 56, 60, 64, 68
sI, sJ, sW, sROT, sTAG, sE2 = 72, 73, 74, 75, 76, 77
sKC = [78, 79, 80, 81]
sWOFF, sT0, sT1, sXB, sBB, sW1A, sW1B = 82, 83, 84, 85, 86, 87, 88
sAS = 89
sFST = [90, 91, 92, 93]
sSST, sCB, sW2B, sFSEL, sONES, sT3, sJJ, sT2 = 94, 95, 96, 97, 98, 99, 100, 101
sKQ, sPB, sXO = 22, [24, 25, 26], [27, 28, 29, 30]
sSEL = [31, 32, 33, 34]
sFLG = 35
pLRE, pLIM, pBRE, pBIM, pLDT, pDSK, pB1 = 8, 10, 12, 14, 16, 18, 20
srd = lambda b: f's[{b}:{b + 3}]'
vL, t0, t1, t2 = 0, 1, 2, 3
AS = [4, 5, 6, 7]
ASc = [8, 9, 10, 11]
XG = [12, 13, 14, 15]
PG = [16, 17, 18, 19]
QG = [20, 21, 22, 23]
FA0, FAc, RL2, VLN2, VL16, VNM, VRS, t3 = 24, 25, 26, 27, 28, 29, 30, 31
FAd = VNM
NLI, LI, LR, CR, NCI, NCR, L16R, L16I, LSR, LSI, L128R, L128I, WR, WI, PR, PI = range(32, 48)
TT = 48
FACC = [64, 80]
SRE, SIM = 96, 112
X = 128
aS, aF, aP, aOF, aOS, aWO, aXE = 0, 128, 0, 64, 88, 128, 224
STAMP_A = list(range(104, 128)) + list(range(241, 247))
vr = lambda b, n: f'v[{b}:{b + n - 1}]'
ar = lambda b, n: f'a[{b}:{b + n - 1}]'

stamp_names = []
FINE_KEEP = dict(T=['lb1', 'F2', 'scan', 'F3', 'fa0', 'fa1', 'tail', 'fh0'], S=['x7', 'c27', 'b0', 'F0'], F0=['b2', 'F0', 'F1'], F2=['F1', 'F2', 'scan'], F3=['F2', 'scan', 'F3', 'fa0', 'fa1', 'tail'],
                 P3=['tail'], L=['k36', 'sent', 'own', 'rx'])


def fine(phase, items, step):
    if OPT['fine'] == phase:
        for n in range(step - 1, len(items), step):
            items[n] = items[n] + stamp(f'g{n}')
    return items


def stamp(name):
    if PROF == 3 and name not in ('end', 'DUMP'):
        return []
    if OPT['fine'] and not name.startswith('g') and name not in FINE_KEEP[OPT['fine']] + ['end', 'DUMP']:
        return []
    if OPT['diag'] == name:
        return [I('s_memrealtime s[4:5]')]
    return [I(';stamp ' + name)] if PROF else []


def resolve_stamps(prog):
    out = []
    for ins in prog:
        if not ins.text.startswith(';stamp '):
            out.append(ins)
            continue
        name = ins.text.split()[1]
        n = len(stamp_names)
        if n:
            out.append(I(f'v_accvgpr_write_b32 a{STAMP_A[n - 1]}, s{4 + 2 * ((n - 1) & 1)}'))
        if name == 'DUMP':
            out += [I(f'buffer_store_dword a{STAMP_A[k]}, v{t1}, {srd(sWS)}, 0 offen offset:{4 * k}') for k in range(n)]
            continue
        assert n < 29
        stamp_names.append(name)
        out.append(I(f's_mem{"real" if PROF == 2 else ""}time s[{4 + 2 * (n & 1)}:{5 + 2 * (n & 1)}]'))
    return out


def L(text):
    return [I(t.strip()) for t in text.strip().split('\n') if t.strip()]


def mfma(d, a, b, c):
    return I(f'v_mfma_f32_32x32x16_bf16 {d}, {a}, {b}, {c}')


def mksrd(b, lo, size):
    return f's_mov_b32 s{b}, s{lo}\ns_mov_b32 s{b + 1}, s{lo + 1}\ns_mov_b32 s{b + 2}, {size}\ns_mov_b32 s{b + 3}, 0x00020000\n'


slot_shared = {}


def dma_round(name, slot, voffs, rsrc, soff_code, shared):
    out = [I(f's_add_u32 m0, s{sWOFF}, {slot * SLOT}')] + L(soff_code)
    for g in range(4):
        nt = int(name[1:]) < OPT['ntx'] if name[0] == 'x' else OPT['ntg'] if name[0] == 'G' else OPT['ntw']
        out.append(I(f'buffer_load_dwordx4 v{voffs[g]}, {srd(rsrc)}, s{sT0} offen offset:{1024 * g} {"nt " if nt else ""}lds',
                     tok=name if g == 3 else None,
                     lds_w=(slot, slot_shared.get(slot, False)) if g == 0 else None, note=name,
                     fills=(slot, shared) if g == 3 else None))
    slot_shared[slot] = shared
    return out


XSLOT = lambda s: (s & 3) + (5 if OPT['early'] and s < 4 else 1)


def rx(s, slot):
    return dma_round(f'x{s}', XSLOT(s), XG, sX,
                     f's_add_u32 s{sT0}, s{sROT}, {s}\ns_and_b32 s{sT0}, s{sT0}, 7\n'
                     f's_lshl_b32 s{sT0}, s{sT0}, 7\ns_add_u32 s{sT0}, s{sT0}, s{sXB}', False)


G_SLOT = [5, 6, 7, 8, 0, 1, 2, 3, 4, 5, 6, 7]
W_SLOT = dict(WA0=8, CR0=0, CI0=1, WA1=2, WA2=3, WA3=4, CR1=5, CI1=6, WB0=7, WB1=8, WB2=2)


def rg(g):
    if g < 4:
        return dma_round(f'G{g}', G_SLOT[g], PG, sB,
                         f's_lshl_b32 s{sT0}, s{sKC[g]}, 7\ns_add_u32 s{sT0}, s{sT0}, s{sBB}', True)
    base = sW1A if g < 8 else sW1B
    return dma_round(f'G{g}', G_SLOT[g], QG, sW1,
                     f's_mul_i32 s{sT0}, s{sKC[g & 3]}, {64 * 3584}\ns_add_u32 s{sT0}, s{sT0}, s{base}', True)


def rw(name):
    e = int(name[2])
    if name[0] == 'C':
        code = f's_xor_b32 s{sT0}, s{sCB}, {128 * e}'
        return dma_round(name, W_SLOT[name], PG, sCim if name[1] == 'I' else sCre, code, True)
    if name[1] == 'A':
        code = f's_xor_b32 s{sT0}, s{sJJ}, {e}\ns_lshl_b32 s{sT0}, s{sT0}, 17\ns_add_u32 s{sT0}, s{sT0}, s{sW2B}'
    else:
        code = f's_lshl_b32 s{sT0}, s{sPB[e]}, 16\ns_add_u32 s{sT0}, s{sT0}, s{sW2B}'
        if e == 0:
            code += f'\ns_xor_b32 s{sT0}, s{sT0}, s{sSEL[0]}'
    return dma_round(name, W_SLOT[name], XG, sW2, code, True)


STAGE = {n: 160 + 16 * k for k, n in enumerate(x for x in str(OPT['stg']).split('.') if x != '0')}
VST = t0


def stage_load(name):
    keep = dict(slot_shared)
    out = []
    for i_ in rw(name)[1:]:
        if i_.kind == 'vm':
            n = sum(j.kind == 'vm' for j in out)
            i_ = I(i_.text.replace('dwordx4 ', f'dwordx4 {ar(STAGE[name] + 4 * n, 4)}, ').replace(' lds', ''))
            i_.dma = True
        out.append(i_)
    slot_shared.clear()
    slot_shared.update(keep)
    return out


def stage_write(name):
    slot = W_SLOT[name]
    out = [I(f's_add_u32 s{sT0}, s{sWOFF}, {slot * SLOT}'), I(f'v_add_u32 v{VST}, s{sT0}, v{VL16}')]
    out += [I(f'ds_write_b128 v{VST}, {ar(STAGE[name] + 4 * g_, 4)} offset:{1024 * g_}', tok=name if g_ == 3 else None,
              lds_w=(slot, True) if g_ == 0 else None, note=name, fills=(slot, True) if g_ == 3 else None)
            for g_ in range(4)]
    return out


def rw2(name):
    if name not in STAGE:
        return rw(name)
    out = stage_write(name)
    for i_ in out[2:]:
        i_.dma = True
    return out


def pins(*parts):
    pin = {}
    for gap, ins in parts:
        head = [i_ for i_ in ins if not getattr(i_, 'dma', False)]
        pin.setdefault(gap, []).extend(head)
        for n, i_ in enumerate(ins[len(head):]):
            pin.setdefault(gap + n * OPT['dsp'], []).append(i_)
    return pin


BAR = lambda *toks: ([Wait(*toks)] if toks else []) + [I('s_barrier')]
PARK = {n: 247 if k == 16 else 48 + k for k, n in enumerate('pub seg lba0 lba1 lbe0 lbe1 fla flp lbw lbr hw hw2 hr hr2 f3o fp0 fp1'.split())}
PARK['pfa'] = 249


def park(**regs):
    return [I(f'v_accvgpr_write_b32 a{PARK[n]}, v{r}') for n, r in regs.items()]


def fetch(**regs):
    return [I(f'v_accvgpr_read_b32 v{r}, a{PARK[n]}') for n, r in regs.items()]


retry_blocks = []


def poll(name, loads, check):
    retry_blocks.append((name, loads, check))
    return L(check) + [I(f's_cbranch_vccnz L_retry_{name}'), I(f'L_back_{name}:')]


def cexp(dr, di, scale, zr, za):
    return L(f"""v_mul_f32 v{dr}, {scale}, v{zr}
        v_mul_f32 v{di}, {scale}, v{za}
        v_exp_f32 v{dr}, v{dr}
        v_fract_f32 v{di}, v{di}
        v_cos_f32 v{t3}, v{di}
        v_sin_f32 v{di}, v{di}
        v_mul_f32 v{di}, v{dr}, v{di}
        v_mul_f32 v{dr}, v{dr}, v{t3}""")


def cmul_add(dr, di, ar_, ai, br, bi, cr=None, ci=None):
    if cr is None:
        head = f'v_mul_f32 v{dr}, v{ar_}, v{br}\nv_mul_f32 v{di}, v{ar_}, v{bi}'
    else:
        head = f'v_fma_f32 v{dr}, v{ar_}, v{br}, v{cr}\nv_fma_f32 v{di}, v{ar_}, v{bi}, v{ci}'
    return L(head + f'\nv_fma_f32 v{dr}, -v{ai}, v{bi}, v{dr}\nv_fmac_f32 v{di}, v{ai}, v{br}')


def mish(b, voff=VL16, quarters=range(4)):
    A = FACC[b & 1]
    out = []
    for q in quarters:
        rs = range(4 * q, 4 * q + 4)
        out.append(I(f'ds_read_b128 {vr(TT + 4 * q, 4)}, v{t2} offset:{T_B1 - TB + 128 * b + 16 * q}', hoist=True))
        out += [I(f'v_fmac_f32 v{TT + r}, v{A + r}, v{RL2}') for r in rs]
        out += [I(f'v_exp_f32 v{A + r}, v{TT + r}') for r in rs]
        out += [I(f'v_add_f32 v{A + r}, 1.0, v{A + r}') for r in rs]
        out += [I(f'v_fma_f32 v{A + r}, v{A + r}, v{A + r}, 1.0') for r in rs]
        out += [I(f'v_rcp_f32 v{A + r}, v{A + r}') for r in rs]
        out += [I(f'v_fmamk_f32 v{A + r}, v{A + r}, {M2LN2:#x}, v{VLN2}') for r in rs]
        out += [I(f'v_mul_f32 v{TT + r}, v{TT + r}, v{A + r}') for r in rs]
        out += [I(f'v_cvt_pk_bf16_f32 v{A + p}, v{TT + 2 * p}, v{TT + 2 * p + 1}') for p in (2 * q, 2 * q + 1)]
        if q & 1:
            fr = q >> 1
            out.append(I(f'buffer_store_dwordx4 {vr(A + 4 * fr, 4)}, v{voff}, {srd(sWS)}, s{sFST[b]} offen '
                         f'offset:{1024 * fr} sc1', tok=f'stF{b}' if fr else None))
            if b < 3:
                out += [I(f'v_accvgpr_write_b32 a{aOF + 8 * b + 4 * fr + e}, v{A + 4 * fr + e}') for e in range(4)]
    return out


def mish_pk(b, voff, halves=range(2)):
    A = FACC[b & 1]
    out = []
    for q in range(2 * len(halves)):
        out.append(I(f'ds_read_b128 {vr(TT + 4 * q, 4)}, v{t2} offset:{T_B1 - TB + 128 * b + 16 * q}', hoist=True))
    for h in halves:
        ps = range(8 * h, 8 * h + 8, 2)
        rs = range(8 * h, 8 * h + 8)
        out += [I(f'v_pk_fma_f32 {vr(TT + p, 2)}, {vr(A + p, 2)}, {vr(RL2, 2)}, {vr(TT + p, 2)} op_sel_hi:[1,0,1]') for p in ps]
        out += [I(f'v_exp_f32 v{A + r}, v{TT + r}') for r in rs]
        out += [I(f'v_pk_add_f32 {vr(A + p, 2)}, {vr(A + p, 2)}, 1.0 op_sel_hi:[1,0]') for p in ps]
        out += [I(f'v_pk_fma_f32 {vr(A + p, 2)}, {vr(A + p, 2)}, {vr(A + p, 2)}, 1.0 op_sel_hi:[1,1,0]') for p in ps]
        out += [I(f'v_rcp_f32 v{A + r}, v{A + r}') for r in rs]
        out += [I(f'v_pk_fma_f32 {vr(A + p, 2)}, {vr(A + p, 2)}, s[{sKC[0]}:{sKC[1]}], {vr(RL2, 2)} '
                  f'op_sel:[0,0,1] op_sel_hi:[1,0,1]') for p in ps]
        out += [I(f'v_pk_mul_f32 {vr(TT + p, 2)}, {vr(TT + p, 2)}, {vr(A + p, 2)}') for p in ps]
        out += [I(f'v_cvt_pk_bf16_f32 v{A + p // 2}, v{TT + p}, v{TT + p + 1}') for p in ps]
    out += [I(f'v_permlane16_swap_b32 v{A + e}, v{A + 4 + e}') for e in range(4)]
    for h in range(2):
        out.append(I(f'buffer_store_dwordx4 {vr(A + 4 * h, 4)}, v{voff}, {srd(sWS)}, s{sFST[b]} offen '
                     f'offset:{1024 * h} sc1', tok=f'stF{b}' if h else None))
        if b < 3:
            out += [I(f'v_accvgpr_write_b32 a{aOF + 8 * b + 4 * h + e}, v{A + 4 * h + e}') for e in range(4)]
    return out


def mish_stages(b, h):
    m = mish_pk(b, VL16, range(2))
    body = m[4:]
    body = body[40:] if h else body[:40]
    return dict(rd=m[2 * h:2 * h + 2], A=body[0:4], ex=body[4:12], B=body[12:20], rc=body[20:28], C=body[28:36],
                fin=body[36:])


def cmul_pk(d, a, b, c):
    return L(f"""v_pk_fma_f32 {vr(d, 2)}, {vr(b, 2)}, {vr(a, 2)}, {vr(c, 2)} op_sel_hi:[1,0,1]
        v_pk_fma_f32 {vr(d, 2)}, {vr(b, 2)}, {vr(a, 2)}, {vr(d, 2)} op_sel:[1,1,0] op_sel_hi:[0,1,1] neg_lo:[0,1,0]""")


def staged(items, pin, plan):
    out, lo = [], 0
    for hi, fill_, burst_ in plan:
        out += weave(items[lo:hi + 1], fill_, {g_ - lo: v for g_, v in pin.items() if lo <= g_ <= hi}) + burst_
        lo = hi + 1
    return out


_weave = weave
LEV = [OPT['lev']]


def weave(*a):
    out = _weave(*a)
    return ds_first(level(out, LEV[0], OPT['vmc'])) if LEV[0] else out


P = []
if OPT['map'] == '8x4':
    ids = f"""s_and_b32 s{sKQ}, s2, 3
        s_bfe_u32 s{sJJ}, s2, 0x20003
        s_lshr_b32 s{sI}, s2, 5
        s_bfe_u32 s{sT0}, s2, 0x10002
        s_lshl_b32 s{sROT}, s{sT0}, 1
        s_lshl_b32 s{sT0}, s{sT0}, 3
        s_and_b32 s{sT1}, s{sI}, 1
        s_or_b32 s{sI}, s{sI}, s{sT0}
        s_add_u32 s{sROT}, s{sROT}, s{sT1}
        s_add_u32 s{sROT}, s{sROT}, s{sJJ if OPT['rotm'] else sKQ}
        s_lshl_b32 s{sROT}, s{sROT}, 1
        s_and_b32 s{sROT}, s{sROT}, 7"""
else:
    ids = f"""s_and_b32 s{sKQ}, s2, 1
        s_lshl_b32 s{sKQ}, s{sKQ}, 1
        s_lshr_b32 s{sT0}, s2, 7
        s_or_b32 s{sKQ}, s{sKQ}, s{sT0}
        s_bfe_u32 s{sJJ}, s2, 0x20003
        s_bfe_u32 s{sI}, s2, 0x20005
        s_bfe_u32 s{sT0}, s2, 0x20001
        s_add_u32 s{sROT}, s{sT0}, s{sKQ}
        s_lshl_b32 s{sT0}, s{sT0}, 2
        s_or_b32 s{sI}, s{sI}, s{sT0}
        s_lshl_b32 s{sROT}, s{sROT}, 1
        {'s_lshr_b32 s%d, s2, 7' % sT0 if OPT['rotm'] else ''}
        {'s_lshl_b32 s%d, s%d, 1' % (sROT, sJJ) if OPT['rotm'] else ''}
        {'s_add_u32 s%d, s%d, s%d' % (sROT, sROT, sT0) if OPT['rotm'] else ''}
        s_and_b32 s{sROT}, s{sROT}, 7"""
code_pf = f'buffer_load_dword v{t3}, v{FACC[0] if OPT["cpf"] == 2 else t1}, {srd(sTMP)}, s{sFLG if OPT["cpf"] == 2 else sT0} offen'
ws_load = f's_load_dwordx2 s[{sWS}:{sWS + 1}], s[0:1], 120'
more_loads = f"""s_load_dwordx8 s[{pLRE}:{pLRE + 7}], s[0:1], 8
s_load_dwordx4 s[{pLDT}:{pLDT + 3}], s[0:1], 56
s_load_dwordx2 s[{pB1}:{pB1 + 1}], s[0:1], 88
s_load_dwordx2 s[{sW1}:{sW1 + 1}], s[0:1], 80
s_load_dwordx2 s[{sCre}:{sCre + 1}], s[0:1], 40
s_load_dwordx2 s[{sCim}:{sCim + 1}], s[0:1], 48
s_load_dwordx2 s[{sW2}:{sW2 + 1}], s[0:1], 96
s_load_dwordx2 s[{sOUT}:{sOUT + 1}], s[0:1], 104
"""
SUM, SQ = [TT + 8, TT + 9], [TT + 10, TT + 11]
sizes = ((sX, 2097152), (sB, 524288), (sW1, 1835008), (sCre, 524288), (sCim, 524288), (sW2, 1835008),
         (sWS, (WS_PROF + 0x40000) if PROF else WS_SIZE), (sOUT, 4194304))
P += L(f"""
s_cmp_ge_u32 s2, 256
s_cbranch_scc1 L_end
{'s_memtime s[98:99]' if PROF else ''}
{'s_memrealtime s[90:91]' if PROF or OPT['diag'] or OPT['dbg'] else ''}
{'s_load_dwordx2 s[4:5], s[0:1], 112' if OPT['dbg'] else ''}
s_load_dwordx2 s[{sX}:{sX + 1}], s[0:1], 0
{'' if OPT['ka2'] else ws_load}
s_getpc_b64 s[{sTMP}:{sTMP + 1}]
v_lshrrev_b32 v{t0}, 6, v0
v_and_b32 v{vL}, 63, v0
s_and_b32 s{sTMP}, s{sTMP}, 0xffffff80
v_readfirstlane_b32 s{sW}, v{t0}
s_mov_b32 s{sTMP + 2}, L_code_end-{KN}
s_mov_b32 s{sTMP + 3}, 0x00020000
s_lshr_b32 s{sT0}, s2, 3
s_lshl_b32 s{sT0}, s{sT0}, 2
s_add_u32 s{sT0}, s{sT0}, s{sW}
s_lshl_b32 s{sT0}, s{sT0}, 9
v_and_b32 v{t1}, 3, v{vL}
v_lshlrev_b32 v{t1}, 7, v{t1}
{'' if OPT['cpf'] == 2 else code_pf}
{'' if OPT['ka2'] else more_loads}
v_lshrrev_b32 v{t0}, 3, v{vL}
v_lshrrev_b32 v{t1}, 4, v{vL}
v_xor_b32 v{t1}, v{t1}, v{vL}
v_and_b32 v{t1}, 7, v{t1}
v_lshlrev_b32 v{t1}, 4, v{t1}
v_lshl_add_u32 v{PG[0]}, v{t0}, 10, v{t1}
v_lshrrev_b32 v{t2}, 5, v{vL}
v_mul_u32_u24 v{t2}, {12 * 1024}, v{t2}
v_add_u32 v{XG[0]}, v{PG[0]}, v{t2}
v_xor_b32 v{XG[1]}, 64, v{XG[0]}
v_add_u32 v{XG[2]}, {6 * 1024}, v{XG[0]}
v_add_u32 v{XG[3]}, {9 * 1024}, v{XG[1]}
v_add_u32 v{XG[1]}, {3 * 1024}, v{XG[1]}
s_lshl_b32 s{sWOFF}, s{sW}, 12
{ids}
s_lshl_b32 s{sXB}, s{sI}, 17
s_lshl_b32 s{sT0}, s{sW}, 15
s_add_u32 s{sXB}, s{sXB}, s{sT0}
""" + ''.join(f's_mov_b32 s{b + 2}, {n}\ns_mov_b32 s{b + 3}, 0x00020000\n' for b, n in sizes[:1 if OPT['lean'] else 8]) + f"""
s_waitcnt lgkmcnt(0)
{'v_accvgpr_write_b32 a254, s98' if PROF else ''}
{'v_accvgpr_write_b32 a255, s90' if PROF else ''}
{'s_mov_b32 s23, 0' if PROF or OPT['dbg'] else ''}
{'s_mov_b32 s3, s90' if OPT['dbg'] else ''}
{'s_mov_b32 s23, s90' if OPT['diag'] else ''}
""")
P += stamp('ka') if OPT['diag'] else []
P += rx(0, 0) + (L(ws_load + '\n' + more_loads) if OPT['ka2'] else []) + rx(1, 1)
if OPT['lean']:
    P += L(''.join(f's_mov_b32 s{b + 2}, {n}\ns_mov_b32 s{b + 3}, 0x00020000\n' for b, n in sizes[1:]))
P += L(f"""
v_and_b32 v{t0}, 31, v{vL}
s_lshl_b32 s{sJ}, s{sKQ}, 2
s_or_b32 s{sJ}, s{sJ}, s{sJJ}
v_lshrrev_b32 v{t1}, 5, v{vL}
v_bfe_u32 v{t2}, v{vL}, 1, 3
v_xor_b32 v{t1}, v{t1}, v{t2}
v_lshlrev_b32 v{t1}, 4, v{t1}
v_lshl_add_u32 v{AS[0]}, v{t0}, 7, v{t1}
v_xor_b32 v{AS[1]}, 32, v{AS[0]}
v_xor_b32 v{AS[2]}, 64, v{AS[0]}
v_xor_b32 v{AS[3]}, 0x60, v{AS[0]}
s_add_u32 s{sT0}, s{sWOFF}, {XSLOT(0) * SLOT}
v_add_u32 v{ASc[0]}, s{sT0}, v{AS[0]}
v_add_u32 v{ASc[1]}, s{sT0}, v{AS[1]}
v_add_u32 v{ASc[2]}, s{sT0}, v{AS[2]}
v_add_u32 v{ASc[3]}, s{sT0}, v{AS[3]}
s_mov_b32 s{sONES}, 0x3f803f80
v_mov_b32 v{SUM[0]}, 0
v_mov_b32 v{SUM[1]}, 0
v_mov_b32 v{SQ[0]}, 0
v_mov_b32 v{SQ[1]}, 0
s_lshl_b32 s{sT0}, s{sW}, 9
s_add_u32 s{sT0}, s{sT0}, {T_SEG}
v_lshl_add_u32 v{t0}, v{vL}, 3, s{sT0}""")
P.append(I(f'ds_write_b64 v{t0}, {vr(SUM[0], 2)}', tok='zero'))
P += L(f's_waitcnt lgkmcnt(0)\ns_load_dword s{sE2}, s[{sWS}:{sWS + 1}], {WS_EP}')
mid = L(f"""
v_and_b32 v{t0}, 31, v{vL}
s_lshl_b32 s{sT1}, s{sJ}, 6
v_lshl_add_u32 v{NLI}, v{t0}, 1, s{sT1}
s_and_b32 s{sT3}, s{sW}, 1
s_mul_i32 s{sT2}, s{sKQ}, 7
s_lshl_b32 s{sW1A}, s{sJJ}, 1
s_add_u32 s{sPB[0]}, s{sW1A}, 1
s_cmp_eq_u32 s{sJJ}, 3
s_cselect_b32 s{sPB[0]}, 3, s{sPB[0]}
s_cselect_b32 s{sFSEL}, 64, 0
s_add_u32 s{sW1A}, s{sW1A}, s{sT2}
s_add_u32 s{sW1B}, s{sPB[0]}, s{sT2}
s_lshl_b32 s{sW1A}, s{sW1A}, 7
s_lshl_b32 s{sW1B}, s{sW1B}, 7
s_cmp_ge_u32 s{sW}, 2
s_cselect_b32 s{sT2}, s{sW1B}, s{sW1A}
s_cselect_b32 s{sT1}, s{sFSEL}, 0
s_add_u32 s{sT2}, s{sT2}, s{sT1}
s_lshl_b32 s{sT1}, s{sT3}, 6
s_xor_b32 s{sT2}, s{sT2}, s{sT1}
v_and_b32 v{t1}, 3, v{vL}
v_bfe_u32 v{t2}, v{vL}, 2, 2
v_lshl_add_u32 v{t1}, v{t2}, 3, v{t1}
v_bfe_u32 v{t2}, v{vL}, 4, 1
v_lshl_add_u32 v{t1}, v{t2}, 2, v{t1}
v_lshl_add_u32 v{PR}, v{t1}, 1, s{sT2}
s_cmp_eq_u32 s{sT3}, 1
s_cselect_b32 s{sB}, s{pBIM}, s{pBRE}
s_cselect_b32 s{sB + 1}, s{pBIM + 1}, s{pBRE + 1}
s_mul_i32 s{sT3}, s{sT3}, {32 * 3584}
s_add_u32 s{sW1A}, s{sW1A}, s{sT3}
s_add_u32 s{sW1B}, s{sW1B}, s{sT3}
s_lshl_b32 s{sBB}, s{sJ}, 15
s_lshr_b32 s{sT1}, s{sW}, 1
s_add_u32 s{sT1}, s{sT1}, s{sROT}
s_and_b32 s{sKC[0]}, s{sT1}, 7
s_add_u32 s{sT1}, s{sT1}, 2
s_and_b32 s{sKC[1]}, s{sT1}, 7
s_add_u32 s{sT1}, s{sT1}, 2
s_and_b32 s{sKC[2]}, s{sT1}, 7
s_add_u32 s{sT1}, s{sT1}, 2
s_and_b32 s{sKC[3]}, s{sT1}, 7
v_xor_b32 v{PG[1]}, 64, v{PG[0]}
v_add_u32 v{PG[2]}, {14 * 1024}, v{PG[0]}
v_add_u32 v{PG[3]}, {21 * 1024}, v{PG[1]}
v_add_u32 v{PG[1]}, {7 * 1024}, v{PG[1]}
v_and_b32 v{t2}, 1, v{vL}
v_lshlrev_b32 v{t2}, 4, v{t2}
v_mov_b32 v{VNM}, 0x3f80
v_lshlrev_b32 v{t2}, v{t2}, v{VNM}
v_bfe_i32 v{t0}, v{vL}, 1, 1
v_and_b32 v{TT + 1}, v{t0}, v{t2}
v_xor_b32 v{TT}, v{TT + 1}, v{t2}
""")
mid += L(f"""
v_lshrrev_b32 v{t1}, 3, v{vL}
v_mul_u32_u24 v{t1}, 3584, v{t1}
v_bfe_u32 v{t2}, v{vL}, 4, 1
v_lshlrev_b32 v{t2}, 2, v{t2}
v_xor_b32 v{t2}, v{t2}, v{vL}
v_and_b32 v{t2}, 7, v{t2}
v_lshl_add_u32 v{QG[0]}, v{t2}, 4, v{t1}
v_add_u32 v{QG[1]}, {27648}, v{QG[0]}
v_add_u32 v{QG[2]}, {2 * 27648}, v{QG[0]}
v_add_u32 v{QG[3]}, {3 * 27648}, v{QG[0]}
""")
late = L(f"""
s_mul_i32 s{sE2}, s{sE2}, 1664525
s_add_u32 s{sE2}, s{sE2}, 1013904226
s_or_b32 s{sTAG}, s{sE2}, 1
v_bfe_u32 v{t1}, v{vL}, 2, 2
v_lshrrev_b32 v{t2}, 5, v{vL}
v_lshl_add_u32 v{t2}, v{t2}, 3, v{t1}
v_lshlrev_b32 v{FA0}, 7, v{t2}
v_lshrrev_b32 v{t1}, 1, v{t1}
v_lshl_add_u32 v{FA0}, v{t1}, 6, v{FA0}
v_bfe_u32 v{t1}, v{vL}, 4, 1
v_lshl_add_u32 v{FA0}, v{t1}, 5, v{FA0}
v_and_b32 v{t1}, 3, v{vL}
v_lshl_add_u32 v{FA0}, v{t1}, 3, v{FA0}
v_lshlrev_b32 v{VL16}, 4, v{vL}
v_mov_b32 v{VLN2}, {LN2:#x}
s_cmp_eq_u32 s{sPB[0]}, 1
s_cselect_b32 s{sPB[1]}, 3, 1
s_cmp_eq_u32 s{sPB[0]}, 5
s_cselect_b32 s{sPB[2]}, 3, 5
s_lshl_b32 s{sSEL[0]}, s{sFSEL}, 9
s_lshl_b32 s{sAS}, s{sI}, 2
s_add_u32 s{sAS}, s{sAS}, s{sW}
s_lshl_b32 s{sAS}, s{sAS}, 2
s_add_u32 s{sAS}, s{sAS}, s{sKQ}
s_lshl_b32 s{sFLG}, s{sAS}, 11
s_add_u32 s{sFLG}, s{sFLG}, {WS_FL}
s_mul_i32 s{sAS}, s{sAS}, {44 * 1024}
s_add_u32 s{sAS}, s{sAS}, {WS_A}
s_lshl_b32 s{sT2}, s{sJJ}, 13
s_add_u32 s{sFST[0]}, s{sAS}, s{sT2}
s_add_u32 s{sFST[1]}, s{sFST[0]}, 2048
s_lshl_b32 s{sT2}, s{sPB[0]}, 12
s_add_u32 s{sFST[3]}, s{sAS}, s{sT2}
s_lshl_b32 s{sT2}, s{sFSEL}, 5
s_add_u32 s{sFST[2]}, s{sFST[3]}, s{sT2}
s_add_u32 s{sFST[3]}, s{sFST[3]}, 2048
s_lshl_b32 s{sT2}, s{sJJ}, 12
s_add_u32 s{sSST}, s{sAS}, s{sT2}
s_add_u32 s{sSST}, s{sSST}, {28 * 1024}
s_xor_b32 s{sT2}, s{sW}, s{sKQ}
s_lshl_b32 s{sT2}, s{sT2}, 15
s_lshl_b32 s{sCB}, s{sJJ}, 17
s_add_u32 s{sCB}, s{sCB}, s{sT2}
s_lshl_b32 s{sT2}, s{sKQ}, 8
s_add_u32 s{sCB}, s{sCB}, s{sT2}
s_lshr_b32 s{sT2}, s{sJJ}, 1
s_lshl_b32 s{sT2}, s{sT2}, 7
s_add_u32 s{sCB}, s{sCB}, s{sT2}
s_mul_i32 s{sW2B}, s{sKQ}, {448 * 1024}
s_lshr_b32 s{sT2}, s{sW}, 1
s_lshl_b32 s{sT2}, s{sT2}, 15
s_add_u32 s{sW2B}, s{sW2B}, s{sT2}
s_lshl_b32 s{sT2}, s{sJJ}, 8
s_add_u32 s{sW2B}, s{sW2B}, s{sT2}
s_lshr_b32 s{sT2}, s{sKQ}, 1
s_xor_b32 s{sT2}, s{sT2}, s{sW}
s_and_b32 s{sT2}, s{sT2}, 1
s_lshl_b32 s{sT2}, s{sT2}, 7
s_add_u32 s{sW2B}, s{sW2B}, s{sT2}
s_lshl_b32 s{sT2}, s{sI}, 4
s_add_u32 s{sT2}, s{sT2}, s{sJJ}
s_lshl_b32 s{sT2}, s{sT2}, 2
s_add_u32 s{sT2}, s{sT2}, s{sW}""")
for b in range(4):
    late += L(f"""s_xor_b32 s{sT3}, s{sKQ}, {b}
        s_lshl_b32 s{sT3}, s{sT3}, 4
        s_add_u32 s{sT3}, s{sT3}, s{sT2}
        s_mul_i32 s{sT3}, s{sT3}, {3 * XC_BLK}
        s_add_u32 s{sXO[b]}, s{sT3}, {WS_XC + (b - 1) * XC_BLK if b else WS_XC}""")
late += L(f"""s_add_u32 s{sSEL[2]}, s{sXO[0]}, {XC_BLK}
    s_add_u32 s{sSEL[3]}, s{sXO[0]}, {2 * XC_BLK}
    s_and_b32 s{sT3}, s{sJJ}, 1
    s_sub_u32 s{sSEL[1]}, 6, s{sT3}""")
pf = []
if OPT['pf'] == 2:
    late += L(f"""
s_and_b32 s{sT1}, s{sI}, 7
s_lshl_b32 s{sT2}, s{sT1}, 1
s_add_u32 s{sT2}, s{sT2}, s{sW}
s_mul_i32 s{sT2}, s{sT2}, 28
s_mul_i32 s{sT3}, s{sKQ}, 448
s_add_u32 s{sT2}, s{sT2}, s{sT3}
s_lshl_b32 s{sT2}, s{sT2}, 2
s_add_u32 s{sT2}, s{sT2}, s{sJJ}
s_lshl_b32 s{sT3}, s{sJJ}, 3
s_add_u32 s{sT3}, s{sT3}, s{sT1}
s_lshl_b32 s{sT3}, s{sT3}, 6
s_add_u32 s{sT3}, s{sT3}, s{sKQ}
s_cmp_lt_u32 s{sW}, 2
s_cselect_b32 s{sT2}, s{sT2}, s{sT3}
s_cselect_b32 s{sT3}, 56, 32
s_cselect_b32 s{sTMP}, s{sW2}, s{sCre}
s_cselect_b32 s{sTMP + 1}, s{sW2 + 1}, s{sCre + 1}
s_cselect_b32 s{sTMP + 2}, s{sW2 + 2}, s{sCre + 2}
s_cmp_eq_u32 s{sW}, 3
s_cselect_b32 s{sTMP}, s{sCim}, s{sTMP}
s_cselect_b32 s{sTMP + 1}, s{sCim + 1}, s{sTMP + 1}""")
elif OPT['pf']:
    late += L(f"""
s_mul_i32 s{sT2}, s{sKQ}, 448
s_mul_i32 s{sT3}, s{sI}, 28
s_add_u32 s{sT2}, s{sT2}, s{sT3}
s_lshl_b32 s{sT2}, s{sT2}, 2
s_add_u32 s{sT2}, s{sT2}, s{sJJ}
s_lshl_b32 s{sT3}, s{sJJ}, 4
s_add_u32 s{sT3}, s{sT3}, s{sI}
s_lshl_b32 s{sT3}, s{sT3}, 5
s_add_u32 s{sT3}, s{sT3}, s{sKQ}
s_cmp_eq_u32 s{sW}, 0
s_cselect_b32 s{sT2}, s{sT2}, s{sT3}
s_cselect_b32 s{sT3}, 56, 16
s_cselect_b32 s{sTMP}, s{sW2}, s{sCre}
s_cselect_b32 s{sTMP + 1}, s{sW2 + 1}, s{sCre + 1}
s_cselect_b32 s{sTMP + 2}, s{sW2 + 2}, s{sCre + 2}
s_cmp_eq_u32 s{sW}, 2
s_cselect_b32 s{sTMP}, s{sCim}, s{sTMP}
s_cselect_b32 s{sTMP + 1}, s{sCim + 1}, s{sTMP + 1}
s_cmp_eq_u32 s{sW}, 3
s_cselect_b32 s{sT3}, 0, s{sT3}""")
if OPT['pf']:
    late += L(f"""s_lshl_b32 s{sT2}, s{sT2}, 8
v_lshrrev_b32 v{t0}, 1, v{vL}
v_and_b32 v{t1}, 1, v{vL}
v_lshlrev_b32 v{t1}, 7, v{t1}
v_lshl_add_u32 v{t0}, v{t0}, 10, v{t1}
v_add_u32 v{t0}, s{sT2}, v{t0}
v_mov_b32 v{t1}, {OOB:#x}
v_cmp_gt_u32 vcc, s{sT3}, v{vL}
v_cndmask_b32 v{PI}, v{t1}, v{t0}, vcc""")
    pf = L(f'buffer_load_dword a248, v{PI}, {srd(sTMP)}, 0 offen')

Z = TT + 2
consts = L(f"""
v_lshlrev_b32 v{NLI}, 16, v{NLI}
v_mul_f32 v{NLI}, {LOG2E:#x}, v{NLI}
v_exp_f32 v{NLI}, v{NLI}
v_lshlrev_b32 v{Z + 2}, 16, v{LR}
v_lshlrev_b32 v{Z + 3}, 16, v{LI}
v_cvt_pk_bf16_f32 v{NLI}, v{NLI}, v{NLI}
v_lshlrev_b32 v{NLI}, 16, v{NLI}
v_mul_f32 v{Z}, v{NLI}, v{Z + 2}
v_mul_f32 v{Z + 1}, v{NLI}, v{Z + 3}
v_mul_f32 v{Z}, {LOG2E:#x}, v{Z}
v_mul_f32 v{Z + 1}, 0xbe22f983, v{Z + 1}""")
consts += cexp(LR, LI, '1.0', Z, Z + 1)
consts += L(f"""
v_mul_f32 v{Z + 4}, v{Z + 2}, v{Z + 2}
v_fmac_f32 v{Z + 4}, v{Z + 3}, v{Z + 3}
v_rcp_f32 v{Z + 4}, v{Z + 4}
v_add_f32 v{Z + 5}, -1.0, v{LR}
v_sub_f32 v{NLI}, 0, v{LI}
v_add_f32 v{Z + 4}, v{Z + 4}, v{Z + 4}
v_mul_f32 v{CR}, v{Z + 5}, v{Z + 2}
v_fmac_f32 v{CR}, v{NLI}, v{Z + 3}
v_mul_f32 v{NCI}, v{Z + 5}, v{Z + 3}
v_fmac_f32 v{NCI}, v{LI}, v{Z + 2}
v_mul_f32 v{CR}, v{CR}, v{Z + 4}
v_mul_f32 v{NCI}, v{NCI}, v{Z + 4}
v_sub_f32 v{NCR}, 0, v{CR}""")
consts += cexp(L16R, L16I, '0x41800000', Z, Z + 1)
consts += cexp(L128R, L128I, '0x43000000', Z, Z + 1)
consts += L(f"""
v_lshrrev_b32 v{Z + 6}, 5, v{vL}
s_lshl_b32 s{sT2}, s{sW}, 1
v_add_u32 v{Z + 6}, s{sT2}, v{Z + 6}
v_cvt_f32_u32 v{Z + 6}, v{Z + 6}
v_mul_f32 v{Z + 7}, 0x41800000, v{Z + 6}
v_sub_f32 v{Z + 6}, 0x40e00000, v{Z + 6}
v_mul_f32 v{Z + 6}, 0x43800000, v{Z + 6}""")
consts += cexp(LSR, LSI, f'v{Z + 7}', Z, Z + 1)
consts += cexp(WR, WI, f'v{Z + 6}', Z, Z + 1)
consts += L(f"""v_lshlrev_b32 v{PR}, 16, v{PR}
v_mul_f32 v{PR}, {LOG2E:#x}, v{PR}
v_and_b32 v{t1}, 31, v{vL}
s_lshl_b32 s{sT1}, s{sW}, 7
s_add_u32 s{sT1}, s{sT1}, {T_B1}
v_lshl_add_u32 v{t1}, v{t1}, 2, s{sT1}
""") + [I(f'ds_write_b32 v{t1}, v{PR}', tok='b1w')]
later = []
Y = SRE
later += L(f"""v_and_b32 v{Y}, 31, v{vL}
    v_lshlrev_b32 v{Y + 1}, 3, v{Y}
    v_add_u32 v{Y + 1}, {T_LB}, v{Y + 1}
    v_lshrrev_b32 v{t0}, 5, v{vL}
    s_lshl_b32 s{sT2}, s{sW}, 11
    s_add_u32 s{sT2}, s{sT2}, {T_H}
    v_lshl_add_u32 v{Y}, v{Y}, 6, s{sT2}
    v_bfe_u32 v{Y + 2}, v{vL}, 1, 2
    v_lshlrev_b32 v{Y + 3}, 1, v{t0}
    v_xor_b32 v{Y + 2}, v{Y + 2}, v{Y + 3}
    v_bfe_u32 v{Y + 3}, v{vL}, 3, 1
    v_xor_b32 v{Y + 2}, v{Y + 2}, v{Y + 3}
    v_lshl_add_u32 v{Y}, v{Y + 2}, 4, v{Y}
    v_xor_b32 v{Y + 3}, 16, v{Y}
    v_bfe_u32 v{Y + 6}, v{vL}, 2, 2
    v_lshrrev_b32 v{t1}, 4, v{vL}
    v_lshl_add_u32 v{Y + 2}, v{t1}, 3, v{Y + 6}
    v_lshl_add_u32 v{Y + 2}, v{Y + 2}, 6, s{sT2}
    v_and_b32 v{t1}, 1, v{vL}
    v_lshl_add_u32 v{Y + 2}, v{t1}, 5, v{Y + 2}
    v_lshrrev_b32 v{t1}, 1, v{vL}
    v_xor_b32 v{t1}, v{t1}, v{vL}
    v_and_b32 v{t1}, 8, v{t1}
    v_lshl_add_u32 v{Y + 2}, v{t1}, 1, v{Y + 2}
    v_bfe_u32 v{t1}, v{vL}, 1, 1
    v_lshl_add_u32 v{Y + 2}, v{t1}, 3, v{Y + 2}
    v_bfe_u32 v{t1}, v{vL}, 4, 1
    v_lshl_add_u32 v{Y + 5}, v{t0}, 2, v{Y + 6}
    v_lshl_add_u32 v{Y + 5}, v{t1}, 4, v{Y + 5}
    v_lshlrev_b32 v{Y + 5}, 7, v{Y + 5}
    s_and_b32 s{sT2}, s{sKQ}, 1
    v_xor_b32 v{t1}, s{sT2}, v{t1}
    v_lshl_add_u32 v{Y + 5}, v{t1}, 6, v{Y + 5}
    v_bfe_u32 v{t1}, v{vL}, 3, 1
    v_lshl_add_u32 v{Y + 5}, v{t1}, 5, v{Y + 5}
    v_and_b32 v{t1}, 3, v{vL}
    v_lshl_add_u32 v{Y + 5}, v{t1}, 3, v{Y + 5}
    v_and_b32 v{Y + 6}, 15, v{vL}
    v_lshrrev_b32 v{t1}, 4, v{vL}
    v_bfe_u32 v{Y + 4}, v{vL}, 1, 3
    v_xor_b32 v{t1}, v{t1}, v{Y + 4}
    v_lshlrev_b32 v{t1}, 4, v{t1}
    v_lshl_add_u32 v{Y + 6}, v{Y + 6}, 7, v{t1}
    s_and_b32 s{sT2}, s{sJJ}, 1
    s_lshl_b32 s{sT2}, s{sT2}, 6
    v_xor_b32 v{Y + 6}, s{sT2}, v{Y + 6}
    s_lshl_b32 s{sT2}, s{sW}, 9
    s_add_u32 s{sT1}, s{sT2}, {T_SEG}
    s_add_u32 s{sT2}, s{sT2}, {T_LB}
    v_lshl_add_u32 v{Y + 7}, v{vL}, 3, s{sT1}
    v_lshl_add_u32 v{Y + 8}, v{vL}, 3, s{sT2}""")
later += park(hw=Y, lbr=Y + 1, hr=Y + 2, hw2=Y + 3, fp0=Y + 5, fp1=Y + 6, seg=Y + 7, lbw=Y + 8)
park2 = []
Y = FACC[0]
park2 += L(f"""s_lshl_b32 s{sT2}, s{sJ}, 4
    s_add_u32 s{sT2}, s{sT2}, s{sI}
    s_lshl_b32 s{sT2}, s{sT2}, 9
    s_add_u32 s{sT2}, s{sT2}, {WS_AG - 512}
    s_cmp_eq_u32 s{sW}, 3
    s_cselect_b32 s{sT2}, s{sT2}, {OOB:#x}
    v_mov_b32 v{Y + 8}, {OOB:#x}
    v_cmp_gt_u32 vcc, 32, v{vL}
    v_add_u32 v{Y}, s{sT2}, v{VL16}
    v_lshrrev_b32 v{t0}, 5, v{vL}
    v_cndmask_b32 v{Y}, v{Y}, v{Y + 8}, vcc
    s_lshl_b32 s{sT2}, s{sW}, 2
    s_add_u32 s{sT2}, s{sT2}, s{sI}
    s_sub_u32 s{sT2}, s{sT2}, 16
    v_lshl_add_u32 v{t0}, v{t0}, 1, s{sT2}
    s_lshl_b32 s{sT2}, s{sJ}, 13
    s_add_u32 s{sT2}, s{sT2}, {WS_AG}
    v_and_b32 v{Y + 9}, 31, v{vL}
    v_lshl_add_u32 v{t1}, v{Y + 9}, 4, s{sT2}
    v_lshl_add_u32 v{Y + 1}, v{t0}, 9, v{t1}
    v_cmp_gt_i32 vcc, 0, v{t0}
    v_add_u32 v{Y + 2}, 512, v{Y + 1}
    v_mov_b32 v{t1}, s{sTAG}
    v_cndmask_b32 v{Y + 1}, v{Y + 1}, v{Y + 8}, vcc
    v_cndmask_b32 v{Y + 3}, v{t1}, 0, vcc
    v_cmp_gt_i32 vcc, -1, v{t0}
    s_lshl_b32 s{sT2}, s{sJJ}, 9
    s_add_u32 s{sT2}, s{sT2}, s{sFLG}
    v_cndmask_b32 v{Y + 2}, v{Y + 2}, v{Y + 8}, vcc
    v_cndmask_b32 v{Y + 4}, v{t1}, 0, vcc
    v_lshl_add_u32 v{Y + 5}, v{Y + 9}, 2, s{sT2}
    v_and_b32 v{t0}, 3, v{vL}
    v_max_u32 v{t0}, 1, v{t0}
    v_xor_b32 v{t0}, s{sJJ}, v{t0}
    v_lshl_add_u32 v{Y + 6}, v{t0}, 9, s{sFLG}
    s_bitcmp1_b32 s{sJJ}, 0
    s_cselect_b32 s{sT2}, {OOB:#x}, 0
    v_add_u32 v{Y + 7}, s{sT2}, v{VL16}
    """)
park2 += park(pfa=PI)
park2 += park(pub=Y, lba0=Y + 1, lba1=Y + 2, lbe0=Y + 3, lbe1=Y + 4, fla=Y + 5, flp=Y + 6, f3o=Y + 7)
params = L(f"""global_load_ushort v{LR}, v{NLI}, s[{pLRE}:{pLRE + 1}]
    global_load_ushort v{LI}, v{NLI}, s[{pLIM}:{pLIM + 1}]
    global_load_ushort v{NLI}, v{NLI}, s[{pLDT}:{pLDT + 1}]
    global_load_ushort v{PR}, v{PR}, s[{pB1}:{pB1 + 1}]""")
XO_START = max(n for n, i_ in enumerate(late) if i_.text == f's_lshl_b32 s{sT2}, s{sI}, 4')
late_b = []
if OPT['lb2s']:
    late, late_b = late[:XO_START], late[XO_START:]
    park2 = [i_ for i_ in park2 if f'a{PARK["pfa"]},' not in i_.text]
if OPT['lb2s'] == 2:
    late_b, park2 = park2 + late_b, []
nl = len(late) * OPT['lateln'] // 100
while nl < len(late) and late[nl - 1].mn.startswith(('s_cmp', 'v_cmp', 's_cselect')) or (nl < len(late) and late[nl].mn.startswith('v_cndmask')):
    nl += 1
if nl >= len(late):
    later, late, park2 = later + late + park2, [], []
else:
    later, late = later + late[:nl], late[nl:]
zero_xe = [I(f'v_accvgpr_write_b32 a{aXE + r}, 0') for r in range(17)]
XA, sSTAR = FACC[1], sXO[3]
if OPT['xlds']:
    P += zero_xe + L(f"""s_lshl_b32 s{sSTAR}, s{sJJ}, 1
        s_lshr_b32 s{sT1}, s{sKQ}, 1
        s_add_u32 s{sSTAR}, s{sSTAR}, s{sT1}
        s_sub_u32 s{sSTAR}, s{sSTAR}, s{sROT}
        s_and_b32 s{sSTAR}, s{sSTAR}, 7
        s_and_b32 s{sT1}, s{sKQ}, 1
        v_lshrrev_b32 v{t0}, 5, v{vL}
        v_xor_b32 v{t1}, s{sT1}, v{t0}
        v_bfe_u32 v{t2}, v{vL}, 3, 2
        v_lshl_add_u32 v{t1}, v{t1}, 2, v{t2}
        v_lshlrev_b32 v{t1}, 4, v{t1}
        v_lshl_add_u32 v{t1}, v{t0}, 10, v{t1}
        v_and_b32 v{t2}, 7, v{vL}
        v_lshl_add_u32 v{t1}, v{t2}, 1, v{t1}
        s_add_u32 s{sT1}, s{sWOFF}, {SLOT}
        v_add_u32 v{XA}, s{sT1}, v{t1}""") + [I(f'v_xor_b32 v{XA + v}, {16 * v}, v{XA}') for v in (1, 2, 3)]
    zero_xe = []
later = mid + later + zero_xe
BACK = {1: '0 6 14 24 38 56 78', 2: '0 12 22 30 42 58 78', 3: '0 21 23 30 42 58 78'}
cuts = [0]
for n in range(1, 7):
    c = n * len(later) // 7 if not OPT['back'] else len(later) * [int(x) for x in BACK[OPT['back']].split()][n] // 100
    while later[c].mn.startswith(('s_cselect', 'v_cndmask', 's_nop')) or later[c - 1].mn.startswith('v_cmp'):
        c += 1
    cuts.append(c)
cuts.append(len(later))

touch_w = L(f'v_mov_b32 v{PI}, 0') + [
    I(f'buffer_load_dword a{56 + n}, v{PI}, {srd(r)}, 0 offen') for n, r in enumerate((sW1, sCre, sCim, sW2))]
touch_o = L(f"""v_min_u32 v{PR}, {WS_SIZE >> 21}, v{vL}
    v_lshlrev_b32 v{PR}, 21, v{PR}
    v_add_u32 v{PR}, 0x800, v{PR}
    buffer_load_dword a60, v{PR}, {srd(sWS)}, 0 offen
    buffer_load_dword a61, v{PR}, {srd(sOUT)}, 0 offen""")
if OPT['tlb'] in (1, 3, 4):
    P += touch_w
if OPT['tlb'] == 1:
    P += touch_o
P += rx(2, 2) + (rx(3, 3) if OPT['deep'] else []) + [I('s_waitcnt lgkmcnt(0)')]
pos = lambda text: max(n for n, i_ in enumerate(later) if i_.text.startswith(text))
first_g = 5 - OPT['early'] - OPT['deep']
first_p = OPT['parat'] if OPT['parat'] >= 5 else 4 - OPT['early'] - OPT['deep']
assert max(pos(f's_and_b32 s{sKC[3]},'), pos(f'v_add_u32 v{PG[1]},'), pos(f's_lshl_b32 s{sBB},')) < cuts[first_g]
assert pos(f'v_lshl_add_u32 v{PR},') < cuts[first_p]
assert pos(f'v_add_u32 v{QG[3]},') < cuts[min(first_g + 4, 7)]
for s in range(8):
    P.append(Wait(f'x{s}'))
    if s == 0:
        P += stamp('x0')
    for q in range(4):
        P.append(I(f'ds_read_b128 {vr(X + 16 * s + 4 * q, 4)}, v{ASc[q]} offset:{(s & 3) * SLOT}', lds_r=XSLOT(s),
                   tok=f'xr{s}' if q == 3 else None))
    if OPT['early']:
        E_ = OPT['early']
        todo = list(range(3, 4 + E_)) if s == 0 else [s + 3 + E_]
        nxt = sum((rx(n, 0) + (params if n == 7 and OPT['parat'] < 5 else []) if n < 8 else rg(n - 8) for n in todo), [])
        nxt += params if s == OPT['parat'] >= 5 else []
        if s == 3:
            nxt += [I(f'v_subrev_u32 v{ASc[q]}, {4 * SLOT}, v{ASc[q]}') for q in range(4)]
    elif OPT['deep']:
        nxt = rg(s - 4) if s >= 4 else [Wait(f'xr{s}')] + rx(s + 4, s) + (params if s == 3 else [])
    else:
        nxt = rg(s - 5) if s >= 5 else rx(s + 3, (s + 3) & 3) + (params if s == OPT['parat'] else [])
    piece = later[cuts[s]:cuts[s + 1]] if s < 7 else []
    P += nxt + piece if OPT['xfirst'] else piece + nxt
    for r in range(16):
        P.append(I(f'v_dot2c_f32_bf16 v{SUM[r & 1]}, s{sONES}, v{X + 16 * s + r}'))
        P.append(I(f'v_dot2c_f32_bf16 v{SQ[r & 1]}, v{X + 16 * s + r}, v{X + 16 * s + r}'))
        if OPT['xlds'] and r == (15 if s < 7 else 3):
            blk = [f'ds_read_u16_d16_hi a{aXE + n}, v{XA + ((n >> 1) & 1) + 2 * ((n >> 2) & 1)} '
                   f'offset:{(s & 3) * SLOT + ((n & 7) + 16 * (n >> 3)) * 128}' for n in range(16)]
            P += [Wait(f'xr{s}'), I(f's_cmp_lg_u32 s{sSTAR}, {s}'), I(f's_cbranch_scc1 L_xe{s}')]
            P.append(I('; epilogue x values\n    ' + '\n    '.join(blk + ['s_waitcnt lgkmcnt(0)'])))
            P.append(I(f'L_xe{s}:'))
P += stamp('x7')
P += L(f"""
v_add_f32 v{SUM[0]}, v{SUM[0]}, v{SUM[1]}
v_add_f32 v{SQ[0]}, v{SQ[0]}, v{SQ[1]}
v_mov_b32 v{SUM[1]}, v{SUM[0]}
v_mov_b32 v{SQ[1]}, v{SQ[0]}
v_permlane32_swap_b32 v{SUM[1]}, v{SUM[0]}
v_add_f32 v{SUM[0]}, v{SUM[0]}, v{SUM[1]}
v_mul_f32 v{SUM[0]}, 0xbb000000, v{SUM[0]}
v_cvt_pk_bf16_f32 v{t0}, v{SUM[0]}, v{SUM[0]}
v_lshlrev_b32 v{SIM}, 16, v{t0}
v_lshlrev_b32 v{SIM + 1}, 16, v{t0}
v_lshlrev_b32 v{SIM + 2}, 16, v{t0}
v_lshlrev_b32 v{SIM + 3}, 16, v{t0}
""")

back = lambda o: [I(f'v_cvt_pk_bf16_f32 v{X + 2 * o + e}, v{FACC[0] + 4 * (o & 3) + 2 * e}, '
                    f'v{FACC[0] + 4 * (o & 3) + 2 * e + 1}') for e in range(2)]
items = [[I(f'v_mfma_f32_4x4x4_16b_bf16 {vr(FACC[0] + 4 * (n & 3), 4)}, {vr(TT, 2)}, {vr(X + 2 * n, 2)}, {vr(SIM, 4)}')]
         + (back(n - 2) if n >= 2 else []) for n in range(64)]
fill = L(f"""
v_permlane32_swap_b32 v{SQ[1]}, v{SQ[0]}
v_sub_f32 v{VNM}, 0, v{SIM}
v_add_f32 v{SQ[0]}, v{SQ[0]}, v{SQ[1]}
v_mul_f32 v{SQ[0]}, 0x3b000000, v{SQ[0]}
v_fma_f32 v{SQ[0]}, -v{SUM[0]}, v{SUM[0]}, v{SQ[0]}
v_max_f32 v{SQ[0]}, 0, v{SQ[0]}
v_cvt_pk_bf16_f32 v{t0}, v{SQ[0]}, v{SQ[0]}
v_lshlrev_b32 v{t0}, 16, v{t0}
v_add_f32 v{t0}, 0x3727c5ac, v{t0}
v_cvt_pk_bf16_f32 v{t0}, v{t0}, v{t0}
v_lshlrev_b32 v{t0}, 16, v{t0}
v_sqrt_f32 v{t0}, v{t0}
v_and_b32 v{t1}, 3, v{vL}
v_cvt_pk_bf16_f32 v{t0}, v{t0}, v{t0}
v_lshlrev_b32 v{t0}, 16, v{t0}
v_rcp_f32 v{VRS}, v{t0}
v_bfe_u32 v{t2}, v{vL}, 3, 2
v_lshl_add_u32 v{t1}, v{t2}, 2, v{t1}
v_bfe_u32 v{t2}, v{vL}, 2, 1
v_lshl_add_u32 v{t1}, v{t2}, 4, v{t1}
s_lshl_b32 s{sT1}, s{sW}, 8
s_add_u32 s{sT1}, s{sT1}, {T_STAT}
v_lshl_add_u32 v{t1}, v{t1}, 2, s{sT1}
v_mul_f32 v{RL2}, {LOG2E:#x}, v{VRS}
ds_write_b32 v{t1}, v{VNM}
""")
fill.append(I(f'ds_write_b32 v{t1}, v{VRS} offset:128', tok='tabw'))
LA_S, LA_F = 3, OPT['laf']


def s_addr(slot):
    return [I(f'v_add_u32 v{ASc[q]}, {slot * SLOT}, v{AS[q]}') for q in range(4)]


def s_read(s, ri):
    return I(f'ds_read_b128 {ar(aS + 8 * (s & 3) + 4 * ri, 4)}, v{ASc[s & 3]} offset:{(s >> 3) * SLOT + (2 * ((s >> 2) & 1) + ri) * 4096}',
             lds_r=G_SLOT[s >> 3])


def f_addr(b):
    if b < 2:
        return [I(f'v_xor_b32 v{FAc}, {64 * b}, v{FA0}')]
    if b == 3:
        return [I(f'v_xor_b32 v{FAc}, 64, v{FAc}')]
    return [I(f'v_xor_b32 v{FAc}, s{sFSEL}, v{FA0}'), I(f'v_add_u32 v{FAc}, {G_SLOT[8] * SLOT}, v{FAc}')]


def f_read(b, s):
    out = f_addr(b) if s == 0 else []
    k = (32 * b + s) & 7
    for u in range(2):
        out.append(I(f'ds_read_b64_tr_b16 {ar(aF + 4 * k + 2 * u, 2)}, v{FAc} '
                     f'offset:{(s >> 3) * SLOT + ((s >> 1) & 3) * 4096 + (s & 1) * 2048 + u * 512}',
                     lds_r=G_SLOT[(4 if b < 2 else 8) + (s >> 3)]))
    return out


DSP = OPT['dsp']
OPT['dsp'] = OPT['dspc']
NG = 3 + OPT['early'] + OPT['deep']
pin = pins(*[(OPT['g3'] + 4 * n * OPT['dspc'], rg(NG + n)) for n in range(OPT['ncr'])],
           (54, s_addr(G_SLOT[0]) + stamp('c27') + BAR('G0', 'zero', *([] if OPT['bsp'] else ['G1'])) + stamp('b0')))
OPT['dsp'] = DSP
for k in range(LA_S):
    pin[55 + 2 * k] = [s_read(k, 0), s_read(k, 1)]
stat_fill = fill
if OPT['cfs']:
    fill = stat_fill[:2]
    stat_fill = stat_fill[2:]
else:
    stat_fill = []
P += weave(items, fill, pin, 0, 40) + back(62) + back(63)

S_items = []
for s in range(32):
    for ri, acc in ((0, SRE), (1, SIM)):
        it = [mfma(vr(acc, 16), vr(X + 4 * s, 4), ar(aS + 8 * (s & 3) + 4 * ri, 4), vr(acc, 16) if s else '0')]
        n = s + LA_S
        if n < 32:
            it.append(s_read(n, ri))
        S_items.append(it)
for k in range(LA_F):
    S_items[64 - LA_F + k] += f_read(0, k)
F_items = []
for b in range(4):
    its = []
    for s in range(32):
        acc = vr(FACC[b & 1], 16)
        it = [mfma(acc, ar(aF + 4 * ((32 * b + s) & 7), 4), vr(X + 4 * s, 4), acc if s else '0')]
        n = s + LA_F
        if n < 32:
            it += f_read(b, n)
        elif b < 3:
            it += f_read(b + 1, n - 32)
        its.append(it)
    F_items.append(its)

FLA, FLP = VNM, VRS
fill = stat_fill + late + park2 + late_b + consts + (pf if OPT['pfat'] < 0 else []) + L(f"""
v_lshrrev_b32 v{t0}, 3, v{vL}
v_bfe_u32 v{t1}, v{vL}, 4, 1
v_lshlrev_b32 v{t1}, 1, v{t1}
v_xor_b32 v{t1}, v{t1}, v{vL}
v_and_b32 v{t1}, 7, v{t1}
v_lshlrev_b32 v{t1}, 4, v{t1}
v_lshl_add_u32 v{XG[0]}, v{t0}, 10, v{t1}
v_add_u32 v{XG[1]}, {7 * 1024}, v{XG[0]}
v_xor_b32 v{XG[2]}, 64, v{XG[0]}
v_add_u32 v{XG[3]}, {21 * 1024}, v{XG[2]}
v_add_u32 v{XG[2]}, {14 * 1024}, v{XG[2]}
v_lshrrev_b32 v{t2}, 5, v{vL}
v_lshlrev_b32 v{t2}, 6, v{t2}
v_add_u32 v{t2}, {TB}, v{t2}
s_lshl_b32 s{sT2}, s{sW}, 8
v_add_u32 v{t1}, s{sT2}, v{t2}""")
fill += [I(f'ds_read_b128 {vr(FACC[1] + 4 * q, 4)}, v{t1} offset:{128 + 16 * q}') for q in range(4)]
xa, xb = TT + 14, TT + 15
ROW = lambda n: 16 * ((n >> 2) & 1) + 8 * (n >> 3) + (n & 3)
xe = L(f"""v_and_b32 v{xa}, 31, v{vL}
    v_lshrrev_b32 v{xb}, 5, v{vL}
    v_lshlrev_b32 v{xb}, 12, v{xb}
    v_lshl_add_u32 v{xb}, v{xa}, 1, v{xb}
    s_lshl_b32 s{sONES}, s{sJJ}, 2
    s_add_u32 s{sONES}, s{sONES}, s{sKQ}
    s_lshl_b32 s{sONES}, s{sONES}, 6
    v_lshl_add_u32 v{xa}, v{xa}, 1, s{sONES}
    s_add_u32 s{sXB}, s{sXB}, s{sONES}
    global_load_short_d16_hi a{aXE + 16}, v{xa}, s[{pDSK}:{pDSK + 1}]""")
for r in range(0 if OPT['xlds'] else 16):
    if r % 4 == 0:
        xe.append(I(f's_add_u32 s{sONES}, s{sXB}, {1024 * ROW(r)}'))
    xe.append(I(f'buffer_load_short_d16_hi a{aXE + r}, v{xb}, {srd(sX)}, s{sONES} offen offset:{1024 * (r & 3)}'))
sAO = dict(A={1: 8, 2: 9, 3: 10}, H={1: 11, 2: 12, 3: 13}, B={1: 14, 2: 15})
for e in (1, 2, 3):
    fill += L(f"""s_xor_b32 s{sT2}, s{sJJ}, {e}
        s_lshl_b32 s{sT2}, s{sT2}, 12
        s_add_u32 s{sAO['H'][e]}, s{sT2}, s{sAS}
        s_add_u32 s{sAO['A'][e]}, s{sAO['H'][e]}, s{sT2}
        s_add_u32 s{sAO['H'][e]}, s{sAO['H'][e]}, {28 * 1024}""")
for e in (1, 2):
    fill += L(f's_lshl_b32 s{sT2}, s{sPB[e]}, 12\ns_add_u32 s{sAO["B"][e]}, s{sT2}, s{sAS}')
if OPT['tlb'] in (2, 3):
    fill = touch_o + fill
if OPT['fw']:
    fill += L(f"""s_lshl_b32 s{sT2}, s{sJJ}, 9
        s_add_u32 s{sT2}, s{sT2}, s{sFLG}
        v_lshlrev_b32 v{t0}, 3, v{vL}
        v_mov_b32 v{TT}, 0
        v_mov_b32 v{TT + 1}, 0
        buffer_store_dwordx2 {vr(TT, 2)}, v{t0}, {srd(sWS)}, s{sT2} offen sc1""")
if OPT['xw'] == 1:
    fill += L(f'v_lshlrev_b32 v{t0}, 2, v{vL}')
    for b in (1, 2, 3):
        fill += L(f"""buffer_store_dwordx4 {vr(TT, 4)}, v{VL16}, {srd(sWS)}, s{sXO[b]} offen sc1
            buffer_store_dwordx4 {vr(TT, 4)}, v{VL16}, {srd(sWS)}, s{sXO[b]} offen offset:1024 sc1
            buffer_store_dword v{vL}, v{t0}, {srd(sWS)}, s{sXO[b]} offen offset:2048 sc1""")
elif OPT['xw']:
    fill += L(f"""v_lshlrev_b32 v{t0}, 7, v{vL}
        v_min_u32 v{t0}, {59 * 128}, v{t0}
        buffer_load_dword a60, v{t0}, {srd(sWS)}, s{sXO[0]} offen {('', '', 'sc1', 'sc1 nt')[OPT['xw']]}""")
if not OPT['xel']:
    cut = len(fill) * OPT['xes'] // 100
    fill, xe = fill[:cut] + merge(fill[cut:], xe), []
OPT['dsp'] = OPT['dsps']
srounds = [(2, rg(4)), (14, rg(5)), (28, rg(6)), (42, rg(7))] if OPT['sch'] == 1 else \
    list(zip((2, 14, 28, 42), map(rg, range(NG + OPT['ncr'], 9))))
sbars = [(9, BAR('G1')), (25, BAR('G2', 'G3'))] if OPT['bsp'] == 1 else \
    [(9, BAR('G1')), (25, BAR('G2')), (41, BAR('G3'))] if OPT['bsp'] else [(24, BAR('G2', 'G3'))]
pin = pins(*srounds, *sbars, (63 - LA_F, stamp('s59') + BAR('G4', 'b1w', *([] if OPT['bsa'] & 1 else ['G5'])) + stamp('b2')))
OPT['dsp'] = DSP
P += weave(fine('S', S_items, 3), fill, pin, 0, 62 - LA_F)

Q = FACC[1]
V = lambda t: SRE + t if t % 2 == 0 else SIM + t - 1
AGR, AGI = VRS, t3
fill = []
coef = []
for q in range(8):
    for h in range(2):
        r = 2 * q + h
        fill += L(f"""v_mul_f32 v{TT + 2 * h}, v{SRE + r}, v{CR}
            v_mul_f32 v{TT + 2 * h + 1}, v{SRE + r}, v{NCI}
            v_fmac_f32 v{TT + 2 * h}, v{SIM + r}, v{NCI}
            v_fmac_f32 v{TT + 2 * h + 1}, v{SIM + r}, v{NCR}""")
    for h in range(2):
        r = 2 * q + h
        fill += L(f"""v_mul_f32 v{V(r)}, v{TT + 2 * h}, v{Q + r}
            v_mul_f32 v{V(r) + 1}, v{TT + 2 * h + 1}, v{Q + r}""")
    coef.append(fill)
    fill = []
step = lambda d, p, c: L(f"""v_pk_fma_f32 {vr(d, 2)}, {vr(p, 2)}, {vr(LR, 2)}, {vr(c, 2)} op_sel_hi:[1,0,1]
    v_pk_fma_f32 {vr(d, 2)}, {vr(p, 2)}, {vr(NLI, 2)}, {vr(d, 2)} op_sel:[1,0,0] op_sel_hi:[0,1,1]""")
horner = [step(AGR if r & 1 else TT + 4, V(0) if r == 1 else (TT + 4 if r & 1 else AGR), V(r)) for r in range(1, 16)]
fill = fetch(seg=t1) + fill + (L('s_mov_b32 s19, s3') if OPT['dbg'] else []) + L(f's_mov_b32 s{sKC[0]}, {M2LN2:#x}')
fill.append(I(f'ds_write_b64 v{t1}, {vr(AGR, 2)} offset:{7 * 256}', tok='segw'))
frounds = [(1, rg(8)), (12, rg(9))] if OPT['sch'] == 1 else [(1, rg(9)), (12, rg(10))] if OPT['sch'] == 2 else \
    [(0, rg(9)), (OPT['g10'], rg(10)), (2 * OPT['g10'], rg(11))]
staged_names = list(STAGE)
abars = [(7 - LA_F, BAR('G5'))] if OPT['bsa'] & 1 else []
abars += [(15 - LA_F, BAR('G6')), (23 - LA_F, BAR('G7'))] if OPT['bsa'] & 2 else [(15 - LA_F, BAR('G6', 'G7'))]
pin = pins(*frounds, *abars, (31, BAR('segw')),
           *[(22, stage_load(n)) for n in staged_names[:1]])
if 0 <= OPT['pfat'] < 32:
    pin.setdefault(OPT['pfat'], []).extend(pf)
NB = OPT['nb0']
per = 8 // NB
plan = [(1, [], [])]
for n in range(NB):
    lo, hi = max(2 * per * n - 1, 0), 2 * per * (n + 1) - 1
    plan.append((1 + (n + 1) * 28 // NB, sum(coef[per * n:per * (n + 1)], []), sum(horner[lo:hi], [])))
P += staged(fine('F0', F_items[0], 3), pin, plan + [(30, fill, []), (31, [], [])])
P += stamp('F0')

E = ASc[0]
R0, R1, T0_, T1_ = TT + 8, TT + 12, ASc[0], ASc[2]
h0, h1 = mish_stages(0, 0), mish_stages(0, 1)
rd = lambda dst, k: I(f'ds_read2_b64 {vr(dst, 4)}, v{t1} offset0:{32 * k} offset1:{32 * k + 32}')
publish = cmul_add(E, E + 2, L16R, L16I, PR, PI, AGR, AGI) + fetch(pub=t1) + L(f"""v_mov_b32 v{E + 1}, s{sTAG}
    v_mov_b32 v{E + 3}, s{sTAG}
    buffer_store_dwordx4 {vr(E, 4)}, v{t1}, {srd(sWS)}, 0 offen sc1""")
frounds = [(0, rg(10)), (8, rg(11))] if OPT['sch'] == 1 else [(0, rg(11))] if OPT['sch'] == 2 else []
pin = pins(*frounds, (OPT['wa0'], rw('WA0')), (31 - LA_F, BAR('G8', 'G9', *([] if OPT['bsb'] else ['G10', 'G11']))),
           *zip((8, 24), map(stage_load, staged_names[1:3])))
if OPT['pfat'] >= 32:
    pin.setdefault(OPT['pfat'] - 32, []).extend(fetch(pfa=FAd) + L(pf[0].text.replace(f'v{PI}', f'v{FAd}')))
GA = [int(x) for x in str(OPT['stg1']).split('.')]
P += staged(fine('F0', F_items[1], 3), pin, [
    (GA[0], [rd(R0, 0), rd(R1, 2)] + h0['rd'], h0['A']),
    (GA[1], h0['ex'], cmul_pk(PR, L16R, R0, R0 + 2) + cmul_pk(T0_, L16R, PR, R1) + cmul_pk(PR, L16R, T0_, R1 + 2) + h0['B']),
    (GA[2], [rd(R0, 4), I(f'ds_read_b64 {vr(R1, 2)}, v{t1} offset:{6 * 256}')] + h0['rc'],
     cmul_pk(T0_, L16R, PR, R0) + cmul_pk(T1_, L16R, T0_, R0 + 2) + cmul_pk(PR, L16R, T1_, R1) + h0['C']),
    (GA[3], h1['rd'] + publish + h0['fin'], h1['A']),
    (GA[4], h1['ex'], h1['B']),
    (GA[5], h1['rc'], h1['C']),
    (31, h1['fin'], [])])
P += stamp('F1')

LBA = [CR, NCI]
LBE = [NCR, L16R]
LBD = [ASc[0], QG[0]]
FLV = L16I
lb_loads = '\n'.join(f'buffer_load_dwordx4 {vr(LBD[e], 4)}, v{LBA[e]}, {srd(sWS)}, 0 offen sc1' for e in range(2))
lb_setup = fetch(lba0=LBA[0], lba1=LBA[1], lbe0=LBE[0], lbe1=LBE[1])


def flag_store(stage, toks):
    out = [Wait(*toks), I(f'buffer_store_dword v{FLV}, v{FLA}, {srd(sWS)}, 0 offen offset:{128 * stage} sc1')]
    if OPT['ppf']:
        so = (sFST[0], sSST, sFST[2])[stage]
        vpf = L128R if stage else t3
        out = [I(f'v_lshlrev_b32 v{vpf}, {6 if stage < 2 else "s%d" % sSEL[1]}, v{vL}')] + out
        out.append(I(f'buffer_load_dword a{60 + (stage & 1)}, v{vpf}, {srd(sWS)}, s{so} offen sc1'))
    return out


def flag_load(stage):
    return f'buffer_load_dword v{t3}, v{FLP}, {srd(sWS)}, 0 offen offset:{128 * stage} sc1'


flag_check = f'v_cmp_ne_u32 vcc, s{sTAG}, v{t3}'
lb_check = f"""v_bitop3_b32 v{t0}, v{LBD[0] + 1}, v{LBD[0] + 3}, v{LBE[0]} bitop3:0x7e
    v_bitop3_b32 v{t1}, v{LBD[1] + 1}, v{LBD[1] + 3}, v{LBE[1]} bitop3:0x7e
    v_or_b32 v{t0}, v{t0}, v{t1}
    v_cmp_ne_u32 vcc, 0, v{t0}"""
lb_part = stamp('lb0') + poll('lb', lb_loads, lb_check) + stamp('lb1')
lb_part += cmul_add(LBD[0] + 1, LBD[0] + 3, L128R, L128I, LBD[0], LBD[0] + 2, LBD[1], LBD[1] + 2)
lb_part += cmul_add(LBD[1], LBD[1] + 1, WR, WI, LBD[0] + 1, LBD[0] + 3)
lb_part += fetch(lbw=t1)
lb_part.append(I(f'ds_write_b64 v{t1}, {vr(LBD[1], 2)}', tok='lbw'))
HW, HR, HB = ASc[0], ASc[1], FACC[1]
HW2, HR2 = WR, WI
tail_addr = fetch(lbr=ASc[3], fla=FLA, flp=FLP) + L(f'v_mov_b32 v{FLV}, s{sTAG}')
lb_reads = [I(f'ds_read2_b64 {vr(HB + 4 * q, 4)}, v{ASc[3]} offset0:{64 * q} offset1:{64 * q + 32}') for q in range(4)]
scan = [I(f'v_pk_add_f32 {vr(HB + a, 2)}, {vr(HB + a, 2)}, {vr(HB + b_, 2)}')
        for a, b_ in ((0, 2), (4, 6), (8, 10), (12, 14), (0, 4), (8, 12), (0, 8))]
scan += cmul_add(L128R, L128I, LSR, LSI, HB, HB + 1, PR, PI)
pack = lambda q: L(f"""v_cvt_pk_bf16_f32 v{SRE + q}, v{V(2 * q)}, v{V(2 * q + 1)}
    v_cvt_pk_bf16_f32 v{SIM + q}, v{V(2 * q) + 1}, v{V(2 * q + 1) + 1}""")
for r in range(16):
    prev = vr(L128R if r == 0 else V(r - 1), 2)
    scan += L(f"""v_pk_fma_f32 {vr(V(r), 2)}, {prev}, {vr(LR, 2)}, {vr(V(r), 2)} op_sel_hi:[1,0,1]
        v_pk_fma_f32 {vr(V(r), 2)}, {prev}, {vr(NLI, 2)}, {vr(V(r), 2)} op_sel:[1,0,0] op_sel_hi:[0,1,1]""")
    if r >= 2 and r % 2 == 0 and OPT['pk_in']:
        scan += pack(r // 2 - 1)
HRS = AS
transp = fetch(hw=HW, hw2=HW2, hr=HRS[0]) + [I(f'v_xor_b32 v{HRS[n]}, {16 * n}, v{HRS[0]}') for n in (1, 2, 3)] + sum((pack(q) for q in range(7 if OPT['pk_in'] else 0, 8)), [])
for ri in range(2):
    transp += [I(f'ds_write_b128 v{(HW, HW2)[h]}, {vr((SRE, SIM)[ri] + 4 * h, 4)}') for h in range(2)]
    for fr in range(2):
        for u in range(2):
            transp.append(I(f'ds_read_b64_tr_b16 {ar(aOS + 8 * ri + 4 * fr + 2 * u, 2)}, v{HRS[2 * u + fr]} offset:{256 * u}'))
stH = [I(f'buffer_store_dwordx4 {ar(aOS + 4 * q, 4)}, v{VL16}, {srd(sWS)}, s{sSST} offen offset:{1024 * q} sc1',
         tok='stH' if q == 3 else None) for q in range(4)]
h0, h1 = mish_stages(1, 0), mish_stages(1, 1)
g0, g1 = mish_stages(2, 0), mish_stages(2, 1)
pin = pins((0, rw('CR0')), (8, rw('CI0')), (18, rw('WA1')), *([(15 - LA_F, BAR('G10', 'G11'))] if OPT['bsb'] else []), (29, BAR('lbw') + lb_reads + g0['rd'] + g1['rd']), (OPT['lbl'], L(lb_loads)),
           *[(25, stage_load(n)) for n in staged_names[3:4]])
GB = [int(x) for x in str(OPT['stg2']).split('.')]
P += staged(fine('F2', F_items[2], 2), pin, [
    (GB[0], h0['rd'] + h1['rd'] + lb_setup, h0['A']),
    (GB[1], h0['ex'], h0['B'] + h1['A']),
    (GB[2], h0['rc'] + h1['ex'], h0['C'] + h1['B']),
    (GB[3], h0['fin'] + h1['rc'], h1['C']),
    (28, h1['fin'] + lb_part + tail_addr, []),
    (31, [], [])])
P += stamp('F2')
burst = scan + g0['A']
if OPT['fas'] < 0:
    burst = burst[:OPT['fas']] + flag_store(0, ['stF0', 'stF1']) + burst[OPT['fas']:]
if OPT['fine'] == 'T':
    for n in range(len(burst) - 12, 0, -12):
        burst = burst[:n] + stamp(f'g{n}') + burst[n:]
P += burst
P += stamp('scan')


FP0, CP0, FPc = [NLI, LI, LR, CR], [NCI, NCR], QG
PA = OPT['pa']
p3_setup = fetch(fp0=FP0[0], fp1=CP0[0], f3o=ASc[2]) + [I(f'v_xor_b32 v{FP0[n]}, {32 * n}, v{FP0[0]}') for n in (1, 2, 3)]
p3_setup.append(I(f'v_xor_b32 v{CP0[1]}, 64, v{CP0[0]}'))
hs = OPT['hs']
lead = [i_ for i_ in transp if i_.kind != 'ds']
tds = transp[len(lead):]
P += lead
tpins = [(0, tds[0:1]), (1, tds[1:2]), (2, tds[2:4]), (3, tds[4:6]), (4, tds[6:7]), (5, tds[7:8] + stH[0:1]),
         (6, tds[8:10]), (7, tds[10:12] + stH[1:2]), (7 + hs, stH[2:3]), (7 + 2 * hs, stH[3:4])]

steps = ([('WA0', x, 'own') for x in range(4)]
         + [(n, x, 'own') for n in ('CR0', 'CI0') for x in range(2)]
         + [(f'WA{e}', x, 'A') for e in (1, 2, 3) for x in range(4)]
         + [(n, x, 'H') for n in ('CR0', 'CI0') for x in (2, 3)]
         + [(n, x, 'H') for n in ('CR1', 'CI1') for x in range(4)]
         + [('WB0', x, 'own') for x in range(4)]
         + [(f'WB{e}', x, 'B') for e in (1, 2) for x in range(4)])
deferred = [k for k, st in enumerate(steps) if st[2] != 'own']
A_REGS = ([192 + 4 * n for n in range(16)] + [SRE + 4 * n for n in range(8)]
          + [FACC[0] + 4 * n for n in range(4)] + [TT + 4 * n for n in range(4)])
ACC = [128, 144, 160, 176]
cur_addr = {}


def a_frag(k):
    name, x, src = steps[k]
    if src != 'own':
        return vr(A_REGS[deferred.index(k)], 4)
    if name == 'WA0':
        return ar(aOF + 4 * x, 4)
    if name == 'WB0':
        return ar(aOF + 16 + 4 * x, 4) if x < 2 else vr(FACC[1] + 4 * (x - 2), 4)
    return ar(aOS + 8 * (name[1] == 'I') + 4 * x, 4)


def a_load(k):
    name, x, src = steps[k]
    e = int(name[2])
    if name[0] == 'C':
        so, off = sAO['H'][2 * e + (x >> 1)], 2048 * (name[1] == 'I') + 1024 * (x & 1)
    else:
        so, off = sAO[name[1]][e], 1024 * x
    return [I(f'buffer_load_dwordx4 {a_frag(k)}, v{VL16}, {srd(sWS)}, s{so} offen offset:{off} sc1')]


pin = pins((PA, rw2('WA2')), (PA + 8, BAR()), (PA + 9, rw2('WA3')), (PA + 17, BAR()), (PA + 18, rw2('CR1')),
           (OPT['fal'], L(flag_load(0))), (30, BAR('WA0', 'CR0', 'CI0', 'WA1')), *tpins)
if OPT['fhs'] >= 0:
    pin.setdefault(OPT['fhs'], []).extend(flag_store(1, ['stH']))
if OPT['fas'] >= 0:
    pin.setdefault(OPT['fas'], []).extend(flag_store(0, ['stF0', 'stF1']))
m3 = mish_pk(3, ASc[2])
GC = [int(x) for x in str(OPT['stg3']).split('.')]
P += staged(fine('F3', F_items[3], 2), pin, [
    (GC[0], g0['ex'], g0['B'] + g1['A']),
    (GC[1], g0['rc'] + g1['ex'], g0['C'] + g1['B']),
    (GC[2], g0['fin'] + g1['rc'], g1['C']),
    (29, g1['fin'][:4] + m3[:4] + g1['fin'][4:] + p3_setup, []),
    (31, [], [])])
P += stamp('F3')

m3 = m3[4:]
st0 = 40
early = sum((a_load(k) for k in range(8, 8 + OPT['nea'])), [])
if not OPT['ovl']:
    fac = st0 - OPT['fac']
    TAIL0 = len(P)
    P += m3[:fac] + (flag_store(1, ['stH']) if OPT['fhs'] == -1 and not OPT['fhp'] else [])
    P += stamp('fa0') + poll('fa', flag_load(0), flag_check) + stamp('fa1')
    tl = merge(m3[fac:st0], early) + (flag_store(1, ['stH']) if OPT['fhp'] else []) + m3[st0:]
    TAIL1 = len(P) + len(tl) - len(m3) + st0
    if OPT['fine'] == 'T':
        for n in range(len(tl) - 12, 0, -12):
            tl = tl[:n] + stamp(f'gt{n}') + tl[n:]
    P += tl
    P += stamp('tail')

XE, ME = 192, LSR
ep_setup = L(f"""v_lshrrev_b32 v{t1}, 5, v{vL}
    s_lshl_b32 s{sT2}, s{sW}, 8
    s_add_u32 s{sT2}, s{sT2}, {T_STAT}
    v_lshl_add_u32 v{VLN2}, v{t1}, 4, s{sT2}
    v_lshlrev_b32 v{FA0}, 13, v{t1}
    v_and_b32 v{t0}, 31, v{vL}
    v_lshl_add_u32 v{FA0}, v{t0}, 2, v{FA0}""")
VL4 = ASc[0]
ep_setup = L(f'v_lshlrev_b32 v{VL4}, 2, v{vL}') + ep_setup
base_calc = [I(f'v_accvgpr_read_b32 v{RL2}, a{aXE + 16}')]
for qt in range(4):
    base_calc += [I(f'ds_read_b128 {vr(ME, 4)}, v{VLN2} offset:{4 * ROW(4 * qt)}', hoist=True),
                  I(f'ds_read_b128 {vr(ME + 4, 4)}, v{VLN2} offset:{128 + 4 * ROW(4 * qt)}', hoist=True)]
    rs = range(4)
    base_calc += [I(f'v_accvgpr_read_b32 v{XE + 4 * qt + r}, a{aXE + 4 * qt + r}') for r in rs]
    base_calc += [I(f'v_sub_f32 v{ME + r}, v{XE + 4 * qt + r}, v{ME + r}') for r in rs]
    base_calc += [I(f'v_mul_f32 v{ME + r}, v{ME + r}, v{ME + 4 + r}') for r in rs]
    base_calc += [I(f'v_fmac_f32 v{XE + 4 * qt + r}, v{ME + r}, v{RL2}') for r in rs]

def checksum(dst, src, last):
    return [f'v_bitop3_b32 v{dst}, v{src}, v{src + 1}, {last} bitop3:0x96'] + \
           [f'v_bitop3_b32 v{dst}, v{src + e}, v{src + e + 1}, v{dst} bitop3:0x96' for e in (2, 4, 6)]


def send(b):
    A = ACC[b]
    out = []
    for q in range(2):
        out += [I(f'v_cvt_pk_bf16_f32 v{A + e}, v{A + 2 * e}, v{A + 2 * e + 1}') for e in range(4 * q, 4 * q + 4)]
        out.append(I(f'buffer_store_dwordx4 {vr(A + 4 * q, 4)}, v{VL16}, {srd(sWS)}, s{sXO[b]} offen '
                     f'offset:{1024 * q} sc1'))
    out += [I(c) for c in checksum(A + 8, A, f's{sTAG}')]
    out.append(I(f'buffer_store_dword v{A + 8}, v{VL4}, {srd(sWS)}, s{sXO[b]} offen offset:2048 sc1'))
    return out


def w_read1(k, b, dst):
    name, x, src = steps[k]
    slot = W_SLOT[name]
    out = []

    def address(cur, base):
        if slot < 4:
            return base, slot * SLOT
        if not 0 <= slot - cur_addr.get(cur, -9) < 4:
            cur_addr[cur] = 4 if slot == 4 else 5
            out.append(I(f'v_add_u32 v{cur}, {cur_addr[cur] * SLOT}, v{base}'))
        return cur, (slot - cur_addr[cur]) * SLOT

    if name[0] == 'C':
        a, off = address(AS[x >> 1], CP0[x >> 1])
        return out + [I(f'ds_read_b128 {ar(dst, 4)}, v{a} offset:{off + 4096 * b + 2048 * (x & 1)}', lds_r=slot)]
    var = 2 * (b & 1) + (x & 1)
    a, off = address(FPc[var], FP0[var])
    return out + [I(f'ds_read_b64_tr_b16 {ar(dst + 2 * u, 2)}, v{a} '
                    f'offset:{off + 8192 * (x >> 1) + 4096 * (b >> 1) + 1024 * u}', lds_r=slot) for u in range(2)]


RX = {1: ACC[1], 2: ACC[2], 3: ACC[3]}


def recv(b):
    so = sXO[0] if b == 1 else sSEL[b]
    rl = [f'buffer_load_dwordx4 {vr(RX[b] + 4 * q, 4)}, v{VL16}, {srd(sWS)}, s{so} offen offset:{1024 * q} sc1' for q in range(2)]
    rl.append(f'buffer_load_dword v{RX[b] + 8}, v{VL4}, {srd(sWS)}, s{so} offen offset:2048 sc1')
    return '\n'.join(rl)


pre = L(f"""s_lshl_b32 s{sXB}, s{sXB}, 1
    s_mov_b32 s{sKC[0]}, 0x00003f80
    s_mov_b32 s{sKC[1]}, 0x3f800000""")
E3 = OPT['e3']
D0 = OPT['d0']
seq = [(k, b) for k in range(D0) for b in (1, 2, 3, 0)] + [(k, b) for k in range(D0, E3) for b in (1, 2, 3)]
seq += [(k, b) for k in range(E3, 36) for b in (1, 2)]
seq += [(k, b) for b in (1, 2) for k in range(36, 44)]
own8 = [(k, 0) for k in range(8, 12)]
seq += (own8 if OPT['o8'] else []) + [(k, 3) for k in range(E3, 44)] + ([] if OPT['o8'] else own8)
seq += [(k, 0) for k in list(range(D0, 8)) + list(range(12, 44))]
at = {kb: n for n, kb in enumerate(seq)}
done_at = {b: at[43, b] for b in (1, 2, 3)}
KEEP = {(k, 0): aWO + 4 * (k - 8) for k in range(8, 12)}
KEEP.update({(k, 0): aWO + 16 + 4 * k for k in range(D0, 4)})
reads = sorted((kb for kb in seq), key=lambda kb: at[kb[0], 3] + 0.5 if kb in KEEP else at[kb])
RING = 12
where, nring = {}, 0
for kb in reads:
    if kb in KEEP:
        where[kb] = KEEP[kb]
    else:
        where[kb] = aP + 4 * (nring % RING)
        nring += 1
LA_J = OPT['laj']
items = []
rd = 0
seen = set()
for n, (k, b) in enumerate(seq):
    pre_rd = []
    while rd < len(reads) and (at[reads[rd][0], 3] if reads[rd] in KEEP else at[reads[rd]]) <= n + LA_J:
        pre_rd += w_read1(*reads[rd], where[reads[rd]])
        rd += 1
    mm = []
    for a in range(2):
        d = vr(ACC[b] + 8 * a + 4 * (k & 1), 4)
        mm.append(I(f'v_mfma_f32_16x16x32_bf16 {d}, {a_frag((k & ~1) + a)}, {ar(where[k, b], 4)}, '
                    f'{d if (b, k & 1) in seen else 0}'))
    seen.add((b, k & 1))
    if n == 0:
        if OPT['ovl']:
            k_ = max(n_ for n_, i_ in enumerate(P) if i_.kind == 'barrier') + 1
            P = P[:k_] + pre_rd + P[k_:]
        elif OPT['wmix']:
            end = len(P) - (PROF in (1, 2)) - 10
            P = P[:TAIL1] + merge(P[TAIL1:end], pre_rd) + P[end:]
        else:
            P = P[:TAIL0] + pre_rd + P[TAIL0:]
        pre_rd = []
    nds = [n_ for n_, i_ in enumerate(pre_rd) if i_.kind == 'ds']
    half = nds[len(nds) // 2] if OPT['bal'] and len(nds) > 1 else len(pre_rd)
    items.append([mm[0]] + pre_rd[:half] + [mm[1]] + pre_rd[half:])
pin = {n: [] for n in range(len(items))}
B1 = at[4, 1] + 2
pin[B1] += BAR('WA2')
pin[at[16, 1] - LA_J - 1] += [Wait('WA3', 'CR1', 'CI1'), I('s_barrier')]
pin[at[32, 1] - LA_J - 1] += [Wait('WB0', 'WB1', 'WB2'), I('s_barrier')]
if OPT['fhs'] < -1:
    pin[-OPT['fhs']] += flag_store(1, ['stH'])
if OPT['fhl'] >= 0:
    pin[OPT['fhl']] += L(flag_load(1))
pin[OPT['fhc']] += stamp('fh0') + poll('fh', flag_load(1), flag_check) + stamp('fh1')
pin[OPT['fls']] += flag_store(2, ['stF3', 'stF2'])
pin[OPT['fll']] += L(flag_load(2))
pin[OPT['flc']] += stamp('fl0') + poll('fl', flag_load(2), flag_check) + stamp('fl1')
pin[at[36, 1] - 1] += stamp('k36')
for name, gap in (('CI1', 1), ('WB0', 19), ('WB1', 24), ('WB2', at[16, 1] - LA_J)):
    if name in STAGE:
        for n, i_ in enumerate(stage_write(name)):
            pin[gap + max(n - 2, 0)].append(i_)
_rw = rw
rw = lambda name: [] if name in STAGE else _rw(name)
queue = []
if OPT['ovl']:
    pin[OPT['ofa']] += stamp('fa0') + poll('fa', flag_load(0), flag_check) + stamp('fa1')
    queue += [(OPT['ofa'], a_load(k)) for k in range(8, 8 + OPT['nea'])]
queue += [(OPT['q0'], a_load(k)) for k in range(8 + OPT['nea'], 16)] + [(0, rw('CI1'))]
queue += [(OPT['q0'], a_load(k)) for k in range(max(16, 8 + OPT['nea']), 20)]
if OPT['qord'] == 0:
    queue += [(B1 + 1, rw('WB0'))] + [(OPT['fhc'], a_load(k)) for k in range(20, 32)] + [(B1 + 1, rw('WB1'))]
elif OPT['qord'] == 1:
    queue += [(B1 + 1, rw('WB0')), (B1 + 1, rw('WB1'))] + [(OPT['fhc'], a_load(k)) for k in range(20, 32)]
else:
    queue += [(OPT['fhc'], a_load(k)) for k in range(20, 24)] + [(B1 + 1, rw('WB0')), (B1 + 1, rw('WB1'))]
    queue += [(0, a_load(k)) for k in range(24, 32)]
queue += [(at[16, 1] - LA_J, rw('WB2'))]
queue += [(OPT['flc'], a_load(k)) for k in range(36, 44)]
n = 0.0
for first_gap, ins in queue:
    n = max(n, first_gap)
    pend = []
    for i_ in ins:
        pend.append(i_)
        if i_.kind == 'vm':
            pin[int(n)] += pend
            pend = []
            n += OPT['pace'] / 10
for b in (1, 2, 3):
    sd = send(b)
    for q in range(4):
        pin[done_at[b] + 3 + q] += sd[q * len(sd) // 4:(q + 1) * len(sd) // 4]
    pin[done_at[min(b + 1, 3) if b < 3 else 3] + OPT[f'r{b}'] if b != 2 else done_at[2] + OPT['r2']] += L(recv(b))
pin[done_at[2] + 6] += stamp('s12')
pin[done_at[3] + 6] += stamp('sent')
items = fine('P3', items[:OPT['fn'] * 27], OPT['fn']) + items[OPT['fn'] * 27:]
LEV[0] = OPT['lev3']
sub = lambda lo, hi: {n - lo: pin[n] for n in range(lo, hi)}
unit_weave = weave


def weave(its, fill_, pin_, lo=0, hi=None):
    if not OPT['fineg']:
        return unit_weave(its, fill_, pin_, lo, hi)
    flat, pin2 = [], {}
    for n, it in enumerate(its):
        cut_ = max(k_ for k_, i_ in enumerate(it) if i_.kind == 'mfma')
        flat += [it[:cut_], it[cut_:]]
        ordered = any(i_.kind in ('barrier', 'pseudo', 'label') for i_ in pin_.get(n, []))
        first = len(flat[-2]) < len(flat[-1]) and not ordered
        pin2[2 * n + (0 if first else 1)] = pin_.get(n, [])
    return unit_weave(flat, fill_, pin2, 2 * lo, None if hi is None else 2 * hi + 1)


c1, c2 = at[32, 1], at[11, 0] + 1
if OPT['ovl']:
    GD = [int(x) for x in str(OPT['stg4']).split('.')]
    both = lambda lo, hi: m3[lo:hi] + m3[40 + lo:40 + hi]
    P += staged(items[:c1], pin, [(GD[0], [], both(0, 4)), (GD[1], both(4, 12), both(12, 20)),
                                  (GD[2], both(20, 28), both(28, 36)),
                                  (GD[3], both(36, 40) + m3[80:] + stamp('tail'), []), (c1 - 1, [], [])])
else:
    P += weave(items[:c1], [], sub(0, c1))
P += weave(items[c1:c2], ep_setup + pre, sub(c1, c2), 0, 6)
SWAPS = lambda R: [I(f'v_permlane16_swap_b32 v{R + 8 * a + r}, v{R + 8 * a + 4 + r}') for a in range(2) for r in range(4)]
base_calc += SWAPS(XE)


def rx_check(b):
    chk = checksum(RX[b] + 9, RX[b], f'v{RX[b] + 8}') + [f'v_cmp_ne_u32 vcc, s{sTAG}, v{RX[b] + 9}']
    return poll(f'rx{b}', '\n'.join(recv(x) for x in range(b, 4 if OPT['rxall'] else b + 1)), '\n'.join(chk))


EARLY = range(1, 1 + OPT['rxe'])
for b in EARLY:
    base_calc += rx_check(b)
    for q in range(8):
        u = RX[b] + 10 + 2 * (q & 1)
        base_calc += L(f"""v_lshlrev_b32 v{u}, 16, v{RX[b] + q}
            v_and_b32 v{u + 1}, 0xffff0000, v{RX[b] + q}
            v_add_f32 v{XE + 2 * q}, v{XE + 2 * q}, v{u}
            v_add_f32 v{XE + 2 * q + 1}, v{XE + 2 * q + 1}, v{u + 1}""")
P += weave(items[c2:], base_calc, sub(c2, len(items)), 3, len(items) - c2 - (3 if OPT['rxe'] else 6))
P += stamp('own')
A0 = ACC[0]
for q in range(8):
    P.append(I(f'v_pk_add_f32 {vr(A0 + 2 * q, 2)}, {vr(A0 + 2 * q, 2)}, {vr(XE + 2 * q, 2)}'))
LATE = [b for b in (1, 2, 3) if b not in EARLY]
for b in LATE:
    P += rx_check(b)
    if OPT['seqadd'] and b < 3:
        P += [I(f'v_dot2c_f32_bf16 v{A0 + 2 * q + h}, s{sKC[h]}, v{RX[b] + q}') for q in range(8) for h in range(2)]
if OPT['seqadd']:
    LATE = [3]
P += stamp('rx')
sts = []
for a in range(2):
    for q in range(4 * a, 4 * a + 4):
        for b in LATE:
            P += [I(f'v_dot2c_f32_bf16 v{A0 + 2 * q + h}, s{sKC[h]}, v{RX[b] + q}') for h in range(2)]
        P += sts[3 * (q & 3):3 * (q & 3) + 3]
    P += SWAPS(A0)[4 * a:4 * a + 4]
    sts = []
    for q in range(4 * a, 4 * a + 4):
        sts.append(I(f's_add_u32 s{sBB}, s{sXB}, {2048 * ROW(2 * q)}'))
        sts += [I(f'buffer_store_dword v{A0 + 2 * q + h}, v{FA0}, {srd(sOUT)}, s{sBB} offen offset:{2048 * h} '
                  f'{OPT["out_flags"].replace("+", " ")}') for h in range(2)]
P += L(f"""s_lshl_b32 s{sT2}, s{sJ}, 2
    s_add_u32 s{sT2}, s{sT2}, s{sW}
    s_xor_b32 s{sT1}, s{sI}, 15
    s_or_b32 s{sT2}, s{sT2}, s{sT1}
    s_cmp_eq_u32 s{sT2}, 0
    s_cselect_b32 s{sT2}, {WS_EP}, {OOB:#x}
    v_mov_b32 v{t0}, s{sE2}
    v_mov_b32 v{t1}, s{sT2}""") + sts + L(f'buffer_store_dword v{t0}, v{t1}, {srd(sWS)}, 0 offen')
if OPT['diag']:
    P += stamp('end') + L("""s_memrealtime s[6:7]
        s_waitcnt lgkmcnt(0)
        s_sub_u32 s4, s4, s23
        s_lshl_b32 s4, s4, 2
        s_min_u32 s4, s4, 20000
        L_diag:
        s_memrealtime s[0:1]
        s_waitcnt lgkmcnt(0)
        s_sub_u32 s0, s0, s6
        s_cmp_lt_u32 s0, s4
        s_cbranch_scc1 L_diag""")
if OPT['dbg']:
    P += L(f"""s_memrealtime s[6:7]
        s_mov_b32 s{sTMP}, s4
        s_mov_b32 s{sTMP + 1}, s5
        s_mov_b32 s{sTMP + 2}, 256
        v_lshlrev_b32 v{t0}, 2, v{vL}
        v_lshrrev_b32 v{t1}, v{t0}, s23
        v_and_b32 v{t1}, 15, v{t1}
        v_min_u32 v{t1}, 1, v{t1}
        v_mov_b32 v{t2}, {OOB:#x}
        v_cmp_gt_u32 vcc, 7, v{vL}
        s_waitcnt lgkmcnt(0)
        v_cndmask_b32 v{t0}, v{t2}, v{t0}, vcc
        buffer_atomic_add v{t1}, v{t0}, {srd(sTMP)}, 0 offen
        s_sub_u32 s6, s6, s19
        v_mov_b32 v{t1}, s6
        v_cmp_eq_u32 vcc, 8, v{vL}
        v_lshlrev_b32 v{t0}, 2, v{vL}
        s_nop 0
        v_cndmask_b32 v{t0}, v{t2}, v{t0}, vcc
        buffer_atomic_umax v{t1}, v{t0}, {srd(sTMP)}, 0 offen""")
if PROF:
    P += stamp('end')
    P += L(f"""s_waitcnt vmcnt(0)
        s_memrealtime s[0:1]
        s_lshl_b32 s{sT2}, s2, 2
        s_add_u32 s{sT2}, s{sT2}, s{sW}
        s_lshl_b32 s{sT2}, s{sT2}, 7
        s_add_u32 s{sT2}, s{sT2}, {WS_PROF}
        v_mov_b32 v{t1}, s{sT2}
        s_waitcnt lgkmcnt(0)
        v_mov_b32 v{t0}, s0
        buffer_store_dword v{t0}, v{t1}, {srd(sWS)}, 0 offen offset:124
        v_mov_b32 v{t2}, s23
        buffer_store_dword v{t2}, v{t1}, {srd(sWS)}, 0 offen offset:112
        buffer_store_dword a254, v{t1}, {srd(sWS)}, 0 offen offset:116
        buffer_store_dword a255, v{t1}, {srd(sWS)}, 0 offen offset:120""")
    P += stamp('DUMP')
P += [I('L_end:'), I('s_endpgm')]

P = resolve_stamps(P)
if OPT['split']:
    P = split_ds_pairs(P)
if OPT['hoist']:
    P = hoist_reads(P, OPT['hoist'])
body = pad_hazards(insert_waits(P, OPT['age']))
check_polls(body)
tail = []
for name, loads, check in retry_blocks:
    blk = [I(f'L_retry_{name}:'), I(f's_mov_b32 s3, {OPT["spin"]}'), I(f'L_spin_{name}:')]
    if PROF or OPT['dbg']:
        blk.append(I(f's_add_u32 s23, s23, {1 << (4 * retry_blocks.index((name, loads, check)))}'))
    blk += L(loads) + [I('s_waitcnt vmcnt(0)')] + L(check)
    blk += L(f'''s_cbranch_vccz L_back_{name}
        s_sub_u32 s3, s3, 1
        s_cmp_lg_u32 s3, 0
        s_cbranch_scc1 L_spin_{name}
        s_branch L_back_{name}''')
    tail += pad_hazards(blk)

hdr = open(os.path.join(os.path.dirname(os.path.abspath(__file__)), 'header.txt')).read()
text = hdr + f'''; @launch grid=(256,1,1) block=(256,1,1) lds=163840
.amdgcn_target "amdgcn-amd-amdhsa--gfx950"
.text
.globl {KN}
.p2align 8
.type {KN},@function
{KN}:
{render(body)}
{render(tail)}
L_code_end:
    s_endpgm
.section .rodata,"a"
.p2align 6
.amdhsa_kernel {KN}
  .amdhsa_next_free_vgpr 512
  .amdhsa_next_free_sgpr 102
  .amdhsa_accum_offset 256
  .amdhsa_group_segment_fixed_size 0
  .amdhsa_kernarg_size 128
  .amdhsa_user_sgpr_count 2
  .amdhsa_user_sgpr_kernarg_segment_ptr 1
  .amdhsa_system_sgpr_workgroup_id_x 1
.end_amdhsa_kernel
'''
open(sys.argv[1], 'w').write(text)
if PROF:
    open(sys.argv[1][:-2] + '.stamps', 'w').write(' '.join(stamp_names))
from collections import Counter
cnt = Counter(i.kind for i in body)
print(dict(cnt), 'nops', sum(1 for i in body if i.mn == 's_nop'))
import subprocess
chk = subprocess.run([sys.executable, 'cdna_unwritten_srd_check.py', sys.argv[1]],
                     capture_output=True, text=True)
if chk.returncode != 0:
    os.remove(sys.argv[1])
    sys.exit('address check failed: ' + chk.stdout[-600:])
```

```python
import sys, os
sys.path.insert(0, os.path.dirname(os.path.abspath(__file__)))
from asmlib import I, Wait, insert_waits, pad_hazards, render, weave, split_ds_pairs, hoist_reads, merge, level, ds_first, check_polls

KN = 'parallel_sum__ssm_conv_s5__dense_activation_mish__prompt_kernel'
OPT = dict(prof=0, spin=20000, out_flags='nt', map='8x4', pf=2, age=16, laf=5, r1=30, r2=36, r3=29, e3=12, fls=28, fll=50, flc=68, ka2=1, nstep=0, split=0, diag='', dsp=2, xel=0, tlb=0, pk_in=1, lateln=100, d0=4, o8=1, bal=0, fineg=1, xes=0, xfirst=1, parat=4, nb0=2, stg3='8.16.23', stg1='2.7.12.17.22.27', stg2='2.6.14.21', fhp=0, wmix=1, ntx=0, ntg=0, ntw=0, lbt=0, rxe=0, dspc=3, dsps=3, sch=3, g3=24, fn=2, stg=0, q0=2, pfat=24, seqadd=1, lean=1, lb2s=0, s2l=0, xlds=0, deep=0, back=1, early=0, gl=0, xl=9, ncr=2, cpf=1, rxall=1, dbg=0, cfs=1, bsp=2, bsa=2, bsb=0, ovl=0, ofa=0, stg4='1.9.17.21', g10=8, wa0=17, hs=2, rotj=0, rotm=0, laj=7, pace=16, lev=0, lev3=0, pa=2, fw=1, xw=0, vmc=2, fine='', fas=-10, fal=12, fac=16, nea=8, fhs=-1, fhl=12, fhc=32, qord=1, lbl=13, lbc=24, ppf=0, hoist=32)
for a in sys.argv[2:]:
    k, v = a.split('=')
    OPT[k] = int(v) if v.lstrip('-').isdigit() else v
PROF = OPT['prof']

WS_EP, WS_AG, WS_A = 0, 0x10000, 0x40000
WS_XC = WS_A + 64 * 176 * 1024
XC_BLK = 2560
WS_FL = WS_XC + 1024 * 3 * XC_BLK
WS_SIZE = WS_FL + 1024 * 512
WS_PROF = 0x1C00000
OOB = 0x7ff00000
SLOT = 16384
TB = 9 * SLOT
T_STAT, T_B1, T_SEG, T_LB, T_H = TB, TB + 1024, TB + 2048, TB + 6144, TB + 8192
LOG2E, LN2, M2LN2 = 0x3fb8aa3b, 0x3f317218, 0xbfb17218

sX, sB, sW1, sCre, sCim, sW2, sWS, sOUT, sTMP = 36, 40, 44, 48, 52, 56, 60, 64, 68
sI, sJ, sW, sROT, sTAG, sE2 = 72, 73, 74, 75, 76, 77
sKC = [78, 79, 80, 81]
sWOFF, sT0, sT1, sXB, sBB, sW1A, sW1B = 82, 83, 84, 85, 86, 87, 88
sAS = 89
sFST = [90, 91, 92, 93]
sSST, sCB, sW2B, sFSEL, sONES, sT3, sJJ, sT2 = 94, 95, 96, 97, 98, 99, 100, 101
sKQ, sPB, sXO = 22, [24, 25, 26], [27, 28, 29, 30]
sSEL = [31, 32, 33, 34]
sFLG = 35
pLRE, pLIM, pBRE, pBIM, pLDT, pDSK, pB1 = 8, 10, 12, 14, 16, 18, 20
srd = lambda b: f's[{b}:{b + 3}]'
vL, t0, t1, t2 = 0, 1, 2, 3
AS = [4, 5, 6, 7]
ASc = [8, 9, 10, 11]
XG = [12, 13, 14, 15]
PG = [16, 17, 18, 19]
QG = [20, 21, 22, 23]
FA0, FAc, RL2, VLN2, VL16, VNM, VRS, t3 = 24, 25, 26, 27, 28, 29, 30, 31
FAd = VNM
NLI, LI, LR, CR, NCI, NCR, L16R, L16I, LSR, LSI, L128R, L128I, WR, WI, PR, PI = range(32, 48)
TT = 48
FACC = [64, 80]
SRE, SIM = 96, 112
X = 128
aS, aF, aP, aOF, aOS, aWO, aXE = 0, 128, 0, 64, 88, 128, 224
STAMP_A = list(range(104, 128)) + list(range(241, 247))
vr = lambda b, n: f'v[{b}:{b + n - 1}]'
ar = lambda b, n: f'a[{b}:{b + n - 1}]'

stamp_names = []
FINE_KEEP = dict(T=['lb1', 'F2', 'scan', 'F3', 'fa0', 'fa1', 'tail', 'fh0'], S=['x7', 'c27', 'b0', 'F0'], F0=['b2', 'F0', 'F1'], F2=['F1', 'F2', 'scan'], F3=['F2', 'scan', 'F3', 'fa0', 'fa1', 'tail'],
                 P3=['tail'], L=['k36', 'sent', 'own', 'rx'])


def fine(phase, items, step):
    if OPT['fine'] == phase:
        for n in range(step - 1, len(items), step):
            items[n] = items[n] + stamp(f'g{n}')
    return items


def stamp(name):
    if PROF == 3 and name not in ('end', 'DUMP'):
        return []
    if OPT['fine'] and not name.startswith('g') and name not in FINE_KEEP[OPT['fine']] + ['end', 'DUMP']:
        return []
    if OPT['diag'] == name:
        return [I('s_memrealtime s[4:5]')]
    return [I(';stamp ' + name)] if PROF else []


def resolve_stamps(prog):
    out = []
    for ins in prog:
        if not ins.text.startswith(';stamp '):
            out.append(ins)
            continue
        name = ins.text.split()[1]
        n = len(stamp_names)
        if n:
            out.append(I(f'v_accvgpr_write_b32 a{STAMP_A[n - 1]}, s{4 + 2 * ((n - 1) & 1)}'))
        if name == 'DUMP':
            out += [I(f'buffer_store_dword a{STAMP_A[k]}, v{t1}, {srd(sWS)}, 0 offen offset:{4 * k}') for k in range(n)]
            continue
        assert n < 29
        stamp_names.append(name)
        out.append(I(f's_mem{"real" if PROF == 2 else ""}time s[{4 + 2 * (n & 1)}:{5 + 2 * (n & 1)}]'))
    return out


def L(text):
    return [I(t.strip()) for t in text.strip().split('\n') if t.strip()]


def mfma(d, a, b, c):
    return I(f'v_mfma_f32_32x32x16_bf16 {d}, {a}, {b}, {c}')


def mksrd(b, lo, size):
    return f's_mov_b32 s{b}, s{lo}\ns_mov_b32 s{b + 1}, s{lo + 1}\ns_mov_b32 s{b + 2}, {size}\ns_mov_b32 s{b + 3}, 0x00020000\n'


slot_shared = {}


def dma_round(name, slot, voffs, rsrc, soff_code, shared):
    out = [I(f's_add_u32 m0, s{sWOFF}, {slot * SLOT}')] + L(soff_code)
    for g in range(4):
        nt = int(name[1:]) < OPT['ntx'] if name[0] == 'x' else OPT['ntg'] if name[0] == 'G' else OPT['ntw']
        out.append(I(f'buffer_load_dwordx4 v{voffs[g]}, {srd(rsrc)}, s{sT0} offen offset:{1024 * g} {"nt " if nt else ""}lds',
                     tok=name if g == 3 else None,
                     lds_w=(slot, slot_shared.get(slot, False)) if g == 0 else None, note=name,
                     fills=(slot, shared) if g == 3 else None))
    slot_shared[slot] = shared
    return out


XSLOT = lambda s: (s & 3) + (5 if OPT['early'] and s < 4 else 1)


def rx(s, slot):
    return dma_round(f'x{s}', XSLOT(s), XG, sX,
                     f's_add_u32 s{sT0}, s{sROT}, {s}\ns_and_b32 s{sT0}, s{sT0}, 7\n'
                     f's_lshl_b32 s{sT0}, s{sT0}, 7\ns_add_u32 s{sT0}, s{sT0}, s{sXB}', False)


G_SLOT = [5, 6, 7, 8, 0, 1, 2, 3, 4, 5, 6, 7]
W_SLOT = dict(WA0=8, CR0=0, CI0=1, WA1=2, WA2=3, WA3=4, CR1=5, CI1=6, WB0=7, WB1=8, WB2=2)


def rg(g):
    if g < 4:
        return dma_round(f'G{g}', G_SLOT[g], PG, sB,
                         f's_lshl_b32 s{sT0}, s{sKC[g]}, 7\ns_add_u32 s{sT0}, s{sT0}, s{sBB}', True)
    base = sW1A if g < 8 else sW1B
    return dma_round(f'G{g}', G_SLOT[g], QG, sW1,
                     f's_mul_i32 s{sT0}, s{sKC[g & 3]}, {64 * 3584}\ns_add_u32 s{sT0}, s{sT0}, s{base}', True)


def rw(name):
    e = int(name[2])
    if name[0] == 'C':
        code = f's_xor_b32 s{sT0}, s{sCB}, {128 * e}'
        return dma_round(name, W_SLOT[name], PG, sCim if name[1] == 'I' else sCre, code, True)
    if name[1] == 'A':
        code = f's_xor_b32 s{sT0}, s{sJJ}, {e}\ns_lshl_b32 s{sT0}, s{sT0}, 17\ns_add_u32 s{sT0}, s{sT0}, s{sW2B}'
    else:
        code = f's_lshl_b32 s{sT0}, s{sPB[e]}, 16\ns_add_u32 s{sT0}, s{sT0}, s{sW2B}'
        if e == 0:
            code += f'\ns_xor_b32 s{sT0}, s{sT0}, s{sSEL[0]}'
    return dma_round(name, W_SLOT[name], XG, sW2, code, True)


STAGE = {n: 160 + 16 * k for k, n in enumerate(x for x in str(OPT['stg']).split('.') if x != '0')}
VST = t0


def stage_load(name):
    keep = dict(slot_shared)
    out = []
    for i_ in rw(name)[1:]:
        if i_.kind == 'vm':
            n = sum(j.kind == 'vm' for j in out)
            i_ = I(i_.text.replace('dwordx4 ', f'dwordx4 {ar(STAGE[name] + 4 * n, 4)}, ').replace(' lds', ''))
            i_.dma = True
        out.append(i_)
    slot_shared.clear()
    slot_shared.update(keep)
    return out


def stage_write(name):
    slot = W_SLOT[name]
    out = [I(f's_add_u32 s{sT0}, s{sWOFF}, {slot * SLOT}'), I(f'v_add_u32 v{VST}, s{sT0}, v{VL16}')]
    out += [I(f'ds_write_b128 v{VST}, {ar(STAGE[name] + 4 * g_, 4)} offset:{1024 * g_}', tok=name if g_ == 3 else None,
              lds_w=(slot, True) if g_ == 0 else None, note=name, fills=(slot, True) if g_ == 3 else None)
            for g_ in range(4)]
    return out


def rw2(name):
    if name not in STAGE:
        return rw(name)
    out = stage_write(name)
    for i_ in out[2:]:
        i_.dma = True
    return out


def pins(*parts):
    pin = {}
    for gap, ins in parts:
        head = [i_ for i_ in ins if not getattr(i_, 'dma', False)]
        pin.setdefault(gap, []).extend(head)
        for n, i_ in enumerate(ins[len(head):]):
            pin.setdefault(gap + n * OPT['dsp'], []).append(i_)
    return pin


BAR = lambda *toks: ([Wait(*toks)] if toks else []) + [I('s_barrier')]
PARK = {n: 247 if k == 16 else 48 + k for k, n in enumerate('pub seg lba0 lba1 lbe0 lbe1 fla flp lbw lbr hw hw2 hr hr2 f3o fp0 fp1'.split())}
PARK['pfa'] = 249


def park(**regs):
    return [I(f'v_accvgpr_write_b32 a{PARK[n]}, v{r}') for n, r in regs.items()]


def fetch(**regs):
    return [I(f'v_accvgpr_read_b32 v{r}, a{PARK[n]}') for n, r in regs.items()]


retry_blocks = []


def poll(name, loads, check):
    retry_blocks.append((name, loads, check))
    return L(check) + [I(f's_cbranch_vccnz L_retry_{name}'), I(f'L_back_{name}:')]


def cexp(dr, di, scale, zr, za):
    return L(f"""v_mul_f32 v{dr}, {scale}, v{zr}
        v_mul_f32 v{di}, {scale}, v{za}
        v_exp_f32 v{dr}, v{dr}
        v_fract_f32 v{di}, v{di}
        v_cos_f32 v{t3}, v{di}
        v_sin_f32 v{di}, v{di}
        v_mul_f32 v{di}, v{dr}, v{di}
        v_mul_f32 v{dr}, v{dr}, v{t3}""")


def cmul_add(dr, di, ar_, ai, br, bi, cr=None, ci=None):
    if cr is None:
        head = f'v_mul_f32 v{dr}, v{ar_}, v{br}\nv_mul_f32 v{di}, v{ar_}, v{bi}'
    else:
        head = f'v_fma_f32 v{dr}, v{ar_}, v{br}, v{cr}\nv_fma_f32 v{di}, v{ar_}, v{bi}, v{ci}'
    return L(head + f'\nv_fma_f32 v{dr}, -v{ai}, v{bi}, v{dr}\nv_fmac_f32 v{di}, v{ai}, v{br}')


def mish(b, voff=VL16, quarters=range(4)):
    A = FACC[b & 1]
    out = []
    for q in quarters:
        rs = range(4 * q, 4 * q + 4)
        out.append(I(f'ds_read_b128 {vr(TT + 4 * q, 4)}, v{t2} offset:{T_B1 - TB + 128 * b + 16 * q}', hoist=True))
        out += [I(f'v_fmac_f32 v{TT + r}, v{A + r}, v{RL2}') for r in rs]
        out += [I(f'v_exp_f32 v{A + r}, v{TT + r}') for r in rs]
        out += [I(f'v_add_f32 v{A + r}, 1.0, v{A + r}') for r in rs]
        out += [I(f'v_fma_f32 v{A + r}, v{A + r}, v{A + r}, 1.0') for r in rs]
        out += [I(f'v_rcp_f32 v{A + r}, v{A + r}') for r in rs]
        out += [I(f'v_fmamk_f32 v{A + r}, v{A + r}, {M2LN2:#x}, v{VLN2}') for r in rs]
        out += [I(f'v_mul_f32 v{TT + r}, v{TT + r}, v{A + r}') for r in rs]
        out += [I(f'v_cvt_pk_bf16_f32 v{A + p}, v{TT + 2 * p}, v{TT + 2 * p + 1}') for p in (2 * q, 2 * q + 1)]
        if q & 1:
            fr = q >> 1
            out.append(I(f'buffer_store_dwordx4 {vr(A + 4 * fr, 4)}, v{voff}, {srd(sWS)}, s{sFST[b]} offen '
                         f'offset:{1024 * fr} sc1', tok=f'stF{b}' if fr else None))
            if b < 3:
                out += [I(f'v_accvgpr_write_b32 a{aOF + 8 * b + 4 * fr + e}, v{A + 4 * fr + e}') for e in range(4)]
    return out


def mish_pk(b, voff, halves=range(2)):
    A = FACC[b & 1]
    out = []
    for q in range(2 * len(halves)):
        out.append(I(f'ds_read_b128 {vr(TT + 4 * q, 4)}, v{t2} offset:{T_B1 - TB + 128 * b + 16 * q}', hoist=True))
    for h in halves:
        ps = range(8 * h, 8 * h + 8, 2)
        rs = range(8 * h, 8 * h + 8)
        out += [I(f'v_pk_fma_f32 {vr(TT + p, 2)}, {vr(A + p, 2)}, {vr(RL2, 2)}, {vr(TT + p, 2)} op_sel_hi:[1,0,1]') for p in ps]
        out += [I(f'v_exp_f32 v{A + r}, v{TT + r}') for r in rs]
        out += [I(f'v_pk_add_f32 {vr(A + p, 2)}, {vr(A + p, 2)}, 1.0 op_sel_hi:[1,0]') for p in ps]
        out += [I(f'v_pk_fma_f32 {vr(A + p, 2)}, {vr(A + p, 2)}, {vr(A + p, 2)}, 1.0 op_sel_hi:[1,1,0]') for p in ps]
        out += [I(f'v_rcp_f32 v{A + r}, v{A + r}') for r in rs]
        out += [I(f'v_pk_fma_f32 {vr(A + p, 2)}, {vr(A + p, 2)}, s[{sKC[0]}:{sKC[1]}], {vr(RL2, 2)} '
                  f'op_sel:[0,0,1] op_sel_hi:[1,0,1]') for p in ps]
        out += [I(f'v_pk_mul_f32 {vr(TT + p, 2)}, {vr(TT + p, 2)}, {vr(A + p, 2)}') for p in ps]
        out += [I(f'v_cvt_pk_bf16_f32 v{A + p // 2}, v{TT + p}, v{TT + p + 1}') for p in ps]
    out += [I(f'v_permlane16_swap_b32 v{A + e}, v{A + 4 + e}') for e in range(4)]
    for h in range(2):
        out.append(I(f'buffer_store_dwordx4 {vr(A + 4 * h, 4)}, v{voff}, {srd(sWS)}, s{sFST[b]} offen '
                     f'offset:{1024 * h} sc1', tok=f'stF{b}' if h else None))
        if b < 3:
            out += [I(f'v_accvgpr_write_b32 a{aOF + 8 * b + 4 * h + e}, v{A + 4 * h + e}') for e in range(4)]
    return out


def mish_stages(b, h):
    m = mish_pk(b, VL16, range(2))
    body = m[4:]
    body = body[40:] if h else body[:40]
    return dict(rd=m[2 * h:2 * h + 2], A=body[0:4], ex=body[4:12], B=body[12:20], rc=body[20:28], C=body[28:36],
                fin=body[36:])


def cmul_pk(d, a, b, c):
    return L(f"""v_pk_fma_f32 {vr(d, 2)}, {vr(b, 2)}, {vr(a, 2)}, {vr(c, 2)} op_sel_hi:[1,0,1]
        v_pk_fma_f32 {vr(d, 2)}, {vr(b, 2)}, {vr(a, 2)}, {vr(d, 2)} op_sel:[1,1,0] op_sel_hi:[0,1,1] neg_lo:[0,1,0]""")


def staged(items, pin, plan):
    out, lo = [], 0
    for hi, fill_, burst_ in plan:
        out += weave(items[lo:hi + 1], fill_, {g_ - lo: v for g_, v in pin.items() if lo <= g_ <= hi}) + burst_
        lo = hi + 1
    return out


_weave = weave
LEV = [OPT['lev']]


def weave(*a):
    out = _weave(*a)
    return ds_first(level(out, LEV[0], OPT['vmc'])) if LEV[0] else out


P = []
if OPT['map'] == '8x4':
    ids = f"""s_and_b32 s{sKQ}, s2, 3
        s_bfe_u32 s{sJJ}, s2, 0x20003
        s_lshr_b32 s{sI}, s2, 5
        s_bfe_u32 s{sT0}, s2, 0x10002
        s_lshl_b32 s{sROT}, s{sT0}, 1
        s_lshl_b32 s{sT0}, s{sT0}, 3
        s_and_b32 s{sT1}, s{sI}, 1
        s_or_b32 s{sI}, s{sI}, s{sT0}
        s_add_u32 s{sROT}, s{sROT}, s{sT1}
        s_add_u32 s{sROT}, s{sROT}, s{sJJ if OPT['rotm'] else sKQ}
        s_lshl_b32 s{sROT}, s{sROT}, 1
        s_and_b32 s{sROT}, s{sROT}, 7"""
else:
    ids = f"""s_and_b32 s{sKQ}, s2, 1
        s_lshl_b32 s{sKQ}, s{sKQ}, 1
        s_lshr_b32 s{sT0}, s2, 7
        s_or_b32 s{sKQ}, s{sKQ}, s{sT0}
        s_bfe_u32 s{sJJ}, s2, 0x20003
        s_bfe_u32 s{sI}, s2, 0x20005
        s_bfe_u32 s{sT0}, s2, 0x20001
        s_add_u32 s{sROT}, s{sT0}, s{sKQ}
        s_lshl_b32 s{sT0}, s{sT0}, 2
        s_or_b32 s{sI}, s{sI}, s{sT0}
        s_lshl_b32 s{sROT}, s{sROT}, 1
        {'s_lshr_b32 s%d, s2, 7' % sT0 if OPT['rotm'] else ''}
        {'s_lshl_b32 s%d, s%d, 1' % (sROT, sJJ) if OPT['rotm'] else ''}
        {'s_add_u32 s%d, s%d, s%d' % (sROT, sROT, sT0) if OPT['rotm'] else ''}
        s_and_b32 s{sROT}, s{sROT}, 7"""
code_pf = f'buffer_load_dword v{t3}, v{FACC[0] if OPT["cpf"] == 2 else t1}, {srd(sTMP)}, s{sFLG if OPT["cpf"] == 2 else sT0} offen'
ws_load = f's_load_dwordx2 s[{sWS}:{sWS + 1}], s[0:1], 120'
more_loads = f"""s_load_dwordx8 s[{pLRE}:{pLRE + 7}], s[0:1], 8
s_load_dwordx4 s[{pLDT}:{pLDT + 3}], s[0:1], 56
s_load_dwordx2 s[{pB1}:{pB1 + 1}], s[0:1], 88
s_load_dwordx2 s[{sW1}:{sW1 + 1}], s[0:1], 80
s_load_dwordx2 s[{sCre}:{sCre + 1}], s[0:1], 40
s_load_dwordx2 s[{sCim}:{sCim + 1}], s[0:1], 48
s_load_dwordx2 s[{sW2}:{sW2 + 1}], s[0:1], 96
s_load_dwordx2 s[{sOUT}:{sOUT + 1}], s[0:1], 104
"""
SUM, SQ = [TT + 8, TT + 9], [TT + 10, TT + 11]
sizes = ((sX, 2097152), (sB, 524288), (sW1, 1835008), (sCre, 524288), (sCim, 524288), (sW2, 1835008),
         (sWS, (WS_PROF + 0x40000) if PROF else WS_SIZE), (sOUT, 4194304))
P += L(f"""
s_cmp_ge_u32 s2, 256
s_cbranch_scc1 L_end
{'s_memtime s[98:99]' if PROF else ''}
{'s_memrealtime s[90:91]' if PROF or OPT['diag'] or OPT['dbg'] else ''}
{'s_load_dwordx2 s[4:5], s[0:1], 112' if OPT['dbg'] else ''}
s_load_dwordx2 s[{sX}:{sX + 1}], s[0:1], 0
{'' if OPT['ka2'] else ws_load}
s_getpc_b64 s[{sTMP}:{sTMP + 1}]
v_lshrrev_b32 v{t0}, 6, v0
v_and_b32 v{vL}, 63, v0
s_and_b32 s{sTMP}, s{sTMP}, 0xffffff80
v_readfirstlane_b32 s{sW}, v{t0}
s_mov_b32 s{sTMP + 2}, L_code_end-{KN}
s_mov_b32 s{sTMP + 3}, 0x00020000
s_lshr_b32 s{sT0}, s2, 3
s_lshl_b32 s{sT0}, s{sT0}, 2
s_add_u32 s{sT0}, s{sT0}, s{sW}
s_lshl_b32 s{sT0}, s{sT0}, 9
v_and_b32 v{t1}, 3, v{vL}
v_lshlrev_b32 v{t1}, 7, v{t1}
{'' if OPT['cpf'] == 2 else code_pf}
{'' if OPT['ka2'] else more_loads}
v_lshrrev_b32 v{t0}, 3, v{vL}
v_lshrrev_b32 v{t1}, 4, v{vL}
v_xor_b32 v{t1}, v{t1}, v{vL}
v_and_b32 v{t1}, 7, v{t1}
v_lshlrev_b32 v{t1}, 4, v{t1}
v_lshl_add_u32 v{PG[0]}, v{t0}, 10, v{t1}
v_lshrrev_b32 v{t2}, 5, v{vL}
v_mul_u32_u24 v{t2}, {12 * 1024}, v{t2}
v_add_u32 v{XG[0]}, v{PG[0]}, v{t2}
v_xor_b32 v{XG[1]}, 64, v{XG[0]}
v_add_u32 v{XG[2]}, {6 * 1024}, v{XG[0]}
v_add_u32 v{XG[3]}, {9 * 1024}, v{XG[1]}
v_add_u32 v{XG[1]}, {3 * 1024}, v{XG[1]}
s_lshl_b32 s{sWOFF}, s{sW}, 12
{ids}
s_lshl_b32 s{sXB}, s{sI}, 17
s_lshl_b32 s{sT0}, s{sW}, 15
s_add_u32 s{sXB}, s{sXB}, s{sT0}
""" + ''.join(f's_mov_b32 s{b + 2}, {n}\ns_mov_b32 s{b + 3}, 0x00020000\n' for b, n in sizes[:1 if OPT['lean'] else 8]) + f"""
s_waitcnt lgkmcnt(0)
{'v_accvgpr_write_b32 a254, s98' if PROF else ''}
{'v_accvgpr_write_b32 a255, s90' if PROF else ''}
{'s_mov_b32 s23, 0' if PROF or OPT['dbg'] else ''}
{'s_mov_b32 s3, s90' if OPT['dbg'] else ''}
{'s_mov_b32 s23, s90' if OPT['diag'] else ''}
""")
P += stamp('ka') if OPT['diag'] else []
P += rx(0, 0) + (L(ws_load + '\n' + more_loads) if OPT['ka2'] else []) + rx(1, 1)
if OPT['lean']:
    P += L(''.join(f's_mov_b32 s{b + 2}, {n}\ns_mov_b32 s{b + 3}, 0x00020000\n' for b, n in sizes[1:]))
P += L(f"""
v_and_b32 v{t0}, 31, v{vL}
s_lshl_b32 s{sJ}, s{sKQ}, 2
s_or_b32 s{sJ}, s{sJ}, s{sJJ}
v_lshrrev_b32 v{t1}, 5, v{vL}
v_bfe_u32 v{t2}, v{vL}, 1, 3
v_xor_b32 v{t1}, v{t1}, v{t2}
v_lshlrev_b32 v{t1}, 4, v{t1}
v_lshl_add_u32 v{AS[0]}, v{t0}, 7, v{t1}
v_xor_b32 v{AS[1]}, 32, v{AS[0]}
v_xor_b32 v{AS[2]}, 64, v{AS[0]}
v_xor_b32 v{AS[3]}, 0x60, v{AS[0]}
s_add_u32 s{sT0}, s{sWOFF}, {XSLOT(0) * SLOT}
v_add_u32 v{ASc[0]}, s{sT0}, v{AS[0]}
v_add_u32 v{ASc[1]}, s{sT0}, v{AS[1]}
v_add_u32 v{ASc[2]}, s{sT0}, v{AS[2]}
v_add_u32 v{ASc[3]}, s{sT0}, v{AS[3]}
s_mov_b32 s{sONES}, 0x3f803f80
v_mov_b32 v{SUM[0]}, 0
v_mov_b32 v{SUM[1]}, 0
v_mov_b32 v{SQ[0]}, 0
v_mov_b32 v{SQ[1]}, 0
s_lshl_b32 s{sT0}, s{sW}, 9
s_add_u32 s{sT0}, s{sT0}, {T_SEG}
v_lshl_add_u32 v{t0}, v{vL}, 3, s{sT0}""")
P.append(I(f'ds_write_b64 v{t0}, {vr(SUM[0], 2)}', tok='zero'))
P += L(f's_waitcnt lgkmcnt(0)\ns_load_dword s{sE2}, s[{sWS}:{sWS + 1}], {WS_EP}')
mid = L(f"""
v_and_b32 v{t0}, 31, v{vL}
s_lshl_b32 s{sT1}, s{sJ}, 6
v_lshl_add_u32 v{NLI}, v{t0}, 1, s{sT1}
s_and_b32 s{sT3}, s{sW}, 1
s_mul_i32 s{sT2}, s{sKQ}, 7
s_lshl_b32 s{sW1A}, s{sJJ}, 1
s_add_u32 s{sPB[0]}, s{sW1A}, 1
s_cmp_eq_u32 s{sJJ}, 3
s_cselect_b32 s{sPB[0]}, 3, s{sPB[0]}
s_cselect_b32 s{sFSEL}, 64, 0
s_add_u32 s{sW1A}, s{sW1A}, s{sT2}
s_add_u32 s{sW1B}, s{sPB[0]}, s{sT2}
s_lshl_b32 s{sW1A}, s{sW1A}, 7
s_lshl_b32 s{sW1B}, s{sW1B}, 7
s_cmp_ge_u32 s{sW}, 2
s_cselect_b32 s{sT2}, s{sW1B}, s{sW1A}
s_cselect_b32 s{sT1}, s{sFSEL}, 0
s_add_u32 s{sT2}, s{sT2}, s{sT1}
s_lshl_b32 s{sT1}, s{sT3}, 6
s_xor_b32 s{sT2}, s{sT2}, s{sT1}
v_and_b32 v{t1}, 3, v{vL}
v_bfe_u32 v{t2}, v{vL}, 2, 2
v_lshl_add_u32 v{t1}, v{t2}, 3, v{t1}
v_bfe_u32 v{t2}, v{vL}, 4, 1
v_lshl_add_u32 v{t1}, v{t2}, 2, v{t1}
v_lshl_add_u32 v{PR}, v{t1}, 1, s{sT2}
s_cmp_eq_u32 s{sT3}, 1
s_cselect_b32 s{sB}, s{pBIM}, s{pBRE}
s_cselect_b32 s{sB + 1}, s{pBIM + 1}, s{pBRE + 1}
s_mul_i32 s{sT3}, s{sT3}, {32 * 3584}
s_add_u32 s{sW1A}, s{sW1A}, s{sT3}
s_add_u32 s{sW1B}, s{sW1B}, s{sT3}
s_lshl_b32 s{sBB}, s{sJ}, 15
s_lshr_b32 s{sT1}, s{sW}, 1
s_add_u32 s{sT1}, s{sT1}, s{sROT}
s_and_b32 s{sKC[0]}, s{sT1}, 7
s_add_u32 s{sT1}, s{sT1}, 2
s_and_b32 s{sKC[1]}, s{sT1}, 7
s_add_u32 s{sT1}, s{sT1}, 2
s_and_b32 s{sKC[2]}, s{sT1}, 7
s_add_u32 s{sT1}, s{sT1}, 2
s_and_b32 s{sKC[3]}, s{sT1}, 7
v_xor_b32 v{PG[1]}, 64, v{PG[0]}
v_add_u32 v{PG[2]}, {14 * 1024}, v{PG[0]}
v_add_u32 v{PG[3]}, {21 * 1024}, v{PG[1]}
v_add_u32 v{PG[1]}, {7 * 1024}, v{PG[1]}
v_and_b32 v{t2}, 1, v{vL}
v_lshlrev_b32 v{t2}, 4, v{t2}
v_mov_b32 v{VNM}, 0x3f80
v_lshlrev_b32 v{t2}, v{t2}, v{VNM}
v_bfe_i32 v{t0}, v{vL}, 1, 1
v_and_b32 v{TT + 1}, v{t0}, v{t2}
v_xor_b32 v{TT}, v{TT + 1}, v{t2}
""")
mid += L(f"""
v_lshrrev_b32 v{t1}, 3, v{vL}
v_mul_u32_u24 v{t1}, 3584, v{t1}
v_bfe_u32 v{t2}, v{vL}, 4, 1
v_lshlrev_b32 v{t2}, 2, v{t2}
v_xor_b32 v{t2}, v{t2}, v{vL}
v_and_b32 v{t2}, 7, v{t2}
v_lshl_add_u32 v{QG[0]}, v{t2}, 4, v{t1}
v_add_u32 v{QG[1]}, {27648}, v{QG[0]}
v_add_u32 v{QG[2]}, {2 * 27648}, v{QG[0]}
v_add_u32 v{QG[3]}, {3 * 27648}, v{QG[0]}
""")
late = L(f"""
s_mul_i32 s{sE2}, s{sE2}, 1664525
s_add_u32 s{sE2}, s{sE2}, 1013904226
s_or_b32 s{sTAG}, s{sE2}, 1
v_bfe_u32 v{t1}, v{vL}, 2, 2
v_lshrrev_b32 v{t2}, 5, v{vL}
v_lshl_add_u32 v{t2}, v{t2}, 3, v{t1}
v_lshlrev_b32 v{FA0}, 7, v{t2}
v_lshrrev_b32 v{t1}, 1, v{t1}
v_lshl_add_u32 v{FA0}, v{t1}, 6, v{FA0}
v_bfe_u32 v{t1}, v{vL}, 4, 1
v_lshl_add_u32 v{FA0}, v{t1}, 5, v{FA0}
v_and_b32 v{t1}, 3, v{vL}
v_lshl_add_u32 v{FA0}, v{t1}, 3, v{FA0}
v_lshlrev_b32 v{VL16}, 4, v{vL}
v_mov_b32 v{VLN2}, {LN2:#x}
s_cmp_eq_u32 s{sPB[0]}, 1
s_cselect_b32 s{sPB[1]}, 3, 1
s_cmp_eq_u32 s{sPB[0]}, 5
s_cselect_b32 s{sPB[2]}, 3, 5
s_lshl_b32 s{sSEL[0]}, s{sFSEL}, 9
s_lshl_b32 s{sAS}, s{sI}, 2
s_add_u32 s{sAS}, s{sAS}, s{sW}
s_lshl_b32 s{sAS}, s{sAS}, 2
s_add_u32 s{sAS}, s{sAS}, s{sKQ}
s_lshl_b32 s{sFLG}, s{sAS}, 11
s_add_u32 s{sFLG}, s{sFLG}, {WS_FL}
s_mul_i32 s{sAS}, s{sAS}, {44 * 1024}
s_add_u32 s{sAS}, s{sAS}, {WS_A}
s_lshl_b32 s{sT2}, s{sJJ}, 13
s_add_u32 s{sFST[0]}, s{sAS}, s{sT2}
s_add_u32 s{sFST[1]}, s{sFST[0]}, 2048
s_lshl_b32 s{sT2}, s{sPB[0]}, 12
s_add_u32 s{sFST[3]}, s{sAS}, s{sT2}
s_lshl_b32 s{sT2}, s{sFSEL}, 5
s_add_u32 s{sFST[2]}, s{sFST[3]}, s{sT2}
s_add_u32 s{sFST[3]}, s{sFST[3]}, 2048
s_lshl_b32 s{sT2}, s{sJJ}, 12
s_add_u32 s{sSST}, s{sAS}, s{sT2}
s_add_u32 s{sSST}, s{sSST}, {28 * 1024}
s_xor_b32 s{sT2}, s{sW}, s{sKQ}
s_lshl_b32 s{sT2}, s{sT2}, 15
s_lshl_b32 s{sCB}, s{sJJ}, 17
s_add_u32 s{sCB}, s{sCB}, s{sT2}
s_lshl_b32 s{sT2}, s{sKQ}, 8
s_add_u32 s{sCB}, s{sCB}, s{sT2}
s_lshr_b32 s{sT2}, s{sJJ}, 1
s_lshl_b32 s{sT2}, s{sT2}, 7
s_add_u32 s{sCB}, s{sCB}, s{sT2}
s_mul_i32 s{sW2B}, s{sKQ}, {448 * 1024}
s_lshr_b32 s{sT2}, s{sW}, 1
s_lshl_b32 s{sT2}, s{sT2}, 15
s_add_u32 s{sW2B}, s{sW2B}, s{sT2}
s_lshl_b32 s{sT2}, s{sJJ}, 8
s_add_u32 s{sW2B}, s{sW2B}, s{sT2}
s_lshr_b32 s{sT2}, s{sKQ}, 1
s_xor_b32 s{sT2}, s{sT2}, s{sW}
s_and_b32 s{sT2}, s{sT2}, 1
s_lshl_b32 s{sT2}, s{sT2}, 7
s_add_u32 s{sW2B}, s{sW2B}, s{sT2}
s_lshl_b32 s{sT2}, s{sI}, 4
s_add_u32 s{sT2}, s{sT2}, s{sJJ}
s_lshl_b32 s{sT2}, s{sT2}, 2
s_add_u32 s{sT2}, s{sT2}, s{sW}""")
for b in range(4):
    late += L(f"""s_xor_b32 s{sT3}, s{sKQ}, {b}
        s_lshl_b32 s{sT3}, s{sT3}, 4
        s_add_u32 s{sT3}, s{sT3}, s{sT2}
        s_mul_i32 s{sT3}, s{sT3}, {3 * XC_BLK}
        s_add_u32 s{sXO[b]}, s{sT3}, {WS_XC + (b - 1) * XC_BLK if b else WS_XC}""")
late += L(f"""s_add_u32 s{sSEL[2]}, s{sXO[0]}, {XC_BLK}
    s_add_u32 s{sSEL[3]}, s{sXO[0]}, {2 * XC_BLK}
    s_and_b32 s{sT3}, s{sJJ}, 1
    s_sub_u32 s{sSEL[1]}, 6, s{sT3}""")
pf = []
if OPT['pf'] == 2:
    late += L(f"""
s_and_b32 s{sT1}, s{sI}, 7
s_lshl_b32 s{sT2}, s{sT1}, 1
s_add_u32 s{sT2}, s{sT2}, s{sW}
s_mul_i32 s{sT2}, s{sT2}, 28
s_mul_i32 s{sT3}, s{sKQ}, 448
s_add_u32 s{sT2}, s{sT2}, s{sT3}
s_lshl_b32 s{sT2}, s{sT2}, 2
s_add_u32 s{sT2}, s{sT2}, s{sJJ}
s_lshl_b32 s{sT3}, s{sJJ}, 3
s_add_u32 s{sT3}, s{sT3}, s{sT1}
s_lshl_b32 s{sT3}, s{sT3}, 6
s_add_u32 s{sT3}, s{sT3}, s{sKQ}
s_cmp_lt_u32 s{sW}, 2
s_cselect_b32 s{sT2}, s{sT2}, s{sT3}
s_cselect_b32 s{sT3}, 56, 32
s_cselect_b32 s{sTMP}, s{sW2}, s{sCre}
s_cselect_b32 s{sTMP + 1}, s{sW2 + 1}, s{sCre + 1}
s_cselect_b32 s{sTMP + 2}, s{sW2 + 2}, s{sCre + 2}
s_cmp_eq_u32 s{sW}, 3
s_cselect_b32 s{sTMP}, s{sCim}, s{sTMP}
s_cselect_b32 s{sTMP + 1}, s{sCim + 1}, s{sTMP + 1}""")
elif OPT['pf']:
    late += L(f"""
s_mul_i32 s{sT2}, s{sKQ}, 448
s_mul_i32 s{sT3}, s{sI}, 28
s_add_u32 s{sT2}, s{sT2}, s{sT3}
s_lshl_b32 s{sT2}, s{sT2}, 2
s_add_u32 s{sT2}, s{sT2}, s{sJJ}
s_lshl_b32 s{sT3}, s{sJJ}, 4
s_add_u32 s{sT3}, s{sT3}, s{sI}
s_lshl_b32 s{sT3}, s{sT3}, 5
s_add_u32 s{sT3}, s{sT3}, s{sKQ}
s_cmp_eq_u32 s{sW}, 0
s_cselect_b32 s{sT2}, s{sT2}, s{sT3}
s_cselect_b32 s{sT3}, 56, 16
s_cselect_b32 s{sTMP}, s{sW2}, s{sCre}
s_cselect_b32 s{sTMP + 1}, s{sW2 + 1}, s{sCre + 1}
s_cselect_b32 s{sTMP + 2}, s{sW2 + 2}, s{sCre + 2}
s_cmp_eq_u32 s{sW}, 2
s_cselect_b32 s{sTMP}, s{sCim}, s{sTMP}
s_cselect_b32 s{sTMP + 1}, s{sCim + 1}, s{sTMP + 1}
s_cmp_eq_u32 s{sW}, 3
s_cselect_b32 s{sT3}, 0, s{sT3}""")
if OPT['pf']:
    late += L(f"""s_lshl_b32 s{sT2}, s{sT2}, 8
v_lshrrev_b32 v{t0}, 1, v{vL}
v_and_b32 v{t1}, 1, v{vL}
v_lshlrev_b32 v{t1}, 7, v{t1}
v_lshl_add_u32 v{t0}, v{t0}, 10, v{t1}
v_add_u32 v{t0}, s{sT2}, v{t0}
v_mov_b32 v{t1}, {OOB:#x}
v_cmp_gt_u32 vcc, s{sT3}, v{vL}
v_cndmask_b32 v{PI}, v{t1}, v{t0}, vcc""")
    pf = L(f'buffer_load_dword a248, v{PI}, {srd(sTMP)}, 0 offen')

Z = TT + 2
consts = L(f"""
v_lshlrev_b32 v{NLI}, 16, v{NLI}
v_mul_f32 v{NLI}, {LOG2E:#x}, v{NLI}
v_exp_f32 v{NLI}, v{NLI}
v_lshlrev_b32 v{Z + 2}, 16, v{LR}
v_lshlrev_b32 v{Z + 3}, 16, v{LI}
v_cvt_pk_bf16_f32 v{NLI}, v{NLI}, v{NLI}
v_lshlrev_b32 v{NLI}, 16, v{NLI}
v_mul_f32 v{Z}, v{NLI}, v{Z + 2}
v_mul_f32 v{Z + 1}, v{NLI}, v{Z + 3}
v_mul_f32 v{Z}, {LOG2E:#x}, v{Z}
v_mul_f32 v{Z + 1}, 0xbe22f983, v{Z + 1}""")
consts += cexp(LR, LI, '1.0', Z, Z + 1)
consts += L(f"""
v_mul_f32 v{Z + 4}, v{Z + 2}, v{Z + 2}
v_fmac_f32 v{Z + 4}, v{Z + 3}, v{Z + 3}
v_rcp_f32 v{Z + 4}, v{Z + 4}
v_add_f32 v{Z + 5}, -1.0, v{LR}
v_sub_f32 v{NLI}, 0, v{LI}
v_add_f32 v{Z + 4}, v{Z + 4}, v{Z + 4}
v_mul_f32 v{CR}, v{Z + 5}, v{Z + 2}
v_fmac_f32 v{CR}, v{NLI}, v{Z + 3}
v_mul_f32 v{NCI}, v{Z + 5}, v{Z + 3}
v_fmac_f32 v{NCI}, v{LI}, v{Z + 2}
v_mul_f32 v{CR}, v{CR}, v{Z + 4}
v_mul_f32 v{NCI}, v{NCI}, v{Z + 4}
v_sub_f32 v{NCR}, 0, v{CR}""")
consts += cexp(L16R, L16I, '0x41800000', Z, Z + 1)
consts += cexp(L128R, L128I, '0x43000000', Z, Z + 1)
consts += L(f"""
v_lshrrev_b32 v{Z + 6}, 5, v{vL}
s_lshl_b32 s{sT2}, s{sW}, 1
v_add_u32 v{Z + 6}, s{sT2}, v{Z + 6}
v_cvt_f32_u32 v{Z + 6}, v{Z + 6}
v_mul_f32 v{Z + 7}, 0x41800000, v{Z + 6}
v_sub_f32 v{Z + 6}, 0x40e00000, v{Z + 6}
v_mul_f32 v{Z + 6}, 0x43800000, v{Z + 6}""")
consts += cexp(LSR, LSI, f'v{Z + 7}', Z, Z + 1)
consts += cexp(WR, WI, f'v{Z + 6}', Z, Z + 1)
consts += L(f"""v_lshlrev_b32 v{PR}, 16, v{PR}
v_mul_f32 v{PR}, {LOG2E:#x}, v{PR}
v_and_b32 v{t1}, 31, v{vL}
s_lshl_b32 s{sT1}, s{sW}, 7
s_add_u32 s{sT1}, s{sT1}, {T_B1}
v_lshl_add_u32 v{t1}, v{t1}, 2, s{sT1}
""") + [I(f'ds_write_b32 v{t1}, v{PR}', tok='b1w')]
later = []
Y = SRE
later += L(f"""v_and_b32 v{Y}, 31, v{vL}
    v_lshlrev_b32 v{Y + 1}, 3, v{Y}
    v_add_u32 v{Y + 1}, {T_LB}, v{Y + 1}
    v_lshrrev_b32 v{t0}, 5, v{vL}
    s_lshl_b32 s{sT2}, s{sW}, 11
    s_add_u32 s{sT2}, s{sT2}, {T_H}
    v_lshl_add_u32 v{Y}, v{Y}, 6, s{sT2}
    v_bfe_u32 v{Y + 2}, v{vL}, 1, 2
    v_lshlrev_b32 v{Y + 3}, 1, v{t0}
    v_xor_b32 v{Y + 2}, v{Y + 2}, v{Y + 3}
    v_bfe_u32 v{Y + 3}, v{vL}, 3, 1
    v_xor_b32 v{Y + 2}, v{Y + 2}, v{Y + 3}
    v_lshl_add_u32 v{Y}, v{Y + 2}, 4, v{Y}
    v_xor_b32 v{Y + 3}, 16, v{Y}
    v_bfe_u32 v{Y + 6}, v{vL}, 2, 2
    v_lshrrev_b32 v{t1}, 4, v{vL}
    v_lshl_add_u32 v{Y + 2}, v{t1}, 3, v{Y + 6}
    v_lshl_add_u32 v{Y + 2}, v{Y + 2}, 6, s{sT2}
    v_and_b32 v{t1}, 1, v{vL}
    v_lshl_add_u32 v{Y + 2}, v{t1}, 5, v{Y + 2}
    v_lshrrev_b32 v{t1}, 1, v{vL}
    v_xor_b32 v{t1}, v{t1}, v{vL}
    v_and_b32 v{t1}, 8, v{t1}
    v_lshl_add_u32 v{Y + 2}, v{t1}, 1, v{Y + 2}
    v_bfe_u32 v{t1}, v{vL}, 1, 1
    v_lshl_add_u32 v{Y + 2}, v{t1}, 3, v{Y + 2}
    v_bfe_u32 v{t1}, v{vL}, 4, 1
    v_lshl_add_u32 v{Y + 5}, v{t0}, 2, v{Y + 6}
    v_lshl_add_u32 v{Y + 5}, v{t1}, 4, v{Y + 5}
    v_lshlrev_b32 v{Y + 5}, 7, v{Y + 5}
    s_and_b32 s{sT2}, s{sKQ}, 1
    v_xor_b32 v{t1}, s{sT2}, v{t1}
    v_lshl_add_u32 v{Y + 5}, v{t1}, 6, v{Y + 5}
    v_bfe_u32 v{t1}, v{vL}, 3, 1
    v_lshl_add_u32 v{Y + 5}, v{t1}, 5, v{Y + 5}
    v_and_b32 v{t1}, 3, v{vL}
    v_lshl_add_u32 v{Y + 5}, v{t1}, 3, v{Y + 5}
    v_and_b32 v{Y + 6}, 15, v{vL}
    v_lshrrev_b32 v{t1}, 4, v{vL}
    v_bfe_u32 v{Y + 4}, v{vL}, 1, 3
    v_xor_b32 v{t1}, v{t1}, v{Y + 4}
    v_lshlrev_b32 v{t1}, 4, v{t1}
    v_lshl_add_u32 v{Y + 6}, v{Y + 6}, 7, v{t1}
    s_and_b32 s{sT2}, s{sJJ}, 1
    s_lshl_b32 s{sT2}, s{sT2}, 6
    v_xor_b32 v{Y + 6}, s{sT2}, v{Y + 6}
    s_lshl_b32 s{sT2}, s{sW}, 9
    s_add_u32 s{sT1}, s{sT2}, {T_SEG}
    s_add_u32 s{sT2}, s{sT2}, {T_LB}
    v_lshl_add_u32 v{Y + 7}, v{vL}, 3, s{sT1}
    v_lshl_add_u32 v{Y + 8}, v{vL}, 3, s{sT2}""")
later += park(hw=Y, lbr=Y + 1, hr=Y + 2, hw2=Y + 3, fp0=Y + 5, fp1=Y + 6, seg=Y + 7, lbw=Y + 8)
park2 = []
Y = FACC[0]
park2 += L(f"""s_lshl_b32 s{sT2}, s{sJ}, 4
    s_add_u32 s{sT2}, s{sT2}, s{sI}
    s_lshl_b32 s{sT2}, s{sT2}, 9
    s_add_u32 s{sT2}, s{sT2}, {WS_AG - 512}
    s_cmp_eq_u32 s{sW}, 3
    s_cselect_b32 s{sT2}, s{sT2}, {OOB:#x}
    v_mov_b32 v{Y + 8}, {OOB:#x}
    v_cmp_gt_u32 vcc, 32, v{vL}
    v_add_u32 v{Y}, s{sT2}, v{VL16}
    v_lshrrev_b32 v{t0}, 5, v{vL}
    v_cndmask_b32 v{Y}, v{Y}, v{Y + 8}, vcc
    s_lshl_b32 s{sT2}, s{sW}, 2
    s_add_u32 s{sT2}, s{sT2}, s{sI}
    s_sub_u32 s{sT2}, s{sT2}, 16
    v_lshl_add_u32 v{t0}, v{t0}, 1, s{sT2}
    s_lshl_b32 s{sT2}, s{sJ}, 13
    s_add_u32 s{sT2}, s{sT2}, {WS_AG}
    v_and_b32 v{Y + 9}, 31, v{vL}
    v_lshl_add_u32 v{t1}, v{Y + 9}, 4, s{sT2}
    v_lshl_add_u32 v{Y + 1}, v{t0}, 9, v{t1}
    v_cmp_gt_i32 vcc, 0, v{t0}
    v_add_u32 v{Y + 2}, 512, v{Y + 1}
    v_mov_b32 v{t1}, s{sTAG}
    v_cndmask_b32 v{Y + 1}, v{Y + 1}, v{Y + 8}, vcc
    v_cndmask_b32 v{Y + 3}, v{t1}, 0, vcc
    v_cmp_gt_i32 vcc, -1, v{t0}
    s_lshl_b32 s{sT2}, s{sJJ}, 9
    s_add_u32 s{sT2}, s{sT2}, s{sFLG}
    v_cndmask_b32 v{Y + 2}, v{Y + 2}, v{Y + 8}, vcc
    v_cndmask_b32 v{Y + 4}, v{t1}, 0, vcc
    v_lshl_add_u32 v{Y + 5}, v{Y + 9}, 2, s{sT2}
    v_and_b32 v{t0}, 3, v{vL}
    v_max_u32 v{t0}, 1, v{t0}
    v_xor_b32 v{t0}, s{sJJ}, v{t0}
    v_lshl_add_u32 v{Y + 6}, v{t0}, 9, s{sFLG}
    s_bitcmp1_b32 s{sJJ}, 0
    s_cselect_b32 s{sT2}, {OOB:#x}, 0
    v_add_u32 v{Y + 7}, s{sT2}, v{VL16}
    """)
park2 += park(pfa=PI)
park2 += park(pub=Y, lba0=Y + 1, lba1=Y + 2, lbe0=Y + 3, lbe1=Y + 4, fla=Y + 5, flp=Y + 6, f3o=Y + 7)
params = L(f"""global_load_ushort v{LR}, v{NLI}, s[{pLRE}:{pLRE + 1}]
    global_load_ushort v{LI}, v{NLI}, s[{pLIM}:{pLIM + 1}]
    global_load_ushort v{NLI}, v{NLI}, s[{pLDT}:{pLDT + 1}]
    global_load_ushort v{PR}, v{PR}, s[{pB1}:{pB1 + 1}]""")
XO_START = max(n for n, i_ in enumerate(late) if i_.text == f's_lshl_b32 s{sT2}, s{sI}, 4')
late_b = []
if OPT['lb2s']:
    late, late_b = late[:XO_START], late[XO_START:]
    park2 = [i_ for i_ in park2 if f'a{PARK["pfa"]},' not in i_.text]
if OPT['lb2s'] == 2:
    late_b, park2 = park2 + late_b, []
nl = len(late) * OPT['lateln'] // 100
while nl < len(late) and late[nl - 1].mn.startswith(('s_cmp', 'v_cmp', 's_cselect')) or (nl < len(late) and late[nl].mn.startswith('v_cndmask')):
    nl += 1
if nl >= len(late):
    later, late, park2 = later + late + park2, [], []
else:
    later, late = later + late[:nl], late[nl:]
zero_xe = [I(f'v_accvgpr_write_b32 a{aXE + r}, 0') for r in range(17)]
XA, sSTAR = FACC[1], sXO[3]
if OPT['xlds']:
    P += zero_xe + L(f"""s_lshl_b32 s{sSTAR}, s{sJJ}, 1
        s_lshr_b32 s{sT1}, s{sKQ}, 1
        s_add_u32 s{sSTAR}, s{sSTAR}, s{sT1}
        s_sub_u32 s{sSTAR}, s{sSTAR}, s{sROT}
        s_and_b32 s{sSTAR}, s{sSTAR}, 7
        s_and_b32 s{sT1}, s{sKQ}, 1
        v_lshrrev_b32 v{t0}, 5, v{vL}
        v_xor_b32 v{t1}, s{sT1}, v{t0}
        v_bfe_u32 v{t2}, v{vL}, 3, 2
        v_lshl_add_u32 v{t1}, v{t1}, 2, v{t2}
        v_lshlrev_b32 v{t1}, 4, v{t1}
        v_lshl_add_u32 v{t1}, v{t0}, 10, v{t1}
        v_and_b32 v{t2}, 7, v{vL}
        v_lshl_add_u32 v{t1}, v{t2}, 1, v{t1}
        s_add_u32 s{sT1}, s{sWOFF}, {SLOT}
        v_add_u32 v{XA}, s{sT1}, v{t1}""") + [I(f'v_xor_b32 v{XA + v}, {16 * v}, v{XA}') for v in (1, 2, 3)]
    zero_xe = []
later = mid + later + zero_xe
BACK = {1: '0 6 14 24 38 56 78', 2: '0 12 22 30 42 58 78', 3: '0 21 23 30 42 58 78'}
cuts = [0]
for n in range(1, 7):
    c = n * len(later) // 7 if not OPT['back'] else len(later) * [int(x) for x in BACK[OPT['back']].split()][n] // 100
    while later[c].mn.startswith(('s_cselect', 'v_cndmask', 's_nop')) or later[c - 1].mn.startswith('v_cmp'):
        c += 1
    cuts.append(c)
cuts.append(len(later))

touch_w = L(f'v_mov_b32 v{PI}, 0') + [
    I(f'buffer_load_dword a{56 + n}, v{PI}, {srd(r)}, 0 offen') for n, r in enumerate((sW1, sCre, sCim, sW2))]
touch_o = L(f"""v_min_u32 v{PR}, {WS_SIZE >> 21}, v{vL}
    v_lshlrev_b32 v{PR}, 21, v{PR}
    v_add_u32 v{PR}, 0x800, v{PR}
    buffer_load_dword a60, v{PR}, {srd(sWS)}, 0 offen
    buffer_load_dword a61, v{PR}, {srd(sOUT)}, 0 offen""")
if OPT['tlb'] in (1, 3, 4):
    P += touch_w
if OPT['tlb'] == 1:
    P += touch_o
P += rx(2, 2) + (rx(3, 3) if OPT['deep'] else []) + [I('s_waitcnt lgkmcnt(0)')]
pos = lambda text: max(n for n, i_ in enumerate(later) if i_.text.startswith(text))
first_g = 5 - OPT['early'] - OPT['deep']
first_p = OPT['parat'] if OPT['parat'] >= 5 else 4 - OPT['early'] - OPT['deep']
assert max(pos(f's_and_b32 s{sKC[3]},'), pos(f'v_add_u32 v{PG[1]},'), pos(f's_lshl_b32 s{sBB},')) < cuts[first_g]
assert pos(f'v_lshl_add_u32 v{PR},') < cuts[first_p]
assert pos(f'v_add_u32 v{QG[3]},') < cuts[min(first_g + 4, 7)]
for s in range(8):
    P.append(Wait(f'x{s}'))
    if s == 0:
        P += stamp('x0')
    for q in range(4):
        P.append(I(f'ds_read_b128 {vr(X + 16 * s + 4 * q, 4)}, v{ASc[q]} offset:{(s & 3) * SLOT}', lds_r=XSLOT(s),
                   tok=f'xr{s}' if q == 3 else None))
    if OPT['early']:
        E_ = OPT['early']
        todo = list(range(3, 4 + E_)) if s == 0 else [s + 3 + E_]
        nxt = sum((rx(n, 0) + (params if n == 7 and OPT['parat'] < 5 else []) if n < 8 else rg(n - 8) for n in todo), [])
        nxt += params if s == OPT['parat'] >= 5 else []
        if s == 3:
            nxt += [I(f'v_subrev_u32 v{ASc[q]}, {4 * SLOT}, v{ASc[q]}') for q in range(4)]
    elif OPT['deep']:
        nxt = rg(s - 4) if s >= 4 else [Wait(f'xr{s}')] + rx(s + 4, s) + (params if s == 3 else [])
    else:
        nxt = ([] if OPT['gl'] else rg(s - 5)) if s >= 5 else rx(s + 3, (s + 3) & 3) + (params if s == OPT['parat'] else [])
    piece = later[cuts[s]:cuts[s + 1]] if s < 7 else []
    after = []
    if s >= 5 and OPT['gl']:
        nxt, after = [], (rg(s - 5) if s - 5 < OPT['gl'] else [])
    elif s >= OPT['xl']:
        nxt, after = [], nxt
    P += nxt + piece if OPT['xfirst'] else piece + nxt
    for r in range(16):
        P.append(I(f'v_dot2c_f32_bf16 v{SUM[r & 1]}, s{sONES}, v{X + 16 * s + r}'))
        P.append(I(f'v_dot2c_f32_bf16 v{SQ[r & 1]}, v{X + 16 * s + r}, v{X + 16 * s + r}'))
        if OPT['xlds'] and r == (15 if s < 7 else 3):
            blk = [f'ds_read_u16_d16_hi a{aXE + n}, v{XA + ((n >> 1) & 1) + 2 * ((n >> 2) & 1)} '
                   f'offset:{(s & 3) * SLOT + ((n & 7) + 16 * (n >> 3)) * 128}' for n in range(16)]
            P += [Wait(f'xr{s}'), I(f's_cmp_lg_u32 s{sSTAR}, {s}'), I(f's_cbranch_scc1 L_xe{s}')]
            P.append(I('; epilogue x values\n    ' + '\n    '.join(blk + ['s_waitcnt lgkmcnt(0)'])))
            P.append(I(f'L_xe{s}:'))
    P += after
P += stamp('x7')
P += L(f"""
v_add_f32 v{SUM[0]}, v{SUM[0]}, v{SUM[1]}
v_add_f32 v{SQ[0]}, v{SQ[0]}, v{SQ[1]}
v_mov_b32 v{SUM[1]}, v{SUM[0]}
v_mov_b32 v{SQ[1]}, v{SQ[0]}
v_permlane32_swap_b32 v{SUM[1]}, v{SUM[0]}
v_add_f32 v{SUM[0]}, v{SUM[0]}, v{SUM[1]}
v_mul_f32 v{SUM[0]}, 0xbb000000, v{SUM[0]}
v_cvt_pk_bf16_f32 v{t0}, v{SUM[0]}, v{SUM[0]}
v_lshlrev_b32 v{SIM}, 16, v{t0}
v_lshlrev_b32 v{SIM + 1}, 16, v{t0}
v_lshlrev_b32 v{SIM + 2}, 16, v{t0}
v_lshlrev_b32 v{SIM + 3}, 16, v{t0}
""")

back = lambda o: [I(f'v_cvt_pk_bf16_f32 v{X + 2 * o + e}, v{FACC[0] + 4 * (o & 3) + 2 * e}, '
                    f'v{FACC[0] + 4 * (o & 3) + 2 * e + 1}') for e in range(2)]
items = [[I(f'v_mfma_f32_4x4x4_16b_bf16 {vr(FACC[0] + 4 * (n & 3), 4)}, {vr(TT, 2)}, {vr(X + 2 * n, 2)}, {vr(SIM, 4)}')]
         + (back(n - 2) if n >= 2 else []) for n in range(64)]
fill = L(f"""
v_permlane32_swap_b32 v{SQ[1]}, v{SQ[0]}
v_sub_f32 v{VNM}, 0, v{SIM}
v_add_f32 v{SQ[0]}, v{SQ[0]}, v{SQ[1]}
v_mul_f32 v{SQ[0]}, 0x3b000000, v{SQ[0]}
v_fma_f32 v{SQ[0]}, -v{SUM[0]}, v{SUM[0]}, v{SQ[0]}
v_max_f32 v{SQ[0]}, 0, v{SQ[0]}
v_cvt_pk_bf16_f32 v{t0}, v{SQ[0]}, v{SQ[0]}
v_lshlrev_b32 v{t0}, 16, v{t0}
v_add_f32 v{t0}, 0x3727c5ac, v{t0}
v_cvt_pk_bf16_f32 v{t0}, v{t0}, v{t0}
v_lshlrev_b32 v{t0}, 16, v{t0}
v_sqrt_f32 v{t0}, v{t0}
v_and_b32 v{t1}, 3, v{vL}
v_cvt_pk_bf16_f32 v{t0}, v{t0}, v{t0}
v_lshlrev_b32 v{t0}, 16, v{t0}
v_rcp_f32 v{VRS}, v{t0}
v_bfe_u32 v{t2}, v{vL}, 3, 2
v_lshl_add_u32 v{t1}, v{t2}, 2, v{t1}
v_bfe_u32 v{t2}, v{vL}, 2, 1
v_lshl_add_u32 v{t1}, v{t2}, 4, v{t1}
s_lshl_b32 s{sT1}, s{sW}, 8
s_add_u32 s{sT1}, s{sT1}, {T_STAT}
v_lshl_add_u32 v{t1}, v{t1}, 2, s{sT1}
v_mul_f32 v{RL2}, {LOG2E:#x}, v{VRS}
ds_write_b32 v{t1}, v{VNM}
""")
fill.append(I(f'ds_write_b32 v{t1}, v{VRS} offset:128', tok='tabw'))
LA_S, LA_F = 3, OPT['laf']


def s_addr(slot):
    return [I(f'v_add_u32 v{ASc[q]}, {slot * SLOT}, v{AS[q]}') for q in range(4)]


def s_read(s, ri):
    return I(f'ds_read_b128 {ar(aS + 8 * (s & 3) + 4 * ri, 4)}, v{ASc[s & 3]} offset:{(s >> 3) * SLOT + (2 * ((s >> 2) & 1) + ri) * 4096}',
             lds_r=G_SLOT[s >> 3])


def f_addr(b):
    if b < 2:
        return [I(f'v_xor_b32 v{FAc}, {64 * b}, v{FA0}')]
    if b == 3:
        return [I(f'v_xor_b32 v{FAc}, 64, v{FAc}')]
    return [I(f'v_xor_b32 v{FAc}, s{sFSEL}, v{FA0}'), I(f'v_add_u32 v{FAc}, {G_SLOT[8] * SLOT}, v{FAc}')]


def f_read(b, s):
    out = f_addr(b) if s == 0 else []
    k = (32 * b + s) & 7
    for u in range(2):
        out.append(I(f'ds_read_b64_tr_b16 {ar(aF + 4 * k + 2 * u, 2)}, v{FAc} '
                     f'offset:{(s >> 3) * SLOT + ((s >> 1) & 3) * 4096 + (s & 1) * 2048 + u * 512}',
                     lds_r=G_SLOT[(4 if b < 2 else 8) + (s >> 3)]))
    return out


DSP = OPT['dsp']
OPT['dsp'] = OPT['dspc']
NG = OPT['gl'] or 3 + OPT['early'] + OPT['deep']
pin = pins(*[(OPT['g3'] + 4 * n * OPT['dspc'], rg(NG + n)) for n in range(OPT['ncr'])],
           (54, s_addr(G_SLOT[0]) + stamp('c27') + BAR('G0', 'zero', *([] if OPT['bsp'] else ['G1'])) + stamp('b0')))
OPT['dsp'] = DSP
for k in range(LA_S):
    pin[55 + 2 * k] = [s_read(k, 0), s_read(k, 1)]
stat_fill = fill
if OPT['cfs']:
    fill = stat_fill[:2]
    stat_fill = stat_fill[2:]
else:
    stat_fill = []
P += weave(items, fill, pin, 0, 40) + back(62) + back(63)

S_items = []
for s in range(32):
    for ri, acc in ((0, SRE), (1, SIM)):
        it = [mfma(vr(acc, 16), vr(X + 4 * s, 4), ar(aS + 8 * (s & 3) + 4 * ri, 4), vr(acc, 16) if s else '0')]
        n = s + LA_S
        if n < 32:
            it.append(s_read(n, ri))
        S_items.append(it)
for k in range(LA_F):
    S_items[64 - LA_F + k] += f_read(0, k)
F_items = []
for b in range(4):
    its = []
    for s in range(32):
        acc = vr(FACC[b & 1], 16)
        it = [mfma(acc, ar(aF + 4 * ((32 * b + s) & 7), 4), vr(X + 4 * s, 4), acc if s else '0')]
        n = s + LA_F
        if n < 32:
            it += f_read(b, n)
        elif b < 3:
            it += f_read(b + 1, n - 32)
        its.append(it)
    F_items.append(its)

FLA, FLP = VNM, VRS
fill = stat_fill + late + park2 + late_b + consts + (pf if OPT['pfat'] < 0 else []) + L(f"""
v_lshrrev_b32 v{t0}, 3, v{vL}
v_bfe_u32 v{t1}, v{vL}, 4, 1
v_lshlrev_b32 v{t1}, 1, v{t1}
v_xor_b32 v{t1}, v{t1}, v{vL}
v_and_b32 v{t1}, 7, v{t1}
v_lshlrev_b32 v{t1}, 4, v{t1}
v_lshl_add_u32 v{XG[0]}, v{t0}, 10, v{t1}
v_add_u32 v{XG[1]}, {7 * 1024}, v{XG[0]}
v_xor_b32 v{XG[2]}, 64, v{XG[0]}
v_add_u32 v{XG[3]}, {21 * 1024}, v{XG[2]}
v_add_u32 v{XG[2]}, {14 * 1024}, v{XG[2]}
v_lshrrev_b32 v{t2}, 5, v{vL}
v_lshlrev_b32 v{t2}, 6, v{t2}
v_add_u32 v{t2}, {TB}, v{t2}
s_lshl_b32 s{sT2}, s{sW}, 8
v_add_u32 v{t1}, s{sT2}, v{t2}""")
fill += [I(f'ds_read_b128 {vr(FACC[1] + 4 * q, 4)}, v{t1} offset:{128 + 16 * q}') for q in range(4)]
xa, xb = TT + 14, TT + 15
ROW = lambda n: 16 * ((n >> 2) & 1) + 8 * (n >> 3) + (n & 3)
xe = L(f"""v_and_b32 v{xa}, 31, v{vL}
    v_lshrrev_b32 v{xb}, 5, v{vL}
    v_lshlrev_b32 v{xb}, 12, v{xb}
    v_lshl_add_u32 v{xb}, v{xa}, 1, v{xb}
    s_lshl_b32 s{sONES}, s{sJJ}, 2
    s_add_u32 s{sONES}, s{sONES}, s{sKQ}
    s_lshl_b32 s{sONES}, s{sONES}, 6
    v_lshl_add_u32 v{xa}, v{xa}, 1, s{sONES}
    s_add_u32 s{sXB}, s{sXB}, s{sONES}
    global_load_short_d16_hi a{aXE + 16}, v{xa}, s[{pDSK}:{pDSK + 1}]""")
for r in range(0 if OPT['xlds'] else 16):
    if r % 4 == 0:
        xe.append(I(f's_add_u32 s{sONES}, s{sXB}, {1024 * ROW(r)}'))
    xe.append(I(f'buffer_load_short_d16_hi a{aXE + r}, v{xb}, {srd(sX)}, s{sONES} offen offset:{1024 * (r & 3)}'))
sAO = dict(A={1: 8, 2: 9, 3: 10}, H={1: 11, 2: 12, 3: 13}, B={1: 14, 2: 15})
for e in (1, 2, 3):
    fill += L(f"""s_xor_b32 s{sT2}, s{sJJ}, {e}
        s_lshl_b32 s{sT2}, s{sT2}, 12
        s_add_u32 s{sAO['H'][e]}, s{sT2}, s{sAS}
        s_add_u32 s{sAO['A'][e]}, s{sAO['H'][e]}, s{sT2}
        s_add_u32 s{sAO['H'][e]}, s{sAO['H'][e]}, {28 * 1024}""")
for e in (1, 2):
    fill += L(f's_lshl_b32 s{sT2}, s{sPB[e]}, 12\ns_add_u32 s{sAO["B"][e]}, s{sT2}, s{sAS}')
if OPT['tlb'] in (2, 3):
    fill = touch_o + fill
if OPT['fw']:
    fill += L(f"""s_lshl_b32 s{sT2}, s{sJJ}, 9
        s_add_u32 s{sT2}, s{sT2}, s{sFLG}
        v_lshlrev_b32 v{t0}, 3, v{vL}
        v_mov_b32 v{TT}, 0
        v_mov_b32 v{TT + 1}, 0
        buffer_store_dwordx2 {vr(TT, 2)}, v{t0}, {srd(sWS)}, s{sT2} offen sc1""")
if OPT['xw'] == 1:
    fill += L(f'v_lshlrev_b32 v{t0}, 2, v{vL}')
    for b in (1, 2, 3):
        fill += L(f"""buffer_store_dwordx4 {vr(TT, 4)}, v{VL16}, {srd(sWS)}, s{sXO[b]} offen sc1
            buffer_store_dwordx4 {vr(TT, 4)}, v{VL16}, {srd(sWS)}, s{sXO[b]} offen offset:1024 sc1
            buffer_store_dword v{vL}, v{t0}, {srd(sWS)}, s{sXO[b]} offen offset:2048 sc1""")
elif OPT['xw']:
    fill += L(f"""v_lshlrev_b32 v{t0}, 7, v{vL}
        v_min_u32 v{t0}, {59 * 128}, v{t0}
        buffer_load_dword a60, v{t0}, {srd(sWS)}, s{sXO[0]} offen {('', '', 'sc1', 'sc1 nt')[OPT['xw']]}""")
if not OPT['xel']:
    cut = len(fill) * OPT['xes'] // 100
    fill, xe = fill[:cut] + merge(fill[cut:], xe), []
OPT['dsp'] = OPT['dsps']
SPOS = {3: (2, 14, 28), 4: (2, 14, 28, 42), 5: (0, 12, 24, 36, 48)}
srounds = [(2, rg(4)), (14, rg(5)), (28, rg(6)), (42, rg(7))] if OPT['sch'] == 1 else \
    list(zip(SPOS[9 - NG - OPT['ncr']], map(rg, range(NG + OPT['ncr'], 9))))
sbars = [(9, BAR('G1')), (25, BAR('G2', 'G3'))] if OPT['bsp'] == 1 else \
    [(9, BAR('G1')), (25, BAR('G2')), (41, BAR('G3'))] if OPT['bsp'] else [(24, BAR('G2', 'G3'))]
pin = pins(*srounds, *sbars, (63 - LA_F, stamp('s59') + BAR('G4', 'b1w', *([] if OPT['bsa'] & 1 else ['G5'])) + stamp('b2')))
OPT['dsp'] = DSP
P += weave(fine('S', S_items, 3), fill, pin, 0, 62 - LA_F)

Q = FACC[1]
V = lambda t: SRE + t if t % 2 == 0 else SIM + t - 1
AGR, AGI = VRS, t3
fill = []
coef = []
for q in range(8):
    for h in range(2):
        r = 2 * q + h
        fill += L(f"""v_mul_f32 v{TT + 2 * h}, v{SRE + r}, v{CR}
            v_mul_f32 v{TT + 2 * h + 1}, v{SRE + r}, v{NCI}
            v_fmac_f32 v{TT + 2 * h}, v{SIM + r}, v{NCI}
            v_fmac_f32 v{TT + 2 * h + 1}, v{SIM + r}, v{NCR}""")
    for h in range(2):
        r = 2 * q + h
        fill += L(f"""v_mul_f32 v{V(r)}, v{TT + 2 * h}, v{Q + r}
            v_mul_f32 v{V(r) + 1}, v{TT + 2 * h + 1}, v{Q + r}""")
    coef.append(fill)
    fill = []
step = lambda d, p, c: L(f"""v_pk_fma_f32 {vr(d, 2)}, {vr(p, 2)}, {vr(LR, 2)}, {vr(c, 2)} op_sel_hi:[1,0,1]
    v_pk_fma_f32 {vr(d, 2)}, {vr(p, 2)}, {vr(NLI, 2)}, {vr(d, 2)} op_sel:[1,0,0] op_sel_hi:[0,1,1]""")
horner = [step(AGR if r & 1 else TT + 4, V(0) if r == 1 else (TT + 4 if r & 1 else AGR), V(r)) for r in range(1, 16)]
fill = fetch(seg=t1) + fill + (L('s_mov_b32 s19, s3') if OPT['dbg'] else []) + L(f's_mov_b32 s{sKC[0]}, {M2LN2:#x}')
fill.append(I(f'ds_write_b64 v{t1}, {vr(AGR, 2)} offset:{7 * 256}', tok='segw'))
frounds = [(1, rg(8)), (12, rg(9))] if OPT['sch'] == 1 else [(1, rg(9)), (12, rg(10))] if OPT['sch'] == 2 else \
    [(0, rg(9)), (OPT['g10'], rg(10)), (2 * OPT['g10'], rg(11))]
staged_names = list(STAGE)
abars = [(7 - LA_F, BAR('G5'))] if OPT['bsa'] & 1 else []
abars += [(15 - LA_F, BAR('G6')), (23 - LA_F, BAR('G7'))] if OPT['bsa'] & 2 else [(15 - LA_F, BAR('G6', 'G7'))]
pin = pins(*frounds, *abars, (31, BAR('segw')),
           *[(22, stage_load(n)) for n in staged_names[:1]])
if 0 <= OPT['pfat'] < 32:
    pin.setdefault(OPT['pfat'], []).extend(pf)
NB = OPT['nb0']
per = 8 // NB
plan = [(1, [], [])]
for n in range(NB):
    lo, hi = max(2 * per * n - 1, 0), 2 * per * (n + 1) - 1
    plan.append((1 + (n + 1) * 28 // NB, sum(coef[per * n:per * (n + 1)], []), sum(horner[lo:hi], [])))
P += staged(fine('F0', F_items[0], 3), pin, plan + [(30, fill, []), (31, [], [])])
P += stamp('F0')

E = ASc[0]
R0, R1, T0_, T1_ = TT + 8, TT + 12, ASc[0], ASc[2]
h0, h1 = mish_stages(0, 0), mish_stages(0, 1)
rd = lambda dst, k: I(f'ds_read2_b64 {vr(dst, 4)}, v{t1} offset0:{32 * k} offset1:{32 * k + 32}')
publish = cmul_add(E, E + 2, L16R, L16I, PR, PI, AGR, AGI) + fetch(pub=t1) + L(f"""v_mov_b32 v{E + 1}, s{sTAG}
    v_mov_b32 v{E + 3}, s{sTAG}
    buffer_store_dwordx4 {vr(E, 4)}, v{t1}, {srd(sWS)}, 0 offen sc1""")
frounds = [(0, rg(10)), (8, rg(11))] if OPT['sch'] == 1 else [(0, rg(11))] if OPT['sch'] == 2 else []
pin = pins(*frounds, (OPT['wa0'], rw('WA0')), (31 - LA_F, BAR('G8', 'G9', *([] if OPT['bsb'] else ['G10', 'G11']))),
           *zip((8, 24), map(stage_load, staged_names[1:3])))
if OPT['pfat'] >= 32:
    pin.setdefault(OPT['pfat'] - 32, []).extend(fetch(pfa=FAd) + L(pf[0].text.replace(f'v{PI}', f'v{FAd}')))
GA = [int(x) for x in str(OPT['stg1']).split('.')]
P += staged(fine('F0', F_items[1], 3), pin, [
    (GA[0], [rd(R0, 0), rd(R1, 2)] + h0['rd'], h0['A']),
    (GA[1], h0['ex'], cmul_pk(PR, L16R, R0, R0 + 2) + cmul_pk(T0_, L16R, PR, R1) + cmul_pk(PR, L16R, T0_, R1 + 2) + h0['B']),
    (GA[2], [rd(R0, 4), I(f'ds_read_b64 {vr(R1, 2)}, v{t1} offset:{6 * 256}')] + h0['rc'],
     cmul_pk(T0_, L16R, PR, R0) + cmul_pk(T1_, L16R, T0_, R0 + 2) + cmul_pk(PR, L16R, T1_, R1) + h0['C']),
    (GA[3], h1['rd'] + publish + h0['fin'], h1['A']),
    (GA[4], h1['ex'], h1['B']),
    (GA[5], h1['rc'], h1['C']),
    (31, h1['fin'], [])])
P += stamp('F1')

LBA = [CR, NCI]
LBE = [NCR, L16R]
LBD = [ASc[0], QG[0]]
FLV = L16I
lb_loads = '\n'.join(f'buffer_load_dwordx4 {vr(LBD[e], 4)}, v{LBA[e]}, {srd(sWS)}, 0 offen sc1' for e in range(2))
lb_setup = fetch(lba0=LBA[0], lba1=LBA[1], lbe0=LBE[0], lbe1=LBE[1])


def flag_store(stage, toks):
    out = [Wait(*toks), I(f'buffer_store_dword v{FLV}, v{FLA}, {srd(sWS)}, 0 offen offset:{128 * stage} sc1')]
    if OPT['ppf']:
        so = (sFST[0], sSST, sFST[2])[stage]
        vpf = L128R if stage else t3
        out = [I(f'v_lshlrev_b32 v{vpf}, {6 if stage < 2 else "s%d" % sSEL[1]}, v{vL}')] + out
        out.append(I(f'buffer_load_dword a{60 + (stage & 1)}, v{vpf}, {srd(sWS)}, s{so} offen sc1'))
    return out


def flag_load(stage):
    return f'buffer_load_dword v{t3}, v{FLP}, {srd(sWS)}, 0 offen offset:{128 * stage} sc1'


flag_check = f'v_cmp_ne_u32 vcc, s{sTAG}, v{t3}'
lb_check = f"""v_bitop3_b32 v{t0}, v{LBD[0] + 1}, v{LBD[0] + 3}, v{LBE[0]} bitop3:0x7e
    v_bitop3_b32 v{t1}, v{LBD[1] + 1}, v{LBD[1] + 3}, v{LBE[1]} bitop3:0x7e
    v_or_b32 v{t0}, v{t0}, v{t1}
    v_cmp_ne_u32 vcc, 0, v{t0}"""
lb_part = stamp('lb0') + poll('lb', lb_loads, lb_check) + stamp('lb1')
lb_part += cmul_add(LBD[0] + 1, LBD[0] + 3, L128R, L128I, LBD[0], LBD[0] + 2, LBD[1], LBD[1] + 2)
lb_part += cmul_add(LBD[1], LBD[1] + 1, WR, WI, LBD[0] + 1, LBD[0] + 3)
lb_part += fetch(lbw=t1)
lb_part.append(I(f'ds_write_b64 v{t1}, {vr(LBD[1], 2)}', tok='lbw'))
HW, HR, HB = ASc[0], ASc[1], FACC[1]
HW2, HR2 = WR, WI
tail_addr = fetch(lbr=ASc[3], fla=FLA, flp=FLP) + L(f'v_mov_b32 v{FLV}, s{sTAG}')
lb_reads = [I(f'ds_read2_b64 {vr(HB + 4 * q, 4)}, v{ASc[3]} offset0:{64 * q} offset1:{64 * q + 32}') for q in range(4)]
scan = [I(f'v_pk_add_f32 {vr(HB + a, 2)}, {vr(HB + a, 2)}, {vr(HB + b_, 2)}')
        for a, b_ in ((0, 2), (4, 6), (8, 10), (12, 14), (0, 4), (8, 12), (0, 8))]
scan += cmul_add(L128R, L128I, LSR, LSI, HB, HB + 1, PR, PI)
pack = lambda q: L(f"""v_cvt_pk_bf16_f32 v{SRE + q}, v{V(2 * q)}, v{V(2 * q + 1)}
    v_cvt_pk_bf16_f32 v{SIM + q}, v{V(2 * q) + 1}, v{V(2 * q + 1) + 1}""")
for r in range(16):
    prev = vr(L128R if r == 0 else V(r - 1), 2)
    scan += L(f"""v_pk_fma_f32 {vr(V(r), 2)}, {prev}, {vr(LR, 2)}, {vr(V(r), 2)} op_sel_hi:[1,0,1]
        v_pk_fma_f32 {vr(V(r), 2)}, {prev}, {vr(NLI, 2)}, {vr(V(r), 2)} op_sel:[1,0,0] op_sel_hi:[0,1,1]""")
    if r >= 2 and r % 2 == 0 and OPT['pk_in']:
        scan += pack(r // 2 - 1)
HRS = AS
transp = fetch(hw=HW, hw2=HW2, hr=HRS[0]) + [I(f'v_xor_b32 v{HRS[n]}, {16 * n}, v{HRS[0]}') for n in (1, 2, 3)] + sum((pack(q) for q in range(7 if OPT['pk_in'] else 0, 8)), [])
for ri in range(2):
    transp += [I(f'ds_write_b128 v{(HW, HW2)[h]}, {vr((SRE, SIM)[ri] + 4 * h, 4)}') for h in range(2)]
    for fr in range(2):
        for u in range(2):
            transp.append(I(f'ds_read_b64_tr_b16 {ar(aOS + 8 * ri + 4 * fr + 2 * u, 2)}, v{HRS[2 * u + fr]} offset:{256 * u}'))
stH = [I(f'buffer_store_dwordx4 {ar(aOS + 4 * q, 4)}, v{VL16}, {srd(sWS)}, s{sSST} offen offset:{1024 * q} sc1',
         tok='stH' if q == 3 else None) for q in range(4)]
h0, h1 = mish_stages(1, 0), mish_stages(1, 1)
g0, g1 = mish_stages(2, 0), mish_stages(2, 1)
pin = pins((0, rw('CR0')), (8, rw('CI0')), (18, rw('WA1')), *([(15 - LA_F, BAR('G10', 'G11'))] if OPT['bsb'] else []), (29, BAR('lbw') + lb_reads + g0['rd'] + g1['rd']), (OPT['lbl'], L(lb_loads)),
           *[(25, stage_load(n)) for n in staged_names[3:4]])
GB = [int(x) for x in str(OPT['stg2']).split('.')]
P += staged(fine('F2', F_items[2], 2), pin, [
    (GB[0], h0['rd'] + h1['rd'] + lb_setup, h0['A']),
    (GB[1], h0['ex'], h0['B'] + h1['A']),
    (GB[2], h0['rc'] + h1['ex'], h0['C'] + h1['B']),
    (GB[3], h0['fin'] + h1['rc'], h1['C']),
    (28, h1['fin'] + lb_part + tail_addr, []),
    (31, [], [])])
P += stamp('F2')
burst = scan + g0['A']
if OPT['fas'] < 0:
    burst = burst[:OPT['fas']] + flag_store(0, ['stF0', 'stF1']) + burst[OPT['fas']:]
if OPT['fine'] == 'T':
    for n in range(len(burst) - 12, 0, -12):
        burst = burst[:n] + stamp(f'g{n}') + burst[n:]
P += burst
P += stamp('scan')


FP0, CP0, FPc = [NLI, LI, LR, CR], [NCI, NCR], QG
PA = OPT['pa']
p3_setup = fetch(fp0=FP0[0], fp1=CP0[0], f3o=ASc[2]) + [I(f'v_xor_b32 v{FP0[n]}, {32 * n}, v{FP0[0]}') for n in (1, 2, 3)]
p3_setup.append(I(f'v_xor_b32 v{CP0[1]}, 64, v{CP0[0]}'))
hs = OPT['hs']
lead = [i_ for i_ in transp if i_.kind != 'ds']
tds = transp[len(lead):]
P += lead
tpins = [(0, tds[0:1]), (1, tds[1:2]), (2, tds[2:4]), (3, tds[4:6]), (4, tds[6:7]), (5, tds[7:8] + stH[0:1]),
         (6, tds[8:10]), (7, tds[10:12] + stH[1:2]), (7 + hs, stH[2:3]), (7 + 2 * hs, stH[3:4])]

steps = ([('WA0', x, 'own') for x in range(4)]
         + [(n, x, 'own') for n in ('CR0', 'CI0') for x in range(2)]
         + [(f'WA{e}', x, 'A') for e in (1, 2, 3) for x in range(4)]
         + [(n, x, 'H') for n in ('CR0', 'CI0') for x in (2, 3)]
         + [(n, x, 'H') for n in ('CR1', 'CI1') for x in range(4)]
         + [('WB0', x, 'own') for x in range(4)]
         + [(f'WB{e}', x, 'B') for e in (1, 2) for x in range(4)])
deferred = [k for k, st in enumerate(steps) if st[2] != 'own']
A_REGS = ([192 + 4 * n for n in range(16)] + [SRE + 4 * n for n in range(8)]
          + [FACC[0] + 4 * n for n in range(4)] + [TT + 4 * n for n in range(4)])
ACC = [128, 144, 160, 176]
cur_addr = {}


def a_frag(k):
    name, x, src = steps[k]
    if src != 'own':
        return vr(A_REGS[deferred.index(k)], 4)
    if name == 'WA0':
        return ar(aOF + 4 * x, 4)
    if name == 'WB0':
        return ar(aOF + 16 + 4 * x, 4) if x < 2 else vr(FACC[1] + 4 * (x - 2), 4)
    return ar(aOS + 8 * (name[1] == 'I') + 4 * x, 4)


def a_load(k):
    name, x, src = steps[k]
    e = int(name[2])
    if name[0] == 'C':
        so, off = sAO['H'][2 * e + (x >> 1)], 2048 * (name[1] == 'I') + 1024 * (x & 1)
    else:
        so, off = sAO[name[1]][e], 1024 * x
    return [I(f'buffer_load_dwordx4 {a_frag(k)}, v{VL16}, {srd(sWS)}, s{so} offen offset:{off} sc1')]


pin = pins((PA, rw2('WA2')), (PA + 8, BAR()), (PA + 9, rw2('WA3')), (PA + 17, BAR()), (PA + 18, rw2('CR1')),
           (OPT['fal'], L(flag_load(0))), (30, BAR('WA0', 'CR0', 'CI0', 'WA1')), *tpins)
if OPT['fhs'] >= 0:
    pin.setdefault(OPT['fhs'], []).extend(flag_store(1, ['stH']))
if OPT['fas'] >= 0:
    pin.setdefault(OPT['fas'], []).extend(flag_store(0, ['stF0', 'stF1']))
m3 = mish_pk(3, ASc[2])
GC = [int(x) for x in str(OPT['stg3']).split('.')]
P += staged(fine('F3', F_items[3], 2), pin, [
    (GC[0], g0['ex'], g0['B'] + g1['A']),
    (GC[1], g0['rc'] + g1['ex'], g0['C'] + g1['B']),
    (GC[2], g0['fin'] + g1['rc'], g1['C']),
    (29, g1['fin'][:4] + m3[:4] + g1['fin'][4:] + p3_setup, []),
    (31, [], [])])
P += stamp('F3')

m3 = m3[4:]
st0 = 40
early = sum((a_load(k) for k in range(8, 8 + OPT['nea'])), [])
if not OPT['ovl']:
    fac = st0 - OPT['fac']
    TAIL0 = len(P)
    P += m3[:fac] + (flag_store(1, ['stH']) if OPT['fhs'] == -1 and not OPT['fhp'] else [])
    P += stamp('fa0') + poll('fa', flag_load(0), flag_check) + stamp('fa1')
    tl = merge(m3[fac:st0], early) + (flag_store(1, ['stH']) if OPT['fhp'] else []) + m3[st0:]
    TAIL1 = len(P) + len(tl) - len(m3) + st0
    if OPT['fine'] == 'T':
        for n in range(len(tl) - 12, 0, -12):
            tl = tl[:n] + stamp(f'gt{n}') + tl[n:]
    P += tl
    P += stamp('tail')

XE, ME = 192, LSR
ep_setup = L(f"""v_lshrrev_b32 v{t1}, 5, v{vL}
    s_lshl_b32 s{sT2}, s{sW}, 8
    s_add_u32 s{sT2}, s{sT2}, {T_STAT}
    v_lshl_add_u32 v{VLN2}, v{t1}, 4, s{sT2}
    v_lshlrev_b32 v{FA0}, 13, v{t1}
    v_and_b32 v{t0}, 31, v{vL}
    v_lshl_add_u32 v{FA0}, v{t0}, 2, v{FA0}""")
VL4 = ASc[0]
ep_setup = L(f'v_lshlrev_b32 v{VL4}, 2, v{vL}') + ep_setup
base_calc = [I(f'v_accvgpr_read_b32 v{RL2}, a{aXE + 16}')]
for qt in range(4):
    base_calc += [I(f'ds_read_b128 {vr(ME, 4)}, v{VLN2} offset:{4 * ROW(4 * qt)}', hoist=True),
                  I(f'ds_read_b128 {vr(ME + 4, 4)}, v{VLN2} offset:{128 + 4 * ROW(4 * qt)}', hoist=True)]
    rs = range(4)
    base_calc += [I(f'v_accvgpr_read_b32 v{XE + 4 * qt + r}, a{aXE + 4 * qt + r}') for r in rs]
    base_calc += [I(f'v_sub_f32 v{ME + r}, v{XE + 4 * qt + r}, v{ME + r}') for r in rs]
    base_calc += [I(f'v_mul_f32 v{ME + r}, v{ME + r}, v{ME + 4 + r}') for r in rs]
    base_calc += [I(f'v_fmac_f32 v{XE + 4 * qt + r}, v{ME + r}, v{RL2}') for r in rs]

def checksum(dst, src, last):
    return [f'v_bitop3_b32 v{dst}, v{src}, v{src + 1}, {last} bitop3:0x96'] + \
           [f'v_bitop3_b32 v{dst}, v{src + e}, v{src + e + 1}, v{dst} bitop3:0x96' for e in (2, 4, 6)]


def send(b):
    A = ACC[b]
    out = []
    for q in range(2):
        out += [I(f'v_cvt_pk_bf16_f32 v{A + e}, v{A + 2 * e}, v{A + 2 * e + 1}') for e in range(4 * q, 4 * q + 4)]
        out.append(I(f'buffer_store_dwordx4 {vr(A + 4 * q, 4)}, v{VL16}, {srd(sWS)}, s{sXO[b]} offen '
                     f'offset:{1024 * q} sc1'))
    out += [I(c) for c in checksum(A + 8, A, f's{sTAG}')]
    out.append(I(f'buffer_store_dword v{A + 8}, v{VL4}, {srd(sWS)}, s{sXO[b]} offen offset:2048 sc1'))
    return out


def w_read1(k, b, dst):
    name, x, src = steps[k]
    slot = W_SLOT[name]
    out = []

    def address(cur, base):
        if slot < 4:
            return base, slot * SLOT
        if not 0 <= slot - cur_addr.get(cur, -9) < 4:
            cur_addr[cur] = 4 if slot == 4 else 5
            out.append(I(f'v_add_u32 v{cur}, {cur_addr[cur] * SLOT}, v{base}'))
        return cur, (slot - cur_addr[cur]) * SLOT

    if name[0] == 'C':
        a, off = address(AS[x >> 1], CP0[x >> 1])
        return out + [I(f'ds_read_b128 {ar(dst, 4)}, v{a} offset:{off + 4096 * b + 2048 * (x & 1)}', lds_r=slot)]
    var = 2 * (b & 1) + (x & 1)
    a, off = address(FPc[var], FP0[var])
    return out + [I(f'ds_read_b64_tr_b16 {ar(dst + 2 * u, 2)}, v{a} '
                    f'offset:{off + 8192 * (x >> 1) + 4096 * (b >> 1) + 1024 * u}', lds_r=slot) for u in range(2)]


RX = {1: ACC[1], 2: ACC[2], 3: ACC[3]}


def recv(b):
    so = sXO[0] if b == 1 else sSEL[b]
    rl = [f'buffer_load_dwordx4 {vr(RX[b] + 4 * q, 4)}, v{VL16}, {srd(sWS)}, s{so} offen offset:{1024 * q} sc1' for q in range(2)]
    rl.append(f'buffer_load_dword v{RX[b] + 8}, v{VL4}, {srd(sWS)}, s{so} offen offset:2048 sc1')
    return '\n'.join(rl)


pre = L(f"""s_lshl_b32 s{sXB}, s{sXB}, 1
    s_mov_b32 s{sKC[0]}, 0x00003f80
    s_mov_b32 s{sKC[1]}, 0x3f800000""")
E3 = OPT['e3']
D0 = OPT['d0']
seq = [(k, b) for k in range(D0) for b in (1, 2, 3, 0)] + [(k, b) for k in range(D0, E3) for b in (1, 2, 3)]
seq += [(k, b) for k in range(E3, 36) for b in (1, 2)]
seq += [(k, b) for b in (1, 2) for k in range(36, 44)]
own8 = [(k, 0) for k in range(8, 12)]
seq += (own8 if OPT['o8'] else []) + [(k, 3) for k in range(E3, 44)] + ([] if OPT['o8'] else own8)
seq += [(k, 0) for k in list(range(D0, 8)) + list(range(12, 44))]
at = {kb: n for n, kb in enumerate(seq)}
done_at = {b: at[43, b] for b in (1, 2, 3)}
KEEP = {(k, 0): aWO + 4 * (k - 8) for k in range(8, 12)}
KEEP.update({(k, 0): aWO + 16 + 4 * k for k in range(D0, 4)})
reads = sorted((kb for kb in seq), key=lambda kb: at[kb[0], 3] + 0.5 if kb in KEEP else at[kb])
RING = 12
where, nring = {}, 0
for kb in reads:
    if kb in KEEP:
        where[kb] = KEEP[kb]
    else:
        where[kb] = aP + 4 * (nring % RING)
        nring += 1
LA_J = OPT['laj']
items = []
rd = 0
seen = set()
for n, (k, b) in enumerate(seq):
    pre_rd = []
    while rd < len(reads) and (at[reads[rd][0], 3] if reads[rd] in KEEP else at[reads[rd]]) <= n + LA_J:
        pre_rd += w_read1(*reads[rd], where[reads[rd]])
        rd += 1
    mm = []
    for a in range(2):
        d = vr(ACC[b] + 8 * a + 4 * (k & 1), 4)
        mm.append(I(f'v_mfma_f32_16x16x32_bf16 {d}, {a_frag((k & ~1) + a)}, {ar(where[k, b], 4)}, '
                    f'{d if (b, k & 1) in seen else 0}'))
    seen.add((b, k & 1))
    if n == 0:
        if OPT['ovl']:
            k_ = max(n_ for n_, i_ in enumerate(P) if i_.kind == 'barrier') + 1
            P = P[:k_] + pre_rd + P[k_:]
        elif OPT['wmix']:
            end = len(P) - (PROF in (1, 2)) - 10
            P = P[:TAIL1] + merge(P[TAIL1:end], pre_rd) + P[end:]
        else:
            P = P[:TAIL0] + pre_rd + P[TAIL0:]
        pre_rd = []
    nds = [n_ for n_, i_ in enumerate(pre_rd) if i_.kind == 'ds']
    half = nds[len(nds) // 2] if OPT['bal'] and len(nds) > 1 else len(pre_rd)
    items.append([mm[0]] + pre_rd[:half] + [mm[1]] + pre_rd[half:])
pin = {n: [] for n in range(len(items))}
B1 = at[4, 1] + 2
pin[B1] += BAR('WA2')
pin[at[16, 1] - LA_J - 1] += [Wait('WA3', 'CR1', 'CI1'), I('s_barrier')]
pin[at[32, 1] - LA_J - 1] += [Wait('WB0', 'WB1', 'WB2'), I('s_barrier')]
if OPT['fhs'] < -1:
    pin[-OPT['fhs']] += flag_store(1, ['stH'])
if OPT['fhl'] >= 0:
    pin[OPT['fhl']] += L(flag_load(1))
pin[OPT['fhc']] += stamp('fh0') + poll('fh', flag_load(1), flag_check) + stamp('fh1')
pin[OPT['fls']] += flag_store(2, ['stF3', 'stF2'])
pin[OPT['fll']] += L(flag_load(2))
pin[OPT['flc']] += stamp('fl0') + poll('fl', flag_load(2), flag_check) + stamp('fl1')
pin[at[36, 1] - 1] += stamp('k36')
for name, gap in (('CI1', 1), ('WB0', 19), ('WB1', 24), ('WB2', at[16, 1] - LA_J)):
    if name in STAGE:
        for n, i_ in enumerate(stage_write(name)):
            pin[gap + max(n - 2, 0)].append(i_)
_rw = rw
rw = lambda name: [] if name in STAGE else _rw(name)
queue = []
if OPT['ovl']:
    pin[OPT['ofa']] += stamp('fa0') + poll('fa', flag_load(0), flag_check) + stamp('fa1')
    queue += [(OPT['ofa'], a_load(k)) for k in range(8, 8 + OPT['nea'])]
queue += [(OPT['q0'], a_load(k)) for k in range(8 + OPT['nea'], 16)] + [(0, rw('CI1'))]
queue += [(OPT['q0'], a_load(k)) for k in range(max(16, 8 + OPT['nea']), 20)]
if OPT['qord'] == 0:
    queue += [(B1 + 1, rw('WB0'))] + [(OPT['fhc'], a_load(k)) for k in range(20, 32)] + [(B1 + 1, rw('WB1'))]
elif OPT['qord'] == 1:
    queue += [(B1 + 1, rw('WB0')), (B1 + 1, rw('WB1'))] + [(OPT['fhc'], a_load(k)) for k in range(20, 32)]
else:
    queue += [(OPT['fhc'], a_load(k)) for k in range(20, 24)] + [(B1 + 1, rw('WB0')), (B1 + 1, rw('WB1'))]
    queue += [(0, a_load(k)) for k in range(24, 32)]
queue += [(at[16, 1] - LA_J, rw('WB2'))]
queue += [(OPT['flc'], a_load(k)) for k in range(36, 44)]
n = 0.0
for first_gap, ins in queue:
    n = max(n, first_gap)
    pend = []
    for i_ in ins:
        pend.append(i_)
        if i_.kind == 'vm':
            pin[int(n)] += pend
            pend = []
            n += OPT['pace'] / 10
for b in (1, 2, 3):
    sd = send(b)
    for q in range(4):
        pin[done_at[b] + 3 + q] += sd[q * len(sd) // 4:(q + 1) * len(sd) // 4]
    pin[done_at[min(b + 1, 3) if b < 3 else 3] + OPT[f'r{b}'] if b != 2 else done_at[2] + OPT['r2']] += L(recv(b))
pin[done_at[2] + 6] += stamp('s12')
pin[done_at[3] + 6] += stamp('sent')
items = fine('P3', items[:OPT['fn'] * 27], OPT['fn']) + items[OPT['fn'] * 27:]
LEV[0] = OPT['lev3']
sub = lambda lo, hi: {n - lo: pin[n] for n in range(lo, hi)}
unit_weave = weave


def weave(its, fill_, pin_, lo=0, hi=None):
    if not OPT['fineg']:
        return unit_weave(its, fill_, pin_, lo, hi)
    flat, pin2 = [], {}
    for n, it in enumerate(its):
        cut_ = max(k_ for k_, i_ in enumerate(it) if i_.kind == 'mfma')
        flat += [it[:cut_], it[cut_:]]
        ordered = any(i_.kind in ('barrier', 'pseudo', 'label') for i_ in pin_.get(n, []))
        first = len(flat[-2]) < len(flat[-1]) and not ordered
        pin2[2 * n + (0 if first else 1)] = pin_.get(n, [])
    return unit_weave(flat, fill_, pin2, 2 * lo, None if hi is None else 2 * hi + 1)


c1, c2 = at[32, 1], at[11, 0] + 1
if OPT['ovl']:
    GD = [int(x) for x in str(OPT['stg4']).split('.')]
    both = lambda lo, hi: m3[lo:hi] + m3[40 + lo:40 + hi]
    P += staged(items[:c1], pin, [(GD[0], [], both(0, 4)), (GD[1], both(4, 12), both(12, 20)),
                                  (GD[2], both(20, 28), both(28, 36)),
                                  (GD[3], both(36, 40) + m3[80:] + stamp('tail'), []), (c1 - 1, [], [])])
else:
    P += weave(items[:c1], [], sub(0, c1))
P += weave(items[c1:c2], ep_setup + pre, sub(c1, c2), 0, 6)
SWAPS = lambda R: [I(f'v_permlane16_swap_b32 v{R + 8 * a + r}, v{R + 8 * a + 4 + r}') for a in range(2) for r in range(4)]
base_calc += SWAPS(XE)


def rx_check(b):
    chk = checksum(RX[b] + 9, RX[b], f'v{RX[b] + 8}') + [f'v_cmp_ne_u32 vcc, s{sTAG}, v{RX[b] + 9}']
    return poll(f'rx{b}', '\n'.join(recv(x) for x in range(b, 4 if OPT['rxall'] else b + 1)), '\n'.join(chk))


EARLY = range(1, 1 + OPT['rxe'])
for b in EARLY:
    base_calc += rx_check(b)
    for q in range(8):
        u = RX[b] + 10 + 2 * (q & 1)
        base_calc += L(f"""v_lshlrev_b32 v{u}, 16, v{RX[b] + q}
            v_and_b32 v{u + 1}, 0xffff0000, v{RX[b] + q}
            v_add_f32 v{XE + 2 * q}, v{XE + 2 * q}, v{u}
            v_add_f32 v{XE + 2 * q + 1}, v{XE + 2 * q + 1}, v{u + 1}""")
P += weave(items[c2:], base_calc, sub(c2, len(items)), 3, len(items) - c2 - (3 if OPT['rxe'] else 6))
P += stamp('own')
A0 = ACC[0]
for q in range(8):
    P.append(I(f'v_pk_add_f32 {vr(A0 + 2 * q, 2)}, {vr(A0 + 2 * q, 2)}, {vr(XE + 2 * q, 2)}'))
LATE = [b for b in (1, 2, 3) if b not in EARLY]
for b in LATE:
    P += rx_check(b)
    if OPT['seqadd'] and b < 3:
        P += [I(f'v_dot2c_f32_bf16 v{A0 + 2 * q + h}, s{sKC[h]}, v{RX[b] + q}') for q in range(8) for h in range(2)]
if OPT['seqadd']:
    LATE = [3]
P += stamp('rx')
sts = []
for a in range(2):
    for q in range(4 * a, 4 * a + 4):
        for b in LATE:
            P += [I(f'v_dot2c_f32_bf16 v{A0 + 2 * q + h}, s{sKC[h]}, v{RX[b] + q}') for h in range(2)]
        P += sts[3 * (q & 3):3 * (q & 3) + 3]
    P += SWAPS(A0)[4 * a:4 * a + 4]
    sts = []
    for q in range(4 * a, 4 * a + 4):
        sts.append(I(f's_add_u32 s{sBB}, s{sXB}, {2048 * ROW(2 * q)}'))
        sts += [I(f'buffer_store_dword v{A0 + 2 * q + h}, v{FA0}, {srd(sOUT)}, s{sBB} offen offset:{2048 * h} '
                  f'{OPT["out_flags"].replace("+", " ")}') for h in range(2)]
P += L(f"""s_lshl_b32 s{sT2}, s{sJ}, 2
    s_add_u32 s{sT2}, s{sT2}, s{sW}
    s_xor_b32 s{sT1}, s{sI}, 15
    s_or_b32 s{sT2}, s{sT2}, s{sT1}
    s_cmp_eq_u32 s{sT2}, 0
    s_cselect_b32 s{sT2}, {WS_EP}, {OOB:#x}
    v_mov_b32 v{t0}, s{sE2}
    v_mov_b32 v{t1}, s{sT2}""") + sts + L(f'buffer_store_dword v{t0}, v{t1}, {srd(sWS)}, 0 offen')
if OPT['diag']:
    P += stamp('end') + L("""s_memrealtime s[6:7]
        s_waitcnt lgkmcnt(0)
        s_sub_u32 s4, s4, s23
        s_lshl_b32 s4, s4, 2
        s_min_u32 s4, s4, 20000
        L_diag:
        s_memrealtime s[0:1]
        s_waitcnt lgkmcnt(0)
        s_sub_u32 s0, s0, s6
        s_cmp_lt_u32 s0, s4
        s_cbranch_scc1 L_diag""")
if OPT['dbg']:
    P += L(f"""s_memrealtime s[6:7]
        s_mov_b32 s{sTMP}, s4
        s_mov_b32 s{sTMP + 1}, s5
        s_mov_b32 s{sTMP + 2}, 256
        v_lshlrev_b32 v{t0}, 2, v{vL}
        v_lshrrev_b32 v{t1}, v{t0}, s23
        v_and_b32 v{t1}, 15, v{t1}
        v_min_u32 v{t1}, 1, v{t1}
        v_mov_b32 v{t2}, {OOB:#x}
        v_cmp_gt_u32 vcc, 7, v{vL}
        s_waitcnt lgkmcnt(0)
        v_cndmask_b32 v{t0}, v{t2}, v{t0}, vcc
        buffer_atomic_add v{t1}, v{t0}, {srd(sTMP)}, 0 offen
        s_sub_u32 s6, s6, s19
        v_mov_b32 v{t1}, s6
        v_cmp_eq_u32 vcc, 8, v{vL}
        v_lshlrev_b32 v{t0}, 2, v{vL}
        s_nop 0
        v_cndmask_b32 v{t0}, v{t2}, v{t0}, vcc
        buffer_atomic_umax v{t1}, v{t0}, {srd(sTMP)}, 0 offen""")
if PROF:
    P += stamp('end')
    P += L(f"""s_waitcnt vmcnt(0)
        s_memrealtime s[0:1]
        s_lshl_b32 s{sT2}, s2, 2
        s_add_u32 s{sT2}, s{sT2}, s{sW}
        s_lshl_b32 s{sT2}, s{sT2}, 7
        s_add_u32 s{sT2}, s{sT2}, {WS_PROF}
        v_mov_b32 v{t1}, s{sT2}
        s_waitcnt lgkmcnt(0)
        v_mov_b32 v{t0}, s0
        buffer_store_dword v{t0}, v{t1}, {srd(sWS)}, 0 offen offset:124
        v_mov_b32 v{t2}, s23
        buffer_store_dword v{t2}, v{t1}, {srd(sWS)}, 0 offen offset:112
        buffer_store_dword a254, v{t1}, {srd(sWS)}, 0 offen offset:116
        buffer_store_dword a255, v{t1}, {srd(sWS)}, 0 offen offset:120""")
    P += stamp('DUMP')
P += [I('L_end:'), I('s_endpgm')]

P = resolve_stamps(P)
if OPT['split']:
    P = split_ds_pairs(P)
if OPT['hoist']:
    P = hoist_reads(P, OPT['hoist'])
body = pad_hazards(insert_waits(P, OPT['age']))
check_polls(body)
tail = []
for name, loads, check in retry_blocks:
    blk = [I(f'L_retry_{name}:'), I(f's_mov_b32 s3, {OPT["spin"]}'), I(f'L_spin_{name}:')]
    if PROF or OPT['dbg']:
        blk.append(I(f's_add_u32 s23, s23, {1 << (4 * retry_blocks.index((name, loads, check)))}'))
    blk += L(loads) + [I('s_waitcnt vmcnt(0)')] + L(check)
    blk += L(f'''s_cbranch_vccz L_back_{name}
        s_sub_u32 s3, s3, 1
        s_cmp_lg_u32 s3, 0
        s_cbranch_scc1 L_spin_{name}
        s_branch L_back_{name}''')
    tail += pad_hazards(blk)

hdr = open(os.path.join(os.path.dirname(os.path.abspath(__file__)), 'header.txt')).read()
text = hdr + f'''; @launch grid=(256,1,1) block=(256,1,1) lds=163840
.amdgcn_target "amdgcn-amd-amdhsa--gfx950"
.text
.globl {KN}
.p2align 8
.type {KN},@function
{KN}:
{render(body)}
{render(tail)}
L_code_end:
    s_endpgm
.section .rodata,"a"
.p2align 6
.amdhsa_kernel {KN}
  .amdhsa_next_free_vgpr 512
  .amdhsa_next_free_sgpr 102
  .amdhsa_accum_offset 256
  .amdhsa_group_segment_fixed_size 0
  .amdhsa_kernarg_size 128
  .amdhsa_user_sgpr_count 2
  .amdhsa_user_sgpr_kernarg_segment_ptr 1
  .amdhsa_system_sgpr_workgroup_id_x 1
.end_amdhsa_kernel
'''
open(sys.argv[1], 'w').write(text)
if PROF:
    open(sys.argv[1][:-2] + '.stamps', 'w').write(' '.join(stamp_names))
from collections import Counter
cnt = Counter(i.kind for i in body)
print(dict(cnt), 'nops', sum(1 for i in body if i.mn == 's_nop'))
import subprocess
chk = subprocess.run([sys.executable, 'cdna_unwritten_srd_check.py', sys.argv[1]],
                     capture_output=True, text=True)
if chk.returncode != 0:
    os.remove(sys.argv[1])
    sys.exit('address check failed: ' + chk.stdout[-600:])
```

```python
import sys, os
sys.path.insert(0, os.path.dirname(os.path.abspath(__file__)))
from asmlib import I, Wait, insert_waits, pad_hazards, render, weave, split_ds_pairs, hoist_reads, merge, level, ds_first, check_polls

KN = 'parallel_sum__ssm_conv_s5__dense_activation_mish__prompt_kernel'
OPT = dict(prof=0, spin=20000, out_flags='nt', map='8x4', pf=2, age=16, laf=5, r1=30, r2=36, r3=29, e3=12, fls=28, fll=50, flc=68, ka2=1, nstep=0, split=0, diag='', dsp=2, xel=0, tlb=0, pk_in=1, lateln=100, d0=4, o8=1, bal=0, fineg=1, xes=0, xfirst=1, parat=4, nb0=2, stg3='8.16.23', stg1='2.7.12.17.22.27', stg2='2.6.14.21', fhp=0, wmix=1, ntx=0, ntg=0, ntw=0, lbt=0, rxe=0, dspc=3, dsps=3, sch=3, g3=24, fn=2, stg=0, q0=2, pfat=24, seqadd=1, lean=1, lb2s=0, s2l=0, xlds=0, deep=0, back=1, early=0, gl=0, xl=9, ncr=2, cpf=1, rxall=1, dbg=0, cfs=1, bsp=2, bsa=2, bsb=0, ovl=0, ofa=0, stg4='1.9.17.21', g10=8, wa0=17, hs=2, rotj=0, rotm=0, laj=7, pace=16, lev=0, lev3=0, pa=2, fw=1, xw=0, vmc=2, fine='', fas=-10, fal=12, fac=16, nea=8, fhs=-1, fhl=12, fhc=32, qord=1, lbl=13, lbc=24, ppf=0, hoist=32)
for a in sys.argv[2:]:
    k, v = a.split('=')
    OPT[k] = int(v) if v.lstrip('-').isdigit() else v
PROF = OPT['prof']

WS_EP, WS_AG, WS_A = 0, 0x10000, 0x40000
WS_XC = WS_A + 64 * 176 * 1024
XC_BLK = 2560
WS_FL = WS_XC + 1024 * 3 * XC_BLK
WS_SIZE = WS_FL + 1024 * 512
WS_PROF = 0x1C00000
OOB = 0x7ff00000
SLOT = 16384
TB = 9 * SLOT
T_STAT, T_B1, T_SEG, T_LB, T_H = TB, TB + 1024, TB + 2048, TB + 6144, TB + 8192
LOG2E, LN2, M2LN2 = 0x3fb8aa3b, 0x3f317218, 0xbfb17218

sX, sB, sW1, sCre, sCim, sW2, sWS, sOUT, sTMP = 36, 40, 44, 48, 52, 56, 60, 64, 68
sI, sJ, sW, sROT, sTAG, sE2 = 72, 73, 74, 75, 76, 77
sKC = [78, 79, 80, 81]
sWOFF, sT0, sT1, sXB, sBB, sW1A, sW1B = 82, 83, 84, 85, 86, 87, 88
sAS = 89
sFST = [90, 91, 92, 93]
sSST, sCB, sW2B, sFSEL, sONES, sT3, sJJ, sT2 = 94, 95, 96, 97, 98, 99, 100, 101
sKQ, sPB, sXO = 22, [24, 25, 26], [27, 28, 29, 30]
sSEL = [31, 32, 33, 34]
sFLG = 35
pLRE, pLIM, pBRE, pBIM, pLDT, pDSK, pB1 = 8, 10, 12, 14, 16, 18, 20
srd = lambda b: f's[{b}:{b + 3}]'
vL, t0, t1, t2 = 0, 1, 2, 3
AS = [4, 5, 6, 7]
ASc = [8, 9, 10, 11]
XG = [12, 13, 14, 15]
PG = [16, 17, 18, 19]
QG = [20, 21, 22, 23]
FA0, FAc, RL2, VLN2, VL16, VNM, VRS, t3 = 24, 25, 26, 27, 28, 29, 30, 31
FAd = VNM
NLI, LI, LR, CR, NCI, NCR, L16R, L16I, LSR, LSI, L128R, L128I, WR, WI, PR, PI = range(32, 48)
TT = 48
FACC = [64, 80]
SRE, SIM = 96, 112
X = 128
aS, aF, aP, aOF, aOS, aWO, aXE = 0, 128, 0, 64, 88, 128, 224
STAMP_A = list(range(104, 128)) + list(range(241, 247))
vr = lambda b, n: f'v[{b}:{b + n - 1}]'
ar = lambda b, n: f'a[{b}:{b + n - 1}]'

stamp_names = []
FINE_KEEP = dict(T=['lb1', 'F2', 'scan', 'F3', 'fa0', 'fa1', 'tail', 'fh0'], S=['x7', 'c27', 'b0', 'F0'], F0=['b2', 'F0', 'F1'], F2=['F1', 'F2', 'scan'], F3=['F2', 'scan', 'F3', 'fa0', 'fa1', 'tail'],
                 P3=['tail'], L=['k36', 'sent', 'own', 'rx'])


def fine(phase, items, step):
    if OPT['fine'] == phase:
        for n in range(step - 1, len(items), step):
            items[n] = items[n] + stamp(f'g{n}')
    return items


def stamp(name):
    if PROF == 3 and name not in ('end', 'DUMP'):
        return []
    if OPT['fine'] and not name.startswith('g') and name not in FINE_KEEP[OPT['fine']] + ['end', 'DUMP']:
        return []
    if OPT['diag'] == name:
        return [I('s_memrealtime s[4:5]')]
    return [I(';stamp ' + name)] if PROF else []


def resolve_stamps(prog):
    out = []
    for ins in prog:
        if not ins.text.startswith(';stamp '):
            out.append(ins)
            continue
        name = ins.text.split()[1]
        n = len(stamp_names)
        if n:
            out.append(I(f'v_accvgpr_write_b32 a{STAMP_A[n - 1]}, s{4 + 2 * ((n - 1) & 1)}'))
        if name == 'DUMP':
            out += [I(f'buffer_store_dword a{STAMP_A[k]}, v{t1}, {srd(sWS)}, 0 offen offset:{4 * k}') for k in range(n)]
            continue
        assert n < 29
        stamp_names.append(name)
        out.append(I(f's_mem{"real" if PROF == 2 else ""}time s[{4 + 2 * (n & 1)}:{5 + 2 * (n & 1)}]'))
    return out


def L(text):
    return [I(t.strip()) for t in text.strip().split('\n') if t.strip()]


def mfma(d, a, b, c):
    return I(f'v_mfma_f32_32x32x16_bf16 {d}, {a}, {b}, {c}')


def mksrd(b, lo, size):
    return f's_mov_b32 s{b}, s{lo}\ns_mov_b32 s{b + 1}, s{lo + 1}\ns_mov_b32 s{b + 2}, {size}\ns_mov_b32 s{b + 3}, 0x00020000\n'


slot_shared = {}


def dma_round(name, slot, voffs, rsrc, soff_code, shared):
    out = [I(f's_add_u32 m0, s{sWOFF}, {slot * SLOT}')] + L(soff_code)
    for g in range(4):
        nt = int(name[1:]) < OPT['ntx'] if name[0] == 'x' else OPT['ntg'] if name[0] == 'G' else OPT['ntw']
        out.append(I(f'buffer_load_dwordx4 v{voffs[g]}, {srd(rsrc)}, s{sT0} offen offset:{1024 * g} {"nt " if nt else ""}lds',
                     tok=name if g == 3 else None,
                     lds_w=(slot, slot_shared.get(slot, False)) if g == 0 else None, note=name,
                     fills=(slot, shared) if g == 3 else None))
    slot_shared[slot] = shared
    return out


XSLOT = lambda s: (s & 3) + (5 if OPT['early'] and s < 4 else 1)


def rx(s, slot):
    return dma_round(f'x{s}', XSLOT(s), XG, sX,
                     f's_add_u32 s{sT0}, s{sROT}, {s}\ns_and_b32 s{sT0}, s{sT0}, 7\n'
                     f's_lshl_b32 s{sT0}, s{sT0}, 7\ns_add_u32 s{sT0}, s{sT0}, s{sXB}', False)


G_SLOT = [5, 6, 7, 8, 0, 1, 2, 3, 4, 5, 6, 7]
W_SLOT = dict(WA0=8, CR0=0, CI0=1, WA1=2, WA2=3, WA3=4, CR1=5, CI1=6, WB0=7, WB1=8, WB2=2)


def rg(g):
    if g < 4:
        return dma_round(f'G{g}', G_SLOT[g], PG, sB,
                         f's_lshl_b32 s{sT0}, s{sKC[g]}, 7\ns_add_u32 s{sT0}, s{sT0}, s{sBB}', True)
    base = sW1A if g < 8 else sW1B
    return dma_round(f'G{g}', G_SLOT[g], QG, sW1,
                     f's_mul_i32 s{sT0}, s{sKC[g & 3]}, {64 * 3584}\ns_add_u32 s{sT0}, s{sT0}, s{base}', True)


def rw(name):
    e = int(name[2])
    if name[0] == 'C':
        code = f's_xor_b32 s{sT0}, s{sCB}, {128 * e}'
        return dma_round(name, W_SLOT[name], PG, sCim if name[1] == 'I' else sCre, code, True)
    if name[1] == 'A':
        code = f's_xor_b32 s{sT0}, s{sJJ}, {e}\ns_lshl_b32 s{sT0}, s{sT0}, 17\ns_add_u32 s{sT0}, s{sT0}, s{sW2B}'
    else:
        code = f's_lshl_b32 s{sT0}, s{sPB[e]}, 16\ns_add_u32 s{sT0}, s{sT0}, s{sW2B}'
        if e == 0:
            code += f'\ns_xor_b32 s{sT0}, s{sT0}, s{sSEL[0]}'
    return dma_round(name, W_SLOT[name], XG, sW2, code, True)


STAGE = {n: 160 + 16 * k for k, n in enumerate(x for x in str(OPT['stg']).split('.') if x != '0')}
VST = t0


def stage_load(name):
    keep = dict(slot_shared)
    out = []
    for i_ in rw(name)[1:]:
        if i_.kind == 'vm':
            n = sum(j.kind == 'vm' for j in out)
            i_ = I(i_.text.replace('dwordx4 ', f'dwordx4 {ar(STAGE[name] + 4 * n, 4)}, ').replace(' lds', ''))
            i_.dma = True
        out.append(i_)
    slot_shared.clear()
    slot_shared.update(keep)
    return out


def stage_write(name):
    slot = W_SLOT[name]
    out = [I(f's_add_u32 s{sT0}, s{sWOFF}, {slot * SLOT}'), I(f'v_add_u32 v{VST}, s{sT0}, v{VL16}')]
    out += [I(f'ds_write_b128 v{VST}, {ar(STAGE[name] + 4 * g_, 4)} offset:{1024 * g_}', tok=name if g_ == 3 else None,
              lds_w=(slot, True) if g_ == 0 else None, note=name, fills=(slot, True) if g_ == 3 else None)
            for g_ in range(4)]
    return out


def rw2(name):
    if name not in STAGE:
        return rw(name)
    out = stage_write(name)
    for i_ in out[2:]:
        i_.dma = True
    return out


def pins(*parts):
    pin = {}
    for gap, ins in parts:
        head = [i_ for i_ in ins if not getattr(i_, 'dma', False)]
        pin.setdefault(gap, []).extend(head)
        for n, i_ in enumerate(ins[len(head):]):
            pin.setdefault(gap + n * OPT['dsp'], []).append(i_)
    return pin


BAR = lambda *toks: ([Wait(*toks)] if toks else []) + [I('s_barrier')]
PARK = {n: 247 if k == 16 else 48 + k for k, n in enumerate('pub seg lba0 lba1 lbe0 lbe1 fla flp lbw lbr hw hw2 hr hr2 f3o fp0 fp1'.split())}
PARK['pfa'] = 249


def park(**regs):
    return [I(f'v_accvgpr_write_b32 a{PARK[n]}, v{r}') for n, r in regs.items()]


def fetch(**regs):
    return [I(f'v_accvgpr_read_b32 v{r}, a{PARK[n]}') for n, r in regs.items()]


retry_blocks = []


def poll(name, loads, check):
    retry_blocks.append((name, loads, check))
    return L(check) + [I(f's_cbranch_vccnz L_retry_{name}'), I(f'L_back_{name}:')]


def cexp(dr, di, scale, zr, za):
    return L(f"""v_mul_f32 v{dr}, {scale}, v{zr}
        v_mul_f32 v{di}, {scale}, v{za}
        v_exp_f32 v{dr}, v{dr}
        v_fract_f32 v{di}, v{di}
        v_cos_f32 v{t3}, v{di}
        v_sin_f32 v{di}, v{di}
        v_mul_f32 v{di}, v{dr}, v{di}
        v_mul_f32 v{dr}, v{dr}, v{t3}""")


def cmul_add(dr, di, ar_, ai, br, bi, cr=None, ci=None):
    if cr is None:
        head = f'v_mul_f32 v{dr}, v{ar_}, v{br}\nv_mul_f32 v{di}, v{ar_}, v{bi}'
    else:
        head = f'v_fma_f32 v{dr}, v{ar_}, v{br}, v{cr}\nv_fma_f32 v{di}, v{ar_}, v{bi}, v{ci}'
    return L(head + f'\nv_fma_f32 v{dr}, -v{ai}, v{bi}, v{dr}\nv_fmac_f32 v{di}, v{ai}, v{br}')


def mish(b, voff=VL16, quarters=range(4)):
    A = FACC[b & 1]
    out = []
    for q in quarters:
        rs = range(4 * q, 4 * q + 4)
        out.append(I(f'ds_read_b128 {vr(TT + 4 * q, 4)}, v{t2} offset:{T_B1 - TB + 128 * b + 16 * q}', hoist=True))
        out += [I(f'v_fmac_f32 v{TT + r}, v{A + r}, v{RL2}') for r in rs]
        out += [I(f'v_exp_f32 v{A + r}, v{TT + r}') for r in rs]
        out += [I(f'v_add_f32 v{A + r}, 1.0, v{A + r}') for r in rs]
        out += [I(f'v_fma_f32 v{A + r}, v{A + r}, v{A + r}, 1.0') for r in rs]
        out += [I(f'v_rcp_f32 v{A + r}, v{A + r}') for r in rs]
        out += [I(f'v_fmamk_f32 v{A + r}, v{A + r}, {M2LN2:#x}, v{VLN2}') for r in rs]
        out += [I(f'v_mul_f32 v{TT + r}, v{TT + r}, v{A + r}') for r in rs]
        out += [I(f'v_cvt_pk_bf16_f32 v{A + p}, v{TT + 2 * p}, v{TT + 2 * p + 1}') for p in (2 * q, 2 * q + 1)]
        if q & 1:
            fr = q >> 1
            out.append(I(f'buffer_store_dwordx4 {vr(A + 4 * fr, 4)}, v{voff}, {srd(sWS)}, s{sFST[b]} offen '
                         f'offset:{1024 * fr} sc1', tok=f'stF{b}' if fr else None))
            if b < 3:
                out += [I(f'v_accvgpr_write_b32 a{aOF + 8 * b + 4 * fr + e}, v{A + 4 * fr + e}') for e in range(4)]
    return out


def mish_pk(b, voff, halves=range(2)):
    A = FACC[b & 1]
    out = []
    for q in range(2 * len(halves)):
        out.append(I(f'ds_read_b128 {vr(TT + 4 * q, 4)}, v{t2} offset:{T_B1 - TB + 128 * b + 16 * q}', hoist=True))
    for h in halves:
        ps = range(8 * h, 8 * h + 8, 2)
        rs = range(8 * h, 8 * h + 8)
        out += [I(f'v_pk_fma_f32 {vr(TT + p, 2)}, {vr(A + p, 2)}, {vr(RL2, 2)}, {vr(TT + p, 2)} op_sel_hi:[1,0,1]') for p in ps]
        out += [I(f'v_exp_f32 v{A + r}, v{TT + r}') for r in rs]
        out += [I(f'v_pk_add_f32 {vr(A + p, 2)}, {vr(A + p, 2)}, 1.0 op_sel_hi:[1,0]') for p in ps]
        out += [I(f'v_pk_fma_f32 {vr(A + p, 2)}, {vr(A + p, 2)}, {vr(A + p, 2)}, 1.0 op_sel_hi:[1,1,0]') for p in ps]
        out += [I(f'v_rcp_f32 v{A + r}, v{A + r}') for r in rs]
        out += [I(f'v_pk_fma_f32 {vr(A + p, 2)}, {vr(A + p, 2)}, s[{sKC[0]}:{sKC[1]}], {vr(RL2, 2)} '
                  f'op_sel:[0,0,1] op_sel_hi:[1,0,1]') for p in ps]
        out += [I(f'v_pk_mul_f32 {vr(TT + p, 2)}, {vr(TT + p, 2)}, {vr(A + p, 2)}') for p in ps]
        out += [I(f'v_cvt_pk_bf16_f32 v{A + p // 2}, v{TT + p}, v{TT + p + 1}') for p in ps]
    out += [I(f'v_permlane16_swap_b32 v{A + e}, v{A + 4 + e}') for e in range(4)]
    for h in range(2):
        out.append(I(f'buffer_store_dwordx4 {vr(A + 4 * h, 4)}, v{voff}, {srd(sWS)}, s{sFST[b]} offen '
                     f'offset:{1024 * h} sc1', tok=f'stF{b}' if h else None))
        if b < 3:
            out += [I(f'v_accvgpr_write_b32 a{aOF + 8 * b + 4 * h + e}, v{A + 4 * h + e}') for e in range(4)]
    return out


def mish_stages(b, h):
    m = mish_pk(b, VL16, range(2))
    body = m[4:]
    body = body[40:] if h else body[:40]
    return dict(rd=m[2 * h:2 * h + 2], A=body[0:4], ex=body[4:12], B=body[12:20], rc=body[20:28], C=body[28:36],
                fin=body[36:])


def cmul_pk(d, a, b, c):
    return L(f"""v_pk_fma_f32 {vr(d, 2)}, {vr(b, 2)}, {vr(a, 2)}, {vr(c, 2)} op_sel_hi:[1,0,1]
        v_pk_fma_f32 {vr(d, 2)}, {vr(b, 2)}, {vr(a, 2)}, {vr(d, 2)} op_sel:[1,1,0] op_sel_hi:[0,1,1] neg_lo:[0,1,0]""")


def staged(items, pin, plan):
    out, lo = [], 0
    for hi, fill_, burst_ in plan:
        out += weave(items[lo:hi + 1], fill_, {g_ - lo: v for g_, v in pin.items() if lo <= g_ <= hi}) + burst_
        lo = hi + 1
    return out


_weave = weave
LEV = [OPT['lev']]


def weave(*a):
    out = _weave(*a)
    return ds_first(level(out, LEV[0], OPT['vmc'])) if LEV[0] else out


P = []
if OPT['map'] == '8x4':
    ids = f"""s_and_b32 s{sKQ}, s2, 3
        s_bfe_u32 s{sJJ}, s2, 0x20003
        s_lshr_b32 s{sI}, s2, 5
        s_bfe_u32 s{sT0}, s2, 0x10002
        s_lshl_b32 s{sROT}, s{sT0}, 1
        s_lshl_b32 s{sT0}, s{sT0}, 3
        s_and_b32 s{sT1}, s{sI}, 1
        s_or_b32 s{sI}, s{sI}, s{sT0}
        s_add_u32 s{sROT}, s{sROT}, s{sT1}
        s_add_u32 s{sROT}, s{sROT}, s{sJJ if OPT['rotm'] else sKQ}
        s_lshl_b32 s{sROT}, s{sROT}, 1
        s_and_b32 s{sROT}, s{sROT}, 7"""
else:
    ids = f"""s_and_b32 s{sKQ}, s2, 1
        s_lshl_b32 s{sKQ}, s{sKQ}, 1
        s_lshr_b32 s{sT0}, s2, 7
        s_or_b32 s{sKQ}, s{sKQ}, s{sT0}
        s_bfe_u32 s{sJJ}, s2, 0x20003
        s_bfe_u32 s{sI}, s2, 0x20005
        s_bfe_u32 s{sT0}, s2, 0x20001
        s_add_u32 s{sROT}, s{sT0}, s{sKQ}
        s_lshl_b32 s{sT0}, s{sT0}, 2
        s_or_b32 s{sI}, s{sI}, s{sT0}
        s_lshl_b32 s{sROT}, s{sROT}, 1
        {'s_lshr_b32 s%d, s2, 7' % sT0 if OPT['rotm'] else ''}
        {'s_lshl_b32 s%d, s%d, 1' % (sROT, sJJ) if OPT['rotm'] else ''}
        {'s_add_u32 s%d, s%d, s%d' % (sROT, sROT, sT0) if OPT['rotm'] else ''}
        s_and_b32 s{sROT}, s{sROT}, 7"""
code_pf = f'buffer_load_dword v{t3}, v{FACC[0] if OPT["cpf"] == 2 else t1}, {srd(sTMP)}, s{sFLG if OPT["cpf"] == 2 else sT0} offen'
ws_load = f's_load_dwordx2 s[{sWS}:{sWS + 1}], s[0:1], 120'
more_loads = f"""s_load_dwordx8 s[{pLRE}:{pLRE + 7}], s[0:1], 8
s_load_dwordx4 s[{pLDT}:{pLDT + 3}], s[0:1], 56
s_load_dwordx2 s[{pB1}:{pB1 + 1}], s[0:1], 88
s_load_dwordx2 s[{sW1}:{sW1 + 1}], s[0:1], 80
s_load_dwordx2 s[{sCre}:{sCre + 1}], s[0:1], 40
s_load_dwordx2 s[{sCim}:{sCim + 1}], s[0:1], 48
s_load_dwordx2 s[{sW2}:{sW2 + 1}], s[0:1], 96
s_load_dwordx2 s[{sOUT}:{sOUT + 1}], s[0:1], 104
"""
SUM, SQ = [TT + 8, TT + 9], [TT + 10, TT + 11]
sizes = ((sX, 2097152), (sB, 524288), (sW1, 1835008), (sCre, 524288), (sCim, 524288), (sW2, 1835008),
         (sWS, (WS_PROF + 0x40000) if PROF else WS_SIZE), (sOUT, 4194304))
P += L(f"""
s_cmp_ge_u32 s2, 256
s_cbranch_scc1 L_end
{'s_memtime s[98:99]' if PROF else ''}
{'s_memrealtime s[90:91]' if PROF or OPT['diag'] or OPT['dbg'] else ''}
{'s_load_dwordx2 s[4:5], s[0:1], 112' if OPT['dbg'] else ''}
s_load_dwordx2 s[{sX}:{sX + 1}], s[0:1], 0
{'' if OPT['ka2'] else ws_load}
s_getpc_b64 s[{sTMP}:{sTMP + 1}]
v_lshrrev_b32 v{t0}, 6, v0
v_and_b32 v{vL}, 63, v0
s_and_b32 s{sTMP}, s{sTMP}, 0xffffff80
v_readfirstlane_b32 s{sW}, v{t0}
s_mov_b32 s{sTMP + 2}, L_code_end-{KN}
s_mov_b32 s{sTMP + 3}, 0x00020000
s_lshr_b32 s{sT0}, s2, 3
s_lshl_b32 s{sT0}, s{sT0}, 2
s_add_u32 s{sT0}, s{sT0}, s{sW}
s_lshl_b32 s{sT0}, s{sT0}, 9
v_and_b32 v{t1}, 3, v{vL}
v_lshlrev_b32 v{t1}, 7, v{t1}
{'' if OPT['cpf'] == 2 else code_pf}
{'' if OPT['ka2'] else more_loads}
v_lshrrev_b32 v{t0}, 3, v{vL}
v_lshrrev_b32 v{t1}, 4, v{vL}
v_xor_b32 v{t1}, v{t1}, v{vL}
v_and_b32 v{t1}, 7, v{t1}
v_lshlrev_b32 v{t1}, 4, v{t1}
v_lshl_add_u32 v{PG[0]}, v{t0}, 10, v{t1}
v_lshrrev_b32 v{t2}, 5, v{vL}
v_mul_u32_u24 v{t2}, {12 * 1024}, v{t2}
v_add_u32 v{XG[0]}, v{PG[0]}, v{t2}
v_xor_b32 v{XG[1]}, 64, v{XG[0]}
v_add_u32 v{XG[2]}, {6 * 1024}, v{XG[0]}
v_add_u32 v{XG[3]}, {9 * 1024}, v{XG[1]}
v_add_u32 v{XG[1]}, {3 * 1024}, v{XG[1]}
s_lshl_b32 s{sWOFF}, s{sW}, 12
{ids}
s_lshl_b32 s{sXB}, s{sI}, 17
s_lshl_b32 s{sT0}, s{sW}, 15
s_add_u32 s{sXB}, s{sXB}, s{sT0}
""" + ''.join(f's_mov_b32 s{b + 2}, {n}\ns_mov_b32 s{b + 3}, 0x00020000\n' for b, n in sizes[:1 if OPT['lean'] else 8]) + f"""
s_waitcnt lgkmcnt(0)
{'v_accvgpr_write_b32 a254, s98' if PROF else ''}
{'v_accvgpr_write_b32 a255, s90' if PROF else ''}
{'s_mov_b32 s23, 0' if PROF or OPT['dbg'] else ''}
{'s_mov_b32 s3, s90' if OPT['dbg'] else ''}
{'s_mov_b32 s23, s90' if OPT['diag'] else ''}
""")
P += stamp('ka') if OPT['diag'] else []
P += rx(0, 0) + (L(ws_load + '\n' + more_loads) if OPT['ka2'] else []) + rx(1, 1)
if OPT['lean']:
    P += L(''.join(f's_mov_b32 s{b + 2}, {n}\ns_mov_b32 s{b + 3}, 0x00020000\n' for b, n in sizes[1:]))
P += L(f"""
v_and_b32 v{t0}, 31, v{vL}
s_lshl_b32 s{sJ}, s{sKQ}, 2
s_or_b32 s{sJ}, s{sJ}, s{sJJ}
v_lshrrev_b32 v{t1}, 5, v{vL}
v_bfe_u32 v{t2}, v{vL}, 1, 3
v_xor_b32 v{t1}, v{t1}, v{t2}
v_lshlrev_b32 v{t1}, 4, v{t1}
v_lshl_add_u32 v{AS[0]}, v{t0}, 7, v{t1}
v_xor_b32 v{AS[1]}, 32, v{AS[0]}
v_xor_b32 v{AS[2]}, 64, v{AS[0]}
v_xor_b32 v{AS[3]}, 0x60, v{AS[0]}
s_add_u32 s{sT0}, s{sWOFF}, {XSLOT(0) * SLOT}
v_add_u32 v{ASc[0]}, s{sT0}, v{AS[0]}
v_add_u32 v{ASc[1]}, s{sT0}, v{AS[1]}
v_add_u32 v{ASc[2]}, s{sT0}, v{AS[2]}
v_add_u32 v{ASc[3]}, s{sT0}, v{AS[3]}
s_mov_b32 s{sONES}, 0x3f803f80
v_mov_b32 v{SUM[0]}, 0
v_mov_b32 v{SUM[1]}, 0
v_mov_b32 v{SQ[0]}, 0
v_mov_b32 v{SQ[1]}, 0
s_lshl_b32 s{sT0}, s{sW}, 9
s_add_u32 s{sT0}, s{sT0}, {T_SEG}
v_lshl_add_u32 v{t0}, v{vL}, 3, s{sT0}""")
P.append(I(f'ds_write_b64 v{t0}, {vr(SUM[0], 2)}', tok='zero'))
P += L(f's_waitcnt lgkmcnt(0)\ns_load_dword s{sE2}, s[{sWS}:{sWS + 1}], {WS_EP}')
mid = L(f"""
v_and_b32 v{t0}, 31, v{vL}
s_lshl_b32 s{sT1}, s{sJ}, 6
v_lshl_add_u32 v{NLI}, v{t0}, 1, s{sT1}
s_and_b32 s{sT3}, s{sW}, 1
s_mul_i32 s{sT2}, s{sKQ}, 7
s_lshl_b32 s{sW1A}, s{sJJ}, 1
s_add_u32 s{sPB[0]}, s{sW1A}, 1
s_cmp_eq_u32 s{sJJ}, 3
s_cselect_b32 s{sPB[0]}, 3, s{sPB[0]}
s_cselect_b32 s{sFSEL}, 64, 0
s_add_u32 s{sW1A}, s{sW1A}, s{sT2}
s_add_u32 s{sW1B}, s{sPB[0]}, s{sT2}
s_lshl_b32 s{sW1A}, s{sW1A}, 7
s_lshl_b32 s{sW1B}, s{sW1B}, 7
s_cmp_ge_u32 s{sW}, 2
s_cselect_b32 s{sT2}, s{sW1B}, s{sW1A}
s_cselect_b32 s{sT1}, s{sFSEL}, 0
s_add_u32 s{sT2}, s{sT2}, s{sT1}
s_lshl_b32 s{sT1}, s{sT3}, 6
s_xor_b32 s{sT2}, s{sT2}, s{sT1}
v_and_b32 v{t1}, 3, v{vL}
v_bfe_u32 v{t2}, v{vL}, 2, 2
v_lshl_add_u32 v{t1}, v{t2}, 3, v{t1}
v_bfe_u32 v{t2}, v{vL}, 4, 1
v_lshl_add_u32 v{t1}, v{t2}, 2, v{t1}
v_lshl_add_u32 v{PR}, v{t1}, 1, s{sT2}
s_cmp_eq_u32 s{sT3}, 1
s_cselect_b32 s{sB}, s{pBIM}, s{pBRE}
s_cselect_b32 s{sB + 1}, s{pBIM + 1}, s{pBRE + 1}
s_mul_i32 s{sT3}, s{sT3}, {32 * 3584}
s_add_u32 s{sW1A}, s{sW1A}, s{sT3}
s_add_u32 s{sW1B}, s{sW1B}, s{sT3}
s_lshl_b32 s{sBB}, s{sJ}, 15
s_lshr_b32 s{sT1}, s{sW}, 1
s_add_u32 s{sT1}, s{sT1}, s{sROT}
s_and_b32 s{sKC[0]}, s{sT1}, 7
s_add_u32 s{sT1}, s{sT1}, 2
s_and_b32 s{sKC[1]}, s{sT1}, 7
s_add_u32 s{sT1}, s{sT1}, 2
s_and_b32 s{sKC[2]}, s{sT1}, 7
s_add_u32 s{sT1}, s{sT1}, 2
s_and_b32 s{sKC[3]}, s{sT1}, 7
v_xor_b32 v{PG[1]}, 64, v{PG[0]}
v_add_u32 v{PG[2]}, {14 * 1024}, v{PG[0]}
v_add_u32 v{PG[3]}, {21 * 1024}, v{PG[1]}
v_add_u32 v{PG[1]}, {7 * 1024}, v{PG[1]}
v_and_b32 v{t2}, 1, v{vL}
v_lshlrev_b32 v{t2}, 4, v{t2}
v_mov_b32 v{VNM}, 0x3f80
v_lshlrev_b32 v{t2}, v{t2}, v{VNM}
v_bfe_i32 v{t0}, v{vL}, 1, 1
v_and_b32 v{TT + 1}, v{t0}, v{t2}
v_xor_b32 v{TT}, v{TT + 1}, v{t2}
""")
mid += L(f"""
v_lshrrev_b32 v{t1}, 3, v{vL}
v_mul_u32_u24 v{t1}, 3584, v{t1}
v_bfe_u32 v{t2}, v{vL}, 4, 1
v_lshlrev_b32 v{t2}, 2, v{t2}
v_xor_b32 v{t2}, v{t2}, v{vL}
v_and_b32 v{t2}, 7, v{t2}
v_lshl_add_u32 v{QG[0]}, v{t2}, 4, v{t1}
v_add_u32 v{QG[1]}, {27648}, v{QG[0]}
v_add_u32 v{QG[2]}, {2 * 27648}, v{QG[0]}
v_add_u32 v{QG[3]}, {3 * 27648}, v{QG[0]}
""")
late = L(f"""
s_mul_i32 s{sE2}, s{sE2}, 1664525
s_add_u32 s{sE2}, s{sE2}, 1013904226
s_or_b32 s{sTAG}, s{sE2}, 1
v_bfe_u32 v{t1}, v{vL}, 2, 2
v_lshrrev_b32 v{t2}, 5, v{vL}
v_lshl_add_u32 v{t2}, v{t2}, 3, v{t1}
v_lshlrev_b32 v{FA0}, 7, v{t2}
v_lshrrev_b32 v{t1}, 1, v{t1}
v_lshl_add_u32 v{FA0}, v{t1}, 6, v{FA0}
v_bfe_u32 v{t1}, v{vL}, 4, 1
v_lshl_add_u32 v{FA0}, v{t1}, 5, v{FA0}
v_and_b32 v{t1}, 3, v{vL}
v_lshl_add_u32 v{FA0}, v{t1}, 3, v{FA0}
v_lshlrev_b32 v{VL16}, 4, v{vL}
v_mov_b32 v{VLN2}, {LN2:#x}
s_cmp_eq_u32 s{sPB[0]}, 1
s_cselect_b32 s{sPB[1]}, 3, 1
s_cmp_eq_u32 s{sPB[0]}, 5
s_cselect_b32 s{sPB[2]}, 3, 5
s_lshl_b32 s{sSEL[0]}, s{sFSEL}, 9
s_lshl_b32 s{sAS}, s{sI}, 2
s_add_u32 s{sAS}, s{sAS}, s{sW}
s_lshl_b32 s{sAS}, s{sAS}, 2
s_add_u32 s{sAS}, s{sAS}, s{sKQ}
s_lshl_b32 s{sFLG}, s{sAS}, 11
s_add_u32 s{sFLG}, s{sFLG}, {WS_FL}
s_mul_i32 s{sAS}, s{sAS}, {44 * 1024}
s_add_u32 s{sAS}, s{sAS}, {WS_A}
s_lshl_b32 s{sT2}, s{sJJ}, 13
s_add_u32 s{sFST[0]}, s{sAS}, s{sT2}
s_add_u32 s{sFST[1]}, s{sFST[0]}, 2048
s_lshl_b32 s{sT2}, s{sPB[0]}, 12
s_add_u32 s{sFST[3]}, s{sAS}, s{sT2}
s_lshl_b32 s{sT2}, s{sFSEL}, 5
s_add_u32 s{sFST[2]}, s{sFST[3]}, s{sT2}
s_add_u32 s{sFST[3]}, s{sFST[3]}, 2048
s_lshl_b32 s{sT2}, s{sJJ}, 12
s_add_u32 s{sSST}, s{sAS}, s{sT2}
s_add_u32 s{sSST}, s{sSST}, {28 * 1024}
s_xor_b32 s{sT2}, s{sW}, s{sKQ}
s_lshl_b32 s{sT2}, s{sT2}, 15
s_lshl_b32 s{sCB}, s{sJJ}, 17
s_add_u32 s{sCB}, s{sCB}, s{sT2}
s_lshl_b32 s{sT2}, s{sKQ}, 8
s_add_u32 s{sCB}, s{sCB}, s{sT2}
s_lshr_b32 s{sT2}, s{sJJ}, 1
s_lshl_b32 s{sT2}, s{sT2}, 7
s_add_u32 s{sCB}, s{sCB}, s{sT2}
s_mul_i32 s{sW2B}, s{sKQ}, {448 * 1024}
s_lshr_b32 s{sT2}, s{sW}, 1
s_lshl_b32 s{sT2}, s{sT2}, 15
s_add_u32 s{sW2B}, s{sW2B}, s{sT2}
s_lshl_b32 s{sT2}, s{sJJ}, 8
s_add_u32 s{sW2B}, s{sW2B}, s{sT2}
s_lshr_b32 s{sT2}, s{sKQ}, 1
s_xor_b32 s{sT2}, s{sT2}, s{sW}
s_and_b32 s{sT2}, s{sT2}, 1
s_lshl_b32 s{sT2}, s{sT2}, 7
s_add_u32 s{sW2B}, s{sW2B}, s{sT2}
s_lshl_b32 s{sT2}, s{sI}, 4
s_add_u32 s{sT2}, s{sT2}, s{sJJ}
s_lshl_b32 s{sT2}, s{sT2}, 2
s_add_u32 s{sT2}, s{sT2}, s{sW}""")
for b in range(4):
    late += L(f"""s_xor_b32 s{sT3}, s{sKQ}, {b}
        s_lshl_b32 s{sT3}, s{sT3}, 4
        s_add_u32 s{sT3}, s{sT3}, s{sT2}
        s_mul_i32 s{sT3}, s{sT3}, {3 * XC_BLK}
        s_add_u32 s{sXO[b]}, s{sT3}, {WS_XC + (b - 1) * XC_BLK if b else WS_XC}""")
late += L(f"""s_add_u32 s{sSEL[2]}, s{sXO[0]}, {XC_BLK}
    s_add_u32 s{sSEL[3]}, s{sXO[0]}, {2 * XC_BLK}
    s_and_b32 s{sT3}, s{sJJ}, 1
    s_sub_u32 s{sSEL[1]}, 6, s{sT3}""")
pf = []
if OPT['pf'] == 2:
    late += L(f"""
s_and_b32 s{sT1}, s{sI}, 7
s_lshl_b32 s{sT2}, s{sT1}, 1
s_add_u32 s{sT2}, s{sT2}, s{sW}
s_mul_i32 s{sT2}, s{sT2}, 28
s_mul_i32 s{sT3}, s{sKQ}, 448
s_add_u32 s{sT2}, s{sT2}, s{sT3}
s_lshl_b32 s{sT2}, s{sT2}, 2
s_add_u32 s{sT2}, s{sT2}, s{sJJ}
s_lshl_b32 s{sT3}, s{sJJ}, 3
s_add_u32 s{sT3}, s{sT3}, s{sT1}
s_lshl_b32 s{sT3}, s{sT3}, 6
s_add_u32 s{sT3}, s{sT3}, s{sKQ}
s_cmp_lt_u32 s{sW}, 2
s_cselect_b32 s{sT2}, s{sT2}, s{sT3}
s_cselect_b32 s{sT3}, 56, 32
s_cselect_b32 s{sTMP}, s{sW2}, s{sCre}
s_cselect_b32 s{sTMP + 1}, s{sW2 + 1}, s{sCre + 1}
s_cselect_b32 s{sTMP + 2}, s{sW2 + 2}, s{sCre + 2}
s_cmp_eq_u32 s{sW}, 3
s_cselect_b32 s{sTMP}, s{sCim}, s{sTMP}
s_cselect_b32 s{sTMP + 1}, s{sCim + 1}, s{sTMP + 1}""")
elif OPT['pf']:
    late += L(f"""
s_mul_i32 s{sT2}, s{sKQ}, 448
s_mul_i32 s{sT3}, s{sI}, 28
s_add_u32 s{sT2}, s{sT2}, s{sT3}
s_lshl_b32 s{sT2}, s{sT2}, 2
s_add_u32 s{sT2}, s{sT2}, s{sJJ}
s_lshl_b32 s{sT3}, s{sJJ}, 4
s_add_u32 s{sT3}, s{sT3}, s{sI}
s_lshl_b32 s{sT3}, s{sT3}, 5
s_add_u32 s{sT3}, s{sT3}, s{sKQ}
s_cmp_eq_u32 s{sW}, 0
s_cselect_b32 s{sT2}, s{sT2}, s{sT3}
s_cselect_b32 s{sT3}, 56, 16
s_cselect_b32 s{sTMP}, s{sW2}, s{sCre}
s_cselect_b32 s{sTMP + 1}, s{sW2 + 1}, s{sCre + 1}
s_cselect_b32 s{sTMP + 2}, s{sW2 + 2}, s{sCre + 2}
s_cmp_eq_u32 s{sW}, 2
s_cselect_b32 s{sTMP}, s{sCim}, s{sTMP}
s_cselect_b32 s{sTMP + 1}, s{sCim + 1}, s{sTMP + 1}
s_cmp_eq_u32 s{sW}, 3
s_cselect_b32 s{sT3}, 0, s{sT3}""")
if OPT['pf']:
    late += L(f"""s_lshl_b32 s{sT2}, s{sT2}, 8
v_lshrrev_b32 v{t0}, 1, v{vL}
v_and_b32 v{t1}, 1, v{vL}
v_lshlrev_b32 v{t1}, 7, v{t1}
v_lshl_add_u32 v{t0}, v{t0}, 10, v{t1}
v_add_u32 v{t0}, s{sT2}, v{t0}
v_mov_b32 v{t1}, {OOB:#x}
v_cmp_gt_u32 vcc, s{sT3}, v{vL}
v_cndmask_b32 v{PI}, v{t1}, v{t0}, vcc""")
    pf = L(f'buffer_load_dword a248, v{PI}, {srd(sTMP)}, 0 offen')

Z = TT + 2
consts = L(f"""
v_lshlrev_b32 v{NLI}, 16, v{NLI}
v_mul_f32 v{NLI}, {LOG2E:#x}, v{NLI}
v_exp_f32 v{NLI}, v{NLI}
v_lshlrev_b32 v{Z + 2}, 16, v{LR}
v_lshlrev_b32 v{Z + 3}, 16, v{LI}
v_cvt_pk_bf16_f32 v{NLI}, v{NLI}, v{NLI}
v_lshlrev_b32 v{NLI}, 16, v{NLI}
v_mul_f32 v{Z}, v{NLI}, v{Z + 2}
v_mul_f32 v{Z + 1}, v{NLI}, v{Z + 3}
v_mul_f32 v{Z}, {LOG2E:#x}, v{Z}
v_mul_f32 v{Z + 1}, 0xbe22f983, v{Z + 1}""")
consts += cexp(LR, LI, '1.0', Z, Z + 1)
consts += L(f"""
v_mul_f32 v{Z + 4}, v{Z + 2}, v{Z + 2}
v_fmac_f32 v{Z + 4}, v{Z + 3}, v{Z + 3}
v_rcp_f32 v{Z + 4}, v{Z + 4}
v_add_f32 v{Z + 5}, -1.0, v{LR}
v_sub_f32 v{NLI}, 0, v{LI}
v_add_f32 v{Z + 4}, v{Z + 4}, v{Z + 4}
v_mul_f32 v{CR}, v{Z + 5}, v{Z + 2}
v_fmac_f32 v{CR}, v{NLI}, v{Z + 3}
v_mul_f32 v{NCI}, v{Z + 5}, v{Z + 3}
v_fmac_f32 v{NCI}, v{LI}, v{Z + 2}
v_mul_f32 v{CR}, v{CR}, v{Z + 4}
v_mul_f32 v{NCI}, v{NCI}, v{Z + 4}
v_sub_f32 v{NCR}, 0, v{CR}""")
consts += cexp(L16R, L16I, '0x41800000', Z, Z + 1)
consts += cexp(L128R, L128I, '0x43000000', Z, Z + 1)
consts += L(f"""
v_lshrrev_b32 v{Z + 6}, 5, v{vL}
s_lshl_b32 s{sT2}, s{sW}, 1
v_add_u32 v{Z + 6}, s{sT2}, v{Z + 6}
v_cvt_f32_u32 v{Z + 6}, v{Z + 6}
v_mul_f32 v{Z + 7}, 0x41800000, v{Z + 6}
v_sub_f32 v{Z + 6}, 0x40e00000, v{Z + 6}
v_mul_f32 v{Z + 6}, 0x43800000, v{Z + 6}""")
consts += cexp(LSR, LSI, f'v{Z + 7}', Z, Z + 1)
consts += cexp(WR, WI, f'v{Z + 6}', Z, Z + 1)
consts += L(f"""v_lshlrev_b32 v{PR}, 16, v{PR}
v_mul_f32 v{PR}, {LOG2E:#x}, v{PR}
v_and_b32 v{t1}, 31, v{vL}
s_lshl_b32 s{sT1}, s{sW}, 7
s_add_u32 s{sT1}, s{sT1}, {T_B1}
v_lshl_add_u32 v{t1}, v{t1}, 2, s{sT1}
""") + [I(f'ds_write_b32 v{t1}, v{PR}', tok='b1w')]
later = []
Y = SRE
later += L(f"""v_and_b32 v{Y}, 31, v{vL}
    v_lshlrev_b32 v{Y + 1}, 3, v{Y}
    v_add_u32 v{Y + 1}, {T_LB}, v{Y + 1}
    v_lshrrev_b32 v{t0}, 5, v{vL}
    s_lshl_b32 s{sT2}, s{sW}, 11
    s_add_u32 s{sT2}, s{sT2}, {T_H}
    v_lshl_add_u32 v{Y}, v{Y}, 6, s{sT2}
    v_bfe_u32 v{Y + 2}, v{vL}, 1, 2
    v_lshlrev_b32 v{Y + 3}, 1, v{t0}
    v_xor_b32 v{Y + 2}, v{Y + 2}, v{Y + 3}
    v_bfe_u32 v{Y + 3}, v{vL}, 3, 1
    v_xor_b32 v{Y + 2}, v{Y + 2}, v{Y + 3}
    v_lshl_add_u32 v{Y}, v{Y + 2}, 4, v{Y}
    v_xor_b32 v{Y + 3}, 16, v{Y}
    v_bfe_u32 v{Y + 6}, v{vL}, 2, 2
    v_lshrrev_b32 v{t1}, 4, v{vL}
    v_lshl_add_u32 v{Y + 2}, v{t1}, 3, v{Y + 6}
    v_lshl_add_u32 v{Y + 2}, v{Y + 2}, 6, s{sT2}
    v_and_b32 v{t1}, 1, v{vL}
    v_lshl_add_u32 v{Y + 2}, v{t1}, 5, v{Y + 2}
    v_lshrrev_b32 v{t1}, 1, v{vL}
    v_xor_b32 v{t1}, v{t1}, v{vL}
    v_and_b32 v{t1}, 8, v{t1}
    v_lshl_add_u32 v{Y + 2}, v{t1}, 1, v{Y + 2}
    v_bfe_u32 v{t1}, v{vL}, 1, 1
    v_lshl_add_u32 v{Y + 2}, v{t1}, 3, v{Y + 2}
    v_bfe_u32 v{t1}, v{vL}, 4, 1
    v_lshl_add_u32 v{Y + 5}, v{t0}, 2, v{Y + 6}
    v_lshl_add_u32 v{Y + 5}, v{t1}, 4, v{Y + 5}
    v_lshlrev_b32 v{Y + 5}, 7, v{Y + 5}
    s_and_b32 s{sT2}, s{sKQ}, 1
    v_xor_b32 v{t1}, s{sT2}, v{t1}
    v_lshl_add_u32 v{Y + 5}, v{t1}, 6, v{Y + 5}
    v_bfe_u32 v{t1}, v{vL}, 3, 1
    v_lshl_add_u32 v{Y + 5}, v{t1}, 5, v{Y + 5}
    v_and_b32 v{t1}, 3, v{vL}
    v_lshl_add_u32 v{Y + 5}, v{t1}, 3, v{Y + 5}
    v_and_b32 v{Y + 6}, 15, v{vL}
    v_lshrrev_b32 v{t1}, 4, v{vL}
    v_bfe_u32 v{Y + 4}, v{vL}, 1, 3
    v_xor_b32 v{t1}, v{t1}, v{Y + 4}
    v_lshlrev_b32 v{t1}, 4, v{t1}
    v_lshl_add_u32 v{Y + 6}, v{Y + 6}, 7, v{t1}
    s_and_b32 s{sT2}, s{sJJ}, 1
    s_lshl_b32 s{sT2}, s{sT2}, 6
    v_xor_b32 v{Y + 6}, s{sT2}, v{Y + 6}
    s_lshl_b32 s{sT2}, s{sW}, 9
    s_add_u32 s{sT1}, s{sT2}, {T_SEG}
    s_add_u32 s{sT2}, s{sT2}, {T_LB}
    v_lshl_add_u32 v{Y + 7}, v{vL}, 3, s{sT1}
    v_lshl_add_u32 v{Y + 8}, v{vL}, 3, s{sT2}""")
later += park(hw=Y, lbr=Y + 1, hr=Y + 2, hw2=Y + 3, fp0=Y + 5, fp1=Y + 6, seg=Y + 7, lbw=Y + 8)
park2 = []
Y = FACC[0]
park2 += L(f"""s_lshl_b32 s{sT2}, s{sJ}, 4
    s_add_u32 s{sT2}, s{sT2}, s{sI}
    s_lshl_b32 s{sT2}, s{sT2}, 9
    s_add_u32 s{sT2}, s{sT2}, {WS_AG - 512}
    s_cmp_eq_u32 s{sW}, 3
    s_cselect_b32 s{sT2}, s{sT2}, {OOB:#x}
    v_mov_b32 v{Y + 8}, {OOB:#x}
    v_cmp_gt_u32 vcc, 32, v{vL}
    v_add_u32 v{Y}, s{sT2}, v{VL16}
    v_lshrrev_b32 v{t0}, 5, v{vL}
    v_cndmask_b32 v{Y}, v{Y}, v{Y + 8}, vcc
    s_lshl_b32 s{sT2}, s{sW}, 2
    s_add_u32 s{sT2}, s{sT2}, s{sI}
    s_sub_u32 s{sT2}, s{sT2}, 16
    v_lshl_add_u32 v{t0}, v{t0}, 1, s{sT2}
    s_lshl_b32 s{sT2}, s{sJ}, 13
    s_add_u32 s{sT2}, s{sT2}, {WS_AG}
    v_and_b32 v{Y + 9}, 31, v{vL}
    v_lshl_add_u32 v{t1}, v{Y + 9}, 4, s{sT2}
    v_lshl_add_u32 v{Y + 1}, v{t0}, 9, v{t1}
    v_cmp_gt_i32 vcc, 0, v{t0}
    v_add_u32 v{Y + 2}, 512, v{Y + 1}
    v_mov_b32 v{t1}, s{sTAG}
    v_cndmask_b32 v{Y + 1}, v{Y + 1}, v{Y + 8}, vcc
    v_cndmask_b32 v{Y + 3}, v{t1}, 0, vcc
    v_cmp_gt_i32 vcc, -1, v{t0}
    s_lshl_b32 s{sT2}, s{sJJ}, 9
    s_add_u32 s{sT2}, s{sT2}, s{sFLG}
    v_cndmask_b32 v{Y + 2}, v{Y + 2}, v{Y + 8}, vcc
    v_cndmask_b32 v{Y + 4}, v{t1}, 0, vcc
    v_lshl_add_u32 v{Y + 5}, v{Y + 9}, 2, s{sT2}
    v_and_b32 v{t0}, 3, v{vL}
    v_max_u32 v{t0}, 1, v{t0}
    v_xor_b32 v{t0}, s{sJJ}, v{t0}
    v_lshl_add_u32 v{Y + 6}, v{t0}, 9, s{sFLG}
    s_bitcmp1_b32 s{sJJ}, 0
    s_cselect_b32 s{sT2}, {OOB:#x}, 0
    v_add_u32 v{Y + 7}, s{sT2}, v{VL16}
    """)
park2 += park(pfa=PI)
park2 += park(pub=Y, lba0=Y + 1, lba1=Y + 2, lbe0=Y + 3, lbe1=Y + 4, fla=Y + 5, flp=Y + 6, f3o=Y + 7)
params = L(f"""global_load_ushort v{LR}, v{NLI}, s[{pLRE}:{pLRE + 1}]
    global_load_ushort v{LI}, v{NLI}, s[{pLIM}:{pLIM + 1}]
    global_load_ushort v{NLI}, v{NLI}, s[{pLDT}:{pLDT + 1}]
    global_load_ushort v{PR}, v{PR}, s[{pB1}:{pB1 + 1}]""")
XO_START = max(n for n, i_ in enumerate(late) if i_.text == f's_lshl_b32 s{sT2}, s{sI}, 4')
late_b = []
if OPT['lb2s']:
    late, late_b = late[:XO_START], late[XO_START:]
    park2 = [i_ for i_ in park2 if f'a{PARK["pfa"]},' not in i_.text]
if OPT['lb2s'] == 2:
    late_b, park2 = park2 + late_b, []
nl = len(late) * OPT['lateln'] // 100
while nl < len(late) and late[nl - 1].mn.startswith(('s_cmp', 'v_cmp', 's_cselect')) or (nl < len(late) and late[nl].mn.startswith('v_cndmask')):
    nl += 1
if nl >= len(late):
    later, late, park2 = later + late + park2, [], []
else:
    later, late = later + late[:nl], late[nl:]
zero_xe = [I(f'v_accvgpr_write_b32 a{aXE + r}, 0') for r in range(17)]
XA, sSTAR = FACC[1], sXO[3]
if OPT['xlds']:
    P += zero_xe + L(f"""s_lshl_b32 s{sSTAR}, s{sJJ}, 1
        s_lshr_b32 s{sT1}, s{sKQ}, 1
        s_add_u32 s{sSTAR}, s{sSTAR}, s{sT1}
        s_sub_u32 s{sSTAR}, s{sSTAR}, s{sROT}
        s_and_b32 s{sSTAR}, s{sSTAR}, 7
        s_and_b32 s{sT1}, s{sKQ}, 1
        v_lshrrev_b32 v{t0}, 5, v{vL}
        v_xor_b32 v{t1}, s{sT1}, v{t0}
        v_bfe_u32 v{t2}, v{vL}, 3, 2
        v_lshl_add_u32 v{t1}, v{t1}, 2, v{t2}
        v_lshlrev_b32 v{t1}, 4, v{t1}
        v_lshl_add_u32 v{t1}, v{t0}, 10, v{t1}
        v_and_b32 v{t2}, 7, v{vL}
        v_lshl_add_u32 v{t1}, v{t2}, 1, v{t1}
        s_add_u32 s{sT1}, s{sWOFF}, {SLOT}
        v_add_u32 v{XA}, s{sT1}, v{t1}""") + [I(f'v_xor_b32 v{XA + v}, {16 * v}, v{XA}') for v in (1, 2, 3)]
    zero_xe = []
mov = L(f"""v_lshrrev_b32 v{t0}, 3, v{vL}
v_bfe_u32 v{t1}, v{vL}, 4, 1
v_lshlrev_b32 v{t1}, 1, v{t1}
v_xor_b32 v{t1}, v{t1}, v{vL}
v_and_b32 v{t1}, 7, v{t1}
v_lshlrev_b32 v{t1}, 4, v{t1}
v_lshl_add_u32 v{XG[0]}, v{t0}, 10, v{t1}
v_add_u32 v{XG[1]}, {7 * 1024}, v{XG[0]}
v_xor_b32 v{XG[2]}, 64, v{XG[0]}
v_add_u32 v{XG[3]}, {21 * 1024}, v{XG[2]}
v_add_u32 v{XG[2]}, {14 * 1024}, v{XG[2]}
""")
sAO = dict(A={1: 8, 2: 9, 3: 10}, H={1: 11, 2: 12, 3: 13}, B={1: 14, 2: 15})
for e in (1, 2, 3):
    mov += L(f"""s_xor_b32 s{sT2}, s{sJJ}, {e}
        s_lshl_b32 s{sT2}, s{sT2}, 12
        s_add_u32 s{sAO['H'][e]}, s{sT2}, s{sAS}
        s_add_u32 s{sAO['A'][e]}, s{sAO['H'][e]}, s{sT2}
        s_add_u32 s{sAO['H'][e]}, s{sAO['H'][e]}, {28 * 1024}""")
for e in (1, 2):
    mov += L(f's_lshl_b32 s{sT2}, s{sPB[e]}, 12\ns_add_u32 s{sAO["B"][e]}, s{sT2}, s{sAS}')
N_FIXED = len(mid + later + zero_xe)
later = mid + later + zero_xe + (mov if OPT['s2l'] else [])
BACK = {1: '0 6 14 24 38 56 78', 2: '0 12 22 30 42 58 78', 3: '0 21 23 30 42 58 78', 4: '0 3 8 16 30 52 76', 5: '0 5 12 22 36 54 74', 6: '0 8 18 30 44 62 82'}
cuts = [0]
for n in range(1, 7):
    c = n * len(later) // 7 if not OPT['back'] else len(later) * [int(x) for x in BACK[OPT['back']].split()][n] // 100
    while later[c].mn.startswith(('s_cselect', 'v_cndmask', 's_nop')) or later[c - 1].mn.startswith('v_cmp'):
        c += 1
    cuts.append(c)
cuts.append(len(later))

touch_w = L(f'v_mov_b32 v{PI}, 0') + [
    I(f'buffer_load_dword a{56 + n}, v{PI}, {srd(r)}, 0 offen') for n, r in enumerate((sW1, sCre, sCim, sW2))]
touch_o = L(f"""v_min_u32 v{PR}, {WS_SIZE >> 21}, v{vL}
    v_lshlrev_b32 v{PR}, 21, v{PR}
    v_add_u32 v{PR}, 0x800, v{PR}
    buffer_load_dword a60, v{PR}, {srd(sWS)}, 0 offen
    buffer_load_dword a61, v{PR}, {srd(sOUT)}, 0 offen""")
if OPT['tlb'] in (1, 3, 4):
    P += touch_w
if OPT['tlb'] == 1:
    P += touch_o
P += rx(2, 2) + (rx(3, 3) if OPT['deep'] else []) + [I('s_waitcnt lgkmcnt(0)')]
pos = lambda text: max(n for n, i_ in enumerate(later) if i_.text.startswith(text))
first_g = 5 - OPT['early'] - OPT['deep']
first_p = OPT['parat'] if OPT['parat'] >= 5 else 4 - OPT['early'] - OPT['deep']
assert max(pos(f's_and_b32 s{sKC[3]},'), pos(f'v_add_u32 v{PG[1]},'), pos(f's_lshl_b32 s{sBB},')) < cuts[first_g]
assert pos(f'v_lshl_add_u32 v{PR},') < cuts[first_p]
assert pos(f'v_add_u32 v{QG[3]},') < cuts[min(first_g + 4, 7)]
assert N_FIXED >= cuts[5]
for s in range(8):
    P.append(Wait(f'x{s}'))
    if s == 0:
        P += stamp('x0')
    for q in range(4):
        P.append(I(f'ds_read_b128 {vr(X + 16 * s + 4 * q, 4)}, v{ASc[q]} offset:{(s & 3) * SLOT}', lds_r=XSLOT(s),
                   tok=f'xr{s}' if q == 3 else None))
    if OPT['early']:
        E_ = OPT['early']
        todo = list(range(3, 4 + E_)) if s == 0 else [s + 3 + E_]
        nxt = sum((rx(n, 0) + (params if n == 7 and OPT['parat'] < 5 else []) if n < 8 else rg(n - 8) for n in todo), [])
        nxt += params if s == OPT['parat'] >= 5 else []
        if s == 3:
            nxt += [I(f'v_subrev_u32 v{ASc[q]}, {4 * SLOT}, v{ASc[q]}') for q in range(4)]
    elif OPT['deep']:
        nxt = rg(s - 4) if s >= 4 else [Wait(f'xr{s}')] + rx(s + 4, s) + (params if s == 3 else [])
    else:
        nxt = ([] if OPT['gl'] else rg(s - 5)) if s >= 5 else rx(s + 3, (s + 3) & 3) + (params if s == OPT['parat'] else [])
    piece = later[cuts[s]:cuts[s + 1]] if s < 7 else []
    after = []
    if s >= 5 and OPT['gl']:
        nxt, after = [], (rg(s - 5) if s - 5 < OPT['gl'] else [])
    elif s >= OPT['xl']:
        nxt, after = [], nxt
    P += nxt + piece if OPT['xfirst'] else piece + nxt
    for r in range(16):
        P.append(I(f'v_dot2c_f32_bf16 v{SUM[r & 1]}, s{sONES}, v{X + 16 * s + r}'))
        P.append(I(f'v_dot2c_f32_bf16 v{SQ[r & 1]}, v{X + 16 * s + r}, v{X + 16 * s + r}'))
        if OPT['xlds'] and r == (15 if s < 7 else 3):
            blk = [f'ds_read_u16_d16_hi a{aXE + n}, v{XA + ((n >> 1) & 1) + 2 * ((n >> 2) & 1)} '
                   f'offset:{(s & 3) * SLOT + ((n & 7) + 16 * (n >> 3)) * 128}' for n in range(16)]
            P += [Wait(f'xr{s}'), I(f's_cmp_lg_u32 s{sSTAR}, {s}'), I(f's_cbranch_scc1 L_xe{s}')]
            P.append(I('; epilogue x values\n    ' + '\n    '.join(blk + ['s_waitcnt lgkmcnt(0)'])))
            P.append(I(f'L_xe{s}:'))
    P += after
P += stamp('x7')
P += L(f"""
v_add_f32 v{SUM[0]}, v{SUM[0]}, v{SUM[1]}
v_add_f32 v{SQ[0]}, v{SQ[0]}, v{SQ[1]}
v_mov_b32 v{SUM[1]}, v{SUM[0]}
v_mov_b32 v{SQ[1]}, v{SQ[0]}
v_permlane32_swap_b32 v{SUM[1]}, v{SUM[0]}
v_add_f32 v{SUM[0]}, v{SUM[0]}, v{SUM[1]}
v_mul_f32 v{SUM[0]}, 0xbb000000, v{SUM[0]}
v_cvt_pk_bf16_f32 v{t0}, v{SUM[0]}, v{SUM[0]}
v_lshlrev_b32 v{SIM}, 16, v{t0}
v_lshlrev_b32 v{SIM + 1}, 16, v{t0}
v_lshlrev_b32 v{SIM + 2}, 16, v{t0}
v_lshlrev_b32 v{SIM + 3}, 16, v{t0}
""")

back = lambda o: [I(f'v_cvt_pk_bf16_f32 v{X + 2 * o + e}, v{FACC[0] + 4 * (o & 3) + 2 * e}, '
                    f'v{FACC[0] + 4 * (o & 3) + 2 * e + 1}') for e in range(2)]
items = [[I(f'v_mfma_f32_4x4x4_16b_bf16 {vr(FACC[0] + 4 * (n & 3), 4)}, {vr(TT, 2)}, {vr(X + 2 * n, 2)}, {vr(SIM, 4)}')]
         + (back(n - 2) if n >= 2 else []) for n in range(64)]
fill = L(f"""
v_permlane32_swap_b32 v{SQ[1]}, v{SQ[0]}
v_sub_f32 v{VNM}, 0, v{SIM}
v_add_f32 v{SQ[0]}, v{SQ[0]}, v{SQ[1]}
v_mul_f32 v{SQ[0]}, 0x3b000000, v{SQ[0]}
v_fma_f32 v{SQ[0]}, -v{SUM[0]}, v{SUM[0]}, v{SQ[0]}
v_max_f32 v{SQ[0]}, 0, v{SQ[0]}
v_cvt_pk_bf16_f32 v{t0}, v{SQ[0]}, v{SQ[0]}
v_lshlrev_b32 v{t0}, 16, v{t0}
v_add_f32 v{t0}, 0x3727c5ac, v{t0}
v_cvt_pk_bf16_f32 v{t0}, v{t0}, v{t0}
v_lshlrev_b32 v{t0}, 16, v{t0}
v_sqrt_f32 v{t0}, v{t0}
v_and_b32 v{t1}, 3, v{vL}
v_cvt_pk_bf16_f32 v{t0}, v{t0}, v{t0}
v_lshlrev_b32 v{t0}, 16, v{t0}
v_rcp_f32 v{VRS}, v{t0}
v_bfe_u32 v{t2}, v{vL}, 3, 2
v_lshl_add_u32 v{t1}, v{t2}, 2, v{t1}
v_bfe_u32 v{t2}, v{vL}, 2, 1
v_lshl_add_u32 v{t1}, v{t2}, 4, v{t1}
s_lshl_b32 s{sT1}, s{sW}, 8
s_add_u32 s{sT1}, s{sT1}, {T_STAT}
v_lshl_add_u32 v{t1}, v{t1}, 2, s{sT1}
v_mul_f32 v{RL2}, {LOG2E:#x}, v{VRS}
ds_write_b32 v{t1}, v{VNM}
""")
fill.append(I(f'ds_write_b32 v{t1}, v{VRS} offset:128', tok='tabw'))
LA_S, LA_F = 3, OPT['laf']


def s_addr(slot):
    return [I(f'v_add_u32 v{ASc[q]}, {slot * SLOT}, v{AS[q]}') for q in range(4)]


def s_read(s, ri):
    return I(f'ds_read_b128 {ar(aS + 8 * (s & 3) + 4 * ri, 4)}, v{ASc[s & 3]} offset:{(s >> 3) * SLOT + (2 * ((s >> 2) & 1) + ri) * 4096}',
             lds_r=G_SLOT[s >> 3])


def f_addr(b):
    if b < 2:
        return [I(f'v_xor_b32 v{FAc}, {64 * b}, v{FA0}')]
    if b == 3:
        return [I(f'v_xor_b32 v{FAc}, 64, v{FAc}')]
    return [I(f'v_xor_b32 v{FAc}, s{sFSEL}, v{FA0}'), I(f'v_add_u32 v{FAc}, {G_SLOT[8] * SLOT}, v{FAc}')]


def f_read(b, s):
    out = f_addr(b) if s == 0 else []
    k = (32 * b + s) & 7
    for u in range(2):
        out.append(I(f'ds_read_b64_tr_b16 {ar(aF + 4 * k + 2 * u, 2)}, v{FAc} '
                     f'offset:{(s >> 3) * SLOT + ((s >> 1) & 3) * 4096 + (s & 1) * 2048 + u * 512}',
                     lds_r=G_SLOT[(4 if b < 2 else 8) + (s >> 3)]))
    return out


DSP = OPT['dsp']
OPT['dsp'] = OPT['dspc']
NG = OPT['gl'] or 3 + OPT['early'] + OPT['deep']
pin = pins(*[(OPT['g3'] + 4 * n * OPT['dspc'], rg(NG + n)) for n in range(OPT['ncr'])],
           (54, s_addr(G_SLOT[0]) + stamp('c27') + BAR('G0', 'zero', *([] if OPT['bsp'] else ['G1'])) + stamp('b0')))
OPT['dsp'] = DSP
for k in range(LA_S):
    pin[55 + 2 * k] = [s_read(k, 0), s_read(k, 1)]
stat_fill = fill
if OPT['cfs']:
    fill = stat_fill[:2]
    stat_fill = stat_fill[2:]
else:
    stat_fill = []
P += weave(items, fill, pin, 0, 40) + back(62) + back(63)

S_items = []
for s in range(32):
    for ri, acc in ((0, SRE), (1, SIM)):
        it = [mfma(vr(acc, 16), vr(X + 4 * s, 4), ar(aS + 8 * (s & 3) + 4 * ri, 4), vr(acc, 16) if s else '0')]
        n = s + LA_S
        if n < 32:
            it.append(s_read(n, ri))
        S_items.append(it)
for k in range(LA_F):
    S_items[64 - LA_F + k] += f_read(0, k)
F_items = []
for b in range(4):
    its = []
    for s in range(32):
        acc = vr(FACC[b & 1], 16)
        it = [mfma(acc, ar(aF + 4 * ((32 * b + s) & 7), 4), vr(X + 4 * s, 4), acc if s else '0')]
        n = s + LA_F
        if n < 32:
            it += f_read(b, n)
        elif b < 3:
            it += f_read(b + 1, n - 32)
        its.append(it)
    F_items.append(its)

FLA, FLP = VNM, VRS
fill = stat_fill + late + park2 + late_b + consts + (pf if OPT['pfat'] < 0 else []) + L(f"""
v_lshrrev_b32 v{t2}, 5, v{vL}
v_lshlrev_b32 v{t2}, 6, v{t2}
v_add_u32 v{t2}, {TB}, v{t2}
s_lshl_b32 s{sT2}, s{sW}, 8
v_add_u32 v{t1}, s{sT2}, v{t2}""")
fill += [I(f'ds_read_b128 {vr(FACC[1] + 4 * q, 4)}, v{t1} offset:{128 + 16 * q}') for q in range(4)]
xa, xb = TT + 14, TT + 15
ROW = lambda n: 16 * ((n >> 2) & 1) + 8 * (n >> 3) + (n & 3)
xe = L(f"""v_and_b32 v{xa}, 31, v{vL}
    v_lshrrev_b32 v{xb}, 5, v{vL}
    v_lshlrev_b32 v{xb}, 12, v{xb}
    v_lshl_add_u32 v{xb}, v{xa}, 1, v{xb}
    s_lshl_b32 s{sONES}, s{sJJ}, 2
    s_add_u32 s{sONES}, s{sONES}, s{sKQ}
    s_lshl_b32 s{sONES}, s{sONES}, 6
    v_lshl_add_u32 v{xa}, v{xa}, 1, s{sONES}
    s_add_u32 s{sXB}, s{sXB}, s{sONES}
    global_load_short_d16_hi a{aXE + 16}, v{xa}, s[{pDSK}:{pDSK + 1}]""")
for r in range(0 if OPT['xlds'] else 16):
    if r % 4 == 0:
        xe.append(I(f's_add_u32 s{sONES}, s{sXB}, {1024 * ROW(r)}'))
    xe.append(I(f'buffer_load_short_d16_hi a{aXE + r}, v{xb}, {srd(sX)}, s{sONES} offen offset:{1024 * (r & 3)}'))
if not OPT['s2l']:
    fill += mov
if OPT['tlb'] in (2, 3):
    fill = touch_o + fill
if OPT['fw']:
    fill += L(f"""s_lshl_b32 s{sT2}, s{sJJ}, 9
        s_add_u32 s{sT2}, s{sT2}, s{sFLG}
        v_lshlrev_b32 v{t0}, 3, v{vL}
        v_mov_b32 v{TT}, 0
        v_mov_b32 v{TT + 1}, 0
        buffer_store_dwordx2 {vr(TT, 2)}, v{t0}, {srd(sWS)}, s{sT2} offen sc1""")
if OPT['xw'] == 1:
    fill += L(f'v_lshlrev_b32 v{t0}, 2, v{vL}')
    for b in (1, 2, 3):
        fill += L(f"""buffer_store_dwordx4 {vr(TT, 4)}, v{VL16}, {srd(sWS)}, s{sXO[b]} offen sc1
            buffer_store_dwordx4 {vr(TT, 4)}, v{VL16}, {srd(sWS)}, s{sXO[b]} offen offset:1024 sc1
            buffer_store_dword v{vL}, v{t0}, {srd(sWS)}, s{sXO[b]} offen offset:2048 sc1""")
elif OPT['xw']:
    fill += L(f"""v_lshlrev_b32 v{t0}, 7, v{vL}
        v_min_u32 v{t0}, {59 * 128}, v{t0}
        buffer_load_dword a60, v{t0}, {srd(sWS)}, s{sXO[0]} offen {('', '', 'sc1', 'sc1 nt')[OPT['xw']]}""")
if not OPT['xel']:
    cut = len(fill) * OPT['xes'] // 100
    fill, xe = fill[:cut] + merge(fill[cut:], xe), []
OPT['dsp'] = OPT['dsps']
SPOS = {3: (2, 14, 28), 4: (2, 14, 28, 42), 5: (0, 12, 24, 36, 48)}
srounds = [(2, rg(4)), (14, rg(5)), (28, rg(6)), (42, rg(7))] if OPT['sch'] == 1 else \
    list(zip(SPOS[9 - NG - OPT['ncr']], map(rg, range(NG + OPT['ncr'], 9))))
sbars = [(9, BAR('G1')), (25, BAR('G2', 'G3'))] if OPT['bsp'] == 1 else \
    [(9, BAR('G1')), (25, BAR('G2')), (41, BAR('G3'))] if OPT['bsp'] else [(24, BAR('G2', 'G3'))]
pin = pins(*srounds, *sbars, (63 - LA_F, stamp('s59') + BAR('G4', 'b1w', *([] if OPT['bsa'] & 1 else ['G5'])) + stamp('b2')))
OPT['dsp'] = DSP
P += weave(fine('S', S_items, 3), fill, pin, 0, 62 - LA_F)

Q = FACC[1]
V = lambda t: SRE + t if t % 2 == 0 else SIM + t - 1
AGR, AGI = VRS, t3
fill = []
coef = []
for q in range(8):
    for h in range(2):
        r = 2 * q + h
        fill += L(f"""v_mul_f32 v{TT + 2 * h}, v{SRE + r}, v{CR}
            v_mul_f32 v{TT + 2 * h + 1}, v{SRE + r}, v{NCI}
            v_fmac_f32 v{TT + 2 * h}, v{SIM + r}, v{NCI}
            v_fmac_f32 v{TT + 2 * h + 1}, v{SIM + r}, v{NCR}""")
    for h in range(2):
        r = 2 * q + h
        fill += L(f"""v_mul_f32 v{V(r)}, v{TT + 2 * h}, v{Q + r}
            v_mul_f32 v{V(r) + 1}, v{TT + 2 * h + 1}, v{Q + r}""")
    coef.append(fill)
    fill = []
step = lambda d, p, c: L(f"""v_pk_fma_f32 {vr(d, 2)}, {vr(p, 2)}, {vr(LR, 2)}, {vr(c, 2)} op_sel_hi:[1,0,1]
    v_pk_fma_f32 {vr(d, 2)}, {vr(p, 2)}, {vr(NLI, 2)}, {vr(d, 2)} op_sel:[1,0,0] op_sel_hi:[0,1,1]""")
horner = [step(AGR if r & 1 else TT + 4, V(0) if r == 1 else (TT + 4 if r & 1 else AGR), V(r)) for r in range(1, 16)]
fill = fetch(seg=t1) + fill + (L('s_mov_b32 s19, s3') if OPT['dbg'] else []) + L(f's_mov_b32 s{sKC[0]}, {M2LN2:#x}')
fill.append(I(f'ds_write_b64 v{t1}, {vr(AGR, 2)} offset:{7 * 256}', tok='segw'))
frounds = [(1, rg(8)), (12, rg(9))] if OPT['sch'] == 1 else [(1, rg(9)), (12, rg(10))] if OPT['sch'] == 2 else \
    [(0, rg(9)), (OPT['g10'], rg(10)), (2 * OPT['g10'], rg(11))]
staged_names = list(STAGE)
abars = [(7 - LA_F, BAR('G5'))] if OPT['bsa'] & 1 else []
abars += [(15 - LA_F, BAR('G6')), (23 - LA_F, BAR('G7'))] if OPT['bsa'] & 2 else [(15 - LA_F, BAR('G6', 'G7'))]
pin = pins(*frounds, *abars, (31, BAR('segw')),
           *[(22, stage_load(n)) for n in staged_names[:1]])
if 0 <= OPT['pfat'] < 32:
    pin.setdefault(OPT['pfat'], []).extend(pf)
NB = OPT['nb0']
per = 8 // NB
plan = [(1, [], [])]
for n in range(NB):
    lo, hi = max(2 * per * n - 1, 0), 2 * per * (n + 1) - 1
    plan.append((1 + (n + 1) * 28 // NB, sum(coef[per * n:per * (n + 1)], []), sum(horner[lo:hi], [])))
P += staged(fine('F0', F_items[0], 3), pin, plan + [(30, fill, []), (31, [], [])])
P += stamp('F0')

E = ASc[0]
R0, R1, T0_, T1_ = TT + 8, TT + 12, ASc[0], ASc[2]
h0, h1 = mish_stages(0, 0), mish_stages(0, 1)
rd = lambda dst, k: I(f'ds_read2_b64 {vr(dst, 4)}, v{t1} offset0:{32 * k} offset1:{32 * k + 32}')
publish = cmul_add(E, E + 2, L16R, L16I, PR, PI, AGR, AGI) + fetch(pub=t1) + L(f"""v_mov_b32 v{E + 1}, s{sTAG}
    v_mov_b32 v{E + 3}, s{sTAG}
    buffer_store_dwordx4 {vr(E, 4)}, v{t1}, {srd(sWS)}, 0 offen sc1""")
frounds = [(0, rg(10)), (8, rg(11))] if OPT['sch'] == 1 else [(0, rg(11))] if OPT['sch'] == 2 else []
pin = pins(*frounds, (OPT['wa0'], rw('WA0')), (31 - LA_F, BAR('G8', 'G9', *([] if OPT['bsb'] else ['G10', 'G11']))),
           *zip((8, 24), map(stage_load, staged_names[1:3])))
if OPT['pfat'] >= 32:
    pin.setdefault(OPT['pfat'] - 32, []).extend(fetch(pfa=FAd) + L(pf[0].text.replace(f'v{PI}', f'v{FAd}')))
GA = [int(x) for x in str(OPT['stg1']).split('.')]
P += staged(fine('F0', F_items[1], 3), pin, [
    (GA[0], [rd(R0, 0), rd(R1, 2)] + h0['rd'], h0['A']),
    (GA[1], h0['ex'], cmul_pk(PR, L16R, R0, R0 + 2) + cmul_pk(T0_, L16R, PR, R1) + cmul_pk(PR, L16R, T0_, R1 + 2) + h0['B']),
    (GA[2], [rd(R0, 4), I(f'ds_read_b64 {vr(R1, 2)}, v{t1} offset:{6 * 256}')] + h0['rc'],
     cmul_pk(T0_, L16R, PR, R0) + cmul_pk(T1_, L16R, T0_, R0 + 2) + cmul_pk(PR, L16R, T1_, R1) + h0['C']),
    (GA[3], h1['rd'] + publish + h0['fin'], h1['A']),
    (GA[4], h1['ex'], h1['B']),
    (GA[5], h1['rc'], h1['C']),
    (31, h1['fin'], [])])
P += stamp('F1')

LBA = [CR, NCI]
LBE = [NCR, L16R]
LBD = [ASc[0], QG[0]]
FLV = L16I
lb_loads = '\n'.join(f'buffer_load_dwordx4 {vr(LBD[e], 4)}, v{LBA[e]}, {srd(sWS)}, 0 offen sc1' for e in range(2))
lb_setup = fetch(lba0=LBA[0], lba1=LBA[1], lbe0=LBE[0], lbe1=LBE[1])


def flag_store(stage, toks):
    out = [Wait(*toks), I(f'buffer_store_dword v{FLV}, v{FLA}, {srd(sWS)}, 0 offen offset:{128 * stage} sc1')]
    if OPT['ppf']:
        so = (sFST[0], sSST, sFST[2])[stage]
        vpf = L128R if stage else t3
        out = [I(f'v_lshlrev_b32 v{vpf}, {6 if stage < 2 else "s%d" % sSEL[1]}, v{vL}')] + out
        out.append(I(f'buffer_load_dword a{60 + (stage & 1)}, v{vpf}, {srd(sWS)}, s{so} offen sc1'))
    return out


def flag_load(stage):
    return f'buffer_load_dword v{t3}, v{FLP}, {srd(sWS)}, 0 offen offset:{128 * stage} sc1'


flag_check = f'v_cmp_ne_u32 vcc, s{sTAG}, v{t3}'
lb_check = f"""v_bitop3_b32 v{t0}, v{LBD[0] + 1}, v{LBD[0] + 3}, v{LBE[0]} bitop3:0x7e
    v_bitop3_b32 v{t1}, v{LBD[1] + 1}, v{LBD[1] + 3}, v{LBE[1]} bitop3:0x7e
    v_or_b32 v{t0}, v{t0}, v{t1}
    v_cmp_ne_u32 vcc, 0, v{t0}"""
lb_part = stamp('lb0') + poll('lb', lb_loads, lb_check) + stamp('lb1')
lb_part += cmul_add(LBD[0] + 1, LBD[0] + 3, L128R, L128I, LBD[0], LBD[0] + 2, LBD[1], LBD[1] + 2)
lb_part += cmul_add(LBD[1], LBD[1] + 1, WR, WI, LBD[0] + 1, LBD[0] + 3)
lb_part += fetch(lbw=t1)
lb_part.append(I(f'ds_write_b64 v{t1}, {vr(LBD[1], 2)}', tok='lbw'))
HW, HR, HB = ASc[0], ASc[1], FACC[1]
HW2, HR2 = WR, WI
tail_addr = fetch(lbr=ASc[3], fla=FLA, flp=FLP) + L(f'v_mov_b32 v{FLV}, s{sTAG}')
lb_reads = [I(f'ds_read2_b64 {vr(HB + 4 * q, 4)}, v{ASc[3]} offset0:{64 * q} offset1:{64 * q + 32}') for q in range(4)]
scan = [I(f'v_pk_add_f32 {vr(HB + a, 2)}, {vr(HB + a, 2)}, {vr(HB + b_, 2)}')
        for a, b_ in ((0, 2), (4, 6), (8, 10), (12, 14), (0, 4), (8, 12), (0, 8))]
scan += cmul_add(L128R, L128I, LSR, LSI, HB, HB + 1, PR, PI)
pack = lambda q: L(f"""v_cvt_pk_bf16_f32 v{SRE + q}, v{V(2 * q)}, v{V(2 * q + 1)}
    v_cvt_pk_bf16_f32 v{SIM + q}, v{V(2 * q) + 1}, v{V(2 * q + 1) + 1}""")
for r in range(16):
    prev = vr(L128R if r == 0 else V(r - 1), 2)
    scan += L(f"""v_pk_fma_f32 {vr(V(r), 2)}, {prev}, {vr(LR, 2)}, {vr(V(r), 2)} op_sel_hi:[1,0,1]
        v_pk_fma_f32 {vr(V(r), 2)}, {prev}, {vr(NLI, 2)}, {vr(V(r), 2)} op_sel:[1,0,0] op_sel_hi:[0,1,1]""")
    if r >= 2 and r % 2 == 0 and OPT['pk_in']:
        scan += pack(r // 2 - 1)
HRS = AS
transp = fetch(hw=HW, hw2=HW2, hr=HRS[0]) + [I(f'v_xor_b32 v{HRS[n]}, {16 * n}, v{HRS[0]}') for n in (1, 2, 3)] + sum((pack(q) for q in range(7 if OPT['pk_in'] else 0, 8)), [])
for ri in range(2):
    transp += [I(f'ds_write_b128 v{(HW, HW2)[h]}, {vr((SRE, SIM)[ri] + 4 * h, 4)}') for h in range(2)]
    for fr in range(2):
        for u in range(2):
            transp.append(I(f'ds_read_b64_tr_b16 {ar(aOS + 8 * ri + 4 * fr + 2 * u, 2)}, v{HRS[2 * u + fr]} offset:{256 * u}'))
stH = [I(f'buffer_store_dwordx4 {ar(aOS + 4 * q, 4)}, v{VL16}, {srd(sWS)}, s{sSST} offen offset:{1024 * q} sc1',
         tok='stH' if q == 3 else None) for q in range(4)]
h0, h1 = mish_stages(1, 0), mish_stages(1, 1)
g0, g1 = mish_stages(2, 0), mish_stages(2, 1)
pin = pins((0, rw('CR0')), (8, rw('CI0')), (18, rw('WA1')), *([(15 - LA_F, BAR('G10', 'G11'))] if OPT['bsb'] else []), (29, BAR('lbw') + lb_reads + g0['rd'] + g1['rd']), (OPT['lbl'], L(lb_loads)),
           *[(25, stage_load(n)) for n in staged_names[3:4]])
GB = [int(x) for x in str(OPT['stg2']).split('.')]
P += staged(fine('F2', F_items[2], 2), pin, [
    (GB[0], h0['rd'] + h1['rd'] + lb_setup, h0['A']),
    (GB[1], h0['ex'], h0['B'] + h1['A']),
    (GB[2], h0['rc'] + h1['ex'], h0['C'] + h1['B']),
    (GB[3], h0['fin'] + h1['rc'], h1['C']),
    (28, h1['fin'] + lb_part + tail_addr, []),
    (31, [], [])])
P += stamp('F2')
burst = scan + g0['A']
if OPT['fas'] < 0:
    burst = burst[:OPT['fas']] + flag_store(0, ['stF0', 'stF1']) + burst[OPT['fas']:]
if OPT['fine'] == 'T':
    for n in range(len(burst) - 12, 0, -12):
        burst = burst[:n] + stamp(f'g{n}') + burst[n:]
P += burst
P += stamp('scan')


FP0, CP0, FPc = [NLI, LI, LR, CR], [NCI, NCR], QG
PA = OPT['pa']
p3_setup = fetch(fp0=FP0[0], fp1=CP0[0], f3o=ASc[2]) + [I(f'v_xor_b32 v{FP0[n]}, {32 * n}, v{FP0[0]}') for n in (1, 2, 3)]
p3_setup.append(I(f'v_xor_b32 v{CP0[1]}, 64, v{CP0[0]}'))
hs = OPT['hs']
lead = [i_ for i_ in transp if i_.kind != 'ds']
tds = transp[len(lead):]
P += lead
tpins = [(0, tds[0:1]), (1, tds[1:2]), (2, tds[2:4]), (3, tds[4:6]), (4, tds[6:7]), (5, tds[7:8] + stH[0:1]),
         (6, tds[8:10]), (7, tds[10:12] + stH[1:2]), (7 + hs, stH[2:3]), (7 + 2 * hs, stH[3:4])]

steps = ([('WA0', x, 'own') for x in range(4)]
         + [(n, x, 'own') for n in ('CR0', 'CI0') for x in range(2)]
         + [(f'WA{e}', x, 'A') for e in (1, 2, 3) for x in range(4)]
         + [(n, x, 'H') for n in ('CR0', 'CI0') for x in (2, 3)]
         + [(n, x, 'H') for n in ('CR1', 'CI1') for x in range(4)]
         + [('WB0', x, 'own') for x in range(4)]
         + [(f'WB{e}', x, 'B') for e in (1, 2) for x in range(4)])
deferred = [k for k, st in enumerate(steps) if st[2] != 'own']
A_REGS = ([192 + 4 * n for n in range(16)] + [SRE + 4 * n for n in range(8)]
          + [FACC[0] + 4 * n for n in range(4)] + [TT + 4 * n for n in range(4)])
ACC = [128, 144, 160, 176]
cur_addr = {}


def a_frag(k):
    name, x, src = steps[k]
    if src != 'own':
        return vr(A_REGS[deferred.index(k)], 4)
    if name == 'WA0':
        return ar(aOF + 4 * x, 4)
    if name == 'WB0':
        return ar(aOF + 16 + 4 * x, 4) if x < 2 else vr(FACC[1] + 4 * (x - 2), 4)
    return ar(aOS + 8 * (name[1] == 'I') + 4 * x, 4)


def a_load(k):
    name, x, src = steps[k]
    e = int(name[2])
    if name[0] == 'C':
        so, off = sAO['H'][2 * e + (x >> 1)], 2048 * (name[1] == 'I') + 1024 * (x & 1)
    else:
        so, off = sAO[name[1]][e], 1024 * x
    return [I(f'buffer_load_dwordx4 {a_frag(k)}, v{VL16}, {srd(sWS)}, s{so} offen offset:{off} sc1')]


pin = pins((PA, rw2('WA2')), (PA + 8, BAR()), (PA + 9, rw2('WA3')), (PA + 17, BAR()), (PA + 18, rw2('CR1')),
           (OPT['fal'], L(flag_load(0))), (30, BAR('WA0', 'CR0', 'CI0', 'WA1')), *tpins)
if OPT['fhs'] >= 0:
    pin.setdefault(OPT['fhs'], []).extend(flag_store(1, ['stH']))
if OPT['fas'] >= 0:
    pin.setdefault(OPT['fas'], []).extend(flag_store(0, ['stF0', 'stF1']))
m3 = mish_pk(3, ASc[2])
GC = [int(x) for x in str(OPT['stg3']).split('.')]
P += staged(fine('F3', F_items[3], 2), pin, [
    (GC[0], g0['ex'], g0['B'] + g1['A']),
    (GC[1], g0['rc'] + g1['ex'], g0['C'] + g1['B']),
    (GC[2], g0['fin'] + g1['rc'], g1['C']),
    (29, g1['fin'][:4] + m3[:4] + g1['fin'][4:] + p3_setup, []),
    (31, [], [])])
P += stamp('F3')

m3 = m3[4:]
st0 = 40
early = sum((a_load(k) for k in range(8, 8 + OPT['nea'])), [])
if not OPT['ovl']:
    fac = st0 - OPT['fac']
    TAIL0 = len(P)
    P += m3[:fac] + (flag_store(1, ['stH']) if OPT['fhs'] == -1 and not OPT['fhp'] else [])
    P += stamp('fa0') + poll('fa', flag_load(0), flag_check) + stamp('fa1')
    tl = merge(m3[fac:st0], early) + (flag_store(1, ['stH']) if OPT['fhp'] else []) + m3[st0:]
    TAIL1 = len(P) + len(tl) - len(m3) + st0
    if OPT['fine'] == 'T':
        for n in range(len(tl) - 12, 0, -12):
            tl = tl[:n] + stamp(f'gt{n}') + tl[n:]
    P += tl
    P += stamp('tail')

XE, ME = 192, LSR
ep_setup = L(f"""v_lshrrev_b32 v{t1}, 5, v{vL}
    s_lshl_b32 s{sT2}, s{sW}, 8
    s_add_u32 s{sT2}, s{sT2}, {T_STAT}
    v_lshl_add_u32 v{VLN2}, v{t1}, 4, s{sT2}
    v_lshlrev_b32 v{FA0}, 13, v{t1}
    v_and_b32 v{t0}, 31, v{vL}
    v_lshl_add_u32 v{FA0}, v{t0}, 2, v{FA0}""")
VL4 = ASc[0]
ep_setup = L(f'v_lshlrev_b32 v{VL4}, 2, v{vL}') + ep_setup
base_calc = [I(f'v_accvgpr_read_b32 v{RL2}, a{aXE + 16}')]
for qt in range(4):
    base_calc += [I(f'ds_read_b128 {vr(ME, 4)}, v{VLN2} offset:{4 * ROW(4 * qt)}', hoist=True),
                  I(f'ds_read_b128 {vr(ME + 4, 4)}, v{VLN2} offset:{128 + 4 * ROW(4 * qt)}', hoist=True)]
    rs = range(4)
    base_calc += [I(f'v_accvgpr_read_b32 v{XE + 4 * qt + r}, a{aXE + 4 * qt + r}') for r in rs]
    base_calc += [I(f'v_sub_f32 v{ME + r}, v{XE + 4 * qt + r}, v{ME + r}') for r in rs]
    base_calc += [I(f'v_mul_f32 v{ME + r}, v{ME + r}, v{ME + 4 + r}') for r in rs]
    base_calc += [I(f'v_fmac_f32 v{XE + 4 * qt + r}, v{ME + r}, v{RL2}') for r in rs]

def checksum(dst, src, last):
    return [f'v_bitop3_b32 v{dst}, v{src}, v{src + 1}, {last} bitop3:0x96'] + \
           [f'v_bitop3_b32 v{dst}, v{src + e}, v{src + e + 1}, v{dst} bitop3:0x96' for e in (2, 4, 6)]


def send(b):
    A = ACC[b]
    out = []
    for q in range(2):
        out += [I(f'v_cvt_pk_bf16_f32 v{A + e}, v{A + 2 * e}, v{A + 2 * e + 1}') for e in range(4 * q, 4 * q + 4)]
        out.append(I(f'buffer_store_dwordx4 {vr(A + 4 * q, 4)}, v{VL16}, {srd(sWS)}, s{sXO[b]} offen '
                     f'offset:{1024 * q} sc1'))
    out += [I(c) for c in checksum(A + 8, A, f's{sTAG}')]
    out.append(I(f'buffer_store_dword v{A + 8}, v{VL4}, {srd(sWS)}, s{sXO[b]} offen offset:2048 sc1'))
    return out


def w_read1(k, b, dst):
    name, x, src = steps[k]
    slot = W_SLOT[name]
    out = []

    def address(cur, base):
        if slot < 4:
            return base, slot * SLOT
        if not 0 <= slot - cur_addr.get(cur, -9) < 4:
            cur_addr[cur] = 4 if slot == 4 else 5
            out.append(I(f'v_add_u32 v{cur}, {cur_addr[cur] * SLOT}, v{base}'))
        return cur, (slot - cur_addr[cur]) * SLOT

    if name[0] == 'C':
        a, off = address(AS[x >> 1], CP0[x >> 1])
        return out + [I(f'ds_read_b128 {ar(dst, 4)}, v{a} offset:{off + 4096 * b + 2048 * (x & 1)}', lds_r=slot)]
    var = 2 * (b & 1) + (x & 1)
    a, off = address(FPc[var], FP0[var])
    return out + [I(f'ds_read_b64_tr_b16 {ar(dst + 2 * u, 2)}, v{a} '
                    f'offset:{off + 8192 * (x >> 1) + 4096 * (b >> 1) + 1024 * u}', lds_r=slot) for u in range(2)]


RX = {1: ACC[1], 2: ACC[2], 3: ACC[3]}


def recv(b):
    so = sXO[0] if b == 1 else sSEL[b]
    rl = [f'buffer_load_dwordx4 {vr(RX[b] + 4 * q, 4)}, v{VL16}, {srd(sWS)}, s{so} offen offset:{1024 * q} sc1' for q in range(2)]
    rl.append(f'buffer_load_dword v{RX[b] + 8}, v{VL4}, {srd(sWS)}, s{so} offen offset:2048 sc1')
    return '\n'.join(rl)


pre = L(f"""s_lshl_b32 s{sXB}, s{sXB}, 1
    s_mov_b32 s{sKC[0]}, 0x00003f80
    s_mov_b32 s{sKC[1]}, 0x3f800000""")
E3 = OPT['e3']
D0 = OPT['d0']
seq = [(k, b) for k in range(D0) for b in (1, 2, 3, 0)] + [(k, b) for k in range(D0, E3) for b in (1, 2, 3)]
seq += [(k, b) for k in range(E3, 36) for b in (1, 2)]
seq += [(k, b) for b in (1, 2) for k in range(36, 44)]
own8 = [(k, 0) for k in range(8, 12)]
seq += (own8 if OPT['o8'] else []) + [(k, 3) for k in range(E3, 44)] + ([] if OPT['o8'] else own8)
seq += [(k, 0) for k in list(range(D0, 8)) + list(range(12, 44))]
at = {kb: n for n, kb in enumerate(seq)}
done_at = {b: at[43, b] for b in (1, 2, 3)}
KEEP = {(k, 0): aWO + 4 * (k - 8) for k in range(8, 12)}
KEEP.update({(k, 0): aWO + 16 + 4 * k for k in range(D0, 4)})
reads = sorted((kb for kb in seq), key=lambda kb: at[kb[0], 3] + 0.5 if kb in KEEP else at[kb])
RING = 12
where, nring = {}, 0
for kb in reads:
    if kb in KEEP:
        where[kb] = KEEP[kb]
    else:
        where[kb] = aP + 4 * (nring % RING)
        nring += 1
LA_J = OPT['laj']
items = []
rd = 0
seen = set()
for n, (k, b) in enumerate(seq):
    pre_rd = []
    while rd < len(reads) and (at[reads[rd][0], 3] if reads[rd] in KEEP else at[reads[rd]]) <= n + LA_J:
        pre_rd += w_read1(*reads[rd], where[reads[rd]])
        rd += 1
    mm = []
    for a in range(2):
        d = vr(ACC[b] + 8 * a + 4 * (k & 1), 4)
        mm.append(I(f'v_mfma_f32_16x16x32_bf16 {d}, {a_frag((k & ~1) + a)}, {ar(where[k, b], 4)}, '
                    f'{d if (b, k & 1) in seen else 0}'))
    seen.add((b, k & 1))
    if n == 0:
        if OPT['ovl']:
            k_ = max(n_ for n_, i_ in enumerate(P) if i_.kind == 'barrier') + 1
            P = P[:k_] + pre_rd + P[k_:]
        elif OPT['wmix']:
            end = len(P) - (PROF in (1, 2)) - 10
            P = P[:TAIL1] + merge(P[TAIL1:end], pre_rd) + P[end:]
        else:
            P = P[:TAIL0] + pre_rd + P[TAIL0:]
        pre_rd = []
    nds = [n_ for n_, i_ in enumerate(pre_rd) if i_.kind == 'ds']
    half = nds[len(nds) // 2] if OPT['bal'] and len(nds) > 1 else len(pre_rd)
    items.append([mm[0]] + pre_rd[:half] + [mm[1]] + pre_rd[half:])
pin = {n: [] for n in range(len(items))}
B1 = at[4, 1] + 2
pin[B1] += BAR('WA2')
pin[at[16, 1] - LA_J - 1] += [Wait('WA3', 'CR1', 'CI1'), I('s_barrier')]
pin[at[32, 1] - LA_J - 1] += [Wait('WB0', 'WB1', 'WB2'), I('s_barrier')]
if OPT['fhs'] < -1:
    pin[-OPT['fhs']] += flag_store(1, ['stH'])
if OPT['fhl'] >= 0:
    pin[OPT['fhl']] += L(flag_load(1))
pin[OPT['fhc']] += stamp('fh0') + poll('fh', flag_load(1), flag_check) + stamp('fh1')
pin[OPT['fls']] += flag_store(2, ['stF3', 'stF2'])
pin[OPT['fll']] += L(flag_load(2))
pin[OPT['flc']] += stamp('fl0') + poll('fl', flag_load(2), flag_check) + stamp('fl1')
pin[at[36, 1] - 1] += stamp('k36')
for name, gap in (('CI1', 1), ('WB0', 19), ('WB1', 24), ('WB2', at[16, 1] - LA_J)):
    if name in STAGE:
        for n, i_ in enumerate(stage_write(name)):
            pin[gap + max(n - 2, 0)].append(i_)
_rw = rw
rw = lambda name: [] if name in STAGE else _rw(name)
queue = []
if OPT['ovl']:
    pin[OPT['ofa']] += stamp('fa0') + poll('fa', flag_load(0), flag_check) + stamp('fa1')
    queue += [(OPT['ofa'], a_load(k)) for k in range(8, 8 + OPT['nea'])]
queue += [(OPT['q0'], a_load(k)) for k in range(8 + OPT['nea'], 16)] + [(0, rw('CI1'))]
queue += [(OPT['q0'], a_load(k)) for k in range(max(16, 8 + OPT['nea']), 20)]
if OPT['qord'] == 0:
    queue += [(B1 + 1, rw('WB0'))] + [(OPT['fhc'], a_load(k)) for k in range(20, 32)] + [(B1 + 1, rw('WB1'))]
elif OPT['qord'] == 1:
    queue += [(B1 + 1, rw('WB0')), (B1 + 1, rw('WB1'))] + [(OPT['fhc'], a_load(k)) for k in range(20, 32)]
else:
    queue += [(OPT['fhc'], a_load(k)) for k in range(20, 24)] + [(B1 + 1, rw('WB0')), (B1 + 1, rw('WB1'))]
    queue += [(0, a_load(k)) for k in range(24, 32)]
queue += [(at[16, 1] - LA_J, rw('WB2'))]
queue += [(OPT['flc'], a_load(k)) for k in range(36, 44)]
n = 0.0
for first_gap, ins in queue:
    n = max(n, first_gap)
    pend = []
    for i_ in ins:
        pend.append(i_)
        if i_.kind == 'vm':
            pin[int(n)] += pend
            pend = []
            n += OPT['pace'] / 10
for b in (1, 2, 3):
    sd = send(b)
    for q in range(4):
        pin[done_at[b] + 3 + q] += sd[q * len(sd) // 4:(q + 1) * len(sd) // 4]
    pin[done_at[min(b + 1, 3) if b < 3 else 3] + OPT[f'r{b}'] if b != 2 else done_at[2] + OPT['r2']] += L(recv(b))
pin[done_at[2] + 6] += stamp('s12')
pin[done_at[3] + 6] += stamp('sent')
items = fine('P3', items[:OPT['fn'] * 27], OPT['fn']) + items[OPT['fn'] * 27:]
LEV[0] = OPT['lev3']
sub = lambda lo, hi: {n - lo: pin[n] for n in range(lo, hi)}
unit_weave = weave


def weave(its, fill_, pin_, lo=0, hi=None):
    if not OPT['fineg']:
        return unit_weave(its, fill_, pin_, lo, hi)
    flat, pin2 = [], {}
    for n, it in enumerate(its):
        cut_ = max(k_ for k_, i_ in enumerate(it) if i_.kind == 'mfma')
        flat += [it[:cut_], it[cut_:]]
        ordered = any(i_.kind in ('barrier', 'pseudo', 'label') for i_ in pin_.get(n, []))
        first = len(flat[-2]) < len(flat[-1]) and not ordered
        pin2[2 * n + (0 if first else 1)] = pin_.get(n, [])
    return unit_weave(flat, fill_, pin2, 2 * lo, None if hi is None else 2 * hi + 1)


c1, c2 = at[32, 1], at[11, 0] + 1
if OPT['ovl']:
    GD = [int(x) for x in str(OPT['stg4']).split('.')]
    both = lambda lo, hi: m3[lo:hi] + m3[40 + lo:40 + hi]
    P += staged(items[:c1], pin, [(GD[0], [], both(0, 4)), (GD[1], both(4, 12), both(12, 20)),
                                  (GD[2], both(20, 28), both(28, 36)),
                                  (GD[3], both(36, 40) + m3[80:] + stamp('tail'), []), (c1 - 1, [], [])])
else:
    P += weave(items[:c1], [], sub(0, c1))
P += weave(items[c1:c2], ep_setup + pre, sub(c1, c2), 0, 6)
SWAPS = lambda R: [I(f'v_permlane16_swap_b32 v{R + 8 * a + r}, v{R + 8 * a + 4 + r}') for a in range(2) for r in range(4)]
base_calc += SWAPS(XE)


def rx_check(b):
    chk = checksum(RX[b] + 9, RX[b], f'v{RX[b] + 8}') + [f'v_cmp_ne_u32 vcc, s{sTAG}, v{RX[b] + 9}']
    return poll(f'rx{b}', '\n'.join(recv(x) for x in range(b, 4 if OPT['rxall'] else b + 1)), '\n'.join(chk))


EARLY = range(1, 1 + OPT['rxe'])
for b in EARLY:
    base_calc += rx_check(b)
    for q in range(8):
        u = RX[b] + 10 + 2 * (q & 1)
        base_calc += L(f"""v_lshlrev_b32 v{u}, 16, v{RX[b] + q}
            v_and_b32 v{u + 1}, 0xffff0000, v{RX[b] + q}
            v_add_f32 v{XE + 2 * q}, v{XE + 2 * q}, v{u}
            v_add_f32 v{XE + 2 * q + 1}, v{XE + 2 * q + 1}, v{u + 1}""")
P += weave(items[c2:], base_calc, sub(c2, len(items)), 3, len(items) - c2 - (3 if OPT['rxe'] else 6))
P += stamp('own')
A0 = ACC[0]
for q in range(8):
    P.append(I(f'v_pk_add_f32 {vr(A0 + 2 * q, 2)}, {vr(A0 + 2 * q, 2)}, {vr(XE + 2 * q, 2)}'))
LATE = [b for b in (1, 2, 3) if b not in EARLY]
for b in LATE:
    P += rx_check(b)
    if OPT['seqadd'] and b < 3:
        P += [I(f'v_dot2c_f32_bf16 v{A0 + 2 * q + h}, s{sKC[h]}, v{RX[b] + q}') for q in range(8) for h in range(2)]
if OPT['seqadd']:
    LATE = [3]
P += stamp('rx')
sts = []
for a in range(2):
    for q in range(4 * a, 4 * a + 4):
        for b in LATE:
            P += [I(f'v_dot2c_f32_bf16 v{A0 + 2 * q + h}, s{sKC[h]}, v{RX[b] + q}') for h in range(2)]
        P += sts[3 * (q & 3):3 * (q & 3) + 3]
    P += SWAPS(A0)[4 * a:4 * a + 4]
    sts = []
    for q in range(4 * a, 4 * a + 4):
        sts.append(I(f's_add_u32 s{sBB}, s{sXB}, {2048 * ROW(2 * q)}'))
        sts += [I(f'buffer_store_dword v{A0 + 2 * q + h}, v{FA0}, {srd(sOUT)}, s{sBB} offen offset:{2048 * h} '
                  f'{OPT["out_flags"].replace("+", " ")}') for h in range(2)]
P += L(f"""s_lshl_b32 s{sT2}, s{sJ}, 2
    s_add_u32 s{sT2}, s{sT2}, s{sW}
    s_xor_b32 s{sT1}, s{sI}, 15
    s_or_b32 s{sT2}, s{sT2}, s{sT1}
    s_cmp_eq_u32 s{sT2}, 0
    s_cselect_b32 s{sT2}, {WS_EP}, {OOB:#x}
    v_mov_b32 v{t0}, s{sE2}
    v_mov_b32 v{t1}, s{sT2}""") + sts + L(f'buffer_store_dword v{t0}, v{t1}, {srd(sWS)}, 0 offen')
if OPT['diag']:
    P += stamp('end') + L("""s_memrealtime s[6:7]
        s_waitcnt lgkmcnt(0)
        s_sub_u32 s4, s4, s23
        s_lshl_b32 s4, s4, 2
        s_min_u32 s4, s4, 20000
        L_diag:
        s_memrealtime s[0:1]
        s_waitcnt lgkmcnt(0)
        s_sub_u32 s0, s0, s6
        s_cmp_lt_u32 s0, s4
        s_cbranch_scc1 L_diag""")
if OPT['dbg']:
    P += L(f"""s_memrealtime s[6:7]
        s_mov_b32 s{sTMP}, s4
        s_mov_b32 s{sTMP + 1}, s5
        s_mov_b32 s{sTMP + 2}, 256
        v_lshlrev_b32 v{t0}, 2, v{vL}
        v_lshrrev_b32 v{t1}, v{t0}, s23
        v_and_b32 v{t1}, 15, v{t1}
        v_min_u32 v{t1}, 1, v{t1}
        v_mov_b32 v{t2}, {OOB:#x}
        v_cmp_gt_u32 vcc, 7, v{vL}
        s_waitcnt lgkmcnt(0)
        v_cndmask_b32 v{t0}, v{t2}, v{t0}, vcc
        buffer_atomic_add v{t1}, v{t0}, {srd(sTMP)}, 0 offen
        s_sub_u32 s6, s6, s19
        v_mov_b32 v{t1}, s6
        v_cmp_eq_u32 vcc, 8, v{vL}
        v_lshlrev_b32 v{t0}, 2, v{vL}
        s_nop 0
        v_cndmask_b32 v{t0}, v{t2}, v{t0}, vcc
        buffer_atomic_umax v{t1}, v{t0}, {srd(sTMP)}, 0 offen""")
if PROF:
    P += stamp('end')
    P += L(f"""s_waitcnt vmcnt(0)
        s_memrealtime s[0:1]
        s_lshl_b32 s{sT2}, s2, 2
        s_add_u32 s{sT2}, s{sT2}, s{sW}
        s_lshl_b32 s{sT2}, s{sT2}, 7
        s_add_u32 s{sT2}, s{sT2}, {WS_PROF}
        v_mov_b32 v{t1}, s{sT2}
        s_waitcnt lgkmcnt(0)
        v_mov_b32 v{t0}, s0
        buffer_store_dword v{t0}, v{t1}, {srd(sWS)}, 0 offen offset:124
        v_mov_b32 v{t2}, s23
        buffer_store_dword v{t2}, v{t1}, {srd(sWS)}, 0 offen offset:112
        buffer_store_dword a254, v{t1}, {srd(sWS)}, 0 offen offset:116
        buffer_store_dword a255, v{t1}, {srd(sWS)}, 0 offen offset:120""")
    P += stamp('DUMP')
P += [I('L_end:'), I('s_endpgm')]

P = resolve_stamps(P)
if OPT['split']:
    P = split_ds_pairs(P)
if OPT['hoist']:
    P = hoist_reads(P, OPT['hoist'])
body = pad_hazards(insert_waits(P, OPT['age']))
check_polls(body)
tail = []
for name, loads, check in retry_blocks:
    blk = [I(f'L_retry_{name}:'), I(f's_mov_b32 s3, {OPT["spin"]}'), I(f'L_spin_{name}:')]
    if PROF or OPT['dbg']:
        blk.append(I(f's_add_u32 s23, s23, {1 << (4 * retry_blocks.index((name, loads, check)))}'))
    blk += L(loads) + [I('s_waitcnt vmcnt(0)')] + L(check)
    blk += L(f'''s_cbranch_vccz L_back_{name}
        s_sub_u32 s3, s3, 1
        s_cmp_lg_u32 s3, 0
        s_cbranch_scc1 L_spin_{name}
        s_branch L_back_{name}''')
    tail += pad_hazards(blk)

hdr = open(os.path.join(os.path.dirname(os.path.abspath(__file__)), 'header.txt')).read()
text = hdr + f'''; @launch grid=(256,1,1) block=(256,1,1) lds=163840
.amdgcn_target "amdgcn-amd-amdhsa--gfx950"
.text
.globl {KN}
.p2align 8
.type {KN},@function
{KN}:
{render(body)}
{render(tail)}
L_code_end:
    s_endpgm
.section .rodata,"a"
.p2align 6
.amdhsa_kernel {KN}
  .amdhsa_next_free_vgpr 512
  .amdhsa_next_free_sgpr 102
  .amdhsa_accum_offset 256
  .amdhsa_group_segment_fixed_size 0
  .amdhsa_kernarg_size 128
  .amdhsa_user_sgpr_count 2
  .amdhsa_user_sgpr_kernarg_segment_ptr 1
  .amdhsa_system_sgpr_workgroup_id_x 1
.end_amdhsa_kernel
'''
open(sys.argv[1], 'w').write(text)
if PROF:
    open(sys.argv[1][:-2] + '.stamps', 'w').write(' '.join(stamp_names))
from collections import Counter
cnt = Counter(i.kind for i in body)
print(dict(cnt), 'nops', sum(1 for i in body if i.mn == 's_nop'))
import subprocess
chk = subprocess.run([sys.executable, 'cdna_unwritten_srd_check.py', sys.argv[1]],
                     capture_output=True, text=True)
if chk.returncode != 0:
    os.remove(sys.argv[1])
    sys.exit('address check failed: ' + chk.stdout[-600:])
```

```python
import sys, os
sys.path.insert(0, os.path.dirname(os.path.abspath(__file__)))
from asmlib import I, Wait, insert_waits, pad_hazards, render, weave, split_ds_pairs, hoist_reads, merge, level, ds_first, check_polls

KN = 'parallel_sum__ssm_conv_s5__dense_activation_mish__prompt_kernel'
OPT = dict(prof=0, spin=20000, out_flags='nt', map='8x4', pf=2, age=16, laf=5, r1=30, r2=36, r3=29, e3=12, fls=28, fll=50, flc=68, ka2=1, nstep=0, split=0, diag='', dsp=2, xel=0, tlb=0, pk_in=1, lateln=100, d0=4, o8=1, bal=0, fineg=1, xes=0, xfirst=1, parat=4, nb0=2, stg3='8.16.23', stg1='2.7.12.17.22.27', stg2='2.6.14.21', fhp=0, wmix=1, ntx=0, ntg=0, ntw=0, lbt=0, rxe=0, dspc=3, dsps=3, sch=3, g3=24, fn=2, stg=0, q0=2, pfat=24, seqadd=1, epl=1, lean=1, lb2s=0, s2l=0, xlds=0, deep=0, back=1, early=0, gl=0, xl=9, ncr=2, cpf=1, rxall=1, dbg=0, cfs=1, bsp=2, bsa=2, bsb=0, ovl=0, ofa=0, stg4='1.9.17.21', g10=8, wa0=17, hs=2, rotj=0, rotm=0, laj=7, pace=16, lev=0, lev3=0, pa=2, fw=1, xw=0, vmc=2, fine='', fas=-10, fal=12, fac=16, nea=8, fhs=-1, fhl=12, fhc=32, qord=1, lbl=13, lbc=24, ppf=0, hoist=32)
for a in sys.argv[2:]:
    k, v = a.split('=')
    OPT[k] = int(v) if v.lstrip('-').isdigit() else v
PROF = OPT['prof']

WS_EP, WS_AG, WS_A = 0, 0x10000, 0x40000
WS_XC = WS_A + 64 * 176 * 1024
XC_BLK = 2560
WS_FL = WS_XC + 1024 * 3 * XC_BLK
WS_SIZE = WS_FL + 1024 * 512
WS_PROF = 0x1C00000
OOB = 0x7ff00000
SLOT = 16384
TB = 9 * SLOT
T_STAT, T_B1, T_SEG, T_LB, T_H = TB, TB + 1024, TB + 2048, TB + 6144, TB + 8192
LOG2E, LN2, M2LN2 = 0x3fb8aa3b, 0x3f317218, 0xbfb17218

sX, sB, sW1, sCre, sCim, sW2, sWS, sOUT, sTMP = 36, 40, 44, 48, 52, 56, 60, 64, 68
sI, sJ, sW, sROT, sTAG, sE2 = 72, 73, 74, 75, 76, 77
sKC = [78, 79, 80, 81]
sWOFF, sT0, sT1, sXB, sBB, sW1A, sW1B = 82, 83, 84, 85, 86, 87, 88
sAS = 89
sFST = [90, 91, 92, 93]
sSST, sCB, sW2B, sFSEL, sONES, sT3, sJJ, sT2 = 94, 95, 96, 97, 98, 99, 100, 101
sKQ, sPB, sXO = 22, [24, 25, 26], [27, 28, 29, 30]
sSEL = [31, 32, 33, 34]
sFLG = 35
pLRE, pLIM, pBRE, pBIM, pLDT, pDSK, pB1 = 8, 10, 12, 14, 16, 18, 20
srd = lambda b: f's[{b}:{b + 3}]'
vL, t0, t1, t2 = 0, 1, 2, 3
AS = [4, 5, 6, 7]
ASc = [8, 9, 10, 11]
XG = [12, 13, 14, 15]
PG = [16, 17, 18, 19]
QG = [20, 21, 22, 23]
FA0, FAc, RL2, VLN2, VL16, VNM, VRS, t3 = 24, 25, 26, 27, 28, 29, 30, 31
FAd = VNM
NLI, LI, LR, CR, NCI, NCR, L16R, L16I, LSR, LSI, L128R, L128I, WR, WI, PR, PI = range(32, 48)
TT = 48
FACC = [64, 80]
SRE, SIM = 96, 112
X = 128
aS, aF, aP, aOF, aOS, aWO, aXE = 0, 128, 0, 64, 88, 128, 224
STAMP_A = list(range(104, 128)) + list(range(241, 247))
vr = lambda b, n: f'v[{b}:{b + n - 1}]'
ar = lambda b, n: f'a[{b}:{b + n - 1}]'

stamp_names = []
FINE_KEEP = dict(T=['lb1', 'F2', 'scan', 'F3', 'fa0', 'fa1', 'tail', 'fh0'], S=['x7', 'c27', 'b0', 'F0'], F0=['b2', 'F0', 'F1'], F2=['F1', 'F2', 'scan'], F3=['F2', 'scan', 'F3', 'fa0', 'fa1', 'tail'],
                 P3=['tail'], L=['k36', 'sent', 'own', 'rx'])


def fine(phase, items, step):
    if OPT['fine'] == phase:
        for n in range(step - 1, len(items), step):
            items[n] = items[n] + stamp(f'g{n}')
    return items


def stamp(name):
    if PROF == 3 and name not in ('end', 'DUMP'):
        return []
    if OPT['fine'] and not name.startswith('g') and name not in FINE_KEEP[OPT['fine']] + ['end', 'DUMP']:
        return []
    if OPT['diag'] == name:
        return [I('s_memrealtime s[4:5]')]
    return [I(';stamp ' + name)] if PROF else []


def resolve_stamps(prog):
    out = []
    for ins in prog:
        if not ins.text.startswith(';stamp '):
            out.append(ins)
            continue
        name = ins.text.split()[1]
        n = len(stamp_names)
        if n:
            out.append(I(f'v_accvgpr_write_b32 a{STAMP_A[n - 1]}, s{4 + 2 * ((n - 1) & 1)}'))
        if name == 'DUMP':
            out += [I(f'buffer_store_dword a{STAMP_A[k]}, v{t1}, {srd(sWS)}, 0 offen offset:{4 * k}') for k in range(n)]
            continue
        assert n < 29
        stamp_names.append(name)
        out.append(I(f's_mem{"real" if PROF == 2 else ""}time s[{4 + 2 * (n & 1)}:{5 + 2 * (n & 1)}]'))
    return out


def L(text):
    return [I(t.strip()) for t in text.strip().split('\n') if t.strip()]


def mfma(d, a, b, c):
    return I(f'v_mfma_f32_32x32x16_bf16 {d}, {a}, {b}, {c}')


def mksrd(b, lo, size):
    return f's_mov_b32 s{b}, s{lo}\ns_mov_b32 s{b + 1}, s{lo + 1}\ns_mov_b32 s{b + 2}, {size}\ns_mov_b32 s{b + 3}, 0x00020000\n'


slot_shared = {}


def dma_round(name, slot, voffs, rsrc, soff_code, shared):
    out = [I(f's_add_u32 m0, s{sWOFF}, {slot * SLOT}')] + L(soff_code)
    for g in range(4):
        nt = int(name[1:]) < OPT['ntx'] if name[0] == 'x' else OPT['ntg'] if name[0] == 'G' else OPT['ntw']
        out.append(I(f'buffer_load_dwordx4 v{voffs[g]}, {srd(rsrc)}, s{sT0} offen offset:{1024 * g} {"nt " if nt else ""}lds',
                     tok=name if g == 3 else None,
                     lds_w=(slot, slot_shared.get(slot, False)) if g == 0 else None, note=name,
                     fills=(slot, shared) if g == 3 else None))
    slot_shared[slot] = shared
    return out


XSLOT = lambda s: (s & 3) + (5 if OPT['early'] and s < 4 else 1)


def rx(s, slot):
    return dma_round(f'x{s}', XSLOT(s), XG, sX,
                     f's_add_u32 s{sT0}, s{sROT}, {s}\ns_and_b32 s{sT0}, s{sT0}, 7\n'
                     f's_lshl_b32 s{sT0}, s{sT0}, 7\ns_add_u32 s{sT0}, s{sT0}, s{sXB}', False)


G_SLOT = [5, 6, 7, 8, 0, 1, 2, 3, 4, 5, 6, 7]
W_SLOT = dict(WA0=8, CR0=0, CI0=1, WA1=2, WA2=3, WA3=4, CR1=5, CI1=6, WB0=7, WB1=8, WB2=2)


def rg(g):
    if g < 4:
        return dma_round(f'G{g}', G_SLOT[g], PG, sB,
                         f's_lshl_b32 s{sT0}, s{sKC[g]}, 7\ns_add_u32 s{sT0}, s{sT0}, s{sBB}', True)
    base = sW1A if g < 8 else sW1B
    return dma_round(f'G{g}', G_SLOT[g], QG, sW1,
                     f's_mul_i32 s{sT0}, s{sKC[g & 3]}, {64 * 3584}\ns_add_u32 s{sT0}, s{sT0}, s{base}', True)


def rw(name):
    e = int(name[2])
    if name[0] == 'C':
        code = f's_xor_b32 s{sT0}, s{sCB}, {128 * e}'
        return dma_round(name, W_SLOT[name], PG, sCim if name[1] == 'I' else sCre, code, True)
    if name[1] == 'A':
        code = f's_xor_b32 s{sT0}, s{sJJ}, {e}\ns_lshl_b32 s{sT0}, s{sT0}, 17\ns_add_u32 s{sT0}, s{sT0}, s{sW2B}'
    else:
        code = f's_lshl_b32 s{sT0}, s{sPB[e]}, 16\ns_add_u32 s{sT0}, s{sT0}, s{sW2B}'
        if e == 0:
            code += f'\ns_xor_b32 s{sT0}, s{sT0}, s{sSEL[0]}'
    return dma_round(name, W_SLOT[name], XG, sW2, code, True)


STAGE = {n: 160 + 16 * k for k, n in enumerate(x for x in str(OPT['stg']).split('.') if x != '0')}
VST = t0


def stage_load(name):
    keep = dict(slot_shared)
    out = []
    for i_ in rw(name)[1:]:
        if i_.kind == 'vm':
            n = sum(j.kind == 'vm' for j in out)
            i_ = I(i_.text.replace('dwordx4 ', f'dwordx4 {ar(STAGE[name] + 4 * n, 4)}, ').replace(' lds', ''))
            i_.dma = True
        out.append(i_)
    slot_shared.clear()
    slot_shared.update(keep)
    return out


def stage_write(name):
    slot = W_SLOT[name]
    out = [I(f's_add_u32 s{sT0}, s{sWOFF}, {slot * SLOT}'), I(f'v_add_u32 v{VST}, s{sT0}, v{VL16}')]
    out += [I(f'ds_write_b128 v{VST}, {ar(STAGE[name] + 4 * g_, 4)} offset:{1024 * g_}', tok=name if g_ == 3 else None,
              lds_w=(slot, True) if g_ == 0 else None, note=name, fills=(slot, True) if g_ == 3 else None)
            for g_ in range(4)]
    return out


def rw2(name):
    if name not in STAGE:
        return rw(name)
    out = stage_write(name)
    for i_ in out[2:]:
        i_.dma = True
    return out


def pins(*parts):
    pin = {}
    for gap, ins in parts:
        head = [i_ for i_ in ins if not getattr(i_, 'dma', False)]
        pin.setdefault(gap, []).extend(head)
        for n, i_ in enumerate(ins[len(head):]):
            pin.setdefault(gap + n * OPT['dsp'], []).append(i_)
    return pin


BAR = lambda *toks: ([Wait(*toks)] if toks else []) + [I('s_barrier')]
PARK = {n: 247 if k == 16 else 48 + k for k, n in enumerate('pub seg lba0 lba1 lbe0 lbe1 fla flp lbw lbr hw hw2 hr hr2 f3o fp0 fp1'.split())}
PARK['pfa'] = 249


def park(**regs):
    return [I(f'v_accvgpr_write_b32 a{PARK[n]}, v{r}') for n, r in regs.items()]


def fetch(**regs):
    return [I(f'v_accvgpr_read_b32 v{r}, a{PARK[n]}') for n, r in regs.items()]


retry_blocks = []


def poll(name, loads, check):
    retry_blocks.append((name, loads, check))
    return L(check) + [I(f's_cbranch_vccnz L_retry_{name}'), I(f'L_back_{name}:')]


def cexp(dr, di, scale, zr, za):
    return L(f"""v_mul_f32 v{dr}, {scale}, v{zr}
        v_mul_f32 v{di}, {scale}, v{za}
        v_exp_f32 v{dr}, v{dr}
        v_fract_f32 v{di}, v{di}
        v_cos_f32 v{t3}, v{di}
        v_sin_f32 v{di}, v{di}
        v_mul_f32 v{di}, v{dr}, v{di}
        v_mul_f32 v{dr}, v{dr}, v{t3}""")


def cmul_add(dr, di, ar_, ai, br, bi, cr=None, ci=None):
    if cr is None:
        head = f'v_mul_f32 v{dr}, v{ar_}, v{br}\nv_mul_f32 v{di}, v{ar_}, v{bi}'
    else:
        head = f'v_fma_f32 v{dr}, v{ar_}, v{br}, v{cr}\nv_fma_f32 v{di}, v{ar_}, v{bi}, v{ci}'
    return L(head + f'\nv_fma_f32 v{dr}, -v{ai}, v{bi}, v{dr}\nv_fmac_f32 v{di}, v{ai}, v{br}')


def mish(b, voff=VL16, quarters=range(4)):
    A = FACC[b & 1]
    out = []
    for q in quarters:
        rs = range(4 * q, 4 * q + 4)
        out.append(I(f'ds_read_b128 {vr(TT + 4 * q, 4)}, v{t2} offset:{T_B1 - TB + 128 * b + 16 * q}', hoist=True))
        out += [I(f'v_fmac_f32 v{TT + r}, v{A + r}, v{RL2}') for r in rs]
        out += [I(f'v_exp_f32 v{A + r}, v{TT + r}') for r in rs]
        out += [I(f'v_add_f32 v{A + r}, 1.0, v{A + r}') for r in rs]
        out += [I(f'v_fma_f32 v{A + r}, v{A + r}, v{A + r}, 1.0') for r in rs]
        out += [I(f'v_rcp_f32 v{A + r}, v{A + r}') for r in rs]
        out += [I(f'v_fmamk_f32 v{A + r}, v{A + r}, {M2LN2:#x}, v{VLN2}') for r in rs]
        out += [I(f'v_mul_f32 v{TT + r}, v{TT + r}, v{A + r}') for r in rs]
        out += [I(f'v_cvt_pk_bf16_f32 v{A + p}, v{TT + 2 * p}, v{TT + 2 * p + 1}') for p in (2 * q, 2 * q + 1)]
        if q & 1:
            fr = q >> 1
            out.append(I(f'buffer_store_dwordx4 {vr(A + 4 * fr, 4)}, v{voff}, {srd(sWS)}, s{sFST[b]} offen '
                         f'offset:{1024 * fr} sc1', tok=f'stF{b}' if fr else None))
            if b < 3:
                out += [I(f'v_accvgpr_write_b32 a{aOF + 8 * b + 4 * fr + e}, v{A + 4 * fr + e}') for e in range(4)]
    return out


def mish_pk(b, voff, halves=range(2)):
    A = FACC[b & 1]
    out = []
    for q in range(2 * len(halves)):
        out.append(I(f'ds_read_b128 {vr(TT + 4 * q, 4)}, v{t2} offset:{T_B1 - TB + 128 * b + 16 * q}', hoist=True))
    for h in halves:
        ps = range(8 * h, 8 * h + 8, 2)
        rs = range(8 * h, 8 * h + 8)
        out += [I(f'v_pk_fma_f32 {vr(TT + p, 2)}, {vr(A + p, 2)}, {vr(RL2, 2)}, {vr(TT + p, 2)} op_sel_hi:[1,0,1]') for p in ps]
        out += [I(f'v_exp_f32 v{A + r}, v{TT + r}') for r in rs]
        out += [I(f'v_pk_add_f32 {vr(A + p, 2)}, {vr(A + p, 2)}, 1.0 op_sel_hi:[1,0]') for p in ps]
        out += [I(f'v_pk_fma_f32 {vr(A + p, 2)}, {vr(A + p, 2)}, {vr(A + p, 2)}, 1.0 op_sel_hi:[1,1,0]') for p in ps]
        out += [I(f'v_rcp_f32 v{A + r}, v{A + r}') for r in rs]
        out += [I(f'v_pk_fma_f32 {vr(A + p, 2)}, {vr(A + p, 2)}, s[{sKC[0]}:{sKC[1]}], {vr(RL2, 2)} '
                  f'op_sel:[0,0,1] op_sel_hi:[1,0,1]') for p in ps]
        out += [I(f'v_pk_mul_f32 {vr(TT + p, 2)}, {vr(TT + p, 2)}, {vr(A + p, 2)}') for p in ps]
        out += [I(f'v_cvt_pk_bf16_f32 v{A + p // 2}, v{TT + p}, v{TT + p + 1}') for p in ps]
    out += [I(f'v_permlane16_swap_b32 v{A + e}, v{A + 4 + e}') for e in range(4)]
    for h in range(2):
        out.append(I(f'buffer_store_dwordx4 {vr(A + 4 * h, 4)}, v{voff}, {srd(sWS)}, s{sFST[b]} offen '
                     f'offset:{1024 * h} sc1', tok=f'stF{b}' if h else None))
        if b < 3:
            out += [I(f'v_accvgpr_write_b32 a{aOF + 8 * b + 4 * h + e}, v{A + 4 * h + e}') for e in range(4)]
    return out


def mish_stages(b, h):
    m = mish_pk(b, VL16, range(2))
    body = m[4:]
    body = body[40:] if h else body[:40]
    return dict(rd=m[2 * h:2 * h + 2], A=body[0:4], ex=body[4:12], B=body[12:20], rc=body[20:28], C=body[28:36],
                fin=body[36:])


def cmul_pk(d, a, b, c):
    return L(f"""v_pk_fma_f32 {vr(d, 2)}, {vr(b, 2)}, {vr(a, 2)}, {vr(c, 2)} op_sel_hi:[1,0,1]
        v_pk_fma_f32 {vr(d, 2)}, {vr(b, 2)}, {vr(a, 2)}, {vr(d, 2)} op_sel:[1,1,0] op_sel_hi:[0,1,1] neg_lo:[0,1,0]""")


def staged(items, pin, plan):
    out, lo = [], 0
    for hi, fill_, burst_ in plan:
        out += weave(items[lo:hi + 1], fill_, {g_ - lo: v for g_, v in pin.items() if lo <= g_ <= hi}) + burst_
        lo = hi + 1
    return out


_weave = weave
LEV = [OPT['lev']]


def weave(*a):
    out = _weave(*a)
    return ds_first(level(out, LEV[0], OPT['vmc'])) if LEV[0] else out


P = []
if OPT['map'] == '8x4':
    ids = f"""s_and_b32 s{sKQ}, s2, 3
        s_bfe_u32 s{sJJ}, s2, 0x20003
        s_lshr_b32 s{sI}, s2, 5
        s_bfe_u32 s{sT0}, s2, 0x10002
        s_lshl_b32 s{sROT}, s{sT0}, 1
        s_lshl_b32 s{sT0}, s{sT0}, 3
        s_and_b32 s{sT1}, s{sI}, 1
        s_or_b32 s{sI}, s{sI}, s{sT0}
        s_add_u32 s{sROT}, s{sROT}, s{sT1}
        s_add_u32 s{sROT}, s{sROT}, s{sJJ if OPT['rotm'] else sKQ}
        s_lshl_b32 s{sROT}, s{sROT}, 1
        s_and_b32 s{sROT}, s{sROT}, 7"""
else:
    ids = f"""s_and_b32 s{sKQ}, s2, 1
        s_lshl_b32 s{sKQ}, s{sKQ}, 1
        s_lshr_b32 s{sT0}, s2, 7
        s_or_b32 s{sKQ}, s{sKQ}, s{sT0}
        s_bfe_u32 s{sJJ}, s2, 0x20003
        s_bfe_u32 s{sI}, s2, 0x20005
        s_bfe_u32 s{sT0}, s2, 0x20001
        s_add_u32 s{sROT}, s{sT0}, s{sKQ}
        s_lshl_b32 s{sT0}, s{sT0}, 2
        s_or_b32 s{sI}, s{sI}, s{sT0}
        s_lshl_b32 s{sROT}, s{sROT}, 1
        {'s_lshr_b32 s%d, s2, 7' % sT0 if OPT['rotm'] else ''}
        {'s_lshl_b32 s%d, s%d, 1' % (sROT, sJJ) if OPT['rotm'] else ''}
        {'s_add_u32 s%d, s%d, s%d' % (sROT, sROT, sT0) if OPT['rotm'] else ''}
        s_and_b32 s{sROT}, s{sROT}, 7"""
code_pf = f'buffer_load_dword v{t3}, v{FACC[0] if OPT["cpf"] == 2 else t1}, {srd(sTMP)}, s{sFLG if OPT["cpf"] == 2 else sT0} offen'
ws_load = f's_load_dwordx2 s[{sWS}:{sWS + 1}], s[0:1], 120'
more_loads = f"""s_load_dwordx8 s[{pLRE}:{pLRE + 7}], s[0:1], 8
s_load_dwordx4 s[{pLDT}:{pLDT + 3}], s[0:1], 56
s_load_dwordx2 s[{pB1}:{pB1 + 1}], s[0:1], 88
s_load_dwordx2 s[{sW1}:{sW1 + 1}], s[0:1], 80
s_load_dwordx2 s[{sCre}:{sCre + 1}], s[0:1], 40
s_load_dwordx2 s[{sCim}:{sCim + 1}], s[0:1], 48
s_load_dwordx2 s[{sW2}:{sW2 + 1}], s[0:1], 96
s_load_dwordx2 s[{sOUT}:{sOUT + 1}], s[0:1], 104
"""
SUM, SQ = [TT + 8, TT + 9], [TT + 10, TT + 11]
sizes = ((sX, 2097152), (sB, 524288), (sW1, 1835008), (sCre, 524288), (sCim, 524288), (sW2, 1835008),
         (sWS, (WS_PROF + 0x40000) if PROF else WS_SIZE), (sOUT, 4194304))
P += L(f"""
s_cmp_ge_u32 s2, 256
s_cbranch_scc1 L_end
{'s_memtime s[98:99]' if PROF else ''}
{'s_memrealtime s[90:91]' if PROF or OPT['diag'] or OPT['dbg'] else ''}
{'s_load_dwordx2 s[4:5], s[0:1], 112' if OPT['dbg'] else ''}
s_load_dwordx2 s[{sX}:{sX + 1}], s[0:1], 0
{'' if OPT['ka2'] else ws_load}
s_getpc_b64 s[{sTMP}:{sTMP + 1}]
v_lshrrev_b32 v{t0}, 6, v0
v_and_b32 v{vL}, 63, v0
s_and_b32 s{sTMP}, s{sTMP}, 0xffffff80
v_readfirstlane_b32 s{sW}, v{t0}
s_mov_b32 s{sTMP + 2}, L_code_end-{KN}
s_mov_b32 s{sTMP + 3}, 0x00020000
s_lshr_b32 s{sT0}, s2, 3
s_lshl_b32 s{sT0}, s{sT0}, 2
s_add_u32 s{sT0}, s{sT0}, s{sW}
s_lshl_b32 s{sT0}, s{sT0}, 9
v_and_b32 v{t1}, 3, v{vL}
v_lshlrev_b32 v{t1}, 7, v{t1}
{'' if OPT['cpf'] == 2 else code_pf}
{'' if OPT['ka2'] else more_loads}
v_lshrrev_b32 v{t0}, 3, v{vL}
v_lshrrev_b32 v{t1}, 4, v{vL}
v_xor_b32 v{t1}, v{t1}, v{vL}
v_and_b32 v{t1}, 7, v{t1}
v_lshlrev_b32 v{t1}, 4, v{t1}
v_lshl_add_u32 v{PG[0]}, v{t0}, 10, v{t1}
v_lshrrev_b32 v{t2}, 5, v{vL}
v_mul_u32_u24 v{t2}, {12 * 1024}, v{t2}
v_add_u32 v{XG[0]}, v{PG[0]}, v{t2}
v_xor_b32 v{XG[1]}, 64, v{XG[0]}
v_add_u32 v{XG[2]}, {6 * 1024}, v{XG[0]}
v_add_u32 v{XG[3]}, {9 * 1024}, v{XG[1]}
v_add_u32 v{XG[1]}, {3 * 1024}, v{XG[1]}
s_lshl_b32 s{sWOFF}, s{sW}, 12
{ids}
s_lshl_b32 s{sXB}, s{sI}, 17
s_lshl_b32 s{sT0}, s{sW}, 15
s_add_u32 s{sXB}, s{sXB}, s{sT0}
""" + ''.join(f's_mov_b32 s{b + 2}, {n}\ns_mov_b32 s{b + 3}, 0x00020000\n' for b, n in sizes[:1 if OPT['lean'] else 8]) + f"""
s_waitcnt lgkmcnt(0)
{'v_accvgpr_write_b32 a254, s98' if PROF else ''}
{'v_accvgpr_write_b32 a255, s90' if PROF else ''}
{'s_mov_b32 s23, 0' if PROF or OPT['dbg'] else ''}
{'s_mov_b32 s3, s90' if OPT['dbg'] else ''}
{'s_mov_b32 s23, s90' if OPT['diag'] else ''}
""")
P += stamp('ka') if OPT['diag'] else []
P += rx(0, 0) + (L(ws_load + '\n' + more_loads) if OPT['ka2'] else []) + rx(1, 1)
if OPT['lean']:
    P += L(''.join(f's_mov_b32 s{b + 2}, {n}\ns_mov_b32 s{b + 3}, 0x00020000\n' for b, n in sizes[1:]))
P += L(f"""
v_and_b32 v{t0}, 31, v{vL}
s_lshl_b32 s{sJ}, s{sKQ}, 2
s_or_b32 s{sJ}, s{sJ}, s{sJJ}
v_lshrrev_b32 v{t1}, 5, v{vL}
v_bfe_u32 v{t2}, v{vL}, 1, 3
v_xor_b32 v{t1}, v{t1}, v{t2}
v_lshlrev_b32 v{t1}, 4, v{t1}
v_lshl_add_u32 v{AS[0]}, v{t0}, 7, v{t1}
v_xor_b32 v{AS[1]}, 32, v{AS[0]}
v_xor_b32 v{AS[2]}, 64, v{AS[0]}
v_xor_b32 v{AS[3]}, 0x60, v{AS[0]}
s_add_u32 s{sT0}, s{sWOFF}, {XSLOT(0) * SLOT}
v_add_u32 v{ASc[0]}, s{sT0}, v{AS[0]}
v_add_u32 v{ASc[1]}, s{sT0}, v{AS[1]}
v_add_u32 v{ASc[2]}, s{sT0}, v{AS[2]}
v_add_u32 v{ASc[3]}, s{sT0}, v{AS[3]}
s_mov_b32 s{sONES}, 0x3f803f80
v_mov_b32 v{SUM[0]}, 0
v_mov_b32 v{SUM[1]}, 0
v_mov_b32 v{SQ[0]}, 0
v_mov_b32 v{SQ[1]}, 0
s_lshl_b32 s{sT0}, s{sW}, 9
s_add_u32 s{sT0}, s{sT0}, {T_SEG}
v_lshl_add_u32 v{t0}, v{vL}, 3, s{sT0}""")
P.append(I(f'ds_write_b64 v{t0}, {vr(SUM[0], 2)}', tok='zero'))
P += L(f's_waitcnt lgkmcnt(0)\ns_load_dword s{sE2}, s[{sWS}:{sWS + 1}], {WS_EP}')
mid = L(f"""
v_and_b32 v{t0}, 31, v{vL}
s_lshl_b32 s{sT1}, s{sJ}, 6
v_lshl_add_u32 v{NLI}, v{t0}, 1, s{sT1}
s_and_b32 s{sT3}, s{sW}, 1
s_mul_i32 s{sT2}, s{sKQ}, 7
s_lshl_b32 s{sW1A}, s{sJJ}, 1
s_add_u32 s{sPB[0]}, s{sW1A}, 1
s_cmp_eq_u32 s{sJJ}, 3
s_cselect_b32 s{sPB[0]}, 3, s{sPB[0]}
s_cselect_b32 s{sFSEL}, 64, 0
s_add_u32 s{sW1A}, s{sW1A}, s{sT2}
s_add_u32 s{sW1B}, s{sPB[0]}, s{sT2}
s_lshl_b32 s{sW1A}, s{sW1A}, 7
s_lshl_b32 s{sW1B}, s{sW1B}, 7
s_cmp_ge_u32 s{sW}, 2
s_cselect_b32 s{sT2}, s{sW1B}, s{sW1A}
s_cselect_b32 s{sT1}, s{sFSEL}, 0
s_add_u32 s{sT2}, s{sT2}, s{sT1}
s_lshl_b32 s{sT1}, s{sT3}, 6
s_xor_b32 s{sT2}, s{sT2}, s{sT1}
v_and_b32 v{t1}, 3, v{vL}
v_bfe_u32 v{t2}, v{vL}, 2, 2
v_lshl_add_u32 v{t1}, v{t2}, 3, v{t1}
v_bfe_u32 v{t2}, v{vL}, 4, 1
v_lshl_add_u32 v{t1}, v{t2}, 2, v{t1}
v_lshl_add_u32 v{PR}, v{t1}, 1, s{sT2}
s_cmp_eq_u32 s{sT3}, 1
s_cselect_b32 s{sB}, s{pBIM}, s{pBRE}
s_cselect_b32 s{sB + 1}, s{pBIM + 1}, s{pBRE + 1}
s_mul_i32 s{sT3}, s{sT3}, {32 * 3584}
s_add_u32 s{sW1A}, s{sW1A}, s{sT3}
s_add_u32 s{sW1B}, s{sW1B}, s{sT3}
s_lshl_b32 s{sBB}, s{sJ}, 15
s_lshr_b32 s{sT1}, s{sW}, 1
s_add_u32 s{sT1}, s{sT1}, s{sROT}
s_and_b32 s{sKC[0]}, s{sT1}, 7
s_add_u32 s{sT1}, s{sT1}, 2
s_and_b32 s{sKC[1]}, s{sT1}, 7
s_add_u32 s{sT1}, s{sT1}, 2
s_and_b32 s{sKC[2]}, s{sT1}, 7
s_add_u32 s{sT1}, s{sT1}, 2
s_and_b32 s{sKC[3]}, s{sT1}, 7
v_xor_b32 v{PG[1]}, 64, v{PG[0]}
v_add_u32 v{PG[2]}, {14 * 1024}, v{PG[0]}
v_add_u32 v{PG[3]}, {21 * 1024}, v{PG[1]}
v_add_u32 v{PG[1]}, {7 * 1024}, v{PG[1]}
v_and_b32 v{t2}, 1, v{vL}
v_lshlrev_b32 v{t2}, 4, v{t2}
v_mov_b32 v{VNM}, 0x3f80
v_lshlrev_b32 v{t2}, v{t2}, v{VNM}
v_bfe_i32 v{t0}, v{vL}, 1, 1
v_and_b32 v{TT + 1}, v{t0}, v{t2}
v_xor_b32 v{TT}, v{TT + 1}, v{t2}
""")
mid += L(f"""
v_lshrrev_b32 v{t1}, 3, v{vL}
v_mul_u32_u24 v{t1}, 3584, v{t1}
v_bfe_u32 v{t2}, v{vL}, 4, 1
v_lshlrev_b32 v{t2}, 2, v{t2}
v_xor_b32 v{t2}, v{t2}, v{vL}
v_and_b32 v{t2}, 7, v{t2}
v_lshl_add_u32 v{QG[0]}, v{t2}, 4, v{t1}
v_add_u32 v{QG[1]}, {27648}, v{QG[0]}
v_add_u32 v{QG[2]}, {2 * 27648}, v{QG[0]}
v_add_u32 v{QG[3]}, {3 * 27648}, v{QG[0]}
""")
late = L(f"""
s_mul_i32 s{sE2}, s{sE2}, 1664525
s_add_u32 s{sE2}, s{sE2}, 1013904226
s_or_b32 s{sTAG}, s{sE2}, 1
v_bfe_u32 v{t1}, v{vL}, 2, 2
v_lshrrev_b32 v{t2}, 5, v{vL}
v_lshl_add_u32 v{t2}, v{t2}, 3, v{t1}
v_lshlrev_b32 v{FA0}, 7, v{t2}
v_lshrrev_b32 v{t1}, 1, v{t1}
v_lshl_add_u32 v{FA0}, v{t1}, 6, v{FA0}
v_bfe_u32 v{t1}, v{vL}, 4, 1
v_lshl_add_u32 v{FA0}, v{t1}, 5, v{FA0}
v_and_b32 v{t1}, 3, v{vL}
v_lshl_add_u32 v{FA0}, v{t1}, 3, v{FA0}
v_lshlrev_b32 v{VL16}, 4, v{vL}
v_mov_b32 v{VLN2}, {LN2:#x}
s_cmp_eq_u32 s{sPB[0]}, 1
s_cselect_b32 s{sPB[1]}, 3, 1
s_cmp_eq_u32 s{sPB[0]}, 5
s_cselect_b32 s{sPB[2]}, 3, 5
s_lshl_b32 s{sSEL[0]}, s{sFSEL}, 9
s_lshl_b32 s{sAS}, s{sI}, 2
s_add_u32 s{sAS}, s{sAS}, s{sW}
s_lshl_b32 s{sAS}, s{sAS}, 2
s_add_u32 s{sAS}, s{sAS}, s{sKQ}
s_lshl_b32 s{sFLG}, s{sAS}, 11
s_add_u32 s{sFLG}, s{sFLG}, {WS_FL}
s_mul_i32 s{sAS}, s{sAS}, {44 * 1024}
s_add_u32 s{sAS}, s{sAS}, {WS_A}
s_lshl_b32 s{sT2}, s{sJJ}, 13
s_add_u32 s{sFST[0]}, s{sAS}, s{sT2}
s_add_u32 s{sFST[1]}, s{sFST[0]}, 2048
s_lshl_b32 s{sT2}, s{sPB[0]}, 12
s_add_u32 s{sFST[3]}, s{sAS}, s{sT2}
s_lshl_b32 s{sT2}, s{sFSEL}, 5
s_add_u32 s{sFST[2]}, s{sFST[3]}, s{sT2}
s_add_u32 s{sFST[3]}, s{sFST[3]}, 2048
s_lshl_b32 s{sT2}, s{sJJ}, 12
s_add_u32 s{sSST}, s{sAS}, s{sT2}
s_add_u32 s{sSST}, s{sSST}, {28 * 1024}
s_xor_b32 s{sT2}, s{sW}, s{sKQ}
s_lshl_b32 s{sT2}, s{sT2}, 15
s_lshl_b32 s{sCB}, s{sJJ}, 17
s_add_u32 s{sCB}, s{sCB}, s{sT2}
s_lshl_b32 s{sT2}, s{sKQ}, 8
s_add_u32 s{sCB}, s{sCB}, s{sT2}
s_lshr_b32 s{sT2}, s{sJJ}, 1
s_lshl_b32 s{sT2}, s{sT2}, 7
s_add_u32 s{sCB}, s{sCB}, s{sT2}
s_mul_i32 s{sW2B}, s{sKQ}, {448 * 1024}
s_lshr_b32 s{sT2}, s{sW}, 1
s_lshl_b32 s{sT2}, s{sT2}, 15
s_add_u32 s{sW2B}, s{sW2B}, s{sT2}
s_lshl_b32 s{sT2}, s{sJJ}, 8
s_add_u32 s{sW2B}, s{sW2B}, s{sT2}
s_lshr_b32 s{sT2}, s{sKQ}, 1
s_xor_b32 s{sT2}, s{sT2}, s{sW}
s_and_b32 s{sT2}, s{sT2}, 1
s_lshl_b32 s{sT2}, s{sT2}, 7
s_add_u32 s{sW2B}, s{sW2B}, s{sT2}
s_lshl_b32 s{sT2}, s{sI}, 4
s_add_u32 s{sT2}, s{sT2}, s{sJJ}
s_lshl_b32 s{sT2}, s{sT2}, 2
s_add_u32 s{sT2}, s{sT2}, s{sW}""")
for b in range(4):
    late += L(f"""s_xor_b32 s{sT3}, s{sKQ}, {b}
        s_lshl_b32 s{sT3}, s{sT3}, 4
        s_add_u32 s{sT3}, s{sT3}, s{sT2}
        s_mul_i32 s{sT3}, s{sT3}, {3 * XC_BLK}
        s_add_u32 s{sXO[b]}, s{sT3}, {WS_XC + (b - 1) * XC_BLK if b else WS_XC}""")
late += L(f"""s_add_u32 s{sSEL[2]}, s{sXO[0]}, {XC_BLK}
    s_add_u32 s{sSEL[3]}, s{sXO[0]}, {2 * XC_BLK}
    s_and_b32 s{sT3}, s{sJJ}, 1
    s_sub_u32 s{sSEL[1]}, 6, s{sT3}""")
pf = []
if OPT['pf'] == 2:
    late += L(f"""
s_and_b32 s{sT1}, s{sI}, 7
s_lshl_b32 s{sT2}, s{sT1}, 1
s_add_u32 s{sT2}, s{sT2}, s{sW}
s_mul_i32 s{sT2}, s{sT2}, 28
s_mul_i32 s{sT3}, s{sKQ}, 448
s_add_u32 s{sT2}, s{sT2}, s{sT3}
s_lshl_b32 s{sT2}, s{sT2}, 2
s_add_u32 s{sT2}, s{sT2}, s{sJJ}
s_lshl_b32 s{sT3}, s{sJJ}, 3
s_add_u32 s{sT3}, s{sT3}, s{sT1}
s_lshl_b32 s{sT3}, s{sT3}, 6
s_add_u32 s{sT3}, s{sT3}, s{sKQ}
s_cmp_lt_u32 s{sW}, 2
s_cselect_b32 s{sT2}, s{sT2}, s{sT3}
s_cselect_b32 s{sT3}, 56, 32
s_cselect_b32 s{sTMP}, s{sW2}, s{sCre}
s_cselect_b32 s{sTMP + 1}, s{sW2 + 1}, s{sCre + 1}
s_cselect_b32 s{sTMP + 2}, s{sW2 + 2}, s{sCre + 2}
s_cmp_eq_u32 s{sW}, 3
s_cselect_b32 s{sTMP}, s{sCim}, s{sTMP}
s_cselect_b32 s{sTMP + 1}, s{sCim + 1}, s{sTMP + 1}""")
elif OPT['pf']:
    late += L(f"""
s_mul_i32 s{sT2}, s{sKQ}, 448
s_mul_i32 s{sT3}, s{sI}, 28
s_add_u32 s{sT2}, s{sT2}, s{sT3}
s_lshl_b32 s{sT2}, s{sT2}, 2
s_add_u32 s{sT2}, s{sT2}, s{sJJ}
s_lshl_b32 s{sT3}, s{sJJ}, 4
s_add_u32 s{sT3}, s{sT3}, s{sI}
s_lshl_b32 s{sT3}, s{sT3}, 5
s_add_u32 s{sT3}, s{sT3}, s{sKQ}
s_cmp_eq_u32 s{sW}, 0
s_cselect_b32 s{sT2}, s{sT2}, s{sT3}
s_cselect_b32 s{sT3}, 56, 16
s_cselect_b32 s{sTMP}, s{sW2}, s{sCre}
s_cselect_b32 s{sTMP + 1}, s{sW2 + 1}, s{sCre + 1}
s_cselect_b32 s{sTMP + 2}, s{sW2 + 2}, s{sCre + 2}
s_cmp_eq_u32 s{sW}, 2
s_cselect_b32 s{sTMP}, s{sCim}, s{sTMP}
s_cselect_b32 s{sTMP + 1}, s{sCim + 1}, s{sTMP + 1}
s_cmp_eq_u32 s{sW}, 3
s_cselect_b32 s{sT3}, 0, s{sT3}""")
if OPT['pf']:
    late += L(f"""s_lshl_b32 s{sT2}, s{sT2}, 8
v_lshrrev_b32 v{t0}, 1, v{vL}
v_and_b32 v{t1}, 1, v{vL}
v_lshlrev_b32 v{t1}, 7, v{t1}
v_lshl_add_u32 v{t0}, v{t0}, 10, v{t1}
v_add_u32 v{t0}, s{sT2}, v{t0}
v_mov_b32 v{t1}, {OOB:#x}
v_cmp_gt_u32 vcc, s{sT3}, v{vL}
v_cndmask_b32 v{PI}, v{t1}, v{t0}, vcc""")
    pf = L(f'buffer_load_dword a248, v{PI}, {srd(sTMP)}, 0 offen')

Z = TT + 2
consts = L(f"""
v_lshlrev_b32 v{NLI}, 16, v{NLI}
v_mul_f32 v{NLI}, {LOG2E:#x}, v{NLI}
v_exp_f32 v{NLI}, v{NLI}
v_lshlrev_b32 v{Z + 2}, 16, v{LR}
v_lshlrev_b32 v{Z + 3}, 16, v{LI}
v_cvt_pk_bf16_f32 v{NLI}, v{NLI}, v{NLI}
v_lshlrev_b32 v{NLI}, 16, v{NLI}
v_mul_f32 v{Z}, v{NLI}, v{Z + 2}
v_mul_f32 v{Z + 1}, v{NLI}, v{Z + 3}
v_mul_f32 v{Z}, {LOG2E:#x}, v{Z}
v_mul_f32 v{Z + 1}, 0xbe22f983, v{Z + 1}""")
consts += cexp(LR, LI, '1.0', Z, Z + 1)
consts += L(f"""
v_mul_f32 v{Z + 4}, v{Z + 2}, v{Z + 2}
v_fmac_f32 v{Z + 4}, v{Z + 3}, v{Z + 3}
v_rcp_f32 v{Z + 4}, v{Z + 4}
v_add_f32 v{Z + 5}, -1.0, v{LR}
v_sub_f32 v{NLI}, 0, v{LI}
v_add_f32 v{Z + 4}, v{Z + 4}, v{Z + 4}
v_mul_f32 v{CR}, v{Z + 5}, v{Z + 2}
v_fmac_f32 v{CR}, v{NLI}, v{Z + 3}
v_mul_f32 v{NCI}, v{Z + 5}, v{Z + 3}
v_fmac_f32 v{NCI}, v{LI}, v{Z + 2}
v_mul_f32 v{CR}, v{CR}, v{Z + 4}
v_mul_f32 v{NCI}, v{NCI}, v{Z + 4}
v_sub_f32 v{NCR}, 0, v{CR}""")
consts += cexp(L16R, L16I, '0x41800000', Z, Z + 1)
consts += cexp(L128R, L128I, '0x43000000', Z, Z + 1)
consts += L(f"""
v_lshrrev_b32 v{Z + 6}, 5, v{vL}
s_lshl_b32 s{sT2}, s{sW}, 1
v_add_u32 v{Z + 6}, s{sT2}, v{Z + 6}
v_cvt_f32_u32 v{Z + 6}, v{Z + 6}
v_mul_f32 v{Z + 7}, 0x41800000, v{Z + 6}
v_sub_f32 v{Z + 6}, 0x40e00000, v{Z + 6}
v_mul_f32 v{Z + 6}, 0x43800000, v{Z + 6}""")
consts += cexp(LSR, LSI, f'v{Z + 7}', Z, Z + 1)
consts += cexp(WR, WI, f'v{Z + 6}', Z, Z + 1)
consts += L(f"""v_lshlrev_b32 v{PR}, 16, v{PR}
v_mul_f32 v{PR}, {LOG2E:#x}, v{PR}
v_and_b32 v{t1}, 31, v{vL}
s_lshl_b32 s{sT1}, s{sW}, 7
s_add_u32 s{sT1}, s{sT1}, {T_B1}
v_lshl_add_u32 v{t1}, v{t1}, 2, s{sT1}
""") + [I(f'ds_write_b32 v{t1}, v{PR}', tok='b1w')]
later = []
Y = SRE
later += L(f"""v_and_b32 v{Y}, 31, v{vL}
    v_lshlrev_b32 v{Y + 1}, 3, v{Y}
    v_add_u32 v{Y + 1}, {T_LB}, v{Y + 1}
    v_lshrrev_b32 v{t0}, 5, v{vL}
    s_lshl_b32 s{sT2}, s{sW}, 11
    s_add_u32 s{sT2}, s{sT2}, {T_H}
    v_lshl_add_u32 v{Y}, v{Y}, 6, s{sT2}
    v_bfe_u32 v{Y + 2}, v{vL}, 1, 2
    v_lshlrev_b32 v{Y + 3}, 1, v{t0}
    v_xor_b32 v{Y + 2}, v{Y + 2}, v{Y + 3}
    v_bfe_u32 v{Y + 3}, v{vL}, 3, 1
    v_xor_b32 v{Y + 2}, v{Y + 2}, v{Y + 3}
    v_lshl_add_u32 v{Y}, v{Y + 2}, 4, v{Y}
    v_xor_b32 v{Y + 3}, 16, v{Y}
    v_bfe_u32 v{Y + 6}, v{vL}, 2, 2
    v_lshrrev_b32 v{t1}, 4, v{vL}
    v_lshl_add_u32 v{Y + 2}, v{t1}, 3, v{Y + 6}
    v_lshl_add_u32 v{Y + 2}, v{Y + 2}, 6, s{sT2}
    v_and_b32 v{t1}, 1, v{vL}
    v_lshl_add_u32 v{Y + 2}, v{t1}, 5, v{Y + 2}
    v_lshrrev_b32 v{t1}, 1, v{vL}
    v_xor_b32 v{t1}, v{t1}, v{vL}
    v_and_b32 v{t1}, 8, v{t1}
    v_lshl_add_u32 v{Y + 2}, v{t1}, 1, v{Y + 2}
    v_bfe_u32 v{t1}, v{vL}, 1, 1
    v_lshl_add_u32 v{Y + 2}, v{t1}, 3, v{Y + 2}
    v_bfe_u32 v{t1}, v{vL}, 4, 1
    v_lshl_add_u32 v{Y + 5}, v{t0}, 2, v{Y + 6}
    v_lshl_add_u32 v{Y + 5}, v{t1}, 4, v{Y + 5}
    v_lshlrev_b32 v{Y + 5}, 7, v{Y + 5}
    s_and_b32 s{sT2}, s{sKQ}, 1
    v_xor_b32 v{t1}, s{sT2}, v{t1}
    v_lshl_add_u32 v{Y + 5}, v{t1}, 6, v{Y + 5}
    v_bfe_u32 v{t1}, v{vL}, 3, 1
    v_lshl_add_u32 v{Y + 5}, v{t1}, 5, v{Y + 5}
    v_and_b32 v{t1}, 3, v{vL}
    v_lshl_add_u32 v{Y + 5}, v{t1}, 3, v{Y + 5}
    v_and_b32 v{Y + 6}, 15, v{vL}
    v_lshrrev_b32 v{t1}, 4, v{vL}
    v_bfe_u32 v{Y + 4}, v{vL}, 1, 3
    v_xor_b32 v{t1}, v{t1}, v{Y + 4}
    v_lshlrev_b32 v{t1}, 4, v{t1}
    v_lshl_add_u32 v{Y + 6}, v{Y + 6}, 7, v{t1}
    s_and_b32 s{sT2}, s{sJJ}, 1
    s_lshl_b32 s{sT2}, s{sT2}, 6
    v_xor_b32 v{Y + 6}, s{sT2}, v{Y + 6}
    s_lshl_b32 s{sT2}, s{sW}, 9
    s_add_u32 s{sT1}, s{sT2}, {T_SEG}
    s_add_u32 s{sT2}, s{sT2}, {T_LB}
    v_lshl_add_u32 v{Y + 7}, v{vL}, 3, s{sT1}
    v_lshl_add_u32 v{Y + 8}, v{vL}, 3, s{sT2}""")
later += park(hw=Y, lbr=Y + 1, hr=Y + 2, hw2=Y + 3, fp0=Y + 5, fp1=Y + 6, seg=Y + 7, lbw=Y + 8)
park2 = []
Y = FACC[0]
park2 += L(f"""s_lshl_b32 s{sT2}, s{sJ}, 4
    s_add_u32 s{sT2}, s{sT2}, s{sI}
    s_lshl_b32 s{sT2}, s{sT2}, 9
    s_add_u32 s{sT2}, s{sT2}, {WS_AG - 512}
    s_cmp_eq_u32 s{sW}, 3
    s_cselect_b32 s{sT2}, s{sT2}, {OOB:#x}
    v_mov_b32 v{Y + 8}, {OOB:#x}
    v_cmp_gt_u32 vcc, 32, v{vL}
    v_add_u32 v{Y}, s{sT2}, v{VL16}
    v_lshrrev_b32 v{t0}, 5, v{vL}
    v_cndmask_b32 v{Y}, v{Y}, v{Y + 8}, vcc
    s_lshl_b32 s{sT2}, s{sW}, 2
    s_add_u32 s{sT2}, s{sT2}, s{sI}
    s_sub_u32 s{sT2}, s{sT2}, 16
    v_lshl_add_u32 v{t0}, v{t0}, 1, s{sT2}
    s_lshl_b32 s{sT2}, s{sJ}, 13
    s_add_u32 s{sT2}, s{sT2}, {WS_AG}
    v_and_b32 v{Y + 9}, 31, v{vL}
    v_lshl_add_u32 v{t1}, v{Y + 9}, 4, s{sT2}
    v_lshl_add_u32 v{Y + 1}, v{t0}, 9, v{t1}
    v_cmp_gt_i32 vcc, 0, v{t0}
    v_add_u32 v{Y + 2}, 512, v{Y + 1}
    v_mov_b32 v{t1}, s{sTAG}
    v_cndmask_b32 v{Y + 1}, v{Y + 1}, v{Y + 8}, vcc
    v_cndmask_b32 v{Y + 3}, v{t1}, 0, vcc
    v_cmp_gt_i32 vcc, -1, v{t0}
    s_lshl_b32 s{sT2}, s{sJJ}, 9
    s_add_u32 s{sT2}, s{sT2}, s{sFLG}
    v_cndmask_b32 v{Y + 2}, v{Y + 2}, v{Y + 8}, vcc
    v_cndmask_b32 v{Y + 4}, v{t1}, 0, vcc
    v_lshl_add_u32 v{Y + 5}, v{Y + 9}, 2, s{sT2}
    v_and_b32 v{t0}, 3, v{vL}
    v_max_u32 v{t0}, 1, v{t0}
    v_xor_b32 v{t0}, s{sJJ}, v{t0}
    v_lshl_add_u32 v{Y + 6}, v{t0}, 9, s{sFLG}
    s_bitcmp1_b32 s{sJJ}, 0
    s_cselect_b32 s{sT2}, {OOB:#x}, 0
    v_add_u32 v{Y + 7}, s{sT2}, v{VL16}
    """)
park2 += park(pfa=PI)
park2 += park(pub=Y, lba0=Y + 1, lba1=Y + 2, lbe0=Y + 3, lbe1=Y + 4, fla=Y + 5, flp=Y + 6, f3o=Y + 7)
params = L(f"""global_load_ushort v{LR}, v{NLI}, s[{pLRE}:{pLRE + 1}]
    global_load_ushort v{LI}, v{NLI}, s[{pLIM}:{pLIM + 1}]
    global_load_ushort v{NLI}, v{NLI}, s[{pLDT}:{pLDT + 1}]
    global_load_ushort v{PR}, v{PR}, s[{pB1}:{pB1 + 1}]""")
XO_START = max(n for n, i_ in enumerate(late) if i_.text == f's_lshl_b32 s{sT2}, s{sI}, 4')
late_b = []
if OPT['lb2s']:
    late, late_b = late[:XO_START], late[XO_START:]
    park2 = [i_ for i_ in park2 if f'a{PARK["pfa"]},' not in i_.text]
if OPT['lb2s'] == 2:
    late_b, park2 = park2 + late_b, []
nl = len(late) * OPT['lateln'] // 100
while nl < len(late) and late[nl - 1].mn.startswith(('s_cmp', 'v_cmp', 's_cselect')) or (nl < len(late) and late[nl].mn.startswith('v_cndmask')):
    nl += 1
if nl >= len(late):
    later, late, park2 = later + late + park2, [], []
else:
    later, late = later + late[:nl], late[nl:]
zero_xe = [I(f'v_accvgpr_write_b32 a{aXE + r}, 0') for r in range(17)]
XA, sSTAR = FACC[1], sXO[3]
if OPT['xlds']:
    P += zero_xe + L(f"""s_lshl_b32 s{sSTAR}, s{sJJ}, 1
        s_lshr_b32 s{sT1}, s{sKQ}, 1
        s_add_u32 s{sSTAR}, s{sSTAR}, s{sT1}
        s_sub_u32 s{sSTAR}, s{sSTAR}, s{sROT}
        s_and_b32 s{sSTAR}, s{sSTAR}, 7
        s_and_b32 s{sT1}, s{sKQ}, 1
        v_lshrrev_b32 v{t0}, 5, v{vL}
        v_xor_b32 v{t1}, s{sT1}, v{t0}
        v_bfe_u32 v{t2}, v{vL}, 3, 2
        v_lshl_add_u32 v{t1}, v{t1}, 2, v{t2}
        v_lshlrev_b32 v{t1}, 4, v{t1}
        v_lshl_add_u32 v{t1}, v{t0}, 10, v{t1}
        v_and_b32 v{t2}, 7, v{vL}
        v_lshl_add_u32 v{t1}, v{t2}, 1, v{t1}
        s_add_u32 s{sT1}, s{sWOFF}, {SLOT}
        v_add_u32 v{XA}, s{sT1}, v{t1}""") + [I(f'v_xor_b32 v{XA + v}, {16 * v}, v{XA}') for v in (1, 2, 3)]
    zero_xe = []
later = mid + later + zero_xe
BACK = {1: '0 6 14 24 38 56 78', 2: '0 12 22 30 42 58 78', 3: '0 21 23 30 42 58 78'}
cuts = [0]
for n in range(1, 7):
    c = n * len(later) // 7 if not OPT['back'] else len(later) * [int(x) for x in BACK[OPT['back']].split()][n] // 100
    while later[c].mn.startswith(('s_cselect', 'v_cndmask', 's_nop')) or later[c - 1].mn.startswith('v_cmp'):
        c += 1
    cuts.append(c)
cuts.append(len(later))

touch_w = L(f'v_mov_b32 v{PI}, 0') + [
    I(f'buffer_load_dword a{56 + n}, v{PI}, {srd(r)}, 0 offen') for n, r in enumerate((sW1, sCre, sCim, sW2))]
touch_o = L(f"""v_min_u32 v{PR}, {WS_SIZE >> 21}, v{vL}
    v_lshlrev_b32 v{PR}, 21, v{PR}
    v_add_u32 v{PR}, 0x800, v{PR}
    buffer_load_dword a60, v{PR}, {srd(sWS)}, 0 offen
    buffer_load_dword a61, v{PR}, {srd(sOUT)}, 0 offen""")
if OPT['tlb'] in (1, 3, 4):
    P += touch_w
if OPT['tlb'] == 1:
    P += touch_o
P += rx(2, 2) + (rx(3, 3) if OPT['deep'] else []) + [I('s_waitcnt lgkmcnt(0)')]
pos = lambda text: max(n for n, i_ in enumerate(later) if i_.text.startswith(text))
first_g = 5 - OPT['early'] - OPT['deep']
first_p = OPT['parat'] if OPT['parat'] >= 5 else 4 - OPT['early'] - OPT['deep']
assert max(pos(f's_and_b32 s{sKC[3]},'), pos(f'v_add_u32 v{PG[1]},'), pos(f's_lshl_b32 s{sBB},')) < cuts[first_g]
assert pos(f'v_lshl_add_u32 v{PR},') < cuts[first_p]
assert pos(f'v_add_u32 v{QG[3]},') < cuts[min(first_g + 4, 7)]
for s in range(8):
    P.append(Wait(f'x{s}'))
    if s == 0:
        P += stamp('x0')
    for q in range(4):
        P.append(I(f'ds_read_b128 {vr(X + 16 * s + 4 * q, 4)}, v{ASc[q]} offset:{(s & 3) * SLOT}', lds_r=XSLOT(s),
                   tok=f'xr{s}' if q == 3 else None))
    if OPT['early']:
        E_ = OPT['early']
        todo = list(range(3, 4 + E_)) if s == 0 else [s + 3 + E_]
        nxt = sum((rx(n, 0) + (params if n == 7 and OPT['parat'] < 5 else []) if n < 8 else rg(n - 8) for n in todo), [])
        nxt += params if s == OPT['parat'] >= 5 else []
        if s == 3:
            nxt += [I(f'v_subrev_u32 v{ASc[q]}, {4 * SLOT}, v{ASc[q]}') for q in range(4)]
    elif OPT['deep']:
        nxt = rg(s - 4) if s >= 4 else [Wait(f'xr{s}')] + rx(s + 4, s) + (params if s == 3 else [])
    else:
        nxt = ([] if OPT['gl'] else rg(s - 5)) if s >= 5 else rx(s + 3, (s + 3) & 3) + (params if s == OPT['parat'] else [])
    piece = later[cuts[s]:cuts[s + 1]] if s < 7 else []
    after = []
    if s >= 5 and OPT['gl']:
        nxt, after = [], (rg(s - 5) if s - 5 < OPT['gl'] else [])
    elif s >= OPT['xl']:
        nxt, after = [], nxt
    P += nxt + piece if OPT['xfirst'] else piece + nxt
    for r in range(16):
        P.append(I(f'v_dot2c_f32_bf16 v{SUM[r & 1]}, s{sONES}, v{X + 16 * s + r}'))
        P.append(I(f'v_dot2c_f32_bf16 v{SQ[r & 1]}, v{X + 16 * s + r}, v{X + 16 * s + r}'))
        if OPT['xlds'] and r == (15 if s < 7 else 3):
            blk = [f'ds_read_u16_d16_hi a{aXE + n}, v{XA + ((n >> 1) & 1) + 2 * ((n >> 2) & 1)} '
                   f'offset:{(s & 3) * SLOT + ((n & 7) + 16 * (n >> 3)) * 128}' for n in range(16)]
            P += [Wait(f'xr{s}'), I(f's_cmp_lg_u32 s{sSTAR}, {s}'), I(f's_cbranch_scc1 L_xe{s}')]
            P.append(I('; epilogue x values\n    ' + '\n    '.join(blk + ['s_waitcnt lgkmcnt(0)'])))
            P.append(I(f'L_xe{s}:'))
    P += after
P += stamp('x7')
P += L(f"""
v_add_f32 v{SUM[0]}, v{SUM[0]}, v{SUM[1]}
v_add_f32 v{SQ[0]}, v{SQ[0]}, v{SQ[1]}
v_mov_b32 v{SUM[1]}, v{SUM[0]}
v_mov_b32 v{SQ[1]}, v{SQ[0]}
v_permlane32_swap_b32 v{SUM[1]}, v{SUM[0]}
v_add_f32 v{SUM[0]}, v{SUM[0]}, v{SUM[1]}
v_mul_f32 v{SUM[0]}, 0xbb000000, v{SUM[0]}
v_cvt_pk_bf16_f32 v{t0}, v{SUM[0]}, v{SUM[0]}
v_lshlrev_b32 v{SIM}, 16, v{t0}
v_lshlrev_b32 v{SIM + 1}, 16, v{t0}
v_lshlrev_b32 v{SIM + 2}, 16, v{t0}
v_lshlrev_b32 v{SIM + 3}, 16, v{t0}
""")

back = lambda o: [I(f'v_cvt_pk_bf16_f32 v{X + 2 * o + e}, v{FACC[0] + 4 * (o & 3) + 2 * e}, '
                    f'v{FACC[0] + 4 * (o & 3) + 2 * e + 1}') for e in range(2)]
items = [[I(f'v_mfma_f32_4x4x4_16b_bf16 {vr(FACC[0] + 4 * (n & 3), 4)}, {vr(TT, 2)}, {vr(X + 2 * n, 2)}, {vr(SIM, 4)}')]
         + (back(n - 2) if n >= 2 else []) for n in range(64)]
fill = L(f"""
v_permlane32_swap_b32 v{SQ[1]}, v{SQ[0]}
v_sub_f32 v{VNM}, 0, v{SIM}
v_add_f32 v{SQ[0]}, v{SQ[0]}, v{SQ[1]}
v_mul_f32 v{SQ[0]}, 0x3b000000, v{SQ[0]}
v_fma_f32 v{SQ[0]}, -v{SUM[0]}, v{SUM[0]}, v{SQ[0]}
v_max_f32 v{SQ[0]}, 0, v{SQ[0]}
v_cvt_pk_bf16_f32 v{t0}, v{SQ[0]}, v{SQ[0]}
v_lshlrev_b32 v{t0}, 16, v{t0}
v_add_f32 v{t0}, 0x3727c5ac, v{t0}
v_cvt_pk_bf16_f32 v{t0}, v{t0}, v{t0}
v_lshlrev_b32 v{t0}, 16, v{t0}
v_sqrt_f32 v{t0}, v{t0}
v_and_b32 v{t1}, 3, v{vL}
v_cvt_pk_bf16_f32 v{t0}, v{t0}, v{t0}
v_lshlrev_b32 v{t0}, 16, v{t0}
v_rcp_f32 v{VRS}, v{t0}
v_bfe_u32 v{t2}, v{vL}, 3, 2
v_lshl_add_u32 v{t1}, v{t2}, 2, v{t1}
v_bfe_u32 v{t2}, v{vL}, 2, 1
v_lshl_add_u32 v{t1}, v{t2}, 4, v{t1}
s_lshl_b32 s{sT1}, s{sW}, 8
s_add_u32 s{sT1}, s{sT1}, {T_STAT}
v_lshl_add_u32 v{t1}, v{t1}, 2, s{sT1}
v_mul_f32 v{RL2}, {LOG2E:#x}, v{VRS}
ds_write_b32 v{t1}, v{VNM}
""")
fill.append(I(f'ds_write_b32 v{t1}, v{VRS} offset:128', tok='tabw'))
LA_S, LA_F = 3, OPT['laf']


def s_addr(slot):
    return [I(f'v_add_u32 v{ASc[q]}, {slot * SLOT}, v{AS[q]}') for q in range(4)]


def s_read(s, ri):
    return I(f'ds_read_b128 {ar(aS + 8 * (s & 3) + 4 * ri, 4)}, v{ASc[s & 3]} offset:{(s >> 3) * SLOT + (2 * ((s >> 2) & 1) + ri) * 4096}',
             lds_r=G_SLOT[s >> 3])


def f_addr(b):
    if b < 2:
        return [I(f'v_xor_b32 v{FAc}, {64 * b}, v{FA0}')]
    if b == 3:
        return [I(f'v_xor_b32 v{FAc}, 64, v{FAc}')]
    return [I(f'v_xor_b32 v{FAc}, s{sFSEL}, v{FA0}'), I(f'v_add_u32 v{FAc}, {G_SLOT[8] * SLOT}, v{FAc}')]


def f_read(b, s):
    out = f_addr(b) if s == 0 else []
    k = (32 * b + s) & 7
    for u in range(2):
        out.append(I(f'ds_read_b64_tr_b16 {ar(aF + 4 * k + 2 * u, 2)}, v{FAc} '
                     f'offset:{(s >> 3) * SLOT + ((s >> 1) & 3) * 4096 + (s & 1) * 2048 + u * 512}',
                     lds_r=G_SLOT[(4 if b < 2 else 8) + (s >> 3)]))
    return out


DSP = OPT['dsp']
OPT['dsp'] = OPT['dspc']
NG = OPT['gl'] or 3 + OPT['early'] + OPT['deep']
pin = pins(*[(OPT['g3'] + 4 * n * OPT['dspc'], rg(NG + n)) for n in range(OPT['ncr'])],
           (54, s_addr(G_SLOT[0]) + stamp('c27') + BAR('G0', 'zero', *([] if OPT['bsp'] else ['G1'])) + stamp('b0')))
OPT['dsp'] = DSP
for k in range(LA_S):
    pin[55 + 2 * k] = [s_read(k, 0), s_read(k, 1)]
stat_fill = fill
if OPT['cfs']:
    fill = stat_fill[:2]
    stat_fill = stat_fill[2:]
else:
    stat_fill = []
P += weave(items, fill, pin, 0, 40) + back(62) + back(63)

S_items = []
for s in range(32):
    for ri, acc in ((0, SRE), (1, SIM)):
        it = [mfma(vr(acc, 16), vr(X + 4 * s, 4), ar(aS + 8 * (s & 3) + 4 * ri, 4), vr(acc, 16) if s else '0')]
        n = s + LA_S
        if n < 32:
            it.append(s_read(n, ri))
        S_items.append(it)
for k in range(LA_F):
    S_items[64 - LA_F + k] += f_read(0, k)
F_items = []
for b in range(4):
    its = []
    for s in range(32):
        acc = vr(FACC[b & 1], 16)
        it = [mfma(acc, ar(aF + 4 * ((32 * b + s) & 7), 4), vr(X + 4 * s, 4), acc if s else '0')]
        n = s + LA_F
        if n < 32:
            it += f_read(b, n)
        elif b < 3:
            it += f_read(b + 1, n - 32)
        its.append(it)
    F_items.append(its)

FLA, FLP = VNM, VRS
fill = stat_fill + late + park2 + late_b + consts + (pf if OPT['pfat'] < 0 else []) + L(f"""
v_lshrrev_b32 v{t0}, 3, v{vL}
v_bfe_u32 v{t1}, v{vL}, 4, 1
v_lshlrev_b32 v{t1}, 1, v{t1}
v_xor_b32 v{t1}, v{t1}, v{vL}
v_and_b32 v{t1}, 7, v{t1}
v_lshlrev_b32 v{t1}, 4, v{t1}
v_lshl_add_u32 v{XG[0]}, v{t0}, 10, v{t1}
v_add_u32 v{XG[1]}, {7 * 1024}, v{XG[0]}
v_xor_b32 v{XG[2]}, 64, v{XG[0]}
v_add_u32 v{XG[3]}, {21 * 1024}, v{XG[2]}
v_add_u32 v{XG[2]}, {14 * 1024}, v{XG[2]}
v_lshrrev_b32 v{t2}, 5, v{vL}
v_lshlrev_b32 v{t2}, 6, v{t2}
v_add_u32 v{t2}, {TB}, v{t2}
s_lshl_b32 s{sT2}, s{sW}, 8
v_add_u32 v{t1}, s{sT2}, v{t2}""")
fill += [I(f'ds_read_b128 {vr(FACC[1] + 4 * q, 4)}, v{t1} offset:{128 + 16 * q}') for q in range(4)]
xa, xb = TT + 14, TT + 15
ROW = lambda n: 16 * ((n >> 2) & 1) + 8 * (n >> 3) + (n & 3)
xe = L(f"""v_and_b32 v{xa}, 31, v{vL}
    v_lshrrev_b32 v{xb}, 5, v{vL}
    v_lshlrev_b32 v{xb}, 12, v{xb}
    v_lshl_add_u32 v{xb}, v{xa}, 1, v{xb}
    s_lshl_b32 s{sONES}, s{sJJ}, 2
    s_add_u32 s{sONES}, s{sONES}, s{sKQ}
    s_lshl_b32 s{sONES}, s{sONES}, 6
    v_lshl_add_u32 v{xa}, v{xa}, 1, s{sONES}
    s_add_u32 s{sXB}, s{sXB}, s{sONES}
    global_load_short_d16_hi a{aXE + 16}, v{xa}, s[{pDSK}:{pDSK + 1}]""")
for r in range(0 if OPT['xlds'] else 16):
    if r % 4 == 0:
        xe.append(I(f's_add_u32 s{sONES}, s{sXB}, {1024 * ROW(r)}'))
    xe.append(I(f'buffer_load_short_d16_hi a{aXE + r}, v{xb}, {srd(sX)}, s{sONES} offen offset:{1024 * (r & 3)}'))
sAO = dict(A={1: 8, 2: 9, 3: 10}, H={1: 11, 2: 12, 3: 13}, B={1: 14, 2: 15})
for e in (1, 2, 3):
    fill += L(f"""s_xor_b32 s{sT2}, s{sJJ}, {e}
        s_lshl_b32 s{sT2}, s{sT2}, 12
        s_add_u32 s{sAO['H'][e]}, s{sT2}, s{sAS}
        s_add_u32 s{sAO['A'][e]}, s{sAO['H'][e]}, s{sT2}
        s_add_u32 s{sAO['H'][e]}, s{sAO['H'][e]}, {28 * 1024}""")
for e in (1, 2):
    fill += L(f's_lshl_b32 s{sT2}, s{sPB[e]}, 12\ns_add_u32 s{sAO["B"][e]}, s{sT2}, s{sAS}')
if OPT['tlb'] in (2, 3):
    fill = touch_o + fill
if OPT['fw']:
    fill += L(f"""s_lshl_b32 s{sT2}, s{sJJ}, 9
        s_add_u32 s{sT2}, s{sT2}, s{sFLG}
        v_lshlrev_b32 v{t0}, 3, v{vL}
        v_mov_b32 v{TT}, 0
        v_mov_b32 v{TT + 1}, 0
        buffer_store_dwordx2 {vr(TT, 2)}, v{t0}, {srd(sWS)}, s{sT2} offen sc1""")
if OPT['xw'] == 1:
    fill += L(f'v_lshlrev_b32 v{t0}, 2, v{vL}')
    for b in (1, 2, 3):
        fill += L(f"""buffer_store_dwordx4 {vr(TT, 4)}, v{VL16}, {srd(sWS)}, s{sXO[b]} offen sc1
            buffer_store_dwordx4 {vr(TT, 4)}, v{VL16}, {srd(sWS)}, s{sXO[b]} offen offset:1024 sc1
            buffer_store_dword v{vL}, v{t0}, {srd(sWS)}, s{sXO[b]} offen offset:2048 sc1""")
elif OPT['xw']:
    fill += L(f"""v_lshlrev_b32 v{t0}, 7, v{vL}
        v_min_u32 v{t0}, {59 * 128}, v{t0}
        buffer_load_dword a60, v{t0}, {srd(sWS)}, s{sXO[0]} offen {('', '', 'sc1', 'sc1 nt')[OPT['xw']]}""")
if not OPT['xel']:
    cut = len(fill) * OPT['xes'] // 100
    fill, xe = fill[:cut] + merge(fill[cut:], xe), []
OPT['dsp'] = OPT['dsps']
SPOS = {3: (2, 14, 28), 4: (2, 14, 28, 42), 5: (0, 12, 24, 36, 48)}
srounds = [(2, rg(4)), (14, rg(5)), (28, rg(6)), (42, rg(7))] if OPT['sch'] == 1 else \
    list(zip(SPOS[9 - NG - OPT['ncr']], map(rg, range(NG + OPT['ncr'], 9))))
sbars = [(9, BAR('G1')), (25, BAR('G2', 'G3'))] if OPT['bsp'] == 1 else \
    [(9, BAR('G1')), (25, BAR('G2')), (41, BAR('G3'))] if OPT['bsp'] else [(24, BAR('G2', 'G3'))]
pin = pins(*srounds, *sbars, (63 - LA_F, stamp('s59') + BAR('G4', 'b1w', *([] if OPT['bsa'] & 1 else ['G5'])) + stamp('b2')))
OPT['dsp'] = DSP
P += weave(fine('S', S_items, 3), fill, pin, 0, 62 - LA_F)

Q = FACC[1]
V = lambda t: SRE + t if t % 2 == 0 else SIM + t - 1
AGR, AGI = VRS, t3
fill = []
coef = []
for q in range(8):
    for h in range(2):
        r = 2 * q + h
        fill += L(f"""v_mul_f32 v{TT + 2 * h}, v{SRE + r}, v{CR}
            v_mul_f32 v{TT + 2 * h + 1}, v{SRE + r}, v{NCI}
            v_fmac_f32 v{TT + 2 * h}, v{SIM + r}, v{NCI}
            v_fmac_f32 v{TT + 2 * h + 1}, v{SIM + r}, v{NCR}""")
    for h in range(2):
        r = 2 * q + h
        fill += L(f"""v_mul_f32 v{V(r)}, v{TT + 2 * h}, v{Q + r}
            v_mul_f32 v{V(r) + 1}, v{TT + 2 * h + 1}, v{Q + r}""")
    coef.append(fill)
    fill = []
step = lambda d, p, c: L(f"""v_pk_fma_f32 {vr(d, 2)}, {vr(p, 2)}, {vr(LR, 2)}, {vr(c, 2)} op_sel_hi:[1,0,1]
    v_pk_fma_f32 {vr(d, 2)}, {vr(p, 2)}, {vr(NLI, 2)}, {vr(d, 2)} op_sel:[1,0,0] op_sel_hi:[0,1,1]""")
horner = [step(AGR if r & 1 else TT + 4, V(0) if r == 1 else (TT + 4 if r & 1 else AGR), V(r)) for r in range(1, 16)]
fill = fetch(seg=t1) + fill + (L('s_mov_b32 s19, s3') if OPT['dbg'] else []) + L(f's_mov_b32 s{sKC[0]}, {M2LN2:#x}')
fill.append(I(f'ds_write_b64 v{t1}, {vr(AGR, 2)} offset:{7 * 256}', tok='segw'))
frounds = [(1, rg(8)), (12, rg(9))] if OPT['sch'] == 1 else [(1, rg(9)), (12, rg(10))] if OPT['sch'] == 2 else \
    [(0, rg(9)), (OPT['g10'], rg(10)), (2 * OPT['g10'], rg(11))]
staged_names = list(STAGE)
abars = [(7 - LA_F, BAR('G5'))] if OPT['bsa'] & 1 else []
abars += [(15 - LA_F, BAR('G6')), (23 - LA_F, BAR('G7'))] if OPT['bsa'] & 2 else [(15 - LA_F, BAR('G6', 'G7'))]
pin = pins(*frounds, *abars, (31, BAR('segw')),
           *[(22, stage_load(n)) for n in staged_names[:1]])
if 0 <= OPT['pfat'] < 32:
    pin.setdefault(OPT['pfat'], []).extend(pf)
NB = OPT['nb0']
per = 8 // NB
plan = [(1, [], [])]
for n in range(NB):
    lo, hi = max(2 * per * n - 1, 0), 2 * per * (n + 1) - 1
    plan.append((1 + (n + 1) * 28 // NB, sum(coef[per * n:per * (n + 1)], []), sum(horner[lo:hi], [])))
P += staged(fine('F0', F_items[0], 3), pin, plan + [(30, fill, []), (31, [], [])])
P += stamp('F0')

E = ASc[0]
R0, R1, T0_, T1_ = TT + 8, TT + 12, ASc[0], ASc[2]
h0, h1 = mish_stages(0, 0), mish_stages(0, 1)
rd = lambda dst, k: I(f'ds_read2_b64 {vr(dst, 4)}, v{t1} offset0:{32 * k} offset1:{32 * k + 32}')
publish = cmul_add(E, E + 2, L16R, L16I, PR, PI, AGR, AGI) + fetch(pub=t1) + L(f"""v_mov_b32 v{E + 1}, s{sTAG}
    v_mov_b32 v{E + 3}, s{sTAG}
    buffer_store_dwordx4 {vr(E, 4)}, v{t1}, {srd(sWS)}, 0 offen sc1""")
frounds = [(0, rg(10)), (8, rg(11))] if OPT['sch'] == 1 else [(0, rg(11))] if OPT['sch'] == 2 else []
pin = pins(*frounds, (OPT['wa0'], rw('WA0')), (31 - LA_F, BAR('G8', 'G9', *([] if OPT['bsb'] else ['G10', 'G11']))),
           *zip((8, 24), map(stage_load, staged_names[1:3])))
if OPT['pfat'] >= 32:
    pin.setdefault(OPT['pfat'] - 32, []).extend(fetch(pfa=FAd) + L(pf[0].text.replace(f'v{PI}', f'v{FAd}')))
GA = [int(x) for x in str(OPT['stg1']).split('.')]
P += staged(fine('F0', F_items[1], 3), pin, [
    (GA[0], [rd(R0, 0), rd(R1, 2)] + h0['rd'], h0['A']),
    (GA[1], h0['ex'], cmul_pk(PR, L16R, R0, R0 + 2) + cmul_pk(T0_, L16R, PR, R1) + cmul_pk(PR, L16R, T0_, R1 + 2) + h0['B']),
    (GA[2], [rd(R0, 4), I(f'ds_read_b64 {vr(R1, 2)}, v{t1} offset:{6 * 256}')] + h0['rc'],
     cmul_pk(T0_, L16R, PR, R0) + cmul_pk(T1_, L16R, T0_, R0 + 2) + cmul_pk(PR, L16R, T1_, R1) + h0['C']),
    (GA[3], h1['rd'] + publish + h0['fin'], h1['A']),
    (GA[4], h1['ex'], h1['B']),
    (GA[5], h1['rc'], h1['C']),
    (31, h1['fin'], [])])
P += stamp('F1')

LBA = [CR, NCI]
LBE = [NCR, L16R]
LBD = [ASc[0], QG[0]]
FLV = L16I
lb_loads = '\n'.join(f'buffer_load_dwordx4 {vr(LBD[e], 4)}, v{LBA[e]}, {srd(sWS)}, 0 offen sc1' for e in range(2))
lb_setup = fetch(lba0=LBA[0], lba1=LBA[1], lbe0=LBE[0], lbe1=LBE[1])


def flag_store(stage, toks):
    out = [Wait(*toks), I(f'buffer_store_dword v{FLV}, v{FLA}, {srd(sWS)}, 0 offen offset:{128 * stage} sc1')]
    if OPT['ppf']:
        so = (sFST[0], sSST, sFST[2])[stage]
        vpf = L128R if stage else t3
        out = [I(f'v_lshlrev_b32 v{vpf}, {6 if stage < 2 else "s%d" % sSEL[1]}, v{vL}')] + out
        out.append(I(f'buffer_load_dword a{60 + (stage & 1)}, v{vpf}, {srd(sWS)}, s{so} offen sc1'))
    return out


def flag_load(stage):
    return f'buffer_load_dword v{t3}, v{FLP}, {srd(sWS)}, 0 offen offset:{128 * stage} sc1'


flag_check = f'v_cmp_ne_u32 vcc, s{sTAG}, v{t3}'
lb_check = f"""v_bitop3_b32 v{t0}, v{LBD[0] + 1}, v{LBD[0] + 3}, v{LBE[0]} bitop3:0x7e
    v_bitop3_b32 v{t1}, v{LBD[1] + 1}, v{LBD[1] + 3}, v{LBE[1]} bitop3:0x7e
    v_or_b32 v{t0}, v{t0}, v{t1}
    v_cmp_ne_u32 vcc, 0, v{t0}"""
lb_part = stamp('lb0') + poll('lb', lb_loads, lb_check) + stamp('lb1')
lb_part += cmul_add(LBD[0] + 1, LBD[0] + 3, L128R, L128I, LBD[0], LBD[0] + 2, LBD[1], LBD[1] + 2)
lb_part += cmul_add(LBD[1], LBD[1] + 1, WR, WI, LBD[0] + 1, LBD[0] + 3)
lb_part += fetch(lbw=t1)
lb_part.append(I(f'ds_write_b64 v{t1}, {vr(LBD[1], 2)}', tok='lbw'))
HW, HR, HB = ASc[0], ASc[1], FACC[1]
HW2, HR2 = WR, WI
tail_addr = fetch(lbr=ASc[3], fla=FLA, flp=FLP) + L(f'v_mov_b32 v{FLV}, s{sTAG}')
lb_reads = [I(f'ds_read2_b64 {vr(HB + 4 * q, 4)}, v{ASc[3]} offset0:{64 * q} offset1:{64 * q + 32}') for q in range(4)]
scan = [I(f'v_pk_add_f32 {vr(HB + a, 2)}, {vr(HB + a, 2)}, {vr(HB + b_, 2)}')
        for a, b_ in ((0, 2), (4, 6), (8, 10), (12, 14), (0, 4), (8, 12), (0, 8))]
scan += cmul_add(L128R, L128I, LSR, LSI, HB, HB + 1, PR, PI)
pack = lambda q: L(f"""v_cvt_pk_bf16_f32 v{SRE + q}, v{V(2 * q)}, v{V(2 * q + 1)}
    v_cvt_pk_bf16_f32 v{SIM + q}, v{V(2 * q) + 1}, v{V(2 * q + 1) + 1}""")
for r in range(16):
    prev = vr(L128R if r == 0 else V(r - 1), 2)
    scan += L(f"""v_pk_fma_f32 {vr(V(r), 2)}, {prev}, {vr(LR, 2)}, {vr(V(r), 2)} op_sel_hi:[1,0,1]
        v_pk_fma_f32 {vr(V(r), 2)}, {prev}, {vr(NLI, 2)}, {vr(V(r), 2)} op_sel:[1,0,0] op_sel_hi:[0,1,1]""")
    if r >= 2 and r % 2 == 0 and OPT['pk_in']:
        scan += pack(r // 2 - 1)
HRS = AS
transp = fetch(hw=HW, hw2=HW2, hr=HRS[0]) + [I(f'v_xor_b32 v{HRS[n]}, {16 * n}, v{HRS[0]}') for n in (1, 2, 3)] + sum((pack(q) for q in range(7 if OPT['pk_in'] else 0, 8)), [])
for ri in range(2):
    transp += [I(f'ds_write_b128 v{(HW, HW2)[h]}, {vr((SRE, SIM)[ri] + 4 * h, 4)}') for h in range(2)]
    for fr in range(2):
        for u in range(2):
            transp.append(I(f'ds_read_b64_tr_b16 {ar(aOS + 8 * ri + 4 * fr + 2 * u, 2)}, v{HRS[2 * u + fr]} offset:{256 * u}'))
stH = [I(f'buffer_store_dwordx4 {ar(aOS + 4 * q, 4)}, v{VL16}, {srd(sWS)}, s{sSST} offen offset:{1024 * q} sc1',
         tok='stH' if q == 3 else None) for q in range(4)]
h0, h1 = mish_stages(1, 0), mish_stages(1, 1)
g0, g1 = mish_stages(2, 0), mish_stages(2, 1)
pin = pins((0, rw('CR0')), (8, rw('CI0')), (18, rw('WA1')), *([(15 - LA_F, BAR('G10', 'G11'))] if OPT['bsb'] else []), (29, BAR('lbw') + lb_reads + g0['rd'] + g1['rd']), (OPT['lbl'], L(lb_loads)),
           *[(25, stage_load(n)) for n in staged_names[3:4]])
GB = [int(x) for x in str(OPT['stg2']).split('.')]
P += staged(fine('F2', F_items[2], 2), pin, [
    (GB[0], h0['rd'] + h1['rd'] + lb_setup, h0['A']),
    (GB[1], h0['ex'], h0['B'] + h1['A']),
    (GB[2], h0['rc'] + h1['ex'], h0['C'] + h1['B']),
    (GB[3], h0['fin'] + h1['rc'], h1['C']),
    (28, h1['fin'] + lb_part + tail_addr, []),
    (31, [], [])])
P += stamp('F2')
burst = scan + g0['A']
if OPT['fas'] < 0:
    burst = burst[:OPT['fas']] + flag_store(0, ['stF0', 'stF1']) + burst[OPT['fas']:]
if OPT['fine'] == 'T':
    for n in range(len(burst) - 12, 0, -12):
        burst = burst[:n] + stamp(f'g{n}') + burst[n:]
P += burst
P += stamp('scan')


FP0, CP0, FPc = [NLI, LI, LR, CR], [NCI, NCR], QG
PA = OPT['pa']
p3_setup = fetch(fp0=FP0[0], fp1=CP0[0], f3o=ASc[2]) + [I(f'v_xor_b32 v{FP0[n]}, {32 * n}, v{FP0[0]}') for n in (1, 2, 3)]
p3_setup.append(I(f'v_xor_b32 v{CP0[1]}, 64, v{CP0[0]}'))
hs = OPT['hs']
lead = [i_ for i_ in transp if i_.kind != 'ds']
tds = transp[len(lead):]
P += lead
tpins = [(0, tds[0:1]), (1, tds[1:2]), (2, tds[2:4]), (3, tds[4:6]), (4, tds[6:7]), (5, tds[7:8] + stH[0:1]),
         (6, tds[8:10]), (7, tds[10:12] + stH[1:2]), (7 + hs, stH[2:3]), (7 + 2 * hs, stH[3:4])]

steps = ([('WA0', x, 'own') for x in range(4)]
         + [(n, x, 'own') for n in ('CR0', 'CI0') for x in range(2)]
         + [(f'WA{e}', x, 'A') for e in (1, 2, 3) for x in range(4)]
         + [(n, x, 'H') for n in ('CR0', 'CI0') for x in (2, 3)]
         + [(n, x, 'H') for n in ('CR1', 'CI1') for x in range(4)]
         + [('WB0', x, 'own') for x in range(4)]
         + [(f'WB{e}', x, 'B') for e in (1, 2) for x in range(4)])
deferred = [k for k, st in enumerate(steps) if st[2] != 'own']
A_REGS = ([192 + 4 * n for n in range(16)] + [SRE + 4 * n for n in range(8)]
          + [FACC[0] + 4 * n for n in range(4)] + [TT + 4 * n for n in range(4)])
ACC = [128, 144, 160, 176]
cur_addr = {}


def a_frag(k):
    name, x, src = steps[k]
    if src != 'own':
        return vr(A_REGS[deferred.index(k)], 4)
    if name == 'WA0':
        return ar(aOF + 4 * x, 4)
    if name == 'WB0':
        return ar(aOF + 16 + 4 * x, 4) if x < 2 else vr(FACC[1] + 4 * (x - 2), 4)
    return ar(aOS + 8 * (name[1] == 'I') + 4 * x, 4)


def a_load(k):
    name, x, src = steps[k]
    e = int(name[2])
    if name[0] == 'C':
        so, off = sAO['H'][2 * e + (x >> 1)], 2048 * (name[1] == 'I') + 1024 * (x & 1)
    else:
        so, off = sAO[name[1]][e], 1024 * x
    return [I(f'buffer_load_dwordx4 {a_frag(k)}, v{VL16}, {srd(sWS)}, s{so} offen offset:{off} sc1')]


pin = pins((PA, rw2('WA2')), (PA + 8, BAR()), (PA + 9, rw2('WA3')), (PA + 17, BAR()), (PA + 18, rw2('CR1')),
           (OPT['fal'], L(flag_load(0))), (30, BAR('WA0', 'CR0', 'CI0', 'WA1')), *tpins)
if OPT['fhs'] >= 0:
    pin.setdefault(OPT['fhs'], []).extend(flag_store(1, ['stH']))
if OPT['fas'] >= 0:
    pin.setdefault(OPT['fas'], []).extend(flag_store(0, ['stF0', 'stF1']))
m3 = mish_pk(3, ASc[2])
GC = [int(x) for x in str(OPT['stg3']).split('.')]
P += staged(fine('F3', F_items[3], 2), pin, [
    (GC[0], g0['ex'], g0['B'] + g1['A']),
    (GC[1], g0['rc'] + g1['ex'], g0['C'] + g1['B']),
    (GC[2], g0['fin'] + g1['rc'], g1['C']),
    (29, g1['fin'][:4] + m3[:4] + g1['fin'][4:] + p3_setup, []),
    (31, [], [])])
P += stamp('F3')

m3 = m3[4:]
st0 = 40
early = sum((a_load(k) for k in range(8, 8 + OPT['nea'])), [])
if not OPT['ovl']:
    fac = st0 - OPT['fac']
    TAIL0 = len(P)
    P += m3[:fac] + (flag_store(1, ['stH']) if OPT['fhs'] == -1 and not OPT['fhp'] else [])
    P += stamp('fa0') + poll('fa', flag_load(0), flag_check) + stamp('fa1')
    tl = merge(m3[fac:st0], early) + (flag_store(1, ['stH']) if OPT['fhp'] else []) + m3[st0:]
    TAIL1 = len(P) + len(tl) - len(m3) + st0
    if OPT['fine'] == 'T':
        for n in range(len(tl) - 12, 0, -12):
            tl = tl[:n] + stamp(f'gt{n}') + tl[n:]
    P += tl
    P += stamp('tail')

XE, ME = 192, LSR
ep_setup = L(f"""v_lshrrev_b32 v{t1}, 5, v{vL}
    s_lshl_b32 s{sT2}, s{sW}, 8
    s_add_u32 s{sT2}, s{sT2}, {T_STAT}
    v_lshl_add_u32 v{VLN2}, v{t1}, 4, s{sT2}
    v_lshlrev_b32 v{FA0}, 13, v{t1}
    v_and_b32 v{t0}, 31, v{vL}
    v_lshl_add_u32 v{FA0}, v{t0}, 2, v{FA0}""")
VL4 = ASc[0]
ep_setup = L(f'v_lshlrev_b32 v{VL4}, 2, v{vL}') + ep_setup
base_calc = [I(f'v_accvgpr_read_b32 v{RL2}, a{aXE + 16}')]
for qt in range(4):
    base_calc += [I(f'ds_read_b128 {vr(ME, 4)}, v{VLN2} offset:{4 * ROW(4 * qt)}', hoist=True),
                  I(f'ds_read_b128 {vr(ME + 4, 4)}, v{VLN2} offset:{128 + 4 * ROW(4 * qt)}', hoist=True)]
    rs = range(4)
    base_calc += [I(f'v_accvgpr_read_b32 v{XE + 4 * qt + r}, a{aXE + 4 * qt + r}') for r in rs]
    base_calc += [I(f'v_sub_f32 v{ME + r}, v{XE + 4 * qt + r}, v{ME + r}') for r in rs]
    base_calc += [I(f'v_mul_f32 v{ME + r}, v{ME + r}, v{ME + 4 + r}') for r in rs]
    base_calc += [I(f'v_fmac_f32 v{XE + 4 * qt + r}, v{ME + r}, v{RL2}') for r in rs]

def checksum(dst, src, last):
    return [f'v_bitop3_b32 v{dst}, v{src}, v{src + 1}, {last} bitop3:0x96'] + \
           [f'v_bitop3_b32 v{dst}, v{src + e}, v{src + e + 1}, v{dst} bitop3:0x96' for e in (2, 4, 6)]


def send(b):
    A = ACC[b]
    out = []
    for q in range(2):
        out += [I(f'v_cvt_pk_bf16_f32 v{A + e}, v{A + 2 * e}, v{A + 2 * e + 1}') for e in range(4 * q, 4 * q + 4)]
        out.append(I(f'buffer_store_dwordx4 {vr(A + 4 * q, 4)}, v{VL16}, {srd(sWS)}, s{sXO[b]} offen '
                     f'offset:{1024 * q} sc1'))
    out += [I(c) for c in checksum(A + 8, A, f's{sTAG}')]
    out.append(I(f'buffer_store_dword v{A + 8}, v{VL4}, {srd(sWS)}, s{sXO[b]} offen offset:2048 sc1'))
    return out


def w_read1(k, b, dst):
    name, x, src = steps[k]
    slot = W_SLOT[name]
    out = []

    def address(cur, base):
        if slot < 4:
            return base, slot * SLOT
        if not 0 <= slot - cur_addr.get(cur, -9) < 4:
            cur_addr[cur] = 4 if slot == 4 else 5
            out.append(I(f'v_add_u32 v{cur}, {cur_addr[cur] * SLOT}, v{base}'))
        return cur, (slot - cur_addr[cur]) * SLOT

    if name[0] == 'C':
        a, off = address(AS[x >> 1], CP0[x >> 1])
        return out + [I(f'ds_read_b128 {ar(dst, 4)}, v{a} offset:{off + 4096 * b + 2048 * (x & 1)}', lds_r=slot)]
    var = 2 * (b & 1) + (x & 1)
    a, off = address(FPc[var], FP0[var])
    return out + [I(f'ds_read_b64_tr_b16 {ar(dst + 2 * u, 2)}, v{a} '
                    f'offset:{off + 8192 * (x >> 1) + 4096 * (b >> 1) + 1024 * u}', lds_r=slot) for u in range(2)]


RX = {1: ACC[1], 2: ACC[2], 3: ACC[3]}


def recv(b):
    so = sXO[0] if b == 1 else sSEL[b]
    rl = [f'buffer_load_dwordx4 {vr(RX[b] + 4 * q, 4)}, v{VL16}, {srd(sWS)}, s{so} offen offset:{1024 * q} sc1' for q in range(2)]
    rl.append(f'buffer_load_dword v{RX[b] + 8}, v{VL4}, {srd(sWS)}, s{so} offen offset:2048 sc1')
    return '\n'.join(rl)


pre = L(f"""s_lshl_b32 s{sXB}, s{sXB}, 1
    s_mov_b32 s{sKC[0]}, 0x00003f80
    s_mov_b32 s{sKC[1]}, 0x3f800000""")
E3 = OPT['e3']
D0 = OPT['d0']
seq = [(k, b) for k in range(D0) for b in (1, 2, 3, 0)] + [(k, b) for k in range(D0, E3) for b in (1, 2, 3)]
seq += [(k, b) for k in range(E3, 36) for b in (1, 2)]
seq += [(k, b) for b in (1, 2) for k in range(36, 44)]
own8 = [(k, 0) for k in range(8, 12)]
seq += (own8 if OPT['o8'] else []) + [(k, 3) for k in range(E3, 44)] + ([] if OPT['o8'] else own8)
seq += [(k, 0) for k in list(range(D0, 8)) + list(range(12, 44))]
at = {kb: n for n, kb in enumerate(seq)}
done_at = {b: at[43, b] for b in (1, 2, 3)}
KEEP = {(k, 0): aWO + 4 * (k - 8) for k in range(8, 12)}
KEEP.update({(k, 0): aWO + 16 + 4 * k for k in range(D0, 4)})
reads = sorted((kb for kb in seq), key=lambda kb: at[kb[0], 3] + 0.5 if kb in KEEP else at[kb])
RING = 12
where, nring = {}, 0
for kb in reads:
    if kb in KEEP:
        where[kb] = KEEP[kb]
    else:
        where[kb] = aP + 4 * (nring % RING)
        nring += 1
LA_J = OPT['laj']
items = []
rd = 0
seen = set()
for n, (k, b) in enumerate(seq):
    pre_rd = []
    while rd < len(reads) and (at[reads[rd][0], 3] if reads[rd] in KEEP else at[reads[rd]]) <= n + LA_J:
        pre_rd += w_read1(*reads[rd], where[reads[rd]])
        rd += 1
    mm = []
    for a in range(2):
        d = vr(ACC[b] + 8 * a + 4 * (k & 1), 4)
        mm.append(I(f'v_mfma_f32_16x16x32_bf16 {d}, {a_frag((k & ~1) + a)}, {ar(where[k, b], 4)}, '
                    f'{d if (b, k & 1) in seen else 0}'))
    seen.add((b, k & 1))
    if n == 0:
        if OPT['ovl']:
            k_ = max(n_ for n_, i_ in enumerate(P) if i_.kind == 'barrier') + 1
            P = P[:k_] + pre_rd + P[k_:]
        elif OPT['wmix']:
            end = len(P) - (PROF in (1, 2)) - 10
            P = P[:TAIL1] + merge(P[TAIL1:end], pre_rd) + P[end:]
        else:
            P = P[:TAIL0] + pre_rd + P[TAIL0:]
        pre_rd = []
    nds = [n_ for n_, i_ in enumerate(pre_rd) if i_.kind == 'ds']
    half = nds[len(nds) // 2] if OPT['bal'] and len(nds) > 1 else len(pre_rd)
    items.append([mm[0]] + pre_rd[:half] + [mm[1]] + pre_rd[half:])
pin = {n: [] for n in range(len(items))}
B1 = at[4, 1] + 2
pin[B1] += BAR('WA2')
pin[at[16, 1] - LA_J - 1] += [Wait('WA3', 'CR1', 'CI1'), I('s_barrier')]
pin[at[32, 1] - LA_J - 1] += [Wait('WB0', 'WB1', 'WB2'), I('s_barrier')]
if OPT['fhs'] < -1:
    pin[-OPT['fhs']] += flag_store(1, ['stH'])
if OPT['fhl'] >= 0:
    pin[OPT['fhl']] += L(flag_load(1))
pin[OPT['fhc']] += stamp('fh0') + poll('fh', flag_load(1), flag_check) + stamp('fh1')
pin[OPT['fls']] += flag_store(2, ['stF3', 'stF2'])
pin[OPT['fll']] += L(flag_load(2))
pin[OPT['flc']] += stamp('fl0') + poll('fl', flag_load(2), flag_check) + stamp('fl1')
pin[at[36, 1] - 1] += stamp('k36')
for name, gap in (('CI1', 1), ('WB0', 19), ('WB1', 24), ('WB2', at[16, 1] - LA_J)):
    if name in STAGE:
        for n, i_ in enumerate(stage_write(name)):
            pin[gap + max(n - 2, 0)].append(i_)
_rw = rw
rw = lambda name: [] if name in STAGE else _rw(name)
queue = []
if OPT['ovl']:
    pin[OPT['ofa']] += stamp('fa0') + poll('fa', flag_load(0), flag_check) + stamp('fa1')
    queue += [(OPT['ofa'], a_load(k)) for k in range(8, 8 + OPT['nea'])]
queue += [(OPT['q0'], a_load(k)) for k in range(8 + OPT['nea'], 16)] + [(0, rw('CI1'))]
queue += [(OPT['q0'], a_load(k)) for k in range(max(16, 8 + OPT['nea']), 20)]
if OPT['qord'] == 0:
    queue += [(B1 + 1, rw('WB0'))] + [(OPT['fhc'], a_load(k)) for k in range(20, 32)] + [(B1 + 1, rw('WB1'))]
elif OPT['qord'] == 1:
    queue += [(B1 + 1, rw('WB0')), (B1 + 1, rw('WB1'))] + [(OPT['fhc'], a_load(k)) for k in range(20, 32)]
else:
    queue += [(OPT['fhc'], a_load(k)) for k in range(20, 24)] + [(B1 + 1, rw('WB0')), (B1 + 1, rw('WB1'))]
    queue += [(0, a_load(k)) for k in range(24, 32)]
queue += [(at[16, 1] - LA_J, rw('WB2'))]
queue += [(OPT['flc'], a_load(k)) for k in range(36, 44)]
n = 0.0
for first_gap, ins in queue:
    n = max(n, first_gap)
    pend = []
    for i_ in ins:
        pend.append(i_)
        if i_.kind == 'vm':
            pin[int(n)] += pend
            pend = []
            n += OPT['pace'] / 10
for b in (1, 2, 3):
    sd = send(b)
    for q in range(4):
        pin[done_at[b] + 3 + q] += sd[q * len(sd) // 4:(q + 1) * len(sd) // 4]
    pin[done_at[min(b + 1, 3) if b < 3 else 3] + OPT[f'r{b}'] if b != 2 else done_at[2] + OPT['r2']] += L(recv(b))
pin[done_at[2] + 6] += stamp('s12')
pin[done_at[3] + 6] += stamp('sent')
items = fine('P3', items[:OPT['fn'] * 27], OPT['fn']) + items[OPT['fn'] * 27:]
LEV[0] = OPT['lev3']
sub = lambda lo, hi: {n - lo: pin[n] for n in range(lo, hi)}
unit_weave = weave


def weave(its, fill_, pin_, lo=0, hi=None):
    if not OPT['fineg']:
        return unit_weave(its, fill_, pin_, lo, hi)
    flat, pin2 = [], {}
    for n, it in enumerate(its):
        cut_ = max(k_ for k_, i_ in enumerate(it) if i_.kind == 'mfma')
        flat += [it[:cut_], it[cut_:]]
        ordered = any(i_.kind in ('barrier', 'pseudo', 'label') for i_ in pin_.get(n, []))
        first = len(flat[-2]) < len(flat[-1]) and not ordered
        pin2[2 * n + (0 if first else 1)] = pin_.get(n, [])
    return unit_weave(flat, fill_, pin2, 2 * lo, None if hi is None else 2 * hi + 1)


c1, c2 = at[32, 1], at[11, 0] + 1
if OPT['ovl']:
    GD = [int(x) for x in str(OPT['stg4']).split('.')]
    both = lambda lo, hi: m3[lo:hi] + m3[40 + lo:40 + hi]
    P += staged(items[:c1], pin, [(GD[0], [], both(0, 4)), (GD[1], both(4, 12), both(12, 20)),
                                  (GD[2], both(20, 28), both(28, 36)),
                                  (GD[3], both(36, 40) + m3[80:] + stamp('tail'), []), (c1 - 1, [], [])])
else:
    P += weave(items[:c1], [], sub(0, c1))
P += weave(items[c1:c2], ep_setup + pre, sub(c1, c2), 0, 6)
SWAPS = lambda R: [I(f'v_permlane16_swap_b32 v{R + 8 * a + r}, v{R + 8 * a + 4 + r}') for a in range(2) for r in range(4)]
base_calc += SWAPS(XE)


def rx_check(b):
    chk = checksum(RX[b] + 9, RX[b], f'v{RX[b] + 8}') + [f'v_cmp_ne_u32 vcc, s{sTAG}, v{RX[b] + 9}']
    return poll(f'rx{b}', '\n'.join(recv(x) for x in range(b, 4 if OPT['rxall'] else b + 1)), '\n'.join(chk))


EARLY = range(1, 1 + OPT['rxe'])
for b in EARLY:
    base_calc += rx_check(b)
    for q in range(8):
        u = RX[b] + 10 + 2 * (q & 1)
        base_calc += L(f"""v_lshlrev_b32 v{u}, 16, v{RX[b] + q}
            v_and_b32 v{u + 1}, 0xffff0000, v{RX[b] + q}
            v_add_f32 v{XE + 2 * q}, v{XE + 2 * q}, v{u}
            v_add_f32 v{XE + 2 * q + 1}, v{XE + 2 * q + 1}, v{u + 1}""")
P += weave(items[c2:], base_calc, sub(c2, len(items)), 3, len(items) - c2 - (3 if OPT['rxe'] else 6))
P += stamp('own')
A0 = ACC[0]
for q in range(8):
    P.append(I(f'v_pk_add_f32 {vr(A0 + 2 * q, 2)}, {vr(A0 + 2 * q, 2)}, {vr(XE + 2 * q, 2)}'))
epoch_setup = L(f"""s_lshl_b32 s{sT2}, s{sJ}, 2
    s_add_u32 s{sT2}, s{sT2}, s{sW}
    s_xor_b32 s{sT1}, s{sI}, 15
    s_or_b32 s{sT2}, s{sT2}, s{sT1}
    s_cmp_eq_u32 s{sT2}, 0
    s_cselect_b32 s{sT2}, {WS_EP}, {OOB:#x}
    v_mov_b32 v{t0}, s{sE2}
    v_and_b32 v{t1}, {31 if OPT['epl'] else 0}, v{vL}
    v_lshl_add_u32 v{t1}, v{t1}, 2, s{sT2}""")
epoch_store = I(f'buffer_store_dword v{t0}, v{t1}, {srd(sWS)}, 0 offen {("", "", "sc1", "nt")[OPT["epl"]]}')
if OPT['epl']:
    P += epoch_setup
LATE = [b for b in (1, 2, 3) if b not in EARLY]
for b in LATE:
    P += rx_check(b)
    if OPT['seqadd'] and b < 3:
        P += [I(f'v_dot2c_f32_bf16 v{A0 + 2 * q + h}, s{sKC[h]}, v{RX[b] + q}') for q in range(8) for h in range(2)]
if OPT['seqadd']:
    LATE = [3]
P += ([epoch_store] if OPT['epl'] else []) + stamp('rx')
sts = []
for a in range(2):
    for q in range(4 * a, 4 * a + 4):
        for b in LATE:
            P += [I(f'v_dot2c_f32_bf16 v{A0 + 2 * q + h}, s{sKC[h]}, v{RX[b] + q}') for h in range(2)]
        P += sts[3 * (q & 3):3 * (q & 3) + 3]
    P += SWAPS(A0)[4 * a:4 * a + 4]
    sts = []
    for q in range(4 * a, 4 * a + 4):
        sts.append(I(f's_add_u32 s{sBB}, s{sXB}, {2048 * ROW(2 * q)}'))
        sts += [I(f'buffer_store_dword v{A0 + 2 * q + h}, v{FA0}, {srd(sOUT)}, s{sBB} offen offset:{2048 * h} '
                  f'{OPT["out_flags"].replace("+", " ")}') for h in range(2)]
P += sts + ([] if OPT['epl'] else epoch_setup + [epoch_store])
if OPT['diag']:
    P += stamp('end') + L("""s_memrealtime s[6:7]
        s_waitcnt lgkmcnt(0)
        s_sub_u32 s4, s4, s23
        s_lshl_b32 s4, s4, 2
        s_min_u32 s4, s4, 20000
        L_diag:
        s_memrealtime s[0:1]
        s_waitcnt lgkmcnt(0)
        s_sub_u32 s0, s0, s6
        s_cmp_lt_u32 s0, s4
        s_cbranch_scc1 L_diag""")
if OPT['dbg']:
    P += L(f"""s_memrealtime s[6:7]
        s_mov_b32 s{sTMP}, s4
        s_mov_b32 s{sTMP + 1}, s5
        s_mov_b32 s{sTMP + 2}, 256
        v_lshlrev_b32 v{t0}, 2, v{vL}
        v_lshrrev_b32 v{t1}, v{t0}, s23
        v_and_b32 v{t1}, 15, v{t1}
        v_min_u32 v{t1}, 1, v{t1}
        v_mov_b32 v{t2}, {OOB:#x}
        v_cmp_gt_u32 vcc, 7, v{vL}
        s_waitcnt lgkmcnt(0)
        v_cndmask_b32 v{t0}, v{t2}, v{t0}, vcc
        buffer_atomic_add v{t1}, v{t0}, {srd(sTMP)}, 0 offen
        s_sub_u32 s6, s6, s19
        v_mov_b32 v{t1}, s6
        v_cmp_eq_u32 vcc, 8, v{vL}
        v_lshlrev_b32 v{t0}, 2, v{vL}
        s_nop 0
        v_cndmask_b32 v{t0}, v{t2}, v{t0}, vcc
        buffer_atomic_umax v{t1}, v{t0}, {srd(sTMP)}, 0 offen""")
if PROF:
    P += stamp('end')
    P += L(f"""s_waitcnt vmcnt(0)
        s_memrealtime s[0:1]
        s_lshl_b32 s{sT2}, s2, 2
        s_add_u32 s{sT2}, s{sT2}, s{sW}
        s_lshl_b32 s{sT2}, s{sT2}, 7
        s_add_u32 s{sT2}, s{sT2}, {WS_PROF}
        v_mov_b32 v{t1}, s{sT2}
        s_waitcnt lgkmcnt(0)
        v_mov_b32 v{t0}, s0
        buffer_store_dword v{t0}, v{t1}, {srd(sWS)}, 0 offen offset:124
        v_mov_b32 v{t2}, s23
        buffer_store_dword v{t2}, v{t1}, {srd(sWS)}, 0 offen offset:112
        buffer_store_dword a254, v{t1}, {srd(sWS)}, 0 offen offset:116
        buffer_store_dword a255, v{t1}, {srd(sWS)}, 0 offen offset:120""")
    P += stamp('DUMP')
P += [I('L_end:'), I('s_endpgm')]

P = resolve_stamps(P)
if OPT['split']:
    P = split_ds_pairs(P)
if OPT['hoist']:
    P = hoist_reads(P, OPT['hoist'])
body = pad_hazards(insert_waits(P, OPT['age']))
check_polls(body)
tail = []
for name, loads, check in retry_blocks:
    blk = [I(f'L_retry_{name}:'), I(f's_mov_b32 s3, {OPT["spin"]}'), I(f'L_spin_{name}:')]
    if PROF or OPT['dbg']:
        blk.append(I(f's_add_u32 s23, s23, {1 << (4 * retry_blocks.index((name, loads, check)))}'))
    blk += L(loads) + [I('s_waitcnt vmcnt(0)')] + L(check)
    blk += L(f'''s_cbranch_vccz L_back_{name}
        s_sub_u32 s3, s3, 1
        s_cmp_lg_u32 s3, 0
        s_cbranch_scc1 L_spin_{name}
        s_branch L_back_{name}''')
    tail += pad_hazards(blk)

hdr = open(os.path.join(os.path.dirname(os.path.abspath(__file__)), 'header.txt')).read()
text = hdr + f'''; @launch grid=(256,1,1) block=(256,1,1) lds=163840
.amdgcn_target "amdgcn-amd-amdhsa--gfx950"
.text
.globl {KN}
.p2align 8
.type {KN},@function
{KN}:
{render(body)}
{render(tail)}
L_code_end:
    s_endpgm
.section .rodata,"a"
.p2align 6
.amdhsa_kernel {KN}
  .amdhsa_next_free_vgpr 512
  .amdhsa_next_free_sgpr 102
  .amdhsa_accum_offset 256
  .amdhsa_group_segment_fixed_size 0
  .amdhsa_kernarg_size 128
  .amdhsa_user_sgpr_count 2
  .amdhsa_user_sgpr_kernarg_segment_ptr 1
  .amdhsa_system_sgpr_workgroup_id_x 1
.end_amdhsa_kernel
'''
open(sys.argv[1], 'w').write(text)
if PROF:
    open(sys.argv[1][:-2] + '.stamps', 'w').write(' '.join(stamp_names))
from collections import Counter
cnt = Counter(i.kind for i in body)
print(dict(cnt), 'nops', sum(1 for i in body if i.mn == 's_nop'))
import subprocess
chk = subprocess.run([sys.executable, 'cdna_unwritten_srd_check.py', sys.argv[1]],
                     capture_output=True, text=True)
if chk.returncode != 0:
    os.remove(sys.argv[1])
    sys.exit('address check failed: ' + chk.stdout[-600:])
```

```python
import sys, os
sys.path.insert(0, os.path.dirname(os.path.abspath(__file__)))
from asmlib import I, Wait, insert_waits, pad_hazards, render, weave, split_ds_pairs, hoist_reads, merge, level, ds_first, check_polls

KN = 'parallel_sum__ssm_conv_s5__dense_activation_mish__prompt_kernel'
OPT = dict(prof=0, spin=20000, out_flags='nt', map='8x4', pf=2, age=16, laf=5, r1=30, r2=36, r3=29, e3=12, fls=28, fll=50, flc=68, ka2=1, nstep=0, split=0, diag='', dsp=2, xel=0, tlb=0, pk_in=1, lateln=100, d0=4, o8=1, bal=0, fineg=1, xes=0, xfirst=1, parat=4, nb0=2, stg3='8.16.23', stg1='2.7.12.17.22.27', stg2='2.6.14.21', fhp=0, wmix=1, ntx=0, ntg=0, ntw=0, lbt=0, rxe=0, dspc=3, dsps=3, sch=3, g3=24, fn=2, stg=0, q0=2, pfat=24, seqadd=1, rota=1, swb=1, lean=1, lb2s=0, s2l=0, xlds=0, deep=0, back=1, early=0, gl=0, xl=9, ncr=2, cpf=1, rxall=1, dbg=0, cfs=1, bsp=2, bsa=2, bsb=0, ovl=0, ofa=0, stg4='1.9.17.21', g10=8, wa0=17, hs=2, rotj=0, rotm=0, laj=7, pace=16, lev=0, lev3=0, pa=2, fw=1, xw=0, vmc=2, fine='', fas=-10, fal=12, fac=16, nea=8, fhs=-1, fhl=12, fhc=32, qord=1, lbl=13, lbc=24, ppf=0, hoist=32)
for a in sys.argv[2:]:
    k, v = a.split('=')
    OPT[k] = int(v) if v.lstrip('-').isdigit() else v
PROF = OPT['prof']

WS_EP, WS_AG, WS_A = 0, 0x10000, 0x40000
WS_XC = WS_A + 64 * 176 * 1024
XC_BLK = 2560
WS_FL = WS_XC + 1024 * 3 * XC_BLK
WS_SIZE = WS_FL + 1024 * 512
WS_PROF = 0x1C00000
OOB = 0x7ff00000
SLOT = 16384
TB = 9 * SLOT
T_STAT, T_B1, T_SEG, T_LB, T_H = TB, TB + 1024, TB + 2048, TB + 6144, TB + 8192
LOG2E, LN2, M2LN2 = 0x3fb8aa3b, 0x3f317218, 0xbfb17218

sX, sB, sW1, sCre, sCim, sW2, sWS, sOUT, sTMP = 36, 40, 44, 48, 52, 56, 60, 64, 68
sI, sJ, sW, sROT, sTAG, sE2 = 72, 73, 74, 75, 76, 77
sKC = [78, 79, 80, 81]
sWOFF, sT0, sT1, sXB, sBB, sW1A, sW1B = 82, 83, 84, 85, 86, 87, 88
sAS = 89
sFST = [90, 91, 92, 93]
sSST, sCB, sW2B, sFSEL, sONES, sT3, sJJ, sT2 = 94, 95, 96, 97, 98, 99, 100, 101
sKQ, sPB, sXO = 22, [24, 25, 26], [27, 28, 29, 30]
sSEL = [31, 32, 33, 34]
sFLG = 35
pLRE, pLIM, pBRE, pBIM, pLDT, pDSK, pB1 = 8, 10, 12, 14, 16, 18, 20
srd = lambda b: f's[{b}:{b + 3}]'
vL, t0, t1, t2 = 0, 1, 2, 3
AS = [4, 5, 6, 7]
ASc = [8, 9, 10, 11]
XG = [12, 13, 14, 15]
PG = [16, 17, 18, 19]
QG = [20, 21, 22, 23]
FA0, FAc, RL2, VLN2, VL16, VNM, VRS, t3 = 24, 25, 26, 27, 28, 29, 30, 31
FAd = VNM
NLI, LI, LR, CR, NCI, NCR, L16R, L16I, LSR, LSI, L128R, L128I, WR, WI, PR, PI = range(32, 48)
TT = 48
FACC = [64, 80]
SRE, SIM = 96, 112
X = 128
aS, aF, aP, aOF, aOS, aWO, aXE = 0, 128, 0, 64, 88, 128, 224
STAMP_A = list(range(104, 128)) + list(range(241, 247))
vr = lambda b, n: f'v[{b}:{b + n - 1}]'
ar = lambda b, n: f'a[{b}:{b + n - 1}]'

stamp_names = []
FINE_KEEP = dict(T=['lb1', 'F2', 'scan', 'F3', 'fa0', 'fa1', 'tail', 'fh0'], S=['x7', 'c27', 'b0', 'F0'], F0=['b2', 'F0', 'F1'], F2=['F1', 'F2', 'scan'], F3=['F2', 'scan', 'F3', 'fa0', 'fa1', 'tail'],
                 P3=['tail'], L=['k36', 'sent', 'own', 'rx'])


def fine(phase, items, step):
    if OPT['fine'] == phase:
        for n in range(step - 1, len(items), step):
            items[n] = items[n] + stamp(f'g{n}')
    return items


def stamp(name):
    if PROF == 3 and name not in ('end', 'DUMP'):
        return []
    if OPT['fine'] and not name.startswith('g') and name not in FINE_KEEP[OPT['fine']] + ['end', 'DUMP']:
        return []
    if OPT['diag'] == name:
        return [I('s_memrealtime s[4:5]')]
    return [I(';stamp ' + name)] if PROF else []


def resolve_stamps(prog):
    out = []
    for ins in prog:
        if not ins.text.startswith(';stamp '):
            out.append(ins)
            continue
        name = ins.text.split()[1]
        n = len(stamp_names)
        if n:
            out.append(I(f'v_accvgpr_write_b32 a{STAMP_A[n - 1]}, s{4 + 2 * ((n - 1) & 1)}'))
        if name == 'DUMP':
            out += [I(f'buffer_store_dword a{STAMP_A[k]}, v{t1}, {srd(sWS)}, 0 offen offset:{4 * k}') for k in range(n)]
            continue
        assert n < 29
        stamp_names.append(name)
        out.append(I(f's_mem{"real" if PROF == 2 else ""}time s[{4 + 2 * (n & 1)}:{5 + 2 * (n & 1)}]'))
    return out


def L(text):
    return [I(t.strip()) for t in text.strip().split('\n') if t.strip()]


def mfma(d, a, b, c):
    return I(f'v_mfma_f32_32x32x16_bf16 {d}, {a}, {b}, {c}')


def mksrd(b, lo, size):
    return f's_mov_b32 s{b}, s{lo}\ns_mov_b32 s{b + 1}, s{lo + 1}\ns_mov_b32 s{b + 2}, {size}\ns_mov_b32 s{b + 3}, 0x00020000\n'


slot_shared = {}


def dma_round(name, slot, voffs, rsrc, soff_code, shared):
    out = [I(f's_add_u32 m0, s{sWOFF}, {slot * SLOT}')] + L(soff_code)
    for g in range(4):
        nt = int(name[1:]) < OPT['ntx'] if name[0] == 'x' else OPT['ntg'] if name[0] == 'G' else OPT['ntw']
        out.append(I(f'buffer_load_dwordx4 v{voffs[g]}, {srd(rsrc)}, s{sT0} offen offset:{1024 * g} {"nt " if nt else ""}lds',
                     tok=name if g == 3 else None,
                     lds_w=(slot, slot_shared.get(slot, False)) if g == 0 else None, note=name,
                     fills=(slot, shared) if g == 3 else None))
    slot_shared[slot] = shared
    return out


XSLOT = lambda s: (s & 3) + (5 if OPT['early'] and s < 4 else 1)


def rx(s, slot):
    return dma_round(f'x{s}', XSLOT(s), XG, sX,
                     f's_add_u32 s{sT0}, s{sROT}, {s}\ns_and_b32 s{sT0}, s{sT0}, 7\n'
                     f's_lshl_b32 s{sT0}, s{sT0}, 7\ns_add_u32 s{sT0}, s{sT0}, s{sXB}', False)


G_SLOT = [5, 6, 7, 8, 0, 1, 2, 3, 4, 5, 6, 7]
W_SLOT = dict(WA0=8, CR0=0, CI0=1, WA1=2, WA2=3, WA3=4, CR1=5, CI1=6, WB0=7, WB1=8, WB2=2)


def rg(g):
    if g < 4:
        return dma_round(f'G{g}', G_SLOT[g], PG, sB,
                         f's_lshl_b32 s{sT0}, s{sKC[g]}, 7\ns_add_u32 s{sT0}, s{sT0}, s{sBB}', True)
    base = sW1A if g < 8 else sW1B
    return dma_round(f'G{g}', G_SLOT[g], QG, sW1,
                     f's_mul_i32 s{sT0}, s{sKC[g & 3]}, {64 * 3584}\ns_add_u32 s{sT0}, s{sT0}, s{base}', True)


def rw(name):
    e = int(name[2])
    if name[0] == 'C':
        code = f's_xor_b32 s{sT0}, s{sCB}, {128 * e}'
        return dma_round(name, W_SLOT[name], PG, sCim if name[1] == 'I' else sCre, code, True)
    if name[1] == 'A':
        code = f's_xor_b32 s{sT0}, s{sJJ}, {e}\ns_lshl_b32 s{sT0}, s{sT0}, 17\ns_add_u32 s{sT0}, s{sT0}, s{sW2B}'
    else:
        code = f's_lshl_b32 s{sT0}, s{sPB[e]}, 16\ns_add_u32 s{sT0}, s{sT0}, s{sW2B}'
        if e == 0:
            code += f'\ns_xor_b32 s{sT0}, s{sT0}, s{sSEL[0]}'
    return dma_round(name, W_SLOT[name], XG, sW2, code, True)


STAGE = {n: 160 + 16 * k for k, n in enumerate(x for x in str(OPT['stg']).split('.') if x != '0')}
VST = t0


def stage_load(name):
    keep = dict(slot_shared)
    out = []
    for i_ in rw(name)[1:]:
        if i_.kind == 'vm':
            n = sum(j.kind == 'vm' for j in out)
            i_ = I(i_.text.replace('dwordx4 ', f'dwordx4 {ar(STAGE[name] + 4 * n, 4)}, ').replace(' lds', ''))
            i_.dma = True
        out.append(i_)
    slot_shared.clear()
    slot_shared.update(keep)
    return out


def stage_write(name):
    slot = W_SLOT[name]
    out = [I(f's_add_u32 s{sT0}, s{sWOFF}, {slot * SLOT}'), I(f'v_add_u32 v{VST}, s{sT0}, v{VL16}')]
    out += [I(f'ds_write_b128 v{VST}, {ar(STAGE[name] + 4 * g_, 4)} offset:{1024 * g_}', tok=name if g_ == 3 else None,
              lds_w=(slot, True) if g_ == 0 else None, note=name, fills=(slot, True) if g_ == 3 else None)
            for g_ in range(4)]
    return out


def rw2(name):
    if name not in STAGE:
        return rw(name)
    out = stage_write(name)
    for i_ in out[2:]:
        i_.dma = True
    return out


def pins(*parts):
    pin = {}
    for gap, ins in parts:
        head = [i_ for i_ in ins if not getattr(i_, 'dma', False)]
        pin.setdefault(gap, []).extend(head)
        for n, i_ in enumerate(ins[len(head):]):
            pin.setdefault(gap + n * OPT['dsp'], []).append(i_)
    return pin


BAR = lambda *toks: ([Wait(*toks)] if toks else []) + [I('s_barrier')]
PARK = {n: 247 if k == 16 else 48 + k for k, n in enumerate('pub seg lba0 lba1 lbe0 lbe1 fla flp lbw lbr hw hw2 hr hr2 f3o fp0 fp1'.split())}
PARK['pfa'] = 249


def park(**regs):
    return [I(f'v_accvgpr_write_b32 a{PARK[n]}, v{r}') for n, r in regs.items()]


def fetch(**regs):
    return [I(f'v_accvgpr_read_b32 v{r}, a{PARK[n]}') for n, r in regs.items()]


retry_blocks = []


def poll(name, loads, check):
    retry_blocks.append((name, loads, check))
    return L(check) + [I(f's_cbranch_vccnz L_retry_{name}'), I(f'L_back_{name}:')]


def cexp(dr, di, scale, zr, za):
    return L(f"""v_mul_f32 v{dr}, {scale}, v{zr}
        v_mul_f32 v{di}, {scale}, v{za}
        v_exp_f32 v{dr}, v{dr}
        v_fract_f32 v{di}, v{di}
        v_cos_f32 v{t3}, v{di}
        v_sin_f32 v{di}, v{di}
        v_mul_f32 v{di}, v{dr}, v{di}
        v_mul_f32 v{dr}, v{dr}, v{t3}""")


def cmul_add(dr, di, ar_, ai, br, bi, cr=None, ci=None):
    if cr is None:
        head = f'v_mul_f32 v{dr}, v{ar_}, v{br}\nv_mul_f32 v{di}, v{ar_}, v{bi}'
    else:
        head = f'v_fma_f32 v{dr}, v{ar_}, v{br}, v{cr}\nv_fma_f32 v{di}, v{ar_}, v{bi}, v{ci}'
    return L(head + f'\nv_fma_f32 v{dr}, -v{ai}, v{bi}, v{dr}\nv_fmac_f32 v{di}, v{ai}, v{br}')


def mish(b, voff=VL16, quarters=range(4)):
    A = FACC[b & 1]
    out = []
    for q in quarters:
        rs = range(4 * q, 4 * q + 4)
        out.append(I(f'ds_read_b128 {vr(TT + 4 * q, 4)}, v{t2} offset:{T_B1 - TB + 128 * b + 16 * q}', hoist=True))
        out += [I(f'v_fmac_f32 v{TT + r}, v{A + r}, v{RL2}') for r in rs]
        out += [I(f'v_exp_f32 v{A + r}, v{TT + r}') for r in rs]
        out += [I(f'v_add_f32 v{A + r}, 1.0, v{A + r}') for r in rs]
        out += [I(f'v_fma_f32 v{A + r}, v{A + r}, v{A + r}, 1.0') for r in rs]
        out += [I(f'v_rcp_f32 v{A + r}, v{A + r}') for r in rs]
        out += [I(f'v_fmamk_f32 v{A + r}, v{A + r}, {M2LN2:#x}, v{VLN2}') for r in rs]
        out += [I(f'v_mul_f32 v{TT + r}, v{TT + r}, v{A + r}') for r in rs]
        out += [I(f'v_cvt_pk_bf16_f32 v{A + p}, v{TT + 2 * p}, v{TT + 2 * p + 1}') for p in (2 * q, 2 * q + 1)]
        if q & 1:
            fr = q >> 1
            out.append(I(f'buffer_store_dwordx4 {vr(A + 4 * fr, 4)}, v{voff}, {srd(sWS)}, s{sFST[b]} offen '
                         f'offset:{1024 * fr} sc1', tok=f'stF{b}' if fr else None))
            if b < 3:
                out += [I(f'v_accvgpr_write_b32 a{aOF + 8 * b + 4 * fr + e}, v{A + 4 * fr + e}') for e in range(4)]
    return out


def mish_pk(b, voff, halves=range(2)):
    A = FACC[b & 1]
    out = []
    for q in range(2 * len(halves)):
        out.append(I(f'ds_read_b128 {vr(TT + 4 * q, 4)}, v{t2} offset:{T_B1 - TB + 128 * b + 16 * q}', hoist=True))
    for h in halves:
        ps = range(8 * h, 8 * h + 8, 2)
        rs = range(8 * h, 8 * h + 8)
        out += [I(f'v_pk_fma_f32 {vr(TT + p, 2)}, {vr(A + p, 2)}, {vr(RL2, 2)}, {vr(TT + p, 2)} op_sel_hi:[1,0,1]') for p in ps]
        out += [I(f'v_exp_f32 v{A + r}, v{TT + r}') for r in rs]
        out += [I(f'v_pk_add_f32 {vr(A + p, 2)}, {vr(A + p, 2)}, 1.0 op_sel_hi:[1,0]') for p in ps]
        out += [I(f'v_pk_fma_f32 {vr(A + p, 2)}, {vr(A + p, 2)}, {vr(A + p, 2)}, 1.0 op_sel_hi:[1,1,0]') for p in ps]
        out += [I(f'v_rcp_f32 v{A + r}, v{A + r}') for r in rs]
        out += [I(f'v_pk_fma_f32 {vr(A + p, 2)}, {vr(A + p, 2)}, s[{sKC[0]}:{sKC[1]}], {vr(RL2, 2)} '
                  f'op_sel:[0,0,1] op_sel_hi:[1,0,1]') for p in ps]
        out += [I(f'v_pk_mul_f32 {vr(TT + p, 2)}, {vr(TT + p, 2)}, {vr(A + p, 2)}') for p in ps]
        out += [I(f'v_cvt_pk_bf16_f32 v{A + p // 2}, v{TT + p}, v{TT + p + 1}') for p in ps]
    out += [I(f'v_permlane16_swap_b32 v{A + e}, v{A + 4 + e}') for e in range(4)]
    for h in range(2):
        out.append(I(f'buffer_store_dwordx4 {vr(A + 4 * h, 4)}, v{voff}, {srd(sWS)}, s{sFST[b]} offen '
                     f'offset:{1024 * h} sc1', tok=f'stF{b}' if h else None))
        if b < 3:
            out += [I(f'v_accvgpr_write_b32 a{aOF + 8 * b + 4 * h + e}, v{A + 4 * h + e}') for e in range(4)]
    return out


def mish_stages(b, h):
    m = mish_pk(b, VL16, range(2))
    body = m[4:]
    body = body[40:] if h else body[:40]
    return dict(rd=m[2 * h:2 * h + 2], A=body[0:4], ex=body[4:12], B=body[12:20], rc=body[20:28], C=body[28:36],
                fin=body[36:])


def cmul_pk(d, a, b, c):
    return L(f"""v_pk_fma_f32 {vr(d, 2)}, {vr(b, 2)}, {vr(a, 2)}, {vr(c, 2)} op_sel_hi:[1,0,1]
        v_pk_fma_f32 {vr(d, 2)}, {vr(b, 2)}, {vr(a, 2)}, {vr(d, 2)} op_sel:[1,1,0] op_sel_hi:[0,1,1] neg_lo:[0,1,0]""")


def staged(items, pin, plan):
    out, lo = [], 0
    for hi, fill_, burst_ in plan:
        out += weave(items[lo:hi + 1], fill_, {g_ - lo: v for g_, v in pin.items() if lo <= g_ <= hi}) + burst_
        lo = hi + 1
    return out


_weave = weave
LEV = [OPT['lev']]


def weave(*a):
    out = _weave(*a)
    return ds_first(level(out, LEV[0], OPT['vmc'])) if LEV[0] else out


P = []
if OPT['map'] == '8x4':
    ids = f"""s_and_b32 s{sKQ}, s2, 3
        s_bfe_u32 s{sJJ}, s2, 0x20003
        s_lshr_b32 s{sI}, s2, 5
        s_bfe_u32 s{sT0}, s2, 0x10002
        s_lshl_b32 s{sROT}, s{sT0}, 1
        s_lshl_b32 s{sT0}, s{sT0}, 3
        s_and_b32 s{sT1}, s{sI}, {OPT['rota']}
        s_or_b32 s{sI}, s{sI}, s{sT0}
        s_add_u32 s{sROT}, s{sROT}, s{sT1}
        s_add_u32 s{sROT}, s{sROT}, s{sJJ if OPT['rotm'] else sKQ}
        s_lshl_b32 s{sROT}, s{sROT}, 1
        s_and_b32 s{sROT}, s{sROT}, 7"""
else:
    ids = f"""s_and_b32 s{sKQ}, s2, 1
        s_lshl_b32 s{sKQ}, s{sKQ}, 1
        s_lshr_b32 s{sT0}, s2, 7
        s_or_b32 s{sKQ}, s{sKQ}, s{sT0}
        s_bfe_u32 s{sJJ}, s2, 0x20003
        s_bfe_u32 s{sI}, s2, 0x20005
        s_bfe_u32 s{sT0}, s2, 0x20001
        s_add_u32 s{sROT}, s{sT0}, s{sKQ}
        s_lshl_b32 s{sT0}, s{sT0}, 2
        s_or_b32 s{sI}, s{sI}, s{sT0}
        s_lshl_b32 s{sROT}, s{sROT}, 1
        {'s_lshr_b32 s%d, s2, 7' % sT0 if OPT['rotm'] else ''}
        {'s_lshl_b32 s%d, s%d, 1' % (sROT, sJJ) if OPT['rotm'] else ''}
        {'s_add_u32 s%d, s%d, s%d' % (sROT, sROT, sT0) if OPT['rotm'] else ''}
        s_and_b32 s{sROT}, s{sROT}, 7"""
code_pf = f'buffer_load_dword v{t3}, v{FACC[0] if OPT["cpf"] == 2 else t1}, {srd(sTMP)}, s{sFLG if OPT["cpf"] == 2 else sT0} offen'
ws_load = f's_load_dwordx2 s[{sWS}:{sWS + 1}], s[0:1], 120'
more_loads = f"""s_load_dwordx8 s[{pLRE}:{pLRE + 7}], s[0:1], 8
s_load_dwordx4 s[{pLDT}:{pLDT + 3}], s[0:1], 56
s_load_dwordx2 s[{pB1}:{pB1 + 1}], s[0:1], 88
s_load_dwordx2 s[{sW1}:{sW1 + 1}], s[0:1], 80
s_load_dwordx2 s[{sCre}:{sCre + 1}], s[0:1], 40
s_load_dwordx2 s[{sCim}:{sCim + 1}], s[0:1], 48
s_load_dwordx2 s[{sW2}:{sW2 + 1}], s[0:1], 96
s_load_dwordx2 s[{sOUT}:{sOUT + 1}], s[0:1], 104
"""
SUM, SQ = [TT + 8, TT + 9], [TT + 10, TT + 11]
sizes = ((sX, 2097152), (sB, 524288), (sW1, 1835008), (sCre, 524288), (sCim, 524288), (sW2, 1835008),
         (sWS, (WS_PROF + 0x40000) if PROF else WS_SIZE), (sOUT, 4194304))
P += L(f"""
s_cmp_ge_u32 s2, 256
s_cbranch_scc1 L_end
{'s_memtime s[98:99]' if PROF else ''}
{'s_memrealtime s[90:91]' if PROF or OPT['diag'] or OPT['dbg'] else ''}
{'s_load_dwordx2 s[4:5], s[0:1], 112' if OPT['dbg'] else ''}
s_load_dwordx2 s[{sX}:{sX + 1}], s[0:1], 0
{'' if OPT['ka2'] else ws_load}
s_getpc_b64 s[{sTMP}:{sTMP + 1}]
v_lshrrev_b32 v{t0}, 6, v0
v_and_b32 v{vL}, 63, v0
s_and_b32 s{sTMP}, s{sTMP}, 0xffffff80
v_readfirstlane_b32 s{sW}, v{t0}
s_mov_b32 s{sTMP + 2}, L_code_end-{KN}
s_mov_b32 s{sTMP + 3}, 0x00020000
s_lshr_b32 s{sT0}, s2, 3
s_lshl_b32 s{sT0}, s{sT0}, 2
s_add_u32 s{sT0}, s{sT0}, s{sW}
s_lshl_b32 s{sT0}, s{sT0}, 9
v_and_b32 v{t1}, 3, v{vL}
v_lshlrev_b32 v{t1}, 7, v{t1}
{'' if OPT['cpf'] == 2 else code_pf}
{'' if OPT['ka2'] else more_loads}
v_lshrrev_b32 v{t0}, 3, v{vL}
v_lshrrev_b32 v{t1}, 4, v{vL}
v_xor_b32 v{t1}, v{t1}, v{vL}
v_and_b32 v{t1}, 7, v{t1}
v_lshlrev_b32 v{t1}, 4, v{t1}
v_lshl_add_u32 v{PG[0]}, v{t0}, 10, v{t1}
v_lshrrev_b32 v{t2}, 5, v{vL}
v_mul_u32_u24 v{t2}, {12 * 1024}, v{t2}
v_add_u32 v{XG[0]}, v{PG[0]}, v{t2}
v_xor_b32 v{XG[1]}, 64, v{XG[0]}
v_add_u32 v{XG[2]}, {6 * 1024}, v{XG[0]}
v_add_u32 v{XG[3]}, {9 * 1024}, v{XG[1]}
v_add_u32 v{XG[1]}, {3 * 1024}, v{XG[1]}
s_lshl_b32 s{sWOFF}, s{sW}, 12
{ids}
s_lshl_b32 s{sXB}, s{sI}, 17
s_lshl_b32 s{sT0}, s{sW}, 15
s_add_u32 s{sXB}, s{sXB}, s{sT0}
""" + ''.join(f's_mov_b32 s{b + 2}, {n}\ns_mov_b32 s{b + 3}, 0x00020000\n' for b, n in sizes[:1 if OPT['lean'] else 8]) + f"""
s_waitcnt lgkmcnt(0)
{'v_accvgpr_write_b32 a254, s98' if PROF else ''}
{'v_accvgpr_write_b32 a255, s90' if PROF else ''}
{'s_mov_b32 s23, 0' if PROF or OPT['dbg'] else ''}
{'s_mov_b32 s3, s90' if OPT['dbg'] else ''}
{'s_mov_b32 s23, s90' if OPT['diag'] else ''}
""")
P += stamp('ka') if OPT['diag'] else []
P += rx(0, 0) + (L(ws_load + '\n' + more_loads) if OPT['ka2'] else []) + rx(1, 1)
if OPT['lean']:
    P += L(''.join(f's_mov_b32 s{b + 2}, {n}\ns_mov_b32 s{b + 3}, 0x00020000\n' for b, n in sizes[1:]))
P += L(f"""
v_and_b32 v{t0}, 31, v{vL}
s_lshl_b32 s{sJ}, s{sKQ}, 2
s_or_b32 s{sJ}, s{sJ}, s{sJJ}
v_lshrrev_b32 v{t1}, 5, v{vL}
v_bfe_u32 v{t2}, v{vL}, 1, 3
v_xor_b32 v{t1}, v{t1}, v{t2}
v_lshlrev_b32 v{t1}, 4, v{t1}
v_lshl_add_u32 v{AS[0]}, v{t0}, 7, v{t1}
v_xor_b32 v{AS[1]}, 32, v{AS[0]}
v_xor_b32 v{AS[2]}, 64, v{AS[0]}
v_xor_b32 v{AS[3]}, 0x60, v{AS[0]}
s_add_u32 s{sT0}, s{sWOFF}, {XSLOT(0) * SLOT}
v_add_u32 v{ASc[0]}, s{sT0}, v{AS[0]}
v_add_u32 v{ASc[1]}, s{sT0}, v{AS[1]}
v_add_u32 v{ASc[2]}, s{sT0}, v{AS[2]}
v_add_u32 v{ASc[3]}, s{sT0}, v{AS[3]}
s_mov_b32 s{sONES}, 0x3f803f80
v_mov_b32 v{SUM[0]}, 0
v_mov_b32 v{SUM[1]}, 0
v_mov_b32 v{SQ[0]}, 0
v_mov_b32 v{SQ[1]}, 0
s_lshl_b32 s{sT0}, s{sW}, 9
s_add_u32 s{sT0}, s{sT0}, {T_SEG}
v_lshl_add_u32 v{t0}, v{vL}, 3, s{sT0}""")
P.append(I(f'ds_write_b64 v{t0}, {vr(SUM[0], 2)}', tok='zero'))
P += L(f's_waitcnt lgkmcnt(0)\ns_load_dword s{sE2}, s[{sWS}:{sWS + 1}], {WS_EP}')
mid = L(f"""
v_and_b32 v{t0}, 31, v{vL}
s_lshl_b32 s{sT1}, s{sJ}, 6
v_lshl_add_u32 v{NLI}, v{t0}, 1, s{sT1}
s_and_b32 s{sT3}, s{sW}, 1
s_mul_i32 s{sT2}, s{sKQ}, 7
s_lshl_b32 s{sW1A}, s{sJJ}, 1
s_add_u32 s{sPB[0]}, s{sW1A}, 1
s_cmp_eq_u32 s{sJJ}, 3
s_cselect_b32 s{sPB[0]}, 3, s{sPB[0]}
s_cselect_b32 s{sFSEL}, 64, 0
s_add_u32 s{sW1A}, s{sW1A}, s{sT2}
s_add_u32 s{sW1B}, s{sPB[0]}, s{sT2}
s_lshl_b32 s{sW1A}, s{sW1A}, 7
s_lshl_b32 s{sW1B}, s{sW1B}, 7
s_cmp_ge_u32 s{sW}, 2
s_cselect_b32 s{sT2}, s{sW1B}, s{sW1A}
s_cselect_b32 s{sT1}, s{sFSEL}, 0
s_add_u32 s{sT2}, s{sT2}, s{sT1}
s_lshl_b32 s{sT1}, s{sT3}, 6
s_xor_b32 s{sT2}, s{sT2}, s{sT1}
v_and_b32 v{t1}, 3, v{vL}
v_bfe_u32 v{t2}, v{vL}, 2, 2
v_lshl_add_u32 v{t1}, v{t2}, 3, v{t1}
v_bfe_u32 v{t2}, v{vL}, 4, 1
v_lshl_add_u32 v{t1}, v{t2}, 2, v{t1}
v_lshl_add_u32 v{PR}, v{t1}, 1, s{sT2}
s_cmp_eq_u32 s{sT3}, 1
s_cselect_b32 s{sB}, s{pBIM}, s{pBRE}
s_cselect_b32 s{sB + 1}, s{pBIM + 1}, s{pBRE + 1}
s_mul_i32 s{sT3}, s{sT3}, {32 * 3584}
s_add_u32 s{sW1A}, s{sW1A}, s{sT3}
s_add_u32 s{sW1B}, s{sW1B}, s{sT3}
s_lshl_b32 s{sBB}, s{sJ}, 15
s_lshr_b32 s{sT1}, s{sW}, 1
s_add_u32 s{sT1}, s{sT1}, s{sROT}
s_and_b32 s{sKC[0]}, s{sT1}, 7
s_add_u32 s{sT1}, s{sT1}, 2
s_and_b32 s{sKC[1]}, s{sT1}, 7
s_add_u32 s{sT1}, s{sT1}, 2
s_and_b32 s{sKC[2]}, s{sT1}, 7
s_add_u32 s{sT1}, s{sT1}, 2
s_and_b32 s{sKC[3]}, s{sT1}, 7
v_xor_b32 v{PG[1]}, 64, v{PG[0]}
v_add_u32 v{PG[2]}, {14 * 1024}, v{PG[0]}
v_add_u32 v{PG[3]}, {21 * 1024}, v{PG[1]}
v_add_u32 v{PG[1]}, {7 * 1024}, v{PG[1]}
v_and_b32 v{t2}, 1, v{vL}
v_lshlrev_b32 v{t2}, 4, v{t2}
v_mov_b32 v{VNM}, 0x3f80
v_lshlrev_b32 v{t2}, v{t2}, v{VNM}
v_bfe_i32 v{t0}, v{vL}, 1, 1
v_and_b32 v{TT + 1}, v{t0}, v{t2}
v_xor_b32 v{TT}, v{TT + 1}, v{t2}
""")
mid += L(f"""
v_lshrrev_b32 v{t1}, 3, v{vL}
v_mul_u32_u24 v{t1}, 3584, v{t1}
v_bfe_u32 v{t2}, v{vL}, 4, 1
v_lshlrev_b32 v{t2}, 2, v{t2}
v_xor_b32 v{t2}, v{t2}, v{vL}
v_and_b32 v{t2}, 7, v{t2}
v_lshl_add_u32 v{QG[0]}, v{t2}, 4, v{t1}
v_add_u32 v{QG[1]}, {27648}, v{QG[0]}
v_add_u32 v{QG[2]}, {2 * 27648}, v{QG[0]}
v_add_u32 v{QG[3]}, {3 * 27648}, v{QG[0]}
""")
swapb = f's_cmp_eq_u32 s{sJJ}, 1\ns_cselect_b32 s{sPB[1]}, 5, s{sPB[1]}\ns_cselect_b32 s{sPB[2]}, 1, s{sPB[2]}' if OPT['swb'] else ''
late = L(f"""
s_mul_i32 s{sE2}, s{sE2}, 1664525
s_add_u32 s{sE2}, s{sE2}, 1013904226
s_or_b32 s{sTAG}, s{sE2}, 1
v_bfe_u32 v{t1}, v{vL}, 2, 2
v_lshrrev_b32 v{t2}, 5, v{vL}
v_lshl_add_u32 v{t2}, v{t2}, 3, v{t1}
v_lshlrev_b32 v{FA0}, 7, v{t2}
v_lshrrev_b32 v{t1}, 1, v{t1}
v_lshl_add_u32 v{FA0}, v{t1}, 6, v{FA0}
v_bfe_u32 v{t1}, v{vL}, 4, 1
v_lshl_add_u32 v{FA0}, v{t1}, 5, v{FA0}
v_and_b32 v{t1}, 3, v{vL}
v_lshl_add_u32 v{FA0}, v{t1}, 3, v{FA0}
v_lshlrev_b32 v{VL16}, 4, v{vL}
v_mov_b32 v{VLN2}, {LN2:#x}
s_cmp_eq_u32 s{sPB[0]}, 1
s_cselect_b32 s{sPB[1]}, 3, 1
s_cmp_eq_u32 s{sPB[0]}, 5
s_cselect_b32 s{sPB[2]}, 3, 5
{swapb}
s_lshl_b32 s{sSEL[0]}, s{sFSEL}, 9
s_lshl_b32 s{sAS}, s{sI}, 2
s_add_u32 s{sAS}, s{sAS}, s{sW}
s_lshl_b32 s{sAS}, s{sAS}, 2
s_add_u32 s{sAS}, s{sAS}, s{sKQ}
s_lshl_b32 s{sFLG}, s{sAS}, 11
s_add_u32 s{sFLG}, s{sFLG}, {WS_FL}
s_mul_i32 s{sAS}, s{sAS}, {44 * 1024}
s_add_u32 s{sAS}, s{sAS}, {WS_A}
s_lshl_b32 s{sT2}, s{sJJ}, 13
s_add_u32 s{sFST[0]}, s{sAS}, s{sT2}
s_add_u32 s{sFST[1]}, s{sFST[0]}, 2048
s_lshl_b32 s{sT2}, s{sPB[0]}, 12
s_add_u32 s{sFST[3]}, s{sAS}, s{sT2}
s_lshl_b32 s{sT2}, s{sFSEL}, 5
s_add_u32 s{sFST[2]}, s{sFST[3]}, s{sT2}
s_add_u32 s{sFST[3]}, s{sFST[3]}, 2048
s_lshl_b32 s{sT2}, s{sJJ}, 12
s_add_u32 s{sSST}, s{sAS}, s{sT2}
s_add_u32 s{sSST}, s{sSST}, {28 * 1024}
s_xor_b32 s{sT2}, s{sW}, s{sKQ}
s_lshl_b32 s{sT2}, s{sT2}, 15
s_lshl_b32 s{sCB}, s{sJJ}, 17
s_add_u32 s{sCB}, s{sCB}, s{sT2}
s_lshl_b32 s{sT2}, s{sKQ}, 8
s_add_u32 s{sCB}, s{sCB}, s{sT2}
s_lshr_b32 s{sT2}, s{sJJ}, 1
s_lshl_b32 s{sT2}, s{sT2}, 7
s_add_u32 s{sCB}, s{sCB}, s{sT2}
s_mul_i32 s{sW2B}, s{sKQ}, {448 * 1024}
s_lshr_b32 s{sT2}, s{sW}, 1
s_lshl_b32 s{sT2}, s{sT2}, 15
s_add_u32 s{sW2B}, s{sW2B}, s{sT2}
s_lshl_b32 s{sT2}, s{sJJ}, 8
s_add_u32 s{sW2B}, s{sW2B}, s{sT2}
s_lshr_b32 s{sT2}, s{sKQ}, 1
s_xor_b32 s{sT2}, s{sT2}, s{sW}
s_and_b32 s{sT2}, s{sT2}, 1
s_lshl_b32 s{sT2}, s{sT2}, 7
s_add_u32 s{sW2B}, s{sW2B}, s{sT2}
s_lshl_b32 s{sT2}, s{sI}, 4
s_add_u32 s{sT2}, s{sT2}, s{sJJ}
s_lshl_b32 s{sT2}, s{sT2}, 2
s_add_u32 s{sT2}, s{sT2}, s{sW}""")
for b in range(4):
    late += L(f"""s_xor_b32 s{sT3}, s{sKQ}, {b}
        s_lshl_b32 s{sT3}, s{sT3}, 4
        s_add_u32 s{sT3}, s{sT3}, s{sT2}
        s_mul_i32 s{sT3}, s{sT3}, {3 * XC_BLK}
        s_add_u32 s{sXO[b]}, s{sT3}, {WS_XC + (b - 1) * XC_BLK if b else WS_XC}""")
late += L(f"""s_add_u32 s{sSEL[2]}, s{sXO[0]}, {XC_BLK}
    s_add_u32 s{sSEL[3]}, s{sXO[0]}, {2 * XC_BLK}
    s_and_b32 s{sT3}, s{sJJ}, 1
    s_sub_u32 s{sSEL[1]}, 6, s{sT3}""")
pf = []
if OPT['pf'] == 2:
    late += L(f"""
s_and_b32 s{sT1}, s{sI}, 7
s_lshl_b32 s{sT2}, s{sT1}, 1
s_add_u32 s{sT2}, s{sT2}, s{sW}
s_mul_i32 s{sT2}, s{sT2}, 28
s_mul_i32 s{sT3}, s{sKQ}, 448
s_add_u32 s{sT2}, s{sT2}, s{sT3}
s_lshl_b32 s{sT2}, s{sT2}, 2
s_add_u32 s{sT2}, s{sT2}, s{sJJ}
s_lshl_b32 s{sT3}, s{sJJ}, 3
s_add_u32 s{sT3}, s{sT3}, s{sT1}
s_lshl_b32 s{sT3}, s{sT3}, 6
s_add_u32 s{sT3}, s{sT3}, s{sKQ}
s_cmp_lt_u32 s{sW}, 2
s_cselect_b32 s{sT2}, s{sT2}, s{sT3}
s_cselect_b32 s{sT3}, 56, 32
s_cselect_b32 s{sTMP}, s{sW2}, s{sCre}
s_cselect_b32 s{sTMP + 1}, s{sW2 + 1}, s{sCre + 1}
s_cselect_b32 s{sTMP + 2}, s{sW2 + 2}, s{sCre + 2}
s_cmp_eq_u32 s{sW}, 3
s_cselect_b32 s{sTMP}, s{sCim}, s{sTMP}
s_cselect_b32 s{sTMP + 1}, s{sCim + 1}, s{sTMP + 1}""")
elif OPT['pf']:
    late += L(f"""
s_mul_i32 s{sT2}, s{sKQ}, 448
s_mul_i32 s{sT3}, s{sI}, 28
s_add_u32 s{sT2}, s{sT2}, s{sT3}
s_lshl_b32 s{sT2}, s{sT2}, 2
s_add_u32 s{sT2}, s{sT2}, s{sJJ}
s_lshl_b32 s{sT3}, s{sJJ}, 4
s_add_u32 s{sT3}, s{sT3}, s{sI}
s_lshl_b32 s{sT3}, s{sT3}, 5
s_add_u32 s{sT3}, s{sT3}, s{sKQ}
s_cmp_eq_u32 s{sW}, 0
s_cselect_b32 s{sT2}, s{sT2}, s{sT3}
s_cselect_b32 s{sT3}, 56, 16
s_cselect_b32 s{sTMP}, s{sW2}, s{sCre}
s_cselect_b32 s{sTMP + 1}, s{sW2 + 1}, s{sCre + 1}
s_cselect_b32 s{sTMP + 2}, s{sW2 + 2}, s{sCre + 2}
s_cmp_eq_u32 s{sW}, 2
s_cselect_b32 s{sTMP}, s{sCim}, s{sTMP}
s_cselect_b32 s{sTMP + 1}, s{sCim + 1}, s{sTMP + 1}
s_cmp_eq_u32 s{sW}, 3
s_cselect_b32 s{sT3}, 0, s{sT3}""")
if OPT['pf']:
    late += L(f"""s_lshl_b32 s{sT2}, s{sT2}, 8
v_lshrrev_b32 v{t0}, 1, v{vL}
v_and_b32 v{t1}, 1, v{vL}
v_lshlrev_b32 v{t1}, 7, v{t1}
v_lshl_add_u32 v{t0}, v{t0}, 10, v{t1}
v_add_u32 v{t0}, s{sT2}, v{t0}
v_mov_b32 v{t1}, {OOB:#x}
v_cmp_gt_u32 vcc, s{sT3}, v{vL}
v_cndmask_b32 v{PI}, v{t1}, v{t0}, vcc""")
    pf = L(f'buffer_load_dword a248, v{PI}, {srd(sTMP)}, 0 offen')

Z = TT + 2
consts = L(f"""
v_lshlrev_b32 v{NLI}, 16, v{NLI}
v_mul_f32 v{NLI}, {LOG2E:#x}, v{NLI}
v_exp_f32 v{NLI}, v{NLI}
v_lshlrev_b32 v{Z + 2}, 16, v{LR}
v_lshlrev_b32 v{Z + 3}, 16, v{LI}
v_cvt_pk_bf16_f32 v{NLI}, v{NLI}, v{NLI}
v_lshlrev_b32 v{NLI}, 16, v{NLI}
v_mul_f32 v{Z}, v{NLI}, v{Z + 2}
v_mul_f32 v{Z + 1}, v{NLI}, v{Z + 3}
v_mul_f32 v{Z}, {LOG2E:#x}, v{Z}
v_mul_f32 v{Z + 1}, 0xbe22f983, v{Z + 1}""")
consts += cexp(LR, LI, '1.0', Z, Z + 1)
consts += L(f"""
v_mul_f32 v{Z + 4}, v{Z + 2}, v{Z + 2}
v_fmac_f32 v{Z + 4}, v{Z + 3}, v{Z + 3}
v_rcp_f32 v{Z + 4}, v{Z + 4}
v_add_f32 v{Z + 5}, -1.0, v{LR}
v_sub_f32 v{NLI}, 0, v{LI}
v_add_f32 v{Z + 4}, v{Z + 4}, v{Z + 4}
v_mul_f32 v{CR}, v{Z + 5}, v{Z + 2}
v_fmac_f32 v{CR}, v{NLI}, v{Z + 3}
v_mul_f32 v{NCI}, v{Z + 5}, v{Z + 3}
v_fmac_f32 v{NCI}, v{LI}, v{Z + 2}
v_mul_f32 v{CR}, v{CR}, v{Z + 4}
v_mul_f32 v{NCI}, v{NCI}, v{Z + 4}
v_sub_f32 v{NCR}, 0, v{CR}""")
consts += cexp(L16R, L16I, '0x41800000', Z, Z + 1)
consts += cexp(L128R, L128I, '0x43000000', Z, Z + 1)
consts += L(f"""
v_lshrrev_b32 v{Z + 6}, 5, v{vL}
s_lshl_b32 s{sT2}, s{sW}, 1
v_add_u32 v{Z + 6}, s{sT2}, v{Z + 6}
v_cvt_f32_u32 v{Z + 6}, v{Z + 6}
v_mul_f32 v{Z + 7}, 0x41800000, v{Z + 6}
v_sub_f32 v{Z + 6}, 0x40e00000, v{Z + 6}
v_mul_f32 v{Z + 6}, 0x43800000, v{Z + 6}""")
consts += cexp(LSR, LSI, f'v{Z + 7}', Z, Z + 1)
consts += cexp(WR, WI, f'v{Z + 6}', Z, Z + 1)
consts += L(f"""v_lshlrev_b32 v{PR}, 16, v{PR}
v_mul_f32 v{PR}, {LOG2E:#x}, v{PR}
v_and_b32 v{t1}, 31, v{vL}
s_lshl_b32 s{sT1}, s{sW}, 7
s_add_u32 s{sT1}, s{sT1}, {T_B1}
v_lshl_add_u32 v{t1}, v{t1}, 2, s{sT1}
""") + [I(f'ds_write_b32 v{t1}, v{PR}', tok='b1w')]
later = []
Y = SRE
later += L(f"""v_and_b32 v{Y}, 31, v{vL}
    v_lshlrev_b32 v{Y + 1}, 3, v{Y}
    v_add_u32 v{Y + 1}, {T_LB}, v{Y + 1}
    v_lshrrev_b32 v{t0}, 5, v{vL}
    s_lshl_b32 s{sT2}, s{sW}, 11
    s_add_u32 s{sT2}, s{sT2}, {T_H}
    v_lshl_add_u32 v{Y}, v{Y}, 6, s{sT2}
    v_bfe_u32 v{Y + 2}, v{vL}, 1, 2
    v_lshlrev_b32 v{Y + 3}, 1, v{t0}
    v_xor_b32 v{Y + 2}, v{Y + 2}, v{Y + 3}
    v_bfe_u32 v{Y + 3}, v{vL}, 3, 1
    v_xor_b32 v{Y + 2}, v{Y + 2}, v{Y + 3}
    v_lshl_add_u32 v{Y}, v{Y + 2}, 4, v{Y}
    v_xor_b32 v{Y + 3}, 16, v{Y}
    v_bfe_u32 v{Y + 6}, v{vL}, 2, 2
    v_lshrrev_b32 v{t1}, 4, v{vL}
    v_lshl_add_u32 v{Y + 2}, v{t1}, 3, v{Y + 6}
    v_lshl_add_u32 v{Y + 2}, v{Y + 2}, 6, s{sT2}
    v_and_b32 v{t1}, 1, v{vL}
    v_lshl_add_u32 v{Y + 2}, v{t1}, 5, v{Y + 2}
    v_lshrrev_b32 v{t1}, 1, v{vL}
    v_xor_b32 v{t1}, v{t1}, v{vL}
    v_and_b32 v{t1}, 8, v{t1}
    v_lshl_add_u32 v{Y + 2}, v{t1}, 1, v{Y + 2}
    v_bfe_u32 v{t1}, v{vL}, 1, 1
    v_lshl_add_u32 v{Y + 2}, v{t1}, 3, v{Y + 2}
    v_bfe_u32 v{t1}, v{vL}, 4, 1
    v_lshl_add_u32 v{Y + 5}, v{t0}, 2, v{Y + 6}
    v_lshl_add_u32 v{Y + 5}, v{t1}, 4, v{Y + 5}
    v_lshlrev_b32 v{Y + 5}, 7, v{Y + 5}
    s_and_b32 s{sT2}, s{sKQ}, 1
    v_xor_b32 v{t1}, s{sT2}, v{t1}
    v_lshl_add_u32 v{Y + 5}, v{t1}, 6, v{Y + 5}
    v_bfe_u32 v{t1}, v{vL}, 3, 1
    v_lshl_add_u32 v{Y + 5}, v{t1}, 5, v{Y + 5}
    v_and_b32 v{t1}, 3, v{vL}
    v_lshl_add_u32 v{Y + 5}, v{t1}, 3, v{Y + 5}
    v_and_b32 v{Y + 6}, 15, v{vL}
    v_lshrrev_b32 v{t1}, 4, v{vL}
    v_bfe_u32 v{Y + 4}, v{vL}, 1, 3
    v_xor_b32 v{t1}, v{t1}, v{Y + 4}
    v_lshlrev_b32 v{t1}, 4, v{t1}
    v_lshl_add_u32 v{Y + 6}, v{Y + 6}, 7, v{t1}
    s_and_b32 s{sT2}, s{sJJ}, 1
    s_lshl_b32 s{sT2}, s{sT2}, 6
    v_xor_b32 v{Y + 6}, s{sT2}, v{Y + 6}
    s_lshl_b32 s{sT2}, s{sW}, 9
    s_add_u32 s{sT1}, s{sT2}, {T_SEG}
    s_add_u32 s{sT2}, s{sT2}, {T_LB}
    v_lshl_add_u32 v{Y + 7}, v{vL}, 3, s{sT1}
    v_lshl_add_u32 v{Y + 8}, v{vL}, 3, s{sT2}""")
later += park(hw=Y, lbr=Y + 1, hr=Y + 2, hw2=Y + 3, fp0=Y + 5, fp1=Y + 6, seg=Y + 7, lbw=Y + 8)
park2 = []
Y = FACC[0]
park2 += L(f"""s_lshl_b32 s{sT2}, s{sJ}, 4
    s_add_u32 s{sT2}, s{sT2}, s{sI}
    s_lshl_b32 s{sT2}, s{sT2}, 9
    s_add_u32 s{sT2}, s{sT2}, {WS_AG - 512}
    s_cmp_eq_u32 s{sW}, 3
    s_cselect_b32 s{sT2}, s{sT2}, {OOB:#x}
    v_mov_b32 v{Y + 8}, {OOB:#x}
    v_cmp_gt_u32 vcc, 32, v{vL}
    v_add_u32 v{Y}, s{sT2}, v{VL16}
    v_lshrrev_b32 v{t0}, 5, v{vL}
    v_cndmask_b32 v{Y}, v{Y}, v{Y + 8}, vcc
    s_lshl_b32 s{sT2}, s{sW}, 2
    s_add_u32 s{sT2}, s{sT2}, s{sI}
    s_sub_u32 s{sT2}, s{sT2}, 16
    v_lshl_add_u32 v{t0}, v{t0}, 1, s{sT2}
    s_lshl_b32 s{sT2}, s{sJ}, 13
    s_add_u32 s{sT2}, s{sT2}, {WS_AG}
    v_and_b32 v{Y + 9}, 31, v{vL}
    v_lshl_add_u32 v{t1}, v{Y + 9}, 4, s{sT2}
    v_lshl_add_u32 v{Y + 1}, v{t0}, 9, v{t1}
    v_cmp_gt_i32 vcc, 0, v{t0}
    v_add_u32 v{Y + 2}, 512, v{Y + 1}
    v_mov_b32 v{t1}, s{sTAG}
    v_cndmask_b32 v{Y + 1}, v{Y + 1}, v{Y + 8}, vcc
    v_cndmask_b32 v{Y + 3}, v{t1}, 0, vcc
    v_cmp_gt_i32 vcc, -1, v{t0}
    s_lshl_b32 s{sT2}, s{sJJ}, 9
    s_add_u32 s{sT2}, s{sT2}, s{sFLG}
    v_cndmask_b32 v{Y + 2}, v{Y + 2}, v{Y + 8}, vcc
    v_cndmask_b32 v{Y + 4}, v{t1}, 0, vcc
    v_lshl_add_u32 v{Y + 5}, v{Y + 9}, 2, s{sT2}
    v_and_b32 v{t0}, 3, v{vL}
    v_max_u32 v{t0}, 1, v{t0}
    v_xor_b32 v{t0}, s{sJJ}, v{t0}
    v_lshl_add_u32 v{Y + 6}, v{t0}, 9, s{sFLG}
    s_bitcmp1_b32 s{sJJ}, 0
    s_cselect_b32 s{sT2}, {OOB:#x}, 0
    v_add_u32 v{Y + 7}, s{sT2}, v{VL16}
    """)
park2 += park(pfa=PI)
park2 += park(pub=Y, lba0=Y + 1, lba1=Y + 2, lbe0=Y + 3, lbe1=Y + 4, fla=Y + 5, flp=Y + 6, f3o=Y + 7)
params = L(f"""global_load_ushort v{LR}, v{NLI}, s[{pLRE}:{pLRE + 1}]
    global_load_ushort v{LI}, v{NLI}, s[{pLIM}:{pLIM + 1}]
    global_load_ushort v{NLI}, v{NLI}, s[{pLDT}:{pLDT + 1}]
    global_load_ushort v{PR}, v{PR}, s[{pB1}:{pB1 + 1}]""")
XO_START = max(n for n, i_ in enumerate(late) if i_.text == f's_lshl_b32 s{sT2}, s{sI}, 4')
late_b = []
if OPT['lb2s']:
    late, late_b = late[:XO_START], late[XO_START:]
    park2 = [i_ for i_ in park2 if f'a{PARK["pfa"]},' not in i_.text]
if OPT['lb2s'] == 2:
    late_b, park2 = park2 + late_b, []
nl = len(late) * OPT['lateln'] // 100
while nl < len(late) and late[nl - 1].mn.startswith(('s_cmp', 'v_cmp', 's_cselect')) or (nl < len(late) and late[nl].mn.startswith('v_cndmask')):
    nl += 1
if nl >= len(late):
    later, late, park2 = later + late + park2, [], []
else:
    later, late = later + late[:nl], late[nl:]
zero_xe = [I(f'v_accvgpr_write_b32 a{aXE + r}, 0') for r in range(17)]
XA, sSTAR = FACC[1], sXO[3]
if OPT['xlds']:
    P += zero_xe + L(f"""s_lshl_b32 s{sSTAR}, s{sJJ}, 1
        s_lshr_b32 s{sT1}, s{sKQ}, 1
        s_add_u32 s{sSTAR}, s{sSTAR}, s{sT1}
        s_sub_u32 s{sSTAR}, s{sSTAR}, s{sROT}
        s_and_b32 s{sSTAR}, s{sSTAR}, 7
        s_and_b32 s{sT1}, s{sKQ}, 1
        v_lshrrev_b32 v{t0}, 5, v{vL}
        v_xor_b32 v{t1}, s{sT1}, v{t0}
        v_bfe_u32 v{t2}, v{vL}, 3, 2
        v_lshl_add_u32 v{t1}, v{t1}, 2, v{t2}
        v_lshlrev_b32 v{t1}, 4, v{t1}
        v_lshl_add_u32 v{t1}, v{t0}, 10, v{t1}
        v_and_b32 v{t2}, 7, v{vL}
        v_lshl_add_u32 v{t1}, v{t2}, 1, v{t1}
        s_add_u32 s{sT1}, s{sWOFF}, {SLOT}
        v_add_u32 v{XA}, s{sT1}, v{t1}""") + [I(f'v_xor_b32 v{XA + v}, {16 * v}, v{XA}') for v in (1, 2, 3)]
    zero_xe = []
later = mid + later + zero_xe
BACK = {1: '0 6 14 24 38 56 78', 2: '0 12 22 30 42 58 78', 3: '0 21 23 30 42 58 78'}
cuts = [0]
for n in range(1, 7):
    c = n * len(later) // 7 if not OPT['back'] else len(later) * [int(x) for x in BACK[OPT['back']].split()][n] // 100
    while later[c].mn.startswith(('s_cselect', 'v_cndmask', 's_nop')) or later[c - 1].mn.startswith('v_cmp'):
        c += 1
    cuts.append(c)
cuts.append(len(later))

touch_w = L(f'v_mov_b32 v{PI}, 0') + [
    I(f'buffer_load_dword a{56 + n}, v{PI}, {srd(r)}, 0 offen') for n, r in enumerate((sW1, sCre, sCim, sW2))]
touch_o = L(f"""v_min_u32 v{PR}, {WS_SIZE >> 21}, v{vL}
    v_lshlrev_b32 v{PR}, 21, v{PR}
    v_add_u32 v{PR}, 0x800, v{PR}
    buffer_load_dword a60, v{PR}, {srd(sWS)}, 0 offen
    buffer_load_dword a61, v{PR}, {srd(sOUT)}, 0 offen""")
if OPT['tlb'] in (1, 3, 4):
    P += touch_w
if OPT['tlb'] == 1:
    P += touch_o
P += rx(2, 2) + (rx(3, 3) if OPT['deep'] else []) + [I('s_waitcnt lgkmcnt(0)')]
pos = lambda text: max(n for n, i_ in enumerate(later) if i_.text.startswith(text))
first_g = 5 - OPT['early'] - OPT['deep']
first_p = OPT['parat'] if OPT['parat'] >= 5 else 4 - OPT['early'] - OPT['deep']
assert max(pos(f's_and_b32 s{sKC[3]},'), pos(f'v_add_u32 v{PG[1]},'), pos(f's_lshl_b32 s{sBB},')) < cuts[first_g]
assert pos(f'v_lshl_add_u32 v{PR},') < cuts[first_p]
assert pos(f'v_add_u32 v{QG[3]},') < cuts[min(first_g + 4, 7)]
for s in range(8):
    P.append(Wait(f'x{s}'))
    if s == 0:
        P += stamp('x0')
    for q in range(4):
        P.append(I(f'ds_read_b128 {vr(X + 16 * s + 4 * q, 4)}, v{ASc[q]} offset:{(s & 3) * SLOT}', lds_r=XSLOT(s),
                   tok=f'xr{s}' if q == 3 else None))
    if OPT['early']:
        E_ = OPT['early']
        todo = list(range(3, 4 + E_)) if s == 0 else [s + 3 + E_]
        nxt = sum((rx(n, 0) + (params if n == 7 and OPT['parat'] < 5 else []) if n < 8 else rg(n - 8) for n in todo), [])
        nxt += params if s == OPT['parat'] >= 5 else []
        if s == 3:
            nxt += [I(f'v_subrev_u32 v{ASc[q]}, {4 * SLOT}, v{ASc[q]}') for q in range(4)]
    elif OPT['deep']:
        nxt = rg(s - 4) if s >= 4 else [Wait(f'xr{s}')] + rx(s + 4, s) + (params if s == 3 else [])
    else:
        nxt = ([] if OPT['gl'] else rg(s - 5)) if s >= 5 else rx(s + 3, (s + 3) & 3) + (params if s == OPT['parat'] else [])
    piece = later[cuts[s]:cuts[s + 1]] if s < 7 else []
    after = []
    if s >= 5 and OPT['gl']:
        nxt, after = [], (rg(s - 5) if s - 5 < OPT['gl'] else [])
    elif s >= OPT['xl']:
        nxt, after = [], nxt
    P += nxt + piece if OPT['xfirst'] else piece + nxt
    for r in range(16):
        P.append(I(f'v_dot2c_f32_bf16 v{SUM[r & 1]}, s{sONES}, v{X + 16 * s + r}'))
        P.append(I(f'v_dot2c_f32_bf16 v{SQ[r & 1]}, v{X + 16 * s + r}, v{X + 16 * s + r}'))
        if OPT['xlds'] and r == (15 if s < 7 else 3):
            blk = [f'ds_read_u16_d16_hi a{aXE + n}, v{XA + ((n >> 1) & 1) + 2 * ((n >> 2) & 1)} '
                   f'offset:{(s & 3) * SLOT + ((n & 7) + 16 * (n >> 3)) * 128}' for n in range(16)]
            P += [Wait(f'xr{s}'), I(f's_cmp_lg_u32 s{sSTAR}, {s}'), I(f's_cbranch_scc1 L_xe{s}')]
            P.append(I('; epilogue x values\n    ' + '\n    '.join(blk + ['s_waitcnt lgkmcnt(0)'])))
            P.append(I(f'L_xe{s}:'))
    P += after
P += stamp('x7')
P += L(f"""
v_add_f32 v{SUM[0]}, v{SUM[0]}, v{SUM[1]}
v_add_f32 v{SQ[0]}, v{SQ[0]}, v{SQ[1]}
v_mov_b32 v{SUM[1]}, v{SUM[0]}
v_mov_b32 v{SQ[1]}, v{SQ[0]}
v_permlane32_swap_b32 v{SUM[1]}, v{SUM[0]}
v_add_f32 v{SUM[0]}, v{SUM[0]}, v{SUM[1]}
v_mul_f32 v{SUM[0]}, 0xbb000000, v{SUM[0]}
v_cvt_pk_bf16_f32 v{t0}, v{SUM[0]}, v{SUM[0]}
v_lshlrev_b32 v{SIM}, 16, v{t0}
v_lshlrev_b32 v{SIM + 1}, 16, v{t0}
v_lshlrev_b32 v{SIM + 2}, 16, v{t0}
v_lshlrev_b32 v{SIM + 3}, 16, v{t0}
""")

back = lambda o: [I(f'v_cvt_pk_bf16_f32 v{X + 2 * o + e}, v{FACC[0] + 4 * (o & 3) + 2 * e}, '
                    f'v{FACC[0] + 4 * (o & 3) + 2 * e + 1}') for e in range(2)]
items = [[I(f'v_mfma_f32_4x4x4_16b_bf16 {vr(FACC[0] + 4 * (n & 3), 4)}, {vr(TT, 2)}, {vr(X + 2 * n, 2)}, {vr(SIM, 4)}')]
         + (back(n - 2) if n >= 2 else []) for n in range(64)]
fill = L(f"""
v_permlane32_swap_b32 v{SQ[1]}, v{SQ[0]}
v_sub_f32 v{VNM}, 0, v{SIM}
v_add_f32 v{SQ[0]}, v{SQ[0]}, v{SQ[1]}
v_mul_f32 v{SQ[0]}, 0x3b000000, v{SQ[0]}
v_fma_f32 v{SQ[0]}, -v{SUM[0]}, v{SUM[0]}, v{SQ[0]}
v_max_f32 v{SQ[0]}, 0, v{SQ[0]}
v_cvt_pk_bf16_f32 v{t0}, v{SQ[0]}, v{SQ[0]}
v_lshlrev_b32 v{t0}, 16, v{t0}
v_add_f32 v{t0}, 0x3727c5ac, v{t0}
v_cvt_pk_bf16_f32 v{t0}, v{t0}, v{t0}
v_lshlrev_b32 v{t0}, 16, v{t0}
v_sqrt_f32 v{t0}, v{t0}
v_and_b32 v{t1}, 3, v{vL}
v_cvt_pk_bf16_f32 v{t0}, v{t0}, v{t0}
v_lshlrev_b32 v{t0}, 16, v{t0}
v_rcp_f32 v{VRS}, v{t0}
v_bfe_u32 v{t2}, v{vL}, 3, 2
v_lshl_add_u32 v{t1}, v{t2}, 2, v{t1}
v_bfe_u32 v{t2}, v{vL}, 2, 1
v_lshl_add_u32 v{t1}, v{t2}, 4, v{t1}
s_lshl_b32 s{sT1}, s{sW}, 8
s_add_u32 s{sT1}, s{sT1}, {T_STAT}
v_lshl_add_u32 v{t1}, v{t1}, 2, s{sT1}
v_mul_f32 v{RL2}, {LOG2E:#x}, v{VRS}
ds_write_b32 v{t1}, v{VNM}
""")
fill.append(I(f'ds_write_b32 v{t1}, v{VRS} offset:128', tok='tabw'))
LA_S, LA_F = 3, OPT['laf']


def s_addr(slot):
    return [I(f'v_add_u32 v{ASc[q]}, {slot * SLOT}, v{AS[q]}') for q in range(4)]


def s_read(s, ri):
    return I(f'ds_read_b128 {ar(aS + 8 * (s & 3) + 4 * ri, 4)}, v{ASc[s & 3]} offset:{(s >> 3) * SLOT + (2 * ((s >> 2) & 1) + ri) * 4096}',
             lds_r=G_SLOT[s >> 3])


def f_addr(b):
    if b < 2:
        return [I(f'v_xor_b32 v{FAc}, {64 * b}, v{FA0}')]
    if b == 3:
        return [I(f'v_xor_b32 v{FAc}, 64, v{FAc}')]
    return [I(f'v_xor_b32 v{FAc}, s{sFSEL}, v{FA0}'), I(f'v_add_u32 v{FAc}, {G_SLOT[8] * SLOT}, v{FAc}')]


def f_read(b, s):
    out = f_addr(b) if s == 0 else []
    k = (32 * b + s) & 7
    for u in range(2):
        out.append(I(f'ds_read_b64_tr_b16 {ar(aF + 4 * k + 2 * u, 2)}, v{FAc} '
                     f'offset:{(s >> 3) * SLOT + ((s >> 1) & 3) * 4096 + (s & 1) * 2048 + u * 512}',
                     lds_r=G_SLOT[(4 if b < 2 else 8) + (s >> 3)]))
    return out


DSP = OPT['dsp']
OPT['dsp'] = OPT['dspc']
NG = OPT['gl'] or 3 + OPT['early'] + OPT['deep']
pin = pins(*[(OPT['g3'] + 4 * n * OPT['dspc'], rg(NG + n)) for n in range(OPT['ncr'])],
           (54, s_addr(G_SLOT[0]) + stamp('c27') + BAR('G0', 'zero', *([] if OPT['bsp'] else ['G1'])) + stamp('b0')))
OPT['dsp'] = DSP
for k in range(LA_S):
    pin[55 + 2 * k] = [s_read(k, 0), s_read(k, 1)]
stat_fill = fill
if OPT['cfs']:
    fill = stat_fill[:2]
    stat_fill = stat_fill[2:]
else:
    stat_fill = []
P += weave(items, fill, pin, 0, 40) + back(62) + back(63)

S_items = []
for s in range(32):
    for ri, acc in ((0, SRE), (1, SIM)):
        it = [mfma(vr(acc, 16), vr(X + 4 * s, 4), ar(aS + 8 * (s & 3) + 4 * ri, 4), vr(acc, 16) if s else '0')]
        n = s + LA_S
        if n < 32:
            it.append(s_read(n, ri))
        S_items.append(it)
for k in range(LA_F):
    S_items[64 - LA_F + k] += f_read(0, k)
F_items = []
for b in range(4):
    its = []
    for s in range(32):
        acc = vr(FACC[b & 1], 16)
        it = [mfma(acc, ar(aF + 4 * ((32 * b + s) & 7), 4), vr(X + 4 * s, 4), acc if s else '0')]
        n = s + LA_F
        if n < 32:
            it += f_read(b, n)
        elif b < 3:
            it += f_read(b + 1, n - 32)
        its.append(it)
    F_items.append(its)

FLA, FLP = VNM, VRS
fill = stat_fill + late + park2 + late_b + consts + (pf if OPT['pfat'] < 0 else []) + L(f"""
v_lshrrev_b32 v{t0}, 3, v{vL}
v_bfe_u32 v{t1}, v{vL}, 4, 1
v_lshlrev_b32 v{t1}, 1, v{t1}
v_xor_b32 v{t1}, v{t1}, v{vL}
v_and_b32 v{t1}, 7, v{t1}
v_lshlrev_b32 v{t1}, 4, v{t1}
v_lshl_add_u32 v{XG[0]}, v{t0}, 10, v{t1}
v_add_u32 v{XG[1]}, {7 * 1024}, v{XG[0]}
v_xor_b32 v{XG[2]}, 64, v{XG[0]}
v_add_u32 v{XG[3]}, {21 * 1024}, v{XG[2]}
v_add_u32 v{XG[2]}, {14 * 1024}, v{XG[2]}
v_lshrrev_b32 v{t2}, 5, v{vL}
v_lshlrev_b32 v{t2}, 6, v{t2}
v_add_u32 v{t2}, {TB}, v{t2}
s_lshl_b32 s{sT2}, s{sW}, 8
v_add_u32 v{t1}, s{sT2}, v{t2}""")
fill += [I(f'ds_read_b128 {vr(FACC[1] + 4 * q, 4)}, v{t1} offset:{128 + 16 * q}') for q in range(4)]
xa, xb = TT + 14, TT + 15
ROW = lambda n: 16 * ((n >> 2) & 1) + 8 * (n >> 3) + (n & 3)
xe = L(f"""v_and_b32 v{xa}, 31, v{vL}
    v_lshrrev_b32 v{xb}, 5, v{vL}
    v_lshlrev_b32 v{xb}, 12, v{xb}
    v_lshl_add_u32 v{xb}, v{xa}, 1, v{xb}
    s_lshl_b32 s{sONES}, s{sJJ}, 2
    s_add_u32 s{sONES}, s{sONES}, s{sKQ}
    s_lshl_b32 s{sONES}, s{sONES}, 6
    v_lshl_add_u32 v{xa}, v{xa}, 1, s{sONES}
    s_add_u32 s{sXB}, s{sXB}, s{sONES}
    global_load_short_d16_hi a{aXE + 16}, v{xa}, s[{pDSK}:{pDSK + 1}]""")
for r in range(0 if OPT['xlds'] else 16):
    if r % 4 == 0:
        xe.append(I(f's_add_u32 s{sONES}, s{sXB}, {1024 * ROW(r)}'))
    xe.append(I(f'buffer_load_short_d16_hi a{aXE + r}, v{xb}, {srd(sX)}, s{sONES} offen offset:{1024 * (r & 3)}'))
sAO = dict(A={1: 8, 2: 9, 3: 10}, H={1: 11, 2: 12, 3: 13}, B={1: 14, 2: 15})
for e in (1, 2, 3):
    fill += L(f"""s_xor_b32 s{sT2}, s{sJJ}, {e}
        s_lshl_b32 s{sT2}, s{sT2}, 12
        s_add_u32 s{sAO['H'][e]}, s{sT2}, s{sAS}
        s_add_u32 s{sAO['A'][e]}, s{sAO['H'][e]}, s{sT2}
        s_add_u32 s{sAO['H'][e]}, s{sAO['H'][e]}, {28 * 1024}""")
for e in (1, 2):
    fill += L(f's_lshl_b32 s{sT2}, s{sPB[e]}, 12\ns_add_u32 s{sAO["B"][e]}, s{sT2}, s{sAS}')
if OPT['tlb'] in (2, 3):
    fill = touch_o + fill
if OPT['fw']:
    fill += L(f"""s_lshl_b32 s{sT2}, s{sJJ}, 9
        s_add_u32 s{sT2}, s{sT2}, s{sFLG}
        v_lshlrev_b32 v{t0}, 3, v{vL}
        v_mov_b32 v{TT}, 0
        v_mov_b32 v{TT + 1}, 0
        buffer_store_dwordx2 {vr(TT, 2)}, v{t0}, {srd(sWS)}, s{sT2} offen sc1""")
if OPT['xw'] == 1:
    fill += L(f'v_lshlrev_b32 v{t0}, 2, v{vL}')
    for b in (1, 2, 3):
        fill += L(f"""buffer_store_dwordx4 {vr(TT, 4)}, v{VL16}, {srd(sWS)}, s{sXO[b]} offen sc1
            buffer_store_dwordx4 {vr(TT, 4)}, v{VL16}, {srd(sWS)}, s{sXO[b]} offen offset:1024 sc1
            buffer_store_dword v{vL}, v{t0}, {srd(sWS)}, s{sXO[b]} offen offset:2048 sc1""")
elif OPT['xw']:
    fill += L(f"""v_lshlrev_b32 v{t0}, 7, v{vL}
        v_min_u32 v{t0}, {59 * 128}, v{t0}
        buffer_load_dword a60, v{t0}, {srd(sWS)}, s{sXO[0]} offen {('', '', 'sc1', 'sc1 nt')[OPT['xw']]}""")
if not OPT['xel']:
    cut = len(fill) * OPT['xes'] // 100
    fill, xe = fill[:cut] + merge(fill[cut:], xe), []
OPT['dsp'] = OPT['dsps']
SPOS = {3: (2, 14, 28), 4: (2, 14, 28, 42), 5: (0, 12, 24, 36, 48)}
srounds = [(2, rg(4)), (14, rg(5)), (28, rg(6)), (42, rg(7))] if OPT['sch'] == 1 else \
    list(zip(SPOS[9 - NG - OPT['ncr']], map(rg, range(NG + OPT['ncr'], 9))))
sbars = [(9, BAR('G1')), (25, BAR('G2', 'G3'))] if OPT['bsp'] == 1 else \
    [(9, BAR('G1')), (25, BAR('G2')), (41, BAR('G3'))] if OPT['bsp'] else [(24, BAR('G2', 'G3'))]
pin = pins(*srounds, *sbars, (63 - LA_F, stamp('s59') + BAR('G4', 'b1w', *([] if OPT['bsa'] & 1 else ['G5'])) + stamp('b2')))
OPT['dsp'] = DSP
P += weave(fine('S', S_items, 3), fill, pin, 0, 62 - LA_F)

Q = FACC[1]
V = lambda t: SRE + t if t % 2 == 0 else SIM + t - 1
AGR, AGI = VRS, t3
fill = []
coef = []
for q in range(8):
    for h in range(2):
        r = 2 * q + h
        fill += L(f"""v_mul_f32 v{TT + 2 * h}, v{SRE + r}, v{CR}
            v_mul_f32 v{TT + 2 * h + 1}, v{SRE + r}, v{NCI}
            v_fmac_f32 v{TT + 2 * h}, v{SIM + r}, v{NCI}
            v_fmac_f32 v{TT + 2 * h + 1}, v{SIM + r}, v{NCR}""")
    for h in range(2):
        r = 2 * q + h
        fill += L(f"""v_mul_f32 v{V(r)}, v{TT + 2 * h}, v{Q + r}
            v_mul_f32 v{V(r) + 1}, v{TT + 2 * h + 1}, v{Q + r}""")
    coef.append(fill)
    fill = []
step = lambda d, p, c: L(f"""v_pk_fma_f32 {vr(d, 2)}, {vr(p, 2)}, {vr(LR, 2)}, {vr(c, 2)} op_sel_hi:[1,0,1]
    v_pk_fma_f32 {vr(d, 2)}, {vr(p, 2)}, {vr(NLI, 2)}, {vr(d, 2)} op_sel:[1,0,0] op_sel_hi:[0,1,1]""")
horner = [step(AGR if r & 1 else TT + 4, V(0) if r == 1 else (TT + 4 if r & 1 else AGR), V(r)) for r in range(1, 16)]
fill = fetch(seg=t1) + fill + (L('s_mov_b32 s19, s3') if OPT['dbg'] else []) + L(f's_mov_b32 s{sKC[0]}, {M2LN2:#x}')
fill.append(I(f'ds_write_b64 v{t1}, {vr(AGR, 2)} offset:{7 * 256}', tok='segw'))
frounds = [(1, rg(8)), (12, rg(9))] if OPT['sch'] == 1 else [(1, rg(9)), (12, rg(10))] if OPT['sch'] == 2 else \
    [(0, rg(9)), (OPT['g10'], rg(10)), (2 * OPT['g10'], rg(11))]
staged_names = list(STAGE)
abars = [(7 - LA_F, BAR('G5'))] if OPT['bsa'] & 1 else []
abars += [(15 - LA_F, BAR('G6')), (23 - LA_F, BAR('G7'))] if OPT['bsa'] & 2 else [(15 - LA_F, BAR('G6', 'G7'))]
pin = pins(*frounds, *abars, (31, BAR('segw')),
           *[(22, stage_load(n)) for n in staged_names[:1]])
if 0 <= OPT['pfat'] < 32:
    pin.setdefault(OPT['pfat'], []).extend(pf)
NB = OPT['nb0']
per = 8 // NB
plan = [(1, [], [])]
for n in range(NB):
    lo, hi = max(2 * per * n - 1, 0), 2 * per * (n + 1) - 1
    plan.append((1 + (n + 1) * 28 // NB, sum(coef[per * n:per * (n + 1)], []), sum(horner[lo:hi], [])))
P += staged(fine('F0', F_items[0], 3), pin, plan + [(30, fill, []), (31, [], [])])
P += stamp('F0')

E = ASc[0]
R0, R1, T0_, T1_ = TT + 8, TT + 12, ASc[0], ASc[2]
h0, h1 = mish_stages(0, 0), mish_stages(0, 1)
rd = lambda dst, k: I(f'ds_read2_b64 {vr(dst, 4)}, v{t1} offset0:{32 * k} offset1:{32 * k + 32}')
publish = cmul_add(E, E + 2, L16R, L16I, PR, PI, AGR, AGI) + fetch(pub=t1) + L(f"""v_mov_b32 v{E + 1}, s{sTAG}
    v_mov_b32 v{E + 3}, s{sTAG}
    buffer_store_dwordx4 {vr(E, 4)}, v{t1}, {srd(sWS)}, 0 offen sc1""")
frounds = [(0, rg(10)), (8, rg(11))] if OPT['sch'] == 1 else [(0, rg(11))] if OPT['sch'] == 2 else []
pin = pins(*frounds, (OPT['wa0'], rw('WA0')), (31 - LA_F, BAR('G8', 'G9', *([] if OPT['bsb'] else ['G10', 'G11']))),
           *zip((8, 24), map(stage_load, staged_names[1:3])))
if OPT['pfat'] >= 32:
    pin.setdefault(OPT['pfat'] - 32, []).extend(fetch(pfa=FAd) + L(pf[0].text.replace(f'v{PI}', f'v{FAd}')))
GA = [int(x) for x in str(OPT['stg1']).split('.')]
P += staged(fine('F0', F_items[1], 3), pin, [
    (GA[0], [rd(R0, 0), rd(R1, 2)] + h0['rd'], h0['A']),
    (GA[1], h0['ex'], cmul_pk(PR, L16R, R0, R0 + 2) + cmul_pk(T0_, L16R, PR, R1) + cmul_pk(PR, L16R, T0_, R1 + 2) + h0['B']),
    (GA[2], [rd(R0, 4), I(f'ds_read_b64 {vr(R1, 2)}, v{t1} offset:{6 * 256}')] + h0['rc'],
     cmul_pk(T0_, L16R, PR, R0) + cmul_pk(T1_, L16R, T0_, R0 + 2) + cmul_pk(PR, L16R, T1_, R1) + h0['C']),
    (GA[3], h1['rd'] + publish + h0['fin'], h1['A']),
    (GA[4], h1['ex'], h1['B']),
    (GA[5], h1['rc'], h1['C']),
    (31, h1['fin'], [])])
P += stamp('F1')

LBA = [CR, NCI]
LBE = [NCR, L16R]
LBD = [ASc[0], QG[0]]
FLV = L16I
lb_loads = '\n'.join(f'buffer_load_dwordx4 {vr(LBD[e], 4)}, v{LBA[e]}, {srd(sWS)}, 0 offen sc1' for e in range(2))
lb_setup = fetch(lba0=LBA[0], lba1=LBA[1], lbe0=LBE[0], lbe1=LBE[1])


def flag_store(stage, toks):
    out = [Wait(*toks), I(f'buffer_store_dword v{FLV}, v{FLA}, {srd(sWS)}, 0 offen offset:{128 * stage} sc1')]
    if OPT['ppf']:
        so = (sFST[0], sSST, sFST[2])[stage]
        vpf = L128R if stage else t3
        out = [I(f'v_lshlrev_b32 v{vpf}, {6 if stage < 2 else "s%d" % sSEL[1]}, v{vL}')] + out
        out.append(I(f'buffer_load_dword a{60 + (stage & 1)}, v{vpf}, {srd(sWS)}, s{so} offen sc1'))
    return out


def flag_load(stage):
    return f'buffer_load_dword v{t3}, v{FLP}, {srd(sWS)}, 0 offen offset:{128 * stage} sc1'


flag_check = f'v_cmp_ne_u32 vcc, s{sTAG}, v{t3}'
lb_check = f"""v_bitop3_b32 v{t0}, v{LBD[0] + 1}, v{LBD[0] + 3}, v{LBE[0]} bitop3:0x7e
    v_bitop3_b32 v{t1}, v{LBD[1] + 1}, v{LBD[1] + 3}, v{LBE[1]} bitop3:0x7e
    v_or_b32 v{t0}, v{t0}, v{t1}
    v_cmp_ne_u32 vcc, 0, v{t0}"""
lb_part = stamp('lb0') + poll('lb', lb_loads, lb_check) + stamp('lb1')
lb_part += cmul_add(LBD[0] + 1, LBD[0] + 3, L128R, L128I, LBD[0], LBD[0] + 2, LBD[1], LBD[1] + 2)
lb_part += cmul_add(LBD[1], LBD[1] + 1, WR, WI, LBD[0] + 1, LBD[0] + 3)
lb_part += fetch(lbw=t1)
lb_part.append(I(f'ds_write_b64 v{t1}, {vr(LBD[1], 2)}', tok='lbw'))
HW, HR, HB = ASc[0], ASc[1], FACC[1]
HW2, HR2 = WR, WI
tail_addr = fetch(lbr=ASc[3], fla=FLA, flp=FLP) + L(f'v_mov_b32 v{FLV}, s{sTAG}')
lb_reads = [I(f'ds_read2_b64 {vr(HB + 4 * q, 4)}, v{ASc[3]} offset0:{64 * q} offset1:{64 * q + 32}') for q in range(4)]
scan = [I(f'v_pk_add_f32 {vr(HB + a, 2)}, {vr(HB + a, 2)}, {vr(HB + b_, 2)}')
        for a, b_ in ((0, 2), (4, 6), (8, 10), (12, 14), (0, 4), (8, 12), (0, 8))]
scan += cmul_add(L128R, L128I, LSR, LSI, HB, HB + 1, PR, PI)
pack = lambda q: L(f"""v_cvt_pk_bf16_f32 v{SRE + q}, v{V(2 * q)}, v{V(2 * q + 1)}
    v_cvt_pk_bf16_f32 v{SIM + q}, v{V(2 * q) + 1}, v{V(2 * q + 1) + 1}""")
for r in range(16):
    prev = vr(L128R if r == 0 else V(r - 1), 2)
    scan += L(f"""v_pk_fma_f32 {vr(V(r), 2)}, {prev}, {vr(LR, 2)}, {vr(V(r), 2)} op_sel_hi:[1,0,1]
        v_pk_fma_f32 {vr(V(r), 2)}, {prev}, {vr(NLI, 2)}, {vr(V(r), 2)} op_sel:[1,0,0] op_sel_hi:[0,1,1]""")
    if r >= 2 and r % 2 == 0 and OPT['pk_in']:
        scan += pack(r // 2 - 1)
HRS = AS
transp = fetch(hw=HW, hw2=HW2, hr=HRS[0]) + [I(f'v_xor_b32 v{HRS[n]}, {16 * n}, v{HRS[0]}') for n in (1, 2, 3)] + sum((pack(q) for q in range(7 if OPT['pk_in'] else 0, 8)), [])
for ri in range(2):
    transp += [I(f'ds_write_b128 v{(HW, HW2)[h]}, {vr((SRE, SIM)[ri] + 4 * h, 4)}') for h in range(2)]
    for fr in range(2):
        for u in range(2):
            transp.append(I(f'ds_read_b64_tr_b16 {ar(aOS + 8 * ri + 4 * fr + 2 * u, 2)}, v{HRS[2 * u + fr]} offset:{256 * u}'))
stH = [I(f'buffer_store_dwordx4 {ar(aOS + 4 * q, 4)}, v{VL16}, {srd(sWS)}, s{sSST} offen offset:{1024 * q} sc1',
         tok='stH' if q == 3 else None) for q in range(4)]
h0, h1 = mish_stages(1, 0), mish_stages(1, 1)
g0, g1 = mish_stages(2, 0), mish_stages(2, 1)
pin = pins((0, rw('CR0')), (8, rw('CI0')), (18, rw('WA1')), *([(15 - LA_F, BAR('G10', 'G11'))] if OPT['bsb'] else []), (29, BAR('lbw') + lb_reads + g0['rd'] + g1['rd']), (OPT['lbl'], L(lb_loads)),
           *[(25, stage_load(n)) for n in staged_names[3:4]])
GB = [int(x) for x in str(OPT['stg2']).split('.')]
P += staged(fine('F2', F_items[2], 2), pin, [
    (GB[0], h0['rd'] + h1['rd'] + lb_setup, h0['A']),
    (GB[1], h0['ex'], h0['B'] + h1['A']),
    (GB[2], h0['rc'] + h1['ex'], h0['C'] + h1['B']),
    (GB[3], h0['fin'] + h1['rc'], h1['C']),
    (28, h1['fin'] + lb_part + tail_addr, []),
    (31, [], [])])
P += stamp('F2')
burst = scan + g0['A']
if OPT['fas'] < 0:
    burst = burst[:OPT['fas']] + flag_store(0, ['stF0', 'stF1']) + burst[OPT['fas']:]
if OPT['fine'] == 'T':
    for n in range(len(burst) - 12, 0, -12):
        burst = burst[:n] + stamp(f'g{n}') + burst[n:]
P += burst
P += stamp('scan')


FP0, CP0, FPc = [NLI, LI, LR, CR], [NCI, NCR], QG
PA = OPT['pa']
p3_setup = fetch(fp0=FP0[0], fp1=CP0[0], f3o=ASc[2]) + [I(f'v_xor_b32 v{FP0[n]}, {32 * n}, v{FP0[0]}') for n in (1, 2, 3)]
p3_setup.append(I(f'v_xor_b32 v{CP0[1]}, 64, v{CP0[0]}'))
hs = OPT['hs']
lead = [i_ for i_ in transp if i_.kind != 'ds']
tds = transp[len(lead):]
P += lead
tpins = [(0, tds[0:1]), (1, tds[1:2]), (2, tds[2:4]), (3, tds[4:6]), (4, tds[6:7]), (5, tds[7:8] + stH[0:1]),
         (6, tds[8:10]), (7, tds[10:12] + stH[1:2]), (7 + hs, stH[2:3]), (7 + 2 * hs, stH[3:4])]

steps = ([('WA0', x, 'own') for x in range(4)]
         + [(n, x, 'own') for n in ('CR0', 'CI0') for x in range(2)]
         + [(f'WA{e}', x, 'A') for e in (1, 2, 3) for x in range(4)]
         + [(n, x, 'H') for n in ('CR0', 'CI0') for x in (2, 3)]
         + [(n, x, 'H') for n in ('CR1', 'CI1') for x in range(4)]
         + [('WB0', x, 'own') for x in range(4)]
         + [(f'WB{e}', x, 'B') for e in (1, 2) for x in range(4)])
deferred = [k for k, st in enumerate(steps) if st[2] != 'own']
A_REGS = ([192 + 4 * n for n in range(16)] + [SRE + 4 * n for n in range(8)]
          + [FACC[0] + 4 * n for n in range(4)] + [TT + 4 * n for n in range(4)])
ACC = [128, 144, 160, 176]
cur_addr = {}


def a_frag(k):
    name, x, src = steps[k]
    if src != 'own':
        return vr(A_REGS[deferred.index(k)], 4)
    if name == 'WA0':
        return ar(aOF + 4 * x, 4)
    if name == 'WB0':
        return ar(aOF + 16 + 4 * x, 4) if x < 2 else vr(FACC[1] + 4 * (x - 2), 4)
    return ar(aOS + 8 * (name[1] == 'I') + 4 * x, 4)


def a_load(k):
    name, x, src = steps[k]
    e = int(name[2])
    if name[0] == 'C':
        so, off = sAO['H'][2 * e + (x >> 1)], 2048 * (name[1] == 'I') + 1024 * (x & 1)
    else:
        so, off = sAO[name[1]][e], 1024 * x
    return [I(f'buffer_load_dwordx4 {a_frag(k)}, v{VL16}, {srd(sWS)}, s{so} offen offset:{off} sc1')]


pin = pins((PA, rw2('WA2')), (PA + 8, BAR()), (PA + 9, rw2('WA3')), (PA + 17, BAR()), (PA + 18, rw2('CR1')),
           (OPT['fal'], L(flag_load(0))), (30, BAR('WA0', 'CR0', 'CI0', 'WA1')), *tpins)
if OPT['fhs'] >= 0:
    pin.setdefault(OPT['fhs'], []).extend(flag_store(1, ['stH']))
if OPT['fas'] >= 0:
    pin.setdefault(OPT['fas'], []).extend(flag_store(0, ['stF0', 'stF1']))
m3 = mish_pk(3, ASc[2])
GC = [int(x) for x in str(OPT['stg3']).split('.')]
P += staged(fine('F3', F_items[3], 2), pin, [
    (GC[0], g0['ex'], g0['B'] + g1['A']),
    (GC[1], g0['rc'] + g1['ex'], g0['C'] + g1['B']),
    (GC[2], g0['fin'] + g1['rc'], g1['C']),
    (29, g1['fin'][:4] + m3[:4] + g1['fin'][4:] + p3_setup, []),
    (31, [], [])])
P += stamp('F3')

m3 = m3[4:]
st0 = 40
early = sum((a_load(k) for k in range(8, 8 + OPT['nea'])), [])
if not OPT['ovl']:
    fac = st0 - OPT['fac']
    TAIL0 = len(P)
    P += m3[:fac] + (flag_store(1, ['stH']) if OPT['fhs'] == -1 and not OPT['fhp'] else [])
    P += stamp('fa0') + poll('fa', flag_load(0), flag_check) + stamp('fa1')
    tl = merge(m3[fac:st0], early) + (flag_store(1, ['stH']) if OPT['fhp'] else []) + m3[st0:]
    TAIL1 = len(P) + len(tl) - len(m3) + st0
    if OPT['fine'] == 'T':
        for n in range(len(tl) - 12, 0, -12):
            tl = tl[:n] + stamp(f'gt{n}') + tl[n:]
    P += tl
    P += stamp('tail')

XE, ME = 192, LSR
ep_setup = L(f"""v_lshrrev_b32 v{t1}, 5, v{vL}
    s_lshl_b32 s{sT2}, s{sW}, 8
    s_add_u32 s{sT2}, s{sT2}, {T_STAT}
    v_lshl_add_u32 v{VLN2}, v{t1}, 4, s{sT2}
    v_lshlrev_b32 v{FA0}, 13, v{t1}
    v_and_b32 v{t0}, 31, v{vL}
    v_lshl_add_u32 v{FA0}, v{t0}, 2, v{FA0}""")
VL4 = ASc[0]
ep_setup = L(f'v_lshlrev_b32 v{VL4}, 2, v{vL}') + ep_setup
base_calc = [I(f'v_accvgpr_read_b32 v{RL2}, a{aXE + 16}')]
for qt in range(4):
    base_calc += [I(f'ds_read_b128 {vr(ME, 4)}, v{VLN2} offset:{4 * ROW(4 * qt)}', hoist=True),
                  I(f'ds_read_b128 {vr(ME + 4, 4)}, v{VLN2} offset:{128 + 4 * ROW(4 * qt)}', hoist=True)]
    rs = range(4)
    base_calc += [I(f'v_accvgpr_read_b32 v{XE + 4 * qt + r}, a{aXE + 4 * qt + r}') for r in rs]
    base_calc += [I(f'v_sub_f32 v{ME + r}, v{XE + 4 * qt + r}, v{ME + r}') for r in rs]
    base_calc += [I(f'v_mul_f32 v{ME + r}, v{ME + r}, v{ME + 4 + r}') for r in rs]
    base_calc += [I(f'v_fmac_f32 v{XE + 4 * qt + r}, v{ME + r}, v{RL2}') for r in rs]

def checksum(dst, src, last):
    return [f'v_bitop3_b32 v{dst}, v{src}, v{src + 1}, {last} bitop3:0x96'] + \
           [f'v_bitop3_b32 v{dst}, v{src + e}, v{src + e + 1}, v{dst} bitop3:0x96' for e in (2, 4, 6)]


def send(b):
    A = ACC[b]
    out = []
    for q in range(2):
        out += [I(f'v_cvt_pk_bf16_f32 v{A + e}, v{A + 2 * e}, v{A + 2 * e + 1}') for e in range(4 * q, 4 * q + 4)]
        out.append(I(f'buffer_store_dwordx4 {vr(A + 4 * q, 4)}, v{VL16}, {srd(sWS)}, s{sXO[b]} offen '
                     f'offset:{1024 * q} sc1'))
    out += [I(c) for c in checksum(A + 8, A, f's{sTAG}')]
    out.append(I(f'buffer_store_dword v{A + 8}, v{VL4}, {srd(sWS)}, s{sXO[b]} offen offset:2048 sc1'))
    return out


def w_read1(k, b, dst):
    name, x, src = steps[k]
    slot = W_SLOT[name]
    out = []

    def address(cur, base):
        if slot < 4:
            return base, slot * SLOT
        if not 0 <= slot - cur_addr.get(cur, -9) < 4:
            cur_addr[cur] = 4 if slot == 4 else 5
            out.append(I(f'v_add_u32 v{cur}, {cur_addr[cur] * SLOT}, v{base}'))
        return cur, (slot - cur_addr[cur]) * SLOT

    if name[0] == 'C':
        a, off = address(AS[x >> 1], CP0[x >> 1])
        return out + [I(f'ds_read_b128 {ar(dst, 4)}, v{a} offset:{off + 4096 * b + 2048 * (x & 1)}', lds_r=slot)]
    var = 2 * (b & 1) + (x & 1)
    a, off = address(FPc[var], FP0[var])
    return out + [I(f'ds_read_b64_tr_b16 {ar(dst + 2 * u, 2)}, v{a} '
                    f'offset:{off + 8192 * (x >> 1) + 4096 * (b >> 1) + 1024 * u}', lds_r=slot) for u in range(2)]


RX = {1: ACC[1], 2: ACC[2], 3: ACC[3]}


def recv(b):
    so = sXO[0] if b == 1 else sSEL[b]
    rl = [f'buffer_load_dwordx4 {vr(RX[b] + 4 * q, 4)}, v{VL16}, {srd(sWS)}, s{so} offen offset:{1024 * q} sc1' for q in range(2)]
    rl.append(f'buffer_load_dword v{RX[b] + 8}, v{VL4}, {srd(sWS)}, s{so} offen offset:2048 sc1')
    return '\n'.join(rl)


pre = L(f"""s_lshl_b32 s{sXB}, s{sXB}, 1
    s_mov_b32 s{sKC[0]}, 0x00003f80
    s_mov_b32 s{sKC[1]}, 0x3f800000""")
E3 = OPT['e3']
D0 = OPT['d0']
seq = [(k, b) for k in range(D0) for b in (1, 2, 3, 0)] + [(k, b) for k in range(D0, E3) for b in (1, 2, 3)]
seq += [(k, b) for k in range(E3, 36) for b in (1, 2)]
seq += [(k, b) for b in (1, 2) for k in range(36, 44)]
own8 = [(k, 0) for k in range(8, 12)]
seq += (own8 if OPT['o8'] else []) + [(k, 3) for k in range(E3, 44)] + ([] if OPT['o8'] else own8)
seq += [(k, 0) for k in list(range(D0, 8)) + list(range(12, 44))]
at = {kb: n for n, kb in enumerate(seq)}
done_at = {b: at[43, b] for b in (1, 2, 3)}
KEEP = {(k, 0): aWO + 4 * (k - 8) for k in range(8, 12)}
KEEP.update({(k, 0): aWO + 16 + 4 * k for k in range(D0, 4)})
reads = sorted((kb for kb in seq), key=lambda kb: at[kb[0], 3] + 0.5 if kb in KEEP else at[kb])
RING = 12
where, nring = {}, 0
for kb in reads:
    if kb in KEEP:
        where[kb] = KEEP[kb]
    else:
        where[kb] = aP + 4 * (nring % RING)
        nring += 1
LA_J = OPT['laj']
items = []
rd = 0
seen = set()
for n, (k, b) in enumerate(seq):
    pre_rd = []
    while rd < len(reads) and (at[reads[rd][0], 3] if reads[rd] in KEEP else at[reads[rd]]) <= n + LA_J:
        pre_rd += w_read1(*reads[rd], where[reads[rd]])
        rd += 1
    mm = []
    for a in range(2):
        d = vr(ACC[b] + 8 * a + 4 * (k & 1), 4)
        mm.append(I(f'v_mfma_f32_16x16x32_bf16 {d}, {a_frag((k & ~1) + a)}, {ar(where[k, b], 4)}, '
                    f'{d if (b, k & 1) in seen else 0}'))
    seen.add((b, k & 1))
    if n == 0:
        if OPT['ovl']:
            k_ = max(n_ for n_, i_ in enumerate(P) if i_.kind == 'barrier') + 1
            P = P[:k_] + pre_rd + P[k_:]
        elif OPT['wmix']:
            end = len(P) - (PROF in (1, 2)) - 10
            P = P[:TAIL1] + merge(P[TAIL1:end], pre_rd) + P[end:]
        else:
            P = P[:TAIL0] + pre_rd + P[TAIL0:]
        pre_rd = []
    nds = [n_ for n_, i_ in enumerate(pre_rd) if i_.kind == 'ds']
    half = nds[len(nds) // 2] if OPT['bal'] and len(nds) > 1 else len(pre_rd)
    items.append([mm[0]] + pre_rd[:half] + [mm[1]] + pre_rd[half:])
pin = {n: [] for n in range(len(items))}
B1 = at[4, 1] + 2
pin[B1] += BAR('WA2')
pin[at[16, 1] - LA_J - 1] += [Wait('WA3', 'CR1', 'CI1'), I('s_barrier')]
pin[at[32, 1] - LA_J - 1] += [Wait('WB0', 'WB1', 'WB2'), I('s_barrier')]
if OPT['fhs'] < -1:
    pin[-OPT['fhs']] += flag_store(1, ['stH'])
if OPT['fhl'] >= 0:
    pin[OPT['fhl']] += L(flag_load(1))
pin[OPT['fhc']] += stamp('fh0') + poll('fh', flag_load(1), flag_check) + stamp('fh1')
pin[OPT['fls']] += flag_store(2, ['stF3', 'stF2'])
pin[OPT['fll']] += L(flag_load(2))
pin[OPT['flc']] += stamp('fl0') + poll('fl', flag_load(2), flag_check) + stamp('fl1')
pin[at[36, 1] - 1] += stamp('k36')
for name, gap in (('CI1', 1), ('WB0', 19), ('WB1', 24), ('WB2', at[16, 1] - LA_J)):
    if name in STAGE:
        for n, i_ in enumerate(stage_write(name)):
            pin[gap + max(n - 2, 0)].append(i_)
_rw = rw
rw = lambda name: [] if name in STAGE else _rw(name)
queue = []
if OPT['ovl']:
    pin[OPT['ofa']] += stamp('fa0') + poll('fa', flag_load(0), flag_check) + stamp('fa1')
    queue += [(OPT['ofa'], a_load(k)) for k in range(8, 8 + OPT['nea'])]
queue += [(OPT['q0'], a_load(k)) for k in range(8 + OPT['nea'], 16)] + [(0, rw('CI1'))]
queue += [(OPT['q0'], a_load(k)) for k in range(max(16, 8 + OPT['nea']), 20)]
if OPT['qord'] == 0:
    queue += [(B1 + 1, rw('WB0'))] + [(OPT['fhc'], a_load(k)) for k in range(20, 32)] + [(B1 + 1, rw('WB1'))]
elif OPT['qord'] == 1:
    queue += [(B1 + 1, rw('WB0')), (B1 + 1, rw('WB1'))] + [(OPT['fhc'], a_load(k)) for k in range(20, 32)]
else:
    queue += [(OPT['fhc'], a_load(k)) for k in range(20, 24)] + [(B1 + 1, rw('WB0')), (B1 + 1, rw('WB1'))]
    queue += [(0, a_load(k)) for k in range(24, 32)]
queue += [(at[16, 1] - LA_J, rw('WB2'))]
queue += [(OPT['flc'], a_load(k)) for k in range(36, 44)]
n = 0.0
for first_gap, ins in queue:
    n = max(n, first_gap)
    pend = []
    for i_ in ins:
        pend.append(i_)
        if i_.kind == 'vm':
            pin[int(n)] += pend
            pend = []
            n += OPT['pace'] / 10
for b in (1, 2, 3):
    sd = send(b)
    for q in range(4):
        pin[done_at[b] + 3 + q] += sd[q * len(sd) // 4:(q + 1) * len(sd) // 4]
    pin[done_at[min(b + 1, 3) if b < 3 else 3] + OPT[f'r{b}'] if b != 2 else done_at[2] + OPT['r2']] += L(recv(b))
pin[done_at[2] + 6] += stamp('s12')
pin[done_at[3] + 6] += stamp('sent')
items = fine('P3', items[:OPT['fn'] * 27], OPT['fn']) + items[OPT['fn'] * 27:]
LEV[0] = OPT['lev3']
sub = lambda lo, hi: {n - lo: pin[n] for n in range(lo, hi)}
unit_weave = weave


def weave(its, fill_, pin_, lo=0, hi=None):
    if not OPT['fineg']:
        return unit_weave(its, fill_, pin_, lo, hi)
    flat, pin2 = [], {}
    for n, it in enumerate(its):
        cut_ = max(k_ for k_, i_ in enumerate(it) if i_.kind == 'mfma')
        flat += [it[:cut_], it[cut_:]]
        ordered = any(i_.kind in ('barrier', 'pseudo', 'label') for i_ in pin_.get(n, []))
        first = len(flat[-2]) < len(flat[-1]) and not ordered
        pin2[2 * n + (0 if first else 1)] = pin_.get(n, [])
    return unit_weave(flat, fill_, pin2, 2 * lo, None if hi is None else 2 * hi + 1)


c1, c2 = at[32, 1], at[11, 0] + 1
if OPT['ovl']:
    GD = [int(x) for x in str(OPT['stg4']).split('.')]
    both = lambda lo, hi: m3[lo:hi] + m3[40 + lo:40 + hi]
    P += staged(items[:c1], pin, [(GD[0], [], both(0, 4)), (GD[1], both(4, 12), both(12, 20)),
                                  (GD[2], both(20, 28), both(28, 36)),
                                  (GD[3], both(36, 40) + m3[80:] + stamp('tail'), []), (c1 - 1, [], [])])
else:
    P += weave(items[:c1], [], sub(0, c1))
P += weave(items[c1:c2], ep_setup + pre, sub(c1, c2), 0, 6)
SWAPS = lambda R: [I(f'v_permlane16_swap_b32 v{R + 8 * a + r}, v{R + 8 * a + 4 + r}') for a in range(2) for r in range(4)]
base_calc += SWAPS(XE)


def rx_check(b):
    chk = checksum(RX[b] + 9, RX[b], f'v{RX[b] + 8}') + [f'v_cmp_ne_u32 vcc, s{sTAG}, v{RX[b] + 9}']
    return poll(f'rx{b}', '\n'.join(recv(x) for x in range(b, 4 if OPT['rxall'] else b + 1)), '\n'.join(chk))


EARLY = range(1, 1 + OPT['rxe'])
for b in EARLY:
    base_calc += rx_check(b)
    for q in range(8):
        u = RX[b] + 10 + 2 * (q & 1)
        base_calc += L(f"""v_lshlrev_b32 v{u}, 16, v{RX[b] + q}
            v_and_b32 v{u + 1}, 0xffff0000, v{RX[b] + q}
            v_add_f32 v{XE + 2 * q}, v{XE + 2 * q}, v{u}
            v_add_f32 v{XE + 2 * q + 1}, v{XE + 2 * q + 1}, v{u + 1}""")
P += weave(items[c2:], base_calc, sub(c2, len(items)), 3, len(items) - c2 - (3 if OPT['rxe'] else 6))
P += stamp('own')
A0 = ACC[0]
for q in range(8):
    P.append(I(f'v_pk_add_f32 {vr(A0 + 2 * q, 2)}, {vr(A0 + 2 * q, 2)}, {vr(XE + 2 * q, 2)}'))
LATE = [b for b in (1, 2, 3) if b not in EARLY]
for b in LATE:
    P += rx_check(b)
    if OPT['seqadd'] and b < 3:
        P += [I(f'v_dot2c_f32_bf16 v{A0 + 2 * q + h}, s{sKC[h]}, v{RX[b] + q}') for q in range(8) for h in range(2)]
if OPT['seqadd']:
    LATE = [3]
P += stamp('rx')
sts = []
for a in range(2):
    for q in range(4 * a, 4 * a + 4):
        for b in LATE:
            P += [I(f'v_dot2c_f32_bf16 v{A0 + 2 * q + h}, s{sKC[h]}, v{RX[b] + q}') for h in range(2)]
        P += sts[3 * (q & 3):3 * (q & 3) + 3]
    P += SWAPS(A0)[4 * a:4 * a + 4]
    sts = []
    for q in range(4 * a, 4 * a + 4):
        sts.append(I(f's_add_u32 s{sBB}, s{sXB}, {2048 * ROW(2 * q)}'))
        sts += [I(f'buffer_store_dword v{A0 + 2 * q + h}, v{FA0}, {srd(sOUT)}, s{sBB} offen offset:{2048 * h} '
                  f'{OPT["out_flags"].replace("+", " ")}') for h in range(2)]
P += L(f"""s_lshl_b32 s{sT2}, s{sJ}, 2
    s_add_u32 s{sT2}, s{sT2}, s{sW}
    s_xor_b32 s{sT1}, s{sI}, 15
    s_or_b32 s{sT2}, s{sT2}, s{sT1}
    s_cmp_eq_u32 s{sT2}, 0
    s_cselect_b32 s{sT2}, {WS_EP}, {OOB:#x}
    v_mov_b32 v{t0}, s{sE2}
    v_mov_b32 v{t1}, s{sT2}""") + sts + L(f'buffer_store_dword v{t0}, v{t1}, {srd(sWS)}, 0 offen')
if OPT['diag']:
    P += stamp('end') + L("""s_memrealtime s[6:7]
        s_waitcnt lgkmcnt(0)
        s_sub_u32 s4, s4, s23
        s_lshl_b32 s4, s4, 2
        s_min_u32 s4, s4, 20000
        L_diag:
        s_memrealtime s[0:1]
        s_waitcnt lgkmcnt(0)
        s_sub_u32 s0, s0, s6
        s_cmp_lt_u32 s0, s4
        s_cbranch_scc1 L_diag""")
if OPT['dbg']:
    P += L(f"""s_memrealtime s[6:7]
        s_mov_b32 s{sTMP}, s4
        s_mov_b32 s{sTMP + 1}, s5
        s_mov_b32 s{sTMP + 2}, 256
        v_lshlrev_b32 v{t0}, 2, v{vL}
        v_lshrrev_b32 v{t1}, v{t0}, s23
        v_and_b32 v{t1}, 15, v{t1}
        v_min_u32 v{t1}, 1, v{t1}
        v_mov_b32 v{t2}, {OOB:#x}
        v_cmp_gt_u32 vcc, 7, v{vL}
        s_waitcnt lgkmcnt(0)
        v_cndmask_b32 v{t0}, v{t2}, v{t0}, vcc
        buffer_atomic_add v{t1}, v{t0}, {srd(sTMP)}, 0 offen
        s_sub_u32 s6, s6, s19
        v_mov_b32 v{t1}, s6
        v_cmp_eq_u32 vcc, 8, v{vL}
        v_lshlrev_b32 v{t0}, 2, v{vL}
        s_nop 0
        v_cndmask_b32 v{t0}, v{t2}, v{t0}, vcc
        buffer_atomic_umax v{t1}, v{t0}, {srd(sTMP)}, 0 offen""")
if PROF:
    P += stamp('end')
    P += L(f"""s_waitcnt vmcnt(0)
        s_memrealtime s[0:1]
        s_lshl_b32 s{sT2}, s2, 2
        s_add_u32 s{sT2}, s{sT2}, s{sW}
        s_lshl_b32 s{sT2}, s{sT2}, 7
        s_add_u32 s{sT2}, s{sT2}, {WS_PROF}
        v_mov_b32 v{t1}, s{sT2}
        s_waitcnt lgkmcnt(0)
        v_mov_b32 v{t0}, s0
        buffer_store_dword v{t0}, v{t1}, {srd(sWS)}, 0 offen offset:124
        v_mov_b32 v{t2}, s23
        buffer_store_dword v{t2}, v{t1}, {srd(sWS)}, 0 offen offset:112
        buffer_store_dword a254, v{t1}, {srd(sWS)}, 0 offen offset:116
        buffer_store_dword a255, v{t1}, {srd(sWS)}, 0 offen offset:120""")
    P += stamp('DUMP')
P += [I('L_end:'), I('s_endpgm')]

P = resolve_stamps(P)
if OPT['split']:
    P = split_ds_pairs(P)
if OPT['hoist']:
    P = hoist_reads(P, OPT['hoist'])
body = pad_hazards(insert_waits(P, OPT['age']))
check_polls(body)
tail = []
for name, loads, check in retry_blocks:
    blk = [I(f'L_retry_{name}:'), I(f's_mov_b32 s3, {OPT["spin"]}'), I(f'L_spin_{name}:')]
    if PROF or OPT['dbg']:
        blk.append(I(f's_add_u32 s23, s23, {1 << (4 * retry_blocks.index((name, loads, check)))}'))
    blk += L(loads) + [I('s_waitcnt vmcnt(0)')] + L(check)
    blk += L(f'''s_cbranch_vccz L_back_{name}
        s_sub_u32 s3, s3, 1
        s_cmp_lg_u32 s3, 0
        s_cbranch_scc1 L_spin_{name}
        s_branch L_back_{name}''')
    tail += pad_hazards(blk)

hdr = open(os.path.join(os.path.dirname(os.path.abspath(__file__)), 'header.txt')).read()
text = hdr + f'''; @launch grid=(256,1,1) block=(256,1,1) lds=163840
.amdgcn_target "amdgcn-amd-amdhsa--gfx950"
.text
.globl {KN}
.p2align 8
.type {KN},@function
{KN}:
{render(body)}
{render(tail)}
L_code_end:
    s_endpgm
.section .rodata,"a"
.p2align 6
.amdhsa_kernel {KN}
  .amdhsa_next_free_vgpr 512
  .amdhsa_next_free_sgpr 102
  .amdhsa_accum_offset 256
  .amdhsa_group_segment_fixed_size 0
  .amdhsa_kernarg_size 128
  .amdhsa_user_sgpr_count 2
  .amdhsa_user_sgpr_kernarg_segment_ptr 1
  .amdhsa_system_sgpr_workgroup_id_x 1
.end_amdhsa_kernel
'''
open(sys.argv[1], 'w').write(text)
if PROF:
    open(sys.argv[1][:-2] + '.stamps', 'w').write(' '.join(stamp_names))
from collections import Counter
cnt = Counter(i.kind for i in body)
print(dict(cnt), 'nops', sum(1 for i in body if i.mn == 's_nop'))
import subprocess
chk = subprocess.run([sys.executable, 'cdna_unwritten_srd_check.py', sys.argv[1]],
                     capture_output=True, text=True)
if chk.returncode != 0:
    os.remove(sys.argv[1])
    sys.exit('address check failed: ' + chk.stdout[-600:])
```

```python
import sys, os
sys.path.insert(0, os.path.dirname(os.path.abspath(__file__)))
from asmlib import I, Wait, insert_waits, pad_hazards, render, weave, split_ds_pairs, hoist_reads, merge, level, ds_first, check_polls

KN = 'parallel_sum__ssm_conv_s5__dense_activation_mish__prompt_kernel'
OPT = dict(prof=0, spin=20000, out_flags='nt', map='8x4', pf=2, age=16, laf=5, r1=30, r2=36, r3=29, e3=12, fls=28, fll=50, flc=68, ka2=1, nstep=0, split=0, diag='', dsp=2, xel=0, tlb=0, pk_in=1, lateln=100, d0=4, o8=1, bal=0, fineg=1, xes=0, xfirst=1, parat=4, nb0=2, stg3='8.16.23', stg1='2.7.12.17.22.27', stg2='2.6.14.21', fhp=0, wmix=1, ntx=0, ntg=0, ntw=0, lbt=0, rxe=0, dspc=3, dsps=3, sch=3, g3=24, fn=2, stg=0, q0=8, pfat=24, seqadd=1, wa2e=22, w2b=4, ci0=7, wa1=15, f3b=24, pre0=0, p0s=16, p0l=30, p0c=44, rota=1, swb=1, lean=1, lb2s=0, s2l=0, xlds=0, deep=0, back=1, early=0, gl=0, xl=9, ncr=2, cpf=1, rxall=1, dbg=0, cfs=1, bsp=2, bsa=2, bsb=0, ovl=0, ofa=0, stg4='1.9.17.21', g10=8, wa0=17, hs=2, rotj=0, rotm=0, laj=7, pace=16, lev=0, lev3=0, pa=0, fw=1, xw=0, vmc=2, fine='', fas=-10, fal=12, fac=16, nea=8, fhs=-1, fhl=12, fhc=32, qord=1, lbl=14, lbc=24, ppf=0, hoist=32)
for a in sys.argv[2:]:
    k, v = a.split('=')
    OPT[k] = int(v) if v.lstrip('-').isdigit() else v
PROF = OPT['prof']

WS_EP, WS_AG, WS_A = 0, 0x10000, 0x40000
WS_XC = WS_A + 64 * 176 * 1024
XC_BLK = 2560
WS_FL = WS_XC + 1024 * 3 * XC_BLK
WS_SIZE = WS_FL + 1024 * 512
WS_PROF = 0x1C00000
OOB = 0x7ff00000
SLOT = 16384
TB = 9 * SLOT
T_STAT, T_B1, T_SEG, T_LB, T_H = TB, TB + 1024, TB + 2048, TB + 6144, TB + 8192
LOG2E, LN2, M2LN2 = 0x3fb8aa3b, 0x3f317218, 0xbfb17218

sX, sB, sW1, sCre, sCim, sW2, sWS, sOUT, sTMP = 36, 40, 44, 48, 52, 56, 60, 64, 68
sI, sJ, sW, sROT, sTAG, sE2 = 72, 73, 74, 75, 76, 77
sKC = [78, 79, 80, 81]
sWOFF, sT0, sT1, sXB, sBB, sW1A, sW1B = 82, 83, 84, 85, 86, 87, 88
sAS = 89
sFST = [90, 91, 92, 93]
sSST, sCB, sW2B, sFSEL, sONES, sT3, sJJ, sT2 = 94, 95, 96, 97, 98, 99, 100, 101
sKQ, sPB, sXO = 22, [24, 25, 26], [27, 28, 29, 30]
sSEL = [31, 32, 33, 34]
sFLG = 35
pLRE, pLIM, pBRE, pBIM, pLDT, pDSK, pB1 = 8, 10, 12, 14, 16, 18, 20
srd = lambda b: f's[{b}:{b + 3}]'
vL, t0, t1, t2 = 0, 1, 2, 3
AS = [4, 5, 6, 7]
ASc = [8, 9, 10, 11]
XG = [12, 13, 14, 15]
PG = [16, 17, 18, 19]
QG = [20, 21, 22, 23]
FA0, FAc, RL2, VLN2, VL16, VNM, VRS, t3 = 24, 25, 26, 27, 28, 29, 30, 31
FAd = VNM
NLI, LI, LR, CR, NCI, NCR, L16R, L16I, LSR, LSI, L128R, L128I, WR, WI, PR, PI = range(32, 48)
TT = 48
FACC = [64, 80]
SRE, SIM = 96, 112
X = 128
aS, aF, aP, aOF, aOS, aWO, aXE = 0, 128, 0, 64, 88, 128, 224
STAMP_A = list(range(104, 128)) + list(range(241, 247))
vr = lambda b, n: f'v[{b}:{b + n - 1}]'
ar = lambda b, n: f'a[{b}:{b + n - 1}]'

stamp_names = []
FINE_KEEP = dict(T=['lb1', 'F2', 'scan', 'F3', 'fa0', 'fa1', 'tail', 'fh0'], S=['x7', 'c27', 'b0', 'F0'], F0=['b2', 'F0', 'F1'], F2=['F1', 'F2', 'scan'], F3=['F2', 'scan', 'F3', 'fa0', 'fa1', 'tail'],
                 P3=['tail'], L=['k36', 'sent', 'own', 'rx'])


def fine(phase, items, step):
    if OPT['fine'] == phase:
        for n in range(step - 1, len(items), step):
            items[n] = items[n] + stamp(f'g{n}')
    return items


def stamp(name):
    if PROF == 3 and name not in ('end', 'DUMP'):
        return []
    if OPT['fine'] and not name.startswith('g') and name not in FINE_KEEP[OPT['fine']] + ['end', 'DUMP']:
        return []
    if OPT['diag'] == name:
        return [I('s_memrealtime s[4:5]')]
    return [I(';stamp ' + name)] if PROF else []


def resolve_stamps(prog):
    out = []
    for ins in prog:
        if not ins.text.startswith(';stamp '):
            out.append(ins)
            continue
        name = ins.text.split()[1]
        n = len(stamp_names)
        if n:
            out.append(I(f'v_accvgpr_write_b32 a{STAMP_A[n - 1]}, s{4 + 2 * ((n - 1) & 1)}'))
        if name == 'DUMP':
            out += [I(f'buffer_store_dword a{STAMP_A[k]}, v{t1}, {srd(sWS)}, 0 offen offset:{4 * k}') for k in range(n)]
            continue
        assert n < 29
        stamp_names.append(name)
        out.append(I(f's_mem{"real" if PROF == 2 else ""}time s[{4 + 2 * (n & 1)}:{5 + 2 * (n & 1)}]'))
    return out


def L(text):
    return [I(t.strip()) for t in text.strip().split('\n') if t.strip()]


def mfma(d, a, b, c):
    return I(f'v_mfma_f32_32x32x16_bf16 {d}, {a}, {b}, {c}')


def mksrd(b, lo, size):
    return f's_mov_b32 s{b}, s{lo}\ns_mov_b32 s{b + 1}, s{lo + 1}\ns_mov_b32 s{b + 2}, {size}\ns_mov_b32 s{b + 3}, 0x00020000\n'


slot_shared = {}


def dma_round(name, slot, voffs, rsrc, soff_code, shared):
    out = [I(f's_add_u32 m0, s{sWOFF}, {slot * SLOT}')] + L(soff_code)
    for g in range(4):
        nt = int(name[1:]) < OPT['ntx'] if name[0] == 'x' else OPT['ntg'] if name[0] == 'G' else OPT['ntw']
        out.append(I(f'buffer_load_dwordx4 v{voffs[g]}, {srd(rsrc)}, s{sT0} offen offset:{1024 * g} {"nt " if nt else ""}lds',
                     tok=name if g == 3 else None,
                     lds_w=(slot, slot_shared.get(slot, False)) if g == 0 else None, note=name,
                     fills=(slot, shared) if g == 3 else None))
    slot_shared[slot] = shared
    return out


XSLOT = lambda s: (s & 3) + (5 if OPT['early'] and s < 4 else 1)


def rx(s, slot):
    return dma_round(f'x{s}', XSLOT(s), XG, sX,
                     f's_add_u32 s{sT0}, s{sROT}, {s}\ns_and_b32 s{sT0}, s{sT0}, 7\n'
                     f's_lshl_b32 s{sT0}, s{sT0}, 7\ns_add_u32 s{sT0}, s{sT0}, s{sXB}', False)


G_SLOT = [5, 6, 7, 8, 0, 1, 2, 3, 4, 5, 6, 7]
W_SLOT = dict(WA0=8, CR0=0, CI0=1, WA1=2, WA2=3, WA3=4, CR1=5, CI1=6, WB0=7, WB1=8, WB2=2)


def rg(g):
    if g < 4:
        return dma_round(f'G{g}', G_SLOT[g], PG, sB,
                         f's_lshl_b32 s{sT0}, s{sKC[g]}, 7\ns_add_u32 s{sT0}, s{sT0}, s{sBB}', True)
    base = sW1A if g < 8 else sW1B
    return dma_round(f'G{g}', G_SLOT[g], QG, sW1,
                     f's_mul_i32 s{sT0}, s{sKC[g & 3]}, {64 * 3584}\ns_add_u32 s{sT0}, s{sT0}, s{base}', True)


def rw(name):
    e = int(name[2])
    if name[0] == 'C':
        code = f's_xor_b32 s{sT0}, s{sCB}, {128 * e}'
        return dma_round(name, W_SLOT[name], PG, sCim if name[1] == 'I' else sCre, code, True)
    if name[1] == 'A':
        code = f's_xor_b32 s{sT0}, s{sJJ}, {e}\ns_lshl_b32 s{sT0}, s{sT0}, 17\ns_add_u32 s{sT0}, s{sT0}, s{sW2B}'
    else:
        code = f's_lshl_b32 s{sT0}, s{sPB[e]}, 16\ns_add_u32 s{sT0}, s{sT0}, s{sW2B}'
        if e == 0:
            code += f'\ns_xor_b32 s{sT0}, s{sT0}, s{sSEL[0]}'
    return dma_round(name, W_SLOT[name], XG, sW2, code, True)


STAGE = {n: 160 + 16 * k for k, n in enumerate(x for x in str(OPT['stg']).split('.') if x != '0')}
VST = t0


def stage_load(name):
    keep = dict(slot_shared)
    out = []
    for i_ in rw(name)[1:]:
        if i_.kind == 'vm':
            n = sum(j.kind == 'vm' for j in out)
            i_ = I(i_.text.replace('dwordx4 ', f'dwordx4 {ar(STAGE[name] + 4 * n, 4)}, ').replace(' lds', ''))
            i_.dma = True
        out.append(i_)
    slot_shared.clear()
    slot_shared.update(keep)
    return out


def stage_write(name):
    slot = W_SLOT[name]
    out = [I(f's_add_u32 s{sT0}, s{sWOFF}, {slot * SLOT}'), I(f'v_add_u32 v{VST}, s{sT0}, v{VL16}')]
    out += [I(f'ds_write_b128 v{VST}, {ar(STAGE[name] + 4 * g_, 4)} offset:{1024 * g_}', tok=name if g_ == 3 else None,
              lds_w=(slot, True) if g_ == 0 else None, note=name, fills=(slot, True) if g_ == 3 else None)
            for g_ in range(4)]
    return out


def rw2(name):
    if name not in STAGE:
        return rw(name)
    out = stage_write(name)
    for i_ in out[2:]:
        i_.dma = True
    return out


def pins(*parts):
    pin = {}
    for gap, ins in parts:
        head = [i_ for i_ in ins if not getattr(i_, 'dma', False)]
        pin.setdefault(gap, []).extend(head)
        for n, i_ in enumerate(ins[len(head):]):
            pin.setdefault(gap + n * OPT['dsp'], []).append(i_)
    return pin


BAR = lambda *toks: ([Wait(*toks)] if toks else []) + [I('s_barrier')]
PARK = {n: 247 if k == 16 else 48 + k for k, n in enumerate('pub seg lba0 lba1 lbe0 lbe1 fla flp lbw lbr hw hw2 hr hr2 f3o fp0 fp1'.split())}
PARK['pfa'] = 249


def park(**regs):
    return [I(f'v_accvgpr_write_b32 a{PARK[n]}, v{r}') for n, r in regs.items()]


def fetch(**regs):
    return [I(f'v_accvgpr_read_b32 v{r}, a{PARK[n]}') for n, r in regs.items()]


retry_blocks = []


def poll(name, loads, check):
    retry_blocks.append((name, loads, check))
    return L(check) + [I(f's_cbranch_vccnz L_retry_{name}'), I(f'L_back_{name}:')]


def cexp(dr, di, scale, zr, za):
    return L(f"""v_mul_f32 v{dr}, {scale}, v{zr}
        v_mul_f32 v{di}, {scale}, v{za}
        v_exp_f32 v{dr}, v{dr}
        v_fract_f32 v{di}, v{di}
        v_cos_f32 v{t3}, v{di}
        v_sin_f32 v{di}, v{di}
        v_mul_f32 v{di}, v{dr}, v{di}
        v_mul_f32 v{dr}, v{dr}, v{t3}""")


def cmul_add(dr, di, ar_, ai, br, bi, cr=None, ci=None):
    if cr is None:
        head = f'v_mul_f32 v{dr}, v{ar_}, v{br}\nv_mul_f32 v{di}, v{ar_}, v{bi}'
    else:
        head = f'v_fma_f32 v{dr}, v{ar_}, v{br}, v{cr}\nv_fma_f32 v{di}, v{ar_}, v{bi}, v{ci}'
    return L(head + f'\nv_fma_f32 v{dr}, -v{ai}, v{bi}, v{dr}\nv_fmac_f32 v{di}, v{ai}, v{br}')


def mish(b, voff=VL16, quarters=range(4)):
    A = FACC[b & 1]
    out = []
    for q in quarters:
        rs = range(4 * q, 4 * q + 4)
        out.append(I(f'ds_read_b128 {vr(TT + 4 * q, 4)}, v{t2} offset:{T_B1 - TB + 128 * b + 16 * q}', hoist=True))
        out += [I(f'v_fmac_f32 v{TT + r}, v{A + r}, v{RL2}') for r in rs]
        out += [I(f'v_exp_f32 v{A + r}, v{TT + r}') for r in rs]
        out += [I(f'v_add_f32 v{A + r}, 1.0, v{A + r}') for r in rs]
        out += [I(f'v_fma_f32 v{A + r}, v{A + r}, v{A + r}, 1.0') for r in rs]
        out += [I(f'v_rcp_f32 v{A + r}, v{A + r}') for r in rs]
        out += [I(f'v_fmamk_f32 v{A + r}, v{A + r}, {M2LN2:#x}, v{VLN2}') for r in rs]
        out += [I(f'v_mul_f32 v{TT + r}, v{TT + r}, v{A + r}') for r in rs]
        out += [I(f'v_cvt_pk_bf16_f32 v{A + p}, v{TT + 2 * p}, v{TT + 2 * p + 1}') for p in (2 * q, 2 * q + 1)]
        if q & 1:
            fr = q >> 1
            out.append(I(f'buffer_store_dwordx4 {vr(A + 4 * fr, 4)}, v{voff}, {srd(sWS)}, s{sFST[b]} offen '
                         f'offset:{1024 * fr} sc1', tok=f'stF{b}' if fr else None))
            if b < 3:
                out += [I(f'v_accvgpr_write_b32 a{aOF + 8 * b + 4 * fr + e}, v{A + 4 * fr + e}') for e in range(4)]
    return out


def mish_pk(b, voff, halves=range(2)):
    A = FACC[b & 1]
    out = []
    for q in range(2 * len(halves)):
        out.append(I(f'ds_read_b128 {vr(TT + 4 * q, 4)}, v{t2} offset:{T_B1 - TB + 128 * b + 16 * q}', hoist=True))
    for h in halves:
        ps = range(8 * h, 8 * h + 8, 2)
        rs = range(8 * h, 8 * h + 8)
        out += [I(f'v_pk_fma_f32 {vr(TT + p, 2)}, {vr(A + p, 2)}, {vr(RL2, 2)}, {vr(TT + p, 2)} op_sel_hi:[1,0,1]') for p in ps]
        out += [I(f'v_exp_f32 v{A + r}, v{TT + r}') for r in rs]
        out += [I(f'v_pk_add_f32 {vr(A + p, 2)}, {vr(A + p, 2)}, 1.0 op_sel_hi:[1,0]') for p in ps]
        out += [I(f'v_pk_fma_f32 {vr(A + p, 2)}, {vr(A + p, 2)}, {vr(A + p, 2)}, 1.0 op_sel_hi:[1,1,0]') for p in ps]
        out += [I(f'v_rcp_f32 v{A + r}, v{A + r}') for r in rs]
        out += [I(f'v_pk_fma_f32 {vr(A + p, 2)}, {vr(A + p, 2)}, s[{sKC[0]}:{sKC[1]}], {vr(RL2, 2)} '
                  f'op_sel:[0,0,1] op_sel_hi:[1,0,1]') for p in ps]
        out += [I(f'v_pk_mul_f32 {vr(TT + p, 2)}, {vr(TT + p, 2)}, {vr(A + p, 2)}') for p in ps]
        out += [I(f'v_cvt_pk_bf16_f32 v{A + p // 2}, v{TT + p}, v{TT + p + 1}') for p in ps]
    out += [I(f'v_permlane16_swap_b32 v{A + e}, v{A + 4 + e}') for e in range(4)]
    for h in range(2):
        out.append(I(f'buffer_store_dwordx4 {vr(A + 4 * h, 4)}, v{voff}, {srd(sWS)}, s{sFST[b]} offen '
                     f'offset:{1024 * h} sc1', tok=f'stF{b}' if h else None))
        if b < 3:
            out += [I(f'v_accvgpr_write_b32 a{aOF + 8 * b + 4 * h + e}, v{A + 4 * h + e}') for e in range(4)]
    return out


def mish_stages(b, h):
    m = mish_pk(b, VL16, range(2))
    body = m[4:]
    body = body[40:] if h else body[:40]
    return dict(rd=m[2 * h:2 * h + 2], A=body[0:4], ex=body[4:12], B=body[12:20], rc=body[20:28], C=body[28:36],
                fin=body[36:])


def cmul_pk(d, a, b, c):
    return L(f"""v_pk_fma_f32 {vr(d, 2)}, {vr(b, 2)}, {vr(a, 2)}, {vr(c, 2)} op_sel_hi:[1,0,1]
        v_pk_fma_f32 {vr(d, 2)}, {vr(b, 2)}, {vr(a, 2)}, {vr(d, 2)} op_sel:[1,1,0] op_sel_hi:[0,1,1] neg_lo:[0,1,0]""")


def staged(items, pin, plan):
    out, lo = [], 0
    for hi, fill_, burst_ in plan:
        out += weave(items[lo:hi + 1], fill_, {g_ - lo: v for g_, v in pin.items() if lo <= g_ <= hi}) + burst_
        lo = hi + 1
    return out


_weave = weave
LEV = [OPT['lev']]


def weave(*a):
    out = _weave(*a)
    return ds_first(level(out, LEV[0], OPT['vmc'])) if LEV[0] else out


P = []
if OPT['map'] == '8x4':
    ids = f"""s_and_b32 s{sKQ}, s2, 3
        s_bfe_u32 s{sJJ}, s2, 0x20003
        s_lshr_b32 s{sI}, s2, 5
        s_bfe_u32 s{sT0}, s2, 0x10002
        s_lshl_b32 s{sROT}, s{sT0}, 1
        s_lshl_b32 s{sT0}, s{sT0}, 3
        s_and_b32 s{sT1}, s{sI}, {OPT['rota']}
        s_or_b32 s{sI}, s{sI}, s{sT0}
        s_add_u32 s{sROT}, s{sROT}, s{sT1}
        s_add_u32 s{sROT}, s{sROT}, s{sJJ if OPT['rotm'] else sKQ}
        s_lshl_b32 s{sROT}, s{sROT}, 1
        s_and_b32 s{sROT}, s{sROT}, 7"""
else:
    ids = f"""s_and_b32 s{sKQ}, s2, 1
        s_lshl_b32 s{sKQ}, s{sKQ}, 1
        s_lshr_b32 s{sT0}, s2, 7
        s_or_b32 s{sKQ}, s{sKQ}, s{sT0}
        s_bfe_u32 s{sJJ}, s2, 0x20003
        s_bfe_u32 s{sI}, s2, 0x20005
        s_bfe_u32 s{sT0}, s2, 0x20001
        s_add_u32 s{sROT}, s{sT0}, s{sKQ}
        s_lshl_b32 s{sT0}, s{sT0}, 2
        s_or_b32 s{sI}, s{sI}, s{sT0}
        s_lshl_b32 s{sROT}, s{sROT}, 1
        {'s_lshr_b32 s%d, s2, 7' % sT0 if OPT['rotm'] else ''}
        {'s_lshl_b32 s%d, s%d, 1' % (sROT, sJJ) if OPT['rotm'] else ''}
        {'s_add_u32 s%d, s%d, s%d' % (sROT, sROT, sT0) if OPT['rotm'] else ''}
        s_and_b32 s{sROT}, s{sROT}, 7"""
code_pf = f'buffer_load_dword v{t3}, v{FACC[0] if OPT["cpf"] == 2 else t1}, {srd(sTMP)}, s{sFLG if OPT["cpf"] == 2 else sT0} offen'
ws_load = f's_load_dwordx2 s[{sWS}:{sWS + 1}], s[0:1], 120'
more_loads = f"""s_load_dwordx8 s[{pLRE}:{pLRE + 7}], s[0:1], 8
s_load_dwordx4 s[{pLDT}:{pLDT + 3}], s[0:1], 56
s_load_dwordx2 s[{pB1}:{pB1 + 1}], s[0:1], 88
s_load_dwordx2 s[{sW1}:{sW1 + 1}], s[0:1], 80
s_load_dwordx2 s[{sCre}:{sCre + 1}], s[0:1], 40
s_load_dwordx2 s[{sCim}:{sCim + 1}], s[0:1], 48
s_load_dwordx2 s[{sW2}:{sW2 + 1}], s[0:1], 96
s_load_dwordx2 s[{sOUT}:{sOUT + 1}], s[0:1], 104
"""
SUM, SQ = [TT + 8, TT + 9], [TT + 10, TT + 11]
sizes = ((sX, 2097152), (sB, 524288), (sW1, 1835008), (sCre, 524288), (sCim, 524288), (sW2, 1835008),
         (sWS, (WS_PROF + 0x40000) if PROF else WS_SIZE), (sOUT, 4194304))
P += L(f"""
s_cmp_ge_u32 s2, 256
s_cbranch_scc1 L_end
{'s_memtime s[98:99]' if PROF else ''}
{'s_memrealtime s[90:91]' if PROF or OPT['diag'] or OPT['dbg'] else ''}
{'s_load_dwordx2 s[4:5], s[0:1], 112' if OPT['dbg'] else ''}
s_load_dwordx2 s[{sX}:{sX + 1}], s[0:1], 0
{'' if OPT['ka2'] else ws_load}
s_getpc_b64 s[{sTMP}:{sTMP + 1}]
v_lshrrev_b32 v{t0}, 6, v0
v_and_b32 v{vL}, 63, v0
s_and_b32 s{sTMP}, s{sTMP}, 0xffffff80
v_readfirstlane_b32 s{sW}, v{t0}
s_mov_b32 s{sTMP + 2}, L_code_end-{KN}
s_mov_b32 s{sTMP + 3}, 0x00020000
s_lshr_b32 s{sT0}, s2, 3
s_lshl_b32 s{sT0}, s{sT0}, 2
s_add_u32 s{sT0}, s{sT0}, s{sW}
s_lshl_b32 s{sT0}, s{sT0}, 9
v_and_b32 v{t1}, 3, v{vL}
v_lshlrev_b32 v{t1}, 7, v{t1}
{'' if OPT['cpf'] == 2 else code_pf}
{'' if OPT['ka2'] else more_loads}
v_lshrrev_b32 v{t0}, 3, v{vL}
v_lshrrev_b32 v{t1}, 4, v{vL}
v_xor_b32 v{t1}, v{t1}, v{vL}
v_and_b32 v{t1}, 7, v{t1}
v_lshlrev_b32 v{t1}, 4, v{t1}
v_lshl_add_u32 v{PG[0]}, v{t0}, 10, v{t1}
v_lshrrev_b32 v{t2}, 5, v{vL}
v_mul_u32_u24 v{t2}, {12 * 1024}, v{t2}
v_add_u32 v{XG[0]}, v{PG[0]}, v{t2}
v_xor_b32 v{XG[1]}, 64, v{XG[0]}
v_add_u32 v{XG[2]}, {6 * 1024}, v{XG[0]}
v_add_u32 v{XG[3]}, {9 * 1024}, v{XG[1]}
v_add_u32 v{XG[1]}, {3 * 1024}, v{XG[1]}
s_lshl_b32 s{sWOFF}, s{sW}, 12
{ids}
s_lshl_b32 s{sXB}, s{sI}, 17
s_lshl_b32 s{sT0}, s{sW}, 15
s_add_u32 s{sXB}, s{sXB}, s{sT0}
""" + ''.join(f's_mov_b32 s{b + 2}, {n}\ns_mov_b32 s{b + 3}, 0x00020000\n' for b, n in sizes[:1 if OPT['lean'] else 8]) + f"""
s_waitcnt lgkmcnt(0)
{'v_accvgpr_write_b32 a254, s98' if PROF else ''}
{'v_accvgpr_write_b32 a255, s90' if PROF else ''}
{'s_mov_b32 s23, 0' if PROF or OPT['dbg'] else ''}
{'s_mov_b32 s3, s90' if OPT['dbg'] else ''}
{'s_mov_b32 s23, s90' if OPT['diag'] else ''}
""")
P += stamp('ka') if OPT['diag'] else []
P += rx(0, 0) + (L(ws_load + '\n' + more_loads) if OPT['ka2'] else []) + rx(1, 1)
if OPT['lean']:
    P += L(''.join(f's_mov_b32 s{b + 2}, {n}\ns_mov_b32 s{b + 3}, 0x00020000\n' for b, n in sizes[1:]))
P += L(f"""
v_and_b32 v{t0}, 31, v{vL}
s_lshl_b32 s{sJ}, s{sKQ}, 2
s_or_b32 s{sJ}, s{sJ}, s{sJJ}
v_lshrrev_b32 v{t1}, 5, v{vL}
v_bfe_u32 v{t2}, v{vL}, 1, 3
v_xor_b32 v{t1}, v{t1}, v{t2}
v_lshlrev_b32 v{t1}, 4, v{t1}
v_lshl_add_u32 v{AS[0]}, v{t0}, 7, v{t1}
v_xor_b32 v{AS[1]}, 32, v{AS[0]}
v_xor_b32 v{AS[2]}, 64, v{AS[0]}
v_xor_b32 v{AS[3]}, 0x60, v{AS[0]}
s_add_u32 s{sT0}, s{sWOFF}, {XSLOT(0) * SLOT}
v_add_u32 v{ASc[0]}, s{sT0}, v{AS[0]}
v_add_u32 v{ASc[1]}, s{sT0}, v{AS[1]}
v_add_u32 v{ASc[2]}, s{sT0}, v{AS[2]}
v_add_u32 v{ASc[3]}, s{sT0}, v{AS[3]}
s_mov_b32 s{sONES}, 0x3f803f80
v_mov_b32 v{SUM[0]}, 0
v_mov_b32 v{SUM[1]}, 0
v_mov_b32 v{SQ[0]}, 0
v_mov_b32 v{SQ[1]}, 0
s_lshl_b32 s{sT0}, s{sW}, 9
s_add_u32 s{sT0}, s{sT0}, {T_SEG}
v_lshl_add_u32 v{t0}, v{vL}, 3, s{sT0}""")
P.append(I(f'ds_write_b64 v{t0}, {vr(SUM[0], 2)}', tok='zero'))
P += L(f's_waitcnt lgkmcnt(0)\ns_load_dword s{sE2}, s[{sWS}:{sWS + 1}], {WS_EP}')
mid = L(f"""
v_and_b32 v{t0}, 31, v{vL}
s_lshl_b32 s{sT1}, s{sJ}, 6
v_lshl_add_u32 v{NLI}, v{t0}, 1, s{sT1}
s_and_b32 s{sT3}, s{sW}, 1
s_mul_i32 s{sT2}, s{sKQ}, 7
s_lshl_b32 s{sW1A}, s{sJJ}, 1
s_add_u32 s{sPB[0]}, s{sW1A}, 1
s_cmp_eq_u32 s{sJJ}, 3
s_cselect_b32 s{sPB[0]}, 3, s{sPB[0]}
s_cselect_b32 s{sFSEL}, 64, 0
s_add_u32 s{sW1A}, s{sW1A}, s{sT2}
s_add_u32 s{sW1B}, s{sPB[0]}, s{sT2}
s_lshl_b32 s{sW1A}, s{sW1A}, 7
s_lshl_b32 s{sW1B}, s{sW1B}, 7
s_cmp_ge_u32 s{sW}, 2
s_cselect_b32 s{sT2}, s{sW1B}, s{sW1A}
s_cselect_b32 s{sT1}, s{sFSEL}, 0
s_add_u32 s{sT2}, s{sT2}, s{sT1}
s_lshl_b32 s{sT1}, s{sT3}, 6
s_xor_b32 s{sT2}, s{sT2}, s{sT1}
v_and_b32 v{t1}, 3, v{vL}
v_bfe_u32 v{t2}, v{vL}, 2, 2
v_lshl_add_u32 v{t1}, v{t2}, 3, v{t1}
v_bfe_u32 v{t2}, v{vL}, 4, 1
v_lshl_add_u32 v{t1}, v{t2}, 2, v{t1}
v_lshl_add_u32 v{PR}, v{t1}, 1, s{sT2}
s_cmp_eq_u32 s{sT3}, 1
s_cselect_b32 s{sB}, s{pBIM}, s{pBRE}
s_cselect_b32 s{sB + 1}, s{pBIM + 1}, s{pBRE + 1}
s_mul_i32 s{sT3}, s{sT3}, {32 * 3584}
s_add_u32 s{sW1A}, s{sW1A}, s{sT3}
s_add_u32 s{sW1B}, s{sW1B}, s{sT3}
s_lshl_b32 s{sBB}, s{sJ}, 15
s_lshr_b32 s{sT1}, s{sW}, 1
s_add_u32 s{sT1}, s{sT1}, s{sROT}
s_and_b32 s{sKC[0]}, s{sT1}, 7
s_add_u32 s{sT1}, s{sT1}, 2
s_and_b32 s{sKC[1]}, s{sT1}, 7
s_add_u32 s{sT1}, s{sT1}, 2
s_and_b32 s{sKC[2]}, s{sT1}, 7
s_add_u32 s{sT1}, s{sT1}, 2
s_and_b32 s{sKC[3]}, s{sT1}, 7
v_xor_b32 v{PG[1]}, 64, v{PG[0]}
v_add_u32 v{PG[2]}, {14 * 1024}, v{PG[0]}
v_add_u32 v{PG[3]}, {21 * 1024}, v{PG[1]}
v_add_u32 v{PG[1]}, {7 * 1024}, v{PG[1]}
v_and_b32 v{t2}, 1, v{vL}
v_lshlrev_b32 v{t2}, 4, v{t2}
v_mov_b32 v{VNM}, 0x3f80
v_lshlrev_b32 v{t2}, v{t2}, v{VNM}
v_bfe_i32 v{t0}, v{vL}, 1, 1
v_and_b32 v{TT + 1}, v{t0}, v{t2}
v_xor_b32 v{TT}, v{TT + 1}, v{t2}
""")
mid += L(f"""
v_lshrrev_b32 v{t1}, 3, v{vL}
v_mul_u32_u24 v{t1}, 3584, v{t1}
v_bfe_u32 v{t2}, v{vL}, 4, 1
v_lshlrev_b32 v{t2}, 2, v{t2}
v_xor_b32 v{t2}, v{t2}, v{vL}
v_and_b32 v{t2}, 7, v{t2}
v_lshl_add_u32 v{QG[0]}, v{t2}, 4, v{t1}
v_add_u32 v{QG[1]}, {27648}, v{QG[0]}
v_add_u32 v{QG[2]}, {2 * 27648}, v{QG[0]}
v_add_u32 v{QG[3]}, {3 * 27648}, v{QG[0]}
""")
swapb = f's_cmp_eq_u32 s{sJJ}, 1\ns_cselect_b32 s{sPB[1]}, 5, s{sPB[1]}\ns_cselect_b32 s{sPB[2]}, 1, s{sPB[2]}' if OPT['swb'] else ''
late = L(f"""
s_mul_i32 s{sE2}, s{sE2}, 1664525
s_add_u32 s{sE2}, s{sE2}, 1013904226
s_or_b32 s{sTAG}, s{sE2}, 1
v_bfe_u32 v{t1}, v{vL}, 2, 2
v_lshrrev_b32 v{t2}, 5, v{vL}
v_lshl_add_u32 v{t2}, v{t2}, 3, v{t1}
v_lshlrev_b32 v{FA0}, 7, v{t2}
v_lshrrev_b32 v{t1}, 1, v{t1}
v_lshl_add_u32 v{FA0}, v{t1}, 6, v{FA0}
v_bfe_u32 v{t1}, v{vL}, 4, 1
v_lshl_add_u32 v{FA0}, v{t1}, 5, v{FA0}
v_and_b32 v{t1}, 3, v{vL}
v_lshl_add_u32 v{FA0}, v{t1}, 3, v{FA0}
v_lshlrev_b32 v{VL16}, 4, v{vL}
v_mov_b32 v{VLN2}, {LN2:#x}
s_cmp_eq_u32 s{sPB[0]}, 1
s_cselect_b32 s{sPB[1]}, 3, 1
s_cmp_eq_u32 s{sPB[0]}, 5
s_cselect_b32 s{sPB[2]}, 3, 5
{swapb}
s_lshl_b32 s{sSEL[0]}, s{sFSEL}, 9
s_lshl_b32 s{sAS}, s{sI}, 2
s_add_u32 s{sAS}, s{sAS}, s{sW}
s_lshl_b32 s{sAS}, s{sAS}, 2
s_add_u32 s{sAS}, s{sAS}, s{sKQ}
s_lshl_b32 s{sFLG}, s{sAS}, 11
s_add_u32 s{sFLG}, s{sFLG}, {WS_FL}
s_mul_i32 s{sAS}, s{sAS}, {44 * 1024}
s_add_u32 s{sAS}, s{sAS}, {WS_A}
s_lshl_b32 s{sT2}, s{sJJ}, 13
s_add_u32 s{sFST[0]}, s{sAS}, s{sT2}
s_add_u32 s{sFST[1]}, s{sFST[0]}, 2048
s_lshl_b32 s{sT2}, s{sPB[0]}, 12
s_add_u32 s{sFST[3]}, s{sAS}, s{sT2}
s_lshl_b32 s{sT2}, s{sFSEL}, 5
s_add_u32 s{sFST[2]}, s{sFST[3]}, s{sT2}
s_add_u32 s{sFST[3]}, s{sFST[3]}, 2048
s_lshl_b32 s{sT2}, s{sJJ}, 12
s_add_u32 s{sSST}, s{sAS}, s{sT2}
s_add_u32 s{sSST}, s{sSST}, {28 * 1024}
s_xor_b32 s{sT2}, s{sW}, s{sKQ}
s_lshl_b32 s{sT2}, s{sT2}, 15
s_lshl_b32 s{sCB}, s{sJJ}, 17
s_add_u32 s{sCB}, s{sCB}, s{sT2}
s_lshl_b32 s{sT2}, s{sKQ}, 8
s_add_u32 s{sCB}, s{sCB}, s{sT2}
s_lshr_b32 s{sT2}, s{sJJ}, 1
s_lshl_b32 s{sT2}, s{sT2}, 7
s_add_u32 s{sCB}, s{sCB}, s{sT2}
s_mul_i32 s{sW2B}, s{sKQ}, {448 * 1024}
s_lshr_b32 s{sT2}, s{sW}, 1
s_lshl_b32 s{sT2}, s{sT2}, 15
s_add_u32 s{sW2B}, s{sW2B}, s{sT2}
s_lshl_b32 s{sT2}, s{sJJ}, 8
s_add_u32 s{sW2B}, s{sW2B}, s{sT2}
s_lshr_b32 s{sT2}, s{sKQ}, 1
s_xor_b32 s{sT2}, s{sT2}, s{sW}
s_and_b32 s{sT2}, s{sT2}, 1
s_lshl_b32 s{sT2}, s{sT2}, 7
s_add_u32 s{sW2B}, s{sW2B}, s{sT2}
s_lshl_b32 s{sT2}, s{sI}, 4
s_add_u32 s{sT2}, s{sT2}, s{sJJ}
s_lshl_b32 s{sT2}, s{sT2}, 2
s_add_u32 s{sT2}, s{sT2}, s{sW}""")
for b in range(4):
    late += L(f"""s_xor_b32 s{sT3}, s{sKQ}, {b}
        s_lshl_b32 s{sT3}, s{sT3}, 4
        s_add_u32 s{sT3}, s{sT3}, s{sT2}
        s_mul_i32 s{sT3}, s{sT3}, {3 * XC_BLK}
        s_add_u32 s{sXO[b]}, s{sT3}, {WS_XC + (b - 1) * XC_BLK if b else WS_XC}""")
late += L(f"""s_add_u32 s{sSEL[2]}, s{sXO[0]}, {XC_BLK}
    s_add_u32 s{sSEL[3]}, s{sXO[0]}, {2 * XC_BLK}
    s_and_b32 s{sT3}, s{sJJ}, 1
    s_sub_u32 s{sSEL[1]}, 6, s{sT3}""")
pf = []
if OPT['pf'] == 2:
    late += L(f"""
s_and_b32 s{sT1}, s{sI}, 7
s_lshl_b32 s{sT2}, s{sT1}, 1
s_add_u32 s{sT2}, s{sT2}, s{sW}
s_mul_i32 s{sT2}, s{sT2}, 28
s_mul_i32 s{sT3}, s{sKQ}, 448
s_add_u32 s{sT2}, s{sT2}, s{sT3}
s_lshl_b32 s{sT2}, s{sT2}, 2
s_add_u32 s{sT2}, s{sT2}, s{sJJ}
s_lshl_b32 s{sT3}, s{sJJ}, 3
s_add_u32 s{sT3}, s{sT3}, s{sT1}
s_lshl_b32 s{sT3}, s{sT3}, 6
s_add_u32 s{sT3}, s{sT3}, s{sKQ}
s_cmp_lt_u32 s{sW}, 2
s_cselect_b32 s{sT2}, s{sT2}, s{sT3}
s_cselect_b32 s{sT3}, 56, 32
s_cselect_b32 s{sTMP}, s{sW2}, s{sCre}
s_cselect_b32 s{sTMP + 1}, s{sW2 + 1}, s{sCre + 1}
s_cselect_b32 s{sTMP + 2}, s{sW2 + 2}, s{sCre + 2}
s_cmp_eq_u32 s{sW}, 3
s_cselect_b32 s{sTMP}, s{sCim}, s{sTMP}
s_cselect_b32 s{sTMP + 1}, s{sCim + 1}, s{sTMP + 1}""")
elif OPT['pf']:
    late += L(f"""
s_mul_i32 s{sT2}, s{sKQ}, 448
s_mul_i32 s{sT3}, s{sI}, 28
s_add_u32 s{sT2}, s{sT2}, s{sT3}
s_lshl_b32 s{sT2}, s{sT2}, 2
s_add_u32 s{sT2}, s{sT2}, s{sJJ}
s_lshl_b32 s{sT3}, s{sJJ}, 4
s_add_u32 s{sT3}, s{sT3}, s{sI}
s_lshl_b32 s{sT3}, s{sT3}, 5
s_add_u32 s{sT3}, s{sT3}, s{sKQ}
s_cmp_eq_u32 s{sW}, 0
s_cselect_b32 s{sT2}, s{sT2}, s{sT3}
s_cselect_b32 s{sT3}, 56, 16
s_cselect_b32 s{sTMP}, s{sW2}, s{sCre}
s_cselect_b32 s{sTMP + 1}, s{sW2 + 1}, s{sCre + 1}
s_cselect_b32 s{sTMP + 2}, s{sW2 + 2}, s{sCre + 2}
s_cmp_eq_u32 s{sW}, 2
s_cselect_b32 s{sTMP}, s{sCim}, s{sTMP}
s_cselect_b32 s{sTMP + 1}, s{sCim + 1}, s{sTMP + 1}
s_cmp_eq_u32 s{sW}, 3
s_cselect_b32 s{sT3}, 0, s{sT3}""")
if OPT['pf']:
    late += L(f"""s_lshl_b32 s{sT2}, s{sT2}, 8
v_lshrrev_b32 v{t0}, 1, v{vL}
v_and_b32 v{t1}, 1, v{vL}
v_lshlrev_b32 v{t1}, 7, v{t1}
v_lshl_add_u32 v{t0}, v{t0}, 10, v{t1}
v_add_u32 v{t0}, s{sT2}, v{t0}
v_mov_b32 v{t1}, {OOB:#x}
v_cmp_gt_u32 vcc, s{sT3}, v{vL}
v_cndmask_b32 v{PI}, v{t1}, v{t0}, vcc""")
    pf = L(f'buffer_load_dword a248, v{PI}, {srd(sTMP)}, 0 offen')

Z = TT + 2
consts = L(f"""
v_lshlrev_b32 v{NLI}, 16, v{NLI}
v_mul_f32 v{NLI}, {LOG2E:#x}, v{NLI}
v_exp_f32 v{NLI}, v{NLI}
v_lshlrev_b32 v{Z + 2}, 16, v{LR}
v_lshlrev_b32 v{Z + 3}, 16, v{LI}
v_cvt_pk_bf16_f32 v{NLI}, v{NLI}, v{NLI}
v_lshlrev_b32 v{NLI}, 16, v{NLI}
v_mul_f32 v{Z}, v{NLI}, v{Z + 2}
v_mul_f32 v{Z + 1}, v{NLI}, v{Z + 3}
v_mul_f32 v{Z}, {LOG2E:#x}, v{Z}
v_mul_f32 v{Z + 1}, 0xbe22f983, v{Z + 1}""")
consts += cexp(LR, LI, '1.0', Z, Z + 1)
consts += L(f"""
v_mul_f32 v{Z + 4}, v{Z + 2}, v{Z + 2}
v_fmac_f32 v{Z + 4}, v{Z + 3}, v{Z + 3}
v_rcp_f32 v{Z + 4}, v{Z + 4}
v_add_f32 v{Z + 5}, -1.0, v{LR}
v_sub_f32 v{NLI}, 0, v{LI}
v_add_f32 v{Z + 4}, v{Z + 4}, v{Z + 4}
v_mul_f32 v{CR}, v{Z + 5}, v{Z + 2}
v_fmac_f32 v{CR}, v{NLI}, v{Z + 3}
v_mul_f32 v{NCI}, v{Z + 5}, v{Z + 3}
v_fmac_f32 v{NCI}, v{LI}, v{Z + 2}
v_mul_f32 v{CR}, v{CR}, v{Z + 4}
v_mul_f32 v{NCI}, v{NCI}, v{Z + 4}
v_sub_f32 v{NCR}, 0, v{CR}""")
consts += cexp(L16R, L16I, '0x41800000', Z, Z + 1)
consts += cexp(L128R, L128I, '0x43000000', Z, Z + 1)
consts += L(f"""
v_lshrrev_b32 v{Z + 6}, 5, v{vL}
s_lshl_b32 s{sT2}, s{sW}, 1
v_add_u32 v{Z + 6}, s{sT2}, v{Z + 6}
v_cvt_f32_u32 v{Z + 6}, v{Z + 6}
v_mul_f32 v{Z + 7}, 0x41800000, v{Z + 6}
v_sub_f32 v{Z + 6}, 0x40e00000, v{Z + 6}
v_mul_f32 v{Z + 6}, 0x43800000, v{Z + 6}""")
consts += cexp(LSR, LSI, f'v{Z + 7}', Z, Z + 1)
consts += cexp(WR, WI, f'v{Z + 6}', Z, Z + 1)
consts += L(f"""v_lshlrev_b32 v{PR}, 16, v{PR}
v_mul_f32 v{PR}, {LOG2E:#x}, v{PR}
v_and_b32 v{t1}, 31, v{vL}
s_lshl_b32 s{sT1}, s{sW}, 7
s_add_u32 s{sT1}, s{sT1}, {T_B1}
v_lshl_add_u32 v{t1}, v{t1}, 2, s{sT1}
""") + [I(f'ds_write_b32 v{t1}, v{PR}', tok='b1w')]
later = []
Y = SRE
later += L(f"""v_and_b32 v{Y}, 31, v{vL}
    v_lshlrev_b32 v{Y + 1}, 3, v{Y}
    v_add_u32 v{Y + 1}, {T_LB}, v{Y + 1}
    v_lshrrev_b32 v{t0}, 5, v{vL}
    s_lshl_b32 s{sT2}, s{sW}, 11
    s_add_u32 s{sT2}, s{sT2}, {T_H}
    v_lshl_add_u32 v{Y}, v{Y}, 6, s{sT2}
    v_bfe_u32 v{Y + 2}, v{vL}, 1, 2
    v_lshlrev_b32 v{Y + 3}, 1, v{t0}
    v_xor_b32 v{Y + 2}, v{Y + 2}, v{Y + 3}
    v_bfe_u32 v{Y + 3}, v{vL}, 3, 1
    v_xor_b32 v{Y + 2}, v{Y + 2}, v{Y + 3}
    v_lshl_add_u32 v{Y}, v{Y + 2}, 4, v{Y}
    v_xor_b32 v{Y + 3}, 16, v{Y}
    v_bfe_u32 v{Y + 6}, v{vL}, 2, 2
    v_lshrrev_b32 v{t1}, 4, v{vL}
    v_lshl_add_u32 v{Y + 2}, v{t1}, 3, v{Y + 6}
    v_lshl_add_u32 v{Y + 2}, v{Y + 2}, 6, s{sT2}
    v_and_b32 v{t1}, 1, v{vL}
    v_lshl_add_u32 v{Y + 2}, v{t1}, 5, v{Y + 2}
    v_lshrrev_b32 v{t1}, 1, v{vL}
    v_xor_b32 v{t1}, v{t1}, v{vL}
    v_and_b32 v{t1}, 8, v{t1}
    v_lshl_add_u32 v{Y + 2}, v{t1}, 1, v{Y + 2}
    v_bfe_u32 v{t1}, v{vL}, 1, 1
    v_lshl_add_u32 v{Y + 2}, v{t1}, 3, v{Y + 2}
    v_bfe_u32 v{t1}, v{vL}, 4, 1
    v_lshl_add_u32 v{Y + 5}, v{t0}, 2, v{Y + 6}
    v_lshl_add_u32 v{Y + 5}, v{t1}, 4, v{Y + 5}
    v_lshlrev_b32 v{Y + 5}, 7, v{Y + 5}
    s_and_b32 s{sT2}, s{sKQ}, 1
    v_xor_b32 v{t1}, s{sT2}, v{t1}
    v_lshl_add_u32 v{Y + 5}, v{t1}, 6, v{Y + 5}
    v_bfe_u32 v{t1}, v{vL}, 3, 1
    v_lshl_add_u32 v{Y + 5}, v{t1}, 5, v{Y + 5}
    v_and_b32 v{t1}, 3, v{vL}
    v_lshl_add_u32 v{Y + 5}, v{t1}, 3, v{Y + 5}
    v_and_b32 v{Y + 6}, 15, v{vL}
    v_lshrrev_b32 v{t1}, 4, v{vL}
    v_bfe_u32 v{Y + 4}, v{vL}, 1, 3
    v_xor_b32 v{t1}, v{t1}, v{Y + 4}
    v_lshlrev_b32 v{t1}, 4, v{t1}
    v_lshl_add_u32 v{Y + 6}, v{Y + 6}, 7, v{t1}
    s_and_b32 s{sT2}, s{sJJ}, 1
    s_lshl_b32 s{sT2}, s{sT2}, 6
    v_xor_b32 v{Y + 6}, s{sT2}, v{Y + 6}
    s_lshl_b32 s{sT2}, s{sW}, 9
    s_add_u32 s{sT1}, s{sT2}, {T_SEG}
    s_add_u32 s{sT2}, s{sT2}, {T_LB}
    v_lshl_add_u32 v{Y + 7}, v{vL}, 3, s{sT1}
    v_lshl_add_u32 v{Y + 8}, v{vL}, 3, s{sT2}""")
later += park(hw=Y, lbr=Y + 1, hr=Y + 2, hw2=Y + 3, fp0=Y + 5, fp1=Y + 6, seg=Y + 7, lbw=Y + 8)
park2 = []
Y = FACC[0]
park2 += L(f"""s_lshl_b32 s{sT2}, s{sJ}, 4
    s_add_u32 s{sT2}, s{sT2}, s{sI}
    s_lshl_b32 s{sT2}, s{sT2}, 9
    s_add_u32 s{sT2}, s{sT2}, {WS_AG - 512}
    s_cmp_eq_u32 s{sW}, 3
    s_cselect_b32 s{sT2}, s{sT2}, {OOB:#x}
    v_mov_b32 v{Y + 8}, {OOB:#x}
    v_cmp_gt_u32 vcc, 32, v{vL}
    v_add_u32 v{Y}, s{sT2}, v{VL16}
    v_lshrrev_b32 v{t0}, 5, v{vL}
    v_cndmask_b32 v{Y}, v{Y}, v{Y + 8}, vcc
    s_lshl_b32 s{sT2}, s{sW}, 2
    s_add_u32 s{sT2}, s{sT2}, s{sI}
    s_sub_u32 s{sT2}, s{sT2}, 16
    v_lshl_add_u32 v{t0}, v{t0}, 1, s{sT2}
    s_lshl_b32 s{sT2}, s{sJ}, 13
    s_add_u32 s{sT2}, s{sT2}, {WS_AG}
    v_and_b32 v{Y + 9}, 31, v{vL}
    v_lshl_add_u32 v{t1}, v{Y + 9}, 4, s{sT2}
    v_lshl_add_u32 v{Y + 1}, v{t0}, 9, v{t1}
    v_cmp_gt_i32 vcc, 0, v{t0}
    v_add_u32 v{Y + 2}, 512, v{Y + 1}
    v_mov_b32 v{t1}, s{sTAG}
    v_cndmask_b32 v{Y + 1}, v{Y + 1}, v{Y + 8}, vcc
    v_cndmask_b32 v{Y + 3}, v{t1}, 0, vcc
    v_cmp_gt_i32 vcc, -1, v{t0}
    s_lshl_b32 s{sT2}, s{sJJ}, 9
    s_add_u32 s{sT2}, s{sT2}, s{sFLG}
    v_cndmask_b32 v{Y + 2}, v{Y + 2}, v{Y + 8}, vcc
    v_cndmask_b32 v{Y + 4}, v{t1}, 0, vcc
    v_lshl_add_u32 v{Y + 5}, v{Y + 9}, 2, s{sT2}
    v_and_b32 v{t0}, 3, v{vL}
    v_max_u32 v{t0}, 1, v{t0}
    v_xor_b32 v{t0}, s{sJJ}, v{t0}
    v_lshl_add_u32 v{Y + 6}, v{t0}, 9, s{sFLG}
    s_bitcmp1_b32 s{sJJ}, 0
    s_cselect_b32 s{sT2}, {OOB:#x}, 0
    v_add_u32 v{Y + 7}, s{sT2}, v{VL16}
    """)
park2 += park(pfa=PI)
park2 += park(pub=Y, lba0=Y + 1, lba1=Y + 2, lbe0=Y + 3, lbe1=Y + 4, fla=Y + 5, flp=Y + 6, f3o=Y + 7)
params = L(f"""global_load_ushort v{LR}, v{NLI}, s[{pLRE}:{pLRE + 1}]
    global_load_ushort v{LI}, v{NLI}, s[{pLIM}:{pLIM + 1}]
    global_load_ushort v{NLI}, v{NLI}, s[{pLDT}:{pLDT + 1}]
    global_load_ushort v{PR}, v{PR}, s[{pB1}:{pB1 + 1}]""")
XO_START = max(n for n, i_ in enumerate(late) if i_.text == f's_lshl_b32 s{sT2}, s{sI}, 4')
late_b = []
if OPT['lb2s']:
    late, late_b = late[:XO_START], late[XO_START:]
    park2 = [i_ for i_ in park2 if f'a{PARK["pfa"]},' not in i_.text]
if OPT['lb2s'] == 2:
    late_b, park2 = park2 + late_b, []
nl = len(late) * OPT['lateln'] // 100
while nl < len(late) and late[nl - 1].mn.startswith(('s_cmp', 'v_cmp', 's_cselect')) or (nl < len(late) and late[nl].mn.startswith('v_cndmask')):
    nl += 1
if nl >= len(late):
    later, late, park2 = later + late + park2, [], []
else:
    later, late = later + late[:nl], late[nl:]
zero_xe = [I(f'v_accvgpr_write_b32 a{aXE + r}, 0') for r in range(17)]
XA, sSTAR = FACC[1], sXO[3]
if OPT['xlds']:
    P += zero_xe + L(f"""s_lshl_b32 s{sSTAR}, s{sJJ}, 1
        s_lshr_b32 s{sT1}, s{sKQ}, 1
        s_add_u32 s{sSTAR}, s{sSTAR}, s{sT1}
        s_sub_u32 s{sSTAR}, s{sSTAR}, s{sROT}
        s_and_b32 s{sSTAR}, s{sSTAR}, 7
        s_and_b32 s{sT1}, s{sKQ}, 1
        v_lshrrev_b32 v{t0}, 5, v{vL}
        v_xor_b32 v{t1}, s{sT1}, v{t0}
        v_bfe_u32 v{t2}, v{vL}, 3, 2
        v_lshl_add_u32 v{t1}, v{t1}, 2, v{t2}
        v_lshlrev_b32 v{t1}, 4, v{t1}
        v_lshl_add_u32 v{t1}, v{t0}, 10, v{t1}
        v_and_b32 v{t2}, 7, v{vL}
        v_lshl_add_u32 v{t1}, v{t2}, 1, v{t1}
        s_add_u32 s{sT1}, s{sWOFF}, {SLOT}
        v_add_u32 v{XA}, s{sT1}, v{t1}""") + [I(f'v_xor_b32 v{XA + v}, {16 * v}, v{XA}') for v in (1, 2, 3)]
    zero_xe = []
later = mid + later + zero_xe
BACK = {1: '0 6 14 24 38 56 78', 2: '0 12 22 30 42 58 78', 3: '0 21 23 30 42 58 78'}
cuts = [0]
for n in range(1, 7):
    c = n * len(later) // 7 if not OPT['back'] else len(later) * [int(x) for x in BACK[OPT['back']].split()][n] // 100
    while later[c].mn.startswith(('s_cselect', 'v_cndmask', 's_nop')) or later[c - 1].mn.startswith('v_cmp'):
        c += 1
    cuts.append(c)
cuts.append(len(later))

touch_w = L(f'v_mov_b32 v{PI}, 0') + [
    I(f'buffer_load_dword a{56 + n}, v{PI}, {srd(r)}, 0 offen') for n, r in enumerate((sW1, sCre, sCim, sW2))]
touch_o = L(f"""v_min_u32 v{PR}, {WS_SIZE >> 21}, v{vL}
    v_lshlrev_b32 v{PR}, 21, v{PR}
    v_add_u32 v{PR}, 0x800, v{PR}
    buffer_load_dword a60, v{PR}, {srd(sWS)}, 0 offen
    buffer_load_dword a61, v{PR}, {srd(sOUT)}, 0 offen""")
if OPT['tlb'] in (1, 3, 4):
    P += touch_w
if OPT['tlb'] == 1:
    P += touch_o
P += rx(2, 2) + (rx(3, 3) if OPT['deep'] else []) + [I('s_waitcnt lgkmcnt(0)')]
pos = lambda text: max(n for n, i_ in enumerate(later) if i_.text.startswith(text))
first_g = 5 - OPT['early'] - OPT['deep']
first_p = OPT['parat'] if OPT['parat'] >= 5 else 4 - OPT['early'] - OPT['deep']
assert max(pos(f's_and_b32 s{sKC[3]},'), pos(f'v_add_u32 v{PG[1]},'), pos(f's_lshl_b32 s{sBB},')) < cuts[first_g]
assert pos(f'v_lshl_add_u32 v{PR},') < cuts[first_p]
assert pos(f'v_add_u32 v{QG[3]},') < cuts[min(first_g + 4, 7)]
for s in range(8):
    P.append(Wait(f'x{s}'))
    if s == 0:
        P += stamp('x0')
    for q in range(4):
        P.append(I(f'ds_read_b128 {vr(X + 16 * s + 4 * q, 4)}, v{ASc[q]} offset:{(s & 3) * SLOT}', lds_r=XSLOT(s),
                   tok=f'xr{s}' if q == 3 else None))
    if OPT['early']:
        E_ = OPT['early']
        todo = list(range(3, 4 + E_)) if s == 0 else [s + 3 + E_]
        nxt = sum((rx(n, 0) + (params if n == 7 and OPT['parat'] < 5 else []) if n < 8 else rg(n - 8) for n in todo), [])
        nxt += params if s == OPT['parat'] >= 5 else []
        if s == 3:
            nxt += [I(f'v_subrev_u32 v{ASc[q]}, {4 * SLOT}, v{ASc[q]}') for q in range(4)]
    elif OPT['deep']:
        nxt = rg(s - 4) if s >= 4 else [Wait(f'xr{s}')] + rx(s + 4, s) + (params if s == 3 else [])
    else:
        nxt = ([] if OPT['gl'] else rg(s - 5)) if s >= 5 else rx(s + 3, (s + 3) & 3) + (params if s == OPT['parat'] else [])
    piece = later[cuts[s]:cuts[s + 1]] if s < 7 else []
    after = []
    if s >= 5 and OPT['gl']:
        nxt, after = [], (rg(s - 5) if s - 5 < OPT['gl'] else [])
    elif s >= OPT['xl']:
        nxt, after = [], nxt
    P += nxt + piece if OPT['xfirst'] else piece + nxt
    for r in range(16):
        P.append(I(f'v_dot2c_f32_bf16 v{SUM[r & 1]}, s{sONES}, v{X + 16 * s + r}'))
        P.append(I(f'v_dot2c_f32_bf16 v{SQ[r & 1]}, v{X + 16 * s + r}, v{X + 16 * s + r}'))
        if OPT['xlds'] and r == (15 if s < 7 else 3):
            blk = [f'ds_read_u16_d16_hi a{aXE + n}, v{XA + ((n >> 1) & 1) + 2 * ((n >> 2) & 1)} '
                   f'offset:{(s & 3) * SLOT + ((n & 7) + 16 * (n >> 3)) * 128}' for n in range(16)]
            P += [Wait(f'xr{s}'), I(f's_cmp_lg_u32 s{sSTAR}, {s}'), I(f's_cbranch_scc1 L_xe{s}')]
            P.append(I('; epilogue x values\n    ' + '\n    '.join(blk + ['s_waitcnt lgkmcnt(0)'])))
            P.append(I(f'L_xe{s}:'))
    P += after
P += stamp('x7')
P += L(f"""
v_add_f32 v{SUM[0]}, v{SUM[0]}, v{SUM[1]}
v_add_f32 v{SQ[0]}, v{SQ[0]}, v{SQ[1]}
v_mov_b32 v{SUM[1]}, v{SUM[0]}
v_mov_b32 v{SQ[1]}, v{SQ[0]}
v_permlane32_swap_b32 v{SUM[1]}, v{SUM[0]}
v_add_f32 v{SUM[0]}, v{SUM[0]}, v{SUM[1]}
v_mul_f32 v{SUM[0]}, 0xbb000000, v{SUM[0]}
v_cvt_pk_bf16_f32 v{t0}, v{SUM[0]}, v{SUM[0]}
v_lshlrev_b32 v{SIM}, 16, v{t0}
v_lshlrev_b32 v{SIM + 1}, 16, v{t0}
v_lshlrev_b32 v{SIM + 2}, 16, v{t0}
v_lshlrev_b32 v{SIM + 3}, 16, v{t0}
""")

back = lambda o: [I(f'v_cvt_pk_bf16_f32 v{X + 2 * o + e}, v{FACC[0] + 4 * (o & 3) + 2 * e}, '
                    f'v{FACC[0] + 4 * (o & 3) + 2 * e + 1}') for e in range(2)]
items = [[I(f'v_mfma_f32_4x4x4_16b_bf16 {vr(FACC[0] + 4 * (n & 3), 4)}, {vr(TT, 2)}, {vr(X + 2 * n, 2)}, {vr(SIM, 4)}')]
         + (back(n - 2) if n >= 2 else []) for n in range(64)]
fill = L(f"""
v_permlane32_swap_b32 v{SQ[1]}, v{SQ[0]}
v_sub_f32 v{VNM}, 0, v{SIM}
v_add_f32 v{SQ[0]}, v{SQ[0]}, v{SQ[1]}
v_mul_f32 v{SQ[0]}, 0x3b000000, v{SQ[0]}
v_fma_f32 v{SQ[0]}, -v{SUM[0]}, v{SUM[0]}, v{SQ[0]}
v_max_f32 v{SQ[0]}, 0, v{SQ[0]}
v_cvt_pk_bf16_f32 v{t0}, v{SQ[0]}, v{SQ[0]}
v_lshlrev_b32 v{t0}, 16, v{t0}
v_add_f32 v{t0}, 0x3727c5ac, v{t0}
v_cvt_pk_bf16_f32 v{t0}, v{t0}, v{t0}
v_lshlrev_b32 v{t0}, 16, v{t0}
v_sqrt_f32 v{t0}, v{t0}
v_and_b32 v{t1}, 3, v{vL}
v_cvt_pk_bf16_f32 v{t0}, v{t0}, v{t0}
v_lshlrev_b32 v{t0}, 16, v{t0}
v_rcp_f32 v{VRS}, v{t0}
v_bfe_u32 v{t2}, v{vL}, 3, 2
v_lshl_add_u32 v{t1}, v{t2}, 2, v{t1}
v_bfe_u32 v{t2}, v{vL}, 2, 1
v_lshl_add_u32 v{t1}, v{t2}, 4, v{t1}
s_lshl_b32 s{sT1}, s{sW}, 8
s_add_u32 s{sT1}, s{sT1}, {T_STAT}
v_lshl_add_u32 v{t1}, v{t1}, 2, s{sT1}
v_mul_f32 v{RL2}, {LOG2E:#x}, v{VRS}
ds_write_b32 v{t1}, v{VNM}
""")
fill.append(I(f'ds_write_b32 v{t1}, v{VRS} offset:128', tok='tabw'))
LA_S, LA_F = 3, OPT['laf']


def s_addr(slot):
    return [I(f'v_add_u32 v{ASc[q]}, {slot * SLOT}, v{AS[q]}') for q in range(4)]


def s_read(s, ri):
    return I(f'ds_read_b128 {ar(aS + 8 * (s & 3) + 4 * ri, 4)}, v{ASc[s & 3]} offset:{(s >> 3) * SLOT + (2 * ((s >> 2) & 1) + ri) * 4096}',
             lds_r=G_SLOT[s >> 3])


def f_addr(b):
    if b < 2:
        return [I(f'v_xor_b32 v{FAc}, {64 * b}, v{FA0}')]
    if b == 3:
        return [I(f'v_xor_b32 v{FAc}, 64, v{FAc}')]
    return [I(f'v_xor_b32 v{FAc}, s{sFSEL}, v{FA0}'), I(f'v_add_u32 v{FAc}, {G_SLOT[8] * SLOT}, v{FAc}')]


def f_read(b, s):
    out = f_addr(b) if s == 0 else []
    k = (32 * b + s) & 7
    for u in range(2):
        out.append(I(f'ds_read_b64_tr_b16 {ar(aF + 4 * k + 2 * u, 2)}, v{FAc} '
                     f'offset:{(s >> 3) * SLOT + ((s >> 1) & 3) * 4096 + (s & 1) * 2048 + u * 512}',
                     lds_r=G_SLOT[(4 if b < 2 else 8) + (s >> 3)]))
    return out


DSP = OPT['dsp']
OPT['dsp'] = OPT['dspc']
NG = OPT['gl'] or 3 + OPT['early'] + OPT['deep']
pin = pins(*[(OPT['g3'] + 4 * n * OPT['dspc'], rg(NG + n)) for n in range(OPT['ncr'])],
           (54, s_addr(G_SLOT[0]) + stamp('c27') + BAR('G0', 'zero', *([] if OPT['bsp'] else ['G1'])) + stamp('b0')))
OPT['dsp'] = DSP
for k in range(LA_S):
    pin[55 + 2 * k] = [s_read(k, 0), s_read(k, 1)]
stat_fill = fill
if OPT['cfs']:
    fill = stat_fill[:2]
    stat_fill = stat_fill[2:]
else:
    stat_fill = []
P += weave(items, fill, pin, 0, 40) + back(62) + back(63)

S_items = []
for s in range(32):
    for ri, acc in ((0, SRE), (1, SIM)):
        it = [mfma(vr(acc, 16), vr(X + 4 * s, 4), ar(aS + 8 * (s & 3) + 4 * ri, 4), vr(acc, 16) if s else '0')]
        n = s + LA_S
        if n < 32:
            it.append(s_read(n, ri))
        S_items.append(it)
for k in range(LA_F):
    S_items[64 - LA_F + k] += f_read(0, k)
F_items = []
for b in range(4):
    its = []
    for s in range(32):
        acc = vr(FACC[b & 1], 16)
        it = [mfma(acc, ar(aF + 4 * ((32 * b + s) & 7), 4), vr(X + 4 * s, 4), acc if s else '0')]
        n = s + LA_F
        if n < 32:
            it += f_read(b, n)
        elif b < 3:
            it += f_read(b + 1, n - 32)
        its.append(it)
    F_items.append(its)

FLA, FLP = VNM, VRS
fill = stat_fill + late + park2 + late_b + consts + (pf if OPT['pfat'] < 0 else []) + L(f"""
v_lshrrev_b32 v{t0}, 3, v{vL}
v_bfe_u32 v{t1}, v{vL}, 4, 1
v_lshlrev_b32 v{t1}, 1, v{t1}
v_xor_b32 v{t1}, v{t1}, v{vL}
v_and_b32 v{t1}, 7, v{t1}
v_lshlrev_b32 v{t1}, 4, v{t1}
v_lshl_add_u32 v{XG[0]}, v{t0}, 10, v{t1}
v_add_u32 v{XG[1]}, {7 * 1024}, v{XG[0]}
v_xor_b32 v{XG[2]}, 64, v{XG[0]}
v_add_u32 v{XG[3]}, {21 * 1024}, v{XG[2]}
v_add_u32 v{XG[2]}, {14 * 1024}, v{XG[2]}
v_lshrrev_b32 v{t2}, 5, v{vL}
v_lshlrev_b32 v{t2}, 6, v{t2}
v_add_u32 v{t2}, {TB}, v{t2}
s_lshl_b32 s{sT2}, s{sW}, 8
v_add_u32 v{t1}, s{sT2}, v{t2}""")
fill += [I(f'ds_read_b128 {vr(FACC[1] + 4 * q, 4)}, v{t1} offset:{128 + 16 * q}') for q in range(4)]
xa, xb = TT + 14, TT + 15
ROW = lambda n: 16 * ((n >> 2) & 1) + 8 * (n >> 3) + (n & 3)
xe = L(f"""v_and_b32 v{xa}, 31, v{vL}
    v_lshrrev_b32 v{xb}, 5, v{vL}
    v_lshlrev_b32 v{xb}, 12, v{xb}
    v_lshl_add_u32 v{xb}, v{xa}, 1, v{xb}
    s_lshl_b32 s{sONES}, s{sJJ}, 2
    s_add_u32 s{sONES}, s{sONES}, s{sKQ}
    s_lshl_b32 s{sONES}, s{sONES}, 6
    v_lshl_add_u32 v{xa}, v{xa}, 1, s{sONES}
    s_add_u32 s{sXB}, s{sXB}, s{sONES}
    global_load_short_d16_hi a{aXE + 16}, v{xa}, s[{pDSK}:{pDSK + 1}]""")
for r in range(0 if OPT['xlds'] else 16):
    if r % 4 == 0:
        xe.append(I(f's_add_u32 s{sONES}, s{sXB}, {1024 * ROW(r)}'))
    xe.append(I(f'buffer_load_short_d16_hi a{aXE + r}, v{xb}, {srd(sX)}, s{sONES} offen offset:{1024 * (r & 3)}'))
sAO = dict(A={1: 8, 2: 9, 3: 10}, H={1: 11, 2: 12, 3: 13}, B={1: 14, 2: 15})
for e in (1, 2, 3):
    fill += L(f"""s_xor_b32 s{sT2}, s{sJJ}, {e}
        s_lshl_b32 s{sT2}, s{sT2}, 12
        s_add_u32 s{sAO['H'][e]}, s{sT2}, s{sAS}
        s_add_u32 s{sAO['A'][e]}, s{sAO['H'][e]}, s{sT2}
        s_add_u32 s{sAO['H'][e]}, s{sAO['H'][e]}, {28 * 1024}""")
for e in (1, 2):
    fill += L(f's_lshl_b32 s{sT2}, s{sPB[e]}, 12\ns_add_u32 s{sAO["B"][e]}, s{sT2}, s{sAS}')
if OPT['tlb'] in (2, 3):
    fill = touch_o + fill
if OPT['fw']:
    fill += L(f"""s_lshl_b32 s{sT2}, s{sJJ}, 9
        s_add_u32 s{sT2}, s{sT2}, s{sFLG}
        v_lshlrev_b32 v{t0}, 3, v{vL}
        v_mov_b32 v{TT}, 0
        v_mov_b32 v{TT + 1}, 0
        buffer_store_dwordx2 {vr(TT, 2)}, v{t0}, {srd(sWS)}, s{sT2} offen sc1""")
if OPT['xw'] == 1:
    fill += L(f'v_lshlrev_b32 v{t0}, 2, v{vL}')
    for b in (1, 2, 3):
        fill += L(f"""buffer_store_dwordx4 {vr(TT, 4)}, v{VL16}, {srd(sWS)}, s{sXO[b]} offen sc1
            buffer_store_dwordx4 {vr(TT, 4)}, v{VL16}, {srd(sWS)}, s{sXO[b]} offen offset:1024 sc1
            buffer_store_dword v{vL}, v{t0}, {srd(sWS)}, s{sXO[b]} offen offset:2048 sc1""")
elif OPT['xw']:
    fill += L(f"""v_lshlrev_b32 v{t0}, 7, v{vL}
        v_min_u32 v{t0}, {59 * 128}, v{t0}
        buffer_load_dword a60, v{t0}, {srd(sWS)}, s{sXO[0]} offen {('', '', 'sc1', 'sc1 nt')[OPT['xw']]}""")
if not OPT['xel']:
    cut = len(fill) * OPT['xes'] // 100
    fill, xe = fill[:cut] + merge(fill[cut:], xe), []
OPT['dsp'] = OPT['dsps']
SPOS = {3: (2, 14, 28), 4: (2, 14, 28, 42), 5: (0, 12, 24, 36, 48)}
srounds = [(2, rg(4)), (14, rg(5)), (28, rg(6)), (42, rg(7))] if OPT['sch'] == 1 else \
    list(zip(SPOS[9 - NG - OPT['ncr']], map(rg, range(NG + OPT['ncr'], 9))))
sbars = [(9, BAR('G1')), (25, BAR('G2', 'G3'))] if OPT['bsp'] == 1 else \
    [(9, BAR('G1')), (25, BAR('G2')), (41, BAR('G3'))] if OPT['bsp'] else [(24, BAR('G2', 'G3'))]
pin = pins(*srounds, *sbars, (63 - LA_F, stamp('s59') + BAR('G4', 'b1w', *([] if OPT['bsa'] & 1 else ['G5'])) + stamp('b2')))
OPT['dsp'] = DSP
P += weave(fine('S', S_items, 3), fill, pin, 0, 62 - LA_F)

Q = FACC[1]
V = lambda t: SRE + t if t % 2 == 0 else SIM + t - 1
AGR, AGI = VRS, t3
fill = []
coef = []
for q in range(8):
    for h in range(2):
        r = 2 * q + h
        fill += L(f"""v_mul_f32 v{TT + 2 * h}, v{SRE + r}, v{CR}
            v_mul_f32 v{TT + 2 * h + 1}, v{SRE + r}, v{NCI}
            v_fmac_f32 v{TT + 2 * h}, v{SIM + r}, v{NCI}
            v_fmac_f32 v{TT + 2 * h + 1}, v{SIM + r}, v{NCR}""")
    for h in range(2):
        r = 2 * q + h
        fill += L(f"""v_mul_f32 v{V(r)}, v{TT + 2 * h}, v{Q + r}
            v_mul_f32 v{V(r) + 1}, v{TT + 2 * h + 1}, v{Q + r}""")
    coef.append(fill)
    fill = []
step = lambda d, p, c: L(f"""v_pk_fma_f32 {vr(d, 2)}, {vr(p, 2)}, {vr(LR, 2)}, {vr(c, 2)} op_sel_hi:[1,0,1]
    v_pk_fma_f32 {vr(d, 2)}, {vr(p, 2)}, {vr(NLI, 2)}, {vr(d, 2)} op_sel:[1,0,0] op_sel_hi:[0,1,1]""")
horner = [step(AGR if r & 1 else TT + 4, V(0) if r == 1 else (TT + 4 if r & 1 else AGR), V(r)) for r in range(1, 16)]
fill = fetch(seg=t1) + fill + (L('s_mov_b32 s19, s3') if OPT['dbg'] else []) + L(f's_mov_b32 s{sKC[0]}, {M2LN2:#x}')
fill.append(I(f'ds_write_b64 v{t1}, {vr(AGR, 2)} offset:{7 * 256}', tok='segw'))
frounds = [(1, rg(8)), (12, rg(9))] if OPT['sch'] == 1 else [(1, rg(9)), (12, rg(10))] if OPT['sch'] == 2 else \
    [(0, rg(9)), (OPT['g10'], rg(10)), (2 * OPT['g10'], rg(11))]
staged_names = list(STAGE)
abars = [(7 - LA_F, BAR('G5'))] if OPT['bsa'] & 1 else []
abars += [(15 - LA_F, BAR('G6')), (23 - LA_F, BAR('G7'))] if OPT['bsa'] & 2 else [(15 - LA_F, BAR('G6', 'G7'))]
pin = pins(*frounds, *abars, (31, BAR('segw')),
           *[(22, stage_load(n)) for n in staged_names[:1]])
if 0 <= OPT['pfat'] < 32:
    pin.setdefault(OPT['pfat'], []).extend(pf)
NB = OPT['nb0']
per = 8 // NB
plan = [(1, [], [])]
for n in range(NB):
    lo, hi = max(2 * per * n - 1, 0), 2 * per * (n + 1) - 1
    plan.append((1 + (n + 1) * 28 // NB, sum(coef[per * n:per * (n + 1)], []), sum(horner[lo:hi], [])))
P += staged(fine('F0', F_items[0], 3), pin, plan + [(30, fill, []), (31, [], [])])
P += stamp('F0')

E = ASc[0]
R0, R1, T0_, T1_ = TT + 8, TT + 12, ASc[0], ASc[2]
h0, h1 = mish_stages(0, 0), mish_stages(0, 1)
rd = lambda dst, k: I(f'ds_read2_b64 {vr(dst, 4)}, v{t1} offset0:{32 * k} offset1:{32 * k + 32}')
publish = cmul_add(E, E + 2, L16R, L16I, PR, PI, AGR, AGI) + fetch(pub=t1) + L(f"""v_mov_b32 v{E + 1}, s{sTAG}
    v_mov_b32 v{E + 3}, s{sTAG}
    buffer_store_dwordx4 {vr(E, 4)}, v{t1}, {srd(sWS)}, 0 offen sc1""")
frounds = [(0, rg(10)), (8, rg(11))] if OPT['sch'] == 1 else [(0, rg(11))] if OPT['sch'] == 2 else []
pin = pins(*frounds, (OPT['wa0'], rw('WA0')), (31 - LA_F, BAR('G8', 'G9', *([] if OPT['bsb'] else ['G10', 'G11']))),
           *zip((8, 24), map(stage_load, staged_names[1:3])))
if OPT['pfat'] >= 32:
    pin.setdefault(OPT['pfat'] - 32, []).extend(fetch(pfa=FAd) + L(pf[0].text.replace(f'v{PI}', f'v{FAd}')))
GA = [int(x) for x in str(OPT['stg1']).split('.')]
P += staged(fine('F0', F_items[1], 3), pin, [
    (GA[0], [rd(R0, 0), rd(R1, 2)] + h0['rd'], h0['A']),
    (GA[1], h0['ex'], cmul_pk(PR, L16R, R0, R0 + 2) + cmul_pk(T0_, L16R, PR, R1) + cmul_pk(PR, L16R, T0_, R1 + 2) + h0['B']),
    (GA[2], [rd(R0, 4), I(f'ds_read_b64 {vr(R1, 2)}, v{t1} offset:{6 * 256}')] + h0['rc'],
     cmul_pk(T0_, L16R, PR, R0) + cmul_pk(T1_, L16R, T0_, R0 + 2) + cmul_pk(PR, L16R, T1_, R1) + h0['C']),
    (GA[3], h1['rd'] + publish + h0['fin'], h1['A']),
    (GA[4], h1['ex'], h1['B']),
    (GA[5], h1['rc'], h1['C']),
    (31, h1['fin'], [])])
P += stamp('F1')

LBA = [CR, NCI]
LBE = [NCR, L16R]
LBD = [ASc[0], QG[0]]
FLV = L16I
lb_loads = '\n'.join(f'buffer_load_dwordx4 {vr(LBD[e], 4)}, v{LBA[e]}, {srd(sWS)}, 0 offen sc1' for e in range(2))
lb_setup = fetch(lba0=LBA[0], lba1=LBA[1], lbe0=LBE[0], lbe1=LBE[1])


def flag_store(stage, toks):
    out = [Wait(*toks), I(f'buffer_store_dword v{FLV}, v{FLA}, {srd(sWS)}, 0 offen offset:{128 * stage} sc1')]
    if OPT['ppf']:
        so = (sFST[0], sSST, sFST[2])[stage]
        vpf = L128R if stage else t3
        out = [I(f'v_lshlrev_b32 v{vpf}, {6 if stage < 2 else "s%d" % sSEL[1]}, v{vL}')] + out
        out.append(I(f'buffer_load_dword a{60 + (stage & 1)}, v{vpf}, {srd(sWS)}, s{so} offen sc1'))
    return out


def flag_load(stage):
    return f'buffer_load_dword v{t3}, v{FLP}, {srd(sWS)}, 0 offen offset:{128 * stage} sc1'


flag_check = f'v_cmp_ne_u32 vcc, s{sTAG}, v{t3}'
lb_check = f"""v_bitop3_b32 v{t0}, v{LBD[0] + 1}, v{LBD[0] + 3}, v{LBE[0]} bitop3:0x7e
    v_bitop3_b32 v{t1}, v{LBD[1] + 1}, v{LBD[1] + 3}, v{LBE[1]} bitop3:0x7e
    v_or_b32 v{t0}, v{t0}, v{t1}
    v_cmp_ne_u32 vcc, 0, v{t0}"""
lb_part = stamp('lb0') + poll('lb', lb_loads, lb_check) + stamp('lb1')
lb_part += cmul_add(LBD[0] + 1, LBD[0] + 3, L128R, L128I, LBD[0], LBD[0] + 2, LBD[1], LBD[1] + 2)
lb_part += cmul_add(LBD[1], LBD[1] + 1, WR, WI, LBD[0] + 1, LBD[0] + 3)
lb_part += fetch(lbw=t1)
lb_part.append(I(f'ds_write_b64 v{t1}, {vr(LBD[1], 2)}', tok='lbw'))
HW, HR, HB = ASc[0], ASc[1], FACC[1]
HW2, HR2 = WR, WI
tail_addr = fetch(lbr=ASc[3]) + ([] if OPT['pre0'] else fetch(fla=FLA, flp=FLP) + L(f'v_mov_b32 v{FLV}, s{sTAG}'))
lb_reads = [I(f'ds_read2_b64 {vr(HB + 4 * q, 4)}, v{ASc[3]} offset0:{64 * q} offset1:{64 * q + 32}') for q in range(4)]
scan = [I(f'v_pk_add_f32 {vr(HB + a, 2)}, {vr(HB + a, 2)}, {vr(HB + b_, 2)}')
        for a, b_ in ((0, 2), (4, 6), (8, 10), (12, 14), (0, 4), (8, 12), (0, 8))]
scan += cmul_add(L128R, L128I, LSR, LSI, HB, HB + 1, PR, PI)
pack = lambda q: L(f"""v_cvt_pk_bf16_f32 v{SRE + q}, v{V(2 * q)}, v{V(2 * q + 1)}
    v_cvt_pk_bf16_f32 v{SIM + q}, v{V(2 * q) + 1}, v{V(2 * q + 1) + 1}""")
for r in range(16):
    prev = vr(L128R if r == 0 else V(r - 1), 2)
    scan += L(f"""v_pk_fma_f32 {vr(V(r), 2)}, {prev}, {vr(LR, 2)}, {vr(V(r), 2)} op_sel_hi:[1,0,1]
        v_pk_fma_f32 {vr(V(r), 2)}, {prev}, {vr(NLI, 2)}, {vr(V(r), 2)} op_sel:[1,0,0] op_sel_hi:[0,1,1]""")
    if r >= 2 and r % 2 == 0 and OPT['pk_in']:
        scan += pack(r // 2 - 1)
HRS = AS
transp = fetch(hw=HW, hw2=HW2, hr=HRS[0]) + [I(f'v_xor_b32 v{HRS[n]}, {16 * n}, v{HRS[0]}') for n in (1, 2, 3)] + sum((pack(q) for q in range(7 if OPT['pk_in'] else 0, 8)), [])
for ri in range(2):
    transp += [I(f'ds_write_b128 v{(HW, HW2)[h]}, {vr((SRE, SIM)[ri] + 4 * h, 4)}') for h in range(2)]
    for fr in range(2):
        for u in range(2):
            transp.append(I(f'ds_read_b64_tr_b16 {ar(aOS + 8 * ri + 4 * fr + 2 * u, 2)}, v{HRS[2 * u + fr]} offset:{256 * u}'))
stH = [I(f'buffer_store_dwordx4 {ar(aOS + 4 * q, 4)}, v{VL16}, {srd(sWS)}, s{sSST} offen offset:{1024 * q} sc1',
         tok='stH' if q == 3 else None) for q in range(4)]
steps = ([('WA0', x, 'own') for x in range(4)]
         + [(n, x, 'own') for n in ('CR0', 'CI0') for x in range(2)]
         + [(f'WA{e}', x, 'A') for e in (1, 2, 3) for x in range(4)]
         + [(n, x, 'H') for n in ('CR0', 'CI0') for x in (2, 3)]
         + [(n, x, 'H') for n in ('CR1', 'CI1') for x in range(4)]
         + [('WB0', x, 'own') for x in range(4)]
         + [(f'WB{e}', x, 'B') for e in (1, 2) for x in range(4)])
deferred = [k for k, st in enumerate(steps) if st[2] != 'own']
A_REGS = ([192 + 4 * n for n in range(16)] + [SRE + 4 * n for n in range(8)]
          + [FACC[0] + 4 * n for n in range(4)] + [TT + 4 * n for n in range(4)])
ACC = [128, 144, 160, 176]
PRE = [8, 9, 12, 13, 16, 17] if OPT['pre0'] else []
cur_addr = {}


def a_frag(k):
    name, x, src = steps[k]
    if k in PRE:
        return ar(160 + 4 * PRE.index(k), 4)
    if src != 'own':
        return vr(A_REGS[deferred.index(k)], 4)
    if name == 'WA0':
        return ar(aOF + 4 * x, 4)
    if name == 'WB0':
        return ar(aOF + 16 + 4 * x, 4) if x < 2 else vr(FACC[1] + 4 * (x - 2), 4)
    return ar(aOS + 8 * (name[1] == 'I') + 4 * x, 4)


def a_load(k):
    name, x, src = steps[k]
    e = int(name[2])
    if name[0] == 'C':
        so, off = sAO['H'][2 * e + (x >> 1)], 2048 * (name[1] == 'I') + 1024 * (x & 1)
    else:
        so, off = sAO[name[1]][e], 1024 * x
    return [I(f'buffer_load_dwordx4 {a_frag(k)}, v{VL16}, {srd(sWS)}, s{so} offen offset:{off} sc1')]


h0, h1 = mish_stages(1, 0), mish_stages(1, 1)
g0, g1 = mish_stages(2, 0), mish_stages(2, 1)
pin = pins((0, rw('CR0')), (OPT['ci0'], rw('CI0')), (OPT['wa1'], rw('WA1')),
           *([(OPT['w2b'], BAR()), (OPT['wa2e'], rw('WA2'))] if OPT['wa2e'] else []), *([(15 - LA_F, BAR('G10', 'G11'))] if OPT['bsb'] else []), (29, BAR('lbw') + lb_reads + g0['rd'] + g1['rd']), (OPT['lbl'], L(lb_loads)),
           *[(25, stage_load(n)) for n in staged_names[3:4]])
if PRE:
    pin.setdefault(0, []).extend(fetch(fla=FLA, flp=FLP) + L(f'v_mov_b32 v{FLV}, s{sTAG}'))
    pin.setdefault(OPT['p0s'], []).extend(flag_store(3, ['stF0']))
    pin.setdefault(OPT['p0l'], []).extend(L(flag_load(3)))
GB = [int(x) for x in str(OPT['stg2']).split('.')]
P += staged(fine('F2', F_items[2], 2), pin, [
    (GB[0], h0['rd'] + h1['rd'] + lb_setup, h0['A']),
    (GB[1], h0['ex'], h0['B'] + h1['A']),
    (GB[2], h0['rc'] + h1['ex'], h0['C'] + h1['B']),
    (GB[3], h0['fin'] + h1['rc'], h1['C']),
    (28, h1['fin'] + lb_part + tail_addr, []),
    (31, [], [])])
P += stamp('F2')
burst = scan + g0['A']
if PRE:
    nb = len(burst) - OPT['p0c']
    burst = burst[:nb] + poll('f0', flag_load(3), flag_check) + merge(burst[nb:], sum((a_load(k) for k in PRE), []))
if OPT['fas'] < 0:
    burst = burst[:OPT['fas']] + flag_store(0, ['stF0', 'stF1']) + burst[OPT['fas']:]
if OPT['fine'] == 'T':
    for n in range(len(burst) - 12, 0, -12):
        burst = burst[:n] + stamp(f'g{n}') + burst[n:]
P += burst
P += stamp('scan')


FP0, CP0, FPc = [NLI, LI, LR, CR], [NCI, NCR], QG
PA = OPT['pa']
p3_setup = fetch(fp0=FP0[0], fp1=CP0[0], f3o=ASc[2]) + [I(f'v_xor_b32 v{FP0[n]}, {32 * n}, v{FP0[0]}') for n in (1, 2, 3)]
p3_setup.append(I(f'v_xor_b32 v{CP0[1]}, 64, v{CP0[0]}'))
hs = OPT['hs']
lead = [i_ for i_ in transp if i_.kind != 'ds']
tds = transp[len(lead):]
P += lead
tpins = [(0, tds[0:1]), (1, tds[1:2]), (2, tds[2:4]), (3, tds[4:6]), (4, tds[6:7]), (5, tds[7:8] + stH[0:1]),
         (6, tds[8:10]), (7, tds[10:12] + stH[1:2]), (7 + hs, stH[2:3]), (7 + 2 * hs, stH[3:4])]

pin = pins(*([] if OPT['wa2e'] else [(PA, rw2('WA2'))]), (PA + 8, BAR()), (PA + 9, rw2('WA3')), (PA + 17, BAR()), (PA + 18, rw2('CR1')),
           (OPT['fal'], L(flag_load(0))), (OPT['f3b'], BAR('WA0', 'CR0', 'CI0', 'WA1')), *tpins,
           *([(OPT['f3b'] + 1, rw('CI1'))] if OPT['f3b'] < 26 else []))
if OPT['fhs'] >= 0:
    pin.setdefault(OPT['fhs'], []).extend(flag_store(1, ['stH']))
if OPT['fas'] >= 0:
    pin.setdefault(OPT['fas'], []).extend(flag_store(0, ['stF0', 'stF1']))
m3 = mish_pk(3, ASc[2])
GC = [int(x) for x in str(OPT['stg3']).split('.')]
P += staged(fine('F3', F_items[3], 2), pin, [
    (GC[0], g0['ex'], g0['B'] + g1['A']),
    (GC[1], g0['rc'] + g1['ex'], g0['C'] + g1['B']),
    (GC[2], g0['fin'] + g1['rc'], g1['C']),
    (29, g1['fin'][:4] + m3[:4] + g1['fin'][4:] + p3_setup, []),
    (31, [], [])])
P += stamp('F3')

m3 = m3[4:]
st0 = 40
REST = [k for k in range(8, 20) if k not in PRE]
early = sum((a_load(k) for k in REST[:OPT['nea']]), [])
if not OPT['ovl']:
    fac = st0 - OPT['fac']
    TAIL0 = len(P)
    P += m3[:fac] + (flag_store(1, ['stH']) if OPT['fhs'] == -1 and not OPT['fhp'] else [])
    P += stamp('fa0') + poll('fa', flag_load(0), flag_check) + stamp('fa1')
    tl = merge(m3[fac:st0], early) + (flag_store(1, ['stH']) if OPT['fhp'] else []) + m3[st0:]
    TAIL1 = len(P) + len(tl) - len(m3) + st0
    if OPT['fine'] == 'T':
        for n in range(len(tl) - 12, 0, -12):
            tl = tl[:n] + stamp(f'gt{n}') + tl[n:]
    P += tl
    P += stamp('tail')

XE, ME = 192, LSR
ep_setup = L(f"""v_lshrrev_b32 v{t1}, 5, v{vL}
    s_lshl_b32 s{sT2}, s{sW}, 8
    s_add_u32 s{sT2}, s{sT2}, {T_STAT}
    v_lshl_add_u32 v{VLN2}, v{t1}, 4, s{sT2}
    v_lshlrev_b32 v{FA0}, 13, v{t1}
    v_and_b32 v{t0}, 31, v{vL}
    v_lshl_add_u32 v{FA0}, v{t0}, 2, v{FA0}""")
VL4 = ASc[0]
ep_setup = L(f'v_lshlrev_b32 v{VL4}, 2, v{vL}') + ep_setup
base_calc = [I(f'v_accvgpr_read_b32 v{RL2}, a{aXE + 16}')]
for qt in range(4):
    base_calc += [I(f'ds_read_b128 {vr(ME, 4)}, v{VLN2} offset:{4 * ROW(4 * qt)}', hoist=True),
                  I(f'ds_read_b128 {vr(ME + 4, 4)}, v{VLN2} offset:{128 + 4 * ROW(4 * qt)}', hoist=True)]
    rs = range(4)
    base_calc += [I(f'v_accvgpr_read_b32 v{XE + 4 * qt + r}, a{aXE + 4 * qt + r}') for r in rs]
    base_calc += [I(f'v_sub_f32 v{ME + r}, v{XE + 4 * qt + r}, v{ME + r}') for r in rs]
    base_calc += [I(f'v_mul_f32 v{ME + r}, v{ME + r}, v{ME + 4 + r}') for r in rs]
    base_calc += [I(f'v_fmac_f32 v{XE + 4 * qt + r}, v{ME + r}, v{RL2}') for r in rs]

def checksum(dst, src, last):
    return [f'v_bitop3_b32 v{dst}, v{src}, v{src + 1}, {last} bitop3:0x96'] + \
           [f'v_bitop3_b32 v{dst}, v{src + e}, v{src + e + 1}, v{dst} bitop3:0x96' for e in (2, 4, 6)]


def send(b):
    A = ACC[b]
    out = []
    for q in range(2):
        out += [I(f'v_cvt_pk_bf16_f32 v{A + e}, v{A + 2 * e}, v{A + 2 * e + 1}') for e in range(4 * q, 4 * q + 4)]
        out.append(I(f'buffer_store_dwordx4 {vr(A + 4 * q, 4)}, v{VL16}, {srd(sWS)}, s{sXO[b]} offen '
                     f'offset:{1024 * q} sc1'))
    out += [I(c) for c in checksum(A + 8, A, f's{sTAG}')]
    out.append(I(f'buffer_store_dword v{A + 8}, v{VL4}, {srd(sWS)}, s{sXO[b]} offen offset:2048 sc1'))
    return out


def w_read1(k, b, dst):
    name, x, src = steps[k]
    slot = W_SLOT[name]
    out = []

    def address(cur, base):
        if slot < 4:
            return base, slot * SLOT
        if not 0 <= slot - cur_addr.get(cur, -9) < 4:
            cur_addr[cur] = 4 if slot == 4 else 5
            out.append(I(f'v_add_u32 v{cur}, {cur_addr[cur] * SLOT}, v{base}'))
        return cur, (slot - cur_addr[cur]) * SLOT

    if name[0] == 'C':
        a, off = address(AS[x >> 1], CP0[x >> 1])
        return out + [I(f'ds_read_b128 {ar(dst, 4)}, v{a} offset:{off + 4096 * b + 2048 * (x & 1)}', lds_r=slot)]
    var = 2 * (b & 1) + (x & 1)
    a, off = address(FPc[var], FP0[var])
    return out + [I(f'ds_read_b64_tr_b16 {ar(dst + 2 * u, 2)}, v{a} '
                    f'offset:{off + 8192 * (x >> 1) + 4096 * (b >> 1) + 1024 * u}', lds_r=slot) for u in range(2)]


RX = {1: ACC[1], 2: ACC[2], 3: ACC[3]}


def recv(b):
    so = sXO[0] if b == 1 else sSEL[b]
    rl = [f'buffer_load_dwordx4 {vr(RX[b] + 4 * q, 4)}, v{VL16}, {srd(sWS)}, s{so} offen offset:{1024 * q} sc1' for q in range(2)]
    rl.append(f'buffer_load_dword v{RX[b] + 8}, v{VL4}, {srd(sWS)}, s{so} offen offset:2048 sc1')
    return '\n'.join(rl)


pre = L(f"""s_lshl_b32 s{sXB}, s{sXB}, 1
    s_mov_b32 s{sKC[0]}, 0x00003f80
    s_mov_b32 s{sKC[1]}, 0x3f800000""")
E3 = OPT['e3']
D0 = OPT['d0']
seq = [(k, b) for k in range(D0) for b in (1, 2, 3, 0)] + [(k, b) for k in range(D0, E3) for b in (1, 2, 3)]
seq += [(k, b) for k in range(E3, 36) for b in (1, 2)]
seq += [(k, b) for b in (1, 2) for k in range(36, 44)]
own8 = [(k, 0) for k in range(8, 12)]
seq += (own8 if OPT['o8'] else []) + [(k, 3) for k in range(E3, 44)] + ([] if OPT['o8'] else own8)
seq += [(k, 0) for k in list(range(D0, 8)) + list(range(12, 44))]
at = {kb: n for n, kb in enumerate(seq)}
done_at = {b: at[43, b] for b in (1, 2, 3)}
KEEP = {(k, 0): aWO + 4 * (k - 8) for k in range(8, 12)}
KEEP.update({(k, 0): aWO + 16 + 4 * k for k in range(D0, 4)})
reads = sorted((kb for kb in seq), key=lambda kb: at[kb[0], 3] + 0.5 if kb in KEEP else at[kb])
RING = 12
where, nring = {}, 0
for kb in reads:
    if kb in KEEP:
        where[kb] = KEEP[kb]
    else:
        where[kb] = aP + 4 * (nring % RING)
        nring += 1
LA_J = OPT['laj']
items = []
rd = 0
seen = set()
for n, (k, b) in enumerate(seq):
    pre_rd = []
    while rd < len(reads) and (at[reads[rd][0], 3] if reads[rd] in KEEP else at[reads[rd]]) <= n + LA_J:
        pre_rd += w_read1(*reads[rd], where[reads[rd]])
        rd += 1
    mm = []
    for a in range(2):
        d = vr(ACC[b] + 8 * a + 4 * (k & 1), 4)
        mm.append(I(f'v_mfma_f32_16x16x32_bf16 {d}, {a_frag((k & ~1) + a)}, {ar(where[k, b], 4)}, '
                    f'{d if (b, k & 1) in seen else 0}'))
    seen.add((b, k & 1))
    if n == 0:
        if OPT['ovl']:
            k_ = max(n_ for n_, i_ in enumerate(P) if i_.kind == 'barrier') + 1
            P = P[:k_] + pre_rd + P[k_:]
        elif OPT['wmix']:
            end = len(P) - (PROF in (1, 2)) - 10
            P = P[:TAIL1] + merge(P[TAIL1:end], pre_rd) + P[end:]
        else:
            P = P[:TAIL0] + pre_rd + P[TAIL0:]
        pre_rd = []
    nds = [n_ for n_, i_ in enumerate(pre_rd) if i_.kind == 'ds']
    half = nds[len(nds) // 2] if OPT['bal'] and len(nds) > 1 else len(pre_rd)
    items.append([mm[0]] + pre_rd[:half] + [mm[1]] + pre_rd[half:])
pin = {n: [] for n in range(len(items))}
B1 = at[4, 1] + 2
pin[B1] += BAR('WA2')
pin[at[16, 1] - LA_J - 1] += [Wait('WA3', 'CR1', 'CI1'), I('s_barrier')]
pin[at[32, 1] - LA_J - 1] += [Wait('WB0', 'WB1', 'WB2'), I('s_barrier')]
if OPT['fhs'] < -1:
    pin[-OPT['fhs']] += flag_store(1, ['stH'])
if OPT['fhl'] >= 0:
    pin[OPT['fhl']] += L(flag_load(1))
pin[OPT['fhc']] += stamp('fh0') + poll('fh', flag_load(1), flag_check) + stamp('fh1')
pin[OPT['fls']] += flag_store(2, ['stF3', 'stF2'])
pin[OPT['fll']] += L(flag_load(2))
pin[OPT['flc']] += stamp('fl0') + poll('fl', flag_load(2), flag_check) + stamp('fl1')
pin[at[36, 1] - 1] += stamp('k36')
for name, gap in (('CI1', 1), ('WB0', 19), ('WB1', 24), ('WB2', at[16, 1] - LA_J)):
    if name in STAGE:
        for n, i_ in enumerate(stage_write(name)):
            pin[gap + max(n - 2, 0)].append(i_)
_rw = rw
rw = lambda name: [] if name in STAGE else _rw(name)
queue = []
if OPT['ovl']:
    pin[OPT['ofa']] += stamp('fa0') + poll('fa', flag_load(0), flag_check) + stamp('fa1')
    queue += [(OPT['ofa'], a_load(k)) for k in range(8, 8 + OPT['nea'])]
queue += [(OPT['q0'], a_load(k)) for k in REST[OPT['nea']:] if k < 16] + ([] if OPT['f3b'] < 26 else [(0, rw('CI1'))])
queue += [(OPT['q0'], a_load(k)) for k in REST[OPT['nea']:] if k >= 16]
if OPT['qord'] == 0:
    queue += [(B1 + 1, rw('WB0'))] + [(OPT['fhc'], a_load(k)) for k in range(20, 32)] + [(B1 + 1, rw('WB1'))]
elif OPT['qord'] == 1:
    queue += [(B1 + 1, rw('WB0')), (B1 + 1, rw('WB1'))] + [(OPT['fhc'], a_load(k)) for k in range(20, 32)]
else:
    queue += [(OPT['fhc'], a_load(k)) for k in range(20, 24)] + [(B1 + 1, rw('WB0')), (B1 + 1, rw('WB1'))]
    queue += [(0, a_load(k)) for k in range(24, 32)]
queue += [(at[16, 1] - LA_J, rw('WB2'))]
queue += [(OPT['flc'], a_load(k)) for k in range(36, 44)]
n = 0.0
for first_gap, ins in queue:
    n = max(n, first_gap)
    pend = []
    for i_ in ins:
        pend.append(i_)
        if i_.kind == 'vm':
            pin[int(n)] += pend
            pend = []
            n += OPT['pace'] / 10
for b in (1, 2, 3):
    sd = send(b)
    for q in range(4):
        pin[done_at[b] + 3 + q] += sd[q * len(sd) // 4:(q + 1) * len(sd) // 4]
    pin[done_at[min(b + 1, 3) if b < 3 else 3] + OPT[f'r{b}'] if b != 2 else done_at[2] + OPT['r2']] += L(recv(b))
pin[done_at[2] + 6] += stamp('s12')
pin[done_at[3] + 6] += stamp('sent')
items = fine('P3', items[:OPT['fn'] * 27], OPT['fn']) + items[OPT['fn'] * 27:]
LEV[0] = OPT['lev3']
sub = lambda lo, hi: {n - lo: pin[n] for n in range(lo, hi)}
unit_weave = weave


def weave(its, fill_, pin_, lo=0, hi=None):
    if not OPT['fineg']:
        return unit_weave(its, fill_, pin_, lo, hi)
    flat, pin2 = [], {}
    for n, it in enumerate(its):
        cut_ = max(k_ for k_, i_ in enumerate(it) if i_.kind == 'mfma')
        flat += [it[:cut_], it[cut_:]]
        ordered = any(i_.kind in ('barrier', 'pseudo', 'label') for i_ in pin_.get(n, []))
        first = len(flat[-2]) < len(flat[-1]) and not ordered
        pin2[2 * n + (0 if first else 1)] = pin_.get(n, [])
    return unit_weave(flat, fill_, pin2, 2 * lo, None if hi is None else 2 * hi + 1)


c1, c2 = at[32, 1], at[11, 0] + 1
if OPT['ovl']:
    GD = [int(x) for x in str(OPT['stg4']).split('.')]
    both = lambda lo, hi: m3[lo:hi] + m3[40 + lo:40 + hi]
    P += staged(items[:c1], pin, [(GD[0], [], both(0, 4)), (GD[1], both(4, 12), both(12, 20)),
                                  (GD[2], both(20, 28), both(28, 36)),
                                  (GD[3], both(36, 40) + m3[80:] + stamp('tail'), []), (c1 - 1, [], [])])
else:
    P += weave(items[:c1], [], sub(0, c1))
P += weave(items[c1:c2], ep_setup + pre, sub(c1, c2), 0, 6)
SWAPS = lambda R: [I(f'v_permlane16_swap_b32 v{R + 8 * a + r}, v{R + 8 * a + 4 + r}') for a in range(2) for r in range(4)]
base_calc += SWAPS(XE)


def rx_check(b):
    chk = checksum(RX[b] + 9, RX[b], f'v{RX[b] + 8}') + [f'v_cmp_ne_u32 vcc, s{sTAG}, v{RX[b] + 9}']
    return poll(f'rx{b}', '\n'.join(recv(x) for x in range(b, 4 if OPT['rxall'] else b + 1)), '\n'.join(chk))


EARLY = range(1, 1 + OPT['rxe'])
for b in EARLY:
    base_calc += rx_check(b)
    for q in range(8):
        u = RX[b] + 10 + 2 * (q & 1)
        base_calc += L(f"""v_lshlrev_b32 v{u}, 16, v{RX[b] + q}
            v_and_b32 v{u + 1}, 0xffff0000, v{RX[b] + q}
            v_add_f32 v{XE + 2 * q}, v{XE + 2 * q}, v{u}
            v_add_f32 v{XE + 2 * q + 1}, v{XE + 2 * q + 1}, v{u + 1}""")
P += weave(items[c2:], base_calc, sub(c2, len(items)), 3, len(items) - c2 - (3 if OPT['rxe'] else 6))
P += stamp('own')
A0 = ACC[0]
for q in range(8):
    P.append(I(f'v_pk_add_f32 {vr(A0 + 2 * q, 2)}, {vr(A0 + 2 * q, 2)}, {vr(XE + 2 * q, 2)}'))
LATE = [b for b in (1, 2, 3) if b not in EARLY]
for b in LATE:
    P += rx_check(b)
    if OPT['seqadd'] and b < 3:
        P += [I(f'v_dot2c_f32_bf16 v{A0 + 2 * q + h}, s{sKC[h]}, v{RX[b] + q}') for q in range(8) for h in range(2)]
if OPT['seqadd']:
    LATE = [3]
P += stamp('rx')
sts = []
for a in range(2):
    for q in range(4 * a, 4 * a + 4):
        for b in LATE:
            P += [I(f'v_dot2c_f32_bf16 v{A0 + 2 * q + h}, s{sKC[h]}, v{RX[b] + q}') for h in range(2)]
        P += sts[3 * (q & 3):3 * (q & 3) + 3]
    P += SWAPS(A0)[4 * a:4 * a + 4]
    sts = []
    for q in range(4 * a, 4 * a + 4):
        sts.append(I(f's_add_u32 s{sBB}, s{sXB}, {2048 * ROW(2 * q)}'))
        sts += [I(f'buffer_store_dword v{A0 + 2 * q + h}, v{FA0}, {srd(sOUT)}, s{sBB} offen offset:{2048 * h} '
                  f'{OPT["out_flags"].replace("+", " ")}') for h in range(2)]
P += L(f"""s_lshl_b32 s{sT2}, s{sJ}, 2
    s_add_u32 s{sT2}, s{sT2}, s{sW}
    s_xor_b32 s{sT1}, s{sI}, 15
    s_or_b32 s{sT2}, s{sT2}, s{sT1}
    s_cmp_eq_u32 s{sT2}, 0
    s_cselect_b32 s{sT2}, {WS_EP}, {OOB:#x}
    v_mov_b32 v{t0}, s{sE2}
    v_mov_b32 v{t1}, s{sT2}""") + sts + L(f'buffer_store_dword v{t0}, v{t1}, {srd(sWS)}, 0 offen')
if OPT['diag']:
    P += stamp('end') + L("""s_memrealtime s[6:7]
        s_waitcnt lgkmcnt(0)
        s_sub_u32 s4, s4, s23
        s_lshl_b32 s4, s4, 2
        s_min_u32 s4, s4, 20000
        L_diag:
        s_memrealtime s[0:1]
        s_waitcnt lgkmcnt(0)
        s_sub_u32 s0, s0, s6
        s_cmp_lt_u32 s0, s4
        s_cbranch_scc1 L_diag""")
if OPT['dbg']:
    P += L(f"""s_memrealtime s[6:7]
        s_mov_b32 s{sTMP}, s4
        s_mov_b32 s{sTMP + 1}, s5
        s_mov_b32 s{sTMP + 2}, 256
        v_lshlrev_b32 v{t0}, 2, v{vL}
        v_lshrrev_b32 v{t1}, v{t0}, s23
        v_and_b32 v{t1}, 15, v{t1}
        v_min_u32 v{t1}, 1, v{t1}
        v_mov_b32 v{t2}, {OOB:#x}
        v_cmp_gt_u32 vcc, 7, v{vL}
        s_waitcnt lgkmcnt(0)
        v_cndmask_b32 v{t0}, v{t2}, v{t0}, vcc
        buffer_atomic_add v{t1}, v{t0}, {srd(sTMP)}, 0 offen
        s_sub_u32 s6, s6, s19
        v_mov_b32 v{t1}, s6
        v_cmp_eq_u32 vcc, 8, v{vL}
        v_lshlrev_b32 v{t0}, 2, v{vL}
        s_nop 0
        v_cndmask_b32 v{t0}, v{t2}, v{t0}, vcc
        buffer_atomic_umax v{t1}, v{t0}, {srd(sTMP)}, 0 offen""")
if PROF:
    P += stamp('end')
    P += L(f"""s_waitcnt vmcnt(0)
        s_memrealtime s[0:1]
        s_lshl_b32 s{sT2}, s2, 2
        s_add_u32 s{sT2}, s{sT2}, s{sW}
        s_lshl_b32 s{sT2}, s{sT2}, 7
        s_add_u32 s{sT2}, s{sT2}, {WS_PROF}
        v_mov_b32 v{t1}, s{sT2}
        s_waitcnt lgkmcnt(0)
        v_mov_b32 v{t0}, s0
        buffer_store_dword v{t0}, v{t1}, {srd(sWS)}, 0 offen offset:124
        v_mov_b32 v{t2}, s23
        buffer_store_dword v{t2}, v{t1}, {srd(sWS)}, 0 offen offset:112
        buffer_store_dword a254, v{t1}, {srd(sWS)}, 0 offen offset:116
        buffer_store_dword a255, v{t1}, {srd(sWS)}, 0 offen offset:120""")
    P += stamp('DUMP')
P += [I('L_end:'), I('s_endpgm')]

P = resolve_stamps(P)
if OPT['split']:
    P = split_ds_pairs(P)
if OPT['hoist']:
    P = hoist_reads(P, OPT['hoist'])
body = pad_hazards(insert_waits(P, OPT['age']))
check_polls(body)
tail = []
for name, loads, check in retry_blocks:
    blk = [I(f'L_retry_{name}:'), I(f's_mov_b32 s3, {OPT["spin"]}'), I(f'L_spin_{name}:')]
    if PROF or OPT['dbg']:
        blk.append(I(f's_add_u32 s23, s23, {1 << (4 * retry_blocks.index((name, loads, check)))}'))
    blk += L(loads) + [I('s_waitcnt vmcnt(0)')] + L(check)
    blk += L(f'''s_cbranch_vccz L_back_{name}
        s_sub_u32 s3, s3, 1
        s_cmp_lg_u32 s3, 0
        s_cbranch_scc1 L_spin_{name}
        s_branch L_back_{name}''')
    tail += pad_hazards(blk)

hdr = open(os.path.join(os.path.dirname(os.path.abspath(__file__)), 'header.txt')).read()
text = hdr + f'''; @launch grid=(256,1,1) block=(256,1,1) lds=163840
.amdgcn_target "amdgcn-amd-amdhsa--gfx950"
.text
.globl {KN}
.p2align 8
.type {KN},@function
{KN}:
{render(body)}
{render(tail)}
L_code_end:
    s_endpgm
.section .rodata,"a"
.p2align 6
.amdhsa_kernel {KN}
  .amdhsa_next_free_vgpr 512
  .amdhsa_next_free_sgpr 102
  .amdhsa_accum_offset 256
  .amdhsa_group_segment_fixed_size 0
  .amdhsa_kernarg_size 128
  .amdhsa_user_sgpr_count 2
  .amdhsa_user_sgpr_kernarg_segment_ptr 1
  .amdhsa_system_sgpr_workgroup_id_x 1
.end_amdhsa_kernel
'''
open(sys.argv[1], 'w').write(text)
if PROF:
    open(sys.argv[1][:-2] + '.stamps', 'w').write(' '.join(stamp_names))
from collections import Counter
cnt = Counter(i.kind for i in body)
print(dict(cnt), 'nops', sum(1 for i in body if i.mn == 's_nop'))
import subprocess
chk = subprocess.run([sys.executable, 'cdna_unwritten_srd_check.py', sys.argv[1]],
                     capture_output=True, text=True)
if chk.returncode != 0:
    os.remove(sys.argv[1])
    sys.exit('address check failed: ' + chk.stdout[-600:])
```
